```python
import torch

def _softmax(x, axis=-1):
    return torch.softmax(x, dim=axis)
def _gelu(x):
    return torch.nn.functional.gelu(x, approximate="tanh")
def _silu(x):
    return torch.nn.functional.silu(x)
def _sigmoid(x):
    return torch.sigmoid(x)
def _layernorm(x, axis=-1, eps=1e-5):
    m = x.mean(dim=axis, keepdim=True)
    v = x.var(dim=axis, keepdim=True, unbiased=False)
    return (x - m) / torch.sqrt(v + eps)
def _scatter_add(tgt, idx, src, axis=0):
    return tgt.clone().index_add_(axis, idx, src)
def _segment_sum(src, seg, n):
    out = torch.zeros((n,) + src.shape[1:], dtype=src.dtype)
    return out.index_add_(0, seg, src)
def _pad(x, pw):
    flat = tuple(v for pair in reversed(pw) for v in pair)
    return torch.nn.functional.pad(x, flat)

kernel_name = 'standalone__edge_featured_mpnn_gatedgcn__graph'

def setup_inputs():

    _w = (lambda a: (lambda t: t.to(torch.bfloat16) if t.is_floating_point() else t)(torch.as_tensor(a)))
    N, deg, D, De = 12500, 64, 64, max(0, 1)
    E = N * deg
    return {
        "x": _w((lambda *s: torch.randn(*s, dtype=torch.bfloat16) * 0.8)(N, D)),
        "e_attr": _w((lambda *s: torch.randn(*s, dtype=torch.bfloat16) * 0.8)(E, De)),
        "src": _w((lambda lo, hi, *s: torch.randint(lo, hi, s))(0, N, E).to(torch.int64)),
        "dst": _w((lambda lo, hi, *s: torch.randint(lo, hi, s))(0, N, E).to(torch.int64)),
        "w_a": _w((lambda *s: torch.randn(*s, dtype=torch.bfloat16) * 0.8)(D, D)),
        "w_b": _w((lambda *s: torch.randn(*s, dtype=torch.bfloat16) * 0.8)(D, D)),
        "w_c": _w((lambda *s: torch.randn(*s, dtype=torch.bfloat16) * 0.8)(De, D)),
        "w_u": _w((lambda *s: torch.randn(*s, dtype=torch.bfloat16) * 0.05)(D, D)),
        "w_v": _w((lambda *s: torch.randn(*s, dtype=torch.bfloat16) * 0.05)(D, D)),
    }

def reference(x, e_attr, src, dst, w_a, w_b, w_c, w_u, w_v):
    N, D = x.shape
    hv = x @ w_v
    g = x[dst] @ w_a + x[src] @ w_b + e_attr @ w_c
    eta = _sigmoid(g)
    denom = _segment_sum(eta, dst, N) + 1e-6
    eta_n = eta / denom[dst]
    agg = _segment_sum(eta_n * hv[src], dst, N)
    z = x @ w_u + agg
    relu_z = torch.where(z > 0, z, 0 * z)
    return x + relu_z
```

```python
import sys, struct, math

OPT = dict(force_slow=0, st_flags="", prefetch=0)
for a in sys.argv[2:]:
    k, v = a.split("=")
    OPT[k] = int(v) if v.lstrip("-").isdigit() else v

N = 12500
E = 800000
CHUNK = 3200
NCHUNK = 250
TAB_ROWS = N + 1
DUMMY_OFF = N * 256
CELL_OFF = 0x400000
LINE_STRIDE = 0x800000
LOG2E = 1.4426950408889634

def f32(x):
    return struct.unpack("<I", struct.pack("<f", x))[0]

out = []
def o(s=""):
    out.append(s)
def I(s):
    out.append("    " + s)
def L(s):
    out.append(s + ":")
def vr(a, n=1):
    return f"v{a}" if n == 1 else f"v[{a}:{a+n-1}]"
def sr(a, n=1):
    return f"s{a}" if n == 1 else f"s[{a}:{a+n-1}]"

P_X, P_E, P_SRC, P_DST, P_WA, P_WB, P_WC, P_WU, P_WV, P_OUT, P_DBG, P_WS = 4, 6, 8, 10, 12, 14, 16, 18, 20, 22, 24, 26

def load_kernargs():
    I("s_load_dwordx16 s[4:19], s[0:1], 0")
    I("s_load_dwordx8 s[20:27], s[0:1], 64")

def srd(d, p, size, add=0):
    if add:
        I(f"s_add_u32 s{d}, s{p}, {hex(add)}")
        I(f"s_addc_u32 s{d+1}, s{p+1}, 0")
    else:
        I(f"s_mov_b32 s{d}, s{p}")
        I(f"s_mov_b32 s{d+1}, s{p+1}")
    I(f"s_mov_b32 s{d+2}, {hex(size)}")
    I(f"s_mov_b32 s{d+3}, 0x20000")

def gemm_w_loads(raw, srdw, voff):
    for kk in range(16):
        I(f"buffer_load_dwordx2 {vr(raw+2*kk,2)}, v{voff}, {sr(srdw,4)}, 0 offen offset:{kk*128}")

def gemm_mfma(raw, xa, T, acc, sel_lo, sel_hi):
    k = 0
    for t in range(4):
        u = t >> 1
        sel = sel_lo if (t & 1) == 0 else sel_hi
        for s in range(2):
            tt = T + 4 * (k & 1)
            k += 1
            for d in range(4):
                lo = raw + 2 * (8 * s + 2 * d) + u
                hi = raw + 2 * (8 * s + 2 * d + 1) + u
                I(f"v_perm_b32 v{tt+d}, v{hi}, v{lo}, s{sel}")
            I("s_nop 1")
            c = "0" if s == 0 else vr(acc + 4 * t, 4)
            I(f"v_mfma_f32_16x16x32_bf16 {vr(acc+4*t,4)}, {vr(xa+4*s,4)}, {vr(tt,4)}, {c}")

K1_IMG = 1024
K1_STRIDE = 400
K1_LDS = K1_IMG + 256 * K1_STRIDE

def gen_k1():
    o(".p2align 8")
    o(".globl gg_bin_kernel")
    o(".type gg_bin_kernel,@function")
    L("gg_bin_kernel")
    I("s_cmp_ge_u32 s2, 256")
    I("s_cbranch_scc1 K1_END")
    load_kernargs()
    I("v_lshrrev_b32 v1, 6, v0")
    I("v_and_b32 v2, 7, v0")
    I("v_readfirstlane_b32 s3, v1")
    I("v_lshrrev_b32 v3, 3, v0")
    I(f"v_mul_u32_u24 v4, {K1_STRIDE}, v3")
    I("v_lshl_add_u32 v4, v2, 4, v4")
    I("s_mov_b32 s29, 0")
    I("s_cmp_ge_u32 s3, 13")
    I("s_cbranch_scc1 K1_ROLE_G")
    I(f"s_cmp_lt_u32 s2, {NCHUNK}")
    I("s_cbranch_scc1 K1_ROLE_B")
    I("s_mul_i32 s28, s3, 6")
    I("s_add_u32 s28, s28, s2")
    I(f"s_sub_u32 s28, s28, {NCHUNK}")
    I("s_cmp_lt_u32 s28, 14")
    I("s_cbranch_scc0 K1_ROLE_I")
    I("s_add_u32 s28, s28, 768")
    I("s_branch K1_GEMM")
    L("K1_ROLE_G")
    I("s_mul_i32 s28, s2, 3")
    I("s_add_u32 s28, s28, s3")
    I("s_sub_u32 s28, s28, 13")

    def lds_init():
        I("s_and_b32 s30, s2, 3")
        I("s_lshl_b32 s30, s30, 5")
        I("s_add_u32 s30, s30, 256")
        I("v_lshl_add_u32 v9, v2, 2, s30")
        I("v_mov_b32 v8, 0")
        I("v_mov_b32 v10, 0")
        I("v_mov_b32 v11, v9")
        for b in range(2):
            for r in range(3):
                I(f"ds_write_b128 v4, v[8:11] offset:{K1_IMG + b*128*K1_STRIDE + r*128}")
        I("v_lshlrev_b32 v5, 2, v3")
        I("ds_write2st64_b32 v5, v8, v8 offset0:0 offset1:2")
        I("s_waitcnt lgkmcnt(0)")
        I("s_barrier")

    L("K1_GEMM")
    RAWB, RAWV, XA, T, ACCB, ACCV = 32, 64, 96, 24, 104, 32
    I("v_and_b32 v12, 15, v0")
    I("v_bfe_u32 v13, v0, 4, 2")
    I("s_lshl_b32 s30, s28, 11")
    I("v_lshlrev_b32 v14, 7, v12")
    I("v_lshl_add_u32 v14, v13, 5, v14")
    I("v_add_u32 v14, s30, v14")
    I("v_lshlrev_b32 v15, 11, v13")
    I("v_lshl_add_u32 v15, v12, 3, v15")
    I("s_waitcnt lgkmcnt(0)")
    srd(32, P_X, N * 128)
    srd(36, P_WB, 8192)
    srd(40, P_WV, 8192)
    srd(44, P_WS, N * 256)
    I(f"buffer_load_dwordx4 {vr(XA,4)}, v14, s[32:35], 0 offen")
    I(f"buffer_load_dwordx4 {vr(XA+4,4)}, v14, s[32:35], 0 offen offset:16")
    gemm_w_loads(RAWB, 36, 15)
    gemm_w_loads(RAWV, 40, 15)
    lds_init()
    I("s_mov_b32 s48, 0x05040100")
    I("s_mov_b32 s49, 0x07060302")
    I(f"s_mov_b32 s50, {hex(f32(-LOG2E))}")
    I(f"v_mov_b32 v16, {hex(f32(2.0**-70))}")
    I("v_lshlrev_b32 v14, 10, v13")
    I("v_lshl_add_u32 v14, v12, 4, v14")
    I("s_lshl_b32 s30, s28, 12")
    I("v_add_u32 v14, s30, v14")
    I("s_waitcnt vmcnt(16)")
    gemm_mfma(RAWB, XA, T, ACCB, 48, 49)
    I("s_waitcnt vmcnt(0)")
    gemm_mfma(RAWV, XA, T, ACCV, 48, 49)
    for i in range(16):
        I(f"v_fma_f32 v{ACCB+i}, v{ACCB+i}, s50, v16")
    for i in range(16):
        I(f"v_add_u32 v{ACCB+i}, 0x8000, v{ACCB+i}")
    for t in (1, 3):
        for r in range(4):
            I(f"v_add_f32 v{ACCV+4*t+r}, {hex(f32(2.0**-100))}, v{ACCV+4*t+r}")
    for i in range(16):
        I(f"v_add_u32 v{ACCV+i}, 0x8000, v{ACCV+i}")
    SD = "dst_sel:DWORD dst_unused:UNUSED_PAD src0_sel:DWORD src1_sel:WORD_1"
    for r in range(4):
        for t in (0, 2):
            I(f"v_sub_u32_sdwa v{ACCB+4*t+r}, v{ACCB+4*t+r}, v{ACCV+4*t+r} clamp {SD}")
    for r in range(4):
        for t in (0, 2):
            I(f"v_sub_u32_sdwa v{ACCV+4*(t+1)+r}, v{ACCV+4*(t+1)+r}, v{ACCB+4*t+r} clamp {SD}")
    for r in range(4):
        for t in (0, 2):
            I(f"v_sub_u32_sdwa v{ACCB+4*(t+1)+r}, v{ACCB+4*(t+1)+r}, v{ACCV+4*(t+1)+r} clamp {SD}")
    OUTR = 64
    for r in range(4):
        for t in range(4):
            I(f"v_perm_b32 v{OUTR+4*r+t}, v{ACCB+4*t+r}, v{ACCV+4*t+r}, s49")
        I(f"buffer_store_dwordx4 {vr(OUTR+4*r,4)}, v14, s[44:47], 0 offen offset:{r*256} {OPT['st_flags']}")
    I("s_branch K1_COPY")

    L("K1_ROLE_I")
    I("s_waitcnt lgkmcnt(0)")
    I("s_cmp_eq_u32 s28, 14")
    I("s_cbranch_scc0 K1_IDLE2")
    srd(44, P_WS, TAB_ROWS * 256)
    I("v_and_b32 v12, 63, v0")
    I("v_lshlrev_b32 v12, 2, v12")
    I(f"v_add_u32 v12, {DUMMY_OFF}, v12")
    I("v_mov_b32 v13, 0x7f000000")
    I("buffer_store_dword v13, v12, s[44:47], 0 offen")
    L("K1_IDLE2")
    lds_init()
    I("s_branch K1_COPY")

    L("K1_ROLE_B")
    D, S, EE = 16, 20, 24
    I(f"s_mul_i32 s30, s2, {CHUNK*4}")
    I(f"s_mul_i32 s31, s2, {CHUNK*2}")
    I("v_lshlrev_b32 v12, 4, v0")
    I("v_lshlrev_b32 v13, 3, v0")
    I(f"v_cmp_gt_u32 vcc, {CHUNK//4}, v0")
    I("s_mov_b64 s[52:53], vcc")
    I("s_waitcnt lgkmcnt(0)")
    srd(32, P_DST, E * 4)
    srd(36, P_SRC, E * 4)
    srd(40, P_E, E * 2)
    I("s_mov_b64 exec, s[52:53]")
    I(f"buffer_load_dwordx4 {vr(D,4)}, v12, s[32:35], s30 offen")
    I(f"buffer_load_dwordx4 {vr(S,4)}, v12, s[36:39], s30 offen")
    I(f"buffer_load_dwordx2 {vr(EE,2)}, v13, s[40:43], s31 offen")
    I("s_mov_b64 exec, -1")
    lds_init()
    I("s_mov_b64 exec, s[52:53]")
    I("v_mov_b32 v14, 8")
    I("s_movk_i32 s48, 100")
    I("s_mov_b32 s49, 0xffff0000")
    B4, RK, REC = 28, 32, 36
    I("s_waitcnt vmcnt(2)")
    for i in range(4):
        I(f"v_lshlrev_b32_sdwa v{B4+i}, 2, v{D+i} dst_sel:DWORD dst_unused:UNUSED_PAD src0_sel:DWORD src1_sel:BYTE_0")
        I(f"ds_add_rtn_u32 v{RK+i}, v{B4+i}, v14")
    for i in range(4):
        I(f"v_lshlrev_b32_sdwa v{D+i}, 2, v{D+i} dst_sel:DWORD dst_unused:UNUSED_PAD src0_sel:DWORD src1_sel:BYTE_1")
    I("s_waitcnt vmcnt(1)")
    for i in range(4):
        I(f"v_lshlrev_b32 v{REC+2*i}, 8, v{S+i}")
    I("s_waitcnt vmcnt(0)")
    for i in range(4):
        if i & 1:
            I(f"v_and_or_b32 v{REC+2*i+1}, v{EE+(i>>1)}, s49, v{D+i}")
        else:
            I(f"v_lshl_or_b32 v{REC+2*i+1}, v{EE+(i>>1)}, 16, v{D+i}")
    for i in range(4):
        I("s_waitcnt lgkmcnt(3)")
        I(f"v_min_u32 v{RK+i}, {47*8}, v{RK+i}")
        I(f"v_mad_u32_u24 v{RK+i}, v{B4+i}, s48, v{RK+i}")
        I(f"ds_write_b64 v{RK+i}, {vr(REC+2*i,2)} offset:{K1_IMG}")
    I("s_mov_b64 exec, -1")

    L("K1_COPY")
    srd(56, P_WS, 3 * LINE_STRIDE, add=CELL_OFF)
    I("v_lshlrev_b32 v6, 15, v3")
    I("v_lshl_add_u32 v6, v2, 4, v6")
    I("s_lshl_b32 s60, s2, 7")
    I("s_add_u32 s61, s60, 0x400000")
    I(f"s_add_u32 s62, s60, {hex(LINE_STRIDE)}")
    I(f"s_add_u32 s63, s61, {hex(LINE_STRIDE)}")
    I(f"s_add_u32 s64, s62, {hex(LINE_STRIDE)}")
    I(f"s_add_u32 s65, s63, {hex(LINE_STRIDE)}")
    I("s_waitcnt lgkmcnt(0)")
    I("s_barrier")
    C0 = 96
    B2 = 128 * K1_STRIDE
    I(f"ds_read_b128 {vr(C0,4)}, v4 offset:{K1_IMG}")
    I(f"ds_read_b128 {vr(C0+4,4)}, v4 offset:{K1_IMG+B2}")
    I("ds_read2st64_b32 v[8:9], v5 offset0:0 offset1:2")
    I(f"ds_read_b128 {vr(C0+8,4)}, v4 offset:{K1_IMG+128}")
    I(f"ds_read_b128 {vr(C0+12,4)}, v4 offset:{K1_IMG+B2+128}")
    I("s_waitcnt lgkmcnt(4)")
    I(f"buffer_store_dwordx4 {vr(C0,4)}, v6, s[56:59], s60 offen {OPT['st_flags']}")
    I("s_waitcnt lgkmcnt(3)")
    I(f"buffer_store_dwordx4 {vr(C0+4,4)}, v6, s[56:59], s61 offen {OPT['st_flags']}")
    I("s_waitcnt lgkmcnt(2)")
    I("s_movk_i32 s70, 127")
    I("s_movk_i32 s71, 255")
    I("v_cmp_lt_u32 s[66:67], s70, v8")
    I("v_cmp_lt_u32 s[68:69], s70, v9")
    I("v_max_u32 v10, v8, v9")
    I("v_cmp_lt_u32 vcc, s71, v10")
    I("s_waitcnt lgkmcnt(0)")
    I("s_mov_b64 exec, s[66:67]")
    I("s_cbranch_execz K1_L1B")
    I(f"buffer_store_dwordx4 {vr(C0+8,4)}, v6, s[56:59], s62 offen {OPT['st_flags']}")
    L("K1_L1B")
    I("s_mov_b64 exec, s[68:69]")
    I("s_cbranch_execz K1_L2")
    I(f"buffer_store_dwordx4 {vr(C0+12,4)}, v6, s[56:59], s63 offen {OPT['st_flags']}")
    L("K1_L2")
    I("s_cbranch_vccz K1_END")
    I("s_mov_b64 exec, vcc")
    I(f"ds_read_b128 {vr(C0+16,4)}, v4 offset:{K1_IMG+256}")
    I(f"ds_read_b128 {vr(C0+20,4)}, v4 offset:{K1_IMG+B2+256}")
    I("s_waitcnt lgkmcnt(0)")
    I(f"buffer_store_dwordx4 {vr(C0+16,4)}, v6, s[56:59], s64 offen")
    I(f"buffer_store_dwordx4 {vr(C0+20,4)}, v6, s[56:59], s65 offen")
    L("K1_END")
    I("s_endpgm")

FLAG = 384
NB_OFF = 512
NB_STRIDE = 1296
EA_OFF = 1024
LIST_OFF = NB_OFF + 52 * NB_STRIDE
LIST_STRIDE = 1032
K2_LDS = LIST_OFF + 49 * LIST_STRIDE
TRASH = 0x30000
KEXP = 62

def gen_k2():
    o(".p2align 8")
    o(".globl gg_agg_kernel")
    o(".type gg_agg_kernel,@function")
    L("gg_agg_kernel")
    RA, RB = 8, 16
    U, XR = 104, 120
    RAWA, RAWU, XA, T, ACCA = 32, 64, 96, 24, 64
    I("s_cmp_ge_u32 s2, 256")
    I("s_cbranch_scc1 K2_END")
    load_kernargs()
    I("v_lshrrev_b32 v1, 6, v0")
    I("v_lshlrev_b32 v2, 4, v0")
    I("v_readfirstlane_b32 s3, v1")
    I("v_and_b32 v3, 15, v0")
    I("v_lshlrev_b32 v4, 3, v3")
    I("s_lshl_b32 s28, s2, 15")
    I("s_add_u32 s29, s28, 16384")
    I("s_waitcnt lgkmcnt(0)")
    srd(32, P_WS, 3 * LINE_STRIDE, add=CELL_OFF)
    I(f"buffer_load_dwordx4 {vr(RA,4)}, v2, s[32:35], s28 offen")
    I(f"buffer_load_dwordx4 {vr(RA+4,4)}, v2, s[32:35], s29 offen")
    srd(36, P_WC, 128)
    I("buffer_load_dwordx2 v[6:7], v4, s[36:39], 0 offen")
    srd(40, P_WS, TAB_ROWS * 256)
    srd(44, P_X, N * 128)
    srd(48, P_WA, 8192)
    srd(52, P_WU, 8192)
    I("s_cmp_ge_u32 s3, 12")
    I("s_cbranch_scc0 K2_NOG1")
    I("s_sub_u32 s30, s3, 12")
    I("s_lshl_b32 s31, s30, 19")
    I("s_lshl_b32 s56, s2, 7")
    I("s_add_u32 s31, s31, s56")
    I("v_bfe_u32 v5, v0, 4, 2")
    I("v_lshlrev_b32 v24, 15, v3")
    I("v_lshl_add_u32 v24, v5, 5, v24")
    I("v_lshl_add_u32 v25, v5, 11, v4")
    I("v_lshl_add_u32 v26, v5, 17, v4")
    I("v_add_u32 v24, s31, v24")
    I("v_add_u32 v26, s31, v26")
    I(f"buffer_load_dwordx4 {vr(XA,4)}, v24, s[44:47], 0 offen")
    I(f"buffer_load_dwordx4 {vr(XA+4,4)}, v24, s[44:47], 0 offen offset:16")
    gemm_w_loads(RAWU, 52, 25)
    gemm_w_loads(RAWA, 48, 25)
    for r in range(4):
        if r:
            I(f"v_add_u32 v26, 0x8000, v26")
        I(f"buffer_load_dwordx2 {vr(XR+2*r,2)}, v26, s[44:47], 0 offen")
    L("K2_NOG1")
    I("v_mov_b32 v28, 0")
    I("v_mov_b32 v29, 0")
    I("v_mov_b32 v30, 0")
    I("v_mov_b32 v31, 0")
    for k in range(4):
        I(f"ds_write_b128 v2, v[28:31] offset:{NB_OFF + k*16384}")
    I(f"v_add_u32 v1, {LIST_OFF}, v2")
    for i in range(4):
        I(f"v_mov_b32 v{16+i}, {DUMMY_OFF}")
    for k in range(3):
        I(f"ds_write_b128 v1, v[16:19] offset:{k*16384}")
    I("s_cmp_lt_u32 s3, 2")
    I("s_cbranch_scc0 K2_INIT2")
    I(f"ds_write_b128 v1, v[16:19] offset:{3*16384}")
    I(f"v_mul_u32_u24 v20, {LIST_STRIDE}, v0")
    I(f"v_add_u32 v20, {LIST_OFF}, v20")
    I(f"v_mov_b32 v21, {TRASH}")
    I("v_cmp_gt_u32 vcc, 64, v0")
    I("s_nop 1")
    I("v_cndmask_b32 v20, v21, v20, vcc")
    I("v_cmp_gt_u32 vcc, 96, v0")
    I("s_nop 1")
    I("v_cndmask_b32 v20, 0, v20, vcc")
    I("v_lshlrev_b32 v21, 2, v0")
    I("ds_write_b32 v21, v20")
    L("K2_INIT2")
    I("v_mov_b32 v1, 4")
    I("s_movk_i32 s57, 0x100")
    I(f"s_add_u32 s58, s28, {hex(LINE_STRIDE)}")
    I(f"s_add_u32 s59, s29, {hex(LINE_STRIDE)}")
    I("s_waitcnt lgkmcnt(0)")
    I("s_barrier")

    def expand(dst, src):
        for h in range(2):
            I(f"s_lshr_b32 s{dst+h}, {src[h]}, 7")
            I(f"s_and_b32 s{dst+h}, s{dst+h}, 0x01010101")
            I(f"s_mul_i32 s{dst+h}, s{dst+h}, 0xff")

    def place(R, n, tmp):
        for i in range(n):
            I(f"ds_add_rtn_u32 v{tmp+i}, v{tmp+i}, v1")
        for i in range(n):
            I(f"v_and_b32 v{R+2*i+1}, 0xffff0000, v{R+2*i+1}")
        for i in range(n):
            I(f"s_waitcnt lgkmcnt({n-1})")
            I(f"ds_write2st64_b32 v{tmp+i}, v{R+2*i}, v{R+2*i+1} offset0:0 offset1:2")

    CA = 28
    def round_a(nlater):
        I(f"s_waitcnt vmcnt({nlater})")
        for i in range(4):
            I(f"v_and_b32 v{CA+i}, 0x1ff, v{RA+2*i+1}")
        I(f"v_cmp_gt_u32 vcc, s57, v{CA+1}")
        I(f"v_cmp_gt_u32 s[62:63], s57, v{CA+3}")
        expand(60, ("vcc_lo", "vcc_hi"))
        expand(62, ("s62", "s63"))
        I("s_mov_b64 exec, s[60:61]")
        I(f"buffer_load_dwordx4 {vr(RB,4)}, v2, s[32:35], s58 offen")
        I("s_mov_b64 exec, s[62:63]")
        I(f"buffer_load_dwordx4 {vr(RB+4,4)}, v2, s[32:35], s59 offen")
        I("s_mov_b64 exec, -1")
        place(RA, 4, CA)

    I("s_cmp_ge_u32 s3, 12")
    I("s_cbranch_scc1 K2_G2")
    round_a(1)
    I("s_branch K2_RB")
    L("K2_G2")
    round_a(39)
    I("s_mov_b32 s64, 0x05040100")
    I("s_mov_b32 s65, 0x07060302")
    I(f"s_mov_b32 s66, {hex(f32(-LOG2E))}")
    I("s_waitcnt vmcnt(22) lgkmcnt(0)")
    gemm_mfma(RAWU, XA, T, U, 64, 65)
    I("s_waitcnt vmcnt(6)")
    gemm_mfma(RAWA, XA, T, ACCA, 64, 65)
    I(f"s_mul_i32 s67, s30, {16*NB_STRIDE}")
    I(f"s_add_u32 s67, s67, {NB_OFF}")
    I(f"v_mul_u32_u24 v102, {4*NB_STRIDE}, v5")
    I("v_add_u32 v102, s67, v102")
    I("v_lshl_add_u32 v24, v3, 4, v102")
    I(f"v_mov_b32 v25, {hex(f32(-float(KEXP)))}")
    I("s_nop 3")
    for i in range(16):
        I(f"v_mul_f32 v{ACCA+i}, s66, v{ACCA+i}")
    I(f"v_max3_f32 v26, |v{ACCA}|, |v{ACCA+1}|, |v{ACCA+2}|")
    for i in range(3, 15, 2):
        I(f"v_max3_f32 v26, |v{ACCA+i}|, |v{ACCA+i+1}|, v26")
    I(f"v_max_f32 v26, |v{ACCA+15}|, v26")
    EAT = 32
    for r in range(4):
        for t in range(4):
            I(f"v_add_f32 v{EAT+4*r+t}, v25, v{ACCA+4*t+r}")
    for i in range(16):
        I(f"v_exp_f32 v{EAT+i}, v{EAT+i}")
    I(f"v_cmp_nge_f32 vcc, {hex(f32(63.0))}, v26")
    I("s_cmp_eq_u32 s30, 3")
    I("s_cselect_b32 exec_hi, 0, -1")
    I("s_cselect_b32 exec_lo, 0xffff, -1")
    for r in range(4):
        I(f"ds_write_b128 v24, {vr(EAT+4*r,4)} offset:{EA_OFF + r*NB_STRIDE}")
    I("s_mov_b64 exec, -1")
    I("s_cbranch_vccz K2_RB")
    I("v_mov_b32 v26, 0")
    I(f"ds_write_b32 v26, v1 offset:{FLAG}")

    L("K2_RB")
    I("s_waitcnt vmcnt(0)")
    I("s_mov_b32 s68, 1")
    L("K2_RLOOP")
    I("s_mov_b64 s[70:71], 0")
    I("s_mov_b64 s[72:73], 0")
    I("s_mov_b64 exec, s[60:61]")
    I("s_cbranch_execz K2_RB2")
    for i in range(2):
        I(f"v_and_b32 v{CA+i}, 0x1ff, v{RB+2*i+1}")
    I(f"v_cmp_gt_u32 s[70:71], s57, v{CA+1}")
    place(RB, 2, CA)
    L("K2_RB2")
    I("s_mov_b64 exec, s[62:63]")
    I("s_cbranch_execz K2_RB3")
    for i in range(2):
        I(f"v_and_b32 v{CA+2+i}, 0x1ff, v{RB+4+2*i+1}")
    I(f"v_cmp_gt_u32 s[72:73], s57, v{CA+3}")
    place(RB + 4, 2, CA + 2)
    L("K2_RB3")
    I("s_mov_b64 exec, -1")
    I("s_or_b64 s[74:75], s[70:71], s[72:73]")
    I("s_or_b32 s74, s74, s75")
    I("s_and_b32 s74, s74, 0x80808080")
    I("s_cbranch_scc0 K2_RDONE")
    I("s_cmp_eq_u32 s68, 2")
    I("s_cbranch_scc1 K2_RFLAG")
    I("s_mov_b32 s68, 2")
    expand(60, ("s70", "s71"))
    expand(62, ("s72", "s73"))
    I(f"s_add_u32 s58, s58, {hex(LINE_STRIDE)}")
    I(f"s_add_u32 s59, s59, {hex(LINE_STRIDE)}")
    I("s_waitcnt lgkmcnt(0)")
    I("s_mov_b64 exec, s[60:61]")
    I(f"buffer_load_dwordx4 {vr(RB,4)}, v2, s[32:35], s58 offen")
    I("s_mov_b64 exec, s[62:63]")
    I(f"buffer_load_dwordx4 {vr(RB+4,4)}, v2, s[32:35], s59 offen")
    I("s_mov_b64 exec, -1")
    I("s_waitcnt vmcnt(0)")
    I("s_branch K2_RLOOP")
    L("K2_RFLAG")
    I("v_mov_b32 v26, 0")
    I(f"ds_write_b32 v26, v1 offset:{FLAG}")
    L("K2_RDONE")

    XB, RS, TT, PP = 32, 56, 8, 16
    WC, EA, DEN, NUM, LC, VACC, VEA, VQ8, VREC = 80, 84, 88, 92, 96, 98, 99, 100, 101
    I(f"s_mov_b32 s66, {hex(f32(-LOG2E))}")
    I(f"v_lshlrev_b32 v{WC}, 16, v6")
    I(f"v_and_b32 v{WC+1}, 0xffff0000, v6")
    I(f"v_lshlrev_b32 v{WC+2}, 16, v7")
    I(f"v_and_b32 v{WC+3}, 0xffff0000, v7")
    for i in range(4):
        I(f"v_mul_f32 v{WC+i}, s66, v{WC+i}")
    I(f"v_lshlrev_b32 v{LC}, 4, v3")
    I(f"v_lshlrev_b32 v{LC+1}, 4, v3")
    I(f"v_bfe_u32 v{VQ8}, v0, 4, 2")
    I(f"v_lshlrev_b32 v{VQ8}, 3, v{VQ8}")
    I("v_and_b32 v20, 63, v0")
    I("v_lshlrev_b32 v21, 2, v20")
    I(f"v_mul_u32_u24 v22, {LIST_STRIDE}, v20")
    I(f"v_add_u32 v22, {LIST_OFF - 28}, v22")
    I("v_mov_b32 v23, 0")
    I("s_cmp_lt_u32 s2, 212")
    I("s_cselect_b32 s69, 49, 48")
    for i in range(4):
        I(f"v_mov_b64 {vr(DEN+2*i,2)}, 0")
    I("s_waitcnt lgkmcnt(0)")
    I("s_barrier")
    I("ds_read_b32 v24, v21")
    I(f"ds_read_b32 v25, v23 offset:{FLAG}")
    I(f"v_and_b32 v{VACC}, 0x7c, v21")
    I(f"s_mov_b32 s76, {hex(f32(2.0**-KEXP))}")
    I("s_mov_b32 s77, s76")
    I(f"s_mov_b32 s78, {hex(f32(1e-6 * 2.0**KEXP))}")
    I("s_waitcnt lgkmcnt(0)")
    I("v_sub_u32 v24, v24, v22")
    I("v_readfirstlane_b32 s70, v25")
    I(f"v_cmp_lt_u32 vcc, {512+28}, v24")
    I("v_lshrrev_b32 v24, 5, v24")
    I("s_or_b32 s70, s70, vcc_lo")
    I("s_or_b32 s70, s70, vcc_hi")
    if OPT["force_slow"]:
        I("s_branch K2_SLOW")
    I("s_cbranch_scc1 K2_SLOW")
    I("v_max_u32 v24, 1, v24")
    I("v_cmp_gt_u32 vcc, s69, v20")
    I("s_nop 1")
    I("v_cndmask_b32 v24, 0, v24, vcc")
    I("v_mov_b32 v25, v24")
    for d in ("row_shr:1 row_mask:0xf", "row_shr:2 row_mask:0xf", "row_shr:4 row_mask:0xf",
              "row_shr:8 row_mask:0xf", "row_bcast:15 row_mask:0xa", "row_bcast:31 row_mask:0xc"):
        I("s_nop 1")
        I(f"v_add_u32_dpp v25, v25, v25 {d} bank_mask:0xf")
    I("s_nop 0")
    I("v_readlane_b32 s70, v25, 63")
    I("v_sub_u32 v26, v25, v24")
    I("s_mul_i32 s71, s70, s3")
    I("s_add_u32 s72, s71, s70")
    I("s_lshr_b32 s71, s71, 4")
    I("s_lshr_b32 s72, s72, 4")
    I("s_sub_u32 s72, s72, s71")
    I("s_cmp_eq_u32 s72, 0")
    I("s_cbranch_scc1 K2_JOIN")
    I("v_cmp_ge_u32 vcc, s71, v25")
    I("v_subrev_u32 v27, s71, v26")
    I("s_bcnt1_i32_b64 s73, vcc")
    I("v_cmp_gt_u32 vcc, 64, v27")
    I("v_lshlrev_b32 v27, 2, v27")
    I("s_nop 0")
    I("v_cndmask_b32 v27, 0, v27, vcc")
    I("ds_permute_b32 v27, v27, v1")
    I("v_readlane_b32 s74, v26, s73")
    I(f"s_mul_i32 s80, s73, {LIST_STRIDE}")
    I(f"s_add_u32 s80, s80, {LIST_OFF}")
    I("s_sub_u32 s74, s71, s74")
    I("s_lshl_b32 s74, s74, 5")
    I("s_add_u32 s81, s80, s74")
    I(f"s_mul_i32 s75, s73, {NB_STRIDE}")
    I(f"s_add_u32 s75, s75, {NB_OFF}")
    I(f"v_add_u32 v{VACC}, s75, v{VACC}")
    I(f"v_add_u32 v{VEA}, s75, v{LC}")
    I(f"v_add_u32 v{VREC}, s81, v{VQ8}")
    I(f"ds_read2st64_b64 {vr(RS,4)}, v{VREC} offset0:0 offset1:1")
    I(f"ds_read_b128 {vr(EA,4)}, v{VEA} offset:{EA_OFF}")
    I("s_waitcnt lgkmcnt(2)")
    I("v_cmp_ne_u32 s[82:83], 0, v27")
    I("s_bitset1_b64 s[82:83], s72")

    def advance(bit):
        I("s_add_u32 s81, s81, 32")
        I(f"s_add_u32 s84, s80, {LIST_STRIDE}")
        I(f"s_bitcmp1_b32 s82, {bit}")
        I("s_cselect_b32 s81, s84, s81")
        I("s_cselect_b32 s80, s84, s80")
    def rec_read(slot):
        I(f"v_add_u32 v{VREC}, s81, v{VQ8}")
        I(f"ds_read2st64_b64 {vr(RS+4*slot,4)}, v{VREC} offset0:0 offset1:1")
    def gather(slot):
        r = RS + 4 * slot
        I(f"v_lshl_add_u64 {vr(r,2)}, {vr(r,2)}, 0, {vr(LC,2)}")
        I(f"buffer_load_dwordx4 {vr(XB+8*slot,4)}, v{r}, s[40:43], 0 offen")
        I(f"buffer_load_dwordx4 {vr(XB+8*slot+4,4)}, v{r+1}, s[40:43], 0 offen")

    advance(1); rec_read(1)
    advance(2); rec_read(2)
    I("s_waitcnt lgkmcnt(3)")
    gather(0)
    I("s_cmp_gt_u32 s72, 1")
    I("s_cselect_b32 s42, s42, 0")
    I("s_waitcnt lgkmcnt(1)")
    gather(1)

    L("K2_LOOP")
    for u in range(3):
        x = XB + 8 * u
        e = RS + 4 * u + 2
        t = TT
        p = PP
        L(f"K2_STEP{u}")
        I("s_cmp_gt_u32 s72, 2")
        I("s_cselect_b32 s42, s42, 0")
        advance(u + 3)
        I("s_waitcnt lgkmcnt(0)")
        gather((u + 2) % 3)
        I("s_waitcnt vmcnt(4)")
        I(f"v_pk_fma_f32 {vr(t,2)}, {vr(e,2)}, {vr(WC,2)}, {vr(x,2)} op_sel_hi:[0,1,1]")
        I(f"v_pk_fma_f32 {vr(t+2,2)}, {vr(e,2)}, {vr(WC+2,2)}, {vr(x+2,2)} op_sel_hi:[0,1,1]")
        I(f"v_pk_fma_f32 {vr(t+4,2)}, {vr(e,2)}, {vr(WC,2)}, {vr(x+4,2)} op_sel:[1,0,0] op_sel_hi:[1,1,1]")
        I(f"v_pk_fma_f32 {vr(t+6,2)}, {vr(e,2)}, {vr(WC+2,2)}, {vr(x+6,2)} op_sel:[1,0,0] op_sel_hi:[1,1,1]")
        rec_read(u)
        for i in range(8):
            I(f"v_exp_f32 v{t+i}, v{t+i}")
        for i in range(4):
            I(f"v_lshlrev_b64 {vr(x+2*i,2)}, 16, {vr(x+2*i,2)}")
        for i in range(4):
            I(f"v_pk_fma_f32 {vr(t+2*i,2)}, {vr(t+2*i,2)}, {vr(EA+2*(i&1),2)}, s[76:77] clamp")
        I(f"v_pk_mul_f32 {vr(p,2)}, {vr(t,2)}, {vr(t+4,2)}")
        I(f"v_pk_mul_f32 {vr(p+2,2)}, {vr(t+2,2)}, {vr(t+6,2)}")
        I(f"v_pk_mul_f32 {vr(x,2)}, {vr(x,2)}, {vr(t+4,2)}")
        I(f"v_pk_mul_f32 {vr(x+2,2)}, {vr(x+2,2)}, {vr(t+6,2)}")
        for i in range(4):
            I(f"v_rcp_f32 v{p+i}, v{p+i}")
        I(f"v_pk_fma_f32 {vr(x,2)}, {vr(x+4,2)}, {vr(t,2)}, {vr(x,2)}")
        I(f"v_pk_fma_f32 {vr(x+2,2)}, {vr(x+6,2)}, {vr(t+2,2)}, {vr(x+2,2)}")
        I(f"v_pk_add_f32 {vr(t,2)}, {vr(t,2)}, {vr(t+4,2)}")
        I(f"v_pk_add_f32 {vr(t+2,2)}, {vr(t+2,2)}, {vr(t+6,2)}")
        I(f"v_pk_fma_f32 {vr(NUM,2)}, {vr(x,2)}, {vr(p,2)}, {vr(NUM,2)}")
        I(f"v_pk_fma_f32 {vr(NUM+2,2)}, {vr(x+2,2)}, {vr(p+2,2)}, {vr(NUM+2,2)}")
        I(f"v_pk_fma_f32 {vr(DEN,2)}, {vr(t,2)}, {vr(p,2)}, {vr(DEN,2)}")
        I(f"v_pk_fma_f32 {vr(DEN+2,2)}, {vr(t+2,2)}, {vr(p+2,2)}, {vr(DEN+2,2)}")
        I("s_sub_u32 s72, s72, 1")
        I(f"s_bitcmp1_b32 s82, {u+1}")
        I(f"s_cbranch_scc1 K2_FLUSH{u}")
        L(f"K2_BACK{u}")
    I("s_lshr_b64 s[82:83], s[82:83], 3")
    I("s_branch K2_LOOP")
    for u in range(3):
        L(f"K2_FLUSH{u}")
        I(f"v_add_u32 v{VEA}, {NB_STRIDE}, v{VEA}")
        I(f"ds_read_b128 {vr(EA,4)}, v{VEA} offset:{EA_OFF}")
        for c in range(4):
            I(f"ds_add_f32 v{VACC}, v{NUM+c} offset:{512 + c*128}")
        for c in range(4):
            I(f"ds_add_f32 v{VACC}, v{DEN+c} offset:{c*128}")
        I("s_cmp_eq_u32 s72, 0")
        I("s_cbranch_scc1 K2_JOIN")
        I(f"v_add_u32 v{VACC}, {NB_STRIDE}, v{VACC}")
        for i in range(4):
            I(f"v_mov_b64 {vr(DEN+2*i,2)}, 0")
        I(f"s_branch K2_BACK{u}")

    L("K2_SLOW")
    I("s_cmp_ge_u32 s3, 12")
    I("s_cbranch_scc0 K2_SL1")
    for r in range(4):
        for t in range(4):
            I(f"v_mov_b32 v{32+4*r+t}, v{ACCA+4*t+r}")
    I("v_lshl_add_u32 v24, v3, 4, v102")
    I("s_cmp_eq_u32 s3, 15")
    I("s_cselect_b32 exec_hi, 0, -1")
    I("s_cselect_b32 exec_lo, 0xffff, -1")
    for r in range(4):
        I(f"ds_write_b128 v24, {vr(32+4*r,4)} offset:{EA_OFF + r*NB_STRIDE}")
    I("s_mov_b64 exec, -1")
    L("K2_SL1")
    I(f"s_mov_b32 s78, {hex(f32(1e-6))}")
    srd(48, P_DST, E * 4)
    srd(52, P_SRC, E * 4)
    srd(56, P_E, E * 2)
    I("s_waitcnt lgkmcnt(0)")
    I("s_barrier")
    I("v_lshlrev_b32 v8, 2, v0")
    I("v_lshlrev_b32 v9, 1, v0")
    I("v_lshlrev_b32 v10, 2, v3")
    I("s_lshl_b32 s70, s3, 6")
    I("s_mov_b32 s71, 0")
    I("s_mov_b32 s72, 0")
    L("K2_SLOOP")
    I("buffer_load_dword v11, v8, s[48:51], s71 offen")
    I("buffer_load_dword v12, v8, s[52:55], s71 offen")
    I("buffer_load_ushort v13, v9, s[56:59], s72 offen")
    I("s_waitcnt vmcnt(0)")
    I("v_and_b32 v14, 0xff, v11")
    I("v_cmp_eq_u32 s[74:75], s2, v14")
    L("K2_SIN")
    I("s_cmp_eq_u64 s[74:75], 0")
    I("s_cbranch_scc1 K2_SNEXT")
    I("s_ff1_i32_b64 s73, s[74:75]")
    I("s_bitset0_b64 s[74:75], s73")
    I("v_readlane_b32 s79, v11, s73")
    I("v_readlane_b32 s80, v12, s73")
    I("v_readlane_b32 s81, v13, s73")
    I("s_lshr_b32 s79, s79, 8")
    I(f"s_mul_i32 s79, s79, {NB_STRIDE}")
    I(f"s_add_u32 s79, s79, {NB_OFF}")
    I("s_lshl_b32 s80, s80, 8")
    I("s_lshl_b32 s81, s81, 16")
    I("s_mov_b64 exec, 0xffff")
    I(f"v_add_u32 v15, s79, v{LC}")
    I("v_add_u32 v16, s79, v10")
    I(f"buffer_load_dwordx4 v[20:23], v{LC}, s[40:43], s80 offen")
    I(f"ds_read_b128 v[24:27], v15 offset:{EA_OFF}")
    I("s_waitcnt vmcnt(0) lgkmcnt(0)")
    for c in range(4):
        I(f"v_fma_f32 v{28+c}, s81, v{WC+c}, v{20+c}")
    for c in range(4):
        I(f"v_add_f32 v{28+c}, v{28+c}, v{24+c}")
    for c in range(4):
        I(f"v_exp_f32 v{28+c}, v{28+c}")
    I("v_lshlrev_b64 v[20:21], 16, v[20:21]")
    I("v_lshlrev_b64 v[22:23], 16, v[22:23]")
    for c in range(4):
        I(f"v_add_f32 v{28+c}, 1.0, v{28+c}")
    for c in range(4):
        I(f"v_rcp_f32 v{28+c}, v{28+c}")
    I("s_nop 0")
    for c in range(4):
        I(f"v_mul_f32 v{20+c}, v{20+c}, v{28+c}")
    for c in range(4):
        I(f"ds_add_f32 v16, v{28+c} offset:{c*128}")
        I(f"ds_add_f32 v16, v{20+c} offset:{512 + c*128}")
    I("s_mov_b64 exec, -1")
    I("s_branch K2_SIN")
    L("K2_SNEXT")
    I("s_add_u32 s70, s70, 1024")
    I("s_add_u32 s71, s71, 4096")
    I("s_add_u32 s72, s72, 2048")
    I(f"s_cmp_lt_u32 s70, {E}")
    I("s_cbranch_scc1 K2_SLOOP")

    L("K2_JOIN")
    I("s_waitcnt lgkmcnt(0)")
    I("s_barrier")
    I("s_cmp_ge_u32 s3, 12")
    I("s_cbranch_scc0 K2_END")
    srd(48, P_OUT, N * 128)
    I("s_cmp_eq_u32 s3, 15")
    I("s_cselect_b32 exec_hi, 0, -1")
    I("s_cselect_b32 exec_lo, 0xffff, -1")
    I("v_lshl_add_u32 v8, v3, 2, v102")
    for r in range(1, 4):
        I(f"v_add_u32 v{8+r}, {r*NB_STRIDE}, v8")
    AC = 16
    I("s_waitcnt vmcnt(0)")
    for r in range(4):
        for a in range(2):
            for c in range(4):
                b = a * 128 + c * 32
                I(f"ds_read2_b32 {vr(AC+16*r+8*a+2*c,2)}, v{8+r} offset0:{b} offset1:{b+16}")
        if r == 1:
            pass
    I("v_bfe_u32 v5, v0, 4, 2")
    I("v_lshlrev_b32 v4, 3, v3")
    I("v_lshl_add_u32 v12, v5, 17, v4")
    I("s_sub_u32 s30, s3, 12")
    I("s_lshl_b32 s31, s30, 19")
    I("s_lshl_b32 s56, s2, 7")
    I("s_add_u32 s31, s31, s56")
    I("v_add_u32 v12, s31, v12")
    for r in range(4):
        b = AC + 16 * r
        I(f"s_waitcnt lgkmcnt({min(15, 8*(3-r))})")
        if r == 0:
            pass
        for c in range(4):
            I(f"v_add_f32 v{b+2*c}, v{b+2*c}, v{b+2*c+1}")
        for c in range(4):
            I(f"v_add_f32 v{b+2*c}, s78, v{b+2*c}")
        for c in range(4):
            I(f"v_rcp_f32 v{b+2*c}, v{b+2*c}")
        for c in range(4):
            I(f"v_add_f32 v{b+8+2*c}, v{b+8+2*c}, v{b+8+2*c+1}")
        for c in range(4):
            I(f"v_fma_f32 v{b+2*c}, v{b+8+2*c}, v{b+2*c}, v{U+4*c+r}")
        for c in range(4):
            I(f"v_max_f32 v{b+2*c}, 0, v{b+2*c}")
        for c in range(4):
            if c & 1:
                I(f"v_and_b32 v{b+2*c+1}, 0xffff0000, v{XR+2*r+(c>>1)}")
            else:
                I(f"v_lshlrev_b32 v{b+2*c+1}, 16, v{XR+2*r+(c>>1)}")
        for c in range(4):
            I(f"v_add_f32 v{b+2*c}, v{b+2*c}, v{b+2*c+1}")
        I(f"v_cvt_pk_bf16_f32 v{b+8}, v{b}, v{b+2}")
        I(f"v_cvt_pk_bf16_f32 v{b+9}, v{b+4}, v{b+6}")
        if r:
            I(f"v_add_u32 v12, 0x8000, v12")
        I(f"buffer_store_dwordx2 {vr(b+8,2)}, v12, s[48:51], 0 offen")
    L("K2_END")
    I("s_endpgm")

def desc(name, vgpr, sgpr):
    o(".p2align 6")
    o(f".amdhsa_kernel {name}")
    o(f"  .amdhsa_next_free_vgpr {vgpr}")
    o(f"  .amdhsa_next_free_sgpr {sgpr}")
    o(f"  .amdhsa_accum_offset {(vgpr+3)//4*4}")
    o("  .amdhsa_group_segment_fixed_size 0")
    o("  .amdhsa_kernarg_size 96")
    o("  .amdhsa_user_sgpr_count 2")
    o("  .amdhsa_user_sgpr_kernarg_segment_ptr 1")
    o("  .amdhsa_system_sgpr_workgroup_id_x 1")
    o(".end_amdhsa_kernel")

hdr = open("standalone__edge_featured_mpnn_gatedgcn__graph.s.ref").read().split("\n")
for line in hdr:
    if line.startswith("; Override"):
        break
    o(line)
o(f"; @launch kernel=gg_bin_kernel grid=(256,1,1) block=(1024,1,1) lds={K1_LDS}")
o(f"; @launch kernel=gg_agg_kernel grid=(256,1,1) block=(1024,1,1) lds={K2_LDS}")
o('.amdgcn_target "amdgcn-amd-amdhsa--gfx950"')
o(".text")
gen_k1()
gen_k2()
o('.section .rodata,"a"')
desc("gg_bin_kernel", 128, 96)
desc("gg_agg_kernel", 128, 96)
open(sys.argv[1], "w").write("\n".join(x for x in out if x is not None) + "\n")
```

```python
import sys, struct, math

OPT = dict(stamp=0, force_slow=0, st_flags="", prefetch=0)
for a in sys.argv[2:]:
    k, v = a.split("=")
    OPT[k] = int(v) if v.lstrip("-").isdigit() else v

N = 12500
E = 800000
CHUNK = 3200
NCHUNK = 250
TAB_ROWS = N + 1
DUMMY_OFF = N * 256
CELL_OFF = 0x400000
LINE_STRIDE = 0x800000
LOG2E = 1.4426950408889634

def f32(x):
    return struct.unpack("<I", struct.pack("<f", x))[0]

out = []
def o(s=""):
    out.append(s)
def I(s):
    out.append("    " + s)
def L(s):
    out.append(s + ":")
def vr(a, n=1):
    return f"v{a}" if n == 1 else f"v[{a}:{a+n-1}]"
def sr(a, n=1):
    return f"s{a}" if n == 1 else f"s[{a}:{a+n-1}]"

P_X, P_E, P_SRC, P_DST, P_WA, P_WB, P_WC, P_WU, P_WV, P_OUT, P_DBG, P_WS = 4, 6, 8, 10, 12, 14, 16, 18, 20, 22, 24, 26

def load_kernargs():
    I("s_load_dwordx16 s[4:19], s[0:1], 0")
    I("s_load_dwordx8 s[20:27], s[0:1], 64")

STAMP_OFF = 0x4000000
def stamp(i):
    if not OPT["stamp"]:
        return
    I("s_waitcnt lgkmcnt(0)")
    I("s_memtime s[100:101]" if i else "s_memrealtime s[100:101]")
    I("s_waitcnt lgkmcnt(0)")
    I(f"s_mov_b32 s{86+i}, s100")
def stamp_out(kidx):
    if not OPT["stamp"]:
        return
    I("s_mov_b64 exec, -1")
    I("s_waitcnt vmcnt(0) lgkmcnt(0)")
    I("s_memtime s[100:101]")
    I("s_waitcnt lgkmcnt(0)")
    I("s_mov_b32 s98, s100")
    I("s_memrealtime s[100:101]")
    I("s_waitcnt lgkmcnt(0)")
    I("s_mov_b32 s99, s100")
    I("s_load_dwordx2 s[80:81], s[0:1], 88")
    I("s_waitcnt lgkmcnt(0)")
    I(f"s_add_u32 s80, s80, {hex(STAMP_OFF + kidx*0x100000)}")
    I("s_addc_u32 s81, s81, 0")
    I("s_mov_b32 s82, 0x100000")
    I("s_mov_b32 s83, 0x20000")
    I("s_lshl_b32 s84, s2, 4")
    I("s_add_u32 s84, s84, s3")
    I("s_lshl_b32 s84, s84, 6")
    I("v_mov_b32 v1, s84")
    I("s_mov_b64 exec, 1")
    for i in range(14):
        I(f"v_mov_b32 v2, s{86+i}")
        I(f"buffer_store_dword v2, v1, s[80:83], 0 offen offset:{4*i}")
        I("s_nop 1")

def srd(d, p, size, add=0):
    if add:
        I(f"s_add_u32 s{d}, s{p}, {hex(add)}")
        I(f"s_addc_u32 s{d+1}, s{p+1}, 0")
    else:
        I(f"s_mov_b32 s{d}, s{p}")
        I(f"s_mov_b32 s{d+1}, s{p+1}")
    I(f"s_mov_b32 s{d+2}, {hex(size)}")
    I(f"s_mov_b32 s{d+3}, 0x20000")

def gemm_w_loads(raw, srdw, voff):
    for kk in range(16):
        I(f"buffer_load_dwordx2 {vr(raw+2*kk,2)}, v{voff}, {sr(srdw,4)}, 0 offen offset:{kk*128}")

def gemm_mfma(raw, xa, T, acc, sel_lo, sel_hi):
    k = 0
    for t in range(4):
        u = t >> 1
        sel = sel_lo if (t & 1) == 0 else sel_hi
        for s in range(2):
            tt = T + 4 * (k & 1)
            k += 1
            for d in range(4):
                lo = raw + 2 * (8 * s + 2 * d) + u
                hi = raw + 2 * (8 * s + 2 * d + 1) + u
                I(f"v_perm_b32 v{tt+d}, v{hi}, v{lo}, s{sel}")
            I("s_nop 1")
            c = "0" if s == 0 else vr(acc + 4 * t, 4)
            I(f"v_mfma_f32_16x16x32_bf16 {vr(acc+4*t,4)}, {vr(xa+4*s,4)}, {vr(tt,4)}, {c}")

K1_IMG = 1024
K1_STRIDE = 400
K1_LDS = K1_IMG + 256 * K1_STRIDE

def gen_k1():
    o(".p2align 8")
    o(".globl gg_bin_kernel")
    o(".type gg_bin_kernel,@function")
    L("gg_bin_kernel")
    I("s_cmp_ge_u32 s2, 256")
    I("s_cbranch_scc1 K1_END")
    stamp(0); stamp(1)
    load_kernargs()
    I("v_lshrrev_b32 v1, 6, v0")
    I("v_and_b32 v2, 7, v0")
    I("v_readfirstlane_b32 s3, v1")
    I("v_lshrrev_b32 v3, 3, v0")
    I(f"v_mul_u32_u24 v4, {K1_STRIDE}, v3")
    I("v_lshl_add_u32 v4, v2, 4, v4")
    I("s_mov_b32 s29, 0")
    I("s_cmp_ge_u32 s3, 13")
    I("s_cbranch_scc1 K1_ROLE_G")
    I(f"s_cmp_lt_u32 s2, {NCHUNK}")
    I("s_cbranch_scc1 K1_ROLE_B")
    I("s_mul_i32 s28, s3, 6")
    I("s_add_u32 s28, s28, s2")
    I(f"s_sub_u32 s28, s28, {NCHUNK}")
    I("s_cmp_lt_u32 s28, 14")
    I("s_cbranch_scc0 K1_ROLE_I")
    I("s_add_u32 s28, s28, 768")
    I("s_branch K1_GEMM")
    L("K1_ROLE_G")
    I("s_mul_i32 s28, s2, 3")
    I("s_add_u32 s28, s28, s3")
    I("s_sub_u32 s28, s28, 13")

    def lds_init():
        stamp(2)
        I("s_and_b32 s30, s2, 3")
        I("s_lshl_b32 s30, s30, 5")
        I("s_add_u32 s30, s30, 256")
        I("v_lshl_add_u32 v9, v2, 2, s30")
        I("v_mov_b32 v8, 0")
        I("v_mov_b32 v10, 0")
        I("v_mov_b32 v11, v9")
        for b in range(2):
            for r in range(3):
                I(f"ds_write_b128 v4, v[8:11] offset:{K1_IMG + b*128*K1_STRIDE + r*128}")
        I("v_lshlrev_b32 v5, 2, v3")
        I("ds_write2st64_b32 v5, v8, v8 offset0:0 offset1:2")
        I("s_waitcnt lgkmcnt(0)")
        stamp(3)
        I("s_barrier")
        stamp(4)

    L("K1_GEMM")
    RAWB, RAWV, XA, T, ACCB, ACCV = 32, 64, 96, 24, 104, 32
    I("v_and_b32 v12, 15, v0")
    I("v_bfe_u32 v13, v0, 4, 2")
    I("s_lshl_b32 s30, s28, 11")
    I("v_lshlrev_b32 v14, 7, v12")
    I("v_lshl_add_u32 v14, v13, 5, v14")
    I("v_add_u32 v14, s30, v14")
    I("v_lshlrev_b32 v15, 11, v13")
    I("v_lshl_add_u32 v15, v12, 3, v15")
    I("s_waitcnt lgkmcnt(0)")
    srd(32, P_X, N * 128)
    srd(36, P_WB, 8192)
    srd(40, P_WV, 8192)
    srd(44, P_WS, N * 256)
    I(f"buffer_load_dwordx4 {vr(XA,4)}, v14, s[32:35], 0 offen")
    I(f"buffer_load_dwordx4 {vr(XA+4,4)}, v14, s[32:35], 0 offen offset:16")
    gemm_w_loads(RAWB, 36, 15)
    gemm_w_loads(RAWV, 40, 15)
    lds_init()
    I("s_mov_b32 s48, 0x05040100")
    I("s_mov_b32 s49, 0x07060302")
    I(f"s_mov_b32 s50, {hex(f32(-LOG2E))}")
    I(f"v_mov_b32 v16, {hex(f32(2.0**-70))}")
    I("v_lshlrev_b32 v14, 10, v13")
    I("v_lshl_add_u32 v14, v12, 4, v14")
    I("s_lshl_b32 s30, s28, 12")
    I("v_add_u32 v14, s30, v14")
    I("s_waitcnt vmcnt(16)")
    stamp(5)
    gemm_mfma(RAWB, XA, T, ACCB, 48, 49)
    I("s_waitcnt vmcnt(0)")
    gemm_mfma(RAWV, XA, T, ACCV, 48, 49)
    for i in range(16):
        I(f"v_fma_f32 v{ACCB+i}, v{ACCB+i}, s50, v16")
    for i in range(16):
        I(f"v_add_u32 v{ACCB+i}, 0x8000, v{ACCB+i}")
    for t in (1, 3):
        for r in range(4):
            I(f"v_add_f32 v{ACCV+4*t+r}, {hex(f32(2.0**-100))}, v{ACCV+4*t+r}")
    for i in range(16):
        I(f"v_add_u32 v{ACCV+i}, 0x8000, v{ACCV+i}")
    SD = "dst_sel:DWORD dst_unused:UNUSED_PAD src0_sel:DWORD src1_sel:WORD_1"
    for r in range(4):
        for t in (0, 2):
            I(f"v_sub_u32_sdwa v{ACCB+4*t+r}, v{ACCB+4*t+r}, v{ACCV+4*t+r} clamp {SD}")
    for r in range(4):
        for t in (0, 2):
            I(f"v_sub_u32_sdwa v{ACCV+4*(t+1)+r}, v{ACCV+4*(t+1)+r}, v{ACCB+4*t+r} clamp {SD}")
    for r in range(4):
        for t in (0, 2):
            I(f"v_sub_u32_sdwa v{ACCB+4*(t+1)+r}, v{ACCB+4*(t+1)+r}, v{ACCV+4*(t+1)+r} clamp {SD}")
    OUTR = 64
    for r in range(4):
        for t in range(4):
            I(f"v_perm_b32 v{OUTR+4*r+t}, v{ACCB+4*t+r}, v{ACCV+4*t+r}, s49")
        I(f"buffer_store_dwordx4 {vr(OUTR+4*r,4)}, v14, s[44:47], 0 offen offset:{r*256} {OPT['st_flags']}")
    I("s_branch K1_COPY")

    L("K1_ROLE_I")
    I("s_waitcnt lgkmcnt(0)")
    I("s_cmp_eq_u32 s28, 14")
    I("s_cbranch_scc0 K1_IDLE2")
    srd(44, P_WS, TAB_ROWS * 256)
    I("v_and_b32 v12, 63, v0")
    I("v_lshlrev_b32 v12, 2, v12")
    I(f"v_add_u32 v12, {DUMMY_OFF}, v12")
    I("v_mov_b32 v13, 0x7f000000")
    I("buffer_store_dword v13, v12, s[44:47], 0 offen")
    L("K1_IDLE2")
    lds_init()
    I("s_branch K1_COPY")

    L("K1_ROLE_B")
    D, S, EE = 16, 20, 24
    I(f"s_mul_i32 s30, s2, {CHUNK*4}")
    I(f"s_mul_i32 s31, s2, {CHUNK*2}")
    I("v_lshlrev_b32 v12, 4, v0")
    I("v_lshlrev_b32 v13, 3, v0")
    I(f"v_cmp_gt_u32 vcc, {CHUNK//4}, v0")
    I("s_mov_b64 s[52:53], vcc")
    I("s_waitcnt lgkmcnt(0)")
    srd(32, P_DST, E * 4)
    srd(36, P_SRC, E * 4)
    srd(40, P_E, E * 2)
    I("s_mov_b64 exec, s[52:53]")
    I(f"buffer_load_dwordx4 {vr(D,4)}, v12, s[32:35], s30 offen")
    I(f"buffer_load_dwordx4 {vr(S,4)}, v12, s[36:39], s30 offen")
    I(f"buffer_load_dwordx2 {vr(EE,2)}, v13, s[40:43], s31 offen")
    I("s_mov_b64 exec, -1")
    lds_init()
    I("s_mov_b64 exec, s[52:53]")
    I("v_mov_b32 v14, 8")
    I("s_movk_i32 s48, 100")
    I("s_mov_b32 s49, 0xffff0000")
    B4, RK, REC = 28, 32, 36
    I("s_waitcnt vmcnt(2)")
    stamp(5)
    for i in range(4):
        I(f"v_lshlrev_b32_sdwa v{B4+i}, 2, v{D+i} dst_sel:DWORD dst_unused:UNUSED_PAD src0_sel:DWORD src1_sel:BYTE_0")
        I(f"ds_add_rtn_u32 v{RK+i}, v{B4+i}, v14")
    for i in range(4):
        I(f"v_lshlrev_b32_sdwa v{D+i}, 2, v{D+i} dst_sel:DWORD dst_unused:UNUSED_PAD src0_sel:DWORD src1_sel:BYTE_1")
    I("s_waitcnt vmcnt(1)")
    for i in range(4):
        I(f"v_lshlrev_b32 v{REC+2*i}, 8, v{S+i}")
    I("s_waitcnt vmcnt(0)")
    for i in range(4):
        if i & 1:
            I(f"v_and_or_b32 v{REC+2*i+1}, v{EE+(i>>1)}, s49, v{D+i}")
        else:
            I(f"v_lshl_or_b32 v{REC+2*i+1}, v{EE+(i>>1)}, 16, v{D+i}")
    for i in range(4):
        I("s_waitcnt lgkmcnt(3)")
        I(f"v_min_u32 v{RK+i}, {47*8}, v{RK+i}")
        I(f"v_mad_u32_u24 v{RK+i}, v{B4+i}, s48, v{RK+i}")
        I(f"ds_write_b64 v{RK+i}, {vr(REC+2*i,2)} offset:{K1_IMG}")
    I("s_mov_b64 exec, -1")

    L("K1_COPY")
    srd(56, P_WS, 3 * LINE_STRIDE, add=CELL_OFF)
    I("v_lshlrev_b32 v6, 15, v3")
    I("v_lshl_add_u32 v6, v2, 4, v6")
    I("s_lshl_b32 s60, s2, 7")
    I("s_add_u32 s61, s60, 0x400000")
    I(f"s_add_u32 s62, s60, {hex(LINE_STRIDE)}")
    I(f"s_add_u32 s63, s61, {hex(LINE_STRIDE)}")
    I(f"s_add_u32 s64, s62, {hex(LINE_STRIDE)}")
    I(f"s_add_u32 s65, s63, {hex(LINE_STRIDE)}")
    I("s_waitcnt lgkmcnt(0)")
    stamp(6)
    I("s_barrier")
    stamp(7)
    C0 = 96
    B2 = 128 * K1_STRIDE
    I(f"ds_read_b128 {vr(C0,4)}, v4 offset:{K1_IMG}")
    I(f"ds_read_b128 {vr(C0+4,4)}, v4 offset:{K1_IMG+B2}")
    I("ds_read2st64_b32 v[8:9], v5 offset0:0 offset1:2")
    I(f"ds_read_b128 {vr(C0+8,4)}, v4 offset:{K1_IMG+128}")
    I(f"ds_read_b128 {vr(C0+12,4)}, v4 offset:{K1_IMG+B2+128}")
    I("s_waitcnt lgkmcnt(4)")
    I(f"buffer_store_dwordx4 {vr(C0,4)}, v6, s[56:59], s60 offen {OPT['st_flags']}")
    I("s_waitcnt lgkmcnt(3)")
    I(f"buffer_store_dwordx4 {vr(C0+4,4)}, v6, s[56:59], s61 offen {OPT['st_flags']}")
    I("s_waitcnt lgkmcnt(2)")
    I("s_movk_i32 s70, 127")
    I("s_movk_i32 s71, 255")
    I("v_cmp_lt_u32 s[66:67], s70, v8")
    I("v_cmp_lt_u32 s[68:69], s70, v9")
    I("v_max_u32 v10, v8, v9")
    I("v_cmp_lt_u32 vcc, s71, v10")
    I("s_waitcnt lgkmcnt(0)")
    I("s_mov_b64 exec, s[66:67]")
    I("s_cbranch_execz K1_L1B")
    I(f"buffer_store_dwordx4 {vr(C0+8,4)}, v6, s[56:59], s62 offen {OPT['st_flags']}")
    L("K1_L1B")
    I("s_mov_b64 exec, s[68:69]")
    I("s_cbranch_execz K1_L2")
    I(f"buffer_store_dwordx4 {vr(C0+12,4)}, v6, s[56:59], s63 offen {OPT['st_flags']}")
    L("K1_L2")
    I("s_cbranch_vccz K1_FIN")
    I("s_mov_b64 exec, vcc")
    I(f"ds_read_b128 {vr(C0+16,4)}, v4 offset:{K1_IMG+256}")
    I(f"ds_read_b128 {vr(C0+20,4)}, v4 offset:{K1_IMG+B2+256}")
    I("s_waitcnt lgkmcnt(0)")
    I(f"buffer_store_dwordx4 {vr(C0+16,4)}, v6, s[56:59], s64 offen")
    I(f"buffer_store_dwordx4 {vr(C0+20,4)}, v6, s[56:59], s65 offen")
    L("K1_FIN")
    stamp(8)
    stamp_out(0)
    L("K1_END")
    I("s_endpgm")

FLAG = 384
NB_OFF = 512
NB_STRIDE = 1312
EA_OFF = 1024
LIST_OFF = NB_OFF + 52 * NB_STRIDE
LIST_STRIDE = 1032
K2_LDS = LIST_OFF + 49 * LIST_STRIDE
TRASH = 0x30000
KEXP = 62

def gen_k2():
    o(".p2align 8")
    o(".globl gg_agg_kernel")
    o(".type gg_agg_kernel,@function")
    L("gg_agg_kernel")
    RA, RB = 8, 16
    U, XR = 104, 120
    RAWA, RAWU, XA, T, ACCA = 32, 64, 96, 24, 64
    I("s_cmp_ge_u32 s2, 256")
    I("s_cbranch_scc1 K2_END")
    stamp(0); stamp(1)
    load_kernargs()
    I("v_lshrrev_b32 v1, 6, v0")
    I("v_lshlrev_b32 v2, 4, v0")
    I("v_readfirstlane_b32 s3, v1")
    I("v_and_b32 v3, 15, v0")
    I("v_lshlrev_b32 v4, 3, v3")
    I("s_lshl_b32 s28, s2, 15")
    I("s_add_u32 s29, s28, 16384")
    I("s_waitcnt lgkmcnt(0)")
    srd(32, P_WS, 3 * LINE_STRIDE, add=CELL_OFF)
    I(f"buffer_load_dwordx4 {vr(RA,4)}, v2, s[32:35], s28 offen")
    I(f"buffer_load_dwordx4 {vr(RA+4,4)}, v2, s[32:35], s29 offen")
    srd(36, P_WC, 128)
    I("buffer_load_dwordx2 v[6:7], v4, s[36:39], 0 offen")
    srd(40, P_WS, TAB_ROWS * 256)
    srd(44, P_X, N * 128)
    srd(48, P_WA, 8192)
    srd(52, P_WU, 8192)
    I("s_cmp_ge_u32 s3, 12")
    I("s_cbranch_scc0 K2_NOG1")
    I("s_sub_u32 s30, s3, 12")
    I("s_lshl_b32 s31, s30, 19")
    I("s_lshl_b32 s56, s2, 7")
    I("s_add_u32 s31, s31, s56")
    I("v_bfe_u32 v5, v0, 4, 2")
    I("v_lshlrev_b32 v24, 15, v3")
    I("v_lshl_add_u32 v24, v5, 5, v24")
    I("v_lshl_add_u32 v25, v5, 11, v4")
    I("v_lshl_add_u32 v26, v5, 17, v4")
    I("v_add_u32 v24, s31, v24")
    I("v_add_u32 v26, s31, v26")
    I(f"buffer_load_dwordx4 {vr(XA,4)}, v24, s[44:47], 0 offen")
    I(f"buffer_load_dwordx4 {vr(XA+4,4)}, v24, s[44:47], 0 offen offset:16")
    gemm_w_loads(RAWU, 52, 25)
    gemm_w_loads(RAWA, 48, 25)
    for r in range(4):
        if r:
            I(f"v_add_u32 v26, 0x8000, v26")
        I(f"buffer_load_dwordx2 {vr(XR+2*r,2)}, v26, s[44:47], 0 offen")
    L("K2_NOG1")
    stamp(2)
    I("v_mov_b32 v28, 0")
    I("v_mov_b32 v29, 0")
    I("v_mov_b32 v30, 0")
    I("v_mov_b32 v31, 0")
    for k in range(4):
        I(f"ds_write_b128 v2, v[28:31] offset:{NB_OFF + k*16384}")
    I(f"v_add_u32 v1, {LIST_OFF}, v2")
    for i in range(4):
        I(f"v_mov_b32 v{16+i}, {DUMMY_OFF}")
    for k in range(3):
        I(f"ds_write_b128 v1, v[16:19] offset:{k*16384}")
    I("s_cmp_lt_u32 s3, 2")
    I("s_cbranch_scc0 K2_INIT2")
    I(f"ds_write_b128 v1, v[16:19] offset:{3*16384}")
    I(f"v_mul_u32_u24 v20, {LIST_STRIDE}, v0")
    I(f"v_add_u32 v20, {LIST_OFF}, v20")
    I(f"v_mov_b32 v21, {TRASH}")
    I("v_cmp_gt_u32 vcc, 64, v0")
    I("s_nop 1")
    I("v_cndmask_b32 v20, v21, v20, vcc")
    I("v_cmp_gt_u32 vcc, 96, v0")
    I("s_nop 1")
    I("v_cndmask_b32 v20, 0, v20, vcc")
    I("v_lshlrev_b32 v21, 2, v0")
    I("ds_write_b32 v21, v20")
    L("K2_INIT2")
    I("v_mov_b32 v1, 4")
    I("s_movk_i32 s57, 0x100")
    I(f"s_add_u32 s58, s28, {hex(LINE_STRIDE)}")
    I(f"s_add_u32 s59, s29, {hex(LINE_STRIDE)}")
    I("s_waitcnt lgkmcnt(0)")
    I("s_barrier")
    stamp(3)

    def expand(dst, src):
        for h in range(2):
            I(f"s_lshr_b32 s{dst+h}, {src[h]}, 7")
            I(f"s_and_b32 s{dst+h}, s{dst+h}, 0x01010101")
            I(f"s_mul_i32 s{dst+h}, s{dst+h}, 0xff")

    def place(R, n, tmp):
        for i in range(n):
            I(f"ds_add_rtn_u32 v{tmp+i}, v{tmp+i}, v1")
        for i in range(n):
            I(f"v_and_b32 v{R+2*i+1}, 0xffff0000, v{R+2*i+1}")
        for i in range(n):
            I(f"s_waitcnt lgkmcnt({n-1})")
            I(f"ds_write2st64_b32 v{tmp+i}, v{R+2*i}, v{R+2*i+1} offset0:0 offset1:2")

    CA = 28
    def round_a(nlater):
        I(f"s_waitcnt vmcnt({nlater})")
        stamp(4)
        for i in range(4):
            I(f"v_and_b32 v{CA+i}, 0x1ff, v{RA+2*i+1}")
        I(f"v_cmp_gt_u32 vcc, s57, v{CA+1}")
        I(f"v_cmp_gt_u32 s[62:63], s57, v{CA+3}")
        expand(60, ("vcc_lo", "vcc_hi"))
        expand(62, ("s62", "s63"))
        I("s_mov_b64 exec, s[60:61]")
        I(f"buffer_load_dwordx4 {vr(RB,4)}, v2, s[32:35], s58 offen")
        I("s_mov_b64 exec, s[62:63]")
        I(f"buffer_load_dwordx4 {vr(RB+4,4)}, v2, s[32:35], s59 offen")
        I("s_mov_b64 exec, -1")
        place(RA, 4, CA)

    I("s_cmp_ge_u32 s3, 12")
    I("s_cbranch_scc1 K2_G2")
    round_a(1)
    I("s_branch K2_RB")
    L("K2_G2")
    round_a(39)
    I("s_mov_b32 s64, 0x05040100")
    I("s_mov_b32 s65, 0x07060302")
    I(f"s_mov_b32 s66, {hex(f32(-LOG2E))}")
    I("s_waitcnt vmcnt(22) lgkmcnt(0)")
    gemm_mfma(RAWU, XA, T, U, 64, 65)
    I("s_waitcnt vmcnt(6)")
    gemm_mfma(RAWA, XA, T, ACCA, 64, 65)
    I(f"s_mul_i32 s67, s30, {16*NB_STRIDE}")
    I(f"s_add_u32 s67, s67, {NB_OFF}")
    I(f"v_mul_u32_u24 v102, {4*NB_STRIDE}, v5")
    I("v_add_u32 v102, s67, v102")
    I("v_lshl_add_u32 v24, v3, 4, v102")
    I(f"v_mov_b32 v25, {hex(f32(-float(KEXP)))}")
    I("s_nop 3")
    for i in range(16):
        I(f"v_mul_f32 v{ACCA+i}, s66, v{ACCA+i}")
    I(f"v_max3_f32 v26, |v{ACCA}|, |v{ACCA+1}|, |v{ACCA+2}|")
    for i in range(3, 15, 2):
        I(f"v_max3_f32 v26, |v{ACCA+i}|, |v{ACCA+i+1}|, v26")
    I(f"v_max_f32 v26, |v{ACCA+15}|, v26")
    EAT = 32
    for r in range(4):
        for t in range(4):
            I(f"v_add_f32 v{EAT+4*r+t}, v25, v{ACCA+4*t+r}")
    for i in range(16):
        I(f"v_exp_f32 v{EAT+i}, v{EAT+i}")
    I(f"v_cmp_nge_f32 vcc, {hex(f32(63.0))}, v26")
    I("s_cmp_eq_u32 s30, 3")
    I("s_cselect_b32 exec_hi, 0, -1")
    I("s_cselect_b32 exec_lo, 0xffff, -1")
    for r in range(4):
        I(f"ds_write_b128 v24, {vr(EAT+4*r,4)} offset:{EA_OFF + r*NB_STRIDE}")
    I("s_mov_b64 exec, -1")
    I("s_cbranch_vccz K2_RB")
    I("v_mov_b32 v26, 0")
    I(f"ds_write_b32 v26, v1 offset:{FLAG}")

    L("K2_RB")
    stamp(5)
    I("s_waitcnt vmcnt(0)")
    I("s_mov_b32 s68, 1")
    L("K2_RLOOP")
    I("s_mov_b64 s[70:71], 0")
    I("s_mov_b64 s[72:73], 0")
    I("s_mov_b64 exec, s[60:61]")
    I("s_cbranch_execz K2_RB2")
    for i in range(2):
        I(f"v_and_b32 v{CA+i}, 0x1ff, v{RB+2*i+1}")
    I(f"v_cmp_gt_u32 s[70:71], s57, v{CA+1}")
    place(RB, 2, CA)
    L("K2_RB2")
    I("s_mov_b64 exec, s[62:63]")
    I("s_cbranch_execz K2_RB3")
    for i in range(2):
        I(f"v_and_b32 v{CA+2+i}, 0x1ff, v{RB+4+2*i+1}")
    I(f"v_cmp_gt_u32 s[72:73], s57, v{CA+3}")
    place(RB + 4, 2, CA + 2)
    L("K2_RB3")
    I("s_mov_b64 exec, -1")
    I("s_or_b64 s[74:75], s[70:71], s[72:73]")
    I("s_or_b32 s74, s74, s75")
    I("s_and_b32 s74, s74, 0x80808080")
    I("s_cbranch_scc0 K2_RDONE")
    I("s_cmp_eq_u32 s68, 2")
    I("s_cbranch_scc1 K2_RFLAG")
    I("s_mov_b32 s68, 2")
    expand(60, ("s70", "s71"))
    expand(62, ("s72", "s73"))
    I(f"s_add_u32 s58, s58, {hex(LINE_STRIDE)}")
    I(f"s_add_u32 s59, s59, {hex(LINE_STRIDE)}")
    I("s_waitcnt lgkmcnt(0)")
    I("s_mov_b64 exec, s[60:61]")
    I(f"buffer_load_dwordx4 {vr(RB,4)}, v2, s[32:35], s58 offen")
    I("s_mov_b64 exec, s[62:63]")
    I(f"buffer_load_dwordx4 {vr(RB+4,4)}, v2, s[32:35], s59 offen")
    I("s_mov_b64 exec, -1")
    I("s_waitcnt vmcnt(0)")
    I("s_branch K2_RLOOP")
    L("K2_RFLAG")
    I("v_mov_b32 v26, 0")
    I(f"ds_write_b32 v26, v1 offset:{FLAG}")
    L("K2_RDONE")
    stamp(6)

    XB, RS, TT, PP = 32, 56, 8, 16
    WC, EA, DEN, NUM, LC, VACC, VEA, VQ8, VREC = 80, 84, 88, 92, 96, 98, 99, 100, 101
    I(f"s_mov_b32 s66, {hex(f32(-LOG2E))}")
    I(f"v_lshlrev_b32 v{WC}, 16, v6")
    I(f"v_and_b32 v{WC+1}, 0xffff0000, v6")
    I(f"v_lshlrev_b32 v{WC+2}, 16, v7")
    I(f"v_and_b32 v{WC+3}, 0xffff0000, v7")
    for i in range(4):
        I(f"v_mul_f32 v{WC+i}, s66, v{WC+i}")
    I(f"v_lshlrev_b32 v{LC}, 4, v3")
    I(f"v_lshlrev_b32 v{LC+1}, 4, v3")
    I(f"v_bfe_u32 v{VQ8}, v0, 4, 2")
    I(f"v_lshlrev_b32 v{VQ8}, 3, v{VQ8}")
    I("v_and_b32 v20, 63, v0")
    I("v_lshlrev_b32 v21, 2, v20")
    I(f"v_mul_u32_u24 v22, {LIST_STRIDE}, v20")
    I(f"v_add_u32 v22, {LIST_OFF - 28}, v22")
    I("v_mov_b32 v23, 0")
    I("s_cmp_lt_u32 s2, 212")
    I("s_cselect_b32 s69, 49, 48")
    for i in range(4):
        I(f"v_mov_b64 {vr(DEN+2*i,2)}, 0")
    I("s_waitcnt lgkmcnt(0)")
    I("s_barrier")
    stamp(7)
    I("ds_read_b32 v24, v21")
    I(f"ds_read_b32 v25, v23 offset:{FLAG}")
    I(f"v_lshlrev_b32 v{VACC}, 3, v3")
    I(f"s_mov_b32 s76, {hex(f32(2.0**-KEXP))}")
    I("s_mov_b32 s77, s76")
    I(f"s_mov_b32 s78, {hex(f32(1e-6 * 2.0**KEXP))}")
    I("s_waitcnt lgkmcnt(0)")
    I("v_sub_u32 v24, v24, v22")
    I("v_readfirstlane_b32 s70, v25")
    I(f"v_cmp_lt_u32 vcc, {512+28}, v24")
    I("v_lshrrev_b32 v24, 5, v24")
    I("s_or_b32 s70, s70, vcc_lo")
    I("s_or_b32 s70, s70, vcc_hi")
    if OPT["force_slow"]:
        I("s_branch K2_SLOW")
    I("s_cbranch_scc1 K2_SLOW")
    I("v_max_u32 v24, 1, v24")
    I("v_cmp_gt_u32 vcc, s69, v20")
    I("s_nop 1")
    I("v_cndmask_b32 v24, 0, v24, vcc")
    I("v_mov_b32 v25, v24")
    for d in ("row_shr:1 row_mask:0xf", "row_shr:2 row_mask:0xf", "row_shr:4 row_mask:0xf",
              "row_shr:8 row_mask:0xf", "row_bcast:15 row_mask:0xa", "row_bcast:31 row_mask:0xc"):
        I("s_nop 1")
        I(f"v_add_u32_dpp v25, v25, v25 {d} bank_mask:0xf")
    I("s_nop 0")
    I("v_readlane_b32 s70, v25, 63")
    I("v_sub_u32 v26, v25, v24")
    I("s_mul_i32 s71, s70, s3")
    I("s_add_u32 s72, s71, s70")
    I("s_lshr_b32 s71, s71, 4")
    I("s_lshr_b32 s72, s72, 4")
    I("s_sub_u32 s72, s72, s71")
    I("s_cmp_eq_u32 s72, 0")
    I("s_cbranch_scc1 K2_JOIN")
    I("v_cmp_ge_u32 vcc, s71, v25")
    I("v_subrev_u32 v27, s71, v26")
    I("s_bcnt1_i32_b64 s73, vcc")
    I("v_cmp_gt_u32 vcc, 64, v27")
    I("v_lshlrev_b32 v27, 2, v27")
    I("s_nop 0")
    I("v_cndmask_b32 v27, 0, v27, vcc")
    I("ds_permute_b32 v27, v27, v1")
    I("v_readlane_b32 s74, v26, s73")
    I(f"s_mul_i32 s80, s73, {LIST_STRIDE}")
    I(f"s_add_u32 s80, s80, {LIST_OFF}")
    I("s_sub_u32 s74, s71, s74")
    I("s_lshl_b32 s74, s74, 5")
    I("s_add_u32 s81, s80, s74")
    I(f"s_mul_i32 s75, s73, {NB_STRIDE}")
    I(f"s_add_u32 s75, s75, {NB_OFF}")
    I(f"v_add_u32 v{VACC}, s75, v{VACC}")
    I(f"v_add_u32 v{VEA}, s75, v{LC}")
    I(f"v_add_u32 v{VREC}, s81, v{VQ8}")
    I(f"ds_read2st64_b64 {vr(RS,4)}, v{VREC} offset0:0 offset1:1")
    I(f"ds_read_b128 {vr(EA,4)}, v{VEA} offset:{EA_OFF}")
    I("s_waitcnt lgkmcnt(2)")
    I("v_cmp_ne_u32 s[82:83], 0, v27")
    I("s_bitset1_b64 s[82:83], s72")

    def advance(bit):
        I("s_add_u32 s81, s81, 32")
        I(f"s_add_u32 s84, s80, {LIST_STRIDE}")
        I(f"s_bitcmp1_b32 s82, {bit}")
        I("s_cselect_b32 s81, s84, s81")
        I("s_cselect_b32 s80, s84, s80")
    def rec_read(slot):
        I(f"v_add_u32 v{VREC}, s81, v{VQ8}")
        I(f"ds_read2st64_b64 {vr(RS+4*slot,4)}, v{VREC} offset0:0 offset1:1")
    def gather(slot):
        r = RS + 4 * slot
        I(f"v_lshl_add_u64 {vr(r,2)}, {vr(r,2)}, 0, {vr(LC,2)}")
        I(f"buffer_load_dwordx4 {vr(XB+8*slot,4)}, v{r}, s[40:43], 0 offen")
        I(f"buffer_load_dwordx4 {vr(XB+8*slot+4,4)}, v{r+1}, s[40:43], 0 offen")

    advance(1); rec_read(1)
    advance(2); rec_read(2)
    I("s_waitcnt lgkmcnt(3)")
    gather(0)
    I("s_cmp_gt_u32 s72, 1")
    I("s_cselect_b32 s42, s42, 0")
    I("s_waitcnt lgkmcnt(1)")
    gather(1)

    stamp(8)
    L("K2_LOOP")
    for u in range(3):
        x = XB + 8 * u
        e = RS + 4 * u + 2
        t = TT
        p = PP
        L(f"K2_STEP{u}")
        I("s_cmp_gt_u32 s72, 2")
        I("s_cselect_b32 s42, s42, 0")
        advance(u + 3)
        I("s_waitcnt lgkmcnt(0)")
        gather((u + 2) % 3)
        I("s_waitcnt vmcnt(4)")
        I(f"v_pk_fma_f32 {vr(t,2)}, {vr(e,2)}, {vr(WC,2)}, {vr(x,2)} op_sel_hi:[0,1,1]")
        I(f"v_pk_fma_f32 {vr(t+2,2)}, {vr(e,2)}, {vr(WC+2,2)}, {vr(x+2,2)} op_sel_hi:[0,1,1]")
        I(f"v_pk_fma_f32 {vr(t+4,2)}, {vr(e,2)}, {vr(WC,2)}, {vr(x+4,2)} op_sel:[1,0,0] op_sel_hi:[1,1,1]")
        I(f"v_pk_fma_f32 {vr(t+6,2)}, {vr(e,2)}, {vr(WC+2,2)}, {vr(x+6,2)} op_sel:[1,0,0] op_sel_hi:[1,1,1]")
        rec_read(u)
        for i in range(8):
            I(f"v_exp_f32 v{t+i}, v{t+i}")
        for i in range(4):
            I(f"v_lshlrev_b64 {vr(x+2*i,2)}, 16, {vr(x+2*i,2)}")
        for i in range(4):
            I(f"v_pk_fma_f32 {vr(t+2*i,2)}, {vr(t+2*i,2)}, {vr(EA+2*(i&1),2)}, s[76:77] clamp")
        I(f"v_pk_mul_f32 {vr(p,2)}, {vr(t,2)}, {vr(t+4,2)}")
        I(f"v_pk_mul_f32 {vr(p+2,2)}, {vr(t+2,2)}, {vr(t+6,2)}")
        I(f"v_pk_mul_f32 {vr(x,2)}, {vr(x,2)}, {vr(t+4,2)}")
        I(f"v_pk_mul_f32 {vr(x+2,2)}, {vr(x+2,2)}, {vr(t+6,2)}")
        for i in range(4):
            I(f"v_rcp_f32 v{p+i}, v{p+i}")
        I(f"v_pk_fma_f32 {vr(x,2)}, {vr(x+4,2)}, {vr(t,2)}, {vr(x,2)}")
        I(f"v_pk_fma_f32 {vr(x+2,2)}, {vr(x+6,2)}, {vr(t+2,2)}, {vr(x+2,2)}")
        I(f"v_pk_add_f32 {vr(t,2)}, {vr(t,2)}, {vr(t+4,2)}")
        I(f"v_pk_add_f32 {vr(t+2,2)}, {vr(t+2,2)}, {vr(t+6,2)}")
        I(f"v_pk_fma_f32 {vr(NUM,2)}, {vr(x,2)}, {vr(p,2)}, {vr(NUM,2)}")
        I(f"v_pk_fma_f32 {vr(NUM+2,2)}, {vr(x+2,2)}, {vr(p+2,2)}, {vr(NUM+2,2)}")
        I(f"v_pk_fma_f32 {vr(DEN,2)}, {vr(t,2)}, {vr(p,2)}, {vr(DEN,2)}")
        I(f"v_pk_fma_f32 {vr(DEN+2,2)}, {vr(t+2,2)}, {vr(p+2,2)}, {vr(DEN+2,2)}")
        I("s_sub_u32 s72, s72, 1")
        I(f"s_bitcmp1_b32 s82, {u+1}")
        I(f"s_cbranch_scc1 K2_FLUSH{u}")
        L(f"K2_BACK{u}")
    I("s_lshr_b64 s[82:83], s[82:83], 3")
    I("s_branch K2_LOOP")
    for u in range(3):
        L(f"K2_FLUSH{u}")
        I(f"v_add_u32 v{VEA}, {NB_STRIDE}, v{VEA}")
        I(f"ds_read_b128 {vr(EA,4)}, v{VEA} offset:{EA_OFF}")
        for c in range(4):
            I(f"v_cvt_f64_f32 {vr(TT+2*c,2)}, v{NUM+c}")
            I(f"ds_add_f64 v{VACC}, {vr(TT+2*c,2)} offset:{512 + c*128}")
        for c in range(4):
            I(f"v_cvt_f64_f32 {vr(TT+8+2*c,2)}, v{DEN+c}")
            I(f"ds_add_f64 v{VACC}, {vr(TT+8+2*c,2)} offset:{c*128}")
        I("s_cmp_eq_u32 s72, 0")
        I("s_cbranch_scc1 K2_JOIN")
        I(f"v_add_u32 v{VACC}, {NB_STRIDE}, v{VACC}")
        for i in range(4):
            I(f"v_mov_b64 {vr(DEN+2*i,2)}, 0")
        I(f"s_branch K2_BACK{u}")

    L("K2_SLOW")
    I("s_cmp_ge_u32 s3, 12")
    I("s_cbranch_scc0 K2_SL1")
    for r in range(4):
        for t in range(4):
            I(f"v_mov_b32 v{32+4*r+t}, v{ACCA+4*t+r}")
    I("v_lshl_add_u32 v24, v3, 4, v102")
    I("s_cmp_eq_u32 s3, 15")
    I("s_cselect_b32 exec_hi, 0, -1")
    I("s_cselect_b32 exec_lo, 0xffff, -1")
    for r in range(4):
        I(f"ds_write_b128 v24, {vr(32+4*r,4)} offset:{EA_OFF + r*NB_STRIDE}")
    I("s_mov_b64 exec, -1")
    L("K2_SL1")
    I(f"s_mov_b32 s78, {hex(f32(1e-6))}")
    srd(48, P_DST, E * 4)
    srd(52, P_SRC, E * 4)
    srd(56, P_E, E * 2)
    I("s_waitcnt lgkmcnt(0)")
    I("s_barrier")
    I("v_lshlrev_b32 v8, 2, v0")
    I("v_lshlrev_b32 v9, 1, v0")
    I("v_lshlrev_b32 v10, 3, v3")
    I("s_lshl_b32 s70, s3, 6")
    I("s_mov_b32 s71, 0")
    I("s_mov_b32 s72, 0")
    L("K2_SLOOP")
    I("buffer_load_dword v11, v8, s[48:51], s71 offen")
    I("buffer_load_dword v12, v8, s[52:55], s71 offen")
    I("buffer_load_ushort v13, v9, s[56:59], s72 offen")
    I("s_waitcnt vmcnt(0)")
    I("v_and_b32 v14, 0xff, v11")
    I("v_cmp_eq_u32 s[74:75], s2, v14")
    L("K2_SIN")
    I("s_cmp_eq_u64 s[74:75], 0")
    I("s_cbranch_scc1 K2_SNEXT")
    I("s_ff1_i32_b64 s73, s[74:75]")
    I("s_bitset0_b64 s[74:75], s73")
    I("v_readlane_b32 s79, v11, s73")
    I("v_readlane_b32 s80, v12, s73")
    I("v_readlane_b32 s81, v13, s73")
    I("s_lshr_b32 s79, s79, 8")
    I(f"s_mul_i32 s79, s79, {NB_STRIDE}")
    I(f"s_add_u32 s79, s79, {NB_OFF}")
    I("s_lshl_b32 s80, s80, 8")
    I("s_lshl_b32 s81, s81, 16")
    I("s_mov_b64 exec, 0xffff")
    I(f"v_add_u32 v15, s79, v{LC}")
    I("v_add_u32 v16, s79, v10")
    I(f"buffer_load_dwordx4 v[20:23], v{LC}, s[40:43], s80 offen")
    I(f"ds_read_b128 v[24:27], v15 offset:{EA_OFF}")
    I("s_waitcnt vmcnt(0) lgkmcnt(0)")
    for c in range(4):
        I(f"v_fma_f32 v{28+c}, s81, v{WC+c}, v{20+c}")
    for c in range(4):
        I(f"v_add_f32 v{28+c}, v{28+c}, v{24+c}")
    for c in range(4):
        I(f"v_exp_f32 v{28+c}, v{28+c}")
    I("v_lshlrev_b64 v[20:21], 16, v[20:21]")
    I("v_lshlrev_b64 v[22:23], 16, v[22:23]")
    for c in range(4):
        I(f"v_add_f32 v{28+c}, 1.0, v{28+c}")
    for c in range(4):
        I(f"v_rcp_f32 v{28+c}, v{28+c}")
    I("s_nop 0")
    for c in range(4):
        I(f"v_mul_f32 v{20+c}, v{20+c}, v{28+c}")
    for c in range(4):
        I(f"v_cvt_f64_f32 {vr(32+4*c,2)}, v{28+c}")
        I(f"v_cvt_f64_f32 {vr(34+4*c,2)}, v{20+c}")
        I(f"ds_add_f64 v16, {vr(32+4*c,2)} offset:{c*128}")
        I(f"ds_add_f64 v16, {vr(34+4*c,2)} offset:{512 + c*128}")
    I("s_mov_b64 exec, -1")
    I("s_branch K2_SIN")
    L("K2_SNEXT")
    I("s_add_u32 s70, s70, 1024")
    I("s_add_u32 s71, s71, 4096")
    I("s_add_u32 s72, s72, 2048")
    I(f"s_cmp_lt_u32 s70, {E}")
    I("s_cbranch_scc1 K2_SLOOP")

    L("K2_JOIN")
    I("s_waitcnt lgkmcnt(0)")
    stamp(9)
    I("s_barrier")
    stamp(10)
    I("s_cmp_ge_u32 s3, 12")
    I("s_cbranch_scc0 K2_FIN")
    srd(48, P_OUT, N * 128)
    I("s_cmp_eq_u32 s3, 15")
    I("s_cselect_b32 exec_hi, 0, -1")
    I("s_cselect_b32 exec_lo, 0xffff, -1")
    I("v_lshl_add_u32 v8, v3, 3, v102")
    for r in range(1, 4):
        I(f"v_add_u32 v{8+r}, {r*NB_STRIDE}, v8")
    AC = 16
    I("s_waitcnt vmcnt(0)")
    for r in range(4):
        for a in range(2):
            for c in range(0, 4, 2):
                b = a * 64 + c * 16
                I(f"ds_read2_b64 {vr(AC+16*r+8*a+2*c,4)}, v{8+r} offset0:{b} offset1:{b+16}")
    I("v_bfe_u32 v5, v0, 4, 2")
    I("v_lshlrev_b32 v4, 3, v3")
    I("v_lshl_add_u32 v12, v5, 17, v4")
    I("s_sub_u32 s30, s3, 12")
    I("s_lshl_b32 s31, s30, 19")
    I("s_lshl_b32 s56, s2, 7")
    I("s_add_u32 s31, s31, s56")
    I("v_add_u32 v12, s31, v12")
    for r in range(4):
        b = AC + 16 * r
        I(f"s_waitcnt lgkmcnt({4*(3-r)})")
        for c in range(4):
            I(f"v_cvt_f32_f64 v{b+2*c}, {vr(b+2*c,2)}")
        for c in range(4):
            I(f"v_add_f32 v{b+2*c}, s78, v{b+2*c}")
        for c in range(4):
            I(f"v_rcp_f32 v{b+2*c}, v{b+2*c}")
        for c in range(4):
            I(f"v_cvt_f32_f64 v{b+8+2*c}, {vr(b+8+2*c,2)}")
        for c in range(4):
            I(f"v_fma_f32 v{b+2*c}, v{b+8+2*c}, v{b+2*c}, v{U+4*c+r}")
        for c in range(4):
            I(f"v_max_f32 v{b+2*c}, 0, v{b+2*c}")
        for c in range(4):
            if c & 1:
                I(f"v_and_b32 v{b+2*c+1}, 0xffff0000, v{XR+2*r+(c>>1)}")
            else:
                I(f"v_lshlrev_b32 v{b+2*c+1}, 16, v{XR+2*r+(c>>1)}")
        for c in range(4):
            I(f"v_add_f32 v{b+2*c}, v{b+2*c}, v{b+2*c+1}")
        I(f"v_cvt_pk_bf16_f32 v{b+8}, v{b}, v{b+2}")
        I(f"v_cvt_pk_bf16_f32 v{b+9}, v{b+4}, v{b+6}")
        if r:
            I(f"v_add_u32 v12, 0x8000, v12")
        I(f"buffer_store_dwordx2 {vr(b+8,2)}, v12, s[48:51], 0 offen")
    L("K2_FIN")
    stamp(11)
    stamp_out(1)
    L("K2_END")
    I("s_endpgm")

def desc(name, vgpr, sgpr):
    o(".p2align 6")
    o(f".amdhsa_kernel {name}")
    o(f"  .amdhsa_next_free_vgpr {vgpr}")
    o(f"  .amdhsa_next_free_sgpr {sgpr}")
    o(f"  .amdhsa_accum_offset {(vgpr+3)//4*4}")
    o("  .amdhsa_group_segment_fixed_size 0")
    o("  .amdhsa_kernarg_size 96")
    o("  .amdhsa_user_sgpr_count 2")
    o("  .amdhsa_user_sgpr_kernarg_segment_ptr 1")
    o("  .amdhsa_system_sgpr_workgroup_id_x 1")
    o(".end_amdhsa_kernel")

hdr = open("standalone__edge_featured_mpnn_gatedgcn__graph.s.ref").read().split("\n")
for line in hdr:
    if line.startswith("; Override"):
        break
    o(line)
o(f"; @launch kernel=gg_bin_kernel grid=(256,1,1) block=(1024,1,1) lds={K1_LDS}")
o(f"; @launch kernel=gg_agg_kernel grid=(256,1,1) block=(1024,1,1) lds={K2_LDS}")
o('.amdgcn_target "amdgcn-amd-amdhsa--gfx950"')
o(".text")
gen_k1()
gen_k2()
o('.section .rodata,"a"')
desc("gg_bin_kernel", 128, 102)
desc("gg_agg_kernel", 128, 102)
open(sys.argv[1], "w").write("\n".join(x for x in out if x is not None) + "\n")
```

```python
import sys, struct, math

OPT = dict(spin=0, stamp=0, force_slow=0, st_flags="", prefetch=0)
for a in sys.argv[2:]:
    k, v = a.split("=")
    OPT[k] = int(v) if v.lstrip("-").isdigit() else v

N = 12500
E = 800000
CHUNK = 3200
NCHUNK = 250
TAB_ROWS = N + 1
DUMMY_OFF = N * 256
CELL_OFF = 0x400000
LINE_STRIDE = 0x800000
LOG2E = 1.4426950408889634

def f32(x):
    return struct.unpack("<I", struct.pack("<f", x))[0]

out = []
def o(s=""):
    out.append(s)
def I(s):
    out.append("    " + s)
def L(s):
    out.append(s + ":")
def vr(a, n=1):
    return f"v{a}" if n == 1 else f"v[{a}:{a+n-1}]"
def sr(a, n=1):
    return f"s{a}" if n == 1 else f"s[{a}:{a+n-1}]"

P_X, P_E, P_SRC, P_DST, P_WA, P_WB, P_WC, P_WU, P_WV, P_OUT, P_DBG, P_WS = 4, 6, 8, 10, 12, 14, 16, 18, 20, 22, 24, 26

def load_kernargs():
    I("s_load_dwordx16 s[4:19], s[0:1], 0")
    I("s_load_dwordx8 s[20:27], s[0:1], 64")

STAMP_OFF = 0x4000000
def stamp(i):
    if not OPT["stamp"]:
        return
    I("s_waitcnt lgkmcnt(0)")
    I("s_memtime s[100:101]" if i else "s_memrealtime s[100:101]")
    I("s_waitcnt lgkmcnt(0)")
    I(f"s_mov_b32 s{86+i}, s100")
def stamp_out(kidx):
    if not OPT["stamp"]:
        return
    I("s_mov_b64 exec, -1")
    I("s_waitcnt vmcnt(0) lgkmcnt(0)")
    I("s_memtime s[100:101]")
    I("s_waitcnt lgkmcnt(0)")
    I("s_mov_b32 s98, s100")
    I("s_memrealtime s[100:101]")
    I("s_waitcnt lgkmcnt(0)")
    I("s_mov_b32 s99, s100")
    I("s_load_dwordx2 s[80:81], s[0:1], 88")
    I("s_waitcnt lgkmcnt(0)")
    I(f"s_add_u32 s80, s80, {hex(STAMP_OFF + kidx*0x100000)}")
    I("s_addc_u32 s81, s81, 0")
    I("s_mov_b32 s82, 0x100000")
    I("s_mov_b32 s83, 0x20000")
    I("s_lshl_b32 s84, s2, 4")
    I("s_add_u32 s84, s84, s3")
    I("s_lshl_b32 s84, s84, 6")
    I("v_mov_b32 v1, s84")
    I("s_mov_b64 exec, 1")
    for i in range(14):
        I(f"v_mov_b32 v2, s{86+i}")
        I(f"buffer_store_dword v2, v1, s[80:83], 0 offen offset:{4*i}")
        I("s_nop 1")

def spin_mark():
    if not OPT["spin"]:
        return
    I("s_cmp_lg_u32 s2, 0")
    I("s_cbranch_scc1 SPIN_M")
    I("s_memrealtime s[90:91]")
    I("s_load_dwordx2 s[80:81], s[0:1], 88")
    I("s_waitcnt lgkmcnt(0)")
    I(f"s_add_u32 s80, s80, {hex(STAMP_OFF)}")
    I("s_addc_u32 s81, s81, 0")
    I("s_mov_b32 s82, 0x100000")
    I("s_mov_b32 s83, 0x20000")
    I("v_mov_b32 v1, 0")
    I("v_mov_b32 v2, s90")
    I("buffer_store_dword v2, v1, s[80:83], 0 offen")
    L("SPIN_M")
def spin_wait(which, ticks):
    if OPT["spin"] != which:
        return
    I("s_load_dwordx2 s[80:81], s[0:1], 88")
    I("s_waitcnt lgkmcnt(0)")
    I(f"s_add_u32 s80, s80, {hex(STAMP_OFF)}")
    I("s_addc_u32 s81, s81, 0")
    I("s_load_dword s92, s[80:81], 0")
    I("s_waitcnt lgkmcnt(0)")
    L("SPIN_W")
    I("s_memrealtime s[90:91]")
    I("s_waitcnt lgkmcnt(0)")
    I("s_sub_u32 s90, s90, s92")
    I(f"s_cmp_lt_u32 s90, {ticks}")
    I("s_cbranch_scc1 SPIN_W")

def srd(d, p, size, add=0):
    if add:
        I(f"s_add_u32 s{d}, s{p}, {hex(add)}")
        I(f"s_addc_u32 s{d+1}, s{p+1}, 0")
    else:
        I(f"s_mov_b32 s{d}, s{p}")
        I(f"s_mov_b32 s{d+1}, s{p+1}")
    I(f"s_mov_b32 s{d+2}, {hex(size)}")
    I(f"s_mov_b32 s{d+3}, 0x20000")

def gemm_w_loads(raw, srdw, voff):
    for kk in range(16):
        I(f"buffer_load_dwordx2 {vr(raw+2*kk,2)}, v{voff}, {sr(srdw,4)}, 0 offen offset:{kk*128}")

def gemm_mfma(raw, xa, T, acc, sel_lo, sel_hi):
    k = 0
    for t in range(4):
        u = t >> 1
        sel = sel_lo if (t & 1) == 0 else sel_hi
        for s in range(2):
            tt = T + 4 * (k & 1)
            k += 1
            for d in range(4):
                lo = raw + 2 * (8 * s + 2 * d) + u
                hi = raw + 2 * (8 * s + 2 * d + 1) + u
                I(f"v_perm_b32 v{tt+d}, v{hi}, v{lo}, s{sel}")
            I("s_nop 1")
            c = "0" if s == 0 else vr(acc + 4 * t, 4)
            I(f"v_mfma_f32_16x16x32_bf16 {vr(acc+4*t,4)}, {vr(xa+4*s,4)}, {vr(tt,4)}, {c}")

K1_IMG = 1024
K1_STRIDE = 400
K1_LDS = K1_IMG + 256 * K1_STRIDE

def gen_k1():
    o(".p2align 8")
    o(".globl gg_bin_kernel")
    o(".type gg_bin_kernel,@function")
    L("gg_bin_kernel")
    I("s_cmp_ge_u32 s2, 256")
    I("s_cbranch_scc1 K1_END")
    spin_mark()
    stamp(0); stamp(1)
    load_kernargs()
    I("v_lshrrev_b32 v1, 6, v0")
    I("v_and_b32 v2, 7, v0")
    I("v_readfirstlane_b32 s3, v1")
    I("v_lshrrev_b32 v3, 3, v0")
    I(f"v_mul_u32_u24 v4, {K1_STRIDE}, v3")
    I("v_lshl_add_u32 v4, v2, 4, v4")
    I("s_mov_b32 s29, 0")
    I("s_cmp_ge_u32 s3, 13")
    I("s_cbranch_scc1 K1_ROLE_G")
    I(f"s_cmp_lt_u32 s2, {NCHUNK}")
    I("s_cbranch_scc1 K1_ROLE_B")
    I("s_mul_i32 s28, s3, 6")
    I("s_add_u32 s28, s28, s2")
    I(f"s_sub_u32 s28, s28, {NCHUNK}")
    I("s_cmp_lt_u32 s28, 14")
    I("s_cbranch_scc0 K1_ROLE_I")
    I("s_add_u32 s28, s28, 768")
    I("s_branch K1_GEMM")
    L("K1_ROLE_G")
    I("s_mul_i32 s28, s2, 3")
    I("s_add_u32 s28, s28, s3")
    I("s_sub_u32 s28, s28, 13")

    def lds_init():
        if OPT["stamp"] == 2:
            I("s_waitcnt vmcnt(0)")
        stamp(2)
        I("s_and_b32 s30, s2, 3")
        I("s_lshl_b32 s30, s30, 5")
        I("s_add_u32 s30, s30, 256")
        I("v_lshl_add_u32 v9, v2, 2, s30")
        I("v_mov_b32 v8, 0")
        I("v_mov_b32 v10, 0")
        I("v_mov_b32 v11, v9")
        for b in range(2):
            for r in range(3):
                I(f"ds_write_b128 v4, v[8:11] offset:{K1_IMG + b*128*K1_STRIDE + r*128}")
        I("v_lshlrev_b32 v5, 2, v3")
        I("ds_write2st64_b32 v5, v8, v8 offset0:0 offset1:2")
        I("s_waitcnt lgkmcnt(0)")
        stamp(3)
        I("s_barrier")
        stamp(4)

    L("K1_GEMM")
    RAWB, RAWV, XA, T, ACCB, ACCV = 32, 64, 96, 24, 104, 32
    I("v_and_b32 v12, 15, v0")
    I("v_bfe_u32 v13, v0, 4, 2")
    I("s_lshl_b32 s30, s28, 11")
    I("v_lshlrev_b32 v14, 7, v12")
    I("v_lshl_add_u32 v14, v13, 5, v14")
    I("v_add_u32 v14, s30, v14")
    I("v_lshlrev_b32 v15, 11, v13")
    I("v_lshl_add_u32 v15, v12, 3, v15")
    I("s_waitcnt lgkmcnt(0)")
    srd(32, P_X, N * 128)
    srd(36, P_WB, 8192)
    srd(40, P_WV, 8192)
    srd(44, P_WS, N * 256)
    I(f"buffer_load_dwordx4 {vr(XA,4)}, v14, s[32:35], 0 offen")
    I(f"buffer_load_dwordx4 {vr(XA+4,4)}, v14, s[32:35], 0 offen offset:16")
    gemm_w_loads(RAWB, 36, 15)
    gemm_w_loads(RAWV, 40, 15)
    lds_init()
    I("s_mov_b32 s48, 0x05040100")
    I("s_mov_b32 s49, 0x07060302")
    I(f"s_mov_b32 s50, {hex(f32(-LOG2E))}")
    I(f"v_mov_b32 v16, {hex(f32(2.0**-70))}")
    I("v_lshlrev_b32 v14, 10, v13")
    I("v_lshl_add_u32 v14, v12, 4, v14")
    I("s_lshl_b32 s30, s28, 12")
    I("v_add_u32 v14, s30, v14")
    I("s_waitcnt vmcnt(16)")
    stamp(5)
    gemm_mfma(RAWB, XA, T, ACCB, 48, 49)
    I("s_waitcnt vmcnt(0)")
    gemm_mfma(RAWV, XA, T, ACCV, 48, 49)
    for i in range(16):
        I(f"v_fma_f32 v{ACCB+i}, v{ACCB+i}, s50, v16")
    for i in range(16):
        I(f"v_add_u32 v{ACCB+i}, 0x8000, v{ACCB+i}")
    for t in (1, 3):
        for r in range(4):
            I(f"v_add_f32 v{ACCV+4*t+r}, {hex(f32(2.0**-100))}, v{ACCV+4*t+r}")
    for i in range(16):
        I(f"v_add_u32 v{ACCV+i}, 0x8000, v{ACCV+i}")
    SD = "dst_sel:DWORD dst_unused:UNUSED_PAD src0_sel:DWORD src1_sel:WORD_1"
    for r in range(4):
        for t in (0, 2):
            I(f"v_sub_u32_sdwa v{ACCB+4*t+r}, v{ACCB+4*t+r}, v{ACCV+4*t+r} clamp {SD}")
    for r in range(4):
        for t in (0, 2):
            I(f"v_sub_u32_sdwa v{ACCV+4*(t+1)+r}, v{ACCV+4*(t+1)+r}, v{ACCB+4*t+r} clamp {SD}")
    for r in range(4):
        for t in (0, 2):
            I(f"v_sub_u32_sdwa v{ACCB+4*(t+1)+r}, v{ACCB+4*(t+1)+r}, v{ACCV+4*(t+1)+r} clamp {SD}")
    OUTR = 64
    for r in range(4):
        for t in range(4):
            I(f"v_perm_b32 v{OUTR+4*r+t}, v{ACCB+4*t+r}, v{ACCV+4*t+r}, s49")
        I(f"buffer_store_dwordx4 {vr(OUTR+4*r,4)}, v14, s[44:47], 0 offen offset:{r*256} {OPT['st_flags']}")
    I("s_branch K1_COPY")

    L("K1_ROLE_I")
    I("s_waitcnt lgkmcnt(0)")
    I("s_cmp_eq_u32 s28, 14")
    I("s_cbranch_scc0 K1_IDLE2")
    srd(44, P_WS, TAB_ROWS * 256)
    I("v_and_b32 v12, 63, v0")
    I("v_lshlrev_b32 v12, 2, v12")
    I(f"v_add_u32 v12, {DUMMY_OFF}, v12")
    I("v_mov_b32 v13, 0x7f000000")
    I("buffer_store_dword v13, v12, s[44:47], 0 offen")
    L("K1_IDLE2")
    lds_init()
    I("s_branch K1_COPY")

    L("K1_ROLE_B")
    D, S, EE = 16, 20, 24
    I(f"s_mul_i32 s30, s2, {CHUNK*4}")
    I(f"s_mul_i32 s31, s2, {CHUNK*2}")
    I("v_lshlrev_b32 v12, 4, v0")
    I("v_lshlrev_b32 v13, 3, v0")
    I(f"v_cmp_gt_u32 vcc, {CHUNK//4}, v0")
    I("s_mov_b64 s[52:53], vcc")
    I("s_waitcnt lgkmcnt(0)")
    srd(32, P_DST, E * 4)
    srd(36, P_SRC, E * 4)
    srd(40, P_E, E * 2)
    I("s_mov_b64 exec, s[52:53]")
    I(f"buffer_load_dwordx4 {vr(D,4)}, v12, s[32:35], s30 offen")
    I(f"buffer_load_dwordx4 {vr(S,4)}, v12, s[36:39], s30 offen")
    I(f"buffer_load_dwordx2 {vr(EE,2)}, v13, s[40:43], s31 offen")
    I("s_mov_b64 exec, -1")
    lds_init()
    I("s_mov_b64 exec, s[52:53]")
    I("v_mov_b32 v14, 8")
    I("s_movk_i32 s48, 100")
    I("s_mov_b32 s49, 0xffff0000")
    B4, RK, REC = 28, 32, 36
    I("s_waitcnt vmcnt(2)")
    stamp(5)
    for i in range(4):
        I(f"v_lshlrev_b32_sdwa v{B4+i}, 2, v{D+i} dst_sel:DWORD dst_unused:UNUSED_PAD src0_sel:DWORD src1_sel:BYTE_0")
        I(f"ds_add_rtn_u32 v{RK+i}, v{B4+i}, v14")
    for i in range(4):
        I(f"v_lshlrev_b32_sdwa v{D+i}, 2, v{D+i} dst_sel:DWORD dst_unused:UNUSED_PAD src0_sel:DWORD src1_sel:BYTE_1")
    I("s_waitcnt vmcnt(1)")
    for i in range(4):
        I(f"v_lshlrev_b32 v{REC+2*i}, 8, v{S+i}")
    I("s_waitcnt vmcnt(0)")
    for i in range(4):
        if i & 1:
            I(f"v_and_or_b32 v{REC+2*i+1}, v{EE+(i>>1)}, s49, v{D+i}")
        else:
            I(f"v_lshl_or_b32 v{REC+2*i+1}, v{EE+(i>>1)}, 16, v{D+i}")
    for i in range(4):
        I("s_waitcnt lgkmcnt(3)")
        I(f"v_min_u32 v{RK+i}, {47*8}, v{RK+i}")
        I(f"v_mad_u32_u24 v{RK+i}, v{B4+i}, s48, v{RK+i}")
        I(f"ds_write_b64 v{RK+i}, {vr(REC+2*i,2)} offset:{K1_IMG}")
    I("s_mov_b64 exec, -1")

    L("K1_COPY")
    srd(56, P_WS, 3 * LINE_STRIDE, add=CELL_OFF)
    I("v_lshlrev_b32 v6, 15, v3")
    I("v_lshl_add_u32 v6, v2, 4, v6")
    I("s_lshl_b32 s60, s2, 7")
    I("s_add_u32 s61, s60, 0x400000")
    I(f"s_add_u32 s62, s60, {hex(LINE_STRIDE)}")
    I(f"s_add_u32 s63, s61, {hex(LINE_STRIDE)}")
    I(f"s_add_u32 s64, s62, {hex(LINE_STRIDE)}")
    I(f"s_add_u32 s65, s63, {hex(LINE_STRIDE)}")
    I("s_waitcnt lgkmcnt(0)")
    stamp(6)
    I("s_barrier")
    stamp(7)
    C0 = 96
    B2 = 128 * K1_STRIDE
    I(f"ds_read_b128 {vr(C0,4)}, v4 offset:{K1_IMG}")
    I(f"ds_read_b128 {vr(C0+4,4)}, v4 offset:{K1_IMG+B2}")
    I("ds_read2st64_b32 v[8:9], v5 offset0:0 offset1:2")
    I(f"ds_read_b128 {vr(C0+8,4)}, v4 offset:{K1_IMG+128}")
    I(f"ds_read_b128 {vr(C0+12,4)}, v4 offset:{K1_IMG+B2+128}")
    I("s_waitcnt lgkmcnt(4)")
    I(f"buffer_store_dwordx4 {vr(C0,4)}, v6, s[56:59], s60 offen {OPT['st_flags']}")
    I("s_waitcnt lgkmcnt(3)")
    I(f"buffer_store_dwordx4 {vr(C0+4,4)}, v6, s[56:59], s61 offen {OPT['st_flags']}")
    I("s_waitcnt lgkmcnt(2)")
    I("s_movk_i32 s70, 127")
    I("s_movk_i32 s71, 255")
    I("v_cmp_lt_u32 s[66:67], s70, v8")
    I("v_cmp_lt_u32 s[68:69], s70, v9")
    I("v_max_u32 v10, v8, v9")
    I("v_cmp_lt_u32 vcc, s71, v10")
    I("s_waitcnt lgkmcnt(0)")
    I("s_mov_b64 exec, s[66:67]")
    I("s_cbranch_execz K1_L1B")
    I(f"buffer_store_dwordx4 {vr(C0+8,4)}, v6, s[56:59], s62 offen {OPT['st_flags']}")
    L("K1_L1B")
    I("s_mov_b64 exec, s[68:69]")
    I("s_cbranch_execz K1_L2")
    I(f"buffer_store_dwordx4 {vr(C0+12,4)}, v6, s[56:59], s63 offen {OPT['st_flags']}")
    L("K1_L2")
    I("s_cbranch_vccz K1_FIN")
    I("s_mov_b64 exec, vcc")
    I(f"ds_read_b128 {vr(C0+16,4)}, v4 offset:{K1_IMG+256}")
    I(f"ds_read_b128 {vr(C0+20,4)}, v4 offset:{K1_IMG+B2+256}")
    I("s_waitcnt lgkmcnt(0)")
    I(f"buffer_store_dwordx4 {vr(C0+16,4)}, v6, s[56:59], s64 offen")
    I(f"buffer_store_dwordx4 {vr(C0+20,4)}, v6, s[56:59], s65 offen")
    L("K1_FIN")
    stamp(8)
    stamp_out(0)
    L("K1_END")
    I("s_endpgm")

FLAG = 384
NB_OFF = 512
NB_STRIDE = 1312
EA_OFF = 1024
LIST_OFF = NB_OFF + 52 * NB_STRIDE
LIST_STRIDE = 1032
K2_LDS = LIST_OFF + 49 * LIST_STRIDE
TRASH = 0x30000
KEXP = 62

def gen_k2():
    o(".p2align 8")
    o(".globl gg_agg_kernel")
    o(".type gg_agg_kernel,@function")
    L("gg_agg_kernel")
    RA, RB = 8, 16
    U, XR = 104, 120
    RAWA, RAWU, XA, T, ACCA = 32, 64, 96, 24, 64
    I("s_cmp_ge_u32 s2, 256")
    I("s_cbranch_scc1 K2_END")
    spin_wait(2, 3000)
    stamp(0); stamp(1)
    load_kernargs()
    I("v_lshrrev_b32 v1, 6, v0")
    I("v_lshlrev_b32 v2, 4, v0")
    I("v_readfirstlane_b32 s3, v1")
    I("v_and_b32 v3, 15, v0")
    I("v_lshlrev_b32 v4, 3, v3")
    I("s_lshl_b32 s28, s2, 15")
    I("s_add_u32 s29, s28, 16384")
    I("s_waitcnt lgkmcnt(0)")
    srd(32, P_WS, 3 * LINE_STRIDE, add=CELL_OFF)
    I(f"buffer_load_dwordx4 {vr(RA,4)}, v2, s[32:35], s28 offen")
    I(f"buffer_load_dwordx4 {vr(RA+4,4)}, v2, s[32:35], s29 offen")
    srd(36, P_WC, 128)
    I("buffer_load_dwordx2 v[6:7], v4, s[36:39], 0 offen")
    srd(40, P_WS, TAB_ROWS * 256)
    srd(44, P_X, N * 128)
    srd(48, P_WA, 8192)
    srd(52, P_WU, 8192)
    I("s_cmp_ge_u32 s3, 12")
    I("s_cbranch_scc0 K2_NOG1")
    I("s_sub_u32 s30, s3, 12")
    I("s_lshl_b32 s31, s30, 19")
    I("s_lshl_b32 s56, s2, 7")
    I("s_add_u32 s31, s31, s56")
    I("v_bfe_u32 v5, v0, 4, 2")
    I("v_lshlrev_b32 v24, 15, v3")
    I("v_lshl_add_u32 v24, v5, 5, v24")
    I("v_lshl_add_u32 v25, v5, 11, v4")
    I("v_lshl_add_u32 v26, v5, 17, v4")
    I("v_add_u32 v24, s31, v24")
    I("v_add_u32 v26, s31, v26")
    I(f"buffer_load_dwordx4 {vr(XA,4)}, v24, s[44:47], 0 offen")
    I(f"buffer_load_dwordx4 {vr(XA+4,4)}, v24, s[44:47], 0 offen offset:16")
    gemm_w_loads(RAWU, 52, 25)
    gemm_w_loads(RAWA, 48, 25)
    for r in range(4):
        if r:
            I(f"v_add_u32 v26, 0x8000, v26")
        I(f"buffer_load_dwordx2 {vr(XR+2*r,2)}, v26, s[44:47], 0 offen")
    L("K2_NOG1")
    if OPT["stamp"] == 2:
        I("s_waitcnt vmcnt(0)")
    stamp(2)
    I("v_mov_b32 v28, 0")
    I("v_mov_b32 v29, 0")
    I("v_mov_b32 v30, 0")
    I("v_mov_b32 v31, 0")
    for k in range(4):
        I(f"ds_write_b128 v2, v[28:31] offset:{NB_OFF + k*16384}")
    I(f"v_add_u32 v1, {LIST_OFF}, v2")
    for i in range(4):
        I(f"v_mov_b32 v{16+i}, {DUMMY_OFF}")
    for k in range(3):
        I(f"ds_write_b128 v1, v[16:19] offset:{k*16384}")
    I("s_cmp_lt_u32 s3, 2")
    I("s_cbranch_scc0 K2_INIT2")
    I(f"ds_write_b128 v1, v[16:19] offset:{3*16384}")
    I(f"v_mul_u32_u24 v20, {LIST_STRIDE}, v0")
    I(f"v_add_u32 v20, {LIST_OFF}, v20")
    I(f"v_mov_b32 v21, {TRASH}")
    I("v_cmp_gt_u32 vcc, 64, v0")
    I("s_nop 1")
    I("v_cndmask_b32 v20, v21, v20, vcc")
    I("v_cmp_gt_u32 vcc, 96, v0")
    I("s_nop 1")
    I("v_cndmask_b32 v20, 0, v20, vcc")
    I("v_lshlrev_b32 v21, 2, v0")
    I("ds_write_b32 v21, v20")
    L("K2_INIT2")
    I("v_mov_b32 v1, 4")
    I("s_movk_i32 s57, 0x100")
    I(f"s_add_u32 s58, s28, {hex(LINE_STRIDE)}")
    I(f"s_add_u32 s59, s29, {hex(LINE_STRIDE)}")
    I("s_waitcnt lgkmcnt(0)")
    I("s_barrier")
    stamp(3)

    def expand(dst, src):
        for h in range(2):
            I(f"s_lshr_b32 s{dst+h}, {src[h]}, 7")
            I(f"s_and_b32 s{dst+h}, s{dst+h}, 0x01010101")
            I(f"s_mul_i32 s{dst+h}, s{dst+h}, 0xff")

    def place(R, n, tmp):
        for i in range(n):
            I(f"ds_add_rtn_u32 v{tmp+i}, v{tmp+i}, v1")
        for i in range(n):
            I(f"v_and_b32 v{R+2*i+1}, 0xffff0000, v{R+2*i+1}")
        for i in range(n):
            I(f"s_waitcnt lgkmcnt({n-1})")
            I(f"ds_write2st64_b32 v{tmp+i}, v{R+2*i}, v{R+2*i+1} offset0:0 offset1:2")

    CA = 28
    def round_a(nlater):
        I(f"s_waitcnt vmcnt({nlater})")
        stamp(4)
        for i in range(4):
            I(f"v_and_b32 v{CA+i}, 0x1ff, v{RA+2*i+1}")
        I(f"v_cmp_gt_u32 vcc, s57, v{CA+1}")
        I(f"v_cmp_gt_u32 s[62:63], s57, v{CA+3}")
        expand(60, ("vcc_lo", "vcc_hi"))
        expand(62, ("s62", "s63"))
        I("s_mov_b64 exec, s[60:61]")
        I(f"buffer_load_dwordx4 {vr(RB,4)}, v2, s[32:35], s58 offen")
        I("s_mov_b64 exec, s[62:63]")
        I(f"buffer_load_dwordx4 {vr(RB+4,4)}, v2, s[32:35], s59 offen")
        I("s_mov_b64 exec, -1")
        place(RA, 4, CA)

    I("s_cmp_ge_u32 s3, 12")
    I("s_cbranch_scc1 K2_G2")
    round_a(1)
    I("s_branch K2_RB")
    L("K2_G2")
    round_a(39)
    I("s_mov_b32 s64, 0x05040100")
    I("s_mov_b32 s65, 0x07060302")
    I(f"s_mov_b32 s66, {hex(f32(-LOG2E))}")
    I("s_waitcnt vmcnt(22) lgkmcnt(0)")
    gemm_mfma(RAWU, XA, T, U, 64, 65)
    I("s_waitcnt vmcnt(6)")
    gemm_mfma(RAWA, XA, T, ACCA, 64, 65)
    I(f"s_mul_i32 s67, s30, {16*NB_STRIDE}")
    I(f"s_add_u32 s67, s67, {NB_OFF}")
    I(f"v_mul_u32_u24 v102, {4*NB_STRIDE}, v5")
    I("v_add_u32 v102, s67, v102")
    I("v_lshl_add_u32 v24, v3, 4, v102")
    I(f"v_mov_b32 v25, {hex(f32(-float(KEXP)))}")
    I("s_nop 3")
    for i in range(16):
        I(f"v_mul_f32 v{ACCA+i}, s66, v{ACCA+i}")
    I(f"v_max3_f32 v26, |v{ACCA}|, |v{ACCA+1}|, |v{ACCA+2}|")
    for i in range(3, 15, 2):
        I(f"v_max3_f32 v26, |v{ACCA+i}|, |v{ACCA+i+1}|, v26")
    I(f"v_max_f32 v26, |v{ACCA+15}|, v26")
    EAT = 32
    for r in range(4):
        for t in range(4):
            I(f"v_add_f32 v{EAT+4*r+t}, v25, v{ACCA+4*t+r}")
    for i in range(16):
        I(f"v_exp_f32 v{EAT+i}, v{EAT+i}")
    I(f"v_cmp_nge_f32 vcc, {hex(f32(63.0))}, v26")
    I("s_cmp_eq_u32 s30, 3")
    I("s_cselect_b32 exec_hi, 0, -1")
    I("s_cselect_b32 exec_lo, 0xffff, -1")
    for r in range(4):
        I(f"ds_write_b128 v24, {vr(EAT+4*r,4)} offset:{EA_OFF + r*NB_STRIDE}")
    I("s_mov_b64 exec, -1")
    I("s_cbranch_vccz K2_RB")
    I("v_mov_b32 v26, 0")
    I(f"ds_write_b32 v26, v1 offset:{FLAG}")

    L("K2_RB")
    stamp(5)
    I("s_waitcnt vmcnt(0)")
    I("s_mov_b32 s68, 1")
    L("K2_RLOOP")
    I("s_mov_b64 s[70:71], 0")
    I("s_mov_b64 s[72:73], 0")
    I("s_mov_b64 exec, s[60:61]")
    I("s_cbranch_execz K2_RB2")
    for i in range(2):
        I(f"v_and_b32 v{CA+i}, 0x1ff, v{RB+2*i+1}")
    I(f"v_cmp_gt_u32 s[70:71], s57, v{CA+1}")
    place(RB, 2, CA)
    L("K2_RB2")
    I("s_mov_b64 exec, s[62:63]")
    I("s_cbranch_execz K2_RB3")
    for i in range(2):
        I(f"v_and_b32 v{CA+2+i}, 0x1ff, v{RB+4+2*i+1}")
    I(f"v_cmp_gt_u32 s[72:73], s57, v{CA+3}")
    place(RB + 4, 2, CA + 2)
    L("K2_RB3")
    I("s_mov_b64 exec, -1")
    I("s_or_b64 s[74:75], s[70:71], s[72:73]")
    I("s_or_b32 s74, s74, s75")
    I("s_and_b32 s74, s74, 0x80808080")
    I("s_cbranch_scc0 K2_RDONE")
    I("s_cmp_eq_u32 s68, 2")
    I("s_cbranch_scc1 K2_RFLAG")
    I("s_mov_b32 s68, 2")
    expand(60, ("s70", "s71"))
    expand(62, ("s72", "s73"))
    I(f"s_add_u32 s58, s58, {hex(LINE_STRIDE)}")
    I(f"s_add_u32 s59, s59, {hex(LINE_STRIDE)}")
    I("s_waitcnt lgkmcnt(0)")
    I("s_mov_b64 exec, s[60:61]")
    I(f"buffer_load_dwordx4 {vr(RB,4)}, v2, s[32:35], s58 offen")
    I("s_mov_b64 exec, s[62:63]")
    I(f"buffer_load_dwordx4 {vr(RB+4,4)}, v2, s[32:35], s59 offen")
    I("s_mov_b64 exec, -1")
    I("s_waitcnt vmcnt(0)")
    I("s_branch K2_RLOOP")
    L("K2_RFLAG")
    I("v_mov_b32 v26, 0")
    I(f"ds_write_b32 v26, v1 offset:{FLAG}")
    L("K2_RDONE")
    stamp(6)

    XB, RS, TT, PP = 32, 56, 8, 16
    WC, EA, DEN, NUM, LC, VACC, VEA, VQ8, VREC = 80, 84, 88, 92, 96, 98, 99, 100, 101
    I(f"s_mov_b32 s66, {hex(f32(-LOG2E))}")
    I(f"v_lshlrev_b32 v{WC}, 16, v6")
    I(f"v_and_b32 v{WC+1}, 0xffff0000, v6")
    I(f"v_lshlrev_b32 v{WC+2}, 16, v7")
    I(f"v_and_b32 v{WC+3}, 0xffff0000, v7")
    for i in range(4):
        I(f"v_mul_f32 v{WC+i}, s66, v{WC+i}")
    I(f"v_lshlrev_b32 v{LC}, 4, v3")
    I(f"v_lshlrev_b32 v{LC+1}, 4, v3")
    I(f"v_bfe_u32 v{VQ8}, v0, 4, 2")
    I(f"v_lshlrev_b32 v{VQ8}, 3, v{VQ8}")
    I("v_and_b32 v20, 63, v0")
    I("v_lshlrev_b32 v21, 2, v20")
    I(f"v_mul_u32_u24 v22, {LIST_STRIDE}, v20")
    I(f"v_add_u32 v22, {LIST_OFF - 28}, v22")
    I("v_mov_b32 v23, 0")
    I("s_cmp_lt_u32 s2, 212")
    I("s_cselect_b32 s69, 49, 48")
    for i in range(4):
        I(f"v_mov_b64 {vr(DEN+2*i,2)}, 0")
    I("s_waitcnt lgkmcnt(0)")
    I("s_barrier")
    stamp(7)
    I("ds_read_b32 v24, v21")
    I(f"ds_read_b32 v25, v23 offset:{FLAG}")
    I(f"v_lshlrev_b32 v{VACC}, 3, v3")
    I(f"s_mov_b32 s76, {hex(f32(2.0**-KEXP))}")
    I("s_mov_b32 s77, s76")
    I(f"s_mov_b32 s78, {hex(f32(1e-6 * 2.0**KEXP))}")
    I("s_waitcnt lgkmcnt(0)")
    I("v_sub_u32 v24, v24, v22")
    I("v_readfirstlane_b32 s70, v25")
    I(f"v_cmp_lt_u32 vcc, {512+28}, v24")
    I("v_lshrrev_b32 v24, 5, v24")
    I("s_or_b32 s70, s70, vcc_lo")
    I("s_or_b32 s70, s70, vcc_hi")
    if OPT["force_slow"]:
        I("s_branch K2_SLOW")
    I("s_cbranch_scc1 K2_SLOW")
    I("v_max_u32 v24, 1, v24")
    I("v_cmp_gt_u32 vcc, s69, v20")
    I("s_nop 1")
    I("v_cndmask_b32 v24, 0, v24, vcc")
    I("v_mov_b32 v25, v24")
    for d in ("row_shr:1 row_mask:0xf", "row_shr:2 row_mask:0xf", "row_shr:4 row_mask:0xf",
              "row_shr:8 row_mask:0xf", "row_bcast:15 row_mask:0xa", "row_bcast:31 row_mask:0xc"):
        I("s_nop 1")
        I(f"v_add_u32_dpp v25, v25, v25 {d} bank_mask:0xf")
    I("s_nop 0")
    I("v_readlane_b32 s70, v25, 63")
    I("v_sub_u32 v26, v25, v24")
    I("s_mul_i32 s71, s70, s3")
    I("s_add_u32 s72, s71, s70")
    I("s_lshr_b32 s71, s71, 4")
    I("s_lshr_b32 s72, s72, 4")
    I("s_sub_u32 s72, s72, s71")
    I("s_cmp_eq_u32 s72, 0")
    I("s_cbranch_scc1 K2_JOIN")
    I("v_cmp_ge_u32 vcc, s71, v25")
    I("v_subrev_u32 v27, s71, v26")
    I("s_bcnt1_i32_b64 s73, vcc")
    I("v_cmp_gt_u32 vcc, 64, v27")
    I("v_lshlrev_b32 v27, 2, v27")
    I("s_nop 0")
    I("v_cndmask_b32 v27, 0, v27, vcc")
    I("ds_permute_b32 v27, v27, v1")
    I("v_readlane_b32 s74, v26, s73")
    I(f"s_mul_i32 s80, s73, {LIST_STRIDE}")
    I(f"s_add_u32 s80, s80, {LIST_OFF}")
    I("s_sub_u32 s74, s71, s74")
    I("s_lshl_b32 s74, s74, 5")
    I("s_add_u32 s81, s80, s74")
    I(f"s_mul_i32 s75, s73, {NB_STRIDE}")
    I(f"s_add_u32 s75, s75, {NB_OFF}")
    I(f"v_add_u32 v{VACC}, s75, v{VACC}")
    I(f"v_add_u32 v{VEA}, s75, v{LC}")
    I(f"v_add_u32 v{VREC}, s81, v{VQ8}")
    I(f"ds_read2st64_b64 {vr(RS,4)}, v{VREC} offset0:0 offset1:1")
    I(f"ds_read_b128 {vr(EA,4)}, v{VEA} offset:{EA_OFF}")
    I("s_waitcnt lgkmcnt(2)")
    I("v_cmp_ne_u32 s[82:83], 0, v27")
    I("s_bitset1_b64 s[82:83], s72")

    def advance(bit):
        I("s_add_u32 s81, s81, 32")
        I(f"s_add_u32 s84, s80, {LIST_STRIDE}")
        I(f"s_bitcmp1_b32 s82, {bit}")
        I("s_cselect_b32 s81, s84, s81")
        I("s_cselect_b32 s80, s84, s80")
    def rec_read(slot):
        I(f"v_add_u32 v{VREC}, s81, v{VQ8}")
        I(f"ds_read2st64_b64 {vr(RS+4*slot,4)}, v{VREC} offset0:0 offset1:1")
    def gather(slot):
        r = RS + 4 * slot
        I(f"v_lshl_add_u64 {vr(r,2)}, {vr(r,2)}, 0, {vr(LC,2)}")
        I(f"buffer_load_dwordx4 {vr(XB+8*slot,4)}, v{r}, s[40:43], 0 offen")
        I(f"buffer_load_dwordx4 {vr(XB+8*slot+4,4)}, v{r+1}, s[40:43], 0 offen")

    advance(1); rec_read(1)
    advance(2); rec_read(2)
    I("s_waitcnt lgkmcnt(3)")
    gather(0)
    I("s_cmp_gt_u32 s72, 1")
    I("s_cselect_b32 s42, s42, 0")
    I("s_waitcnt lgkmcnt(1)")
    gather(1)

    stamp(8)
    L("K2_LOOP")
    for u in range(3):
        x = XB + 8 * u
        e = RS + 4 * u + 2
        t = TT
        p = PP
        L(f"K2_STEP{u}")
        I("s_cmp_gt_u32 s72, 2")
        I("s_cselect_b32 s42, s42, 0")
        advance(u + 3)
        I("s_waitcnt lgkmcnt(0)")
        gather((u + 2) % 3)
        I("s_waitcnt vmcnt(4)")
        I(f"v_pk_fma_f32 {vr(t,2)}, {vr(e,2)}, {vr(WC,2)}, {vr(x,2)} op_sel_hi:[0,1,1]")
        I(f"v_pk_fma_f32 {vr(t+2,2)}, {vr(e,2)}, {vr(WC+2,2)}, {vr(x+2,2)} op_sel_hi:[0,1,1]")
        I(f"v_pk_fma_f32 {vr(t+4,2)}, {vr(e,2)}, {vr(WC,2)}, {vr(x+4,2)} op_sel:[1,0,0] op_sel_hi:[1,1,1]")
        I(f"v_pk_fma_f32 {vr(t+6,2)}, {vr(e,2)}, {vr(WC+2,2)}, {vr(x+6,2)} op_sel:[1,0,0] op_sel_hi:[1,1,1]")
        rec_read(u)
        for i in range(8):
            I(f"v_exp_f32 v{t+i}, v{t+i}")
        for i in range(4):
            I(f"v_lshlrev_b64 {vr(x+2*i,2)}, 16, {vr(x+2*i,2)}")
        for i in range(4):
            I(f"v_pk_fma_f32 {vr(t+2*i,2)}, {vr(t+2*i,2)}, {vr(EA+2*(i&1),2)}, s[76:77] clamp")
        I(f"v_pk_mul_f32 {vr(p,2)}, {vr(t,2)}, {vr(t+4,2)}")
        I(f"v_pk_mul_f32 {vr(p+2,2)}, {vr(t+2,2)}, {vr(t+6,2)}")
        I(f"v_pk_mul_f32 {vr(x,2)}, {vr(x,2)}, {vr(t+4,2)}")
        I(f"v_pk_mul_f32 {vr(x+2,2)}, {vr(x+2,2)}, {vr(t+6,2)}")
        for i in range(4):
            I(f"v_rcp_f32 v{p+i}, v{p+i}")
        I(f"v_pk_fma_f32 {vr(x,2)}, {vr(x+4,2)}, {vr(t,2)}, {vr(x,2)}")
        I(f"v_pk_fma_f32 {vr(x+2,2)}, {vr(x+6,2)}, {vr(t+2,2)}, {vr(x+2,2)}")
        I(f"v_pk_add_f32 {vr(t,2)}, {vr(t,2)}, {vr(t+4,2)}")
        I(f"v_pk_add_f32 {vr(t+2,2)}, {vr(t+2,2)}, {vr(t+6,2)}")
        I(f"v_pk_fma_f32 {vr(NUM,2)}, {vr(x,2)}, {vr(p,2)}, {vr(NUM,2)}")
        I(f"v_pk_fma_f32 {vr(NUM+2,2)}, {vr(x+2,2)}, {vr(p+2,2)}, {vr(NUM+2,2)}")
        I(f"v_pk_fma_f32 {vr(DEN,2)}, {vr(t,2)}, {vr(p,2)}, {vr(DEN,2)}")
        I(f"v_pk_fma_f32 {vr(DEN+2,2)}, {vr(t+2,2)}, {vr(p+2,2)}, {vr(DEN+2,2)}")
        I("s_sub_u32 s72, s72, 1")
        I(f"s_bitcmp1_b32 s82, {u+1}")
        I(f"s_cbranch_scc1 K2_FLUSH{u}")
        L(f"K2_BACK{u}")
    I("s_lshr_b64 s[82:83], s[82:83], 3")
    I("s_branch K2_LOOP")
    for u in range(3):
        L(f"K2_FLUSH{u}")
        I(f"v_add_u32 v{VEA}, {NB_STRIDE}, v{VEA}")
        I(f"ds_read_b128 {vr(EA,4)}, v{VEA} offset:{EA_OFF}")
        for c in range(4):
            I(f"v_cvt_f64_f32 {vr(TT+2*c,2)}, v{NUM+c}")
            I(f"ds_add_f64 v{VACC}, {vr(TT+2*c,2)} offset:{512 + c*128}")
        for c in range(4):
            I(f"v_cvt_f64_f32 {vr(TT+8+2*c,2)}, v{DEN+c}")
            I(f"ds_add_f64 v{VACC}, {vr(TT+8+2*c,2)} offset:{c*128}")
        I("s_cmp_eq_u32 s72, 0")
        I("s_cbranch_scc1 K2_JOIN")
        I(f"v_add_u32 v{VACC}, {NB_STRIDE}, v{VACC}")
        for i in range(4):
            I(f"v_mov_b64 {vr(DEN+2*i,2)}, 0")
        I(f"s_branch K2_BACK{u}")

    L("K2_SLOW")
    I("s_cmp_ge_u32 s3, 12")
    I("s_cbranch_scc0 K2_SL1")
    for r in range(4):
        for t in range(4):
            I(f"v_mov_b32 v{32+4*r+t}, v{ACCA+4*t+r}")
    I("v_lshl_add_u32 v24, v3, 4, v102")
    I("s_cmp_eq_u32 s3, 15")
    I("s_cselect_b32 exec_hi, 0, -1")
    I("s_cselect_b32 exec_lo, 0xffff, -1")
    for r in range(4):
        I(f"ds_write_b128 v24, {vr(32+4*r,4)} offset:{EA_OFF + r*NB_STRIDE}")
    I("s_mov_b64 exec, -1")
    L("K2_SL1")
    I(f"s_mov_b32 s78, {hex(f32(1e-6))}")
    srd(48, P_DST, E * 4)
    srd(52, P_SRC, E * 4)
    srd(56, P_E, E * 2)
    I("s_waitcnt lgkmcnt(0)")
    I("s_barrier")
    I("v_lshlrev_b32 v8, 2, v0")
    I("v_lshlrev_b32 v9, 1, v0")
    I("v_lshlrev_b32 v10, 3, v3")
    I("s_lshl_b32 s70, s3, 6")
    I("s_mov_b32 s71, 0")
    I("s_mov_b32 s72, 0")
    L("K2_SLOOP")
    I("buffer_load_dword v11, v8, s[48:51], s71 offen")
    I("buffer_load_dword v12, v8, s[52:55], s71 offen")
    I("buffer_load_ushort v13, v9, s[56:59], s72 offen")
    I("s_waitcnt vmcnt(0)")
    I("v_and_b32 v14, 0xff, v11")
    I("v_cmp_eq_u32 s[74:75], s2, v14")
    L("K2_SIN")
    I("s_cmp_eq_u64 s[74:75], 0")
    I("s_cbranch_scc1 K2_SNEXT")
    I("s_ff1_i32_b64 s73, s[74:75]")
    I("s_bitset0_b64 s[74:75], s73")
    I("v_readlane_b32 s79, v11, s73")
    I("v_readlane_b32 s80, v12, s73")
    I("v_readlane_b32 s81, v13, s73")
    I("s_lshr_b32 s79, s79, 8")
    I(f"s_mul_i32 s79, s79, {NB_STRIDE}")
    I(f"s_add_u32 s79, s79, {NB_OFF}")
    I("s_lshl_b32 s80, s80, 8")
    I("s_lshl_b32 s81, s81, 16")
    I("s_mov_b64 exec, 0xffff")
    I(f"v_add_u32 v15, s79, v{LC}")
    I("v_add_u32 v16, s79, v10")
    I(f"buffer_load_dwordx4 v[20:23], v{LC}, s[40:43], s80 offen")
    I(f"ds_read_b128 v[24:27], v15 offset:{EA_OFF}")
    I("s_waitcnt vmcnt(0) lgkmcnt(0)")
    for c in range(4):
        I(f"v_fma_f32 v{28+c}, s81, v{WC+c}, v{20+c}")
    for c in range(4):
        I(f"v_add_f32 v{28+c}, v{28+c}, v{24+c}")
    for c in range(4):
        I(f"v_exp_f32 v{28+c}, v{28+c}")
    I("v_lshlrev_b64 v[20:21], 16, v[20:21]")
    I("v_lshlrev_b64 v[22:23], 16, v[22:23]")
    for c in range(4):
        I(f"v_add_f32 v{28+c}, 1.0, v{28+c}")
    for c in range(4):
        I(f"v_rcp_f32 v{28+c}, v{28+c}")
    I("s_nop 0")
    for c in range(4):
        I(f"v_mul_f32 v{20+c}, v{20+c}, v{28+c}")
    for c in range(4):
        I(f"v_cvt_f64_f32 {vr(32+4*c,2)}, v{28+c}")
        I(f"v_cvt_f64_f32 {vr(34+4*c,2)}, v{20+c}")
        I(f"ds_add_f64 v16, {vr(32+4*c,2)} offset:{c*128}")
        I(f"ds_add_f64 v16, {vr(34+4*c,2)} offset:{512 + c*128}")
    I("s_mov_b64 exec, -1")
    I("s_branch K2_SIN")
    L("K2_SNEXT")
    I("s_add_u32 s70, s70, 1024")
    I("s_add_u32 s71, s71, 4096")
    I("s_add_u32 s72, s72, 2048")
    I(f"s_cmp_lt_u32 s70, {E}")
    I("s_cbranch_scc1 K2_SLOOP")

    L("K2_JOIN")
    I("s_waitcnt lgkmcnt(0)")
    stamp(9)
    I("s_barrier")
    stamp(10)
    I("s_cmp_ge_u32 s3, 12")
    I("s_cbranch_scc0 K2_FIN")
    srd(48, P_OUT, N * 128)
    I("s_cmp_eq_u32 s3, 15")
    I("s_cselect_b32 exec_hi, 0, -1")
    I("s_cselect_b32 exec_lo, 0xffff, -1")
    I("v_lshl_add_u32 v8, v3, 3, v102")
    for r in range(1, 4):
        I(f"v_add_u32 v{8+r}, {r*NB_STRIDE}, v8")
    AC = 16
    I("s_waitcnt vmcnt(0)")
    for r in range(4):
        for a in range(2):
            for c in range(0, 4, 2):
                b = a * 64 + c * 16
                I(f"ds_read2_b64 {vr(AC+16*r+8*a+2*c,4)}, v{8+r} offset0:{b} offset1:{b+16}")
    I("v_bfe_u32 v5, v0, 4, 2")
    I("v_lshlrev_b32 v4, 3, v3")
    I("v_lshl_add_u32 v12, v5, 17, v4")
    I("s_sub_u32 s30, s3, 12")
    I("s_lshl_b32 s31, s30, 19")
    I("s_lshl_b32 s56, s2, 7")
    I("s_add_u32 s31, s31, s56")
    I("v_add_u32 v12, s31, v12")
    for r in range(4):
        b = AC + 16 * r
        I(f"s_waitcnt lgkmcnt({4*(3-r)})")
        for c in range(4):
            I(f"v_cvt_f32_f64 v{b+2*c}, {vr(b+2*c,2)}")
        for c in range(4):
            I(f"v_add_f32 v{b+2*c}, s78, v{b+2*c}")
        for c in range(4):
            I(f"v_rcp_f32 v{b+2*c}, v{b+2*c}")
        for c in range(4):
            I(f"v_cvt_f32_f64 v{b+8+2*c}, {vr(b+8+2*c,2)}")
        for c in range(4):
            I(f"v_fma_f32 v{b+2*c}, v{b+8+2*c}, v{b+2*c}, v{U+4*c+r}")
        for c in range(4):
            I(f"v_max_f32 v{b+2*c}, 0, v{b+2*c}")
        for c in range(4):
            if c & 1:
                I(f"v_and_b32 v{b+2*c+1}, 0xffff0000, v{XR+2*r+(c>>1)}")
            else:
                I(f"v_lshlrev_b32 v{b+2*c+1}, 16, v{XR+2*r+(c>>1)}")
        for c in range(4):
            I(f"v_add_f32 v{b+2*c}, v{b+2*c}, v{b+2*c+1}")
        I(f"v_cvt_pk_bf16_f32 v{b+8}, v{b}, v{b+2}")
        I(f"v_cvt_pk_bf16_f32 v{b+9}, v{b+4}, v{b+6}")
        if r:
            I(f"v_add_u32 v12, 0x8000, v12")
        I(f"buffer_store_dwordx2 {vr(b+8,2)}, v12, s[48:51], 0 offen")
    L("K2_FIN")
    spin_wait(1, 6000)
    stamp(11)
    stamp_out(1)
    L("K2_END")
    I("s_endpgm")

def desc(name, vgpr, sgpr):
    o(".p2align 6")
    o(f".amdhsa_kernel {name}")
    o(f"  .amdhsa_next_free_vgpr {vgpr}")
    o(f"  .amdhsa_next_free_sgpr {sgpr}")
    o(f"  .amdhsa_accum_offset {(vgpr+3)//4*4}")
    o("  .amdhsa_group_segment_fixed_size 0")
    o("  .amdhsa_kernarg_size 96")
    o("  .amdhsa_user_sgpr_count 2")
    o("  .amdhsa_user_sgpr_kernarg_segment_ptr 1")
    o("  .amdhsa_system_sgpr_workgroup_id_x 1")
    o(".end_amdhsa_kernel")

hdr = open("standalone__edge_featured_mpnn_gatedgcn__graph.s.ref").read().split("\n")
for line in hdr:
    if line.startswith("; Override"):
        break
    o(line)
o(f"; @launch kernel=gg_bin_kernel grid=(256,1,1) block=(1024,1,1) lds={K1_LDS}")
o(f"; @launch kernel=gg_agg_kernel grid=(256,1,1) block=(1024,1,1) lds={K2_LDS}")
o('.amdgcn_target "amdgcn-amd-amdhsa--gfx950"')
o(".text")
gen_k1()
gen_k2()
o('.section .rodata,"a"')
desc("gg_bin_kernel", 128, 102)
desc("gg_agg_kernel", 128, 102)
open(sys.argv[1], "w").write("\n".join(x for x in out if x is not None) + "\n")
```

```python
import sys, struct, math

OPT = dict(fuse=0, bar=0, ld_flags="", prio="", spin=0, stamp=0, force_slow=0, st_flags="", prefetch=0)
for a in sys.argv[2:]:
    k, v = a.split("=")
    OPT[k] = int(v) if v.lstrip("-").isdigit() else v

N = 12500
LDF = OPT["ld_flags"]
E = 800000
CHUNK = 3200
NCHUNK = 250
TAB_ROWS = N + 1
DUMMY_OFF = N * 256
CELL_OFF = 0x400000
LINE_STRIDE = 0x800000
LOG2E = 1.4426950408889634

def f32(x):
    return struct.unpack("<I", struct.pack("<f", x))[0]

out = []
def o(s=""):
    out.append(s)
def I(s):
    out.append("    " + s)
def L(s):
    out.append(s + ":")
def vr(a, n=1):
    return f"v{a}" if n == 1 else f"v[{a}:{a+n-1}]"
def sr(a, n=1):
    return f"s{a}" if n == 1 else f"s[{a}:{a+n-1}]"

P_X, P_E, P_SRC, P_DST, P_WA, P_WB, P_WC, P_WU, P_WV, P_OUT, P_DBG, P_WS = 4, 6, 8, 10, 12, 14, 16, 18, 20, 22, 24, 26

def load_kernargs():
    I("s_load_dwordx16 s[4:19], s[0:1], 0")
    I("s_load_dwordx8 s[20:27], s[0:1], 64")

STAMP_OFF = 0x4000000
def stamp(i):
    if not OPT["stamp"]:
        return
    I("s_waitcnt lgkmcnt(0)")
    I("s_memtime s[100:101]" if i else "s_memrealtime s[100:101]")
    I("s_waitcnt lgkmcnt(0)")
    I(f"s_mov_b32 s{86+i}, s100")
def stamp_out(kidx):
    if not OPT["stamp"]:
        return
    I("s_mov_b64 exec, -1")
    I("s_waitcnt vmcnt(0) lgkmcnt(0)")
    I("s_memtime s[100:101]")
    I("s_waitcnt lgkmcnt(0)")
    I("s_mov_b32 s98, s100")
    I("s_memrealtime s[100:101]")
    I("s_waitcnt lgkmcnt(0)")
    I("s_mov_b32 s99, s100")
    I("s_load_dwordx2 s[80:81], s[0:1], 88")
    I("s_waitcnt lgkmcnt(0)")
    I(f"s_add_u32 s80, s80, {hex(STAMP_OFF + kidx*0x100000)}")
    I("s_addc_u32 s81, s81, 0")
    I("s_mov_b32 s82, 0x100000")
    I("s_mov_b32 s83, 0x20000")
    I("s_lshl_b32 s84, s2, 4")
    I("s_add_u32 s84, s84, s3")
    I("s_lshl_b32 s84, s84, 6")
    I("v_mov_b32 v1, s84")
    I("s_mov_b64 exec, 1")
    for i in range(14):
        I(f"v_mov_b32 v2, s{86+i}")
        I(f"buffer_store_dword v2, v1, s[80:83], 0 offen offset:{4*i}")
        I("s_nop 1")

def spin_mark():
    if not OPT["spin"]:
        return
    I("s_cmp_lg_u32 s2, 0")
    I("s_cbranch_scc1 SPIN_M")
    I("s_memrealtime s[90:91]")
    I("s_load_dwordx2 s[80:81], s[0:1], 88")
    I("s_waitcnt lgkmcnt(0)")
    I(f"s_add_u32 s80, s80, {hex(STAMP_OFF)}")
    I("s_addc_u32 s81, s81, 0")
    I("s_mov_b32 s82, 0x100000")
    I("s_mov_b32 s83, 0x20000")
    I("v_mov_b32 v1, 0")
    I("v_mov_b32 v2, s90")
    I("buffer_store_dword v2, v1, s[80:83], 0 offen")
    L("SPIN_M")
def spin_wait(which, ticks):
    if OPT["spin"] != which:
        return
    I("s_load_dwordx2 s[80:81], s[0:1], 88")
    I("s_waitcnt lgkmcnt(0)")
    I(f"s_add_u32 s80, s80, {hex(STAMP_OFF)}")
    I("s_addc_u32 s81, s81, 0")
    I("s_load_dword s92, s[80:81], 0")
    I("s_waitcnt lgkmcnt(0)")
    L("SPIN_W")
    I("s_memrealtime s[90:91]")
    I("s_waitcnt lgkmcnt(0)")
    I("s_sub_u32 s90, s90, s92")
    I(f"s_cmp_lt_u32 s90, {ticks}")
    I("s_cbranch_scc1 SPIN_W")

KNAME = "standalone__edge_featured_mpnn_gatedgcn__graph_kernel"
def grid_barrier():
    I("s_mov_b64 exec, -1")
    I("s_waitcnt vmcnt(0)")
    I("s_barrier")
    I("s_cmp_lg_u32 s3, 0")
    I("s_cbranch_scc1 GB_DONE")
    srd(72, P_DBG, 256)
    I("v_mov_b32 v10, 1")
    I("v_lshlrev_b32 v11, 2, v0")
    I("s_mov_b32 s76, 0")
    I("s_mov_b64 exec, 1")
    if OPT["bar"] == 0:
        I("v_mov_b32 v12, s2")
        I("buffer_store_byte v10, v12, s[72:75], 0 offen sc0 sc1")
        I("s_mov_b64 exec, -1")
        L("GB_POLL")
        I("buffer_load_dword v12, v11, s[72:75], 0 offen sc0 sc1")
        I("s_waitcnt vmcnt(0)")
        I("v_cmp_ne_u32 vcc, 0x01010101, v12")
    else:
        I("s_and_b32 s77, s2, 3")
        I("s_lshl_b32 s77, s77, 6")
        I("v_mov_b32 v12, s77")
        I("buffer_atomic_add v10, v12, s[72:75], 0 offen sc1")
        I("s_mov_b64 exec, 15")
        I("v_lshlrev_b32 v11, 6, v0")
        L("GB_POLL")
        I("buffer_load_dword v12, v11, s[72:75], 0 offen sc1")
        I("s_waitcnt vmcnt(0)")
        I("v_cmp_ne_u32 vcc, 64, v12")
    I("s_cbranch_vccz GB_OK")
    I("s_add_u32 s76, s76, 1")
    I("s_cmp_lt_u32 s76, 200000")
    I("s_cbranch_scc1 GB_POLL")
    L("GB_OK")
    I("s_mov_b64 exec, -1")
    L("GB_DONE")
    I("s_barrier")

def srd(d, p, size, add=0):
    if add:
        I(f"s_add_u32 s{d}, s{p}, {hex(add)}")
        I(f"s_addc_u32 s{d+1}, s{p+1}, 0")
    else:
        I(f"s_mov_b32 s{d}, s{p}")
        I(f"s_mov_b32 s{d+1}, s{p+1}")
    I(f"s_mov_b32 s{d+2}, {hex(size)}")
    I(f"s_mov_b32 s{d+3}, 0x20000")

def gemm_w_loads(raw, srdw, voff):
    for kk in range(16):
        I(f"buffer_load_dwordx2 {vr(raw+2*kk,2)}, v{voff}, {sr(srdw,4)}, 0 offen offset:{kk*128}")

def gemm_mfma(raw, xa, T, acc, sel_lo, sel_hi):
    k = 0
    for t in range(4):
        u = t >> 1
        sel = sel_lo if (t & 1) == 0 else sel_hi
        for s in range(2):
            tt = T + 4 * (k & 1)
            k += 1
            for d in range(4):
                lo = raw + 2 * (8 * s + 2 * d) + u
                hi = raw + 2 * (8 * s + 2 * d + 1) + u
                I(f"v_perm_b32 v{tt+d}, v{hi}, v{lo}, s{sel}")
            I("s_nop 1")
            c = "0" if s == 0 else vr(acc + 4 * t, 4)
            I(f"v_mfma_f32_16x16x32_bf16 {vr(acc+4*t,4)}, {vr(xa+4*s,4)}, {vr(tt,4)}, {c}")

K1_IMG = 1024
K1_STRIDE = 400
K1_LDS = K1_IMG + 256 * K1_STRIDE

def gen_k1():
    kn = KNAME if OPT["fuse"] else "gg_bin_kernel"
    o(".p2align 8")
    o(f".globl {kn}")
    o(f".type {kn},@function")
    L(kn)
    I("s_cmp_ge_u32 s2, 256")
    I("s_cbranch_scc1 K1_END")
    spin_mark()
    stamp(0); stamp(1)
    load_kernargs()
    I("v_lshrrev_b32 v1, 6, v0")
    I("v_and_b32 v2, 7, v0")
    I("v_readfirstlane_b32 s3, v1")
    I("v_lshrrev_b32 v3, 3, v0")
    I(f"v_mul_u32_u24 v4, {K1_STRIDE}, v3")
    I("v_lshl_add_u32 v4, v2, 4, v4")
    I("s_mov_b32 s29, 0")
    I("s_cmp_ge_u32 s3, 13")
    I("s_cbranch_scc1 K1_ROLE_G")
    I(f"s_cmp_lt_u32 s2, {NCHUNK}")
    I("s_cbranch_scc1 K1_ROLE_B")
    I("s_mul_i32 s28, s3, 6")
    I("s_add_u32 s28, s28, s2")
    I(f"s_sub_u32 s28, s28, {NCHUNK}")
    I("s_cmp_lt_u32 s28, 14")
    I("s_cbranch_scc0 K1_ROLE_I")
    I("s_add_u32 s28, s28, 768")
    I("s_branch K1_GEMM")
    L("K1_ROLE_G")
    I("s_mul_i32 s28, s2, 3")
    I("s_add_u32 s28, s28, s3")
    I("s_sub_u32 s28, s28, 13")

    def lds_init():
        if OPT["stamp"] == 2:
            I("s_waitcnt vmcnt(0)")
        stamp(2)
        I("s_and_b32 s30, s2, 3")
        I("s_lshl_b32 s30, s30, 5")
        I("s_add_u32 s30, s30, 256")
        I("v_lshl_add_u32 v9, v2, 2, s30")
        I("v_mov_b32 v8, 0")
        I("v_mov_b32 v10, 0")
        I("v_mov_b32 v11, v9")
        for b in range(2):
            for r in range(3):
                I(f"ds_write_b128 v4, v[8:11] offset:{K1_IMG + b*128*K1_STRIDE + r*128}")
        I("v_lshlrev_b32 v5, 2, v3")
        I("ds_write2st64_b32 v5, v8, v8 offset0:0 offset1:2")
        I("s_waitcnt lgkmcnt(0)")
        stamp(3)
        I("s_barrier")
        stamp(4)

    L("K1_GEMM")
    RAWB, RAWV, XA, T, ACCB, ACCV = 32, 64, 96, 24, 104, 32
    I("v_and_b32 v12, 15, v0")
    I("v_bfe_u32 v13, v0, 4, 2")
    I("s_lshl_b32 s30, s28, 11")
    I("v_lshlrev_b32 v14, 7, v12")
    I("v_lshl_add_u32 v14, v13, 5, v14")
    I("v_add_u32 v14, s30, v14")
    I("v_lshlrev_b32 v15, 11, v13")
    I("v_lshl_add_u32 v15, v12, 3, v15")
    I("s_waitcnt lgkmcnt(0)")
    srd(32, P_X, N * 128)
    srd(36, P_WB, 8192)
    srd(40, P_WV, 8192)
    srd(44, P_WS, N * 256)
    I(f"buffer_load_dwordx4 {vr(XA,4)}, v14, s[32:35], 0 offen")
    I(f"buffer_load_dwordx4 {vr(XA+4,4)}, v14, s[32:35], 0 offen offset:16")
    gemm_w_loads(RAWB, 36, 15)
    gemm_w_loads(RAWV, 40, 15)
    lds_init()
    I("s_mov_b32 s48, 0x05040100")
    I("s_mov_b32 s49, 0x07060302")
    I(f"s_mov_b32 s50, {hex(f32(-LOG2E))}")
    I(f"v_mov_b32 v16, {hex(f32(2.0**-70))}")
    I("v_lshlrev_b32 v14, 10, v13")
    I("v_lshl_add_u32 v14, v12, 4, v14")
    I("s_lshl_b32 s30, s28, 12")
    I("v_add_u32 v14, s30, v14")
    I("s_waitcnt vmcnt(16)")
    stamp(5)
    gemm_mfma(RAWB, XA, T, ACCB, 48, 49)
    I("s_waitcnt vmcnt(0)")
    gemm_mfma(RAWV, XA, T, ACCV, 48, 49)
    for i in range(16):
        I(f"v_fma_f32 v{ACCB+i}, v{ACCB+i}, s50, v16")
    for i in range(16):
        I(f"v_add_u32 v{ACCB+i}, 0x8000, v{ACCB+i}")
    for t in (1, 3):
        for r in range(4):
            I(f"v_add_f32 v{ACCV+4*t+r}, {hex(f32(2.0**-100))}, v{ACCV+4*t+r}")
    for i in range(16):
        I(f"v_add_u32 v{ACCV+i}, 0x8000, v{ACCV+i}")
    SD = "dst_sel:DWORD dst_unused:UNUSED_PAD src0_sel:DWORD src1_sel:WORD_1"
    for r in range(4):
        for t in (0, 2):
            I(f"v_sub_u32_sdwa v{ACCB+4*t+r}, v{ACCB+4*t+r}, v{ACCV+4*t+r} clamp {SD}")
    for r in range(4):
        for t in (0, 2):
            I(f"v_sub_u32_sdwa v{ACCV+4*(t+1)+r}, v{ACCV+4*(t+1)+r}, v{ACCB+4*t+r} clamp {SD}")
    for r in range(4):
        for t in (0, 2):
            I(f"v_sub_u32_sdwa v{ACCB+4*(t+1)+r}, v{ACCB+4*(t+1)+r}, v{ACCV+4*(t+1)+r} clamp {SD}")
    OUTR = 64
    for r in range(4):
        for t in range(4):
            I(f"v_perm_b32 v{OUTR+4*r+t}, v{ACCB+4*t+r}, v{ACCV+4*t+r}, s49")
        I(f"buffer_store_dwordx4 {vr(OUTR+4*r,4)}, v14, s[44:47], 0 offen offset:{r*256} {OPT['st_flags']}")
    I("s_branch K1_COPY")

    L("K1_ROLE_I")
    I("s_waitcnt lgkmcnt(0)")
    I("s_cmp_eq_u32 s28, 14")
    I("s_cbranch_scc0 K1_IDLE2")
    srd(44, P_WS, TAB_ROWS * 256)
    I("v_and_b32 v12, 63, v0")
    I("v_lshlrev_b32 v12, 2, v12")
    I(f"v_add_u32 v12, {DUMMY_OFF}, v12")
    I("v_mov_b32 v13, 0x7f000000")
    I(f"buffer_store_dword v13, v12, s[44:47], 0 offen {OPT['st_flags']}")
    L("K1_IDLE2")
    lds_init()
    I("s_branch K1_COPY")

    L("K1_ROLE_B")
    D, S, EE = 16, 20, 24
    I(f"s_mul_i32 s30, s2, {CHUNK*4}")
    I(f"s_mul_i32 s31, s2, {CHUNK*2}")
    I("v_lshlrev_b32 v12, 4, v0")
    I("v_lshlrev_b32 v13, 3, v0")
    I(f"v_cmp_gt_u32 vcc, {CHUNK//4}, v0")
    I("s_mov_b64 s[52:53], vcc")
    I("s_waitcnt lgkmcnt(0)")
    srd(32, P_DST, E * 4)
    srd(36, P_SRC, E * 4)
    srd(40, P_E, E * 2)
    I("s_mov_b64 exec, s[52:53]")
    I(f"buffer_load_dwordx4 {vr(D,4)}, v12, s[32:35], s30 offen")
    I(f"buffer_load_dwordx4 {vr(S,4)}, v12, s[36:39], s30 offen")
    I(f"buffer_load_dwordx2 {vr(EE,2)}, v13, s[40:43], s31 offen")
    I("s_mov_b64 exec, -1")
    lds_init()
    I("s_mov_b64 exec, s[52:53]")
    I("v_mov_b32 v14, 8")
    I("s_movk_i32 s48, 100")
    I("s_mov_b32 s49, 0xffff0000")
    B4, RK, REC = 28, 32, 36
    I("s_waitcnt vmcnt(2)")
    stamp(5)
    for i in range(4):
        I(f"v_lshlrev_b32_sdwa v{B4+i}, 2, v{D+i} dst_sel:DWORD dst_unused:UNUSED_PAD src0_sel:DWORD src1_sel:BYTE_0")
        I(f"ds_add_rtn_u32 v{RK+i}, v{B4+i}, v14")
    for i in range(4):
        I(f"v_lshlrev_b32_sdwa v{D+i}, 2, v{D+i} dst_sel:DWORD dst_unused:UNUSED_PAD src0_sel:DWORD src1_sel:BYTE_1")
    I("s_waitcnt vmcnt(1)")
    for i in range(4):
        I(f"v_lshlrev_b32 v{REC+2*i}, 8, v{S+i}")
    I("s_waitcnt vmcnt(0)")
    for i in range(4):
        if i & 1:
            I(f"v_and_or_b32 v{REC+2*i+1}, v{EE+(i>>1)}, s49, v{D+i}")
        else:
            I(f"v_lshl_or_b32 v{REC+2*i+1}, v{EE+(i>>1)}, 16, v{D+i}")
    for i in range(4):
        I("s_waitcnt lgkmcnt(3)")
        I(f"v_min_u32 v{RK+i}, {47*8}, v{RK+i}")
        I(f"v_mad_u32_u24 v{RK+i}, v{B4+i}, s48, v{RK+i}")
        I(f"ds_write_b64 v{RK+i}, {vr(REC+2*i,2)} offset:{K1_IMG}")
    I("s_mov_b64 exec, -1")

    L("K1_COPY")
    srd(56, P_WS, 3 * LINE_STRIDE, add=CELL_OFF)
    I("v_lshlrev_b32 v6, 15, v3")
    I("v_lshl_add_u32 v6, v2, 4, v6")
    I("s_lshl_b32 s60, s2, 7")
    I("s_add_u32 s61, s60, 0x400000")
    I(f"s_add_u32 s62, s60, {hex(LINE_STRIDE)}")
    I(f"s_add_u32 s63, s61, {hex(LINE_STRIDE)}")
    I(f"s_add_u32 s64, s62, {hex(LINE_STRIDE)}")
    I(f"s_add_u32 s65, s63, {hex(LINE_STRIDE)}")
    I("s_waitcnt lgkmcnt(0)")
    stamp(6)
    I("s_barrier")
    stamp(7)
    C0 = 96
    B2 = 128 * K1_STRIDE
    I(f"ds_read_b128 {vr(C0,4)}, v4 offset:{K1_IMG}")
    I(f"ds_read_b128 {vr(C0+4,4)}, v4 offset:{K1_IMG+B2}")
    I("ds_read2st64_b32 v[8:9], v5 offset0:0 offset1:2")
    I(f"ds_read_b128 {vr(C0+8,4)}, v4 offset:{K1_IMG+128}")
    I(f"ds_read_b128 {vr(C0+12,4)}, v4 offset:{K1_IMG+B2+128}")
    I("s_waitcnt lgkmcnt(4)")
    I(f"buffer_store_dwordx4 {vr(C0,4)}, v6, s[56:59], s60 offen {OPT['st_flags']}")
    I("s_waitcnt lgkmcnt(3)")
    I(f"buffer_store_dwordx4 {vr(C0+4,4)}, v6, s[56:59], s61 offen {OPT['st_flags']}")
    I("s_waitcnt lgkmcnt(2)")
    I("s_movk_i32 s70, 127")
    I("s_movk_i32 s71, 255")
    I("v_cmp_lt_u32 s[66:67], s70, v8")
    I("v_cmp_lt_u32 s[68:69], s70, v9")
    I("v_max_u32 v10, v8, v9")
    I("v_cmp_lt_u32 vcc, s71, v10")
    I("s_waitcnt lgkmcnt(0)")
    I("s_mov_b64 exec, s[66:67]")
    I("s_cbranch_execz K1_L1B")
    I(f"buffer_store_dwordx4 {vr(C0+8,4)}, v6, s[56:59], s62 offen {OPT['st_flags']}")
    L("K1_L1B")
    I("s_mov_b64 exec, s[68:69]")
    I("s_cbranch_execz K1_L2")
    I(f"buffer_store_dwordx4 {vr(C0+12,4)}, v6, s[56:59], s63 offen {OPT['st_flags']}")
    L("K1_L2")
    I("s_cbranch_vccz K1_FIN")
    I("s_mov_b64 exec, vcc")
    I(f"ds_read_b128 {vr(C0+16,4)}, v4 offset:{K1_IMG+256}")
    I(f"ds_read_b128 {vr(C0+20,4)}, v4 offset:{K1_IMG+B2+256}")
    I("s_waitcnt lgkmcnt(0)")
    I(f"buffer_store_dwordx4 {vr(C0+16,4)}, v6, s[56:59], s64 offen {OPT['st_flags']}")
    I(f"buffer_store_dwordx4 {vr(C0+20,4)}, v6, s[56:59], s65 offen {OPT['st_flags']}")
    L("K1_FIN")
    stamp(8)
    if OPT["fuse"]:
        grid_barrier()
        I("s_branch K2_BODY")
    stamp_out(0)
    L("K1_END")
    I("s_endpgm")

FLAG = 384
NB_OFF = 512
NB_STRIDE = 1312
EA_OFF = 1024
LIST_OFF = NB_OFF + 52 * NB_STRIDE
LIST_STRIDE = 1032
K2_LDS = LIST_OFF + 49 * LIST_STRIDE
TRASH = 0x30000
KEXP = 62

def gen_k2():
    if not OPT["fuse"]:
        o(".p2align 8")
        o(".globl gg_agg_kernel")
        o(".type gg_agg_kernel,@function")
        L("gg_agg_kernel")
    RA, RB = 8, 16
    U, XR = 104, 120
    RAWA, RAWU, XA, T, ACCA = 32, 64, 96, 24, 64
    if not OPT["fuse"]:
        I("s_cmp_ge_u32 s2, 256")
        I("s_cbranch_scc1 K2_END")
        spin_wait(2, 3000)
        stamp(0); stamp(1)
        load_kernargs()
    L("K2_BODY")
    I("v_lshrrev_b32 v1, 6, v0")
    I("v_lshlrev_b32 v2, 4, v0")
    I("v_readfirstlane_b32 s3, v1")
    I("v_and_b32 v3, 15, v0")
    I("v_lshlrev_b32 v4, 3, v3")
    I("s_lshl_b32 s28, s2, 15")
    I("s_add_u32 s29, s28, 16384")
    I("s_waitcnt lgkmcnt(0)")
    srd(32, P_WS, 3 * LINE_STRIDE, add=CELL_OFF)
    I(f"buffer_load_dwordx4 {vr(RA,4)}, v2, s[32:35], s28 offen {LDF}")
    I(f"buffer_load_dwordx4 {vr(RA+4,4)}, v2, s[32:35], s29 offen {LDF}")
    srd(36, P_WC, 128)
    I("buffer_load_dwordx2 v[6:7], v4, s[36:39], 0 offen")
    srd(40, P_WS, TAB_ROWS * 256)
    srd(44, P_X, N * 128)
    srd(48, P_WA, 8192)
    srd(52, P_WU, 8192)
    I("s_cmp_ge_u32 s3, 12")
    I("s_cbranch_scc0 K2_NOG1")
    I("s_sub_u32 s30, s3, 12")
    I("s_lshl_b32 s31, s30, 19")
    I("s_lshl_b32 s56, s2, 7")
    I("s_add_u32 s31, s31, s56")
    I("v_bfe_u32 v5, v0, 4, 2")
    I("v_lshlrev_b32 v24, 15, v3")
    I("v_lshl_add_u32 v24, v5, 5, v24")
    I("v_lshl_add_u32 v25, v5, 11, v4")
    I("v_lshl_add_u32 v26, v5, 17, v4")
    I("v_add_u32 v24, s31, v24")
    I("v_add_u32 v26, s31, v26")
    I(f"buffer_load_dwordx4 {vr(XA,4)}, v24, s[44:47], 0 offen")
    I(f"buffer_load_dwordx4 {vr(XA+4,4)}, v24, s[44:47], 0 offen offset:16")
    gemm_w_loads(RAWU, 52, 25)
    gemm_w_loads(RAWA, 48, 25)
    for r in range(4):
        if r:
            I(f"v_add_u32 v26, 0x8000, v26")
        I(f"buffer_load_dwordx2 {vr(XR+2*r,2)}, v26, s[44:47], 0 offen")
    L("K2_NOG1")
    if OPT["stamp"] == 2:
        I("s_waitcnt vmcnt(0)")
    stamp(2)
    I("v_mov_b32 v28, 0")
    I("v_mov_b32 v29, 0")
    I("v_mov_b32 v30, 0")
    I("v_mov_b32 v31, 0")
    for k in range(4):
        I(f"ds_write_b128 v2, v[28:31] offset:{NB_OFF + k*16384}")
    I(f"v_add_u32 v1, {LIST_OFF}, v2")
    for i in range(4):
        I(f"v_mov_b32 v{16+i}, {DUMMY_OFF}")
    for k in range(3):
        I(f"ds_write_b128 v1, v[16:19] offset:{k*16384}")
    I("s_cmp_lt_u32 s3, 2")
    I("s_cbranch_scc0 K2_INIT2")
    I(f"ds_write_b128 v1, v[16:19] offset:{3*16384}")
    I(f"v_mul_u32_u24 v20, {LIST_STRIDE}, v0")
    I(f"v_add_u32 v20, {LIST_OFF}, v20")
    I(f"v_mov_b32 v21, {TRASH}")
    I("v_cmp_gt_u32 vcc, 64, v0")
    I("s_nop 1")
    I("v_cndmask_b32 v20, v21, v20, vcc")
    I("v_cmp_gt_u32 vcc, 96, v0")
    I("s_nop 1")
    I("v_cndmask_b32 v20, 0, v20, vcc")
    I("v_lshlrev_b32 v21, 2, v0")
    I("ds_write_b32 v21, v20")
    L("K2_INIT2")
    I("v_mov_b32 v1, 4")
    I("s_movk_i32 s57, 0x100")
    I(f"s_add_u32 s58, s28, {hex(LINE_STRIDE)}")
    I(f"s_add_u32 s59, s29, {hex(LINE_STRIDE)}")
    I("s_waitcnt lgkmcnt(0)")
    I("s_barrier")
    stamp(3)

    def expand(dst, src):
        for h in range(2):
            I(f"s_lshr_b32 s{dst+h}, {src[h]}, 7")
            I(f"s_and_b32 s{dst+h}, s{dst+h}, 0x01010101")
            I(f"s_mul_i32 s{dst+h}, s{dst+h}, 0xff")

    def place(R, n, tmp):
        for i in range(n):
            I(f"ds_add_rtn_u32 v{tmp+i}, v{tmp+i}, v1")
        for i in range(n):
            I(f"v_and_b32 v{R+2*i+1}, 0xffff0000, v{R+2*i+1}")
        for i in range(n):
            I(f"s_waitcnt lgkmcnt({n-1})")
            I(f"ds_write2st64_b32 v{tmp+i}, v{R+2*i}, v{R+2*i+1} offset0:0 offset1:2")

    CA = 28
    def round_a(nlater):
        I(f"s_waitcnt vmcnt({nlater})")
        stamp(4)
        for i in range(4):
            I(f"v_and_b32 v{CA+i}, 0x1ff, v{RA+2*i+1}")
        I(f"v_cmp_gt_u32 vcc, s57, v{CA+1}")
        I(f"v_cmp_gt_u32 s[62:63], s57, v{CA+3}")
        expand(60, ("vcc_lo", "vcc_hi"))
        expand(62, ("s62", "s63"))
        I("s_mov_b64 exec, s[60:61]")
        I(f"buffer_load_dwordx4 {vr(RB,4)}, v2, s[32:35], s58 offen {LDF}")
        I("s_mov_b64 exec, s[62:63]")
        I(f"buffer_load_dwordx4 {vr(RB+4,4)}, v2, s[32:35], s59 offen {LDF}")
        I("s_mov_b64 exec, -1")
        place(RA, 4, CA)

    I("s_cmp_ge_u32 s3, 12")
    I("s_cbranch_scc1 K2_G2")
    round_a(1)
    I("s_branch K2_RB")
    L("K2_G2")
    round_a(39)
    I("s_mov_b32 s64, 0x05040100")
    I("s_mov_b32 s65, 0x07060302")
    I(f"s_mov_b32 s66, {hex(f32(-LOG2E))}")
    I("s_waitcnt vmcnt(22) lgkmcnt(0)")
    gemm_mfma(RAWU, XA, T, U, 64, 65)
    I("s_waitcnt vmcnt(6)")
    gemm_mfma(RAWA, XA, T, ACCA, 64, 65)
    I(f"s_mul_i32 s67, s30, {16*NB_STRIDE}")
    I(f"s_add_u32 s67, s67, {NB_OFF}")
    I(f"v_mul_u32_u24 v102, {4*NB_STRIDE}, v5")
    I("v_add_u32 v102, s67, v102")
    I("v_lshl_add_u32 v24, v3, 4, v102")
    I(f"v_mov_b32 v25, {hex(f32(-float(KEXP)))}")
    I("s_nop 3")
    for i in range(16):
        I(f"v_mul_f32 v{ACCA+i}, s66, v{ACCA+i}")
    I(f"v_max3_f32 v26, |v{ACCA}|, |v{ACCA+1}|, |v{ACCA+2}|")
    for i in range(3, 15, 2):
        I(f"v_max3_f32 v26, |v{ACCA+i}|, |v{ACCA+i+1}|, v26")
    I(f"v_max_f32 v26, |v{ACCA+15}|, v26")
    EAT = 32
    for r in range(4):
        for t in range(4):
            I(f"v_add_f32 v{EAT+4*r+t}, v25, v{ACCA+4*t+r}")
    for i in range(16):
        I(f"v_exp_f32 v{EAT+i}, v{EAT+i}")
    I(f"v_cmp_nge_f32 vcc, {hex(f32(63.0))}, v26")
    I("s_cmp_eq_u32 s30, 3")
    I("s_cselect_b32 exec_hi, 0, -1")
    I("s_cselect_b32 exec_lo, 0xffff, -1")
    for r in range(4):
        I(f"ds_write_b128 v24, {vr(EAT+4*r,4)} offset:{EA_OFF + r*NB_STRIDE}")
    I("s_mov_b64 exec, -1")
    I("s_cbranch_vccz K2_RB")
    I("v_mov_b32 v26, 0")
    I(f"ds_write_b32 v26, v1 offset:{FLAG}")

    L("K2_RB")
    stamp(5)
    I("s_waitcnt vmcnt(0)")
    I("s_mov_b32 s68, 1")
    L("K2_RLOOP")
    I("s_mov_b64 s[70:71], 0")
    I("s_mov_b64 s[72:73], 0")
    I("s_mov_b64 exec, s[60:61]")
    I("s_cbranch_execz K2_RB2")
    for i in range(2):
        I(f"v_and_b32 v{CA+i}, 0x1ff, v{RB+2*i+1}")
    I(f"v_cmp_gt_u32 s[70:71], s57, v{CA+1}")
    place(RB, 2, CA)
    L("K2_RB2")
    I("s_mov_b64 exec, s[62:63]")
    I("s_cbranch_execz K2_RB3")
    for i in range(2):
        I(f"v_and_b32 v{CA+2+i}, 0x1ff, v{RB+4+2*i+1}")
    I(f"v_cmp_gt_u32 s[72:73], s57, v{CA+3}")
    place(RB + 4, 2, CA + 2)
    L("K2_RB3")
    I("s_mov_b64 exec, -1")
    I("s_or_b64 s[74:75], s[70:71], s[72:73]")
    I("s_or_b32 s74, s74, s75")
    I("s_and_b32 s74, s74, 0x80808080")
    I("s_cbranch_scc0 K2_RDONE")
    I("s_cmp_eq_u32 s68, 2")
    I("s_cbranch_scc1 K2_RFLAG")
    I("s_mov_b32 s68, 2")
    expand(60, ("s70", "s71"))
    expand(62, ("s72", "s73"))
    I(f"s_add_u32 s58, s58, {hex(LINE_STRIDE)}")
    I(f"s_add_u32 s59, s59, {hex(LINE_STRIDE)}")
    I("s_waitcnt lgkmcnt(0)")
    I("s_mov_b64 exec, s[60:61]")
    I(f"buffer_load_dwordx4 {vr(RB,4)}, v2, s[32:35], s58 offen {LDF}")
    I("s_mov_b64 exec, s[62:63]")
    I(f"buffer_load_dwordx4 {vr(RB+4,4)}, v2, s[32:35], s59 offen {LDF}")
    I("s_mov_b64 exec, -1")
    I("s_waitcnt vmcnt(0)")
    I("s_branch K2_RLOOP")
    L("K2_RFLAG")
    I("v_mov_b32 v26, 0")
    I(f"ds_write_b32 v26, v1 offset:{FLAG}")
    L("K2_RDONE")
    stamp(6)

    XB, RS, TT, PP = 32, 56, 8, 16
    WC, EA, DEN, NUM, LC, VACC, VEA, VQ8, VREC = 80, 84, 88, 92, 96, 98, 99, 100, 101
    I(f"s_mov_b32 s66, {hex(f32(-LOG2E))}")
    I(f"v_lshlrev_b32 v{WC}, 16, v6")
    I(f"v_and_b32 v{WC+1}, 0xffff0000, v6")
    I(f"v_lshlrev_b32 v{WC+2}, 16, v7")
    I(f"v_and_b32 v{WC+3}, 0xffff0000, v7")
    for i in range(4):
        I(f"v_mul_f32 v{WC+i}, s66, v{WC+i}")
    I(f"v_lshlrev_b32 v{LC}, 4, v3")
    I(f"v_lshlrev_b32 v{LC+1}, 4, v3")
    I(f"v_bfe_u32 v{VQ8}, v0, 4, 2")
    I(f"v_lshlrev_b32 v{VQ8}, 3, v{VQ8}")
    I("v_and_b32 v20, 63, v0")
    I("v_lshlrev_b32 v21, 2, v20")
    I(f"v_mul_u32_u24 v22, {LIST_STRIDE}, v20")
    I(f"v_add_u32 v22, {LIST_OFF - 28}, v22")
    I("v_mov_b32 v23, 0")
    I("s_cmp_lt_u32 s2, 212")
    I("s_cselect_b32 s69, 49, 48")
    for i in range(4):
        I(f"v_mov_b64 {vr(DEN+2*i,2)}, 0")
    I("s_waitcnt lgkmcnt(0)")
    I("s_barrier")
    stamp(7)
    I("ds_read_b32 v24, v21")
    I(f"ds_read_b32 v25, v23 offset:{FLAG}")
    I(f"v_lshlrev_b32 v{VACC}, 3, v3")
    I(f"s_mov_b32 s76, {hex(f32(2.0**-KEXP))}")
    I("s_mov_b32 s77, s76")
    I(f"s_mov_b32 s78, {hex(f32(1e-6 * 2.0**KEXP))}")
    I("s_waitcnt lgkmcnt(0)")
    I("v_sub_u32 v24, v24, v22")
    I("v_readfirstlane_b32 s70, v25")
    I(f"v_cmp_lt_u32 vcc, {512+28}, v24")
    I("v_lshrrev_b32 v24, 5, v24")
    I("s_or_b32 s70, s70, vcc_lo")
    I("s_or_b32 s70, s70, vcc_hi")
    if OPT["force_slow"]:
        I("s_branch K2_SLOW")
    I("s_cbranch_scc1 K2_SLOW")
    I("v_max_u32 v24, 1, v24")
    I("v_cmp_gt_u32 vcc, s69, v20")
    I("s_nop 1")
    I("v_cndmask_b32 v24, 0, v24, vcc")
    I("v_mov_b32 v25, v24")
    for d in ("row_shr:1 row_mask:0xf", "row_shr:2 row_mask:0xf", "row_shr:4 row_mask:0xf",
              "row_shr:8 row_mask:0xf", "row_bcast:15 row_mask:0xa", "row_bcast:31 row_mask:0xc"):
        I("s_nop 1")
        I(f"v_add_u32_dpp v25, v25, v25 {d} bank_mask:0xf")
    I("s_nop 0")
    I("v_readlane_b32 s70, v25, 63")
    I("v_sub_u32 v26, v25, v24")
    I("s_mul_i32 s71, s70, s3")
    I("s_add_u32 s72, s71, s70")
    I("s_lshr_b32 s71, s71, 4")
    I("s_lshr_b32 s72, s72, 4")
    I("s_sub_u32 s72, s72, s71")
    I("s_cmp_eq_u32 s72, 0")
    I("s_cbranch_scc1 K2_JOIN")
    I("v_cmp_ge_u32 vcc, s71, v25")
    I("v_subrev_u32 v27, s71, v26")
    I("s_bcnt1_i32_b64 s73, vcc")
    I("v_cmp_gt_u32 vcc, 64, v27")
    I("v_lshlrev_b32 v27, 2, v27")
    I("s_nop 0")
    I("v_cndmask_b32 v27, 0, v27, vcc")
    I("ds_permute_b32 v27, v27, v1")
    I("v_readlane_b32 s74, v26, s73")
    I(f"s_mul_i32 s80, s73, {LIST_STRIDE}")
    I(f"s_add_u32 s80, s80, {LIST_OFF}")
    I("s_sub_u32 s74, s71, s74")
    I("s_lshl_b32 s74, s74, 5")
    I("s_add_u32 s81, s80, s74")
    I(f"s_mul_i32 s75, s73, {NB_STRIDE}")
    I(f"s_add_u32 s75, s75, {NB_OFF}")
    I(f"v_add_u32 v{VACC}, s75, v{VACC}")
    I(f"v_add_u32 v{VEA}, s75, v{LC}")
    I(f"v_add_u32 v{VREC}, s81, v{VQ8}")
    I(f"ds_read2st64_b64 {vr(RS,4)}, v{VREC} offset0:0 offset1:1")
    I(f"ds_read_b128 {vr(EA,4)}, v{VEA} offset:{EA_OFF}")
    I("s_waitcnt lgkmcnt(2)")
    I("v_cmp_ne_u32 s[82:83], 0, v27")
    I("s_bitset1_b64 s[82:83], s72")

    def advance(bit):
        I("s_add_u32 s81, s81, 32")
        I(f"s_add_u32 s84, s80, {LIST_STRIDE}")
        I(f"s_bitcmp1_b32 s82, {bit}")
        I("s_cselect_b32 s81, s84, s81")
        I("s_cselect_b32 s80, s84, s80")
    def rec_read(slot):
        I(f"v_add_u32 v{VREC}, s81, v{VQ8}")
        I(f"ds_read2st64_b64 {vr(RS+4*slot,4)}, v{VREC} offset0:0 offset1:1")
    def gather(slot):
        r = RS + 4 * slot
        I(f"v_lshl_add_u64 {vr(r,2)}, {vr(r,2)}, 0, {vr(LC,2)}")
        I(f"buffer_load_dwordx4 {vr(XB+8*slot,4)}, v{r}, s[40:43], 0 offen {LDF}")
        I(f"buffer_load_dwordx4 {vr(XB+8*slot+4,4)}, v{r+1}, s[40:43], 0 offen {LDF}")

    advance(1); rec_read(1)
    advance(2); rec_read(2)
    I("s_waitcnt lgkmcnt(3)")
    gather(0)
    I("s_cmp_gt_u32 s72, 1")
    I("s_cselect_b32 s42, s42, 0")
    I("s_waitcnt lgkmcnt(1)")
    gather(1)

    stamp(8)
    if OPT["prio"]:
        I("s_setprio 3")
    L("K2_LOOP")
    if OPT["prio"]:
        th = [int(x) for x in str(OPT["prio"]).split("_")]
        for k, t_ in enumerate(th):
            I(f"s_cmp_gt_u32 s72, {t_}")
            I("s_cbranch_scc1 K2_STEP0")
            I(f"s_setprio {2-k}")
    for u in range(3):
        x = XB + 8 * u
        e = RS + 4 * u + 2
        t = TT
        p = PP
        L(f"K2_STEP{u}")
        I("s_cmp_gt_u32 s72, 2")
        I("s_cselect_b32 s42, s42, 0")
        advance(u + 3)
        I("s_waitcnt lgkmcnt(0)")
        gather((u + 2) % 3)
        I("s_waitcnt vmcnt(4)")
        I(f"v_pk_fma_f32 {vr(t,2)}, {vr(e,2)}, {vr(WC,2)}, {vr(x,2)} op_sel_hi:[0,1,1]")
        I(f"v_pk_fma_f32 {vr(t+2,2)}, {vr(e,2)}, {vr(WC+2,2)}, {vr(x+2,2)} op_sel_hi:[0,1,1]")
        I(f"v_pk_fma_f32 {vr(t+4,2)}, {vr(e,2)}, {vr(WC,2)}, {vr(x+4,2)} op_sel:[1,0,0] op_sel_hi:[1,1,1]")
        I(f"v_pk_fma_f32 {vr(t+6,2)}, {vr(e,2)}, {vr(WC+2,2)}, {vr(x+6,2)} op_sel:[1,0,0] op_sel_hi:[1,1,1]")
        rec_read(u)
        for i in range(8):
            I(f"v_exp_f32 v{t+i}, v{t+i}")
        for i in range(4):
            I(f"v_lshlrev_b64 {vr(x+2*i,2)}, 16, {vr(x+2*i,2)}")
        for i in range(4):
            I(f"v_pk_fma_f32 {vr(t+2*i,2)}, {vr(t+2*i,2)}, {vr(EA+2*(i&1),2)}, s[76:77] clamp")
        I(f"v_pk_mul_f32 {vr(p,2)}, {vr(t,2)}, {vr(t+4,2)}")
        I(f"v_pk_mul_f32 {vr(p+2,2)}, {vr(t+2,2)}, {vr(t+6,2)}")
        I(f"v_pk_mul_f32 {vr(x,2)}, {vr(x,2)}, {vr(t+4,2)}")
        I(f"v_pk_mul_f32 {vr(x+2,2)}, {vr(x+2,2)}, {vr(t+6,2)}")
        for i in range(4):
            I(f"v_rcp_f32 v{p+i}, v{p+i}")
        I(f"v_pk_fma_f32 {vr(x,2)}, {vr(x+4,2)}, {vr(t,2)}, {vr(x,2)}")
        I(f"v_pk_fma_f32 {vr(x+2,2)}, {vr(x+6,2)}, {vr(t+2,2)}, {vr(x+2,2)}")
        I(f"v_pk_add_f32 {vr(t,2)}, {vr(t,2)}, {vr(t+4,2)}")
        I(f"v_pk_add_f32 {vr(t+2,2)}, {vr(t+2,2)}, {vr(t+6,2)}")
        I(f"v_pk_fma_f32 {vr(NUM,2)}, {vr(x,2)}, {vr(p,2)}, {vr(NUM,2)}")
        I(f"v_pk_fma_f32 {vr(NUM+2,2)}, {vr(x+2,2)}, {vr(p+2,2)}, {vr(NUM+2,2)}")
        I(f"v_pk_fma_f32 {vr(DEN,2)}, {vr(t,2)}, {vr(p,2)}, {vr(DEN,2)}")
        I(f"v_pk_fma_f32 {vr(DEN+2,2)}, {vr(t+2,2)}, {vr(p+2,2)}, {vr(DEN+2,2)}")
        I("s_sub_u32 s72, s72, 1")
        I(f"s_bitcmp1_b32 s82, {u+1}")
        I(f"s_cbranch_scc1 K2_FLUSH{u}")
        L(f"K2_BACK{u}")
    I("s_lshr_b64 s[82:83], s[82:83], 3")
    I("s_branch K2_LOOP")
    for u in range(3):
        L(f"K2_FLUSH{u}")
        I(f"v_add_u32 v{VEA}, {NB_STRIDE}, v{VEA}")
        I(f"ds_read_b128 {vr(EA,4)}, v{VEA} offset:{EA_OFF}")
        for c in range(4):
            I(f"v_cvt_f64_f32 {vr(TT+2*c,2)}, v{NUM+c}")
            I(f"ds_add_f64 v{VACC}, {vr(TT+2*c,2)} offset:{512 + c*128}")
        for c in range(4):
            I(f"v_cvt_f64_f32 {vr(TT+8+2*c,2)}, v{DEN+c}")
            I(f"ds_add_f64 v{VACC}, {vr(TT+8+2*c,2)} offset:{c*128}")
        I("s_cmp_eq_u32 s72, 0")
        I("s_cbranch_scc1 K2_JOIN")
        I(f"v_add_u32 v{VACC}, {NB_STRIDE}, v{VACC}")
        for i in range(4):
            I(f"v_mov_b64 {vr(DEN+2*i,2)}, 0")
        I(f"s_branch K2_BACK{u}")

    L("K2_SLOW")
    I("s_cmp_ge_u32 s3, 12")
    I("s_cbranch_scc0 K2_SL1")
    for r in range(4):
        for t in range(4):
            I(f"v_mov_b32 v{32+4*r+t}, v{ACCA+4*t+r}")
    I("v_lshl_add_u32 v24, v3, 4, v102")
    I("s_cmp_eq_u32 s3, 15")
    I("s_cselect_b32 exec_hi, 0, -1")
    I("s_cselect_b32 exec_lo, 0xffff, -1")
    for r in range(4):
        I(f"ds_write_b128 v24, {vr(32+4*r,4)} offset:{EA_OFF + r*NB_STRIDE}")
    I("s_mov_b64 exec, -1")
    L("K2_SL1")
    I(f"s_mov_b32 s78, {hex(f32(1e-6))}")
    srd(48, P_DST, E * 4)
    srd(52, P_SRC, E * 4)
    srd(56, P_E, E * 2)
    I("s_waitcnt lgkmcnt(0)")
    I("s_barrier")
    I("v_lshlrev_b32 v8, 2, v0")
    I("v_lshlrev_b32 v9, 1, v0")
    I("v_lshlrev_b32 v10, 3, v3")
    I("s_lshl_b32 s70, s3, 6")
    I("s_mov_b32 s71, 0")
    I("s_mov_b32 s72, 0")
    L("K2_SLOOP")
    I("buffer_load_dword v11, v8, s[48:51], s71 offen")
    I("buffer_load_dword v12, v8, s[52:55], s71 offen")
    I("buffer_load_ushort v13, v9, s[56:59], s72 offen")
    I("s_waitcnt vmcnt(0)")
    I("v_and_b32 v14, 0xff, v11")
    I("v_cmp_eq_u32 s[74:75], s2, v14")
    L("K2_SIN")
    I("s_cmp_eq_u64 s[74:75], 0")
    I("s_cbranch_scc1 K2_SNEXT")
    I("s_ff1_i32_b64 s73, s[74:75]")
    I("s_bitset0_b64 s[74:75], s73")
    I("v_readlane_b32 s79, v11, s73")
    I("v_readlane_b32 s80, v12, s73")
    I("v_readlane_b32 s81, v13, s73")
    I("s_lshr_b32 s79, s79, 8")
    I(f"s_mul_i32 s79, s79, {NB_STRIDE}")
    I(f"s_add_u32 s79, s79, {NB_OFF}")
    I("s_lshl_b32 s80, s80, 8")
    I("s_lshl_b32 s81, s81, 16")
    I("s_mov_b64 exec, 0xffff")
    I(f"v_add_u32 v15, s79, v{LC}")
    I("v_add_u32 v16, s79, v10")
    I(f"buffer_load_dwordx4 v[20:23], v{LC}, s[40:43], s80 offen {LDF}")
    I(f"ds_read_b128 v[24:27], v15 offset:{EA_OFF}")
    I("s_waitcnt vmcnt(0) lgkmcnt(0)")
    for c in range(4):
        I(f"v_fma_f32 v{28+c}, s81, v{WC+c}, v{20+c}")
    for c in range(4):
        I(f"v_add_f32 v{28+c}, v{28+c}, v{24+c}")
    for c in range(4):
        I(f"v_exp_f32 v{28+c}, v{28+c}")
    I("v_lshlrev_b64 v[20:21], 16, v[20:21]")
    I("v_lshlrev_b64 v[22:23], 16, v[22:23]")
    for c in range(4):
        I(f"v_add_f32 v{28+c}, 1.0, v{28+c}")
    for c in range(4):
        I(f"v_rcp_f32 v{28+c}, v{28+c}")
    I("s_nop 0")
    for c in range(4):
        I(f"v_mul_f32 v{20+c}, v{20+c}, v{28+c}")
    for c in range(4):
        I(f"v_cvt_f64_f32 {vr(32+4*c,2)}, v{28+c}")
        I(f"v_cvt_f64_f32 {vr(34+4*c,2)}, v{20+c}")
        I(f"ds_add_f64 v16, {vr(32+4*c,2)} offset:{c*128}")
        I(f"ds_add_f64 v16, {vr(34+4*c,2)} offset:{512 + c*128}")
    I("s_mov_b64 exec, -1")
    I("s_branch K2_SIN")
    L("K2_SNEXT")
    I("s_add_u32 s70, s70, 1024")
    I("s_add_u32 s71, s71, 4096")
    I("s_add_u32 s72, s72, 2048")
    I(f"s_cmp_lt_u32 s70, {E}")
    I("s_cbranch_scc1 K2_SLOOP")

    L("K2_JOIN")
    I("s_waitcnt lgkmcnt(0)")
    stamp(9)
    I("s_barrier")
    stamp(10)
    I("s_cmp_ge_u32 s3, 12")
    I("s_cbranch_scc0 K2_FIN")
    srd(48, P_OUT, N * 128)
    I("s_cmp_eq_u32 s3, 15")
    I("s_cselect_b32 exec_hi, 0, -1")
    I("s_cselect_b32 exec_lo, 0xffff, -1")
    I("v_lshl_add_u32 v8, v3, 3, v102")
    for r in range(1, 4):
        I(f"v_add_u32 v{8+r}, {r*NB_STRIDE}, v8")
    AC = 16
    I("s_waitcnt vmcnt(0)")
    for r in range(4):
        for a in range(2):
            for c in range(0, 4, 2):
                b = a * 64 + c * 16
                I(f"ds_read2_b64 {vr(AC+16*r+8*a+2*c,4)}, v{8+r} offset0:{b} offset1:{b+16}")
    I("v_bfe_u32 v5, v0, 4, 2")
    I("v_lshlrev_b32 v4, 3, v3")
    I("v_lshl_add_u32 v12, v5, 17, v4")
    I("s_sub_u32 s30, s3, 12")
    I("s_lshl_b32 s31, s30, 19")
    I("s_lshl_b32 s56, s2, 7")
    I("s_add_u32 s31, s31, s56")
    I("v_add_u32 v12, s31, v12")
    for r in range(4):
        b = AC + 16 * r
        I(f"s_waitcnt lgkmcnt({4*(3-r)})")
        for c in range(4):
            I(f"v_cvt_f32_f64 v{b+2*c}, {vr(b+2*c,2)}")
        for c in range(4):
            I(f"v_add_f32 v{b+2*c}, s78, v{b+2*c}")
        for c in range(4):
            I(f"v_rcp_f32 v{b+2*c}, v{b+2*c}")
        for c in range(4):
            I(f"v_cvt_f32_f64 v{b+8+2*c}, {vr(b+8+2*c,2)}")
        for c in range(4):
            I(f"v_fma_f32 v{b+2*c}, v{b+8+2*c}, v{b+2*c}, v{U+4*c+r}")
        for c in range(4):
            I(f"v_max_f32 v{b+2*c}, 0, v{b+2*c}")
        for c in range(4):
            if c & 1:
                I(f"v_and_b32 v{b+2*c+1}, 0xffff0000, v{XR+2*r+(c>>1)}")
            else:
                I(f"v_lshlrev_b32 v{b+2*c+1}, 16, v{XR+2*r+(c>>1)}")
        for c in range(4):
            I(f"v_add_f32 v{b+2*c}, v{b+2*c}, v{b+2*c+1}")
        I(f"v_cvt_pk_bf16_f32 v{b+8}, v{b}, v{b+2}")
        I(f"v_cvt_pk_bf16_f32 v{b+9}, v{b+4}, v{b+6}")
        if r:
            I(f"v_add_u32 v12, 0x8000, v12")
        I(f"buffer_store_dwordx2 {vr(b+8,2)}, v12, s[48:51], 0 offen")
    L("K2_FIN")
    spin_wait(1, 6000)
    stamp(11)
    stamp_out(1)
    L("K2_END")
    I("s_endpgm")

def desc(name, vgpr, sgpr):
    o(".p2align 6")
    o(f".amdhsa_kernel {name}")
    o(f"  .amdhsa_next_free_vgpr {vgpr}")
    o(f"  .amdhsa_next_free_sgpr {sgpr}")
    o(f"  .amdhsa_accum_offset {(vgpr+3)//4*4}")
    o("  .amdhsa_group_segment_fixed_size 0")
    o("  .amdhsa_kernarg_size 96")
    o("  .amdhsa_user_sgpr_count 2")
    o("  .amdhsa_user_sgpr_kernarg_segment_ptr 1")
    o("  .amdhsa_system_sgpr_workgroup_id_x 1")
    o(".end_amdhsa_kernel")

hdr = open("standalone__edge_featured_mpnn_gatedgcn__graph.s.ref").read().split("\n")
for line in hdr:
    if line.startswith("; Override"):
        break
    o(line)
if OPT["fuse"] == 1:
    o(f"; @launch grid=(256,1,1) block=(1024,1,1) lds={max(K1_LDS,K2_LDS)}")
elif OPT["fuse"] == 2:
    o(f"; @launch kernel={KNAME} grid=(256,1,1) block=(1024,1,1) lds={max(K1_LDS,K2_LDS)}")
else:
    o(f"; @launch kernel=gg_bin_kernel grid=(256,1,1) block=(1024,1,1) lds={K1_LDS}")
    o(f"; @launch kernel=gg_agg_kernel grid=(256,1,1) block=(1024,1,1) lds={K2_LDS}")
o('.amdgcn_target "amdgcn-amd-amdhsa--gfx950"')
o(".text")
gen_k1()
gen_k2()
o('.section .rodata,"a"')
if OPT["fuse"]:
    desc(KNAME, 128, 102)
else:
    desc("gg_bin_kernel", 128, 102)
    desc("gg_agg_kernel", 128, 102)
open(sys.argv[1], "w").write("\n".join(x for x in out if x is not None) + "\n")
```

```python
import sys, struct

OPT = dict(sts="4_8_9_11_12_14", mask=1, bar0=1, codepf=1, gprio=1, stamp=0, force_slow=0, prio="15_9_3", pa=0, pb=0, spin=0, hack=0, aslist=0, sleep=2, delay=0)
for a in sys.argv[2:]:
    k, v = a.split("=")
    OPT[k] = int(v) if v.lstrip("-").isdigit() else v

KNAME = "standalone__edge_featured_mpnn_gatedgcn__graph_kernel"
N = 12500
E = 800000
CHUNK = 3136
TAB_ROWS = N + 1
DUMMY_OFF = N * 256
CTL_OFF = 0x380000
FLG_OFF = 1024
CELL_OFF = 0x400000
BIN_STRIDE = 32768 + 256
LINE_STRIDE = 0x900000
STAMP_OFF = 0x4000000
LOG2E = 1.4426950408889634
KEXP = 62
POLL_LIMIT = 100000

X_OFF = 0
WC_OFF = 8192
P_OFF = 8448
WAU_OFF = P_OFF + 1024
R_OFF = WAU_OFF + 16384
IMG = R_OFF
IMG_STRIDE = 272
WBV_OFF = IMG + 256 * IMG_STRIDE
FLAG = P_OFF + 384
NB_OFF = R_OFF
NB_STRIDE = 1568
EA_OFF = 1024
U_OFF = 1280
LIST_OFF = NB_OFF + 52 * NB_STRIDE
LIST_STRIDE = 1032
LDS_TOTAL = 158720
assert LIST_OFF + 49 * LIST_STRIDE <= LDS_TOTAL and WBV_OFF % 128 == 0 and WAU_OFF % 128 == 0
TRASH = 0x30000
INC = 0x5556

def f32(x):
    return struct.unpack("<I", struct.pack("<f", x))[0]

out = []
def o(s=""):
    out.append(s)
def I(s):
    out.append("    " + s)
def L(s):
    out.append(s + ":")
def vr(a, n=1):
    return f"v{a}" if n == 1 else f"v[{a}:{a+n-1}]"
def sr(a, n=1):
    return f"s{a}" if n == 1 else f"s[{a}:{a+n-1}]"
def sdwa(sel1):
    return f"dst_sel:DWORD dst_unused:UNUSED_PAD src0_sel:DWORD src1_sel:{sel1}"

P_X, P_E, P_SRC, P_DST, P_WA, P_WB, P_WC, P_WU, P_WV, P_OUT, P_DBG, P_WS = 4, 6, 8, 10, 12, 14, 16, 18, 20, 22, 24, 26
S_DST, S_SRC, S_E, S_TAB, S_X, S_W, S_CELL, S_CTL = 28, 32, 36, 40, 44, 48, 52, 56
T0, T1, T2, T3, TF = 60, 61, 62, 63, 85

STS = [int(x) for x in str(OPT["sts"]).split("_")] if OPT["stamp"] else []
def stamp(i):
    if not OPT["stamp"]:
        return
    if i == 0:
        I("s_memrealtime s[86:87]")
    elif i == 1:
        I("s_memtime s[88:89]")
    elif i in STS:
        k = 90 + 2 * STS.index(i)
        I(f"s_memtime s[{k}:{k+1}]")
def stamp_out():
    if not OPT["stamp"]:
        return
    I("s_mov_b64 exec, -1")
    I("s_waitcnt vmcnt(0) lgkmcnt(0)")
    I("s_memtime s[80:81]")
    I("s_memrealtime s[82:83]")
    I("s_waitcnt lgkmcnt(0)")
    I("v_writelane_b32 v127, s80, 30")
    I("v_writelane_b32 v127, s82, 31")
    I("v_writelane_b32 v127, s86, 0")
    I("v_writelane_b32 v127, s88, 1")
    for i in range(2, 19):
        I(f"v_writelane_b32 v127, s{90 + 2*STS.index(i) if i in STS else 88}, {i}")
    I(f"s_add_u32 s80, s{P_WS}, {hex(STAMP_OFF)}")
    I(f"s_addc_u32 s81, s{P_WS+1}, 0")
    I("s_mov_b32 s82, 0x100000")
    I("s_mov_b32 s83, 0x20000")
    I("s_lshl_b32 s84, s2, 4")
    I("s_add_u32 s84, s84, s3")
    I("s_lshl_b32 s84, s84, 7")
    I("v_and_b32 v1, 63, v0")
    I("v_lshl_add_u32 v1, v1, 2, s84")
    I("s_mov_b64 exec, 0xffffffff")
    I("buffer_store_dword v127, v1, s[80:83], 0 offen")

def srd(d, p, size, add=0):
    if add:
        I(f"s_add_u32 s{d}, s{p}, {hex(add)}")
        I(f"s_addc_u32 s{d+1}, s{p+1}, 0")
    else:
        I(f"s_mov_b64 {sr(d,2)}, {sr(p,2)}")
    I(f"s_mov_b32 s{d+2}, {hex(size)}")
    I(f"s_mov_b32 s{d+3}, 0x20000")

def expand(dst, src):
    for h in range(2):
        I(f"s_lshr_b32 s{dst+h}, {src[h]}, 7")
        I(f"s_and_b32 s{dst+h}, s{dst+h}, 0x01010101")
        I(f"s_mul_i32 s{dst+h}, s{dst+h}, 0xff")

def tile3_exec(wave):
    I(f"s_cmp_eq_u32 s3, {wave}")
    I("s_cselect_b32 exec_hi, 0, -1")
    I("s_cselect_b32 exec_lo, 0xffff, -1")

def gen():
    o(".p2align 8")
    o(f".globl {KNAME}")
    o(f".type {KNAME},@function")
    L(KNAME)
    I("s_cmp_ge_u32 s2, 256")
    I("s_cbranch_scc1 K_END")
    stamp(0); stamp(1)
    I("s_load_dwordx16 s[4:19], s[0:1], 0")
    I("s_load_dwordx8 s[20:27], s[0:1], 64")
    if OPT["spin"]:
        I("s_memrealtime s[98:99]")
    I("v_lshrrev_b32 v1, 6, v0")
    I("v_and_b32 v2, 7, v0")
    I("v_readfirstlane_b32 s3, v1")
    if OPT["codepf"]:
        I("s_getpc_b64 s[64:65]")
        L("A_PC")
        I("v_lshlrev_b32 v3, 7, v0")
        I("v_cmp_gt_u32 vcc, K_END-A_PC, v3")
        I("s_and_saveexec_b64 s[66:67], vcc")
        I("s_cbranch_execz A_NOPF")
        I("global_load_dword v27, v3, s[64:65]")
        L("A_NOPF")
        I("s_mov_b64 exec, s[66:67]")
    I("v_lshrrev_b32 v3, 3, v0")
    I("v_and_b32 v7, 7, v3")
    I("s_and_b32 s64, s3, 2")
    I("s_lshl_b32 s64, s64, 1")
    I("v_and_b32 v8, 2, v7")
    I("v_xor_b32 v8, v8, v2")
    I("v_xor_b32 v8, s64, v8")
    I("v_lshlrev_b32 v8, 4, v8")
    I("v_lshl_add_u32 v8, v7, 7, v8")
    I("s_and_b32 s64, s3, 7")
    I("s_lshl_b32 s64, s64, 10")
    I("s_lshl_b32 s69, s3, 10")
    I(f"s_add_u32 s68, s69, {WBV_OFF}")
    I("s_mov_b32 m0, s68")
    I("v_xor_b32 v9, v2, v7")
    I("v_lshlrev_b32 v9, 4, v9")
    I("v_lshl_add_u32 v9, v3, 15, v9")
    I("s_lshl_b32 s65, s2, 7")
    I("v_add_u32 v9, s65, v9")
    I("v_lshlrev_b32 v10, 4, v0")
    I("v_lshlrev_b32 v11, 3, v0")
    I(f"s_mul_i32 s70, s2, {CHUNK*4}")
    I(f"s_mul_i32 s71, s2, {CHUNK*2}")
    I("s_cmp_eq_u32 s2, 255")
    I(f"s_movk_i32 s65, {CHUNK//4}")
    I(f"s_cselect_b32 s65, {(E - 255*CHUNK)//4}, s65")
    I("v_cmp_gt_u32 s[66:67], s65, v0")
    I(f"s_mov_b32 s{S_W+2}, 8192")
    I(f"s_mov_b32 s{S_W+3}, 0x20000")
    for d, sz in ((S_X, N*128), (S_DST, E*4), (S_SRC, E*4), (S_E, E*2)):
        I(f"s_mov_b32 s{d+2}, {hex(sz)}")
        I(f"s_mov_b32 s{d+3}, 0x20000")
    I("s_cmp_lt_u32 s3, 8")
    I("s_waitcnt lgkmcnt(0)")
    I(f"s_cselect_b64 {sr(S_W,2)}, {sr(P_WB,2)}, {sr(P_WV,2)}")
    I(f"s_mov_b64 {sr(S_X,2)}, {sr(P_X,2)}")
    I(f"buffer_load_dwordx4 v8, {sr(S_W,4)}, s64 offen lds")
    I("s_cbranch_scc0 A_NOX")
    I("s_mov_b32 m0, s69")
    I("s_nop 0")
    I(f"buffer_load_dwordx4 v9, {sr(S_X,4)}, 0 offen lds")
    L("A_NOX")
    I(f"s_cselect_b64 {sr(S_W,2)}, {sr(P_WA,2)}, {sr(P_WU,2)}")
    I(f"s_mov_b64 {sr(S_DST,2)}, {sr(P_DST,2)}")
    I(f"s_mov_b64 {sr(S_SRC,2)}, {sr(P_SRC,2)}")
    I(f"s_mov_b64 {sr(S_E,2)}, {sr(P_E,2)}")
    I(f"s_add_u32 s68, s69, {WAU_OFF}")
    I("s_mov_b32 m0, s68")
    if OPT["bar0"]:
        I("s_barrier")
    D, S, EE = 16, 20, 24
    I("s_mov_b64 exec, s[66:67]")
    I("s_cbranch_execz A_NOE")
    I(f"buffer_load_dwordx4 {vr(D,4)}, v10, {sr(S_DST,4)}, s70 offen")
    I(f"buffer_load_dwordx4 {vr(S,4)}, v10, {sr(S_SRC,4)}, s70 offen")
    I(f"buffer_load_dwordx2 {vr(EE,2)}, v11, {sr(S_E,4)}, s71 offen")
    L("A_NOE")
    I("s_mov_b64 exec, -1")
    I(f"buffer_load_dwordx4 v8, {sr(S_W,4)}, s64 offen lds")
    srd(S_CTL, P_WS, 8192, add=CTL_OFF)
    I(f"s_load_dwordx2 s[72:73], {sr(S_CTL,2)}, 8")
    stamp(2)
    I("v_add_u32 v5, s2, v3")
    I("v_and_b32 v5, 127, v5")
    I(f"v_mul_u32_u24 v4, {IMG_STRIDE}, v5")
    I("v_lshl_add_u32 v4, v2, 4, v4")
    I("v_lshlrev_b32 v5, 2, v5")
    I("v_and_b32 v13, 15, v0")
    I("v_min_u32 v13, 14, v13")
    I("v_add_u32 v13, 49, v13")
    I("v_mul_u32_u24 v13, 0x10101, v13")
    I("v_mov_b32 v12, 0")
    I(f"ds_write2st64_b32 v5, v12, v12 offset0:{P_OFF//256} offset1:{P_OFF//256+2}")
    B2 = 128 * IMG_STRIDE
    for r in range(2):
        for b in range(2):
            I(f"ds_write_b32 v4, v13 offset:{IMG + b*B2 + r*128 + 12}")
    srd(S_TAB, P_WS, TAB_ROWS * 256)
    srd(S_CELL, P_WS, 2 * LINE_STRIDE, add=CELL_OFF)
    I("s_cmp_eq_u64 s[66:67], 0")
    I("s_cbranch_scc1 A_W0")
    I("s_waitcnt vmcnt(4) lgkmcnt(0)")
    I("s_branch A_W1")
    L("A_W0")
    I("s_waitcnt vmcnt(1) lgkmcnt(0)")
    L("A_W1")
    stamp(3)
    I("s_barrier")
    stamp(4)

    XA, FA, FB, ACC1, ACC2 = 28, 36, 68, 104, 36
    AP, UU = 36, 104
    def gemm_addr(wbase):
        I("v_and_b32 v6, 15, v0")
        I("v_bfe_u32 v7, v0, 4, 2")
        I("s_and_b32 s64, s3, 3")
        I("v_and_b32 v8, 7, v6")
        I("v_lshlrev_b32 v9, 1, v7")
        I("v_xor_b32 v8, v8, v9")
        I("v_lshlrev_b32 v8, 4, v8")
        I("v_lshl_add_u32 v8, v6, 7, v8")
        I("s_lshl_b32 s65, s64, 11")
        I("v_add_u32 v8, s65, v8")
        I("v_xor_b32 v9, 16, v8")
        I(f"ds_read_b128 {vr(XA,4)}, v8")
        I(f"ds_read_b128 {vr(XA+4,4)}, v9")
        I("v_lshrrev_b32 v8, 2, v6")
        I("v_and_b32 v9, 2, v8")
        I("v_bfe_u32 v10, v0, 1, 1")
        I("v_or_b32 v9, v9, v10")
        I("v_and_b32 v10, 1, v7")
        I("v_lshl_or_b32 v9, v10, 2, v9")
        I("v_lshlrev_b32 v9, 4, v9")
        I("v_and_b32 v10, 1, v0")
        I("v_lshl_or_b32 v9, v10, 3, v9")
        I("v_lshl_add_u32 v8, v7, 4, v8")
        I("v_lshl_or_b32 v9, v8, 7, v9")
        I(f"v_add_u32 v12, {wbase}, v9")
        for T in range(1, 4):
            I(f"v_xor_b32 v{12+T}, {T << 5}, v12")
    def frag_reads(F, moff):
        for T in range(4):
            for s in range(2):
                for h in range(2):
                    I(f"ds_read_b64_tr_b16 {vr(F + 8*T + 4*s + 2*h, 2)}, v{12+T} offset:{moff + (8*s+4*h)*128}")
    def mfmas(F, acc, swap, later):
        for T in range(4):
            I(f"s_waitcnt lgkmcnt({min(15, later + 4*(3-T))})")
            for s in range(2):
                a, b = vr(XA + 4*s, 4), vr(F + 8*T + 4*s, 4)
                if swap:
                    a, b = b, a
                c = "0" if s == 0 else vr(acc + 4*T, 4)
                I(f"v_mfma_f32_16x16x32_bf16 {vr(acc+4*T,4)}, {a}, {b}, {c}")

    I("s_cmp_ge_u32 s3, 12")
    I("s_cbranch_scc0 A_BIN")
    if OPT["gprio"]:
        I("s_setprio 3")
    gemm_addr(WBV_OFF)
    frag_reads(FA, 0)
    frag_reads(FB, 8192)
    I(f"s_mov_b32 s68, {hex(f32(-LOG2E))}")
    I("s_mov_b32 s69, 0x07060302")
    I(f"v_mov_b32 v8, {hex(f32(2.0**-70))}")
    I("s_lshl_b32 s64, s64, 20")
    I("s_lshl_b32 s65, s2, 8")
    I("s_add_u32 s64, s64, s65")
    I("v_lshlrev_b32 v9, 18, v7")
    I("v_lshl_add_u32 v9, v6, 4, v9")
    I("v_add_u32 v9, s64, v9")
    mfmas(FA, ACC1, False, 16)
    mfmas(FB, ACC2, False, 0)
    ACCB, ACCV = ACC1, ACC2
    for i in range(16):
        I(f"v_fma_f32 v{ACCB+i}, v{ACCB+i}, s68, v8")
    for i in range(16):
        I(f"v_add_u32 v{ACCB+i}, 0x8000, v{ACCB+i}")
    for t in (1, 3):
        for r in range(4):
            I(f"v_add_f32 v{ACCV+4*t+r}, {hex(f32(2.0**-100))}, v{ACCV+4*t+r}")
    for i in range(16):
        I(f"v_add_u32 v{ACCV+i}, 0x8000, v{ACCV+i}")
    SD = sdwa("WORD_1")
    OUTR = FB
    for r in range(4):
        for t in (0, 2):
            I(f"v_sub_u32_sdwa v{ACCB+4*t+r}, v{ACCB+4*t+r}, v{ACCV+4*t+r} clamp {SD}")
        for t in (0, 2):
            I(f"v_sub_u32_sdwa v{ACCV+4*(t+1)+r}, v{ACCV+4*(t+1)+r}, v{ACCB+4*t+r} clamp {SD}")
        for t in (0, 2):
            I(f"v_sub_u32_sdwa v{ACCB+4*(t+1)+r}, v{ACCB+4*(t+1)+r}, v{ACCV+4*(t+1)+r} clamp {SD}")
        for t in range(4):
            I(f"v_perm_b32 v{OUTR+4*r+t}, v{ACCB+4*t+r}, v{ACCV+4*t+r}, s69")
        if r == 0:
            I("s_lshl_b32 s65, s2, 4")
            I("s_add_u32 s65, s65, s3")
            I(f"s_cmp_eq_u32 s65, {212*16+15}")
            I("s_cbranch_scc0 A_NODUM")
            for t in range(4):
                I(f"v_mov_b32 v{OUTR+t}, 0x7f000000")
            L("A_NODUM")
        else:
            I("v_add_u32 v9, 0x10000, v9")
        I(f"buffer_store_dwordx4 {vr(OUTR+4*r,4)}, v9, {sr(S_TAB,4)}, 0 offen sc1")
    if OPT["gprio"]:
        I("s_setprio 0")
    I("s_waitcnt vmcnt(4)")

    L("A_BIN")
    stamp(5)
    B4, RK, PA, CB = 28, 32, 36, 40
    I("s_cmp_ge_u32 s3, 12")
    I("s_mov_b64 exec, s[66:67]")
    I("s_cbranch_execz A_NOBIN")
    I(f"v_mov_b32 v14, {INC}")
    I(f"s_mov_b32 s68, {47*INC}")
    I("s_mov_b32 s69, 0x05040100")
    I("s_mov_b32 s70, 0x07060100")
    I("s_cbranch_scc1 A_BW1")
    I("s_waitcnt vmcnt(3)")
    L("A_BW1")
    stamp(6)
    for i in range(4):
        I(f"v_lshlrev_b32_sdwa v{B4+i}, 2, v{D+i} {sdwa('BYTE_0')}")
        I(f"ds_add_rtn_u32 v{RK+i}, v{B4+i}, v14 offset:{P_OFF}")
    for i in range(4):
        I(f"v_mul_u32_u24 v{B4+i}, {IMG_STRIDE//4}, v{B4+i}")
        I(f"v_lshrrev_b32 v{D+i}, 8, v{D+i}")
    I("s_cbranch_scc1 A_BW2")
    I("s_waitcnt vmcnt(1)")
    L("A_BW2")
    for i in range(4):
        if OPT["hack"]:
            I(f"v_and_b32 v{S+i}, {OPT['hack']}, v{S+i}")
        I(f"v_perm_b32 v{S+i}, v{EE+(i>>1)}, v{S+i}, s{69+(i&1)}")
    for i in range(4):
        I(f"s_waitcnt lgkmcnt({3+i})")
        I(f"v_min_u32 v{RK+i}, s68, v{RK+i}")
        I(f"v_lshrrev_b32 v{RK+i}, 14, v{RK+i}")
        I(f"v_lshl_add_u32 v{PA+i}, v{RK+i}, 2, v{B4+i}")
        I(f"ds_write_b32 v{PA+i}, v{S+i} offset:{IMG}")
        I(f"v_and_b32 v{RK+i}, 3, v{RK+i}")
        I(f"v_or3_b32 v{CB+i}, v{PA+i}, 12, v{RK+i}")
        I(f"ds_write_b8 v{CB+i}, v{D+i} offset:{IMG}")
    L("A_NOBIN")
    I("s_mov_b64 exec, -1")
    I("s_cbranch_scc1 A_BW3")
    I("s_waitcnt vmcnt(0)")
    L("A_BW3")
    I("s_cmp_eq_u32 s3, 11")
    I("s_cbranch_scc0 A_NOWC")
    srd(S_W, P_WC, 128)
    I(f"s_mov_b32 m0, {WC_OFF}")
    I("v_lshlrev_b32 v12, 4, v2")
    I("s_mov_b64 exec, 0xff")
    I(f"buffer_load_dwordx4 v12, {sr(S_W,4)}, 0 offen lds")
    I("s_mov_b64 exec, -1")
    L("A_NOWC")
    I("s_add_u32 s72, s72, 0x1000000")
    I("s_addc_u32 s73, s73, 0")
    I("s_and_b32 s72, s72, 0xff000000")
    I(f"s_mov_b32 s{T3}, s72")
    for k in range(3):
        I(f"s_bfe_u32 s74, s73, {hex((2 << 16) | (2*k))}")
        I(f"s_lshl_b32 s74, s74, {6 + 8*k}")
        I(f"s_or_b32 s{T3}, s{T3}, s74")
        I(f"s_bfe_u32 s74, s73, {hex((2 << 16) | (6 + 2*k))}")
        I(f"s_lshl_b32 s{T0+k}, s74, 14")
    I(f"v_mul_u32_u24 v6, {BIN_STRIDE//4}, v5")
    I("v_lshl_add_u32 v6, v0, 4, v6")
    I("s_lshr_b32 s64, s2, 7")
    I("s_lshl_b32 s64, s64, 14")
    I(f"s_add_u32 s65, s64, {128*BIN_STRIDE}")
    I(f"s_mov_b32 s70, {12*INC}")
    I(f"s_mov_b32 s71, {24*INC}")
    I("v_mov_b32 v7, 0xc000")
    I("s_waitcnt lgkmcnt(0)")
    stamp(7)
    I("s_barrier")
    stamp(8)
    C0 = 84
    I(f"ds_read_b128 {vr(C0,4)}, v4 offset:{IMG}")
    I(f"ds_read_b128 {vr(C0+4,4)}, v4 offset:{IMG+B2}")
    I(f"ds_read2st64_b32 v[8:9], v5 offset0:{P_OFF//256} offset1:{P_OFF//256+2}")
    def tagit(c):
        for k in range(3):
            I(f"v_bfi_b32 v{c+k}, v7, s{T0+k}, v{c+k}")
        I(f"v_or_b32 v{c+3}, s{T3}, v{c+3}")
    I("s_waitcnt lgkmcnt(2)")
    tagit(C0)
    I("s_waitcnt lgkmcnt(1)")
    tagit(C0 + 4)
    I("s_cmp_ge_u32 s3, 12")
    I("s_cbranch_scc0 A_NODRAIN")
    I("s_waitcnt vmcnt(0)")
    L("A_NODRAIN")
    I("s_waitcnt lgkmcnt(0)")
    I("v_cmp_le_u32 s[72:73], s70, v8")
    I("v_cmp_le_u32 s[74:75], s70, v9")
    I("v_max_u32 v10, v8, v9")
    I("v_cmp_le_u32 vcc, s71, v10")
    for k in range(4):
        I(f"s_or_b32 s{72+k}, s{72+k}, 0x0f0f0f0f")
    I("s_cbranch_vccz A_NOL2")
    I("s_mov_b64 exec, vcc")
    I(f"ds_read_b128 {vr(C0+8,4)}, v4 offset:{IMG+128}")
    I(f"ds_read_b128 {vr(C0+12,4)}, v4 offset:{IMG+B2+128}")
    I(f"s_add_u32 s76, s64, {hex(LINE_STRIDE)}")
    I(f"s_add_u32 s77, s65, {hex(LINE_STRIDE)}")
    I("s_waitcnt lgkmcnt(0)")
    tagit(C0 + 8)
    tagit(C0 + 12)
    I(f"buffer_store_dwordx4 {vr(C0+8,4)}, v6, {sr(S_CELL,4)}, s76 offen sc1")
    I(f"buffer_store_dwordx4 {vr(C0+12,4)}, v6, {sr(S_CELL,4)}, s77 offen sc1")
    I("s_mov_b64 exec, -1")
    L("A_NOL2")
    def cell_stores():
        I("s_mov_b64 exec, s[72:73]")
        I(f"buffer_store_dwordx4 {vr(C0,4)}, v6, {sr(S_CELL,4)}, s64 offen sc1")
        I("s_mov_b64 exec, s[74:75]")
        I(f"buffer_store_dwordx4 {vr(C0+4,4)}, v6, {sr(S_CELL,4)}, s65 offen sc1")
        I("s_mov_b64 exec, -1")
    I("v_lshlrev_b32 v2, 4, v0")
    I("v_and_b32 v3, 15, v0")
    I("v_and_b32 v4, 63, v0")
    I("s_mov_b32 s79, 0")
    I(f"v_add_u32 v5, {LIST_OFF}, v2")
    for i in range(4):
        I(f"v_mov_b32 v{20+i}, {DUMMY_OFF}")
    I("s_barrier")
    cell_stores()
    stamp(9)
    for k in range(3):
        I(f"ds_write_b128 v5, v[20:23] offset:{k*16384}")
    I("s_sub_u32 s68, s3, 6")
    I("s_cmp_lt_u32 s68, 2")
    I("s_cbranch_scc0 B_INIT2")
    I(f"ds_write_b128 v5, v[20:23] offset:{3*16384 - 6*1024}")
    I("v_subrev_u32 v25, 384, v0")
    I(f"v_mul_u32_u24 v24, {LIST_STRIDE}, v25")
    I(f"v_add_u32 v24, {LIST_OFF}, v24")
    I(f"v_mov_b32 v26, {TRASH}")
    I("v_cmp_gt_u32 vcc, 49, v25")
    I("s_nop 1")
    I("v_cndmask_b32 v24, v26, v24, vcc")
    I("v_cmp_gt_u32 vcc, 64, v25")
    I("s_nop 1")
    I("v_cndmask_b32 v24, 0, v24, vcc")
    I("v_lshlrev_b32 v25, 2, v25")
    I(f"ds_write_b32 v25, v24 offset:{P_OFF}")
    L("B_INIT2")
    I("s_waitcnt lgkmcnt(0)")
    I("s_barrier")
    I("s_cmp_ge_u32 s3, 12")
    I("s_cbranch_scc0 B_NOAU")
    gemm_addr(WAU_OFF)
    FB2 = 52
    frag_reads(FA, 8192)
    mfmas(FA, ACC1, True, 0)
    frag_reads(FB2, 0)
    I(f"s_mul_i32 s65, s64, {16*NB_STRIDE}")
    I(f"s_add_u32 s65, s65, {NB_OFF}")
    I(f"v_mul_u32_u24 v24, {4*NB_STRIDE}, v7")
    I("v_lshl_add_u32 v24, v3, 4, v24")
    I("v_add_u32 v102, s65, v24")
    I(f"v_mul_u32_u24 v25, {NB_STRIDE}, v3")
    I("v_lshl_add_u32 v25, v7, 4, v25")
    I("v_add_u32 v25, s65, v25")
    I(f"s_mov_b32 s68, {hex(f32(-LOG2E))}")
    mfmas(FB2, ACC2, False, 0)
    I("s_cmp_eq_u32 s3, 15")
    I("s_cselect_b32 exec_lo, 0x000f000f, -1")
    I("s_cselect_b32 exec_hi, 0x000f000f, -1")
    for T in range(4):
        I(f"ds_write_b128 v25, {vr(UU+4*T,4)} offset:{U_OFF + T*64}")
    I("s_mov_b64 exec, -1")
    I("s_nop 1")
    for i in range(16):
        I(f"v_mul_f32 v{AP+i}, s68, v{AP+i}")
    I(f"v_max3_f32 v24, |v{AP}|, |v{AP+1}|, |v{AP+2}|")
    for i in range(3, 15, 2):
        I(f"v_max3_f32 v24, |v{AP+i}|, |v{AP+i+1}|, v24")
    I(f"v_max_f32 v24, |v{AP+15}|, v24")
    EAT = 52
    for r in range(4):
        for t in range(4):
            I(f"v_add_f32 v{EAT+4*r+t}, {hex(f32(-float(KEXP)))}, v{AP+4*t+r}")
    for i in range(16):
        I(f"v_exp_f32 v{EAT+i}, v{EAT+i}")
    I(f"v_cmp_nge_f32 vcc, {hex(f32(63.0))}, v24")
    tile3_exec(15)
    for r in range(4):
        I(f"ds_write_b128 v102, {vr(EAT+4*r,4)} offset:{EA_OFF + r*NB_STRIDE}")
    I("s_mov_b64 exec, -1")
    I("s_cmp_lg_u64 vcc, 0")
    I("s_cselect_b32 s79, 1, 0")
    I("s_branch B_COMMON")
    L("B_NOAU")
    I("v_mov_b32 v28, 0")
    I("v_mov_b32 v29, 0")
    I("v_mov_b32 v30, 0")
    I("v_mov_b32 v31, 0")
    I(f"s_mul_i32 s68, s3, {NB_STRIDE}")
    I(f"s_add_u32 s68, s68, {NB_OFF}")
    I("v_lshl_add_u32 v1, v4, 4, s68")
    for k in range(4):
        I(f"ds_write_b128 v1, v[28:31] offset:{k*12*NB_STRIDE}")
    I("s_cmp_eq_u32 s3, 11")
    I("s_cbranch_scc0 B_COMMON")
    I(f"ds_write_b128 v1, v[28:31] offset:{37*NB_STRIDE}")
    L("B_COMMON")
    RA, CA, EB = 8, 16, 28
    I("v_bfe_u32 v5, v0, 2, 3")
    I("s_lshl_b32 s68, s3, 3")
    I("s_sub_u32 s68, s2, s68")
    I("v_sub_u32 v5, s68, v5")
    I("v_and_b32 v5, 127, v5")
    I("v_and_b32 v6, 32, v0")
    I("v_lshl_add_u32 v5, v6, 2, v5")
    I("v_and_b32 v6, 3, v0")
    I("v_lshlrev_b32 v5, 8, v5")
    I("v_lshl_add_u32 v5, v6, 20, v5")
    I("s_lshr_b32 s68, s2, 4")
    I("s_lshl_b32 s68, s68, 16")
    I("s_bfe_u32 s69, s2, 0x10003")
    I("s_lshl_b32 s69, s69, 7")
    I("s_add_u32 s68, s68, s69")
    I("v_add_u32 v5, s68, v5")
    I(f"s_mul_i32 s64, s2, {BIN_STRIDE}")
    I("s_add_u32 s65, s64, 16384")
    I("v_mov_b32 v1, 4")
    I("s_mov_b32 s66, 0")
    I(f"s_mov_b32 s67, {49 << 16}")
    I("s_mov_b32 s78, 0xffc0c0c0")
    I(f"s_movk_i32 s84, {49*4}")
    I("s_mov_b64 s[68:69], -1")
    I("s_mov_b64 s[70:71], -1")
    stamp(10)
    I("s_waitcnt vmcnt(0)")
    if OPT["delay"]:
        I(f"s_sleep {OPT['delay']}")
    stamp(11)
    I(f"buffer_load_dwordx4 {vr(RA,4)}, v2, {sr(S_CELL,4)}, s64 offen sc1")
    I(f"buffer_load_dwordx4 {vr(RA+4,4)}, v2, {sr(S_CELL,4)}, s65 offen sc1")

    def poll(first, name):
        L(name)
        I("s_waitcnt vmcnt(0)")
        for k in range(2):
            I(f"s_mov_b64 exec, s[{68+2*k}:{69+2*k}]")
            for j in range(4):
                I(f"v_xor_b32 v{RA+4*k+j}, s{T0+j}, v{RA+4*k+j}")
        I("s_mov_b64 exec, -1")
        for k in range(2):
            r = RA + 4 * k
            I(f"v_or3_b32 v{24+k}, v{r}, v{r+1}, v{r+2}")
            I(f"v_and_b32 v{24+k}, 0xc000, v{24+k}")
            I(f"v_and_or_b32 v{24+k}, v{r+3}, s78, v{24+k}")
            I(f"v_cmp_ne_u32 s[{68+2*k}:{69+2*k}], 0, v{24+k}")
            I(f"v_cmp_gt_u32 s[{80+2*k}:{81+2*k}], s67, v{r+3}")
        if first:
            for k in range(4):
                I(f"s_or_b32 s{74+k}, s{68+k}, s{80+k}")
                I(f"s_and_b32 s{74+k}, s{74+k}, 0x08080808")
                I(f"s_mul_i32 s{74+k}, s{74+k}, 30")
                I(f"s_or_b32 s{74+k}, s{74+k}, 0x0f0f0f0f")
        I("s_and_b64 s[68:69], s[68:69], s[74:75]")
        I("s_and_b64 s[70:71], s[70:71], s[76:77]")
        I("s_or_b64 s[72:73], s[68:69], s[70:71]")
        I(f"s_cbranch_scc0 {name}_OK")
        I("s_add_u32 s66, s66, 1")
        I(f"s_cmp_gt_u32 s66, {POLL_LIMIT}")
        I("s_cbranch_scc1 B_TIMEOUT")
        if OPT["sleep"]:
            I(f"s_sleep {OPT['sleep']}")
        reload(name)
        I(f"s_branch {name}")
        L(name + "_OK")
    def reload(name):
        I("s_mov_b64 exec, s[68:69]")
        I(f"s_cbranch_execz {name}_1")
        I(f"buffer_load_dwordx4 {vr(RA,4)}, v2, {sr(S_CELL,4)}, s64 offen sc1")
        L(name + "_1")
        I("s_mov_b64 exec, s[70:71]")
        I(f"s_cbranch_execz {name}_2")
        I(f"buffer_load_dwordx4 {vr(RA+4,4)}, v2, {sr(S_CELL,4)}, s65 offen sc1")
        L(name + "_2")
    def place():
        if OPT["mask"]:
            for k in range(2):
                I(f"s_mov_b64 exec, s[{74+2*k}:{75+2*k}]")
                for j in range(3):
                    I(f"v_lshlrev_b32_sdwa v{CA+3*k+j}, 2, v{RA+4*k+3} {sdwa('BYTE_'+str(j))}")
                for j in range(3):
                    m = 4 + 2 * (3 * k + j)
                    I(f"v_cmp_gt_u32 s[{m}:{m+1}], s84, v{CA+3*k+j}")
                for j in range(3):
                    m = 4 + 2 * (3 * k + j)
                    I(f"s_mov_b64 exec, s[{m}:{m+1}]")
                    I(f"ds_add_rtn_u32 v{CA+3*k+j}, v{CA+3*k+j}, v1 offset:{P_OFF}")
        else:
            for k in range(2):
                I(f"s_mov_b64 exec, s[{74+2*k}:{75+2*k}]")
                for j in range(3):
                    I(f"v_lshlrev_b32_sdwa v{CA+3*k+j}, 2, v{RA+4*k+3} {sdwa('BYTE_'+str(j))}")
                    I(f"ds_add_rtn_u32 v{CA+3*k+j}, v{CA+3*k+j}, v1 offset:{P_OFF}")
        I("s_mov_b64 exec, -1")
        for k in range(2):
            for j in range(3):
                I(f"v_and_b32 v{EB+3*k+j}, 0xffff0000, v{RA+4*k+j}")
                I(f"v_lshlrev_b32_sdwa v{RA+4*k+j}, 8, v{RA+4*k+j} {sdwa('WORD_0')}")
        I("s_waitcnt lgkmcnt(0)")
        for k in range(2):
            if not OPT["mask"]:
                I(f"s_mov_b64 exec, s[{74+2*k}:{75+2*k}]")
            for j in range(3):
                if OPT["mask"]:
                    m = 4 + 2 * (3 * k + j)
                    I(f"s_mov_b64 exec, s[{m}:{m+1}]")
                I(f"ds_write2st64_b32 v{CA+3*k+j}, v{RA+4*k+j}, v{EB+3*k+j} offset0:0 offset1:2")
        I("s_mov_b64 exec, -1")
    def more_test():
        I("s_and_b64 s[80:81], s[80:81], s[74:75]")
        I("s_and_b64 s[82:83], s[82:83], s[76:77]")
        I("s_or_b64 s[72:73], s[80:81], s[82:83]")
        I("s_or_b32 s72, s72, s73")
        I("s_and_b32 s72, s72, 0x80808080")

    poll(True, "B_P0")
    stamp(12)
    if OPT["pb"] > OPT["pa"]:
        I(f"s_sub_u32 s72, s3, {OPT['pa']}")
        I(f"s_cmp_lt_u32 s72, {OPT['pb']-OPT['pa']}")
        I("s_cbranch_scc0 B_NOPF")
        I(f"buffer_load_dword v27, v5, {sr(S_TAB,4)}, 0 offen sc1")
        L("B_NOPF")
    place()
    more_test()
    I("s_cbranch_scc0 B_RDONE")
    expand(74, ("s80", "s81"))
    expand(76, ("s82", "s83"))
    I("s_mov_b64 s[68:69], s[74:75]")
    I("s_mov_b64 s[70:71], s[76:77]")
    I(f"s_add_u32 s64, s64, {hex(LINE_STRIDE)}")
    I(f"s_add_u32 s65, s65, {hex(LINE_STRIDE)}")
    I("s_waitcnt lgkmcnt(0)")
    reload("B_N1")
    poll(False, "B_P1")
    place()
    more_test()
    I("s_cbranch_scc0 B_RDONE")
    I("s_branch B_RFLAG")
    L("B_TIMEOUT")
    I("s_or_b32 s79, s79, 2")
    L("B_RFLAG")
    I("s_or_b32 s79, s79, 1")
    L("B_RDONE")
    if OPT["stamp"]:
        I("v_writelane_b32 v127, s66, 19")
    stamp(13)
    I("s_cmp_eq_u32 s79, 0")
    I("s_cbranch_scc1 B_NOREQ")
    I("v_mov_b32 v24, 0")
    I("v_mov_b32 v25, s79")
    I(f"ds_or_b32 v24, v25 offset:{FLAG}")
    L("B_NOREQ")

    XB, RS, TT, PP = 52, 76, 8, 16
    WC, EA, DEN, NUM, LC, VACC, VEA, VQ8, VREC = 88, 92, 104, 108, 96, 98, 99, 100, 101
    I("v_lshlrev_b32 v24, 1, v3")
    for j in range(4):
        I(f"ds_read_u16 v{WC+j}, v24 offset:{WC_OFF + 32*j}")
    I(f"v_lshlrev_b32 v{LC}, 4, v3")
    I(f"v_lshlrev_b32 v{LC+1}, 4, v3")
    I(f"v_bfe_u32 v{VQ8}, v0, 4, 2")
    I(f"v_lshlrev_b32 v{VQ8}, 3, v{VQ8}")
    I("v_lshlrev_b32 v21, 2, v4")
    I(f"v_mul_u32_u24 v22, {LIST_STRIDE}, v4")
    I(f"v_add_u32 v22, {LIST_OFF - 28}, v22")
    I("v_mov_b32 v23, 0")
    I("s_cmp_lt_u32 s2, 212")
    I("s_cselect_b32 s69, 49, 48")
    I("v_cmp_gt_u32 s[74:75], s69, v4")
    I(f"v_lshlrev_b32 v{VACC}, 3, v3")
    I(f"s_mov_b32 s76, {hex(f32(2.0**-KEXP))}")
    I("s_mov_b32 s77, s76")
    I(f"s_mov_b32 s78, {hex(f32(1e-6 * 2.0**KEXP))}")
    I(f"s_mov_b32 s66, {hex(f32(-LOG2E))}")
    I("s_waitcnt lgkmcnt(0)")
    for j in range(4):
        I(f"v_lshlrev_b32 v{WC+j}, 16, v{WC+j}")
    for j in range(4):
        I(f"v_mul_f32 v{WC+j}, s66, v{WC+j}")
    for i in range(4):
        I(f"v_mov_b64 {vr(DEN+2*i,2)}, 0")
    I("s_barrier")
    stamp(14)
    I(f"ds_read_b32 v24, v21 offset:{P_OFF}")
    I(f"ds_read_b32 v25, v23 offset:{FLAG}")
    I("s_waitcnt lgkmcnt(0)")
    I("v_sub_u32 v24, v24, v22")
    I("v_readfirstlane_b32 s70, v25")
    I("v_max_u32 v24, 32, v24")
    I("v_cndmask_b32 v24, 0, v24, s[74:75]")
    I(f"v_cmp_lt_u32 vcc, {512+28}, v24")
    I("v_lshrrev_b32 v24, 5, v24")
    I("s_cmp_eq_u32 s2, 0")
    I("s_cselect_b32 s71, 2, s70")
    I("s_cmp_eq_u32 s3, 15")
    I("s_cselect_b32 s71, s71, 0")
    I("s_and_b32 s71, s71, 2")
    I("s_cbranch_scc0 B_NOBUMP")
    I("v_mov_b32 v22, 0x1000000")
    I("s_mov_b64 exec, 1")
    I(f"buffer_atomic_add_x2 v[22:23], v23, {sr(S_CTL,4)}, 0 offen offset:8 sc1")
    I("s_mov_b64 exec, -1")
    L("B_NOBUMP")
    I("s_or_b32 s70, s70, vcc_lo")
    I("s_or_b32 s70, s70, vcc_hi")
    if OPT["force_slow"]:
        I("s_branch K_SLOW")
    I("s_cbranch_scc1 K_SLOW")
    I("v_mov_b32 v25, v24")
    for d in ("row_shr:1 row_mask:0xf", "row_shr:2 row_mask:0xf", "row_shr:4 row_mask:0xf",
              "row_shr:8 row_mask:0xf", "row_bcast:15 row_mask:0xa", "row_bcast:31 row_mask:0xc"):
        I("s_nop 1")
        I(f"v_add_u32_dpp v25, v25, v25 {d} bank_mask:0xf")
    I("s_nop 0")
    I("v_readlane_b32 s70, v25, 63")
    I("v_sub_u32 v26, v25, v24")
    I("s_mul_i32 s71, s70, s3")
    I("s_add_u32 s72, s71, s70")
    I("s_lshr_b32 s71, s71, 4")
    I("s_lshr_b32 s72, s72, 4")
    I("s_sub_u32 s72, s72, s71")
    I("s_cmp_eq_u32 s72, 0")
    I("s_cbranch_scc1 K_JOIN")
    I("v_cmp_ge_u32 vcc, s71, v25")
    I("v_subrev_u32 v28, s71, v26")
    I("s_bcnt1_i32_b64 s73, vcc")
    I("v_cmp_gt_u32 vcc, 64, v28")
    I("v_lshlrev_b32 v28, 2, v28")
    I("s_nop 0")
    I("v_cndmask_b32 v28, 0, v28, vcc")
    I("ds_permute_b32 v28, v28, v1")
    I("v_readlane_b32 s74, v26, s73")
    I(f"s_mul_i32 s80, s73, {LIST_STRIDE}")
    I(f"s_add_u32 s80, s80, {LIST_OFF}")
    I("s_sub_u32 s74, s71, s74")
    I("s_lshl_b32 s74, s74, 5")
    I("s_add_u32 s81, s80, s74")
    I(f"s_mul_i32 s75, s73, {NB_STRIDE}")
    I(f"s_add_u32 s75, s75, {NB_OFF}")
    I(f"v_add_u32 v{VACC}, s75, v{VACC}")
    I(f"v_add_u32 v{VEA}, s75, v{LC}")
    I(f"v_add_u32 v{VREC}, s81, v{VQ8}")
    I(f"ds_read2st64_b64 {vr(RS,4)}, v{VREC} offset0:0 offset1:1")
    I(f"ds_read_b128 {vr(EA,4)}, v{VEA} offset:{EA_OFF}")
    I("s_waitcnt lgkmcnt(2)")
    I("v_cmp_ne_u32 s[82:83], 0, v28")
    I("s_bitset1_b64 s[82:83], s72")

    def advance(bit):
        I("s_add_u32 s81, s81, 32")
        I(f"s_add_u32 s84, s80, {LIST_STRIDE}")
        I(f"s_bitcmp1_b32 s82, {bit}")
        I("s_cselect_b32 s81, s84, s81")
        I("s_cselect_b32 s80, s84, s80")
    def rec_read(slot):
        I(f"v_add_u32 v{VREC}, s81, v{VQ8}")
        I(f"ds_read2st64_b64 {vr(RS+4*slot,4)}, v{VREC} offset0:0 offset1:1")
    def gather(slot):
        r = RS + 4 * slot
        I(f"v_lshl_add_u64 {vr(r,2)}, {vr(r,2)}, 0, {vr(LC,2)}")
        I(f"buffer_load_dwordx4 {vr(XB+8*slot,4)}, v{r}, {sr(S_TAB,4)}, 0 offen sc1")
        I(f"buffer_load_dwordx4 {vr(XB+8*slot+4,4)}, v{r+1}, {sr(S_TAB,4)}, 0 offen sc1")

    advance(1); rec_read(1)
    advance(2); rec_read(2)
    I("s_waitcnt lgkmcnt(3)")
    gather(0)
    I("s_cmp_gt_u32 s72, 1")
    I(f"s_cselect_b32 s{S_TAB+2}, s{S_TAB+2}, 0")
    I("s_waitcnt lgkmcnt(1)")
    gather(1)
    stamp(15)
    if OPT["prio"]:
        I("s_setprio 3")
    L("K_LOOP")
    if OPT["prio"]:
        for k, t_ in enumerate(int(x) for x in str(OPT["prio"]).split("_")):
            I(f"s_cmp_gt_u32 s72, {t_}")
            I("s_cbranch_scc1 K_STEP0")
            I(f"s_setprio {2-k}")
    for u in range(3):
        x = XB + 8 * u
        e = RS + 4 * u + 2
        t = TT
        p = PP
        L(f"K_STEP{u}")
        I("s_cmp_gt_u32 s72, 2")
        I(f"s_cselect_b32 s{S_TAB+2}, s{S_TAB+2}, 0")
        advance(u + 3)
        I("s_waitcnt lgkmcnt(0)")
        gather((u + 2) % 3)
        I("s_waitcnt vmcnt(4)")
        I(f"v_pk_fma_f32 {vr(t,2)}, {vr(e,2)}, {vr(WC,2)}, {vr(x,2)} op_sel_hi:[0,1,1]")
        I(f"v_pk_fma_f32 {vr(t+2,2)}, {vr(e,2)}, {vr(WC+2,2)}, {vr(x+2,2)} op_sel_hi:[0,1,1]")
        I(f"v_pk_fma_f32 {vr(t+4,2)}, {vr(e,2)}, {vr(WC,2)}, {vr(x+4,2)} op_sel:[1,0,0] op_sel_hi:[1,1,1]")
        I(f"v_pk_fma_f32 {vr(t+6,2)}, {vr(e,2)}, {vr(WC+2,2)}, {vr(x+6,2)} op_sel:[1,0,0] op_sel_hi:[1,1,1]")
        rec_read(u)
        for i in range(8):
            I(f"v_exp_f32 v{t+i}, v{t+i}")
        for i in range(4):
            I(f"v_lshlrev_b64 {vr(x+2*i,2)}, 16, {vr(x+2*i,2)}")
        for i in range(4):
            I(f"v_pk_fma_f32 {vr(t+2*i,2)}, {vr(t+2*i,2)}, {vr(EA+2*(i&1),2)}, s[76:77] clamp")
        I(f"v_pk_mul_f32 {vr(p,2)}, {vr(t,2)}, {vr(t+4,2)}")
        I(f"v_pk_mul_f32 {vr(p+2,2)}, {vr(t+2,2)}, {vr(t+6,2)}")
        I(f"v_pk_mul_f32 {vr(x,2)}, {vr(x,2)}, {vr(t+4,2)}")
        I(f"v_pk_mul_f32 {vr(x+2,2)}, {vr(x+2,2)}, {vr(t+6,2)}")
        for i in range(4):
            I(f"v_rcp_f32 v{p+i}, v{p+i}")
        I(f"v_pk_fma_f32 {vr(x,2)}, {vr(x+4,2)}, {vr(t,2)}, {vr(x,2)}")
        I(f"v_pk_fma_f32 {vr(x+2,2)}, {vr(x+6,2)}, {vr(t+2,2)}, {vr(x+2,2)}")
        I(f"v_pk_add_f32 {vr(t,2)}, {vr(t,2)}, {vr(t+4,2)}")
        I(f"v_pk_add_f32 {vr(t+2,2)}, {vr(t+2,2)}, {vr(t+6,2)}")
        I(f"v_pk_fma_f32 {vr(NUM,2)}, {vr(x,2)}, {vr(p,2)}, {vr(NUM,2)}")
        I(f"v_pk_fma_f32 {vr(NUM+2,2)}, {vr(x+2,2)}, {vr(p+2,2)}, {vr(NUM+2,2)}")
        I(f"v_pk_fma_f32 {vr(DEN,2)}, {vr(t,2)}, {vr(p,2)}, {vr(DEN,2)}")
        I(f"v_pk_fma_f32 {vr(DEN+2,2)}, {vr(t+2,2)}, {vr(p+2,2)}, {vr(DEN+2,2)}")
        I("s_sub_u32 s72, s72, 1")
        I(f"s_bitcmp1_b32 s82, {u+1}")
        I(f"s_cbranch_scc1 K_FLUSH{u}")
        L(f"K_BACK{u}")
    I("s_lshr_b64 s[82:83], s[82:83], 3")
    I("s_branch K_LOOP")
    for u in range(3):
        L(f"K_FLUSH{u}")
        I(f"v_add_u32 v{VEA}, {NB_STRIDE}, v{VEA}")
        I(f"ds_read_b128 {vr(EA,4)}, v{VEA} offset:{EA_OFF}")
        for c in range(4):
            I(f"v_cvt_f64_f32 {vr(TT+2*c,2)}, v{NUM+c}")
            I(f"ds_add_f64 v{VACC}, {vr(TT+2*c,2)} offset:{512 + c*128}")
        for c in range(4):
            I(f"v_cvt_f64_f32 {vr(TT+8+2*c,2)}, v{DEN+c}")
            I(f"ds_add_f64 v{VACC}, {vr(TT+8+2*c,2)} offset:{c*128}")
        I("s_cmp_eq_u32 s72, 0")
        I("s_cbranch_scc1 K_JOIN")
        I(f"v_add_u32 v{VACC}, {NB_STRIDE}, v{VACC}")
        for i in range(4):
            I(f"v_mov_b64 {vr(DEN+2*i,2)}, 0")
        I(f"s_branch K_BACK{u}")

    L("K_SLOW")
    I("s_cmp_ge_u32 s3, 12")
    I("s_cbranch_scc0 K_SL1")
    for r in range(4):
        for t in range(4):
            I(f"v_mov_b32 v{52+4*r+t}, v{AP+4*t+r}")
    tile3_exec(15)
    for r in range(4):
        I(f"ds_write_b128 v102, {vr(52+4*r,4)} offset:{EA_OFF + r*NB_STRIDE}")
    I("s_mov_b64 exec, -1")
    L("K_SL1")
    I(f"s_mov_b32 s78, {hex(f32(1e-6))}")
    I("s_waitcnt lgkmcnt(0)")
    I("s_barrier")
    I("v_lshlrev_b32 v8, 2, v0")
    I("v_lshlrev_b32 v9, 1, v0")
    I("v_lshlrev_b32 v10, 3, v3")
    I("s_lshl_b32 s70, s3, 6")
    I("s_mov_b32 s71, 0")
    I("s_mov_b32 s72, 0")
    L("K_SLOOP")
    I(f"buffer_load_dword v11, v8, {sr(S_DST,4)}, s71 offen")
    I(f"buffer_load_dword v12, v8, {sr(S_SRC,4)}, s71 offen")
    I(f"buffer_load_ushort v13, v9, {sr(S_E,4)}, s72 offen")
    I("s_waitcnt vmcnt(0)")
    I("v_and_b32 v14, 0xff, v11")
    I("v_cmp_eq_u32 s[74:75], s2, v14")
    L("K_SIN")
    I("s_cmp_eq_u64 s[74:75], 0")
    I("s_cbranch_scc1 K_SNEXT")
    I("s_ff1_i32_b64 s73, s[74:75]")
    I("s_bitset0_b64 s[74:75], s73")
    I("v_readlane_b32 s79, v11, s73")
    I("v_readlane_b32 s80, v12, s73")
    I("v_readlane_b32 s81, v13, s73")
    I("s_lshr_b32 s79, s79, 8")
    I(f"s_mul_i32 s79, s79, {NB_STRIDE}")
    I(f"s_add_u32 s79, s79, {NB_OFF}")
    I("s_lshl_b32 s80, s80, 8")
    I("s_lshl_b32 s81, s81, 16")
    I("s_mov_b64 exec, 0xffff")
    I(f"v_add_u32 v15, s79, v{LC}")
    I("v_add_u32 v16, s79, v10")
    I(f"buffer_load_dwordx4 v[20:23], v{LC}, {sr(S_TAB,4)}, s80 offen sc1")
    I(f"ds_read_b128 v[24:27], v15 offset:{EA_OFF}")
    I("s_waitcnt vmcnt(0) lgkmcnt(0)")
    for c in range(4):
        I(f"v_fma_f32 v{28+c}, s81, v{WC+c}, v{20+c}")
    for c in range(4):
        I(f"v_add_f32 v{28+c}, v{28+c}, v{24+c}")
    for c in range(4):
        I(f"v_exp_f32 v{28+c}, v{28+c}")
    I("v_lshlrev_b64 v[20:21], 16, v[20:21]")
    I("v_lshlrev_b64 v[22:23], 16, v[22:23]")
    for c in range(4):
        I(f"v_add_f32 v{28+c}, 1.0, v{28+c}")
    for c in range(4):
        I(f"v_rcp_f32 v{28+c}, v{28+c}")
    I("s_nop 0")
    for c in range(4):
        I(f"v_mul_f32 v{20+c}, v{20+c}, v{28+c}")
    for c in range(4):
        I(f"v_cvt_f64_f32 {vr(32+4*c,2)}, v{28+c}")
        I(f"v_cvt_f64_f32 {vr(34+4*c,2)}, v{20+c}")
        I(f"ds_add_f64 v16, {vr(32+4*c,2)} offset:{c*128}")
        I(f"ds_add_f64 v16, {vr(34+4*c,2)} offset:{512 + c*128}")
    I("s_mov_b64 exec, -1")
    I("s_branch K_SIN")
    L("K_SNEXT")
    I("s_add_u32 s70, s70, 1024")
    I("s_add_u32 s71, s71, 4096")
    I("s_add_u32 s72, s72, 2048")
    I(f"s_cmp_lt_u32 s70, {E}")
    I("s_cbranch_scc1 K_SLOOP")

    L("K_JOIN")
    stamp(16)
    I("v_lshrrev_b32 v5, 4, v0")
    I(f"v_mul_u32_u24 v6, {NB_STRIDE}, v5")
    I("v_lshl_add_u32 v7, v3, 5, v6")
    I("v_lshl_add_u32 v6, v3, 4, v6")
    I("v_lshrrev_b32 v24, 1, v3")
    I("v_and_b32 v25, 7, v5")
    I("v_xor_b32 v24, v24, v25")
    I("v_lshlrev_b32 v24, 4, v24")
    I("v_lshl_add_u32 v24, v5, 7, v24")
    I("v_and_b32 v25, 1, v3")
    I("v_lshl_add_u32 v24, v25, 3, v24")
    I("v_lshlrev_b32 v25, 15, v5")
    I("v_lshl_add_u32 v25, v3, 3, v25")
    I("s_lshl_b32 s64, s2, 7")
    I("v_add_u32 v25, s64, v25")
    srd(S_X, P_OUT, N * 128)
    I("s_mov_b32 s79, s78")
    I(f"ds_read_b128 v[28:31], v6 offset:{NB_OFF + U_OFF}")
    I(f"ds_read_b64 v[26:27], v24 offset:{X_OFF}")
    I("s_waitcnt lgkmcnt(0)")
    I("v_lshlrev_b32 v32, 16, v26")
    I("v_and_b32 v33, 0xffff0000, v26")
    I("v_lshlrev_b32 v34, 16, v27")
    I("v_and_b32 v35, 0xffff0000, v27")
    I("s_barrier")
    stamp(17)
    I("s_cmp_lt_u32 s3, 13")
    I("s_cbranch_scc0 K_FIN")
    I(f"ds_read_b128 v[8:11], v7 offset:{NB_OFF}")
    I(f"ds_read_b128 v[12:15], v7 offset:{NB_OFF+16}")
    I(f"ds_read_b128 v[16:19], v7 offset:{NB_OFF+512}")
    I(f"ds_read_b128 v[20:23], v7 offset:{NB_OFF+528}")
    I("s_waitcnt lgkmcnt(2)")
    for c in range(4):
        I(f"v_cvt_f32_f64 v{36+c}, {vr(8+2*c,2)}")
    I("v_pk_add_f32 v[36:37], v[36:37], s[78:79]")
    I("v_pk_add_f32 v[38:39], v[38:39], s[78:79]")
    for c in range(4):
        I(f"v_rcp_f32 v{36+c}, v{36+c}")
    I("s_waitcnt lgkmcnt(0)")
    for c in range(4):
        I(f"v_cvt_f32_f64 v{40+c}, {vr(16+2*c,2)}")
    I("v_pk_fma_f32 v[36:37], v[40:41], v[36:37], v[28:29]")
    I("v_pk_fma_f32 v[38:39], v[42:43], v[38:39], v[30:31]")
    for c in range(4):
        I(f"v_max_f32 v{36+c}, 0, v{36+c}")
    I("v_pk_add_f32 v[36:37], v[36:37], v[32:33]")
    I("v_pk_add_f32 v[38:39], v[38:39], v[34:35]")
    I("v_cvt_pk_bf16_f32 v40, v36, v37")
    I("v_cvt_pk_bf16_f32 v41, v38, v39")
    I(f"buffer_store_dwordx2 v[40:41], v25, {sr(S_X,4)}, 0 offen")
    L("K_FIN")
    if OPT["spin"]:
        L("SPIN_W")
        I("s_memrealtime s[90:91]")
        I("s_waitcnt lgkmcnt(0)")
        I("s_sub_u32 s90, s90, s98")
        I(f"s_cmp_lt_u32 s90, {OPT['spin']}")
        I("s_cbranch_scc1 SPIN_W")
    stamp(18)
    stamp_out()
    L("K_END")
    I("s_endpgm")

hdr = open("standalone__edge_featured_mpnn_gatedgcn__graph.s.ref").read().split("\n")
for line in hdr:
    if line.startswith("; Override"):
        break
    o(line)
o(f"; @launch kernel={KNAME} grid=(256,1,1) block=(1024,1,1) lds={LDS_TOTAL}")
o('.amdgcn_target "amdgcn-amd-amdhsa--gfx950"')
o(".text")
gen()
o('.section .rodata,"a"')
o(".p2align 6")
o(f".amdhsa_kernel {KNAME}")
o("  .amdhsa_next_free_vgpr 128")
o("  .amdhsa_next_free_sgpr 102")
o("  .amdhsa_accum_offset 128")
o("  .amdhsa_group_segment_fixed_size 0")
o("  .amdhsa_kernarg_size 96")
o("  .amdhsa_user_sgpr_count 2")
o("  .amdhsa_user_sgpr_kernarg_segment_ptr 1")
o("  .amdhsa_system_sgpr_workgroup_id_x 1")
o(".end_amdhsa_kernel")
open(sys.argv[1], "w").write("\n".join(out) + "\n")
```

```python
import sys, struct

OPT = dict(stamp=0, sts="2_3_4_5_6_7", force_slow=0, prio="12_4", spin=0, hack=0, sleep=2, delay=0,
           codepf=1, gprio=1, pf=4, pre=3, cfirst=1, sup=1, cprio=1, nog=0, gsc="sc1", cut=0)
for a in sys.argv[2:]:
    k, v = a.split("=")
    OPT[k] = int(v) if v.lstrip("-").isdigit() else v

KNAME = "standalone__edge_featured_mpnn_gatedgcn__graph_kernel"
N = 12500
E = 800000
CHUNK = 3136
TAB_ROWS = N + 1
CTL_OFF = 0x380000
FLG_OFF = 0x390000
CELL_OFF = 0x400000
BIN_STRIDE = 32768 + 256
LINE_STRIDE = 0x900000
STAMP_OFF = 0x4000000
LOG2E = 1.4426950408889634
KEXP = 62
POLL_LIMIT = 100000

X_OFF = 0
WC_OFF = 8192
C1_OFF = 8448
C2_OFF = 9472
FLAG = C2_OFF + 256
SYNC = C2_OFF + 260
TAGS = C2_OFF + 272
BASE = C2_OFF + 512
STR = C2_OFF + 1024
EPI = C2_OFF + 2048
IMG = C2_OFF + 3072
IMG_STRIDE = 272
EAU_OFF = IMG + 256 * IMG_STRIDE
EAU_STRIDE = 800
W_OFF = EAU_OFF + 52 * EAU_STRIDE
LDS_TOTAL = W_OFF + 32768
LIST_OFF = W_OFF
LIST_MAX = 31 * 16 * 32
SLOT_OFF = IMG
SLOT_STRIDE = 576
ACC_STRIDE = 1056
OOB = 0x30000
assert W_OFF % 128 == 0 and 117 * SLOT_STRIDE <= 256 * IMG_STRIDE and LDS_TOTAL <= 163840
INC = 0x5556

def f32(x):
    return struct.unpack("<I", struct.pack("<f", x))[0]

out = []
def o(s=""):
    out.append(s)
def I(s):
    out.append("    " + s)
def L(s):
    out.append(s + ":")
def vr(a, n=1):
    return f"v{a}" if n == 1 else f"v[{a}:{a+n-1}]"
def sr(a, n=1):
    return f"s{a}" if n == 1 else f"s[{a}:{a+n-1}]"
def sdwa(sel1):
    return f"dst_sel:DWORD dst_unused:UNUSED_PAD src0_sel:DWORD src1_sel:{sel1}"

P_X, P_E, P_SRC, P_DST, P_WA, P_WB, P_WC, P_WU, P_WV, P_OUT, P_DBG, P_WS = 4, 6, 8, 10, 12, 14, 16, 18, 20, 22, 24, 26
S_TAB, S_X = 28, 32
WS = sr(P_WS, 2)

STS = [int(x) for x in str(OPT["sts"]).split("_")] if OPT["stamp"] else []
def stamp(i):
    if not OPT["stamp"]:
        return
    if i == 0:
        I("s_memrealtime s[86:87]")
    elif i == 1:
        I("s_memtime s[88:89]")
    elif i in STS:
        k = 90 + 2 * STS.index(i)
        I(f"s_memtime s[{k}:{k+1}]")
def stamp_out():
    if not OPT["stamp"]:
        return
    I("s_mov_b64 exec, -1")
    I("s_waitcnt vmcnt(0) lgkmcnt(0)")
    I("s_memtime s[80:81]")
    I("s_memrealtime s[82:83]")
    I("s_waitcnt lgkmcnt(0)")
    I("v_writelane_b32 v127, s80, 30")
    I("v_writelane_b32 v127, s82, 31")
    I("v_writelane_b32 v127, s86, 0")
    I("v_writelane_b32 v127, s88, 1")
    for i in list(range(2, 19)) + list(range(20, 30)):
        I(f"v_writelane_b32 v127, s{90 + 2*STS.index(i) if i in STS else 88}, {i}")
    I("s_lshl_b32 s84, s2, 4")
    I("s_add_u32 s84, s84, s3")
    I("s_lshl_b32 s84, s84, 7")
    I(f"s_add_u32 s84, s84, {hex(STAMP_OFF)}")
    I("v_and_b32 v1, 63, v0")
    I("v_lshl_add_u32 v1, v1, 2, s84")
    I("s_mov_b64 exec, 0xffffffff")
    I(f"global_store_dword v1, v127, {WS}")

def srd(d, p, size):
    I(f"s_mov_b64 {sr(d,2)}, {sr(p,2)}")
    I(f"s_mov_b32 s{d+2}, {hex(size)}")
    I(f"s_mov_b32 s{d+3}, 0x20000")

D, S, EE = 16, 20, 24
AP = 104
TG = 120
B2 = 128 * IMG_STRIDE

def edge_loads(lo=0, hi=3):
    ins = [f"global_load_dwordx4 {vr(D,4)}, v10, {sr(P_DST,2)}",
           f"global_load_dwordx4 {vr(S,4)}, v10, {sr(P_SRC,2)}",
           f"global_load_dwordx2 {vr(EE,2)}, v11, {sr(P_E,2)}"]
    for x in ins[lo:hi]:
        I(x)

def binning(waits):
    B4, RK, PA = 28, 32, 36
    I(f"v_mov_b32 v14, {INC}")
    I(f"s_mov_b32 s68, {47*INC}")
    I("s_mov_b32 s69, 0x05040100")
    I("s_mov_b32 s70, 0x07060100")
    if waits:
        I("s_waitcnt vmcnt(2)")
        stamp(3)
    for i in range(4):
        I(f"v_lshlrev_b32_sdwa v{B4+i}, 2, v{D+i} {sdwa('BYTE_0')}")
        I(f"ds_add_rtn_u32 v{RK+i}, v{B4+i}, v14 offset:{C1_OFF}")
    for i in range(4):
        I(f"v_mul_u32_u24 v{B4+i}, {IMG_STRIDE//4}, v{B4+i}")
        I(f"v_lshrrev_b32 v{D+i}, 8, v{D+i}")
    for i in range(4):
        I("s_waitcnt lgkmcnt(3)")
        I(f"v_min_u32 v{RK+i}, s68, v{RK+i}")
        I(f"v_lshrrev_b32 v{RK+i}, 14, v{RK+i}")
        I(f"v_lshl_add_u32 v{PA+i}, v{RK+i}, 2, v{B4+i}")
        I(f"v_and_b32 v{RK+i}, 3, v{RK+i}")
        I(f"v_or3_b32 v{RK+i}, v{PA+i}, 12, v{RK+i}")
        I(f"ds_write_b8 v{RK+i}, v{D+i} offset:{IMG}")
    if waits:
        I("s_waitcnt vmcnt(0)")
        stamp(4)
    for i in range(4):
        if OPT["hack"]:
            I(f"v_and_b32 v{S+i}, {OPT['hack']}, v{S+i}")
        I(f"v_perm_b32 v{S+i}, v{EE+(i>>1)}, v{S+i}, s{69+(i&1)}")
        I(f"ds_write_b32 v{PA+i}, v{S+i} offset:{IMG}")

def copy_consts():
    I("s_lshr_b32 s64, s2, 7")
    I("s_lshl_b32 s64, s64, 14")
    I(f"s_add_u32 s64, s64, {hex(CELL_OFF)}")
    I(f"v_mul_u32_u24 v6, {BIN_STRIDE//4}, v5")
    I("v_lshl_add_u32 v6, v0, 4, v6")
    I("v_add_u32 v6, s64, v6")
    I(f"v_add_u32 v7, {128*BIN_STRIDE}, v6")
    I(f"s_mul_i32 s64, s2, {BIN_STRIDE}")
    I(f"s_add_u32 s64, s64, {hex(CELL_OFF)}")
    I("v_lshl_add_u32 v2, v0, 4, s64")
    I("v_add_u32 v3, 0x4000, v2")
    I("s_mov_b32 s36, 0x0f0f0f0f")
    I("s_mov_b32 s37, s36")
    I(f"s_mov_b32 s38, {12*INC}")
    I(f"s_mov_b32 s39, {24*INC}")
    I("s_mov_b32 s40, 0xc000")
    I("s_mov_b32 s41, 0xffc0c0c0")
    I(f"s_mov_b32 s42, {49 << 16}")
    I("s_mov_b32 s43, 0")
    I("v_mov_b32 v1, 0")
    I(f"s_mov_b32 s{S_TAB}, s{P_WS}")
    I(f"s_or_b32 s{S_TAB+1}, s{P_WS+1}, 0x1000000")
    I(f"s_mov_b32 s{S_TAB+2}, {0 if OPT['nog'] else TAB_ROWS}")
    I(f"s_mov_b32 s{S_TAB+3}, 0x20000")

def lds_init():
    I("v_add_u32 v5, s2, v3")
    I("v_and_b32 v5, 127, v5")
    I(f"v_mul_u32_u24 v4, {IMG_STRIDE}, v5")
    I("v_lshl_add_u32 v4, v2, 4, v4")
    I("v_lshlrev_b32 v5, 2, v5")
    I("v_mov_b32 v12, 0")
    I("v_mov_b32 v13, 0x3f3f3f")
    I(f"ds_write2st64_b32 v5, v12, v12 offset0:{C1_OFF//256} offset1:{C1_OFF//256+2}")
    for r in range(2):
        for b in range(2):
            I(f"ds_write_b32 v4, v13 offset:{IMG + b*B2 + r*128 + 12}")
def edge_addr():
    I(f"s_mul_i32 s64, s2, {CHUNK*4}")
    I("v_lshl_add_u32 v10, v0, 4, s64")
    I("v_lshrrev_b32 v11, 1, v10")

def gen():
    o(".p2align 8")
    o(f".globl {KNAME}")
    o(f".type {KNAME},@function")
    L(KNAME)
    I("s_cmp_ge_u32 s2, 256")
    I("s_cbranch_scc1 K_END")
    stamp(0); stamp(1)
    I("s_load_dwordx16 s[4:19], s[0:1], 0")
    I("s_load_dwordx8 s[20:27], s[0:1], 64")
    if OPT["spin"]:
        I("s_memrealtime s[98:99]")
    I("v_lshrrev_b32 v1, 6, v0")
    I("v_and_b32 v2, 7, v0")
    I("v_readfirstlane_b32 s3, v1")
    I("v_lshrrev_b32 v3, 3, v0")
    I("s_mov_b32 s79, 0")
    I("s_cmp_ge_u32 s3, 12")
    I("s_cbranch_scc1 G_ENTRY")

    I("s_cmp_ge_u32 s3, 2")
    I("s_cbranch_scc1 A_NOPF")
    if OPT["codepf"]:
        I("s_getpc_b64 s[64:65]")
        L("A_PC")
        I("v_lshlrev_b32 v8, 7, v0")
        I("v_min_u32 v8, K_SLOW-A_PC-4, v8")
        I("global_load_dword v27, v8, s[64:65]")
    I("v_lshlrev_b32 v8, 4, v0")
    I("v_mov_b64 v[12:13], 0")
    I("v_mov_b64 v[14:15], 0")
    I(f"ds_write_b128 v8, v[12:15] offset:{C2_OFF}")
    L("A_NOPF")
    lds_init()
    edge_addr()
    I(f"v_cmp_gt_u32 vcc, {E*4}, v10")
    I("s_waitcnt lgkmcnt(0)")
    stamp(24)
    if OPT["cfirst"]:
        copy_consts()
    I("s_mov_b64 exec, vcc")
    I("s_cbranch_execz A_NOE")
    edge_loads(0, OPT["pre"])
    I("s_barrier")
    stamp(2)
    edge_loads(OPT["pre"], 3)
    if not OPT["cfirst"]:
        I("s_mov_b64 exec, -1")
        copy_consts()
        I("s_mov_b64 exec, vcc")
    binning(True)
    I("s_mov_b64 exec, -1")
    I("s_branch A_JOIN")
    L("A_NOE")
    I("s_barrier")
    I("s_mov_b64 exec, -1")
    if not OPT["cfirst"]:
        copy_consts()
    I("s_branch A_JOIN")

    XA, FA, FB, ACC1, ACC2 = 28, 36, 68, 104, 36
    L("G_ENTRY")
    if OPT["gprio"]:
        I("s_setprio 3")
    I("v_and_b32 v7, 7, v3")
    I("s_and_b32 s64, s3, 1")
    I("s_lshl_b32 s64, s64, 2")
    I("v_and_b32 v8, 2, v7")
    I("v_xor_b32 v8, v8, v2")
    I("v_xor_b32 v8, s64, v8")
    I("v_lshlrev_b32 v8, 4, v8")
    I("v_lshl_add_u32 v8, v7, 7, v8")
    I("s_and_b32 s65, s3, 3")
    I("s_lshl_b32 s65, s65, 11")
    I("v_add_u32 v8, s65, v8")
    I(f"s_add_u32 s65, s65, {W_OFF}")
    I("s_add_u32 s66, s3, 3")
    I("s_and_b32 s66, s66, 3")
    I("v_xor_b32 v9, v2, v7")
    I("v_lshlrev_b32 v9, 4, v9")
    I("v_lshl_add_u32 v9, v7, 15, v9")
    I("s_lshl_b32 s67, s66, 19")
    I("s_lshl_b32 s68, s2, 7")
    I("s_add_u32 s67, s67, s68")
    I("v_add_u32 v9, s67, v9")
    I("v_add_u32 v15, 0x40000, v9")
    I("s_lshl_b32 s67, s66, 11")
    I(f"s_mov_b32 s{S_X+2}, {N*128}")
    I(f"s_mov_b32 s{S_X+3}, 0x20000")
    I("s_mov_b32 m0, s67")
    I("s_waitcnt lgkmcnt(0)")
    stamp(24)
    I(f"s_mov_b64 {sr(S_X,2)}, {sr(P_X,2)}")
    I(f"buffer_load_dwordx4 v9, {sr(S_X,4)}, 0 offen lds")
    I("s_add_u32 m0, s67, 1024")
    I("s_nop 0")
    I(f"buffer_load_dwordx4 v15, {sr(S_X,4)}, 0 offen lds")
    def w_dma(p, off, va="v8", sd="s65"):
        I(f"s_add_u32 m0, {sd}, {off}")
        I("s_nop 0")
        I(f"global_load_lds_dwordx4 {va}, {sr(p,2)}")
        I(f"global_load_lds_dwordx4 {va}, {sr(p,2)} offset:1024")
    w_dma(P_WB, 0)
    w_dma(P_WV, 8192)
    lds_init()
    edge_addr()
    I("s_cmp_eq_u32 s3, 12")
    I("s_cselect_b32 s74, 0xffff, 0")
    I("s_cmp_eq_u32 s2, 255")
    I("s_cselect_b32 s74, 0, s74")
    I("s_mov_b32 s75, 0")
    I("s_mov_b64 exec, s[74:75]")
    I("s_cbranch_execz G_NOE")
    edge_loads()
    L("G_NOE")
    I("s_mov_b64 exec, -1")
    I("v_mov_b32 v126, v8")
    I("v_lshlrev_b32 v100, 4, v2")
    I("s_mov_b32 s78, s65")
    I(f"s_mov_b64 {sr(S_X,2)}, {WS}")
    I(f"s_mov_b32 s{S_X+2}, {TAB_ROWS*256}")
    copy_consts()
    I("v_and_b32 v124, 15, v0")
    I("v_bfe_u32 v125, v0, 4, 2")
    I("v_and_b32 v8, 7, v124")
    I("v_lshlrev_b32 v9, 1, v125")
    I("v_xor_b32 v8, v8, v9")
    I("v_lshlrev_b32 v8, 4, v8")
    I("v_lshl_add_u32 v8, v124, 7, v8")
    I("v_add_u32 v8, s67, v8")
    I("v_xor_b32 v9, 16, v8")
    I("v_lshrrev_b32 v10, 2, v124")
    I("v_and_b32 v11, 2, v10")
    I("v_bfe_u32 v12, v0, 1, 1")
    I("v_or_b32 v11, v11, v12")
    I("v_and_b32 v12, 1, v125")
    I("v_lshl_or_b32 v11, v12, 2, v11")
    I("v_lshlrev_b32 v11, 4, v11")
    I("v_and_b32 v12, 1, v0")
    I("v_lshl_or_b32 v11, v12, 3, v11")
    I("v_lshl_add_u32 v10, v125, 4, v10")
    I("v_lshl_or_b32 v11, v10, 7, v11")
    I(f"v_add_u32 v12, {W_OFF}, v11")
    for T in range(1, 4):
        I(f"v_xor_b32 v{12+T}, {T << 5}, v12")
    I(f"s_mov_b32 s76, {hex(f32(-LOG2E))}")
    I("s_mov_b32 s77, 0x07060302")
    I(f"v_mov_b32 v26, {hex(f32(2.0**-70))}")
    I("s_lshl_b32 s64, s66, 20")
    I("s_lshl_b32 s65, s2, 8")
    I("s_add_u32 s64, s64, s65")
    I("v_lshlrev_b32 v27, 18, v125")
    I("v_lshl_add_u32 v27, v124, 4, v27")
    I("v_add_u32 v27, s64, v27")
    I("v_mov_b32 v10, 1")
    def g_sync(target, lab, arrive=True):
        if arrive:
            I("s_mov_b64 exec, 1")
            I(f"ds_add_u32 v1, v10 offset:{SYNC}")
            I("s_mov_b64 exec, -1")
        L(lab)
        I(f"ds_read_b32 v11, v1 offset:{SYNC}")
        I("s_waitcnt lgkmcnt(0)")
        I("v_readfirstlane_b32 s64, v11")
        I(f"s_cmp_lt_u32 s64, {target}")
        I(f"s_cbranch_scc1 {lab}")
    def frag_reads(F, moff):
        for T in range(4):
            for s in range(2):
                for h in range(2):
                    I(f"ds_read_b64_tr_b16 {vr(F + 8*T + 4*s + 2*h, 2)}, v{12+T} offset:{moff + (8*s+4*h)*128}")
    def mfmas(F, acc, swap, later):
        for T in range(4):
            I(f"s_waitcnt lgkmcnt({min(15, later + 4*(3-T))})")
            for s in range(2):
                a, b = vr(XA + 4*s, 4), vr(F + 8*T + 4*s, 4)
                if swap:
                    a, b = b, a
                c = "0" if s == 0 else vr(acc + 4*T, 4)
                I(f"v_mfma_f32_16x16x32_bf16 {vr(acc+4*T,4)}, {a}, {b}, {c}")
    I("s_waitcnt lgkmcnt(0)")
    I("s_barrier")
    stamp(2)
    I("s_cmp_eq_u64 s[74:75], 0")
    I("s_cbranch_scc1 G_W0")
    I("s_waitcnt vmcnt(3)")
    I("s_branch G_W1")
    L("G_W0")
    I("s_waitcnt vmcnt(0)")
    L("G_W1")
    stamp(3)
    g_sync(4, "G_S1")
    stamp(20)
    I(f"ds_read_b128 {vr(XA,4)}, v8")
    I(f"ds_read_b128 {vr(XA+4,4)}, v9")
    frag_reads(FA, 0)
    frag_reads(FB, 8192)
    stamp(21)
    w_dma(P_WA, 16384, "v126", "s78")
    w_dma(P_WU, 24576, "v126", "s78")
    I("s_cmp_eq_u32 s3, 13")
    I("s_cbranch_scc0 G_NOWC")
    I(f"s_mov_b32 m0, {WC_OFF}")
    I("s_mov_b64 exec, 0xff")
    I(f"global_load_lds_dwordx4 v100, {sr(P_WC,2)}")
    I("s_mov_b64 exec, -1")
    L("G_NOWC")
    stamp(22)
    mfmas(FA, ACC1, False, 16)
    mfmas(FB, ACC2, False, 0)
    stamp(23)
    I("s_cmp_eq_u32 s3, 13")
    I("s_cbranch_scc0 G_NOEP")
    I(f"s_add_u32 s70, s{P_WS}, {hex(CTL_OFF)}")
    I(f"s_addc_u32 s71, s{P_WS+1}, 0")
    I("s_load_dwordx2 s[72:73], s[70:71], 8")
    L("G_NOEP")
    ACCB, ACCV, OUTR = ACC1, ACC2, FB
    SD = sdwa("WORD_1")
    I("s_mov_b32 s80, 0x8000")
    I("s_mov_b32 s81, 0x8000")
    I(f"s_mov_b32 s68, {hex(f32(2.0**-100))}")
    I("s_mov_b32 s69, s68")
    I("v_mov_b32 v10, v26")
    I("v_mov_b32 v11, v26")
    I("s_nop 1")
    for rp in (0, 2):
        for t in range(4):
            I(f"v_pk_fma_f32 {vr(ACCB+4*t+rp,2)}, {vr(ACCB+4*t+rp,2)}, s[76:77], v[10:11] op_sel_hi:[1,0,1]")
        for t in (1, 3):
            I(f"v_pk_add_f32 {vr(ACCV+4*t+rp,2)}, {vr(ACCV+4*t+rp,2)}, s[68:69]")
        for t in range(4):
            I(f"v_lshl_add_u64 {vr(ACCB+4*t+rp,2)}, {vr(ACCB+4*t+rp,2)}, 0, s[80:81]")
        for t in range(4):
            I(f"v_lshl_add_u64 {vr(ACCV+4*t+rp,2)}, {vr(ACCV+4*t+rp,2)}, 0, s[80:81]")
        for r in (rp, rp + 1):
            for t in (0, 2):
                I(f"v_sub_u32_sdwa v{ACCB+4*t+r}, v{ACCB+4*t+r}, v{ACCV+4*t+r} clamp {SD}")
            for t in (0, 2):
                I(f"v_sub_u32_sdwa v{ACCV+4*(t+1)+r}, v{ACCV+4*(t+1)+r}, v{ACCB+4*t+r} clamp {SD}")
            for t in (0, 2):
                I(f"v_sub_u32_sdwa v{ACCB+4*(t+1)+r}, v{ACCB+4*(t+1)+r}, v{ACCV+4*(t+1)+r} clamp {SD}")
            for t in range(4):
                I(f"v_perm_b32 v{OUTR+4*r+t}, v{ACCB+4*t+r}, v{ACCV+4*t+r}, s77")
            if r == 0:
                I("s_cmp_eq_u32 s3, 12")
                I("s_cbranch_scc1 G_T3")
            else:
                I("v_add_u32 v27, 0x10000, v27")
            I(f"buffer_store_dwordx4 {vr(OUTR+4*r,4)}, v27, {sr(S_X,4)}, 0 offen sc1")
    stamp(4)
    I("s_cmp_eq_u32 s3, 13")
    I("s_cbranch_scc0 G_BVD")
    I("s_waitcnt lgkmcnt(0)")
    I("s_add_u32 s72, s72, 0x1000000")
    I("s_addc_u32 s73, s73, 0")
    I("s_and_b32 s72, s72, 0xff000000")
    for k in range(3):
        I(f"s_bfe_u32 s64, s73, {hex((2 << 16) | (2*k))}")
        I(f"s_lshl_b32 s64, s64, {6 + 8*k}")
        I("s_or_b32 s72, s72, s64")
        I(f"s_bfe_u32 s64, s73, {hex((2 << 16) | (6 + 2*k))}")
        I("s_lshl_b32 s64, s64, 14")
        I(f"v_mov_b32 v{TG+k}, s64")
    I(f"v_mov_b32 v{TG+3}, s72")
    I(f"ds_write_b128 v1, {vr(TG,4)} offset:{TAGS}")
    L("G_BVD")
    I("s_waitcnt vmcnt(4)")
    I("s_branch G_DONE")
    L("G_T3")
    I("s_cmp_eq_u32 s2, 212")
    I("s_cbranch_scc0 G_NODUM")
    for t in range(4):
        I(f"v_mov_b32 v{OUTR+t}, 0x7f000000")
    L("G_NODUM")
    I(f"buffer_store_dwordx4 {vr(OUTR,4)}, v27, {sr(S_X,4)}, 0 offen sc1")
    I("s_waitcnt vmcnt(1)")
    I("s_mov_b64 exec, s[74:75]")
    I("s_cbranch_execz G_NOBIN")
    I("v_mov_b32 v126, v14")
    binning(False)
    I("v_mov_b32 v14, v126")
    L("G_NOBIN")
    I("s_mov_b64 exec, -1")
    I(f"ds_read_b128 {vr(XA,4)}, v8")
    I(f"ds_read_b128 {vr(XA+4,4)}, v9")
    stamp(4)
    L("G_DONE")
    if OPT["gprio"] and not OPT["cprio"]:
        I("s_setprio 0")
    stamp(5)

    L("A_JOIN")
    if OPT["cprio"]:
        I("s_setprio 3")
    I("s_waitcnt lgkmcnt(0)")
    stamp(6)
    I("s_barrier")
    stamp(7)
    C0 = 48
    I(f"ds_read_b128 {vr(TG,4)}, v1 offset:{TAGS}")
    I(f"ds_read2st64_b32 v[8:9], v5 offset0:{C1_OFF//256} offset1:{C1_OFF//256+2}")
    I(f"ds_read_b128 {vr(C0,4)}, v4 offset:{IMG}")
    I(f"ds_read_b128 {vr(C0+4,4)}, v4 offset:{IMG+B2}")
    def tagit(c):
        for k in range(3):
            I(f"v_bfi_b32 v{c+k}, s40, v{TG+k}, v{c+k}")
        I(f"v_or_b32 v{c+3}, v{TG+3}, v{c+3}")
    I("s_waitcnt lgkmcnt(2)")
    I("v_cmp_le_u32 s[72:73], s38, v8")
    I("v_cmp_le_u32 s[74:75], s38, v9")
    I("v_max_u32 v10, v8, v9")
    I("v_cmp_le_u32 vcc, s39, v10")
    I("s_waitcnt lgkmcnt(1)")
    tagit(C0)
    I("s_or_b64 exec, s[72:73], s[36:37]")
    I(f"global_store_dwordx4 v6, {vr(C0,4)}, {WS} sc1")
    I("s_or_b64 exec, s[74:75], s[36:37]")
    I("s_waitcnt lgkmcnt(0)")
    tagit(C0 + 4)
    I(f"global_store_dwordx4 v7, {vr(C0+4,4)}, {WS} sc1")
    I("s_cbranch_vccnz R_PUB2")
    L("A_PUBD")
    I("s_mov_b64 exec, -1")
    if OPT["cprio"]:
        I("s_setprio 0")
    stamp(8)
    I("s_cmp_ge_u32 s3, 12")
    I("s_cbranch_scc0 B_NOAU")
    I("s_setprio 1")
    FU, FW, UU = 36, 84, 52
    def half_gemm(moff, acc, swap):
        for T in range(4):
            F = (FU if T < 2 else FW) + 8 * (T & 1)
            for s in range(2):
                for h in range(2):
                    I(f"ds_read_b64_tr_b16 {vr(F + 4*s + 2*h, 2)}, v{12+T} offset:{moff + (8*s+4*h)*128}")
        for T in range(4):
            F = (FU if T < 2 else FW) + 8 * (T & 1)
            I(f"s_waitcnt lgkmcnt({4*(3-T)})")
            for s in range(2):
                a, b = vr(XA + 4*s, 4), vr(F + 4*s, 4)
                if swap:
                    a, b = b, a
                c = "0" if s == 0 else vr(acc + 4*T, 4)
                I(f"v_mfma_f32_16x16x32_bf16 {vr(acc+4*T,4)}, {a}, {b}, {c}")
    half_gemm(16384, AP, False)
    I("s_lshl_b32 s64, s2, 5")
    I("s_add_u32 s64, s64, s66")
    I("s_lshl_b32 s64, s64, 2")
    I(f"s_add_u32 s64, s64, {hex(FLG_OFF)}")
    I("v_mov_b32 v26, s64")
    I("s_waitcnt vmcnt(2)")
    I("s_mov_b64 exec, 1")
    I(f"global_store_dword v26, v{TG+3}, {WS} sc1")
    I("s_mov_b64 exec, -1")
    half_gemm(24576, UU, True)
    I(f"s_mul_i32 s65, s66, {16*EAU_STRIDE}")
    I(f"s_add_u32 s65, s65, {EAU_OFF}")
    I(f"v_mul_u32_u24 v26, {4*EAU_STRIDE}, v125")
    I("v_lshl_add_u32 v26, v124, 4, v26")
    I("v_add_u32 v25, s65, v26")
    I(f"v_mul_u32_u24 v27, {EAU_STRIDE}, v124")
    I("v_lshl_add_u32 v27, v125, 4, v27")
    I("v_add_u32 v27, s65, v27")
    for i in range(16):
        I(f"v_mul_f32 v{AP+i}, s76, v{AP+i}")
    I("s_cmp_eq_u32 s3, 12")
    I("s_cselect_b32 exec_lo, 0x000f000f, -1")
    I("s_cselect_b32 exec_hi, 0x000f000f, -1")
    for T in range(4):
        I(f"ds_write_b128 v27, {vr(UU+4*T,4)} offset:{256 + T*64}")
    I("s_cselect_b32 exec_hi, 0, -1")
    I("s_cselect_b32 exec_lo, 0xffff, -1")
    I(f"v_max3_f32 v26, |v{AP}|, |v{AP+1}|, |v{AP+2}|")
    for i in range(3, 15, 2):
        I(f"v_max3_f32 v26, |v{AP+i}|, |v{AP+i+1}|, v26")
    I(f"v_max_f32 v26, |v{AP+15}|, v26")
    I(f"v_cmp_nge_f32 vcc, {hex(f32(63.0))}, v26")
    EAT = 36
    for r in range(4):
        for t in range(4):
            I(f"v_add_f32 v{EAT+4*r+t}, {hex(f32(-float(KEXP)))}, v{AP+4*t+r}")
        for t in range(4):
            I(f"ds_write_b32 v25, v{AP+4*t+r} offset:{r*EAU_STRIDE + 512 + 4*t}")
            I(f"v_exp_f32 v{EAT+4*r+t}, v{EAT+4*r+t}")
        I("s_nop 0")
        I(f"ds_write_b128 v25, {vr(EAT+4*r,4)} offset:{r*EAU_STRIDE}")
        if r == 0:
            I("s_cbranch_scc1 G_EAD")
    L("G_EAD")
    I("s_mov_b64 exec, -1")
    I("s_cmp_lg_u64 vcc, 0")
    I("s_cselect_b32 s79, 1, 0")
    L("B_NOAU")

    RA, CA, KA, RB, CB, KB = 8, 24, 36, 64, 72, 78
    XB, Y, A = 48, 80, 100
    IP = (96, 98, 104, 106)
    UR, XR, VOUT, VU, LP, EP = 108, 112, 116, 117, 118, 120
    WCB, DEN, NUM, VOOB, C4, VRA, VSE, EA, P, Q, SS, LC = 16, 20, 44, 30, 31, 42, 32, 12, 24, 8, 36, 4
    I("v_and_b32 v5, 63, v0")
    I("s_cmp_lt_u32 s2, 212")
    I("s_cselect_b32 s64, 49, 48")
    I("v_cmp_gt_u32 s[82:83], s64, v5")
    I("v_lshlrev_b32 v5, 2, v5")
    I(f"v_and_b32 v{LC}, 15, v0")
    I(f"v_lshlrev_b32 v6, 1, v{LC}")
    for j in range(4):
        I(f"ds_read_u16 v{WCB+j}, v6 offset:{WC_OFF + 32*j}")
    I(f"v_lshlrev_b32 v{LC}, 4, v{LC}")
    I(f"v_mov_b32 v{C4}, 4")
    I(f"v_mov_b32 v{VOOB}, {OOB}")
    for p_ in IP:
        I(f"v_mov_b32 v{p_+1}, v{LC}")
    I(f"v_lshlrev_b32 v{LP}, 1, v6")
    I(f"v_mov_b32 v{LP+1}, v{LC}")
    I("v_lshrrev_b32 v7, 4, v0")
    I(f"v_mul_u32_u24 v{VU}, {EAU_STRIDE}, v7")
    I(f"s_mov_b32 s64, {EAU_OFF + 256}")
    I(f"v_add3_u32 v{VU}, v{VU}, s64, v{LC}")
    I("v_lshlrev_b32 v8, 2, v6")
    I("v_and_b32 v9, 0x70, v0")
    I("v_xor_b32 v9, v8, v9")
    I("v_lshl_add_u32 v9, v7, 7, v9")
    I(f"ds_read_b64 {vr(XR+2,2)}, v9 offset:{X_OFF}")
    I(f"v_lshl_add_u32 v{VOUT}, v7, 15, v8")
    I("s_lshl_b32 s64, s2, 7")
    I(f"v_add_u32 v{VOUT}, s64, v{VOUT}")
    srd(S_X, P_OUT, N * 128)
    for d in range(0, 4, 2):
        I(f"v_mov_b64 {vr(A+d,2)}, 0")
        I(f"v_mov_b64 {vr(DEN+d,2)}, 0")
        I(f"v_mov_b64 {vr(NUM+d,2)}, 0")
    I("s_mov_b64 s[68:69], -1")
    I("s_mov_b64 s[70:71], -1")
    I("s_cmp_lt_u32 s3, 4")
    I("s_cselect_b32 s78, 2, 0")
    I(f"s_mov_b32 s16, {hex(f32(2.0**-KEXP))}")
    I("s_mov_b32 s17, s16")
    I(f"s_mov_b32 s18, {hex(f32(1e-6 * 2.0**KEXP))}")
    I("s_mov_b32 s19, s18")
    I("s_mov_b32 s20, 32")
    I("s_mov_b32 s21, 32")
    I(f"s_mov_b32 s24, {SLOT_STRIDE}")
    I(f"s_mov_b32 s25, {EAU_STRIDE}")
    I(f"s_mov_b32 s85, {LIST_OFF}")
    I("s_mov_b32 s56, 0x11111111")
    I("s_mov_b32 s57, s56")
    I("s_lshl_b64 s[58:59], s[56:57], 1")
    I("s_lshl_b64 s[60:61], s[56:57], 2")
    I("s_lshl_b64 s[62:63], s[56:57], 3")
    I("v_bfe_u32 v124, v0, 4, 2")
    I("v_bfe_u32 v125, v0, 5, 1")
    I("v_bfe_u32 v126, v0, 2, 1")
    I("v_lshl_add_u32 v125, v126, 1, v125")
    I("v_bfe_u32 v126, v0, 3, 2")
    I("v_lshlrev_b32 v126, 2, v126")
    I("v_bfe_u32 v34, v0, 2, 3")
    I("s_lshl_b32 s64, s3, 3")
    I("s_sub_u32 s64, s2, s64")
    I("v_sub_u32 v34, s64, v34")
    I("v_and_b32 v34, 127, v34")
    I("v_and_b32 v35, 32, v0")
    I("v_lshl_add_u32 v34, v35, 2, v34")
    I("v_and_b32 v35, 3, v0")
    if OPT["pf"]:
        I("v_lshlrev_b32 v33, 8, v34")
        I("v_lshl_add_u32 v33, v35, 20, v33")
        I("s_lshr_b32 s64, s2, 4")
        I("s_lshl_b32 s64, s64, 16")
        I("s_bfe_u32 s65, s2, 0x10003")
        I("s_lshl_b32 s65, s65, 7")
        I("s_add_u32 s64, s64, s65")
        I("v_add_u32 v33, s64, v33")
    I("v_lshlrev_b32 v34, 7, v34")
    I("v_lshl_add_u32 v34, v35, 2, v34")
    I(f"v_add_u32 v34, {hex(FLG_OFF)}, v34")
    I(f"s_mov_b32 s64, {hex(f32(-LOG2E))}")
    I("s_mov_b32 s66, 0x0000ffff")
    I("s_mov_b32 s67, 0xffff0000")
    I("s_waitcnt lgkmcnt(0)")
    for j in range(4):
        I(f"v_lshlrev_b32 v{WCB+j}, 16, v{WCB+j}")
    for j in range(4):
        I(f"v_mul_f32 v{WCB+j}, s64, v{WCB+j}")
    for j in range(4):
        I(f"v_cvt_pk_bf16_f32 v{WCB+j}, 0, v{WCB+j}")
    for j in range(4):
        I(f"v_cndmask_b32 v{WCB+j}, 0, v{WCB+j}, s[66:67]")
    I(f"v_lshlrev_b32 v{XR}, 16, v{XR+2}")
    I(f"v_and_b32 v{XR+1}, 0xffff0000, v{XR+2}")
    I(f"v_lshlrev_b32 v{XR+2}, 16, v{XR+3}")
    I(f"v_and_b32 v{XR+3}, 0xffff0000, v{XR+3}")
    I("s_setprio 0")
    I("s_waitcnt vmcnt(0)")
    if OPT["delay"]:
        I(f"s_sleep {OPT['delay']}")
    stamp(9)
    I(f"global_load_dwordx4 {vr(RA,4)}, v2, {WS} sc1")
    I(f"global_load_dwordx4 {vr(RA+4,4)}, v3, {WS} sc1")

    def poll(R_, first, name):
        L(name)
        I("s_waitcnt vmcnt(0)")
        for k in range(2):
            I(f"s_mov_b64 exec, s[{68+2*k}:{69+2*k}]")
            for j in range(4):
                I(f"v_xor_b32 v{R_+4*k+j}, v{TG+j}, v{R_+4*k+j}")
        I("s_mov_b64 exec, -1")
        for k in range(2):
            r = R_ + 4 * k
            I(f"v_or3_b32 v{6+k}, v{r}, v{r+1}, v{r+2}")
            I(f"v_and_b32 v{6+k}, s40, v{6+k}")
            I(f"v_and_or_b32 v{6+k}, v{r+3}, s41, v{6+k}")
            I(f"v_cmp_ne_u32 s[{68+2*k}:{69+2*k}], 0, v{6+k}")
            I(f"v_cmp_gt_u32 s[{64+2*k}:{65+2*k}], s42, v{r+3}")
        if first:
            for k in range(2):
                I(f"s_andn2_b64 s[{64+2*k}:{65+2*k}], s[{64+2*k}:{65+2*k}], s[{68+2*k}:{69+2*k}]")
                I(f"s_lshl_b64 s[{74+2*k}:{75+2*k}], s[{64+2*k}:{65+2*k}], 1")
                I(f"s_or_b64 s[{74+2*k}:{75+2*k}], s[{74+2*k}:{75+2*k}], s[36:37]")
        I("s_and_b64 s[72:73], s[68:69], s[74:75]")
        I("s_and_b64 s[80:81], s[70:71], s[76:77]")
        I("s_or_b64 s[72:73], s[72:73], s[80:81]")
        I(f"s_cbranch_scc1 {name}_RETRY")
    def retry(R_, first, name):
        L(name + "_RETRY")
        if first:
            for k in range(4):
                I(f"s_and_b32 s72, s{68+k}, s{74+k}")
                I("s_lshl_b32 s73, s72, 1")
                I("s_or_b32 s72, s72, s73")
                I("s_lshl_b32 s73, s72, 2")
                I("s_or_b32 s72, s72, s73")
                I("s_lshl_b32 s73, s72, 4")
                I("s_or_b32 s72, s72, s73")
                I(f"s_and_b32 s{68+k}, s{68+k}, s72")
        else:
            I("s_and_b64 s[68:69], s[68:69], s[74:75]")
            I("s_and_b64 s[70:71], s[70:71], s[76:77]")
        I("s_add_u32 s43, s43, 1")
        I(f"s_cmp_gt_u32 s43, {POLL_LIMIT}")
        I("s_cbranch_scc1 R_TIMEOUT")
        if OPT["sleep"]:
            I(f"s_sleep {OPT['sleep']}")
        reload(R_, name)
        I(f"s_branch {name}")
    def reload(R_, name):
        I("s_mov_b64 exec, s[68:69]")
        I(f"s_cbranch_execz {name}_1")
        I(f"global_load_dwordx4 {vr(R_,4)}, v2, {WS} sc1")
        L(name + "_1")
        I("s_mov_b64 exec, s[70:71]")
        I(f"s_cbranch_execz {name}_2")
        I(f"global_load_dwordx4 {vr(R_+4,4)}, v3, {WS} sc1")
        L(name + "_2")
    def ranks(R_, C_, K_, M_):
        for k in range(2):
            for j in range(3):
                I(f"v_lshlrev_b32_sdwa v{C_+3*k+j}, 2, v{R_+4*k+3} {sdwa('BYTE_'+str(j))}")
        for k in range(2):
            I(f"s_mov_b64 exec, s[{74+2*k}:{75+2*k}]")
            for j in range(3):
                m = M_ + 2 * (3 * k + j)
                I(f"v_cmp_gt_u32_sdwa s[{m}:{m+1}], 49, v{R_+4*k+3} src0_sel:DWORD src1_sel:BYTE_{j}")
            for j in range(3):
                m = M_ + 2 * (3 * k + j)
                I(f"s_mov_b64 exec, s[{m}:{m+1}]")
                I(f"ds_add_rtn_u32 v{K_+3*k+j}, v{C_+3*k+j}, v{C4} offset:{C2_OFF}")
        I("s_mov_b64 exec, -1")
    def more_test():
        I("s_and_b64 s[64:65], s[64:65], s[74:75]")
        I("s_and_b64 s[66:67], s[66:67], s[76:77]")
        I("s_or_b64 s[72:73], s[64:65], s[66:67]")
        I("s_or_b32 s72, s72, s73")
        I("s_and_b32 s72, s72, 0x80808080")
    MA, MB = 44, 4

    poll(RA, True, "B_P0")
    stamp(10)
    if OPT["pf"]:
        I(f"s_cmp_lt_u32 s3, {OPT['pf']}")
        I("s_cbranch_scc0 B_NOEF")
        I(f"global_load_dword v35, v34, {WS} sc1")
        L("B_NOEF")
    ranks(RA, CA, KA, MA)
    more_test()
    I("s_or_b32 s72, s72, s79")
    I("s_cbranch_scc1 R_MORE")
    L("B_RDONE")
    if OPT["stamp"]:
        I("v_writelane_b32 v127, s43, 19")
    I("s_waitcnt lgkmcnt(0)")
    I("s_barrier")
    stamp(11)
    I(f"ds_read_b32 v6, v5 offset:{C2_OFF}")
    if OPT["pf"]:
        I(f"s_cmp_lt_u32 s3, {OPT['pf']}")
        I("s_cbranch_scc0 B_NOPF")
        I("s_waitcnt vmcnt(0)")
        I(f"v_cmp_eq_u32 vcc, v{TG+3}, v35")
        I("s_mov_b64 exec, vcc")
        I("s_cbranch_execz B_NOPF0")
        I(f"global_load_dword v84, v33, {WS} sc1")
        L("B_NOPF0")
        I("s_mov_b64 exec, -1")
        I("s_branch B_PFD")
        L("B_NOPF")
    I(f"global_load_dword v35, v34, {WS} sc1")
    L("B_PFD")
    I("s_waitcnt lgkmcnt(0)")
    I("v_add_u32 v2, 7, v6")
    I("v_and_b32 v2, -8, v2")
    I("v_max_u32 v2, 8, v2")
    I("v_cndmask_b32 v2, 0, v2, s[82:83]")
    I("v_mov_b32 v3, v2")
    for d in ("row_shr:1 row_mask:0xf", "row_shr:2 row_mask:0xf", "row_shr:4 row_mask:0xf",
              "row_shr:8 row_mask:0xf", "row_bcast:15 row_mask:0xa", "row_bcast:31 row_mask:0xc"):
        I("s_nop 1")
        I(f"v_add_u32_dpp v3, v3, v3 {d} bank_mask:0xf")
    I("v_sub_u32 v7, v3, v2")
    I(f"ds_write_b32 v5, v7 offset:{BASE}")
    I("v_readlane_b32 s64, v3, 63")
    def lookup(C_):
        for i in range(6):
            I(f"ds_read_b32 v{C_+i}, v{C_+i} offset:{BASE}")
    def scatter(R_, C_, K_, M_):
        for i in range(6):
            if i % 3 == 0:
                I(f"s_waitcnt lgkmcnt({3-i})")
            I(f"v_add3_u32 v{C_+i}, v{C_+i}, v{K_+i}, s85")
        for i in range(6):
            I(f"s_mov_b64 exec, s[{M_+2*i}:{M_+2*i+1}]")
            I(f"ds_write_b32 v{C_+i}, v{R_+4*(i//3)+i%3}")
        I("s_mov_b64 exec, -1")
    lookup(CA)
    I("s_add_u32 s65, s64, 31")
    I("s_lshr_b32 s66, s65, 9")
    I("s_bfe_u32 s67, s65, 0x40005")
    I("s_mul_i32 s68, s66, s3")
    I("s_min_u32 s69, s67, s3")
    I("s_add_u32 s68, s68, s69")
    I("s_lshl_b32 s68, s68, 5")
    I("s_cmp_lt_u32 s3, s67")
    I("s_addc_u32 s72, s66, 0")
    I("s_lshl_b32 s69, s72, 3")
    I("s_add_u32 s70, s68, s85")
    scatter(RA, CA, KA, MA)
    I(f"v_mul_u32_u24 v{VRA}, s69, v124")
    I(f"v_mul_u32_u24 v{VRA+1}, s69, v125")
    I(f"v_add_u32 v{VRA}, s70, v{VRA}")
    I(f"v_add3_u32 v{VRA+1}, v{VRA+1}, s70, v126")
    if OPT["pf"]:
        I(f"s_cmp_lt_u32 s3, {OPT['pf']}")
        I("s_cbranch_scc1 B_FLW")
    I("s_waitcnt vmcnt(0)")
    L("B_FLW")
    I(f"v_cmp_ne_u32 vcc, v{TG+3}, v35")
    I("s_cmp_lg_u32 s78, 0")
    I("s_cbranch_scc1 R_EXTRA")
    L("B_XDONE")
    I("s_cbranch_vccnz R_FLAGS")
    L("B_FDONE")
    I("s_waitcnt lgkmcnt(0)")
    I("s_barrier")
    stamp(12)
    def i_reads(batch, lo=0, hi=4):
        for i in range(lo, hi):
            I(f"ds_read_u16 v{IP[i]}, v{VRA} offset:{16*batch + 4*i}")
    def a_reads(batch):
        for d in range(4):
            I(f"s_mov_b64 exec, s[{56+2*d}:{57+2*d}]")
            I(f"ds_read_b32 v{A+d}, v{VRA+1} offset:{16*batch}")
        I("s_mov_b64 exec, -1")
    def gathers(x, lo, hi):
        for i in range(lo, hi):
            I(f"buffer_load_dwordx4 {vr(x+4*i,4)}, {vr(IP[i],2)}, {sr(S_TAB,4)}, 0 idxen offen {OPT['gsc'] if OPT['gsc'] != 'none' else ''}")
    i_reads(0)
    I("v_and_b32 v9, 0x3f0, v0")
    I(f"ds_read_b128 {vr(VSE,4)}, v9 offset:{STR}")
    I(f"ds_read_b32 v8, v1 offset:{FLAG}")
    if OPT["prio"]:
        I("s_setprio 3")
    I("s_waitcnt lgkmcnt(2)")
    gathers(XB, 0, 4)
    stamp(13)
    i_reads(1)
    I(f"ds_read_b128 {vr(EP,4)}, v9 offset:{EPI}")
    I(f"ds_read_b128 {vr(UR,4)}, v{VU}")
    I("s_waitcnt lgkmcnt(6)")
    I("v_readfirstlane_b32 s80, v8")
    I(f"v_lshl_add_u64 {vr(VSE,2)}, {vr(VSE,2)}, 0, {vr(LP,2)}")
    I(f"ds_read_b128 {vr(EA,4)}, v{VSE+1}")
    for q in range(4):
        I(f"v_readlane_b32 s{44+q}, v{VSE+2}, {16*q}")
    I(f"s_cmp_gt_u32 s64, {LIST_MAX}")
    I("s_cselect_b32 s81, 1, 0")
    I("s_or_b32 s80, s80, s81")
    if OPT["force_slow"]:
        I("s_branch K_SLOW")
    I("s_cbranch_scc1 K_SLOW")
    a_reads(0)
    for q in range(4):
        if OPT["cut"] & 8:
            I(f"s_mov_b32 s{44+q}, 0")
        I(f"s_bitset1_b32 s{44+q}, s72")
    I("s_or_b32 s82, s44, s45")
    I("s_or_b32 s83, s46, s47")
    I("s_or_b32 s82, s82, s83")
    I("s_bfm_b32 s83, s72, 0")
    I("s_lshr_b32 s83, s83, 4")
    I("s_mov_b32 s73, 0")
    I("s_waitcnt lgkmcnt(5)")
    gathers(XB + 16, 0, 4)
    i_reads(2)
    for k in range(3):
        I(f"v_add_u32 v{EP+k}, v{EP+k}, v{LC}")
    I(f"v_cmp_lt_i32 s[48:49], 2, v{EP+3}")
    I("s_cmp_eq_u32 s72, 0")
    I("s_cbranch_scc1 K_JOIN")
    def mfma(x):
        I(f"v_mfma_f32_32x32x16_bf16 {vr(Y,16)}, {vr(A,4)}, {vr(WCB,4)}, {vr(x,16)}")
    stamp(14)
    I("s_waitcnt vmcnt(4) lgkmcnt(4)")
    mfma(XB)
    stamp(15)
    a_reads(1)
    nth = len(str(OPT["prio"]).split("_")) if OPT["prio"] else 0
    if OPT["prio"]:
        I(f"s_setprio {nth}")
    I("s_nop 2")
    L("K_LOOP")
    if OPT["prio"]:
        I("s_sub_u32 s74, s72, s73")
        for k, t_ in enumerate(int(x) for x in str(OPT["prio"]).split("_")):
            I(f"s_cmp_gt_u32 s74, {t_}")
            I("s_cbranch_scc1 K_STEP0")
            I(f"s_setprio {nth-1-k}")
    for u in range(4):
        bb, hh = u >> 1, u & 1
        x = XB + 16 * bb + 8 * hh
        t = Y + 8 * hh
        L(f"K_STEP{u}")
        for i in range(8):
            I(f"v_exp_f32 v{t+i}, v{t+i}")
        for i in range(4):
            I(f"v_lshlrev_b64 {vr(x+2*i,2)}, 16, {vr(x+2*i,2)}")
        for i in range(4):
            I(f"v_pk_fma_f32 {vr(t+2*i,2)}, {vr(t+2*i,2)}, {vr(EA+2*(i&1),2)}, s[16:17] clamp")
        I(f"v_pk_mul_f32 {vr(P,2)}, {vr(t,2)}, {vr(t+4,2)}")
        I(f"v_pk_mul_f32 {vr(P+2,2)}, {vr(t+2,2)}, {vr(t+6,2)}")
        I(f"v_pk_mul_f32 {vr(Q,2)}, {vr(x,2)}, {vr(t+4,2)}")
        I(f"v_pk_mul_f32 {vr(Q+2,2)}, {vr(x+2,2)}, {vr(t+6,2)}")
        I(f"v_pk_add_f32 {vr(SS,2)}, {vr(t,2)}, {vr(t+4,2)}")
        I(f"v_pk_add_f32 {vr(SS+2,2)}, {vr(t+2,2)}, {vr(t+6,2)}")
        I(f"v_pk_fma_f32 {vr(Q,2)}, {vr(x+4,2)}, {vr(t,2)}, {vr(Q,2)}")
        I(f"v_pk_fma_f32 {vr(Q+2,2)}, {vr(x+6,2)}, {vr(t+2,2)}, {vr(Q+2,2)}")
        if OPT["sup"]:
            I(f"s_bitcmp1_b32 s83, {u}")
            I(f"s_cselect_b32 s{S_TAB+2}, s{S_TAB+2}, 0")
        if hh == 0:
            I("s_waitcnt lgkmcnt(0)")
            if not OPT["cut"] & 4:
                gathers(XB + 16 * bb, 0, 2)
            for i in range(4):
                I(f"v_rcp_f32 v{P+i}, v{P+i}")
        else:
            I("s_waitcnt vmcnt(2)")
            if not OPT["cut"] & 1:
                mfma(XB + 16 * (1 - bb))
            for i in range(4):
                I(f"v_rcp_f32 v{P+i}, v{P+i}")
            if not OPT["cut"] & 4:
                gathers(XB + 16 * bb, 2, 4)
        I(f"v_pk_fma_f32 {vr(NUM,2)}, {vr(Q,2)}, {vr(P,2)}, {vr(NUM,2)}")
        I(f"v_pk_fma_f32 {vr(DEN,2)}, {vr(SS,2)}, {vr(P,2)}, {vr(DEN,2)}")
        I(f"v_pk_fma_f32 {vr(NUM+2,2)}, {vr(Q+2,2)}, {vr(P+2,2)}, {vr(NUM+2,2)}")
        I(f"v_pk_fma_f32 {vr(DEN+2,2)}, {vr(SS+2,2)}, {vr(P+2,2)}, {vr(DEN+2,2)}")
        if hh == 1:
            if not OPT["cut"] & 4:
                i_reads(bb + 3)
            if not OPT["cut"] & 2:
                a_reads(bb + 2)
        I(f"s_bitcmp1_b32 s82, {u+1}")
        I(f"s_cbranch_scc1 K_FLUSH{u}")
        L(f"K_BACK{u}")
    I(f"v_lshl_add_u64 {vr(VRA,2)}, {vr(VRA,2)}, 0, s[20:21]")
    I("s_lshr_b32 s82, s82, 4")
    I("s_lshr_b32 s83, s83, 4")
    I("s_add_u32 s73, s73, 4")
    I("s_branch K_LOOP")
    for u in range(4):
        L(f"K_FLUSH{u}")
        I(f"s_add_u32 s74, s73, {u+1}")
        for h in range(2):
            I(f"s_bitcmp1_b32 s{44+2*h}, s74")
            I("s_cselect_b32 s75, 0xffff, 0")
            I(f"s_bitcmp1_b32 s{45+2*h}, s74")
            I("s_cselect_b32 s80, 0xffff0000, 0")
            I(f"s_or_b32 {'exec_hi' if h else 'exec_lo'}, s75, s80")
        I(f"ds_write2_b32 v{VSE}, v{DEN}, v{DEN+1} offset0:0 offset1:16")
        I(f"ds_write2_b32 v{VSE}, v{DEN+2}, v{DEN+3} offset0:32 offset1:48")
        I(f"ds_write2_b32 v{VSE}, v{NUM}, v{NUM+1} offset0:64 offset1:80")
        I(f"ds_write2_b32 v{VSE}, v{NUM+2}, v{NUM+3} offset0:96 offset1:112")
        I("s_cmp_eq_u32 s74, s72")
        I("s_cbranch_scc1 K_JOIN")
        I(f"v_lshl_add_u64 {vr(VSE,2)}, {vr(VSE,2)}, 0, s[24:25]")
        I(f"ds_read_b128 {vr(DEN,4)}, v{VOOB}")
        I(f"ds_read_b128 {vr(NUM,4)}, v{VOOB}")
        I(f"ds_read_b128 {vr(EA,4)}, v{VSE+1}")
        I("s_mov_b64 exec, -1")
        I("s_waitcnt lgkmcnt(0)")
        I(f"s_branch K_BACK{u}")

    L("K_JOIN")
    I("s_mov_b64 exec, -1")
    stamp(16)
    I("s_cmp_lt_u32 s3, 13")
    I("s_waitcnt lgkmcnt(0)")
    I("s_barrier")
    stamp(17)
    I("s_cbranch_scc0 K_FIN")
    for k in range(3):
        I(f"ds_read_b128 {vr(8+8*k,4)}, v{EP+k}")
    for k in range(3):
        I(f"ds_read_b128 {vr(12+8*k,4)}, v{EP+k} offset:256")
    I("s_cmp_lg_u64 s[48:49], 0")
    I("s_waitcnt lgkmcnt(3)")
    for k in (1, 2):
        for i in range(2):
            I(f"v_pk_add_f32 {vr(8+2*i,2)}, {vr(8+2*i,2)}, {vr(8+8*k+2*i,2)}")
    I("s_waitcnt lgkmcnt(0)")
    for k in (1, 2):
        for i in range(2, 4):
            I(f"v_pk_add_f32 {vr(8+2*i,2)}, {vr(8+2*i,2)}, {vr(8+8*k+2*i,2)}")
    I("s_cbranch_scc1 R_LONG")
    L("K_MATH")
    I("v_pk_add_f32 v[8:9], v[8:9], s[18:19]")
    I("v_pk_add_f32 v[10:11], v[10:11], s[18:19]")
    for c in range(4):
        I(f"v_rcp_f32 v{8+c}, v{8+c}")
    I("s_nop 0")
    I(f"v_pk_fma_f32 v[8:9], v[12:13], v[8:9], {vr(UR,2)}")
    I(f"v_pk_fma_f32 v[10:11], v[14:15], v[10:11], {vr(UR+2,2)}")
    for c in range(4):
        I(f"v_max_f32 v{8+c}, 0, v{8+c}")
    I(f"v_pk_add_f32 v[8:9], v[8:9], {vr(XR,2)}")
    I(f"v_pk_add_f32 v[10:11], v[10:11], {vr(XR+2,2)}")
    I("v_cvt_pk_bf16_f32 v12, v8, v9")
    I("v_cvt_pk_bf16_f32 v13, v10, v11")
    I(f"buffer_store_dwordx2 v[12:13], v{VOUT}, {sr(S_X,4)}, 0 offen")
    L("K_FIN")
    if OPT["spin"]:
        L("SPIN_W")
        I("s_memrealtime s[90:91]")
        I("s_waitcnt lgkmcnt(0)")
        I("s_sub_u32 s90, s90, s98")
        I(f"s_cmp_lt_u32 s90, {OPT['spin']}")
        I("s_cbranch_scc1 SPIN_W")
    stamp(18)
    stamp_out()
    L("K_END")
    I("s_endpgm")

    L("R_PUB2")
    I("s_mov_b64 exec, vcc")
    I(f"ds_read_b128 {vr(C0+8,4)}, v4 offset:{IMG+128}")
    I(f"ds_read_b128 {vr(C0+12,4)}, v4 offset:{IMG+B2+128}")
    I(f"v_add_u32 v8, {hex(LINE_STRIDE)}, v6")
    I(f"v_add_u32 v9, {hex(LINE_STRIDE)}, v7")
    I("s_waitcnt lgkmcnt(0)")
    tagit(C0 + 8)
    tagit(C0 + 12)
    I(f"global_store_dwordx4 v8, {vr(C0+8,4)}, {WS} sc1")
    I(f"global_store_dwordx4 v9, {vr(C0+12,4)}, {WS} sc1")
    I("s_branch A_PUBD")
    retry(RA, True, "B_P0")
    L("R_MORE")
    I("s_cmp_lg_u32 s79, 0")
    I("s_cbranch_scc1 R_REQ")
    for k in range(4):
        I(f"s_lshr_b32 s{74+k}, s{64+k}, 7")
        I(f"s_and_b32 s{74+k}, s{74+k}, 0x01010101")
        I(f"s_mul_i32 s{74+k}, s{74+k}, 0xff")
    I("s_mov_b64 s[68:69], s[74:75]")
    I("s_mov_b64 s[70:71], s[76:77]")
    I(f"v_add_u32 v2, {hex(LINE_STRIDE)}, v2")
    I(f"v_add_u32 v3, {hex(LINE_STRIDE)}, v3")
    reload(RB, "B_N1")
    poll(RB, False, "B_P1")
    ranks(RB, CB, KB, MB)
    I("s_or_b32 s78, s78, 1")
    more_test()
    I("s_cbranch_scc0 B_RDONE")
    I("s_mov_b32 s79, 1")
    I("s_branch R_REQ")
    retry(RB, False, "B_P1")
    L("R_TIMEOUT")
    I("s_mov_b32 s79, 3")
    for k in range(6):
        I(f"s_mov_b64 s[{MA+2*k}:{MA+2*k+1}], 0")
    I(f"v_mov_b32 v35, v{TG+3}")
    L("R_REQ")
    I("v_mov_b32 v6, s79")
    I(f"ds_or_b32 v1, v6 offset:{FLAG}")
    I("s_branch B_RDONE")
    def bump():
        I(f"v_mov_b32 v48, {hex(CTL_OFF)}")
        I("v_mov_b32 v50, 0x1000000")
        I("v_mov_b32 v51, 0")
        I("s_mov_b64 exec, 1")
        I(f"global_atomic_add_x2 v48, v[50:51], {WS} offset:8 sc1")
        I("s_mov_b64 exec, -1")
    L("R_EXTRA")
    I("s_bitcmp1_b32 s78, 0")
    I("s_cbranch_scc0 R_X2")
    I("s_waitcnt lgkmcnt(0)")
    lookup(CB)
    scatter(RB, CB, KB, MB)
    L("R_X2")
    I("s_bitcmp1_b32 s78, 1")
    I("s_cbranch_scc0 B_XDONE")
    I("s_cmp_eq_u32 s3, 1")
    I("s_cbranch_scc1 R_PAD")
    I("s_add_u32 s71, s66, 1")
    I("v_cvt_f32_u32 v48, s71")
    I("v_cvt_f32_u32 v49, s66")
    I("s_lshl_b32 s73, s67, 2")
    I("s_mul_i32 s71, s71, s73")
    I("v_rcp_f32 v48, v48")
    I("v_rcp_f32 v49, v49")
    I("v_cvt_f32_u32 v50, s71")
    I("v_cvt_f32_u32 v51, s73")
    I("v_fma_f32 v50, -v50, v49, v51")
    I(f"v_mov_b32 v51, {hex(f32(0.125))}")
    def stream_of(dst, src, half):
        I(f"v_cvt_f32_u32 v{dst}, v{src}")
        I(f"v_fma_f32 v{dst}, v{dst}, v51, {half}")
        I(f"v_mul_f32 v52, v{dst}, v48")
        I(f"v_fma_f32 v{dst}, v{dst}, v49, v50")
        I(f"v_max_f32 v{dst}, v{dst}, v52")
        I(f"v_cvt_u32_f32 v{dst}, v{dst}")
    stream_of(53, 3, "-0.5")
    I("s_cmp_eq_u32 s3, 2")
    I("s_cbranch_scc1 R_EPI")
    I("s_cmp_eq_u32 s3, 3")
    I("s_cbranch_scc1 R_FIRST")
    I("v_min_u32 v55, s73, v53")
    I("v_mad_u32_u24 v55, v53, s66, v55")
    I("v_lshrrev_b32 v56, 3, v3")
    I("v_sub_u32 v55, v56, v55")
    I("v_lshlrev_b32 v55, v55, 1")
    I("v_lshlrev_b32 v56, 4, v53")
    I("s_mov_b64 exec, s[82:83]")
    I(f"ds_or_b32 v56, v55 offset:{STR + 8}")
    I("s_mov_b64 exec, -1")
    I("s_branch B_XDONE")
    L("R_FIRST")
    I("v_mov_b32 v54, -1")
    I("v_cndmask_b32 v53, 63, v53, s[82:83]")
    I(f"v_mul_u32_u24 v59, {EAU_STRIDE//4}, v5")
    I(f"v_add_u32 v59, {EAU_OFF}, v59")
    I("v_mov_b32_dpp v54, v53 wave_shr:1 row_mask:0xf bank_mask:0xf")
    I("v_lshl_add_u32 v58, v54, 2, v5")
    I(f"v_mul_i32_i24 v58, {SLOT_STRIDE//4}, v58")
    I(f"v_add_u32 v58, {SLOT_OFF}, v58")
    I("v_lshlrev_b32 v54, 4, v54")
    I("v_lshlrev_b32 v53, 4, v53")
    L("R_FIRST1")
    I("v_cmp_lt_i32 s[74:75], v54, v53")
    I("s_mov_b64 exec, s[74:75]")
    I("s_cbranch_execz R_FIRST2")
    I("v_add_u32 v54, 16, v54")
    I(f"v_add_u32 v58, {SLOT_STRIDE}, v58")
    I(f"ds_write_b64 v54, v[58:59] offset:{STR}")
    I("s_branch R_FIRST1")
    L("R_FIRST2")
    I("s_mov_b64 exec, -1")
    I("s_branch B_XDONE")
    L("R_EPI")
    stream_of(54, 7, "0.5")
    I("v_sub_u32 v59, v53, v54")
    I("v_lshl_add_u32 v56, v54, 2, v5")
    I(f"v_mul_u32_u24 v56, {SLOT_STRIDE//4}, v56")
    I(f"v_add_u32 v56, {SLOT_OFF}, v56")
    I("v_cmp_lt_i32 s[74:75], 0, v59")
    I("v_cmp_lt_i32 s[76:77], 1, v59")
    I(f"v_add_u32 v57, {SLOT_STRIDE}, v56")
    I(f"v_add_u32 v58, {2*SLOT_STRIDE}, v56")
    I(f"v_cndmask_b32 v57, v{VOOB}, v57, s[74:75]")
    I(f"v_cndmask_b32 v58, v{VOOB}, v58, s[76:77]")
    I("v_lshlrev_b32 v55, 2, v5")
    I(f"ds_write_b128 v55, v[56:59] offset:{EPI}")
    I("s_branch B_XDONE")
    L("R_PAD")
    I(f"v_mov_b32 v52, {N}")
    I(f"v_add_u32 v53, {LIST_OFF - 8}, v3")
    I("v_cmp_lt_u32 s[74:75], v6, v2")
    I("s_mov_b64 exec, s[74:75]")
    I("ds_write_b32 v53, v52 offset:4")
    I("v_cmp_eq_u32 s[74:75], 0, v6")
    I("s_mov_b64 exec, s[74:75]")
    I("ds_write_b32 v53, v52")
    I("s_mov_b64 exec, 0x3f")
    I("s_add_u32 s71, s64, s85")
    I("v_add_u32 v53, s71, v5")
    I("ds_write_b32 v53, v52")
    I("s_mov_b64 exec, -1")
    I("s_cmp_eq_u32 s2, 0")
    I("s_cbranch_scc0 B_XDONE")
    bump()
    I("s_branch B_XDONE")
    L("R_FLAGS")
    I("s_add_u32 s43, s43, 1")
    I(f"s_cmp_gt_u32 s43, {POLL_LIMIT}")
    I("s_cbranch_scc1 R_FLAGT")
    I("s_sleep 2")
    I("s_mov_b64 exec, vcc")
    I(f"global_load_dword v35, v34, {WS} sc1")
    I("s_waitcnt vmcnt(0)")
    I(f"v_cmp_ne_u32 vcc, v{TG+3}, v35")
    I("s_mov_b64 exec, -1")
    I("s_branch B_XDONE")
    L("R_FLAGT")
    I("v_mov_b32 v52, 3")
    I(f"ds_or_b32 v1, v52 offset:{FLAG}")
    I("s_branch B_FDONE")
    L("R_LONG")
    I("s_mov_b32 s64, 2")
    I("s_mov_b64 vcc, s[48:49]")
    L("R_LONG1")
    I("s_mov_b64 exec, vcc")
    I(f"v_add_u32 v{EP+2}, {SLOT_STRIDE}, v{EP+2}")
    I(f"ds_read_b128 v[16:19], v{EP+2}")
    I(f"ds_read_b128 v[20:23], v{EP+2} offset:256")
    I("s_add_u32 s64, s64, 1")
    I("s_waitcnt lgkmcnt(0)")
    for i in range(4):
        I(f"v_pk_add_f32 {vr(8+2*i,2)}, {vr(8+2*i,2)}, {vr(16+2*i,2)}")
    I(f"v_cmp_lt_i32 vcc, s64, v{EP+3}")
    I("s_cbranch_vccnz R_LONG1")
    I("s_mov_b64 exec, -1")
    I("s_branch K_MATH")

    L("K_SLOW")
    I("s_load_dwordx8 s[4:11], s[0:1], 0")
    I("s_load_dwordx2 s[12:13], s[0:1], 40")
    I("s_load_dwordx2 s[14:15], s[0:1], 64")
    I("s_setprio 0")
    I("s_waitcnt vmcnt(0) lgkmcnt(0)")
    I("s_cmp_eq_u32 s3, 15")
    I("s_cselect_b32 s71, s80, 0")
    I("s_and_b32 s71, s71, 2")
    I("s_cbranch_scc0 K_SL0")
    bump()
    I("s_waitcnt vmcnt(0)")
    L("K_SL0")
    WB2, WV2 = 40, 72
    I("v_lshrrev_b32 v6, 1, v5")
    I("v_add_u32 v7, 4096, v6")
    for (w, p_) in ((WB2, 12), (WV2, 14)):
        for hf in range(2):
            for k in range(16):
                I(f"global_load_ushort v{w + 16*hf + k}, v{6 + hf}, s[{p_}:{p_+1}] offset:{2*k*128}")
                I(f"global_load_ushort v{8 + k}, v{6 + hf}, s[{p_}:{p_+1}] offset:{(2*k+1)*128}")
            I("s_waitcnt vmcnt(0)")
            for k in range(16):
                I(f"v_lshl_or_b32 v{w + 16*hf + k}, v{8 + k}, 16, v{w + 16*hf + k}")
    for i in range(4):
        I(f"v_mov_b32 v{28+i}, 0")
    I("v_lshlrev_b32 v8, 4, v0")
    for k in range(4):
        I(f"ds_write_b128 v8, v[28:31] offset:{SLOT_OFF + k*16384}")
    I(f"ds_read_u16 v18, v6 offset:{WC_OFF}")
    I(f"s_mov_b32 s18, {hex(f32(1e-6))}")
    I("s_mov_b32 s19, s18")
    I(f"s_mov_b32 s16, {hex(f32(-LOG2E))}")
    I(f"v_lshl_add_u32 v17, v124, 2, v{LC}")
    I("v_lshlrev_b32 v10, 1, v5")
    I("s_waitcnt lgkmcnt(0)")
    I("v_lshlrev_b32 v18, 16, v18")
    I("s_barrier")
    I("v_lshlrev_b32 v8, 2, v0")
    I("v_lshlrev_b32 v9, 1, v0")
    I("s_lshl_b32 s70, s3, 6")
    L("K_SLOOP")
    I(f"global_load_dword v11, v8, {sr(P_DST,2)}")
    I(f"global_load_dword v12, v8, {sr(P_SRC,2)}")
    I(f"global_load_ushort v13, v9, {sr(P_E,2)}")
    I("s_waitcnt vmcnt(0)")
    I("v_and_b32 v14, 0xff, v11")
    I("v_cmp_eq_u32 s[74:75], s2, v14")
    L("K_SIN")
    I("s_cmp_eq_u64 s[74:75], 0")
    I("s_cbranch_scc1 K_SNEXT")
    I("s_ff1_i32_b64 s73, s[74:75]")
    I("s_bitset0_b64 s[74:75], s73")
    I("v_readlane_b32 s79, v11, s73")
    I("v_readlane_b32 s80, v12, s73")
    I("v_readlane_b32 s81, v13, s73")
    I("s_lshr_b32 s79, s79, 8")
    I(f"s_mul_i32 s76, s79, {EAU_STRIDE}")
    I(f"s_add_u32 s76, s76, {EAU_OFF + 512}")
    I(f"s_mul_i32 s79, s79, {ACC_STRIDE}")
    I("s_lshl_b32 s80, s80, 7")
    I("s_add_u32 s78, s80, 64")
    I(f"s_load_dwordx16 s[36:51], {sr(P_X,2)}, s80")
    I(f"s_load_dwordx16 s[52:67], {sr(P_X,2)}, s78")
    I("s_lshl_b32 s81, s81, 16")
    I("v_add_u32 v15, s76, v17")
    I("v_add_u32 v16, s79, v10")
    I("ds_read_b32 v22, v15")
    I("v_mul_f32 v20, s81, v18")
    I("v_mov_b32 v21, 0")
    I("s_waitcnt lgkmcnt(0)")
    for k in range(32):
        I(f"v_dot2_f32_bf16 v20, s{36+k}, v{WB2+k}, v20")
        I(f"v_dot2_f32_bf16 v21, s{36+k}, v{WV2+k}, v21")
    I("s_nop 2")
    I("v_fma_f32 v20, v20, s16, v22")
    I("v_exp_f32 v20, v20")
    I("s_nop 0")
    I("v_add_f32 v20, 1.0, v20")
    I("v_rcp_f32 v20, v20")
    I("s_nop 0")
    I("v_mul_f32 v21, v21, v20")
    I("v_cvt_f64_f32 v[24:25], v20")
    I("v_cvt_f64_f32 v[26:27], v21")
    I(f"ds_add_f64 v16, v[24:25] offset:{SLOT_OFF}")
    I(f"ds_add_f64 v16, v[26:27] offset:{SLOT_OFF + 512}")
    I("s_branch K_SIN")
    L("K_SNEXT")
    I("s_add_u32 s70, s70, 1024")
    I("v_add_u32 v8, 4096, v8")
    I("v_add_u32 v9, 2048, v9")
    I(f"s_cmp_lt_u32 s70, {E}")
    I("s_cbranch_scc1 K_SLOOP")
    I("v_lshrrev_b32 v6, 4, v0")
    I(f"v_mul_u32_u24 v6, {ACC_STRIDE}, v6")
    I(f"v_lshl_add_u32 v6, v{LC}, 1, v6")
    I("s_waitcnt lgkmcnt(0)")
    I("s_barrier")
    I("s_cmp_lt_u32 s3, 13")
    I("s_cbranch_scc0 K_FIN")
    I(f"ds_read_b128 v[16:19], v6 offset:{SLOT_OFF}")
    I(f"ds_read_b128 v[20:23], v6 offset:{SLOT_OFF+16}")
    I(f"ds_read_b128 v[24:27], v6 offset:{SLOT_OFF+512}")
    I(f"ds_read_b128 v[28:31], v6 offset:{SLOT_OFF+528}")
    I("s_waitcnt lgkmcnt(0)")
    for c in range(8):
        I(f"v_cvt_f32_f64 v{8+c}, {vr(16+2*c,2)}")
    I("s_branch K_MATH")
    L("SLOW_END")

hdr = open("standalone__edge_featured_mpnn_gatedgcn__graph.s.ref").read().split("\n")
for line in hdr:
    if line.startswith("; Override"):
        break
    o(line)
o(f"; @launch kernel={KNAME} grid=(256,1,1) block=(1024,1,1) lds={LDS_TOTAL}")
o('.amdgcn_target "amdgcn-amd-amdhsa--gfx950"')
o(".text")
gen()
o('.section .rodata,"a"')
o(".p2align 6")
o(f".amdhsa_kernel {KNAME}")
o("  .amdhsa_next_free_vgpr 128")
o("  .amdhsa_next_free_sgpr 102")
o("  .amdhsa_accum_offset 128")
o("  .amdhsa_group_segment_fixed_size 0")
o("  .amdhsa_kernarg_size 96")
o("  .amdhsa_user_sgpr_count 2")
o("  .amdhsa_user_sgpr_kernarg_segment_ptr 1")
o("  .amdhsa_system_sgpr_workgroup_id_x 1")
o(".end_amdhsa_kernel")
open(sys.argv[1], "w").write("\n".join(out) + "\n")
```

```python
import sys, struct

OPT = dict(stamp=0, sts="2_3_4_5_6_7", force_slow=0, prio="12_4", spin=0, spinat=18, hack=0, sleep=2, delay=0,
           codepf=1, gprio=1, pf=4, pre=3, cfirst=1, sup=1, cprio=1, nog=0, gsc="sc1", cut=0)
for a in sys.argv[2:]:
    k, v = a.split("=")
    OPT[k] = int(v) if v.lstrip("-").isdigit() else v

KNAME = "standalone__edge_featured_mpnn_gatedgcn__graph_kernel"
N = 12500
E = 800000
CHUNK = 3136
TAB_ROWS = N + 1
CTL_OFF = 0x380000
FLG_OFF = 0x390000
CELL_OFF = 0x400000
BIN_STRIDE = 32768 + 256
LINE_STRIDE = 0x900000
STAMP_OFF = 0x4000000
LOG2E = 1.4426950408889634
KEXP = 62
POLL_LIMIT = 100000

X_OFF = 0
WC_OFF = 8192
C1_OFF = 8448
C2_OFF = 9472
FLAG = C2_OFF + 256
SYNC = C2_OFF + 260
TAGS = C2_OFF + 272
BASE = C2_OFF + 512
STR = C2_OFF + 1024
EPI = C2_OFF + 2048
IMG = C2_OFF + 3072
IMG_STRIDE = 272
EAU_OFF = IMG + 256 * IMG_STRIDE
EAU_STRIDE = 800
W_OFF = EAU_OFF + 52 * EAU_STRIDE
LDS_TOTAL = W_OFF + 32768
LIST_OFF = W_OFF
LIST_MAX = 31 * 16 * 32
SLOT_OFF = IMG
SLOT_STRIDE = 576
ACC_STRIDE = 1056
OOB = 0x30000
assert W_OFF % 128 == 0 and 117 * SLOT_STRIDE <= 256 * IMG_STRIDE and LDS_TOTAL <= 163840
INC = 0x5556

def f32(x):
    return struct.unpack("<I", struct.pack("<f", x))[0]

out = []
def o(s=""):
    out.append(s)
def I(s):
    out.append("    " + s)
def L(s):
    out.append(s + ":")
def vr(a, n=1):
    return f"v{a}" if n == 1 else f"v[{a}:{a+n-1}]"
def sr(a, n=1):
    return f"s{a}" if n == 1 else f"s[{a}:{a+n-1}]"
def sdwa(sel1):
    return f"dst_sel:DWORD dst_unused:UNUSED_PAD src0_sel:DWORD src1_sel:{sel1}"

P_X, P_E, P_SRC, P_DST, P_WA, P_WB, P_WC, P_WU, P_WV, P_OUT, P_DBG, P_WS = 4, 6, 8, 10, 12, 14, 16, 18, 20, 22, 24, 26
S_TAB, S_X = 28, 32
WS = sr(P_WS, 2)

STS = [int(x) for x in str(OPT["sts"]).split("_")] if OPT["stamp"] else []
def stamp(i):
    if OPT["spin"] and OPT["spinat"] == i:
        lab = f"SPIN_{len(out)}"
        I("s_cselect_b32 s92, 1, 0")
        L(lab)
        I("s_memrealtime s[90:91]")
        I("s_waitcnt lgkmcnt(0)")
        I("s_sub_u32 s90, s90, s98")
        I(f"s_cmp_lt_u32 s90, {OPT['spin']}")
        I(f"s_cbranch_scc1 {lab}")
        I("s_cmp_lg_u32 s92, 0")
    if not OPT["stamp"]:
        return
    if i == 0:
        I("s_memrealtime s[86:87]")
    elif i == 1:
        I("s_memtime s[88:89]")
    elif i in STS:
        k = 90 + 2 * STS.index(i)
        I(f"s_memtime s[{k}:{k+1}]")
def stamp_out():
    if not OPT["stamp"]:
        return
    I("s_mov_b64 exec, -1")
    I("s_waitcnt vmcnt(0) lgkmcnt(0)")
    I("s_memtime s[80:81]")
    I("s_memrealtime s[82:83]")
    I("s_waitcnt lgkmcnt(0)")
    I("v_writelane_b32 v127, s80, 30")
    I("v_writelane_b32 v127, s82, 31")
    I("v_writelane_b32 v127, s86, 0")
    I("v_writelane_b32 v127, s88, 1")
    for i in list(range(2, 19)) + list(range(20, 30)):
        I(f"v_writelane_b32 v127, s{90 + 2*STS.index(i) if i in STS else 88}, {i}")
    I("s_lshl_b32 s84, s2, 4")
    I("s_add_u32 s84, s84, s3")
    I("s_lshl_b32 s84, s84, 7")
    I(f"s_add_u32 s84, s84, {hex(STAMP_OFF)}")
    I("v_and_b32 v1, 63, v0")
    I("v_lshl_add_u32 v1, v1, 2, s84")
    I("s_mov_b64 exec, 0xffffffff")
    I(f"global_store_dword v1, v127, {WS}")

def srd(d, p, size):
    I(f"s_mov_b64 {sr(d,2)}, {sr(p,2)}")
    I(f"s_mov_b32 s{d+2}, {hex(size)}")
    I(f"s_mov_b32 s{d+3}, 0x20000")

D, S, EE = 16, 20, 24
AP = 104
TG = 120
B2 = 128 * IMG_STRIDE

def edge_loads(lo=0, hi=3):
    ins = [f"global_load_dwordx4 {vr(D,4)}, v10, {sr(P_DST,2)}",
           f"global_load_dwordx4 {vr(S,4)}, v10, {sr(P_SRC,2)}",
           f"global_load_dwordx2 {vr(EE,2)}, v11, {sr(P_E,2)}"]
    for x in ins[lo:hi]:
        I(x)

def binning(waits):
    B4, RK, PA = 28, 32, 36
    I(f"v_mov_b32 v14, {INC}")
    I(f"s_mov_b32 s68, {47*INC}")
    I("s_mov_b32 s69, 0x05040100")
    I("s_mov_b32 s70, 0x07060100")
    if waits:
        I("s_waitcnt vmcnt(2)")
        stamp(3)
    for i in range(4):
        I(f"v_lshlrev_b32_sdwa v{B4+i}, 2, v{D+i} {sdwa('BYTE_0')}")
        I(f"ds_add_rtn_u32 v{RK+i}, v{B4+i}, v14 offset:{C1_OFF}")
    for i in range(4):
        I(f"v_mul_u32_u24 v{B4+i}, {IMG_STRIDE//4}, v{B4+i}")
        I(f"v_lshrrev_b32 v{D+i}, 8, v{D+i}")
    for i in range(4):
        I("s_waitcnt lgkmcnt(3)")
        I(f"v_min_u32 v{RK+i}, s68, v{RK+i}")
        I(f"v_lshrrev_b32 v{RK+i}, 14, v{RK+i}")
        I(f"v_lshl_add_u32 v{PA+i}, v{RK+i}, 2, v{B4+i}")
        I(f"v_and_b32 v{RK+i}, 3, v{RK+i}")
        I(f"v_or3_b32 v{RK+i}, v{PA+i}, 12, v{RK+i}")
        I(f"ds_write_b8 v{RK+i}, v{D+i} offset:{IMG}")
    if waits:
        I("s_waitcnt vmcnt(0)")
        stamp(4)
    for i in range(4):
        if OPT["hack"]:
            I(f"v_and_b32 v{S+i}, {OPT['hack']}, v{S+i}")
        I(f"v_perm_b32 v{S+i}, v{EE+(i>>1)}, v{S+i}, s{69+(i&1)}")
        I(f"ds_write_b32 v{PA+i}, v{S+i} offset:{IMG}")

def copy_consts():
    I("s_lshr_b32 s64, s2, 7")
    I("s_lshl_b32 s64, s64, 14")
    I(f"s_add_u32 s64, s64, {hex(CELL_OFF)}")
    I(f"v_mul_u32_u24 v6, {BIN_STRIDE//4}, v5")
    I("v_lshl_add_u32 v6, v0, 4, v6")
    I("v_add_u32 v6, s64, v6")
    I(f"v_add_u32 v7, {128*BIN_STRIDE}, v6")
    I(f"s_mul_i32 s64, s2, {BIN_STRIDE}")
    I(f"s_add_u32 s64, s64, {hex(CELL_OFF)}")
    I("v_lshl_add_u32 v2, v0, 4, s64")
    I("v_add_u32 v3, 0x4000, v2")
    I("s_mov_b32 s36, 0x0f0f0f0f")
    I("s_mov_b32 s37, s36")
    I(f"s_mov_b32 s38, {12*INC}")
    I(f"s_mov_b32 s39, {24*INC}")
    I("s_mov_b32 s40, 0xc000")
    I("s_mov_b32 s41, 0xffc0c0c0")
    I(f"s_mov_b32 s42, {49 << 16}")
    I("s_mov_b32 s43, 0")
    I("v_mov_b32 v1, 0")
    I(f"s_mov_b32 s{S_TAB}, s{P_WS}")
    I(f"s_or_b32 s{S_TAB+1}, s{P_WS+1}, 0x1000000")
    I(f"s_mov_b32 s{S_TAB+2}, {0 if OPT['nog'] else TAB_ROWS}")
    I(f"s_mov_b32 s{S_TAB+3}, 0x20000")

def lds_init():
    I("v_add_u32 v5, s2, v3")
    I("v_and_b32 v5, 127, v5")
    I(f"v_mul_u32_u24 v4, {IMG_STRIDE}, v5")
    I("v_lshl_add_u32 v4, v2, 4, v4")
    I("v_lshlrev_b32 v5, 2, v5")
    I("v_mov_b32 v12, 0")
    I("v_mov_b32 v13, 0x3f3f3f")
    I(f"ds_write2st64_b32 v5, v12, v12 offset0:{C1_OFF//256} offset1:{C1_OFF//256+2}")
    for r in range(2):
        for b in range(2):
            I(f"ds_write_b32 v4, v13 offset:{IMG + b*B2 + r*128 + 12}")
def edge_addr():
    I(f"s_mul_i32 s64, s2, {CHUNK*4}")
    I("v_lshl_add_u32 v10, v0, 4, s64")
    I("v_lshrrev_b32 v11, 1, v10")

def gen():
    o(".p2align 8")
    o(f".globl {KNAME}")
    o(f".type {KNAME},@function")
    L(KNAME)
    I("s_cmp_ge_u32 s2, 256")
    I("s_cbranch_scc1 K_END")
    stamp(0); stamp(1)
    I("s_load_dwordx16 s[4:19], s[0:1], 0")
    I("s_load_dwordx8 s[20:27], s[0:1], 64")
    if OPT["spin"]:
        I("s_memrealtime s[98:99]")
    I("v_lshrrev_b32 v1, 6, v0")
    I("v_and_b32 v2, 7, v0")
    I("v_readfirstlane_b32 s3, v1")
    I("v_lshrrev_b32 v3, 3, v0")
    I("s_mov_b32 s79, 0")
    I("s_cmp_ge_u32 s3, 12")
    I("s_cbranch_scc1 G_ENTRY")

    I("s_cmp_ge_u32 s3, 2")
    I("s_cbranch_scc1 A_NOPF")
    if OPT["codepf"]:
        I("s_getpc_b64 s[64:65]")
        L("A_PC")
        I("v_lshlrev_b32 v8, 7, v0")
        I("v_min_u32 v8, K_SLOW-A_PC-4, v8")
        I("global_load_dword v27, v8, s[64:65]")
    I("v_lshlrev_b32 v8, 4, v0")
    I("v_mov_b64 v[12:13], 0")
    I("v_mov_b64 v[14:15], 0")
    I(f"ds_write_b128 v8, v[12:15] offset:{C2_OFF}")
    L("A_NOPF")
    lds_init()
    edge_addr()
    I(f"v_cmp_gt_u32 vcc, {E*4}, v10")
    I("s_waitcnt lgkmcnt(0)")
    stamp(24)
    if OPT["cfirst"]:
        copy_consts()
    I("s_mov_b64 exec, vcc")
    I("s_cbranch_execz A_NOE")
    edge_loads(0, OPT["pre"])
    I("s_barrier")
    stamp(2)
    edge_loads(OPT["pre"], 3)
    if not OPT["cfirst"]:
        I("s_mov_b64 exec, -1")
        copy_consts()
        I("s_mov_b64 exec, vcc")
    binning(True)
    I("s_mov_b64 exec, -1")
    I("s_branch A_JOIN")
    L("A_NOE")
    I("s_barrier")
    I("s_mov_b64 exec, -1")
    if not OPT["cfirst"]:
        copy_consts()
    I("s_branch A_JOIN")

    XA, FA, FB, ACC1, ACC2 = 28, 36, 68, 104, 36
    L("G_ENTRY")
    if OPT["gprio"]:
        I("s_setprio 3")
    I("v_and_b32 v7, 7, v3")
    I("s_and_b32 s64, s3, 1")
    I("s_lshl_b32 s64, s64, 2")
    I("v_and_b32 v8, 2, v7")
    I("v_xor_b32 v8, v8, v2")
    I("v_xor_b32 v8, s64, v8")
    I("v_lshlrev_b32 v8, 4, v8")
    I("v_lshl_add_u32 v8, v7, 7, v8")
    I("s_and_b32 s65, s3, 3")
    I("s_lshl_b32 s65, s65, 11")
    I("v_add_u32 v8, s65, v8")
    I(f"s_add_u32 s65, s65, {W_OFF}")
    I("s_add_u32 s66, s3, 3")
    I("s_and_b32 s66, s66, 3")
    I("v_xor_b32 v9, v2, v7")
    I("v_lshlrev_b32 v9, 4, v9")
    I("v_lshl_add_u32 v9, v7, 15, v9")
    I("s_lshl_b32 s67, s66, 19")
    I("s_lshl_b32 s68, s2, 7")
    I("s_add_u32 s67, s67, s68")
    I("v_add_u32 v9, s67, v9")
    I("v_add_u32 v15, 0x40000, v9")
    I("s_lshl_b32 s67, s66, 11")
    I(f"s_mov_b32 s{S_X+2}, {N*128}")
    I(f"s_mov_b32 s{S_X+3}, 0x20000")
    I("s_mov_b32 m0, s67")
    I("s_waitcnt lgkmcnt(0)")
    stamp(24)
    I(f"s_mov_b64 {sr(S_X,2)}, {sr(P_X,2)}")
    I(f"buffer_load_dwordx4 v9, {sr(S_X,4)}, 0 offen lds")
    I("s_add_u32 m0, s67, 1024")
    I("s_nop 0")
    I(f"buffer_load_dwordx4 v15, {sr(S_X,4)}, 0 offen lds")
    def w_dma(p, off, va="v8", sd="s65"):
        I(f"s_add_u32 m0, {sd}, {off}")
        I("s_nop 0")
        I(f"global_load_lds_dwordx4 {va}, {sr(p,2)}")
        I(f"global_load_lds_dwordx4 {va}, {sr(p,2)} offset:1024")
    w_dma(P_WB, 0)
    w_dma(P_WV, 8192)
    lds_init()
    edge_addr()
    I("s_cmp_eq_u32 s3, 12")
    I("s_cselect_b32 s74, 0xffff, 0")
    I("s_cmp_eq_u32 s2, 255")
    I("s_cselect_b32 s74, 0, s74")
    I("s_mov_b32 s75, 0")
    I("s_mov_b64 exec, s[74:75]")
    I("s_cbranch_execz G_NOE")
    edge_loads()
    L("G_NOE")
    I("s_mov_b64 exec, -1")
    I("v_mov_b32 v126, v8")
    I("v_lshlrev_b32 v100, 4, v2")
    I("s_mov_b32 s78, s65")
    I(f"s_mov_b64 {sr(S_X,2)}, {WS}")
    I(f"s_mov_b32 s{S_X+2}, {TAB_ROWS*256}")
    copy_consts()
    I("v_and_b32 v124, 15, v0")
    I("v_bfe_u32 v125, v0, 4, 2")
    I("v_and_b32 v8, 7, v124")
    I("v_lshlrev_b32 v9, 1, v125")
    I("v_xor_b32 v8, v8, v9")
    I("v_lshlrev_b32 v8, 4, v8")
    I("v_lshl_add_u32 v8, v124, 7, v8")
    I("v_add_u32 v8, s67, v8")
    I("v_xor_b32 v9, 16, v8")
    I("v_lshrrev_b32 v10, 2, v124")
    I("v_and_b32 v11, 2, v10")
    I("v_bfe_u32 v12, v0, 1, 1")
    I("v_or_b32 v11, v11, v12")
    I("v_and_b32 v12, 1, v125")
    I("v_lshl_or_b32 v11, v12, 2, v11")
    I("v_lshlrev_b32 v11, 4, v11")
    I("v_and_b32 v12, 1, v0")
    I("v_lshl_or_b32 v11, v12, 3, v11")
    I("v_lshl_add_u32 v10, v125, 4, v10")
    I("v_lshl_or_b32 v11, v10, 7, v11")
    I(f"v_add_u32 v12, {W_OFF}, v11")
    for T in range(1, 4):
        I(f"v_xor_b32 v{12+T}, {T << 5}, v12")
    I(f"s_mov_b32 s76, {hex(f32(-LOG2E))}")
    I("s_mov_b32 s77, 0x07060302")
    I(f"v_mov_b32 v26, {hex(f32(2.0**-70))}")
    I("s_lshl_b32 s64, s66, 20")
    I("s_lshl_b32 s65, s2, 8")
    I("s_add_u32 s64, s64, s65")
    I("v_lshlrev_b32 v27, 18, v125")
    I("v_lshl_add_u32 v27, v124, 4, v27")
    I("v_add_u32 v27, s64, v27")
    I("v_mov_b32 v10, 1")
    def g_sync(target, lab, arrive=True):
        if arrive:
            I("s_mov_b64 exec, 1")
            I(f"ds_add_u32 v1, v10 offset:{SYNC}")
            I("s_mov_b64 exec, -1")
        L(lab)
        I(f"ds_read_b32 v11, v1 offset:{SYNC}")
        I("s_waitcnt lgkmcnt(0)")
        I("v_readfirstlane_b32 s64, v11")
        I(f"s_cmp_lt_u32 s64, {target}")
        I(f"s_cbranch_scc1 {lab}")
    def frag_reads(F, moff):
        for T in range(4):
            for s in range(2):
                for h in range(2):
                    I(f"ds_read_b64_tr_b16 {vr(F + 8*T + 4*s + 2*h, 2)}, v{12+T} offset:{moff + (8*s+4*h)*128}")
    def mfmas(F, acc, swap, later):
        for T in range(4):
            I(f"s_waitcnt lgkmcnt({min(15, later + 4*(3-T))})")
            for s in range(2):
                a, b = vr(XA + 4*s, 4), vr(F + 8*T + 4*s, 4)
                if swap:
                    a, b = b, a
                c = "0" if s == 0 else vr(acc + 4*T, 4)
                I(f"v_mfma_f32_16x16x32_bf16 {vr(acc+4*T,4)}, {a}, {b}, {c}")
    I("s_waitcnt lgkmcnt(0)")
    I("s_barrier")
    stamp(2)
    I("s_cmp_eq_u64 s[74:75], 0")
    I("s_cbranch_scc1 G_W0")
    I("s_waitcnt vmcnt(3)")
    I("s_branch G_W1")
    L("G_W0")
    I("s_waitcnt vmcnt(0)")
    L("G_W1")
    stamp(3)
    g_sync(4, "G_S1")
    stamp(20)
    I(f"ds_read_b128 {vr(XA,4)}, v8")
    I(f"ds_read_b128 {vr(XA+4,4)}, v9")
    frag_reads(FA, 0)
    frag_reads(FB, 8192)
    stamp(21)
    w_dma(P_WA, 16384, "v126", "s78")
    w_dma(P_WU, 24576, "v126", "s78")
    I("s_cmp_eq_u32 s3, 13")
    I("s_cbranch_scc0 G_NOWC")
    I(f"s_mov_b32 m0, {WC_OFF}")
    I("s_mov_b64 exec, 0xff")
    I(f"global_load_lds_dwordx4 v100, {sr(P_WC,2)}")
    I("s_mov_b64 exec, -1")
    L("G_NOWC")
    stamp(22)
    mfmas(FA, ACC1, False, 16)
    mfmas(FB, ACC2, False, 0)
    stamp(23)
    I("s_cmp_eq_u32 s3, 13")
    I("s_cbranch_scc0 G_NOEP")
    I(f"s_add_u32 s70, s{P_WS}, {hex(CTL_OFF)}")
    I(f"s_addc_u32 s71, s{P_WS+1}, 0")
    I("s_load_dwordx2 s[72:73], s[70:71], 8")
    L("G_NOEP")
    ACCB, ACCV, OUTR = ACC1, ACC2, FB
    SD = sdwa("WORD_1")
    I("s_mov_b32 s80, 0x8000")
    I("s_mov_b32 s81, 0x8000")
    I(f"s_mov_b32 s68, {hex(f32(2.0**-100))}")
    I("s_mov_b32 s69, s68")
    I("v_mov_b32 v10, v26")
    I("v_mov_b32 v11, v26")
    I("s_nop 1")
    for rp in (0, 2):
        for t in range(4):
            I(f"v_pk_fma_f32 {vr(ACCB+4*t+rp,2)}, {vr(ACCB+4*t+rp,2)}, s[76:77], v[10:11] op_sel_hi:[1,0,1]")
        for t in (1, 3):
            I(f"v_pk_add_f32 {vr(ACCV+4*t+rp,2)}, {vr(ACCV+4*t+rp,2)}, s[68:69]")
        for t in range(4):
            I(f"v_lshl_add_u64 {vr(ACCB+4*t+rp,2)}, {vr(ACCB+4*t+rp,2)}, 0, s[80:81]")
        for t in range(4):
            I(f"v_lshl_add_u64 {vr(ACCV+4*t+rp,2)}, {vr(ACCV+4*t+rp,2)}, 0, s[80:81]")
        for r in (rp, rp + 1):
            for t in (0, 2):
                I(f"v_sub_u32_sdwa v{ACCB+4*t+r}, v{ACCB+4*t+r}, v{ACCV+4*t+r} clamp {SD}")
            for t in (0, 2):
                I(f"v_sub_u32_sdwa v{ACCV+4*(t+1)+r}, v{ACCV+4*(t+1)+r}, v{ACCB+4*t+r} clamp {SD}")
            for t in (0, 2):
                I(f"v_sub_u32_sdwa v{ACCB+4*(t+1)+r}, v{ACCB+4*(t+1)+r}, v{ACCV+4*(t+1)+r} clamp {SD}")
            for t in range(4):
                I(f"v_perm_b32 v{OUTR+4*r+t}, v{ACCB+4*t+r}, v{ACCV+4*t+r}, s77")
            if r == 0:
                I("s_cmp_eq_u32 s3, 12")
                I("s_cbranch_scc1 G_T3")
            else:
                I("v_add_u32 v27, 0x10000, v27")
            I(f"buffer_store_dwordx4 {vr(OUTR+4*r,4)}, v27, {sr(S_X,4)}, 0 offen sc1")
    stamp(4)
    I("s_cmp_eq_u32 s3, 13")
    I("s_cbranch_scc0 G_BVD")
    I("s_waitcnt lgkmcnt(0)")
    I("s_add_u32 s72, s72, 0x1000000")
    I("s_addc_u32 s73, s73, 0")
    I("s_and_b32 s72, s72, 0xff000000")
    for k in range(3):
        I(f"s_bfe_u32 s64, s73, {hex((2 << 16) | (2*k))}")
        I(f"s_lshl_b32 s64, s64, {6 + 8*k}")
        I("s_or_b32 s72, s72, s64")
        I(f"s_bfe_u32 s64, s73, {hex((2 << 16) | (6 + 2*k))}")
        I("s_lshl_b32 s64, s64, 14")
        I(f"v_mov_b32 v{TG+k}, s64")
    I(f"v_mov_b32 v{TG+3}, s72")
    I(f"ds_write_b128 v1, {vr(TG,4)} offset:{TAGS}")
    L("G_BVD")
    I("s_waitcnt vmcnt(4)")
    I("s_branch G_DONE")
    L("G_T3")
    I("s_cmp_eq_u32 s2, 212")
    I("s_cbranch_scc0 G_NODUM")
    for t in range(4):
        I(f"v_mov_b32 v{OUTR+t}, 0x7f000000")
    L("G_NODUM")
    I(f"buffer_store_dwordx4 {vr(OUTR,4)}, v27, {sr(S_X,4)}, 0 offen sc1")
    I("s_waitcnt vmcnt(1)")
    I("s_mov_b64 exec, s[74:75]")
    I("s_cbranch_execz G_NOBIN")
    I("v_mov_b32 v126, v14")
    binning(False)
    I("v_mov_b32 v14, v126")
    L("G_NOBIN")
    I("s_mov_b64 exec, -1")
    I(f"ds_read_b128 {vr(XA,4)}, v8")
    I(f"ds_read_b128 {vr(XA+4,4)}, v9")
    stamp(4)
    L("G_DONE")
    if OPT["gprio"] and not OPT["cprio"]:
        I("s_setprio 0")
    stamp(5)

    L("A_JOIN")
    if OPT["cprio"]:
        I("s_setprio 3")
    I("s_waitcnt lgkmcnt(0)")
    stamp(6)
    I("s_barrier")
    stamp(7)
    C0 = 48
    I(f"ds_read_b128 {vr(TG,4)}, v1 offset:{TAGS}")
    I(f"ds_read2st64_b32 v[8:9], v5 offset0:{C1_OFF//256} offset1:{C1_OFF//256+2}")
    I(f"ds_read_b128 {vr(C0,4)}, v4 offset:{IMG}")
    I(f"ds_read_b128 {vr(C0+4,4)}, v4 offset:{IMG+B2}")
    def tagit(c):
        for k in range(3):
            I(f"v_bfi_b32 v{c+k}, s40, v{TG+k}, v{c+k}")
        I(f"v_or_b32 v{c+3}, v{TG+3}, v{c+3}")
    I("s_waitcnt lgkmcnt(2)")
    I("v_cmp_le_u32 s[72:73], s38, v8")
    I("v_cmp_le_u32 s[74:75], s38, v9")
    I("v_max_u32 v10, v8, v9")
    I("v_cmp_le_u32 vcc, s39, v10")
    I("s_waitcnt lgkmcnt(1)")
    tagit(C0)
    I("s_or_b64 exec, s[72:73], s[36:37]")
    I(f"global_store_dwordx4 v6, {vr(C0,4)}, {WS} sc1")
    I("s_or_b64 exec, s[74:75], s[36:37]")
    I("s_waitcnt lgkmcnt(0)")
    tagit(C0 + 4)
    I(f"global_store_dwordx4 v7, {vr(C0+4,4)}, {WS} sc1")
    I("s_cbranch_vccnz R_PUB2")
    L("A_PUBD")
    I("s_mov_b64 exec, -1")
    if OPT["cprio"]:
        I("s_setprio 0")
    stamp(8)
    I("s_cmp_ge_u32 s3, 12")
    I("s_cbranch_scc0 B_NOAU")
    I("s_setprio 1")
    FU, FW, UU = 36, 84, 52
    def half_gemm(moff, acc, swap):
        for T in range(4):
            F = (FU if T < 2 else FW) + 8 * (T & 1)
            for s in range(2):
                for h in range(2):
                    I(f"ds_read_b64_tr_b16 {vr(F + 4*s + 2*h, 2)}, v{12+T} offset:{moff + (8*s+4*h)*128}")
        for T in range(4):
            F = (FU if T < 2 else FW) + 8 * (T & 1)
            I(f"s_waitcnt lgkmcnt({4*(3-T)})")
            for s in range(2):
                a, b = vr(XA + 4*s, 4), vr(F + 4*s, 4)
                if swap:
                    a, b = b, a
                c = "0" if s == 0 else vr(acc + 4*T, 4)
                I(f"v_mfma_f32_16x16x32_bf16 {vr(acc+4*T,4)}, {a}, {b}, {c}")
    half_gemm(16384, AP, False)
    I("s_lshl_b32 s64, s2, 5")
    I("s_add_u32 s64, s64, s66")
    I("s_lshl_b32 s64, s64, 2")
    I(f"s_add_u32 s64, s64, {hex(FLG_OFF)}")
    I("v_mov_b32 v26, s64")
    I("s_waitcnt vmcnt(2)")
    I("s_mov_b64 exec, 1")
    I(f"global_store_dword v26, v{TG+3}, {WS} sc1")
    I("s_mov_b64 exec, -1")
    half_gemm(24576, UU, True)
    I(f"s_mul_i32 s65, s66, {16*EAU_STRIDE}")
    I(f"s_add_u32 s65, s65, {EAU_OFF}")
    I(f"v_mul_u32_u24 v26, {4*EAU_STRIDE}, v125")
    I("v_lshl_add_u32 v26, v124, 4, v26")
    I("v_add_u32 v25, s65, v26")
    I(f"v_mul_u32_u24 v27, {EAU_STRIDE}, v124")
    I("v_lshl_add_u32 v27, v125, 4, v27")
    I("v_add_u32 v27, s65, v27")
    for i in range(16):
        I(f"v_mul_f32 v{AP+i}, s76, v{AP+i}")
    I("s_cmp_eq_u32 s3, 12")
    I("s_cselect_b32 exec_lo, 0x000f000f, -1")
    I("s_cselect_b32 exec_hi, 0x000f000f, -1")
    for T in range(4):
        I(f"ds_write_b128 v27, {vr(UU+4*T,4)} offset:{256 + T*64}")
    I("s_cselect_b32 exec_hi, 0, -1")
    I("s_cselect_b32 exec_lo, 0xffff, -1")
    I(f"v_max3_f32 v26, |v{AP}|, |v{AP+1}|, |v{AP+2}|")
    for i in range(3, 15, 2):
        I(f"v_max3_f32 v26, |v{AP+i}|, |v{AP+i+1}|, v26")
    I(f"v_max_f32 v26, |v{AP+15}|, v26")
    I(f"v_cmp_nge_f32 vcc, {hex(f32(63.0))}, v26")
    EAT = 36
    for r in range(4):
        for t in range(4):
            I(f"v_add_f32 v{EAT+4*r+t}, {hex(f32(-float(KEXP)))}, v{AP+4*t+r}")
        for t in range(4):
            I(f"ds_write_b32 v25, v{AP+4*t+r} offset:{r*EAU_STRIDE + 512 + 4*t}")
            I(f"v_exp_f32 v{EAT+4*r+t}, v{EAT+4*r+t}")
        I("s_nop 0")
        I(f"ds_write_b128 v25, {vr(EAT+4*r,4)} offset:{r*EAU_STRIDE}")
        if r == 0:
            I("s_cbranch_scc1 G_EAD")
    L("G_EAD")
    I("s_mov_b64 exec, -1")
    I("s_cmp_lg_u64 vcc, 0")
    I("s_cselect_b32 s79, 1, 0")
    L("B_NOAU")

    RA, CA, KA, RB, CB, KB = 8, 24, 36, 64, 72, 78
    XB, Y, A = 48, 80, 100
    IP = (96, 98, 104, 106)
    UR, XR, VOUT, VU, LP, EP = 108, 112, 116, 117, 118, 120
    WCB, DEN, NUM, VOOB, C4, VRA, VSE, EA, P, Q, SS, LC = 16, 20, 44, 30, 31, 42, 32, 12, 24, 8, 36, 4
    I("v_and_b32 v5, 63, v0")
    I("s_cmp_lt_u32 s2, 212")
    I("s_cselect_b32 s64, 49, 48")
    I("v_cmp_gt_u32 s[82:83], s64, v5")
    I("v_lshlrev_b32 v5, 2, v5")
    I(f"v_and_b32 v{LC}, 15, v0")
    I(f"v_lshlrev_b32 v6, 1, v{LC}")
    for j in range(4):
        I(f"ds_read_u16 v{WCB+j}, v6 offset:{WC_OFF + 32*j}")
    I(f"v_lshlrev_b32 v{LC}, 4, v{LC}")
    I(f"v_mov_b32 v{C4}, 4")
    I(f"v_mov_b32 v{VOOB}, {OOB}")
    for p_ in IP:
        I(f"v_mov_b32 v{p_+1}, v{LC}")
    I(f"v_lshlrev_b32 v{LP}, 1, v6")
    I(f"v_mov_b32 v{LP+1}, v{LC}")
    I("v_lshrrev_b32 v7, 4, v0")
    I(f"v_mul_u32_u24 v{VU}, {EAU_STRIDE}, v7")
    I(f"s_mov_b32 s64, {EAU_OFF + 256}")
    I(f"v_add3_u32 v{VU}, v{VU}, s64, v{LC}")
    I("v_lshlrev_b32 v8, 2, v6")
    I("v_and_b32 v9, 0x70, v0")
    I("v_xor_b32 v9, v8, v9")
    I("v_lshl_add_u32 v9, v7, 7, v9")
    I(f"ds_read_b64 {vr(XR+2,2)}, v9 offset:{X_OFF}")
    I(f"v_lshl_add_u32 v{VOUT}, v7, 15, v8")
    I("s_lshl_b32 s64, s2, 7")
    I(f"v_add_u32 v{VOUT}, s64, v{VOUT}")
    srd(S_X, P_OUT, N * 128)
    for d in range(0, 4, 2):
        I(f"v_mov_b64 {vr(A+d,2)}, 0")
        I(f"v_mov_b64 {vr(DEN+d,2)}, 0")
        I(f"v_mov_b64 {vr(NUM+d,2)}, 0")
    I("s_mov_b64 s[68:69], -1")
    I("s_mov_b64 s[70:71], -1")
    I("s_cmp_lt_u32 s3, 4")
    I("s_cselect_b32 s78, 2, 0")
    I(f"s_mov_b32 s16, {hex(f32(2.0**-KEXP))}")
    I("s_mov_b32 s17, s16")
    I(f"s_mov_b32 s18, {hex(f32(1e-6 * 2.0**KEXP))}")
    I("s_mov_b32 s19, s18")
    I("s_mov_b32 s20, 32")
    I("s_mov_b32 s21, 32")
    I(f"s_mov_b32 s24, {SLOT_STRIDE}")
    I(f"s_mov_b32 s25, {EAU_STRIDE}")
    I(f"s_mov_b32 s85, {LIST_OFF}")
    I("s_mov_b32 s56, 0x11111111")
    I("s_mov_b32 s57, s56")
    I("s_lshl_b64 s[58:59], s[56:57], 1")
    I("s_lshl_b64 s[60:61], s[56:57], 2")
    I("s_lshl_b64 s[62:63], s[56:57], 3")
    I("v_bfe_u32 v124, v0, 4, 2")
    I("v_bfe_u32 v125, v0, 5, 1")
    I("v_bfe_u32 v126, v0, 2, 1")
    I("v_lshl_add_u32 v125, v126, 1, v125")
    I("v_bfe_u32 v126, v0, 3, 2")
    I("v_lshlrev_b32 v126, 2, v126")
    I("v_bfe_u32 v34, v0, 2, 3")
    I("s_lshl_b32 s64, s3, 3")
    I("s_sub_u32 s64, s2, s64")
    I("v_sub_u32 v34, s64, v34")
    I("v_and_b32 v34, 127, v34")
    I("v_and_b32 v35, 32, v0")
    I("v_lshl_add_u32 v34, v35, 2, v34")
    I("v_and_b32 v35, 3, v0")
    if OPT["pf"]:
        I("v_lshlrev_b32 v33, 8, v34")
        I("v_lshl_add_u32 v33, v35, 20, v33")
        I("s_lshr_b32 s64, s2, 4")
        I("s_lshl_b32 s64, s64, 16")
        I("s_bfe_u32 s65, s2, 0x10003")
        I("s_lshl_b32 s65, s65, 7")
        I("s_add_u32 s64, s64, s65")
        I("v_add_u32 v33, s64, v33")
    I("v_lshlrev_b32 v34, 7, v34")
    I("v_lshl_add_u32 v34, v35, 2, v34")
    I(f"v_add_u32 v34, {hex(FLG_OFF)}, v34")
    I(f"s_mov_b32 s64, {hex(f32(-LOG2E))}")
    I("s_mov_b32 s66, 0x0000ffff")
    I("s_mov_b32 s67, 0xffff0000")
    I("s_waitcnt lgkmcnt(0)")
    for j in range(4):
        I(f"v_lshlrev_b32 v{WCB+j}, 16, v{WCB+j}")
    for j in range(4):
        I(f"v_mul_f32 v{WCB+j}, s64, v{WCB+j}")
    for j in range(4):
        I(f"v_cvt_pk_bf16_f32 v{WCB+j}, 0, v{WCB+j}")
    for j in range(4):
        I(f"v_cndmask_b32 v{WCB+j}, 0, v{WCB+j}, s[66:67]")
    I(f"v_lshlrev_b32 v{XR}, 16, v{XR+2}")
    I(f"v_and_b32 v{XR+1}, 0xffff0000, v{XR+2}")
    I(f"v_lshlrev_b32 v{XR+2}, 16, v{XR+3}")
    I(f"v_and_b32 v{XR+3}, 0xffff0000, v{XR+3}")
    I("s_setprio 0")
    I("s_waitcnt vmcnt(0)")
    if OPT["delay"]:
        I(f"s_sleep {OPT['delay']}")
    stamp(9)
    I(f"global_load_dwordx4 {vr(RA,4)}, v2, {WS} sc1")
    I(f"global_load_dwordx4 {vr(RA+4,4)}, v3, {WS} sc1")

    def poll(R_, first, name):
        L(name)
        I("s_waitcnt vmcnt(0)")
        for k in range(2):
            I(f"s_mov_b64 exec, s[{68+2*k}:{69+2*k}]")
            for j in range(4):
                I(f"v_xor_b32 v{R_+4*k+j}, v{TG+j}, v{R_+4*k+j}")
        I("s_mov_b64 exec, -1")
        for k in range(2):
            r = R_ + 4 * k
            I(f"v_or3_b32 v{6+k}, v{r}, v{r+1}, v{r+2}")
            I(f"v_and_b32 v{6+k}, s40, v{6+k}")
            I(f"v_and_or_b32 v{6+k}, v{r+3}, s41, v{6+k}")
            I(f"v_cmp_ne_u32 s[{68+2*k}:{69+2*k}], 0, v{6+k}")
            I(f"v_cmp_gt_u32 s[{64+2*k}:{65+2*k}], s42, v{r+3}")
        if first:
            for k in range(2):
                I(f"s_andn2_b64 s[{64+2*k}:{65+2*k}], s[{64+2*k}:{65+2*k}], s[{68+2*k}:{69+2*k}]")
                I(f"s_lshl_b64 s[{74+2*k}:{75+2*k}], s[{64+2*k}:{65+2*k}], 1")
                I(f"s_or_b64 s[{74+2*k}:{75+2*k}], s[{74+2*k}:{75+2*k}], s[36:37]")
        I("s_and_b64 s[72:73], s[68:69], s[74:75]")
        I("s_and_b64 s[80:81], s[70:71], s[76:77]")
        I("s_or_b64 s[72:73], s[72:73], s[80:81]")
        I(f"s_cbranch_scc1 {name}_RETRY")
    def retry(R_, first, name):
        L(name + "_RETRY")
        if first:
            for k in range(4):
                I(f"s_and_b32 s72, s{68+k}, s{74+k}")
                I("s_lshl_b32 s73, s72, 1")
                I("s_or_b32 s72, s72, s73")
                I("s_lshl_b32 s73, s72, 2")
                I("s_or_b32 s72, s72, s73")
                I("s_lshl_b32 s73, s72, 4")
                I("s_or_b32 s72, s72, s73")
                I(f"s_and_b32 s{68+k}, s{68+k}, s72")
        else:
            I("s_and_b64 s[68:69], s[68:69], s[74:75]")
            I("s_and_b64 s[70:71], s[70:71], s[76:77]")
        I("s_add_u32 s43, s43, 1")
        I(f"s_cmp_gt_u32 s43, {POLL_LIMIT}")
        I("s_cbranch_scc1 R_TIMEOUT")
        if OPT["sleep"]:
            I(f"s_sleep {OPT['sleep']}")
        reload(R_, name)
        I(f"s_branch {name}")
    def reload(R_, name):
        I("s_mov_b64 exec, s[68:69]")
        I(f"s_cbranch_execz {name}_1")
        I(f"global_load_dwordx4 {vr(R_,4)}, v2, {WS} sc1")
        L(name + "_1")
        I("s_mov_b64 exec, s[70:71]")
        I(f"s_cbranch_execz {name}_2")
        I(f"global_load_dwordx4 {vr(R_+4,4)}, v3, {WS} sc1")
        L(name + "_2")
    def ranks(R_, C_, K_, M_):
        for k in range(2):
            for j in range(3):
                I(f"v_lshlrev_b32_sdwa v{C_+3*k+j}, 2, v{R_+4*k+3} {sdwa('BYTE_'+str(j))}")
        for k in range(2):
            I(f"s_mov_b64 exec, s[{74+2*k}:{75+2*k}]")
            for j in range(3):
                m = M_ + 2 * (3 * k + j)
                I(f"v_cmp_gt_u32_sdwa s[{m}:{m+1}], 49, v{R_+4*k+3} src0_sel:DWORD src1_sel:BYTE_{j}")
            for j in range(3):
                m = M_ + 2 * (3 * k + j)
                I(f"s_mov_b64 exec, s[{m}:{m+1}]")
                I(f"ds_add_rtn_u32 v{K_+3*k+j}, v{C_+3*k+j}, v{C4} offset:{C2_OFF}")
        I("s_mov_b64 exec, -1")
    def more_test():
        I("s_and_b64 s[64:65], s[64:65], s[74:75]")
        I("s_and_b64 s[66:67], s[66:67], s[76:77]")
        I("s_or_b64 s[72:73], s[64:65], s[66:67]")
        I("s_or_b32 s72, s72, s73")
        I("s_and_b32 s72, s72, 0x80808080")
    MA, MB = 44, 4

    poll(RA, True, "B_P0")
    stamp(10)
    if OPT["pf"]:
        I(f"s_cmp_lt_u32 s3, {OPT['pf']}")
        I("s_cbranch_scc0 B_NOEF")
        I(f"global_load_dword v35, v34, {WS} sc1")
        L("B_NOEF")
    ranks(RA, CA, KA, MA)
    more_test()
    I("s_or_b32 s72, s72, s79")
    I("s_cbranch_scc1 R_MORE")
    L("B_RDONE")
    if OPT["stamp"]:
        I("v_writelane_b32 v127, s43, 19")
    I("s_waitcnt lgkmcnt(0)")
    I("s_barrier")
    stamp(11)
    I(f"ds_read_b32 v6, v5 offset:{C2_OFF}")
    if OPT["pf"]:
        I(f"s_cmp_lt_u32 s3, {OPT['pf']}")
        I("s_cbranch_scc0 B_NOPF")
        I("s_waitcnt vmcnt(0)")
        I(f"v_cmp_eq_u32 vcc, v{TG+3}, v35")
        I("s_mov_b64 exec, vcc")
        I("s_cbranch_execz B_NOPF0")
        I(f"global_load_dword v84, v33, {WS} sc1")
        L("B_NOPF0")
        I("s_mov_b64 exec, -1")
        I("s_branch B_PFD")
        L("B_NOPF")
    I(f"global_load_dword v35, v34, {WS} sc1")
    L("B_PFD")
    I("s_waitcnt lgkmcnt(0)")
    I("v_add_u32 v2, 7, v6")
    I("v_and_b32 v2, -8, v2")
    I("v_max_u32 v2, 8, v2")
    I("v_cndmask_b32 v2, 0, v2, s[82:83]")
    I("v_mov_b32 v3, v2")
    for d in ("row_shr:1 row_mask:0xf", "row_shr:2 row_mask:0xf", "row_shr:4 row_mask:0xf",
              "row_shr:8 row_mask:0xf", "row_bcast:15 row_mask:0xa", "row_bcast:31 row_mask:0xc"):
        I("s_nop 1")
        I(f"v_add_u32_dpp v3, v3, v3 {d} bank_mask:0xf")
    I("v_sub_u32 v7, v3, v2")
    I(f"ds_write_b32 v5, v7 offset:{BASE}")
    I("v_readlane_b32 s64, v3, 63")
    def lookup(C_):
        for i in range(6):
            I(f"ds_read_b32 v{C_+i}, v{C_+i} offset:{BASE}")
    def scatter(R_, C_, K_, M_):
        for i in range(6):
            if i % 3 == 0:
                I(f"s_waitcnt lgkmcnt({3-i})")
            I(f"v_add3_u32 v{C_+i}, v{C_+i}, v{K_+i}, s85")
        for i in range(6):
            I(f"s_mov_b64 exec, s[{M_+2*i}:{M_+2*i+1}]")
            I(f"ds_write_b32 v{C_+i}, v{R_+4*(i//3)+i%3}")
        I("s_mov_b64 exec, -1")
    lookup(CA)
    I("s_add_u32 s65, s64, 31")
    I("s_lshr_b32 s66, s65, 9")
    I("s_bfe_u32 s67, s65, 0x40005")
    I("s_mul_i32 s68, s66, s3")
    I("s_min_u32 s69, s67, s3")
    I("s_add_u32 s68, s68, s69")
    I("s_lshl_b32 s68, s68, 5")
    I("s_cmp_lt_u32 s3, s67")
    I("s_addc_u32 s72, s66, 0")
    I("s_lshl_b32 s69, s72, 3")
    I("s_add_u32 s70, s68, s85")
    scatter(RA, CA, KA, MA)
    I(f"v_mul_u32_u24 v{VRA}, s69, v124")
    I(f"v_mul_u32_u24 v{VRA+1}, s69, v125")
    I(f"v_add_u32 v{VRA}, s70, v{VRA}")
    I(f"v_add3_u32 v{VRA+1}, v{VRA+1}, s70, v126")
    if OPT["pf"]:
        I(f"s_cmp_lt_u32 s3, {OPT['pf']}")
        I("s_cbranch_scc1 B_FLW")
    I("s_waitcnt vmcnt(0)")
    L("B_FLW")
    I(f"v_cmp_ne_u32 vcc, v{TG+3}, v35")
    I("s_cmp_lg_u32 s78, 0")
    I("s_cbranch_scc1 R_EXTRA")
    L("B_XDONE")
    I("s_cbranch_vccnz R_FLAGS")
    L("B_FDONE")
    I("s_waitcnt lgkmcnt(0)")
    I("s_barrier")
    stamp(12)
    def i_reads(batch, lo=0, hi=4):
        for i in range(lo, hi):
            I(f"ds_read_u16 v{IP[i]}, v{VRA} offset:{16*batch + 4*i}")
    def a_reads(batch):
        for d in range(4):
            I(f"s_mov_b64 exec, s[{56+2*d}:{57+2*d}]")
            I(f"ds_read_b32 v{A+d}, v{VRA+1} offset:{16*batch}")
        I("s_mov_b64 exec, -1")
    def gathers(x, lo, hi):
        for i in range(lo, hi):
            I(f"buffer_load_dwordx4 {vr(x+4*i,4)}, {vr(IP[i],2)}, {sr(S_TAB,4)}, 0 idxen offen {OPT['gsc'] if OPT['gsc'] != 'none' else ''}")
    i_reads(0)
    I("v_and_b32 v9, 0x3f0, v0")
    I(f"ds_read_b128 {vr(VSE,4)}, v9 offset:{STR}")
    I(f"ds_read_b32 v8, v1 offset:{FLAG}")
    if OPT["prio"]:
        I("s_setprio 3")
    I("s_waitcnt lgkmcnt(2)")
    gathers(XB, 0, 4)
    stamp(13)
    i_reads(1)
    I(f"ds_read_b128 {vr(EP,4)}, v9 offset:{EPI}")
    I(f"ds_read_b128 {vr(UR,4)}, v{VU}")
    I("s_waitcnt lgkmcnt(6)")
    I("v_readfirstlane_b32 s80, v8")
    I(f"v_lshl_add_u64 {vr(VSE,2)}, {vr(VSE,2)}, 0, {vr(LP,2)}")
    I(f"ds_read_b128 {vr(EA,4)}, v{VSE+1}")
    for q in range(4):
        I(f"v_readlane_b32 s{44+q}, v{VSE+2}, {16*q}")
    I(f"s_cmp_gt_u32 s64, {LIST_MAX}")
    I("s_cselect_b32 s81, 1, 0")
    I("s_or_b32 s80, s80, s81")
    if OPT["force_slow"]:
        I("s_branch K_SLOW")
    I("s_cbranch_scc1 K_SLOW")
    a_reads(0)
    for q in range(4):
        if OPT["cut"] & 8:
            I(f"s_mov_b32 s{44+q}, 0")
        I(f"s_bitset1_b32 s{44+q}, s72")
    I("s_or_b32 s82, s44, s45")
    I("s_or_b32 s83, s46, s47")
    I("s_or_b32 s82, s82, s83")
    I("s_bfm_b32 s83, s72, 0")
    I("s_lshr_b32 s83, s83, 4")
    I("s_mov_b32 s73, 0")
    I("s_waitcnt lgkmcnt(5)")
    gathers(XB + 16, 0, 4)
    i_reads(2)
    for k in range(3):
        I(f"v_add_u32 v{EP+k}, v{EP+k}, v{LC}")
    I(f"v_cmp_lt_i32 s[48:49], 2, v{EP+3}")
    I("s_cmp_eq_u32 s72, 0")
    I("s_cbranch_scc1 K_JOIN")
    def mfma(x):
        I(f"v_mfma_f32_32x32x16_bf16 {vr(Y,16)}, {vr(A,4)}, {vr(WCB,4)}, {vr(x,16)}")
    stamp(14)
    I("s_waitcnt vmcnt(4) lgkmcnt(4)")
    mfma(XB)
    stamp(15)
    a_reads(1)
    nth = len(str(OPT["prio"]).split("_")) if OPT["prio"] else 0
    if OPT["prio"]:
        I(f"s_setprio {nth}")
    I("s_nop 2")
    L("K_LOOP")
    if OPT["prio"]:
        I("s_sub_u32 s74, s72, s73")
        for k, t_ in enumerate(int(x) for x in str(OPT["prio"]).split("_")):
            I(f"s_cmp_gt_u32 s74, {t_}")
            I("s_cbranch_scc1 K_STEP0")
            I(f"s_setprio {nth-1-k}")
    for u in range(4):
        bb, hh = u >> 1, u & 1
        x = XB + 16 * bb + 8 * hh
        t = Y + 8 * hh
        L(f"K_STEP{u}")
        for i in range(8):
            I(f"v_exp_f32 v{t+i}, v{t+i}")
        for i in range(4):
            I(f"v_lshlrev_b64 {vr(x+2*i,2)}, 16, {vr(x+2*i,2)}")
        for i in range(4):
            I(f"v_pk_fma_f32 {vr(t+2*i,2)}, {vr(t+2*i,2)}, {vr(EA+2*(i&1),2)}, s[16:17] clamp")
        I(f"v_pk_mul_f32 {vr(P,2)}, {vr(t,2)}, {vr(t+4,2)}")
        I(f"v_pk_mul_f32 {vr(P+2,2)}, {vr(t+2,2)}, {vr(t+6,2)}")
        I(f"v_pk_mul_f32 {vr(Q,2)}, {vr(x,2)}, {vr(t+4,2)}")
        I(f"v_pk_mul_f32 {vr(Q+2,2)}, {vr(x+2,2)}, {vr(t+6,2)}")
        I(f"v_pk_add_f32 {vr(SS,2)}, {vr(t,2)}, {vr(t+4,2)}")
        I(f"v_pk_add_f32 {vr(SS+2,2)}, {vr(t+2,2)}, {vr(t+6,2)}")
        I(f"v_pk_fma_f32 {vr(Q,2)}, {vr(x+4,2)}, {vr(t,2)}, {vr(Q,2)}")
        I(f"v_pk_fma_f32 {vr(Q+2,2)}, {vr(x+6,2)}, {vr(t+2,2)}, {vr(Q+2,2)}")
        if OPT["sup"]:
            I(f"s_bitcmp1_b32 s83, {u}")
            I(f"s_cselect_b32 s{S_TAB+2}, s{S_TAB+2}, 0")
        if hh == 0:
            I("s_waitcnt lgkmcnt(0)")
            if not OPT["cut"] & 4:
                gathers(XB + 16 * bb, 0, 2)
            for i in range(4):
                I(f"v_rcp_f32 v{P+i}, v{P+i}")
        else:
            I("s_waitcnt vmcnt(2)")
            if not OPT["cut"] & 1:
                mfma(XB + 16 * (1 - bb))
            for i in range(4):
                I(f"v_rcp_f32 v{P+i}, v{P+i}")
            if not OPT["cut"] & 4:
                gathers(XB + 16 * bb, 2, 4)
        I(f"v_pk_fma_f32 {vr(NUM,2)}, {vr(Q,2)}, {vr(P,2)}, {vr(NUM,2)}")
        I(f"v_pk_fma_f32 {vr(DEN,2)}, {vr(SS,2)}, {vr(P,2)}, {vr(DEN,2)}")
        I(f"v_pk_fma_f32 {vr(NUM+2,2)}, {vr(Q+2,2)}, {vr(P+2,2)}, {vr(NUM+2,2)}")
        I(f"v_pk_fma_f32 {vr(DEN+2,2)}, {vr(SS+2,2)}, {vr(P+2,2)}, {vr(DEN+2,2)}")
        if hh == 1:
            if not OPT["cut"] & 4:
                i_reads(bb + 3)
            if not OPT["cut"] & 2:
                a_reads(bb + 2)
        I(f"s_bitcmp1_b32 s82, {u+1}")
        I(f"s_cbranch_scc1 K_FLUSH{u}")
        L(f"K_BACK{u}")
    I(f"v_lshl_add_u64 {vr(VRA,2)}, {vr(VRA,2)}, 0, s[20:21]")
    I("s_lshr_b32 s82, s82, 4")
    I("s_lshr_b32 s83, s83, 4")
    I("s_add_u32 s73, s73, 4")
    I("s_branch K_LOOP")
    for u in range(4):
        L(f"K_FLUSH{u}")
        I(f"s_add_u32 s74, s73, {u+1}")
        for h in range(2):
            I(f"s_bitcmp1_b32 s{44+2*h}, s74")
            I("s_cselect_b32 s75, 0xffff, 0")
            I(f"s_bitcmp1_b32 s{45+2*h}, s74")
            I("s_cselect_b32 s80, 0xffff0000, 0")
            I(f"s_or_b32 {'exec_hi' if h else 'exec_lo'}, s75, s80")
        I(f"ds_write2_b32 v{VSE}, v{DEN}, v{DEN+1} offset0:0 offset1:16")
        I(f"ds_write2_b32 v{VSE}, v{DEN+2}, v{DEN+3} offset0:32 offset1:48")
        I(f"ds_write2_b32 v{VSE}, v{NUM}, v{NUM+1} offset0:64 offset1:80")
        I(f"ds_write2_b32 v{VSE}, v{NUM+2}, v{NUM+3} offset0:96 offset1:112")
        I("s_cmp_eq_u32 s74, s72")
        I("s_cbranch_scc1 K_JOIN")
        I(f"v_lshl_add_u64 {vr(VSE,2)}, {vr(VSE,2)}, 0, s[24:25]")
        I(f"ds_read_b128 {vr(DEN,4)}, v{VOOB}")
        I(f"ds_read_b128 {vr(NUM,4)}, v{VOOB}")
        I(f"ds_read_b128 {vr(EA,4)}, v{VSE+1}")
        I("s_mov_b64 exec, -1")
        I("s_waitcnt lgkmcnt(0)")
        I(f"s_branch K_BACK{u}")

    L("K_JOIN")
    I("s_mov_b64 exec, -1")
    stamp(16)
    I("s_cmp_lt_u32 s3, 13")
    I("s_waitcnt lgkmcnt(0)")
    I("s_barrier")
    stamp(17)
    I("s_cbranch_scc0 K_FIN")
    for k in range(3):
        I(f"ds_read_b128 {vr(8+8*k,4)}, v{EP+k}")
    for k in range(3):
        I(f"ds_read_b128 {vr(12+8*k,4)}, v{EP+k} offset:256")
    I("s_cmp_lg_u64 s[48:49], 0")
    I("s_waitcnt lgkmcnt(3)")
    for k in (1, 2):
        for i in range(2):
            I(f"v_pk_add_f32 {vr(8+2*i,2)}, {vr(8+2*i,2)}, {vr(8+8*k+2*i,2)}")
    I("s_waitcnt lgkmcnt(0)")
    for k in (1, 2):
        for i in range(2, 4):
            I(f"v_pk_add_f32 {vr(8+2*i,2)}, {vr(8+2*i,2)}, {vr(8+8*k+2*i,2)}")
    I("s_cbranch_scc1 R_LONG")
    L("K_MATH")
    I("v_pk_add_f32 v[8:9], v[8:9], s[18:19]")
    I("v_pk_add_f32 v[10:11], v[10:11], s[18:19]")
    for c in range(4):
        I(f"v_rcp_f32 v{8+c}, v{8+c}")
    I("s_nop 0")
    I(f"v_pk_fma_f32 v[8:9], v[12:13], v[8:9], {vr(UR,2)}")
    I(f"v_pk_fma_f32 v[10:11], v[14:15], v[10:11], {vr(UR+2,2)}")
    for c in range(4):
        I(f"v_max_f32 v{8+c}, 0, v{8+c}")
    I(f"v_pk_add_f32 v[8:9], v[8:9], {vr(XR,2)}")
    I(f"v_pk_add_f32 v[10:11], v[10:11], {vr(XR+2,2)}")
    I("v_cvt_pk_bf16_f32 v12, v8, v9")
    I("v_cvt_pk_bf16_f32 v13, v10, v11")
    I(f"buffer_store_dwordx2 v[12:13], v{VOUT}, {sr(S_X,4)}, 0 offen")
    L("K_FIN")
    stamp(18)
    stamp_out()
    L("K_END")
    I("s_endpgm")

    L("R_PUB2")
    I("s_mov_b64 exec, vcc")
    I(f"ds_read_b128 {vr(C0+8,4)}, v4 offset:{IMG+128}")
    I(f"ds_read_b128 {vr(C0+12,4)}, v4 offset:{IMG+B2+128}")
    I(f"v_add_u32 v8, {hex(LINE_STRIDE)}, v6")
    I(f"v_add_u32 v9, {hex(LINE_STRIDE)}, v7")
    I("s_waitcnt lgkmcnt(0)")
    tagit(C0 + 8)
    tagit(C0 + 12)
    I(f"global_store_dwordx4 v8, {vr(C0+8,4)}, {WS} sc1")
    I(f"global_store_dwordx4 v9, {vr(C0+12,4)}, {WS} sc1")
    I("s_branch A_PUBD")
    retry(RA, True, "B_P0")
    L("R_MORE")
    I("s_cmp_lg_u32 s79, 0")
    I("s_cbranch_scc1 R_REQ")
    for k in range(4):
        I(f"s_lshr_b32 s{74+k}, s{64+k}, 7")
        I(f"s_and_b32 s{74+k}, s{74+k}, 0x01010101")
        I(f"s_mul_i32 s{74+k}, s{74+k}, 0xff")
    I("s_mov_b64 s[68:69], s[74:75]")
    I("s_mov_b64 s[70:71], s[76:77]")
    I(f"v_add_u32 v2, {hex(LINE_STRIDE)}, v2")
    I(f"v_add_u32 v3, {hex(LINE_STRIDE)}, v3")
    reload(RB, "B_N1")
    poll(RB, False, "B_P1")
    ranks(RB, CB, KB, MB)
    I("s_or_b32 s78, s78, 1")
    more_test()
    I("s_cbranch_scc0 B_RDONE")
    I("s_mov_b32 s79, 1")
    I("s_branch R_REQ")
    retry(RB, False, "B_P1")
    L("R_TIMEOUT")
    I("s_mov_b32 s79, 3")
    for k in range(6):
        I(f"s_mov_b64 s[{MA+2*k}:{MA+2*k+1}], 0")
    I(f"v_mov_b32 v35, v{TG+3}")
    L("R_REQ")
    I("v_mov_b32 v6, s79")
    I(f"ds_or_b32 v1, v6 offset:{FLAG}")
    I("s_branch B_RDONE")
    def bump():
        I(f"v_mov_b32 v48, {hex(CTL_OFF)}")
        I("v_mov_b32 v50, 0x1000000")
        I("v_mov_b32 v51, 0")
        I("s_mov_b64 exec, 1")
        I(f"global_atomic_add_x2 v48, v[50:51], {WS} offset:8 sc1")
        I("s_mov_b64 exec, -1")
    L("R_EXTRA")
    I("s_bitcmp1_b32 s78, 0")
    I("s_cbranch_scc0 R_X2")
    I("s_waitcnt lgkmcnt(0)")
    lookup(CB)
    scatter(RB, CB, KB, MB)
    L("R_X2")
    I("s_bitcmp1_b32 s78, 1")
    I("s_cbranch_scc0 B_XDONE")
    I("s_cmp_eq_u32 s3, 1")
    I("s_cbranch_scc1 R_PAD")
    I("s_add_u32 s71, s66, 1")
    I("v_cvt_f32_u32 v48, s71")
    I("v_cvt_f32_u32 v49, s66")
    I("s_lshl_b32 s73, s67, 2")
    I("s_mul_i32 s71, s71, s73")
    I("v_rcp_f32 v48, v48")
    I("v_rcp_f32 v49, v49")
    I("v_cvt_f32_u32 v50, s71")
    I("v_cvt_f32_u32 v51, s73")
    I("v_fma_f32 v50, -v50, v49, v51")
    I(f"v_mov_b32 v51, {hex(f32(0.125))}")
    def stream_of(dst, src, half):
        I(f"v_cvt_f32_u32 v{dst}, v{src}")
        I(f"v_fma_f32 v{dst}, v{dst}, v51, {half}")
        I(f"v_mul_f32 v52, v{dst}, v48")
        I(f"v_fma_f32 v{dst}, v{dst}, v49, v50")
        I(f"v_max_f32 v{dst}, v{dst}, v52")
        I(f"v_cvt_u32_f32 v{dst}, v{dst}")
    stream_of(53, 3, "-0.5")
    I("s_cmp_eq_u32 s3, 2")
    I("s_cbranch_scc1 R_EPI")
    I("s_cmp_eq_u32 s3, 3")
    I("s_cbranch_scc1 R_FIRST")
    I("v_min_u32 v55, s73, v53")
    I("v_mad_u32_u24 v55, v53, s66, v55")
    I("v_lshrrev_b32 v56, 3, v3")
    I("v_sub_u32 v55, v56, v55")
    I("v_lshlrev_b32 v55, v55, 1")
    I("v_lshlrev_b32 v56, 4, v53")
    I("s_mov_b64 exec, s[82:83]")
    I(f"ds_or_b32 v56, v55 offset:{STR + 8}")
    I("s_mov_b64 exec, -1")
    I("s_branch B_XDONE")
    L("R_FIRST")
    I("v_mov_b32 v54, -1")
    I("v_cndmask_b32 v53, 63, v53, s[82:83]")
    I(f"v_mul_u32_u24 v59, {EAU_STRIDE//4}, v5")
    I(f"v_add_u32 v59, {EAU_OFF}, v59")
    I("v_mov_b32_dpp v54, v53 wave_shr:1 row_mask:0xf bank_mask:0xf")
    I("v_lshl_add_u32 v58, v54, 2, v5")
    I(f"v_mul_i32_i24 v58, {SLOT_STRIDE//4}, v58")
    I(f"v_add_u32 v58, {SLOT_OFF}, v58")
    I("v_lshlrev_b32 v54, 4, v54")
    I("v_lshlrev_b32 v53, 4, v53")
    L("R_FIRST1")
    I("v_cmp_lt_i32 s[74:75], v54, v53")
    I("s_mov_b64 exec, s[74:75]")
    I("s_cbranch_execz R_FIRST2")
    I("v_add_u32 v54, 16, v54")
    I(f"v_add_u32 v58, {SLOT_STRIDE}, v58")
    I(f"ds_write_b64 v54, v[58:59] offset:{STR}")
    I("s_branch R_FIRST1")
    L("R_FIRST2")
    I("s_mov_b64 exec, -1")
    I("s_branch B_XDONE")
    L("R_EPI")
    stream_of(54, 7, "0.5")
    I("v_sub_u32 v59, v53, v54")
    I("v_lshl_add_u32 v56, v54, 2, v5")
    I(f"v_mul_u32_u24 v56, {SLOT_STRIDE//4}, v56")
    I(f"v_add_u32 v56, {SLOT_OFF}, v56")
    I("v_cmp_lt_i32 s[74:75], 0, v59")
    I("v_cmp_lt_i32 s[76:77], 1, v59")
    I(f"v_add_u32 v57, {SLOT_STRIDE}, v56")
    I(f"v_add_u32 v58, {2*SLOT_STRIDE}, v56")
    I(f"v_cndmask_b32 v57, v{VOOB}, v57, s[74:75]")
    I(f"v_cndmask_b32 v58, v{VOOB}, v58, s[76:77]")
    I("v_lshlrev_b32 v55, 2, v5")
    I(f"ds_write_b128 v55, v[56:59] offset:{EPI}")
    I("s_branch B_XDONE")
    L("R_PAD")
    I(f"v_mov_b32 v52, {N}")
    I(f"v_add_u32 v53, {LIST_OFF - 8}, v3")
    I("v_cmp_lt_u32 s[74:75], v6, v2")
    I("s_mov_b64 exec, s[74:75]")
    I("ds_write_b32 v53, v52 offset:4")
    I("v_cmp_eq_u32 s[74:75], 0, v6")
    I("s_mov_b64 exec, s[74:75]")
    I("ds_write_b32 v53, v52")
    I("s_mov_b64 exec, 0x3f")
    I("s_add_u32 s71, s64, s85")
    I("v_add_u32 v53, s71, v5")
    I("ds_write_b32 v53, v52")
    I("s_mov_b64 exec, -1")
    I("s_cmp_eq_u32 s2, 0")
    I("s_cbranch_scc0 B_XDONE")
    bump()
    I("s_branch B_XDONE")
    L("R_FLAGS")
    I("s_add_u32 s43, s43, 1")
    I(f"s_cmp_gt_u32 s43, {POLL_LIMIT}")
    I("s_cbranch_scc1 R_FLAGT")
    I("s_sleep 2")
    I("s_mov_b64 exec, vcc")
    I(f"global_load_dword v35, v34, {WS} sc1")
    I("s_waitcnt vmcnt(0)")
    I(f"v_cmp_ne_u32 vcc, v{TG+3}, v35")
    I("s_mov_b64 exec, -1")
    I("s_branch B_XDONE")
    L("R_FLAGT")
    I("v_mov_b32 v52, 3")
    I(f"ds_or_b32 v1, v52 offset:{FLAG}")
    I("s_branch B_FDONE")
    L("R_LONG")
    I("s_mov_b32 s64, 2")
    I("s_mov_b64 vcc, s[48:49]")
    L("R_LONG1")
    I("s_mov_b64 exec, vcc")
    I(f"v_add_u32 v{EP+2}, {SLOT_STRIDE}, v{EP+2}")
    I(f"ds_read_b128 v[16:19], v{EP+2}")
    I(f"ds_read_b128 v[20:23], v{EP+2} offset:256")
    I("s_add_u32 s64, s64, 1")
    I("s_waitcnt lgkmcnt(0)")
    for i in range(4):
        I(f"v_pk_add_f32 {vr(8+2*i,2)}, {vr(8+2*i,2)}, {vr(16+2*i,2)}")
    I(f"v_cmp_lt_i32 vcc, s64, v{EP+3}")
    I("s_cbranch_vccnz R_LONG1")
    I("s_mov_b64 exec, -1")
    I("s_branch K_MATH")

    L("K_SLOW")
    I("s_load_dwordx8 s[4:11], s[0:1], 0")
    I("s_load_dwordx2 s[12:13], s[0:1], 40")
    I("s_load_dwordx2 s[14:15], s[0:1], 64")
    I("s_setprio 0")
    I("s_waitcnt vmcnt(0) lgkmcnt(0)")
    I("s_cmp_eq_u32 s3, 15")
    I("s_cselect_b32 s71, s80, 0")
    I("s_and_b32 s71, s71, 2")
    I("s_cbranch_scc0 K_SL0")
    bump()
    I("s_waitcnt vmcnt(0)")
    L("K_SL0")
    WB2, WV2 = 40, 72
    I("v_lshrrev_b32 v6, 1, v5")
    I("v_add_u32 v7, 4096, v6")
    for (w, p_) in ((WB2, 12), (WV2, 14)):
        for hf in range(2):
            for k in range(16):
                I(f"global_load_ushort v{w + 16*hf + k}, v{6 + hf}, s[{p_}:{p_+1}] offset:{2*k*128}")
                I(f"global_load_ushort v{8 + k}, v{6 + hf}, s[{p_}:{p_+1}] offset:{(2*k+1)*128}")
            I("s_waitcnt vmcnt(0)")
            for k in range(16):
                I(f"v_lshl_or_b32 v{w + 16*hf + k}, v{8 + k}, 16, v{w + 16*hf + k}")
    for i in range(4):
        I(f"v_mov_b32 v{28+i}, 0")
    I("v_lshlrev_b32 v8, 4, v0")
    for k in range(4):
        I(f"ds_write_b128 v8, v[28:31] offset:{SLOT_OFF + k*16384}")
    I(f"ds_read_u16 v18, v6 offset:{WC_OFF}")
    I(f"s_mov_b32 s18, {hex(f32(1e-6))}")
    I("s_mov_b32 s19, s18")
    I(f"s_mov_b32 s16, {hex(f32(-LOG2E))}")
    I(f"v_lshl_add_u32 v17, v124, 2, v{LC}")
    I("v_lshlrev_b32 v10, 1, v5")
    I("s_waitcnt lgkmcnt(0)")
    I("v_lshlrev_b32 v18, 16, v18")
    I("s_barrier")
    I("v_lshlrev_b32 v8, 2, v0")
    I("v_lshlrev_b32 v9, 1, v0")
    I("s_lshl_b32 s70, s3, 6")
    L("K_SLOOP")
    I(f"global_load_dword v11, v8, {sr(P_DST,2)}")
    I(f"global_load_dword v12, v8, {sr(P_SRC,2)}")
    I(f"global_load_ushort v13, v9, {sr(P_E,2)}")
    I("s_waitcnt vmcnt(0)")
    I("v_and_b32 v14, 0xff, v11")
    I("v_cmp_eq_u32 s[74:75], s2, v14")
    L("K_SIN")
    I("s_cmp_eq_u64 s[74:75], 0")
    I("s_cbranch_scc1 K_SNEXT")
    I("s_ff1_i32_b64 s73, s[74:75]")
    I("s_bitset0_b64 s[74:75], s73")
    I("v_readlane_b32 s79, v11, s73")
    I("v_readlane_b32 s80, v12, s73")
    I("v_readlane_b32 s81, v13, s73")
    I("s_lshr_b32 s79, s79, 8")
    I(f"s_mul_i32 s76, s79, {EAU_STRIDE}")
    I(f"s_add_u32 s76, s76, {EAU_OFF + 512}")
    I(f"s_mul_i32 s79, s79, {ACC_STRIDE}")
    I("s_lshl_b32 s80, s80, 7")
    I("s_add_u32 s78, s80, 64")
    I(f"s_load_dwordx16 s[36:51], {sr(P_X,2)}, s80")
    I(f"s_load_dwordx16 s[52:67], {sr(P_X,2)}, s78")
    I("s_lshl_b32 s81, s81, 16")
    I("v_add_u32 v15, s76, v17")
    I("v_add_u32 v16, s79, v10")
    I("ds_read_b32 v22, v15")
    I("v_mul_f32 v20, s81, v18")
    I("v_mov_b32 v21, 0")
    I("s_waitcnt lgkmcnt(0)")
    for k in range(32):
        I(f"v_dot2_f32_bf16 v20, s{36+k}, v{WB2+k}, v20")
        I(f"v_dot2_f32_bf16 v21, s{36+k}, v{WV2+k}, v21")
    I("s_nop 2")
    I("v_fma_f32 v20, v20, s16, v22")
    I("v_exp_f32 v20, v20")
    I("s_nop 0")
    I("v_add_f32 v20, 1.0, v20")
    I("v_rcp_f32 v20, v20")
    I("s_nop 0")
    I("v_mul_f32 v21, v21, v20")
    I("v_cvt_f64_f32 v[24:25], v20")
    I("v_cvt_f64_f32 v[26:27], v21")
    I(f"ds_add_f64 v16, v[24:25] offset:{SLOT_OFF}")
    I(f"ds_add_f64 v16, v[26:27] offset:{SLOT_OFF + 512}")
    I("s_branch K_SIN")
    L("K_SNEXT")
    I("s_add_u32 s70, s70, 1024")
    I("v_add_u32 v8, 4096, v8")
    I("v_add_u32 v9, 2048, v9")
    I(f"s_cmp_lt_u32 s70, {E}")
    I("s_cbranch_scc1 K_SLOOP")
    I("v_lshrrev_b32 v6, 4, v0")
    I(f"v_mul_u32_u24 v6, {ACC_STRIDE}, v6")
    I(f"v_lshl_add_u32 v6, v{LC}, 1, v6")
    I("s_waitcnt lgkmcnt(0)")
    I("s_barrier")
    I("s_cmp_lt_u32 s3, 13")
    I("s_cbranch_scc0 K_FIN")
    I(f"ds_read_b128 v[16:19], v6 offset:{SLOT_OFF}")
    I(f"ds_read_b128 v[20:23], v6 offset:{SLOT_OFF+16}")
    I(f"ds_read_b128 v[24:27], v6 offset:{SLOT_OFF+512}")
    I(f"ds_read_b128 v[28:31], v6 offset:{SLOT_OFF+528}")
    I("s_waitcnt lgkmcnt(0)")
    for c in range(8):
        I(f"v_cvt_f32_f64 v{8+c}, {vr(16+2*c,2)}")
    I("s_branch K_MATH")
    L("SLOW_END")

hdr = open("standalone__edge_featured_mpnn_gatedgcn__graph.s.ref").read().split("\n")
for line in hdr:
    if line.startswith("; Override"):
        break
    o(line)
o(f"; @launch kernel={KNAME} grid=(256,1,1) block=(1024,1,1) lds={LDS_TOTAL}")
o('.amdgcn_target "amdgcn-amd-amdhsa--gfx950"')
o(".text")
gen()
o('.section .rodata,"a"')
o(".p2align 6")
o(f".amdhsa_kernel {KNAME}")
o("  .amdhsa_next_free_vgpr 128")
o("  .amdhsa_next_free_sgpr 102")
o("  .amdhsa_accum_offset 128")
o("  .amdhsa_group_segment_fixed_size 0")
o("  .amdhsa_kernarg_size 96")
o("  .amdhsa_user_sgpr_count 2")
o("  .amdhsa_user_sgpr_kernarg_segment_ptr 1")
o("  .amdhsa_system_sgpr_workgroup_id_x 1")
o(".end_amdhsa_kernel")
open(sys.argv[1], "w").write("\n".join(out) + "\n")
```

```python
import sys, struct

OPT = dict(stamp=0, sts="2_3_4_5_6_7", force_slow=0, prio="16_8_4", spin=0, spinat=18, hack=0, sleep=2, delay=0,
           codepf=1, gprio=1, pf=0, pf2=0, pre=1, cfirst=0, gbar=1, init1=1, sup=1, cprio=1, nog=0, gsc="sc1", cut=0, ef=0, fs=7)
for a in sys.argv[2:]:
    k, v = a.split("=")
    OPT[k] = int(v) if v.lstrip("-").isdigit() else v

KNAME = "standalone__edge_featured_mpnn_gatedgcn__graph_kernel"
N = 12500
E = 800000
CHUNK = 3136
TAB_ROWS = N + 1
CTL_OFF = 0x380000
FLG_OFF = 0x390000
CELL_OFF = 0x400000
BIN_STRIDE = 32768 + 256
LINE_STRIDE = 0x900000
STAMP_OFF = 0x4000000
LOG2E = 1.4426950408889634
KEXP = 62
POLL_LIMIT = 100000

X_OFF = 0
WC_OFF = 8192
C1_OFF = 8448
C2_OFF = 9472
FLAG = C2_OFF + 256
SYNC = C2_OFF + 260
TAGS = C2_OFF + 272
BASE = C2_OFF + 512
STR = C2_OFF + 1024
EPI = C2_OFF + 2048
IMG = C2_OFF + 3072
IMG_STRIDE = 272
EAU_OFF = IMG + 256 * IMG_STRIDE
EAU_STRIDE = 800
W_OFF = EAU_OFF + 52 * EAU_STRIDE
LDS_TOTAL = W_OFF + 32768
LIST_OFF = W_OFF
LIST_MAX = 31 * 16 * 32
SLOT_OFF = IMG
SLOT_STRIDE = 576
ACC_STRIDE = 1056
OOB = 0x30000
assert W_OFF % 128 == 0 and 117 * SLOT_STRIDE <= 256 * IMG_STRIDE and LDS_TOTAL <= 163840
INC = 0x5556

def f32(x):
    return struct.unpack("<I", struct.pack("<f", x))[0]

out = []
def o(s=""):
    out.append(s)
def I(s):
    out.append("    " + s)
def L(s):
    out.append(s + ":")
def vr(a, n=1):
    return f"v{a}" if n == 1 else f"v[{a}:{a+n-1}]"
def sr(a, n=1):
    return f"s{a}" if n == 1 else f"s[{a}:{a+n-1}]"
def sdwa(sel1):
    return f"dst_sel:DWORD dst_unused:UNUSED_PAD src0_sel:DWORD src1_sel:{sel1}"

P_X, P_E, P_SRC, P_DST, P_WA, P_WB, P_WC, P_WU, P_WV, P_OUT, P_DBG, P_WS = 4, 6, 8, 10, 12, 14, 16, 18, 20, 22, 24, 26
S_TAB, S_X = 28, 32
WS = sr(P_WS, 2)

STS = [int(x) for x in str(OPT["sts"]).split("_")] if OPT["stamp"] else []
RTS = {12: 28, 17: 29} if OPT["stamp"] == 2 else {}
def stamp(i):
    if OPT["spin"] and OPT["spinat"] == i:
        lab = f"SPIN_{len(out)}"
        I("s_cselect_b32 s92, 1, 0")
        L(lab)
        I("s_memrealtime s[90:91]")
        I("s_waitcnt lgkmcnt(0)")
        I("s_sub_u32 s90, s90, s98")
        I(f"s_cmp_lt_u32 s90, {OPT['spin']}")
        I(f"s_cbranch_scc1 {lab}")
        I("s_cmp_lg_u32 s92, 0")
    if not OPT["stamp"]:
        return
    if i == 0:
        I("s_memrealtime s[86:87]")
    elif i == 1:
        I("s_memtime s[88:89]")
    elif i in STS:
        k = 90 + 2 * STS.index(i)
        I(f"s_memtime s[{k}:{k+1}]")
        if i in RTS:
            k = 90 + 2 * STS.index(RTS[i])
            I(f"s_memrealtime s[{k}:{k+1}]")
def stamp_out():
    if not OPT["stamp"]:
        return
    I("s_mov_b64 exec, -1")
    I("s_waitcnt vmcnt(0) lgkmcnt(0)")
    I("s_memtime s[80:81]")
    I("s_memrealtime s[82:83]")
    I("s_waitcnt lgkmcnt(0)")
    I("v_writelane_b32 v127, s80, 30")
    I("v_writelane_b32 v127, s82, 31")
    I("v_writelane_b32 v127, s86, 0")
    I("v_writelane_b32 v127, s88, 1")
    for i in list(range(2, 19)) + list(range(20, 30)):
        I(f"v_writelane_b32 v127, s{90 + 2*STS.index(i) if i in STS else 88}, {i}")
    I("s_lshl_b32 s84, s2, 4")
    I("s_add_u32 s84, s84, s3")
    I("s_lshl_b32 s84, s84, 7")
    I(f"s_add_u32 s84, s84, {hex(STAMP_OFF)}")
    I("v_and_b32 v1, 63, v0")
    I("v_lshl_add_u32 v1, v1, 2, s84")
    I("s_mov_b64 exec, 0xffffffff")
    I(f"global_store_dword v1, v127, {WS}")

def srd(d, p, size):
    I(f"s_mov_b64 {sr(d,2)}, {sr(p,2)}")
    I(f"s_mov_b32 s{d+2}, {hex(size)}")
    I(f"s_mov_b32 s{d+3}, 0x20000")

D, S, EE = 16, 20, 24
AP = 104
TG = 120
B2 = 128 * IMG_STRIDE

def edge_loads(lo=0, hi=3):
    ins = [f"global_load_dwordx4 {vr(D,4)}, v10, {sr(P_DST,2)}",
           f"global_load_dwordx4 {vr(S,4)}, v10, {sr(P_SRC,2)}",
           f"global_load_dwordx2 {vr(EE,2)}, v11, {sr(P_E,2)}"]
    for x in ins[lo:hi]:
        I(x)

def binning(waits):
    B4, RK, PA = 28, 32, 36
    I(f"v_mov_b32 v14, {INC}")
    I(f"s_mov_b32 s68, {47*INC}")
    I("s_mov_b32 s69, 0x05040100")
    I("s_mov_b32 s70, 0x07060100")
    if waits:
        I("s_waitcnt vmcnt(2)")
        stamp(3)
    for i in range(4):
        I(f"v_lshlrev_b32_sdwa v{B4+i}, 2, v{D+i} {sdwa('BYTE_0')}")
        I(f"ds_add_rtn_u32 v{RK+i}, v{B4+i}, v14 offset:{C1_OFF}")
    for i in range(4):
        I(f"v_mul_u32_u24 v{B4+i}, {IMG_STRIDE//4}, v{B4+i}")
        I(f"v_lshrrev_b32 v{D+i}, 8, v{D+i}")
    for i in range(4):
        I("s_waitcnt lgkmcnt(3)")
        I(f"v_min_u32 v{RK+i}, s68, v{RK+i}")
        I(f"v_lshrrev_b32 v{RK+i}, 14, v{RK+i}")
        I(f"v_lshl_add_u32 v{PA+i}, v{RK+i}, 2, v{B4+i}")
        I(f"v_and_b32 v{RK+i}, 3, v{RK+i}")
        I(f"v_or3_b32 v{RK+i}, v{PA+i}, 12, v{RK+i}")
        I(f"ds_write_b8 v{RK+i}, v{D+i} offset:{IMG}")
    if waits:
        I("s_waitcnt vmcnt(0)")
        stamp(4)
    for i in range(4):
        if OPT["hack"]:
            I(f"v_and_b32 v{S+i}, {OPT['hack']}, v{S+i}")
        I(f"v_perm_b32 v{S+i}, v{EE+(i>>1)}, v{S+i}, s{69+(i&1)}")
        I(f"ds_write_b32 v{PA+i}, v{S+i} offset:{IMG}")

def copy_consts():
    I("s_lshr_b32 s64, s2, 7")
    I("s_lshl_b32 s64, s64, 14")
    I(f"s_add_u32 s64, s64, {hex(CELL_OFF)}")
    I(f"v_mul_u32_u24 v6, {BIN_STRIDE//4}, v5")
    I("v_lshl_add_u32 v6, v0, 4, v6")
    I("v_add_u32 v6, s64, v6")
    I(f"v_add_u32 v7, {128*BIN_STRIDE}, v6")
    I(f"s_mul_i32 s64, s2, {BIN_STRIDE}")
    I(f"s_add_u32 s64, s64, {hex(CELL_OFF)}")
    I("v_lshl_add_u32 v2, v0, 4, s64")
    I("v_add_u32 v3, 0x4000, v2")
    I("s_mov_b32 s36, 0x0f0f0f0f")
    I("s_mov_b32 s37, s36")
    I(f"s_mov_b32 s38, {12*INC}")
    I(f"s_mov_b32 s39, {24*INC}")
    I("s_mov_b32 s40, 0xc000")
    I("s_mov_b32 s41, 0xffc0c0c0")
    I(f"s_mov_b32 s42, {49 << 16}")
    I("s_mov_b32 s43, 0")
    I("v_mov_b32 v1, 0")
    I(f"s_mov_b32 s{S_TAB}, s{P_WS}")
    I(f"s_or_b32 s{S_TAB+1}, s{P_WS+1}, 0x1000000")
    I(f"s_mov_b32 s{S_TAB+2}, {0 if OPT['nog'] else TAB_ROWS}")
    I(f"s_mov_b32 s{S_TAB+3}, 0x20000")

def lds_init():
    I("v_add_u32 v5, s2, v3")
    I("v_and_b32 v5, 127, v5")
    I(f"v_mul_u32_u24 v4, {IMG_STRIDE}, v5")
    I("v_lshl_add_u32 v4, v2, 4, v4")
    I("v_lshlrev_b32 v5, 2, v5")
    I("v_mov_b32 v12, 0")
    I("v_mov_b32 v13, 0x3f3f3f")
    I(f"ds_write2st64_b32 v5, v12, v12 offset0:{C1_OFF//256} offset1:{C1_OFF//256+2}")
    for r in range(1 if OPT["init1"] else 2):
        for b in range(2):
            I(f"ds_write_b32 v4, v13 offset:{IMG + b*B2 + r*128 + 12}")
def edge_addr():
    I(f"s_mul_i32 s64, s2, {CHUNK*4}")
    I("v_lshl_add_u32 v10, v0, 4, s64")
    I("v_lshrrev_b32 v11, 1, v10")

def gen():
    o(".p2align 8")
    o(f".globl {KNAME}")
    o(f".type {KNAME},@function")
    L(KNAME)
    I("s_cmp_ge_u32 s2, 256")
    I("s_cbranch_scc1 K_END")
    stamp(0); stamp(1)
    I("s_load_dwordx16 s[4:19], s[0:1], 0")
    I("s_load_dwordx8 s[20:27], s[0:1], 64")
    if OPT["spin"]:
        I("s_memrealtime s[98:99]")
    I("v_lshrrev_b32 v1, 6, v0")
    I("v_and_b32 v2, 7, v0")
    I("v_readfirstlane_b32 s3, v1")
    I("v_lshrrev_b32 v3, 3, v0")
    I("s_mov_b32 s79, 0")
    I("s_cmp_ge_u32 s3, 12")
    I("s_cbranch_scc1 G_ENTRY")

    I("s_cmp_ge_u32 s3, 2")
    I("s_cbranch_scc1 A_NOPF")
    if OPT["codepf"]:
        I("s_getpc_b64 s[64:65]")
        L("A_PC")
        I("v_lshlrev_b32 v8, 7, v0")
        I("v_min_u32 v8, K_SLOW-A_PC-4, v8")
        I("global_load_dword v27, v8, s[64:65]")
    I("v_lshlrev_b32 v8, 4, v0")
    I("v_mov_b64 v[12:13], 0")
    I("v_mov_b64 v[14:15], 0")
    I(f"ds_write_b128 v8, v[12:15] offset:{C2_OFF}")
    L("A_NOPF")
    lds_init()
    edge_addr()
    I(f"v_cmp_gt_u32 vcc, {E*4}, v10")
    I("s_waitcnt lgkmcnt(0)")
    stamp(24)
    if OPT["cfirst"]:
        copy_consts()
    I("s_mov_b64 exec, vcc")
    I("s_cbranch_execz A_NOE")
    edge_loads(0, OPT["pre"])
    I("s_barrier")
    stamp(2)
    edge_loads(OPT["pre"], 3)
    if not OPT["cfirst"]:
        I("s_mov_b64 exec, -1")
        copy_consts()
        I("s_mov_b64 exec, vcc")
    binning(True)
    I("s_mov_b64 exec, -1")
    I("s_branch A_JOIN")
    L("A_NOE")
    I("s_barrier")
    I("s_mov_b64 exec, -1")
    if not OPT["cfirst"]:
        copy_consts()
    I("s_branch A_JOIN")

    XA, FA, FB, ACC1, ACC2 = 28, 36, 68, 104, 36
    L("G_ENTRY")
    if OPT["gprio"]:
        I("s_setprio 3")
    I("v_and_b32 v7, 7, v3")
    I("s_and_b32 s64, s3, 1")
    I("s_lshl_b32 s64, s64, 2")
    I("v_and_b32 v8, 2, v7")
    I("v_xor_b32 v8, v8, v2")
    I("v_xor_b32 v8, s64, v8")
    I("v_lshlrev_b32 v8, 4, v8")
    I("v_lshl_add_u32 v8, v7, 7, v8")
    I("s_and_b32 s65, s3, 3")
    I("s_lshl_b32 s65, s65, 11")
    I("v_add_u32 v8, s65, v8")
    I(f"s_add_u32 s65, s65, {W_OFF}")
    I("s_add_u32 s66, s3, 3")
    I("s_and_b32 s66, s66, 3")
    I("v_xor_b32 v9, v2, v7")
    I("v_lshlrev_b32 v9, 4, v9")
    I("v_lshl_add_u32 v9, v7, 15, v9")
    I("s_lshl_b32 s67, s66, 19")
    I("s_lshl_b32 s68, s2, 7")
    I("s_add_u32 s67, s67, s68")
    I("v_add_u32 v9, s67, v9")
    I("v_add_u32 v15, 0x40000, v9")
    I("s_lshl_b32 s67, s66, 11")
    I(f"s_mov_b32 s{S_X+2}, {N*128}")
    I(f"s_mov_b32 s{S_X+3}, 0x20000")
    I("s_mov_b32 m0, s67")
    I("s_waitcnt lgkmcnt(0)")
    stamp(24)
    I(f"s_mov_b64 {sr(S_X,2)}, {sr(P_X,2)}")
    I(f"buffer_load_dwordx4 v9, {sr(S_X,4)}, 0 offen lds")
    I("s_add_u32 m0, s67, 1024")
    I("s_nop 0")
    I(f"buffer_load_dwordx4 v15, {sr(S_X,4)}, 0 offen lds")
    def w_dma(p, off, va="v8", sd="s65"):
        I(f"s_add_u32 m0, {sd}, {off}")
        I("s_nop 0")
        I(f"global_load_lds_dwordx4 {va}, {sr(p,2)}")
        I(f"global_load_lds_dwordx4 {va}, {sr(p,2)} offset:1024")
    w_dma(P_WB, 0)
    w_dma(P_WV, 8192)
    lds_init()
    edge_addr()
    if OPT["gbar"]:
        I("s_waitcnt lgkmcnt(0)")
        I("s_barrier")
        stamp(2)
    I("s_cmp_eq_u32 s3, 12")
    I("s_cselect_b32 s74, 0xffff, 0")
    I("s_cmp_eq_u32 s2, 255")
    I("s_cselect_b32 s74, 0, s74")
    I("s_mov_b32 s75, 0")
    I("s_mov_b64 exec, s[74:75]")
    I("s_cbranch_execz G_NOE")
    edge_loads()
    L("G_NOE")
    I("s_mov_b64 exec, -1")
    I("v_mov_b32 v126, v8")
    I("v_lshlrev_b32 v100, 4, v2")
    I("s_mov_b32 s78, s65")
    I(f"s_mov_b64 {sr(S_X,2)}, {WS}")
    I(f"s_mov_b32 s{S_X+2}, {TAB_ROWS*256}")
    copy_consts()
    I("v_and_b32 v124, 15, v0")
    I("v_bfe_u32 v125, v0, 4, 2")
    I("v_and_b32 v8, 7, v124")
    I("v_lshlrev_b32 v9, 1, v125")
    I("v_xor_b32 v8, v8, v9")
    I("v_lshlrev_b32 v8, 4, v8")
    I("v_lshl_add_u32 v8, v124, 7, v8")
    I("v_add_u32 v8, s67, v8")
    I("v_xor_b32 v9, 16, v8")
    I("v_lshrrev_b32 v10, 2, v124")
    I("v_and_b32 v11, 2, v10")
    I("v_bfe_u32 v12, v0, 1, 1")
    I("v_or_b32 v11, v11, v12")
    I("v_and_b32 v12, 1, v125")
    I("v_lshl_or_b32 v11, v12, 2, v11")
    I("v_lshlrev_b32 v11, 4, v11")
    I("v_and_b32 v12, 1, v0")
    I("v_lshl_or_b32 v11, v12, 3, v11")
    I("v_lshl_add_u32 v10, v125, 4, v10")
    I("v_lshl_or_b32 v11, v10, 7, v11")
    I(f"v_add_u32 v12, {W_OFF}, v11")
    for T in range(1, 4):
        I(f"v_xor_b32 v{12+T}, {T << 5}, v12")
    I(f"s_mov_b32 s76, {hex(f32(-LOG2E))}")
    I("s_mov_b32 s77, 0x07060302")
    I(f"v_mov_b32 v26, {hex(f32(2.0**-70))}")
    I("s_lshl_b32 s64, s66, 20")
    I("s_lshl_b32 s65, s2, 8")
    I("s_add_u32 s64, s64, s65")
    I("v_lshlrev_b32 v27, 18, v125")
    I("v_lshl_add_u32 v27, v124, 4, v27")
    I("v_add_u32 v27, s64, v27")
    I("v_mov_b32 v10, 1")
    def g_sync(target, lab, arrive=True):
        if arrive:
            I("s_mov_b64 exec, 1")
            I(f"ds_add_u32 v1, v10 offset:{SYNC}")
            I("s_mov_b64 exec, -1")
        L(lab)
        I(f"ds_read_b32 v11, v1 offset:{SYNC}")
        I("s_waitcnt lgkmcnt(0)")
        I("v_readfirstlane_b32 s64, v11")
        I(f"s_cmp_lt_u32 s64, {target}")
        I(f"s_cbranch_scc1 {lab}")
    def frag_reads(F, moff):
        for T in range(4):
            for s in range(2):
                for h in range(2):
                    I(f"ds_read_b64_tr_b16 {vr(F + 8*T + 4*s + 2*h, 2)}, v{12+T} offset:{moff + (8*s+4*h)*128}")
    def mfmas(F, acc, swap, later):
        for T in range(4):
            I(f"s_waitcnt lgkmcnt({min(15, later + 4*(3-T))})")
            for s in range(2):
                a, b = vr(XA + 4*s, 4), vr(F + 8*T + 4*s, 4)
                if swap:
                    a, b = b, a
                c = "0" if s == 0 else vr(acc + 4*T, 4)
                I(f"v_mfma_f32_16x16x32_bf16 {vr(acc+4*T,4)}, {a}, {b}, {c}")
    if not OPT["gbar"]:
        I("s_waitcnt lgkmcnt(0)")
        I("s_barrier")
        stamp(2)
    I("s_cmp_eq_u64 s[74:75], 0")
    I("s_cbranch_scc1 G_W0")
    I("s_waitcnt vmcnt(3)")
    I("s_branch G_W1")
    L("G_W0")
    I("s_waitcnt vmcnt(0)")
    L("G_W1")
    stamp(3)
    g_sync(4, "G_S1")
    stamp(20)
    I(f"ds_read_b128 {vr(XA,4)}, v8")
    I(f"ds_read_b128 {vr(XA+4,4)}, v9")
    frag_reads(FA, 0)
    frag_reads(FB, 8192)
    stamp(21)
    w_dma(P_WA, 16384, "v126", "s78")
    w_dma(P_WU, 24576, "v126", "s78")
    I("s_cmp_eq_u32 s3, 13")
    I("s_cbranch_scc0 G_NOWC")
    I(f"s_mov_b32 m0, {WC_OFF}")
    I("s_mov_b64 exec, 0xff")
    I(f"global_load_lds_dwordx4 v100, {sr(P_WC,2)}")
    I("s_mov_b64 exec, -1")
    L("G_NOWC")
    stamp(22)
    mfmas(FA, ACC1, False, 16)
    mfmas(FB, ACC2, False, 0)
    stamp(23)
    I("s_cmp_eq_u32 s3, 13")
    I("s_cbranch_scc0 G_NOEP")
    I(f"s_add_u32 s70, s{P_WS}, {hex(CTL_OFF)}")
    I(f"s_addc_u32 s71, s{P_WS+1}, 0")
    I("s_load_dwordx2 s[72:73], s[70:71], 8")
    L("G_NOEP")
    ACCB, ACCV, OUTR = ACC1, ACC2, FB
    SD = sdwa("WORD_1")
    I("s_mov_b32 s80, 0x8000")
    I("s_mov_b32 s81, 0x8000")
    I(f"s_mov_b32 s68, {hex(f32(2.0**-100))}")
    I("s_mov_b32 s69, s68")
    I("v_mov_b32 v10, v26")
    I("v_mov_b32 v11, v26")
    I("s_nop 1")
    for rp in (0, 2):
        for t in range(4):
            I(f"v_pk_fma_f32 {vr(ACCB+4*t+rp,2)}, {vr(ACCB+4*t+rp,2)}, s[76:77], v[10:11] op_sel_hi:[1,0,1]")
        for t in (1, 3):
            I(f"v_pk_add_f32 {vr(ACCV+4*t+rp,2)}, {vr(ACCV+4*t+rp,2)}, s[68:69]")
        for t in range(4):
            I(f"v_lshl_add_u64 {vr(ACCB+4*t+rp,2)}, {vr(ACCB+4*t+rp,2)}, 0, s[80:81]")
        for t in range(4):
            I(f"v_lshl_add_u64 {vr(ACCV+4*t+rp,2)}, {vr(ACCV+4*t+rp,2)}, 0, s[80:81]")
        for r in (rp, rp + 1):
            for t in (0, 2):
                I(f"v_sub_u32_sdwa v{ACCB+4*t+r}, v{ACCB+4*t+r}, v{ACCV+4*t+r} clamp {SD}")
            for t in (0, 2):
                I(f"v_sub_u32_sdwa v{ACCV+4*(t+1)+r}, v{ACCV+4*(t+1)+r}, v{ACCB+4*t+r} clamp {SD}")
            for t in (0, 2):
                I(f"v_sub_u32_sdwa v{ACCB+4*(t+1)+r}, v{ACCB+4*(t+1)+r}, v{ACCV+4*(t+1)+r} clamp {SD}")
            for t in range(4):
                I(f"v_perm_b32 v{OUTR+4*r+t}, v{ACCB+4*t+r}, v{ACCV+4*t+r}, s77")
            if r == 0:
                I("s_cmp_eq_u32 s3, 12")
                I("s_cbranch_scc1 G_T3")
            else:
                I("v_add_u32 v27, 0x10000, v27")
            I(f"buffer_store_dwordx4 {vr(OUTR+4*r,4)}, v27, {sr(S_X,4)}, 0 offen sc1")
    stamp(4)
    I("s_cmp_eq_u32 s3, 13")
    I("s_cbranch_scc0 G_BVD")
    I("s_waitcnt lgkmcnt(0)")
    I("s_add_u32 s72, s72, 0x1000000")
    I("s_addc_u32 s73, s73, 0")
    I("s_and_b32 s72, s72, 0xff000000")
    for k in range(3):
        I(f"s_bfe_u32 s64, s73, {hex((2 << 16) | (2*k))}")
        I(f"s_lshl_b32 s64, s64, {6 + 8*k}")
        I("s_or_b32 s72, s72, s64")
        I(f"s_bfe_u32 s64, s73, {hex((2 << 16) | (6 + 2*k))}")
        I("s_lshl_b32 s64, s64, 14")
        I(f"v_mov_b32 v{TG+k}, s64")
    I(f"v_mov_b32 v{TG+3}, s72")
    I(f"ds_write_b128 v1, {vr(TG,4)} offset:{TAGS}")
    L("G_BVD")
    I("s_waitcnt vmcnt(4)")
    I("s_branch G_DONE")
    L("G_T3")
    I("s_cmp_eq_u32 s2, 212")
    I("s_cbranch_scc0 G_NODUM")
    for t in range(4):
        I(f"v_mov_b32 v{OUTR+t}, 0x7f000000")
    L("G_NODUM")
    I(f"buffer_store_dwordx4 {vr(OUTR,4)}, v27, {sr(S_X,4)}, 0 offen sc1")
    I("s_waitcnt vmcnt(5)")
    I("s_mov_b64 exec, s[74:75]")
    I("s_cbranch_execz G_NOBIN")
    I("v_mov_b32 v126, v14")
    binning(False)
    I("v_mov_b32 v14, v126")
    L("G_NOBIN")
    I("s_mov_b64 exec, -1")
    I(f"ds_read_b128 {vr(XA,4)}, v8")
    I(f"ds_read_b128 {vr(XA+4,4)}, v9")
    stamp(4)
    I("s_waitcnt vmcnt(1)")
    L("G_DONE")
    if OPT["gprio"] and not OPT["cprio"]:
        I("s_setprio 0")
    stamp(5)

    L("A_JOIN")
    if OPT["cprio"]:
        I("s_setprio 3")
    I("s_waitcnt lgkmcnt(0)")
    stamp(6)
    I("s_barrier")
    stamp(7)
    C0 = 48
    I(f"ds_read_b128 {vr(TG,4)}, v1 offset:{TAGS}")
    I(f"ds_read2st64_b32 v[8:9], v5 offset0:{C1_OFF//256} offset1:{C1_OFF//256+2}")
    I(f"ds_read_b128 {vr(C0,4)}, v4 offset:{IMG}")
    I(f"ds_read_b128 {vr(C0+4,4)}, v4 offset:{IMG+B2}")
    def tagit(c):
        for k in range(3):
            I(f"v_bfi_b32 v{c+k}, s40, v{TG+k}, v{c+k}")
        I(f"v_or_b32 v{c+3}, v{TG+3}, v{c+3}")
    I("s_waitcnt lgkmcnt(2)")
    I("v_cmp_le_u32 s[72:73], s38, v8")
    I("v_cmp_le_u32 s[74:75], s38, v9")
    I("v_max_u32 v10, v8, v9")
    I("v_cmp_le_u32 vcc, s39, v10")
    I("s_waitcnt lgkmcnt(1)")
    tagit(C0)
    I("s_or_b64 exec, s[72:73], s[36:37]")
    I(f"global_store_dwordx4 v6, {vr(C0,4)}, {WS} sc1")
    I("s_or_b64 exec, s[74:75], s[36:37]")
    I("s_waitcnt lgkmcnt(0)")
    tagit(C0 + 4)
    I(f"global_store_dwordx4 v7, {vr(C0+4,4)}, {WS} sc1")
    I("s_cbranch_vccnz R_PUB2")
    L("A_PUBD")
    I("s_mov_b64 exec, -1")
    if OPT["cprio"]:
        I("s_setprio 0")
    stamp(8)
    I("s_cmp_ge_u32 s3, 12")
    I("s_cbranch_scc0 B_NOAU")
    I("s_setprio 1")
    FU, FW, UU = 36, 84, 52
    def half_gemm(moff, acc, swap):
        for T in range(4):
            F = (FU if T < 2 else FW) + 8 * (T & 1)
            for s in range(2):
                for h in range(2):
                    I(f"ds_read_b64_tr_b16 {vr(F + 4*s + 2*h, 2)}, v{12+T} offset:{moff + (8*s+4*h)*128}")
        for T in range(4):
            F = (FU if T < 2 else FW) + 8 * (T & 1)
            I(f"s_waitcnt lgkmcnt({4*(3-T)})")
            for s in range(2):
                a, b = vr(XA + 4*s, 4), vr(F + 4*s, 4)
                if swap:
                    a, b = b, a
                c = "0" if s == 0 else vr(acc + 4*T, 4)
                I(f"v_mfma_f32_16x16x32_bf16 {vr(acc+4*T,4)}, {a}, {b}, {c}")
    half_gemm(16384, AP, False)
    I(f"s_lshl_b32 s64, s2, {OPT['fs']-2}")
    I("s_add_u32 s64, s64, s66")
    I("s_lshl_b32 s64, s64, 2")
    I(f"s_add_u32 s64, s64, {hex(FLG_OFF)}")
    I("v_mov_b32 v26, s64")
    I("s_waitcnt vmcnt(2)")
    I("s_mov_b64 exec, 1")
    I(f"global_store_dword v26, v{TG+3}, {WS} sc1")
    I("s_mov_b64 exec, -1")
    half_gemm(24576, UU, True)
    I(f"s_mul_i32 s65, s66, {16*EAU_STRIDE}")
    I(f"s_add_u32 s65, s65, {EAU_OFF}")
    I(f"v_mul_u32_u24 v26, {4*EAU_STRIDE}, v125")
    I("v_lshl_add_u32 v26, v124, 4, v26")
    I("v_add_u32 v25, s65, v26")
    I(f"v_mul_u32_u24 v27, {EAU_STRIDE}, v124")
    I("v_lshl_add_u32 v27, v125, 4, v27")
    I("v_add_u32 v27, s65, v27")
    for i in range(16):
        I(f"v_mul_f32 v{AP+i}, s76, v{AP+i}")
    I("s_cmp_eq_u32 s3, 12")
    I("s_cselect_b32 exec_lo, 0x000f000f, -1")
    I("s_cselect_b32 exec_hi, 0x000f000f, -1")
    for T in range(4):
        I(f"ds_write_b128 v27, {vr(UU+4*T,4)} offset:{256 + T*64}")
    I("s_cselect_b32 exec_hi, 0, -1")
    I("s_cselect_b32 exec_lo, 0xffff, -1")
    I(f"v_max3_f32 v26, |v{AP}|, |v{AP+1}|, |v{AP+2}|")
    for i in range(3, 15, 2):
        I(f"v_max3_f32 v26, |v{AP+i}|, |v{AP+i+1}|, v26")
    I(f"v_max_f32 v26, |v{AP+15}|, v26")
    I(f"v_cmp_nge_f32 vcc, {hex(f32(63.0))}, v26")
    EAT = 36
    for r in range(4):
        for t in range(4):
            I(f"v_add_f32 v{EAT+4*r+t}, {hex(f32(-float(KEXP)))}, v{AP+4*t+r}")
        for t in range(4):
            I(f"ds_write_b32 v25, v{AP+4*t+r} offset:{r*EAU_STRIDE + 512 + 4*t}")
            I(f"v_exp_f32 v{EAT+4*r+t}, v{EAT+4*r+t}")
        I("s_nop 0")
        I(f"ds_write_b128 v25, {vr(EAT+4*r,4)} offset:{r*EAU_STRIDE}")
        if r == 0:
            I("s_cbranch_scc1 G_EAD")
    L("G_EAD")
    I("s_mov_b64 exec, -1")
    I("s_cmp_lg_u64 vcc, 0")
    I("s_cselect_b32 s79, 1, 0")
    L("B_NOAU")

    RA, CA, KA, RB, CB, KB = 8, 24, 36, 64, 72, 78
    XB, Y, A = 48, 80, 100
    IP = (96, 98, 104, 106)
    UR, XR, VOUT, VU, LP, EP = 108, 112, 116, 117, 118, 120
    WCB, DEN, NUM, VOOB, C4, VRA, VSE, EA, P, Q, SS, LC = 16, 20, 44, 30, 31, 42, 32, 12, 24, 8, 36, 4
    I("v_and_b32 v5, 63, v0")
    I("s_cmp_lt_u32 s2, 212")
    I("s_cselect_b32 s64, 49, 48")
    I("v_cmp_gt_u32 s[82:83], s64, v5")
    I("v_lshlrev_b32 v5, 2, v5")
    I(f"v_and_b32 v{LC}, 15, v0")
    I(f"v_lshlrev_b32 v6, 1, v{LC}")
    for j in range(4):
        I(f"ds_read_u16 v{WCB+j}, v6 offset:{WC_OFF + 32*j}")
    I(f"v_lshlrev_b32 v{LC}, 4, v{LC}")
    I(f"v_mov_b32 v{C4}, 4")
    I(f"v_mov_b32 v{VOOB}, {OOB}")
    for p_ in IP:
        I(f"v_mov_b32 v{p_+1}, v{LC}")
    I(f"v_lshlrev_b32 v{LP}, 1, v6")
    I(f"v_mov_b32 v{LP+1}, v{LC}")
    I("v_lshrrev_b32 v7, 4, v0")
    I(f"v_mul_u32_u24 v{VU}, {EAU_STRIDE}, v7")
    I(f"s_mov_b32 s64, {EAU_OFF + 256}")
    I(f"v_add3_u32 v{VU}, v{VU}, s64, v{LC}")
    I("v_lshlrev_b32 v8, 2, v6")
    I("v_and_b32 v9, 0x70, v0")
    I("v_xor_b32 v9, v8, v9")
    I("v_lshl_add_u32 v9, v7, 7, v9")
    I(f"ds_read_b64 {vr(XR+2,2)}, v9 offset:{X_OFF}")
    I(f"v_lshl_add_u32 v{VOUT}, v7, 15, v8")
    I("s_lshl_b32 s64, s2, 7")
    I(f"v_add_u32 v{VOUT}, s64, v{VOUT}")
    srd(S_X, P_OUT, N * 128)
    for d in range(0, 4, 2):
        I(f"v_mov_b64 {vr(A+d,2)}, 0")
        I(f"v_mov_b64 {vr(DEN+d,2)}, 0")
        I(f"v_mov_b64 {vr(NUM+d,2)}, 0")
    I("s_mov_b64 s[68:69], -1")
    I("s_mov_b64 s[70:71], -1")
    I("s_cmp_lt_u32 s3, 4")
    I("s_cselect_b32 s78, 2, 0")
    I(f"s_mov_b32 s16, {hex(f32(2.0**-KEXP))}")
    I("s_mov_b32 s17, s16")
    I(f"s_mov_b32 s18, {hex(f32(1e-6 * 2.0**KEXP))}")
    I("s_mov_b32 s19, s18")
    I("s_mov_b32 s20, 32")
    I("s_mov_b32 s21, 32")
    I(f"s_mov_b32 s24, {SLOT_STRIDE}")
    I(f"s_mov_b32 s25, {EAU_STRIDE}")
    I(f"s_mov_b32 s85, {LIST_OFF}")
    I("s_mov_b32 s56, 0x11111111")
    I("s_mov_b32 s57, s56")
    I("s_lshl_b64 s[58:59], s[56:57], 1")
    I("s_lshl_b64 s[60:61], s[56:57], 2")
    I("s_lshl_b64 s[62:63], s[56:57], 3")
    I("v_bfe_u32 v124, v0, 4, 2")
    I("v_bfe_u32 v125, v0, 5, 1")
    I("v_bfe_u32 v126, v0, 2, 1")
    I("v_lshl_add_u32 v125, v126, 1, v125")
    I("v_bfe_u32 v126, v0, 3, 2")
    I("v_lshlrev_b32 v126, 2, v126")
    I("v_bfe_u32 v34, v0, 2, 3")
    I("s_lshl_b32 s64, s3, 3")
    I("s_sub_u32 s64, s2, s64")
    I("v_sub_u32 v34, s64, v34")
    I("v_and_b32 v34, 127, v34")
    I("v_and_b32 v35, 32, v0")
    I("v_lshl_add_u32 v34, v35, 2, v34")
    I("v_and_b32 v35, 3, v0")
    if OPT["pf"] or OPT["pf2"]:
        I("v_lshlrev_b32 v33, 8, v34")
        I("v_lshl_add_u32 v33, v35, 20, v33")
        I("s_lshr_b32 s64, s2, 4")
        I("s_lshl_b32 s64, s64, 16")
        I("s_bfe_u32 s65, s2, 0x10003")
        I("s_lshl_b32 s65, s65, 7")
        I("s_add_u32 s64, s64, s65")
        I("v_add_u32 v33, s64, v33")
    I(f"v_lshlrev_b32 v34, {OPT['fs']}, v34")
    I("v_lshl_add_u32 v34, v35, 2, v34")
    I(f"v_add_u32 v34, {hex(FLG_OFF)}, v34")
    I(f"s_mov_b32 s64, {hex(f32(-LOG2E))}")
    I("s_mov_b32 s66, 0x0000ffff")
    I("s_mov_b32 s67, 0xffff0000")
    I("s_waitcnt lgkmcnt(0)")
    for j in range(4):
        I(f"v_lshlrev_b32 v{WCB+j}, 16, v{WCB+j}")
    for j in range(4):
        I(f"v_mul_f32 v{WCB+j}, s64, v{WCB+j}")
    for j in range(4):
        I(f"v_cvt_pk_bf16_f32 v{WCB+j}, 0, v{WCB+j}")
    for j in range(4):
        I(f"v_cndmask_b32 v{WCB+j}, 0, v{WCB+j}, s[66:67]")
    I(f"v_lshlrev_b32 v{XR}, 16, v{XR+2}")
    I(f"v_and_b32 v{XR+1}, 0xffff0000, v{XR+2}")
    I(f"v_lshlrev_b32 v{XR+2}, 16, v{XR+3}")
    I(f"v_and_b32 v{XR+3}, 0xffff0000, v{XR+3}")
    I("s_setprio 0")
    I("s_waitcnt vmcnt(0)")
    if OPT["delay"]:
        I(f"s_sleep {OPT['delay']}")
    stamp(9)
    I(f"global_load_dwordx4 {vr(RA,4)}, v2, {WS} sc1")
    I(f"global_load_dwordx4 {vr(RA+4,4)}, v3, {WS} sc1")

    def poll(R_, first, name):
        L(name)
        I("s_waitcnt vmcnt(0)")
        for k in range(2):
            I(f"s_mov_b64 exec, s[{68+2*k}:{69+2*k}]")
            for j in range(4):
                I(f"v_xor_b32 v{R_+4*k+j}, v{TG+j}, v{R_+4*k+j}")
        I("s_mov_b64 exec, -1")
        for k in range(2):
            r = R_ + 4 * k
            I(f"v_or3_b32 v{6+k}, v{r}, v{r+1}, v{r+2}")
            I(f"v_and_b32 v{6+k}, s40, v{6+k}")
            I(f"v_and_or_b32 v{6+k}, v{r+3}, s41, v{6+k}")
            I(f"v_cmp_ne_u32 s[{68+2*k}:{69+2*k}], 0, v{6+k}")
            I(f"v_cmp_gt_u32 s[{64+2*k}:{65+2*k}], s42, v{r+3}")
        if first:
            for k in range(2):
                I(f"s_andn2_b64 s[{64+2*k}:{65+2*k}], s[{64+2*k}:{65+2*k}], s[{68+2*k}:{69+2*k}]")
                I(f"s_lshl_b64 s[{74+2*k}:{75+2*k}], s[{64+2*k}:{65+2*k}], 1")
                I(f"s_or_b64 s[{74+2*k}:{75+2*k}], s[{74+2*k}:{75+2*k}], s[36:37]")
        I("s_and_b64 s[72:73], s[68:69], s[74:75]")
        I("s_and_b64 s[80:81], s[70:71], s[76:77]")
        I("s_or_b64 s[72:73], s[72:73], s[80:81]")
        I(f"s_cbranch_scc1 {name}_RETRY")
    def retry(R_, first, name):
        L(name + "_RETRY")
        if first:
            for k in range(4):
                I(f"s_and_b32 s72, s{68+k}, s{74+k}")
                I("s_lshl_b32 s73, s72, 1")
                I("s_or_b32 s72, s72, s73")
                I("s_lshl_b32 s73, s72, 2")
                I("s_or_b32 s72, s72, s73")
                I("s_lshl_b32 s73, s72, 4")
                I("s_or_b32 s72, s72, s73")
                I(f"s_and_b32 s{68+k}, s{68+k}, s72")
        else:
            I("s_and_b64 s[68:69], s[68:69], s[74:75]")
            I("s_and_b64 s[70:71], s[70:71], s[76:77]")
        I("s_add_u32 s43, s43, 1")
        I(f"s_cmp_gt_u32 s43, {POLL_LIMIT}")
        I("s_cbranch_scc1 R_TIMEOUT")
        if OPT["sleep"]:
            I(f"s_sleep {OPT['sleep']}")
        reload(R_, name)
        I(f"s_branch {name}")
    def reload(R_, name):
        I("s_mov_b64 exec, s[68:69]")
        I(f"s_cbranch_execz {name}_1")
        I(f"global_load_dwordx4 {vr(R_,4)}, v2, {WS} sc1")
        L(name + "_1")
        I("s_mov_b64 exec, s[70:71]")
        I(f"s_cbranch_execz {name}_2")
        I(f"global_load_dwordx4 {vr(R_+4,4)}, v3, {WS} sc1")
        L(name + "_2")
    def ranks(R_, C_, K_, M_):
        for k in range(2):
            for j in range(3):
                I(f"v_lshlrev_b32_sdwa v{C_+3*k+j}, 2, v{R_+4*k+3} {sdwa('BYTE_'+str(j))}")
        for k in range(2):
            I(f"s_mov_b64 exec, s[{74+2*k}:{75+2*k}]")
            for j in range(3):
                m = M_ + 2 * (3 * k + j)
                I(f"v_cmp_gt_u32_sdwa s[{m}:{m+1}], 49, v{R_+4*k+3} src0_sel:DWORD src1_sel:BYTE_{j}")
            for j in range(3):
                m = M_ + 2 * (3 * k + j)
                I(f"s_mov_b64 exec, s[{m}:{m+1}]")
                I(f"ds_add_rtn_u32 v{K_+3*k+j}, v{C_+3*k+j}, v{C4} offset:{C2_OFF}")
        I("s_mov_b64 exec, -1")
    def more_test():
        I("s_and_b64 s[64:65], s[64:65], s[74:75]")
        I("s_and_b64 s[66:67], s[66:67], s[76:77]")
        I("s_or_b64 s[72:73], s[64:65], s[66:67]")
        I("s_or_b32 s72, s72, s73")
        I("s_and_b32 s72, s72, 0x80808080")
    MA, MB = 44, 4

    poll(RA, True, "B_P0")
    stamp(10)
    if OPT["ef"]:
        I(f"global_load_dword v35, v34, {WS} sc1")
    ranks(RA, CA, KA, MA)
    more_test()
    I("s_or_b32 s72, s72, s79")
    I("s_cbranch_scc1 R_MORE")
    L("B_RDONE")
    if OPT["stamp"]:
        I("v_writelane_b32 v127, s43, 19")
    I("s_waitcnt lgkmcnt(0)")
    I("s_barrier")
    stamp(11)
    I(f"ds_read_b32 v6, v5 offset:{C2_OFF}")
    if not OPT["ef"]:
        I(f"global_load_dword v35, v34, {WS} sc1")
    elif OPT["pf"]:
        I("s_sub_u32 s64, s3, 4")
        I(f"s_cmp_lt_u32 s64, {OPT['pf']}")
        I("s_cbranch_scc0 B_NOPF")
        I("s_waitcnt vmcnt(0)")
        I(f"v_cmp_eq_u32 vcc, v{TG+3}, v35")
        I("s_mov_b64 exec, vcc")
        I("s_cbranch_execz B_NOPF0")
        I(f"global_load_dword v84, v33, {WS} sc1")
        L("B_NOPF0")
        I("s_mov_b64 exec, -1")
        L("B_NOPF")
    I("s_waitcnt lgkmcnt(0)")
    I("v_add_u32 v2, 7, v6")
    I("v_and_b32 v2, -8, v2")
    I("v_max_u32 v2, 8, v2")
    I("v_cndmask_b32 v2, 0, v2, s[82:83]")
    I("v_mov_b32 v3, v2")
    for d in ("row_shr:1 row_mask:0xf", "row_shr:2 row_mask:0xf", "row_shr:4 row_mask:0xf",
              "row_shr:8 row_mask:0xf", "row_bcast:15 row_mask:0xa", "row_bcast:31 row_mask:0xc"):
        I("s_nop 1")
        I(f"v_add_u32_dpp v3, v3, v3 {d} bank_mask:0xf")
    I("v_sub_u32 v7, v3, v2")
    I(f"ds_write_b32 v5, v7 offset:{BASE}")
    I("v_readlane_b32 s64, v3, 63")
    def lookup(C_):
        for i in range(6):
            I(f"ds_read_b32 v{C_+i}, v{C_+i} offset:{BASE}")
    def scatter(R_, C_, K_, M_):
        for i in range(6):
            if i % 3 == 0:
                I(f"s_waitcnt lgkmcnt({3-i})")
            I(f"v_add3_u32 v{C_+i}, v{C_+i}, v{K_+i}, s85")
        for i in range(6):
            I(f"s_mov_b64 exec, s[{M_+2*i}:{M_+2*i+1}]")
            I(f"ds_write_b32 v{C_+i}, v{R_+4*(i//3)+i%3}")
        I("s_mov_b64 exec, -1")
    lookup(CA)
    I("s_add_u32 s65, s64, 31")
    I("s_lshr_b32 s66, s65, 9")
    I("s_bfe_u32 s67, s65, 0x40005")
    I("s_mul_i32 s68, s66, s3")
    I("s_min_u32 s69, s67, s3")
    I("s_add_u32 s68, s68, s69")
    I("s_lshl_b32 s68, s68, 5")
    I("s_cmp_lt_u32 s3, s67")
    I("s_addc_u32 s72, s66, 0")
    I("s_lshl_b32 s69, s72, 3")
    I("s_add_u32 s70, s68, s85")
    scatter(RA, CA, KA, MA)
    I(f"v_mul_u32_u24 v{VRA}, s69, v124")
    I(f"v_mul_u32_u24 v{VRA+1}, s69, v125")
    I(f"v_add_u32 v{VRA}, s70, v{VRA}")
    I(f"v_add3_u32 v{VRA+1}, v{VRA+1}, s70, v126")
    if OPT["pf"] and OPT["ef"]:
        I("s_sub_u32 s71, s3, 4")
        I(f"s_cmp_lt_u32 s71, {OPT['pf']}")
        I("s_cbranch_scc1 B_FLW")
    I("s_waitcnt vmcnt(0)")
    L("B_FLW")
    I(f"v_cmp_ne_u32 vcc, v{TG+3}, v35")
    I("s_cmp_lg_u32 s78, 0")
    I("s_cbranch_scc1 R_EXTRA")
    L("B_XDONE")
    I("s_cbranch_vccnz R_FLAGS")
    L("B_FDONE")
    if OPT["pf2"]:
        I(f"s_cmp_lt_u32 s3, {OPT['pf2']}")
        I("s_cbranch_scc0 B_NOPF2")
        I(f"global_load_dword v84, v33, {WS} sc1")
        L("B_NOPF2")
    I("s_waitcnt lgkmcnt(0)")
    I("s_barrier")
    stamp(12)
    def i_reads(batch, lo=0, hi=4):
        for i in range(lo, hi):
            I(f"ds_read_u16 v{IP[i]}, v{VRA} offset:{16*batch + 4*i}")
    def a_reads(batch):
        for d in range(4):
            I(f"s_mov_b64 exec, s[{56+2*d}:{57+2*d}]")
            I(f"ds_read_b32 v{A+d}, v{VRA+1} offset:{16*batch}")
        I("s_mov_b64 exec, -1")
    def gathers(x, lo, hi):
        for i in range(lo, hi):
            I(f"buffer_load_dwordx4 {vr(x+4*i,4)}, {vr(IP[i],2)}, {sr(S_TAB,4)}, 0 idxen offen {OPT['gsc'] if OPT['gsc'] != 'none' else ''}")
    i_reads(0)
    I("v_and_b32 v9, 0x3f0, v0")
    I(f"ds_read_b128 {vr(VSE,4)}, v9 offset:{STR}")
    I(f"ds_read_b32 v8, v1 offset:{FLAG}")
    if OPT["prio"]:
        I("s_setprio 3")
    I("s_waitcnt lgkmcnt(2)")
    gathers(XB, 0, 4)
    stamp(13)
    i_reads(1)
    I(f"ds_read_b128 {vr(EP,4)}, v9 offset:{EPI}")
    I(f"ds_read_b128 {vr(UR,4)}, v{VU}")
    I("s_waitcnt lgkmcnt(6)")
    I("v_readfirstlane_b32 s80, v8")
    I(f"v_lshl_add_u64 {vr(VSE,2)}, {vr(VSE,2)}, 0, {vr(LP,2)}")
    I(f"ds_read_b128 {vr(EA,4)}, v{VSE+1}")
    for q in range(4):
        I(f"v_readlane_b32 s{44+q}, v{VSE+2}, {16*q}")
    I(f"s_cmp_gt_u32 s64, {LIST_MAX}")
    I("s_cselect_b32 s81, 1, 0")
    I("s_or_b32 s80, s80, s81")
    if OPT["force_slow"]:
        I("s_branch K_SLOW")
    I("s_cbranch_scc1 K_SLOW")
    a_reads(0)
    for q in range(4):
        if OPT["cut"] & 8:
            I(f"s_mov_b32 s{44+q}, 0")
        I(f"s_bitset1_b32 s{44+q}, s72")
    I("s_or_b32 s82, s44, s45")
    I("s_or_b32 s83, s46, s47")
    I("s_or_b32 s82, s82, s83")
    I("s_bfm_b32 s83, s72, 0")
    I("s_lshr_b32 s83, s83, 4")
    I("s_mov_b32 s73, 0")
    I("s_waitcnt lgkmcnt(5)")
    gathers(XB + 16, 0, 4)
    i_reads(2)
    for k in range(3):
        I(f"v_add_u32 v{EP+k}, v{EP+k}, v{LC}")
    I(f"v_cmp_lt_i32 s[48:49], 2, v{EP+3}")
    I("s_cmp_eq_u32 s72, 0")
    I("s_cbranch_scc1 K_JOIN")
    def mfma(x):
        I(f"v_mfma_f32_32x32x16_bf16 {vr(Y,16)}, {vr(A,4)}, {vr(WCB,4)}, {vr(x,16)}")
    stamp(14)
    I("s_waitcnt vmcnt(4) lgkmcnt(4)")
    mfma(XB)
    stamp(15)
    a_reads(1)
    nth = len(str(OPT["prio"]).split("_")) if OPT["prio"] else 0
    if OPT["prio"]:
        I(f"s_setprio {nth}")
    I("s_nop 2")
    L("K_LOOP")
    if OPT["prio"]:
        I("s_sub_u32 s74, s72, s73")
        for k, t_ in enumerate(int(x) for x in str(OPT["prio"]).split("_")):
            I(f"s_cmp_gt_u32 s74, {t_}")
            I("s_cbranch_scc1 K_STEP0")
            I(f"s_setprio {nth-1-k}")
    for u in range(4):
        bb, hh = u >> 1, u & 1
        x = XB + 16 * bb + 8 * hh
        t = Y + 8 * hh
        L(f"K_STEP{u}")
        for i in range(8):
            I(f"v_exp_f32 v{t+i}, v{t+i}")
        for i in range(4):
            I(f"v_lshlrev_b64 {vr(x+2*i,2)}, 16, {vr(x+2*i,2)}")
        for i in range(4):
            I(f"v_pk_fma_f32 {vr(t+2*i,2)}, {vr(t+2*i,2)}, {vr(EA+2*(i&1),2)}, s[16:17] clamp")
        I(f"v_pk_mul_f32 {vr(P,2)}, {vr(t,2)}, {vr(t+4,2)}")
        I(f"v_pk_mul_f32 {vr(P+2,2)}, {vr(t+2,2)}, {vr(t+6,2)}")
        I(f"v_pk_mul_f32 {vr(Q,2)}, {vr(x,2)}, {vr(t+4,2)}")
        I(f"v_pk_mul_f32 {vr(Q+2,2)}, {vr(x+2,2)}, {vr(t+6,2)}")
        I(f"v_pk_add_f32 {vr(SS,2)}, {vr(t,2)}, {vr(t+4,2)}")
        I(f"v_pk_add_f32 {vr(SS+2,2)}, {vr(t+2,2)}, {vr(t+6,2)}")
        I(f"v_pk_fma_f32 {vr(Q,2)}, {vr(x+4,2)}, {vr(t,2)}, {vr(Q,2)}")
        I(f"v_pk_fma_f32 {vr(Q+2,2)}, {vr(x+6,2)}, {vr(t+2,2)}, {vr(Q+2,2)}")
        if OPT["sup"]:
            I(f"s_bitcmp1_b32 s83, {u}")
            I(f"s_cselect_b32 s{S_TAB+2}, s{S_TAB+2}, 0")
        if hh == 0:
            I("s_waitcnt lgkmcnt(0)")
            if not OPT["cut"] & 4:
                gathers(XB + 16 * bb, 0, 2)
            for i in range(4):
                I(f"v_rcp_f32 v{P+i}, v{P+i}")
        else:
            I("s_waitcnt vmcnt(2)")
            if not OPT["cut"] & 1:
                mfma(XB + 16 * (1 - bb))
            for i in range(4):
                I(f"v_rcp_f32 v{P+i}, v{P+i}")
            if not OPT["cut"] & 4:
                gathers(XB + 16 * bb, 2, 4)
        I(f"v_pk_fma_f32 {vr(NUM,2)}, {vr(Q,2)}, {vr(P,2)}, {vr(NUM,2)}")
        I(f"v_pk_fma_f32 {vr(DEN,2)}, {vr(SS,2)}, {vr(P,2)}, {vr(DEN,2)}")
        I(f"v_pk_fma_f32 {vr(NUM+2,2)}, {vr(Q+2,2)}, {vr(P+2,2)}, {vr(NUM+2,2)}")
        I(f"v_pk_fma_f32 {vr(DEN+2,2)}, {vr(SS+2,2)}, {vr(P+2,2)}, {vr(DEN+2,2)}")
        if hh == 1:
            if not OPT["cut"] & 4:
                i_reads(bb + 3)
            if not OPT["cut"] & 2:
                a_reads(bb + 2)
        I(f"s_bitcmp1_b32 s82, {u+1}")
        I(f"s_cbranch_scc1 K_FLUSH{u}")
        L(f"K_BACK{u}")
    I(f"v_lshl_add_u64 {vr(VRA,2)}, {vr(VRA,2)}, 0, s[20:21]")
    I("s_lshr_b32 s82, s82, 4")
    I("s_lshr_b32 s83, s83, 4")
    I("s_add_u32 s73, s73, 4")
    I("s_branch K_LOOP")
    for u in range(4):
        L(f"K_FLUSH{u}")
        I(f"s_add_u32 s74, s73, {u+1}")
        for h in range(2):
            I(f"s_bitcmp1_b32 s{44+2*h}, s74")
            I("s_cselect_b32 s75, 0xffff, 0")
            I(f"s_bitcmp1_b32 s{45+2*h}, s74")
            I("s_cselect_b32 s80, 0xffff0000, 0")
            I(f"s_or_b32 {'exec_hi' if h else 'exec_lo'}, s75, s80")
        I(f"ds_write2_b32 v{VSE}, v{DEN}, v{DEN+1} offset0:0 offset1:16")
        I(f"ds_write2_b32 v{VSE}, v{DEN+2}, v{DEN+3} offset0:32 offset1:48")
        I(f"ds_write2_b32 v{VSE}, v{NUM}, v{NUM+1} offset0:64 offset1:80")
        I(f"ds_write2_b32 v{VSE}, v{NUM+2}, v{NUM+3} offset0:96 offset1:112")
        I("s_cmp_eq_u32 s74, s72")
        I("s_cbranch_scc1 K_JOIN")
        I(f"v_lshl_add_u64 {vr(VSE,2)}, {vr(VSE,2)}, 0, s[24:25]")
        I(f"ds_read_b128 {vr(DEN,4)}, v{VOOB}")
        I(f"ds_read_b128 {vr(NUM,4)}, v{VOOB}")
        I(f"ds_read_b128 {vr(EA,4)}, v{VSE+1}")
        I("s_mov_b64 exec, -1")
        I("s_waitcnt lgkmcnt(0)")
        I(f"s_branch K_BACK{u}")

    L("K_JOIN")
    I("s_mov_b64 exec, -1")
    stamp(16)
    I("s_cmp_lt_u32 s3, 13")
    I("s_waitcnt lgkmcnt(0)")
    I("s_barrier")
    stamp(17)
    I("s_cbranch_scc0 K_FIN")
    for k in range(3):
        I(f"ds_read_b128 {vr(8+8*k,4)}, v{EP+k}")
    for k in range(3):
        I(f"ds_read_b128 {vr(12+8*k,4)}, v{EP+k} offset:256")
    I("s_cmp_lg_u64 s[48:49], 0")
    I("s_waitcnt lgkmcnt(3)")
    for k in (1, 2):
        for i in range(2):
            I(f"v_pk_add_f32 {vr(8+2*i,2)}, {vr(8+2*i,2)}, {vr(8+8*k+2*i,2)}")
    I("s_waitcnt lgkmcnt(0)")
    for k in (1, 2):
        for i in range(2, 4):
            I(f"v_pk_add_f32 {vr(8+2*i,2)}, {vr(8+2*i,2)}, {vr(8+8*k+2*i,2)}")
    I("s_cbranch_scc1 R_LONG")
    L("K_MATH")
    I("v_pk_add_f32 v[8:9], v[8:9], s[18:19]")
    I("v_pk_add_f32 v[10:11], v[10:11], s[18:19]")
    for c in range(4):
        I(f"v_rcp_f32 v{8+c}, v{8+c}")
    I("s_nop 0")
    I(f"v_pk_fma_f32 v[8:9], v[12:13], v[8:9], {vr(UR,2)}")
    I(f"v_pk_fma_f32 v[10:11], v[14:15], v[10:11], {vr(UR+2,2)}")
    for c in range(4):
        I(f"v_max_f32 v{8+c}, 0, v{8+c}")
    I(f"v_pk_add_f32 v[8:9], v[8:9], {vr(XR,2)}")
    I(f"v_pk_add_f32 v[10:11], v[10:11], {vr(XR+2,2)}")
    I("v_cvt_pk_bf16_f32 v12, v8, v9")
    I("v_cvt_pk_bf16_f32 v13, v10, v11")
    I(f"buffer_store_dwordx2 v[12:13], v{VOUT}, {sr(S_X,4)}, 0 offen")
    L("K_FIN")
    stamp(18)
    stamp_out()
    L("K_END")
    I("s_endpgm")

    L("R_PUB2")
    I("s_mov_b64 exec, vcc")
    I(f"ds_read_b128 {vr(C0+8,4)}, v4 offset:{IMG+128}")
    I(f"ds_read_b128 {vr(C0+12,4)}, v4 offset:{IMG+B2+128}")
    I("v_and_b32 v10, 7, v0")
    I(f"v_mul_u32_u24 v10, {3*INC}, v10")
    I(f"v_add_u32 v10, {24*INC}, v10")
    I("s_waitcnt lgkmcnt(0)")
    for b in range(2):
        w3 = C0 + 11 + 4 * b
        I(f"v_and_b32 v{w3}, 0x3f3f3f, v{w3}")
        for j in range(3):
            I(f"v_add_u32 v11, {j*INC}, v10")
            I(f"v_cmp_le_u32 s[72:73], v{8+b}, v11")
            I(f"v_or_b32 v11, {0x3f << (8*j)}, v{w3}")
            I("s_nop 0")
            I(f"v_cndmask_b32 v{w3}, v{w3}, v11, s[72:73]")
    I(f"v_add_u32 v8, {hex(LINE_STRIDE)}, v6")
    I(f"v_add_u32 v9, {hex(LINE_STRIDE)}, v7")
    tagit(C0 + 8)
    tagit(C0 + 12)
    I(f"global_store_dwordx4 v8, {vr(C0+8,4)}, {WS} sc1")
    I(f"global_store_dwordx4 v9, {vr(C0+12,4)}, {WS} sc1")
    I("s_branch A_PUBD")
    retry(RA, True, "B_P0")
    L("R_MORE")
    I("s_cmp_lg_u32 s79, 0")
    I("s_cbranch_scc1 R_REQ")
    for k in range(4):
        I(f"s_lshr_b32 s{74+k}, s{64+k}, 7")
        I(f"s_and_b32 s{74+k}, s{74+k}, 0x01010101")
        I(f"s_mul_i32 s{74+k}, s{74+k}, 0xff")
    I("s_mov_b64 s[68:69], s[74:75]")
    I("s_mov_b64 s[70:71], s[76:77]")
    I(f"v_add_u32 v2, {hex(LINE_STRIDE)}, v2")
    I(f"v_add_u32 v3, {hex(LINE_STRIDE)}, v3")
    reload(RB, "B_N1")
    poll(RB, False, "B_P1")
    ranks(RB, CB, KB, MB)
    I("s_or_b32 s78, s78, 1")
    more_test()
    I("s_cbranch_scc0 B_RDONE")
    I("s_mov_b32 s79, 1")
    I("s_branch R_REQ")
    retry(RB, False, "B_P1")
    L("R_TIMEOUT")
    I("s_mov_b32 s79, 3")
    for k in range(6):
        I(f"s_mov_b64 s[{MA+2*k}:{MA+2*k+1}], 0")
    I(f"v_mov_b32 v35, v{TG+3}")
    L("R_REQ")
    I("v_mov_b32 v6, s79")
    I(f"ds_or_b32 v1, v6 offset:{FLAG}")
    I("s_branch B_RDONE")
    def bump():
        I(f"v_mov_b32 v48, {hex(CTL_OFF)}")
        I("v_mov_b32 v50, 0x1000000")
        I("v_mov_b32 v51, 0")
        I("s_mov_b64 exec, 1")
        I(f"global_atomic_add_x2 v48, v[50:51], {WS} offset:8 sc1")
        I("s_mov_b64 exec, -1")
    L("R_EXTRA")
    I("s_bitcmp1_b32 s78, 0")
    I("s_cbranch_scc0 R_X2")
    I("s_waitcnt lgkmcnt(0)")
    lookup(CB)
    scatter(RB, CB, KB, MB)
    L("R_X2")
    I("s_bitcmp1_b32 s78, 1")
    I("s_cbranch_scc0 B_XDONE")
    I("s_cmp_eq_u32 s3, 1")
    I("s_cbranch_scc1 R_PAD")
    I("s_add_u32 s71, s66, 1")
    I("v_cvt_f32_u32 v48, s71")
    I("v_cvt_f32_u32 v49, s66")
    I("s_lshl_b32 s73, s67, 2")
    I("s_mul_i32 s71, s71, s73")
    I("v_rcp_f32 v48, v48")
    I("v_rcp_f32 v49, v49")
    I("v_cvt_f32_u32 v50, s71")
    I("v_cvt_f32_u32 v51, s73")
    I("v_fma_f32 v50, -v50, v49, v51")
    I(f"v_mov_b32 v51, {hex(f32(0.125))}")
    def stream_of(dst, src, half):
        I(f"v_cvt_f32_u32 v{dst}, v{src}")
        I(f"v_fma_f32 v{dst}, v{dst}, v51, {half}")
        I(f"v_mul_f32 v52, v{dst}, v48")
        I(f"v_fma_f32 v{dst}, v{dst}, v49, v50")
        I(f"v_max_f32 v{dst}, v{dst}, v52")
        I(f"v_cvt_u32_f32 v{dst}, v{dst}")
    stream_of(53, 3, "-0.5")
    I("s_cmp_eq_u32 s3, 2")
    I("s_cbranch_scc1 R_EPI")
    I("s_cmp_eq_u32 s3, 3")
    I("s_cbranch_scc1 R_FIRST")
    I("v_min_u32 v55, s73, v53")
    I("v_mad_u32_u24 v55, v53, s66, v55")
    I("v_lshrrev_b32 v56, 3, v3")
    I("v_sub_u32 v55, v56, v55")
    I("v_lshlrev_b32 v55, v55, 1")
    I("v_lshlrev_b32 v56, 4, v53")
    I("s_mov_b64 exec, s[82:83]")
    I(f"ds_or_b32 v56, v55 offset:{STR + 8}")
    I("s_mov_b64 exec, -1")
    I("s_branch B_XDONE")
    L("R_FIRST")
    I("v_mov_b32 v54, -1")
    I("v_cndmask_b32 v53, 63, v53, s[82:83]")
    I(f"v_mul_u32_u24 v59, {EAU_STRIDE//4}, v5")
    I(f"v_add_u32 v59, {EAU_OFF}, v59")
    I("v_mov_b32_dpp v54, v53 wave_shr:1 row_mask:0xf bank_mask:0xf")
    I("v_lshl_add_u32 v58, v54, 2, v5")
    I(f"v_mul_i32_i24 v58, {SLOT_STRIDE//4}, v58")
    I(f"v_add_u32 v58, {SLOT_OFF}, v58")
    I("v_lshlrev_b32 v54, 4, v54")
    I("v_lshlrev_b32 v53, 4, v53")
    L("R_FIRST1")
    I("v_cmp_lt_i32 s[74:75], v54, v53")
    I("s_mov_b64 exec, s[74:75]")
    I("s_cbranch_execz R_FIRST2")
    I("v_add_u32 v54, 16, v54")
    I(f"v_add_u32 v58, {SLOT_STRIDE}, v58")
    I(f"ds_write_b64 v54, v[58:59] offset:{STR}")
    I("s_branch R_FIRST1")
    L("R_FIRST2")
    I("s_mov_b64 exec, -1")
    I("s_branch B_XDONE")
    L("R_EPI")
    stream_of(54, 7, "0.5")
    I("v_sub_u32 v59, v53, v54")
    I("v_lshl_add_u32 v56, v54, 2, v5")
    I(f"v_mul_u32_u24 v56, {SLOT_STRIDE//4}, v56")
    I(f"v_add_u32 v56, {SLOT_OFF}, v56")
    I("v_cmp_lt_i32 s[74:75], 0, v59")
    I("v_cmp_lt_i32 s[76:77], 1, v59")
    I(f"v_add_u32 v57, {SLOT_STRIDE}, v56")
    I(f"v_add_u32 v58, {2*SLOT_STRIDE}, v56")
    I(f"v_cndmask_b32 v57, v{VOOB}, v57, s[74:75]")
    I(f"v_cndmask_b32 v58, v{VOOB}, v58, s[76:77]")
    I("v_lshlrev_b32 v55, 2, v5")
    I(f"ds_write_b128 v55, v[56:59] offset:{EPI}")
    I("s_branch B_XDONE")
    L("R_PAD")
    I(f"v_mov_b32 v52, {N}")
    I(f"v_add_u32 v53, {LIST_OFF - 8}, v3")
    I("v_cmp_lt_u32 s[74:75], v6, v2")
    I("s_mov_b64 exec, s[74:75]")
    I("ds_write_b32 v53, v52 offset:4")
    I("v_cmp_eq_u32 s[74:75], 0, v6")
    I("s_mov_b64 exec, s[74:75]")
    I("ds_write_b32 v53, v52")
    I("s_mov_b64 exec, 0x3f")
    I("s_add_u32 s71, s64, s85")
    I("v_add_u32 v53, s71, v5")
    I("ds_write_b32 v53, v52")
    I("s_mov_b64 exec, -1")
    I("s_cmp_eq_u32 s2, 0")
    I("s_cbranch_scc0 B_XDONE")
    bump()
    I("s_branch B_XDONE")
    L("R_FLAGS")
    I("s_add_u32 s43, s43, 1")
    I(f"s_cmp_gt_u32 s43, {POLL_LIMIT}")
    I("s_cbranch_scc1 R_FLAGT")
    I("s_sleep 2")
    I("s_mov_b64 exec, vcc")
    I(f"global_load_dword v35, v34, {WS} sc1")
    I("s_waitcnt vmcnt(0)")
    I(f"v_cmp_ne_u32 vcc, v{TG+3}, v35")
    I("s_mov_b64 exec, -1")
    I("s_branch B_XDONE")
    L("R_FLAGT")
    I("v_mov_b32 v52, 3")
    I(f"ds_or_b32 v1, v52 offset:{FLAG}")
    I("s_branch B_FDONE")
    L("R_LONG")
    I("s_mov_b32 s64, 2")
    I("s_mov_b64 vcc, s[48:49]")
    L("R_LONG1")
    I("s_mov_b64 exec, vcc")
    I(f"v_add_u32 v{EP+2}, {SLOT_STRIDE}, v{EP+2}")
    I(f"ds_read_b128 v[16:19], v{EP+2}")
    I(f"ds_read_b128 v[20:23], v{EP+2} offset:256")
    I("s_add_u32 s64, s64, 1")
    I("s_waitcnt lgkmcnt(0)")
    for i in range(4):
        I(f"v_pk_add_f32 {vr(8+2*i,2)}, {vr(8+2*i,2)}, {vr(16+2*i,2)}")
    I(f"v_cmp_lt_i32 vcc, s64, v{EP+3}")
    I("s_cbranch_vccnz R_LONG1")
    I("s_mov_b64 exec, -1")
    I("s_branch K_MATH")

    L("K_SLOW")
    I("s_load_dwordx8 s[4:11], s[0:1], 0")
    I("s_load_dwordx2 s[12:13], s[0:1], 40")
    I("s_load_dwordx2 s[14:15], s[0:1], 64")
    I("s_setprio 0")
    I("s_waitcnt vmcnt(0) lgkmcnt(0)")
    I("s_cmp_eq_u32 s3, 15")
    I("s_cselect_b32 s71, s80, 0")
    I("s_and_b32 s71, s71, 2")
    I("s_cbranch_scc0 K_SL0")
    bump()
    I("s_waitcnt vmcnt(0)")
    L("K_SL0")
    WB2, WV2 = 40, 72
    I("v_lshrrev_b32 v6, 1, v5")
    I("v_add_u32 v7, 4096, v6")
    for (w, p_) in ((WB2, 12), (WV2, 14)):
        for hf in range(2):
            for k in range(16):
                I(f"global_load_ushort v{w + 16*hf + k}, v{6 + hf}, s[{p_}:{p_+1}] offset:{2*k*128}")
                I(f"global_load_ushort v{8 + k}, v{6 + hf}, s[{p_}:{p_+1}] offset:{(2*k+1)*128}")
            I("s_waitcnt vmcnt(0)")
            for k in range(16):
                I(f"v_lshl_or_b32 v{w + 16*hf + k}, v{8 + k}, 16, v{w + 16*hf + k}")
    for i in range(4):
        I(f"v_mov_b32 v{28+i}, 0")
    I("v_lshlrev_b32 v8, 4, v0")
    for k in range(4):
        I(f"ds_write_b128 v8, v[28:31] offset:{SLOT_OFF + k*16384}")
    I(f"ds_read_u16 v18, v6 offset:{WC_OFF}")
    I(f"s_mov_b32 s18, {hex(f32(1e-6))}")
    I("s_mov_b32 s19, s18")
    I(f"s_mov_b32 s16, {hex(f32(-LOG2E))}")
    I(f"v_lshl_add_u32 v17, v124, 2, v{LC}")
    I("v_lshlrev_b32 v10, 1, v5")
    I("s_waitcnt lgkmcnt(0)")
    I("v_lshlrev_b32 v18, 16, v18")
    I("s_barrier")
    I("v_lshlrev_b32 v8, 2, v0")
    I("v_lshlrev_b32 v9, 1, v0")
    I("s_lshl_b32 s70, s3, 6")
    L("K_SLOOP")
    I(f"global_load_dword v11, v8, {sr(P_DST,2)}")
    I(f"global_load_dword v12, v8, {sr(P_SRC,2)}")
    I(f"global_load_ushort v13, v9, {sr(P_E,2)}")
    I("s_waitcnt vmcnt(0)")
    I("v_and_b32 v14, 0xff, v11")
    I("v_cmp_eq_u32 s[74:75], s2, v14")
    L("K_SIN")
    I("s_cmp_eq_u64 s[74:75], 0")
    I("s_cbranch_scc1 K_SNEXT")
    I("s_ff1_i32_b64 s73, s[74:75]")
    I("s_bitset0_b64 s[74:75], s73")
    I("v_readlane_b32 s79, v11, s73")
    I("v_readlane_b32 s80, v12, s73")
    I("v_readlane_b32 s81, v13, s73")
    I("s_lshr_b32 s79, s79, 8")
    I(f"s_mul_i32 s76, s79, {EAU_STRIDE}")
    I(f"s_add_u32 s76, s76, {EAU_OFF + 512}")
    I(f"s_mul_i32 s79, s79, {ACC_STRIDE}")
    I("s_lshl_b32 s80, s80, 7")
    I("s_add_u32 s78, s80, 64")
    I(f"s_load_dwordx16 s[36:51], {sr(P_X,2)}, s80")
    I(f"s_load_dwordx16 s[52:67], {sr(P_X,2)}, s78")
    I("s_lshl_b32 s81, s81, 16")
    I("v_add_u32 v15, s76, v17")
    I("v_add_u32 v16, s79, v10")
    I("ds_read_b32 v22, v15")
    I("v_mul_f32 v20, s81, v18")
    I("v_mov_b32 v21, 0")
    I("s_waitcnt lgkmcnt(0)")
    for k in range(32):
        I(f"v_dot2_f32_bf16 v20, s{36+k}, v{WB2+k}, v20")
        I(f"v_dot2_f32_bf16 v21, s{36+k}, v{WV2+k}, v21")
    I("s_nop 2")
    I("v_fma_f32 v20, v20, s16, v22")
    I("v_exp_f32 v20, v20")
    I("s_nop 0")
    I("v_add_f32 v20, 1.0, v20")
    I("v_rcp_f32 v20, v20")
    I("s_nop 0")
    I("v_mul_f32 v21, v21, v20")
    I("v_cvt_f64_f32 v[24:25], v20")
    I("v_cvt_f64_f32 v[26:27], v21")
    I(f"ds_add_f64 v16, v[24:25] offset:{SLOT_OFF}")
    I(f"ds_add_f64 v16, v[26:27] offset:{SLOT_OFF + 512}")
    I("s_branch K_SIN")
    L("K_SNEXT")
    I("s_add_u32 s70, s70, 1024")
    I("v_add_u32 v8, 4096, v8")
    I("v_add_u32 v9, 2048, v9")
    I(f"s_cmp_lt_u32 s70, {E}")
    I("s_cbranch_scc1 K_SLOOP")
    I("v_lshrrev_b32 v6, 4, v0")
    I(f"v_mul_u32_u24 v6, {ACC_STRIDE}, v6")
    I(f"v_lshl_add_u32 v6, v{LC}, 1, v6")
    I("s_waitcnt lgkmcnt(0)")
    I("s_barrier")
    I("s_cmp_lt_u32 s3, 13")
    I("s_cbranch_scc0 K_FIN")
    I(f"ds_read_b128 v[16:19], v6 offset:{SLOT_OFF}")
    I(f"ds_read_b128 v[20:23], v6 offset:{SLOT_OFF+16}")
    I(f"ds_read_b128 v[24:27], v6 offset:{SLOT_OFF+512}")
    I(f"ds_read_b128 v[28:31], v6 offset:{SLOT_OFF+528}")
    I("s_waitcnt lgkmcnt(0)")
    for c in range(8):
        I(f"v_cvt_f32_f64 v{8+c}, {vr(16+2*c,2)}")
    I("s_branch K_MATH")
    L("SLOW_END")

hdr = open("standalone__edge_featured_mpnn_gatedgcn__graph.s.ref").read().split("\n")
for line in hdr:
    if line.startswith("; Override"):
        break
    o(line)
o(f"; @launch kernel={KNAME} grid=(256,1,1) block=(1024,1,1) lds={LDS_TOTAL}")
o('.amdgcn_target "amdgcn-amd-amdhsa--gfx950"')
o(".text")
gen()
o('.section .rodata,"a"')
o(".p2align 6")
o(f".amdhsa_kernel {KNAME}")
o("  .amdhsa_next_free_vgpr 128")
o("  .amdhsa_next_free_sgpr 102")
o("  .amdhsa_accum_offset 128")
o("  .amdhsa_group_segment_fixed_size 0")
o("  .amdhsa_kernarg_size 96")
o("  .amdhsa_user_sgpr_count 2")
o("  .amdhsa_user_sgpr_kernarg_segment_ptr 1")
o("  .amdhsa_system_sgpr_workgroup_id_x 1")
o(".end_amdhsa_kernel")
open(sys.argv[1], "w").write("\n".join(out) + "\n")
```

```python
import sys, struct

OPT = dict(stamp=0, sts="2_3_4_5_6_7", force_slow=0, prio="16_8_4", spin=0, spinat=18, hack=0, sleep=2, delay=0,
           codepf=1, gprio=1, pf=0, pf2=0, pre=1, cfirst=0, gbar=0, init1=1, pf3=0, pfw=0, sup=1, cprio=1, nog=0, gsc="sc1", cut=0, ef=0, fs=4)
for a in sys.argv[2:]:
    k, v = a.split("=")
    OPT[k] = int(v) if v.lstrip("-").isdigit() else v

KNAME = "standalone__edge_featured_mpnn_gatedgcn__graph_kernel"
N = 12500
E = 800000
CHUNK = 3136
TAB_ROWS = N + 1
CTL_OFF = 0x380000
FLG_OFF = 0x390000
CELL_OFF = 0x400000
BIN_STRIDE = 32768 + 256
LINE_STRIDE = 0x900000
STAMP_OFF = 0x4000000
LOG2E = 1.4426950408889634
KEXP = 62
POLL_LIMIT = 100000

X_OFF = 0
WC_OFF = 8192
C1_OFF = 8448
C2_OFF = 9472
FLAG = C2_OFF + 256
SYNC = C2_OFF + 260
TAGS = C2_OFF + 272
BASE = C2_OFF + 512
STR = C2_OFF + 1024
EPI = C2_OFF + 2048
IMG = C2_OFF + 3072
IMG_STRIDE = 272
EAU_OFF = IMG + 256 * IMG_STRIDE
EAU_STRIDE = 800
W_OFF = EAU_OFF + 52 * EAU_STRIDE
LDS_TOTAL = W_OFF + 32768
LIST_OFF = W_OFF
LIST_MAX = 31 * 16 * 32
SLOT_OFF = IMG
SLOT_STRIDE = 576
ACC_STRIDE = 1056
OOB = 0x30000
assert W_OFF % 128 == 0 and 117 * SLOT_STRIDE <= 256 * IMG_STRIDE and LDS_TOTAL <= 163840
INC = 0x5556

def f32(x):
    return struct.unpack("<I", struct.pack("<f", x))[0]

out = []
def o(s=""):
    out.append(s)
def I(s):
    out.append("    " + s)
def L(s):
    out.append(s + ":")
def vr(a, n=1):
    return f"v{a}" if n == 1 else f"v[{a}:{a+n-1}]"
def sr(a, n=1):
    return f"s{a}" if n == 1 else f"s[{a}:{a+n-1}]"
def sdwa(sel1):
    return f"dst_sel:DWORD dst_unused:UNUSED_PAD src0_sel:DWORD src1_sel:{sel1}"

P_X, P_E, P_SRC, P_DST, P_WA, P_WB, P_WC, P_WU, P_WV, P_OUT, P_DBG, P_WS = 4, 6, 8, 10, 12, 14, 16, 18, 20, 22, 24, 26
S_TAB, S_X = 28, 32
WS = sr(P_WS, 2)

STS = [int(x) for x in str(OPT["sts"]).split("_")] if OPT["stamp"] else []
RTS = {12: 28, 17: 29} if OPT["stamp"] == 2 else {}
def stamp(i):
    if OPT["spin"] and OPT["spinat"] == i:
        lab = f"SPIN_{len(out)}"
        I("s_cselect_b32 s92, 1, 0")
        L(lab)
        I("s_memrealtime s[90:91]")
        I("s_waitcnt lgkmcnt(0)")
        I("s_sub_u32 s90, s90, s98")
        I(f"s_cmp_lt_u32 s90, {OPT['spin']}")
        I(f"s_cbranch_scc1 {lab}")
        I("s_cmp_lg_u32 s92, 0")
    if not OPT["stamp"]:
        return
    if i == 0:
        I("s_memrealtime s[86:87]")
    elif i == 1:
        I("s_memtime s[88:89]")
    elif i in STS:
        k = 90 + 2 * STS.index(i)
        I(f"s_memtime s[{k}:{k+1}]")
        if i in RTS:
            k = 90 + 2 * STS.index(RTS[i])
            I(f"s_memrealtime s[{k}:{k+1}]")
def stamp_out():
    if not OPT["stamp"]:
        return
    I("s_mov_b64 exec, -1")
    I("s_waitcnt vmcnt(0) lgkmcnt(0)")
    I("s_memtime s[80:81]")
    I("s_memrealtime s[82:83]")
    I("s_waitcnt lgkmcnt(0)")
    I("v_writelane_b32 v127, s80, 30")
    I("v_writelane_b32 v127, s82, 31")
    I("v_writelane_b32 v127, s86, 0")
    I("v_writelane_b32 v127, s88, 1")
    for i in list(range(2, 19)) + list(range(20, 30)):
        I(f"v_writelane_b32 v127, s{90 + 2*STS.index(i) if i in STS else 88}, {i}")
    I("s_lshl_b32 s84, s2, 4")
    I("s_add_u32 s84, s84, s3")
    I("s_lshl_b32 s84, s84, 7")
    I(f"s_add_u32 s84, s84, {hex(STAMP_OFF)}")
    I("v_and_b32 v1, 63, v0")
    I("v_lshl_add_u32 v1, v1, 2, s84")
    I("s_mov_b64 exec, 0xffffffff")
    I(f"global_store_dword v1, v127, {WS}")

def srd(d, p, size):
    I(f"s_mov_b64 {sr(d,2)}, {sr(p,2)}")
    I(f"s_mov_b32 s{d+2}, {hex(size)}")
    I(f"s_mov_b32 s{d+3}, 0x20000")

D, S, EE = 16, 20, 24
AP = 104
TG = 120
B2 = 128 * IMG_STRIDE

def edge_loads(lo=0, hi=3):
    ins = [f"global_load_dwordx4 {vr(D,4)}, v10, {sr(P_DST,2)}",
           f"global_load_dwordx4 {vr(S,4)}, v10, {sr(P_SRC,2)}",
           f"global_load_dwordx2 {vr(EE,2)}, v11, {sr(P_E,2)}"]
    for x in ins[lo:hi]:
        I(x)

def binning(waits):
    B4, RK, PA = 28, 32, 36
    I(f"v_mov_b32 v14, {INC}")
    I(f"s_mov_b32 s68, {47*INC}")
    I("s_mov_b32 s69, 0x05040100")
    I("s_mov_b32 s70, 0x07060100")
    if waits:
        I("s_waitcnt vmcnt(2)")
        stamp(3)
    for i in range(4):
        I(f"v_lshlrev_b32_sdwa v{B4+i}, 2, v{D+i} {sdwa('BYTE_0')}")
        I(f"ds_add_rtn_u32 v{RK+i}, v{B4+i}, v14 offset:{C1_OFF}")
    for i in range(4):
        I(f"v_mul_u32_u24 v{B4+i}, {IMG_STRIDE//4}, v{B4+i}")
        I(f"v_lshrrev_b32 v{D+i}, 8, v{D+i}")
    for i in range(4):
        I("s_waitcnt lgkmcnt(3)")
        I(f"v_min_u32 v{RK+i}, s68, v{RK+i}")
        I(f"v_lshrrev_b32 v{RK+i}, 14, v{RK+i}")
        I(f"v_lshl_add_u32 v{PA+i}, v{RK+i}, 2, v{B4+i}")
        I(f"v_and_b32 v{RK+i}, 3, v{RK+i}")
        I(f"v_or3_b32 v{RK+i}, v{PA+i}, 12, v{RK+i}")
        I(f"ds_write_b8 v{RK+i}, v{D+i} offset:{IMG}")
    if waits:
        I("s_waitcnt vmcnt(0)")
        stamp(4)
    for i in range(4):
        if OPT["hack"]:
            I(f"v_and_b32 v{S+i}, {OPT['hack']}, v{S+i}")
        I(f"v_perm_b32 v{S+i}, v{EE+(i>>1)}, v{S+i}, s{69+(i&1)}")
        I(f"ds_write_b32 v{PA+i}, v{S+i} offset:{IMG}")

def copy_consts():
    I("s_lshr_b32 s64, s2, 7")
    I("s_lshl_b32 s64, s64, 14")
    I(f"s_add_u32 s64, s64, {hex(CELL_OFF)}")
    I(f"v_mul_u32_u24 v6, {BIN_STRIDE//4}, v5")
    I("v_lshl_add_u32 v6, v0, 4, v6")
    I("v_add_u32 v6, s64, v6")
    I(f"v_add_u32 v7, {128*BIN_STRIDE}, v6")
    I(f"s_mul_i32 s64, s2, {BIN_STRIDE}")
    I(f"s_add_u32 s64, s64, {hex(CELL_OFF)}")
    I("v_lshl_add_u32 v2, v0, 4, s64")
    I("v_add_u32 v3, 0x4000, v2")
    I("s_mov_b32 s36, 0x0f0f0f0f")
    I("s_mov_b32 s37, s36")
    I(f"s_mov_b32 s38, {12*INC}")
    I(f"s_mov_b32 s39, {24*INC}")
    I("s_mov_b32 s40, 0xc000")
    I("s_mov_b32 s41, 0xffc0c0c0")
    I(f"s_mov_b32 s42, {49 << 16}")
    I("s_mov_b32 s43, 0")
    I("v_mov_b32 v1, 0")
    I(f"s_mov_b32 s{S_TAB}, s{P_WS}")
    I(f"s_or_b32 s{S_TAB+1}, s{P_WS+1}, 0x1000000")
    I(f"s_mov_b32 s{S_TAB+2}, {0 if OPT['nog'] else TAB_ROWS}")
    I(f"s_mov_b32 s{S_TAB+3}, 0x20000")

def lds_init():
    I("v_add_u32 v5, s2, v3")
    I("v_and_b32 v5, 127, v5")
    I(f"v_mul_u32_u24 v4, {IMG_STRIDE}, v5")
    I("v_lshl_add_u32 v4, v2, 4, v4")
    I("v_lshlrev_b32 v5, 2, v5")
    I("v_mov_b32 v12, 0")
    I("v_mov_b32 v13, 0x3f3f3f")
    I(f"ds_write2st64_b32 v5, v12, v12 offset0:{C1_OFF//256} offset1:{C1_OFF//256+2}")
    for r in range(1 if OPT["init1"] else 2):
        for b in range(2):
            I(f"ds_write_b32 v4, v13 offset:{IMG + b*B2 + r*128 + 12}")
def edge_addr():
    I(f"s_mul_i32 s64, s2, {CHUNK*4}")
    I("v_lshl_add_u32 v10, v0, 4, s64")
    I("v_lshrrev_b32 v11, 1, v10")

def gen():
    o(".p2align 8")
    o(f".globl {KNAME}")
    o(f".type {KNAME},@function")
    L(KNAME)
    I("s_cmp_ge_u32 s2, 256")
    I("s_cbranch_scc1 K_END")
    stamp(0); stamp(1)
    I("s_load_dwordx16 s[4:19], s[0:1], 0")
    I("s_load_dwordx8 s[20:27], s[0:1], 64")
    if OPT["spin"]:
        I("s_memrealtime s[98:99]")
    I("v_lshrrev_b32 v1, 6, v0")
    I("v_and_b32 v2, 7, v0")
    I("v_readfirstlane_b32 s3, v1")
    I("v_lshrrev_b32 v3, 3, v0")
    I("s_mov_b32 s79, 0")
    I("s_cmp_ge_u32 s3, 12")
    I("s_cbranch_scc1 G_ENTRY")

    I("s_cmp_ge_u32 s3, 2")
    I("s_cbranch_scc1 A_NOPF")
    if OPT["codepf"]:
        I("s_getpc_b64 s[64:65]")
        L("A_PC")
        I("v_lshlrev_b32 v8, 7, v0")
        I("v_min_u32 v8, K_SLOW-A_PC-4, v8")
        I("global_load_dword v27, v8, s[64:65]")
    I("v_lshlrev_b32 v8, 4, v0")
    I("v_mov_b64 v[12:13], 0")
    I("v_mov_b64 v[14:15], 0")
    I(f"ds_write_b128 v8, v[12:15] offset:{C2_OFF}")
    L("A_NOPF")
    lds_init()
    edge_addr()
    I(f"v_cmp_gt_u32 vcc, {E*4}, v10")
    I("s_waitcnt lgkmcnt(0)")
    stamp(24)
    if OPT["cfirst"]:
        copy_consts()
    I("s_mov_b64 exec, vcc")
    I("s_cbranch_execz A_NOE")
    edge_loads(0, OPT["pre"])
    I("s_barrier")
    stamp(2)
    edge_loads(OPT["pre"], 3)
    if not OPT["cfirst"]:
        I("s_mov_b64 exec, -1")
        copy_consts()
        I("s_mov_b64 exec, vcc")
    binning(True)
    I("s_mov_b64 exec, -1")
    I("s_branch A_JOIN")
    L("A_NOE")
    I("s_barrier")
    I("s_mov_b64 exec, -1")
    if not OPT["cfirst"]:
        copy_consts()
    I("s_branch A_JOIN")

    XA, FA, FB, ACC1, ACC2 = 28, 36, 68, 104, 36
    L("G_ENTRY")
    if OPT["gprio"]:
        I("s_setprio 3")
    I("v_and_b32 v7, 7, v3")
    I("s_and_b32 s64, s3, 1")
    I("s_lshl_b32 s64, s64, 2")
    I("v_and_b32 v8, 2, v7")
    I("v_xor_b32 v8, v8, v2")
    I("v_xor_b32 v8, s64, v8")
    I("v_lshlrev_b32 v8, 4, v8")
    I("v_lshl_add_u32 v8, v7, 7, v8")
    I("s_and_b32 s65, s3, 3")
    I("s_lshl_b32 s65, s65, 11")
    I("v_add_u32 v8, s65, v8")
    I(f"s_add_u32 s65, s65, {W_OFF}")
    I("s_add_u32 s66, s3, 3")
    I("s_and_b32 s66, s66, 3")
    I("v_xor_b32 v9, v2, v7")
    I("v_lshlrev_b32 v9, 4, v9")
    I("v_lshl_add_u32 v9, v7, 15, v9")
    I("s_lshl_b32 s67, s66, 19")
    I("s_lshl_b32 s68, s2, 7")
    I("s_add_u32 s67, s67, s68")
    I("v_add_u32 v9, s67, v9")
    I("v_add_u32 v15, 0x40000, v9")
    I("s_lshl_b32 s67, s66, 11")
    I(f"s_mov_b32 s{S_X+2}, {N*128}")
    I(f"s_mov_b32 s{S_X+3}, 0x20000")
    I("s_mov_b32 m0, s67")
    I("s_waitcnt lgkmcnt(0)")
    stamp(24)
    I(f"s_mov_b64 {sr(S_X,2)}, {sr(P_X,2)}")
    I(f"buffer_load_dwordx4 v9, {sr(S_X,4)}, 0 offen lds")
    I("s_add_u32 m0, s67, 1024")
    I("s_nop 0")
    I(f"buffer_load_dwordx4 v15, {sr(S_X,4)}, 0 offen lds")
    def w_dma(p, off, va="v8", sd="s65"):
        I(f"s_add_u32 m0, {sd}, {off}")
        I("s_nop 0")
        I(f"global_load_lds_dwordx4 {va}, {sr(p,2)}")
        I(f"global_load_lds_dwordx4 {va}, {sr(p,2)} offset:1024")
    w_dma(P_WB, 0)
    w_dma(P_WV, 8192)
    lds_init()
    edge_addr()
    if OPT["gbar"]:
        I("s_waitcnt lgkmcnt(0)")
        I("s_barrier")
        stamp(2)
    I("s_cmp_eq_u32 s3, 12")
    I("s_cselect_b32 s74, 0xffff, 0")
    I("s_cmp_eq_u32 s2, 255")
    I("s_cselect_b32 s74, 0, s74")
    I("s_mov_b32 s75, 0")
    I("s_mov_b64 exec, s[74:75]")
    I("s_cbranch_execz G_NOE")
    edge_loads()
    L("G_NOE")
    I("s_mov_b64 exec, -1")
    I("v_mov_b32 v126, v8")
    I("v_lshlrev_b32 v100, 4, v2")
    I("s_mov_b32 s78, s65")
    I(f"s_mov_b64 {sr(S_X,2)}, {WS}")
    I(f"s_mov_b32 s{S_X+2}, {TAB_ROWS*256}")
    copy_consts()
    I("v_and_b32 v124, 15, v0")
    I("v_bfe_u32 v125, v0, 4, 2")
    I("v_and_b32 v8, 7, v124")
    I("v_lshlrev_b32 v9, 1, v125")
    I("v_xor_b32 v8, v8, v9")
    I("v_lshlrev_b32 v8, 4, v8")
    I("v_lshl_add_u32 v8, v124, 7, v8")
    I("v_add_u32 v8, s67, v8")
    I("v_xor_b32 v9, 16, v8")
    I("v_lshrrev_b32 v10, 2, v124")
    I("v_and_b32 v11, 2, v10")
    I("v_bfe_u32 v12, v0, 1, 1")
    I("v_or_b32 v11, v11, v12")
    I("v_and_b32 v12, 1, v125")
    I("v_lshl_or_b32 v11, v12, 2, v11")
    I("v_lshlrev_b32 v11, 4, v11")
    I("v_and_b32 v12, 1, v0")
    I("v_lshl_or_b32 v11, v12, 3, v11")
    I("v_lshl_add_u32 v10, v125, 4, v10")
    I("v_lshl_or_b32 v11, v10, 7, v11")
    I(f"v_add_u32 v12, {W_OFF}, v11")
    for T in range(1, 4):
        I(f"v_xor_b32 v{12+T}, {T << 5}, v12")
    I(f"s_mov_b32 s76, {hex(f32(-LOG2E))}")
    I("s_mov_b32 s77, 0x07060302")
    I(f"v_mov_b32 v26, {hex(f32(2.0**-70))}")
    I("s_lshl_b32 s64, s66, 20")
    I("s_lshl_b32 s65, s2, 8")
    I("s_add_u32 s64, s64, s65")
    I("v_lshlrev_b32 v27, 18, v125")
    I("v_lshl_add_u32 v27, v124, 4, v27")
    I("v_add_u32 v27, s64, v27")
    I("v_mov_b32 v10, 1")
    def g_sync(target, lab, arrive=True):
        if arrive:
            I("s_mov_b64 exec, 1")
            I(f"ds_add_u32 v1, v10 offset:{SYNC}")
            I("s_mov_b64 exec, -1")
        L(lab)
        I(f"ds_read_b32 v11, v1 offset:{SYNC}")
        I("s_waitcnt lgkmcnt(0)")
        I("v_readfirstlane_b32 s64, v11")
        I(f"s_cmp_lt_u32 s64, {target}")
        I(f"s_cbranch_scc1 {lab}")
    def frag_reads(F, moff):
        for T in range(4):
            for s in range(2):
                for h in range(2):
                    I(f"ds_read_b64_tr_b16 {vr(F + 8*T + 4*s + 2*h, 2)}, v{12+T} offset:{moff + (8*s+4*h)*128}")
    def mfmas(F, acc, swap, later):
        for T in range(4):
            I(f"s_waitcnt lgkmcnt({min(15, later + 4*(3-T))})")
            for s in range(2):
                a, b = vr(XA + 4*s, 4), vr(F + 8*T + 4*s, 4)
                if swap:
                    a, b = b, a
                c = "0" if s == 0 else vr(acc + 4*T, 4)
                I(f"v_mfma_f32_16x16x32_bf16 {vr(acc+4*T,4)}, {a}, {b}, {c}")
    if not OPT["gbar"]:
        I("s_waitcnt lgkmcnt(0)")
        I("s_barrier")
        stamp(2)
    I("s_cmp_eq_u64 s[74:75], 0")
    I("s_cbranch_scc1 G_W0")
    I("s_waitcnt vmcnt(3)")
    I("s_branch G_W1")
    L("G_W0")
    I("s_waitcnt vmcnt(0)")
    L("G_W1")
    stamp(3)
    g_sync(4, "G_S1")
    stamp(20)
    I(f"ds_read_b128 {vr(XA,4)}, v8")
    I(f"ds_read_b128 {vr(XA+4,4)}, v9")
    frag_reads(FA, 0)
    frag_reads(FB, 8192)
    stamp(21)
    w_dma(P_WA, 16384, "v126", "s78")
    w_dma(P_WU, 24576, "v126", "s78")
    I("s_cmp_eq_u32 s3, 13")
    I("s_cbranch_scc0 G_NOWC")
    I(f"s_mov_b32 m0, {WC_OFF}")
    I("s_mov_b64 exec, 0xff")
    I(f"global_load_lds_dwordx4 v100, {sr(P_WC,2)}")
    I("s_mov_b64 exec, -1")
    L("G_NOWC")
    stamp(22)
    mfmas(FA, ACC1, False, 16)
    mfmas(FB, ACC2, False, 0)
    stamp(23)
    I("s_cmp_eq_u32 s3, 13")
    I("s_cbranch_scc0 G_NOEP")
    I(f"s_add_u32 s70, s{P_WS}, {hex(CTL_OFF)}")
    I(f"s_addc_u32 s71, s{P_WS+1}, 0")
    I("s_load_dwordx2 s[72:73], s[70:71], 8")
    L("G_NOEP")
    ACCB, ACCV, OUTR = ACC1, ACC2, FB
    SD = sdwa("WORD_1")
    I("s_mov_b32 s80, 0x8000")
    I("s_mov_b32 s81, 0x8000")
    I(f"s_mov_b32 s68, {hex(f32(2.0**-100))}")
    I("s_mov_b32 s69, s68")
    I("v_mov_b32 v10, v26")
    I("v_mov_b32 v11, v26")
    I("s_nop 1")
    for rp in (0, 2):
        for t in range(4):
            I(f"v_pk_fma_f32 {vr(ACCB+4*t+rp,2)}, {vr(ACCB+4*t+rp,2)}, s[76:77], v[10:11] op_sel_hi:[1,0,1]")
        for t in (1, 3):
            I(f"v_pk_add_f32 {vr(ACCV+4*t+rp,2)}, {vr(ACCV+4*t+rp,2)}, s[68:69]")
        for t in range(4):
            I(f"v_lshl_add_u64 {vr(ACCB+4*t+rp,2)}, {vr(ACCB+4*t+rp,2)}, 0, s[80:81]")
        for t in range(4):
            I(f"v_lshl_add_u64 {vr(ACCV+4*t+rp,2)}, {vr(ACCV+4*t+rp,2)}, 0, s[80:81]")
        for r in (rp, rp + 1):
            for t in (0, 2):
                I(f"v_sub_u32_sdwa v{ACCB+4*t+r}, v{ACCB+4*t+r}, v{ACCV+4*t+r} clamp {SD}")
            for t in (0, 2):
                I(f"v_sub_u32_sdwa v{ACCV+4*(t+1)+r}, v{ACCV+4*(t+1)+r}, v{ACCB+4*t+r} clamp {SD}")
            for t in (0, 2):
                I(f"v_sub_u32_sdwa v{ACCB+4*(t+1)+r}, v{ACCB+4*(t+1)+r}, v{ACCV+4*(t+1)+r} clamp {SD}")
            for t in range(4):
                I(f"v_perm_b32 v{OUTR+4*r+t}, v{ACCB+4*t+r}, v{ACCV+4*t+r}, s77")
            if r == 0:
                I("s_cmp_eq_u32 s3, 12")
                I("s_cbranch_scc1 G_T3")
            else:
                I("v_add_u32 v27, 0x10000, v27")
            I(f"buffer_store_dwordx4 {vr(OUTR+4*r,4)}, v27, {sr(S_X,4)}, 0 offen sc1")
    stamp(4)
    I("s_cmp_eq_u32 s3, 13")
    I("s_cbranch_scc0 G_BVD")
    I("s_waitcnt lgkmcnt(0)")
    I("s_add_u32 s72, s72, 0x1000000")
    I("s_addc_u32 s73, s73, 0")
    I("s_and_b32 s72, s72, 0xff000000")
    for k in range(3):
        I(f"s_bfe_u32 s64, s73, {hex((2 << 16) | (2*k))}")
        I(f"s_lshl_b32 s64, s64, {6 + 8*k}")
        I("s_or_b32 s72, s72, s64")
        I(f"s_bfe_u32 s64, s73, {hex((2 << 16) | (6 + 2*k))}")
        I("s_lshl_b32 s64, s64, 14")
        I(f"v_mov_b32 v{TG+k}, s64")
    I(f"v_mov_b32 v{TG+3}, s72")
    I(f"ds_write_b128 v1, {vr(TG,4)} offset:{TAGS}")
    L("G_BVD")
    I("s_waitcnt vmcnt(4)")
    I("s_branch G_DONE")
    L("G_T3")
    I("s_cmp_eq_u32 s2, 212")
    I("s_cbranch_scc0 G_NODUM")
    for t in range(4):
        I(f"v_mov_b32 v{OUTR+t}, 0x7f000000")
    L("G_NODUM")
    I(f"buffer_store_dwordx4 {vr(OUTR,4)}, v27, {sr(S_X,4)}, 0 offen sc1")
    I("s_waitcnt vmcnt(5)")
    I("s_mov_b64 exec, s[74:75]")
    I("s_cbranch_execz G_NOBIN")
    I("v_mov_b32 v126, v14")
    binning(False)
    I("v_mov_b32 v14, v126")
    L("G_NOBIN")
    I("s_mov_b64 exec, -1")
    I(f"ds_read_b128 {vr(XA,4)}, v8")
    I(f"ds_read_b128 {vr(XA+4,4)}, v9")
    stamp(4)
    I("s_waitcnt vmcnt(1)")
    L("G_DONE")
    if OPT["gprio"] and not OPT["cprio"]:
        I("s_setprio 0")
    stamp(5)

    L("A_JOIN")
    if OPT["cprio"]:
        I("s_setprio 3")
    I("s_waitcnt lgkmcnt(0)")
    stamp(6)
    I("s_barrier")
    stamp(7)
    C0 = 48
    I(f"ds_read_b128 {vr(TG,4)}, v1 offset:{TAGS}")
    I(f"ds_read2st64_b32 v[8:9], v5 offset0:{C1_OFF//256} offset1:{C1_OFF//256+2}")
    I(f"ds_read_b128 {vr(C0,4)}, v4 offset:{IMG}")
    I(f"ds_read_b128 {vr(C0+4,4)}, v4 offset:{IMG+B2}")
    def tagit(c):
        for k in range(3):
            I(f"v_bfi_b32 v{c+k}, s40, v{TG+k}, v{c+k}")
        I(f"v_or_b32 v{c+3}, v{TG+3}, v{c+3}")
    I("s_waitcnt lgkmcnt(2)")
    I("v_cmp_le_u32 s[72:73], s38, v8")
    I("v_cmp_le_u32 s[74:75], s38, v9")
    I("v_max_u32 v10, v8, v9")
    I("v_cmp_le_u32 vcc, s39, v10")
    I("s_waitcnt lgkmcnt(1)")
    tagit(C0)
    I("s_or_b64 exec, s[72:73], s[36:37]")
    I(f"global_store_dwordx4 v6, {vr(C0,4)}, {WS} sc1")
    I("s_or_b64 exec, s[74:75], s[36:37]")
    I("s_waitcnt lgkmcnt(0)")
    tagit(C0 + 4)
    I(f"global_store_dwordx4 v7, {vr(C0+4,4)}, {WS} sc1")
    I("s_cbranch_vccnz R_PUB2")
    L("A_PUBD")
    I("s_mov_b64 exec, -1")
    if OPT["cprio"]:
        I("s_setprio 0")
    stamp(8)
    I("s_cmp_ge_u32 s3, 12")
    I("s_cbranch_scc0 B_NOAU")
    I("s_setprio 1")
    FU, FW, UU = 36, 84, 52
    def half_gemm(moff, acc, swap):
        for T in range(4):
            F = (FU if T < 2 else FW) + 8 * (T & 1)
            for s in range(2):
                for h in range(2):
                    I(f"ds_read_b64_tr_b16 {vr(F + 4*s + 2*h, 2)}, v{12+T} offset:{moff + (8*s+4*h)*128}")
        for T in range(4):
            F = (FU if T < 2 else FW) + 8 * (T & 1)
            I(f"s_waitcnt lgkmcnt({4*(3-T)})")
            for s in range(2):
                a, b = vr(XA + 4*s, 4), vr(F + 4*s, 4)
                if swap:
                    a, b = b, a
                c = "0" if s == 0 else vr(acc + 4*T, 4)
                I(f"v_mfma_f32_16x16x32_bf16 {vr(acc+4*T,4)}, {a}, {b}, {c}")
    half_gemm(16384, AP, False)
    I(f"s_lshl_b32 s64, s2, {OPT['fs']-2}")
    I("s_add_u32 s64, s64, s66")
    I("s_lshl_b32 s64, s64, 2")
    I(f"s_add_u32 s64, s64, {hex(FLG_OFF)}")
    I("v_mov_b32 v26, s64")
    I("s_waitcnt vmcnt(2)")
    I("s_mov_b64 exec, 1")
    I(f"global_store_dword v26, v{TG+3}, {WS} sc1")
    I("s_mov_b64 exec, -1")
    half_gemm(24576, UU, True)
    I(f"s_mul_i32 s65, s66, {16*EAU_STRIDE}")
    I(f"s_add_u32 s65, s65, {EAU_OFF}")
    I(f"v_mul_u32_u24 v26, {4*EAU_STRIDE}, v125")
    I("v_lshl_add_u32 v26, v124, 4, v26")
    I("v_add_u32 v25, s65, v26")
    I(f"v_mul_u32_u24 v27, {EAU_STRIDE}, v124")
    I("v_lshl_add_u32 v27, v125, 4, v27")
    I("v_add_u32 v27, s65, v27")
    for i in range(16):
        I(f"v_mul_f32 v{AP+i}, s76, v{AP+i}")
    I("s_cmp_eq_u32 s3, 12")
    I("s_cselect_b32 exec_lo, 0x000f000f, -1")
    I("s_cselect_b32 exec_hi, 0x000f000f, -1")
    for T in range(4):
        I(f"ds_write_b128 v27, {vr(UU+4*T,4)} offset:{256 + T*64}")
    I("s_cselect_b32 exec_hi, 0, -1")
    I("s_cselect_b32 exec_lo, 0xffff, -1")
    I(f"v_max3_f32 v26, |v{AP}|, |v{AP+1}|, |v{AP+2}|")
    for i in range(3, 15, 2):
        I(f"v_max3_f32 v26, |v{AP+i}|, |v{AP+i+1}|, v26")
    I(f"v_max_f32 v26, |v{AP+15}|, v26")
    I(f"v_cmp_nge_f32 vcc, {hex(f32(63.0))}, v26")
    EAT = 36
    for r in range(4):
        for t in range(4):
            I(f"v_add_f32 v{EAT+4*r+t}, {hex(f32(-float(KEXP)))}, v{AP+4*t+r}")
        for t in range(4):
            I(f"ds_write_b32 v25, v{AP+4*t+r} offset:{r*EAU_STRIDE + 512 + 4*t}")
            I(f"v_exp_f32 v{EAT+4*r+t}, v{EAT+4*r+t}")
        I("s_nop 0")
        I(f"ds_write_b128 v25, {vr(EAT+4*r,4)} offset:{r*EAU_STRIDE}")
        if r == 0:
            I("s_cbranch_scc1 G_EAD")
    L("G_EAD")
    I("s_mov_b64 exec, -1")
    I("s_cmp_lg_u64 vcc, 0")
    I("s_cselect_b32 s79, 1, 0")
    L("B_NOAU")

    RA, CA, KA, RB, CB, KB = 8, 24, 36, 64, 72, 78
    XB, Y, A = 48, 80, 100
    IP = (96, 98, 104, 106)
    UR, XR, VOUT, VU, LP, EP = 108, 112, 116, 117, 118, 120
    WCB, DEN, NUM, VOOB, C4, VRA, VSE, EA, P, Q, SS, LC = 16, 20, 44, 30, 31, 42, 32, 12, 24, 8, 36, 4
    I("v_and_b32 v5, 63, v0")
    I("s_cmp_lt_u32 s2, 212")
    I("s_cselect_b32 s64, 49, 48")
    I("v_cmp_gt_u32 s[82:83], s64, v5")
    I("v_lshlrev_b32 v5, 2, v5")
    I(f"v_and_b32 v{LC}, 15, v0")
    I(f"v_lshlrev_b32 v6, 1, v{LC}")
    for j in range(4):
        I(f"ds_read_u16 v{WCB+j}, v6 offset:{WC_OFF + 32*j}")
    I(f"v_lshlrev_b32 v{LC}, 4, v{LC}")
    I(f"v_mov_b32 v{C4}, 4")
    I(f"v_mov_b32 v{VOOB}, {OOB}")
    for p_ in IP:
        I(f"v_mov_b32 v{p_+1}, v{LC}")
    I(f"v_lshlrev_b32 v{LP}, 1, v6")
    I(f"v_mov_b32 v{LP+1}, v{LC}")
    I("v_lshrrev_b32 v7, 4, v0")
    I(f"v_mul_u32_u24 v{VU}, {EAU_STRIDE}, v7")
    I(f"s_mov_b32 s64, {EAU_OFF + 256}")
    I(f"v_add3_u32 v{VU}, v{VU}, s64, v{LC}")
    I("v_lshlrev_b32 v8, 2, v6")
    I("v_and_b32 v9, 0x70, v0")
    I("v_xor_b32 v9, v8, v9")
    I("v_lshl_add_u32 v9, v7, 7, v9")
    I(f"ds_read_b64 {vr(XR+2,2)}, v9 offset:{X_OFF}")
    I(f"v_lshl_add_u32 v{VOUT}, v7, 15, v8")
    I("s_lshl_b32 s64, s2, 7")
    I(f"v_add_u32 v{VOUT}, s64, v{VOUT}")
    srd(S_X, P_OUT, N * 128)
    for d in range(0, 4, 2):
        I(f"v_mov_b64 {vr(A+d,2)}, 0")
        I(f"v_mov_b64 {vr(DEN+d,2)}, 0")
        I(f"v_mov_b64 {vr(NUM+d,2)}, 0")
    I("s_mov_b64 s[68:69], -1")
    I("s_mov_b64 s[70:71], -1")
    I("s_cmp_lt_u32 s3, 4")
    I("s_cselect_b32 s78, 2, 0")
    I(f"s_mov_b32 s16, {hex(f32(2.0**-KEXP))}")
    I("s_mov_b32 s17, s16")
    I(f"s_mov_b32 s18, {hex(f32(1e-6 * 2.0**KEXP))}")
    I("s_mov_b32 s19, s18")
    I("s_mov_b32 s20, 32")
    I("s_mov_b32 s21, 32")
    I(f"s_mov_b32 s24, {SLOT_STRIDE}")
    I(f"s_mov_b32 s25, {EAU_STRIDE}")
    I(f"s_mov_b32 s85, {LIST_OFF}")
    I("s_mov_b32 s56, 0x11111111")
    I("s_mov_b32 s57, s56")
    I("s_lshl_b64 s[58:59], s[56:57], 1")
    I("s_lshl_b64 s[60:61], s[56:57], 2")
    I("s_lshl_b64 s[62:63], s[56:57], 3")
    I("v_bfe_u32 v124, v0, 4, 2")
    I("v_bfe_u32 v125, v0, 5, 1")
    I("v_bfe_u32 v126, v0, 2, 1")
    I("v_lshl_add_u32 v125, v126, 1, v125")
    I("v_bfe_u32 v126, v0, 3, 2")
    I("v_lshlrev_b32 v126, 2, v126")
    I("v_bfe_u32 v34, v0, 2, 3")
    I("s_lshl_b32 s64, s3, 3")
    I("s_sub_u32 s64, s2, s64")
    I("v_sub_u32 v34, s64, v34")
    I("v_and_b32 v34, 127, v34")
    I("v_and_b32 v35, 32, v0")
    I("v_lshl_add_u32 v34, v35, 2, v34")
    I("v_and_b32 v35, 3, v0")
    if OPT["pf"] or OPT["pf2"] or OPT["pf3"]:
        I("v_lshlrev_b32 v33, 8, v34")
        I("v_lshl_add_u32 v33, v35, 20, v33")
        I("s_lshr_b32 s64, s2, 4")
        I("s_lshl_b32 s64, s64, 16")
        I("s_bfe_u32 s65, s2, 0x10003")
        I("s_lshl_b32 s65, s65, 7")
        I("s_add_u32 s64, s64, s65")
        I("v_add_u32 v33, s64, v33")
    I(f"v_lshlrev_b32 v34, {OPT['fs']}, v34")
    I("v_lshl_add_u32 v34, v35, 2, v34")
    I(f"v_add_u32 v34, {hex(FLG_OFF)}, v34")
    I(f"s_mov_b32 s64, {hex(f32(-LOG2E))}")
    I("s_mov_b32 s66, 0x0000ffff")
    I("s_mov_b32 s67, 0xffff0000")
    I("s_waitcnt lgkmcnt(0)")
    for j in range(4):
        I(f"v_lshlrev_b32 v{WCB+j}, 16, v{WCB+j}")
    for j in range(4):
        I(f"v_mul_f32 v{WCB+j}, s64, v{WCB+j}")
    for j in range(4):
        I(f"v_cvt_pk_bf16_f32 v{WCB+j}, 0, v{WCB+j}")
    for j in range(4):
        I(f"v_cndmask_b32 v{WCB+j}, 0, v{WCB+j}, s[66:67]")
    I(f"v_lshlrev_b32 v{XR}, 16, v{XR+2}")
    I(f"v_and_b32 v{XR+1}, 0xffff0000, v{XR+2}")
    I(f"v_lshlrev_b32 v{XR+2}, 16, v{XR+3}")
    I(f"v_and_b32 v{XR+3}, 0xffff0000, v{XR+3}")
    I("s_setprio 0")
    I("s_waitcnt vmcnt(0)")
    if OPT["delay"]:
        I(f"s_sleep {OPT['delay']}")
    stamp(9)
    I(f"global_load_dwordx4 {vr(RA,4)}, v2, {WS} sc1")
    I(f"global_load_dwordx4 {vr(RA+4,4)}, v3, {WS} sc1")

    def poll(R_, first, name):
        L(name)
        I("s_waitcnt vmcnt(0)")
        for k in range(2):
            I(f"s_mov_b64 exec, s[{68+2*k}:{69+2*k}]")
            for j in range(4):
                I(f"v_xor_b32 v{R_+4*k+j}, v{TG+j}, v{R_+4*k+j}")
        I("s_mov_b64 exec, -1")
        for k in range(2):
            r = R_ + 4 * k
            I(f"v_or3_b32 v{6+k}, v{r}, v{r+1}, v{r+2}")
            I(f"v_and_b32 v{6+k}, s40, v{6+k}")
            I(f"v_and_or_b32 v{6+k}, v{r+3}, s41, v{6+k}")
            I(f"v_cmp_ne_u32 s[{68+2*k}:{69+2*k}], 0, v{6+k}")
            I(f"v_cmp_gt_u32 s[{64+2*k}:{65+2*k}], s42, v{r+3}")
        if first:
            for k in range(2):
                I(f"s_andn2_b64 s[{64+2*k}:{65+2*k}], s[{64+2*k}:{65+2*k}], s[{68+2*k}:{69+2*k}]")
                I(f"s_lshl_b64 s[{74+2*k}:{75+2*k}], s[{64+2*k}:{65+2*k}], 1")
                I(f"s_or_b64 s[{74+2*k}:{75+2*k}], s[{74+2*k}:{75+2*k}], s[36:37]")
        I("s_and_b64 s[72:73], s[68:69], s[74:75]")
        I("s_and_b64 s[80:81], s[70:71], s[76:77]")
        I("s_or_b64 s[72:73], s[72:73], s[80:81]")
        I(f"s_cbranch_scc1 {name}_RETRY")
    def retry(R_, first, name):
        L(name + "_RETRY")
        if first:
            for k in range(4):
                I(f"s_and_b32 s72, s{68+k}, s{74+k}")
                I("s_lshl_b32 s73, s72, 1")
                I("s_or_b32 s72, s72, s73")
                I("s_lshl_b32 s73, s72, 2")
                I("s_or_b32 s72, s72, s73")
                I("s_lshl_b32 s73, s72, 4")
                I("s_or_b32 s72, s72, s73")
                I(f"s_and_b32 s{68+k}, s{68+k}, s72")
        else:
            I("s_and_b64 s[68:69], s[68:69], s[74:75]")
            I("s_and_b64 s[70:71], s[70:71], s[76:77]")
        I("s_add_u32 s43, s43, 1")
        I(f"s_cmp_gt_u32 s43, {POLL_LIMIT}")
        I("s_cbranch_scc1 R_TIMEOUT")
        if OPT["sleep"]:
            I(f"s_sleep {OPT['sleep']}")
        reload(R_, name)
        I(f"s_branch {name}")
    def reload(R_, name):
        I("s_mov_b64 exec, s[68:69]")
        I(f"s_cbranch_execz {name}_1")
        I(f"global_load_dwordx4 {vr(R_,4)}, v2, {WS} sc1")
        L(name + "_1")
        I("s_mov_b64 exec, s[70:71]")
        I(f"s_cbranch_execz {name}_2")
        I(f"global_load_dwordx4 {vr(R_+4,4)}, v3, {WS} sc1")
        L(name + "_2")
    def ranks(R_, C_, K_, M_):
        for k in range(2):
            for j in range(3):
                I(f"v_lshlrev_b32_sdwa v{C_+3*k+j}, 2, v{R_+4*k+3} {sdwa('BYTE_'+str(j))}")
        for k in range(2):
            I(f"s_mov_b64 exec, s[{74+2*k}:{75+2*k}]")
            for j in range(3):
                m = M_ + 2 * (3 * k + j)
                I(f"v_cmp_gt_u32_sdwa s[{m}:{m+1}], 49, v{R_+4*k+3} src0_sel:DWORD src1_sel:BYTE_{j}")
            for j in range(3):
                m = M_ + 2 * (3 * k + j)
                I(f"s_mov_b64 exec, s[{m}:{m+1}]")
                I(f"ds_add_rtn_u32 v{K_+3*k+j}, v{C_+3*k+j}, v{C4} offset:{C2_OFF}")
        I("s_mov_b64 exec, -1")
    def more_test():
        I("s_and_b64 s[64:65], s[64:65], s[74:75]")
        I("s_and_b64 s[66:67], s[66:67], s[76:77]")
        I("s_or_b64 s[72:73], s[64:65], s[66:67]")
        I("s_or_b32 s72, s72, s73")
        I("s_and_b32 s72, s72, 0x80808080")
    MA, MB = 44, 4

    poll(RA, True, "B_P0")
    stamp(10)
    if OPT["ef"]:
        I(f"global_load_dword v35, v34, {WS} sc1")
    ranks(RA, CA, KA, MA)
    more_test()
    I("s_or_b32 s72, s72, s79")
    I("s_cbranch_scc1 R_MORE")
    L("B_RDONE")
    if OPT["stamp"]:
        I("v_writelane_b32 v127, s43, 19")
    I("s_waitcnt lgkmcnt(0)")
    I("s_barrier")
    stamp(11)
    I(f"ds_read_b32 v6, v5 offset:{C2_OFF}")
    if not OPT["ef"]:
        I(f"global_load_dword v35, v34, {WS} sc1")
    elif OPT["pf"]:
        I("s_sub_u32 s64, s3, 4")
        I(f"s_cmp_lt_u32 s64, {OPT['pf']}")
        I("s_cbranch_scc0 B_NOPF")
        I("s_waitcnt vmcnt(0)")
        I(f"v_cmp_eq_u32 vcc, v{TG+3}, v35")
        I("s_mov_b64 exec, vcc")
        I("s_cbranch_execz B_NOPF0")
        I(f"global_load_dword v84, v33, {WS} sc1")
        L("B_NOPF0")
        I("s_mov_b64 exec, -1")
        L("B_NOPF")
    I("s_waitcnt lgkmcnt(0)")
    I("v_add_u32 v2, 7, v6")
    I("v_and_b32 v2, -8, v2")
    I("v_max_u32 v2, 8, v2")
    I("v_cndmask_b32 v2, 0, v2, s[82:83]")
    I("v_mov_b32 v3, v2")
    for d in ("row_shr:1 row_mask:0xf", "row_shr:2 row_mask:0xf", "row_shr:4 row_mask:0xf",
              "row_shr:8 row_mask:0xf", "row_bcast:15 row_mask:0xa", "row_bcast:31 row_mask:0xc"):
        I("s_nop 1")
        I(f"v_add_u32_dpp v3, v3, v3 {d} bank_mask:0xf")
    I("v_sub_u32 v7, v3, v2")
    I(f"ds_write_b32 v5, v7 offset:{BASE}")
    I("v_readlane_b32 s64, v3, 63")
    def lookup(C_):
        for i in range(6):
            I(f"ds_read_b32 v{C_+i}, v{C_+i} offset:{BASE}")
    def scatter(R_, C_, K_, M_):
        for i in range(6):
            if i % 3 == 0:
                I(f"s_waitcnt lgkmcnt({3-i})")
            I(f"v_add3_u32 v{C_+i}, v{C_+i}, v{K_+i}, s85")
        for i in range(6):
            I(f"s_mov_b64 exec, s[{M_+2*i}:{M_+2*i+1}]")
            I(f"ds_write_b32 v{C_+i}, v{R_+4*(i//3)+i%3}")
        I("s_mov_b64 exec, -1")
    lookup(CA)
    I("s_add_u32 s65, s64, 31")
    I("s_lshr_b32 s66, s65, 9")
    I("s_bfe_u32 s67, s65, 0x40005")
    I("s_mul_i32 s68, s66, s3")
    I("s_min_u32 s69, s67, s3")
    I("s_add_u32 s68, s68, s69")
    I("s_lshl_b32 s68, s68, 5")
    I("s_cmp_lt_u32 s3, s67")
    I("s_addc_u32 s72, s66, 0")
    I("s_lshl_b32 s69, s72, 3")
    I("s_add_u32 s70, s68, s85")
    if OPT["pf3"]:
        I(f"s_sub_u32 s71, s3, {OPT['pfw']}")
        I(f"s_cmp_lt_u32 s71, {OPT['pf3']}")
        I("s_cbranch_scc0 B_NOPF3")
        I("s_waitcnt vmcnt(0)")
        I(f"v_cmp_eq_u32 vcc, v{TG+3}, v35")
        I("s_andn2_b64 exec, vcc, s[62:63]")
        I("s_cbranch_execz B_NOPF30")
        I(f"global_load_dword v84, v33, {WS} sc1")
        L("B_NOPF30")
        I("s_mov_b64 exec, -1")
        L("B_NOPF3")
    scatter(RA, CA, KA, MA)
    I(f"v_mul_u32_u24 v{VRA}, s69, v124")
    I(f"v_mul_u32_u24 v{VRA+1}, s69, v125")
    I(f"v_add_u32 v{VRA}, s70, v{VRA}")
    I(f"v_add3_u32 v{VRA+1}, v{VRA+1}, s70, v126")
    if OPT["pf"] and OPT["ef"]:
        I("s_sub_u32 s71, s3, 4")
        I(f"s_cmp_lt_u32 s71, {OPT['pf']}")
        I("s_cbranch_scc1 B_FLW")
    if OPT["pf3"]:
        I(f"s_cmp_lt_u32 s71, {OPT['pf3']}")
        I("s_cbranch_scc1 B_FLW")
    I("s_waitcnt vmcnt(0)")
    L("B_FLW")
    I(f"v_cmp_ne_u32 vcc, v{TG+3}, v35")
    I("s_cmp_lg_u32 s78, 0")
    I("s_cbranch_scc1 R_EXTRA")
    L("B_XDONE")
    I("s_cbranch_vccnz R_FLAGS")
    L("B_FDONE")
    if OPT["pf2"]:
        I(f"s_cmp_lt_u32 s3, {OPT['pf2']}")
        I("s_cbranch_scc0 B_NOPF2")
        I(f"global_load_dword v84, v33, {WS} sc1")
        L("B_NOPF2")
    I("s_waitcnt lgkmcnt(0)")
    I("s_barrier")
    stamp(12)
    def i_reads(batch, lo=0, hi=4):
        for i in range(lo, hi):
            I(f"ds_read_u16 v{IP[i]}, v{VRA} offset:{16*batch + 4*i}")
    def a_reads(batch):
        for d in range(4):
            I(f"s_mov_b64 exec, s[{56+2*d}:{57+2*d}]")
            I(f"ds_read_b32 v{A+d}, v{VRA+1} offset:{16*batch}")
        I("s_mov_b64 exec, -1")
    def gathers(x, lo, hi):
        for i in range(lo, hi):
            I(f"buffer_load_dwordx4 {vr(x+4*i,4)}, {vr(IP[i],2)}, {sr(S_TAB,4)}, 0 idxen offen {OPT['gsc'] if OPT['gsc'] != 'none' else ''}")
    i_reads(0)
    I("v_and_b32 v9, 0x3f0, v0")
    I(f"ds_read_b128 {vr(VSE,4)}, v9 offset:{STR}")
    I(f"ds_read_b32 v8, v1 offset:{FLAG}")
    if OPT["prio"]:
        I("s_setprio 3")
    I("s_waitcnt lgkmcnt(2)")
    gathers(XB, 0, 4)
    stamp(13)
    i_reads(1)
    I(f"ds_read_b128 {vr(EP,4)}, v9 offset:{EPI}")
    I(f"ds_read_b128 {vr(UR,4)}, v{VU}")
    I("s_waitcnt lgkmcnt(6)")
    I("v_readfirstlane_b32 s80, v8")
    I(f"v_lshl_add_u64 {vr(VSE,2)}, {vr(VSE,2)}, 0, {vr(LP,2)}")
    I(f"ds_read_b128 {vr(EA,4)}, v{VSE+1}")
    for q in range(4):
        I(f"v_readlane_b32 s{44+q}, v{VSE+2}, {16*q}")
    I(f"s_cmp_gt_u32 s64, {LIST_MAX}")
    I("s_cselect_b32 s81, 1, 0")
    I("s_or_b32 s80, s80, s81")
    if OPT["force_slow"]:
        I("s_branch K_SLOW")
    I("s_cbranch_scc1 K_SLOW")
    a_reads(0)
    for q in range(4):
        if OPT["cut"] & 8:
            I(f"s_mov_b32 s{44+q}, 0")
        I(f"s_bitset1_b32 s{44+q}, s72")
    I("s_or_b32 s82, s44, s45")
    I("s_or_b32 s83, s46, s47")
    I("s_or_b32 s82, s82, s83")
    I("s_bfm_b32 s83, s72, 0")
    I("s_lshr_b32 s83, s83, 4")
    I("s_mov_b32 s73, 0")
    I("s_waitcnt lgkmcnt(5)")
    gathers(XB + 16, 0, 4)
    i_reads(2)
    for k in range(3):
        I(f"v_add_u32 v{EP+k}, v{EP+k}, v{LC}")
    I(f"v_cmp_lt_i32 s[48:49], 2, v{EP+3}")
    I("s_cmp_eq_u32 s72, 0")
    I("s_cbranch_scc1 K_JOIN")
    def mfma(x):
        I(f"v_mfma_f32_32x32x16_bf16 {vr(Y,16)}, {vr(A,4)}, {vr(WCB,4)}, {vr(x,16)}")
    stamp(14)
    I("s_waitcnt vmcnt(4) lgkmcnt(4)")
    mfma(XB)
    stamp(15)
    a_reads(1)
    nth = len(str(OPT["prio"]).split("_")) if OPT["prio"] else 0
    if OPT["prio"]:
        I(f"s_setprio {nth}")
    I("s_nop 2")
    L("K_LOOP")
    if OPT["prio"]:
        I("s_sub_u32 s74, s72, s73")
        for k, t_ in enumerate(int(x) for x in str(OPT["prio"]).split("_")):
            I(f"s_cmp_gt_u32 s74, {t_}")
            I("s_cbranch_scc1 K_STEP0")
            I(f"s_setprio {nth-1-k}")
    for u in range(4):
        bb, hh = u >> 1, u & 1
        x = XB + 16 * bb + 8 * hh
        t = Y + 8 * hh
        L(f"K_STEP{u}")
        for i in range(8):
            I(f"v_exp_f32 v{t+i}, v{t+i}")
        for i in range(4):
            I(f"v_lshlrev_b64 {vr(x+2*i,2)}, 16, {vr(x+2*i,2)}")
        for i in range(4):
            I(f"v_pk_fma_f32 {vr(t+2*i,2)}, {vr(t+2*i,2)}, {vr(EA+2*(i&1),2)}, s[16:17] clamp")
        I(f"v_pk_mul_f32 {vr(P,2)}, {vr(t,2)}, {vr(t+4,2)}")
        I(f"v_pk_mul_f32 {vr(P+2,2)}, {vr(t+2,2)}, {vr(t+6,2)}")
        I(f"v_pk_mul_f32 {vr(Q,2)}, {vr(x,2)}, {vr(t+4,2)}")
        I(f"v_pk_mul_f32 {vr(Q+2,2)}, {vr(x+2,2)}, {vr(t+6,2)}")
        I(f"v_pk_add_f32 {vr(SS,2)}, {vr(t,2)}, {vr(t+4,2)}")
        I(f"v_pk_add_f32 {vr(SS+2,2)}, {vr(t+2,2)}, {vr(t+6,2)}")
        I(f"v_pk_fma_f32 {vr(Q,2)}, {vr(x+4,2)}, {vr(t,2)}, {vr(Q,2)}")
        I(f"v_pk_fma_f32 {vr(Q+2,2)}, {vr(x+6,2)}, {vr(t+2,2)}, {vr(Q+2,2)}")
        if OPT["sup"]:
            I(f"s_bitcmp1_b32 s83, {u}")
            I(f"s_cselect_b32 s{S_TAB+2}, s{S_TAB+2}, 0")
        if hh == 0:
            I("s_waitcnt lgkmcnt(0)")
            if not OPT["cut"] & 4:
                gathers(XB + 16 * bb, 0, 2)
            for i in range(4):
                I(f"v_rcp_f32 v{P+i}, v{P+i}")
        else:
            I("s_waitcnt vmcnt(2)")
            if not OPT["cut"] & 1:
                mfma(XB + 16 * (1 - bb))
            for i in range(4):
                I(f"v_rcp_f32 v{P+i}, v{P+i}")
            if not OPT["cut"] & 4:
                gathers(XB + 16 * bb, 2, 4)
        I(f"v_pk_fma_f32 {vr(NUM,2)}, {vr(Q,2)}, {vr(P,2)}, {vr(NUM,2)}")
        I(f"v_pk_fma_f32 {vr(DEN,2)}, {vr(SS,2)}, {vr(P,2)}, {vr(DEN,2)}")
        I(f"v_pk_fma_f32 {vr(NUM+2,2)}, {vr(Q+2,2)}, {vr(P+2,2)}, {vr(NUM+2,2)}")
        I(f"v_pk_fma_f32 {vr(DEN+2,2)}, {vr(SS+2,2)}, {vr(P+2,2)}, {vr(DEN+2,2)}")
        if hh == 1:
            if not OPT["cut"] & 4:
                i_reads(bb + 3)
            if not OPT["cut"] & 2:
                a_reads(bb + 2)
        I(f"s_bitcmp1_b32 s82, {u+1}")
        I(f"s_cbranch_scc1 K_FLUSH{u}")
        L(f"K_BACK{u}")
    I(f"v_lshl_add_u64 {vr(VRA,2)}, {vr(VRA,2)}, 0, s[20:21]")
    I("s_lshr_b32 s82, s82, 4")
    I("s_lshr_b32 s83, s83, 4")
    I("s_add_u32 s73, s73, 4")
    I("s_branch K_LOOP")
    for u in range(4):
        L(f"K_FLUSH{u}")
        I(f"s_add_u32 s74, s73, {u+1}")
        for h in range(2):
            I(f"s_bitcmp1_b32 s{44+2*h}, s74")
            I("s_cselect_b32 s75, 0xffff, 0")
            I(f"s_bitcmp1_b32 s{45+2*h}, s74")
            I("s_cselect_b32 s80, 0xffff0000, 0")
            I(f"s_or_b32 {'exec_hi' if h else 'exec_lo'}, s75, s80")
        I(f"ds_write2_b32 v{VSE}, v{DEN}, v{DEN+1} offset0:0 offset1:16")
        I(f"ds_write2_b32 v{VSE}, v{DEN+2}, v{DEN+3} offset0:32 offset1:48")
        I(f"ds_write2_b32 v{VSE}, v{NUM}, v{NUM+1} offset0:64 offset1:80")
        I(f"ds_write2_b32 v{VSE}, v{NUM+2}, v{NUM+3} offset0:96 offset1:112")
        I("s_cmp_eq_u32 s74, s72")
        I("s_cbranch_scc1 K_JOIN")
        I(f"v_lshl_add_u64 {vr(VSE,2)}, {vr(VSE,2)}, 0, s[24:25]")
        I(f"ds_read_b128 {vr(DEN,4)}, v{VOOB}")
        I(f"ds_read_b128 {vr(NUM,4)}, v{VOOB}")
        I(f"ds_read_b128 {vr(EA,4)}, v{VSE+1}")
        I("s_mov_b64 exec, -1")
        I("s_waitcnt lgkmcnt(0)")
        I(f"s_branch K_BACK{u}")

    L("K_JOIN")
    I("s_mov_b64 exec, -1")
    stamp(16)
    I("s_cmp_lt_u32 s3, 13")
    I("s_waitcnt lgkmcnt(0)")
    I("s_barrier")
    stamp(17)
    I("s_cbranch_scc0 K_FIN")
    for k in range(3):
        I(f"ds_read_b128 {vr(8+8*k,4)}, v{EP+k}")
    for k in range(3):
        I(f"ds_read_b128 {vr(12+8*k,4)}, v{EP+k} offset:256")
    I("s_cmp_lg_u64 s[48:49], 0")
    I("s_waitcnt lgkmcnt(3)")
    for k in (1, 2):
        for i in range(2):
            I(f"v_pk_add_f32 {vr(8+2*i,2)}, {vr(8+2*i,2)}, {vr(8+8*k+2*i,2)}")
    I("s_waitcnt lgkmcnt(0)")
    for k in (1, 2):
        for i in range(2, 4):
            I(f"v_pk_add_f32 {vr(8+2*i,2)}, {vr(8+2*i,2)}, {vr(8+8*k+2*i,2)}")
    I("s_cbranch_scc1 R_LONG")
    L("K_MATH")
    I("v_pk_add_f32 v[8:9], v[8:9], s[18:19]")
    I("v_pk_add_f32 v[10:11], v[10:11], s[18:19]")
    for c in range(4):
        I(f"v_rcp_f32 v{8+c}, v{8+c}")
    I("s_nop 0")
    I(f"v_pk_fma_f32 v[8:9], v[12:13], v[8:9], {vr(UR,2)}")
    I(f"v_pk_fma_f32 v[10:11], v[14:15], v[10:11], {vr(UR+2,2)}")
    for c in range(4):
        I(f"v_max_f32 v{8+c}, 0, v{8+c}")
    I(f"v_pk_add_f32 v[8:9], v[8:9], {vr(XR,2)}")
    I(f"v_pk_add_f32 v[10:11], v[10:11], {vr(XR+2,2)}")
    I("v_cvt_pk_bf16_f32 v12, v8, v9")
    I("v_cvt_pk_bf16_f32 v13, v10, v11")
    I(f"buffer_store_dwordx2 v[12:13], v{VOUT}, {sr(S_X,4)}, 0 offen")
    L("K_FIN")
    stamp(18)
    stamp_out()
    L("K_END")
    I("s_endpgm")

    L("R_PUB2")
    I("s_mov_b64 exec, vcc")
    I(f"ds_read_b128 {vr(C0+8,4)}, v4 offset:{IMG+128}")
    I(f"ds_read_b128 {vr(C0+12,4)}, v4 offset:{IMG+B2+128}")
    I("v_and_b32 v10, 7, v0")
    I(f"v_mul_u32_u24 v10, {3*INC}, v10")
    I(f"v_add_u32 v10, {24*INC}, v10")
    I("s_waitcnt lgkmcnt(0)")
    for b in range(2):
        w3 = C0 + 11 + 4 * b
        I(f"v_and_b32 v{w3}, 0x3f3f3f, v{w3}")
        for j in range(3):
            I(f"v_add_u32 v11, {j*INC}, v10")
            I(f"v_cmp_le_u32 s[72:73], v{8+b}, v11")
            I(f"v_or_b32 v11, {0x3f << (8*j)}, v{w3}")
            I("s_nop 0")
            I(f"v_cndmask_b32 v{w3}, v{w3}, v11, s[72:73]")
    I(f"v_add_u32 v8, {hex(LINE_STRIDE)}, v6")
    I(f"v_add_u32 v9, {hex(LINE_STRIDE)}, v7")
    tagit(C0 + 8)
    tagit(C0 + 12)
    I(f"global_store_dwordx4 v8, {vr(C0+8,4)}, {WS} sc1")
    I(f"global_store_dwordx4 v9, {vr(C0+12,4)}, {WS} sc1")
    I("s_branch A_PUBD")
    retry(RA, True, "B_P0")
    L("R_MORE")
    I("s_cmp_lg_u32 s79, 0")
    I("s_cbranch_scc1 R_REQ")
    for k in range(4):
        I(f"s_lshr_b32 s{74+k}, s{64+k}, 7")
        I(f"s_and_b32 s{74+k}, s{74+k}, 0x01010101")
        I(f"s_mul_i32 s{74+k}, s{74+k}, 0xff")
    I("s_mov_b64 s[68:69], s[74:75]")
    I("s_mov_b64 s[70:71], s[76:77]")
    I(f"v_add_u32 v2, {hex(LINE_STRIDE)}, v2")
    I(f"v_add_u32 v3, {hex(LINE_STRIDE)}, v3")
    reload(RB, "B_N1")
    poll(RB, False, "B_P1")
    ranks(RB, CB, KB, MB)
    I("s_or_b32 s78, s78, 1")
    more_test()
    I("s_cbranch_scc0 B_RDONE")
    I("s_mov_b32 s79, 1")
    I("s_branch R_REQ")
    retry(RB, False, "B_P1")
    L("R_TIMEOUT")
    I("s_mov_b32 s79, 3")
    for k in range(6):
        I(f"s_mov_b64 s[{MA+2*k}:{MA+2*k+1}], 0")
    I(f"v_mov_b32 v35, v{TG+3}")
    L("R_REQ")
    I("v_mov_b32 v6, s79")
    I(f"ds_or_b32 v1, v6 offset:{FLAG}")
    I("s_branch B_RDONE")
    def bump():
        I(f"v_mov_b32 v48, {hex(CTL_OFF)}")
        I("v_mov_b32 v50, 0x1000000")
        I("v_mov_b32 v51, 0")
        I("s_mov_b64 exec, 1")
        I(f"global_atomic_add_x2 v48, v[50:51], {WS} offset:8 sc1")
        I("s_mov_b64 exec, -1")
    L("R_EXTRA")
    I("s_bitcmp1_b32 s78, 0")
    I("s_cbranch_scc0 R_X2")
    I("s_waitcnt lgkmcnt(0)")
    lookup(CB)
    scatter(RB, CB, KB, MB)
    L("R_X2")
    I("s_bitcmp1_b32 s78, 1")
    I("s_cbranch_scc0 B_XDONE")
    I("s_cmp_eq_u32 s3, 1")
    I("s_cbranch_scc1 R_PAD")
    I("s_add_u32 s71, s66, 1")
    I("v_cvt_f32_u32 v48, s71")
    I("v_cvt_f32_u32 v49, s66")
    I("s_lshl_b32 s73, s67, 2")
    I("s_mul_i32 s71, s71, s73")
    I("v_rcp_f32 v48, v48")
    I("v_rcp_f32 v49, v49")
    I("v_cvt_f32_u32 v50, s71")
    I("v_cvt_f32_u32 v51, s73")
    I("v_fma_f32 v50, -v50, v49, v51")
    I(f"v_mov_b32 v51, {hex(f32(0.125))}")
    def stream_of(dst, src, half):
        I(f"v_cvt_f32_u32 v{dst}, v{src}")
        I(f"v_fma_f32 v{dst}, v{dst}, v51, {half}")
        I(f"v_mul_f32 v52, v{dst}, v48")
        I(f"v_fma_f32 v{dst}, v{dst}, v49, v50")
        I(f"v_max_f32 v{dst}, v{dst}, v52")
        I(f"v_cvt_u32_f32 v{dst}, v{dst}")
    stream_of(53, 3, "-0.5")
    I("s_cmp_eq_u32 s3, 2")
    I("s_cbranch_scc1 R_EPI")
    I("s_cmp_eq_u32 s3, 3")
    I("s_cbranch_scc1 R_FIRST")
    I("v_min_u32 v55, s73, v53")
    I("v_mad_u32_u24 v55, v53, s66, v55")
    I("v_lshrrev_b32 v56, 3, v3")
    I("v_sub_u32 v55, v56, v55")
    I("v_lshlrev_b32 v55, v55, 1")
    I("v_lshlrev_b32 v56, 4, v53")
    I("s_mov_b64 exec, s[82:83]")
    I(f"ds_or_b32 v56, v55 offset:{STR + 8}")
    I("s_mov_b64 exec, -1")
    I("s_branch B_XDONE")
    L("R_FIRST")
    I("v_mov_b32 v54, -1")
    I("v_cndmask_b32 v53, 63, v53, s[82:83]")
    I(f"v_mul_u32_u24 v59, {EAU_STRIDE//4}, v5")
    I(f"v_add_u32 v59, {EAU_OFF}, v59")
    I("v_mov_b32_dpp v54, v53 wave_shr:1 row_mask:0xf bank_mask:0xf")
    I("v_lshl_add_u32 v58, v54, 2, v5")
    I(f"v_mul_i32_i24 v58, {SLOT_STRIDE//4}, v58")
    I(f"v_add_u32 v58, {SLOT_OFF}, v58")
    I("v_lshlrev_b32 v54, 4, v54")
    I("v_lshlrev_b32 v53, 4, v53")
    L("R_FIRST1")
    I("v_cmp_lt_i32 s[74:75], v54, v53")
    I("s_mov_b64 exec, s[74:75]")
    I("s_cbranch_execz R_FIRST2")
    I("v_add_u32 v54, 16, v54")
    I(f"v_add_u32 v58, {SLOT_STRIDE}, v58")
    I(f"ds_write_b64 v54, v[58:59] offset:{STR}")
    I("s_branch R_FIRST1")
    L("R_FIRST2")
    I("s_mov_b64 exec, -1")
    I("s_branch B_XDONE")
    L("R_EPI")
    stream_of(54, 7, "0.5")
    I("v_sub_u32 v59, v53, v54")
    I("v_lshl_add_u32 v56, v54, 2, v5")
    I(f"v_mul_u32_u24 v56, {SLOT_STRIDE//4}, v56")
    I(f"v_add_u32 v56, {SLOT_OFF}, v56")
    I("v_cmp_lt_i32 s[74:75], 0, v59")
    I("v_cmp_lt_i32 s[76:77], 1, v59")
    I(f"v_add_u32 v57, {SLOT_STRIDE}, v56")
    I(f"v_add_u32 v58, {2*SLOT_STRIDE}, v56")
    I(f"v_cndmask_b32 v57, v{VOOB}, v57, s[74:75]")
    I(f"v_cndmask_b32 v58, v{VOOB}, v58, s[76:77]")
    I("v_lshlrev_b32 v55, 2, v5")
    I(f"ds_write_b128 v55, v[56:59] offset:{EPI}")
    I("s_branch B_XDONE")
    L("R_PAD")
    I(f"v_mov_b32 v52, {N}")
    I(f"v_add_u32 v53, {LIST_OFF - 8}, v3")
    I("v_cmp_lt_u32 s[74:75], v6, v2")
    I("s_mov_b64 exec, s[74:75]")
    I("ds_write_b32 v53, v52 offset:4")
    I("v_cmp_eq_u32 s[74:75], 0, v6")
    I("s_mov_b64 exec, s[74:75]")
    I("ds_write_b32 v53, v52")
    I("s_mov_b64 exec, 0x3f")
    I("s_add_u32 s71, s64, s85")
    I("v_add_u32 v53, s71, v5")
    I("ds_write_b32 v53, v52")
    I("s_mov_b64 exec, -1")
    I("s_cmp_eq_u32 s2, 0")
    I("s_cbranch_scc0 B_XDONE")
    bump()
    I("s_branch B_XDONE")
    L("R_FLAGS")
    I("s_add_u32 s43, s43, 1")
    I(f"s_cmp_gt_u32 s43, {POLL_LIMIT}")
    I("s_cbranch_scc1 R_FLAGT")
    I("s_sleep 2")
    I("s_mov_b64 exec, vcc")
    I(f"global_load_dword v35, v34, {WS} sc1")
    I("s_waitcnt vmcnt(0)")
    I(f"v_cmp_ne_u32 vcc, v{TG+3}, v35")
    I("s_mov_b64 exec, -1")
    I("s_branch B_XDONE")
    L("R_FLAGT")
    I("v_mov_b32 v52, 3")
    I(f"ds_or_b32 v1, v52 offset:{FLAG}")
    I("s_branch B_FDONE")
    L("R_LONG")
    I("s_mov_b32 s64, 2")
    I("s_mov_b64 vcc, s[48:49]")
    L("R_LONG1")
    I("s_mov_b64 exec, vcc")
    I(f"v_add_u32 v{EP+2}, {SLOT_STRIDE}, v{EP+2}")
    I(f"ds_read_b128 v[16:19], v{EP+2}")
    I(f"ds_read_b128 v[20:23], v{EP+2} offset:256")
    I("s_add_u32 s64, s64, 1")
    I("s_waitcnt lgkmcnt(0)")
    for i in range(4):
        I(f"v_pk_add_f32 {vr(8+2*i,2)}, {vr(8+2*i,2)}, {vr(16+2*i,2)}")
    I(f"v_cmp_lt_i32 vcc, s64, v{EP+3}")
    I("s_cbranch_vccnz R_LONG1")
    I("s_mov_b64 exec, -1")
    I("s_branch K_MATH")

    L("K_SLOW")
    I("s_load_dwordx8 s[4:11], s[0:1], 0")
    I("s_load_dwordx2 s[12:13], s[0:1], 40")
    I("s_load_dwordx2 s[14:15], s[0:1], 64")
    I("s_setprio 0")
    I("s_waitcnt vmcnt(0) lgkmcnt(0)")
    I("s_cmp_eq_u32 s3, 15")
    I("s_cselect_b32 s71, s80, 0")
    I("s_and_b32 s71, s71, 2")
    I("s_cbranch_scc0 K_SL0")
    bump()
    I("s_waitcnt vmcnt(0)")
    L("K_SL0")
    WB2, WV2 = 40, 72
    I("v_lshrrev_b32 v6, 1, v5")
    I("v_add_u32 v7, 4096, v6")
    for (w, p_) in ((WB2, 12), (WV2, 14)):
        for hf in range(2):
            for k in range(16):
                I(f"global_load_ushort v{w + 16*hf + k}, v{6 + hf}, s[{p_}:{p_+1}] offset:{2*k*128}")
                I(f"global_load_ushort v{8 + k}, v{6 + hf}, s[{p_}:{p_+1}] offset:{(2*k+1)*128}")
            I("s_waitcnt vmcnt(0)")
            for k in range(16):
                I(f"v_lshl_or_b32 v{w + 16*hf + k}, v{8 + k}, 16, v{w + 16*hf + k}")
    for i in range(4):
        I(f"v_mov_b32 v{28+i}, 0")
    I("v_lshlrev_b32 v8, 4, v0")
    for k in range(4):
        I(f"ds_write_b128 v8, v[28:31] offset:{SLOT_OFF + k*16384}")
    I(f"ds_read_u16 v18, v6 offset:{WC_OFF}")
    I(f"s_mov_b32 s18, {hex(f32(1e-6))}")
    I("s_mov_b32 s19, s18")
    I(f"s_mov_b32 s16, {hex(f32(-LOG2E))}")
    I(f"v_lshl_add_u32 v17, v124, 2, v{LC}")
    I("v_lshlrev_b32 v10, 1, v5")
    I("s_waitcnt lgkmcnt(0)")
    I("v_lshlrev_b32 v18, 16, v18")
    I("s_barrier")
    I("v_lshlrev_b32 v8, 2, v0")
    I("v_lshlrev_b32 v9, 1, v0")
    I("s_lshl_b32 s70, s3, 6")
    L("K_SLOOP")
    I(f"global_load_dword v11, v8, {sr(P_DST,2)}")
    I(f"global_load_dword v12, v8, {sr(P_SRC,2)}")
    I(f"global_load_ushort v13, v9, {sr(P_E,2)}")
    I("s_waitcnt vmcnt(0)")
    I("v_and_b32 v14, 0xff, v11")
    I("v_cmp_eq_u32 s[74:75], s2, v14")
    L("K_SIN")
    I("s_cmp_eq_u64 s[74:75], 0")
    I("s_cbranch_scc1 K_SNEXT")
    I("s_ff1_i32_b64 s73, s[74:75]")
    I("s_bitset0_b64 s[74:75], s73")
    I("v_readlane_b32 s79, v11, s73")
    I("v_readlane_b32 s80, v12, s73")
    I("v_readlane_b32 s81, v13, s73")
    I("s_lshr_b32 s79, s79, 8")
    I(f"s_mul_i32 s76, s79, {EAU_STRIDE}")
    I(f"s_add_u32 s76, s76, {EAU_OFF + 512}")
    I(f"s_mul_i32 s79, s79, {ACC_STRIDE}")
    I("s_lshl_b32 s80, s80, 7")
    I("s_add_u32 s78, s80, 64")
    I(f"s_load_dwordx16 s[36:51], {sr(P_X,2)}, s80")
    I(f"s_load_dwordx16 s[52:67], {sr(P_X,2)}, s78")
    I("s_lshl_b32 s81, s81, 16")
    I("v_add_u32 v15, s76, v17")
    I("v_add_u32 v16, s79, v10")
    I("ds_read_b32 v22, v15")
    I("v_mul_f32 v20, s81, v18")
    I("v_mov_b32 v21, 0")
    I("s_waitcnt lgkmcnt(0)")
    for k in range(32):
        I(f"v_dot2_f32_bf16 v20, s{36+k}, v{WB2+k}, v20")
        I(f"v_dot2_f32_bf16 v21, s{36+k}, v{WV2+k}, v21")
    I("s_nop 2")
    I("v_fma_f32 v20, v20, s16, v22")
    I("v_exp_f32 v20, v20")
    I("s_nop 0")
    I("v_add_f32 v20, 1.0, v20")
    I("v_rcp_f32 v20, v20")
    I("s_nop 0")
    I("v_mul_f32 v21, v21, v20")
    I("v_cvt_f64_f32 v[24:25], v20")
    I("v_cvt_f64_f32 v[26:27], v21")
    I(f"ds_add_f64 v16, v[24:25] offset:{SLOT_OFF}")
    I(f"ds_add_f64 v16, v[26:27] offset:{SLOT_OFF + 512}")
    I("s_branch K_SIN")
    L("K_SNEXT")
    I("s_add_u32 s70, s70, 1024")
    I("v_add_u32 v8, 4096, v8")
    I("v_add_u32 v9, 2048, v9")
    I(f"s_cmp_lt_u32 s70, {E}")
    I("s_cbranch_scc1 K_SLOOP")
    I("v_lshrrev_b32 v6, 4, v0")
    I(f"v_mul_u32_u24 v6, {ACC_STRIDE}, v6")
    I(f"v_lshl_add_u32 v6, v{LC}, 1, v6")
    I("s_waitcnt lgkmcnt(0)")
    I("s_barrier")
    I("s_cmp_lt_u32 s3, 13")
    I("s_cbranch_scc0 K_FIN")
    I(f"ds_read_b128 v[16:19], v6 offset:{SLOT_OFF}")
    I(f"ds_read_b128 v[20:23], v6 offset:{SLOT_OFF+16}")
    I(f"ds_read_b128 v[24:27], v6 offset:{SLOT_OFF+512}")
    I(f"ds_read_b128 v[28:31], v6 offset:{SLOT_OFF+528}")
    I("s_waitcnt lgkmcnt(0)")
    for c in range(8):
        I(f"v_cvt_f32_f64 v{8+c}, {vr(16+2*c,2)}")
    I("s_branch K_MATH")
    L("SLOW_END")

hdr = open("standalone__edge_featured_mpnn_gatedgcn__graph.s.ref").read().split("\n")
for line in hdr:
    if line.startswith("; Override"):
        break
    o(line)
o(f"; @launch kernel={KNAME} grid=(256,1,1) block=(1024,1,1) lds={LDS_TOTAL}")
o('.amdgcn_target "amdgcn-amd-amdhsa--gfx950"')
o(".text")
gen()
o('.section .rodata,"a"')
o(".p2align 6")
o(f".amdhsa_kernel {KNAME}")
o("  .amdhsa_next_free_vgpr 128")
o("  .amdhsa_next_free_sgpr 102")
o("  .amdhsa_accum_offset 128")
o("  .amdhsa_group_segment_fixed_size 0")
o("  .amdhsa_kernarg_size 96")
o("  .amdhsa_user_sgpr_count 2")
o("  .amdhsa_user_sgpr_kernarg_segment_ptr 1")
o("  .amdhsa_system_sgpr_workgroup_id_x 1")
o(".end_amdhsa_kernel")
open(sys.argv[1], "w").write("\n".join(out) + "\n")
```

```python
import sys, struct

OPT = dict(stamp=0, sts="2_3_4_5_6_7", force_slow=0, prio="16_8_4", spin=0, spinat=18, hack=0, sleep=2, delay=0,
           codepf=1, gprio=1, pf=0, pf2=0, pre=1, cfirst=0, gbar=0, init1=1, pf3=0, pfw=0, drain=0, pf4=0, sup=1, cprio=1, nog=0, gsc="sc1", cut=0, ef=0, fs=4)
for a in sys.argv[2:]:
    k, v = a.split("=")
    OPT[k] = int(v) if v.lstrip("-").isdigit() else v

KNAME = "standalone__edge_featured_mpnn_gatedgcn__graph_kernel"
N = 12500
E = 800000
CHUNK = 3136
TAB_ROWS = N + 1
CTL_OFF = 0x380000
FLG_OFF = 0x390000
CELL_OFF = 0x400000
BIN_STRIDE = 32768 + 256
LINE_STRIDE = 0x900000
STAMP_OFF = 0x4000000
LOG2E = 1.4426950408889634
KEXP = 62
POLL_LIMIT = 100000

X_OFF = 0
WC_OFF = 8192
C1_OFF = 8448
C2_OFF = 9472
FLAG = C2_OFF + 256
SYNC = C2_OFF + 260
TAGS = C2_OFF + 272
BASE = C2_OFF + 512
STR = C2_OFF + 1024
EPI = C2_OFF + 2048
IMG = C2_OFF + 3072
IMG_STRIDE = 272
EAU_OFF = IMG + 256 * IMG_STRIDE
EAU_STRIDE = 800
W_OFF = EAU_OFF + 52 * EAU_STRIDE
LDS_TOTAL = W_OFF + 32768
LIST_OFF = W_OFF
LIST_MAX = 31 * 16 * 32
SLOT_OFF = IMG
SLOT_STRIDE = 576
ACC_STRIDE = 1056
OOB = 0x30000
assert W_OFF % 128 == 0 and 117 * SLOT_STRIDE <= 256 * IMG_STRIDE and LDS_TOTAL <= 163840
INC = 0x5556

def f32(x):
    return struct.unpack("<I", struct.pack("<f", x))[0]

out = []
def o(s=""):
    out.append(s)
def I(s):
    out.append("    " + s)
def L(s):
    out.append(s + ":")
def vr(a, n=1):
    return f"v{a}" if n == 1 else f"v[{a}:{a+n-1}]"
def sr(a, n=1):
    return f"s{a}" if n == 1 else f"s[{a}:{a+n-1}]"
def sdwa(sel1):
    return f"dst_sel:DWORD dst_unused:UNUSED_PAD src0_sel:DWORD src1_sel:{sel1}"

P_X, P_E, P_SRC, P_DST, P_WA, P_WB, P_WC, P_WU, P_WV, P_OUT, P_DBG, P_WS = 4, 6, 8, 10, 12, 14, 16, 18, 20, 22, 24, 26
S_TAB, S_X = 28, 32
WS = sr(P_WS, 2)

STS = [int(x) for x in str(OPT["sts"]).split("_")] if OPT["stamp"] else []
RTS = {12: 28, 17: 29} if OPT["stamp"] == 2 else {}
def stamp(i):
    if OPT["spin"] and OPT["spinat"] == i:
        lab = f"SPIN_{len(out)}"
        I("s_cselect_b32 s92, 1, 0")
        L(lab)
        I("s_memrealtime s[90:91]")
        I("s_waitcnt lgkmcnt(0)")
        I("s_sub_u32 s90, s90, s98")
        I(f"s_cmp_lt_u32 s90, {OPT['spin']}")
        I(f"s_cbranch_scc1 {lab}")
        I("s_cmp_lg_u32 s92, 0")
    if not OPT["stamp"]:
        return
    if i == 0:
        I("s_memrealtime s[86:87]")
    elif i == 1:
        I("s_memtime s[88:89]")
    elif i in STS:
        k = 90 + 2 * STS.index(i)
        I(f"s_memtime s[{k}:{k+1}]")
        if i in RTS:
            k = 90 + 2 * STS.index(RTS[i])
            I(f"s_memrealtime s[{k}:{k+1}]")
def stamp_out():
    if not OPT["stamp"]:
        return
    I("s_mov_b64 exec, -1")
    I("s_waitcnt vmcnt(0) lgkmcnt(0)")
    I("s_memtime s[80:81]")
    I("s_memrealtime s[82:83]")
    I("s_waitcnt lgkmcnt(0)")
    I("v_writelane_b32 v127, s80, 30")
    I("v_writelane_b32 v127, s82, 31")
    I("v_writelane_b32 v127, s86, 0")
    I("v_writelane_b32 v127, s88, 1")
    for i in list(range(2, 19)) + list(range(20, 30)):
        I(f"v_writelane_b32 v127, s{90 + 2*STS.index(i) if i in STS else 88}, {i}")
    I("s_lshl_b32 s84, s2, 4")
    I("s_add_u32 s84, s84, s3")
    I("s_lshl_b32 s84, s84, 7")
    I(f"s_add_u32 s84, s84, {hex(STAMP_OFF)}")
    I("v_and_b32 v1, 63, v0")
    I("v_lshl_add_u32 v1, v1, 2, s84")
    I("s_mov_b64 exec, 0xffffffff")
    I(f"global_store_dword v1, v127, {WS}")

def srd(d, p, size):
    I(f"s_mov_b64 {sr(d,2)}, {sr(p,2)}")
    I(f"s_mov_b32 s{d+2}, {hex(size)}")
    I(f"s_mov_b32 s{d+3}, 0x20000")

D, S, EE = 16, 20, 24
AP = 104
TG = 120
B2 = 128 * IMG_STRIDE

def edge_loads(lo=0, hi=3):
    ins = [f"global_load_dwordx4 {vr(D,4)}, v10, {sr(P_DST,2)}",
           f"global_load_dwordx4 {vr(S,4)}, v10, {sr(P_SRC,2)}",
           f"global_load_dwordx2 {vr(EE,2)}, v11, {sr(P_E,2)}"]
    for x in ins[lo:hi]:
        I(x)

def binning(waits):
    B4, RK, PA = 28, 32, 36
    I(f"v_mov_b32 v14, {INC}")
    I(f"s_mov_b32 s68, {47*INC}")
    I("s_mov_b32 s69, 0x05040100")
    I("s_mov_b32 s70, 0x07060100")
    if waits:
        I("s_waitcnt vmcnt(2)")
        stamp(3)
    for i in range(4):
        I(f"v_lshlrev_b32_sdwa v{B4+i}, 2, v{D+i} {sdwa('BYTE_0')}")
        I(f"ds_add_rtn_u32 v{RK+i}, v{B4+i}, v14 offset:{C1_OFF}")
    for i in range(4):
        I(f"v_mul_u32_u24 v{B4+i}, {IMG_STRIDE//4}, v{B4+i}")
        I(f"v_lshrrev_b32 v{D+i}, 8, v{D+i}")
    for i in range(4):
        I("s_waitcnt lgkmcnt(3)")
        I(f"v_min_u32 v{RK+i}, s68, v{RK+i}")
        I(f"v_lshrrev_b32 v{RK+i}, 14, v{RK+i}")
        I(f"v_lshl_add_u32 v{PA+i}, v{RK+i}, 2, v{B4+i}")
        I(f"v_and_b32 v{RK+i}, 3, v{RK+i}")
        I(f"v_or3_b32 v{RK+i}, v{PA+i}, 12, v{RK+i}")
        I(f"ds_write_b8 v{RK+i}, v{D+i} offset:{IMG}")
    if waits:
        I("s_waitcnt vmcnt(0)")
        stamp(4)
    for i in range(4):
        if OPT["hack"]:
            I(f"v_and_b32 v{S+i}, {OPT['hack']}, v{S+i}")
        I(f"v_perm_b32 v{S+i}, v{EE+(i>>1)}, v{S+i}, s{69+(i&1)}")
        I(f"ds_write_b32 v{PA+i}, v{S+i} offset:{IMG}")

def copy_consts():
    I("s_lshr_b32 s64, s2, 7")
    I("s_lshl_b32 s64, s64, 14")
    I(f"s_add_u32 s64, s64, {hex(CELL_OFF)}")
    I(f"v_mul_u32_u24 v6, {BIN_STRIDE//4}, v5")
    I("v_lshl_add_u32 v6, v0, 4, v6")
    I("v_add_u32 v6, s64, v6")
    I(f"v_add_u32 v7, {128*BIN_STRIDE}, v6")
    I(f"s_mul_i32 s64, s2, {BIN_STRIDE}")
    I(f"s_add_u32 s64, s64, {hex(CELL_OFF)}")
    I("v_lshl_add_u32 v2, v0, 4, s64")
    I("v_add_u32 v3, 0x4000, v2")
    I("s_mov_b32 s36, 0x0f0f0f0f")
    I("s_mov_b32 s37, s36")
    I(f"s_mov_b32 s38, {12*INC}")
    I(f"s_mov_b32 s39, {24*INC}")
    I("s_mov_b32 s40, 0xc000")
    I("s_mov_b32 s41, 0xffc0c0c0")
    I(f"s_mov_b32 s42, {49 << 16}")
    I("s_mov_b32 s43, 0")
    I("v_mov_b32 v1, 0")
    I(f"s_mov_b32 s{S_TAB}, s{P_WS}")
    I(f"s_or_b32 s{S_TAB+1}, s{P_WS+1}, 0x1000000")
    I(f"s_mov_b32 s{S_TAB+2}, {0 if OPT['nog'] else TAB_ROWS}")
    I(f"s_mov_b32 s{S_TAB+3}, 0x20000")

def lds_init():
    I("v_add_u32 v5, s2, v3")
    I("v_and_b32 v5, 127, v5")
    I(f"v_mul_u32_u24 v4, {IMG_STRIDE}, v5")
    I("v_lshl_add_u32 v4, v2, 4, v4")
    I("v_lshlrev_b32 v5, 2, v5")
    I("v_mov_b32 v12, 0")
    I("v_mov_b32 v13, 0x3f3f3f")
    I(f"ds_write2st64_b32 v5, v12, v12 offset0:{C1_OFF//256} offset1:{C1_OFF//256+2}")
    for r in range(1 if OPT["init1"] else 2):
        for b in range(2):
            I(f"ds_write_b32 v4, v13 offset:{IMG + b*B2 + r*128 + 12}")
def edge_addr():
    I(f"s_mul_i32 s64, s2, {CHUNK*4}")
    I("v_lshl_add_u32 v10, v0, 4, s64")
    I("v_lshrrev_b32 v11, 1, v10")

def gen():
    o(".p2align 8")
    o(f".globl {KNAME}")
    o(f".type {KNAME},@function")
    L(KNAME)
    I("s_cmp_ge_u32 s2, 256")
    I("s_cbranch_scc1 K_END")
    stamp(0); stamp(1)
    I("s_load_dwordx16 s[4:19], s[0:1], 0")
    I("s_load_dwordx8 s[20:27], s[0:1], 64")
    if OPT["spin"]:
        I("s_memrealtime s[98:99]")
    I("v_lshrrev_b32 v1, 6, v0")
    I("v_and_b32 v2, 7, v0")
    I("v_readfirstlane_b32 s3, v1")
    I("v_lshrrev_b32 v3, 3, v0")
    I("s_mov_b32 s79, 0")
    I("s_cmp_ge_u32 s3, 12")
    I("s_cbranch_scc1 G_ENTRY")

    I("s_cmp_ge_u32 s3, 2")
    I("s_cbranch_scc1 A_NOPF")
    if OPT["codepf"]:
        I("s_getpc_b64 s[64:65]")
        L("A_PC")
        I("v_lshlrev_b32 v8, 7, v0")
        I("v_min_u32 v8, K_SLOW-A_PC-4, v8")
        I("global_load_dword v27, v8, s[64:65]")
    I("v_lshlrev_b32 v8, 4, v0")
    I("v_mov_b64 v[12:13], 0")
    I("v_mov_b64 v[14:15], 0")
    I(f"ds_write_b128 v8, v[12:15] offset:{C2_OFF}")
    L("A_NOPF")
    lds_init()
    edge_addr()
    I(f"v_cmp_gt_u32 vcc, {E*4}, v10")
    I("s_waitcnt lgkmcnt(0)")
    stamp(24)
    if OPT["cfirst"]:
        copy_consts()
    I("s_mov_b64 exec, vcc")
    I("s_cbranch_execz A_NOE")
    edge_loads(0, OPT["pre"])
    I("s_barrier")
    stamp(2)
    edge_loads(OPT["pre"], 3)
    if not OPT["cfirst"]:
        I("s_mov_b64 exec, -1")
        copy_consts()
        I("s_mov_b64 exec, vcc")
    binning(True)
    I("s_mov_b64 exec, -1")
    I("s_branch A_JOIN")
    L("A_NOE")
    I("s_barrier")
    I("s_mov_b64 exec, -1")
    if not OPT["cfirst"]:
        copy_consts()
    I("s_branch A_JOIN")

    XA, FA, FB, ACC1, ACC2 = 28, 36, 68, 104, 36
    L("G_ENTRY")
    if OPT["gprio"]:
        I("s_setprio 3")
    I("v_and_b32 v7, 7, v3")
    I("s_and_b32 s64, s3, 1")
    I("s_lshl_b32 s64, s64, 2")
    I("v_and_b32 v8, 2, v7")
    I("v_xor_b32 v8, v8, v2")
    I("v_xor_b32 v8, s64, v8")
    I("v_lshlrev_b32 v8, 4, v8")
    I("v_lshl_add_u32 v8, v7, 7, v8")
    I("s_and_b32 s65, s3, 3")
    I("s_lshl_b32 s65, s65, 11")
    I("v_add_u32 v8, s65, v8")
    I(f"s_add_u32 s65, s65, {W_OFF}")
    I("s_add_u32 s66, s3, 3")
    I("s_and_b32 s66, s66, 3")
    I("v_xor_b32 v9, v2, v7")
    I("v_lshlrev_b32 v9, 4, v9")
    I("v_lshl_add_u32 v9, v7, 15, v9")
    I("s_lshl_b32 s67, s66, 19")
    I("s_lshl_b32 s68, s2, 7")
    I("s_add_u32 s67, s67, s68")
    I("v_add_u32 v9, s67, v9")
    I("v_add_u32 v15, 0x40000, v9")
    I("s_lshl_b32 s67, s66, 11")
    I(f"s_mov_b32 s{S_X+2}, {N*128}")
    I(f"s_mov_b32 s{S_X+3}, 0x20000")
    I("s_mov_b32 m0, s67")
    I("s_waitcnt lgkmcnt(0)")
    stamp(24)
    I(f"s_mov_b64 {sr(S_X,2)}, {sr(P_X,2)}")
    I(f"buffer_load_dwordx4 v9, {sr(S_X,4)}, 0 offen lds")
    I("s_add_u32 m0, s67, 1024")
    I("s_nop 0")
    I(f"buffer_load_dwordx4 v15, {sr(S_X,4)}, 0 offen lds")
    def w_dma(p, off, va="v8", sd="s65"):
        I(f"s_add_u32 m0, {sd}, {off}")
        I("s_nop 0")
        I(f"global_load_lds_dwordx4 {va}, {sr(p,2)}")
        I(f"global_load_lds_dwordx4 {va}, {sr(p,2)} offset:1024")
    w_dma(P_WB, 0)
    w_dma(P_WV, 8192)
    lds_init()
    edge_addr()
    if OPT["gbar"]:
        I("s_waitcnt lgkmcnt(0)")
        I("s_barrier")
        stamp(2)
    I("s_cmp_eq_u32 s3, 12")
    I("s_cselect_b32 s74, 0xffff, 0")
    I("s_cmp_eq_u32 s2, 255")
    I("s_cselect_b32 s74, 0, s74")
    I("s_mov_b32 s75, 0")
    I("s_mov_b64 exec, s[74:75]")
    I("s_cbranch_execz G_NOE")
    edge_loads()
    L("G_NOE")
    I("s_mov_b64 exec, -1")
    I("v_mov_b32 v126, v8")
    I("v_lshlrev_b32 v100, 4, v2")
    I("s_mov_b32 s78, s65")
    I(f"s_mov_b64 {sr(S_X,2)}, {WS}")
    I(f"s_mov_b32 s{S_X+2}, {TAB_ROWS*256}")
    copy_consts()
    I("v_and_b32 v124, 15, v0")
    I("v_bfe_u32 v125, v0, 4, 2")
    I("v_and_b32 v8, 7, v124")
    I("v_lshlrev_b32 v9, 1, v125")
    I("v_xor_b32 v8, v8, v9")
    I("v_lshlrev_b32 v8, 4, v8")
    I("v_lshl_add_u32 v8, v124, 7, v8")
    I("v_add_u32 v8, s67, v8")
    I("v_xor_b32 v9, 16, v8")
    I("v_lshrrev_b32 v10, 2, v124")
    I("v_and_b32 v11, 2, v10")
    I("v_bfe_u32 v12, v0, 1, 1")
    I("v_or_b32 v11, v11, v12")
    I("v_and_b32 v12, 1, v125")
    I("v_lshl_or_b32 v11, v12, 2, v11")
    I("v_lshlrev_b32 v11, 4, v11")
    I("v_and_b32 v12, 1, v0")
    I("v_lshl_or_b32 v11, v12, 3, v11")
    I("v_lshl_add_u32 v10, v125, 4, v10")
    I("v_lshl_or_b32 v11, v10, 7, v11")
    I(f"v_add_u32 v12, {W_OFF}, v11")
    for T in range(1, 4):
        I(f"v_xor_b32 v{12+T}, {T << 5}, v12")
    I(f"s_mov_b32 s76, {hex(f32(-LOG2E))}")
    I("s_mov_b32 s77, 0x07060302")
    I(f"v_mov_b32 v26, {hex(f32(2.0**-70))}")
    I("s_lshl_b32 s64, s66, 20")
    I("s_lshl_b32 s65, s2, 8")
    I("s_add_u32 s64, s64, s65")
    I("v_lshlrev_b32 v27, 18, v125")
    I("v_lshl_add_u32 v27, v124, 4, v27")
    I("v_add_u32 v27, s64, v27")
    I("v_mov_b32 v10, 1")
    def g_sync(target, lab, arrive=True):
        if arrive:
            I("s_mov_b64 exec, 1")
            I(f"ds_add_u32 v1, v10 offset:{SYNC}")
            I("s_mov_b64 exec, -1")
        L(lab)
        I(f"ds_read_b32 v11, v1 offset:{SYNC}")
        I("s_waitcnt lgkmcnt(0)")
        I("v_readfirstlane_b32 s64, v11")
        I(f"s_cmp_lt_u32 s64, {target}")
        I(f"s_cbranch_scc1 {lab}")
    def frag_reads(F, moff):
        for T in range(4):
            for s in range(2):
                for h in range(2):
                    I(f"ds_read_b64_tr_b16 {vr(F + 8*T + 4*s + 2*h, 2)}, v{12+T} offset:{moff + (8*s+4*h)*128}")
    def mfmas(F, acc, swap, later):
        for T in range(4):
            I(f"s_waitcnt lgkmcnt({min(15, later + 4*(3-T))})")
            for s in range(2):
                a, b = vr(XA + 4*s, 4), vr(F + 8*T + 4*s, 4)
                if swap:
                    a, b = b, a
                c = "0" if s == 0 else vr(acc + 4*T, 4)
                I(f"v_mfma_f32_16x16x32_bf16 {vr(acc+4*T,4)}, {a}, {b}, {c}")
    if not OPT["gbar"]:
        I("s_waitcnt lgkmcnt(0)")
        I("s_barrier")
        stamp(2)
    I("s_cmp_eq_u64 s[74:75], 0")
    I("s_cbranch_scc1 G_W0")
    I("s_waitcnt vmcnt(3)")
    I("s_branch G_W1")
    L("G_W0")
    I("s_waitcnt vmcnt(0)")
    L("G_W1")
    stamp(3)
    g_sync(4, "G_S1")
    stamp(20)
    I(f"ds_read_b128 {vr(XA,4)}, v8")
    I(f"ds_read_b128 {vr(XA+4,4)}, v9")
    frag_reads(FA, 0)
    frag_reads(FB, 8192)
    stamp(21)
    w_dma(P_WA, 16384, "v126", "s78")
    w_dma(P_WU, 24576, "v126", "s78")
    I("s_cmp_eq_u32 s3, 13")
    I("s_cbranch_scc0 G_NOWC")
    I(f"s_mov_b32 m0, {WC_OFF}")
    I("s_mov_b64 exec, 0xff")
    I(f"global_load_lds_dwordx4 v100, {sr(P_WC,2)}")
    I("s_mov_b64 exec, -1")
    L("G_NOWC")
    stamp(22)
    mfmas(FA, ACC1, False, 16)
    mfmas(FB, ACC2, False, 0)
    stamp(23)
    I("s_cmp_eq_u32 s3, 13")
    I("s_cbranch_scc0 G_NOEP")
    I(f"s_add_u32 s70, s{P_WS}, {hex(CTL_OFF)}")
    I(f"s_addc_u32 s71, s{P_WS+1}, 0")
    I("s_load_dwordx2 s[72:73], s[70:71], 8")
    L("G_NOEP")
    ACCB, ACCV, OUTR = ACC1, ACC2, FB
    SD = sdwa("WORD_1")
    I("s_mov_b32 s80, 0x8000")
    I("s_mov_b32 s81, 0x8000")
    I(f"s_mov_b32 s68, {hex(f32(2.0**-100))}")
    I("s_mov_b32 s69, s68")
    I("v_mov_b32 v10, v26")
    I("v_mov_b32 v11, v26")
    I("s_nop 1")
    for rp in (0, 2):
        for t in range(4):
            I(f"v_pk_fma_f32 {vr(ACCB+4*t+rp,2)}, {vr(ACCB+4*t+rp,2)}, s[76:77], v[10:11] op_sel_hi:[1,0,1]")
        for t in (1, 3):
            I(f"v_pk_add_f32 {vr(ACCV+4*t+rp,2)}, {vr(ACCV+4*t+rp,2)}, s[68:69]")
        for t in range(4):
            I(f"v_lshl_add_u64 {vr(ACCB+4*t+rp,2)}, {vr(ACCB+4*t+rp,2)}, 0, s[80:81]")
        for t in range(4):
            I(f"v_lshl_add_u64 {vr(ACCV+4*t+rp,2)}, {vr(ACCV+4*t+rp,2)}, 0, s[80:81]")
        for r in (rp, rp + 1):
            for t in (0, 2):
                I(f"v_sub_u32_sdwa v{ACCB+4*t+r}, v{ACCB+4*t+r}, v{ACCV+4*t+r} clamp {SD}")
            for t in (0, 2):
                I(f"v_sub_u32_sdwa v{ACCV+4*(t+1)+r}, v{ACCV+4*(t+1)+r}, v{ACCB+4*t+r} clamp {SD}")
            for t in (0, 2):
                I(f"v_sub_u32_sdwa v{ACCB+4*(t+1)+r}, v{ACCB+4*(t+1)+r}, v{ACCV+4*(t+1)+r} clamp {SD}")
            for t in range(4):
                I(f"v_perm_b32 v{OUTR+4*r+t}, v{ACCB+4*t+r}, v{ACCV+4*t+r}, s77")
            if r == 0:
                I("s_cmp_eq_u32 s3, 12")
                I("s_cbranch_scc1 G_T3")
            else:
                I("v_add_u32 v27, 0x10000, v27")
            I(f"buffer_store_dwordx4 {vr(OUTR+4*r,4)}, v27, {sr(S_X,4)}, 0 offen sc1")
    stamp(4)
    I("s_cmp_eq_u32 s3, 13")
    I("s_cbranch_scc0 G_BVD")
    I("s_waitcnt lgkmcnt(0)")
    I("s_add_u32 s72, s72, 0x1000000")
    I("s_addc_u32 s73, s73, 0")
    I("s_and_b32 s72, s72, 0xff000000")
    for k in range(3):
        I(f"s_bfe_u32 s64, s73, {hex((2 << 16) | (2*k))}")
        I(f"s_lshl_b32 s64, s64, {6 + 8*k}")
        I("s_or_b32 s72, s72, s64")
        I(f"s_bfe_u32 s64, s73, {hex((2 << 16) | (6 + 2*k))}")
        I("s_lshl_b32 s64, s64, 14")
        I(f"v_mov_b32 v{TG+k}, s64")
    I(f"v_mov_b32 v{TG+3}, s72")
    I(f"ds_write_b128 v1, {vr(TG,4)} offset:{TAGS}")
    L("G_BVD")
    I("s_waitcnt vmcnt(4)")
    I("s_branch G_DONE")
    L("G_T3")
    I("s_cmp_eq_u32 s2, 212")
    I("s_cbranch_scc0 G_NODUM")
    for t in range(4):
        I(f"v_mov_b32 v{OUTR+t}, 0x7f000000")
    L("G_NODUM")
    I(f"buffer_store_dwordx4 {vr(OUTR,4)}, v27, {sr(S_X,4)}, 0 offen sc1")
    I("s_waitcnt vmcnt(5)")
    I("s_mov_b64 exec, s[74:75]")
    I("s_cbranch_execz G_NOBIN")
    I("v_mov_b32 v126, v14")
    binning(False)
    I("v_mov_b32 v14, v126")
    L("G_NOBIN")
    I("s_mov_b64 exec, -1")
    I(f"ds_read_b128 {vr(XA,4)}, v8")
    I(f"ds_read_b128 {vr(XA+4,4)}, v9")
    stamp(4)
    I("s_waitcnt vmcnt(1)")
    L("G_DONE")
    if OPT["drain"]:
        I("s_waitcnt vmcnt(0)")
    if OPT["gprio"] and not OPT["cprio"]:
        I("s_setprio 0")
    stamp(5)

    L("A_JOIN")
    if OPT["cprio"]:
        I("s_setprio 3")
    I("s_waitcnt lgkmcnt(0)")
    stamp(6)
    I("s_barrier")
    stamp(7)
    C0 = 48
    I(f"ds_read_b128 {vr(TG,4)}, v1 offset:{TAGS}")
    I(f"ds_read2st64_b32 v[8:9], v5 offset0:{C1_OFF//256} offset1:{C1_OFF//256+2}")
    I(f"ds_read_b128 {vr(C0,4)}, v4 offset:{IMG}")
    I(f"ds_read_b128 {vr(C0+4,4)}, v4 offset:{IMG+B2}")
    def tagit(c):
        for k in range(3):
            I(f"v_bfi_b32 v{c+k}, s40, v{TG+k}, v{c+k}")
        I(f"v_or_b32 v{c+3}, v{TG+3}, v{c+3}")
    I("s_waitcnt lgkmcnt(2)")
    I("v_cmp_le_u32 s[72:73], s38, v8")
    I("v_cmp_le_u32 s[74:75], s38, v9")
    I("v_max_u32 v10, v8, v9")
    I("v_cmp_le_u32 vcc, s39, v10")
    I("s_waitcnt lgkmcnt(1)")
    tagit(C0)
    I("s_or_b64 exec, s[72:73], s[36:37]")
    I(f"global_store_dwordx4 v6, {vr(C0,4)}, {WS} sc1")
    I("s_or_b64 exec, s[74:75], s[36:37]")
    I("s_waitcnt lgkmcnt(0)")
    tagit(C0 + 4)
    I(f"global_store_dwordx4 v7, {vr(C0+4,4)}, {WS} sc1")
    I("s_cbranch_vccnz R_PUB2")
    L("A_PUBD")
    I("s_mov_b64 exec, -1")
    if OPT["cprio"]:
        I("s_setprio 0")
    stamp(8)
    I("s_cmp_ge_u32 s3, 12")
    I("s_cbranch_scc0 B_NOAU")
    I("s_setprio 1")
    FU, FW, UU = 36, 84, 52
    def half_gemm(moff, acc, swap):
        for T in range(4):
            F = (FU if T < 2 else FW) + 8 * (T & 1)
            for s in range(2):
                for h in range(2):
                    I(f"ds_read_b64_tr_b16 {vr(F + 4*s + 2*h, 2)}, v{12+T} offset:{moff + (8*s+4*h)*128}")
        for T in range(4):
            F = (FU if T < 2 else FW) + 8 * (T & 1)
            I(f"s_waitcnt lgkmcnt({4*(3-T)})")
            for s in range(2):
                a, b = vr(XA + 4*s, 4), vr(F + 4*s, 4)
                if swap:
                    a, b = b, a
                c = "0" if s == 0 else vr(acc + 4*T, 4)
                I(f"v_mfma_f32_16x16x32_bf16 {vr(acc+4*T,4)}, {a}, {b}, {c}")
    half_gemm(16384, AP, False)
    if not OPT["drain"]:
        I(f"s_lshl_b32 s64, s2, {OPT['fs']-2}")
        I("s_add_u32 s64, s64, s66")
        I("s_lshl_b32 s64, s64, 2")
        I(f"s_add_u32 s64, s64, {hex(FLG_OFF)}")
        I("v_mov_b32 v26, s64")
        I("s_waitcnt vmcnt(2)")
        I("s_mov_b64 exec, 1")
        I(f"global_store_dword v26, v{TG+3}, {WS} sc1")
        I("s_mov_b64 exec, -1")
    half_gemm(24576, UU, True)
    I(f"s_mul_i32 s65, s66, {16*EAU_STRIDE}")
    I(f"s_add_u32 s65, s65, {EAU_OFF}")
    I(f"v_mul_u32_u24 v26, {4*EAU_STRIDE}, v125")
    I("v_lshl_add_u32 v26, v124, 4, v26")
    I("v_add_u32 v25, s65, v26")
    I(f"v_mul_u32_u24 v27, {EAU_STRIDE}, v124")
    I("v_lshl_add_u32 v27, v125, 4, v27")
    I("v_add_u32 v27, s65, v27")
    for i in range(16):
        I(f"v_mul_f32 v{AP+i}, s76, v{AP+i}")
    I("s_cmp_eq_u32 s3, 12")
    I("s_cselect_b32 exec_lo, 0x000f000f, -1")
    I("s_cselect_b32 exec_hi, 0x000f000f, -1")
    for T in range(4):
        I(f"ds_write_b128 v27, {vr(UU+4*T,4)} offset:{256 + T*64}")
    I("s_cselect_b32 exec_hi, 0, -1")
    I("s_cselect_b32 exec_lo, 0xffff, -1")
    I(f"v_max3_f32 v26, |v{AP}|, |v{AP+1}|, |v{AP+2}|")
    for i in range(3, 15, 2):
        I(f"v_max3_f32 v26, |v{AP+i}|, |v{AP+i+1}|, v26")
    I(f"v_max_f32 v26, |v{AP+15}|, v26")
    I(f"v_cmp_nge_f32 vcc, {hex(f32(63.0))}, v26")
    EAT = 36
    for r in range(4):
        for t in range(4):
            I(f"v_add_f32 v{EAT+4*r+t}, {hex(f32(-float(KEXP)))}, v{AP+4*t+r}")
        for t in range(4):
            I(f"ds_write_b32 v25, v{AP+4*t+r} offset:{r*EAU_STRIDE + 512 + 4*t}")
            I(f"v_exp_f32 v{EAT+4*r+t}, v{EAT+4*r+t}")
        I("s_nop 0")
        I(f"ds_write_b128 v25, {vr(EAT+4*r,4)} offset:{r*EAU_STRIDE}")
        if r == 0:
            I("s_cbranch_scc1 G_EAD")
    L("G_EAD")
    I("s_mov_b64 exec, -1")
    I("s_cmp_lg_u64 vcc, 0")
    I("s_cselect_b32 s79, 1, 0")
    L("B_NOAU")

    RA, CA, KA, RB, CB, KB = 8, 24, 36, 64, 72, 78
    XB, Y, A = 48, 80, 100
    IP = (96, 98, 104, 106)
    UR, XR, VOUT, VU, LP, EP = 108, 112, 116, 117, 118, 120
    WCB, DEN, NUM, VOOB, C4, VRA, VSE, EA, P, Q, SS, LC = 16, 20, 44, 30, 31, 42, 32, 12, 24, 8, 36, 4
    I("v_and_b32 v5, 63, v0")
    I("s_cmp_lt_u32 s2, 212")
    I("s_cselect_b32 s64, 49, 48")
    I("v_cmp_gt_u32 s[82:83], s64, v5")
    I("v_lshlrev_b32 v5, 2, v5")
    I(f"v_and_b32 v{LC}, 15, v0")
    I(f"v_lshlrev_b32 v6, 1, v{LC}")
    for j in range(4):
        I(f"ds_read_u16 v{WCB+j}, v6 offset:{WC_OFF + 32*j}")
    I(f"v_lshlrev_b32 v{LC}, 4, v{LC}")
    I(f"v_mov_b32 v{C4}, 4")
    I(f"v_mov_b32 v{VOOB}, {OOB}")
    for p_ in IP:
        I(f"v_mov_b32 v{p_+1}, v{LC}")
    I(f"v_lshlrev_b32 v{LP}, 1, v6")
    I(f"v_mov_b32 v{LP+1}, v{LC}")
    I("v_lshrrev_b32 v7, 4, v0")
    I(f"v_mul_u32_u24 v{VU}, {EAU_STRIDE}, v7")
    I(f"s_mov_b32 s64, {EAU_OFF + 256}")
    I(f"v_add3_u32 v{VU}, v{VU}, s64, v{LC}")
    I("v_lshlrev_b32 v8, 2, v6")
    I("v_and_b32 v9, 0x70, v0")
    I("v_xor_b32 v9, v8, v9")
    I("v_lshl_add_u32 v9, v7, 7, v9")
    I(f"ds_read_b64 {vr(XR+2,2)}, v9 offset:{X_OFF}")
    I(f"v_lshl_add_u32 v{VOUT}, v7, 15, v8")
    I("s_lshl_b32 s64, s2, 7")
    I(f"v_add_u32 v{VOUT}, s64, v{VOUT}")
    srd(S_X, P_OUT, N * 128)
    for d in range(0, 4, 2):
        I(f"v_mov_b64 {vr(A+d,2)}, 0")
        I(f"v_mov_b64 {vr(DEN+d,2)}, 0")
        I(f"v_mov_b64 {vr(NUM+d,2)}, 0")
    I("s_mov_b64 s[68:69], -1")
    I("s_mov_b64 s[70:71], -1")
    I("s_cmp_lt_u32 s3, 4")
    I("s_cselect_b32 s78, 2, 0")
    I(f"s_mov_b32 s16, {hex(f32(2.0**-KEXP))}")
    I("s_mov_b32 s17, s16")
    I(f"s_mov_b32 s18, {hex(f32(1e-6 * 2.0**KEXP))}")
    I("s_mov_b32 s19, s18")
    I("s_mov_b32 s20, 32")
    I("s_mov_b32 s21, 32")
    I(f"s_mov_b32 s24, {SLOT_STRIDE}")
    I(f"s_mov_b32 s25, {EAU_STRIDE}")
    I(f"s_mov_b32 s85, {LIST_OFF}")
    I("s_mov_b32 s56, 0x11111111")
    I("s_mov_b32 s57, s56")
    I("s_lshl_b64 s[58:59], s[56:57], 1")
    I("s_lshl_b64 s[60:61], s[56:57], 2")
    I("s_lshl_b64 s[62:63], s[56:57], 3")
    I("v_bfe_u32 v124, v0, 4, 2")
    I("v_bfe_u32 v125, v0, 5, 1")
    I("v_bfe_u32 v126, v0, 2, 1")
    I("v_lshl_add_u32 v125, v126, 1, v125")
    I("v_bfe_u32 v126, v0, 3, 2")
    I("v_lshlrev_b32 v126, 2, v126")
    I("v_bfe_u32 v34, v0, 2, 3")
    I("s_lshl_b32 s64, s3, 3")
    I("s_sub_u32 s64, s2, s64")
    I("v_sub_u32 v34, s64, v34")
    I("v_and_b32 v34, 127, v34")
    I("v_and_b32 v35, 32, v0")
    I("v_lshl_add_u32 v34, v35, 2, v34")
    I("v_and_b32 v35, 3, v0")
    if OPT["pf"] or OPT["pf2"] or OPT["pf3"] or OPT["pf4"]:
        I("v_lshlrev_b32 v33, 8, v34")
        I("v_lshl_add_u32 v33, v35, 20, v33")
        I("s_lshr_b32 s64, s2, 4")
        I("s_lshl_b32 s64, s64, 16")
        I("s_bfe_u32 s65, s2, 0x10003")
        I("s_lshl_b32 s65, s65, 7")
        I("s_add_u32 s64, s64, s65")
        I("v_add_u32 v33, s64, v33")
    I(f"v_lshlrev_b32 v34, {OPT['fs']}, v34")
    I("v_lshl_add_u32 v34, v35, 2, v34")
    I(f"v_add_u32 v34, {hex(FLG_OFF)}, v34")
    I(f"s_mov_b32 s64, {hex(f32(-LOG2E))}")
    I("s_mov_b32 s66, 0x0000ffff")
    I("s_mov_b32 s67, 0xffff0000")
    I("s_waitcnt lgkmcnt(0)")
    for j in range(4):
        I(f"v_lshlrev_b32 v{WCB+j}, 16, v{WCB+j}")
    for j in range(4):
        I(f"v_mul_f32 v{WCB+j}, s64, v{WCB+j}")
    for j in range(4):
        I(f"v_cvt_pk_bf16_f32 v{WCB+j}, 0, v{WCB+j}")
    for j in range(4):
        I(f"v_cndmask_b32 v{WCB+j}, 0, v{WCB+j}, s[66:67]")
    I(f"v_lshlrev_b32 v{XR}, 16, v{XR+2}")
    I(f"v_and_b32 v{XR+1}, 0xffff0000, v{XR+2}")
    I(f"v_lshlrev_b32 v{XR+2}, 16, v{XR+3}")
    I(f"v_and_b32 v{XR+3}, 0xffff0000, v{XR+3}")
    I("s_setprio 0")
    I("s_waitcnt vmcnt(0)")
    if OPT["delay"]:
        I(f"s_sleep {OPT['delay']}")
    stamp(9)
    I(f"global_load_dwordx4 {vr(RA,4)}, v2, {WS} sc1")
    I(f"global_load_dwordx4 {vr(RA+4,4)}, v3, {WS} sc1")

    def poll(R_, first, name):
        L(name)
        I("s_waitcnt vmcnt(0)")
        for k in range(2):
            I(f"s_mov_b64 exec, s[{68+2*k}:{69+2*k}]")
            for j in range(4):
                I(f"v_xor_b32 v{R_+4*k+j}, v{TG+j}, v{R_+4*k+j}")
        I("s_mov_b64 exec, -1")
        for k in range(2):
            r = R_ + 4 * k
            I(f"v_or3_b32 v{6+k}, v{r}, v{r+1}, v{r+2}")
            I(f"v_and_b32 v{6+k}, s40, v{6+k}")
            I(f"v_and_or_b32 v{6+k}, v{r+3}, s41, v{6+k}")
            I(f"v_cmp_ne_u32 s[{68+2*k}:{69+2*k}], 0, v{6+k}")
            I(f"v_cmp_gt_u32 s[{64+2*k}:{65+2*k}], s42, v{r+3}")
        if first:
            for k in range(2):
                I(f"s_andn2_b64 s[{64+2*k}:{65+2*k}], s[{64+2*k}:{65+2*k}], s[{68+2*k}:{69+2*k}]")
                I(f"s_lshl_b64 s[{74+2*k}:{75+2*k}], s[{64+2*k}:{65+2*k}], 1")
                I(f"s_or_b64 s[{74+2*k}:{75+2*k}], s[{74+2*k}:{75+2*k}], s[36:37]")
        I("s_and_b64 s[72:73], s[68:69], s[74:75]")
        I("s_and_b64 s[80:81], s[70:71], s[76:77]")
        I("s_or_b64 s[72:73], s[72:73], s[80:81]")
        I(f"s_cbranch_scc1 {name}_RETRY")
    def retry(R_, first, name):
        L(name + "_RETRY")
        if first:
            for k in range(4):
                I(f"s_and_b32 s72, s{68+k}, s{74+k}")
                I("s_lshl_b32 s73, s72, 1")
                I("s_or_b32 s72, s72, s73")
                I("s_lshl_b32 s73, s72, 2")
                I("s_or_b32 s72, s72, s73")
                I("s_lshl_b32 s73, s72, 4")
                I("s_or_b32 s72, s72, s73")
                I(f"s_and_b32 s{68+k}, s{68+k}, s72")
        else:
            I("s_and_b64 s[68:69], s[68:69], s[74:75]")
            I("s_and_b64 s[70:71], s[70:71], s[76:77]")
        I("s_add_u32 s43, s43, 1")
        I(f"s_cmp_gt_u32 s43, {POLL_LIMIT}")
        I("s_cbranch_scc1 R_TIMEOUT")
        if OPT["sleep"]:
            I(f"s_sleep {OPT['sleep']}")
        reload(R_, name)
        I(f"s_branch {name}")
    def reload(R_, name):
        I("s_mov_b64 exec, s[68:69]")
        I(f"s_cbranch_execz {name}_1")
        I(f"global_load_dwordx4 {vr(R_,4)}, v2, {WS} sc1")
        L(name + "_1")
        I("s_mov_b64 exec, s[70:71]")
        I(f"s_cbranch_execz {name}_2")
        I(f"global_load_dwordx4 {vr(R_+4,4)}, v3, {WS} sc1")
        L(name + "_2")
    def ranks(R_, C_, K_, M_):
        for k in range(2):
            for j in range(3):
                I(f"v_lshlrev_b32_sdwa v{C_+3*k+j}, 2, v{R_+4*k+3} {sdwa('BYTE_'+str(j))}")
        for k in range(2):
            I(f"s_mov_b64 exec, s[{74+2*k}:{75+2*k}]")
            for j in range(3):
                m = M_ + 2 * (3 * k + j)
                I(f"v_cmp_gt_u32_sdwa s[{m}:{m+1}], 49, v{R_+4*k+3} src0_sel:DWORD src1_sel:BYTE_{j}")
            for j in range(3):
                m = M_ + 2 * (3 * k + j)
                I(f"s_mov_b64 exec, s[{m}:{m+1}]")
                I(f"ds_add_rtn_u32 v{K_+3*k+j}, v{C_+3*k+j}, v{C4} offset:{C2_OFF}")
        I("s_mov_b64 exec, -1")
    def more_test():
        I("s_and_b64 s[64:65], s[64:65], s[74:75]")
        I("s_and_b64 s[66:67], s[66:67], s[76:77]")
        I("s_or_b64 s[72:73], s[64:65], s[66:67]")
        I("s_or_b32 s72, s72, s73")
        I("s_and_b32 s72, s72, 0x80808080")
    MA, MB = 44, 4

    poll(RA, True, "B_P0")
    stamp(10)
    if OPT["ef"]:
        I(f"global_load_dword v35, v34, {WS} sc1")
    ranks(RA, CA, KA, MA)
    more_test()
    I("s_or_b32 s72, s72, s79")
    I("s_cbranch_scc1 R_MORE")
    L("B_RDONE")
    if OPT["stamp"]:
        I("v_writelane_b32 v127, s43, 19")
    I("s_waitcnt lgkmcnt(0)")
    I("s_barrier")
    stamp(11)
    I(f"ds_read_b32 v6, v5 offset:{C2_OFF}")
    if OPT["drain"]:
        if OPT["pf4"]:
            I(f"s_sub_u32 s71, s3, {OPT['pfw']}")
            I(f"s_cmp_lt_u32 s71, {OPT['pf4']}")
            I("s_cbranch_scc0 B_NOPF4")
            I("s_andn2_b64 exec, exec, s[62:63]")
            I(f"global_load_dword v84, v33, {WS} sc1")
            I("s_mov_b64 exec, -1")
            L("B_NOPF4")
    elif not OPT["ef"]:
        I(f"global_load_dword v35, v34, {WS} sc1")
    elif OPT["pf"]:
        I("s_sub_u32 s64, s3, 4")
        I(f"s_cmp_lt_u32 s64, {OPT['pf']}")
        I("s_cbranch_scc0 B_NOPF")
        I("s_waitcnt vmcnt(0)")
        I(f"v_cmp_eq_u32 vcc, v{TG+3}, v35")
        I("s_mov_b64 exec, vcc")
        I("s_cbranch_execz B_NOPF0")
        I(f"global_load_dword v84, v33, {WS} sc1")
        L("B_NOPF0")
        I("s_mov_b64 exec, -1")
        L("B_NOPF")
    I("s_waitcnt lgkmcnt(0)")
    I("v_add_u32 v2, 7, v6")
    I("v_and_b32 v2, -8, v2")
    I("v_max_u32 v2, 8, v2")
    I("v_cndmask_b32 v2, 0, v2, s[82:83]")
    I("v_mov_b32 v3, v2")
    for d in ("row_shr:1 row_mask:0xf", "row_shr:2 row_mask:0xf", "row_shr:4 row_mask:0xf",
              "row_shr:8 row_mask:0xf", "row_bcast:15 row_mask:0xa", "row_bcast:31 row_mask:0xc"):
        I("s_nop 1")
        I(f"v_add_u32_dpp v3, v3, v3 {d} bank_mask:0xf")
    I("v_sub_u32 v7, v3, v2")
    I(f"ds_write_b32 v5, v7 offset:{BASE}")
    I("v_readlane_b32 s64, v3, 63")
    def lookup(C_):
        for i in range(6):
            I(f"ds_read_b32 v{C_+i}, v{C_+i} offset:{BASE}")
    def scatter(R_, C_, K_, M_):
        for i in range(6):
            if i % 3 == 0:
                I(f"s_waitcnt lgkmcnt({3-i})")
            I(f"v_add3_u32 v{C_+i}, v{C_+i}, v{K_+i}, s85")
        for i in range(6):
            I(f"s_mov_b64 exec, s[{M_+2*i}:{M_+2*i+1}]")
            I(f"ds_write_b32 v{C_+i}, v{R_+4*(i//3)+i%3}")
        I("s_mov_b64 exec, -1")
    lookup(CA)
    I("s_add_u32 s65, s64, 31")
    I("s_lshr_b32 s66, s65, 9")
    I("s_bfe_u32 s67, s65, 0x40005")
    I("s_mul_i32 s68, s66, s3")
    I("s_min_u32 s69, s67, s3")
    I("s_add_u32 s68, s68, s69")
    I("s_lshl_b32 s68, s68, 5")
    I("s_cmp_lt_u32 s3, s67")
    I("s_addc_u32 s72, s66, 0")
    I("s_lshl_b32 s69, s72, 3")
    I("s_add_u32 s70, s68, s85")
    if OPT["pf3"]:
        I(f"s_sub_u32 s71, s3, {OPT['pfw']}")
        I(f"s_cmp_lt_u32 s71, {OPT['pf3']}")
        I("s_cbranch_scc0 B_NOPF3")
        I("s_waitcnt vmcnt(0)")
        I(f"v_cmp_eq_u32 vcc, v{TG+3}, v35")
        I("s_andn2_b64 exec, vcc, s[62:63]")
        I("s_cbranch_execz B_NOPF30")
        I(f"global_load_dword v84, v33, {WS} sc1")
        L("B_NOPF30")
        I("s_mov_b64 exec, -1")
        L("B_NOPF3")
    scatter(RA, CA, KA, MA)
    I(f"v_mul_u32_u24 v{VRA}, s69, v124")
    I(f"v_mul_u32_u24 v{VRA+1}, s69, v125")
    I(f"v_add_u32 v{VRA}, s70, v{VRA}")
    I(f"v_add3_u32 v{VRA+1}, v{VRA+1}, s70, v126")
    if OPT["pf"] and OPT["ef"]:
        I("s_sub_u32 s71, s3, 4")
        I(f"s_cmp_lt_u32 s71, {OPT['pf']}")
        I("s_cbranch_scc1 B_FLW")
    if OPT["pf3"]:
        I(f"s_cmp_lt_u32 s71, {OPT['pf3']}")
        I("s_cbranch_scc1 B_FLW")
    if not OPT["drain"]:
        I("s_waitcnt vmcnt(0)")
        L("B_FLW")
        I(f"v_cmp_ne_u32 vcc, v{TG+3}, v35")
    I("s_cmp_lg_u32 s78, 0")
    I("s_cbranch_scc1 R_EXTRA")
    L("B_XDONE")
    if not OPT["drain"]:
        I("s_cbranch_vccnz R_FLAGS")
    L("B_FDONE")
    if OPT["pf2"]:
        I(f"s_cmp_lt_u32 s3, {OPT['pf2']}")
        I("s_cbranch_scc0 B_NOPF2")
        I(f"global_load_dword v84, v33, {WS} sc1")
        L("B_NOPF2")
    I("s_waitcnt lgkmcnt(0)")
    I("s_barrier")
    stamp(12)
    def i_reads(batch, lo=0, hi=4):
        for i in range(lo, hi):
            I(f"ds_read_u16 v{IP[i]}, v{VRA} offset:{16*batch + 4*i}")
    def a_reads(batch):
        for d in range(4):
            I(f"s_mov_b64 exec, s[{56+2*d}:{57+2*d}]")
            I(f"ds_read_b32 v{A+d}, v{VRA+1} offset:{16*batch}")
        I("s_mov_b64 exec, -1")
    def gathers(x, lo, hi):
        for i in range(lo, hi):
            I(f"buffer_load_dwordx4 {vr(x+4*i,4)}, {vr(IP[i],2)}, {sr(S_TAB,4)}, 0 idxen offen {OPT['gsc'] if OPT['gsc'] != 'none' else ''}")
    i_reads(0)
    I("v_and_b32 v9, 0x3f0, v0")
    I(f"ds_read_b128 {vr(VSE,4)}, v9 offset:{STR}")
    I(f"ds_read_b32 v8, v1 offset:{FLAG}")
    if OPT["prio"]:
        I("s_setprio 3")
    I("s_waitcnt lgkmcnt(2)")
    gathers(XB, 0, 4)
    stamp(13)
    i_reads(1)
    I(f"ds_read_b128 {vr(EP,4)}, v9 offset:{EPI}")
    I(f"ds_read_b128 {vr(UR,4)}, v{VU}")
    I("s_waitcnt lgkmcnt(6)")
    I("v_readfirstlane_b32 s80, v8")
    I(f"v_lshl_add_u64 {vr(VSE,2)}, {vr(VSE,2)}, 0, {vr(LP,2)}")
    I(f"ds_read_b128 {vr(EA,4)}, v{VSE+1}")
    for q in range(4):
        I(f"v_readlane_b32 s{44+q}, v{VSE+2}, {16*q}")
    I(f"s_cmp_gt_u32 s64, {LIST_MAX}")
    I("s_cselect_b32 s81, 1, 0")
    I("s_or_b32 s80, s80, s81")
    if OPT["force_slow"]:
        I("s_branch K_SLOW")
    I("s_cbranch_scc1 K_SLOW")
    a_reads(0)
    for q in range(4):
        if OPT["cut"] & 8:
            I(f"s_mov_b32 s{44+q}, 0")
        I(f"s_bitset1_b32 s{44+q}, s72")
    I("s_or_b32 s82, s44, s45")
    I("s_or_b32 s83, s46, s47")
    I("s_or_b32 s82, s82, s83")
    I("s_bfm_b32 s83, s72, 0")
    I("s_lshr_b32 s83, s83, 4")
    I("s_mov_b32 s73, 0")
    I("s_waitcnt lgkmcnt(5)")
    gathers(XB + 16, 0, 4)
    i_reads(2)
    for k in range(3):
        I(f"v_add_u32 v{EP+k}, v{EP+k}, v{LC}")
    I(f"v_cmp_lt_i32 s[48:49], 2, v{EP+3}")
    I("s_cmp_eq_u32 s72, 0")
    I("s_cbranch_scc1 K_JOIN")
    def mfma(x):
        I(f"v_mfma_f32_32x32x16_bf16 {vr(Y,16)}, {vr(A,4)}, {vr(WCB,4)}, {vr(x,16)}")
    stamp(14)
    I("s_waitcnt vmcnt(4) lgkmcnt(4)")
    mfma(XB)
    stamp(15)
    a_reads(1)
    nth = len(str(OPT["prio"]).split("_")) if OPT["prio"] else 0
    if OPT["prio"]:
        I(f"s_setprio {nth}")
    I("s_nop 2")
    L("K_LOOP")
    if OPT["prio"]:
        I("s_sub_u32 s74, s72, s73")
        for k, t_ in enumerate(int(x) for x in str(OPT["prio"]).split("_")):
            I(f"s_cmp_gt_u32 s74, {t_}")
            I("s_cbranch_scc1 K_STEP0")
            I(f"s_setprio {nth-1-k}")
    for u in range(4):
        bb, hh = u >> 1, u & 1
        x = XB + 16 * bb + 8 * hh
        t = Y + 8 * hh
        L(f"K_STEP{u}")
        for i in range(8):
            I(f"v_exp_f32 v{t+i}, v{t+i}")
        for i in range(4):
            I(f"v_lshlrev_b64 {vr(x+2*i,2)}, 16, {vr(x+2*i,2)}")
        for i in range(4):
            I(f"v_pk_fma_f32 {vr(t+2*i,2)}, {vr(t+2*i,2)}, {vr(EA+2*(i&1),2)}, s[16:17] clamp")
        I(f"v_pk_mul_f32 {vr(P,2)}, {vr(t,2)}, {vr(t+4,2)}")
        I(f"v_pk_mul_f32 {vr(P+2,2)}, {vr(t+2,2)}, {vr(t+6,2)}")
        I(f"v_pk_mul_f32 {vr(Q,2)}, {vr(x,2)}, {vr(t+4,2)}")
        I(f"v_pk_mul_f32 {vr(Q+2,2)}, {vr(x+2,2)}, {vr(t+6,2)}")
        I(f"v_pk_add_f32 {vr(SS,2)}, {vr(t,2)}, {vr(t+4,2)}")
        I(f"v_pk_add_f32 {vr(SS+2,2)}, {vr(t+2,2)}, {vr(t+6,2)}")
        I(f"v_pk_fma_f32 {vr(Q,2)}, {vr(x+4,2)}, {vr(t,2)}, {vr(Q,2)}")
        I(f"v_pk_fma_f32 {vr(Q+2,2)}, {vr(x+6,2)}, {vr(t+2,2)}, {vr(Q+2,2)}")
        if OPT["sup"]:
            I(f"s_bitcmp1_b32 s83, {u}")
            I(f"s_cselect_b32 s{S_TAB+2}, s{S_TAB+2}, 0")
        if hh == 0:
            I("s_waitcnt lgkmcnt(0)")
            if not OPT["cut"] & 4:
                gathers(XB + 16 * bb, 0, 2)
            for i in range(4):
                I(f"v_rcp_f32 v{P+i}, v{P+i}")
        else:
            I("s_waitcnt vmcnt(2)")
            if not OPT["cut"] & 1:
                mfma(XB + 16 * (1 - bb))
            for i in range(4):
                I(f"v_rcp_f32 v{P+i}, v{P+i}")
            if not OPT["cut"] & 4:
                gathers(XB + 16 * bb, 2, 4)
        I(f"v_pk_fma_f32 {vr(NUM,2)}, {vr(Q,2)}, {vr(P,2)}, {vr(NUM,2)}")
        I(f"v_pk_fma_f32 {vr(DEN,2)}, {vr(SS,2)}, {vr(P,2)}, {vr(DEN,2)}")
        I(f"v_pk_fma_f32 {vr(NUM+2,2)}, {vr(Q+2,2)}, {vr(P+2,2)}, {vr(NUM+2,2)}")
        I(f"v_pk_fma_f32 {vr(DEN+2,2)}, {vr(SS+2,2)}, {vr(P+2,2)}, {vr(DEN+2,2)}")
        if hh == 1:
            if not OPT["cut"] & 4:
                i_reads(bb + 3)
            if not OPT["cut"] & 2:
                a_reads(bb + 2)
        I(f"s_bitcmp1_b32 s82, {u+1}")
        I(f"s_cbranch_scc1 K_FLUSH{u}")
        L(f"K_BACK{u}")
    I(f"v_lshl_add_u64 {vr(VRA,2)}, {vr(VRA,2)}, 0, s[20:21]")
    I("s_lshr_b32 s82, s82, 4")
    I("s_lshr_b32 s83, s83, 4")
    I("s_add_u32 s73, s73, 4")
    I("s_branch K_LOOP")
    for u in range(4):
        L(f"K_FLUSH{u}")
        I(f"s_add_u32 s74, s73, {u+1}")
        for h in range(2):
            I(f"s_bitcmp1_b32 s{44+2*h}, s74")
            I("s_cselect_b32 s75, 0xffff, 0")
            I(f"s_bitcmp1_b32 s{45+2*h}, s74")
            I("s_cselect_b32 s80, 0xffff0000, 0")
            I(f"s_or_b32 {'exec_hi' if h else 'exec_lo'}, s75, s80")
        I(f"ds_write2_b32 v{VSE}, v{DEN}, v{DEN+1} offset0:0 offset1:16")
        I(f"ds_write2_b32 v{VSE}, v{DEN+2}, v{DEN+3} offset0:32 offset1:48")
        I(f"ds_write2_b32 v{VSE}, v{NUM}, v{NUM+1} offset0:64 offset1:80")
        I(f"ds_write2_b32 v{VSE}, v{NUM+2}, v{NUM+3} offset0:96 offset1:112")
        I("s_cmp_eq_u32 s74, s72")
        I("s_cbranch_scc1 K_JOIN")
        I(f"v_lshl_add_u64 {vr(VSE,2)}, {vr(VSE,2)}, 0, s[24:25]")
        I(f"ds_read_b128 {vr(DEN,4)}, v{VOOB}")
        I(f"ds_read_b128 {vr(NUM,4)}, v{VOOB}")
        I(f"ds_read_b128 {vr(EA,4)}, v{VSE+1}")
        I("s_mov_b64 exec, -1")
        I("s_waitcnt lgkmcnt(0)")
        I(f"s_branch K_BACK{u}")

    L("K_JOIN")
    I("s_mov_b64 exec, -1")
    stamp(16)
    I("s_cmp_lt_u32 s3, 13")
    I("s_waitcnt lgkmcnt(0)")
    I("s_barrier")
    stamp(17)
    I("s_cbranch_scc0 K_FIN")
    for k in range(3):
        I(f"ds_read_b128 {vr(8+8*k,4)}, v{EP+k}")
    for k in range(3):
        I(f"ds_read_b128 {vr(12+8*k,4)}, v{EP+k} offset:256")
    I("s_cmp_lg_u64 s[48:49], 0")
    I("s_waitcnt lgkmcnt(3)")
    for k in (1, 2):
        for i in range(2):
            I(f"v_pk_add_f32 {vr(8+2*i,2)}, {vr(8+2*i,2)}, {vr(8+8*k+2*i,2)}")
    I("s_waitcnt lgkmcnt(0)")
    for k in (1, 2):
        for i in range(2, 4):
            I(f"v_pk_add_f32 {vr(8+2*i,2)}, {vr(8+2*i,2)}, {vr(8+8*k+2*i,2)}")
    I("s_cbranch_scc1 R_LONG")
    L("K_MATH")
    I("v_pk_add_f32 v[8:9], v[8:9], s[18:19]")
    I("v_pk_add_f32 v[10:11], v[10:11], s[18:19]")
    for c in range(4):
        I(f"v_rcp_f32 v{8+c}, v{8+c}")
    I("s_nop 0")
    I(f"v_pk_fma_f32 v[8:9], v[12:13], v[8:9], {vr(UR,2)}")
    I(f"v_pk_fma_f32 v[10:11], v[14:15], v[10:11], {vr(UR+2,2)}")
    for c in range(4):
        I(f"v_max_f32 v{8+c}, 0, v{8+c}")
    I(f"v_pk_add_f32 v[8:9], v[8:9], {vr(XR,2)}")
    I(f"v_pk_add_f32 v[10:11], v[10:11], {vr(XR+2,2)}")
    I("v_cvt_pk_bf16_f32 v12, v8, v9")
    I("v_cvt_pk_bf16_f32 v13, v10, v11")
    I(f"buffer_store_dwordx2 v[12:13], v{VOUT}, {sr(S_X,4)}, 0 offen")
    L("K_FIN")
    stamp(18)
    stamp_out()
    L("K_END")
    I("s_endpgm")

    L("R_PUB2")
    I("s_mov_b64 exec, vcc")
    I(f"ds_read_b128 {vr(C0+8,4)}, v4 offset:{IMG+128}")
    I(f"ds_read_b128 {vr(C0+12,4)}, v4 offset:{IMG+B2+128}")
    I("v_and_b32 v10, 7, v0")
    I(f"v_mul_u32_u24 v10, {3*INC}, v10")
    I(f"v_add_u32 v10, {24*INC}, v10")
    I("s_waitcnt lgkmcnt(0)")
    for b in range(2):
        w3 = C0 + 11 + 4 * b
        I(f"v_and_b32 v{w3}, 0x3f3f3f, v{w3}")
        for j in range(3):
            I(f"v_add_u32 v11, {j*INC}, v10")
            I(f"v_cmp_le_u32 s[72:73], v{8+b}, v11")
            I(f"v_or_b32 v11, {0x3f << (8*j)}, v{w3}")
            I("s_nop 0")
            I(f"v_cndmask_b32 v{w3}, v{w3}, v11, s[72:73]")
    I(f"v_add_u32 v8, {hex(LINE_STRIDE)}, v6")
    I(f"v_add_u32 v9, {hex(LINE_STRIDE)}, v7")
    tagit(C0 + 8)
    tagit(C0 + 12)
    I(f"global_store_dwordx4 v8, {vr(C0+8,4)}, {WS} sc1")
    I(f"global_store_dwordx4 v9, {vr(C0+12,4)}, {WS} sc1")
    I("s_branch A_PUBD")
    retry(RA, True, "B_P0")
    L("R_MORE")
    I("s_cmp_lg_u32 s79, 0")
    I("s_cbranch_scc1 R_REQ")
    for k in range(4):
        I(f"s_lshr_b32 s{74+k}, s{64+k}, 7")
        I(f"s_and_b32 s{74+k}, s{74+k}, 0x01010101")
        I(f"s_mul_i32 s{74+k}, s{74+k}, 0xff")
    I("s_mov_b64 s[68:69], s[74:75]")
    I("s_mov_b64 s[70:71], s[76:77]")
    I(f"v_add_u32 v2, {hex(LINE_STRIDE)}, v2")
    I(f"v_add_u32 v3, {hex(LINE_STRIDE)}, v3")
    reload(RB, "B_N1")
    poll(RB, False, "B_P1")
    ranks(RB, CB, KB, MB)
    I("s_or_b32 s78, s78, 1")
    more_test()
    I("s_cbranch_scc0 B_RDONE")
    I("s_mov_b32 s79, 1")
    I("s_branch R_REQ")
    retry(RB, False, "B_P1")
    L("R_TIMEOUT")
    I("s_mov_b32 s79, 3")
    for k in range(6):
        I(f"s_mov_b64 s[{MA+2*k}:{MA+2*k+1}], 0")
    I(f"v_mov_b32 v35, v{TG+3}")
    L("R_REQ")
    I("v_mov_b32 v6, s79")
    I(f"ds_or_b32 v1, v6 offset:{FLAG}")
    I("s_branch B_RDONE")
    def bump():
        I(f"v_mov_b32 v48, {hex(CTL_OFF)}")
        I("v_mov_b32 v50, 0x1000000")
        I("v_mov_b32 v51, 0")
        I("s_mov_b64 exec, 1")
        I(f"global_atomic_add_x2 v48, v[50:51], {WS} offset:8 sc1")
        I("s_mov_b64 exec, -1")
    L("R_EXTRA")
    I("s_bitcmp1_b32 s78, 0")
    I("s_cbranch_scc0 R_X2")
    I("s_waitcnt lgkmcnt(0)")
    lookup(CB)
    scatter(RB, CB, KB, MB)
    L("R_X2")
    I("s_bitcmp1_b32 s78, 1")
    I("s_cbranch_scc0 B_XDONE")
    I("s_cmp_eq_u32 s3, 1")
    I("s_cbranch_scc1 R_PAD")
    I("s_add_u32 s71, s66, 1")
    I("v_cvt_f32_u32 v48, s71")
    I("v_cvt_f32_u32 v49, s66")
    I("s_lshl_b32 s73, s67, 2")
    I("s_mul_i32 s71, s71, s73")
    I("v_rcp_f32 v48, v48")
    I("v_rcp_f32 v49, v49")
    I("v_cvt_f32_u32 v50, s71")
    I("v_cvt_f32_u32 v51, s73")
    I("v_fma_f32 v50, -v50, v49, v51")
    I(f"v_mov_b32 v51, {hex(f32(0.125))}")
    def stream_of(dst, src, half):
        I(f"v_cvt_f32_u32 v{dst}, v{src}")
        I(f"v_fma_f32 v{dst}, v{dst}, v51, {half}")
        I(f"v_mul_f32 v52, v{dst}, v48")
        I(f"v_fma_f32 v{dst}, v{dst}, v49, v50")
        I(f"v_max_f32 v{dst}, v{dst}, v52")
        I(f"v_cvt_u32_f32 v{dst}, v{dst}")
    stream_of(53, 3, "-0.5")
    I("s_cmp_eq_u32 s3, 2")
    I("s_cbranch_scc1 R_EPI")
    I("s_cmp_eq_u32 s3, 3")
    I("s_cbranch_scc1 R_FIRST")
    I("v_min_u32 v55, s73, v53")
    I("v_mad_u32_u24 v55, v53, s66, v55")
    I("v_lshrrev_b32 v56, 3, v3")
    I("v_sub_u32 v55, v56, v55")
    I("v_lshlrev_b32 v55, v55, 1")
    I("v_lshlrev_b32 v56, 4, v53")
    I("s_mov_b64 exec, s[82:83]")
    I(f"ds_or_b32 v56, v55 offset:{STR + 8}")
    I("s_mov_b64 exec, -1")
    I("s_branch B_XDONE")
    L("R_FIRST")
    I("v_mov_b32 v54, -1")
    I("v_cndmask_b32 v53, 63, v53, s[82:83]")
    I(f"v_mul_u32_u24 v59, {EAU_STRIDE//4}, v5")
    I(f"v_add_u32 v59, {EAU_OFF}, v59")
    I("v_mov_b32_dpp v54, v53 wave_shr:1 row_mask:0xf bank_mask:0xf")
    I("v_lshl_add_u32 v58, v54, 2, v5")
    I(f"v_mul_i32_i24 v58, {SLOT_STRIDE//4}, v58")
    I(f"v_add_u32 v58, {SLOT_OFF}, v58")
    I("v_lshlrev_b32 v54, 4, v54")
    I("v_lshlrev_b32 v53, 4, v53")
    L("R_FIRST1")
    I("v_cmp_lt_i32 s[74:75], v54, v53")
    I("s_mov_b64 exec, s[74:75]")
    I("s_cbranch_execz R_FIRST2")
    I("v_add_u32 v54, 16, v54")
    I(f"v_add_u32 v58, {SLOT_STRIDE}, v58")
    I(f"ds_write_b64 v54, v[58:59] offset:{STR}")
    I("s_branch R_FIRST1")
    L("R_FIRST2")
    I("s_mov_b64 exec, -1")
    I("s_branch B_XDONE")
    L("R_EPI")
    stream_of(54, 7, "0.5")
    I("v_sub_u32 v59, v53, v54")
    I("v_lshl_add_u32 v56, v54, 2, v5")
    I(f"v_mul_u32_u24 v56, {SLOT_STRIDE//4}, v56")
    I(f"v_add_u32 v56, {SLOT_OFF}, v56")
    I("v_cmp_lt_i32 s[74:75], 0, v59")
    I("v_cmp_lt_i32 s[76:77], 1, v59")
    I(f"v_add_u32 v57, {SLOT_STRIDE}, v56")
    I(f"v_add_u32 v58, {2*SLOT_STRIDE}, v56")
    I(f"v_cndmask_b32 v57, v{VOOB}, v57, s[74:75]")
    I(f"v_cndmask_b32 v58, v{VOOB}, v58, s[76:77]")
    I("v_lshlrev_b32 v55, 2, v5")
    I(f"ds_write_b128 v55, v[56:59] offset:{EPI}")
    I("s_branch B_XDONE")
    L("R_PAD")
    I(f"v_mov_b32 v52, {N}")
    I(f"v_add_u32 v53, {LIST_OFF - 8}, v3")
    I("v_cmp_lt_u32 s[74:75], v6, v2")
    I("s_mov_b64 exec, s[74:75]")
    I("ds_write_b32 v53, v52 offset:4")
    I("v_cmp_eq_u32 s[74:75], 0, v6")
    I("s_mov_b64 exec, s[74:75]")
    I("ds_write_b32 v53, v52")
    I("s_mov_b64 exec, 0x3f")
    I("s_add_u32 s71, s64, s85")
    I("v_add_u32 v53, s71, v5")
    I("ds_write_b32 v53, v52")
    I("s_mov_b64 exec, -1")
    I("s_cmp_eq_u32 s2, 0")
    I("s_cbranch_scc0 B_XDONE")
    bump()
    I("s_branch B_XDONE")
    L("R_FLAGS")
    I("s_add_u32 s43, s43, 1")
    I(f"s_cmp_gt_u32 s43, {POLL_LIMIT}")
    I("s_cbranch_scc1 R_FLAGT")
    I("s_sleep 2")
    I("s_mov_b64 exec, vcc")
    I(f"global_load_dword v35, v34, {WS} sc1")
    I("s_waitcnt vmcnt(0)")
    I(f"v_cmp_ne_u32 vcc, v{TG+3}, v35")
    I("s_mov_b64 exec, -1")
    I("s_branch B_XDONE")
    L("R_FLAGT")
    I("v_mov_b32 v52, 3")
    I(f"ds_or_b32 v1, v52 offset:{FLAG}")
    I("s_branch B_FDONE")
    L("R_LONG")
    I("s_mov_b32 s64, 2")
    I("s_mov_b64 vcc, s[48:49]")
    L("R_LONG1")
    I("s_mov_b64 exec, vcc")
    I(f"v_add_u32 v{EP+2}, {SLOT_STRIDE}, v{EP+2}")
    I(f"ds_read_b128 v[16:19], v{EP+2}")
    I(f"ds_read_b128 v[20:23], v{EP+2} offset:256")
    I("s_add_u32 s64, s64, 1")
    I("s_waitcnt lgkmcnt(0)")
    for i in range(4):
        I(f"v_pk_add_f32 {vr(8+2*i,2)}, {vr(8+2*i,2)}, {vr(16+2*i,2)}")
    I(f"v_cmp_lt_i32 vcc, s64, v{EP+3}")
    I("s_cbranch_vccnz R_LONG1")
    I("s_mov_b64 exec, -1")
    I("s_branch K_MATH")

    L("K_SLOW")
    I("s_load_dwordx8 s[4:11], s[0:1], 0")
    I("s_load_dwordx2 s[12:13], s[0:1], 40")
    I("s_load_dwordx2 s[14:15], s[0:1], 64")
    I("s_setprio 0")
    I("s_waitcnt vmcnt(0) lgkmcnt(0)")
    I("s_cmp_eq_u32 s3, 15")
    I("s_cselect_b32 s71, s80, 0")
    I("s_and_b32 s71, s71, 2")
    I("s_cbranch_scc0 K_SL0")
    bump()
    I("s_waitcnt vmcnt(0)")
    L("K_SL0")
    WB2, WV2 = 40, 72
    I("v_lshrrev_b32 v6, 1, v5")
    I("v_add_u32 v7, 4096, v6")
    for (w, p_) in ((WB2, 12), (WV2, 14)):
        for hf in range(2):
            for k in range(16):
                I(f"global_load_ushort v{w + 16*hf + k}, v{6 + hf}, s[{p_}:{p_+1}] offset:{2*k*128}")
                I(f"global_load_ushort v{8 + k}, v{6 + hf}, s[{p_}:{p_+1}] offset:{(2*k+1)*128}")
            I("s_waitcnt vmcnt(0)")
            for k in range(16):
                I(f"v_lshl_or_b32 v{w + 16*hf + k}, v{8 + k}, 16, v{w + 16*hf + k}")
    for i in range(4):
        I(f"v_mov_b32 v{28+i}, 0")
    I("v_lshlrev_b32 v8, 4, v0")
    for k in range(4):
        I(f"ds_write_b128 v8, v[28:31] offset:{SLOT_OFF + k*16384}")
    I(f"ds_read_u16 v18, v6 offset:{WC_OFF}")
    I(f"s_mov_b32 s18, {hex(f32(1e-6))}")
    I("s_mov_b32 s19, s18")
    I(f"s_mov_b32 s16, {hex(f32(-LOG2E))}")
    I(f"v_lshl_add_u32 v17, v124, 2, v{LC}")
    I("v_lshlrev_b32 v10, 1, v5")
    I("s_waitcnt lgkmcnt(0)")
    I("v_lshlrev_b32 v18, 16, v18")
    I("s_barrier")
    I("v_lshlrev_b32 v8, 2, v0")
    I("v_lshlrev_b32 v9, 1, v0")
    I("s_lshl_b32 s70, s3, 6")
    L("K_SLOOP")
    I(f"global_load_dword v11, v8, {sr(P_DST,2)}")
    I(f"global_load_dword v12, v8, {sr(P_SRC,2)}")
    I(f"global_load_ushort v13, v9, {sr(P_E,2)}")
    I("s_waitcnt vmcnt(0)")
    I("v_and_b32 v14, 0xff, v11")
    I("v_cmp_eq_u32 s[74:75], s2, v14")
    L("K_SIN")
    I("s_cmp_eq_u64 s[74:75], 0")
    I("s_cbranch_scc1 K_SNEXT")
    I("s_ff1_i32_b64 s73, s[74:75]")
    I("s_bitset0_b64 s[74:75], s73")
    I("v_readlane_b32 s79, v11, s73")
    I("v_readlane_b32 s80, v12, s73")
    I("v_readlane_b32 s81, v13, s73")
    I("s_lshr_b32 s79, s79, 8")
    I(f"s_mul_i32 s76, s79, {EAU_STRIDE}")
    I(f"s_add_u32 s76, s76, {EAU_OFF + 512}")
    I(f"s_mul_i32 s79, s79, {ACC_STRIDE}")
    I("s_lshl_b32 s80, s80, 7")
    I("s_add_u32 s78, s80, 64")
    I(f"s_load_dwordx16 s[36:51], {sr(P_X,2)}, s80")
    I(f"s_load_dwordx16 s[52:67], {sr(P_X,2)}, s78")
    I("s_lshl_b32 s81, s81, 16")
    I("v_add_u32 v15, s76, v17")
    I("v_add_u32 v16, s79, v10")
    I("ds_read_b32 v22, v15")
    I("v_mul_f32 v20, s81, v18")
    I("v_mov_b32 v21, 0")
    I("s_waitcnt lgkmcnt(0)")
    for k in range(32):
        I(f"v_dot2_f32_bf16 v20, s{36+k}, v{WB2+k}, v20")
        I(f"v_dot2_f32_bf16 v21, s{36+k}, v{WV2+k}, v21")
    I("s_nop 2")
    I("v_fma_f32 v20, v20, s16, v22")
    I("v_exp_f32 v20, v20")
    I("s_nop 0")
    I("v_add_f32 v20, 1.0, v20")
    I("v_rcp_f32 v20, v20")
    I("s_nop 0")
    I("v_mul_f32 v21, v21, v20")
    I("v_cvt_f64_f32 v[24:25], v20")
    I("v_cvt_f64_f32 v[26:27], v21")
    I(f"ds_add_f64 v16, v[24:25] offset:{SLOT_OFF}")
    I(f"ds_add_f64 v16, v[26:27] offset:{SLOT_OFF + 512}")
    I("s_branch K_SIN")
    L("K_SNEXT")
    I("s_add_u32 s70, s70, 1024")
    I("v_add_u32 v8, 4096, v8")
    I("v_add_u32 v9, 2048, v9")
    I(f"s_cmp_lt_u32 s70, {E}")
    I("s_cbranch_scc1 K_SLOOP")
    I("v_lshrrev_b32 v6, 4, v0")
    I(f"v_mul_u32_u24 v6, {ACC_STRIDE}, v6")
    I(f"v_lshl_add_u32 v6, v{LC}, 1, v6")
    I("s_waitcnt lgkmcnt(0)")
    I("s_barrier")
    I("s_cmp_lt_u32 s3, 13")
    I("s_cbranch_scc0 K_FIN")
    I(f"ds_read_b128 v[16:19], v6 offset:{SLOT_OFF}")
    I(f"ds_read_b128 v[20:23], v6 offset:{SLOT_OFF+16}")
    I(f"ds_read_b128 v[24:27], v6 offset:{SLOT_OFF+512}")
    I(f"ds_read_b128 v[28:31], v6 offset:{SLOT_OFF+528}")
    I("s_waitcnt lgkmcnt(0)")
    for c in range(8):
        I(f"v_cvt_f32_f64 v{8+c}, {vr(16+2*c,2)}")
    I("s_branch K_MATH")
    L("SLOW_END")

hdr = open("standalone__edge_featured_mpnn_gatedgcn__graph.s.ref").read().split("\n")
for line in hdr:
    if line.startswith("; Override"):
        break
    o(line)
o(f"; @launch kernel={KNAME} grid=(256,1,1) block=(1024,1,1) lds={LDS_TOTAL}")
o('.amdgcn_target "amdgcn-amd-amdhsa--gfx950"')
o(".text")
gen()
o('.section .rodata,"a"')
o(".p2align 6")
o(f".amdhsa_kernel {KNAME}")
o("  .amdhsa_next_free_vgpr 128")
o("  .amdhsa_next_free_sgpr 102")
o("  .amdhsa_accum_offset 128")
o("  .amdhsa_group_segment_fixed_size 0")
o("  .amdhsa_kernarg_size 96")
o("  .amdhsa_user_sgpr_count 2")
o("  .amdhsa_user_sgpr_kernarg_segment_ptr 1")
o("  .amdhsa_system_sgpr_workgroup_id_x 1")
o(".end_amdhsa_kernel")
open(sys.argv[1], "w").write("\n".join(out) + "\n")
```

```python
import sys, struct

OPT = dict(stamp=0, sts="2_3_4_5_6_7", force_slow=0, prio="16_8_4", spin=0, spinat=18, hack=0, sleep=2, delay=0,
           codepf=1, gprio=1, pf=0, pf2=0, pre=1, cfirst=0, gbar=0, init1=1, pf3=0, pfw=0, drain=0, pf4=0, tlb=0, sup=1, cprio=1, nog=0, gsc="sc1", cut=0, ef=0, fs=4)
for a in sys.argv[2:]:
    k, v = a.split("=")
    OPT[k] = int(v) if v.lstrip("-").isdigit() else v

KNAME = "standalone__edge_featured_mpnn_gatedgcn__graph_kernel"
N = 12500
E = 800000
CHUNK = 3136
TAB_ROWS = N + 1
CTL_OFF = 0x380000
FLG_OFF = 0x390000
CELL_OFF = 0x400000
BIN_STRIDE = 32768 + 256
LINE_STRIDE = 0x900000
STAMP_OFF = 0x4000000
LOG2E = 1.4426950408889634
KEXP = 62
POLL_LIMIT = 100000

X_OFF = 0
WC_OFF = 8192
C1_OFF = 8448
C2_OFF = 9472
FLAG = C2_OFF + 256
SYNC = C2_OFF + 260
TAGS = C2_OFF + 272
BASE = C2_OFF + 512
STR = C2_OFF + 1024
EPI = C2_OFF + 2048
IMG = C2_OFF + 3072
IMG_STRIDE = 272
EAU_OFF = IMG + 256 * IMG_STRIDE
EAU_STRIDE = 800
W_OFF = EAU_OFF + 52 * EAU_STRIDE
LDS_TOTAL = W_OFF + 32768
LIST_OFF = W_OFF
LIST_MAX = 31 * 16 * 32
SLOT_OFF = IMG
SLOT_STRIDE = 576
ACC_STRIDE = 1056
OOB = 0x30000
assert W_OFF % 128 == 0 and 117 * SLOT_STRIDE <= 256 * IMG_STRIDE and LDS_TOTAL <= 163840
INC = 0x5556

def f32(x):
    return struct.unpack("<I", struct.pack("<f", x))[0]

out = []
def o(s=""):
    out.append(s)
def I(s):
    out.append("    " + s)
def L(s):
    out.append(s + ":")
def vr(a, n=1):
    return f"v{a}" if n == 1 else f"v[{a}:{a+n-1}]"
def sr(a, n=1):
    return f"s{a}" if n == 1 else f"s[{a}:{a+n-1}]"
def sdwa(sel1):
    return f"dst_sel:DWORD dst_unused:UNUSED_PAD src0_sel:DWORD src1_sel:{sel1}"

P_X, P_E, P_SRC, P_DST, P_WA, P_WB, P_WC, P_WU, P_WV, P_OUT, P_DBG, P_WS = 4, 6, 8, 10, 12, 14, 16, 18, 20, 22, 24, 26
S_TAB, S_X = 28, 32
WS = sr(P_WS, 2)

STS = [int(x) for x in str(OPT["sts"]).split("_")] if OPT["stamp"] else []
RTS = {12: 28, 17: 29} if OPT["stamp"] == 2 else {}
def stamp(i):
    if OPT["spin"] and OPT["spinat"] == i:
        lab = f"SPIN_{len(out)}"
        I("s_cselect_b32 s92, 1, 0")
        L(lab)
        I("s_memrealtime s[90:91]")
        I("s_waitcnt lgkmcnt(0)")
        I("s_sub_u32 s90, s90, s98")
        I(f"s_cmp_lt_u32 s90, {OPT['spin']}")
        I(f"s_cbranch_scc1 {lab}")
        I("s_cmp_lg_u32 s92, 0")
    if not OPT["stamp"]:
        return
    if i == 0:
        I("s_memrealtime s[86:87]")
    elif i == 1:
        I("s_memtime s[88:89]")
    elif i in STS:
        k = 90 + 2 * STS.index(i)
        I(f"s_memtime s[{k}:{k+1}]")
        if i in RTS:
            k = 90 + 2 * STS.index(RTS[i])
            I(f"s_memrealtime s[{k}:{k+1}]")
def stamp_out():
    if not OPT["stamp"]:
        return
    I("s_mov_b64 exec, -1")
    I("s_waitcnt vmcnt(0) lgkmcnt(0)")
    I("s_memtime s[80:81]")
    I("s_memrealtime s[82:83]")
    I("s_waitcnt lgkmcnt(0)")
    I("v_writelane_b32 v127, s80, 30")
    I("v_writelane_b32 v127, s82, 31")
    I("v_writelane_b32 v127, s86, 0")
    I("v_writelane_b32 v127, s88, 1")
    for i in list(range(2, 19)) + list(range(20, 30)):
        I(f"v_writelane_b32 v127, s{90 + 2*STS.index(i) if i in STS else 88}, {i}")
    I("s_lshl_b32 s84, s2, 4")
    I("s_add_u32 s84, s84, s3")
    I("s_lshl_b32 s84, s84, 7")
    I(f"s_add_u32 s84, s84, {hex(STAMP_OFF)}")
    I("v_and_b32 v1, 63, v0")
    I("v_lshl_add_u32 v1, v1, 2, s84")
    I("s_mov_b64 exec, 0xffffffff")
    I(f"global_store_dword v1, v127, {WS}")

def srd(d, p, size):
    I(f"s_mov_b64 {sr(d,2)}, {sr(p,2)}")
    I(f"s_mov_b32 s{d+2}, {hex(size)}")
    I(f"s_mov_b32 s{d+3}, 0x20000")

D, S, EE = 16, 20, 24
AP = 104
TG = 120
B2 = 128 * IMG_STRIDE

def edge_loads(lo=0, hi=3):
    ins = [f"global_load_dwordx4 {vr(D,4)}, v10, {sr(P_DST,2)}",
           f"global_load_dwordx4 {vr(S,4)}, v10, {sr(P_SRC,2)}",
           f"global_load_dwordx2 {vr(EE,2)}, v11, {sr(P_E,2)}"]
    for x in ins[lo:hi]:
        I(x)

def binning(waits):
    B4, RK, PA = 28, 32, 36
    I(f"v_mov_b32 v14, {INC}")
    I(f"s_mov_b32 s68, {47*INC}")
    I("s_mov_b32 s69, 0x05040100")
    I("s_mov_b32 s70, 0x07060100")
    if waits:
        I("s_waitcnt vmcnt(2)")
        stamp(3)
    for i in range(4):
        I(f"v_lshlrev_b32_sdwa v{B4+i}, 2, v{D+i} {sdwa('BYTE_0')}")
        I(f"ds_add_rtn_u32 v{RK+i}, v{B4+i}, v14 offset:{C1_OFF}")
    for i in range(4):
        I(f"v_mul_u32_u24 v{B4+i}, {IMG_STRIDE//4}, v{B4+i}")
        I(f"v_lshrrev_b32 v{D+i}, 8, v{D+i}")
    for i in range(4):
        I("s_waitcnt lgkmcnt(3)")
        I(f"v_min_u32 v{RK+i}, s68, v{RK+i}")
        I(f"v_lshrrev_b32 v{RK+i}, 14, v{RK+i}")
        I(f"v_lshl_add_u32 v{PA+i}, v{RK+i}, 2, v{B4+i}")
        I(f"v_and_b32 v{RK+i}, 3, v{RK+i}")
        I(f"v_or3_b32 v{RK+i}, v{PA+i}, 12, v{RK+i}")
        I(f"ds_write_b8 v{RK+i}, v{D+i} offset:{IMG}")
    if waits:
        I("s_waitcnt vmcnt(0)")
        stamp(4)
    for i in range(4):
        if OPT["hack"]:
            I(f"v_and_b32 v{S+i}, {OPT['hack']}, v{S+i}")
        I(f"v_perm_b32 v{S+i}, v{EE+(i>>1)}, v{S+i}, s{69+(i&1)}")
        I(f"ds_write_b32 v{PA+i}, v{S+i} offset:{IMG}")

def copy_consts():
    I("s_lshr_b32 s64, s2, 7")
    I("s_lshl_b32 s64, s64, 14")
    I(f"s_add_u32 s64, s64, {hex(CELL_OFF)}")
    I(f"v_mul_u32_u24 v6, {BIN_STRIDE//4}, v5")
    I("v_lshl_add_u32 v6, v0, 4, v6")
    I("v_add_u32 v6, s64, v6")
    I(f"v_add_u32 v7, {128*BIN_STRIDE}, v6")
    I(f"s_mul_i32 s64, s2, {BIN_STRIDE}")
    I(f"s_add_u32 s64, s64, {hex(CELL_OFF)}")
    I("v_lshl_add_u32 v2, v0, 4, s64")
    I("v_add_u32 v3, 0x4000, v2")
    I("s_mov_b32 s36, 0x0f0f0f0f")
    I("s_mov_b32 s37, s36")
    I(f"s_mov_b32 s38, {12*INC}")
    I(f"s_mov_b32 s39, {24*INC}")
    I("s_mov_b32 s40, 0xc000")
    I("s_mov_b32 s41, 0xffc0c0c0")
    I(f"s_mov_b32 s42, {49 << 16}")
    I("s_mov_b32 s43, 0")
    I("v_mov_b32 v1, 0")
    I(f"s_mov_b32 s{S_TAB}, s{P_WS}")
    I(f"s_or_b32 s{S_TAB+1}, s{P_WS+1}, 0x1000000")
    I(f"s_mov_b32 s{S_TAB+2}, {0 if OPT['nog'] else TAB_ROWS}")
    I(f"s_mov_b32 s{S_TAB+3}, 0x20000")

def lds_init():
    I("v_add_u32 v5, s2, v3")
    I("v_and_b32 v5, 127, v5")
    I(f"v_mul_u32_u24 v4, {IMG_STRIDE}, v5")
    I("v_lshl_add_u32 v4, v2, 4, v4")
    I("v_lshlrev_b32 v5, 2, v5")
    I("v_mov_b32 v12, 0")
    I("v_mov_b32 v13, 0x3f3f3f")
    I(f"ds_write2st64_b32 v5, v12, v12 offset0:{C1_OFF//256} offset1:{C1_OFF//256+2}")
    for r in range(1 if OPT["init1"] else 2):
        for b in range(2):
            I(f"ds_write_b32 v4, v13 offset:{IMG + b*B2 + r*128 + 12}")
def edge_addr():
    I(f"s_mul_i32 s64, s2, {CHUNK*4}")
    I("v_lshl_add_u32 v10, v0, 4, s64")
    I("v_lshrrev_b32 v11, 1, v10")

def gen():
    o(".p2align 8")
    o(f".globl {KNAME}")
    o(f".type {KNAME},@function")
    L(KNAME)
    I("s_cmp_ge_u32 s2, 256")
    I("s_cbranch_scc1 K_END")
    stamp(0); stamp(1)
    I("s_load_dwordx16 s[4:19], s[0:1], 0")
    I("s_load_dwordx8 s[20:27], s[0:1], 64")
    if OPT["spin"]:
        I("s_memrealtime s[98:99]")
    I("v_lshrrev_b32 v1, 6, v0")
    I("v_and_b32 v2, 7, v0")
    I("v_readfirstlane_b32 s3, v1")
    I("v_lshrrev_b32 v3, 3, v0")
    I("s_mov_b32 s79, 0")
    I("s_cmp_ge_u32 s3, 12")
    I("s_cbranch_scc1 G_ENTRY")

    I("s_cmp_ge_u32 s3, 2")
    I("s_cbranch_scc1 A_NOPF")
    if OPT["codepf"]:
        I("s_getpc_b64 s[64:65]")
        L("A_PC")
        I("v_lshlrev_b32 v8, 7, v0")
        I("v_min_u32 v8, K_SLOW-A_PC-4, v8")
        I("global_load_dword v27, v8, s[64:65]")
    I("v_lshlrev_b32 v8, 4, v0")
    I("v_mov_b64 v[12:13], 0")
    I("v_mov_b64 v[14:15], 0")
    I(f"ds_write_b128 v8, v[12:15] offset:{C2_OFF}")
    L("A_NOPF")
    lds_init()
    edge_addr()
    I(f"v_cmp_gt_u32 vcc, {E*4}, v10")
    I("s_waitcnt lgkmcnt(0)")
    stamp(24)
    if OPT["cfirst"]:
        copy_consts()
    I("s_mov_b64 exec, vcc")
    I("s_cbranch_execz A_NOE")
    edge_loads(0, OPT["pre"])
    if OPT["tlb"]:
        I("s_cmp_eq_u32 s3, 0")
        I("s_cbranch_scc0 A_NOTLB")
        I("s_mov_b64 exec, 1")
        if OPT["tlb"] & 1:
            I(f"global_load_dword v26, v10, {sr(P_SRC,2)}")
            I(f"global_load_dword v26, v11, {sr(P_E,2)}")
        if OPT["tlb"] & 2:
            I(f"global_load_dword v26, v12, {sr(P_OUT,2)}")
            I("s_mov_b64 exec, 0xffff")
            I(f"v_mul_u32_u24 v8, {16*BIN_STRIDE}, v0")
            I(f"v_add_u32 v8, {hex(CELL_OFF + 32768)}, v8")
            I(f"global_load_dword v26, v8, {WS}")
        I("s_mov_b64 exec, vcc")
        L("A_NOTLB")
    I("s_barrier")
    stamp(2)
    edge_loads(OPT["pre"], 3)
    if not OPT["cfirst"]:
        I("s_mov_b64 exec, -1")
        copy_consts()
        I("s_mov_b64 exec, vcc")
    binning(True)
    I("s_mov_b64 exec, -1")
    I("s_branch A_JOIN")
    L("A_NOE")
    I("s_barrier")
    I("s_mov_b64 exec, -1")
    if not OPT["cfirst"]:
        copy_consts()
    I("s_branch A_JOIN")

    XA, FA, FB, ACC1, ACC2 = 28, 36, 68, 104, 36
    L("G_ENTRY")
    if OPT["gprio"]:
        I("s_setprio 3")
    I("v_and_b32 v7, 7, v3")
    I("s_and_b32 s64, s3, 1")
    I("s_lshl_b32 s64, s64, 2")
    I("v_and_b32 v8, 2, v7")
    I("v_xor_b32 v8, v8, v2")
    I("v_xor_b32 v8, s64, v8")
    I("v_lshlrev_b32 v8, 4, v8")
    I("v_lshl_add_u32 v8, v7, 7, v8")
    I("s_and_b32 s65, s3, 3")
    I("s_lshl_b32 s65, s65, 11")
    I("v_add_u32 v8, s65, v8")
    I(f"s_add_u32 s65, s65, {W_OFF}")
    I("s_add_u32 s66, s3, 3")
    I("s_and_b32 s66, s66, 3")
    I("v_xor_b32 v9, v2, v7")
    I("v_lshlrev_b32 v9, 4, v9")
    I("v_lshl_add_u32 v9, v7, 15, v9")
    I("s_lshl_b32 s67, s66, 19")
    I("s_lshl_b32 s68, s2, 7")
    I("s_add_u32 s67, s67, s68")
    I("v_add_u32 v9, s67, v9")
    I("v_add_u32 v15, 0x40000, v9")
    I("s_lshl_b32 s67, s66, 11")
    I(f"s_mov_b32 s{S_X+2}, {N*128}")
    I(f"s_mov_b32 s{S_X+3}, 0x20000")
    I("s_mov_b32 m0, s67")
    I("s_waitcnt lgkmcnt(0)")
    stamp(24)
    I(f"s_mov_b64 {sr(S_X,2)}, {sr(P_X,2)}")
    I(f"buffer_load_dwordx4 v9, {sr(S_X,4)}, 0 offen lds")
    I("s_add_u32 m0, s67, 1024")
    I("s_nop 0")
    I(f"buffer_load_dwordx4 v15, {sr(S_X,4)}, 0 offen lds")
    def w_dma(p, off, va="v8", sd="s65"):
        I(f"s_add_u32 m0, {sd}, {off}")
        I("s_nop 0")
        I(f"global_load_lds_dwordx4 {va}, {sr(p,2)}")
        I(f"global_load_lds_dwordx4 {va}, {sr(p,2)} offset:1024")
    w_dma(P_WB, 0)
    w_dma(P_WV, 8192)
    lds_init()
    edge_addr()
    if OPT["gbar"]:
        I("s_waitcnt lgkmcnt(0)")
        I("s_barrier")
        stamp(2)
    I("s_cmp_eq_u32 s3, 12")
    I("s_cselect_b32 s74, 0xffff, 0")
    I("s_cmp_eq_u32 s2, 255")
    I("s_cselect_b32 s74, 0, s74")
    I("s_mov_b32 s75, 0")
    I("s_mov_b64 exec, s[74:75]")
    I("s_cbranch_execz G_NOE")
    edge_loads()
    L("G_NOE")
    I("s_mov_b64 exec, -1")
    I("v_mov_b32 v126, v8")
    I("v_lshlrev_b32 v100, 4, v2")
    I("s_mov_b32 s78, s65")
    I(f"s_mov_b64 {sr(S_X,2)}, {WS}")
    I(f"s_mov_b32 s{S_X+2}, {TAB_ROWS*256}")
    copy_consts()
    I("v_and_b32 v124, 15, v0")
    I("v_bfe_u32 v125, v0, 4, 2")
    I("v_and_b32 v8, 7, v124")
    I("v_lshlrev_b32 v9, 1, v125")
    I("v_xor_b32 v8, v8, v9")
    I("v_lshlrev_b32 v8, 4, v8")
    I("v_lshl_add_u32 v8, v124, 7, v8")
    I("v_add_u32 v8, s67, v8")
    I("v_xor_b32 v9, 16, v8")
    I("v_lshrrev_b32 v10, 2, v124")
    I("v_and_b32 v11, 2, v10")
    I("v_bfe_u32 v12, v0, 1, 1")
    I("v_or_b32 v11, v11, v12")
    I("v_and_b32 v12, 1, v125")
    I("v_lshl_or_b32 v11, v12, 2, v11")
    I("v_lshlrev_b32 v11, 4, v11")
    I("v_and_b32 v12, 1, v0")
    I("v_lshl_or_b32 v11, v12, 3, v11")
    I("v_lshl_add_u32 v10, v125, 4, v10")
    I("v_lshl_or_b32 v11, v10, 7, v11")
    I(f"v_add_u32 v12, {W_OFF}, v11")
    for T in range(1, 4):
        I(f"v_xor_b32 v{12+T}, {T << 5}, v12")
    I(f"s_mov_b32 s76, {hex(f32(-LOG2E))}")
    I("s_mov_b32 s77, 0x07060302")
    I(f"v_mov_b32 v26, {hex(f32(2.0**-70))}")
    I("s_lshl_b32 s64, s66, 20")
    I("s_lshl_b32 s65, s2, 8")
    I("s_add_u32 s64, s64, s65")
    I("v_lshlrev_b32 v27, 18, v125")
    I("v_lshl_add_u32 v27, v124, 4, v27")
    I("v_add_u32 v27, s64, v27")
    I("v_mov_b32 v10, 1")
    def g_sync(target, lab, arrive=True):
        if arrive:
            I("s_mov_b64 exec, 1")
            I(f"ds_add_u32 v1, v10 offset:{SYNC}")
            I("s_mov_b64 exec, -1")
        L(lab)
        I(f"ds_read_b32 v11, v1 offset:{SYNC}")
        I("s_waitcnt lgkmcnt(0)")
        I("v_readfirstlane_b32 s64, v11")
        I(f"s_cmp_lt_u32 s64, {target}")
        I(f"s_cbranch_scc1 {lab}")
    def frag_reads(F, moff):
        for T in range(4):
            for s in range(2):
                for h in range(2):
                    I(f"ds_read_b64_tr_b16 {vr(F + 8*T + 4*s + 2*h, 2)}, v{12+T} offset:{moff + (8*s+4*h)*128}")
    def mfmas(F, acc, swap, later):
        for T in range(4):
            I(f"s_waitcnt lgkmcnt({min(15, later + 4*(3-T))})")
            for s in range(2):
                a, b = vr(XA + 4*s, 4), vr(F + 8*T + 4*s, 4)
                if swap:
                    a, b = b, a
                c = "0" if s == 0 else vr(acc + 4*T, 4)
                I(f"v_mfma_f32_16x16x32_bf16 {vr(acc+4*T,4)}, {a}, {b}, {c}")
    if not OPT["gbar"]:
        I("s_waitcnt lgkmcnt(0)")
        I("s_barrier")
        stamp(2)
    I("s_cmp_eq_u64 s[74:75], 0")
    I("s_cbranch_scc1 G_W0")
    I("s_waitcnt vmcnt(3)")
    I("s_branch G_W1")
    L("G_W0")
    I("s_waitcnt vmcnt(0)")
    L("G_W1")
    stamp(3)
    g_sync(4, "G_S1")
    stamp(20)
    I(f"ds_read_b128 {vr(XA,4)}, v8")
    I(f"ds_read_b128 {vr(XA+4,4)}, v9")
    frag_reads(FA, 0)
    frag_reads(FB, 8192)
    stamp(21)
    w_dma(P_WA, 16384, "v126", "s78")
    w_dma(P_WU, 24576, "v126", "s78")
    I("s_cmp_eq_u32 s3, 13")
    I("s_cbranch_scc0 G_NOWC")
    I(f"s_mov_b32 m0, {WC_OFF}")
    I("s_mov_b64 exec, 0xff")
    I(f"global_load_lds_dwordx4 v100, {sr(P_WC,2)}")
    I("s_mov_b64 exec, -1")
    L("G_NOWC")
    stamp(22)
    mfmas(FA, ACC1, False, 16)
    mfmas(FB, ACC2, False, 0)
    stamp(23)
    I("s_cmp_eq_u32 s3, 13")
    I("s_cbranch_scc0 G_NOEP")
    I(f"s_add_u32 s70, s{P_WS}, {hex(CTL_OFF)}")
    I(f"s_addc_u32 s71, s{P_WS+1}, 0")
    I("s_load_dwordx2 s[72:73], s[70:71], 8")
    L("G_NOEP")
    ACCB, ACCV, OUTR = ACC1, ACC2, FB
    SD = sdwa("WORD_1")
    I("s_mov_b32 s80, 0x8000")
    I("s_mov_b32 s81, 0x8000")
    I(f"s_mov_b32 s68, {hex(f32(2.0**-100))}")
    I("s_mov_b32 s69, s68")
    I("v_mov_b32 v10, v26")
    I("v_mov_b32 v11, v26")
    I("s_nop 1")
    for rp in (0, 2):
        for t in range(4):
            I(f"v_pk_fma_f32 {vr(ACCB+4*t+rp,2)}, {vr(ACCB+4*t+rp,2)}, s[76:77], v[10:11] op_sel_hi:[1,0,1]")
        for t in (1, 3):
            I(f"v_pk_add_f32 {vr(ACCV+4*t+rp,2)}, {vr(ACCV+4*t+rp,2)}, s[68:69]")
        for t in range(4):
            I(f"v_lshl_add_u64 {vr(ACCB+4*t+rp,2)}, {vr(ACCB+4*t+rp,2)}, 0, s[80:81]")
        for t in range(4):
            I(f"v_lshl_add_u64 {vr(ACCV+4*t+rp,2)}, {vr(ACCV+4*t+rp,2)}, 0, s[80:81]")
        for r in (rp, rp + 1):
            for t in (0, 2):
                I(f"v_sub_u32_sdwa v{ACCB+4*t+r}, v{ACCB+4*t+r}, v{ACCV+4*t+r} clamp {SD}")
            for t in (0, 2):
                I(f"v_sub_u32_sdwa v{ACCV+4*(t+1)+r}, v{ACCV+4*(t+1)+r}, v{ACCB+4*t+r} clamp {SD}")
            for t in (0, 2):
                I(f"v_sub_u32_sdwa v{ACCB+4*(t+1)+r}, v{ACCB+4*(t+1)+r}, v{ACCV+4*(t+1)+r} clamp {SD}")
            for t in range(4):
                I(f"v_perm_b32 v{OUTR+4*r+t}, v{ACCB+4*t+r}, v{ACCV+4*t+r}, s77")
            if r == 0:
                I("s_cmp_eq_u32 s3, 12")
                I("s_cbranch_scc1 G_T3")
            else:
                I("v_add_u32 v27, 0x10000, v27")
            I(f"buffer_store_dwordx4 {vr(OUTR+4*r,4)}, v27, {sr(S_X,4)}, 0 offen sc1")
    stamp(4)
    I("s_cmp_eq_u32 s3, 13")
    I("s_cbranch_scc0 G_BVD")
    I("s_waitcnt lgkmcnt(0)")
    I("s_add_u32 s72, s72, 0x1000000")
    I("s_addc_u32 s73, s73, 0")
    I("s_and_b32 s72, s72, 0xff000000")
    for k in range(3):
        I(f"s_bfe_u32 s64, s73, {hex((2 << 16) | (2*k))}")
        I(f"s_lshl_b32 s64, s64, {6 + 8*k}")
        I("s_or_b32 s72, s72, s64")
        I(f"s_bfe_u32 s64, s73, {hex((2 << 16) | (6 + 2*k))}")
        I("s_lshl_b32 s64, s64, 14")
        I(f"v_mov_b32 v{TG+k}, s64")
    I(f"v_mov_b32 v{TG+3}, s72")
    I(f"ds_write_b128 v1, {vr(TG,4)} offset:{TAGS}")
    L("G_BVD")
    I("s_waitcnt vmcnt(4)")
    I("s_branch G_DONE")
    L("G_T3")
    I("s_cmp_eq_u32 s2, 212")
    I("s_cbranch_scc0 G_NODUM")
    for t in range(4):
        I(f"v_mov_b32 v{OUTR+t}, 0x7f000000")
    L("G_NODUM")
    I(f"buffer_store_dwordx4 {vr(OUTR,4)}, v27, {sr(S_X,4)}, 0 offen sc1")
    I("s_waitcnt vmcnt(5)")
    I("s_mov_b64 exec, s[74:75]")
    I("s_cbranch_execz G_NOBIN")
    I("v_mov_b32 v126, v14")
    binning(False)
    I("v_mov_b32 v14, v126")
    L("G_NOBIN")
    I("s_mov_b64 exec, -1")
    I(f"ds_read_b128 {vr(XA,4)}, v8")
    I(f"ds_read_b128 {vr(XA+4,4)}, v9")
    stamp(4)
    I("s_waitcnt vmcnt(1)")
    L("G_DONE")
    if OPT["drain"]:
        I("s_waitcnt vmcnt(0)")
    if OPT["gprio"] and not OPT["cprio"]:
        I("s_setprio 0")
    stamp(5)

    L("A_JOIN")
    if OPT["cprio"]:
        I("s_setprio 3")
    I("s_waitcnt lgkmcnt(0)")
    stamp(6)
    I("s_barrier")
    stamp(7)
    C0 = 48
    I(f"ds_read_b128 {vr(TG,4)}, v1 offset:{TAGS}")
    I(f"ds_read2st64_b32 v[8:9], v5 offset0:{C1_OFF//256} offset1:{C1_OFF//256+2}")
    I(f"ds_read_b128 {vr(C0,4)}, v4 offset:{IMG}")
    I(f"ds_read_b128 {vr(C0+4,4)}, v4 offset:{IMG+B2}")
    def tagit(c):
        for k in range(3):
            I(f"v_bfi_b32 v{c+k}, s40, v{TG+k}, v{c+k}")
        I(f"v_or_b32 v{c+3}, v{TG+3}, v{c+3}")
    I("s_waitcnt lgkmcnt(2)")
    I("v_cmp_le_u32 s[72:73], s38, v8")
    I("v_cmp_le_u32 s[74:75], s38, v9")
    I("v_max_u32 v10, v8, v9")
    I("v_cmp_le_u32 vcc, s39, v10")
    I("s_waitcnt lgkmcnt(1)")
    tagit(C0)
    I("s_or_b64 exec, s[72:73], s[36:37]")
    I(f"global_store_dwordx4 v6, {vr(C0,4)}, {WS} sc1")
    I("s_or_b64 exec, s[74:75], s[36:37]")
    I("s_waitcnt lgkmcnt(0)")
    tagit(C0 + 4)
    I(f"global_store_dwordx4 v7, {vr(C0+4,4)}, {WS} sc1")
    I("s_cbranch_vccnz R_PUB2")
    L("A_PUBD")
    I("s_mov_b64 exec, -1")
    if OPT["cprio"]:
        I("s_setprio 0")
    stamp(8)
    I("s_cmp_ge_u32 s3, 12")
    I("s_cbranch_scc0 B_NOAU")
    I("s_setprio 1")
    FU, FW, UU = 36, 84, 52
    def half_gemm(moff, acc, swap):
        for T in range(4):
            F = (FU if T < 2 else FW) + 8 * (T & 1)
            for s in range(2):
                for h in range(2):
                    I(f"ds_read_b64_tr_b16 {vr(F + 4*s + 2*h, 2)}, v{12+T} offset:{moff + (8*s+4*h)*128}")
        for T in range(4):
            F = (FU if T < 2 else FW) + 8 * (T & 1)
            I(f"s_waitcnt lgkmcnt({4*(3-T)})")
            for s in range(2):
                a, b = vr(XA + 4*s, 4), vr(F + 4*s, 4)
                if swap:
                    a, b = b, a
                c = "0" if s == 0 else vr(acc + 4*T, 4)
                I(f"v_mfma_f32_16x16x32_bf16 {vr(acc+4*T,4)}, {a}, {b}, {c}")
    half_gemm(16384, AP, False)
    if not OPT["drain"]:
        I(f"s_lshl_b32 s64, s2, {OPT['fs']-2}")
        I("s_add_u32 s64, s64, s66")
        I("s_lshl_b32 s64, s64, 2")
        I(f"s_add_u32 s64, s64, {hex(FLG_OFF)}")
        I("v_mov_b32 v26, s64")
        I("s_waitcnt vmcnt(2)")
        I("s_mov_b64 exec, 1")
        I(f"global_store_dword v26, v{TG+3}, {WS} sc1")
        I("s_mov_b64 exec, -1")
    half_gemm(24576, UU, True)
    I(f"s_mul_i32 s65, s66, {16*EAU_STRIDE}")
    I(f"s_add_u32 s65, s65, {EAU_OFF}")
    I(f"v_mul_u32_u24 v26, {4*EAU_STRIDE}, v125")
    I("v_lshl_add_u32 v26, v124, 4, v26")
    I("v_add_u32 v25, s65, v26")
    I(f"v_mul_u32_u24 v27, {EAU_STRIDE}, v124")
    I("v_lshl_add_u32 v27, v125, 4, v27")
    I("v_add_u32 v27, s65, v27")
    for i in range(16):
        I(f"v_mul_f32 v{AP+i}, s76, v{AP+i}")
    I("s_cmp_eq_u32 s3, 12")
    I("s_cselect_b32 exec_lo, 0x000f000f, -1")
    I("s_cselect_b32 exec_hi, 0x000f000f, -1")
    for T in range(4):
        I(f"ds_write_b128 v27, {vr(UU+4*T,4)} offset:{256 + T*64}")
    I("s_cselect_b32 exec_hi, 0, -1")
    I("s_cselect_b32 exec_lo, 0xffff, -1")
    I(f"v_max3_f32 v26, |v{AP}|, |v{AP+1}|, |v{AP+2}|")
    for i in range(3, 15, 2):
        I(f"v_max3_f32 v26, |v{AP+i}|, |v{AP+i+1}|, v26")
    I(f"v_max_f32 v26, |v{AP+15}|, v26")
    I(f"v_cmp_nge_f32 vcc, {hex(f32(63.0))}, v26")
    EAT = 36
    for r in range(4):
        for t in range(4):
            I(f"v_add_f32 v{EAT+4*r+t}, {hex(f32(-float(KEXP)))}, v{AP+4*t+r}")
        for t in range(4):
            I(f"ds_write_b32 v25, v{AP+4*t+r} offset:{r*EAU_STRIDE + 512 + 4*t}")
            I(f"v_exp_f32 v{EAT+4*r+t}, v{EAT+4*r+t}")
        I("s_nop 0")
        I(f"ds_write_b128 v25, {vr(EAT+4*r,4)} offset:{r*EAU_STRIDE}")
        if r == 0:
            I("s_cbranch_scc1 G_EAD")
    L("G_EAD")
    I("s_mov_b64 exec, -1")
    I("s_cmp_lg_u64 vcc, 0")
    I("s_cselect_b32 s79, 1, 0")
    L("B_NOAU")

    RA, CA, KA, RB, CB, KB = 8, 24, 36, 64, 72, 78
    XB, Y, A = 48, 80, 100
    IP = (96, 98, 104, 106)
    UR, XR, VOUT, VU, LP, EP = 108, 112, 116, 117, 118, 120
    WCB, DEN, NUM, VOOB, C4, VRA, VSE, EA, P, Q, SS, LC = 16, 20, 44, 30, 31, 42, 32, 12, 24, 8, 36, 4
    I("v_and_b32 v5, 63, v0")
    I("s_cmp_lt_u32 s2, 212")
    I("s_cselect_b32 s64, 49, 48")
    I("v_cmp_gt_u32 s[82:83], s64, v5")
    I("v_lshlrev_b32 v5, 2, v5")
    I(f"v_and_b32 v{LC}, 15, v0")
    I(f"v_lshlrev_b32 v6, 1, v{LC}")
    for j in range(4):
        I(f"ds_read_u16 v{WCB+j}, v6 offset:{WC_OFF + 32*j}")
    I(f"v_lshlrev_b32 v{LC}, 4, v{LC}")
    I(f"v_mov_b32 v{C4}, 4")
    I(f"v_mov_b32 v{VOOB}, {OOB}")
    for p_ in IP:
        I(f"v_mov_b32 v{p_+1}, v{LC}")
    I(f"v_lshlrev_b32 v{LP}, 1, v6")
    I(f"v_mov_b32 v{LP+1}, v{LC}")
    I("v_lshrrev_b32 v7, 4, v0")
    I(f"v_mul_u32_u24 v{VU}, {EAU_STRIDE}, v7")
    I(f"s_mov_b32 s64, {EAU_OFF + 256}")
    I(f"v_add3_u32 v{VU}, v{VU}, s64, v{LC}")
    I("v_lshlrev_b32 v8, 2, v6")
    I("v_and_b32 v9, 0x70, v0")
    I("v_xor_b32 v9, v8, v9")
    I("v_lshl_add_u32 v9, v7, 7, v9")
    I(f"ds_read_b64 {vr(XR+2,2)}, v9 offset:{X_OFF}")
    I(f"v_lshl_add_u32 v{VOUT}, v7, 15, v8")
    I("s_lshl_b32 s64, s2, 7")
    I(f"v_add_u32 v{VOUT}, s64, v{VOUT}")
    srd(S_X, P_OUT, N * 128)
    for d in range(0, 4, 2):
        I(f"v_mov_b64 {vr(A+d,2)}, 0")
        I(f"v_mov_b64 {vr(DEN+d,2)}, 0")
        I(f"v_mov_b64 {vr(NUM+d,2)}, 0")
    I("s_mov_b64 s[68:69], -1")
    I("s_mov_b64 s[70:71], -1")
    I("s_cmp_lt_u32 s3, 4")
    I("s_cselect_b32 s78, 2, 0")
    I(f"s_mov_b32 s16, {hex(f32(2.0**-KEXP))}")
    I("s_mov_b32 s17, s16")
    I(f"s_mov_b32 s18, {hex(f32(1e-6 * 2.0**KEXP))}")
    I("s_mov_b32 s19, s18")
    I("s_mov_b32 s20, 32")
    I("s_mov_b32 s21, 32")
    I(f"s_mov_b32 s24, {SLOT_STRIDE}")
    I(f"s_mov_b32 s25, {EAU_STRIDE}")
    I(f"s_mov_b32 s85, {LIST_OFF}")
    I("s_mov_b32 s56, 0x11111111")
    I("s_mov_b32 s57, s56")
    I("s_lshl_b64 s[58:59], s[56:57], 1")
    I("s_lshl_b64 s[60:61], s[56:57], 2")
    I("s_lshl_b64 s[62:63], s[56:57], 3")
    I("v_bfe_u32 v124, v0, 4, 2")
    I("v_bfe_u32 v125, v0, 5, 1")
    I("v_bfe_u32 v126, v0, 2, 1")
    I("v_lshl_add_u32 v125, v126, 1, v125")
    I("v_bfe_u32 v126, v0, 3, 2")
    I("v_lshlrev_b32 v126, 2, v126")
    I("v_bfe_u32 v34, v0, 2, 3")
    I("s_lshl_b32 s64, s3, 3")
    I("s_sub_u32 s64, s2, s64")
    I("v_sub_u32 v34, s64, v34")
    I("v_and_b32 v34, 127, v34")
    I("v_and_b32 v35, 32, v0")
    I("v_lshl_add_u32 v34, v35, 2, v34")
    I("v_and_b32 v35, 3, v0")
    if OPT["pf"] or OPT["pf2"] or OPT["pf3"] or OPT["pf4"]:
        I("v_lshlrev_b32 v33, 8, v34")
        I("v_lshl_add_u32 v33, v35, 20, v33")
        I("s_lshr_b32 s64, s2, 4")
        I("s_lshl_b32 s64, s64, 16")
        I("s_bfe_u32 s65, s2, 0x10003")
        I("s_lshl_b32 s65, s65, 7")
        I("s_add_u32 s64, s64, s65")
        I("v_add_u32 v33, s64, v33")
    I(f"v_lshlrev_b32 v34, {OPT['fs']}, v34")
    I("v_lshl_add_u32 v34, v35, 2, v34")
    I(f"v_add_u32 v34, {hex(FLG_OFF)}, v34")
    I(f"s_mov_b32 s64, {hex(f32(-LOG2E))}")
    I("s_mov_b32 s66, 0x0000ffff")
    I("s_mov_b32 s67, 0xffff0000")
    I("s_waitcnt lgkmcnt(0)")
    for j in range(4):
        I(f"v_lshlrev_b32 v{WCB+j}, 16, v{WCB+j}")
    for j in range(4):
        I(f"v_mul_f32 v{WCB+j}, s64, v{WCB+j}")
    for j in range(4):
        I(f"v_cvt_pk_bf16_f32 v{WCB+j}, 0, v{WCB+j}")
    for j in range(4):
        I(f"v_cndmask_b32 v{WCB+j}, 0, v{WCB+j}, s[66:67]")
    I(f"v_lshlrev_b32 v{XR}, 16, v{XR+2}")
    I(f"v_and_b32 v{XR+1}, 0xffff0000, v{XR+2}")
    I(f"v_lshlrev_b32 v{XR+2}, 16, v{XR+3}")
    I(f"v_and_b32 v{XR+3}, 0xffff0000, v{XR+3}")
    I("s_setprio 0")
    I("s_waitcnt vmcnt(0)")
    if OPT["delay"]:
        I(f"s_sleep {OPT['delay']}")
    stamp(9)
    I(f"global_load_dwordx4 {vr(RA,4)}, v2, {WS} sc1")
    I(f"global_load_dwordx4 {vr(RA+4,4)}, v3, {WS} sc1")

    def poll(R_, first, name):
        L(name)
        I("s_waitcnt vmcnt(0)")
        for k in range(2):
            I(f"s_mov_b64 exec, s[{68+2*k}:{69+2*k}]")
            for j in range(4):
                I(f"v_xor_b32 v{R_+4*k+j}, v{TG+j}, v{R_+4*k+j}")
        I("s_mov_b64 exec, -1")
        for k in range(2):
            r = R_ + 4 * k
            I(f"v_or3_b32 v{6+k}, v{r}, v{r+1}, v{r+2}")
            I(f"v_and_b32 v{6+k}, s40, v{6+k}")
            I(f"v_and_or_b32 v{6+k}, v{r+3}, s41, v{6+k}")
            I(f"v_cmp_ne_u32 s[{68+2*k}:{69+2*k}], 0, v{6+k}")
            I(f"v_cmp_gt_u32 s[{64+2*k}:{65+2*k}], s42, v{r+3}")
        if first:
            for k in range(2):
                I(f"s_andn2_b64 s[{64+2*k}:{65+2*k}], s[{64+2*k}:{65+2*k}], s[{68+2*k}:{69+2*k}]")
                I(f"s_lshl_b64 s[{74+2*k}:{75+2*k}], s[{64+2*k}:{65+2*k}], 1")
                I(f"s_or_b64 s[{74+2*k}:{75+2*k}], s[{74+2*k}:{75+2*k}], s[36:37]")
        I("s_and_b64 s[72:73], s[68:69], s[74:75]")
        I("s_and_b64 s[80:81], s[70:71], s[76:77]")
        I("s_or_b64 s[72:73], s[72:73], s[80:81]")
        I(f"s_cbranch_scc1 {name}_RETRY")
    def retry(R_, first, name):
        L(name + "_RETRY")
        if first:
            for k in range(4):
                I(f"s_and_b32 s72, s{68+k}, s{74+k}")
                I("s_lshl_b32 s73, s72, 1")
                I("s_or_b32 s72, s72, s73")
                I("s_lshl_b32 s73, s72, 2")
                I("s_or_b32 s72, s72, s73")
                I("s_lshl_b32 s73, s72, 4")
                I("s_or_b32 s72, s72, s73")
                I(f"s_and_b32 s{68+k}, s{68+k}, s72")
        else:
            I("s_and_b64 s[68:69], s[68:69], s[74:75]")
            I("s_and_b64 s[70:71], s[70:71], s[76:77]")
        I("s_add_u32 s43, s43, 1")
        I(f"s_cmp_gt_u32 s43, {POLL_LIMIT}")
        I("s_cbranch_scc1 R_TIMEOUT")
        if OPT["sleep"]:
            I(f"s_sleep {OPT['sleep']}")
        reload(R_, name)
        I(f"s_branch {name}")
    def reload(R_, name):
        I("s_mov_b64 exec, s[68:69]")
        I(f"s_cbranch_execz {name}_1")
        I(f"global_load_dwordx4 {vr(R_,4)}, v2, {WS} sc1")
        L(name + "_1")
        I("s_mov_b64 exec, s[70:71]")
        I(f"s_cbranch_execz {name}_2")
        I(f"global_load_dwordx4 {vr(R_+4,4)}, v3, {WS} sc1")
        L(name + "_2")
    def ranks(R_, C_, K_, M_):
        for k in range(2):
            for j in range(3):
                I(f"v_lshlrev_b32_sdwa v{C_+3*k+j}, 2, v{R_+4*k+3} {sdwa('BYTE_'+str(j))}")
        for k in range(2):
            I(f"s_mov_b64 exec, s[{74+2*k}:{75+2*k}]")
            for j in range(3):
                m = M_ + 2 * (3 * k + j)
                I(f"v_cmp_gt_u32_sdwa s[{m}:{m+1}], 49, v{R_+4*k+3} src0_sel:DWORD src1_sel:BYTE_{j}")
            for j in range(3):
                m = M_ + 2 * (3 * k + j)
                I(f"s_mov_b64 exec, s[{m}:{m+1}]")
                I(f"ds_add_rtn_u32 v{K_+3*k+j}, v{C_+3*k+j}, v{C4} offset:{C2_OFF}")
        I("s_mov_b64 exec, -1")
    def more_test():
        I("s_and_b64 s[64:65], s[64:65], s[74:75]")
        I("s_and_b64 s[66:67], s[66:67], s[76:77]")
        I("s_or_b64 s[72:73], s[64:65], s[66:67]")
        I("s_or_b32 s72, s72, s73")
        I("s_and_b32 s72, s72, 0x80808080")
    MA, MB = 44, 4

    poll(RA, True, "B_P0")
    stamp(10)
    if OPT["ef"]:
        I(f"global_load_dword v35, v34, {WS} sc1")
    ranks(RA, CA, KA, MA)
    more_test()
    I("s_or_b32 s72, s72, s79")
    I("s_cbranch_scc1 R_MORE")
    L("B_RDONE")
    if OPT["stamp"]:
        I("v_writelane_b32 v127, s43, 19")
    I("s_waitcnt lgkmcnt(0)")
    I("s_barrier")
    stamp(11)
    I(f"ds_read_b32 v6, v5 offset:{C2_OFF}")
    if OPT["drain"]:
        if OPT["pf4"]:
            I(f"s_sub_u32 s71, s3, {OPT['pfw']}")
            I(f"s_cmp_lt_u32 s71, {OPT['pf4']}")
            I("s_cbranch_scc0 B_NOPF4")
            I("s_andn2_b64 exec, exec, s[62:63]")
            I(f"global_load_dword v84, v33, {WS} sc1")
            I("s_mov_b64 exec, -1")
            L("B_NOPF4")
    elif not OPT["ef"]:
        I(f"global_load_dword v35, v34, {WS} sc1")
    elif OPT["pf"]:
        I("s_sub_u32 s64, s3, 4")
        I(f"s_cmp_lt_u32 s64, {OPT['pf']}")
        I("s_cbranch_scc0 B_NOPF")
        I("s_waitcnt vmcnt(0)")
        I(f"v_cmp_eq_u32 vcc, v{TG+3}, v35")
        I("s_mov_b64 exec, vcc")
        I("s_cbranch_execz B_NOPF0")
        I(f"global_load_dword v84, v33, {WS} sc1")
        L("B_NOPF0")
        I("s_mov_b64 exec, -1")
        L("B_NOPF")
    I("s_waitcnt lgkmcnt(0)")
    I("v_add_u32 v2, 7, v6")
    I("v_and_b32 v2, -8, v2")
    I("v_max_u32 v2, 8, v2")
    I("v_cndmask_b32 v2, 0, v2, s[82:83]")
    I("v_mov_b32 v3, v2")
    for d in ("row_shr:1 row_mask:0xf", "row_shr:2 row_mask:0xf", "row_shr:4 row_mask:0xf",
              "row_shr:8 row_mask:0xf", "row_bcast:15 row_mask:0xa", "row_bcast:31 row_mask:0xc"):
        I("s_nop 1")
        I(f"v_add_u32_dpp v3, v3, v3 {d} bank_mask:0xf")
    I("v_sub_u32 v7, v3, v2")
    I(f"ds_write_b32 v5, v7 offset:{BASE}")
    I("v_readlane_b32 s64, v3, 63")
    def lookup(C_):
        for i in range(6):
            I(f"ds_read_b32 v{C_+i}, v{C_+i} offset:{BASE}")
    def scatter(R_, C_, K_, M_):
        for i in range(6):
            if i % 3 == 0:
                I(f"s_waitcnt lgkmcnt({3-i})")
            I(f"v_add3_u32 v{C_+i}, v{C_+i}, v{K_+i}, s85")
        for i in range(6):
            I(f"s_mov_b64 exec, s[{M_+2*i}:{M_+2*i+1}]")
            I(f"ds_write_b32 v{C_+i}, v{R_+4*(i//3)+i%3}")
        I("s_mov_b64 exec, -1")
    lookup(CA)
    I("s_add_u32 s65, s64, 31")
    I("s_lshr_b32 s66, s65, 9")
    I("s_bfe_u32 s67, s65, 0x40005")
    I("s_mul_i32 s68, s66, s3")
    I("s_min_u32 s69, s67, s3")
    I("s_add_u32 s68, s68, s69")
    I("s_lshl_b32 s68, s68, 5")
    I("s_cmp_lt_u32 s3, s67")
    I("s_addc_u32 s72, s66, 0")
    I("s_lshl_b32 s69, s72, 3")
    I("s_add_u32 s70, s68, s85")
    if OPT["pf3"]:
        I(f"s_sub_u32 s71, s3, {OPT['pfw']}")
        I(f"s_cmp_lt_u32 s71, {OPT['pf3']}")
        I("s_cbranch_scc0 B_NOPF3")
        I("s_waitcnt vmcnt(0)")
        I(f"v_cmp_eq_u32 vcc, v{TG+3}, v35")
        I("s_andn2_b64 exec, vcc, s[62:63]")
        I("s_cbranch_execz B_NOPF30")
        I(f"global_load_dword v84, v33, {WS} sc1")
        L("B_NOPF30")
        I("s_mov_b64 exec, -1")
        L("B_NOPF3")
    scatter(RA, CA, KA, MA)
    I(f"v_mul_u32_u24 v{VRA}, s69, v124")
    I(f"v_mul_u32_u24 v{VRA+1}, s69, v125")
    I(f"v_add_u32 v{VRA}, s70, v{VRA}")
    I(f"v_add3_u32 v{VRA+1}, v{VRA+1}, s70, v126")
    if OPT["pf"] and OPT["ef"]:
        I("s_sub_u32 s71, s3, 4")
        I(f"s_cmp_lt_u32 s71, {OPT['pf']}")
        I("s_cbranch_scc1 B_FLW")
    if OPT["pf3"]:
        I(f"s_cmp_lt_u32 s71, {OPT['pf3']}")
        I("s_cbranch_scc1 B_FLW")
    if not OPT["drain"]:
        I("s_waitcnt vmcnt(0)")
        L("B_FLW")
        I(f"v_cmp_ne_u32 vcc, v{TG+3}, v35")
    I("s_cmp_lg_u32 s78, 0")
    I("s_cbranch_scc1 R_EXTRA")
    L("B_XDONE")
    if not OPT["drain"]:
        I("s_cbranch_vccnz R_FLAGS")
    L("B_FDONE")
    if OPT["pf2"]:
        I(f"s_cmp_lt_u32 s3, {OPT['pf2']}")
        I("s_cbranch_scc0 B_NOPF2")
        I(f"global_load_dword v84, v33, {WS} sc1")
        L("B_NOPF2")
    I("s_waitcnt lgkmcnt(0)")
    I("s_barrier")
    stamp(12)
    def i_reads(batch, lo=0, hi=4):
        for i in range(lo, hi):
            I(f"ds_read_u16 v{IP[i]}, v{VRA} offset:{16*batch + 4*i}")
    def a_reads(batch):
        for d in range(4):
            I(f"s_mov_b64 exec, s[{56+2*d}:{57+2*d}]")
            I(f"ds_read_b32 v{A+d}, v{VRA+1} offset:{16*batch}")
        I("s_mov_b64 exec, -1")
    def gathers(x, lo, hi):
        for i in range(lo, hi):
            I(f"buffer_load_dwordx4 {vr(x+4*i,4)}, {vr(IP[i],2)}, {sr(S_TAB,4)}, 0 idxen offen {OPT['gsc'] if OPT['gsc'] != 'none' else ''}")
    i_reads(0)
    I("v_and_b32 v9, 0x3f0, v0")
    I(f"ds_read_b128 {vr(VSE,4)}, v9 offset:{STR}")
    I(f"ds_read_b32 v8, v1 offset:{FLAG}")
    if OPT["prio"]:
        I("s_setprio 3")
    I("s_waitcnt lgkmcnt(2)")
    gathers(XB, 0, 4)
    stamp(13)
    i_reads(1)
    I(f"ds_read_b128 {vr(EP,4)}, v9 offset:{EPI}")
    I(f"ds_read_b128 {vr(UR,4)}, v{VU}")
    I("s_waitcnt lgkmcnt(6)")
    I("v_readfirstlane_b32 s80, v8")
    I(f"v_lshl_add_u64 {vr(VSE,2)}, {vr(VSE,2)}, 0, {vr(LP,2)}")
    I(f"ds_read_b128 {vr(EA,4)}, v{VSE+1}")
    for q in range(4):
        I(f"v_readlane_b32 s{44+q}, v{VSE+2}, {16*q}")
    I(f"s_cmp_gt_u32 s64, {LIST_MAX}")
    I("s_cselect_b32 s81, 1, 0")
    I("s_or_b32 s80, s80, s81")
    if OPT["force_slow"]:
        I("s_branch K_SLOW")
    I("s_cbranch_scc1 K_SLOW")
    a_reads(0)
    for q in range(4):
        if OPT["cut"] & 8:
            I(f"s_mov_b32 s{44+q}, 0")
        I(f"s_bitset1_b32 s{44+q}, s72")
    I("s_or_b32 s82, s44, s45")
    I("s_or_b32 s83, s46, s47")
    I("s_or_b32 s82, s82, s83")
    I("s_bfm_b32 s83, s72, 0")
    I("s_lshr_b32 s83, s83, 4")
    I("s_mov_b32 s73, 0")
    I("s_waitcnt lgkmcnt(5)")
    gathers(XB + 16, 0, 4)
    i_reads(2)
    for k in range(3):
        I(f"v_add_u32 v{EP+k}, v{EP+k}, v{LC}")
    I(f"v_cmp_lt_i32 s[48:49], 2, v{EP+3}")
    I("s_cmp_eq_u32 s72, 0")
    I("s_cbranch_scc1 K_JOIN")
    def mfma(x):
        I(f"v_mfma_f32_32x32x16_bf16 {vr(Y,16)}, {vr(A,4)}, {vr(WCB,4)}, {vr(x,16)}")
    stamp(14)
    I("s_waitcnt vmcnt(4) lgkmcnt(4)")
    mfma(XB)
    stamp(15)
    a_reads(1)
    nth = len(str(OPT["prio"]).split("_")) if OPT["prio"] else 0
    if OPT["prio"]:
        I(f"s_setprio {nth}")
    I("s_nop 2")
    L("K_LOOP")
    if OPT["prio"]:
        I("s_sub_u32 s74, s72, s73")
        for k, t_ in enumerate(int(x) for x in str(OPT["prio"]).split("_")):
            I(f"s_cmp_gt_u32 s74, {t_}")
            I("s_cbranch_scc1 K_STEP0")
            I(f"s_setprio {nth-1-k}")
    for u in range(4):
        bb, hh = u >> 1, u & 1
        x = XB + 16 * bb + 8 * hh
        t = Y + 8 * hh
        L(f"K_STEP{u}")
        for i in range(8):
            I(f"v_exp_f32 v{t+i}, v{t+i}")
        for i in range(4):
            I(f"v_lshlrev_b64 {vr(x+2*i,2)}, 16, {vr(x+2*i,2)}")
        for i in range(4):
            I(f"v_pk_fma_f32 {vr(t+2*i,2)}, {vr(t+2*i,2)}, {vr(EA+2*(i&1),2)}, s[16:17] clamp")
        I(f"v_pk_mul_f32 {vr(P,2)}, {vr(t,2)}, {vr(t+4,2)}")
        I(f"v_pk_mul_f32 {vr(P+2,2)}, {vr(t+2,2)}, {vr(t+6,2)}")
        I(f"v_pk_mul_f32 {vr(Q,2)}, {vr(x,2)}, {vr(t+4,2)}")
        I(f"v_pk_mul_f32 {vr(Q+2,2)}, {vr(x+2,2)}, {vr(t+6,2)}")
        I(f"v_pk_add_f32 {vr(SS,2)}, {vr(t,2)}, {vr(t+4,2)}")
        I(f"v_pk_add_f32 {vr(SS+2,2)}, {vr(t+2,2)}, {vr(t+6,2)}")
        I(f"v_pk_fma_f32 {vr(Q,2)}, {vr(x+4,2)}, {vr(t,2)}, {vr(Q,2)}")
        I(f"v_pk_fma_f32 {vr(Q+2,2)}, {vr(x+6,2)}, {vr(t+2,2)}, {vr(Q+2,2)}")
        if OPT["sup"]:
            I(f"s_bitcmp1_b32 s83, {u}")
            I(f"s_cselect_b32 s{S_TAB+2}, s{S_TAB+2}, 0")
        if hh == 0:
            I("s_waitcnt lgkmcnt(0)")
            if not OPT["cut"] & 4:
                gathers(XB + 16 * bb, 0, 2)
            for i in range(4):
                I(f"v_rcp_f32 v{P+i}, v{P+i}")
        else:
            I("s_waitcnt vmcnt(2)")
            if not OPT["cut"] & 1:
                mfma(XB + 16 * (1 - bb))
            for i in range(4):
                I(f"v_rcp_f32 v{P+i}, v{P+i}")
            if not OPT["cut"] & 4:
                gathers(XB + 16 * bb, 2, 4)
        I(f"v_pk_fma_f32 {vr(NUM,2)}, {vr(Q,2)}, {vr(P,2)}, {vr(NUM,2)}")
        I(f"v_pk_fma_f32 {vr(DEN,2)}, {vr(SS,2)}, {vr(P,2)}, {vr(DEN,2)}")
        I(f"v_pk_fma_f32 {vr(NUM+2,2)}, {vr(Q+2,2)}, {vr(P+2,2)}, {vr(NUM+2,2)}")
        I(f"v_pk_fma_f32 {vr(DEN+2,2)}, {vr(SS+2,2)}, {vr(P+2,2)}, {vr(DEN+2,2)}")
        if hh == 1:
            if not OPT["cut"] & 4:
                i_reads(bb + 3)
            if not OPT["cut"] & 2:
                a_reads(bb + 2)
        I(f"s_bitcmp1_b32 s82, {u+1}")
        I(f"s_cbranch_scc1 K_FLUSH{u}")
        L(f"K_BACK{u}")
    I(f"v_lshl_add_u64 {vr(VRA,2)}, {vr(VRA,2)}, 0, s[20:21]")
    I("s_lshr_b32 s82, s82, 4")
    I("s_lshr_b32 s83, s83, 4")
    I("s_add_u32 s73, s73, 4")
    I("s_branch K_LOOP")
    for u in range(4):
        L(f"K_FLUSH{u}")
        I(f"s_add_u32 s74, s73, {u+1}")
        for h in range(2):
            I(f"s_bitcmp1_b32 s{44+2*h}, s74")
            I("s_cselect_b32 s75, 0xffff, 0")
            I(f"s_bitcmp1_b32 s{45+2*h}, s74")
            I("s_cselect_b32 s80, 0xffff0000, 0")
            I(f"s_or_b32 {'exec_hi' if h else 'exec_lo'}, s75, s80")
        I(f"ds_write2_b32 v{VSE}, v{DEN}, v{DEN+1} offset0:0 offset1:16")
        I(f"ds_write2_b32 v{VSE}, v{DEN+2}, v{DEN+3} offset0:32 offset1:48")
        I(f"ds_write2_b32 v{VSE}, v{NUM}, v{NUM+1} offset0:64 offset1:80")
        I(f"ds_write2_b32 v{VSE}, v{NUM+2}, v{NUM+3} offset0:96 offset1:112")
        I("s_cmp_eq_u32 s74, s72")
        I("s_cbranch_scc1 K_JOIN")
        I(f"v_lshl_add_u64 {vr(VSE,2)}, {vr(VSE,2)}, 0, s[24:25]")
        I(f"ds_read_b128 {vr(DEN,4)}, v{VOOB}")
        I(f"ds_read_b128 {vr(NUM,4)}, v{VOOB}")
        I(f"ds_read_b128 {vr(EA,4)}, v{VSE+1}")
        I("s_mov_b64 exec, -1")
        I("s_waitcnt lgkmcnt(0)")
        I(f"s_branch K_BACK{u}")

    L("K_JOIN")
    I("s_mov_b64 exec, -1")
    stamp(16)
    I("s_cmp_lt_u32 s3, 13")
    I("s_waitcnt lgkmcnt(0)")
    I("s_barrier")
    stamp(17)
    I("s_cbranch_scc0 K_FIN")
    for k in range(3):
        I(f"ds_read_b128 {vr(8+8*k,4)}, v{EP+k}")
    for k in range(3):
        I(f"ds_read_b128 {vr(12+8*k,4)}, v{EP+k} offset:256")
    I("s_cmp_lg_u64 s[48:49], 0")
    I("s_waitcnt lgkmcnt(3)")
    for k in (1, 2):
        for i in range(2):
            I(f"v_pk_add_f32 {vr(8+2*i,2)}, {vr(8+2*i,2)}, {vr(8+8*k+2*i,2)}")
    I("s_waitcnt lgkmcnt(0)")
    for k in (1, 2):
        for i in range(2, 4):
            I(f"v_pk_add_f32 {vr(8+2*i,2)}, {vr(8+2*i,2)}, {vr(8+8*k+2*i,2)}")
    I("s_cbranch_scc1 R_LONG")
    L("K_MATH")
    I("v_pk_add_f32 v[8:9], v[8:9], s[18:19]")
    I("v_pk_add_f32 v[10:11], v[10:11], s[18:19]")
    for c in range(4):
        I(f"v_rcp_f32 v{8+c}, v{8+c}")
    I("s_nop 0")
    I(f"v_pk_fma_f32 v[8:9], v[12:13], v[8:9], {vr(UR,2)}")
    I(f"v_pk_fma_f32 v[10:11], v[14:15], v[10:11], {vr(UR+2,2)}")
    for c in range(4):
        I(f"v_max_f32 v{8+c}, 0, v{8+c}")
    I(f"v_pk_add_f32 v[8:9], v[8:9], {vr(XR,2)}")
    I(f"v_pk_add_f32 v[10:11], v[10:11], {vr(XR+2,2)}")
    I("v_cvt_pk_bf16_f32 v12, v8, v9")
    I("v_cvt_pk_bf16_f32 v13, v10, v11")
    I(f"buffer_store_dwordx2 v[12:13], v{VOUT}, {sr(S_X,4)}, 0 offen")
    L("K_FIN")
    stamp(18)
    stamp_out()
    L("K_END")
    I("s_endpgm")

    L("R_PUB2")
    I("s_mov_b64 exec, vcc")
    I(f"ds_read_b128 {vr(C0+8,4)}, v4 offset:{IMG+128}")
    I(f"ds_read_b128 {vr(C0+12,4)}, v4 offset:{IMG+B2+128}")
    I("v_and_b32 v10, 7, v0")
    I(f"v_mul_u32_u24 v10, {3*INC}, v10")
    I(f"v_add_u32 v10, {24*INC}, v10")
    I("s_waitcnt lgkmcnt(0)")
    for b in range(2):
        w3 = C0 + 11 + 4 * b
        I(f"v_and_b32 v{w3}, 0x3f3f3f, v{w3}")
        for j in range(3):
            I(f"v_add_u32 v11, {j*INC}, v10")
            I(f"v_cmp_le_u32 s[72:73], v{8+b}, v11")
            I(f"v_or_b32 v11, {0x3f << (8*j)}, v{w3}")
            I("s_nop 0")
            I(f"v_cndmask_b32 v{w3}, v{w3}, v11, s[72:73]")
    I(f"v_add_u32 v8, {hex(LINE_STRIDE)}, v6")
    I(f"v_add_u32 v9, {hex(LINE_STRIDE)}, v7")
    tagit(C0 + 8)
    tagit(C0 + 12)
    I(f"global_store_dwordx4 v8, {vr(C0+8,4)}, {WS} sc1")
    I(f"global_store_dwordx4 v9, {vr(C0+12,4)}, {WS} sc1")
    I("s_branch A_PUBD")
    retry(RA, True, "B_P0")
    L("R_MORE")
    I("s_cmp_lg_u32 s79, 0")
    I("s_cbranch_scc1 R_REQ")
    for k in range(4):
        I(f"s_lshr_b32 s{74+k}, s{64+k}, 7")
        I(f"s_and_b32 s{74+k}, s{74+k}, 0x01010101")
        I(f"s_mul_i32 s{74+k}, s{74+k}, 0xff")
    I("s_mov_b64 s[68:69], s[74:75]")
    I("s_mov_b64 s[70:71], s[76:77]")
    I(f"v_add_u32 v2, {hex(LINE_STRIDE)}, v2")
    I(f"v_add_u32 v3, {hex(LINE_STRIDE)}, v3")
    reload(RB, "B_N1")
    poll(RB, False, "B_P1")
    ranks(RB, CB, KB, MB)
    I("s_or_b32 s78, s78, 1")
    more_test()
    I("s_cbranch_scc0 B_RDONE")
    I("s_mov_b32 s79, 1")
    I("s_branch R_REQ")
    retry(RB, False, "B_P1")
    L("R_TIMEOUT")
    I("s_mov_b32 s79, 3")
    for k in range(6):
        I(f"s_mov_b64 s[{MA+2*k}:{MA+2*k+1}], 0")
    I(f"v_mov_b32 v35, v{TG+3}")
    L("R_REQ")
    I("v_mov_b32 v6, s79")
    I(f"ds_or_b32 v1, v6 offset:{FLAG}")
    I("s_branch B_RDONE")
    def bump():
        I(f"v_mov_b32 v48, {hex(CTL_OFF)}")
        I("v_mov_b32 v50, 0x1000000")
        I("v_mov_b32 v51, 0")
        I("s_mov_b64 exec, 1")
        I(f"global_atomic_add_x2 v48, v[50:51], {WS} offset:8 sc1")
        I("s_mov_b64 exec, -1")
    L("R_EXTRA")
    I("s_bitcmp1_b32 s78, 0")
    I("s_cbranch_scc0 R_X2")
    I("s_waitcnt lgkmcnt(0)")
    lookup(CB)
    scatter(RB, CB, KB, MB)
    L("R_X2")
    I("s_bitcmp1_b32 s78, 1")
    I("s_cbranch_scc0 B_XDONE")
    I("s_cmp_eq_u32 s3, 1")
    I("s_cbranch_scc1 R_PAD")
    I("s_add_u32 s71, s66, 1")
    I("v_cvt_f32_u32 v48, s71")
    I("v_cvt_f32_u32 v49, s66")
    I("s_lshl_b32 s73, s67, 2")
    I("s_mul_i32 s71, s71, s73")
    I("v_rcp_f32 v48, v48")
    I("v_rcp_f32 v49, v49")
    I("v_cvt_f32_u32 v50, s71")
    I("v_cvt_f32_u32 v51, s73")
    I("v_fma_f32 v50, -v50, v49, v51")
    I(f"v_mov_b32 v51, {hex(f32(0.125))}")
    def stream_of(dst, src, half):
        I(f"v_cvt_f32_u32 v{dst}, v{src}")
        I(f"v_fma_f32 v{dst}, v{dst}, v51, {half}")
        I(f"v_mul_f32 v52, v{dst}, v48")
        I(f"v_fma_f32 v{dst}, v{dst}, v49, v50")
        I(f"v_max_f32 v{dst}, v{dst}, v52")
        I(f"v_cvt_u32_f32 v{dst}, v{dst}")
    stream_of(53, 3, "-0.5")
    I("s_cmp_eq_u32 s3, 2")
    I("s_cbranch_scc1 R_EPI")
    I("s_cmp_eq_u32 s3, 3")
    I("s_cbranch_scc1 R_FIRST")
    I("v_min_u32 v55, s73, v53")
    I("v_mad_u32_u24 v55, v53, s66, v55")
    I("v_lshrrev_b32 v56, 3, v3")
    I("v_sub_u32 v55, v56, v55")
    I("v_lshlrev_b32 v55, v55, 1")
    I("v_lshlrev_b32 v56, 4, v53")
    I("s_mov_b64 exec, s[82:83]")
    I(f"ds_or_b32 v56, v55 offset:{STR + 8}")
    I("s_mov_b64 exec, -1")
    I("s_branch B_XDONE")
    L("R_FIRST")
    I("v_mov_b32 v54, -1")
    I("v_cndmask_b32 v53, 63, v53, s[82:83]")
    I(f"v_mul_u32_u24 v59, {EAU_STRIDE//4}, v5")
    I(f"v_add_u32 v59, {EAU_OFF}, v59")
    I("v_mov_b32_dpp v54, v53 wave_shr:1 row_mask:0xf bank_mask:0xf")
    I("v_lshl_add_u32 v58, v54, 2, v5")
    I(f"v_mul_i32_i24 v58, {SLOT_STRIDE//4}, v58")
    I(f"v_add_u32 v58, {SLOT_OFF}, v58")
    I("v_lshlrev_b32 v54, 4, v54")
    I("v_lshlrev_b32 v53, 4, v53")
    L("R_FIRST1")
    I("v_cmp_lt_i32 s[74:75], v54, v53")
    I("s_mov_b64 exec, s[74:75]")
    I("s_cbranch_execz R_FIRST2")
    I("v_add_u32 v54, 16, v54")
    I(f"v_add_u32 v58, {SLOT_STRIDE}, v58")
    I(f"ds_write_b64 v54, v[58:59] offset:{STR}")
    I("s_branch R_FIRST1")
    L("R_FIRST2")
    I("s_mov_b64 exec, -1")
    I("s_branch B_XDONE")
    L("R_EPI")
    stream_of(54, 7, "0.5")
    I("v_sub_u32 v59, v53, v54")
    I("v_lshl_add_u32 v56, v54, 2, v5")
    I(f"v_mul_u32_u24 v56, {SLOT_STRIDE//4}, v56")
    I(f"v_add_u32 v56, {SLOT_OFF}, v56")
    I("v_cmp_lt_i32 s[74:75], 0, v59")
    I("v_cmp_lt_i32 s[76:77], 1, v59")
    I(f"v_add_u32 v57, {SLOT_STRIDE}, v56")
    I(f"v_add_u32 v58, {2*SLOT_STRIDE}, v56")
    I(f"v_cndmask_b32 v57, v{VOOB}, v57, s[74:75]")
    I(f"v_cndmask_b32 v58, v{VOOB}, v58, s[76:77]")
    I("v_lshlrev_b32 v55, 2, v5")
    I(f"ds_write_b128 v55, v[56:59] offset:{EPI}")
    I("s_branch B_XDONE")
    L("R_PAD")
    I(f"v_mov_b32 v52, {N}")
    I(f"v_add_u32 v53, {LIST_OFF - 8}, v3")
    I("v_cmp_lt_u32 s[74:75], v6, v2")
    I("s_mov_b64 exec, s[74:75]")
    I("ds_write_b32 v53, v52 offset:4")
    I("v_cmp_eq_u32 s[74:75], 0, v6")
    I("s_mov_b64 exec, s[74:75]")
    I("ds_write_b32 v53, v52")
    I("s_mov_b64 exec, 0x3f")
    I("s_add_u32 s71, s64, s85")
    I("v_add_u32 v53, s71, v5")
    I("ds_write_b32 v53, v52")
    I("s_mov_b64 exec, -1")
    I("s_cmp_eq_u32 s2, 0")
    I("s_cbranch_scc0 B_XDONE")
    bump()
    I("s_branch B_XDONE")
    L("R_FLAGS")
    I("s_add_u32 s43, s43, 1")
    I(f"s_cmp_gt_u32 s43, {POLL_LIMIT}")
    I("s_cbranch_scc1 R_FLAGT")
    I("s_sleep 2")
    I("s_mov_b64 exec, vcc")
    I(f"global_load_dword v35, v34, {WS} sc1")
    I("s_waitcnt vmcnt(0)")
    I(f"v_cmp_ne_u32 vcc, v{TG+3}, v35")
    I("s_mov_b64 exec, -1")
    I("s_branch B_XDONE")
    L("R_FLAGT")
    I("v_mov_b32 v52, 3")
    I(f"ds_or_b32 v1, v52 offset:{FLAG}")
    I("s_branch B_FDONE")
    L("R_LONG")
    I("s_mov_b32 s64, 2")
    I("s_mov_b64 vcc, s[48:49]")
    L("R_LONG1")
    I("s_mov_b64 exec, vcc")
    I(f"v_add_u32 v{EP+2}, {SLOT_STRIDE}, v{EP+2}")
    I(f"ds_read_b128 v[16:19], v{EP+2}")
    I(f"ds_read_b128 v[20:23], v{EP+2} offset:256")
    I("s_add_u32 s64, s64, 1")
    I("s_waitcnt lgkmcnt(0)")
    for i in range(4):
        I(f"v_pk_add_f32 {vr(8+2*i,2)}, {vr(8+2*i,2)}, {vr(16+2*i,2)}")
    I(f"v_cmp_lt_i32 vcc, s64, v{EP+3}")
    I("s_cbranch_vccnz R_LONG1")
    I("s_mov_b64 exec, -1")
    I("s_branch K_MATH")

    L("K_SLOW")
    I("s_load_dwordx8 s[4:11], s[0:1], 0")
    I("s_load_dwordx2 s[12:13], s[0:1], 40")
    I("s_load_dwordx2 s[14:15], s[0:1], 64")
    I("s_setprio 0")
    I("s_waitcnt vmcnt(0) lgkmcnt(0)")
    I("s_cmp_eq_u32 s3, 15")
    I("s_cselect_b32 s71, s80, 0")
    I("s_and_b32 s71, s71, 2")
    I("s_cbranch_scc0 K_SL0")
    bump()
    I("s_waitcnt vmcnt(0)")
    L("K_SL0")
    WB2, WV2 = 40, 72
    I("v_lshrrev_b32 v6, 1, v5")
    I("v_add_u32 v7, 4096, v6")
    for (w, p_) in ((WB2, 12), (WV2, 14)):
        for hf in range(2):
            for k in range(16):
                I(f"global_load_ushort v{w + 16*hf + k}, v{6 + hf}, s[{p_}:{p_+1}] offset:{2*k*128}")
                I(f"global_load_ushort v{8 + k}, v{6 + hf}, s[{p_}:{p_+1}] offset:{(2*k+1)*128}")
            I("s_waitcnt vmcnt(0)")
            for k in range(16):
                I(f"v_lshl_or_b32 v{w + 16*hf + k}, v{8 + k}, 16, v{w + 16*hf + k}")
    for i in range(4):
        I(f"v_mov_b32 v{28+i}, 0")
    I("v_lshlrev_b32 v8, 4, v0")
    for k in range(4):
        I(f"ds_write_b128 v8, v[28:31] offset:{SLOT_OFF + k*16384}")
    I(f"ds_read_u16 v18, v6 offset:{WC_OFF}")
    I(f"s_mov_b32 s18, {hex(f32(1e-6))}")
    I("s_mov_b32 s19, s18")
    I(f"s_mov_b32 s16, {hex(f32(-LOG2E))}")
    I(f"v_lshl_add_u32 v17, v124, 2, v{LC}")
    I("v_lshlrev_b32 v10, 1, v5")
    I("s_waitcnt lgkmcnt(0)")
    I("v_lshlrev_b32 v18, 16, v18")
    I("s_barrier")
    I("v_lshlrev_b32 v8, 2, v0")
    I("v_lshlrev_b32 v9, 1, v0")
    I("s_lshl_b32 s70, s3, 6")
    L("K_SLOOP")
    I(f"global_load_dword v11, v8, {sr(P_DST,2)}")
    I(f"global_load_dword v12, v8, {sr(P_SRC,2)}")
    I(f"global_load_ushort v13, v9, {sr(P_E,2)}")
    I("s_waitcnt vmcnt(0)")
    I("v_and_b32 v14, 0xff, v11")
    I("v_cmp_eq_u32 s[74:75], s2, v14")
    L("K_SIN")
    I("s_cmp_eq_u64 s[74:75], 0")
    I("s_cbranch_scc1 K_SNEXT")
    I("s_ff1_i32_b64 s73, s[74:75]")
    I("s_bitset0_b64 s[74:75], s73")
    I("v_readlane_b32 s79, v11, s73")
    I("v_readlane_b32 s80, v12, s73")
    I("v_readlane_b32 s81, v13, s73")
    I("s_lshr_b32 s79, s79, 8")
    I(f"s_mul_i32 s76, s79, {EAU_STRIDE}")
    I(f"s_add_u32 s76, s76, {EAU_OFF + 512}")
    I(f"s_mul_i32 s79, s79, {ACC_STRIDE}")
    I("s_lshl_b32 s80, s80, 7")
    I("s_add_u32 s78, s80, 64")
    I(f"s_load_dwordx16 s[36:51], {sr(P_X,2)}, s80")
    I(f"s_load_dwordx16 s[52:67], {sr(P_X,2)}, s78")
    I("s_lshl_b32 s81, s81, 16")
    I("v_add_u32 v15, s76, v17")
    I("v_add_u32 v16, s79, v10")
    I("ds_read_b32 v22, v15")
    I("v_mul_f32 v20, s81, v18")
    I("v_mov_b32 v21, 0")
    I("s_waitcnt lgkmcnt(0)")
    for k in range(32):
        I(f"v_dot2_f32_bf16 v20, s{36+k}, v{WB2+k}, v20")
        I(f"v_dot2_f32_bf16 v21, s{36+k}, v{WV2+k}, v21")
    I("s_nop 2")
    I("v_fma_f32 v20, v20, s16, v22")
    I("v_exp_f32 v20, v20")
    I("s_nop 0")
    I("v_add_f32 v20, 1.0, v20")
    I("v_rcp_f32 v20, v20")
    I("s_nop 0")
    I("v_mul_f32 v21, v21, v20")
    I("v_cvt_f64_f32 v[24:25], v20")
    I("v_cvt_f64_f32 v[26:27], v21")
    I(f"ds_add_f64 v16, v[24:25] offset:{SLOT_OFF}")
    I(f"ds_add_f64 v16, v[26:27] offset:{SLOT_OFF + 512}")
    I("s_branch K_SIN")
    L("K_SNEXT")
    I("s_add_u32 s70, s70, 1024")
    I("v_add_u32 v8, 4096, v8")
    I("v_add_u32 v9, 2048, v9")
    I(f"s_cmp_lt_u32 s70, {E}")
    I("s_cbranch_scc1 K_SLOOP")
    I("v_lshrrev_b32 v6, 4, v0")
    I(f"v_mul_u32_u24 v6, {ACC_STRIDE}, v6")
    I(f"v_lshl_add_u32 v6, v{LC}, 1, v6")
    I("s_waitcnt lgkmcnt(0)")
    I("s_barrier")
    I("s_cmp_lt_u32 s3, 13")
    I("s_cbranch_scc0 K_FIN")
    I(f"ds_read_b128 v[16:19], v6 offset:{SLOT_OFF}")
    I(f"ds_read_b128 v[20:23], v6 offset:{SLOT_OFF+16}")
    I(f"ds_read_b128 v[24:27], v6 offset:{SLOT_OFF+512}")
    I(f"ds_read_b128 v[28:31], v6 offset:{SLOT_OFF+528}")
    I("s_waitcnt lgkmcnt(0)")
    for c in range(8):
        I(f"v_cvt_f32_f64 v{8+c}, {vr(16+2*c,2)}")
    I("s_branch K_MATH")
    L("SLOW_END")

hdr = open("standalone__edge_featured_mpnn_gatedgcn__graph.s.ref").read().split("\n")
for line in hdr:
    if line.startswith("; Override"):
        break
    o(line)
o(f"; @launch kernel={KNAME} grid=(256,1,1) block=(1024,1,1) lds={LDS_TOTAL}")
o('.amdgcn_target "amdgcn-amd-amdhsa--gfx950"')
o(".text")
gen()
o('.section .rodata,"a"')
o(".p2align 6")
o(f".amdhsa_kernel {KNAME}")
o("  .amdhsa_next_free_vgpr 128")
o("  .amdhsa_next_free_sgpr 102")
o("  .amdhsa_accum_offset 128")
o("  .amdhsa_group_segment_fixed_size 0")
o("  .amdhsa_kernarg_size 96")
o("  .amdhsa_user_sgpr_count 2")
o("  .amdhsa_user_sgpr_kernarg_segment_ptr 1")
o("  .amdhsa_system_sgpr_workgroup_id_x 1")
o(".end_amdhsa_kernel")
open(sys.argv[1], "w").write("\n".join(out) + "\n")
```

```python
import sys, struct

OPT = dict(stamp=0, sts="2_3_4_5_6_7", force_slow=0, prio="16_8_4", spin=0, spinat=18, hack=0, sleep=2, delay=0,
           codepf=1, gprio=1, pf=0, pf2=0, pre=1, cfirst=0, gbar=0, init1=1, pf3=0, pfw=0, drain=0, pf4=0, tlb=0, gl=0, pf5=0, pfa=0, sup=1, cprio=1, nog=0, gsc="sc1", cut=0, ef=0, fs=4)
for a in sys.argv[2:]:
    k, v = a.split("=")
    OPT[k] = int(v) if v.lstrip("-").isdigit() else v

KNAME = "standalone__edge_featured_mpnn_gatedgcn__graph_kernel"
N = 12500
E = 800000
CHUNK = 3136
TAB_ROWS = N + 1
CTL_OFF = 0x380000
FLG_OFF = 0x390000
CELL_OFF = 0x400000
BIN_STRIDE = 32768 + 256
LINE_STRIDE = 0x900000
STAMP_OFF = 0x4000000
LOG2E = 1.4426950408889634
KEXP = 62
POLL_LIMIT = 100000

X_OFF = 0
WC_OFF = 8192
C1_OFF = 8448
C2_OFF = 9472
FLAG = C2_OFF + 256
SYNC = C2_OFF + 260
TAGS = C2_OFF + 272
BASE = C2_OFF + 512
STR = C2_OFF + 1024
EPI = C2_OFF + 2048
IMG = C2_OFF + 3072
IMG_STRIDE = 272
EAU_OFF = IMG + 256 * IMG_STRIDE
EAU_STRIDE = 800
W_OFF = EAU_OFF + 52 * EAU_STRIDE
LDS_TOTAL = W_OFF + 32768
LIST_OFF = W_OFF
LIST_MAX = 31 * 16 * 32
SLOT_OFF = IMG
SLOT_STRIDE = 576
ACC_STRIDE = 1056
OOB = 0x30000
assert W_OFF % 128 == 0 and 117 * SLOT_STRIDE <= 256 * IMG_STRIDE and LDS_TOTAL <= 163840
INC = 0x5556

def f32(x):
    return struct.unpack("<I", struct.pack("<f", x))[0]

out = []
def o(s=""):
    out.append(s)
def I(s):
    out.append("    " + s)
def L(s):
    out.append(s + ":")
def vr(a, n=1):
    return f"v{a}" if n == 1 else f"v[{a}:{a+n-1}]"
def sr(a, n=1):
    return f"s{a}" if n == 1 else f"s[{a}:{a+n-1}]"
def sdwa(sel1):
    return f"dst_sel:DWORD dst_unused:UNUSED_PAD src0_sel:DWORD src1_sel:{sel1}"

P_X, P_E, P_SRC, P_DST, P_WA, P_WB, P_WC, P_WU, P_WV, P_OUT, P_DBG, P_WS = 4, 6, 8, 10, 12, 14, 16, 18, 20, 22, 24, 26
S_TAB, S_X = 28, 32
WS = sr(P_WS, 2)

STS = [int(x) for x in str(OPT["sts"]).split("_")] if OPT["stamp"] else []
RTS = {12: 28, 17: 29} if OPT["stamp"] == 2 else {}
def stamp(i):
    if OPT["spin"] and OPT["spinat"] == i:
        lab = f"SPIN_{len(out)}"
        I("s_cselect_b32 s92, 1, 0")
        L(lab)
        I("s_memrealtime s[90:91]")
        I("s_waitcnt lgkmcnt(0)")
        I("s_sub_u32 s90, s90, s98")
        I(f"s_cmp_lt_u32 s90, {OPT['spin']}")
        I(f"s_cbranch_scc1 {lab}")
        I("s_cmp_lg_u32 s92, 0")
    if not OPT["stamp"]:
        return
    if i == 0:
        I("s_memrealtime s[86:87]")
    elif i == 1:
        I("s_memtime s[88:89]")
    elif i in STS:
        k = 90 + 2 * STS.index(i)
        I(f"s_memtime s[{k}:{k+1}]")
        if i in RTS:
            k = 90 + 2 * STS.index(RTS[i])
            I(f"s_memrealtime s[{k}:{k+1}]")
def stamp_out():
    if not OPT["stamp"]:
        return
    I("s_mov_b64 exec, -1")
    I("s_waitcnt vmcnt(0) lgkmcnt(0)")
    I("s_memtime s[80:81]")
    I("s_memrealtime s[82:83]")
    I("s_waitcnt lgkmcnt(0)")
    I("v_writelane_b32 v127, s80, 30")
    I("v_writelane_b32 v127, s82, 31")
    I("v_writelane_b32 v127, s86, 0")
    I("v_writelane_b32 v127, s88, 1")
    for i in list(range(2, 19)) + list(range(20, 30)):
        I(f"v_writelane_b32 v127, s{90 + 2*STS.index(i) if i in STS else 88}, {i}")
    I("s_lshl_b32 s84, s2, 4")
    I("s_add_u32 s84, s84, s3")
    I("s_lshl_b32 s84, s84, 7")
    I(f"s_add_u32 s84, s84, {hex(STAMP_OFF)}")
    I("v_and_b32 v1, 63, v0")
    I("v_lshl_add_u32 v1, v1, 2, s84")
    I("s_mov_b64 exec, 0xffffffff")
    I(f"global_store_dword v1, v127, {WS}")

def srd(d, p, size):
    I(f"s_mov_b64 {sr(d,2)}, {sr(p,2)}")
    I(f"s_mov_b32 s{d+2}, {hex(size)}")
    I(f"s_mov_b32 s{d+3}, 0x20000")

D, S, EE = 16, 20, 24
AP = 104
TG = 120
B2 = 128 * IMG_STRIDE

def edge_loads(lo=0, hi=3):
    ins = [f"global_load_dwordx4 {vr(D,4)}, v10, {sr(P_DST,2)}",
           f"global_load_dwordx4 {vr(S,4)}, v10, {sr(P_SRC,2)}",
           f"global_load_dwordx2 {vr(EE,2)}, v11, {sr(P_E,2)}"]
    for x in ins[lo:hi]:
        I(x)

def binning(waits):
    B4, RK, PA = 28, 32, 36
    I(f"v_mov_b32 v14, {INC}")
    I(f"s_mov_b32 s68, {47*INC}")
    I("s_mov_b32 s69, 0x05040100")
    I("s_mov_b32 s70, 0x07060100")
    if waits:
        I("s_waitcnt vmcnt(2)")
        stamp(3)
    for i in range(4):
        I(f"v_lshlrev_b32_sdwa v{B4+i}, 2, v{D+i} {sdwa('BYTE_0')}")
        I(f"ds_add_rtn_u32 v{RK+i}, v{B4+i}, v14 offset:{C1_OFF}")
    for i in range(4):
        I(f"v_mul_u32_u24 v{B4+i}, {IMG_STRIDE//4}, v{B4+i}")
        I(f"v_lshrrev_b32 v{D+i}, 8, v{D+i}")
    for i in range(4):
        I("s_waitcnt lgkmcnt(3)")
        I(f"v_min_u32 v{RK+i}, s68, v{RK+i}")
        I(f"v_lshrrev_b32 v{RK+i}, 14, v{RK+i}")
        I(f"v_lshl_add_u32 v{PA+i}, v{RK+i}, 2, v{B4+i}")
        I(f"v_and_b32 v{RK+i}, 3, v{RK+i}")
        I(f"v_or3_b32 v{RK+i}, v{PA+i}, 12, v{RK+i}")
        I(f"ds_write_b8 v{RK+i}, v{D+i} offset:{IMG}")
    if waits:
        I("s_waitcnt vmcnt(0)")
        stamp(4)
    for i in range(4):
        if OPT["hack"]:
            I(f"v_and_b32 v{S+i}, {OPT['hack']}, v{S+i}")
        I(f"v_perm_b32 v{S+i}, v{EE+(i>>1)}, v{S+i}, s{69+(i&1)}")
        I(f"ds_write_b32 v{PA+i}, v{S+i} offset:{IMG}")

def copy_consts():
    I("s_lshr_b32 s64, s2, 7")
    I("s_lshl_b32 s64, s64, 14")
    I(f"s_add_u32 s64, s64, {hex(CELL_OFF)}")
    I(f"v_mul_u32_u24 v6, {BIN_STRIDE//4}, v5")
    I("v_lshl_add_u32 v6, v0, 4, v6")
    I("v_add_u32 v6, s64, v6")
    I(f"v_add_u32 v7, {128*BIN_STRIDE}, v6")
    I(f"s_mul_i32 s64, s2, {BIN_STRIDE}")
    I(f"s_add_u32 s64, s64, {hex(CELL_OFF)}")
    I("v_lshl_add_u32 v2, v0, 4, s64")
    I("v_add_u32 v3, 0x4000, v2")
    I("s_mov_b32 s36, 0x0f0f0f0f")
    I("s_mov_b32 s37, s36")
    I(f"s_mov_b32 s38, {12*INC}")
    I(f"s_mov_b32 s39, {24*INC}")
    I("s_mov_b32 s40, 0xc000")
    I("s_mov_b32 s41, 0xffc0c0c0")
    I(f"s_mov_b32 s42, {49 << 16}")
    I("s_mov_b32 s43, 0")
    I("v_mov_b32 v1, 0")
    I(f"s_mov_b32 s{S_TAB}, s{P_WS}")
    I(f"s_or_b32 s{S_TAB+1}, s{P_WS+1}, 0x1000000")
    I(f"s_mov_b32 s{S_TAB+2}, {0 if OPT['nog'] else TAB_ROWS}")
    I(f"s_mov_b32 s{S_TAB+3}, 0x20000")

def lds_init():
    I("v_add_u32 v5, s2, v3")
    I("v_and_b32 v5, 127, v5")
    I(f"v_mul_u32_u24 v4, {IMG_STRIDE}, v5")
    I("v_lshl_add_u32 v4, v2, 4, v4")
    I("v_lshlrev_b32 v5, 2, v5")
    I("v_mov_b32 v12, 0")
    I("v_mov_b32 v13, 0x3f3f3f")
    I(f"ds_write2st64_b32 v5, v12, v12 offset0:{C1_OFF//256} offset1:{C1_OFF//256+2}")
    for r in range(1 if OPT["init1"] else 2):
        for b in range(2):
            I(f"ds_write_b32 v4, v13 offset:{IMG + b*B2 + r*128 + 12}")
def edge_addr():
    I(f"s_mul_i32 s64, s2, {CHUNK*4}")
    I("v_lshl_add_u32 v10, v0, 4, s64")
    I("v_lshrrev_b32 v11, 1, v10")

def gen():
    o(".p2align 8")
    o(f".globl {KNAME}")
    o(f".type {KNAME},@function")
    L(KNAME)
    I("s_cmp_ge_u32 s2, 256")
    I("s_cbranch_scc1 K_END")
    stamp(0); stamp(1)
    I("s_load_dwordx16 s[4:19], s[0:1], 0")
    I("s_load_dwordx8 s[20:27], s[0:1], 64")
    if OPT["spin"]:
        I("s_memrealtime s[98:99]")
    I("v_lshrrev_b32 v1, 6, v0")
    I("v_and_b32 v2, 7, v0")
    I("v_readfirstlane_b32 s3, v1")
    I("v_lshrrev_b32 v3, 3, v0")
    I("s_mov_b32 s79, 0")
    I("s_cmp_ge_u32 s3, 12")
    I("s_cbranch_scc1 G_ENTRY")

    I("s_cmp_ge_u32 s3, 2")
    I("s_cbranch_scc1 A_NOPF")
    if OPT["codepf"]:
        I("s_getpc_b64 s[64:65]")
        L("A_PC")
        I("v_lshlrev_b32 v8, 7, v0")
        I("v_min_u32 v8, K_SLOW-A_PC-4, v8")
        I("global_load_dword v27, v8, s[64:65]")
    I("v_lshlrev_b32 v8, 4, v0")
    I("v_mov_b64 v[12:13], 0")
    I("v_mov_b64 v[14:15], 0")
    I(f"ds_write_b128 v8, v[12:15] offset:{C2_OFF}")
    L("A_NOPF")
    lds_init()
    edge_addr()
    I(f"v_cmp_gt_u32 vcc, {E*4}, v10")
    I("s_waitcnt lgkmcnt(0)")
    stamp(24)
    if OPT["cfirst"]:
        copy_consts()
    I("s_mov_b64 exec, vcc")
    I("s_cbranch_execz A_NOE")
    edge_loads(0, OPT["pre"])
    if OPT["tlb"]:
        I("s_cmp_eq_u32 s3, 0")
        I("s_cbranch_scc0 A_NOTLB")
        I("s_mov_b64 exec, 1")
        if OPT["tlb"] & 1:
            I(f"global_load_dword v26, v10, {sr(P_SRC,2)}")
            I(f"global_load_dword v26, v11, {sr(P_E,2)}")
        if OPT["tlb"] & 2:
            I(f"global_load_dword v26, v12, {sr(P_OUT,2)}")
            I("s_mov_b64 exec, 0xffff")
            I(f"v_mul_u32_u24 v8, {16*BIN_STRIDE}, v0")
            I(f"v_add_u32 v8, {hex(CELL_OFF + 32768)}, v8")
            I(f"global_load_dword v26, v8, {WS}")
        I("s_mov_b64 exec, vcc")
        L("A_NOTLB")
    I("s_barrier")
    stamp(2)
    edge_loads(OPT["pre"], 3)
    if not OPT["cfirst"]:
        I("s_mov_b64 exec, -1")
        copy_consts()
        I("s_mov_b64 exec, vcc")
    binning(True)
    I("s_mov_b64 exec, -1")
    I("s_branch A_JOIN")
    L("A_NOE")
    I("s_barrier")
    I("s_mov_b64 exec, -1")
    if not OPT["cfirst"]:
        copy_consts()
    I("s_branch A_JOIN")

    XA, FA, FB, ACC1, ACC2 = 28, 36, 68, 104, 36
    L("G_ENTRY")
    if OPT["gprio"]:
        I("s_setprio 3")
    I("v_and_b32 v7, 7, v3")
    I("s_and_b32 s64, s3, 1")
    I("s_lshl_b32 s64, s64, 2")
    I("v_and_b32 v8, 2, v7")
    I("v_xor_b32 v8, v8, v2")
    I("v_xor_b32 v8, s64, v8")
    I("v_lshlrev_b32 v8, 4, v8")
    I("v_lshl_add_u32 v8, v7, 7, v8")
    I("s_and_b32 s65, s3, 3")
    I("s_lshl_b32 s65, s65, 11")
    I("v_add_u32 v8, s65, v8")
    I(f"s_add_u32 s65, s65, {W_OFF}")
    I("s_add_u32 s66, s3, 3")
    I("s_and_b32 s66, s66, 3")
    I("v_xor_b32 v9, v2, v7")
    I("v_lshlrev_b32 v9, 4, v9")
    I("v_lshl_add_u32 v9, v7, 15, v9")
    I("s_lshl_b32 s67, s66, 19")
    I("s_lshl_b32 s68, s2, 7")
    I("s_add_u32 s67, s67, s68")
    I("v_add_u32 v9, s67, v9")
    I("v_add_u32 v15, 0x40000, v9")
    I("s_lshl_b32 s67, s66, 11")
    I(f"s_mov_b32 s{S_X+2}, {N*128}")
    I(f"s_mov_b32 s{S_X+3}, 0x20000")
    I("s_mov_b32 m0, s67")
    I("s_waitcnt lgkmcnt(0)")
    stamp(24)
    I(f"s_mov_b64 {sr(S_X,2)}, {sr(P_X,2)}")
    I(f"buffer_load_dwordx4 v9, {sr(S_X,4)}, 0 offen lds")
    I("s_add_u32 m0, s67, 1024")
    I("s_nop 0")
    I(f"buffer_load_dwordx4 v15, {sr(S_X,4)}, 0 offen lds")
    def w_dma(p, off, va="v8", sd="s65"):
        I(f"s_add_u32 m0, {sd}, {off}")
        I("s_nop 0")
        I(f"global_load_lds_dwordx4 {va}, {sr(p,2)}")
        I(f"global_load_lds_dwordx4 {va}, {sr(p,2)} offset:1024")
    w_dma(P_WB, 0)
    w_dma(P_WV, 8192)
    lds_init()
    edge_addr()
    if OPT["gbar"]:
        I("s_waitcnt lgkmcnt(0)")
        I("s_barrier")
        stamp(2)
    I("s_cmp_eq_u32 s3, 12")
    I("s_cselect_b32 s74, 0xffff, 0")
    I("s_cmp_eq_u32 s2, 255")
    I("s_cselect_b32 s74, 0, s74")
    I("s_mov_b32 s75, 0")
    I("s_mov_b64 exec, s[74:75]")
    I("s_cbranch_execz G_NOE")
    edge_loads()
    L("G_NOE")
    I("s_mov_b64 exec, -1")
    I("v_mov_b32 v126, v8")
    I("v_lshlrev_b32 v100, 4, v2")
    I("s_mov_b32 s78, s65")
    I(f"s_mov_b64 {sr(S_X,2)}, {WS}")
    I(f"s_mov_b32 s{S_X+2}, {TAB_ROWS*256}")
    copy_consts()
    I("v_and_b32 v124, 15, v0")
    I("v_bfe_u32 v125, v0, 4, 2")
    I("v_and_b32 v8, 7, v124")
    I("v_lshlrev_b32 v9, 1, v125")
    I("v_xor_b32 v8, v8, v9")
    I("v_lshlrev_b32 v8, 4, v8")
    I("v_lshl_add_u32 v8, v124, 7, v8")
    I("v_add_u32 v8, s67, v8")
    I("v_xor_b32 v9, 16, v8")
    I("v_lshrrev_b32 v10, 2, v124")
    I("v_and_b32 v11, 2, v10")
    I("v_bfe_u32 v12, v0, 1, 1")
    I("v_or_b32 v11, v11, v12")
    I("v_and_b32 v12, 1, v125")
    I("v_lshl_or_b32 v11, v12, 2, v11")
    I("v_lshlrev_b32 v11, 4, v11")
    I("v_and_b32 v12, 1, v0")
    I("v_lshl_or_b32 v11, v12, 3, v11")
    I("v_lshl_add_u32 v10, v125, 4, v10")
    I("v_lshl_or_b32 v11, v10, 7, v11")
    I(f"v_add_u32 v12, {W_OFF}, v11")
    for T in range(1, 4):
        I(f"v_xor_b32 v{12+T}, {T << 5}, v12")
    I(f"s_mov_b32 s76, {hex(f32(-LOG2E))}")
    I("s_mov_b32 s77, 0x07060302")
    I(f"v_mov_b32 v26, {hex(f32(2.0**-70))}")
    I("s_lshl_b32 s64, s66, 20")
    I("s_lshl_b32 s65, s2, 8")
    I("s_add_u32 s64, s64, s65")
    I("v_lshlrev_b32 v27, 18, v125")
    I("v_lshl_add_u32 v27, v124, 4, v27")
    I("v_add_u32 v27, s64, v27")
    I("v_mov_b32 v10, 1")
    def g_sync(target, lab, arrive=True):
        if arrive:
            I("s_mov_b64 exec, 1")
            I(f"ds_add_u32 v1, v10 offset:{SYNC}")
            I("s_mov_b64 exec, -1")
        L(lab)
        I(f"ds_read_b32 v11, v1 offset:{SYNC}")
        I("s_waitcnt lgkmcnt(0)")
        I("v_readfirstlane_b32 s64, v11")
        I(f"s_cmp_lt_u32 s64, {target}")
        I(f"s_cbranch_scc1 {lab}")
    def frag_reads(F, moff):
        for T in range(4):
            for s in range(2):
                for h in range(2):
                    I(f"ds_read_b64_tr_b16 {vr(F + 8*T + 4*s + 2*h, 2)}, v{12+T} offset:{moff + (8*s+4*h)*128}")
    def mfmas(F, acc, swap, later):
        for T in range(4):
            I(f"s_waitcnt lgkmcnt({min(15, later + 4*(3-T))})")
            for s in range(2):
                a, b = vr(XA + 4*s, 4), vr(F + 8*T + 4*s, 4)
                if swap:
                    a, b = b, a
                c = "0" if s == 0 else vr(acc + 4*T, 4)
                I(f"v_mfma_f32_16x16x32_bf16 {vr(acc+4*T,4)}, {a}, {b}, {c}")
    if not OPT["gbar"]:
        I("s_waitcnt lgkmcnt(0)")
        I("s_barrier")
        stamp(2)
    I("s_cmp_eq_u64 s[74:75], 0")
    I("s_cbranch_scc1 G_W0")
    I("s_waitcnt vmcnt(3)")
    I("s_branch G_W1")
    L("G_W0")
    I("s_waitcnt vmcnt(0)")
    L("G_W1")
    stamp(3)
    g_sync(4, "G_S1")
    stamp(20)
    I(f"ds_read_b128 {vr(XA,4)}, v8")
    I(f"ds_read_b128 {vr(XA+4,4)}, v9")
    frag_reads(FA, 0)
    frag_reads(FB, 8192)
    stamp(21)
    w_dma(P_WA, 16384, "v126", "s78")
    w_dma(P_WU, 24576, "v126", "s78")
    I("s_cmp_eq_u32 s3, 13")
    I("s_cbranch_scc0 G_NOWC")
    I(f"s_mov_b32 m0, {WC_OFF}")
    I("s_mov_b64 exec, 0xff")
    I(f"global_load_lds_dwordx4 v100, {sr(P_WC,2)}")
    I("s_mov_b64 exec, -1")
    L("G_NOWC")
    stamp(22)
    mfmas(FA, ACC1, False, 16)
    mfmas(FB, ACC2, False, 0)
    stamp(23)
    I("s_cmp_eq_u32 s3, 13")
    I("s_cbranch_scc0 G_NOEP")
    I(f"s_add_u32 s70, s{P_WS}, {hex(CTL_OFF)}")
    I(f"s_addc_u32 s71, s{P_WS+1}, 0")
    I("s_load_dwordx2 s[72:73], s[70:71], 8")
    L("G_NOEP")
    ACCB, ACCV, OUTR = ACC1, ACC2, FB
    SD = sdwa("WORD_1")
    I("s_mov_b32 s80, 0x8000")
    I("s_mov_b32 s81, 0x8000")
    I(f"s_mov_b32 s68, {hex(f32(2.0**-100))}")
    I("s_mov_b32 s69, s68")
    I("v_mov_b32 v10, v26")
    I("v_mov_b32 v11, v26")
    I("s_nop 1")
    for rp in (0, 2):
        for t in range(4):
            I(f"v_pk_fma_f32 {vr(ACCB+4*t+rp,2)}, {vr(ACCB+4*t+rp,2)}, s[76:77], v[10:11] op_sel_hi:[1,0,1]")
        for t in (1, 3):
            I(f"v_pk_add_f32 {vr(ACCV+4*t+rp,2)}, {vr(ACCV+4*t+rp,2)}, s[68:69]")
        for t in range(4):
            I(f"v_lshl_add_u64 {vr(ACCB+4*t+rp,2)}, {vr(ACCB+4*t+rp,2)}, 0, s[80:81]")
        for t in range(4):
            I(f"v_lshl_add_u64 {vr(ACCV+4*t+rp,2)}, {vr(ACCV+4*t+rp,2)}, 0, s[80:81]")
        for r in (rp, rp + 1):
            for t in (0, 2):
                I(f"v_sub_u32_sdwa v{ACCB+4*t+r}, v{ACCB+4*t+r}, v{ACCV+4*t+r} clamp {SD}")
            for t in (0, 2):
                I(f"v_sub_u32_sdwa v{ACCV+4*(t+1)+r}, v{ACCV+4*(t+1)+r}, v{ACCB+4*t+r} clamp {SD}")
            for t in (0, 2):
                I(f"v_sub_u32_sdwa v{ACCB+4*(t+1)+r}, v{ACCB+4*(t+1)+r}, v{ACCV+4*(t+1)+r} clamp {SD}")
            for t in range(4):
                I(f"v_perm_b32 v{OUTR+4*r+t}, v{ACCB+4*t+r}, v{ACCV+4*t+r}, s77")
            if r == 0:
                I("s_cmp_eq_u32 s3, 12")
                I("s_cbranch_scc1 G_T3")
            else:
                I("v_add_u32 v27, 0x10000, v27")
            I(f"buffer_store_dwordx4 {vr(OUTR+4*r,4)}, v27, {sr(S_X,4)}, 0 offen sc1")
    stamp(4)
    I("s_cmp_eq_u32 s3, 13")
    I("s_cbranch_scc0 G_BVD")
    I("s_waitcnt lgkmcnt(0)")
    I("s_add_u32 s72, s72, 0x1000000")
    I("s_addc_u32 s73, s73, 0")
    I("s_and_b32 s72, s72, 0xff000000")
    for k in range(3):
        I(f"s_bfe_u32 s64, s73, {hex((2 << 16) | (2*k))}")
        I(f"s_lshl_b32 s64, s64, {6 + 8*k}")
        I("s_or_b32 s72, s72, s64")
        I(f"s_bfe_u32 s64, s73, {hex((2 << 16) | (6 + 2*k))}")
        I("s_lshl_b32 s64, s64, 14")
        I(f"v_mov_b32 v{TG+k}, s64")
    I(f"v_mov_b32 v{TG+3}, s72")
    I(f"ds_write_b128 v1, {vr(TG,4)} offset:{TAGS}")
    L("G_BVD")
    I("s_waitcnt vmcnt(4)")
    I("s_branch G_DONE")
    L("G_T3")
    I("s_cmp_eq_u32 s2, 212")
    I("s_cbranch_scc0 G_NODUM")
    for t in range(4):
        I(f"v_mov_b32 v{OUTR+t}, 0x7f000000")
    L("G_NODUM")
    I(f"buffer_store_dwordx4 {vr(OUTR,4)}, v27, {sr(S_X,4)}, 0 offen sc1")
    I("s_waitcnt vmcnt(5)")
    I("s_mov_b64 exec, s[74:75]")
    I("s_cbranch_execz G_NOBIN")
    I("v_mov_b32 v126, v14")
    binning(False)
    I("v_mov_b32 v14, v126")
    L("G_NOBIN")
    I("s_mov_b64 exec, -1")
    I(f"ds_read_b128 {vr(XA,4)}, v8")
    I(f"ds_read_b128 {vr(XA+4,4)}, v9")
    stamp(4)
    I("s_waitcnt vmcnt(1)")
    L("G_DONE")
    if OPT["drain"]:
        I("s_waitcnt vmcnt(0)")
    if OPT["gprio"] and not OPT["cprio"]:
        I("s_setprio 0")
    stamp(5)

    L("A_JOIN")
    if OPT["cprio"]:
        I("s_setprio 3")
    I("s_waitcnt lgkmcnt(0)")
    stamp(6)
    I("s_barrier")
    stamp(7)
    C0 = 68
    I(f"ds_read_b128 {vr(TG,4)}, v1 offset:{TAGS}")
    I(f"ds_read2st64_b32 v[8:9], v5 offset0:{C1_OFF//256} offset1:{C1_OFF//256+2}")
    I(f"ds_read_b128 {vr(C0,4)}, v4 offset:{IMG}")
    I(f"ds_read_b128 {vr(C0+4,4)}, v4 offset:{IMG+B2}")
    def tagit(c):
        for k in range(3):
            I(f"v_bfi_b32 v{c+k}, s40, v{TG+k}, v{c+k}")
        I(f"v_or_b32 v{c+3}, v{TG+3}, v{c+3}")
    I("s_waitcnt lgkmcnt(2)")
    I("v_cmp_le_u32 s[72:73], s38, v8")
    I("v_cmp_le_u32 s[74:75], s38, v9")
    I("v_max_u32 v10, v8, v9")
    I("v_cmp_le_u32 vcc, s39, v10")
    def cell_store(k):
        I(f"s_or_b64 exec, s[{72+2*k}:{73+2*k}], s[36:37]")
        I(f"global_store_dwordx4 v{6+k}, {vr(C0+4*k,4)}, {WS} sc1")
    if OPT["gl"]:
        I("s_cmp_ge_u32 s3, 12")
        I("s_waitcnt lgkmcnt(1)")
        tagit(C0)
        I("s_cbranch_scc1 A_GL1")
        cell_store(0)
        I("s_mov_b64 exec, -1")
        L("A_GL1")
        I("s_cmp_ge_u32 s3, 12")
        I("s_waitcnt lgkmcnt(0)")
        tagit(C0 + 4)
        I("s_cbranch_scc1 A_GL2")
        cell_store(1)
        L("A_GL2")
    else:
        I("s_waitcnt lgkmcnt(1)")
        tagit(C0)
        cell_store(0)
        I("s_or_b64 exec, s[74:75], s[36:37]")
        I("s_waitcnt lgkmcnt(0)")
        tagit(C0 + 4)
        I(f"global_store_dwordx4 v7, {vr(C0+4,4)}, {WS} sc1")
    I("s_cbranch_vccnz R_PUB2")
    L("A_PUBD")
    I("s_mov_b64 exec, -1")
    if OPT["cprio"]:
        I("s_setprio 0")
    stamp(8)
    I("s_cmp_ge_u32 s3, 12")
    I("s_cbranch_scc0 B_NOAU")
    I("s_setprio 1")
    FU, FW, UU = 36, 84, 52
    def half_gemm(moff, acc, swap):
        for T in range(4):
            F = (FU if T < 2 else FW) + 8 * (T & 1)
            for s in range(2):
                for h in range(2):
                    I(f"ds_read_b64_tr_b16 {vr(F + 4*s + 2*h, 2)}, v{12+T} offset:{moff + (8*s+4*h)*128}")
        for T in range(4):
            F = (FU if T < 2 else FW) + 8 * (T & 1)
            I(f"s_waitcnt lgkmcnt({4*(3-T)})")
            for s in range(2):
                a, b = vr(XA + 4*s, 4), vr(F + 4*s, 4)
                if swap:
                    a, b = b, a
                c = "0" if s == 0 else vr(acc + 4*T, 4)
                I(f"v_mfma_f32_16x16x32_bf16 {vr(acc+4*T,4)}, {a}, {b}, {c}")
    half_gemm(16384, AP, False)
    if not OPT["drain"]:
        I(f"s_lshl_b32 s64, s2, {OPT['fs']-2}")
        I("s_add_u32 s64, s64, s66")
        I("s_lshl_b32 s64, s64, 2")
        I(f"s_add_u32 s64, s64, {hex(FLG_OFF)}")
        I("v_mov_b32 v26, s64")
        I(f"s_waitcnt vmcnt({0 if OPT['gl'] else 2})")
        I("s_mov_b64 exec, 1")
        I(f"global_store_dword v26, v{TG+3}, {WS} sc1")
        if OPT["gl"]:
            cell_store(0)
            cell_store(1)
        I("s_mov_b64 exec, -1")
    half_gemm(24576, UU, True)
    I(f"s_mul_i32 s65, s66, {16*EAU_STRIDE}")
    I(f"s_add_u32 s65, s65, {EAU_OFF}")
    I(f"v_mul_u32_u24 v26, {4*EAU_STRIDE}, v125")
    I("v_lshl_add_u32 v26, v124, 4, v26")
    I("v_add_u32 v25, s65, v26")
    I(f"v_mul_u32_u24 v27, {EAU_STRIDE}, v124")
    I("v_lshl_add_u32 v27, v125, 4, v27")
    I("v_add_u32 v27, s65, v27")
    for i in range(16):
        I(f"v_mul_f32 v{AP+i}, s76, v{AP+i}")
    I("s_cmp_eq_u32 s3, 12")
    I("s_cselect_b32 exec_lo, 0x000f000f, -1")
    I("s_cselect_b32 exec_hi, 0x000f000f, -1")
    for T in range(4):
        I(f"ds_write_b128 v27, {vr(UU+4*T,4)} offset:{256 + T*64}")
    I("s_cselect_b32 exec_hi, 0, -1")
    I("s_cselect_b32 exec_lo, 0xffff, -1")
    I(f"v_max3_f32 v26, |v{AP}|, |v{AP+1}|, |v{AP+2}|")
    for i in range(3, 15, 2):
        I(f"v_max3_f32 v26, |v{AP+i}|, |v{AP+i+1}|, v26")
    I(f"v_max_f32 v26, |v{AP+15}|, v26")
    I(f"v_cmp_nge_f32 vcc, {hex(f32(63.0))}, v26")
    EAT = 36
    for r in range(4):
        for t in range(4):
            I(f"v_add_f32 v{EAT+4*r+t}, {hex(f32(-float(KEXP)))}, v{AP+4*t+r}")
        for t in range(4):
            I(f"ds_write_b32 v25, v{AP+4*t+r} offset:{r*EAU_STRIDE + 512 + 4*t}")
            I(f"v_exp_f32 v{EAT+4*r+t}, v{EAT+4*r+t}")
        I("s_nop 0")
        I(f"ds_write_b128 v25, {vr(EAT+4*r,4)} offset:{r*EAU_STRIDE}")
        if r == 0:
            I("s_cbranch_scc1 G_EAD")
    L("G_EAD")
    I("s_mov_b64 exec, -1")
    I("s_cmp_lg_u64 vcc, 0")
    I("s_cselect_b32 s79, 1, 0")
    L("B_NOAU")

    RA, CA, KA, RB, CB, KB = 8, 24, 36, 64, 72, 78
    XB, Y, A = 48, 80, 100
    IP = (96, 98, 104, 106)
    UR, XR, VOUT, VU, LP, EP = 108, 112, 116, 117, 118, 120
    WCB, DEN, NUM, VOOB, C4, VRA, VSE, EA, P, Q, SS, LC = 16, 20, 44, 30, 31, 42, 32, 12, 24, 8, 36, 4
    I("v_and_b32 v5, 63, v0")
    I("s_cmp_lt_u32 s2, 212")
    I("s_cselect_b32 s64, 49, 48")
    I("v_cmp_gt_u32 s[82:83], s64, v5")
    I("v_lshlrev_b32 v5, 2, v5")
    I(f"v_and_b32 v{LC}, 15, v0")
    I(f"v_lshlrev_b32 v6, 1, v{LC}")
    for j in range(4):
        I(f"ds_read_u16 v{WCB+j}, v6 offset:{WC_OFF + 32*j}")
    I(f"v_lshlrev_b32 v{LC}, 4, v{LC}")
    I(f"v_mov_b32 v{C4}, 4")
    I(f"v_mov_b32 v{VOOB}, {OOB}")
    for p_ in IP:
        I(f"v_mov_b32 v{p_+1}, v{LC}")
    I(f"v_lshlrev_b32 v{LP}, 1, v6")
    I(f"v_mov_b32 v{LP+1}, v{LC}")
    I("v_lshrrev_b32 v7, 4, v0")
    I(f"v_mul_u32_u24 v{VU}, {EAU_STRIDE}, v7")
    I(f"s_mov_b32 s64, {EAU_OFF + 256}")
    I(f"v_add3_u32 v{VU}, v{VU}, s64, v{LC}")
    I("v_lshlrev_b32 v8, 2, v6")
    I("v_and_b32 v9, 0x70, v0")
    I("v_xor_b32 v9, v8, v9")
    I("v_lshl_add_u32 v9, v7, 7, v9")
    I(f"ds_read_b64 {vr(XR+2,2)}, v9 offset:{X_OFF}")
    I(f"v_lshl_add_u32 v{VOUT}, v7, 15, v8")
    I("s_lshl_b32 s64, s2, 7")
    I(f"v_add_u32 v{VOUT}, s64, v{VOUT}")
    srd(S_X, P_OUT, N * 128)
    for d in range(0, 4, 2):
        I(f"v_mov_b64 {vr(A+d,2)}, 0")
        I(f"v_mov_b64 {vr(DEN+d,2)}, 0")
        I(f"v_mov_b64 {vr(NUM+d,2)}, 0")
    I("s_mov_b64 s[68:69], -1")
    I("s_mov_b64 s[70:71], -1")
    I("s_cmp_lt_u32 s3, 4")
    I("s_cselect_b32 s78, 2, 0")
    I(f"s_mov_b32 s16, {hex(f32(2.0**-KEXP))}")
    I("s_mov_b32 s17, s16")
    I(f"s_mov_b32 s18, {hex(f32(1e-6 * 2.0**KEXP))}")
    I("s_mov_b32 s19, s18")
    I("s_mov_b32 s20, 32")
    I("s_mov_b32 s21, 32")
    I(f"s_mov_b32 s24, {SLOT_STRIDE}")
    I(f"s_mov_b32 s25, {EAU_STRIDE}")
    I(f"s_mov_b32 s85, {LIST_OFF}")
    I("s_mov_b32 s56, 0x11111111")
    I("s_mov_b32 s57, s56")
    I("s_lshl_b64 s[58:59], s[56:57], 1")
    I("s_lshl_b64 s[60:61], s[56:57], 2")
    I("s_lshl_b64 s[62:63], s[56:57], 3")
    I("v_bfe_u32 v124, v0, 4, 2")
    I("v_bfe_u32 v125, v0, 5, 1")
    I("v_bfe_u32 v126, v0, 2, 1")
    I("v_lshl_add_u32 v125, v126, 1, v125")
    I("v_bfe_u32 v126, v0, 3, 2")
    I("v_lshlrev_b32 v126, 2, v126")
    I("v_bfe_u32 v34, v0, 2, 3")
    I("s_lshl_b32 s64, s3, 3")
    I("s_sub_u32 s64, s2, s64")
    I("v_sub_u32 v34, s64, v34")
    I("v_and_b32 v34, 127, v34")
    I("v_and_b32 v35, 32, v0")
    I("v_lshl_add_u32 v34, v35, 2, v34")
    I("v_and_b32 v35, 3, v0")
    if OPT["pf"] or OPT["pf2"] or OPT["pf3"] or OPT["pf4"]:
        I("v_lshlrev_b32 v33, 8, v34")
        I("v_lshl_add_u32 v33, v35, 20, v33")
        I("s_lshr_b32 s64, s2, 4")
        I("s_lshl_b32 s64, s64, 16")
        I("s_bfe_u32 s65, s2, 0x10003")
        I("s_lshl_b32 s65, s65, 7")
        I("s_add_u32 s64, s64, s65")
        I("v_add_u32 v33, s64, v33")
    if OPT["pf5"]:
        I("v_lshlrev_b32 v33, 8, v34")
        I("v_and_b32 v32, 1, v35")
        I("v_lshl_add_u32 v33, v32, 7, v33")
        I("v_lshrrev_b32 v32, 1, v35")
        I("v_lshl_add_u32 v33, v32, 16, v33")
        I("s_sub_u32 s64, s3, 13")
        I("s_lshl_b32 s64, s64, 20")
        I("s_lshr_b32 s65, s2, 7")
        I("s_lshl_b32 s65, s65, 19")
        I("s_add_u32 s64, s64, s65")
        I("v_add_u32 v33, s64, v33")
    I(f"v_lshlrev_b32 v34, {OPT['fs']}, v34")
    I("v_lshl_add_u32 v34, v35, 2, v34")
    I(f"v_add_u32 v34, {hex(FLG_OFF)}, v34")
    I(f"s_mov_b32 s64, {hex(f32(-LOG2E))}")
    I("s_mov_b32 s66, 0x0000ffff")
    I("s_mov_b32 s67, 0xffff0000")
    I("s_waitcnt lgkmcnt(0)")
    for j in range(4):
        I(f"v_lshlrev_b32 v{WCB+j}, 16, v{WCB+j}")
    for j in range(4):
        I(f"v_mul_f32 v{WCB+j}, s64, v{WCB+j}")
    for j in range(4):
        I(f"v_cvt_pk_bf16_f32 v{WCB+j}, 0, v{WCB+j}")
    for j in range(4):
        I(f"v_cndmask_b32 v{WCB+j}, 0, v{WCB+j}, s[66:67]")
    I(f"v_lshlrev_b32 v{XR}, 16, v{XR+2}")
    I(f"v_and_b32 v{XR+1}, 0xffff0000, v{XR+2}")
    I(f"v_lshlrev_b32 v{XR+2}, 16, v{XR+3}")
    I(f"v_and_b32 v{XR+3}, 0xffff0000, v{XR+3}")
    I("s_setprio 0")
    I("s_waitcnt vmcnt(0)")
    if OPT["delay"]:
        I(f"s_sleep {OPT['delay']}")
    stamp(9)
    I(f"global_load_dwordx4 {vr(RA,4)}, v2, {WS} sc1")
    I(f"global_load_dwordx4 {vr(RA+4,4)}, v3, {WS} sc1")

    def poll(R_, first, name):
        L(name)
        I("s_waitcnt vmcnt(0)")
        for k in range(2):
            I(f"s_mov_b64 exec, s[{68+2*k}:{69+2*k}]")
            for j in range(4):
                I(f"v_xor_b32 v{R_+4*k+j}, v{TG+j}, v{R_+4*k+j}")
        I("s_mov_b64 exec, -1")
        for k in range(2):
            r = R_ + 4 * k
            I(f"v_or3_b32 v{6+k}, v{r}, v{r+1}, v{r+2}")
            I(f"v_and_b32 v{6+k}, s40, v{6+k}")
            I(f"v_and_or_b32 v{6+k}, v{r+3}, s41, v{6+k}")
            I(f"v_cmp_ne_u32 s[{68+2*k}:{69+2*k}], 0, v{6+k}")
            I(f"v_cmp_gt_u32 s[{64+2*k}:{65+2*k}], s42, v{r+3}")
        if first:
            for k in range(2):
                I(f"s_andn2_b64 s[{64+2*k}:{65+2*k}], s[{64+2*k}:{65+2*k}], s[{68+2*k}:{69+2*k}]")
                I(f"s_lshl_b64 s[{74+2*k}:{75+2*k}], s[{64+2*k}:{65+2*k}], 1")
                I(f"s_or_b64 s[{74+2*k}:{75+2*k}], s[{74+2*k}:{75+2*k}], s[36:37]")
        I("s_and_b64 s[72:73], s[68:69], s[74:75]")
        I("s_and_b64 s[80:81], s[70:71], s[76:77]")
        I("s_or_b64 s[72:73], s[72:73], s[80:81]")
        I(f"s_cbranch_scc1 {name}_RETRY")
    def retry(R_, first, name):
        L(name + "_RETRY")
        if first:
            for k in range(4):
                I(f"s_and_b32 s72, s{68+k}, s{74+k}")
                I("s_lshl_b32 s73, s72, 1")
                I("s_or_b32 s72, s72, s73")
                I("s_lshl_b32 s73, s72, 2")
                I("s_or_b32 s72, s72, s73")
                I("s_lshl_b32 s73, s72, 4")
                I("s_or_b32 s72, s72, s73")
                I(f"s_and_b32 s{68+k}, s{68+k}, s72")
        else:
            I("s_and_b64 s[68:69], s[68:69], s[74:75]")
            I("s_and_b64 s[70:71], s[70:71], s[76:77]")
        I("s_add_u32 s43, s43, 1")
        I(f"s_cmp_gt_u32 s43, {POLL_LIMIT}")
        I("s_cbranch_scc1 R_TIMEOUT")
        if OPT["sleep"]:
            I(f"s_sleep {OPT['sleep']}")
        reload(R_, name)
        I(f"s_branch {name}")
    def reload(R_, name):
        I("s_mov_b64 exec, s[68:69]")
        I(f"s_cbranch_execz {name}_1")
        I(f"global_load_dwordx4 {vr(R_,4)}, v2, {WS} sc1")
        L(name + "_1")
        I("s_mov_b64 exec, s[70:71]")
        I(f"s_cbranch_execz {name}_2")
        I(f"global_load_dwordx4 {vr(R_+4,4)}, v3, {WS} sc1")
        L(name + "_2")
    def ranks(R_, C_, K_, M_):
        for k in range(2):
            for j in range(3):
                I(f"v_lshlrev_b32_sdwa v{C_+3*k+j}, 2, v{R_+4*k+3} {sdwa('BYTE_'+str(j))}")
        for k in range(2):
            I(f"s_mov_b64 exec, s[{74+2*k}:{75+2*k}]")
            for j in range(3):
                m = M_ + 2 * (3 * k + j)
                I(f"v_cmp_gt_u32_sdwa s[{m}:{m+1}], 49, v{R_+4*k+3} src0_sel:DWORD src1_sel:BYTE_{j}")
            for j in range(3):
                m = M_ + 2 * (3 * k + j)
                I(f"s_mov_b64 exec, s[{m}:{m+1}]")
                I(f"ds_add_rtn_u32 v{K_+3*k+j}, v{C_+3*k+j}, v{C4} offset:{C2_OFF}")
        I("s_mov_b64 exec, -1")
    def more_test():
        I("s_and_b64 s[64:65], s[64:65], s[74:75]")
        I("s_and_b64 s[66:67], s[66:67], s[76:77]")
        I("s_or_b64 s[72:73], s[64:65], s[66:67]")
        I("s_or_b32 s72, s72, s73")
        I("s_and_b32 s72, s72, 0x80808080")
    MA, MB = 44, 4

    def pf5(lab):
        I("s_cmp_ge_u32 s3, 13")
        I(f"s_cbranch_scc0 {lab}")
        for k in range(OPT["pf5"]):
            if k:
                I("v_add_u32 v33, 0x20000, v33")
            I(f"global_load_dword v84, v33, {WS} sc1")
        L(lab)
    poll(RA, True, "B_P0")
    stamp(10)
    if OPT["ef"]:
        I(f"global_load_dword v35, v34, {WS} sc1")
    ranks(RA, CA, KA, MA)
    more_test()
    I("s_or_b32 s72, s72, s79")
    I("s_cbranch_scc1 R_MORE")
    L("B_RDONE")
    if OPT["stamp"]:
        I("v_writelane_b32 v127, s43, 19")
    I("s_waitcnt lgkmcnt(0)")
    I("s_barrier")
    stamp(11)
    I(f"ds_read_b32 v6, v5 offset:{C2_OFF}")
    if OPT["drain"]:
        if OPT["pf4"]:
            I(f"s_sub_u32 s71, s3, {OPT['pfw']}")
            I(f"s_cmp_lt_u32 s71, {OPT['pf4']}")
            I("s_cbranch_scc0 B_NOPF4")
            I("s_andn2_b64 exec, exec, s[62:63]")
            I(f"global_load_dword v84, v33, {WS} sc1")
            I("s_mov_b64 exec, -1")
            L("B_NOPF4")
    elif not OPT["ef"]:
        I(f"global_load_dword v35, v34, {WS} sc1")
        if OPT["pf5"]:
            pf5("B_NOPF5")
    elif OPT["pf"]:
        I("s_sub_u32 s64, s3, 4")
        I(f"s_cmp_lt_u32 s64, {OPT['pf']}")
        I("s_cbranch_scc0 B_NOPF")
        I("s_waitcnt vmcnt(0)")
        I(f"v_cmp_eq_u32 vcc, v{TG+3}, v35")
        I("s_mov_b64 exec, vcc")
        I("s_cbranch_execz B_NOPF0")
        I(f"global_load_dword v84, v33, {WS} sc1")
        L("B_NOPF0")
        I("s_mov_b64 exec, -1")
        L("B_NOPF")
    I("s_waitcnt lgkmcnt(0)")
    I("v_add_u32 v2, 7, v6")
    I("v_and_b32 v2, -8, v2")
    I("v_max_u32 v2, 8, v2")
    I("v_cndmask_b32 v2, 0, v2, s[82:83]")
    I("v_mov_b32 v3, v2")
    for d in ("row_shr:1 row_mask:0xf", "row_shr:2 row_mask:0xf", "row_shr:4 row_mask:0xf",
              "row_shr:8 row_mask:0xf", "row_bcast:15 row_mask:0xa", "row_bcast:31 row_mask:0xc"):
        I("s_nop 1")
        I(f"v_add_u32_dpp v3, v3, v3 {d} bank_mask:0xf")
    I("v_sub_u32 v7, v3, v2")
    I(f"ds_write_b32 v5, v7 offset:{BASE}")
    I("v_readlane_b32 s64, v3, 63")
    def lookup(C_):
        for i in range(6):
            I(f"ds_read_b32 v{C_+i}, v{C_+i} offset:{BASE}")
    def scatter(R_, C_, K_, M_):
        for i in range(6):
            if i % 3 == 0:
                I(f"s_waitcnt lgkmcnt({3-i})")
            I(f"v_add3_u32 v{C_+i}, v{C_+i}, v{K_+i}, s85")
        for i in range(6):
            I(f"s_mov_b64 exec, s[{M_+2*i}:{M_+2*i+1}]")
            I(f"ds_write_b32 v{C_+i}, v{R_+4*(i//3)+i%3}")
        I("s_mov_b64 exec, -1")
    lookup(CA)
    I("s_add_u32 s65, s64, 31")
    I("s_lshr_b32 s66, s65, 9")
    I("s_bfe_u32 s67, s65, 0x40005")
    I("s_mul_i32 s68, s66, s3")
    I("s_min_u32 s69, s67, s3")
    I("s_add_u32 s68, s68, s69")
    I("s_lshl_b32 s68, s68, 5")
    I("s_cmp_lt_u32 s3, s67")
    I("s_addc_u32 s72, s66, 0")
    I("s_lshl_b32 s69, s72, 3")
    I("s_add_u32 s70, s68, s85")
    if OPT["pf3"]:
        I(f"s_sub_u32 s71, s3, {OPT['pfw']}")
        I(f"s_cmp_lt_u32 s71, {OPT['pf3']}")
        I("s_cbranch_scc0 B_NOPF3")
        I("s_waitcnt vmcnt(0)")
        I(f"v_cmp_eq_u32 vcc, v{TG+3}, v35")
        I("s_andn2_b64 exec, vcc, s[62:63]")
        I("s_cbranch_execz B_NOPF30")
        I(f"global_load_dword v84, v33, {WS} sc1")
        L("B_NOPF30")
        I("s_mov_b64 exec, -1")
        L("B_NOPF3")
    scatter(RA, CA, KA, MA)
    I(f"v_mul_u32_u24 v{VRA}, s69, v124")
    I(f"v_mul_u32_u24 v{VRA+1}, s69, v125")
    I(f"v_add_u32 v{VRA}, s70, v{VRA}")
    I(f"v_add3_u32 v{VRA+1}, v{VRA+1}, s70, v126")
    if OPT["pf"] and OPT["ef"]:
        I("s_sub_u32 s71, s3, 4")
        I(f"s_cmp_lt_u32 s71, {OPT['pf']}")
        I("s_cbranch_scc1 B_FLW")
    if OPT["pf3"]:
        I(f"s_cmp_lt_u32 s71, {OPT['pf3']}")
        I("s_cbranch_scc1 B_FLW")
    if not OPT["drain"]:
        if OPT["pf5"]:
            I(f"s_waitcnt vmcnt({OPT['pf5']})")
            I("s_cmp_ge_u32 s3, 13")
            I("s_cbranch_scc1 B_FLW")
        I("s_waitcnt vmcnt(0)")
        L("B_FLW")
        I(f"v_cmp_ne_u32 vcc, v{TG+3}, v35")
    I("s_cmp_lg_u32 s78, 0")
    I("s_cbranch_scc1 R_EXTRA")
    L("B_XDONE")
    if not OPT["drain"]:
        I("s_cbranch_vccnz R_FLAGS")
    L("B_FDONE")
    if OPT["pf2"]:
        I(f"s_cmp_lt_u32 s3, {OPT['pf2']}")
        I("s_cbranch_scc0 B_NOPF2")
        I(f"global_load_dword v84, v33, {WS} sc1")
        L("B_NOPF2")
    I("s_waitcnt lgkmcnt(0)")
    I("s_barrier")
    stamp(12)
    def i_reads(batch, lo=0, hi=4):
        for i in range(lo, hi):
            I(f"ds_read_u16 v{IP[i]}, v{VRA} offset:{16*batch + 4*i}")
    def a_reads(batch):
        for d in range(4):
            I(f"s_mov_b64 exec, s[{56+2*d}:{57+2*d}]")
            I(f"ds_read_b32 v{A+d}, v{VRA+1} offset:{16*batch}")
        I("s_mov_b64 exec, -1")
    def gathers(x, lo, hi):
        for i in range(lo, hi):
            I(f"buffer_load_dwordx4 {vr(x+4*i,4)}, {vr(IP[i],2)}, {sr(S_TAB,4)}, 0 idxen offen {OPT['gsc'] if OPT['gsc'] != 'none' else ''}")
    i_reads(0)
    I("v_and_b32 v9, 0x3f0, v0")
    I(f"ds_read_b128 {vr(VSE,4)}, v9 offset:{STR}")
    I(f"ds_read_b32 v8, v1 offset:{FLAG}")
    if OPT["prio"]:
        I("s_setprio 3")
    I("s_waitcnt lgkmcnt(2)")
    gathers(XB, 0, 4)
    stamp(13)
    i_reads(1)
    I(f"ds_read_b128 {vr(EP,4)}, v9 offset:{EPI}")
    I(f"ds_read_b128 {vr(UR,4)}, v{VU}")
    I("s_waitcnt lgkmcnt(6)")
    I("v_readfirstlane_b32 s80, v8")
    I(f"v_lshl_add_u64 {vr(VSE,2)}, {vr(VSE,2)}, 0, {vr(LP,2)}")
    I(f"ds_read_b128 {vr(EA,4)}, v{VSE+1}")
    for q in range(4):
        I(f"v_readlane_b32 s{44+q}, v{VSE+2}, {16*q}")
    I(f"s_cmp_gt_u32 s64, {LIST_MAX}")
    I("s_cselect_b32 s81, 1, 0")
    I("s_or_b32 s80, s80, s81")
    if OPT["force_slow"]:
        I("s_branch K_SLOW")
    I("s_cbranch_scc1 K_SLOW")
    a_reads(0)
    for q in range(4):
        if OPT["cut"] & 8:
            I(f"s_mov_b32 s{44+q}, 0")
        I(f"s_bitset1_b32 s{44+q}, s72")
    I("s_or_b32 s82, s44, s45")
    I("s_or_b32 s83, s46, s47")
    I("s_or_b32 s82, s82, s83")
    I("s_bfm_b32 s83, s72, 0")
    I("s_lshr_b32 s83, s83, 4")
    I("s_mov_b32 s73, 0")
    I("s_waitcnt lgkmcnt(5)")
    gathers(XB + 16, 0, 4)
    i_reads(2)
    for k in range(3):
        I(f"v_add_u32 v{EP+k}, v{EP+k}, v{LC}")
    I(f"v_cmp_lt_i32 s[48:49], 2, v{EP+3}")
    I("s_cmp_eq_u32 s72, 0")
    I("s_cbranch_scc1 K_JOIN")
    def mfma(x):
        I(f"v_mfma_f32_32x32x16_bf16 {vr(Y,16)}, {vr(A,4)}, {vr(WCB,4)}, {vr(x,16)}")
    stamp(14)
    I("s_waitcnt vmcnt(4) lgkmcnt(4)")
    mfma(XB)
    stamp(15)
    a_reads(1)
    nth = len(str(OPT["prio"]).split("_")) if OPT["prio"] else 0
    if OPT["prio"]:
        I(f"s_setprio {nth}")
    I("s_nop 2")
    L("K_LOOP")
    if OPT["prio"]:
        I("s_sub_u32 s74, s72, s73")
        for k, t_ in enumerate(int(x) for x in str(OPT["prio"]).split("_")):
            I(f"s_cmp_gt_u32 s74, {t_}")
            I("s_cbranch_scc1 K_STEP0")
            I(f"s_setprio {nth-1-k}")
    for u in range(4):
        bb, hh = u >> 1, u & 1
        x = XB + 16 * bb + 8 * hh
        t = Y + 8 * hh
        L(f"K_STEP{u}")
        for i in range(8):
            I(f"v_exp_f32 v{t+i}, v{t+i}")
        for i in range(4):
            I(f"v_lshlrev_b64 {vr(x+2*i,2)}, 16, {vr(x+2*i,2)}")
        for i in range(4):
            I(f"v_pk_fma_f32 {vr(t+2*i,2)}, {vr(t+2*i,2)}, {vr(EA+2*(i&1),2)}, s[16:17] clamp")
        I(f"v_pk_mul_f32 {vr(P,2)}, {vr(t,2)}, {vr(t+4,2)}")
        I(f"v_pk_mul_f32 {vr(P+2,2)}, {vr(t+2,2)}, {vr(t+6,2)}")
        I(f"v_pk_mul_f32 {vr(Q,2)}, {vr(x,2)}, {vr(t+4,2)}")
        I(f"v_pk_mul_f32 {vr(Q+2,2)}, {vr(x+2,2)}, {vr(t+6,2)}")
        I(f"v_pk_add_f32 {vr(SS,2)}, {vr(t,2)}, {vr(t+4,2)}")
        I(f"v_pk_add_f32 {vr(SS+2,2)}, {vr(t+2,2)}, {vr(t+6,2)}")
        I(f"v_pk_fma_f32 {vr(Q,2)}, {vr(x+4,2)}, {vr(t,2)}, {vr(Q,2)}")
        I(f"v_pk_fma_f32 {vr(Q+2,2)}, {vr(x+6,2)}, {vr(t+2,2)}, {vr(Q+2,2)}")
        if OPT["sup"]:
            I(f"s_bitcmp1_b32 s83, {u}")
            I(f"s_cselect_b32 s{S_TAB+2}, s{S_TAB+2}, 0")
        if hh == 0:
            I("s_waitcnt lgkmcnt(0)")
            if not OPT["cut"] & 4:
                gathers(XB + 16 * bb, 0, 2)
            for i in range(4):
                I(f"v_rcp_f32 v{P+i}, v{P+i}")
        else:
            I("s_waitcnt vmcnt(2)")
            if not OPT["cut"] & 1:
                mfma(XB + 16 * (1 - bb))
            for i in range(4):
                I(f"v_rcp_f32 v{P+i}, v{P+i}")
            if not OPT["cut"] & 4:
                gathers(XB + 16 * bb, 2, 4)
        I(f"v_pk_fma_f32 {vr(NUM,2)}, {vr(Q,2)}, {vr(P,2)}, {vr(NUM,2)}")
        I(f"v_pk_fma_f32 {vr(DEN,2)}, {vr(SS,2)}, {vr(P,2)}, {vr(DEN,2)}")
        I(f"v_pk_fma_f32 {vr(NUM+2,2)}, {vr(Q+2,2)}, {vr(P+2,2)}, {vr(NUM+2,2)}")
        I(f"v_pk_fma_f32 {vr(DEN+2,2)}, {vr(SS+2,2)}, {vr(P+2,2)}, {vr(DEN+2,2)}")
        if hh == 1:
            if not OPT["cut"] & 4:
                i_reads(bb + 3)
            if not OPT["cut"] & 2:
                a_reads(bb + 2)
        I(f"s_bitcmp1_b32 s82, {u+1}")
        I(f"s_cbranch_scc1 K_FLUSH{u}")
        L(f"K_BACK{u}")
    I(f"v_lshl_add_u64 {vr(VRA,2)}, {vr(VRA,2)}, 0, s[20:21]")
    I("s_lshr_b32 s82, s82, 4")
    I("s_lshr_b32 s83, s83, 4")
    I("s_add_u32 s73, s73, 4")
    I("s_branch K_LOOP")
    for u in range(4):
        L(f"K_FLUSH{u}")
        I(f"s_add_u32 s74, s73, {u+1}")
        for h in range(2):
            I(f"s_bitcmp1_b32 s{44+2*h}, s74")
            I("s_cselect_b32 s75, 0xffff, 0")
            I(f"s_bitcmp1_b32 s{45+2*h}, s74")
            I("s_cselect_b32 s80, 0xffff0000, 0")
            I(f"s_or_b32 {'exec_hi' if h else 'exec_lo'}, s75, s80")
        I(f"ds_write2_b32 v{VSE}, v{DEN}, v{DEN+1} offset0:0 offset1:16")
        I(f"ds_write2_b32 v{VSE}, v{DEN+2}, v{DEN+3} offset0:32 offset1:48")
        I(f"ds_write2_b32 v{VSE}, v{NUM}, v{NUM+1} offset0:64 offset1:80")
        I(f"ds_write2_b32 v{VSE}, v{NUM+2}, v{NUM+3} offset0:96 offset1:112")
        I("s_cmp_eq_u32 s74, s72")
        I("s_cbranch_scc1 K_JOIN")
        I(f"v_lshl_add_u64 {vr(VSE,2)}, {vr(VSE,2)}, 0, s[24:25]")
        I(f"ds_read_b128 {vr(DEN,4)}, v{VOOB}")
        I(f"ds_read_b128 {vr(NUM,4)}, v{VOOB}")
        I(f"ds_read_b128 {vr(EA,4)}, v{VSE+1}")
        I("s_mov_b64 exec, -1")
        I("s_waitcnt lgkmcnt(0)")
        I(f"s_branch K_BACK{u}")

    L("K_JOIN")
    I("s_mov_b64 exec, -1")
    stamp(16)
    I("s_cmp_lt_u32 s3, 13")
    I("s_waitcnt lgkmcnt(0)")
    I("s_barrier")
    stamp(17)
    I("s_cbranch_scc0 K_FIN")
    for k in range(3):
        I(f"ds_read_b128 {vr(8+8*k,4)}, v{EP+k}")
    for k in range(3):
        I(f"ds_read_b128 {vr(12+8*k,4)}, v{EP+k} offset:256")
    I("s_cmp_lg_u64 s[48:49], 0")
    I("s_waitcnt lgkmcnt(3)")
    for k in (1, 2):
        for i in range(2):
            I(f"v_pk_add_f32 {vr(8+2*i,2)}, {vr(8+2*i,2)}, {vr(8+8*k+2*i,2)}")
    I("s_waitcnt lgkmcnt(0)")
    for k in (1, 2):
        for i in range(2, 4):
            I(f"v_pk_add_f32 {vr(8+2*i,2)}, {vr(8+2*i,2)}, {vr(8+8*k+2*i,2)}")
    I("s_cbranch_scc1 R_LONG")
    L("K_MATH")
    I("v_pk_add_f32 v[8:9], v[8:9], s[18:19]")
    I("v_pk_add_f32 v[10:11], v[10:11], s[18:19]")
    for c in range(4):
        I(f"v_rcp_f32 v{8+c}, v{8+c}")
    I("s_nop 0")
    I(f"v_pk_fma_f32 v[8:9], v[12:13], v[8:9], {vr(UR,2)}")
    I(f"v_pk_fma_f32 v[10:11], v[14:15], v[10:11], {vr(UR+2,2)}")
    for c in range(4):
        I(f"v_max_f32 v{8+c}, 0, v{8+c}")
    I(f"v_pk_add_f32 v[8:9], v[8:9], {vr(XR,2)}")
    I(f"v_pk_add_f32 v[10:11], v[10:11], {vr(XR+2,2)}")
    I("v_cvt_pk_bf16_f32 v12, v8, v9")
    I("v_cvt_pk_bf16_f32 v13, v10, v11")
    I(f"buffer_store_dwordx2 v[12:13], v{VOUT}, {sr(S_X,4)}, 0 offen")
    L("K_FIN")
    stamp(18)
    stamp_out()
    L("K_END")
    I("s_endpgm")

    L("R_PUB2")
    I("s_mov_b64 exec, vcc")
    I(f"ds_read_b128 {vr(C0+8,4)}, v4 offset:{IMG+128}")
    I(f"ds_read_b128 {vr(C0+12,4)}, v4 offset:{IMG+B2+128}")
    I("v_and_b32 v10, 7, v0")
    I(f"v_mul_u32_u24 v10, {3*INC}, v10")
    I(f"v_add_u32 v10, {24*INC}, v10")
    I("s_waitcnt lgkmcnt(0)")
    for b in range(2):
        w3 = C0 + 11 + 4 * b
        I(f"v_and_b32 v{w3}, 0x3f3f3f, v{w3}")
        for j in range(3):
            I(f"v_add_u32 v11, {j*INC}, v10")
            I(f"v_cmp_le_u32 s[70:71], v{8+b}, v11")
            I(f"v_or_b32 v11, {0x3f << (8*j)}, v{w3}")
            I("s_nop 0")
            I(f"v_cndmask_b32 v{w3}, v{w3}, v11, s[70:71]")
    I(f"v_add_u32 v8, {hex(LINE_STRIDE)}, v6")
    I(f"v_add_u32 v9, {hex(LINE_STRIDE)}, v7")
    tagit(C0 + 8)
    tagit(C0 + 12)
    I(f"global_store_dwordx4 v8, {vr(C0+8,4)}, {WS} sc1")
    I(f"global_store_dwordx4 v9, {vr(C0+12,4)}, {WS} sc1")
    I("s_branch A_PUBD")
    retry(RA, True, "B_P0")
    L("R_MORE")
    I("s_cmp_lg_u32 s79, 0")
    I("s_cbranch_scc1 R_REQ")
    for k in range(4):
        I(f"s_lshr_b32 s{74+k}, s{64+k}, 7")
        I(f"s_and_b32 s{74+k}, s{74+k}, 0x01010101")
        I(f"s_mul_i32 s{74+k}, s{74+k}, 0xff")
    I("s_mov_b64 s[68:69], s[74:75]")
    I("s_mov_b64 s[70:71], s[76:77]")
    I(f"v_add_u32 v2, {hex(LINE_STRIDE)}, v2")
    I(f"v_add_u32 v3, {hex(LINE_STRIDE)}, v3")
    reload(RB, "B_N1")
    poll(RB, False, "B_P1")
    ranks(RB, CB, KB, MB)
    I("s_or_b32 s78, s78, 1")
    more_test()
    I("s_cbranch_scc0 B_RDONE")
    I("s_mov_b32 s79, 1")
    I("s_branch R_REQ")
    retry(RB, False, "B_P1")
    L("R_TIMEOUT")
    I("s_mov_b32 s79, 3")
    for k in range(6):
        I(f"s_mov_b64 s[{MA+2*k}:{MA+2*k+1}], 0")
    I(f"v_mov_b32 v35, v{TG+3}")
    I(f"v_mov_b32 v33, {hex(CTL_OFF + 0x8000)}")
    L("R_REQ")
    I("v_mov_b32 v6, s79")
    I(f"ds_or_b32 v1, v6 offset:{FLAG}")
    I("s_branch B_RDONE")
    def bump():
        I(f"v_mov_b32 v48, {hex(CTL_OFF)}")
        I("v_mov_b32 v50, 0x1000000")
        I("v_mov_b32 v51, 0")
        I("s_mov_b64 exec, 1")
        I(f"global_atomic_add_x2 v48, v[50:51], {WS} offset:8 sc1")
        I("s_mov_b64 exec, -1")
    L("R_EXTRA")
    I("s_bitcmp1_b32 s78, 0")
    I("s_cbranch_scc0 R_X2")
    I("s_waitcnt lgkmcnt(0)")
    lookup(CB)
    scatter(RB, CB, KB, MB)
    L("R_X2")
    I("s_bitcmp1_b32 s78, 1")
    I("s_cbranch_scc0 B_XDONE")
    I("s_cmp_eq_u32 s3, 1")
    I("s_cbranch_scc1 R_PAD")
    I("s_add_u32 s71, s66, 1")
    I("v_cvt_f32_u32 v48, s71")
    I("v_cvt_f32_u32 v49, s66")
    I("s_lshl_b32 s73, s67, 2")
    I("s_mul_i32 s71, s71, s73")
    I("v_rcp_f32 v48, v48")
    I("v_rcp_f32 v49, v49")
    I("v_cvt_f32_u32 v50, s71")
    I("v_cvt_f32_u32 v51, s73")
    I("v_fma_f32 v50, -v50, v49, v51")
    I(f"v_mov_b32 v51, {hex(f32(0.125))}")
    def stream_of(dst, src, half):
        I(f"v_cvt_f32_u32 v{dst}, v{src}")
        I(f"v_fma_f32 v{dst}, v{dst}, v51, {half}")
        I(f"v_mul_f32 v52, v{dst}, v48")
        I(f"v_fma_f32 v{dst}, v{dst}, v49, v50")
        I(f"v_max_f32 v{dst}, v{dst}, v52")
        I(f"v_cvt_u32_f32 v{dst}, v{dst}")
    stream_of(53, 3, "-0.5")
    I("s_cmp_eq_u32 s3, 2")
    I("s_cbranch_scc1 R_EPI")
    I("s_cmp_eq_u32 s3, 3")
    I("s_cbranch_scc1 R_FIRST")
    I("v_min_u32 v55, s73, v53")
    I("v_mad_u32_u24 v55, v53, s66, v55")
    I("v_lshrrev_b32 v56, 3, v3")
    I("v_sub_u32 v55, v56, v55")
    I("v_lshlrev_b32 v55, v55, 1")
    I("v_lshlrev_b32 v56, 4, v53")
    I("s_mov_b64 exec, s[82:83]")
    I(f"ds_or_b32 v56, v55 offset:{STR + 8}")
    I("s_mov_b64 exec, -1")
    I("s_branch B_XDONE")
    L("R_FIRST")
    I("v_mov_b32 v54, -1")
    I("v_cndmask_b32 v53, 63, v53, s[82:83]")
    I(f"v_mul_u32_u24 v59, {EAU_STRIDE//4}, v5")
    I(f"v_add_u32 v59, {EAU_OFF}, v59")
    I("v_mov_b32_dpp v54, v53 wave_shr:1 row_mask:0xf bank_mask:0xf")
    I("v_lshl_add_u32 v58, v54, 2, v5")
    I(f"v_mul_i32_i24 v58, {SLOT_STRIDE//4}, v58")
    I(f"v_add_u32 v58, {SLOT_OFF}, v58")
    I("v_lshlrev_b32 v54, 4, v54")
    I("v_lshlrev_b32 v53, 4, v53")
    L("R_FIRST1")
    I("v_cmp_lt_i32 s[74:75], v54, v53")
    I("s_mov_b64 exec, s[74:75]")
    I("s_cbranch_execz R_FIRST2")
    I("v_add_u32 v54, 16, v54")
    I(f"v_add_u32 v58, {SLOT_STRIDE}, v58")
    I(f"ds_write_b64 v54, v[58:59] offset:{STR}")
    I("s_branch R_FIRST1")
    L("R_FIRST2")
    I("s_mov_b64 exec, -1")
    I("s_branch B_XDONE")
    L("R_EPI")
    stream_of(54, 7, "0.5")
    I("v_sub_u32 v59, v53, v54")
    I("v_lshl_add_u32 v56, v54, 2, v5")
    I(f"v_mul_u32_u24 v56, {SLOT_STRIDE//4}, v56")
    I(f"v_add_u32 v56, {SLOT_OFF}, v56")
    I("v_cmp_lt_i32 s[74:75], 0, v59")
    I("v_cmp_lt_i32 s[76:77], 1, v59")
    I(f"v_add_u32 v57, {SLOT_STRIDE}, v56")
    I(f"v_add_u32 v58, {2*SLOT_STRIDE}, v56")
    I(f"v_cndmask_b32 v57, v{VOOB}, v57, s[74:75]")
    I(f"v_cndmask_b32 v58, v{VOOB}, v58, s[76:77]")
    I("v_lshlrev_b32 v55, 2, v5")
    I(f"ds_write_b128 v55, v[56:59] offset:{EPI}")
    I("s_branch B_XDONE")
    L("R_PAD")
    I(f"v_mov_b32 v52, {N}")
    I(f"v_add_u32 v53, {LIST_OFF - 8}, v3")
    I("v_cmp_lt_u32 s[74:75], v6, v2")
    I("s_mov_b64 exec, s[74:75]")
    I("ds_write_b32 v53, v52 offset:4")
    I("v_cmp_eq_u32 s[74:75], 0, v6")
    I("s_mov_b64 exec, s[74:75]")
    I("ds_write_b32 v53, v52")
    I("s_mov_b64 exec, 0x3f")
    I("s_add_u32 s71, s64, s85")
    I("v_add_u32 v53, s71, v5")
    I("ds_write_b32 v53, v52")
    I("s_mov_b64 exec, -1")
    I("s_cmp_eq_u32 s2, 0")
    I("s_cbranch_scc0 B_XDONE")
    bump()
    I("s_branch B_XDONE")
    L("R_FLAGS")
    I("s_add_u32 s43, s43, 1")
    I(f"s_cmp_gt_u32 s43, {POLL_LIMIT}")
    I("s_cbranch_scc1 R_FLAGT")
    I("s_sleep 2")
    I("s_mov_b64 exec, vcc")
    I(f"global_load_dword v35, v34, {WS} sc1")
    I("s_waitcnt vmcnt(0)")
    I(f"v_cmp_ne_u32 vcc, v{TG+3}, v35")
    I("s_mov_b64 exec, -1")
    I("s_branch B_XDONE")
    L("R_FLAGT")
    I("v_mov_b32 v52, 3")
    I(f"ds_or_b32 v1, v52 offset:{FLAG}")
    I("s_branch B_FDONE")
    L("R_LONG")
    I("s_mov_b32 s64, 2")
    I("s_mov_b64 vcc, s[48:49]")
    L("R_LONG1")
    I("s_mov_b64 exec, vcc")
    I(f"v_add_u32 v{EP+2}, {SLOT_STRIDE}, v{EP+2}")
    I(f"ds_read_b128 v[16:19], v{EP+2}")
    I(f"ds_read_b128 v[20:23], v{EP+2} offset:256")
    I("s_add_u32 s64, s64, 1")
    I("s_waitcnt lgkmcnt(0)")
    for i in range(4):
        I(f"v_pk_add_f32 {vr(8+2*i,2)}, {vr(8+2*i,2)}, {vr(16+2*i,2)}")
    I(f"v_cmp_lt_i32 vcc, s64, v{EP+3}")
    I("s_cbranch_vccnz R_LONG1")
    I("s_mov_b64 exec, -1")
    I("s_branch K_MATH")

    L("K_SLOW")
    I("s_load_dwordx8 s[4:11], s[0:1], 0")
    I("s_load_dwordx2 s[12:13], s[0:1], 40")
    I("s_load_dwordx2 s[14:15], s[0:1], 64")
    I("s_setprio 0")
    I("s_waitcnt vmcnt(0) lgkmcnt(0)")
    I("s_cmp_eq_u32 s3, 15")
    I("s_cselect_b32 s71, s80, 0")
    I("s_and_b32 s71, s71, 2")
    I("s_cbranch_scc0 K_SL0")
    bump()
    I("s_waitcnt vmcnt(0)")
    L("K_SL0")
    WB2, WV2 = 40, 72
    I("v_lshrrev_b32 v6, 1, v5")
    I("v_add_u32 v7, 4096, v6")
    for (w, p_) in ((WB2, 12), (WV2, 14)):
        for hf in range(2):
            for k in range(16):
                I(f"global_load_ushort v{w + 16*hf + k}, v{6 + hf}, s[{p_}:{p_+1}] offset:{2*k*128}")
                I(f"global_load_ushort v{8 + k}, v{6 + hf}, s[{p_}:{p_+1}] offset:{(2*k+1)*128}")
            I("s_waitcnt vmcnt(0)")
            for k in range(16):
                I(f"v_lshl_or_b32 v{w + 16*hf + k}, v{8 + k}, 16, v{w + 16*hf + k}")
    for i in range(4):
        I(f"v_mov_b32 v{28+i}, 0")
    I("v_lshlrev_b32 v8, 4, v0")
    for k in range(4):
        I(f"ds_write_b128 v8, v[28:31] offset:{SLOT_OFF + k*16384}")
    I(f"ds_read_u16 v18, v6 offset:{WC_OFF}")
    I(f"s_mov_b32 s18, {hex(f32(1e-6))}")
    I("s_mov_b32 s19, s18")
    I(f"s_mov_b32 s16, {hex(f32(-LOG2E))}")
    I(f"v_lshl_add_u32 v17, v124, 2, v{LC}")
    I("v_lshlrev_b32 v10, 1, v5")
    I("s_waitcnt lgkmcnt(0)")
    I("v_lshlrev_b32 v18, 16, v18")
    I("s_barrier")
    I("v_lshlrev_b32 v8, 2, v0")
    I("v_lshlrev_b32 v9, 1, v0")
    I("s_lshl_b32 s70, s3, 6")
    L("K_SLOOP")
    I(f"global_load_dword v11, v8, {sr(P_DST,2)}")
    I(f"global_load_dword v12, v8, {sr(P_SRC,2)}")
    I(f"global_load_ushort v13, v9, {sr(P_E,2)}")
    I("s_waitcnt vmcnt(0)")
    I("v_and_b32 v14, 0xff, v11")
    I("v_cmp_eq_u32 s[74:75], s2, v14")
    L("K_SIN")
    I("s_cmp_eq_u64 s[74:75], 0")
    I("s_cbranch_scc1 K_SNEXT")
    I("s_ff1_i32_b64 s73, s[74:75]")
    I("s_bitset0_b64 s[74:75], s73")
    I("v_readlane_b32 s79, v11, s73")
    I("v_readlane_b32 s80, v12, s73")
    I("v_readlane_b32 s81, v13, s73")
    I("s_lshr_b32 s79, s79, 8")
    I(f"s_mul_i32 s76, s79, {EAU_STRIDE}")
    I(f"s_add_u32 s76, s76, {EAU_OFF + 512}")
    I(f"s_mul_i32 s79, s79, {ACC_STRIDE}")
    I("s_lshl_b32 s80, s80, 7")
    I("s_add_u32 s78, s80, 64")
    I(f"s_load_dwordx16 s[36:51], {sr(P_X,2)}, s80")
    I(f"s_load_dwordx16 s[52:67], {sr(P_X,2)}, s78")
    I("s_lshl_b32 s81, s81, 16")
    I("v_add_u32 v15, s76, v17")
    I("v_add_u32 v16, s79, v10")
    I("ds_read_b32 v22, v15")
    I("v_mul_f32 v20, s81, v18")
    I("v_mov_b32 v21, 0")
    I("s_waitcnt lgkmcnt(0)")
    for k in range(32):
        I(f"v_dot2_f32_bf16 v20, s{36+k}, v{WB2+k}, v20")
        I(f"v_dot2_f32_bf16 v21, s{36+k}, v{WV2+k}, v21")
    I("s_nop 2")
    I("v_fma_f32 v20, v20, s16, v22")
    I("v_exp_f32 v20, v20")
    I("s_nop 0")
    I("v_add_f32 v20, 1.0, v20")
    I("v_rcp_f32 v20, v20")
    I("s_nop 0")
    I("v_mul_f32 v21, v21, v20")
    I("v_cvt_f64_f32 v[24:25], v20")
    I("v_cvt_f64_f32 v[26:27], v21")
    I(f"ds_add_f64 v16, v[24:25] offset:{SLOT_OFF}")
    I(f"ds_add_f64 v16, v[26:27] offset:{SLOT_OFF + 512}")
    I("s_branch K_SIN")
    L("K_SNEXT")
    I("s_add_u32 s70, s70, 1024")
    I("v_add_u32 v8, 4096, v8")
    I("v_add_u32 v9, 2048, v9")
    I(f"s_cmp_lt_u32 s70, {E}")
    I("s_cbranch_scc1 K_SLOOP")
    I("v_lshrrev_b32 v6, 4, v0")
    I(f"v_mul_u32_u24 v6, {ACC_STRIDE}, v6")
    I(f"v_lshl_add_u32 v6, v{LC}, 1, v6")
    I("s_waitcnt lgkmcnt(0)")
    I("s_barrier")
    I("s_cmp_lt_u32 s3, 13")
    I("s_cbranch_scc0 K_FIN")
    I(f"ds_read_b128 v[16:19], v6 offset:{SLOT_OFF}")
    I(f"ds_read_b128 v[20:23], v6 offset:{SLOT_OFF+16}")
    I(f"ds_read_b128 v[24:27], v6 offset:{SLOT_OFF+512}")
    I(f"ds_read_b128 v[28:31], v6 offset:{SLOT_OFF+528}")
    I("s_waitcnt lgkmcnt(0)")
    for c in range(8):
        I(f"v_cvt_f32_f64 v{8+c}, {vr(16+2*c,2)}")
    I("s_branch K_MATH")
    L("SLOW_END")

hdr = open("standalone__edge_featured_mpnn_gatedgcn__graph.s.ref").read().split("\n")
for line in hdr:
    if line.startswith("; Override"):
        break
    o(line)
o(f"; @launch kernel={KNAME} grid=(256,1,1) block=(1024,1,1) lds={LDS_TOTAL}")
o('.amdgcn_target "amdgcn-amd-amdhsa--gfx950"')
o(".text")
gen()
o('.section .rodata,"a"')
o(".p2align 6")
o(f".amdhsa_kernel {KNAME}")
o("  .amdhsa_next_free_vgpr 128")
o("  .amdhsa_next_free_sgpr 102")
o("  .amdhsa_accum_offset 128")
o("  .amdhsa_group_segment_fixed_size 0")
o("  .amdhsa_kernarg_size 96")
o("  .amdhsa_user_sgpr_count 2")
o("  .amdhsa_user_sgpr_kernarg_segment_ptr 1")
o("  .amdhsa_system_sgpr_workgroup_id_x 1")
o(".end_amdhsa_kernel")
open(sys.argv[1], "w").write("\n".join(out) + "\n")
```

```python
import sys, struct

OPT = dict(stamp=0, sts="2_3_4_5_6_7", force_slow=0, prio="16_8_4", spin=0, spinat=18, hack=0, sleep=2, delay=0,
           codepf=1, gprio=1, pf=0, pf2=0, pre=1, cfirst=0, gbar=0, init1=1, pf3=0, pfw=0, drain=0, pf4=0, tlb=0, gl=1, pf5=1, pfa=1, osc="none", esc="none", sup=1, cprio=1, nog=0, gsc="sc1", cut=0, ef=0, fs=4)
for a in sys.argv[2:]:
    k, v = a.split("=")
    OPT[k] = int(v) if v.lstrip("-").isdigit() else v

KNAME = "standalone__edge_featured_mpnn_gatedgcn__graph_kernel"
N = 12500
E = 800000
CHUNK = 3136
TAB_ROWS = N + 1
CTL_OFF = 0x380000
FLG_OFF = 0x390000
CELL_OFF = 0x400000
BIN_STRIDE = 32768 + 256
LINE_STRIDE = 0x900000
STAMP_OFF = 0x4000000
LOG2E = 1.4426950408889634
KEXP = 62
POLL_LIMIT = 100000

X_OFF = 0
WC_OFF = 8192
C1_OFF = 8448
C2_OFF = 9472
FLAG = C2_OFF + 256
SYNC = C2_OFF + 260
TAGS = C2_OFF + 272
BASE = C2_OFF + 512
STR = C2_OFF + 1024
EPI = C2_OFF + 2048
IMG = C2_OFF + 3072
IMG_STRIDE = 272
EAU_OFF = IMG + 256 * IMG_STRIDE
EAU_STRIDE = 800
W_OFF = EAU_OFF + 52 * EAU_STRIDE
LDS_TOTAL = W_OFF + 32768
LIST_OFF = W_OFF
LIST_MAX = 31 * 16 * 32
SLOT_OFF = IMG
SLOT_STRIDE = 576
ACC_STRIDE = 1056
OOB = 0x30000
assert W_OFF % 128 == 0 and 117 * SLOT_STRIDE <= 256 * IMG_STRIDE and LDS_TOTAL <= 163840
INC = 0x5556

def f32(x):
    return struct.unpack("<I", struct.pack("<f", x))[0]

out = []
def o(s=""):
    out.append(s)
def I(s):
    out.append("    " + s)
def L(s):
    out.append(s + ":")
def vr(a, n=1):
    return f"v{a}" if n == 1 else f"v[{a}:{a+n-1}]"
def sr(a, n=1):
    return f"s{a}" if n == 1 else f"s[{a}:{a+n-1}]"
def sdwa(sel1):
    return f"dst_sel:DWORD dst_unused:UNUSED_PAD src0_sel:DWORD src1_sel:{sel1}"

P_X, P_E, P_SRC, P_DST, P_WA, P_WB, P_WC, P_WU, P_WV, P_OUT, P_DBG, P_WS = 4, 6, 8, 10, 12, 14, 16, 18, 20, 22, 24, 26
S_TAB, S_X = 28, 32
WS = sr(P_WS, 2)

STS = [int(x) for x in str(OPT["sts"]).split("_")] if OPT["stamp"] else []
RTS = {12: 28, 17: 29} if OPT["stamp"] == 2 else {}
def stamp(i):
    if OPT["spin"] and OPT["spinat"] == i:
        lab = f"SPIN_{len(out)}"
        I("s_cselect_b32 s92, 1, 0")
        L(lab)
        I("s_memrealtime s[90:91]")
        I("s_waitcnt lgkmcnt(0)")
        I("s_sub_u32 s90, s90, s98")
        I(f"s_cmp_lt_u32 s90, {OPT['spin']}")
        I(f"s_cbranch_scc1 {lab}")
        I("s_cmp_lg_u32 s92, 0")
    if not OPT["stamp"]:
        return
    if i == 0:
        I("s_memrealtime s[86:87]")
    elif i == 1:
        I("s_memtime s[88:89]")
    elif i in STS:
        k = 90 + 2 * STS.index(i)
        I(f"s_memtime s[{k}:{k+1}]")
        if i in RTS:
            k = 90 + 2 * STS.index(RTS[i])
            I(f"s_memrealtime s[{k}:{k+1}]")
def stamp_out():
    if not OPT["stamp"]:
        return
    I("s_mov_b64 exec, -1")
    I("s_waitcnt vmcnt(0) lgkmcnt(0)")
    I("s_memtime s[80:81]")
    I("s_memrealtime s[82:83]")
    I("s_waitcnt lgkmcnt(0)")
    I("v_writelane_b32 v127, s80, 30")
    I("v_writelane_b32 v127, s82, 31")
    I("v_writelane_b32 v127, s86, 0")
    I("v_writelane_b32 v127, s88, 1")
    for i in list(range(2, 19)) + list(range(20, 30)):
        I(f"v_writelane_b32 v127, s{90 + 2*STS.index(i) if i in STS else 88}, {i}")
    I("s_lshl_b32 s84, s2, 4")
    I("s_add_u32 s84, s84, s3")
    I("s_lshl_b32 s84, s84, 7")
    I(f"s_add_u32 s84, s84, {hex(STAMP_OFF)}")
    I("v_and_b32 v1, 63, v0")
    I("v_lshl_add_u32 v1, v1, 2, s84")
    I("s_mov_b64 exec, 0xffffffff")
    I(f"global_store_dword v1, v127, {WS}")

def srd(d, p, size):
    I(f"s_mov_b64 {sr(d,2)}, {sr(p,2)}")
    I(f"s_mov_b32 s{d+2}, {hex(size)}")
    I(f"s_mov_b32 s{d+3}, 0x20000")

D, S, EE = 16, 20, 24
AP = 104
TG = 120
B2 = 128 * IMG_STRIDE

def edge_loads(lo=0, hi=3):
    ins = [f"global_load_dwordx4 {vr(D,4)}, v10, {sr(P_DST,2)}",
           f"global_load_dwordx4 {vr(S,4)}, v10, {sr(P_SRC,2)}",
           f"global_load_dwordx2 {vr(EE,2)}, v11, {sr(P_E,2)}"]
    for x in ins[lo:hi]:
        I(x + " " + OPT["esc"].replace("none", ""))

def binning(waits):
    B4, RK, PA = 28, 32, 36
    I(f"v_mov_b32 v14, {INC}")
    I(f"s_mov_b32 s68, {47*INC}")
    I("s_mov_b32 s69, 0x05040100")
    I("s_mov_b32 s70, 0x07060100")
    if waits:
        I("s_waitcnt vmcnt(2)")
        stamp(3)
    for i in range(4):
        I(f"v_lshlrev_b32_sdwa v{B4+i}, 2, v{D+i} {sdwa('BYTE_0')}")
        I(f"ds_add_rtn_u32 v{RK+i}, v{B4+i}, v14 offset:{C1_OFF}")
    for i in range(4):
        I(f"v_mul_u32_u24 v{B4+i}, {IMG_STRIDE//4}, v{B4+i}")
        I(f"v_lshrrev_b32 v{D+i}, 8, v{D+i}")
    for i in range(4):
        I("s_waitcnt lgkmcnt(3)")
        I(f"v_min_u32 v{RK+i}, s68, v{RK+i}")
        I(f"v_lshrrev_b32 v{RK+i}, 14, v{RK+i}")
        I(f"v_lshl_add_u32 v{PA+i}, v{RK+i}, 2, v{B4+i}")
        I(f"v_and_b32 v{RK+i}, 3, v{RK+i}")
        I(f"v_or3_b32 v{RK+i}, v{PA+i}, 12, v{RK+i}")
        I(f"ds_write_b8 v{RK+i}, v{D+i} offset:{IMG}")
    if waits:
        I("s_waitcnt vmcnt(0)")
        stamp(4)
    for i in range(4):
        if OPT["hack"]:
            I(f"v_and_b32 v{S+i}, {OPT['hack']}, v{S+i}")
        I(f"v_perm_b32 v{S+i}, v{EE+(i>>1)}, v{S+i}, s{69+(i&1)}")
        I(f"ds_write_b32 v{PA+i}, v{S+i} offset:{IMG}")

def copy_consts():
    I("s_lshr_b32 s64, s2, 7")
    I("s_lshl_b32 s64, s64, 14")
    I(f"s_add_u32 s64, s64, {hex(CELL_OFF)}")
    I(f"v_mul_u32_u24 v6, {BIN_STRIDE//4}, v5")
    I("v_lshl_add_u32 v6, v0, 4, v6")
    I("v_add_u32 v6, s64, v6")
    I(f"v_add_u32 v7, {128*BIN_STRIDE}, v6")
    I(f"s_mul_i32 s64, s2, {BIN_STRIDE}")
    I(f"s_add_u32 s64, s64, {hex(CELL_OFF)}")
    I("v_lshl_add_u32 v2, v0, 4, s64")
    I("v_add_u32 v3, 0x4000, v2")
    I("s_mov_b32 s36, 0x0f0f0f0f")
    I("s_mov_b32 s37, s36")
    I(f"s_mov_b32 s38, {12*INC}")
    I(f"s_mov_b32 s39, {24*INC}")
    I("s_mov_b32 s40, 0xc000")
    I("s_mov_b32 s41, 0xffc0c0c0")
    I(f"s_mov_b32 s42, {49 << 16}")
    I("s_mov_b32 s43, 0")
    I("v_mov_b32 v1, 0")
    I(f"s_mov_b32 s{S_TAB}, s{P_WS}")
    I(f"s_or_b32 s{S_TAB+1}, s{P_WS+1}, 0x1000000")
    I(f"s_mov_b32 s{S_TAB+2}, {0 if OPT['nog'] else TAB_ROWS}")
    I(f"s_mov_b32 s{S_TAB+3}, 0x20000")

def lds_init():
    I("v_add_u32 v5, s2, v3")
    I("v_and_b32 v5, 127, v5")
    I(f"v_mul_u32_u24 v4, {IMG_STRIDE}, v5")
    I("v_lshl_add_u32 v4, v2, 4, v4")
    I("v_lshlrev_b32 v5, 2, v5")
    I("v_mov_b32 v12, 0")
    I("v_mov_b32 v13, 0x3f3f3f")
    I(f"ds_write2st64_b32 v5, v12, v12 offset0:{C1_OFF//256} offset1:{C1_OFF//256+2}")
    for r in range(1 if OPT["init1"] else 2):
        for b in range(2):
            I(f"ds_write_b32 v4, v13 offset:{IMG + b*B2 + r*128 + 12}")
def edge_addr():
    I(f"s_mul_i32 s64, s2, {CHUNK*4}")
    I("v_lshl_add_u32 v10, v0, 4, s64")
    I("v_lshrrev_b32 v11, 1, v10")

def gen():
    o(".p2align 8")
    o(f".globl {KNAME}")
    o(f".type {KNAME},@function")
    L(KNAME)
    I("s_cmp_ge_u32 s2, 256")
    I("s_cbranch_scc1 K_END")
    stamp(0); stamp(1)
    I("s_load_dwordx16 s[4:19], s[0:1], 0")
    I("s_load_dwordx8 s[20:27], s[0:1], 64")
    if OPT["spin"]:
        I("s_memrealtime s[98:99]")
    I("v_lshrrev_b32 v1, 6, v0")
    I("v_and_b32 v2, 7, v0")
    I("v_readfirstlane_b32 s3, v1")
    I("v_lshrrev_b32 v3, 3, v0")
    I("s_mov_b32 s79, 0")
    I("s_cmp_ge_u32 s3, 12")
    I("s_cbranch_scc1 G_ENTRY")

    I("s_cmp_ge_u32 s3, 2")
    I("s_cbranch_scc1 A_NOPF")
    if OPT["codepf"]:
        I("s_getpc_b64 s[64:65]")
        L("A_PC")
        I("v_lshlrev_b32 v8, 7, v0")
        I("v_min_u32 v8, K_SLOW-A_PC-4, v8")
        I("global_load_dword v27, v8, s[64:65]")
    I("v_lshlrev_b32 v8, 4, v0")
    I("v_mov_b64 v[12:13], 0")
    I("v_mov_b64 v[14:15], 0")
    I(f"ds_write_b128 v8, v[12:15] offset:{C2_OFF}")
    L("A_NOPF")
    lds_init()
    edge_addr()
    I(f"v_cmp_gt_u32 vcc, {E*4}, v10")
    I("s_waitcnt lgkmcnt(0)")
    stamp(24)
    if OPT["cfirst"]:
        copy_consts()
    I("s_mov_b64 exec, vcc")
    I("s_cbranch_execz A_NOE")
    edge_loads(0, OPT["pre"])
    if OPT["tlb"]:
        I("s_cmp_eq_u32 s3, 0")
        I("s_cbranch_scc0 A_NOTLB")
        I("s_mov_b64 exec, 1")
        if OPT["tlb"] & 1:
            I(f"global_load_dword v26, v10, {sr(P_SRC,2)}")
            I(f"global_load_dword v26, v11, {sr(P_E,2)}")
        if OPT["tlb"] & 2:
            I(f"global_load_dword v26, v12, {sr(P_OUT,2)}")
            I("s_mov_b64 exec, 0xffff")
            I(f"v_mul_u32_u24 v8, {16*BIN_STRIDE}, v0")
            I(f"v_add_u32 v8, {hex(CELL_OFF + 32768)}, v8")
            I(f"global_load_dword v26, v8, {WS}")
        I("s_mov_b64 exec, vcc")
        L("A_NOTLB")
    I("s_barrier")
    stamp(2)
    edge_loads(OPT["pre"], 3)
    if not OPT["cfirst"]:
        I("s_mov_b64 exec, -1")
        copy_consts()
        I("s_mov_b64 exec, vcc")
    binning(True)
    I("s_mov_b64 exec, -1")
    I("s_branch A_JOIN")
    L("A_NOE")
    I("s_barrier")
    I("s_mov_b64 exec, -1")
    if not OPT["cfirst"]:
        copy_consts()
    I("s_branch A_JOIN")

    XA, FA, FB, ACC1, ACC2 = 28, 36, 68, 104, 36
    L("G_ENTRY")
    if OPT["gprio"]:
        I("s_setprio 3")
    I("v_and_b32 v7, 7, v3")
    I("s_and_b32 s64, s3, 1")
    I("s_lshl_b32 s64, s64, 2")
    I("v_and_b32 v8, 2, v7")
    I("v_xor_b32 v8, v8, v2")
    I("v_xor_b32 v8, s64, v8")
    I("v_lshlrev_b32 v8, 4, v8")
    I("v_lshl_add_u32 v8, v7, 7, v8")
    I("s_and_b32 s65, s3, 3")
    I("s_lshl_b32 s65, s65, 11")
    I("v_add_u32 v8, s65, v8")
    I(f"s_add_u32 s65, s65, {W_OFF}")
    I("s_add_u32 s66, s3, 3")
    I("s_and_b32 s66, s66, 3")
    I("v_xor_b32 v9, v2, v7")
    I("v_lshlrev_b32 v9, 4, v9")
    I("v_lshl_add_u32 v9, v7, 15, v9")
    I("s_lshl_b32 s67, s66, 19")
    I("s_lshl_b32 s68, s2, 7")
    I("s_add_u32 s67, s67, s68")
    I("v_add_u32 v9, s67, v9")
    I("v_add_u32 v15, 0x40000, v9")
    I("s_lshl_b32 s67, s66, 11")
    I(f"s_mov_b32 s{S_X+2}, {N*128}")
    I(f"s_mov_b32 s{S_X+3}, 0x20000")
    I("s_mov_b32 m0, s67")
    I("s_waitcnt lgkmcnt(0)")
    stamp(24)
    I(f"s_mov_b64 {sr(S_X,2)}, {sr(P_X,2)}")
    I(f"buffer_load_dwordx4 v9, {sr(S_X,4)}, 0 offen lds")
    I("s_add_u32 m0, s67, 1024")
    I("s_nop 0")
    I(f"buffer_load_dwordx4 v15, {sr(S_X,4)}, 0 offen lds")
    def w_dma(p, off, va="v8", sd="s65"):
        I(f"s_add_u32 m0, {sd}, {off}")
        I("s_nop 0")
        I(f"global_load_lds_dwordx4 {va}, {sr(p,2)}")
        I(f"global_load_lds_dwordx4 {va}, {sr(p,2)} offset:1024")
    w_dma(P_WB, 0)
    w_dma(P_WV, 8192)
    lds_init()
    edge_addr()
    if OPT["gbar"]:
        I("s_waitcnt lgkmcnt(0)")
        I("s_barrier")
        stamp(2)
    I("s_cmp_eq_u32 s3, 12")
    I("s_cselect_b32 s74, 0xffff, 0")
    I("s_cmp_eq_u32 s2, 255")
    I("s_cselect_b32 s74, 0, s74")
    I("s_mov_b32 s75, 0")
    I("s_mov_b64 exec, s[74:75]")
    I("s_cbranch_execz G_NOE")
    edge_loads()
    L("G_NOE")
    I("s_mov_b64 exec, -1")
    I("v_mov_b32 v126, v8")
    I("v_lshlrev_b32 v100, 4, v2")
    I("s_mov_b32 s78, s65")
    I(f"s_mov_b64 {sr(S_X,2)}, {WS}")
    I(f"s_mov_b32 s{S_X+2}, {TAB_ROWS*256}")
    copy_consts()
    I("v_and_b32 v124, 15, v0")
    I("v_bfe_u32 v125, v0, 4, 2")
    I("v_and_b32 v8, 7, v124")
    I("v_lshlrev_b32 v9, 1, v125")
    I("v_xor_b32 v8, v8, v9")
    I("v_lshlrev_b32 v8, 4, v8")
    I("v_lshl_add_u32 v8, v124, 7, v8")
    I("v_add_u32 v8, s67, v8")
    I("v_xor_b32 v9, 16, v8")
    I("v_lshrrev_b32 v10, 2, v124")
    I("v_and_b32 v11, 2, v10")
    I("v_bfe_u32 v12, v0, 1, 1")
    I("v_or_b32 v11, v11, v12")
    I("v_and_b32 v12, 1, v125")
    I("v_lshl_or_b32 v11, v12, 2, v11")
    I("v_lshlrev_b32 v11, 4, v11")
    I("v_and_b32 v12, 1, v0")
    I("v_lshl_or_b32 v11, v12, 3, v11")
    I("v_lshl_add_u32 v10, v125, 4, v10")
    I("v_lshl_or_b32 v11, v10, 7, v11")
    I(f"v_add_u32 v12, {W_OFF}, v11")
    for T in range(1, 4):
        I(f"v_xor_b32 v{12+T}, {T << 5}, v12")
    I(f"s_mov_b32 s76, {hex(f32(-LOG2E))}")
    I("s_mov_b32 s77, 0x07060302")
    I(f"v_mov_b32 v26, {hex(f32(2.0**-70))}")
    I("s_lshl_b32 s64, s66, 20")
    I("s_lshl_b32 s65, s2, 8")
    I("s_add_u32 s64, s64, s65")
    I("v_lshlrev_b32 v27, 18, v125")
    I("v_lshl_add_u32 v27, v124, 4, v27")
    I("v_add_u32 v27, s64, v27")
    I("v_mov_b32 v10, 1")
    def g_sync(target, lab, arrive=True):
        if arrive:
            I("s_mov_b64 exec, 1")
            I(f"ds_add_u32 v1, v10 offset:{SYNC}")
            I("s_mov_b64 exec, -1")
        L(lab)
        I(f"ds_read_b32 v11, v1 offset:{SYNC}")
        I("s_waitcnt lgkmcnt(0)")
        I("v_readfirstlane_b32 s64, v11")
        I(f"s_cmp_lt_u32 s64, {target}")
        I(f"s_cbranch_scc1 {lab}")
    def frag_reads(F, moff):
        for T in range(4):
            for s in range(2):
                for h in range(2):
                    I(f"ds_read_b64_tr_b16 {vr(F + 8*T + 4*s + 2*h, 2)}, v{12+T} offset:{moff + (8*s+4*h)*128}")
    def mfmas(F, acc, swap, later):
        for T in range(4):
            I(f"s_waitcnt lgkmcnt({min(15, later + 4*(3-T))})")
            for s in range(2):
                a, b = vr(XA + 4*s, 4), vr(F + 8*T + 4*s, 4)
                if swap:
                    a, b = b, a
                c = "0" if s == 0 else vr(acc + 4*T, 4)
                I(f"v_mfma_f32_16x16x32_bf16 {vr(acc+4*T,4)}, {a}, {b}, {c}")
    if not OPT["gbar"]:
        I("s_waitcnt lgkmcnt(0)")
        I("s_barrier")
        stamp(2)
    I("s_cmp_eq_u64 s[74:75], 0")
    I("s_cbranch_scc1 G_W0")
    I("s_waitcnt vmcnt(3)")
    I("s_branch G_W1")
    L("G_W0")
    I("s_waitcnt vmcnt(0)")
    L("G_W1")
    stamp(3)
    g_sync(4, "G_S1")
    stamp(20)
    I(f"ds_read_b128 {vr(XA,4)}, v8")
    I(f"ds_read_b128 {vr(XA+4,4)}, v9")
    frag_reads(FA, 0)
    frag_reads(FB, 8192)
    stamp(21)
    w_dma(P_WA, 16384, "v126", "s78")
    w_dma(P_WU, 24576, "v126", "s78")
    I("s_cmp_eq_u32 s3, 13")
    I("s_cbranch_scc0 G_NOWC")
    I(f"s_mov_b32 m0, {WC_OFF}")
    I("s_mov_b64 exec, 0xff")
    I(f"global_load_lds_dwordx4 v100, {sr(P_WC,2)}")
    I("s_mov_b64 exec, -1")
    L("G_NOWC")
    stamp(22)
    mfmas(FA, ACC1, False, 16)
    mfmas(FB, ACC2, False, 0)
    stamp(23)
    I("s_cmp_eq_u32 s3, 13")
    I("s_cbranch_scc0 G_NOEP")
    I(f"s_add_u32 s70, s{P_WS}, {hex(CTL_OFF)}")
    I(f"s_addc_u32 s71, s{P_WS+1}, 0")
    I("s_load_dwordx2 s[72:73], s[70:71], 8")
    L("G_NOEP")
    ACCB, ACCV, OUTR = ACC1, ACC2, FB
    SD = sdwa("WORD_1")
    I("s_mov_b32 s80, 0x8000")
    I("s_mov_b32 s81, 0x8000")
    I(f"s_mov_b32 s68, {hex(f32(2.0**-100))}")
    I("s_mov_b32 s69, s68")
    I("v_mov_b32 v10, v26")
    I("v_mov_b32 v11, v26")
    I("s_nop 1")
    for rp in (0, 2):
        for t in range(4):
            I(f"v_pk_fma_f32 {vr(ACCB+4*t+rp,2)}, {vr(ACCB+4*t+rp,2)}, s[76:77], v[10:11] op_sel_hi:[1,0,1]")
        for t in (1, 3):
            I(f"v_pk_add_f32 {vr(ACCV+4*t+rp,2)}, {vr(ACCV+4*t+rp,2)}, s[68:69]")
        for t in range(4):
            I(f"v_lshl_add_u64 {vr(ACCB+4*t+rp,2)}, {vr(ACCB+4*t+rp,2)}, 0, s[80:81]")
        for t in range(4):
            I(f"v_lshl_add_u64 {vr(ACCV+4*t+rp,2)}, {vr(ACCV+4*t+rp,2)}, 0, s[80:81]")
        for r in (rp, rp + 1):
            for t in (0, 2):
                I(f"v_sub_u32_sdwa v{ACCB+4*t+r}, v{ACCB+4*t+r}, v{ACCV+4*t+r} clamp {SD}")
            for t in (0, 2):
                I(f"v_sub_u32_sdwa v{ACCV+4*(t+1)+r}, v{ACCV+4*(t+1)+r}, v{ACCB+4*t+r} clamp {SD}")
            for t in (0, 2):
                I(f"v_sub_u32_sdwa v{ACCB+4*(t+1)+r}, v{ACCB+4*(t+1)+r}, v{ACCV+4*(t+1)+r} clamp {SD}")
            for t in range(4):
                I(f"v_perm_b32 v{OUTR+4*r+t}, v{ACCB+4*t+r}, v{ACCV+4*t+r}, s77")
            if r == 0:
                I("s_cmp_eq_u32 s3, 12")
                I("s_cbranch_scc1 G_T3")
            else:
                I("v_add_u32 v27, 0x10000, v27")
            I(f"buffer_store_dwordx4 {vr(OUTR+4*r,4)}, v27, {sr(S_X,4)}, 0 offen sc1")
    stamp(4)
    I("s_cmp_eq_u32 s3, 13")
    I("s_cbranch_scc0 G_BVD")
    I("s_waitcnt lgkmcnt(0)")
    I("s_add_u32 s72, s72, 0x1000000")
    I("s_addc_u32 s73, s73, 0")
    I("s_and_b32 s72, s72, 0xff000000")
    for k in range(3):
        I(f"s_bfe_u32 s64, s73, {hex((2 << 16) | (2*k))}")
        I(f"s_lshl_b32 s64, s64, {6 + 8*k}")
        I("s_or_b32 s72, s72, s64")
        I(f"s_bfe_u32 s64, s73, {hex((2 << 16) | (6 + 2*k))}")
        I("s_lshl_b32 s64, s64, 14")
        I(f"v_mov_b32 v{TG+k}, s64")
    I(f"v_mov_b32 v{TG+3}, s72")
    I(f"ds_write_b128 v1, {vr(TG,4)} offset:{TAGS}")
    L("G_BVD")
    I("s_waitcnt vmcnt(4)")
    I("s_branch G_DONE")
    L("G_T3")
    I("s_cmp_eq_u32 s2, 212")
    I("s_cbranch_scc0 G_NODUM")
    for t in range(4):
        I(f"v_mov_b32 v{OUTR+t}, 0x7f000000")
    L("G_NODUM")
    I(f"buffer_store_dwordx4 {vr(OUTR,4)}, v27, {sr(S_X,4)}, 0 offen sc1")
    I("s_waitcnt vmcnt(5)")
    I("s_mov_b64 exec, s[74:75]")
    I("s_cbranch_execz G_NOBIN")
    I("v_mov_b32 v126, v14")
    binning(False)
    I("v_mov_b32 v14, v126")
    L("G_NOBIN")
    I("s_mov_b64 exec, -1")
    I(f"ds_read_b128 {vr(XA,4)}, v8")
    I(f"ds_read_b128 {vr(XA+4,4)}, v9")
    stamp(4)
    I("s_waitcnt vmcnt(1)")
    L("G_DONE")
    if OPT["drain"]:
        I("s_waitcnt vmcnt(0)")
    if OPT["gprio"] and not OPT["cprio"]:
        I("s_setprio 0")
    stamp(5)

    L("A_JOIN")
    if OPT["cprio"]:
        I("s_setprio 3")
    I("s_waitcnt lgkmcnt(0)")
    stamp(6)
    I("s_barrier")
    stamp(7)
    C0 = 68
    I(f"ds_read_b128 {vr(TG,4)}, v1 offset:{TAGS}")
    I(f"ds_read2st64_b32 v[8:9], v5 offset0:{C1_OFF//256} offset1:{C1_OFF//256+2}")
    I(f"ds_read_b128 {vr(C0,4)}, v4 offset:{IMG}")
    I(f"ds_read_b128 {vr(C0+4,4)}, v4 offset:{IMG+B2}")
    def tagit(c):
        for k in range(3):
            I(f"v_bfi_b32 v{c+k}, s40, v{TG+k}, v{c+k}")
        I(f"v_or_b32 v{c+3}, v{TG+3}, v{c+3}")
    I("s_waitcnt lgkmcnt(2)")
    I("v_cmp_le_u32 s[72:73], s38, v8")
    I("v_cmp_le_u32 s[74:75], s38, v9")
    I("v_max_u32 v10, v8, v9")
    I("v_cmp_le_u32 vcc, s39, v10")
    def cell_store(k):
        I(f"s_or_b64 exec, s[{72+2*k}:{73+2*k}], s[36:37]")
        I(f"global_store_dwordx4 v{6+k}, {vr(C0+4*k,4)}, {WS} sc1")
    if OPT["gl"]:
        I("s_cmp_ge_u32 s3, 12")
        I("s_waitcnt lgkmcnt(1)")
        tagit(C0)
        I("s_cbranch_scc1 A_GL1")
        cell_store(0)
        I("s_mov_b64 exec, -1")
        L("A_GL1")
        I("s_cmp_ge_u32 s3, 12")
        I("s_waitcnt lgkmcnt(0)")
        tagit(C0 + 4)
        I("s_cbranch_scc1 A_GL2")
        cell_store(1)
        L("A_GL2")
    else:
        I("s_waitcnt lgkmcnt(1)")
        tagit(C0)
        cell_store(0)
        I("s_or_b64 exec, s[74:75], s[36:37]")
        I("s_waitcnt lgkmcnt(0)")
        tagit(C0 + 4)
        I(f"global_store_dwordx4 v7, {vr(C0+4,4)}, {WS} sc1")
    I("s_cbranch_vccnz R_PUB2")
    L("A_PUBD")
    I("s_mov_b64 exec, -1")
    if OPT["cprio"]:
        I("s_setprio 0")
    stamp(8)
    I("s_cmp_ge_u32 s3, 12")
    I("s_cbranch_scc0 B_NOAU")
    I("s_setprio 1")
    FU, FW, UU = 36, 84, 52
    def half_gemm(moff, acc, swap):
        for T in range(4):
            F = (FU if T < 2 else FW) + 8 * (T & 1)
            for s in range(2):
                for h in range(2):
                    I(f"ds_read_b64_tr_b16 {vr(F + 4*s + 2*h, 2)}, v{12+T} offset:{moff + (8*s+4*h)*128}")
        for T in range(4):
            F = (FU if T < 2 else FW) + 8 * (T & 1)
            I(f"s_waitcnt lgkmcnt({4*(3-T)})")
            for s in range(2):
                a, b = vr(XA + 4*s, 4), vr(F + 4*s, 4)
                if swap:
                    a, b = b, a
                c = "0" if s == 0 else vr(acc + 4*T, 4)
                I(f"v_mfma_f32_16x16x32_bf16 {vr(acc+4*T,4)}, {a}, {b}, {c}")
    half_gemm(16384, AP, False)
    if not OPT["drain"]:
        I(f"s_lshl_b32 s64, s2, {OPT['fs']-2}")
        I("s_add_u32 s64, s64, s66")
        I("s_lshl_b32 s64, s64, 2")
        I(f"s_add_u32 s64, s64, {hex(FLG_OFF)}")
        I("v_mov_b32 v26, s64")
        I(f"s_waitcnt vmcnt({0 if OPT['gl'] else 2})")
        I("s_mov_b64 exec, 1")
        I(f"global_store_dword v26, v{TG+3}, {WS} sc1")
        if OPT["gl"]:
            cell_store(0)
            cell_store(1)
        I("s_mov_b64 exec, -1")
    half_gemm(24576, UU, True)
    I(f"s_mul_i32 s65, s66, {16*EAU_STRIDE}")
    I(f"s_add_u32 s65, s65, {EAU_OFF}")
    I(f"v_mul_u32_u24 v26, {4*EAU_STRIDE}, v125")
    I("v_lshl_add_u32 v26, v124, 4, v26")
    I("v_add_u32 v25, s65, v26")
    I(f"v_mul_u32_u24 v27, {EAU_STRIDE}, v124")
    I("v_lshl_add_u32 v27, v125, 4, v27")
    I("v_add_u32 v27, s65, v27")
    for i in range(16):
        I(f"v_mul_f32 v{AP+i}, s76, v{AP+i}")
    I("s_cmp_eq_u32 s3, 12")
    I("s_cselect_b32 exec_lo, 0x000f000f, -1")
    I("s_cselect_b32 exec_hi, 0x000f000f, -1")
    for T in range(4):
        I(f"ds_write_b128 v27, {vr(UU+4*T,4)} offset:{256 + T*64}")
    I("s_cselect_b32 exec_hi, 0, -1")
    I("s_cselect_b32 exec_lo, 0xffff, -1")
    I(f"v_max3_f32 v26, |v{AP}|, |v{AP+1}|, |v{AP+2}|")
    for i in range(3, 15, 2):
        I(f"v_max3_f32 v26, |v{AP+i}|, |v{AP+i+1}|, v26")
    I(f"v_max_f32 v26, |v{AP+15}|, v26")
    I(f"v_cmp_nge_f32 vcc, {hex(f32(63.0))}, v26")
    EAT = 36
    for r in range(4):
        for t in range(4):
            I(f"v_add_f32 v{EAT+4*r+t}, {hex(f32(-float(KEXP)))}, v{AP+4*t+r}")
        for t in range(4):
            I(f"ds_write_b32 v25, v{AP+4*t+r} offset:{r*EAU_STRIDE + 512 + 4*t}")
            I(f"v_exp_f32 v{EAT+4*r+t}, v{EAT+4*r+t}")
        I("s_nop 0")
        I(f"ds_write_b128 v25, {vr(EAT+4*r,4)} offset:{r*EAU_STRIDE}")
        if r == 0:
            I("s_cbranch_scc1 G_EAD")
    L("G_EAD")
    I("s_mov_b64 exec, -1")
    I("s_cmp_lg_u64 vcc, 0")
    I("s_cselect_b32 s79, 1, 0")
    L("B_NOAU")

    RA, CA, KA, RB, CB, KB = 8, 24, 36, 64, 72, 78
    XB, Y, A = 48, 80, 100
    IP = (96, 98, 104, 106)
    UR, XR, VOUT, VU, LP, EP = 108, 112, 116, 117, 118, 120
    WCB, DEN, NUM, VOOB, C4, VRA, VSE, EA, P, Q, SS, LC = 16, 20, 44, 30, 31, 42, 32, 12, 24, 8, 36, 4
    I("v_and_b32 v5, 63, v0")
    I("s_cmp_lt_u32 s2, 212")
    I("s_cselect_b32 s64, 49, 48")
    I("v_cmp_gt_u32 s[82:83], s64, v5")
    I("v_lshlrev_b32 v5, 2, v5")
    I(f"v_and_b32 v{LC}, 15, v0")
    I(f"v_lshlrev_b32 v6, 1, v{LC}")
    for j in range(4):
        I(f"ds_read_u16 v{WCB+j}, v6 offset:{WC_OFF + 32*j}")
    I(f"v_lshlrev_b32 v{LC}, 4, v{LC}")
    I(f"v_mov_b32 v{C4}, 4")
    I(f"v_mov_b32 v{VOOB}, {OOB}")
    for p_ in IP:
        I(f"v_mov_b32 v{p_+1}, v{LC}")
    I(f"v_lshlrev_b32 v{LP}, 1, v6")
    I(f"v_mov_b32 v{LP+1}, v{LC}")
    I("v_lshrrev_b32 v7, 4, v0")
    I(f"v_mul_u32_u24 v{VU}, {EAU_STRIDE}, v7")
    I(f"s_mov_b32 s64, {EAU_OFF + 256}")
    I(f"v_add3_u32 v{VU}, v{VU}, s64, v{LC}")
    I("v_lshlrev_b32 v8, 2, v6")
    I("v_and_b32 v9, 0x70, v0")
    I("v_xor_b32 v9, v8, v9")
    I("v_lshl_add_u32 v9, v7, 7, v9")
    I(f"ds_read_b64 {vr(XR+2,2)}, v9 offset:{X_OFF}")
    I(f"v_lshl_add_u32 v{VOUT}, v7, 15, v8")
    I("s_lshl_b32 s64, s2, 7")
    I(f"v_add_u32 v{VOUT}, s64, v{VOUT}")
    srd(S_X, P_OUT, N * 128)
    for d in range(0, 4, 2):
        I(f"v_mov_b64 {vr(A+d,2)}, 0")
        I(f"v_mov_b64 {vr(DEN+d,2)}, 0")
        I(f"v_mov_b64 {vr(NUM+d,2)}, 0")
    I("s_mov_b64 s[68:69], -1")
    I("s_mov_b64 s[70:71], -1")
    I("s_cmp_lt_u32 s3, 4")
    I("s_cselect_b32 s78, 2, 0")
    I(f"s_mov_b32 s16, {hex(f32(2.0**-KEXP))}")
    I("s_mov_b32 s17, s16")
    I(f"s_mov_b32 s18, {hex(f32(1e-6 * 2.0**KEXP))}")
    I("s_mov_b32 s19, s18")
    I("s_mov_b32 s20, 32")
    I("s_mov_b32 s21, 32")
    I(f"s_mov_b32 s24, {SLOT_STRIDE}")
    I(f"s_mov_b32 s25, {EAU_STRIDE}")
    I(f"s_mov_b32 s85, {LIST_OFF}")
    I("s_mov_b32 s56, 0x11111111")
    I("s_mov_b32 s57, s56")
    I("s_lshl_b64 s[58:59], s[56:57], 1")
    I("s_lshl_b64 s[60:61], s[56:57], 2")
    I("s_lshl_b64 s[62:63], s[56:57], 3")
    I("v_bfe_u32 v124, v0, 4, 2")
    I("v_bfe_u32 v125, v0, 5, 1")
    I("v_bfe_u32 v126, v0, 2, 1")
    I("v_lshl_add_u32 v125, v126, 1, v125")
    I("v_bfe_u32 v126, v0, 3, 2")
    I("v_lshlrev_b32 v126, 2, v126")
    I("v_bfe_u32 v34, v0, 2, 3")
    I("s_lshl_b32 s64, s3, 3")
    I("s_sub_u32 s64, s2, s64")
    I("v_sub_u32 v34, s64, v34")
    I("v_and_b32 v34, 127, v34")
    I("v_and_b32 v35, 32, v0")
    I("v_lshl_add_u32 v34, v35, 2, v34")
    I("v_and_b32 v35, 3, v0")
    if OPT["pf"] or OPT["pf2"] or OPT["pf3"] or OPT["pf4"]:
        I("v_lshlrev_b32 v33, 8, v34")
        I("v_lshl_add_u32 v33, v35, 20, v33")
        I("s_lshr_b32 s64, s2, 4")
        I("s_lshl_b32 s64, s64, 16")
        I("s_bfe_u32 s65, s2, 0x10003")
        I("s_lshl_b32 s65, s65, 7")
        I("s_add_u32 s64, s64, s65")
        I("v_add_u32 v33, s64, v33")
    if OPT["pf5"]:
        I("v_lshlrev_b32 v33, 8, v34")
        I("v_and_b32 v32, 1, v35")
        I("v_lshl_add_u32 v33, v32, 7, v33")
        I("v_lshrrev_b32 v32, 1, v35")
        I("v_lshl_add_u32 v33, v32, 16, v33")
        I("s_sub_u32 s64, s3, 13")
        I("s_lshl_b32 s64, s64, 20")
        I("s_lshr_b32 s65, s2, 7")
        I("s_lshl_b32 s65, s65, 19")
        I("s_add_u32 s64, s64, s65")
        I("v_add_u32 v33, s64, v33")
    I(f"v_lshlrev_b32 v34, {OPT['fs']}, v34")
    I("v_lshl_add_u32 v34, v35, 2, v34")
    I(f"v_add_u32 v34, {hex(FLG_OFF)}, v34")
    I(f"s_mov_b32 s64, {hex(f32(-LOG2E))}")
    I("s_mov_b32 s66, 0x0000ffff")
    I("s_mov_b32 s67, 0xffff0000")
    I("s_waitcnt lgkmcnt(0)")
    for j in range(4):
        I(f"v_lshlrev_b32 v{WCB+j}, 16, v{WCB+j}")
    for j in range(4):
        I(f"v_mul_f32 v{WCB+j}, s64, v{WCB+j}")
    for j in range(4):
        I(f"v_cvt_pk_bf16_f32 v{WCB+j}, 0, v{WCB+j}")
    for j in range(4):
        I(f"v_cndmask_b32 v{WCB+j}, 0, v{WCB+j}, s[66:67]")
    I(f"v_lshlrev_b32 v{XR}, 16, v{XR+2}")
    I(f"v_and_b32 v{XR+1}, 0xffff0000, v{XR+2}")
    I(f"v_lshlrev_b32 v{XR+2}, 16, v{XR+3}")
    I(f"v_and_b32 v{XR+3}, 0xffff0000, v{XR+3}")
    I("s_setprio 0")
    I("s_waitcnt vmcnt(0)")
    if OPT["delay"]:
        I(f"s_sleep {OPT['delay']}")
    stamp(9)
    I(f"global_load_dwordx4 {vr(RA,4)}, v2, {WS} sc1")
    I(f"global_load_dwordx4 {vr(RA+4,4)}, v3, {WS} sc1")

    def poll(R_, first, name):
        L(name)
        I("s_waitcnt vmcnt(0)")
        for k in range(2):
            I(f"s_mov_b64 exec, s[{68+2*k}:{69+2*k}]")
            for j in range(4):
                I(f"v_xor_b32 v{R_+4*k+j}, v{TG+j}, v{R_+4*k+j}")
        I("s_mov_b64 exec, -1")
        for k in range(2):
            r = R_ + 4 * k
            I(f"v_or3_b32 v{6+k}, v{r}, v{r+1}, v{r+2}")
            I(f"v_and_b32 v{6+k}, s40, v{6+k}")
            I(f"v_and_or_b32 v{6+k}, v{r+3}, s41, v{6+k}")
            I(f"v_cmp_ne_u32 s[{68+2*k}:{69+2*k}], 0, v{6+k}")
            I(f"v_cmp_gt_u32 s[{64+2*k}:{65+2*k}], s42, v{r+3}")
        if first:
            for k in range(2):
                I(f"s_andn2_b64 s[{64+2*k}:{65+2*k}], s[{64+2*k}:{65+2*k}], s[{68+2*k}:{69+2*k}]")
                I(f"s_lshl_b64 s[{74+2*k}:{75+2*k}], s[{64+2*k}:{65+2*k}], 1")
                I(f"s_or_b64 s[{74+2*k}:{75+2*k}], s[{74+2*k}:{75+2*k}], s[36:37]")
        I("s_and_b64 s[72:73], s[68:69], s[74:75]")
        I("s_and_b64 s[80:81], s[70:71], s[76:77]")
        I("s_or_b64 s[72:73], s[72:73], s[80:81]")
        I(f"s_cbranch_scc1 {name}_RETRY")
    def retry(R_, first, name):
        L(name + "_RETRY")
        if first:
            for k in range(4):
                I(f"s_and_b32 s72, s{68+k}, s{74+k}")
                I("s_lshl_b32 s73, s72, 1")
                I("s_or_b32 s72, s72, s73")
                I("s_lshl_b32 s73, s72, 2")
                I("s_or_b32 s72, s72, s73")
                I("s_lshl_b32 s73, s72, 4")
                I("s_or_b32 s72, s72, s73")
                I(f"s_and_b32 s{68+k}, s{68+k}, s72")
        else:
            I("s_and_b64 s[68:69], s[68:69], s[74:75]")
            I("s_and_b64 s[70:71], s[70:71], s[76:77]")
        I("s_add_u32 s43, s43, 1")
        I(f"s_cmp_gt_u32 s43, {POLL_LIMIT}")
        I("s_cbranch_scc1 R_TIMEOUT")
        if OPT["sleep"]:
            I(f"s_sleep {OPT['sleep']}")
        reload(R_, name)
        I(f"s_branch {name}")
    def reload(R_, name):
        I("s_mov_b64 exec, s[68:69]")
        I(f"s_cbranch_execz {name}_1")
        I(f"global_load_dwordx4 {vr(R_,4)}, v2, {WS} sc1")
        L(name + "_1")
        I("s_mov_b64 exec, s[70:71]")
        I(f"s_cbranch_execz {name}_2")
        I(f"global_load_dwordx4 {vr(R_+4,4)}, v3, {WS} sc1")
        L(name + "_2")
    def ranks(R_, C_, K_, M_):
        for k in range(2):
            for j in range(3):
                I(f"v_lshlrev_b32_sdwa v{C_+3*k+j}, 2, v{R_+4*k+3} {sdwa('BYTE_'+str(j))}")
        for k in range(2):
            I(f"s_mov_b64 exec, s[{74+2*k}:{75+2*k}]")
            for j in range(3):
                m = M_ + 2 * (3 * k + j)
                I(f"v_cmp_gt_u32_sdwa s[{m}:{m+1}], 49, v{R_+4*k+3} src0_sel:DWORD src1_sel:BYTE_{j}")
            for j in range(3):
                m = M_ + 2 * (3 * k + j)
                I(f"s_mov_b64 exec, s[{m}:{m+1}]")
                I(f"ds_add_rtn_u32 v{K_+3*k+j}, v{C_+3*k+j}, v{C4} offset:{C2_OFF}")
        I("s_mov_b64 exec, -1")
    def more_test():
        I("s_and_b64 s[64:65], s[64:65], s[74:75]")
        I("s_and_b64 s[66:67], s[66:67], s[76:77]")
        I("s_or_b64 s[72:73], s[64:65], s[66:67]")
        I("s_or_b32 s72, s72, s73")
        I("s_and_b32 s72, s72, 0x80808080")
    MA, MB = 44, 4

    def pf5(lab):
        I("s_cmp_ge_u32 s3, 13")
        I(f"s_cbranch_scc0 {lab}")
        for k in range(OPT["pf5"]):
            if k:
                I("v_add_u32 v33, 0x20000, v33")
            I(f"global_load_dword v84, v33, {WS} sc1")
        L(lab)
    poll(RA, True, "B_P0")
    stamp(10)
    if OPT["ef"]:
        I(f"global_load_dword v35, v34, {WS} sc1")
    ranks(RA, CA, KA, MA)
    more_test()
    I("s_or_b32 s72, s72, s79")
    I("s_cbranch_scc1 R_MORE")
    L("B_RDONE")
    if OPT["stamp"]:
        I("v_writelane_b32 v127, s43, 19")
    I("s_waitcnt lgkmcnt(0)")
    I("s_barrier")
    stamp(11)
    I(f"ds_read_b32 v6, v5 offset:{C2_OFF}")
    if OPT["drain"]:
        if OPT["pf4"]:
            I(f"s_sub_u32 s71, s3, {OPT['pfw']}")
            I(f"s_cmp_lt_u32 s71, {OPT['pf4']}")
            I("s_cbranch_scc0 B_NOPF4")
            I("s_andn2_b64 exec, exec, s[62:63]")
            I(f"global_load_dword v84, v33, {WS} sc1")
            I("s_mov_b64 exec, -1")
            L("B_NOPF4")
    elif not OPT["ef"]:
        I(f"global_load_dword v35, v34, {WS} sc1")
        if OPT["pf5"] and not OPT["pfa"]:
            pf5("B_NOPF5")
    elif OPT["pf"]:
        I("s_sub_u32 s64, s3, 4")
        I(f"s_cmp_lt_u32 s64, {OPT['pf']}")
        I("s_cbranch_scc0 B_NOPF")
        I("s_waitcnt vmcnt(0)")
        I(f"v_cmp_eq_u32 vcc, v{TG+3}, v35")
        I("s_mov_b64 exec, vcc")
        I("s_cbranch_execz B_NOPF0")
        I(f"global_load_dword v84, v33, {WS} sc1")
        L("B_NOPF0")
        I("s_mov_b64 exec, -1")
        L("B_NOPF")
    I("s_waitcnt lgkmcnt(0)")
    I("v_add_u32 v2, 7, v6")
    I("v_and_b32 v2, -8, v2")
    I("v_max_u32 v2, 8, v2")
    I("v_cndmask_b32 v2, 0, v2, s[82:83]")
    if OPT["pf5"] and OPT["pfa"]:
        pf5("B_NOPF5")
    I("v_mov_b32 v3, v2")
    for d in ("row_shr:1 row_mask:0xf", "row_shr:2 row_mask:0xf", "row_shr:4 row_mask:0xf",
              "row_shr:8 row_mask:0xf", "row_bcast:15 row_mask:0xa", "row_bcast:31 row_mask:0xc"):
        I("s_nop 1")
        I(f"v_add_u32_dpp v3, v3, v3 {d} bank_mask:0xf")
    I("v_sub_u32 v7, v3, v2")
    I(f"ds_write_b32 v5, v7 offset:{BASE}")
    I("v_readlane_b32 s64, v3, 63")
    def lookup(C_):
        for i in range(6):
            I(f"ds_read_b32 v{C_+i}, v{C_+i} offset:{BASE}")
    def scatter(R_, C_, K_, M_):
        for i in range(6):
            if i % 3 == 0:
                I(f"s_waitcnt lgkmcnt({3-i})")
            I(f"v_add3_u32 v{C_+i}, v{C_+i}, v{K_+i}, s85")
        for i in range(6):
            I(f"s_mov_b64 exec, s[{M_+2*i}:{M_+2*i+1}]")
            I(f"ds_write_b32 v{C_+i}, v{R_+4*(i//3)+i%3}")
        I("s_mov_b64 exec, -1")
    lookup(CA)
    I("s_add_u32 s65, s64, 31")
    I("s_lshr_b32 s66, s65, 9")
    I("s_bfe_u32 s67, s65, 0x40005")
    I("s_mul_i32 s68, s66, s3")
    I("s_min_u32 s69, s67, s3")
    I("s_add_u32 s68, s68, s69")
    I("s_lshl_b32 s68, s68, 5")
    I("s_cmp_lt_u32 s3, s67")
    I("s_addc_u32 s72, s66, 0")
    I("s_lshl_b32 s69, s72, 3")
    I("s_add_u32 s70, s68, s85")
    if OPT["pf3"]:
        I(f"s_sub_u32 s71, s3, {OPT['pfw']}")
        I(f"s_cmp_lt_u32 s71, {OPT['pf3']}")
        I("s_cbranch_scc0 B_NOPF3")
        I("s_waitcnt vmcnt(0)")
        I(f"v_cmp_eq_u32 vcc, v{TG+3}, v35")
        I("s_andn2_b64 exec, vcc, s[62:63]")
        I("s_cbranch_execz B_NOPF30")
        I(f"global_load_dword v84, v33, {WS} sc1")
        L("B_NOPF30")
        I("s_mov_b64 exec, -1")
        L("B_NOPF3")
    scatter(RA, CA, KA, MA)
    I(f"v_mul_u32_u24 v{VRA}, s69, v124")
    I(f"v_mul_u32_u24 v{VRA+1}, s69, v125")
    I(f"v_add_u32 v{VRA}, s70, v{VRA}")
    I(f"v_add3_u32 v{VRA+1}, v{VRA+1}, s70, v126")
    if OPT["pf"] and OPT["ef"]:
        I("s_sub_u32 s71, s3, 4")
        I(f"s_cmp_lt_u32 s71, {OPT['pf']}")
        I("s_cbranch_scc1 B_FLW")
    if OPT["pf3"]:
        I(f"s_cmp_lt_u32 s71, {OPT['pf3']}")
        I("s_cbranch_scc1 B_FLW")
    if not OPT["drain"]:
        if OPT["pf5"]:
            I(f"s_waitcnt vmcnt({OPT['pf5']})")
            I("s_cmp_ge_u32 s3, 13")
            I("s_cbranch_scc1 B_FLW")
        I("s_waitcnt vmcnt(0)")
        L("B_FLW")
        I(f"v_cmp_ne_u32 vcc, v{TG+3}, v35")
    I("s_cmp_lg_u32 s78, 0")
    I("s_cbranch_scc1 R_EXTRA")
    L("B_XDONE")
    if not OPT["drain"]:
        I("s_cbranch_vccnz R_FLAGS")
    L("B_FDONE")
    if OPT["pf2"]:
        I(f"s_cmp_lt_u32 s3, {OPT['pf2']}")
        I("s_cbranch_scc0 B_NOPF2")
        I(f"global_load_dword v84, v33, {WS} sc1")
        L("B_NOPF2")
    I("s_waitcnt lgkmcnt(0)")
    I("s_barrier")
    stamp(12)
    def i_reads(batch, lo=0, hi=4):
        for i in range(lo, hi):
            I(f"ds_read_u16 v{IP[i]}, v{VRA} offset:{16*batch + 4*i}")
    def a_reads(batch):
        for d in range(4):
            I(f"s_mov_b64 exec, s[{56+2*d}:{57+2*d}]")
            I(f"ds_read_b32 v{A+d}, v{VRA+1} offset:{16*batch}")
        I("s_mov_b64 exec, -1")
    def gathers(x, lo, hi):
        for i in range(lo, hi):
            I(f"buffer_load_dwordx4 {vr(x+4*i,4)}, {vr(IP[i],2)}, {sr(S_TAB,4)}, 0 idxen offen {OPT['gsc'] if OPT['gsc'] != 'none' else ''}")
    i_reads(0)
    I("v_and_b32 v9, 0x3f0, v0")
    I(f"ds_read_b128 {vr(VSE,4)}, v9 offset:{STR}")
    I(f"ds_read_b32 v8, v1 offset:{FLAG}")
    if OPT["prio"]:
        I("s_setprio 3")
    I("s_waitcnt lgkmcnt(2)")
    gathers(XB, 0, 4)
    stamp(13)
    i_reads(1)
    I(f"ds_read_b128 {vr(EP,4)}, v9 offset:{EPI}")
    I(f"ds_read_b128 {vr(UR,4)}, v{VU}")
    I("s_waitcnt lgkmcnt(6)")
    I("v_readfirstlane_b32 s80, v8")
    I(f"v_lshl_add_u64 {vr(VSE,2)}, {vr(VSE,2)}, 0, {vr(LP,2)}")
    I(f"ds_read_b128 {vr(EA,4)}, v{VSE+1}")
    for q in range(4):
        I(f"v_readlane_b32 s{44+q}, v{VSE+2}, {16*q}")
    I(f"s_cmp_gt_u32 s64, {LIST_MAX}")
    I("s_cselect_b32 s81, 1, 0")
    I("s_or_b32 s80, s80, s81")
    if OPT["force_slow"]:
        I("s_branch K_SLOW")
    I("s_cbranch_scc1 K_SLOW")
    a_reads(0)
    for q in range(4):
        if OPT["cut"] & 8:
            I(f"s_mov_b32 s{44+q}, 0")
        I(f"s_bitset1_b32 s{44+q}, s72")
    I("s_or_b32 s82, s44, s45")
    I("s_or_b32 s83, s46, s47")
    I("s_or_b32 s82, s82, s83")
    I("s_bfm_b32 s83, s72, 0")
    I("s_lshr_b32 s83, s83, 4")
    I("s_mov_b32 s73, 0")
    I("s_waitcnt lgkmcnt(5)")
    gathers(XB + 16, 0, 4)
    i_reads(2)
    for k in range(3):
        I(f"v_add_u32 v{EP+k}, v{EP+k}, v{LC}")
    I(f"v_cmp_lt_i32 s[48:49], 2, v{EP+3}")
    I("s_cmp_eq_u32 s72, 0")
    I("s_cbranch_scc1 K_JOIN")
    def mfma(x):
        I(f"v_mfma_f32_32x32x16_bf16 {vr(Y,16)}, {vr(A,4)}, {vr(WCB,4)}, {vr(x,16)}")
    stamp(14)
    I("s_waitcnt vmcnt(4) lgkmcnt(4)")
    mfma(XB)
    stamp(15)
    a_reads(1)
    nth = len(str(OPT["prio"]).split("_")) if OPT["prio"] else 0
    if OPT["prio"]:
        I(f"s_setprio {nth}")
    I("s_nop 2")
    L("K_LOOP")
    if OPT["prio"]:
        I("s_sub_u32 s74, s72, s73")
        for k, t_ in enumerate(int(x) for x in str(OPT["prio"]).split("_")):
            I(f"s_cmp_gt_u32 s74, {t_}")
            I("s_cbranch_scc1 K_STEP0")
            I(f"s_setprio {nth-1-k}")
    for u in range(4):
        bb, hh = u >> 1, u & 1
        x = XB + 16 * bb + 8 * hh
        t = Y + 8 * hh
        L(f"K_STEP{u}")
        for i in range(8):
            I(f"v_exp_f32 v{t+i}, v{t+i}")
        for i in range(4):
            I(f"v_lshlrev_b64 {vr(x+2*i,2)}, 16, {vr(x+2*i,2)}")
        for i in range(4):
            I(f"v_pk_fma_f32 {vr(t+2*i,2)}, {vr(t+2*i,2)}, {vr(EA+2*(i&1),2)}, s[16:17] clamp")
        I(f"v_pk_mul_f32 {vr(P,2)}, {vr(t,2)}, {vr(t+4,2)}")
        I(f"v_pk_mul_f32 {vr(P+2,2)}, {vr(t+2,2)}, {vr(t+6,2)}")
        I(f"v_pk_mul_f32 {vr(Q,2)}, {vr(x,2)}, {vr(t+4,2)}")
        I(f"v_pk_mul_f32 {vr(Q+2,2)}, {vr(x+2,2)}, {vr(t+6,2)}")
        I(f"v_pk_add_f32 {vr(SS,2)}, {vr(t,2)}, {vr(t+4,2)}")
        I(f"v_pk_add_f32 {vr(SS+2,2)}, {vr(t+2,2)}, {vr(t+6,2)}")
        I(f"v_pk_fma_f32 {vr(Q,2)}, {vr(x+4,2)}, {vr(t,2)}, {vr(Q,2)}")
        I(f"v_pk_fma_f32 {vr(Q+2,2)}, {vr(x+6,2)}, {vr(t+2,2)}, {vr(Q+2,2)}")
        if OPT["sup"]:
            I(f"s_bitcmp1_b32 s83, {u}")
            I(f"s_cselect_b32 s{S_TAB+2}, s{S_TAB+2}, 0")
        if hh == 0:
            I("s_waitcnt lgkmcnt(0)")
            if not OPT["cut"] & 4:
                gathers(XB + 16 * bb, 0, 2)
            for i in range(4):
                I(f"v_rcp_f32 v{P+i}, v{P+i}")
        else:
            I("s_waitcnt vmcnt(2)")
            if not OPT["cut"] & 1:
                mfma(XB + 16 * (1 - bb))
            for i in range(4):
                I(f"v_rcp_f32 v{P+i}, v{P+i}")
            if not OPT["cut"] & 4:
                gathers(XB + 16 * bb, 2, 4)
        I(f"v_pk_fma_f32 {vr(NUM,2)}, {vr(Q,2)}, {vr(P,2)}, {vr(NUM,2)}")
        I(f"v_pk_fma_f32 {vr(DEN,2)}, {vr(SS,2)}, {vr(P,2)}, {vr(DEN,2)}")
        I(f"v_pk_fma_f32 {vr(NUM+2,2)}, {vr(Q+2,2)}, {vr(P+2,2)}, {vr(NUM+2,2)}")
        I(f"v_pk_fma_f32 {vr(DEN+2,2)}, {vr(SS+2,2)}, {vr(P+2,2)}, {vr(DEN+2,2)}")
        if hh == 1:
            if not OPT["cut"] & 4:
                i_reads(bb + 3)
            if not OPT["cut"] & 2:
                a_reads(bb + 2)
        I(f"s_bitcmp1_b32 s82, {u+1}")
        I(f"s_cbranch_scc1 K_FLUSH{u}")
        L(f"K_BACK{u}")
    I(f"v_lshl_add_u64 {vr(VRA,2)}, {vr(VRA,2)}, 0, s[20:21]")
    I("s_lshr_b32 s82, s82, 4")
    I("s_lshr_b32 s83, s83, 4")
    I("s_add_u32 s73, s73, 4")
    I("s_branch K_LOOP")
    for u in range(4):
        L(f"K_FLUSH{u}")
        I(f"s_add_u32 s74, s73, {u+1}")
        for h in range(2):
            I(f"s_bitcmp1_b32 s{44+2*h}, s74")
            I("s_cselect_b32 s75, 0xffff, 0")
            I(f"s_bitcmp1_b32 s{45+2*h}, s74")
            I("s_cselect_b32 s80, 0xffff0000, 0")
            I(f"s_or_b32 {'exec_hi' if h else 'exec_lo'}, s75, s80")
        I(f"ds_write2_b32 v{VSE}, v{DEN}, v{DEN+1} offset0:0 offset1:16")
        I(f"ds_write2_b32 v{VSE}, v{DEN+2}, v{DEN+3} offset0:32 offset1:48")
        I(f"ds_write2_b32 v{VSE}, v{NUM}, v{NUM+1} offset0:64 offset1:80")
        I(f"ds_write2_b32 v{VSE}, v{NUM+2}, v{NUM+3} offset0:96 offset1:112")
        I("s_cmp_eq_u32 s74, s72")
        I("s_cbranch_scc1 K_JOIN")
        I(f"v_lshl_add_u64 {vr(VSE,2)}, {vr(VSE,2)}, 0, s[24:25]")
        I(f"ds_read_b128 {vr(DEN,4)}, v{VOOB}")
        I(f"ds_read_b128 {vr(NUM,4)}, v{VOOB}")
        I(f"ds_read_b128 {vr(EA,4)}, v{VSE+1}")
        I("s_mov_b64 exec, -1")
        I("s_waitcnt lgkmcnt(0)")
        I(f"s_branch K_BACK{u}")

    L("K_JOIN")
    I("s_mov_b64 exec, -1")
    stamp(16)
    I("s_cmp_lt_u32 s3, 13")
    I("s_waitcnt lgkmcnt(0)")
    I("s_barrier")
    stamp(17)
    I("s_cbranch_scc0 K_FIN")
    for k in range(3):
        I(f"ds_read_b128 {vr(8+8*k,4)}, v{EP+k}")
    for k in range(3):
        I(f"ds_read_b128 {vr(12+8*k,4)}, v{EP+k} offset:256")
    I("s_cmp_lg_u64 s[48:49], 0")
    I("s_waitcnt lgkmcnt(3)")
    for k in (1, 2):
        for i in range(2):
            I(f"v_pk_add_f32 {vr(8+2*i,2)}, {vr(8+2*i,2)}, {vr(8+8*k+2*i,2)}")
    I("s_waitcnt lgkmcnt(0)")
    for k in (1, 2):
        for i in range(2, 4):
            I(f"v_pk_add_f32 {vr(8+2*i,2)}, {vr(8+2*i,2)}, {vr(8+8*k+2*i,2)}")
    I("s_cbranch_scc1 R_LONG")
    L("K_MATH")
    I("v_pk_add_f32 v[8:9], v[8:9], s[18:19]")
    I("v_pk_add_f32 v[10:11], v[10:11], s[18:19]")
    for c in range(4):
        I(f"v_rcp_f32 v{8+c}, v{8+c}")
    I("s_nop 0")
    I(f"v_pk_fma_f32 v[8:9], v[12:13], v[8:9], {vr(UR,2)}")
    I(f"v_pk_fma_f32 v[10:11], v[14:15], v[10:11], {vr(UR+2,2)}")
    for c in range(4):
        I(f"v_max_f32 v{8+c}, 0, v{8+c}")
    I(f"v_pk_add_f32 v[8:9], v[8:9], {vr(XR,2)}")
    I(f"v_pk_add_f32 v[10:11], v[10:11], {vr(XR+2,2)}")
    I("v_cvt_pk_bf16_f32 v12, v8, v9")
    I("v_cvt_pk_bf16_f32 v13, v10, v11")
    I(f"buffer_store_dwordx2 v[12:13], v{VOUT}, {sr(S_X,4)}, 0 offen {OPT['osc'].replace('none','').replace('_',' ')}")
    L("K_FIN")
    stamp(18)
    stamp_out()
    L("K_END")
    I("s_endpgm")

    L("R_PUB2")
    I("s_mov_b64 exec, vcc")
    I(f"ds_read_b128 {vr(C0+8,4)}, v4 offset:{IMG+128}")
    I(f"ds_read_b128 {vr(C0+12,4)}, v4 offset:{IMG+B2+128}")
    I("v_and_b32 v10, 7, v0")
    I(f"v_mul_u32_u24 v10, {3*INC}, v10")
    I(f"v_add_u32 v10, {24*INC}, v10")
    I("s_waitcnt lgkmcnt(0)")
    for b in range(2):
        w3 = C0 + 11 + 4 * b
        I(f"v_and_b32 v{w3}, 0x3f3f3f, v{w3}")
        for j in range(3):
            I(f"v_add_u32 v11, {j*INC}, v10")
            I(f"v_cmp_le_u32 s[70:71], v{8+b}, v11")
            I(f"v_or_b32 v11, {0x3f << (8*j)}, v{w3}")
            I("s_nop 0")
            I(f"v_cndmask_b32 v{w3}, v{w3}, v11, s[70:71]")
    I(f"v_add_u32 v8, {hex(LINE_STRIDE)}, v6")
    I(f"v_add_u32 v9, {hex(LINE_STRIDE)}, v7")
    tagit(C0 + 8)
    tagit(C0 + 12)
    I(f"global_store_dwordx4 v8, {vr(C0+8,4)}, {WS} sc1")
    I(f"global_store_dwordx4 v9, {vr(C0+12,4)}, {WS} sc1")
    I("s_branch A_PUBD")
    retry(RA, True, "B_P0")
    L("R_MORE")
    I("s_cmp_lg_u32 s79, 0")
    I("s_cbranch_scc1 R_REQ")
    for k in range(4):
        I(f"s_lshr_b32 s{74+k}, s{64+k}, 7")
        I(f"s_and_b32 s{74+k}, s{74+k}, 0x01010101")
        I(f"s_mul_i32 s{74+k}, s{74+k}, 0xff")
    I("s_mov_b64 s[68:69], s[74:75]")
    I("s_mov_b64 s[70:71], s[76:77]")
    I(f"v_add_u32 v2, {hex(LINE_STRIDE)}, v2")
    I(f"v_add_u32 v3, {hex(LINE_STRIDE)}, v3")
    reload(RB, "B_N1")
    poll(RB, False, "B_P1")
    ranks(RB, CB, KB, MB)
    I("s_or_b32 s78, s78, 1")
    more_test()
    I("s_cbranch_scc0 B_RDONE")
    I("s_mov_b32 s79, 1")
    I("s_branch R_REQ")
    retry(RB, False, "B_P1")
    L("R_TIMEOUT")
    I("s_mov_b32 s79, 3")
    for k in range(6):
        I(f"s_mov_b64 s[{MA+2*k}:{MA+2*k+1}], 0")
    I(f"v_mov_b32 v35, v{TG+3}")
    I(f"v_mov_b32 v33, {hex(CTL_OFF + 0x8000)}")
    L("R_REQ")
    I("v_mov_b32 v6, s79")
    I(f"ds_or_b32 v1, v6 offset:{FLAG}")
    I("s_branch B_RDONE")
    def bump():
        I(f"v_mov_b32 v48, {hex(CTL_OFF)}")
        I("v_mov_b32 v50, 0x1000000")
        I("v_mov_b32 v51, 0")
        I("s_mov_b64 exec, 1")
        I(f"global_atomic_add_x2 v48, v[50:51], {WS} offset:8 sc1")
        I("s_mov_b64 exec, -1")
    L("R_EXTRA")
    I("s_bitcmp1_b32 s78, 0")
    I("s_cbranch_scc0 R_X2")
    I("s_waitcnt lgkmcnt(0)")
    lookup(CB)
    scatter(RB, CB, KB, MB)
    L("R_X2")
    I("s_bitcmp1_b32 s78, 1")
    I("s_cbranch_scc0 B_XDONE")
    I("s_cmp_eq_u32 s3, 1")
    I("s_cbranch_scc1 R_PAD")
    I("s_add_u32 s71, s66, 1")
    I("v_cvt_f32_u32 v48, s71")
    I("v_cvt_f32_u32 v49, s66")
    I("s_lshl_b32 s73, s67, 2")
    I("s_mul_i32 s71, s71, s73")
    I("v_rcp_f32 v48, v48")
    I("v_rcp_f32 v49, v49")
    I("v_cvt_f32_u32 v50, s71")
    I("v_cvt_f32_u32 v51, s73")
    I("v_fma_f32 v50, -v50, v49, v51")
    I(f"v_mov_b32 v51, {hex(f32(0.125))}")
    def stream_of(dst, src, half):
        I(f"v_cvt_f32_u32 v{dst}, v{src}")
        I(f"v_fma_f32 v{dst}, v{dst}, v51, {half}")
        I(f"v_mul_f32 v52, v{dst}, v48")
        I(f"v_fma_f32 v{dst}, v{dst}, v49, v50")
        I(f"v_max_f32 v{dst}, v{dst}, v52")
        I(f"v_cvt_u32_f32 v{dst}, v{dst}")
    stream_of(53, 3, "-0.5")
    I("s_cmp_eq_u32 s3, 2")
    I("s_cbranch_scc1 R_EPI")
    I("s_cmp_eq_u32 s3, 3")
    I("s_cbranch_scc1 R_FIRST")
    I("v_min_u32 v55, s73, v53")
    I("v_mad_u32_u24 v55, v53, s66, v55")
    I("v_lshrrev_b32 v56, 3, v3")
    I("v_sub_u32 v55, v56, v55")
    I("v_lshlrev_b32 v55, v55, 1")
    I("v_lshlrev_b32 v56, 4, v53")
    I("s_mov_b64 exec, s[82:83]")
    I(f"ds_or_b32 v56, v55 offset:{STR + 8}")
    I("s_mov_b64 exec, -1")
    I("s_branch B_XDONE")
    L("R_FIRST")
    I("v_mov_b32 v54, -1")
    I("v_cndmask_b32 v53, 63, v53, s[82:83]")
    I(f"v_mul_u32_u24 v59, {EAU_STRIDE//4}, v5")
    I(f"v_add_u32 v59, {EAU_OFF}, v59")
    I("v_mov_b32_dpp v54, v53 wave_shr:1 row_mask:0xf bank_mask:0xf")
    I("v_lshl_add_u32 v58, v54, 2, v5")
    I(f"v_mul_i32_i24 v58, {SLOT_STRIDE//4}, v58")
    I(f"v_add_u32 v58, {SLOT_OFF}, v58")
    I("v_lshlrev_b32 v54, 4, v54")
    I("v_lshlrev_b32 v53, 4, v53")
    L("R_FIRST1")
    I("v_cmp_lt_i32 s[74:75], v54, v53")
    I("s_mov_b64 exec, s[74:75]")
    I("s_cbranch_execz R_FIRST2")
    I("v_add_u32 v54, 16, v54")
    I(f"v_add_u32 v58, {SLOT_STRIDE}, v58")
    I(f"ds_write_b64 v54, v[58:59] offset:{STR}")
    I("s_branch R_FIRST1")
    L("R_FIRST2")
    I("s_mov_b64 exec, -1")
    I("s_branch B_XDONE")
    L("R_EPI")
    stream_of(54, 7, "0.5")
    I("v_sub_u32 v59, v53, v54")
    I("v_lshl_add_u32 v56, v54, 2, v5")
    I(f"v_mul_u32_u24 v56, {SLOT_STRIDE//4}, v56")
    I(f"v_add_u32 v56, {SLOT_OFF}, v56")
    I("v_cmp_lt_i32 s[74:75], 0, v59")
    I("v_cmp_lt_i32 s[76:77], 1, v59")
    I(f"v_add_u32 v57, {SLOT_STRIDE}, v56")
    I(f"v_add_u32 v58, {2*SLOT_STRIDE}, v56")
    I(f"v_cndmask_b32 v57, v{VOOB}, v57, s[74:75]")
    I(f"v_cndmask_b32 v58, v{VOOB}, v58, s[76:77]")
    I("v_lshlrev_b32 v55, 2, v5")
    I(f"ds_write_b128 v55, v[56:59] offset:{EPI}")
    I("s_branch B_XDONE")
    L("R_PAD")
    I(f"v_mov_b32 v52, {N}")
    I(f"v_add_u32 v53, {LIST_OFF - 8}, v3")
    I("v_cmp_lt_u32 s[74:75], v6, v2")
    I("s_mov_b64 exec, s[74:75]")
    I("ds_write_b32 v53, v52 offset:4")
    I("v_cmp_eq_u32 s[74:75], 0, v6")
    I("s_mov_b64 exec, s[74:75]")
    I("ds_write_b32 v53, v52")
    I("s_mov_b64 exec, 0x3f")
    I("s_add_u32 s71, s64, s85")
    I("v_add_u32 v53, s71, v5")
    I("ds_write_b32 v53, v52")
    I("s_mov_b64 exec, -1")
    I("s_cmp_eq_u32 s2, 0")
    I("s_cbranch_scc0 B_XDONE")
    bump()
    I("s_branch B_XDONE")
    L("R_FLAGS")
    I("s_add_u32 s43, s43, 1")
    I(f"s_cmp_gt_u32 s43, {POLL_LIMIT}")
    I("s_cbranch_scc1 R_FLAGT")
    I("s_sleep 2")
    I("s_mov_b64 exec, vcc")
    I(f"global_load_dword v35, v34, {WS} sc1")
    I("s_waitcnt vmcnt(0)")
    I(f"v_cmp_ne_u32 vcc, v{TG+3}, v35")
    I("s_mov_b64 exec, -1")
    I("s_branch B_XDONE")
    L("R_FLAGT")
    I("v_mov_b32 v52, 3")
    I(f"ds_or_b32 v1, v52 offset:{FLAG}")
    I("s_branch B_FDONE")
    L("R_LONG")
    I("s_mov_b32 s64, 2")
    I("s_mov_b64 vcc, s[48:49]")
    L("R_LONG1")
    I("s_mov_b64 exec, vcc")
    I(f"v_add_u32 v{EP+2}, {SLOT_STRIDE}, v{EP+2}")
    I(f"ds_read_b128 v[16:19], v{EP+2}")
    I(f"ds_read_b128 v[20:23], v{EP+2} offset:256")
    I("s_add_u32 s64, s64, 1")
    I("s_waitcnt lgkmcnt(0)")
    for i in range(4):
        I(f"v_pk_add_f32 {vr(8+2*i,2)}, {vr(8+2*i,2)}, {vr(16+2*i,2)}")
    I(f"v_cmp_lt_i32 vcc, s64, v{EP+3}")
    I("s_cbranch_vccnz R_LONG1")
    I("s_mov_b64 exec, -1")
    I("s_branch K_MATH")

    L("K_SLOW")
    I("s_load_dwordx8 s[4:11], s[0:1], 0")
    I("s_load_dwordx2 s[12:13], s[0:1], 40")
    I("s_load_dwordx2 s[14:15], s[0:1], 64")
    I("s_setprio 0")
    I("s_waitcnt vmcnt(0) lgkmcnt(0)")
    I("s_cmp_eq_u32 s3, 15")
    I("s_cselect_b32 s71, s80, 0")
    I("s_and_b32 s71, s71, 2")
    I("s_cbranch_scc0 K_SL0")
    bump()
    I("s_waitcnt vmcnt(0)")
    L("K_SL0")
    WB2, WV2 = 40, 72
    I("v_lshrrev_b32 v6, 1, v5")
    I("v_add_u32 v7, 4096, v6")
    for (w, p_) in ((WB2, 12), (WV2, 14)):
        for hf in range(2):
            for k in range(16):
                I(f"global_load_ushort v{w + 16*hf + k}, v{6 + hf}, s[{p_}:{p_+1}] offset:{2*k*128}")
                I(f"global_load_ushort v{8 + k}, v{6 + hf}, s[{p_}:{p_+1}] offset:{(2*k+1)*128}")
            I("s_waitcnt vmcnt(0)")
            for k in range(16):
                I(f"v_lshl_or_b32 v{w + 16*hf + k}, v{8 + k}, 16, v{w + 16*hf + k}")
    for i in range(4):
        I(f"v_mov_b32 v{28+i}, 0")
    I("v_lshlrev_b32 v8, 4, v0")
    for k in range(4):
        I(f"ds_write_b128 v8, v[28:31] offset:{SLOT_OFF + k*16384}")
    I(f"ds_read_u16 v18, v6 offset:{WC_OFF}")
    I(f"s_mov_b32 s18, {hex(f32(1e-6))}")
    I("s_mov_b32 s19, s18")
    I(f"s_mov_b32 s16, {hex(f32(-LOG2E))}")
    I(f"v_lshl_add_u32 v17, v124, 2, v{LC}")
    I("v_lshlrev_b32 v10, 1, v5")
    I("s_waitcnt lgkmcnt(0)")
    I("v_lshlrev_b32 v18, 16, v18")
    I("s_barrier")
    I("v_lshlrev_b32 v8, 2, v0")
    I("v_lshlrev_b32 v9, 1, v0")
    I("s_lshl_b32 s70, s3, 6")
    L("K_SLOOP")
    I(f"global_load_dword v11, v8, {sr(P_DST,2)}")
    I(f"global_load_dword v12, v8, {sr(P_SRC,2)}")
    I(f"global_load_ushort v13, v9, {sr(P_E,2)}")
    I("s_waitcnt vmcnt(0)")
    I("v_and_b32 v14, 0xff, v11")
    I("v_cmp_eq_u32 s[74:75], s2, v14")
    L("K_SIN")
    I("s_cmp_eq_u64 s[74:75], 0")
    I("s_cbranch_scc1 K_SNEXT")
    I("s_ff1_i32_b64 s73, s[74:75]")
    I("s_bitset0_b64 s[74:75], s73")
    I("v_readlane_b32 s79, v11, s73")
    I("v_readlane_b32 s80, v12, s73")
    I("v_readlane_b32 s81, v13, s73")
    I("s_lshr_b32 s79, s79, 8")
    I(f"s_mul_i32 s76, s79, {EAU_STRIDE}")
    I(f"s_add_u32 s76, s76, {EAU_OFF + 512}")
    I(f"s_mul_i32 s79, s79, {ACC_STRIDE}")
    I("s_lshl_b32 s80, s80, 7")
    I("s_add_u32 s78, s80, 64")
    I(f"s_load_dwordx16 s[36:51], {sr(P_X,2)}, s80")
    I(f"s_load_dwordx16 s[52:67], {sr(P_X,2)}, s78")
    I("s_lshl_b32 s81, s81, 16")
    I("v_add_u32 v15, s76, v17")
    I("v_add_u32 v16, s79, v10")
    I("ds_read_b32 v22, v15")
    I("v_mul_f32 v20, s81, v18")
    I("v_mov_b32 v21, 0")
    I("s_waitcnt lgkmcnt(0)")
    for k in range(32):
        I(f"v_dot2_f32_bf16 v20, s{36+k}, v{WB2+k}, v20")
        I(f"v_dot2_f32_bf16 v21, s{36+k}, v{WV2+k}, v21")
    I("s_nop 2")
    I("v_fma_f32 v20, v20, s16, v22")
    I("v_exp_f32 v20, v20")
    I("s_nop 0")
    I("v_add_f32 v20, 1.0, v20")
    I("v_rcp_f32 v20, v20")
    I("s_nop 0")
    I("v_mul_f32 v21, v21, v20")
    I("v_cvt_f64_f32 v[24:25], v20")
    I("v_cvt_f64_f32 v[26:27], v21")
    I(f"ds_add_f64 v16, v[24:25] offset:{SLOT_OFF}")
    I(f"ds_add_f64 v16, v[26:27] offset:{SLOT_OFF + 512}")
    I("s_branch K_SIN")
    L("K_SNEXT")
    I("s_add_u32 s70, s70, 1024")
    I("v_add_u32 v8, 4096, v8")
    I("v_add_u32 v9, 2048, v9")
    I(f"s_cmp_lt_u32 s70, {E}")
    I("s_cbranch_scc1 K_SLOOP")
    I("v_lshrrev_b32 v6, 4, v0")
    I(f"v_mul_u32_u24 v6, {ACC_STRIDE}, v6")
    I(f"v_lshl_add_u32 v6, v{LC}, 1, v6")
    I("s_waitcnt lgkmcnt(0)")
    I("s_barrier")
    I("s_cmp_lt_u32 s3, 13")
    I("s_cbranch_scc0 K_FIN")
    I(f"ds_read_b128 v[16:19], v6 offset:{SLOT_OFF}")
    I(f"ds_read_b128 v[20:23], v6 offset:{SLOT_OFF+16}")
    I(f"ds_read_b128 v[24:27], v6 offset:{SLOT_OFF+512}")
    I(f"ds_read_b128 v[28:31], v6 offset:{SLOT_OFF+528}")
    I("s_waitcnt lgkmcnt(0)")
    for c in range(8):
        I(f"v_cvt_f32_f64 v{8+c}, {vr(16+2*c,2)}")
    I("s_branch K_MATH")
    L("SLOW_END")

hdr = open("standalone__edge_featured_mpnn_gatedgcn__graph.s.ref").read().split("\n")
for line in hdr:
    if line.startswith("; Override"):
        break
    o(line)
o(f"; @launch kernel={KNAME} grid=(256,1,1) block=(1024,1,1) lds={LDS_TOTAL}")
o('.amdgcn_target "amdgcn-amd-amdhsa--gfx950"')
o(".text")
gen()
o('.section .rodata,"a"')
o(".p2align 6")
o(f".amdhsa_kernel {KNAME}")
o("  .amdhsa_next_free_vgpr 128")
o("  .amdhsa_next_free_sgpr 102")
o("  .amdhsa_accum_offset 128")
o("  .amdhsa_group_segment_fixed_size 0")
o("  .amdhsa_kernarg_size 96")
o("  .amdhsa_user_sgpr_count 2")
o("  .amdhsa_user_sgpr_kernarg_segment_ptr 1")
o("  .amdhsa_system_sgpr_workgroup_id_x 1")
o(".end_amdhsa_kernel")
open(sys.argv[1], "w").write("\n".join(out) + "\n")
```

```python
import sys, struct

OPT = dict(stamp=0, sts="2_3_4_5_6_7", force_slow=0, prio="16_8_4", spin=0, spinat=18, hack=0, sleep=2, delay=0,
           codepf=1, gprio=1, pf=0, pf2=0, pre=1, cfirst=0, gbar=0, init1=1, pf3=0, pfw=0, drain=0, pf4=0, tlb=0, gl=1, pf5=1, pfa=1, osc="sc1", w32=1, fp="", e12=0, nol2=0, amp=0, ampw=0, ampg=-1, ampm=10, esc="none", sup=1, cprio=1, nog=0, gsc="sc1", cut=0, ef=0, fs=4)
for a in sys.argv[2:]:
    k, v = a.split("=")
    OPT[k] = int(v) if v.lstrip("-").isdigit() else v

KNAME = "standalone__edge_featured_mpnn_gatedgcn__graph_kernel"
N = 12500
E = 800000
CHUNK = 3136
TAB_ROWS = N + 1
CTL_OFF = 0x380000
FLG_OFF = 0x390000
CELL_OFF = 0x400000
BIN_STRIDE = 32768 + 256
LINE_STRIDE = 0x900000
STAMP_OFF = 0x4000000
LOG2E = 1.4426950408889634
KEXP = 62
POLL_LIMIT = 100000

X_OFF = 0
WC_OFF = 8192
C1_OFF = 8448
C2_OFF = 9472
FLAG = C2_OFF + 256
SYNC = C2_OFF + 260
TAGS = C2_OFF + 272
BASE = C2_OFF + 512
STR = C2_OFF + 1024
EPI = C2_OFF + 2048
IMG = C2_OFF + 3072
IMG_STRIDE = 272
EAU_OFF = IMG + 256 * IMG_STRIDE
EAU_STRIDE = 800
W_OFF = EAU_OFF + 52 * EAU_STRIDE
LDS_TOTAL = W_OFF + 32768
LIST_OFF = W_OFF
LIST_MAX = 31 * 16 * 32
SLOT_OFF = IMG
SLOT_STRIDE = 512
ACC_STRIDE = 1056
OOB = 0x30000
assert W_OFF % 128 == 0 and 117 * SLOT_STRIDE <= 256 * IMG_STRIDE and LDS_TOTAL <= 163840
INC = 0x5556

def f32(x):
    return struct.unpack("<I", struct.pack("<f", x))[0]

out = []
def o(s=""):
    out.append(s)
def I(s):
    out.append("    " + s)
def L(s):
    out.append(s + ":")
def vr(a, n=1):
    return f"v{a}" if n == 1 else f"v[{a}:{a+n-1}]"
def sr(a, n=1):
    return f"s{a}" if n == 1 else f"s[{a}:{a+n-1}]"
def sdwa(sel1):
    return f"dst_sel:DWORD dst_unused:UNUSED_PAD src0_sel:DWORD src1_sel:{sel1}"

P_X, P_E, P_SRC, P_DST, P_WA, P_WB, P_WC, P_WU, P_WV, P_OUT, P_DBG, P_WS = 4, 6, 8, 10, 12, 14, 16, 18, 20, 22, 24, 26
S_TAB, S_X = 28, 32
WS = sr(P_WS, 2)

STS = [int(x) for x in str(OPT["sts"]).split("_")] if OPT["stamp"] else []
RTS = {12: 28, 17: 29} if OPT["stamp"] == 2 else {}
def stamp(i):
    if OPT["amp"]:
        if i == 1:
            I("s_memrealtime s[98:99]")
        if i == OPT["amp"]:
            I("s_memrealtime s[96:97]")
        if i == 18:
            I(f"s_cmp_eq_u32 s3, {OPT['ampw']}")
            I("s_cbranch_scc0 AMP_D")
            if OPT["ampg"] >= 0:
                I(f"s_cmp_eq_u32 s2, {OPT['ampg']}")
                I("s_cbranch_scc0 AMP_D")
            I("s_waitcnt lgkmcnt(0)")
            I("s_sub_u32 s96, s96, s98")
            I(f"s_mul_i32 s96, s96, {OPT['ampm']}")
            I("s_add_u32 s96, s96, 3000")
            I("s_min_u32 s96, s96, 100000")
            L("AMP_W")
            I("s_memrealtime s[90:91]")
            I("s_waitcnt lgkmcnt(0)")
            I("s_sub_u32 s90, s90, s98")
            I("s_cmp_lt_u32 s90, s96")
            I("s_cbranch_scc1 AMP_W")
            L("AMP_D")
    if OPT["spin"] and OPT["spinat"] == i:
        lab = f"SPIN_{len(out)}"
        I("s_cselect_b32 s92, 1, 0")
        L(lab)
        I("s_memrealtime s[90:91]")
        I("s_waitcnt lgkmcnt(0)")
        I("s_sub_u32 s90, s90, s98")
        I(f"s_cmp_lt_u32 s90, {OPT['spin']}")
        I(f"s_cbranch_scc1 {lab}")
        I("s_cmp_lg_u32 s92, 0")
    if not OPT["stamp"]:
        return
    if i == 0:
        I("s_memrealtime s[86:87]")
    elif i == 1:
        I("s_memtime s[88:89]")
    elif i in STS:
        k = 90 + 2 * STS.index(i)
        I(f"s_memtime s[{k}:{k+1}]")
        if i in RTS:
            k = 90 + 2 * STS.index(RTS[i])
            I(f"s_memrealtime s[{k}:{k+1}]")
def stamp_out():
    if not OPT["stamp"]:
        return
    I("s_mov_b64 exec, -1")
    I("s_waitcnt vmcnt(0) lgkmcnt(0)")
    I("s_memtime s[80:81]")
    I("s_memrealtime s[82:83]")
    I("s_waitcnt lgkmcnt(0)")
    I("v_writelane_b32 v127, s80, 30")
    I("v_writelane_b32 v127, s82, 31")
    I("v_writelane_b32 v127, s86, 0")
    I("v_writelane_b32 v127, s88, 1")
    for i in list(range(2, 19)) + list(range(20, 30)):
        I(f"v_writelane_b32 v127, s{90 + 2*STS.index(i) if i in STS else 88}, {i}")
    I("s_lshl_b32 s84, s2, 4")
    I("s_add_u32 s84, s84, s3")
    I("s_lshl_b32 s84, s84, 7")
    I(f"s_add_u32 s84, s84, {hex(STAMP_OFF)}")
    I("v_and_b32 v1, 63, v0")
    I("v_lshl_add_u32 v1, v1, 2, s84")
    I("s_mov_b64 exec, 0xffffffff")
    I(f"global_store_dword v1, v127, {WS}")

def srd(d, p, size):
    I(f"s_mov_b64 {sr(d,2)}, {sr(p,2)}")
    I(f"s_mov_b32 s{d+2}, {hex(size)}")
    I(f"s_mov_b32 s{d+3}, 0x20000")

D, S, EE = 16, 20, 24
AP = 104
TG = 120
B2 = 128 * IMG_STRIDE

def edge_loads(lo=0, hi=3):
    ins = [f"global_load_dwordx4 {vr(D,4)}, v10, {sr(P_DST,2)}",
           f"global_load_dwordx4 {vr(S,4)}, v10, {sr(P_SRC,2)}",
           f"global_load_dwordx2 {vr(EE,2)}, v11, {sr(P_E,2)}"]
    for x in ins[lo:hi]:
        I(x + " " + OPT["esc"].replace("none", ""))

def binning(waits):
    B4, RK, PA = 28, 32, 36
    I(f"v_mov_b32 v14, {INC}")
    I(f"s_mov_b32 s68, {47*INC}")
    I("s_mov_b32 s69, 0x05040100")
    I("s_mov_b32 s70, 0x07060100")
    if waits:
        I("s_waitcnt vmcnt(2)")
        stamp(3)
    for i in range(4):
        I(f"v_lshlrev_b32_sdwa v{B4+i}, 2, v{D+i} {sdwa('BYTE_0')}")
        I(f"ds_add_rtn_u32 v{RK+i}, v{B4+i}, v14 offset:{C1_OFF}")
    for i in range(4):
        I(f"v_mul_u32_u24 v{B4+i}, {IMG_STRIDE//4}, v{B4+i}")
        I(f"v_lshrrev_b32 v{D+i}, 8, v{D+i}")
    for i in range(4):
        I("s_waitcnt lgkmcnt(3)")
        I(f"v_min_u32 v{RK+i}, s68, v{RK+i}")
        I(f"v_lshrrev_b32 v{RK+i}, 14, v{RK+i}")
        I(f"v_lshl_add_u32 v{PA+i}, v{RK+i}, 2, v{B4+i}")
        I(f"v_and_b32 v{RK+i}, 3, v{RK+i}")
        I(f"v_or3_b32 v{RK+i}, v{PA+i}, 12, v{RK+i}")
        I(f"ds_write_b8 v{RK+i}, v{D+i} offset:{IMG}")
    if waits:
        I("s_waitcnt vmcnt(0)")
        stamp(4)
    for i in range(4):
        if OPT["hack"]:
            I(f"v_and_b32 v{S+i}, {OPT['hack']}, v{S+i}")
        I(f"v_perm_b32 v{S+i}, v{EE+(i>>1)}, v{S+i}, s{69+(i&1)}")
        I(f"ds_write_b32 v{PA+i}, v{S+i} offset:{IMG}")

def copy_consts():
    I("s_lshr_b32 s64, s2, 7")
    I("s_lshl_b32 s64, s64, 14")
    I(f"s_add_u32 s64, s64, {hex(CELL_OFF)}")
    I(f"v_mul_u32_u24 v6, {BIN_STRIDE//4}, v5")
    I("v_lshl_add_u32 v6, v0, 4, v6")
    I("v_add_u32 v6, s64, v6")
    I(f"v_add_u32 v7, {128*BIN_STRIDE}, v6")
    I(f"s_mul_i32 s64, s2, {BIN_STRIDE}")
    I(f"s_add_u32 s64, s64, {hex(CELL_OFF)}")
    I("v_lshl_add_u32 v2, v0, 4, s64")
    I("v_add_u32 v3, 0x4000, v2")
    I("s_mov_b32 s36, 0x0f0f0f0f")
    I("s_mov_b32 s37, s36")
    if OPT["w32"]:
        I("v_bfe_u32 v102, v0, 1, 2")
        I("v_bfe_u32 v103, v0, 2, 1")
        I(f"v_mul_u32_u24 v102, {6*INC}, v102")
        I("v_mul_u32_u24 v102, v102, v103")
    else:
        I("v_bfe_u32 v102, v0, 2, 1")
        I(f"v_mul_u32_u24 v102, {12*INC}, v102")
    I(f"s_mov_b32 s39, {24*INC}")
    I("s_mov_b32 s40, 0xc000")
    I("s_mov_b32 s41, 0xffc0c0c0")
    I(f"s_mov_b32 s42, {49 << 16}")
    I("s_mov_b32 s43, 0")
    I("v_mov_b32 v1, 0")
    I(f"s_mov_b32 s{S_TAB}, s{P_WS}")
    I(f"s_or_b32 s{S_TAB+1}, s{P_WS+1}, 0x1000000")
    I(f"s_mov_b32 s{S_TAB+2}, {0 if OPT['nog'] else TAB_ROWS}")
    I(f"s_mov_b32 s{S_TAB+3}, 0x20000")

def lds_init():
    I("v_add_u32 v5, s2, v3")
    I("v_and_b32 v5, 127, v5")
    I(f"v_mul_u32_u24 v4, {IMG_STRIDE}, v5")
    I("v_lshl_add_u32 v4, v2, 4, v4")
    I("v_lshlrev_b32 v5, 2, v5")
    I("v_mov_b32 v12, 0")
    I("v_mov_b32 v13, 0x3f3f3f")
    I(f"ds_write2st64_b32 v5, v12, v12 offset0:{C1_OFF//256} offset1:{C1_OFF//256+2}")
    for r in range(1 if OPT["init1"] else 2):
        for b in range(2):
            I(f"ds_write_b32 v4, v13 offset:{IMG + b*B2 + r*128 + 12}")
def edge_addr():
    I(f"s_mul_i32 s64, s2, {CHUNK*4}")
    I("v_lshl_add_u32 v10, v0, 4, s64")
    I("v_lshrrev_b32 v11, 1, v10")

def gen():
    o(".p2align 8")
    o(f".globl {KNAME}")
    o(f".type {KNAME},@function")
    L(KNAME)
    I("s_cmp_ge_u32 s2, 256")
    I("s_cbranch_scc1 K_END")
    stamp(0); stamp(1)
    I("s_load_dwordx16 s[4:19], s[0:1], 0")
    I("s_load_dwordx8 s[20:27], s[0:1], 64")
    if OPT["spin"]:
        I("s_memrealtime s[98:99]")
    I("v_lshrrev_b32 v1, 6, v0")
    I("v_and_b32 v2, 7, v0")
    I("v_readfirstlane_b32 s3, v1")
    I("v_lshrrev_b32 v3, 3, v0")
    I("s_mov_b32 s79, 0")
    I("s_cmp_ge_u32 s3, 12")
    I("s_cbranch_scc1 G_ENTRY")

    I("s_cmp_ge_u32 s3, 2")
    I("s_cbranch_scc1 A_NOPF")
    if OPT["codepf"]:
        I("s_getpc_b64 s[64:65]")
        L("A_PC")
        I("v_lshlrev_b32 v8, 7, v0")
        I("v_min_u32 v8, K_SLOW-A_PC-4, v8")
        I("global_load_dword v27, v8, s[64:65]")
    I("v_lshlrev_b32 v8, 4, v0")
    I("v_mov_b64 v[12:13], 0")
    I("v_mov_b64 v[14:15], 0")
    I(f"ds_write_b128 v8, v[12:15] offset:{C2_OFF}")
    L("A_NOPF")
    lds_init()
    edge_addr()
    I(f"v_cmp_gt_u32 vcc, {E*4}, v10")
    I("s_waitcnt lgkmcnt(0)")
    stamp(24)
    if OPT["cfirst"]:
        copy_consts()
    I("s_mov_b64 exec, vcc")
    I("s_cbranch_execz A_NOE")
    edge_loads(0, OPT["pre"])
    if OPT["tlb"]:
        I("s_cmp_eq_u32 s3, 0")
        I("s_cbranch_scc0 A_NOTLB")
        I("s_mov_b64 exec, 1")
        if OPT["tlb"] & 1:
            I(f"global_load_dword v26, v10, {sr(P_SRC,2)}")
            I(f"global_load_dword v26, v11, {sr(P_E,2)}")
        if OPT["tlb"] & 2:
            I(f"global_load_dword v26, v12, {sr(P_OUT,2)}")
            I("s_mov_b64 exec, 0xffff")
            I(f"v_mul_u32_u24 v8, {16*BIN_STRIDE}, v0")
            I(f"v_add_u32 v8, {hex(CELL_OFF + 32768)}, v8")
            I(f"global_load_dword v26, v8, {WS}")
        I("s_mov_b64 exec, vcc")
        L("A_NOTLB")
    I("s_barrier")
    stamp(2)
    edge_loads(OPT["pre"], 3)
    if not OPT["cfirst"]:
        I("s_mov_b64 exec, -1")
        copy_consts()
        I("s_mov_b64 exec, vcc")
    binning(True)
    I("s_mov_b64 exec, -1")
    I("s_branch A_JOIN")
    L("A_NOE")
    I("s_barrier")
    I("s_mov_b64 exec, -1")
    if not OPT["cfirst"]:
        copy_consts()
    I("s_branch A_JOIN")

    XA, FA, FB, ACC1, ACC2 = 28, 36, 68, 104, 36
    L("G_ENTRY")
    if OPT["gprio"]:
        I("s_setprio 3")
    I("v_and_b32 v7, 7, v3")
    I("s_and_b32 s64, s3, 1")
    I("s_lshl_b32 s64, s64, 2")
    I("v_and_b32 v8, 2, v7")
    I("v_xor_b32 v8, v8, v2")
    I("v_xor_b32 v8, s64, v8")
    I("v_lshlrev_b32 v8, 4, v8")
    I("v_lshl_add_u32 v8, v7, 7, v8")
    I("s_and_b32 s65, s3, 3")
    I("s_lshl_b32 s65, s65, 11")
    I("v_add_u32 v8, s65, v8")
    I(f"s_add_u32 s65, s65, {W_OFF}")
    I("s_add_u32 s66, s3, 3")
    I("s_and_b32 s66, s66, 3")
    I("v_xor_b32 v9, v2, v7")
    I("v_lshlrev_b32 v9, 4, v9")
    I("v_lshl_add_u32 v9, v7, 15, v9")
    I("s_lshl_b32 s67, s66, 19")
    I("s_lshl_b32 s68, s2, 7")
    I("s_add_u32 s67, s67, s68")
    I("v_add_u32 v9, s67, v9")
    I("v_add_u32 v15, 0x40000, v9")
    I("s_lshl_b32 s67, s66, 11")
    I(f"s_mov_b32 s{S_X+2}, {N*128}")
    I(f"s_mov_b32 s{S_X+3}, 0x20000")
    I("s_mov_b32 m0, s67")
    I("s_waitcnt lgkmcnt(0)")
    stamp(24)
    I(f"s_mov_b64 {sr(S_X,2)}, {sr(P_X,2)}")
    I(f"buffer_load_dwordx4 v9, {sr(S_X,4)}, 0 offen lds")
    I("s_add_u32 m0, s67, 1024")
    I("s_nop 0")
    I(f"buffer_load_dwordx4 v15, {sr(S_X,4)}, 0 offen lds")
    def w_dma(p, off, va="v8", sd="s65"):
        I(f"s_add_u32 m0, {sd}, {off}")
        I("s_nop 0")
        I(f"global_load_lds_dwordx4 {va}, {sr(p,2)}")
        I(f"global_load_lds_dwordx4 {va}, {sr(p,2)} offset:1024")
    w_dma(P_WB, 0)
    w_dma(P_WV, 8192)
    lds_init()
    edge_addr()
    if OPT["gbar"]:
        I("s_waitcnt lgkmcnt(0)")
        I("s_barrier")
        stamp(2)
    I("s_cmp_eq_u32 s3, 12")
    I("s_cselect_b32 s74, 0xffff, 0")
    I("s_cmp_eq_u32 s2, 255")
    I("s_cselect_b32 s74, 0, s74")
    I("s_mov_b32 s75, 0")
    I("s_mov_b64 exec, s[74:75]")
    I("s_cbranch_execz G_NOE")
    edge_loads()
    L("G_NOE")
    I("s_mov_b64 exec, -1")
    I("v_mov_b32 v126, v8")
    I("v_lshlrev_b32 v100, 4, v2")
    I("s_mov_b32 s78, s65")
    I(f"s_mov_b64 {sr(S_X,2)}, {WS}")
    I(f"s_mov_b32 s{S_X+2}, {TAB_ROWS*256}")
    copy_consts()
    I("v_and_b32 v124, 15, v0")
    I("v_bfe_u32 v125, v0, 4, 2")
    I("v_and_b32 v8, 7, v124")
    I("v_lshlrev_b32 v9, 1, v125")
    I("v_xor_b32 v8, v8, v9")
    I("v_lshlrev_b32 v8, 4, v8")
    I("v_lshl_add_u32 v8, v124, 7, v8")
    I("v_add_u32 v8, s67, v8")
    I("v_xor_b32 v9, 16, v8")
    I("v_lshrrev_b32 v10, 2, v124")
    I("v_and_b32 v11, 2, v10")
    I("v_bfe_u32 v12, v0, 1, 1")
    I("v_or_b32 v11, v11, v12")
    I("v_and_b32 v12, 1, v125")
    I("v_lshl_or_b32 v11, v12, 2, v11")
    I("v_lshlrev_b32 v11, 4, v11")
    I("v_and_b32 v12, 1, v0")
    I("v_lshl_or_b32 v11, v12, 3, v11")
    I("v_lshl_add_u32 v10, v125, 4, v10")
    I("v_lshl_or_b32 v11, v10, 7, v11")
    I(f"v_add_u32 v12, {W_OFF}, v11")
    for T in range(1, 4):
        I(f"v_xor_b32 v{12+T}, {T << 5}, v12")
    I(f"s_mov_b32 s76, {hex(f32(-LOG2E))}")
    I("s_mov_b32 s77, 0x07060302")
    I(f"v_mov_b32 v26, {hex(f32(2.0**-70))}")
    I("s_lshl_b32 s64, s66, 20")
    I("s_lshl_b32 s65, s2, 8")
    I("s_add_u32 s64, s64, s65")
    I("v_lshlrev_b32 v27, 18, v125")
    I("v_lshl_add_u32 v27, v124, 4, v27")
    I("v_add_u32 v27, s64, v27")
    I("v_mov_b32 v10, 1")
    def g_sync(target, lab, arrive=True):
        if arrive:
            I("s_mov_b64 exec, 1")
            I(f"ds_add_u32 v1, v10 offset:{SYNC}")
            I("s_mov_b64 exec, -1")
        L(lab)
        I(f"ds_read_b32 v11, v1 offset:{SYNC}")
        I("s_waitcnt lgkmcnt(0)")
        I("v_readfirstlane_b32 s64, v11")
        I(f"s_cmp_lt_u32 s64, {target}")
        I(f"s_cbranch_scc1 {lab}")
    def frag_reads(F, moff):
        for T in range(4):
            for s in range(2):
                for h in range(2):
                    I(f"ds_read_b64_tr_b16 {vr(F + 8*T + 4*s + 2*h, 2)}, v{12+T} offset:{moff + (8*s+4*h)*128}")
    def mfmas(F, acc, swap, later):
        for T in range(4):
            I(f"s_waitcnt lgkmcnt({min(15, later + 4*(3-T))})")
            for s in range(2):
                a, b = vr(XA + 4*s, 4), vr(F + 8*T + 4*s, 4)
                if swap:
                    a, b = b, a
                c = "0" if s == 0 else vr(acc + 4*T, 4)
                I(f"v_mfma_f32_16x16x32_bf16 {vr(acc+4*T,4)}, {a}, {b}, {c}")
    if not OPT["gbar"]:
        I("s_waitcnt lgkmcnt(0)")
        I("s_barrier")
        stamp(2)
    I("s_cmp_eq_u64 s[74:75], 0")
    I("s_cbranch_scc1 G_W0")
    I("s_waitcnt vmcnt(3)")
    I("s_branch G_W1")
    L("G_W0")
    I("s_waitcnt vmcnt(0)")
    L("G_W1")
    stamp(3)
    g_sync(4, "G_S1")
    stamp(20)
    I(f"ds_read_b128 {vr(XA,4)}, v8")
    I(f"ds_read_b128 {vr(XA+4,4)}, v9")
    frag_reads(FA, 0)
    frag_reads(FB, 8192)
    stamp(21)
    w_dma(P_WA, 16384, "v126", "s78")
    w_dma(P_WU, 24576, "v126", "s78")
    I("s_cmp_eq_u32 s3, 13")
    I("s_cbranch_scc0 G_NOWC")
    I(f"s_mov_b32 m0, {WC_OFF}")
    I("s_mov_b64 exec, 0xff")
    I(f"global_load_lds_dwordx4 v100, {sr(P_WC,2)}")
    I("s_mov_b64 exec, -1")
    L("G_NOWC")
    stamp(22)
    mfmas(FA, ACC1, False, 16)
    mfmas(FB, ACC2, False, 0)
    stamp(23)
    I("s_cmp_eq_u32 s3, 13")
    I("s_cbranch_scc0 G_NOEP")
    I(f"s_add_u32 s70, s{P_WS}, {hex(CTL_OFF)}")
    I(f"s_addc_u32 s71, s{P_WS+1}, 0")
    I("s_load_dwordx2 s[72:73], s[70:71], 8")
    L("G_NOEP")
    ACCB, ACCV, OUTR = ACC1, ACC2, FB
    SD = sdwa("WORD_1")
    I("s_mov_b32 s80, 0x8000")
    I("s_mov_b32 s81, 0x8000")
    I(f"s_mov_b32 s68, {hex(f32(2.0**-100))}")
    I("s_mov_b32 s69, s68")
    I("v_mov_b32 v10, v26")
    I("v_mov_b32 v11, v26")
    I("s_nop 1")
    for rp in (0, 2):
        for t in range(4):
            I(f"v_pk_fma_f32 {vr(ACCB+4*t+rp,2)}, {vr(ACCB+4*t+rp,2)}, s[76:77], v[10:11] op_sel_hi:[1,0,1]")
        for t in (1, 3):
            I(f"v_pk_add_f32 {vr(ACCV+4*t+rp,2)}, {vr(ACCV+4*t+rp,2)}, s[68:69]")
        for t in range(4):
            I(f"v_lshl_add_u64 {vr(ACCB+4*t+rp,2)}, {vr(ACCB+4*t+rp,2)}, 0, s[80:81]")
        for t in range(4):
            I(f"v_lshl_add_u64 {vr(ACCV+4*t+rp,2)}, {vr(ACCV+4*t+rp,2)}, 0, s[80:81]")
        for r in (rp, rp + 1):
            for t in (0, 2):
                I(f"v_sub_u32_sdwa v{ACCB+4*t+r}, v{ACCB+4*t+r}, v{ACCV+4*t+r} clamp {SD}")
            for t in (0, 2):
                I(f"v_sub_u32_sdwa v{ACCV+4*(t+1)+r}, v{ACCV+4*(t+1)+r}, v{ACCB+4*t+r} clamp {SD}")
            for t in (0, 2):
                I(f"v_sub_u32_sdwa v{ACCB+4*(t+1)+r}, v{ACCB+4*(t+1)+r}, v{ACCV+4*(t+1)+r} clamp {SD}")
            for t in range(4):
                I(f"v_perm_b32 v{OUTR+4*r+t}, v{ACCB+4*t+r}, v{ACCV+4*t+r}, s77")
            if r == 0:
                I("s_cmp_eq_u32 s3, 12")
                I("s_cbranch_scc1 G_T3")
            else:
                I("v_add_u32 v27, 0x10000, v27")
            I(f"buffer_store_dwordx4 {vr(OUTR+4*r,4)}, v27, {sr(S_X,4)}, 0 offen sc1")
    stamp(4)
    I("s_cmp_eq_u32 s3, 13")
    I("s_cbranch_scc0 G_BVD")
    I("s_waitcnt lgkmcnt(0)")
    I("s_add_u32 s72, s72, 0x1000000")
    I("s_addc_u32 s73, s73, 0")
    I("s_and_b32 s72, s72, 0xff000000")
    for k in range(3):
        I(f"s_bfe_u32 s64, s73, {hex((2 << 16) | (2*k))}")
        I(f"s_lshl_b32 s64, s64, {6 + 8*k}")
        I("s_or_b32 s72, s72, s64")
        I(f"s_bfe_u32 s64, s73, {hex((2 << 16) | (6 + 2*k))}")
        I("s_lshl_b32 s64, s64, 14")
        I(f"v_mov_b32 v{TG+k}, s64")
    I(f"v_mov_b32 v{TG+3}, s72")
    I(f"ds_write_b128 v1, {vr(TG,4)} offset:{TAGS}")
    L("G_BVD")
    I("s_waitcnt vmcnt(4)")
    I("s_branch G_DONE")
    L("G_T3")
    I("s_cmp_eq_u32 s2, 212")
    I("s_cbranch_scc0 G_NODUM")
    for t in range(4):
        I(f"v_mov_b32 v{OUTR+t}, 0x7f000000")
    L("G_NODUM")
    I(f"buffer_store_dwordx4 {vr(OUTR,4)}, v27, {sr(S_X,4)}, 0 offen sc1")
    I("s_waitcnt vmcnt(5)")
    I("s_mov_b64 exec, s[74:75]")
    I("s_cbranch_execz G_NOBIN")
    I("v_mov_b32 v126, v14")
    binning(False)
    I("v_mov_b32 v14, v126")
    L("G_NOBIN")
    I("s_mov_b64 exec, -1")
    I(f"ds_read_b128 {vr(XA,4)}, v8")
    I(f"ds_read_b128 {vr(XA+4,4)}, v9")
    stamp(4)
    I("s_waitcnt vmcnt(1)")
    L("G_DONE")
    if OPT["drain"]:
        I("s_waitcnt vmcnt(0)")
    if OPT["gprio"] and not OPT["cprio"]:
        I("s_setprio 0")
    stamp(5)

    L("A_JOIN")
    if OPT["cprio"]:
        I("s_setprio 3")
    I("s_waitcnt lgkmcnt(0)")
    stamp(6)
    I("s_barrier")
    stamp(7)
    C0 = 68
    I(f"ds_read_b128 {vr(TG,4)}, v1 offset:{TAGS}")
    I(f"ds_read2st64_b32 v[8:9], v5 offset0:{C1_OFF//256} offset1:{C1_OFF//256+2}")
    I(f"ds_read_b128 {vr(C0,4)}, v4 offset:{IMG}")
    I(f"ds_read_b128 {vr(C0+4,4)}, v4 offset:{IMG+B2}")
    def tagit(c):
        for k in range(3):
            I(f"v_bfi_b32 v{c+k}, s40, v{TG+k}, v{c+k}")
        I(f"v_or_b32 v{c+3}, v{TG+3}, v{c+3}")
    I("s_waitcnt lgkmcnt(2)")
    I("v_cmp_le_u32 s[72:73], v102, v8")
    I("v_cmp_le_u32 s[74:75], v102, v9")
    I("v_max_u32 v10, v8, v9")
    I("v_cmp_le_u32 vcc, s39, v10")
    def cell_store(k):
        I(f"s_mov_b64 exec, s[{72+2*k}:{73+2*k}]")
        I(f"global_store_dwordx4 v{6+k}, {vr(C0+4*k,4)}, {WS} sc1")
    if OPT["gl"]:
        I("s_cmp_ge_u32 s3, 12")
        I("s_waitcnt lgkmcnt(1)")
        tagit(C0)
        I("s_cbranch_scc1 A_GL1")
        cell_store(0)
        I("s_mov_b64 exec, -1")
        L("A_GL1")
        I("s_waitcnt lgkmcnt(0)")
        tagit(C0 + 4)
        I("s_cbranch_scc1 A_GL2")
        cell_store(1)
        L("A_GL2")
    else:
        I("s_waitcnt lgkmcnt(1)")
        tagit(C0)
        cell_store(0)
        I("s_mov_b64 exec, s[74:75]")
        I("s_waitcnt lgkmcnt(0)")
        tagit(C0 + 4)
        I(f"global_store_dwordx4 v7, {vr(C0+4,4)}, {WS} sc1")
    I("s_cbranch_vccnz R_PUB2")
    L("A_PUBD")
    I("s_mov_b64 exec, -1")
    if OPT["cprio"]:
        I("s_setprio 0")
    stamp(8)
    I("s_cmp_ge_u32 s3, 12")
    I("s_cbranch_scc0 B_NOAU")
    I("s_setprio 1")
    FU, FW, UU = 36, 84, 52
    def half_gemm(moff, acc, swap):
        for T in range(4):
            F = (FU if T < 2 else FW) + 8 * (T & 1)
            for s in range(2):
                for h in range(2):
                    I(f"ds_read_b64_tr_b16 {vr(F + 4*s + 2*h, 2)}, v{12+T} offset:{moff + (8*s+4*h)*128}")
        for T in range(4):
            F = (FU if T < 2 else FW) + 8 * (T & 1)
            I(f"s_waitcnt lgkmcnt({4*(3-T)})")
            for s in range(2):
                a, b = vr(XA + 4*s, 4), vr(F + 4*s, 4)
                if swap:
                    a, b = b, a
                c = "0" if s == 0 else vr(acc + 4*T, 4)
                I(f"v_mfma_f32_16x16x32_bf16 {vr(acc+4*T,4)}, {a}, {b}, {c}")
    half_gemm(16384, AP, False)
    if not OPT["drain"]:
        I(f"s_lshl_b32 s64, s2, {OPT['fs']-2}")
        I("s_add_u32 s64, s64, s66")
        I("s_lshl_b32 s64, s64, 2")
        I(f"s_add_u32 s64, s64, {hex(FLG_OFF)}")
        I("v_mov_b32 v26, s64")
        I(f"s_waitcnt vmcnt({0 if OPT['gl'] else 2})")
        I("s_mov_b64 exec, 1")
        I(f"global_store_dword v26, v{TG+3}, {WS} sc1")
        if OPT["gl"]:
            cell_store(0)
            cell_store(1)
        I("s_mov_b64 exec, -1")
    half_gemm(24576, UU, True)
    I(f"s_mul_i32 s65, s66, {16*EAU_STRIDE}")
    I(f"s_add_u32 s65, s65, {EAU_OFF}")
    I(f"v_mul_u32_u24 v26, {4*EAU_STRIDE}, v125")
    I("v_lshl_add_u32 v26, v124, 4, v26")
    I("v_add_u32 v25, s65, v26")
    I(f"v_mul_u32_u24 v27, {EAU_STRIDE}, v124")
    I("v_lshl_add_u32 v27, v125, 4, v27")
    I("v_add_u32 v27, s65, v27")
    for i in range(16):
        I(f"v_mul_f32 v{AP+i}, s76, v{AP+i}")
    I("s_cmp_eq_u32 s3, 12")
    I("s_cselect_b32 exec_lo, 0x000f000f, -1")
    I("s_cselect_b32 exec_hi, 0x000f000f, -1")
    for T in range(4):
        I(f"ds_write_b128 v27, {vr(UU+4*T,4)} offset:{256 + T*64}")
    I("s_cselect_b32 exec_hi, 0, -1")
    I("s_cselect_b32 exec_lo, 0xffff, -1")
    I(f"v_max3_f32 v26, |v{AP}|, |v{AP+1}|, |v{AP+2}|")
    for i in range(3, 15, 2):
        I(f"v_max3_f32 v26, |v{AP+i}|, |v{AP+i+1}|, v26")
    I(f"v_max_f32 v26, |v{AP+15}|, v26")
    I(f"v_cmp_nge_f32 vcc, {hex(f32(63.0))}, v26")
    EAT = 36
    for r in range(4):
        for t in range(4):
            I(f"v_add_f32 v{EAT+4*r+t}, {hex(f32(-float(KEXP)))}, v{AP+4*t+r}")
        for t in range(4):
            I(f"ds_write_b32 v25, v{AP+4*t+r} offset:{r*EAU_STRIDE + 512 + 4*t}")
            I(f"v_exp_f32 v{EAT+4*r+t}, v{EAT+4*r+t}")
        I("s_nop 0")
        I(f"ds_write_b128 v25, {vr(EAT+4*r,4)} offset:{r*EAU_STRIDE}")
        if r == 0:
            I("s_cbranch_scc1 G_EAD")
    L("G_EAD")
    I("s_mov_b64 exec, -1")
    I("s_cmp_lg_u64 vcc, 0")
    I("s_cselect_b32 s79, 1, 0")
    L("B_NOAU")

    RA, CA, KA, RB, CB, KB = 8, 24, 36, 64, 72, 78
    XB, Y, A = 48, 80, 100
    IP = (96, 98, 104, 106)
    UR, XR, VOUT, VU, LP, EP = 108, 112, 116, 117, 118, 120
    WCB, DEN, NUM, VOOB, C4, VRA, VSE, EA, P, Q, SS, LC = 16, 20, 44, 30, 31, 42, 32, 12, 24, 8, 36, 4
    I("v_and_b32 v5, 63, v0")
    I("s_cmp_lt_u32 s2, 212")
    I("s_cselect_b32 s64, 49, 48")
    I("v_cmp_gt_u32 s[82:83], s64, v5")
    I("v_lshlrev_b32 v5, 2, v5")
    I(f"v_and_b32 v{LC}, 15, v0")
    I(f"v_lshlrev_b32 v6, 1, v{LC}")
    for j in range(4):
        I(f"ds_read_u16 v{WCB+j}, v6 offset:{WC_OFF + 32*j}")
    I(f"v_lshlrev_b32 v{LC}, 4, v{LC}")
    I(f"v_mov_b32 v{C4}, 4")
    I(f"v_mov_b32 v{VOOB}, {OOB}")
    for p_ in IP:
        I(f"v_mov_b32 v{p_+1}, v{LC}")
    I(f"v_lshlrev_b32 v{LP}, 1, v6")
    I(f"v_mov_b32 v{LP+1}, v{LC}")
    I("v_lshrrev_b32 v7, 4, v0")
    I(f"v_mul_u32_u24 v{VU}, {EAU_STRIDE}, v7")
    I(f"s_mov_b32 s64, {EAU_OFF + 256}")
    I(f"v_add3_u32 v{VU}, v{VU}, s64, v{LC}")
    I("v_lshlrev_b32 v8, 2, v6")
    I("v_and_b32 v9, 0x70, v0")
    I("v_xor_b32 v9, v8, v9")
    I("v_lshl_add_u32 v9, v7, 7, v9")
    I(f"ds_read_b64 {vr(XR+2,2)}, v9 offset:{X_OFF}")
    I(f"v_lshl_add_u32 v{VOUT}, v7, 15, v8")
    I("s_lshl_b32 s64, s2, 7")
    I(f"v_add_u32 v{VOUT}, s64, v{VOUT}")
    srd(S_X, P_OUT, N * 128)
    for d in range(0, 4, 2):
        I(f"v_mov_b64 {vr(A+d,2)}, 0")
        I(f"v_mov_b64 {vr(DEN+d,2)}, 0")
        I(f"v_mov_b64 {vr(NUM+d,2)}, 0")
    I("s_mov_b64 s[68:69], -1")
    I("s_mov_b64 s[70:71], -1")
    I("s_cmp_lt_u32 s3, 4")
    I("s_cselect_b32 s78, 2, 0")
    I(f"s_mov_b32 s16, {hex(f32(2.0**-KEXP))}")
    I("s_mov_b32 s17, s16")
    I(f"s_mov_b32 s18, {hex(f32(1e-6 * 2.0**KEXP))}")
    I("s_mov_b32 s19, s18")
    I("s_mov_b32 s20, 32")
    I("s_mov_b32 s21, 32")
    I(f"s_mov_b32 s24, {SLOT_STRIDE}")
    I(f"s_mov_b32 s25, {EAU_STRIDE}")
    I(f"s_mov_b32 s85, {LIST_OFF}")
    I("s_mov_b32 s56, 0x11111111")
    I("s_mov_b32 s57, s56")
    I("s_lshl_b64 s[58:59], s[56:57], 1")
    I("s_lshl_b64 s[60:61], s[56:57], 2")
    I("s_lshl_b64 s[62:63], s[56:57], 3")
    I("v_bfe_u32 v124, v0, 4, 2")
    I("v_bfe_u32 v125, v0, 5, 1")
    I("v_bfe_u32 v126, v0, 2, 1")
    I("v_lshl_add_u32 v125, v126, 1, v125")
    I("v_bfe_u32 v126, v0, 3, 2")
    I("v_lshlrev_b32 v126, 2, v126")
    I("v_bfe_u32 v34, v0, 2, 3")
    I("s_lshl_b32 s64, s3, 3")
    I("s_sub_u32 s64, s2, s64")
    I("v_sub_u32 v34, s64, v34")
    I("v_and_b32 v34, 127, v34")
    I("v_and_b32 v35, 32, v0")
    I("v_lshl_add_u32 v34, v35, 2, v34")
    I("v_and_b32 v35, 3, v0")
    if OPT["pf"] or OPT["pf2"] or OPT["pf3"] or OPT["pf4"]:
        I("v_lshlrev_b32 v33, 8, v34")
        I("v_lshl_add_u32 v33, v35, 20, v33")
        I("s_lshr_b32 s64, s2, 4")
        I("s_lshl_b32 s64, s64, 16")
        I("s_bfe_u32 s65, s2, 0x10003")
        I("s_lshl_b32 s65, s65, 7")
        I("s_add_u32 s64, s64, s65")
        I("v_add_u32 v33, s64, v33")
    if OPT["pf5"]:
        I("v_lshlrev_b32 v33, 8, v34")
        I("v_and_b32 v32, 1, v35")
        I("v_lshl_add_u32 v33, v32, 7, v33")
        I("v_lshrrev_b32 v32, 1, v35")
        I("v_lshl_add_u32 v33, v32, 16, v33")
        I("s_sub_u32 s64, s3, 13")
        I("s_lshl_b32 s64, s64, 20")
        I("s_lshr_b32 s65, s2, 7")
        I("s_lshl_b32 s65, s65, 19")
        I("s_add_u32 s64, s64, s65")
        I("v_add_u32 v33, s64, v33")
    I(f"v_lshlrev_b32 v34, {OPT['fs']}, v34")
    I("v_lshl_add_u32 v34, v35, 2, v34")
    I(f"v_add_u32 v34, {hex(FLG_OFF)}, v34")
    I(f"s_mov_b32 s64, {hex(f32(-LOG2E))}")
    I("s_mov_b32 s66, 0x0000ffff")
    I("s_mov_b32 s67, 0xffff0000")
    I("s_waitcnt lgkmcnt(0)")
    for j in range(4):
        I(f"v_lshlrev_b32 v{WCB+j}, 16, v{WCB+j}")
    for j in range(4):
        I(f"v_mul_f32 v{WCB+j}, s64, v{WCB+j}")
    for j in range(4):
        I(f"v_cvt_pk_bf16_f32 v{WCB+j}, 0, v{WCB+j}")
    for j in range(4):
        I(f"v_cndmask_b32 v{WCB+j}, 0, v{WCB+j}, s[66:67]")
    I(f"v_lshlrev_b32 v{XR}, 16, v{XR+2}")
    I(f"v_and_b32 v{XR+1}, 0xffff0000, v{XR+2}")
    I(f"v_lshlrev_b32 v{XR+2}, 16, v{XR+3}")
    I(f"v_and_b32 v{XR+3}, 0xffff0000, v{XR+3}")
    I("s_setprio 0")
    I("s_waitcnt vmcnt(0)")
    if OPT["delay"]:
        I(f"s_sleep {OPT['delay']}")
    stamp(9)
    I(f"global_load_dwordx4 {vr(RA,4)}, v2, {WS} sc1")
    I(f"global_load_dwordx4 {vr(RA+4,4)}, v3, {WS} sc1")

    def poll(R_, first, name):
        L(name)
        I("s_waitcnt vmcnt(0)")
        for k in range(2):
            I(f"s_mov_b64 exec, s[{68+2*k}:{69+2*k}]")
            for j in range(4):
                I(f"v_xor_b32 v{R_+4*k+j}, v{TG+j}, v{R_+4*k+j}")
        I("s_mov_b64 exec, -1")
        for k in range(2):
            r = R_ + 4 * k
            I(f"v_or3_b32 v{6+k}, v{r}, v{r+1}, v{r+2}")
            I(f"v_and_b32 v{6+k}, s40, v{6+k}")
            I(f"v_and_or_b32 v{6+k}, v{r+3}, s41, v{6+k}")
            I(f"v_cmp_ne_u32 s[{68+2*k}:{69+2*k}], 0, v{6+k}")
            I(f"v_cmp_gt_u32 s[{64+2*k}:{65+2*k}], s42, v{r+3}")
        if first:
            for k in range(2):
                I(f"s_andn2_b64 s[{64+2*k}:{65+2*k}], s[{64+2*k}:{65+2*k}], s[{68+2*k}:{69+2*k}]")
                I(f"s_lshl_b64 s[{74+2*k}:{75+2*k}], s[{64+2*k}:{65+2*k}], 1")
                I(f"s_or_b64 s[{74+2*k}:{75+2*k}], s[{74+2*k}:{75+2*k}], s[36:37]")
        I("s_and_b64 s[72:73], s[68:69], s[74:75]")
        I("s_and_b64 s[80:81], s[70:71], s[76:77]")
        I("s_or_b64 s[72:73], s[72:73], s[80:81]")
        I(f"s_cbranch_scc1 {name}_RETRY")
    def retry(R_, first, name):
        L(name + "_RETRY")
        if first:
            for k in range(4):
                I(f"s_and_b32 s72, s{68+k}, s{74+k}")
                I("s_lshl_b32 s73, s72, 1")
                I("s_or_b32 s72, s72, s73")
                I("s_lshl_b32 s73, s72, 2")
                I("s_or_b32 s72, s72, s73")
                I("s_lshl_b32 s73, s72, 4")
                I("s_or_b32 s72, s72, s73")
                I(f"s_and_b32 s{68+k}, s{68+k}, s72")
        else:
            I("s_and_b64 s[68:69], s[68:69], s[74:75]")
            I("s_and_b64 s[70:71], s[70:71], s[76:77]")
        I("s_add_u32 s43, s43, 1")
        I(f"s_cmp_gt_u32 s43, {POLL_LIMIT}")
        I("s_cbranch_scc1 R_TIMEOUT")
        if OPT["sleep"]:
            I(f"s_sleep {OPT['sleep']}")
        reload(R_, name)
        I(f"s_branch {name}")
    def reload(R_, name):
        I("s_mov_b64 exec, s[68:69]")
        I(f"s_cbranch_execz {name}_1")
        I(f"global_load_dwordx4 {vr(R_,4)}, v2, {WS} sc1")
        L(name + "_1")
        I("s_mov_b64 exec, s[70:71]")
        I(f"s_cbranch_execz {name}_2")
        I(f"global_load_dwordx4 {vr(R_+4,4)}, v3, {WS} sc1")
        L(name + "_2")
    def ranks(R_, C_, K_, M_):
        for k in range(2):
            for j in range(3):
                I(f"v_lshlrev_b32_sdwa v{C_+3*k+j}, 2, v{R_+4*k+3} {sdwa('BYTE_'+str(j))}")
        for k in range(2):
            I(f"s_mov_b64 exec, s[{74+2*k}:{75+2*k}]")
            for j in range(3):
                m = M_ + 2 * (3 * k + j)
                I(f"v_cmp_gt_u32_sdwa s[{m}:{m+1}], 49, v{R_+4*k+3} src0_sel:DWORD src1_sel:BYTE_{j}")
            for j in range(3):
                m = M_ + 2 * (3 * k + j)
                I(f"s_mov_b64 exec, s[{m}:{m+1}]")
                I(f"ds_add_rtn_u32 v{K_+3*k+j}, v{C_+3*k+j}, v{C4} offset:{C2_OFF}")
        I("s_mov_b64 exec, -1")
    def more_test():
        I("s_and_b64 s[64:65], s[64:65], s[74:75]")
        I("s_and_b64 s[66:67], s[66:67], s[76:77]")
        I("s_or_b64 s[72:73], s[64:65], s[66:67]")
        I("s_or_b32 s72, s72, s73")
        I("s_and_b32 s72, s72, 0x80808080")
    MA, MB = 44, 4

    def pf5(lab):
        I("s_cmp_ge_u32 s3, 13")
        I(f"s_cbranch_scc0 {lab}")
        for k in range(OPT["pf5"]):
            if k:
                I("v_add_u32 v33, 0x20000, v33")
            I(f"global_load_dword v84, v33, {WS} sc1")
        L(lab)
    poll(RA, True, "B_P0")
    stamp(10)
    if OPT["ef"]:
        I(f"global_load_dword v35, v34, {WS} sc1")
    ranks(RA, CA, KA, MA)
    more_test()
    I("s_or_b32 s72, s72, s79")
    I("s_cbranch_scc1 R_MORE")
    L("B_RDONE")
    if OPT["stamp"]:
        I("v_writelane_b32 v127, s43, 19")
    I("s_waitcnt lgkmcnt(0)")
    I("s_barrier")
    stamp(11)
    I(f"ds_read_b32 v6, v5 offset:{C2_OFF}")
    if OPT["drain"]:
        if OPT["pf4"]:
            I(f"s_sub_u32 s71, s3, {OPT['pfw']}")
            I(f"s_cmp_lt_u32 s71, {OPT['pf4']}")
            I("s_cbranch_scc0 B_NOPF4")
            I("s_andn2_b64 exec, exec, s[62:63]")
            I(f"global_load_dword v84, v33, {WS} sc1")
            I("s_mov_b64 exec, -1")
            L("B_NOPF4")
    elif not OPT["ef"]:
        I(f"global_load_dword v35, v34, {WS} sc1")
        if OPT["pf5"] and not OPT["pfa"]:
            pf5("B_NOPF5")
    elif OPT["pf"]:
        I("s_sub_u32 s64, s3, 4")
        I(f"s_cmp_lt_u32 s64, {OPT['pf']}")
        I("s_cbranch_scc0 B_NOPF")
        I("s_waitcnt vmcnt(0)")
        I(f"v_cmp_eq_u32 vcc, v{TG+3}, v35")
        I("s_mov_b64 exec, vcc")
        I("s_cbranch_execz B_NOPF0")
        I(f"global_load_dword v84, v33, {WS} sc1")
        L("B_NOPF0")
        I("s_mov_b64 exec, -1")
        L("B_NOPF")
    I("s_waitcnt lgkmcnt(0)")
    I("v_add_u32 v2, 7, v6")
    I("v_and_b32 v2, -8, v2")
    I("v_max_u32 v2, 8, v2")
    I("v_cndmask_b32 v2, 0, v2, s[82:83]")
    if OPT["pf5"] and OPT["pfa"]:
        pf5("B_NOPF5")
    I("v_mov_b32 v3, v2")
    for d in ("row_shr:1 row_mask:0xf", "row_shr:2 row_mask:0xf", "row_shr:4 row_mask:0xf",
              "row_shr:8 row_mask:0xf", "row_bcast:15 row_mask:0xa", "row_bcast:31 row_mask:0xc"):
        I("s_nop 1")
        I(f"v_add_u32_dpp v3, v3, v3 {d} bank_mask:0xf")
    I("v_sub_u32 v7, v3, v2")
    I(f"ds_write_b32 v5, v7 offset:{BASE}")
    I("v_readlane_b32 s64, v3, 63")
    def lookup(C_):
        for i in range(6):
            I(f"ds_read_b32 v{C_+i}, v{C_+i} offset:{BASE}")
    def scatter(R_, C_, K_, M_):
        for i in range(6):
            if i % 3 == 0:
                I(f"s_waitcnt lgkmcnt({3-i})")
            I(f"v_add3_u32 v{C_+i}, v{C_+i}, v{K_+i}, s85")
        for i in range(6):
            I(f"s_mov_b64 exec, s[{M_+2*i}:{M_+2*i+1}]")
            I(f"ds_write_b32 v{C_+i}, v{R_+4*(i//3)+i%3}")
        I("s_mov_b64 exec, -1")
    lookup(CA)
    I("s_add_u32 s65, s64, 31")
    I("s_lshr_b32 s66, s65, 9")
    I("s_bfe_u32 s67, s65, 0x40005")
    I("s_mul_i32 s68, s66, s3")
    I("s_min_u32 s69, s67, s3")
    I("s_add_u32 s68, s68, s69")
    I("s_lshl_b32 s68, s68, 5")
    I("s_cmp_lt_u32 s3, s67")
    I("s_addc_u32 s72, s66, 0")
    I("s_lshl_b32 s69, s72, 3")
    I("s_add_u32 s70, s68, s85")
    if OPT["pf3"]:
        I(f"s_sub_u32 s71, s3, {OPT['pfw']}")
        I(f"s_cmp_lt_u32 s71, {OPT['pf3']}")
        I("s_cbranch_scc0 B_NOPF3")
        I("s_waitcnt vmcnt(0)")
        I(f"v_cmp_eq_u32 vcc, v{TG+3}, v35")
        I("s_andn2_b64 exec, vcc, s[62:63]")
        I("s_cbranch_execz B_NOPF30")
        I(f"global_load_dword v84, v33, {WS} sc1")
        L("B_NOPF30")
        I("s_mov_b64 exec, -1")
        L("B_NOPF3")
    scatter(RA, CA, KA, MA)
    I(f"v_mul_u32_u24 v{VRA}, s69, v124")
    I(f"v_mul_u32_u24 v{VRA+1}, s69, v125")
    I(f"v_add_u32 v{VRA}, s70, v{VRA}")
    I(f"v_add3_u32 v{VRA+1}, v{VRA+1}, s70, v126")
    if OPT["pf"] and OPT["ef"]:
        I("s_sub_u32 s71, s3, 4")
        I(f"s_cmp_lt_u32 s71, {OPT['pf']}")
        I("s_cbranch_scc1 B_FLW")
    if OPT["pf3"]:
        I(f"s_cmp_lt_u32 s71, {OPT['pf3']}")
        I("s_cbranch_scc1 B_FLW")
    if not OPT["drain"]:
        if OPT["pf5"]:
            I(f"s_waitcnt vmcnt({OPT['pf5']})")
            I("s_cmp_ge_u32 s3, 13")
            I("s_cbranch_scc1 B_FLW")
        I("s_waitcnt vmcnt(0)")
        L("B_FLW")
        I(f"v_cmp_ne_u32 vcc, v{TG+3}, v35")
    I("s_cmp_lg_u32 s78, 0")
    I("s_cbranch_scc1 R_EXTRA")
    L("B_XDONE")
    if not OPT["drain"]:
        I("s_cbranch_vccnz R_FLAGS")
    L("B_FDONE")
    if OPT["pf2"]:
        I(f"s_cmp_lt_u32 s3, {OPT['pf2']}")
        I("s_cbranch_scc0 B_NOPF2")
        I(f"global_load_dword v84, v33, {WS} sc1")
        L("B_NOPF2")
    I("s_waitcnt lgkmcnt(0)")
    I("s_barrier")
    stamp(12)
    def i_reads(batch, lo=0, hi=4):
        for i in range(lo, hi):
            I(f"ds_read_u16 v{IP[i]}, v{VRA} offset:{16*batch + 4*i}")
    def a_reads(batch):
        for d in range(4):
            I(f"s_mov_b64 exec, s[{56+2*d}:{57+2*d}]")
            I(f"ds_read_b32 v{A+d}, v{VRA+1} offset:{16*batch}")
        I("s_mov_b64 exec, -1")
    def gathers(x, lo, hi):
        for i in range(lo, hi):
            I(f"buffer_load_dwordx4 {vr(x+4*i,4)}, {vr(IP[i],2)}, {sr(S_TAB,4)}, 0 idxen offen {OPT['gsc'] if OPT['gsc'] != 'none' else ''}")
    i_reads(0)
    I("v_and_b32 v9, 0x3f0, v0")
    I(f"ds_read_b128 {vr(VSE,4)}, v9 offset:{STR}")
    I(f"ds_read_b32 v8, v1 offset:{FLAG}")
    if OPT["prio"]:
        I("s_setprio 3")
    I("s_waitcnt lgkmcnt(2)")
    gathers(XB, 0, 4)
    stamp(13)
    i_reads(1)
    I(f"ds_read_b128 {vr(EP,4)}, v9 offset:{EPI}")
    I(f"ds_read_b128 {vr(UR,4)}, v{VU}")
    I("s_waitcnt lgkmcnt(6)")
    I("v_readfirstlane_b32 s80, v8")
    I(f"v_lshl_add_u64 {vr(VSE,2)}, {vr(VSE,2)}, 0, {vr(LP,2)}")
    I(f"ds_read_b128 {vr(EA,4)}, v{VSE+1}")
    for q in range(4):
        I(f"v_readlane_b32 s{44+q}, v{VSE+2}, {16*q}")
    I(f"s_cmp_gt_u32 s64, {LIST_MAX}")
    I("s_cselect_b32 s81, 1, 0")
    I("s_or_b32 s80, s80, s81")
    if OPT["force_slow"]:
        I("s_branch K_SLOW")
    I("s_cbranch_scc1 K_SLOW")
    a_reads(0)
    for q in range(4):
        if OPT["cut"] & 8:
            I(f"s_mov_b32 s{44+q}, 0")
        I(f"s_bitset1_b32 s{44+q}, s72")
    I("s_or_b32 s82, s44, s45")
    I("s_or_b32 s83, s46, s47")
    I("s_or_b32 s82, s82, s83")
    if OPT["fp"]:
        th = [int(x) for x in str(OPT["fp"]).split("_")]
        I(f"s_lshl_b32 s81, 1, s72")
        for t_ in th:
            I(f"s_lshr_b32 s80, s81, {t_}")
            I("s_or_b32 s82, s82, s80")
    I("s_bfm_b32 s83, s72, 0")
    I("s_lshr_b32 s83, s83, 4")
    I("s_mov_b32 s73, 0")
    I("s_waitcnt lgkmcnt(5)")
    gathers(XB + 16, 0, 4)
    i_reads(2)
    for k in range(3):
        I(f"v_add_u32 v{EP+k}, v{EP+k}, v{LC}")
    I(f"v_cmp_lt_i32 s[48:49], 2, v{EP+3}")
    I("s_cmp_eq_u32 s72, 0")
    I("s_cbranch_scc1 K_JOIN")
    def mfma(x):
        I(f"v_mfma_f32_32x32x16_bf16 {vr(Y,16)}, {vr(A,4)}, {vr(WCB,4)}, {vr(x,16)}")
    stamp(14)
    I("s_waitcnt vmcnt(4) lgkmcnt(4)")
    mfma(XB)
    stamp(15)
    a_reads(1)
    nth = len(str(OPT["prio"]).split("_")) if OPT["prio"] else 0
    if OPT["prio"]:
        I(f"s_setprio {nth}")
    I("s_nop 2")
    L("K_LOOP")
    if OPT["prio"] and not OPT["fp"]:
        I("s_sub_u32 s74, s72, s73")
        for k, t_ in enumerate(int(x) for x in str(OPT["prio"]).split("_")):
            I(f"s_cmp_gt_u32 s74, {t_}")
            I("s_cbranch_scc1 K_STEP0")
            I(f"s_setprio {nth-1-k}")
    for u in range(4):
        bb, hh = u >> 1, u & 1
        x = XB + 16 * bb + 8 * hh
        t = Y + 8 * hh
        L(f"K_STEP{u}")
        for i in range(8):
            I(f"v_exp_f32 v{t+i}, v{t+i}")
        for i in range(4):
            I(f"v_lshlrev_b64 {vr(x+2*i,2)}, 16, {vr(x+2*i,2)}")
        for i in range(4):
            I(f"v_pk_fma_f32 {vr(t+2*i,2)}, {vr(t+2*i,2)}, {vr(EA+2*(i&1),2)}, s[16:17] clamp")
        I(f"v_pk_mul_f32 {vr(P,2)}, {vr(t,2)}, {vr(t+4,2)}")
        I(f"v_pk_mul_f32 {vr(P+2,2)}, {vr(t+2,2)}, {vr(t+6,2)}")
        I(f"v_pk_mul_f32 {vr(Q,2)}, {vr(x,2)}, {vr(t+4,2)}")
        I(f"v_pk_mul_f32 {vr(Q+2,2)}, {vr(x+2,2)}, {vr(t+6,2)}")
        I(f"v_pk_add_f32 {vr(SS,2)}, {vr(t,2)}, {vr(t+4,2)}")
        I(f"v_pk_add_f32 {vr(SS+2,2)}, {vr(t+2,2)}, {vr(t+6,2)}")
        I(f"v_pk_fma_f32 {vr(Q,2)}, {vr(x+4,2)}, {vr(t,2)}, {vr(Q,2)}")
        I(f"v_pk_fma_f32 {vr(Q+2,2)}, {vr(x+6,2)}, {vr(t+2,2)}, {vr(Q+2,2)}")
        if OPT["sup"]:
            I(f"s_bitcmp1_b32 s83, {u}")
            I(f"s_cselect_b32 s{S_TAB+2}, s{S_TAB+2}, 0")
        if hh == 0:
            I("s_waitcnt lgkmcnt(0)")
            if not OPT["cut"] & 4:
                gathers(XB + 16 * bb, 0, 2)
            for i in range(4):
                I(f"v_rcp_f32 v{P+i}, v{P+i}")
        else:
            I("s_waitcnt vmcnt(2)")
            if not OPT["cut"] & 1:
                mfma(XB + 16 * (1 - bb))
            for i in range(4):
                I(f"v_rcp_f32 v{P+i}, v{P+i}")
            if not OPT["cut"] & 4:
                gathers(XB + 16 * bb, 2, 4)
        I(f"v_pk_fma_f32 {vr(NUM,2)}, {vr(Q,2)}, {vr(P,2)}, {vr(NUM,2)}")
        I(f"v_pk_fma_f32 {vr(DEN,2)}, {vr(SS,2)}, {vr(P,2)}, {vr(DEN,2)}")
        I(f"v_pk_fma_f32 {vr(NUM+2,2)}, {vr(Q+2,2)}, {vr(P+2,2)}, {vr(NUM+2,2)}")
        I(f"v_pk_fma_f32 {vr(DEN+2,2)}, {vr(SS+2,2)}, {vr(P+2,2)}, {vr(DEN+2,2)}")
        if hh == 1:
            if not OPT["cut"] & 4:
                i_reads(bb + 3)
            if not OPT["cut"] & 2:
                a_reads(bb + 2)
        I(f"s_bitcmp1_b32 s82, {u+1}")
        I(f"s_cbranch_scc1 K_FLUSH{u}")
        L(f"K_BACK{u}")
    I(f"v_lshl_add_u64 {vr(VRA,2)}, {vr(VRA,2)}, 0, s[20:21]")
    I("s_lshr_b32 s82, s82, 4")
    I("s_lshr_b32 s83, s83, 4")
    I("s_add_u32 s73, s73, 4")
    I("s_branch K_LOOP")
    for u in range(4):
        L(f"K_FLUSH{u}")
        I(f"s_add_u32 s74, s73, {u+1}")
        for h in range(2):
            I(f"s_bitcmp1_b32 s{44+2*h}, s74")
            I("s_cselect_b32 s75, 0xffff, 0")
            I(f"s_bitcmp1_b32 s{45+2*h}, s74")
            I("s_cselect_b32 s80, 0xffff0000, 0")
            I(f"s_or_b32 {'exec_hi' if h else 'exec_lo'}, s75, s80")
        if OPT["fp"]:
            I("s_sub_u32 s75, s72, s74")
            for k, t_ in enumerate(th):
                I(f"s_cmp_gt_u32 s75, {t_}")
                I(f"s_cbranch_scc1 K_FP{u}")
                I(f"s_setprio {len(th)-1-k}")
            L(f"K_FP{u}")
            I(f"s_cbranch_execz K_FQ{u}")
        I(f"ds_write2_b32 v{VSE}, v{DEN}, v{DEN+1} offset0:0 offset1:16")
        I(f"ds_write2_b32 v{VSE}, v{DEN+2}, v{DEN+3} offset0:32 offset1:48")
        I(f"ds_write2_b32 v{VSE}, v{NUM}, v{NUM+1} offset0:64 offset1:80")
        I(f"ds_write2_b32 v{VSE}, v{NUM+2}, v{NUM+3} offset0:96 offset1:112")
        I("s_cmp_eq_u32 s74, s72")
        I("s_cbranch_scc1 K_JOIN")
        I(f"v_lshl_add_u64 {vr(VSE,2)}, {vr(VSE,2)}, 0, s[24:25]")
        I(f"ds_read_b128 {vr(DEN,4)}, v{VOOB}")
        I(f"ds_read_b128 {vr(NUM,4)}, v{VOOB}")
        I(f"ds_read_b128 {vr(EA,4)}, v{VSE+1}")
        I("s_waitcnt lgkmcnt(0)")
        L(f"K_FQ{u}")
        I("s_mov_b64 exec, -1")
        I(f"s_branch K_BACK{u}")

    L("K_JOIN")
    I("s_mov_b64 exec, -1")
    stamp(16)
    I("s_cmp_lt_u32 s3, 13")
    I("s_waitcnt lgkmcnt(0)")
    I("s_barrier")
    stamp(17)
    I("s_cbranch_scc0 K_FIN")
    stamp(25)
    for k in range(3):
        I(f"ds_read_b128 {vr(8+8*k,4)}, v{EP+k}")
    for k in range(3):
        I(f"ds_read_b128 {vr(12+8*k,4)}, v{EP+k} offset:256")
    I("s_cmp_lg_u64 s[48:49], 0")
    I("s_waitcnt lgkmcnt(3)")
    for k in (1, 2):
        for i in range(2):
            I(f"v_pk_add_f32 {vr(8+2*i,2)}, {vr(8+2*i,2)}, {vr(8+8*k+2*i,2)}")
    I("s_waitcnt lgkmcnt(0)")
    for k in (1, 2):
        for i in range(2, 4):
            I(f"v_pk_add_f32 {vr(8+2*i,2)}, {vr(8+2*i,2)}, {vr(8+8*k+2*i,2)}")
    I("s_cbranch_scc1 R_LONG")
    L("K_MATH")
    stamp(26)
    I("v_pk_add_f32 v[8:9], v[8:9], s[18:19]")
    I("v_pk_add_f32 v[10:11], v[10:11], s[18:19]")
    for c in range(4):
        I(f"v_rcp_f32 v{8+c}, v{8+c}")
    I("s_nop 0")
    I(f"v_pk_fma_f32 v[8:9], v[12:13], v[8:9], {vr(UR,2)}")
    I(f"v_pk_fma_f32 v[10:11], v[14:15], v[10:11], {vr(UR+2,2)}")
    for c in range(4):
        I(f"v_max_f32 v{8+c}, 0, v{8+c}")
    I(f"v_pk_add_f32 v[8:9], v[8:9], {vr(XR,2)}")
    I(f"v_pk_add_f32 v[10:11], v[10:11], {vr(XR+2,2)}")
    I("v_cvt_pk_bf16_f32 v12, v8, v9")
    I("v_cvt_pk_bf16_f32 v13, v10, v11")
    stamp(27)
    I(f"buffer_store_dwordx2 v[12:13], v{VOUT}, {sr(S_X,4)}, 0 offen {OPT['osc'].replace('none','').replace('_',' ')}")
    L("K_FIN")
    stamp(18)
    stamp_out()
    L("K_END")
    I("s_endpgm")

    L("R_PUB2")
    I("s_mov_b64 exec, vcc")
    I(f"ds_read_b128 {vr(C0+8,4)}, v4 offset:{IMG+128}")
    I(f"ds_read_b128 {vr(C0+12,4)}, v4 offset:{IMG+B2+128}")
    I("v_and_b32 v10, 7, v0")
    I(f"v_mul_u32_u24 v10, {3*INC}, v10")
    I(f"v_add_u32 v10, {24*INC}, v10")
    I("s_waitcnt lgkmcnt(0)")
    for b in range(2):
        w3 = C0 + 11 + 4 * b
        I(f"v_and_b32 v{w3}, 0x3f3f3f, v{w3}")
        for j in range(3):
            I(f"v_add_u32 v11, {j*INC}, v10")
            I(f"v_cmp_le_u32 s[70:71], v{8+b}, v11")
            I(f"v_or_b32 v11, {0x3f << (8*j)}, v{w3}")
            I("s_nop 0")
            I(f"v_cndmask_b32 v{w3}, v{w3}, v11, s[70:71]")
    I(f"v_add_u32 v8, {hex(LINE_STRIDE)}, v6")
    I(f"v_add_u32 v9, {hex(LINE_STRIDE)}, v7")
    tagit(C0 + 8)
    tagit(C0 + 12)
    I(f"global_store_dwordx4 v8, {vr(C0+8,4)}, {WS} sc1")
    I(f"global_store_dwordx4 v9, {vr(C0+12,4)}, {WS} sc1")
    I("s_branch A_PUBD")
    retry(RA, True, "B_P0")
    L("R_MORE")
    I("s_cmp_lg_u32 s79, 0")
    I("s_cbranch_scc1 R_REQ")
    if OPT["nol2"]:
        I("s_branch B_RDONE")
    for k in range(4):
        I(f"s_lshr_b32 s{74+k}, s{64+k}, 7")
        I(f"s_and_b32 s{74+k}, s{74+k}, 0x01010101")
        I(f"s_mul_i32 s{74+k}, s{74+k}, 0xff")
    I("s_mov_b64 s[68:69], s[74:75]")
    I("s_mov_b64 s[70:71], s[76:77]")
    I(f"v_add_u32 v2, {hex(LINE_STRIDE)}, v2")
    I(f"v_add_u32 v3, {hex(LINE_STRIDE)}, v3")
    reload(RB, "B_N1")
    poll(RB, False, "B_P1")
    ranks(RB, CB, KB, MB)
    I("s_or_b32 s78, s78, 1")
    more_test()
    I("s_cbranch_scc0 B_RDONE")
    I("s_mov_b32 s79, 1")
    I("s_branch R_REQ")
    retry(RB, False, "B_P1")
    L("R_TIMEOUT")
    I("s_mov_b32 s79, 3")
    for k in range(6):
        I(f"s_mov_b64 s[{MA+2*k}:{MA+2*k+1}], 0")
    I(f"v_mov_b32 v35, v{TG+3}")
    I(f"v_mov_b32 v33, {hex(CTL_OFF + 0x8000)}")
    L("R_REQ")
    I("v_mov_b32 v6, s79")
    I(f"ds_or_b32 v1, v6 offset:{FLAG}")
    I("s_branch B_RDONE")
    def bump():
        I(f"v_mov_b32 v48, {hex(CTL_OFF)}")
        I("v_mov_b32 v50, 0x1000000")
        I("v_mov_b32 v51, 0")
        I("s_mov_b64 exec, 1")
        I(f"global_atomic_add_x2 v48, v[50:51], {WS} offset:8 sc1")
        I("s_mov_b64 exec, -1")
    L("R_EXTRA")
    I("s_bitcmp1_b32 s78, 0")
    I("s_cbranch_scc0 R_X2")
    I("s_waitcnt lgkmcnt(0)")
    lookup(CB)
    scatter(RB, CB, KB, MB)
    L("R_X2")
    I("s_bitcmp1_b32 s78, 1")
    I("s_cbranch_scc0 B_XDONE")
    I("s_cmp_eq_u32 s3, 1")
    I("s_cbranch_scc1 R_PAD")
    I("s_add_u32 s71, s66, 1")
    I("v_cvt_f32_u32 v48, s71")
    I("v_cvt_f32_u32 v49, s66")
    I("s_lshl_b32 s73, s67, 2")
    I("s_mul_i32 s71, s71, s73")
    I("v_rcp_f32 v48, v48")
    I("v_rcp_f32 v49, v49")
    I("v_cvt_f32_u32 v50, s71")
    I("v_cvt_f32_u32 v51, s73")
    I("v_fma_f32 v50, -v50, v49, v51")
    I(f"v_mov_b32 v51, {hex(f32(0.125))}")
    def stream_of(dst, src, half):
        I(f"v_cvt_f32_u32 v{dst}, v{src}")
        I(f"v_fma_f32 v{dst}, v{dst}, v51, {half}")
        I(f"v_mul_f32 v52, v{dst}, v48")
        I(f"v_fma_f32 v{dst}, v{dst}, v49, v50")
        I(f"v_max_f32 v{dst}, v{dst}, v52")
        I(f"v_cvt_u32_f32 v{dst}, v{dst}")
    stream_of(53, 3, "-0.5")
    I("s_cmp_eq_u32 s3, 2")
    I("s_cbranch_scc1 R_EPI")
    I("s_cmp_eq_u32 s3, 3")
    I("s_cbranch_scc1 R_FIRST")
    I("v_min_u32 v55, s73, v53")
    I("v_mad_u32_u24 v55, v53, s66, v55")
    I("v_lshrrev_b32 v56, 3, v3")
    I("v_sub_u32 v55, v56, v55")
    I("v_lshlrev_b32 v55, v55, 1")
    I("v_lshlrev_b32 v56, 4, v53")
    I("s_mov_b64 exec, s[82:83]")
    I(f"ds_or_b32 v56, v55 offset:{STR + 8}")
    I("s_mov_b64 exec, -1")
    I("s_branch B_XDONE")
    L("R_FIRST")
    I("v_mov_b32 v54, -1")
    I("v_cndmask_b32 v53, 63, v53, s[82:83]")
    I(f"v_mul_u32_u24 v59, {EAU_STRIDE//4}, v5")
    I(f"v_add_u32 v59, {EAU_OFF}, v59")
    I("v_mov_b32_dpp v54, v53 wave_shr:1 row_mask:0xf bank_mask:0xf")
    I("v_lshl_add_u32 v58, v54, 2, v5")
    I(f"v_mul_i32_i24 v58, {SLOT_STRIDE//4}, v58")
    I(f"v_add_u32 v58, {SLOT_OFF}, v58")
    I("v_lshlrev_b32 v54, 4, v54")
    I("v_lshlrev_b32 v53, 4, v53")
    L("R_FIRST1")
    I("v_cmp_lt_i32 s[74:75], v54, v53")
    I("s_mov_b64 exec, s[74:75]")
    I("s_cbranch_execz R_FIRST2")
    I("v_add_u32 v54, 16, v54")
    I(f"v_add_u32 v58, {SLOT_STRIDE}, v58")
    I(f"ds_write_b64 v54, v[58:59] offset:{STR}")
    I("s_branch R_FIRST1")
    L("R_FIRST2")
    I("s_mov_b64 exec, -1")
    I("s_branch B_XDONE")
    L("R_EPI")
    stream_of(54, 7, "0.5")
    I("v_sub_u32 v59, v53, v54")
    I("v_lshl_add_u32 v56, v54, 2, v5")
    I(f"v_mul_u32_u24 v56, {SLOT_STRIDE//4}, v56")
    I(f"v_add_u32 v56, {SLOT_OFF}, v56")
    I("v_cmp_lt_i32 s[74:75], 0, v59")
    I("v_cmp_lt_i32 s[76:77], 1, v59")
    I(f"v_add_u32 v57, {SLOT_STRIDE}, v56")
    I(f"v_add_u32 v58, {2*SLOT_STRIDE}, v56")
    I(f"v_cndmask_b32 v57, v{VOOB}, v57, s[74:75]")
    I(f"v_cndmask_b32 v58, v{VOOB}, v58, s[76:77]")
    I("v_lshlrev_b32 v55, 2, v5")
    I(f"ds_write_b128 v55, v[56:59] offset:{EPI}")
    I("s_branch B_XDONE")
    L("R_PAD")
    I(f"v_mov_b32 v52, {N}")
    I(f"v_add_u32 v53, {LIST_OFF - 8}, v3")
    I("v_cmp_lt_u32 s[74:75], v6, v2")
    I("s_mov_b64 exec, s[74:75]")
    I("ds_write_b32 v53, v52 offset:4")
    I("v_cmp_eq_u32 s[74:75], 0, v6")
    I("s_mov_b64 exec, s[74:75]")
    I("ds_write_b32 v53, v52")
    I("s_mov_b64 exec, 0x3f")
    I("s_add_u32 s71, s64, s85")
    I("v_add_u32 v53, s71, v5")
    I("ds_write_b32 v53, v52")
    I("s_mov_b64 exec, -1")
    I("s_cmp_eq_u32 s2, 0")
    I("s_cbranch_scc0 B_XDONE")
    bump()
    I("s_branch B_XDONE")
    L("R_FLAGS")
    I("s_add_u32 s43, s43, 1")
    I(f"s_cmp_gt_u32 s43, {POLL_LIMIT}")
    I("s_cbranch_scc1 R_FLAGT")
    I("s_sleep 2")
    I("s_mov_b64 exec, vcc")
    I(f"global_load_dword v35, v34, {WS} sc1")
    I("s_waitcnt vmcnt(0)")
    I(f"v_cmp_ne_u32 vcc, v{TG+3}, v35")
    I("s_mov_b64 exec, -1")
    I("s_branch B_XDONE")
    L("R_FLAGT")
    I("v_mov_b32 v52, 3")
    I(f"ds_or_b32 v1, v52 offset:{FLAG}")
    I("s_branch B_FDONE")
    L("R_LONG")
    I("s_mov_b32 s64, 2")
    I("s_mov_b64 vcc, s[48:49]")
    L("R_LONG1")
    I("s_mov_b64 exec, vcc")
    I(f"v_add_u32 v{EP+2}, {SLOT_STRIDE}, v{EP+2}")
    I(f"ds_read_b128 v[16:19], v{EP+2}")
    I(f"ds_read_b128 v[20:23], v{EP+2} offset:256")
    I("s_add_u32 s64, s64, 1")
    I("s_waitcnt lgkmcnt(0)")
    for i in range(4):
        I(f"v_pk_add_f32 {vr(8+2*i,2)}, {vr(8+2*i,2)}, {vr(16+2*i,2)}")
    I(f"v_cmp_lt_i32 vcc, s64, v{EP+3}")
    I("s_cbranch_vccnz R_LONG1")
    I("s_mov_b64 exec, -1")
    I("s_branch K_MATH")

    L("K_SLOW")
    I("s_load_dwordx8 s[4:11], s[0:1], 0")
    I("s_load_dwordx2 s[12:13], s[0:1], 40")
    I("s_load_dwordx2 s[14:15], s[0:1], 64")
    I("s_setprio 0")
    I("s_waitcnt vmcnt(0) lgkmcnt(0)")
    I("s_cmp_eq_u32 s3, 15")
    I("s_cselect_b32 s71, s80, 0")
    I("s_and_b32 s71, s71, 2")
    I("s_cbranch_scc0 K_SL0")
    bump()
    I("s_waitcnt vmcnt(0)")
    L("K_SL0")
    WB2, WV2 = 40, 72
    I("v_lshrrev_b32 v6, 1, v5")
    I("v_add_u32 v7, 4096, v6")
    for (w, p_) in ((WB2, 12), (WV2, 14)):
        for hf in range(2):
            for k in range(16):
                I(f"global_load_ushort v{w + 16*hf + k}, v{6 + hf}, s[{p_}:{p_+1}] offset:{2*k*128}")
                I(f"global_load_ushort v{8 + k}, v{6 + hf}, s[{p_}:{p_+1}] offset:{(2*k+1)*128}")
            I("s_waitcnt vmcnt(0)")
            for k in range(16):
                I(f"v_lshl_or_b32 v{w + 16*hf + k}, v{8 + k}, 16, v{w + 16*hf + k}")
    for i in range(4):
        I(f"v_mov_b32 v{28+i}, 0")
    I("v_lshlrev_b32 v8, 4, v0")
    for k in range(4):
        I(f"ds_write_b128 v8, v[28:31] offset:{SLOT_OFF + k*16384}")
    I(f"ds_read_u16 v18, v6 offset:{WC_OFF}")
    I(f"s_mov_b32 s18, {hex(f32(1e-6))}")
    I("s_mov_b32 s19, s18")
    I(f"s_mov_b32 s16, {hex(f32(-LOG2E))}")
    I(f"v_lshl_add_u32 v17, v124, 2, v{LC}")
    I("v_lshlrev_b32 v10, 1, v5")
    I("s_waitcnt lgkmcnt(0)")
    I("v_lshlrev_b32 v18, 16, v18")
    I("s_barrier")
    I("v_lshlrev_b32 v8, 2, v0")
    I("v_lshlrev_b32 v9, 1, v0")
    I("s_lshl_b32 s70, s3, 6")
    L("K_SLOOP")
    I(f"global_load_dword v11, v8, {sr(P_DST,2)}")
    I(f"global_load_dword v12, v8, {sr(P_SRC,2)}")
    I(f"global_load_ushort v13, v9, {sr(P_E,2)}")
    I("s_waitcnt vmcnt(0)")
    I("v_and_b32 v14, 0xff, v11")
    I("v_cmp_eq_u32 s[74:75], s2, v14")
    L("K_SIN")
    I("s_cmp_eq_u64 s[74:75], 0")
    I("s_cbranch_scc1 K_SNEXT")
    I("s_ff1_i32_b64 s73, s[74:75]")
    I("s_bitset0_b64 s[74:75], s73")
    I("v_readlane_b32 s79, v11, s73")
    I("v_readlane_b32 s80, v12, s73")
    I("v_readlane_b32 s81, v13, s73")
    I("s_lshr_b32 s79, s79, 8")
    I(f"s_mul_i32 s76, s79, {EAU_STRIDE}")
    I(f"s_add_u32 s76, s76, {EAU_OFF + 512}")
    I(f"s_mul_i32 s79, s79, {ACC_STRIDE}")
    I("s_lshl_b32 s80, s80, 7")
    I("s_add_u32 s78, s80, 64")
    I(f"s_load_dwordx16 s[36:51], {sr(P_X,2)}, s80")
    I(f"s_load_dwordx16 s[52:67], {sr(P_X,2)}, s78")
    I("s_lshl_b32 s81, s81, 16")
    I("v_add_u32 v15, s76, v17")
    I("v_add_u32 v16, s79, v10")
    I("ds_read_b32 v22, v15")
    I("v_mul_f32 v20, s81, v18")
    I("v_mov_b32 v21, 0")
    I("s_waitcnt lgkmcnt(0)")
    for k in range(32):
        I(f"v_dot2_f32_bf16 v20, s{36+k}, v{WB2+k}, v20")
        I(f"v_dot2_f32_bf16 v21, s{36+k}, v{WV2+k}, v21")
    I("s_nop 2")
    I("v_fma_f32 v20, v20, s16, v22")
    I("v_exp_f32 v20, v20")
    I("s_nop 0")
    I("v_add_f32 v20, 1.0, v20")
    I("v_rcp_f32 v20, v20")
    I("s_nop 0")
    I("v_mul_f32 v21, v21, v20")
    I("v_cvt_f64_f32 v[24:25], v20")
    I("v_cvt_f64_f32 v[26:27], v21")
    I(f"ds_add_f64 v16, v[24:25] offset:{SLOT_OFF}")
    I(f"ds_add_f64 v16, v[26:27] offset:{SLOT_OFF + 512}")
    I("s_branch K_SIN")
    L("K_SNEXT")
    I("s_add_u32 s70, s70, 1024")
    I("v_add_u32 v8, 4096, v8")
    I("v_add_u32 v9, 2048, v9")
    I(f"s_cmp_lt_u32 s70, {E}")
    I("s_cbranch_scc1 K_SLOOP")
    I("v_lshrrev_b32 v6, 4, v0")
    I(f"v_mul_u32_u24 v6, {ACC_STRIDE}, v6")
    I(f"v_lshl_add_u32 v6, v{LC}, 1, v6")
    I("s_waitcnt lgkmcnt(0)")
    I("s_barrier")
    I("s_cmp_lt_u32 s3, 13")
    I("s_cbranch_scc0 K_FIN")
    I(f"ds_read_b128 v[16:19], v6 offset:{SLOT_OFF}")
    I(f"ds_read_b128 v[20:23], v6 offset:{SLOT_OFF+16}")
    I(f"ds_read_b128 v[24:27], v6 offset:{SLOT_OFF+512}")
    I(f"ds_read_b128 v[28:31], v6 offset:{SLOT_OFF+528}")
    I("s_waitcnt lgkmcnt(0)")
    for c in range(8):
        I(f"v_cvt_f32_f64 v{8+c}, {vr(16+2*c,2)}")
    I("s_branch K_MATH")
    L("SLOW_END")

hdr = open("standalone__edge_featured_mpnn_gatedgcn__graph.s.ref").read().split("\n")
for line in hdr:
    if line.startswith("; Override"):
        break
    o(line)
o(f"; @launch kernel={KNAME} grid=(256,1,1) block=(1024,1,1) lds={LDS_TOTAL}")
o('.amdgcn_target "amdgcn-amd-amdhsa--gfx950"')
o(".text")
gen()
o('.section .rodata,"a"')
o(".p2align 6")
o(f".amdhsa_kernel {KNAME}")
o("  .amdhsa_next_free_vgpr 128")
o("  .amdhsa_next_free_sgpr 102")
o("  .amdhsa_accum_offset 128")
o("  .amdhsa_group_segment_fixed_size 0")
o("  .amdhsa_kernarg_size 96")
o("  .amdhsa_user_sgpr_count 2")
o("  .amdhsa_user_sgpr_kernarg_segment_ptr 1")
o("  .amdhsa_system_sgpr_workgroup_id_x 1")
o(".end_amdhsa_kernel")
open(sys.argv[1], "w").write("\n".join(out) + "\n")
```

```python
import sys, struct

OPT = dict(stamp=0, sts="2_3_4_5_6_7", force_slow=0, prio="16_8_4", spin=0, spinat=18, hack=0, sleep=2, delay=0,
           codepf=1, gprio=1, pf=0, pf2=0, pre=1, cfirst=0, gbar=0, init1=1, pf3=0, pfw=0, drain=0, pf4=0, tlb=0, gl=0, pf5=0, pfa=1, osc="sc1", w32=0, fw=1, fl=0, dbar=0, cad=1, fp="", e12=0, nol2=0, amp=0, ampw=0, ampg=-1, ampm=10, esc="none", sup=1, cprio=1, nog=0, gsc="sc1", cut=0, ef=0, fs=4)
for a in sys.argv[2:]:
    k, v = a.split("=")
    OPT[k] = int(v) if v.lstrip("-").isdigit() else v

KNAME = "standalone__edge_featured_mpnn_gatedgcn__graph_kernel"
N = 12500
E = 800000
CHUNK = 3136
TAB_ROWS = N + 1
CTL_OFF = 0x380000
FLG_OFF = 0x390000
CELL_OFF = 0x400000
BIN_STRIDE = 32768 + 256
LINE_STRIDE = 0x900000
STAMP_OFF = 0x4000000
LOG2E = 1.4426950408889634
KEXP = 62
POLL_LIMIT = 100000

X_OFF = 0
WC_OFF = 8192
C1_OFF = 8448
C2_OFF = 9472
FLAG = C2_OFF + 256
SYNC = C2_OFF + 260
TAGS = C2_OFF + 272
BASE = C2_OFF + 512
STR = C2_OFF + 1024
EPI = C2_OFF + 2048
IMG = C2_OFF + 3072
IMG_STRIDE = 272
EAU_OFF = IMG + 256 * IMG_STRIDE
EAU_STRIDE = 800
W_OFF = EAU_OFF + 52 * EAU_STRIDE
LDS_TOTAL = W_OFF + 32768
LIST_OFF = W_OFF
LIST_MAX = 31 * 16 * 32
SLOT_OFF = IMG
SLOT_STRIDE = 512
ACC_STRIDE = 1056
OOB = 0x30000
assert W_OFF % 128 == 0 and 117 * SLOT_STRIDE <= 256 * IMG_STRIDE and LDS_TOTAL <= 163840
INC = 0x5556

def f32(x):
    return struct.unpack("<I", struct.pack("<f", x))[0]

out = []
def o(s=""):
    out.append(s)
def I(s):
    out.append("    " + s)
def L(s):
    out.append(s + ":")
def vr(a, n=1):
    return f"v{a}" if n == 1 else f"v[{a}:{a+n-1}]"
def sr(a, n=1):
    return f"s{a}" if n == 1 else f"s[{a}:{a+n-1}]"
def sdwa(sel1):
    return f"dst_sel:DWORD dst_unused:UNUSED_PAD src0_sel:DWORD src1_sel:{sel1}"

P_X, P_E, P_SRC, P_DST, P_WA, P_WB, P_WC, P_WU, P_WV, P_OUT, P_DBG, P_WS = 4, 6, 8, 10, 12, 14, 16, 18, 20, 22, 24, 26
S_TAB, S_X = 28, 32
WS = sr(P_WS, 2)

STS = [int(x) for x in str(OPT["sts"]).split("_")] if OPT["stamp"] else []
RTS = {12: 28, 17: 29} if OPT["stamp"] == 2 else {}
def stamp(i):
    if OPT["amp"]:
        if i == 1:
            I("s_memrealtime s[98:99]")
        if i == OPT["amp"]:
            I("s_memrealtime s[96:97]")
        if i == 18:
            I(f"s_cmp_eq_u32 s3, {OPT['ampw']}")
            I("s_cbranch_scc0 AMP_D")
            if OPT["ampg"] >= 0:
                I(f"s_cmp_eq_u32 s2, {OPT['ampg']}")
                I("s_cbranch_scc0 AMP_D")
            I("s_waitcnt lgkmcnt(0)")
            I("s_sub_u32 s96, s96, s98")
            I(f"s_mul_i32 s96, s96, {OPT['ampm']}")
            I("s_add_u32 s96, s96, 3000")
            I("s_min_u32 s96, s96, 100000")
            L("AMP_W")
            I("s_memrealtime s[90:91]")
            I("s_waitcnt lgkmcnt(0)")
            I("s_sub_u32 s90, s90, s98")
            I("s_cmp_lt_u32 s90, s96")
            I("s_cbranch_scc1 AMP_W")
            L("AMP_D")
    if OPT["spin"] and OPT["spinat"] == i:
        lab = f"SPIN_{len(out)}"
        I("s_cselect_b32 s92, 1, 0")
        L(lab)
        I("s_memrealtime s[90:91]")
        I("s_waitcnt lgkmcnt(0)")
        I("s_sub_u32 s90, s90, s98")
        I(f"s_cmp_lt_u32 s90, {OPT['spin']}")
        I(f"s_cbranch_scc1 {lab}")
        I("s_cmp_lg_u32 s92, 0")
    if not OPT["stamp"]:
        return
    if i == 0:
        I("s_memrealtime s[86:87]")
    elif i == 1:
        I("s_memtime s[88:89]")
    elif i in STS:
        k = 90 + 2 * STS.index(i)
        I(f"s_memtime s[{k}:{k+1}]")
        if i in RTS:
            k = 90 + 2 * STS.index(RTS[i])
            I(f"s_memrealtime s[{k}:{k+1}]")
def stamp_out():
    if not OPT["stamp"]:
        return
    I("s_mov_b64 exec, -1")
    I("s_waitcnt vmcnt(0) lgkmcnt(0)")
    I("s_memtime s[80:81]")
    I("s_memrealtime s[82:83]")
    I("s_waitcnt lgkmcnt(0)")
    I("v_writelane_b32 v127, s80, 30")
    I("v_writelane_b32 v127, s82, 31")
    I("v_writelane_b32 v127, s86, 0")
    I("v_writelane_b32 v127, s88, 1")
    for i in list(range(2, 19)) + list(range(20, 30)):
        I(f"v_writelane_b32 v127, s{90 + 2*STS.index(i) if i in STS else 88}, {i}")
    I("s_lshl_b32 s84, s2, 4")
    I("s_add_u32 s84, s84, s3")
    I("s_lshl_b32 s84, s84, 7")
    I(f"s_add_u32 s84, s84, {hex(STAMP_OFF)}")
    I("v_and_b32 v1, 63, v0")
    I("v_lshl_add_u32 v1, v1, 2, s84")
    I("s_mov_b64 exec, 0xffffffff")
    I(f"global_store_dword v1, v127, {WS}")

def srd(d, p, size):
    I(f"s_mov_b64 {sr(d,2)}, {sr(p,2)}")
    I(f"s_mov_b32 s{d+2}, {hex(size)}")
    I(f"s_mov_b32 s{d+3}, 0x20000")

D, S, EE = 16, 20, 24
AP = 104
TG = 120
B2 = 128 * IMG_STRIDE

def edge_loads(lo=0, hi=3):
    ins = [f"global_load_dwordx4 {vr(D,4)}, v10, {sr(P_DST,2)}",
           f"global_load_dwordx4 {vr(S,4)}, v10, {sr(P_SRC,2)}",
           f"global_load_dwordx2 {vr(EE,2)}, v11, {sr(P_E,2)}"]
    for x in ins[lo:hi]:
        I(x + " " + OPT["esc"].replace("none", ""))

def binning(waits):
    B4, RK, PA = 28, 32, 36
    I(f"v_mov_b32 v14, {INC}")
    I(f"s_mov_b32 s68, {47*INC}")
    I("s_mov_b32 s69, 0x05040100")
    I("s_mov_b32 s70, 0x07060100")
    if waits:
        I("s_waitcnt vmcnt(2)")
        stamp(3)
    for i in range(4):
        I(f"v_lshlrev_b32_sdwa v{B4+i}, 2, v{D+i} {sdwa('BYTE_0')}")
        I(f"ds_add_rtn_u32 v{RK+i}, v{B4+i}, v14 offset:{C1_OFF}")
    for i in range(4):
        I(f"v_mul_u32_u24 v{B4+i}, {IMG_STRIDE//4}, v{B4+i}")
        I(f"v_lshrrev_b32 v{D+i}, 8, v{D+i}")
    for i in range(4):
        I("s_waitcnt lgkmcnt(3)")
        I(f"v_min_u32 v{RK+i}, s68, v{RK+i}")
        I(f"v_lshrrev_b32 v{RK+i}, 14, v{RK+i}")
        I(f"v_lshl_add_u32 v{PA+i}, v{RK+i}, 2, v{B4+i}")
        I(f"v_and_b32 v{RK+i}, 3, v{RK+i}")
        I(f"v_or3_b32 v{RK+i}, v{PA+i}, 12, v{RK+i}")
        I(f"ds_write_b8 v{RK+i}, v{D+i} offset:{IMG}")
    if waits:
        I("s_waitcnt vmcnt(0)")
        stamp(4)
    for i in range(4):
        if OPT["hack"]:
            I(f"v_and_b32 v{S+i}, {OPT['hack']}, v{S+i}")
        I(f"v_perm_b32 v{S+i}, v{EE+(i>>1)}, v{S+i}, s{69+(i&1)}")
        I(f"ds_write_b32 v{PA+i}, v{S+i} offset:{IMG}")

def copy_consts():
    I("s_lshr_b32 s64, s2, 7")
    I("s_lshl_b32 s64, s64, 14")
    I(f"s_add_u32 s64, s64, {hex(CELL_OFF)}")
    I(f"v_mul_u32_u24 v6, {BIN_STRIDE//4}, v5")
    I("v_lshl_add_u32 v6, v0, 4, v6")
    I("v_add_u32 v6, s64, v6")
    I(f"v_add_u32 v7, {128*BIN_STRIDE}, v6")
    I(f"s_mul_i32 s64, s2, {BIN_STRIDE}")
    I(f"s_add_u32 s64, s64, {hex(CELL_OFF)}")
    I("v_lshl_add_u32 v2, v0, 4, s64")
    I("v_add_u32 v3, 0x4000, v2")
    I("s_mov_b32 s36, 0x0f0f0f0f")
    I("s_mov_b32 s37, s36")
    if OPT["w32"] == 2:
        I("v_mov_b32 v102, 0")
    elif OPT["w32"]:
        I("v_bfe_u32 v102, v0, 1, 2")
        I("v_bfe_u32 v103, v0, 2, 1")
        I(f"v_mul_u32_u24 v102, {6*INC}, v102")
        I("v_mul_u32_u24 v102, v102, v103")
    else:
        I("v_bfe_u32 v102, v0, 2, 1")
        I(f"v_mul_u32_u24 v102, {12*INC}, v102")
    I(f"s_mov_b32 s39, {24*INC}")
    I("s_mov_b32 s40, 0xc000")
    I("s_mov_b32 s41, 0xffc0c0c0")
    I(f"s_mov_b32 s42, {49 << 16}")
    I("s_mov_b32 s43, 0")
    I("v_mov_b32 v1, 0")
    I(f"s_mov_b32 s{S_TAB}, s{P_WS}")
    I(f"s_or_b32 s{S_TAB+1}, s{P_WS+1}, 0x1000000")
    I(f"s_mov_b32 s{S_TAB+2}, {0 if OPT['nog'] else TAB_ROWS}")
    I(f"s_mov_b32 s{S_TAB+3}, 0x20000")

def lds_init():
    I("v_add_u32 v5, s2, v3")
    I("v_and_b32 v5, 127, v5")
    I(f"v_mul_u32_u24 v4, {IMG_STRIDE}, v5")
    I("v_lshl_add_u32 v4, v2, 4, v4")
    I("v_lshlrev_b32 v5, 2, v5")
    I("v_mov_b32 v12, 0")
    I("v_mov_b32 v13, 0x3f3f3f")
    I(f"ds_write2st64_b32 v5, v12, v12 offset0:{C1_OFF//256} offset1:{C1_OFF//256+2}")
    for r in range(1 if OPT["init1"] else 2):
        for b in range(2):
            I(f"ds_write_b32 v4, v13 offset:{IMG + b*B2 + r*128 + 12}")
def edge_addr():
    I(f"s_mul_i32 s64, s2, {CHUNK*4}")
    I("v_lshl_add_u32 v10, v0, 4, s64")
    I("v_lshrrev_b32 v11, 1, v10")

def gen():
    o(".p2align 8")
    o(f".globl {KNAME}")
    o(f".type {KNAME},@function")
    L(KNAME)
    I("s_cmp_ge_u32 s2, 256")
    I("s_cbranch_scc1 K_END")
    stamp(0); stamp(1)
    I("s_load_dwordx16 s[4:19], s[0:1], 0")
    I("s_load_dwordx8 s[20:27], s[0:1], 64")
    if OPT["spin"]:
        I("s_memrealtime s[98:99]")
    I("v_lshrrev_b32 v1, 6, v0")
    I("v_and_b32 v2, 7, v0")
    I("v_readfirstlane_b32 s3, v1")
    I("v_lshrrev_b32 v3, 3, v0")
    I("s_mov_b32 s79, 0")
    I("s_cmp_ge_u32 s3, 12")
    I("s_cbranch_scc1 G_ENTRY")

    I("s_cmp_ge_u32 s3, 2")
    I("s_cbranch_scc1 A_NOPF")
    if OPT["codepf"]:
        I("s_getpc_b64 s[64:65]")
        L("A_PC")
        I("v_lshlrev_b32 v8, 7, v0")
        I("v_min_u32 v8, K_SLOW-A_PC-4, v8")
        I("global_load_dword v27, v8, s[64:65]")
    I("v_lshlrev_b32 v8, 4, v0")
    I("v_mov_b64 v[12:13], 0")
    I("v_mov_b64 v[14:15], 0")
    I(f"ds_write_b128 v8, v[12:15] offset:{C2_OFF}")
    L("A_NOPF")
    lds_init()
    edge_addr()
    I(f"v_cmp_gt_u32 vcc, {E*4}, v10")
    I("s_waitcnt lgkmcnt(0)")
    stamp(24)
    if OPT["cfirst"]:
        copy_consts()
    I("s_mov_b64 exec, vcc")
    I("s_cbranch_execz A_NOE")
    edge_loads(0, OPT["pre"])
    I("s_cmp_eq_u32 s3, 1")
    I("s_cbranch_scc0 A_NOEP")
    I(f"s_add_u32 s70, s{P_WS}, {hex(CTL_OFF)}")
    I(f"s_addc_u32 s71, s{P_WS+1}, 0")
    I("s_load_dwordx2 s[72:73], s[70:71], 8")
    if OPT["fw"]:
        I(f"s_lshl_b32 s74, s2, {OPT['fs']}")
        I(f"s_add_u32 s74, s74, {hex(FLG_OFF - CTL_OFF)}")
        I("s_load_dword s75, s[70:71], s74")
    L("A_NOEP")
    if OPT["tlb"]:
        I("s_cmp_eq_u32 s3, 0")
        I("s_cbranch_scc0 A_NOTLB")
        I("s_mov_b64 exec, 1")
        if OPT["tlb"] & 1:
            I(f"global_load_dword v26, v10, {sr(P_SRC,2)}")
            I(f"global_load_dword v26, v11, {sr(P_E,2)}")
        if OPT["tlb"] & 2:
            I(f"global_load_dword v26, v12, {sr(P_OUT,2)}")
            I("s_mov_b64 exec, 0xffff")
            I(f"v_mul_u32_u24 v8, {16*BIN_STRIDE}, v0")
            I(f"v_add_u32 v8, {hex(CELL_OFF + 32768)}, v8")
            I(f"global_load_dword v26, v8, {WS}")
        I("s_mov_b64 exec, vcc")
        L("A_NOTLB")
    I("s_barrier")
    stamp(2)
    edge_loads(OPT["pre"], 3)
    if not OPT["cfirst"]:
        I("s_mov_b64 exec, -1")
        copy_consts()
        I("s_mov_b64 exec, vcc")
    binning(True)
    I("s_mov_b64 exec, -1")
    I("s_cmp_eq_u32 s3, 1")
    I("s_cbranch_scc0 A_JOIN")
    I("s_waitcnt lgkmcnt(0)")
    I("s_add_u32 s72, s72, 0x1000000")
    I("s_addc_u32 s73, s73, 0")
    I("s_and_b32 s72, s72, 0xff000000")
    for k in range(3):
        I(f"s_bfe_u32 s64, s73, {hex((2 << 16) | (2*k))}")
        I(f"s_lshl_b32 s64, s64, {6 + 8*k}")
        I("s_or_b32 s72, s72, s64")
        I(f"s_bfe_u32 s64, s73, {hex((2 << 16) | (6 + 2*k))}")
        I("s_lshl_b32 s64, s64, 14")
        I(f"v_mov_b32 v{TG+k}, s64")
    I(f"v_mov_b32 v{TG+3}, s72")
    I(f"ds_write_b128 v1, {vr(TG,4)} offset:{TAGS}")
    I("s_branch A_JOIN")
    L("A_NOE")
    I("s_barrier")
    I("s_mov_b64 exec, -1")
    if not OPT["cfirst"]:
        copy_consts()
    I("s_branch A_JOIN")

    XA, FA, FB, ACC1, ACC2 = 28, 36, 68, 104, 36
    L("G_ENTRY")
    if OPT["gprio"]:
        I("s_setprio 3")
    I("v_and_b32 v7, 7, v3")
    I("s_and_b32 s64, s3, 1")
    I("s_lshl_b32 s64, s64, 2")
    I("v_and_b32 v8, 2, v7")
    I("v_xor_b32 v8, v8, v2")
    I("v_xor_b32 v8, s64, v8")
    I("v_lshlrev_b32 v8, 4, v8")
    I("v_lshl_add_u32 v8, v7, 7, v8")
    I("s_and_b32 s65, s3, 3")
    I("s_lshl_b32 s65, s65, 11")
    I("v_add_u32 v8, s65, v8")
    I(f"s_add_u32 s65, s65, {W_OFF}")
    I("s_add_u32 s66, s3, 3")
    I("s_and_b32 s66, s66, 3")
    I("v_xor_b32 v9, v2, v7")
    I("v_lshlrev_b32 v9, 4, v9")
    I("v_lshl_add_u32 v9, v7, 15, v9")
    I("s_lshl_b32 s67, s66, 19")
    I("s_lshl_b32 s68, s2, 7")
    I("s_add_u32 s67, s67, s68")
    I("v_add_u32 v9, s67, v9")
    I("v_add_u32 v15, 0x40000, v9")
    I("s_lshl_b32 s67, s66, 11")
    I(f"s_mov_b32 s{S_X+2}, {N*128}")
    I(f"s_mov_b32 s{S_X+3}, 0x20000")
    I("s_mov_b32 m0, s67")
    I("s_waitcnt lgkmcnt(0)")
    stamp(24)
    I(f"s_mov_b64 {sr(S_X,2)}, {sr(P_X,2)}")
    I(f"buffer_load_dwordx4 v9, {sr(S_X,4)}, 0 offen lds")
    I("s_add_u32 m0, s67, 1024")
    I("s_nop 0")
    I(f"buffer_load_dwordx4 v15, {sr(S_X,4)}, 0 offen lds")
    def w_dma(p, off, va="v8", sd="s65"):
        I(f"s_add_u32 m0, {sd}, {off}")
        I("s_nop 0")
        I(f"global_load_lds_dwordx4 {va}, {sr(p,2)}")
        I(f"global_load_lds_dwordx4 {va}, {sr(p,2)} offset:1024")
    w_dma(P_WB, 0)
    w_dma(P_WV, 8192)
    lds_init()
    edge_addr()
    if OPT["gbar"]:
        I("s_waitcnt lgkmcnt(0)")
        I("s_barrier")
        stamp(2)
    I("s_cmp_eq_u32 s3, 12")
    I("s_cselect_b32 s74, 0xffff, 0")
    I("s_cmp_eq_u32 s2, 255")
    I("s_cselect_b32 s74, 0, s74")
    I("s_mov_b32 s75, 0")
    I("s_mov_b64 exec, s[74:75]")
    I("s_cbranch_execz G_NOE")
    edge_loads()
    L("G_NOE")
    I("s_mov_b64 exec, -1")
    I("v_mov_b32 v126, v8")
    I("v_lshlrev_b32 v100, 4, v2")
    I("s_mov_b32 s78, s65")
    I(f"s_mov_b64 {sr(S_X,2)}, {WS}")
    I(f"s_mov_b32 s{S_X+2}, {TAB_ROWS*256}")
    copy_consts()
    I("v_and_b32 v124, 15, v0")
    I("v_bfe_u32 v125, v0, 4, 2")
    I("v_and_b32 v8, 7, v124")
    I("v_lshlrev_b32 v9, 1, v125")
    I("v_xor_b32 v8, v8, v9")
    I("v_lshlrev_b32 v8, 4, v8")
    I("v_lshl_add_u32 v8, v124, 7, v8")
    I("v_add_u32 v8, s67, v8")
    I("v_xor_b32 v9, 16, v8")
    I("v_lshrrev_b32 v10, 2, v124")
    I("v_and_b32 v11, 2, v10")
    I("v_bfe_u32 v12, v0, 1, 1")
    I("v_or_b32 v11, v11, v12")
    I("v_and_b32 v12, 1, v125")
    I("v_lshl_or_b32 v11, v12, 2, v11")
    I("v_lshlrev_b32 v11, 4, v11")
    I("v_and_b32 v12, 1, v0")
    I("v_lshl_or_b32 v11, v12, 3, v11")
    I("v_lshl_add_u32 v10, v125, 4, v10")
    I("v_lshl_or_b32 v11, v10, 7, v11")
    I(f"v_add_u32 v12, {W_OFF}, v11")
    for T in range(1, 4):
        I(f"v_xor_b32 v{12+T}, {T << 5}, v12")
    I(f"s_mov_b32 s76, {hex(f32(-LOG2E))}")
    I("s_mov_b32 s77, 0x07060302")
    I(f"v_mov_b32 v26, {hex(f32(2.0**-70))}")
    I("s_lshl_b32 s64, s66, 20")
    I("s_lshl_b32 s65, s2, 8")
    I("s_add_u32 s64, s64, s65")
    I("v_lshlrev_b32 v27, 18, v125")
    I("v_lshl_add_u32 v27, v124, 4, v27")
    I("v_add_u32 v27, s64, v27")
    I("v_mov_b32 v10, 1")
    def g_sync(target, lab, arrive=True):
        if arrive:
            I("s_mov_b64 exec, 1")
            I(f"ds_add_u32 v1, v10 offset:{SYNC}")
            I("s_mov_b64 exec, -1")
        L(lab)
        I(f"ds_read_b32 v11, v1 offset:{SYNC}")
        I("s_waitcnt lgkmcnt(0)")
        I("v_readfirstlane_b32 s64, v11")
        I(f"s_cmp_lt_u32 s64, {target}")
        I(f"s_cbranch_scc1 {lab}")
    def frag_reads(F, moff):
        for T in range(4):
            for s in range(2):
                for h in range(2):
                    I(f"ds_read_b64_tr_b16 {vr(F + 8*T + 4*s + 2*h, 2)}, v{12+T} offset:{moff + (8*s+4*h)*128}")
    def mfmas(F, acc, swap, later):
        for T in range(4):
            I(f"s_waitcnt lgkmcnt({min(15, later + 4*(3-T))})")
            for s in range(2):
                a, b = vr(XA + 4*s, 4), vr(F + 8*T + 4*s, 4)
                if swap:
                    a, b = b, a
                c = "0" if s == 0 else vr(acc + 4*T, 4)
                I(f"v_mfma_f32_16x16x32_bf16 {vr(acc+4*T,4)}, {a}, {b}, {c}")
    if not OPT["gbar"]:
        I("s_waitcnt lgkmcnt(0)")
        I("s_barrier")
        stamp(2)
    I("s_cmp_eq_u64 s[74:75], 0")
    I("s_cbranch_scc1 G_W0")
    I("s_waitcnt vmcnt(3)")
    I("s_branch G_W1")
    L("G_W0")
    I("s_waitcnt vmcnt(0)")
    L("G_W1")
    stamp(3)
    g_sync(4, "G_S1")
    stamp(20)
    I(f"ds_read_b128 {vr(XA,4)}, v8")
    I(f"ds_read_b128 {vr(XA+4,4)}, v9")
    frag_reads(FA, 0)
    frag_reads(FB, 8192)
    stamp(21)
    w_dma(P_WA, 16384, "v126", "s78")
    w_dma(P_WU, 24576, "v126", "s78")
    I("s_cmp_eq_u32 s3, 13")
    I("s_cbranch_scc0 G_NOWC")
    I(f"s_mov_b32 m0, {WC_OFF}")
    I("s_mov_b64 exec, 0xff")
    I(f"global_load_lds_dwordx4 v100, {sr(P_WC,2)}")
    I("s_mov_b64 exec, -1")
    L("G_NOWC")
    stamp(22)
    mfmas(FA, ACC1, False, 16)
    mfmas(FB, ACC2, False, 0)
    stamp(23)
    ACCB, ACCV, OUTR = ACC1, ACC2, FB
    SD = sdwa("WORD_1")
    I("s_mov_b32 s80, 0x8000")
    I("s_mov_b32 s81, 0x8000")
    I(f"s_mov_b32 s68, {hex(f32(2.0**-100))}")
    I("s_mov_b32 s69, s68")
    I("v_mov_b32 v10, v26")
    I("v_mov_b32 v11, v26")
    I("s_nop 1")
    for rp in (0, 2):
        for t in range(4):
            I(f"v_pk_fma_f32 {vr(ACCB+4*t+rp,2)}, {vr(ACCB+4*t+rp,2)}, s[76:77], v[10:11] op_sel_hi:[1,0,1]")
        for t in (1, 3):
            I(f"v_pk_add_f32 {vr(ACCV+4*t+rp,2)}, {vr(ACCV+4*t+rp,2)}, s[68:69]")
        for t in range(4):
            I(f"v_lshl_add_u64 {vr(ACCB+4*t+rp,2)}, {vr(ACCB+4*t+rp,2)}, 0, s[80:81]")
        for t in range(4):
            I(f"v_lshl_add_u64 {vr(ACCV+4*t+rp,2)}, {vr(ACCV+4*t+rp,2)}, 0, s[80:81]")
        for r in (rp, rp + 1):
            for t in (0, 2):
                I(f"v_sub_u32_sdwa v{ACCB+4*t+r}, v{ACCB+4*t+r}, v{ACCV+4*t+r} clamp {SD}")
            for t in (0, 2):
                I(f"v_sub_u32_sdwa v{ACCV+4*(t+1)+r}, v{ACCV+4*(t+1)+r}, v{ACCB+4*t+r} clamp {SD}")
            for t in (0, 2):
                I(f"v_sub_u32_sdwa v{ACCB+4*(t+1)+r}, v{ACCB+4*(t+1)+r}, v{ACCV+4*(t+1)+r} clamp {SD}")
            for t in range(4):
                I(f"v_perm_b32 v{OUTR+4*r+t}, v{ACCB+4*t+r}, v{ACCV+4*t+r}, s77")
            if r == 0:
                I("s_cmp_eq_u32 s3, 12")
                I("s_cbranch_scc1 G_T3")
            else:
                I("v_add_u32 v27, 0x10000, v27")
            I(f"buffer_store_dwordx4 {vr(OUTR+4*r,4)}, v27, {sr(S_X,4)}, 0 offen sc1")
    stamp(4)
    L("G_BVD")
    I("s_waitcnt vmcnt(4)")
    I("s_branch G_DONE")
    L("G_T3")
    I("s_cmp_eq_u32 s2, 212")
    I("s_cbranch_scc0 G_NODUM")
    for t in range(4):
        I(f"v_mov_b32 v{OUTR+t}, 0x7f000000")
    L("G_NODUM")
    I(f"buffer_store_dwordx4 {vr(OUTR,4)}, v27, {sr(S_X,4)}, 0 offen sc1")
    I("s_waitcnt vmcnt(5)")
    I("s_mov_b64 exec, s[74:75]")
    I("s_cbranch_execz G_NOBIN")
    I("v_mov_b32 v126, v14")
    binning(False)
    I("v_mov_b32 v14, v126")
    L("G_NOBIN")
    I("s_mov_b64 exec, -1")
    I(f"ds_read_b128 {vr(XA,4)}, v8")
    I(f"ds_read_b128 {vr(XA+4,4)}, v9")
    stamp(4)
    I("s_waitcnt vmcnt(1)")
    L("G_DONE")
    if OPT["drain"]:
        I("s_waitcnt vmcnt(0)")
    if OPT["gprio"] and not OPT["cprio"]:
        I("s_setprio 0")
    stamp(5)

    L("A_JOIN")
    if OPT["cprio"]:
        I("s_setprio 3")
    I("s_waitcnt lgkmcnt(0)")
    stamp(6)
    I("s_barrier")
    stamp(7)
    C0 = 68
    I(f"ds_read_b128 {vr(TG,4)}, v1 offset:{TAGS}")
    I(f"ds_read2st64_b32 v[8:9], v5 offset0:{C1_OFF//256} offset1:{C1_OFF//256+2}")
    I(f"ds_read_b128 {vr(C0,4)}, v4 offset:{IMG}")
    I(f"ds_read_b128 {vr(C0+4,4)}, v4 offset:{IMG+B2}")
    def tagit(c):
        for k in range(3):
            I(f"v_bfi_b32 v{c+k}, s40, v{TG+k}, v{c+k}")
        I(f"v_or_b32 v{c+3}, v{TG+3}, v{c+3}")
    I("s_waitcnt lgkmcnt(2)")
    I("v_cmp_le_u32 s[72:73], v102, v8")
    I("v_cmp_le_u32 s[74:75], v102, v9")
    I("v_max_u32 v10, v8, v9")
    I("v_cmp_le_u32 vcc, s39, v10")
    def cell_store(k):
        I(f"s_mov_b64 exec, s[{72+2*k}:{73+2*k}]")
        I(f"global_store_dwordx4 v{6+k}, {vr(C0+4*k,4)}, {WS} sc1")
    if OPT["gl"]:
        I("s_cmp_ge_u32 s3, 12")
        I("s_waitcnt lgkmcnt(1)")
        tagit(C0)
        I("s_cbranch_scc1 A_GL1")
        cell_store(0)
        I("s_mov_b64 exec, -1")
        L("A_GL1")
        I("s_waitcnt lgkmcnt(0)")
        tagit(C0 + 4)
        I("s_cbranch_scc1 A_GL2")
        cell_store(1)
        L("A_GL2")
    else:
        I("s_waitcnt lgkmcnt(1)")
        tagit(C0)
        cell_store(0)
        I("s_mov_b64 exec, s[74:75]")
        I("s_waitcnt lgkmcnt(0)")
        tagit(C0 + 4)
        I(f"global_store_dwordx4 v7, {vr(C0+4,4)}, {WS} sc1")
    I("s_cbranch_vccnz R_PUB2")
    L("A_PUBD")
    I("s_mov_b64 exec, -1")
    if OPT["cprio"]:
        I("s_setprio 0")
    stamp(8)
    I("s_cmp_ge_u32 s3, 12")
    I("s_cbranch_scc0 B_NOAU")
    I("s_setprio 1")
    FU, FW, UU = 36, 84, 52
    def half_gemm(moff, acc, swap):
        for T in range(4):
            F = (FU if T < 2 else FW) + 8 * (T & 1)
            for s in range(2):
                for h in range(2):
                    I(f"ds_read_b64_tr_b16 {vr(F + 4*s + 2*h, 2)}, v{12+T} offset:{moff + (8*s+4*h)*128}")
        for T in range(4):
            F = (FU if T < 2 else FW) + 8 * (T & 1)
            I(f"s_waitcnt lgkmcnt({4*(3-T)})")
            for s in range(2):
                a, b = vr(XA + 4*s, 4), vr(F + 4*s, 4)
                if swap:
                    a, b = b, a
                c = "0" if s == 0 else vr(acc + 4*T, 4)
                I(f"v_mfma_f32_16x16x32_bf16 {vr(acc+4*T,4)}, {a}, {b}, {c}")
    half_gemm(16384, AP, False)
    if not OPT["drain"]:
        I(f"s_lshl_b32 s64, s2, {OPT['fs']-2}")
        I("s_add_u32 s64, s64, s66")
        I("s_lshl_b32 s64, s64, 2")
        I(f"s_add_u32 s64, s64, {hex(FLG_OFF)}")
        I("v_mov_b32 v26, s64")
        I(f"s_waitcnt vmcnt({0 if OPT['gl'] else 2})")
        if OPT["gl"] and OPT["fl"]:
            cell_store(0)
            cell_store(1)
        I("s_mov_b64 exec, 1")
        I(f"global_store_dword v26, v{TG+3}, {WS} sc1")
        if OPT["gl"] and not OPT["fl"]:
            cell_store(0)
            cell_store(1)
        I("s_mov_b64 exec, -1")
    half_gemm(24576, UU, True)
    I(f"s_mul_i32 s65, s66, {16*EAU_STRIDE}")
    I(f"s_add_u32 s65, s65, {EAU_OFF}")
    I(f"v_mul_u32_u24 v26, {4*EAU_STRIDE}, v125")
    I("v_lshl_add_u32 v26, v124, 4, v26")
    I("v_add_u32 v25, s65, v26")
    I(f"v_mul_u32_u24 v27, {EAU_STRIDE}, v124")
    I("v_lshl_add_u32 v27, v125, 4, v27")
    I("v_add_u32 v27, s65, v27")
    for i in range(16):
        I(f"v_mul_f32 v{AP+i}, s76, v{AP+i}")
    I("s_cmp_eq_u32 s3, 12")
    I("s_cselect_b32 exec_lo, 0x000f000f, -1")
    I("s_cselect_b32 exec_hi, 0x000f000f, -1")
    for T in range(4):
        I(f"ds_write_b128 v27, {vr(UU+4*T,4)} offset:{256 + T*64}")
    I("s_cselect_b32 exec_hi, 0, -1")
    I("s_cselect_b32 exec_lo, 0xffff, -1")
    I(f"v_max3_f32 v26, |v{AP}|, |v{AP+1}|, |v{AP+2}|")
    for i in range(3, 15, 2):
        I(f"v_max3_f32 v26, |v{AP+i}|, |v{AP+i+1}|, v26")
    I(f"v_max_f32 v26, |v{AP+15}|, v26")
    I(f"v_cmp_nge_f32 vcc, {hex(f32(63.0))}, v26")
    EAT = 36
    for r in range(4):
        for t in range(4):
            I(f"v_add_f32 v{EAT+4*r+t}, {hex(f32(-float(KEXP)))}, v{AP+4*t+r}")
        for t in range(4):
            I(f"ds_write_b32 v25, v{AP+4*t+r} offset:{r*EAU_STRIDE + 512 + 4*t}")
            I(f"v_exp_f32 v{EAT+4*r+t}, v{EAT+4*r+t}")
        I("s_nop 0")
        I(f"ds_write_b128 v25, {vr(EAT+4*r,4)} offset:{r*EAU_STRIDE}")
        if r == 0:
            I("s_cbranch_scc1 G_EAD")
    L("G_EAD")
    I("s_mov_b64 exec, -1")
    I("s_cmp_lg_u64 vcc, 0")
    I("s_cselect_b32 s79, 1, 0")
    if OPT["cad"]:
        I("s_branch B_CONST")
    L("B_NOAU")
    if OPT["cad"]:
        I("s_waitcnt vmcnt(0)")
    L("B_CONST")

    RA, CA, KA, RB, CB, KB = 8, 24, 36, 64, 72, 78
    XB, Y, A = 48, 80, 100
    IP = (96, 98, 104, 106)
    UR, XR, VOUT, VU, LP, EP = 108, 112, 116, 117, 118, 120
    WCB, DEN, NUM, VOOB, C4, VRA, VSE, EA, P, Q, SS, LC = 16, 20, 44, 30, 31, 42, 32, 12, 24, 8, 36, 4
    I("v_and_b32 v5, 63, v0")
    I("s_cmp_lt_u32 s2, 212")
    I("s_cselect_b32 s64, 49, 48")
    I("v_cmp_gt_u32 s[82:83], s64, v5")
    I("v_lshlrev_b32 v5, 2, v5")
    I(f"v_and_b32 v{LC}, 15, v0")
    I(f"v_lshlrev_b32 v6, 1, v{LC}")
    for j in range(4):
        I(f"ds_read_u16 v{WCB+j}, v6 offset:{WC_OFF + 32*j}")
    I(f"v_lshlrev_b32 v{LC}, 4, v{LC}")
    I(f"v_mov_b32 v{C4}, 4")
    I(f"v_mov_b32 v{VOOB}, {OOB}")
    for p_ in IP:
        I(f"v_mov_b32 v{p_+1}, v{LC}")
    I(f"v_lshlrev_b32 v{LP}, 1, v6")
    I(f"v_mov_b32 v{LP+1}, v{LC}")
    I("v_lshrrev_b32 v7, 4, v0")
    I(f"v_mul_u32_u24 v{VU}, {EAU_STRIDE}, v7")
    I(f"s_mov_b32 s64, {EAU_OFF + 256}")
    I(f"v_add3_u32 v{VU}, v{VU}, s64, v{LC}")
    I("v_lshlrev_b32 v8, 2, v6")
    I("v_and_b32 v9, 0x70, v0")
    I("v_xor_b32 v9, v8, v9")
    I("v_lshl_add_u32 v9, v7, 7, v9")
    I(f"ds_read_b64 {vr(XR+2,2)}, v9 offset:{X_OFF}")
    I(f"v_lshl_add_u32 v{VOUT}, v7, 15, v8")
    I("s_lshl_b32 s64, s2, 7")
    I(f"v_add_u32 v{VOUT}, s64, v{VOUT}")
    srd(S_X, P_OUT, N * 128)
    for d in range(0, 4, 2):
        I(f"v_mov_b64 {vr(A+d,2)}, 0")
        I(f"v_mov_b64 {vr(DEN+d,2)}, 0")
        I(f"v_mov_b64 {vr(NUM+d,2)}, 0")
    I("s_mov_b64 s[68:69], -1")
    I("s_mov_b64 s[70:71], -1")
    I("s_cmp_lt_u32 s3, 4")
    I("s_cselect_b32 s78, 2, 0")
    I(f"s_mov_b32 s16, {hex(f32(2.0**-KEXP))}")
    I("s_mov_b32 s17, s16")
    I(f"s_mov_b32 s18, {hex(f32(1e-6 * 2.0**KEXP))}")
    I("s_mov_b32 s19, s18")
    I("s_mov_b32 s20, 32")
    I("s_mov_b32 s21, 32")
    I(f"s_mov_b32 s24, {SLOT_STRIDE}")
    I(f"s_mov_b32 s25, {EAU_STRIDE}")
    I(f"s_mov_b32 s85, {LIST_OFF}")
    I("s_mov_b32 s56, 0x11111111")
    I("s_mov_b32 s57, s56")
    I("s_lshl_b64 s[58:59], s[56:57], 1")
    I("s_lshl_b64 s[60:61], s[56:57], 2")
    I("s_lshl_b64 s[62:63], s[56:57], 3")
    I("v_bfe_u32 v124, v0, 4, 2")
    I("v_bfe_u32 v125, v0, 5, 1")
    I("v_bfe_u32 v126, v0, 2, 1")
    I("v_lshl_add_u32 v125, v126, 1, v125")
    I("v_bfe_u32 v126, v0, 3, 2")
    I("v_lshlrev_b32 v126, 2, v126")
    I("v_bfe_u32 v34, v0, 2, 3")
    I("s_lshl_b32 s64, s3, 3")
    I("s_sub_u32 s64, s2, s64")
    I("v_sub_u32 v34, s64, v34")
    I("v_and_b32 v34, 127, v34")
    I("v_and_b32 v35, 32, v0")
    I("v_lshl_add_u32 v34, v35, 2, v34")
    I("v_and_b32 v35, 3, v0")
    if OPT["pf"] or OPT["pf2"] or OPT["pf3"] or OPT["pf4"]:
        I("v_lshlrev_b32 v33, 8, v34")
        I("v_lshl_add_u32 v33, v35, 20, v33")
        I("s_lshr_b32 s64, s2, 4")
        I("s_lshl_b32 s64, s64, 16")
        I("s_bfe_u32 s65, s2, 0x10003")
        I("s_lshl_b32 s65, s65, 7")
        I("s_add_u32 s64, s64, s65")
        I("v_add_u32 v33, s64, v33")
    if OPT["pf5"]:
        I("v_lshlrev_b32 v33, 8, v34")
        I("v_and_b32 v32, 1, v35")
        I("v_lshl_add_u32 v33, v32, 7, v33")
        I("v_lshrrev_b32 v32, 1, v35")
        I("v_lshl_add_u32 v33, v32, 16, v33")
        I("s_sub_u32 s64, s3, 13")
        I("s_lshl_b32 s64, s64, 20")
        I("s_lshr_b32 s65, s2, 7")
        I("s_lshl_b32 s65, s65, 19")
        I("s_add_u32 s64, s64, s65")
        I("v_add_u32 v33, s64, v33")
    I(f"v_lshlrev_b32 v34, {OPT['fs']}, v34")
    I("v_lshl_add_u32 v34, v35, 2, v34")
    I(f"v_add_u32 v34, {hex(FLG_OFF)}, v34")
    I(f"s_mov_b32 s64, {hex(f32(-LOG2E))}")
    I("s_mov_b32 s66, 0x0000ffff")
    I("s_mov_b32 s67, 0xffff0000")
    I("s_waitcnt lgkmcnt(0)")
    for j in range(4):
        I(f"v_lshlrev_b32 v{WCB+j}, 16, v{WCB+j}")
    for j in range(4):
        I(f"v_mul_f32 v{WCB+j}, s64, v{WCB+j}")
    for j in range(4):
        I(f"v_cvt_pk_bf16_f32 v{WCB+j}, 0, v{WCB+j}")
    for j in range(4):
        I(f"v_cndmask_b32 v{WCB+j}, 0, v{WCB+j}, s[66:67]")
    I(f"v_lshlrev_b32 v{XR}, 16, v{XR+2}")
    I(f"v_and_b32 v{XR+1}, 0xffff0000, v{XR+2}")
    I(f"v_lshlrev_b32 v{XR+2}, 16, v{XR+3}")
    I(f"v_and_b32 v{XR+3}, 0xffff0000, v{XR+3}")
    I("s_setprio 0")
    if OPT["fl"]:
        I("s_waitcnt vmcnt(1)")
        I("s_cmp_ge_u32 s3, 12")
        I("s_cbranch_scc1 B_DRD")
    I("s_waitcnt vmcnt(0)")
    L("B_DRD")
    if OPT["dbar"]:
        I("s_barrier")
    if OPT["delay"]:
        I(f"s_sleep {OPT['delay']}")
    stamp(9)
    I(f"global_load_dwordx4 {vr(RA,4)}, v2, {WS} sc1")
    I(f"global_load_dwordx4 {vr(RA+4,4)}, v3, {WS} sc1")

    def poll(R_, first, name):
        L(name)
        I("s_waitcnt vmcnt(0)")
        for k in range(2):
            I(f"s_mov_b64 exec, s[{68+2*k}:{69+2*k}]")
            for j in range(4):
                I(f"v_xor_b32 v{R_+4*k+j}, v{TG+j}, v{R_+4*k+j}")
        I("s_mov_b64 exec, -1")
        for k in range(2):
            r = R_ + 4 * k
            I(f"v_or3_b32 v{6+k}, v{r}, v{r+1}, v{r+2}")
            I(f"v_and_b32 v{6+k}, s40, v{6+k}")
            I(f"v_and_or_b32 v{6+k}, v{r+3}, s41, v{6+k}")
            I(f"v_cmp_ne_u32 s[{68+2*k}:{69+2*k}], 0, v{6+k}")
            I(f"v_cmp_gt_u32 s[{64+2*k}:{65+2*k}], s42, v{r+3}")
        if first:
            for k in range(2):
                I(f"s_andn2_b64 s[{64+2*k}:{65+2*k}], s[{64+2*k}:{65+2*k}], s[{68+2*k}:{69+2*k}]")
                I(f"s_lshl_b64 s[{74+2*k}:{75+2*k}], s[{64+2*k}:{65+2*k}], 1")
                I(f"s_or_b64 s[{74+2*k}:{75+2*k}], s[{74+2*k}:{75+2*k}], s[36:37]")
        I("s_and_b64 s[72:73], s[68:69], s[74:75]")
        I("s_and_b64 s[80:81], s[70:71], s[76:77]")
        I("s_or_b64 s[72:73], s[72:73], s[80:81]")
        I(f"s_cbranch_scc1 {name}_RETRY")
    def retry(R_, first, name):
        L(name + "_RETRY")
        if first:
            for k in range(4):
                I(f"s_and_b32 s72, s{68+k}, s{74+k}")
                I("s_lshl_b32 s73, s72, 1")
                I("s_or_b32 s72, s72, s73")
                I("s_lshl_b32 s73, s72, 2")
                I("s_or_b32 s72, s72, s73")
                I("s_lshl_b32 s73, s72, 4")
                I("s_or_b32 s72, s72, s73")
                I(f"s_and_b32 s{68+k}, s{68+k}, s72")
        else:
            I("s_and_b64 s[68:69], s[68:69], s[74:75]")
            I("s_and_b64 s[70:71], s[70:71], s[76:77]")
        I("s_add_u32 s43, s43, 1")
        I(f"s_cmp_gt_u32 s43, {POLL_LIMIT}")
        I("s_cbranch_scc1 R_TIMEOUT")
        if OPT["sleep"]:
            I(f"s_sleep {OPT['sleep']}")
        reload(R_, name)
        I(f"s_branch {name}")
    def reload(R_, name):
        I("s_mov_b64 exec, s[68:69]")
        I(f"s_cbranch_execz {name}_1")
        I(f"global_load_dwordx4 {vr(R_,4)}, v2, {WS} sc1")
        L(name + "_1")
        I("s_mov_b64 exec, s[70:71]")
        I(f"s_cbranch_execz {name}_2")
        I(f"global_load_dwordx4 {vr(R_+4,4)}, v3, {WS} sc1")
        L(name + "_2")
    def ranks(R_, C_, K_, M_):
        for k in range(2):
            for j in range(3):
                I(f"v_lshlrev_b32_sdwa v{C_+3*k+j}, 2, v{R_+4*k+3} {sdwa('BYTE_'+str(j))}")
        for k in range(2):
            I(f"s_mov_b64 exec, s[{74+2*k}:{75+2*k}]")
            for j in range(3):
                m = M_ + 2 * (3 * k + j)
                I(f"v_cmp_gt_u32_sdwa s[{m}:{m+1}], 49, v{R_+4*k+3} src0_sel:DWORD src1_sel:BYTE_{j}")
            for j in range(3):
                m = M_ + 2 * (3 * k + j)
                I(f"s_mov_b64 exec, s[{m}:{m+1}]")
                I(f"ds_add_rtn_u32 v{K_+3*k+j}, v{C_+3*k+j}, v{C4} offset:{C2_OFF}")
        I("s_mov_b64 exec, -1")
    def more_test():
        I("s_and_b64 s[64:65], s[64:65], s[74:75]")
        I("s_and_b64 s[66:67], s[66:67], s[76:77]")
        I("s_or_b64 s[72:73], s[64:65], s[66:67]")
        I("s_or_b32 s72, s72, s73")
        I("s_and_b32 s72, s72, 0x80808080")
    MA, MB = 44, 4

    def pf5(lab):
        I("s_cmp_ge_u32 s3, 13")
        I(f"s_cbranch_scc0 {lab}")
        for k in range(OPT["pf5"]):
            if k:
                I("v_add_u32 v33, 0x20000, v33")
            I(f"global_load_dword v84, v33, {WS} sc1")
        L(lab)
    poll(RA, True, "B_P0")
    stamp(10)
    if OPT["ef"]:
        I(f"global_load_dword v35, v34, {WS} sc1")
    ranks(RA, CA, KA, MA)
    more_test()
    I("s_or_b32 s72, s72, s79")
    I("s_cbranch_scc1 R_MORE")
    L("B_RDONE")
    if OPT["stamp"]:
        I("v_writelane_b32 v127, s43, 19")
    I("s_waitcnt lgkmcnt(0)")
    I("s_barrier")
    stamp(11)
    I(f"ds_read_b32 v6, v5 offset:{C2_OFF}")
    if OPT["drain"]:
        if OPT["pf4"]:
            I(f"s_sub_u32 s71, s3, {OPT['pfw']}")
            I(f"s_cmp_lt_u32 s71, {OPT['pf4']}")
            I("s_cbranch_scc0 B_NOPF4")
            I("s_andn2_b64 exec, exec, s[62:63]")
            I(f"global_load_dword v84, v33, {WS} sc1")
            I("s_mov_b64 exec, -1")
            L("B_NOPF4")
    elif not OPT["ef"]:
        I(f"global_load_dword v35, v34, {WS} sc1")
        if OPT["pf5"] and not OPT["pfa"]:
            pf5("B_NOPF5")
    elif OPT["pf"]:
        I("s_sub_u32 s64, s3, 4")
        I(f"s_cmp_lt_u32 s64, {OPT['pf']}")
        I("s_cbranch_scc0 B_NOPF")
        I("s_waitcnt vmcnt(0)")
        I(f"v_cmp_eq_u32 vcc, v{TG+3}, v35")
        I("s_mov_b64 exec, vcc")
        I("s_cbranch_execz B_NOPF0")
        I(f"global_load_dword v84, v33, {WS} sc1")
        L("B_NOPF0")
        I("s_mov_b64 exec, -1")
        L("B_NOPF")
    I("s_waitcnt lgkmcnt(0)")
    I("v_add_u32 v2, 7, v6")
    I("v_and_b32 v2, -8, v2")
    I("v_max_u32 v2, 8, v2")
    I("v_cndmask_b32 v2, 0, v2, s[82:83]")
    if OPT["pf5"] and OPT["pfa"]:
        pf5("B_NOPF5")
    I("v_mov_b32 v3, v2")
    for d in ("row_shr:1 row_mask:0xf", "row_shr:2 row_mask:0xf", "row_shr:4 row_mask:0xf",
              "row_shr:8 row_mask:0xf", "row_bcast:15 row_mask:0xa", "row_bcast:31 row_mask:0xc"):
        I("s_nop 1")
        I(f"v_add_u32_dpp v3, v3, v3 {d} bank_mask:0xf")
    I("v_sub_u32 v7, v3, v2")
    I(f"ds_write_b32 v5, v7 offset:{BASE}")
    I("v_readlane_b32 s64, v3, 63")
    def lookup(C_):
        for i in range(6):
            I(f"ds_read_b32 v{C_+i}, v{C_+i} offset:{BASE}")
    def scatter(R_, C_, K_, M_):
        for i in range(6):
            if i % 3 == 0:
                I(f"s_waitcnt lgkmcnt({3-i})")
            I(f"v_add3_u32 v{C_+i}, v{C_+i}, v{K_+i}, s85")
        for i in range(6):
            I(f"s_mov_b64 exec, s[{M_+2*i}:{M_+2*i+1}]")
            I(f"ds_write_b32 v{C_+i}, v{R_+4*(i//3)+i%3}")
        I("s_mov_b64 exec, -1")
    lookup(CA)
    I("s_add_u32 s65, s64, 31")
    I("s_lshr_b32 s66, s65, 9")
    I("s_bfe_u32 s67, s65, 0x40005")
    I("s_mul_i32 s68, s66, s3")
    I("s_min_u32 s69, s67, s3")
    I("s_add_u32 s68, s68, s69")
    I("s_lshl_b32 s68, s68, 5")
    I("s_cmp_lt_u32 s3, s67")
    I("s_addc_u32 s72, s66, 0")
    I("s_lshl_b32 s69, s72, 3")
    I("s_add_u32 s70, s68, s85")
    if OPT["pf3"]:
        I(f"s_sub_u32 s71, s3, {OPT['pfw']}")
        I(f"s_cmp_lt_u32 s71, {OPT['pf3']}")
        I("s_cbranch_scc0 B_NOPF3")
        I("s_waitcnt vmcnt(0)")
        I(f"v_cmp_eq_u32 vcc, v{TG+3}, v35")
        I("s_andn2_b64 exec, vcc, s[62:63]")
        I("s_cbranch_execz B_NOPF30")
        I(f"global_load_dword v84, v33, {WS} sc1")
        L("B_NOPF30")
        I("s_mov_b64 exec, -1")
        L("B_NOPF3")
    scatter(RA, CA, KA, MA)
    I(f"v_mul_u32_u24 v{VRA}, s69, v124")
    I(f"v_mul_u32_u24 v{VRA+1}, s69, v125")
    I(f"v_add_u32 v{VRA}, s70, v{VRA}")
    I(f"v_add3_u32 v{VRA+1}, v{VRA+1}, s70, v126")
    if OPT["pf"] and OPT["ef"]:
        I("s_sub_u32 s71, s3, 4")
        I(f"s_cmp_lt_u32 s71, {OPT['pf']}")
        I("s_cbranch_scc1 B_FLW")
    if OPT["pf3"]:
        I(f"s_cmp_lt_u32 s71, {OPT['pf3']}")
        I("s_cbranch_scc1 B_FLW")
    if not OPT["drain"]:
        if OPT["pf5"]:
            I(f"s_waitcnt vmcnt({OPT['pf5']})")
            I("s_cmp_ge_u32 s3, 13")
            I("s_cbranch_scc1 B_FLW")
        I("s_waitcnt vmcnt(0)")
        L("B_FLW")
        I(f"v_cmp_ne_u32 vcc, v{TG+3}, v35")
    I("s_cmp_lg_u32 s78, 0")
    I("s_cbranch_scc1 R_EXTRA")
    L("B_XDONE")
    if not OPT["drain"]:
        I("s_cbranch_vccnz R_FLAGS")
    L("B_FDONE")
    if OPT["pf2"]:
        I(f"s_cmp_lt_u32 s3, {OPT['pf2']}")
        I("s_cbranch_scc0 B_NOPF2")
        I(f"global_load_dword v84, v33, {WS} sc1")
        L("B_NOPF2")
    I("s_waitcnt lgkmcnt(0)")
    I("s_barrier")
    stamp(12)
    def i_reads(batch, lo=0, hi=4):
        for i in range(lo, hi):
            I(f"ds_read_u16 v{IP[i]}, v{VRA} offset:{16*batch + 4*i}")
    def a_reads(batch):
        for d in range(4):
            I(f"s_mov_b64 exec, s[{56+2*d}:{57+2*d}]")
            I(f"ds_read_b32 v{A+d}, v{VRA+1} offset:{16*batch}")
        I("s_mov_b64 exec, -1")
    def gathers(x, lo, hi):
        for i in range(lo, hi):
            I(f"buffer_load_dwordx4 {vr(x+4*i,4)}, {vr(IP[i],2)}, {sr(S_TAB,4)}, 0 idxen offen {OPT['gsc'] if OPT['gsc'] != 'none' else ''}")
    i_reads(0)
    I("v_and_b32 v9, 0x3f0, v0")
    I(f"ds_read_b128 {vr(VSE,4)}, v9 offset:{STR}")
    I(f"ds_read_b32 v8, v1 offset:{FLAG}")
    if OPT["prio"]:
        I("s_setprio 3")
    I("s_waitcnt lgkmcnt(2)")
    gathers(XB, 0, 4)
    stamp(13)
    i_reads(1)
    I(f"ds_read_b128 {vr(EP,4)}, v9 offset:{EPI}")
    I(f"ds_read_b128 {vr(UR,4)}, v{VU}")
    I("s_waitcnt lgkmcnt(6)")
    I("v_readfirstlane_b32 s80, v8")
    I(f"v_lshl_add_u64 {vr(VSE,2)}, {vr(VSE,2)}, 0, {vr(LP,2)}")
    I(f"ds_read_b128 {vr(EA,4)}, v{VSE+1}")
    for q in range(4):
        I(f"v_readlane_b32 s{44+q}, v{VSE+2}, {16*q}")
    I(f"s_cmp_gt_u32 s64, {LIST_MAX}")
    I("s_cselect_b32 s81, 1, 0")
    I("s_or_b32 s80, s80, s81")
    if OPT["force_slow"]:
        I("s_branch K_SLOW")
    I("s_cbranch_scc1 K_SLOW")
    a_reads(0)
    for q in range(4):
        if OPT["cut"] & 8:
            I(f"s_mov_b32 s{44+q}, 0")
        I(f"s_bitset1_b32 s{44+q}, s72")
    I("s_or_b32 s82, s44, s45")
    I("s_or_b32 s83, s46, s47")
    I("s_or_b32 s82, s82, s83")
    if OPT["fp"]:
        th = [int(x) for x in str(OPT["fp"]).split("_")]
        I(f"s_lshl_b32 s81, 1, s72")
        for t_ in th:
            I(f"s_lshr_b32 s80, s81, {t_}")
            I("s_or_b32 s82, s82, s80")
    I("s_bfm_b32 s83, s72, 0")
    I("s_lshr_b32 s83, s83, 4")
    I("s_mov_b32 s73, 0")
    I("s_waitcnt lgkmcnt(5)")
    gathers(XB + 16, 0, 4)
    i_reads(2)
    for k in range(3):
        I(f"v_add_u32 v{EP+k}, v{EP+k}, v{LC}")
    I(f"v_cmp_lt_i32 s[48:49], 2, v{EP+3}")
    I("s_cmp_eq_u32 s72, 0")
    I("s_cbranch_scc1 K_JOIN")
    def mfma(x):
        I(f"v_mfma_f32_32x32x16_bf16 {vr(Y,16)}, {vr(A,4)}, {vr(WCB,4)}, {vr(x,16)}")
    stamp(14)
    I("s_waitcnt vmcnt(4) lgkmcnt(4)")
    mfma(XB)
    stamp(15)
    a_reads(1)
    nth = len(str(OPT["prio"]).split("_")) if OPT["prio"] else 0
    if OPT["prio"]:
        I(f"s_setprio {nth}")
    I("s_nop 2")
    L("K_LOOP")
    if OPT["prio"] and not OPT["fp"]:
        I("s_sub_u32 s74, s72, s73")
        for k, t_ in enumerate(int(x) for x in str(OPT["prio"]).split("_")):
            I(f"s_cmp_gt_u32 s74, {t_}")
            I("s_cbranch_scc1 K_STEP0")
            I(f"s_setprio {nth-1-k}")
    for u in range(4):
        bb, hh = u >> 1, u & 1
        x = XB + 16 * bb + 8 * hh
        t = Y + 8 * hh
        L(f"K_STEP{u}")
        for i in range(8):
            I(f"v_exp_f32 v{t+i}, v{t+i}")
        for i in range(4):
            I(f"v_lshlrev_b64 {vr(x+2*i,2)}, 16, {vr(x+2*i,2)}")
        for i in range(4):
            I(f"v_pk_fma_f32 {vr(t+2*i,2)}, {vr(t+2*i,2)}, {vr(EA+2*(i&1),2)}, s[16:17] clamp")
        I(f"v_pk_mul_f32 {vr(P,2)}, {vr(t,2)}, {vr(t+4,2)}")
        I(f"v_pk_mul_f32 {vr(P+2,2)}, {vr(t+2,2)}, {vr(t+6,2)}")
        I(f"v_pk_mul_f32 {vr(Q,2)}, {vr(x,2)}, {vr(t+4,2)}")
        I(f"v_pk_mul_f32 {vr(Q+2,2)}, {vr(x+2,2)}, {vr(t+6,2)}")
        I(f"v_pk_add_f32 {vr(SS,2)}, {vr(t,2)}, {vr(t+4,2)}")
        I(f"v_pk_add_f32 {vr(SS+2,2)}, {vr(t+2,2)}, {vr(t+6,2)}")
        I(f"v_pk_fma_f32 {vr(Q,2)}, {vr(x+4,2)}, {vr(t,2)}, {vr(Q,2)}")
        I(f"v_pk_fma_f32 {vr(Q+2,2)}, {vr(x+6,2)}, {vr(t+2,2)}, {vr(Q+2,2)}")
        if OPT["sup"]:
            I(f"s_bitcmp1_b32 s83, {u}")
            I(f"s_cselect_b32 s{S_TAB+2}, s{S_TAB+2}, 0")
        if hh == 0:
            I("s_waitcnt lgkmcnt(0)")
            if not OPT["cut"] & 4:
                gathers(XB + 16 * bb, 0, 2)
            for i in range(4):
                I(f"v_rcp_f32 v{P+i}, v{P+i}")
        else:
            I("s_waitcnt vmcnt(2)")
            if not OPT["cut"] & 1:
                mfma(XB + 16 * (1 - bb))
            for i in range(4):
                I(f"v_rcp_f32 v{P+i}, v{P+i}")
            if not OPT["cut"] & 4:
                gathers(XB + 16 * bb, 2, 4)
        I(f"v_pk_fma_f32 {vr(NUM,2)}, {vr(Q,2)}, {vr(P,2)}, {vr(NUM,2)}")
        I(f"v_pk_fma_f32 {vr(DEN,2)}, {vr(SS,2)}, {vr(P,2)}, {vr(DEN,2)}")
        I(f"v_pk_fma_f32 {vr(NUM+2,2)}, {vr(Q+2,2)}, {vr(P+2,2)}, {vr(NUM+2,2)}")
        I(f"v_pk_fma_f32 {vr(DEN+2,2)}, {vr(SS+2,2)}, {vr(P+2,2)}, {vr(DEN+2,2)}")
        if hh == 1:
            if not OPT["cut"] & 4:
                i_reads(bb + 3)
            if not OPT["cut"] & 2:
                a_reads(bb + 2)
        I(f"s_bitcmp1_b32 s82, {u+1}")
        I(f"s_cbranch_scc1 K_FLUSH{u}")
        L(f"K_BACK{u}")
    I(f"v_lshl_add_u64 {vr(VRA,2)}, {vr(VRA,2)}, 0, s[20:21]")
    I("s_lshr_b32 s82, s82, 4")
    I("s_lshr_b32 s83, s83, 4")
    I("s_add_u32 s73, s73, 4")
    I("s_branch K_LOOP")
    for u in range(4):
        L(f"K_FLUSH{u}")
        I(f"s_add_u32 s74, s73, {u+1}")
        for h in range(2):
            I(f"s_bitcmp1_b32 s{44+2*h}, s74")
            I("s_cselect_b32 s75, 0xffff, 0")
            I(f"s_bitcmp1_b32 s{45+2*h}, s74")
            I("s_cselect_b32 s80, 0xffff0000, 0")
            I(f"s_or_b32 {'exec_hi' if h else 'exec_lo'}, s75, s80")
        if OPT["fp"]:
            I("s_sub_u32 s75, s72, s74")
            for k, t_ in enumerate(th):
                I(f"s_cmp_gt_u32 s75, {t_}")
                I(f"s_cbranch_scc1 K_FP{u}")
                I(f"s_setprio {len(th)-1-k}")
            L(f"K_FP{u}")
            I(f"s_cbranch_execz K_FQ{u}")
        I(f"ds_write2_b32 v{VSE}, v{DEN}, v{DEN+1} offset0:0 offset1:16")
        I(f"ds_write2_b32 v{VSE}, v{DEN+2}, v{DEN+3} offset0:32 offset1:48")
        I(f"ds_write2_b32 v{VSE}, v{NUM}, v{NUM+1} offset0:64 offset1:80")
        I(f"ds_write2_b32 v{VSE}, v{NUM+2}, v{NUM+3} offset0:96 offset1:112")
        I("s_cmp_eq_u32 s74, s72")
        I("s_cbranch_scc1 K_JOIN")
        I(f"v_lshl_add_u64 {vr(VSE,2)}, {vr(VSE,2)}, 0, s[24:25]")
        I(f"ds_read_b128 {vr(DEN,4)}, v{VOOB}")
        I(f"ds_read_b128 {vr(NUM,4)}, v{VOOB}")
        I(f"ds_read_b128 {vr(EA,4)}, v{VSE+1}")
        I("s_waitcnt lgkmcnt(0)")
        L(f"K_FQ{u}")
        I("s_mov_b64 exec, -1")
        I(f"s_branch K_BACK{u}")

    L("K_JOIN")
    I("s_mov_b64 exec, -1")
    stamp(16)
    I("s_cmp_lt_u32 s3, 13")
    I("s_waitcnt lgkmcnt(0)")
    I("s_barrier")
    stamp(17)
    I("s_cbranch_scc0 K_FIN")
    stamp(25)
    for k in range(3):
        I(f"ds_read_b128 {vr(8+8*k,4)}, v{EP+k}")
    for k in range(3):
        I(f"ds_read_b128 {vr(12+8*k,4)}, v{EP+k} offset:256")
    I("s_cmp_lg_u64 s[48:49], 0")
    I("s_waitcnt lgkmcnt(3)")
    for k in (1, 2):
        for i in range(2):
            I(f"v_pk_add_f32 {vr(8+2*i,2)}, {vr(8+2*i,2)}, {vr(8+8*k+2*i,2)}")
    I("s_waitcnt lgkmcnt(0)")
    for k in (1, 2):
        for i in range(2, 4):
            I(f"v_pk_add_f32 {vr(8+2*i,2)}, {vr(8+2*i,2)}, {vr(8+8*k+2*i,2)}")
    I("s_cbranch_scc1 R_LONG")
    L("K_MATH")
    stamp(26)
    I("v_pk_add_f32 v[8:9], v[8:9], s[18:19]")
    I("v_pk_add_f32 v[10:11], v[10:11], s[18:19]")
    for c in range(4):
        I(f"v_rcp_f32 v{8+c}, v{8+c}")
    I("s_nop 0")
    I(f"v_pk_fma_f32 v[8:9], v[12:13], v[8:9], {vr(UR,2)}")
    I(f"v_pk_fma_f32 v[10:11], v[14:15], v[10:11], {vr(UR+2,2)}")
    for c in range(4):
        I(f"v_max_f32 v{8+c}, 0, v{8+c}")
    I(f"v_pk_add_f32 v[8:9], v[8:9], {vr(XR,2)}")
    I(f"v_pk_add_f32 v[10:11], v[10:11], {vr(XR+2,2)}")
    I("v_cvt_pk_bf16_f32 v12, v8, v9")
    I("v_cvt_pk_bf16_f32 v13, v10, v11")
    stamp(27)
    I(f"buffer_store_dwordx2 v[12:13], v{VOUT}, {sr(S_X,4)}, 0 offen {OPT['osc'].replace('none','').replace('_',' ')}")
    L("K_FIN")
    stamp(18)
    stamp_out()
    L("K_END")
    I("s_endpgm")

    L("R_PUB2")
    I("s_mov_b64 exec, vcc")
    I(f"ds_read_b128 {vr(C0+8,4)}, v4 offset:{IMG+128}")
    I(f"ds_read_b128 {vr(C0+12,4)}, v4 offset:{IMG+B2+128}")
    I("v_and_b32 v10, 7, v0")
    I(f"v_mul_u32_u24 v10, {3*INC}, v10")
    I(f"v_add_u32 v10, {24*INC}, v10")
    I("s_waitcnt lgkmcnt(0)")
    for b in range(2):
        w3 = C0 + 11 + 4 * b
        I(f"v_and_b32 v{w3}, 0x3f3f3f, v{w3}")
        for j in range(3):
            I(f"v_add_u32 v11, {j*INC}, v10")
            I(f"v_cmp_le_u32 s[70:71], v{8+b}, v11")
            I(f"v_or_b32 v11, {0x3f << (8*j)}, v{w3}")
            I("s_nop 0")
            I(f"v_cndmask_b32 v{w3}, v{w3}, v11, s[70:71]")
    I(f"v_add_u32 v8, {hex(LINE_STRIDE)}, v6")
    I(f"v_add_u32 v9, {hex(LINE_STRIDE)}, v7")
    tagit(C0 + 8)
    tagit(C0 + 12)
    I(f"global_store_dwordx4 v8, {vr(C0+8,4)}, {WS} sc1")
    I(f"global_store_dwordx4 v9, {vr(C0+12,4)}, {WS} sc1")
    I("s_branch A_PUBD")
    retry(RA, True, "B_P0")
    L("R_MORE")
    I("s_cmp_lg_u32 s79, 0")
    I("s_cbranch_scc1 R_REQ")
    if OPT["nol2"]:
        I("s_branch B_RDONE")
    for k in range(4):
        I(f"s_lshr_b32 s{74+k}, s{64+k}, 7")
        I(f"s_and_b32 s{74+k}, s{74+k}, 0x01010101")
        I(f"s_mul_i32 s{74+k}, s{74+k}, 0xff")
    I("s_mov_b64 s[68:69], s[74:75]")
    I("s_mov_b64 s[70:71], s[76:77]")
    I(f"v_add_u32 v2, {hex(LINE_STRIDE)}, v2")
    I(f"v_add_u32 v3, {hex(LINE_STRIDE)}, v3")
    reload(RB, "B_N1")
    poll(RB, False, "B_P1")
    ranks(RB, CB, KB, MB)
    I("s_or_b32 s78, s78, 1")
    more_test()
    I("s_cbranch_scc0 B_RDONE")
    I("s_mov_b32 s79, 1")
    I("s_branch R_REQ")
    retry(RB, False, "B_P1")
    L("R_TIMEOUT")
    I("s_mov_b32 s79, 3")
    for k in range(6):
        I(f"s_mov_b64 s[{MA+2*k}:{MA+2*k+1}], 0")
    I(f"v_mov_b32 v35, v{TG+3}")
    I(f"v_mov_b32 v33, {hex(CTL_OFF + 0x8000)}")
    L("R_REQ")
    I("v_mov_b32 v6, s79")
    I(f"ds_or_b32 v1, v6 offset:{FLAG}")
    I("s_branch B_RDONE")
    def bump():
        I(f"v_mov_b32 v48, {hex(CTL_OFF)}")
        I("v_mov_b32 v50, 0x1000000")
        I("v_mov_b32 v51, 0")
        I("s_mov_b64 exec, 1")
        I(f"global_atomic_add_x2 v48, v[50:51], {WS} offset:8 sc1")
        I("s_mov_b64 exec, -1")
    L("R_EXTRA")
    I("s_bitcmp1_b32 s78, 0")
    I("s_cbranch_scc0 R_X2")
    I("s_waitcnt lgkmcnt(0)")
    lookup(CB)
    scatter(RB, CB, KB, MB)
    L("R_X2")
    I("s_bitcmp1_b32 s78, 1")
    I("s_cbranch_scc0 B_XDONE")
    I("s_cmp_eq_u32 s3, 1")
    I("s_cbranch_scc1 R_PAD")
    I("s_add_u32 s71, s66, 1")
    I("v_cvt_f32_u32 v48, s71")
    I("v_cvt_f32_u32 v49, s66")
    I("s_lshl_b32 s73, s67, 2")
    I("s_mul_i32 s71, s71, s73")
    I("v_rcp_f32 v48, v48")
    I("v_rcp_f32 v49, v49")
    I("v_cvt_f32_u32 v50, s71")
    I("v_cvt_f32_u32 v51, s73")
    I("v_fma_f32 v50, -v50, v49, v51")
    I(f"v_mov_b32 v51, {hex(f32(0.125))}")
    def stream_of(dst, src, half):
        I(f"v_cvt_f32_u32 v{dst}, v{src}")
        I(f"v_fma_f32 v{dst}, v{dst}, v51, {half}")
        I(f"v_mul_f32 v52, v{dst}, v48")
        I(f"v_fma_f32 v{dst}, v{dst}, v49, v50")
        I(f"v_max_f32 v{dst}, v{dst}, v52")
        I(f"v_cvt_u32_f32 v{dst}, v{dst}")
    stream_of(53, 3, "-0.5")
    I("s_cmp_eq_u32 s3, 2")
    I("s_cbranch_scc1 R_EPI")
    I("s_cmp_eq_u32 s3, 3")
    I("s_cbranch_scc1 R_FIRST")
    I("v_min_u32 v55, s73, v53")
    I("v_mad_u32_u24 v55, v53, s66, v55")
    I("v_lshrrev_b32 v56, 3, v3")
    I("v_sub_u32 v55, v56, v55")
    I("v_lshlrev_b32 v55, v55, 1")
    I("v_lshlrev_b32 v56, 4, v53")
    I("s_mov_b64 exec, s[82:83]")
    I(f"ds_or_b32 v56, v55 offset:{STR + 8}")
    I("s_mov_b64 exec, -1")
    I("s_branch B_XDONE")
    L("R_FIRST")
    I("v_mov_b32 v54, -1")
    I("v_cndmask_b32 v53, 63, v53, s[82:83]")
    I(f"v_mul_u32_u24 v59, {EAU_STRIDE//4}, v5")
    I(f"v_add_u32 v59, {EAU_OFF}, v59")
    I("v_mov_b32_dpp v54, v53 wave_shr:1 row_mask:0xf bank_mask:0xf")
    I("v_lshl_add_u32 v58, v54, 2, v5")
    I(f"v_mul_i32_i24 v58, {SLOT_STRIDE//4}, v58")
    I(f"v_add_u32 v58, {SLOT_OFF}, v58")
    I("v_lshlrev_b32 v54, 4, v54")
    I("v_lshlrev_b32 v53, 4, v53")
    L("R_FIRST1")
    I("v_cmp_lt_i32 s[74:75], v54, v53")
    I("s_mov_b64 exec, s[74:75]")
    I("s_cbranch_execz R_FIRST2")
    I("v_add_u32 v54, 16, v54")
    I(f"v_add_u32 v58, {SLOT_STRIDE}, v58")
    I(f"ds_write_b64 v54, v[58:59] offset:{STR}")
    I("s_branch R_FIRST1")
    L("R_FIRST2")
    I("s_mov_b64 exec, -1")
    I("s_branch B_XDONE")
    L("R_EPI")
    stream_of(54, 7, "0.5")
    I("v_sub_u32 v59, v53, v54")
    I("v_lshl_add_u32 v56, v54, 2, v5")
    I(f"v_mul_u32_u24 v56, {SLOT_STRIDE//4}, v56")
    I(f"v_add_u32 v56, {SLOT_OFF}, v56")
    I("v_cmp_lt_i32 s[74:75], 0, v59")
    I("v_cmp_lt_i32 s[76:77], 1, v59")
    I(f"v_add_u32 v57, {SLOT_STRIDE}, v56")
    I(f"v_add_u32 v58, {2*SLOT_STRIDE}, v56")
    I(f"v_cndmask_b32 v57, v{VOOB}, v57, s[74:75]")
    I(f"v_cndmask_b32 v58, v{VOOB}, v58, s[76:77]")
    I("v_lshlrev_b32 v55, 2, v5")
    I(f"ds_write_b128 v55, v[56:59] offset:{EPI}")
    I("s_branch B_XDONE")
    L("R_PAD")
    I(f"v_mov_b32 v52, {N}")
    I(f"v_add_u32 v53, {LIST_OFF - 8}, v3")
    I("v_cmp_lt_u32 s[74:75], v6, v2")
    I("s_mov_b64 exec, s[74:75]")
    I("ds_write_b32 v53, v52 offset:4")
    I("v_cmp_eq_u32 s[74:75], 0, v6")
    I("s_mov_b64 exec, s[74:75]")
    I("ds_write_b32 v53, v52")
    I("s_mov_b64 exec, 0x3f")
    I("s_add_u32 s71, s64, s85")
    I("v_add_u32 v53, s71, v5")
    I("ds_write_b32 v53, v52")
    I("s_mov_b64 exec, -1")
    I("s_cmp_eq_u32 s2, 0")
    I("s_cbranch_scc0 B_XDONE")
    bump()
    I("s_branch B_XDONE")
    L("R_FLAGS")
    I("s_add_u32 s43, s43, 1")
    I(f"s_cmp_gt_u32 s43, {POLL_LIMIT}")
    I("s_cbranch_scc1 R_FLAGT")
    I("s_sleep 2")
    I("s_mov_b64 exec, vcc")
    I(f"global_load_dword v35, v34, {WS} sc1")
    I("s_waitcnt vmcnt(0)")
    I(f"v_cmp_ne_u32 vcc, v{TG+3}, v35")
    I("s_mov_b64 exec, -1")
    I("s_branch B_XDONE")
    L("R_FLAGT")
    I("v_mov_b32 v52, 3")
    I(f"ds_or_b32 v1, v52 offset:{FLAG}")
    I("s_branch B_FDONE")
    L("R_LONG")
    I("s_mov_b32 s64, 2")
    I("s_mov_b64 vcc, s[48:49]")
    L("R_LONG1")
    I("s_mov_b64 exec, vcc")
    I(f"v_add_u32 v{EP+2}, {SLOT_STRIDE}, v{EP+2}")
    I(f"ds_read_b128 v[16:19], v{EP+2}")
    I(f"ds_read_b128 v[20:23], v{EP+2} offset:256")
    I("s_add_u32 s64, s64, 1")
    I("s_waitcnt lgkmcnt(0)")
    for i in range(4):
        I(f"v_pk_add_f32 {vr(8+2*i,2)}, {vr(8+2*i,2)}, {vr(16+2*i,2)}")
    I(f"v_cmp_lt_i32 vcc, s64, v{EP+3}")
    I("s_cbranch_vccnz R_LONG1")
    I("s_mov_b64 exec, -1")
    I("s_branch K_MATH")

    L("K_SLOW")
    I("s_load_dwordx8 s[4:11], s[0:1], 0")
    I("s_load_dwordx2 s[12:13], s[0:1], 40")
    I("s_load_dwordx2 s[14:15], s[0:1], 64")
    I("s_setprio 0")
    I("s_waitcnt vmcnt(0) lgkmcnt(0)")
    I("s_cmp_eq_u32 s3, 15")
    I("s_cselect_b32 s71, s80, 0")
    I("s_and_b32 s71, s71, 2")
    I("s_cbranch_scc0 K_SL0")
    bump()
    I("s_waitcnt vmcnt(0)")
    L("K_SL0")
    WB2, WV2 = 40, 72
    I("v_lshrrev_b32 v6, 1, v5")
    I("v_add_u32 v7, 4096, v6")
    for (w, p_) in ((WB2, 12), (WV2, 14)):
        for hf in range(2):
            for k in range(16):
                I(f"global_load_ushort v{w + 16*hf + k}, v{6 + hf}, s[{p_}:{p_+1}] offset:{2*k*128}")
                I(f"global_load_ushort v{8 + k}, v{6 + hf}, s[{p_}:{p_+1}] offset:{(2*k+1)*128}")
            I("s_waitcnt vmcnt(0)")
            for k in range(16):
                I(f"v_lshl_or_b32 v{w + 16*hf + k}, v{8 + k}, 16, v{w + 16*hf + k}")
    for i in range(4):
        I(f"v_mov_b32 v{28+i}, 0")
    I("v_lshlrev_b32 v8, 4, v0")
    for k in range(4):
        I(f"ds_write_b128 v8, v[28:31] offset:{SLOT_OFF + k*16384}")
    I(f"ds_read_u16 v18, v6 offset:{WC_OFF}")
    I(f"s_mov_b32 s18, {hex(f32(1e-6))}")
    I("s_mov_b32 s19, s18")
    I(f"s_mov_b32 s16, {hex(f32(-LOG2E))}")
    I(f"v_lshl_add_u32 v17, v124, 2, v{LC}")
    I("v_lshlrev_b32 v10, 1, v5")
    I("s_waitcnt lgkmcnt(0)")
    I("v_lshlrev_b32 v18, 16, v18")
    I("s_barrier")
    I("v_lshlrev_b32 v8, 2, v0")
    I("v_lshlrev_b32 v9, 1, v0")
    I("s_lshl_b32 s70, s3, 6")
    L("K_SLOOP")
    I(f"global_load_dword v11, v8, {sr(P_DST,2)}")
    I(f"global_load_dword v12, v8, {sr(P_SRC,2)}")
    I(f"global_load_ushort v13, v9, {sr(P_E,2)}")
    I("s_waitcnt vmcnt(0)")
    I("v_and_b32 v14, 0xff, v11")
    I("v_cmp_eq_u32 s[74:75], s2, v14")
    L("K_SIN")
    I("s_cmp_eq_u64 s[74:75], 0")
    I("s_cbranch_scc1 K_SNEXT")
    I("s_ff1_i32_b64 s73, s[74:75]")
    I("s_bitset0_b64 s[74:75], s73")
    I("v_readlane_b32 s79, v11, s73")
    I("v_readlane_b32 s80, v12, s73")
    I("v_readlane_b32 s81, v13, s73")
    I("s_lshr_b32 s79, s79, 8")
    I(f"s_mul_i32 s76, s79, {EAU_STRIDE}")
    I(f"s_add_u32 s76, s76, {EAU_OFF + 512}")
    I(f"s_mul_i32 s79, s79, {ACC_STRIDE}")
    I("s_lshl_b32 s80, s80, 7")
    I("s_add_u32 s78, s80, 64")
    I(f"s_load_dwordx16 s[36:51], {sr(P_X,2)}, s80")
    I(f"s_load_dwordx16 s[52:67], {sr(P_X,2)}, s78")
    I("s_lshl_b32 s81, s81, 16")
    I("v_add_u32 v15, s76, v17")
    I("v_add_u32 v16, s79, v10")
    I("ds_read_b32 v22, v15")
    I("v_mul_f32 v20, s81, v18")
    I("v_mov_b32 v21, 0")
    I("s_waitcnt lgkmcnt(0)")
    for k in range(32):
        I(f"v_dot2_f32_bf16 v20, s{36+k}, v{WB2+k}, v20")
        I(f"v_dot2_f32_bf16 v21, s{36+k}, v{WV2+k}, v21")
    I("s_nop 2")
    I("v_fma_f32 v20, v20, s16, v22")
    I("v_exp_f32 v20, v20")
    I("s_nop 0")
    I("v_add_f32 v20, 1.0, v20")
    I("v_rcp_f32 v20, v20")
    I("s_nop 0")
    I("v_mul_f32 v21, v21, v20")
    I("v_cvt_f64_f32 v[24:25], v20")
    I("v_cvt_f64_f32 v[26:27], v21")
    I(f"ds_add_f64 v16, v[24:25] offset:{SLOT_OFF}")
    I(f"ds_add_f64 v16, v[26:27] offset:{SLOT_OFF + 512}")
    I("s_branch K_SIN")
    L("K_SNEXT")
    I("s_add_u32 s70, s70, 1024")
    I("v_add_u32 v8, 4096, v8")
    I("v_add_u32 v9, 2048, v9")
    I(f"s_cmp_lt_u32 s70, {E}")
    I("s_cbranch_scc1 K_SLOOP")
    I("v_lshrrev_b32 v6, 4, v0")
    I(f"v_mul_u32_u24 v6, {ACC_STRIDE}, v6")
    I(f"v_lshl_add_u32 v6, v{LC}, 1, v6")
    I("s_waitcnt lgkmcnt(0)")
    I("s_barrier")
    I("s_cmp_lt_u32 s3, 13")
    I("s_cbranch_scc0 K_FIN")
    I(f"ds_read_b128 v[16:19], v6 offset:{SLOT_OFF}")
    I(f"ds_read_b128 v[20:23], v6 offset:{SLOT_OFF+16}")
    I(f"ds_read_b128 v[24:27], v6 offset:{SLOT_OFF+512}")
    I(f"ds_read_b128 v[28:31], v6 offset:{SLOT_OFF+528}")
    I("s_waitcnt lgkmcnt(0)")
    for c in range(8):
        I(f"v_cvt_f32_f64 v{8+c}, {vr(16+2*c,2)}")
    I("s_branch K_MATH")
    L("SLOW_END")

hdr = open("standalone__edge_featured_mpnn_gatedgcn__graph.s.ref").read().split("\n")
for line in hdr:
    if line.startswith("; Override"):
        break
    o(line)
o(f"; @launch kernel={KNAME} grid=(256,1,1) block=(1024,1,1) lds={LDS_TOTAL}")
o('.amdgcn_target "amdgcn-amd-amdhsa--gfx950"')
o(".text")
gen()
o('.section .rodata,"a"')
o(".p2align 6")
o(f".amdhsa_kernel {KNAME}")
o("  .amdhsa_next_free_vgpr 128")
o("  .amdhsa_next_free_sgpr 102")
o("  .amdhsa_accum_offset 128")
o("  .amdhsa_group_segment_fixed_size 0")
o("  .amdhsa_kernarg_size 96")
o("  .amdhsa_user_sgpr_count 2")
o("  .amdhsa_user_sgpr_kernarg_segment_ptr 1")
o("  .amdhsa_system_sgpr_workgroup_id_x 1")
o(".end_amdhsa_kernel")
open(sys.argv[1], "w").write("\n".join(out) + "\n")
```

```python
import sys, struct

OPT = dict(stamp=0, sts="2_3_4_5_6_7", force_slow=0, prio="16_8_4", spin=0, spinat=18, hack=0, sleep=2, delay=0,
           codepf=1, gprio=1, pf=0, pf2=0, pre=1, cfirst=0, gbar=0, init1=1, pf3=0, pfw=0, drain=0, pf4=0, tlb=0, gl=0, pf5=0, pfa=1, osc="sc1", w32=0, fw=1, fl=0, dbar=0, cad=1, fp="", e12=0, nol2=0, amp=0, ampw=0, ampg=-1, ampm=10, esc="none", sup=1, cprio=1, nog=0, gsc="sc1", cut=0, ef=0, fs=4)
for a in sys.argv[2:]:
    k, v = a.split("=")
    OPT[k] = int(v) if v.lstrip("-").isdigit() else v

KNAME = "standalone__edge_featured_mpnn_gatedgcn__graph_kernel"
N = 12500
E = 800000
CHUNK = 3136
TAB_ROWS = N + 1
CTL_OFF = 0x380000
FLG_OFF = 0x390000
CELL_OFF = 0x400000
BIN_STRIDE = 32768 + 256
LINE_STRIDE = 0x900000
STAMP_OFF = 0x4000000
LOG2E = 1.4426950408889634
KEXP = 62
POLL_LIMIT = 100000

X_OFF = 0
WC_OFF = 8192
C1_OFF = 8448
C2_OFF = 9472
FLAG = C2_OFF + 256
SYNC = C2_OFF + 260
TAGS = C2_OFF + 272
BASE = C2_OFF + 512
STR = C2_OFF + 1024
EPI = C2_OFF + 2048
IMG = C2_OFF + 3072
IMG_STRIDE = 272
EAU_OFF = IMG + 256 * IMG_STRIDE
EAU_STRIDE = 800
W_OFF = EAU_OFF + 52 * EAU_STRIDE
LDS_TOTAL = W_OFF + 32768
LIST_OFF = W_OFF
LIST_MAX = 31 * 16 * 32
SLOT_OFF = IMG
SLOT_STRIDE = 512
ACC_STRIDE = 1056
OOB = 0x30000
assert W_OFF % 128 == 0 and 117 * SLOT_STRIDE <= 256 * IMG_STRIDE and LDS_TOTAL <= 163840
INC = 0x5556

def f32(x):
    return struct.unpack("<I", struct.pack("<f", x))[0]

out = []
def o(s=""):
    out.append(s)
def I(s):
    out.append("    " + s)
def L(s):
    out.append(s + ":")
def vr(a, n=1):
    return f"v{a}" if n == 1 else f"v[{a}:{a+n-1}]"
def sr(a, n=1):
    return f"s{a}" if n == 1 else f"s[{a}:{a+n-1}]"
def sdwa(sel1):
    return f"dst_sel:DWORD dst_unused:UNUSED_PAD src0_sel:DWORD src1_sel:{sel1}"

P_X, P_E, P_SRC, P_DST, P_WA, P_WB, P_WC, P_WU, P_WV, P_OUT, P_DBG, P_WS = 4, 6, 8, 10, 12, 14, 16, 18, 20, 22, 24, 26
S_TAB, S_X = 28, 32
WS = sr(P_WS, 2)

STS = [int(x) for x in str(OPT["sts"]).split("_")] if OPT["stamp"] else []
RTS = {12: 28, 17: 29} if OPT["stamp"] == 2 else {}
def stamp(i):
    if OPT["amp"]:
        if i == 1:
            I("s_memrealtime s[98:99]")
        if i == OPT["amp"]:
            I("s_memrealtime s[96:97]")
        if i == 18:
            I(f"s_cmp_eq_u32 s3, {OPT['ampw']}")
            I("s_cbranch_scc0 AMP_D")
            if OPT["ampg"] >= 0:
                I(f"s_cmp_eq_u32 s2, {OPT['ampg']}")
                I("s_cbranch_scc0 AMP_D")
            I("s_waitcnt lgkmcnt(0)")
            I("s_sub_u32 s96, s96, s98")
            I(f"s_mul_i32 s96, s96, {OPT['ampm']}")
            I("s_add_u32 s96, s96, 3000")
            I("s_min_u32 s96, s96, 100000")
            L("AMP_W")
            I("s_memrealtime s[90:91]")
            I("s_waitcnt lgkmcnt(0)")
            I("s_sub_u32 s90, s90, s98")
            I("s_cmp_lt_u32 s90, s96")
            I("s_cbranch_scc1 AMP_W")
            L("AMP_D")
    if OPT["spin"] and OPT["spinat"] == i:
        lab = f"SPIN_{len(out)}"
        I("s_cselect_b32 s92, 1, 0")
        L(lab)
        I("s_memrealtime s[90:91]")
        I("s_waitcnt lgkmcnt(0)")
        I("s_sub_u32 s90, s90, s98")
        I(f"s_cmp_lt_u32 s90, {OPT['spin']}")
        I(f"s_cbranch_scc1 {lab}")
        I("s_cmp_lg_u32 s92, 0")
    if not OPT["stamp"]:
        return
    if i == 0:
        I("s_memrealtime s[86:87]")
    elif i == 1:
        I("s_memtime s[88:89]")
    elif i in STS:
        k = 90 + 2 * STS.index(i)
        I(f"s_memtime s[{k}:{k+1}]")
        if i in RTS:
            k = 90 + 2 * STS.index(RTS[i])
            I(f"s_memrealtime s[{k}:{k+1}]")
def stamp_out():
    if not OPT["stamp"]:
        return
    I("s_mov_b64 exec, -1")
    I("s_waitcnt vmcnt(0) lgkmcnt(0)")
    I("s_memtime s[80:81]")
    I("s_memrealtime s[82:83]")
    I("s_waitcnt lgkmcnt(0)")
    I("v_writelane_b32 v127, s80, 30")
    I("v_writelane_b32 v127, s82, 31")
    I("v_writelane_b32 v127, s86, 0")
    I("v_writelane_b32 v127, s88, 1")
    for i in list(range(2, 19)) + list(range(20, 30)):
        I(f"v_writelane_b32 v127, s{90 + 2*STS.index(i) if i in STS else 88}, {i}")
    I("s_lshl_b32 s84, s2, 4")
    I("s_add_u32 s84, s84, s3")
    I("s_lshl_b32 s84, s84, 7")
    I(f"s_add_u32 s84, s84, {hex(STAMP_OFF)}")
    I("v_and_b32 v1, 63, v0")
    I("v_lshl_add_u32 v1, v1, 2, s84")
    I("s_mov_b64 exec, 0xffffffff")
    I(f"global_store_dword v1, v127, {WS}")

def srd(d, p, size):
    I(f"s_mov_b64 {sr(d,2)}, {sr(p,2)}")
    I(f"s_mov_b32 s{d+2}, {hex(size)}")
    I(f"s_mov_b32 s{d+3}, 0x20000")

D, S, EE = 16, 20, 24
AP = 104
TG = 120
B2 = 128 * IMG_STRIDE

def edge_loads(lo=0, hi=3):
    ins = [f"global_load_dwordx4 {vr(D,4)}, v10, {sr(P_DST,2)}",
           f"global_load_dwordx4 {vr(S,4)}, v10, {sr(P_SRC,2)}",
           f"global_load_dwordx2 {vr(EE,2)}, v11, {sr(P_E,2)}"]
    for x in ins[lo:hi]:
        I(x + " " + OPT["esc"].replace("none", ""))

def binning(waits):
    B4, RK, PA = 28, 32, 36
    I(f"v_mov_b32 v14, {INC}")
    I(f"s_mov_b32 s68, {47*INC}")
    I("s_mov_b32 s69, 0x05040100")
    I("s_mov_b32 s70, 0x07060100")
    if waits:
        I("s_waitcnt vmcnt(2)")
        stamp(3)
    for i in range(4):
        I(f"v_lshlrev_b32_sdwa v{B4+i}, 2, v{D+i} {sdwa('BYTE_0')}")
        I(f"ds_add_rtn_u32 v{RK+i}, v{B4+i}, v14 offset:{C1_OFF}")
    for i in range(4):
        I(f"v_mul_u32_u24 v{B4+i}, {IMG_STRIDE//4}, v{B4+i}")
        I(f"v_lshrrev_b32 v{D+i}, 8, v{D+i}")
    for i in range(4):
        I("s_waitcnt lgkmcnt(3)")
        I(f"v_min_u32 v{RK+i}, s68, v{RK+i}")
        I(f"v_lshrrev_b32 v{RK+i}, 14, v{RK+i}")
        I(f"v_lshl_add_u32 v{PA+i}, v{RK+i}, 2, v{B4+i}")
        I(f"v_and_b32 v{RK+i}, 3, v{RK+i}")
        I(f"v_or3_b32 v{RK+i}, v{PA+i}, 12, v{RK+i}")
        I(f"ds_write_b8 v{RK+i}, v{D+i} offset:{IMG}")
    if waits:
        I("s_waitcnt vmcnt(0)")
        stamp(4)
    for i in range(4):
        if OPT["hack"]:
            I(f"v_and_b32 v{S+i}, {OPT['hack']}, v{S+i}")
        I(f"v_perm_b32 v{S+i}, v{EE+(i>>1)}, v{S+i}, s{69+(i&1)}")
        I(f"ds_write_b32 v{PA+i}, v{S+i} offset:{IMG}")

def copy_consts():
    I("s_lshr_b32 s64, s2, 7")
    I("s_lshl_b32 s64, s64, 14")
    I(f"s_add_u32 s64, s64, {hex(CELL_OFF)}")
    I(f"v_mul_u32_u24 v6, {BIN_STRIDE//4}, v5")
    I("v_lshl_add_u32 v6, v0, 4, v6")
    I("v_add_u32 v6, s64, v6")
    I(f"v_add_u32 v7, {128*BIN_STRIDE}, v6")
    I(f"s_mul_i32 s64, s2, {BIN_STRIDE}")
    I(f"s_add_u32 s64, s64, {hex(CELL_OFF)}")
    I("v_lshl_add_u32 v2, v0, 4, s64")
    I("v_add_u32 v3, 0x4000, v2")
    I("s_mov_b32 s36, 0x0f0f0f0f")
    I("s_mov_b32 s37, s36")
    if OPT["w32"] == 2:
        I("v_mov_b32 v102, 0")
    elif OPT["w32"]:
        I("v_bfe_u32 v102, v0, 1, 2")
        I("v_bfe_u32 v103, v0, 2, 1")
        I(f"v_mul_u32_u24 v102, {6*INC}, v102")
        I("v_mul_u32_u24 v102, v102, v103")
    else:
        I("v_bfe_u32 v102, v0, 2, 1")
        I(f"v_mul_u32_u24 v102, {12*INC}, v102")
    I(f"s_mov_b32 s39, {24*INC}")
    I("s_mov_b32 s40, 0xc000")
    I("s_mov_b32 s41, 0xffc0c0c0")
    I(f"s_mov_b32 s42, {49 << 16}")
    I("s_mov_b32 s43, 0")
    I("v_mov_b32 v1, 0")
    I(f"s_mov_b32 s{S_TAB}, s{P_WS}")
    I(f"s_or_b32 s{S_TAB+1}, s{P_WS+1}, 0x1000000")
    I(f"s_mov_b32 s{S_TAB+2}, {0 if OPT['nog'] else TAB_ROWS}")
    I(f"s_mov_b32 s{S_TAB+3}, 0x20000")

def lds_init():
    I("v_add_u32 v5, s2, v3")
    I("v_and_b32 v5, 127, v5")
    I(f"v_mul_u32_u24 v4, {IMG_STRIDE}, v5")
    I("v_lshl_add_u32 v4, v2, 4, v4")
    I("v_lshlrev_b32 v5, 2, v5")
    I("v_mov_b32 v12, 0")
    I("v_mov_b32 v13, 0x3f3f3f")
    I(f"ds_write2st64_b32 v5, v12, v12 offset0:{C1_OFF//256} offset1:{C1_OFF//256+2}")
    for r in range(1 if OPT["init1"] else 2):
        for b in range(2):
            I(f"ds_write_b32 v4, v13 offset:{IMG + b*B2 + r*128 + 12}")
def edge_addr():
    I(f"s_mul_i32 s64, s2, {CHUNK*4}")
    I("v_lshl_add_u32 v10, v0, 4, s64")
    I("v_lshrrev_b32 v11, 1, v10")

def gen():
    o(".p2align 8")
    o(f".globl {KNAME}")
    o(f".type {KNAME},@function")
    L(KNAME)
    I("s_cmp_ge_u32 s2, 256")
    I("s_cbranch_scc1 K_END")
    stamp(0); stamp(1)
    I("s_load_dwordx16 s[4:19], s[0:1], 0")
    I("s_load_dwordx8 s[20:27], s[0:1], 64")
    if OPT["spin"]:
        I("s_memrealtime s[98:99]")
    I("v_lshrrev_b32 v1, 6, v0")
    I("v_and_b32 v2, 7, v0")
    I("v_readfirstlane_b32 s3, v1")
    I("v_lshrrev_b32 v3, 3, v0")
    I("s_mov_b32 s79, 0")
    I("s_cmp_ge_u32 s3, 12")
    I("s_cbranch_scc1 G_ENTRY")

    I("s_cmp_ge_u32 s3, 2")
    I("s_cbranch_scc1 A_NOPF")
    if OPT["codepf"]:
        I("s_getpc_b64 s[64:65]")
        L("A_PC")
        I("v_lshlrev_b32 v8, 7, v0")
        I("v_min_u32 v8, K_SLOW-A_PC-4, v8")
        I("global_load_dword v27, v8, s[64:65]")
    I("v_lshlrev_b32 v8, 4, v0")
    I("v_mov_b64 v[12:13], 0")
    I("v_mov_b64 v[14:15], 0")
    I(f"ds_write_b128 v8, v[12:15] offset:{C2_OFF}")
    L("A_NOPF")
    lds_init()
    edge_addr()
    I(f"v_cmp_gt_u32 vcc, {E*4}, v10")
    I("s_waitcnt lgkmcnt(0)")
    stamp(24)
    if OPT["cfirst"]:
        copy_consts()
    I("s_mov_b64 exec, vcc")
    I("s_cbranch_execz A_NOE")
    edge_loads(0, OPT["pre"])
    I("s_cmp_eq_u32 s3, 1")
    I("s_cbranch_scc0 A_NOEP")
    I(f"s_add_u32 s70, s{P_WS}, {hex(CTL_OFF)}")
    I(f"s_addc_u32 s71, s{P_WS+1}, 0")
    I("s_load_dwordx2 s[72:73], s[70:71], 8")
    if OPT["fw"]:
        I(f"s_lshl_b32 s74, s2, {OPT['fs']}")
        I(f"s_add_u32 s74, s74, {hex(FLG_OFF - CTL_OFF)}")
        I("s_load_dword s75, s[70:71], s74")
    L("A_NOEP")
    if OPT["tlb"]:
        I("s_cmp_eq_u32 s3, 0")
        I("s_cbranch_scc0 A_NOTLB")
        I("s_mov_b64 exec, 1")
        if OPT["tlb"] & 1:
            I(f"global_load_dword v26, v10, {sr(P_SRC,2)}")
            I(f"global_load_dword v26, v11, {sr(P_E,2)}")
        if OPT["tlb"] & 2:
            I(f"global_load_dword v26, v12, {sr(P_OUT,2)}")
            I("s_mov_b64 exec, 0xffff")
            I(f"v_mul_u32_u24 v8, {16*BIN_STRIDE}, v0")
            I(f"v_add_u32 v8, {hex(CELL_OFF + 32768)}, v8")
            I(f"global_load_dword v26, v8, {WS}")
        if OPT["tlb"] & 4:
            I("s_mov_b64 exec, -1")
            I("v_lshlrev_b32 v8, 16, v0")
            I("s_lshl_b32 s64, s2, 8")
            I("v_add_u32 v8, s64, v8")
            I(f"global_load_dword v26, v8, {WS}")
        if OPT["tlb"] & 8:
            I("s_mov_b64 exec, 0xffff")
            I(f"s_mul_i32 s64, s2, {BIN_STRIDE}")
            I(f"s_add_u32 s64, s64, {hex(CELL_OFF + 32768 + 128)}")
            I("v_lshl_add_u32 v8, v0, 2, s64")
            I(f"global_store_dword v8, v12, {WS} sc1")
        if OPT["tlb"] & 16:
            I("s_mov_b64 exec, -1")
            I(f"v_mul_u32_u24 v8, {2*BIN_STRIDE}, v0")
            I(f"v_add_u32 v8, {hex(CELL_OFF + 32768)}, v8")
            I(f"global_load_dword v26, v8, {WS}")
            I(f"v_add_u32 v8, {128*BIN_STRIDE}, v8")
            I(f"global_load_dword v26, v8, {WS}")
        I("s_mov_b64 exec, vcc")
        L("A_NOTLB")
    I("s_barrier")
    stamp(2)
    edge_loads(OPT["pre"], 3)
    if not OPT["cfirst"]:
        I("s_mov_b64 exec, -1")
        copy_consts()
        I("s_mov_b64 exec, vcc")
    binning(True)
    I("s_mov_b64 exec, -1")
    I("s_cmp_eq_u32 s3, 1")
    I("s_cbranch_scc0 A_JOIN")
    I("s_waitcnt lgkmcnt(0)")
    I("s_add_u32 s72, s72, 0x1000000")
    I("s_addc_u32 s73, s73, 0")
    I("s_and_b32 s72, s72, 0xff000000")
    for k in range(3):
        I(f"s_bfe_u32 s64, s73, {hex((2 << 16) | (2*k))}")
        I(f"s_lshl_b32 s64, s64, {6 + 8*k}")
        I("s_or_b32 s72, s72, s64")
        I(f"s_bfe_u32 s64, s73, {hex((2 << 16) | (6 + 2*k))}")
        I("s_lshl_b32 s64, s64, 14")
        I(f"v_mov_b32 v{TG+k}, s64")
    I(f"v_mov_b32 v{TG+3}, s72")
    I(f"ds_write_b128 v1, {vr(TG,4)} offset:{TAGS}")
    I("s_branch A_JOIN")
    L("A_NOE")
    I("s_barrier")
    I("s_mov_b64 exec, -1")
    if not OPT["cfirst"]:
        copy_consts()
    I("s_branch A_JOIN")

    XA, FA, FB, ACC1, ACC2 = 28, 36, 68, 104, 36
    L("G_ENTRY")
    if OPT["gprio"]:
        I("s_setprio 3")
    I("v_and_b32 v7, 7, v3")
    I("s_and_b32 s64, s3, 1")
    I("s_lshl_b32 s64, s64, 2")
    I("v_and_b32 v8, 2, v7")
    I("v_xor_b32 v8, v8, v2")
    I("v_xor_b32 v8, s64, v8")
    I("v_lshlrev_b32 v8, 4, v8")
    I("v_lshl_add_u32 v8, v7, 7, v8")
    I("s_and_b32 s65, s3, 3")
    I("s_lshl_b32 s65, s65, 11")
    I("v_add_u32 v8, s65, v8")
    I(f"s_add_u32 s65, s65, {W_OFF}")
    I("s_add_u32 s66, s3, 3")
    I("s_and_b32 s66, s66, 3")
    I("v_xor_b32 v9, v2, v7")
    I("v_lshlrev_b32 v9, 4, v9")
    I("v_lshl_add_u32 v9, v7, 15, v9")
    I("s_lshl_b32 s67, s66, 19")
    I("s_lshl_b32 s68, s2, 7")
    I("s_add_u32 s67, s67, s68")
    I("v_add_u32 v9, s67, v9")
    I("v_add_u32 v15, 0x40000, v9")
    I("s_lshl_b32 s67, s66, 11")
    I(f"s_mov_b32 s{S_X+2}, {N*128}")
    I(f"s_mov_b32 s{S_X+3}, 0x20000")
    I("s_mov_b32 m0, s67")
    I("s_waitcnt lgkmcnt(0)")
    stamp(24)
    I(f"s_mov_b64 {sr(S_X,2)}, {sr(P_X,2)}")
    I(f"buffer_load_dwordx4 v9, {sr(S_X,4)}, 0 offen lds")
    I("s_add_u32 m0, s67, 1024")
    I("s_nop 0")
    I(f"buffer_load_dwordx4 v15, {sr(S_X,4)}, 0 offen lds")
    def w_dma(p, off, va="v8", sd="s65"):
        I(f"s_add_u32 m0, {sd}, {off}")
        I("s_nop 0")
        I(f"global_load_lds_dwordx4 {va}, {sr(p,2)}")
        I(f"global_load_lds_dwordx4 {va}, {sr(p,2)} offset:1024")
    w_dma(P_WB, 0)
    w_dma(P_WV, 8192)
    lds_init()
    edge_addr()
    if OPT["gbar"]:
        I("s_waitcnt lgkmcnt(0)")
        I("s_barrier")
        stamp(2)
    I("s_cmp_eq_u32 s3, 12")
    I("s_cselect_b32 s74, 0xffff, 0")
    I("s_cmp_eq_u32 s2, 255")
    I("s_cselect_b32 s74, 0, s74")
    I("s_mov_b32 s75, 0")
    I("s_mov_b64 exec, s[74:75]")
    I("s_cbranch_execz G_NOE")
    edge_loads()
    L("G_NOE")
    I("s_mov_b64 exec, -1")
    I("v_mov_b32 v126, v8")
    I("v_lshlrev_b32 v100, 4, v2")
    I("s_mov_b32 s78, s65")
    I(f"s_mov_b64 {sr(S_X,2)}, {WS}")
    I(f"s_mov_b32 s{S_X+2}, {TAB_ROWS*256}")
    copy_consts()
    I("v_and_b32 v124, 15, v0")
    I("v_bfe_u32 v125, v0, 4, 2")
    I("v_and_b32 v8, 7, v124")
    I("v_lshlrev_b32 v9, 1, v125")
    I("v_xor_b32 v8, v8, v9")
    I("v_lshlrev_b32 v8, 4, v8")
    I("v_lshl_add_u32 v8, v124, 7, v8")
    I("v_add_u32 v8, s67, v8")
    I("v_xor_b32 v9, 16, v8")
    I("v_lshrrev_b32 v10, 2, v124")
    I("v_and_b32 v11, 2, v10")
    I("v_bfe_u32 v12, v0, 1, 1")
    I("v_or_b32 v11, v11, v12")
    I("v_and_b32 v12, 1, v125")
    I("v_lshl_or_b32 v11, v12, 2, v11")
    I("v_lshlrev_b32 v11, 4, v11")
    I("v_and_b32 v12, 1, v0")
    I("v_lshl_or_b32 v11, v12, 3, v11")
    I("v_lshl_add_u32 v10, v125, 4, v10")
    I("v_lshl_or_b32 v11, v10, 7, v11")
    I(f"v_add_u32 v12, {W_OFF}, v11")
    for T in range(1, 4):
        I(f"v_xor_b32 v{12+T}, {T << 5}, v12")
    I(f"s_mov_b32 s76, {hex(f32(-LOG2E))}")
    I("s_mov_b32 s77, 0x07060302")
    I(f"v_mov_b32 v26, {hex(f32(2.0**-70))}")
    I("s_lshl_b32 s64, s66, 20")
    I("s_lshl_b32 s65, s2, 8")
    I("s_add_u32 s64, s64, s65")
    I("v_lshlrev_b32 v27, 18, v125")
    I("v_lshl_add_u32 v27, v124, 4, v27")
    I("v_add_u32 v27, s64, v27")
    I("v_mov_b32 v10, 1")
    def g_sync(target, lab, arrive=True):
        if arrive:
            I("s_mov_b64 exec, 1")
            I(f"ds_add_u32 v1, v10 offset:{SYNC}")
            I("s_mov_b64 exec, -1")
        L(lab)
        I(f"ds_read_b32 v11, v1 offset:{SYNC}")
        I("s_waitcnt lgkmcnt(0)")
        I("v_readfirstlane_b32 s64, v11")
        I(f"s_cmp_lt_u32 s64, {target}")
        I(f"s_cbranch_scc1 {lab}")
    def frag_reads(F, moff):
        for T in range(4):
            for s in range(2):
                for h in range(2):
                    I(f"ds_read_b64_tr_b16 {vr(F + 8*T + 4*s + 2*h, 2)}, v{12+T} offset:{moff + (8*s+4*h)*128}")
    def mfmas(F, acc, swap, later):
        for T in range(4):
            I(f"s_waitcnt lgkmcnt({min(15, later + 4*(3-T))})")
            for s in range(2):
                a, b = vr(XA + 4*s, 4), vr(F + 8*T + 4*s, 4)
                if swap:
                    a, b = b, a
                c = "0" if s == 0 else vr(acc + 4*T, 4)
                I(f"v_mfma_f32_16x16x32_bf16 {vr(acc+4*T,4)}, {a}, {b}, {c}")
    if not OPT["gbar"]:
        I("s_waitcnt lgkmcnt(0)")
        I("s_barrier")
        stamp(2)
    I("s_cmp_eq_u64 s[74:75], 0")
    I("s_cbranch_scc1 G_W0")
    I("s_waitcnt vmcnt(3)")
    I("s_branch G_W1")
    L("G_W0")
    I("s_waitcnt vmcnt(0)")
    L("G_W1")
    stamp(3)
    g_sync(4, "G_S1")
    stamp(20)
    I(f"ds_read_b128 {vr(XA,4)}, v8")
    I(f"ds_read_b128 {vr(XA+4,4)}, v9")
    frag_reads(FA, 0)
    frag_reads(FB, 8192)
    stamp(21)
    w_dma(P_WA, 16384, "v126", "s78")
    w_dma(P_WU, 24576, "v126", "s78")
    I("s_cmp_eq_u32 s3, 13")
    I("s_cbranch_scc0 G_NOWC")
    I(f"s_mov_b32 m0, {WC_OFF}")
    I("s_mov_b64 exec, 0xff")
    I(f"global_load_lds_dwordx4 v100, {sr(P_WC,2)}")
    I("s_mov_b64 exec, -1")
    L("G_NOWC")
    stamp(22)
    mfmas(FA, ACC1, False, 16)
    mfmas(FB, ACC2, False, 0)
    stamp(23)
    ACCB, ACCV, OUTR = ACC1, ACC2, FB
    SD = sdwa("WORD_1")
    I("s_mov_b32 s80, 0x8000")
    I("s_mov_b32 s81, 0x8000")
    I(f"s_mov_b32 s68, {hex(f32(2.0**-100))}")
    I("s_mov_b32 s69, s68")
    I("v_mov_b32 v10, v26")
    I("v_mov_b32 v11, v26")
    I("s_nop 1")
    for rp in (0, 2):
        for t in range(4):
            I(f"v_pk_fma_f32 {vr(ACCB+4*t+rp,2)}, {vr(ACCB+4*t+rp,2)}, s[76:77], v[10:11] op_sel_hi:[1,0,1]")
        for t in (1, 3):
            I(f"v_pk_add_f32 {vr(ACCV+4*t+rp,2)}, {vr(ACCV+4*t+rp,2)}, s[68:69]")
        for t in range(4):
            I(f"v_lshl_add_u64 {vr(ACCB+4*t+rp,2)}, {vr(ACCB+4*t+rp,2)}, 0, s[80:81]")
        for t in range(4):
            I(f"v_lshl_add_u64 {vr(ACCV+4*t+rp,2)}, {vr(ACCV+4*t+rp,2)}, 0, s[80:81]")
        for r in (rp, rp + 1):
            for t in (0, 2):
                I(f"v_sub_u32_sdwa v{ACCB+4*t+r}, v{ACCB+4*t+r}, v{ACCV+4*t+r} clamp {SD}")
            for t in (0, 2):
                I(f"v_sub_u32_sdwa v{ACCV+4*(t+1)+r}, v{ACCV+4*(t+1)+r}, v{ACCB+4*t+r} clamp {SD}")
            for t in (0, 2):
                I(f"v_sub_u32_sdwa v{ACCB+4*(t+1)+r}, v{ACCB+4*(t+1)+r}, v{ACCV+4*(t+1)+r} clamp {SD}")
            for t in range(4):
                I(f"v_perm_b32 v{OUTR+4*r+t}, v{ACCB+4*t+r}, v{ACCV+4*t+r}, s77")
            if r == 0:
                I("s_cmp_eq_u32 s3, 12")
                I("s_cbranch_scc1 G_T3")
            else:
                I("v_add_u32 v27, 0x10000, v27")
            I(f"buffer_store_dwordx4 {vr(OUTR+4*r,4)}, v27, {sr(S_X,4)}, 0 offen sc1")
    stamp(4)
    L("G_BVD")
    I("s_waitcnt vmcnt(4)")
    I("s_branch G_DONE")
    L("G_T3")
    I("s_cmp_eq_u32 s2, 212")
    I("s_cbranch_scc0 G_NODUM")
    for t in range(4):
        I(f"v_mov_b32 v{OUTR+t}, 0x7f000000")
    L("G_NODUM")
    I(f"buffer_store_dwordx4 {vr(OUTR,4)}, v27, {sr(S_X,4)}, 0 offen sc1")
    I("s_waitcnt vmcnt(5)")
    I("s_mov_b64 exec, s[74:75]")
    I("s_cbranch_execz G_NOBIN")
    I("v_mov_b32 v126, v14")
    binning(False)
    I("v_mov_b32 v14, v126")
    L("G_NOBIN")
    I("s_mov_b64 exec, -1")
    I(f"ds_read_b128 {vr(XA,4)}, v8")
    I(f"ds_read_b128 {vr(XA+4,4)}, v9")
    stamp(4)
    I("s_waitcnt vmcnt(1)")
    L("G_DONE")
    if OPT["drain"]:
        I("s_waitcnt vmcnt(0)")
    if OPT["gprio"] and not OPT["cprio"]:
        I("s_setprio 0")
    stamp(5)

    L("A_JOIN")
    if OPT["cprio"]:
        I("s_setprio 3")
    I("s_waitcnt lgkmcnt(0)")
    stamp(6)
    I("s_barrier")
    stamp(7)
    C0 = 68
    I(f"ds_read_b128 {vr(TG,4)}, v1 offset:{TAGS}")
    I(f"ds_read2st64_b32 v[8:9], v5 offset0:{C1_OFF//256} offset1:{C1_OFF//256+2}")
    I(f"ds_read_b128 {vr(C0,4)}, v4 offset:{IMG}")
    I(f"ds_read_b128 {vr(C0+4,4)}, v4 offset:{IMG+B2}")
    def tagit(c):
        for k in range(3):
            I(f"v_bfi_b32 v{c+k}, s40, v{TG+k}, v{c+k}")
        I(f"v_or_b32 v{c+3}, v{TG+3}, v{c+3}")
    I("s_waitcnt lgkmcnt(2)")
    I("v_cmp_le_u32 s[72:73], v102, v8")
    I("v_cmp_le_u32 s[74:75], v102, v9")
    I("v_max_u32 v10, v8, v9")
    I("v_cmp_le_u32 vcc, s39, v10")
    def cell_store(k):
        I(f"s_mov_b64 exec, s[{72+2*k}:{73+2*k}]")
        I(f"global_store_dwordx4 v{6+k}, {vr(C0+4*k,4)}, {WS} sc1")
    if OPT["gl"]:
        I("s_cmp_ge_u32 s3, 12")
        I("s_waitcnt lgkmcnt(1)")
        tagit(C0)
        I("s_cbranch_scc1 A_GL1")
        cell_store(0)
        I("s_mov_b64 exec, -1")
        L("A_GL1")
        I("s_waitcnt lgkmcnt(0)")
        tagit(C0 + 4)
        I("s_cbranch_scc1 A_GL2")
        cell_store(1)
        L("A_GL2")
    else:
        I("s_waitcnt lgkmcnt(1)")
        tagit(C0)
        cell_store(0)
        I("s_mov_b64 exec, s[74:75]")
        I("s_waitcnt lgkmcnt(0)")
        tagit(C0 + 4)
        I(f"global_store_dwordx4 v7, {vr(C0+4,4)}, {WS} sc1")
    I("s_cbranch_vccnz R_PUB2")
    L("A_PUBD")
    I("s_mov_b64 exec, -1")
    if OPT["cprio"]:
        I("s_setprio 0")
    stamp(8)
    I("s_cmp_ge_u32 s3, 12")
    I("s_cbranch_scc0 B_NOAU")
    I("s_setprio 1")
    FU, FW, UU = 36, 84, 52
    def half_gemm(moff, acc, swap):
        for T in range(4):
            F = (FU if T < 2 else FW) + 8 * (T & 1)
            for s in range(2):
                for h in range(2):
                    I(f"ds_read_b64_tr_b16 {vr(F + 4*s + 2*h, 2)}, v{12+T} offset:{moff + (8*s+4*h)*128}")
        for T in range(4):
            F = (FU if T < 2 else FW) + 8 * (T & 1)
            I(f"s_waitcnt lgkmcnt({4*(3-T)})")
            for s in range(2):
                a, b = vr(XA + 4*s, 4), vr(F + 4*s, 4)
                if swap:
                    a, b = b, a
                c = "0" if s == 0 else vr(acc + 4*T, 4)
                I(f"v_mfma_f32_16x16x32_bf16 {vr(acc+4*T,4)}, {a}, {b}, {c}")
    half_gemm(16384, AP, False)
    if not OPT["drain"]:
        I(f"s_lshl_b32 s64, s2, {OPT['fs']-2}")
        I("s_add_u32 s64, s64, s66")
        I("s_lshl_b32 s64, s64, 2")
        I(f"s_add_u32 s64, s64, {hex(FLG_OFF)}")
        I("v_mov_b32 v26, s64")
        I(f"s_waitcnt vmcnt({0 if OPT['gl'] else 2})")
        stamp(29)
        if OPT["gl"] and OPT["fl"]:
            cell_store(0)
            cell_store(1)
        I("s_mov_b64 exec, 1")
        I(f"global_store_dword v26, v{TG+3}, {WS} sc1")
        if OPT["gl"] and not OPT["fl"]:
            cell_store(0)
            cell_store(1)
        I("s_mov_b64 exec, -1")
    half_gemm(24576, UU, True)
    I(f"s_mul_i32 s65, s66, {16*EAU_STRIDE}")
    I(f"s_add_u32 s65, s65, {EAU_OFF}")
    I(f"v_mul_u32_u24 v26, {4*EAU_STRIDE}, v125")
    I("v_lshl_add_u32 v26, v124, 4, v26")
    I("v_add_u32 v25, s65, v26")
    I(f"v_mul_u32_u24 v27, {EAU_STRIDE}, v124")
    I("v_lshl_add_u32 v27, v125, 4, v27")
    I("v_add_u32 v27, s65, v27")
    for i in range(16):
        I(f"v_mul_f32 v{AP+i}, s76, v{AP+i}")
    I("s_cmp_eq_u32 s3, 12")
    I("s_cselect_b32 exec_lo, 0x000f000f, -1")
    I("s_cselect_b32 exec_hi, 0x000f000f, -1")
    for T in range(4):
        I(f"ds_write_b128 v27, {vr(UU+4*T,4)} offset:{256 + T*64}")
    I("s_cselect_b32 exec_hi, 0, -1")
    I("s_cselect_b32 exec_lo, 0xffff, -1")
    I(f"v_max3_f32 v26, |v{AP}|, |v{AP+1}|, |v{AP+2}|")
    for i in range(3, 15, 2):
        I(f"v_max3_f32 v26, |v{AP+i}|, |v{AP+i+1}|, v26")
    I(f"v_max_f32 v26, |v{AP+15}|, v26")
    I(f"v_cmp_nge_f32 vcc, {hex(f32(63.0))}, v26")
    EAT = 36
    for r in range(4):
        for t in range(4):
            I(f"v_add_f32 v{EAT+4*r+t}, {hex(f32(-float(KEXP)))}, v{AP+4*t+r}")
        for t in range(4):
            I(f"ds_write_b32 v25, v{AP+4*t+r} offset:{r*EAU_STRIDE + 512 + 4*t}")
            I(f"v_exp_f32 v{EAT+4*r+t}, v{EAT+4*r+t}")
        I("s_nop 0")
        I(f"ds_write_b128 v25, {vr(EAT+4*r,4)} offset:{r*EAU_STRIDE}")
        if r == 0:
            I("s_cbranch_scc1 G_EAD")
    L("G_EAD")
    I("s_mov_b64 exec, -1")
    I("s_cmp_lg_u64 vcc, 0")
    I("s_cselect_b32 s79, 1, 0")
    if OPT["cad"]:
        I("s_branch B_CONST")
    L("B_NOAU")
    if OPT["cad"]:
        I("s_waitcnt vmcnt(0)")
    L("B_CONST")

    RA, CA, KA, RB, CB, KB = 8, 24, 36, 64, 72, 78
    XB, Y, A = 48, 80, 100
    IP = (96, 98, 104, 106)
    UR, XR, VOUT, VU, LP, EP = 108, 112, 116, 117, 118, 120
    WCB, DEN, NUM, VOOB, C4, VRA, VSE, EA, P, Q, SS, LC = 16, 20, 44, 30, 31, 42, 32, 12, 24, 8, 36, 4
    I("v_and_b32 v5, 63, v0")
    I("s_cmp_lt_u32 s2, 212")
    I("s_cselect_b32 s64, 49, 48")
    I("v_cmp_gt_u32 s[82:83], s64, v5")
    I("v_lshlrev_b32 v5, 2, v5")
    I(f"v_and_b32 v{LC}, 15, v0")
    I(f"v_lshlrev_b32 v6, 1, v{LC}")
    for j in range(4):
        I(f"ds_read_u16 v{WCB+j}, v6 offset:{WC_OFF + 32*j}")
    I(f"v_lshlrev_b32 v{LC}, 4, v{LC}")
    I(f"v_mov_b32 v{C4}, 4")
    I(f"v_mov_b32 v{VOOB}, {OOB}")
    for p_ in IP:
        I(f"v_mov_b32 v{p_+1}, v{LC}")
    I(f"v_lshlrev_b32 v{LP}, 1, v6")
    I(f"v_mov_b32 v{LP+1}, v{LC}")
    I("v_lshrrev_b32 v7, 4, v0")
    I(f"v_mul_u32_u24 v{VU}, {EAU_STRIDE}, v7")
    I(f"s_mov_b32 s64, {EAU_OFF + 256}")
    I(f"v_add3_u32 v{VU}, v{VU}, s64, v{LC}")
    I("v_lshlrev_b32 v8, 2, v6")
    I("v_and_b32 v9, 0x70, v0")
    I("v_xor_b32 v9, v8, v9")
    I("v_lshl_add_u32 v9, v7, 7, v9")
    I(f"ds_read_b64 {vr(XR+2,2)}, v9 offset:{X_OFF}")
    I(f"v_lshl_add_u32 v{VOUT}, v7, 15, v8")
    I("s_lshl_b32 s64, s2, 7")
    I(f"v_add_u32 v{VOUT}, s64, v{VOUT}")
    srd(S_X, P_OUT, N * 128)
    for d in range(0, 4, 2):
        I(f"v_mov_b64 {vr(A+d,2)}, 0")
        I(f"v_mov_b64 {vr(DEN+d,2)}, 0")
        I(f"v_mov_b64 {vr(NUM+d,2)}, 0")
    I("s_mov_b64 s[68:69], -1")
    I("s_mov_b64 s[70:71], -1")
    I("s_cmp_lt_u32 s3, 4")
    I("s_cselect_b32 s78, 2, 0")
    I(f"s_mov_b32 s16, {hex(f32(2.0**-KEXP))}")
    I("s_mov_b32 s17, s16")
    I(f"s_mov_b32 s18, {hex(f32(1e-6 * 2.0**KEXP))}")
    I("s_mov_b32 s19, s18")
    I("s_mov_b32 s20, 32")
    I("s_mov_b32 s21, 32")
    I(f"s_mov_b32 s24, {SLOT_STRIDE}")
    I(f"s_mov_b32 s25, {EAU_STRIDE}")
    I(f"s_mov_b32 s85, {LIST_OFF}")
    I("s_mov_b32 s56, 0x11111111")
    I("s_mov_b32 s57, s56")
    I("s_lshl_b64 s[58:59], s[56:57], 1")
    I("s_lshl_b64 s[60:61], s[56:57], 2")
    I("s_lshl_b64 s[62:63], s[56:57], 3")
    I("v_bfe_u32 v124, v0, 4, 2")
    I("v_bfe_u32 v125, v0, 5, 1")
    I("v_bfe_u32 v126, v0, 2, 1")
    I("v_lshl_add_u32 v125, v126, 1, v125")
    I("v_bfe_u32 v126, v0, 3, 2")
    I("v_lshlrev_b32 v126, 2, v126")
    I("v_bfe_u32 v34, v0, 2, 3")
    I("s_lshl_b32 s64, s3, 3")
    I("s_sub_u32 s64, s2, s64")
    I("v_sub_u32 v34, s64, v34")
    I("v_and_b32 v34, 127, v34")
    I("v_and_b32 v35, 32, v0")
    I("v_lshl_add_u32 v34, v35, 2, v34")
    I("v_and_b32 v35, 3, v0")
    if OPT["pf"] or OPT["pf2"] or OPT["pf3"] or OPT["pf4"]:
        I("v_lshlrev_b32 v33, 8, v34")
        I("v_lshl_add_u32 v33, v35, 20, v33")
        I("s_lshr_b32 s64, s2, 4")
        I("s_lshl_b32 s64, s64, 16")
        I("s_bfe_u32 s65, s2, 0x10003")
        I("s_lshl_b32 s65, s65, 7")
        I("s_add_u32 s64, s64, s65")
        I("v_add_u32 v33, s64, v33")
    if OPT["pf5"]:
        I("v_lshlrev_b32 v33, 8, v34")
        I("v_and_b32 v32, 1, v35")
        I("v_lshl_add_u32 v33, v32, 7, v33")
        I("v_lshrrev_b32 v32, 1, v35")
        I("v_lshl_add_u32 v33, v32, 16, v33")
        I("s_sub_u32 s64, s3, 13")
        I("s_lshl_b32 s64, s64, 20")
        I("s_lshr_b32 s65, s2, 7")
        I("s_lshl_b32 s65, s65, 19")
        I("s_add_u32 s64, s64, s65")
        I("v_add_u32 v33, s64, v33")
    I(f"v_lshlrev_b32 v34, {OPT['fs']}, v34")
    I("v_lshl_add_u32 v34, v35, 2, v34")
    I(f"v_add_u32 v34, {hex(FLG_OFF)}, v34")
    I(f"s_mov_b32 s64, {hex(f32(-LOG2E))}")
    I("s_mov_b32 s66, 0x0000ffff")
    I("s_mov_b32 s67, 0xffff0000")
    I("s_waitcnt lgkmcnt(0)")
    for j in range(4):
        I(f"v_lshlrev_b32 v{WCB+j}, 16, v{WCB+j}")
    for j in range(4):
        I(f"v_mul_f32 v{WCB+j}, s64, v{WCB+j}")
    for j in range(4):
        I(f"v_cvt_pk_bf16_f32 v{WCB+j}, 0, v{WCB+j}")
    for j in range(4):
        I(f"v_cndmask_b32 v{WCB+j}, 0, v{WCB+j}, s[66:67]")
    I(f"v_lshlrev_b32 v{XR}, 16, v{XR+2}")
    I(f"v_and_b32 v{XR+1}, 0xffff0000, v{XR+2}")
    I(f"v_lshlrev_b32 v{XR+2}, 16, v{XR+3}")
    I(f"v_and_b32 v{XR+3}, 0xffff0000, v{XR+3}")
    I("s_setprio 0")
    if OPT["fl"]:
        I("s_waitcnt vmcnt(1)")
        I("s_cmp_ge_u32 s3, 12")
        I("s_cbranch_scc1 B_DRD")
    I("s_waitcnt vmcnt(0)")
    L("B_DRD")
    if OPT["dbar"]:
        I("s_barrier")
    if OPT["delay"]:
        I(f"s_sleep {OPT['delay']}")
    stamp(9)
    I(f"global_load_dwordx4 {vr(RA,4)}, v2, {WS} sc1")
    I(f"global_load_dwordx4 {vr(RA+4,4)}, v3, {WS} sc1")

    def poll(R_, first, name):
        L(name)
        I("s_waitcnt vmcnt(0)")
        for k in range(2):
            I(f"s_mov_b64 exec, s[{68+2*k}:{69+2*k}]")
            for j in range(4):
                I(f"v_xor_b32 v{R_+4*k+j}, v{TG+j}, v{R_+4*k+j}")
        I("s_mov_b64 exec, -1")
        for k in range(2):
            r = R_ + 4 * k
            I(f"v_or3_b32 v{6+k}, v{r}, v{r+1}, v{r+2}")
            I(f"v_and_b32 v{6+k}, s40, v{6+k}")
            I(f"v_and_or_b32 v{6+k}, v{r+3}, s41, v{6+k}")
            I(f"v_cmp_ne_u32 s[{68+2*k}:{69+2*k}], 0, v{6+k}")
            I(f"v_cmp_gt_u32 s[{64+2*k}:{65+2*k}], s42, v{r+3}")
        if first:
            for k in range(2):
                I(f"s_andn2_b64 s[{64+2*k}:{65+2*k}], s[{64+2*k}:{65+2*k}], s[{68+2*k}:{69+2*k}]")
                I(f"s_lshl_b64 s[{74+2*k}:{75+2*k}], s[{64+2*k}:{65+2*k}], 1")
                I(f"s_or_b64 s[{74+2*k}:{75+2*k}], s[{74+2*k}:{75+2*k}], s[36:37]")
        I("s_and_b64 s[72:73], s[68:69], s[74:75]")
        I("s_and_b64 s[80:81], s[70:71], s[76:77]")
        I("s_or_b64 s[72:73], s[72:73], s[80:81]")
        I(f"s_cbranch_scc1 {name}_RETRY")
    def retry(R_, first, name):
        L(name + "_RETRY")
        if first:
            for k in range(4):
                I(f"s_and_b32 s72, s{68+k}, s{74+k}")
                I("s_lshl_b32 s73, s72, 1")
                I("s_or_b32 s72, s72, s73")
                I("s_lshl_b32 s73, s72, 2")
                I("s_or_b32 s72, s72, s73")
                I("s_lshl_b32 s73, s72, 4")
                I("s_or_b32 s72, s72, s73")
                I(f"s_and_b32 s{68+k}, s{68+k}, s72")
        else:
            I("s_and_b64 s[68:69], s[68:69], s[74:75]")
            I("s_and_b64 s[70:71], s[70:71], s[76:77]")
        I("s_add_u32 s43, s43, 1")
        I(f"s_cmp_gt_u32 s43, {POLL_LIMIT}")
        I("s_cbranch_scc1 R_TIMEOUT")
        if OPT["sleep"]:
            I(f"s_sleep {OPT['sleep']}")
        reload(R_, name)
        I(f"s_branch {name}")
    def reload(R_, name):
        I("s_mov_b64 exec, s[68:69]")
        I(f"s_cbranch_execz {name}_1")
        I(f"global_load_dwordx4 {vr(R_,4)}, v2, {WS} sc1")
        L(name + "_1")
        I("s_mov_b64 exec, s[70:71]")
        I(f"s_cbranch_execz {name}_2")
        I(f"global_load_dwordx4 {vr(R_+4,4)}, v3, {WS} sc1")
        L(name + "_2")
    def ranks(R_, C_, K_, M_):
        for k in range(2):
            for j in range(3):
                I(f"v_lshlrev_b32_sdwa v{C_+3*k+j}, 2, v{R_+4*k+3} {sdwa('BYTE_'+str(j))}")
        for k in range(2):
            I(f"s_mov_b64 exec, s[{74+2*k}:{75+2*k}]")
            for j in range(3):
                m = M_ + 2 * (3 * k + j)
                I(f"v_cmp_gt_u32_sdwa s[{m}:{m+1}], 49, v{R_+4*k+3} src0_sel:DWORD src1_sel:BYTE_{j}")
            for j in range(3):
                m = M_ + 2 * (3 * k + j)
                I(f"s_mov_b64 exec, s[{m}:{m+1}]")
                I(f"ds_add_rtn_u32 v{K_+3*k+j}, v{C_+3*k+j}, v{C4} offset:{C2_OFF}")
        I("s_mov_b64 exec, -1")
    def more_test():
        I("s_and_b64 s[64:65], s[64:65], s[74:75]")
        I("s_and_b64 s[66:67], s[66:67], s[76:77]")
        I("s_or_b64 s[72:73], s[64:65], s[66:67]")
        I("s_or_b32 s72, s72, s73")
        I("s_and_b32 s72, s72, 0x80808080")
    MA, MB = 44, 4

    def pf5(lab):
        I("s_cmp_ge_u32 s3, 13")
        I(f"s_cbranch_scc0 {lab}")
        for k in range(OPT["pf5"]):
            if k:
                I("v_add_u32 v33, 0x20000, v33")
            I(f"global_load_dword v84, v33, {WS} sc1")
        L(lab)
    poll(RA, True, "B_P0")
    stamp(10)
    if OPT["ef"]:
        I(f"global_load_dword v35, v34, {WS} sc1")
    ranks(RA, CA, KA, MA)
    more_test()
    I("s_or_b32 s72, s72, s79")
    I("s_cbranch_scc1 R_MORE")
    L("B_RDONE")
    if OPT["stamp"]:
        I("v_writelane_b32 v127, s43, 19")
    I("s_waitcnt lgkmcnt(0)")
    I("s_barrier")
    stamp(11)
    I(f"ds_read_b32 v6, v5 offset:{C2_OFF}")
    if OPT["drain"]:
        if OPT["pf4"]:
            I(f"s_sub_u32 s71, s3, {OPT['pfw']}")
            I(f"s_cmp_lt_u32 s71, {OPT['pf4']}")
            I("s_cbranch_scc0 B_NOPF4")
            I("s_andn2_b64 exec, exec, s[62:63]")
            I(f"global_load_dword v84, v33, {WS} sc1")
            I("s_mov_b64 exec, -1")
            L("B_NOPF4")
    elif not OPT["ef"]:
        I(f"global_load_dword v35, v34, {WS} sc1")
        if OPT["pf5"] and not OPT["pfa"]:
            pf5("B_NOPF5")
    elif OPT["pf"]:
        I("s_sub_u32 s64, s3, 4")
        I(f"s_cmp_lt_u32 s64, {OPT['pf']}")
        I("s_cbranch_scc0 B_NOPF")
        I("s_waitcnt vmcnt(0)")
        I(f"v_cmp_eq_u32 vcc, v{TG+3}, v35")
        I("s_mov_b64 exec, vcc")
        I("s_cbranch_execz B_NOPF0")
        I(f"global_load_dword v84, v33, {WS} sc1")
        L("B_NOPF0")
        I("s_mov_b64 exec, -1")
        L("B_NOPF")
    I("s_waitcnt lgkmcnt(0)")
    I("v_add_u32 v2, 7, v6")
    I("v_and_b32 v2, -8, v2")
    I("v_max_u32 v2, 8, v2")
    I("v_cndmask_b32 v2, 0, v2, s[82:83]")
    if OPT["pf5"] and OPT["pfa"]:
        pf5("B_NOPF5")
    I("v_mov_b32 v3, v2")
    for d in ("row_shr:1 row_mask:0xf", "row_shr:2 row_mask:0xf", "row_shr:4 row_mask:0xf",
              "row_shr:8 row_mask:0xf", "row_bcast:15 row_mask:0xa", "row_bcast:31 row_mask:0xc"):
        I("s_nop 1")
        I(f"v_add_u32_dpp v3, v3, v3 {d} bank_mask:0xf")
    I("v_sub_u32 v7, v3, v2")
    I(f"ds_write_b32 v5, v7 offset:{BASE}")
    I("v_readlane_b32 s64, v3, 63")
    def lookup(C_):
        for i in range(6):
            I(f"ds_read_b32 v{C_+i}, v{C_+i} offset:{BASE}")
    def scatter(R_, C_, K_, M_):
        for i in range(6):
            if i % 3 == 0:
                I(f"s_waitcnt lgkmcnt({3-i})")
            I(f"v_add3_u32 v{C_+i}, v{C_+i}, v{K_+i}, s85")
        for i in range(6):
            I(f"s_mov_b64 exec, s[{M_+2*i}:{M_+2*i+1}]")
            I(f"ds_write_b32 v{C_+i}, v{R_+4*(i//3)+i%3}")
        I("s_mov_b64 exec, -1")
    lookup(CA)
    I("s_add_u32 s65, s64, 31")
    I("s_lshr_b32 s66, s65, 9")
    I("s_bfe_u32 s67, s65, 0x40005")
    I("s_mul_i32 s68, s66, s3")
    I("s_min_u32 s69, s67, s3")
    I("s_add_u32 s68, s68, s69")
    I("s_lshl_b32 s68, s68, 5")
    I("s_cmp_lt_u32 s3, s67")
    I("s_addc_u32 s72, s66, 0")
    I("s_lshl_b32 s69, s72, 3")
    I("s_add_u32 s70, s68, s85")
    if OPT["pf3"]:
        I(f"s_sub_u32 s71, s3, {OPT['pfw']}")
        I(f"s_cmp_lt_u32 s71, {OPT['pf3']}")
        I("s_cbranch_scc0 B_NOPF3")
        I("s_waitcnt vmcnt(0)")
        I(f"v_cmp_eq_u32 vcc, v{TG+3}, v35")
        I("s_andn2_b64 exec, vcc, s[62:63]")
        I("s_cbranch_execz B_NOPF30")
        I(f"global_load_dword v84, v33, {WS} sc1")
        L("B_NOPF30")
        I("s_mov_b64 exec, -1")
        L("B_NOPF3")
    scatter(RA, CA, KA, MA)
    I(f"v_mul_u32_u24 v{VRA}, s69, v124")
    I(f"v_mul_u32_u24 v{VRA+1}, s69, v125")
    I(f"v_add_u32 v{VRA}, s70, v{VRA}")
    I(f"v_add3_u32 v{VRA+1}, v{VRA+1}, s70, v126")
    if OPT["pf"] and OPT["ef"]:
        I("s_sub_u32 s71, s3, 4")
        I(f"s_cmp_lt_u32 s71, {OPT['pf']}")
        I("s_cbranch_scc1 B_FLW")
    if OPT["pf3"]:
        I(f"s_cmp_lt_u32 s71, {OPT['pf3']}")
        I("s_cbranch_scc1 B_FLW")
    if not OPT["drain"]:
        if OPT["pf5"]:
            I(f"s_waitcnt vmcnt({OPT['pf5']})")
            I("s_cmp_ge_u32 s3, 13")
            I("s_cbranch_scc1 B_FLW")
        I("s_waitcnt vmcnt(0)")
        L("B_FLW")
        I(f"v_cmp_ne_u32 vcc, v{TG+3}, v35")
    I("s_cmp_lg_u32 s78, 0")
    I("s_cbranch_scc1 R_EXTRA")
    L("B_XDONE")
    if not OPT["drain"]:
        I("s_cbranch_vccnz R_FLAGS")
    L("B_FDONE")
    if OPT["pf2"]:
        I(f"s_cmp_lt_u32 s3, {OPT['pf2']}")
        I("s_cbranch_scc0 B_NOPF2")
        I(f"global_load_dword v84, v33, {WS} sc1")
        L("B_NOPF2")
    I("s_waitcnt lgkmcnt(0)")
    I("s_barrier")
    stamp(12)
    def i_reads(batch, lo=0, hi=4):
        for i in range(lo, hi):
            I(f"ds_read_u16 v{IP[i]}, v{VRA} offset:{16*batch + 4*i}")
    def a_reads(batch):
        for d in range(4):
            I(f"s_mov_b64 exec, s[{56+2*d}:{57+2*d}]")
            I(f"ds_read_b32 v{A+d}, v{VRA+1} offset:{16*batch}")
        I("s_mov_b64 exec, -1")
    def gathers(x, lo, hi):
        for i in range(lo, hi):
            I(f"buffer_load_dwordx4 {vr(x+4*i,4)}, {vr(IP[i],2)}, {sr(S_TAB,4)}, 0 idxen offen {OPT['gsc'] if OPT['gsc'] != 'none' else ''}")
    i_reads(0)
    I("v_and_b32 v9, 0x3f0, v0")
    I(f"ds_read_b128 {vr(VSE,4)}, v9 offset:{STR}")
    I(f"ds_read_b32 v8, v1 offset:{FLAG}")
    if OPT["prio"]:
        I("s_setprio 3")
    I("s_waitcnt lgkmcnt(2)")
    gathers(XB, 0, 4)
    stamp(13)
    i_reads(1)
    I(f"ds_read_b128 {vr(EP,4)}, v9 offset:{EPI}")
    I(f"ds_read_b128 {vr(UR,4)}, v{VU}")
    I("s_waitcnt lgkmcnt(6)")
    I("v_readfirstlane_b32 s80, v8")
    I(f"v_lshl_add_u64 {vr(VSE,2)}, {vr(VSE,2)}, 0, {vr(LP,2)}")
    I(f"ds_read_b128 {vr(EA,4)}, v{VSE+1}")
    for q in range(4):
        I(f"v_readlane_b32 s{44+q}, v{VSE+2}, {16*q}")
    I(f"s_cmp_gt_u32 s64, {LIST_MAX}")
    I("s_cselect_b32 s81, 1, 0")
    I("s_or_b32 s80, s80, s81")
    if OPT["force_slow"]:
        I("s_branch K_SLOW")
    I("s_cbranch_scc1 K_SLOW")
    a_reads(0)
    for q in range(4):
        if OPT["cut"] & 8:
            I(f"s_mov_b32 s{44+q}, 0")
        I(f"s_bitset1_b32 s{44+q}, s72")
    I("s_or_b32 s82, s44, s45")
    I("s_or_b32 s83, s46, s47")
    I("s_or_b32 s82, s82, s83")
    if OPT["fp"]:
        th = [int(x) for x in str(OPT["fp"]).split("_")]
        I(f"s_lshl_b32 s81, 1, s72")
        for t_ in th:
            I(f"s_lshr_b32 s80, s81, {t_}")
            I("s_or_b32 s82, s82, s80")
    I("s_bfm_b32 s83, s72, 0")
    I("s_lshr_b32 s83, s83, 4")
    I("s_mov_b32 s73, 0")
    I("s_waitcnt lgkmcnt(5)")
    gathers(XB + 16, 0, 4)
    i_reads(2)
    for k in range(3):
        I(f"v_add_u32 v{EP+k}, v{EP+k}, v{LC}")
    I(f"v_cmp_lt_i32 s[48:49], 2, v{EP+3}")
    I("s_cmp_eq_u32 s72, 0")
    I("s_cbranch_scc1 K_JOIN")
    def mfma(x):
        I(f"v_mfma_f32_32x32x16_bf16 {vr(Y,16)}, {vr(A,4)}, {vr(WCB,4)}, {vr(x,16)}")
    stamp(14)
    I("s_waitcnt vmcnt(4) lgkmcnt(4)")
    mfma(XB)
    stamp(15)
    a_reads(1)
    nth = len(str(OPT["prio"]).split("_")) if OPT["prio"] else 0
    if OPT["prio"]:
        I(f"s_setprio {nth}")
    I("s_nop 2")
    L("K_LOOP")
    if OPT["prio"] and not OPT["fp"]:
        I("s_sub_u32 s74, s72, s73")
        for k, t_ in enumerate(int(x) for x in str(OPT["prio"]).split("_")):
            I(f"s_cmp_gt_u32 s74, {t_}")
            I("s_cbranch_scc1 K_STEP0")
            I(f"s_setprio {nth-1-k}")
    for u in range(4):
        bb, hh = u >> 1, u & 1
        x = XB + 16 * bb + 8 * hh
        t = Y + 8 * hh
        L(f"K_STEP{u}")
        for i in range(8):
            I(f"v_exp_f32 v{t+i}, v{t+i}")
        for i in range(4):
            I(f"v_lshlrev_b64 {vr(x+2*i,2)}, 16, {vr(x+2*i,2)}")
        for i in range(4):
            I(f"v_pk_fma_f32 {vr(t+2*i,2)}, {vr(t+2*i,2)}, {vr(EA+2*(i&1),2)}, s[16:17] clamp")
        I(f"v_pk_mul_f32 {vr(P,2)}, {vr(t,2)}, {vr(t+4,2)}")
        I(f"v_pk_mul_f32 {vr(P+2,2)}, {vr(t+2,2)}, {vr(t+6,2)}")
        I(f"v_pk_mul_f32 {vr(Q,2)}, {vr(x,2)}, {vr(t+4,2)}")
        I(f"v_pk_mul_f32 {vr(Q+2,2)}, {vr(x+2,2)}, {vr(t+6,2)}")
        I(f"v_pk_add_f32 {vr(SS,2)}, {vr(t,2)}, {vr(t+4,2)}")
        I(f"v_pk_add_f32 {vr(SS+2,2)}, {vr(t+2,2)}, {vr(t+6,2)}")
        I(f"v_pk_fma_f32 {vr(Q,2)}, {vr(x+4,2)}, {vr(t,2)}, {vr(Q,2)}")
        I(f"v_pk_fma_f32 {vr(Q+2,2)}, {vr(x+6,2)}, {vr(t+2,2)}, {vr(Q+2,2)}")
        if OPT["sup"]:
            I(f"s_bitcmp1_b32 s83, {u}")
            I(f"s_cselect_b32 s{S_TAB+2}, s{S_TAB+2}, 0")
        if hh == 0:
            I("s_waitcnt lgkmcnt(0)")
            if not OPT["cut"] & 4:
                gathers(XB + 16 * bb, 0, 2)
            for i in range(4):
                I(f"v_rcp_f32 v{P+i}, v{P+i}")
        else:
            I("s_waitcnt vmcnt(2)")
            if not OPT["cut"] & 1:
                mfma(XB + 16 * (1 - bb))
            for i in range(4):
                I(f"v_rcp_f32 v{P+i}, v{P+i}")
            if not OPT["cut"] & 4:
                gathers(XB + 16 * bb, 2, 4)
        I(f"v_pk_fma_f32 {vr(NUM,2)}, {vr(Q,2)}, {vr(P,2)}, {vr(NUM,2)}")
        I(f"v_pk_fma_f32 {vr(DEN,2)}, {vr(SS,2)}, {vr(P,2)}, {vr(DEN,2)}")
        I(f"v_pk_fma_f32 {vr(NUM+2,2)}, {vr(Q+2,2)}, {vr(P+2,2)}, {vr(NUM+2,2)}")
        I(f"v_pk_fma_f32 {vr(DEN+2,2)}, {vr(SS+2,2)}, {vr(P+2,2)}, {vr(DEN+2,2)}")
        if hh == 1:
            if not OPT["cut"] & 4:
                i_reads(bb + 3)
            if not OPT["cut"] & 2:
                a_reads(bb + 2)
        I(f"s_bitcmp1_b32 s82, {u+1}")
        I(f"s_cbranch_scc1 K_FLUSH{u}")
        L(f"K_BACK{u}")
    I(f"v_lshl_add_u64 {vr(VRA,2)}, {vr(VRA,2)}, 0, s[20:21]")
    I("s_lshr_b32 s82, s82, 4")
    I("s_lshr_b32 s83, s83, 4")
    I("s_add_u32 s73, s73, 4")
    I("s_branch K_LOOP")
    for u in range(4):
        L(f"K_FLUSH{u}")
        I(f"s_add_u32 s74, s73, {u+1}")
        for h in range(2):
            I(f"s_bitcmp1_b32 s{44+2*h}, s74")
            I("s_cselect_b32 s75, 0xffff, 0")
            I(f"s_bitcmp1_b32 s{45+2*h}, s74")
            I("s_cselect_b32 s80, 0xffff0000, 0")
            I(f"s_or_b32 {'exec_hi' if h else 'exec_lo'}, s75, s80")
        if OPT["fp"]:
            I("s_sub_u32 s75, s72, s74")
            for k, t_ in enumerate(th):
                I(f"s_cmp_gt_u32 s75, {t_}")
                I(f"s_cbranch_scc1 K_FP{u}")
                I(f"s_setprio {len(th)-1-k}")
            L(f"K_FP{u}")
            I(f"s_cbranch_execz K_FQ{u}")
        I(f"ds_write2_b32 v{VSE}, v{DEN}, v{DEN+1} offset0:0 offset1:16")
        I(f"ds_write2_b32 v{VSE}, v{DEN+2}, v{DEN+3} offset0:32 offset1:48")
        I(f"ds_write2_b32 v{VSE}, v{NUM}, v{NUM+1} offset0:64 offset1:80")
        I(f"ds_write2_b32 v{VSE}, v{NUM+2}, v{NUM+3} offset0:96 offset1:112")
        I("s_cmp_eq_u32 s74, s72")
        I("s_cbranch_scc1 K_JOIN")
        I(f"v_lshl_add_u64 {vr(VSE,2)}, {vr(VSE,2)}, 0, s[24:25]")
        I(f"ds_read_b128 {vr(DEN,4)}, v{VOOB}")
        I(f"ds_read_b128 {vr(NUM,4)}, v{VOOB}")
        I(f"ds_read_b128 {vr(EA,4)}, v{VSE+1}")
        I("s_waitcnt lgkmcnt(0)")
        L(f"K_FQ{u}")
        I("s_mov_b64 exec, -1")
        I(f"s_branch K_BACK{u}")

    L("K_JOIN")
    I("s_mov_b64 exec, -1")
    stamp(16)
    I("s_cmp_lt_u32 s3, 13")
    I("s_waitcnt lgkmcnt(0)")
    I("s_barrier")
    stamp(17)
    I("s_cbranch_scc0 K_FIN")
    stamp(25)
    for k in range(3):
        I(f"ds_read_b128 {vr(8+8*k,4)}, v{EP+k}")
    for k in range(3):
        I(f"ds_read_b128 {vr(12+8*k,4)}, v{EP+k} offset:256")
    I("s_cmp_lg_u64 s[48:49], 0")
    I("s_waitcnt lgkmcnt(3)")
    for k in (1, 2):
        for i in range(2):
            I(f"v_pk_add_f32 {vr(8+2*i,2)}, {vr(8+2*i,2)}, {vr(8+8*k+2*i,2)}")
    I("s_waitcnt lgkmcnt(0)")
    for k in (1, 2):
        for i in range(2, 4):
            I(f"v_pk_add_f32 {vr(8+2*i,2)}, {vr(8+2*i,2)}, {vr(8+8*k+2*i,2)}")
    I("s_cbranch_scc1 R_LONG")
    L("K_MATH")
    stamp(26)
    I("v_pk_add_f32 v[8:9], v[8:9], s[18:19]")
    I("v_pk_add_f32 v[10:11], v[10:11], s[18:19]")
    for c in range(4):
        I(f"v_rcp_f32 v{8+c}, v{8+c}")
    I("s_nop 0")
    I(f"v_pk_fma_f32 v[8:9], v[12:13], v[8:9], {vr(UR,2)}")
    I(f"v_pk_fma_f32 v[10:11], v[14:15], v[10:11], {vr(UR+2,2)}")
    for c in range(4):
        I(f"v_max_f32 v{8+c}, 0, v{8+c}")
    I(f"v_pk_add_f32 v[8:9], v[8:9], {vr(XR,2)}")
    I(f"v_pk_add_f32 v[10:11], v[10:11], {vr(XR+2,2)}")
    I("v_cvt_pk_bf16_f32 v12, v8, v9")
    I("v_cvt_pk_bf16_f32 v13, v10, v11")
    stamp(27)
    I(f"buffer_store_dwordx2 v[12:13], v{VOUT}, {sr(S_X,4)}, 0 offen {OPT['osc'].replace('none','').replace('_',' ')}")
    L("K_FIN")
    stamp(18)
    stamp_out()
    L("K_END")
    I("s_endpgm")

    L("R_PUB2")
    I("s_mov_b64 exec, vcc")
    I(f"ds_read_b128 {vr(C0+8,4)}, v4 offset:{IMG+128}")
    I(f"ds_read_b128 {vr(C0+12,4)}, v4 offset:{IMG+B2+128}")
    I("v_and_b32 v10, 7, v0")
    I(f"v_mul_u32_u24 v10, {3*INC}, v10")
    I(f"v_add_u32 v10, {24*INC}, v10")
    I("s_waitcnt lgkmcnt(0)")
    for b in range(2):
        w3 = C0 + 11 + 4 * b
        I(f"v_and_b32 v{w3}, 0x3f3f3f, v{w3}")
        for j in range(3):
            I(f"v_add_u32 v11, {j*INC}, v10")
            I(f"v_cmp_le_u32 s[70:71], v{8+b}, v11")
            I(f"v_or_b32 v11, {0x3f << (8*j)}, v{w3}")
            I("s_nop 0")
            I(f"v_cndmask_b32 v{w3}, v{w3}, v11, s[70:71]")
    I(f"v_add_u32 v8, {hex(LINE_STRIDE)}, v6")
    I(f"v_add_u32 v9, {hex(LINE_STRIDE)}, v7")
    tagit(C0 + 8)
    tagit(C0 + 12)
    I(f"global_store_dwordx4 v8, {vr(C0+8,4)}, {WS} sc1")
    I(f"global_store_dwordx4 v9, {vr(C0+12,4)}, {WS} sc1")
    I("s_branch A_PUBD")
    retry(RA, True, "B_P0")
    L("R_MORE")
    I("s_cmp_lg_u32 s79, 0")
    I("s_cbranch_scc1 R_REQ")
    if OPT["nol2"]:
        I("s_branch B_RDONE")
    for k in range(4):
        I(f"s_lshr_b32 s{74+k}, s{64+k}, 7")
        I(f"s_and_b32 s{74+k}, s{74+k}, 0x01010101")
        I(f"s_mul_i32 s{74+k}, s{74+k}, 0xff")
    I("s_mov_b64 s[68:69], s[74:75]")
    I("s_mov_b64 s[70:71], s[76:77]")
    I(f"v_add_u32 v2, {hex(LINE_STRIDE)}, v2")
    I(f"v_add_u32 v3, {hex(LINE_STRIDE)}, v3")
    reload(RB, "B_N1")
    poll(RB, False, "B_P1")
    ranks(RB, CB, KB, MB)
    I("s_or_b32 s78, s78, 1")
    more_test()
    I("s_cbranch_scc0 B_RDONE")
    I("s_mov_b32 s79, 1")
    I("s_branch R_REQ")
    retry(RB, False, "B_P1")
    L("R_TIMEOUT")
    I("s_mov_b32 s79, 3")
    for k in range(6):
        I(f"s_mov_b64 s[{MA+2*k}:{MA+2*k+1}], 0")
    I(f"v_mov_b32 v35, v{TG+3}")
    I(f"v_mov_b32 v33, {hex(CTL_OFF + 0x8000)}")
    L("R_REQ")
    I("v_mov_b32 v6, s79")
    I(f"ds_or_b32 v1, v6 offset:{FLAG}")
    I("s_branch B_RDONE")
    def bump():
        I(f"v_mov_b32 v48, {hex(CTL_OFF)}")
        I("v_mov_b32 v50, 0x1000000")
        I("v_mov_b32 v51, 0")
        I("s_mov_b64 exec, 1")
        I(f"global_atomic_add_x2 v48, v[50:51], {WS} offset:8 sc1")
        I("s_mov_b64 exec, -1")
    L("R_EXTRA")
    I("s_bitcmp1_b32 s78, 0")
    I("s_cbranch_scc0 R_X2")
    I("s_waitcnt lgkmcnt(0)")
    lookup(CB)
    scatter(RB, CB, KB, MB)
    L("R_X2")
    I("s_bitcmp1_b32 s78, 1")
    I("s_cbranch_scc0 B_XDONE")
    I("s_cmp_eq_u32 s3, 1")
    I("s_cbranch_scc1 R_PAD")
    I("s_add_u32 s71, s66, 1")
    I("v_cvt_f32_u32 v48, s71")
    I("v_cvt_f32_u32 v49, s66")
    I("s_lshl_b32 s73, s67, 2")
    I("s_mul_i32 s71, s71, s73")
    I("v_rcp_f32 v48, v48")
    I("v_rcp_f32 v49, v49")
    I("v_cvt_f32_u32 v50, s71")
    I("v_cvt_f32_u32 v51, s73")
    I("v_fma_f32 v50, -v50, v49, v51")
    I(f"v_mov_b32 v51, {hex(f32(0.125))}")
    def stream_of(dst, src, half):
        I(f"v_cvt_f32_u32 v{dst}, v{src}")
        I(f"v_fma_f32 v{dst}, v{dst}, v51, {half}")
        I(f"v_mul_f32 v52, v{dst}, v48")
        I(f"v_fma_f32 v{dst}, v{dst}, v49, v50")
        I(f"v_max_f32 v{dst}, v{dst}, v52")
        I(f"v_cvt_u32_f32 v{dst}, v{dst}")
    stream_of(53, 3, "-0.5")
    I("s_cmp_eq_u32 s3, 2")
    I("s_cbranch_scc1 R_EPI")
    I("s_cmp_eq_u32 s3, 3")
    I("s_cbranch_scc1 R_FIRST")
    I("v_min_u32 v55, s73, v53")
    I("v_mad_u32_u24 v55, v53, s66, v55")
    I("v_lshrrev_b32 v56, 3, v3")
    I("v_sub_u32 v55, v56, v55")
    I("v_lshlrev_b32 v55, v55, 1")
    I("v_lshlrev_b32 v56, 4, v53")
    I("s_mov_b64 exec, s[82:83]")
    I(f"ds_or_b32 v56, v55 offset:{STR + 8}")
    I("s_mov_b64 exec, -1")
    I("s_branch B_XDONE")
    L("R_FIRST")
    I("v_mov_b32 v54, -1")
    I("v_cndmask_b32 v53, 63, v53, s[82:83]")
    I(f"v_mul_u32_u24 v59, {EAU_STRIDE//4}, v5")
    I(f"v_add_u32 v59, {EAU_OFF}, v59")
    I("v_mov_b32_dpp v54, v53 wave_shr:1 row_mask:0xf bank_mask:0xf")
    I("v_lshl_add_u32 v58, v54, 2, v5")
    I(f"v_mul_i32_i24 v58, {SLOT_STRIDE//4}, v58")
    I(f"v_add_u32 v58, {SLOT_OFF}, v58")
    I("v_lshlrev_b32 v54, 4, v54")
    I("v_lshlrev_b32 v53, 4, v53")
    L("R_FIRST1")
    I("v_cmp_lt_i32 s[74:75], v54, v53")
    I("s_mov_b64 exec, s[74:75]")
    I("s_cbranch_execz R_FIRST2")
    I("v_add_u32 v54, 16, v54")
    I(f"v_add_u32 v58, {SLOT_STRIDE}, v58")
    I(f"ds_write_b64 v54, v[58:59] offset:{STR}")
    I("s_branch R_FIRST1")
    L("R_FIRST2")
    I("s_mov_b64 exec, -1")
    I("s_branch B_XDONE")
    L("R_EPI")
    stream_of(54, 7, "0.5")
    I("v_sub_u32 v59, v53, v54")
    I("v_lshl_add_u32 v56, v54, 2, v5")
    I(f"v_mul_u32_u24 v56, {SLOT_STRIDE//4}, v56")
    I(f"v_add_u32 v56, {SLOT_OFF}, v56")
    I("v_cmp_lt_i32 s[74:75], 0, v59")
    I("v_cmp_lt_i32 s[76:77], 1, v59")
    I(f"v_add_u32 v57, {SLOT_STRIDE}, v56")
    I(f"v_add_u32 v58, {2*SLOT_STRIDE}, v56")
    I(f"v_cndmask_b32 v57, v{VOOB}, v57, s[74:75]")
    I(f"v_cndmask_b32 v58, v{VOOB}, v58, s[76:77]")
    I("v_lshlrev_b32 v55, 2, v5")
    I(f"ds_write_b128 v55, v[56:59] offset:{EPI}")
    I("s_branch B_XDONE")
    L("R_PAD")
    I(f"v_mov_b32 v52, {N}")
    I(f"v_add_u32 v53, {LIST_OFF - 8}, v3")
    I("v_cmp_lt_u32 s[74:75], v6, v2")
    I("s_mov_b64 exec, s[74:75]")
    I("ds_write_b32 v53, v52 offset:4")
    I("v_cmp_eq_u32 s[74:75], 0, v6")
    I("s_mov_b64 exec, s[74:75]")
    I("ds_write_b32 v53, v52")
    I("s_mov_b64 exec, 0x3f")
    I("s_add_u32 s71, s64, s85")
    I("v_add_u32 v53, s71, v5")
    I("ds_write_b32 v53, v52")
    I("s_mov_b64 exec, -1")
    I("s_cmp_eq_u32 s2, 0")
    I("s_cbranch_scc0 B_XDONE")
    bump()
    I("s_branch B_XDONE")
    L("R_FLAGS")
    I("s_add_u32 s43, s43, 1")
    I(f"s_cmp_gt_u32 s43, {POLL_LIMIT}")
    I("s_cbranch_scc1 R_FLAGT")
    I("s_sleep 2")
    I("s_mov_b64 exec, vcc")
    I(f"global_load_dword v35, v34, {WS} sc1")
    I("s_waitcnt vmcnt(0)")
    I(f"v_cmp_ne_u32 vcc, v{TG+3}, v35")
    I("s_mov_b64 exec, -1")
    I("s_branch B_XDONE")
    L("R_FLAGT")
    I("v_mov_b32 v52, 3")
    I(f"ds_or_b32 v1, v52 offset:{FLAG}")
    I("s_branch B_FDONE")
    L("R_LONG")
    I("s_mov_b32 s64, 2")
    I("s_mov_b64 vcc, s[48:49]")
    L("R_LONG1")
    I("s_mov_b64 exec, vcc")
    I(f"v_add_u32 v{EP+2}, {SLOT_STRIDE}, v{EP+2}")
    I(f"ds_read_b128 v[16:19], v{EP+2}")
    I(f"ds_read_b128 v[20:23], v{EP+2} offset:256")
    I("s_add_u32 s64, s64, 1")
    I("s_waitcnt lgkmcnt(0)")
    for i in range(4):
        I(f"v_pk_add_f32 {vr(8+2*i,2)}, {vr(8+2*i,2)}, {vr(16+2*i,2)}")
    I(f"v_cmp_lt_i32 vcc, s64, v{EP+3}")
    I("s_cbranch_vccnz R_LONG1")
    I("s_mov_b64 exec, -1")
    I("s_branch K_MATH")

    L("K_SLOW")
    I("s_load_dwordx8 s[4:11], s[0:1], 0")
    I("s_load_dwordx2 s[12:13], s[0:1], 40")
    I("s_load_dwordx2 s[14:15], s[0:1], 64")
    I("s_setprio 0")
    I("s_waitcnt vmcnt(0) lgkmcnt(0)")
    I("s_cmp_eq_u32 s3, 15")
    I("s_cselect_b32 s71, s80, 0")
    I("s_and_b32 s71, s71, 2")
    I("s_cbranch_scc0 K_SL0")
    bump()
    I("s_waitcnt vmcnt(0)")
    L("K_SL0")
    WB2, WV2 = 40, 72
    I("v_lshrrev_b32 v6, 1, v5")
    I("v_add_u32 v7, 4096, v6")
    for (w, p_) in ((WB2, 12), (WV2, 14)):
        for hf in range(2):
            for k in range(16):
                I(f"global_load_ushort v{w + 16*hf + k}, v{6 + hf}, s[{p_}:{p_+1}] offset:{2*k*128}")
                I(f"global_load_ushort v{8 + k}, v{6 + hf}, s[{p_}:{p_+1}] offset:{(2*k+1)*128}")
            I("s_waitcnt vmcnt(0)")
            for k in range(16):
                I(f"v_lshl_or_b32 v{w + 16*hf + k}, v{8 + k}, 16, v{w + 16*hf + k}")
    for i in range(4):
        I(f"v_mov_b32 v{28+i}, 0")
    I("v_lshlrev_b32 v8, 4, v0")
    for k in range(4):
        I(f"ds_write_b128 v8, v[28:31] offset:{SLOT_OFF + k*16384}")
    I(f"ds_read_u16 v18, v6 offset:{WC_OFF}")
    I(f"s_mov_b32 s18, {hex(f32(1e-6))}")
    I("s_mov_b32 s19, s18")
    I(f"s_mov_b32 s16, {hex(f32(-LOG2E))}")
    I(f"v_lshl_add_u32 v17, v124, 2, v{LC}")
    I("v_lshlrev_b32 v10, 1, v5")
    I("s_waitcnt lgkmcnt(0)")
    I("v_lshlrev_b32 v18, 16, v18")
    I("s_barrier")
    I("v_lshlrev_b32 v8, 2, v0")
    I("v_lshlrev_b32 v9, 1, v0")
    I("s_lshl_b32 s70, s3, 6")
    L("K_SLOOP")
    I(f"global_load_dword v11, v8, {sr(P_DST,2)}")
    I(f"global_load_dword v12, v8, {sr(P_SRC,2)}")
    I(f"global_load_ushort v13, v9, {sr(P_E,2)}")
    I("s_waitcnt vmcnt(0)")
    I("v_and_b32 v14, 0xff, v11")
    I("v_cmp_eq_u32 s[74:75], s2, v14")
    L("K_SIN")
    I("s_cmp_eq_u64 s[74:75], 0")
    I("s_cbranch_scc1 K_SNEXT")
    I("s_ff1_i32_b64 s73, s[74:75]")
    I("s_bitset0_b64 s[74:75], s73")
    I("v_readlane_b32 s79, v11, s73")
    I("v_readlane_b32 s80, v12, s73")
    I("v_readlane_b32 s81, v13, s73")
    I("s_lshr_b32 s79, s79, 8")
    I(f"s_mul_i32 s76, s79, {EAU_STRIDE}")
    I(f"s_add_u32 s76, s76, {EAU_OFF + 512}")
    I(f"s_mul_i32 s79, s79, {ACC_STRIDE}")
    I("s_lshl_b32 s80, s80, 7")
    I("s_add_u32 s78, s80, 64")
    I(f"s_load_dwordx16 s[36:51], {sr(P_X,2)}, s80")
    I(f"s_load_dwordx16 s[52:67], {sr(P_X,2)}, s78")
    I("s_lshl_b32 s81, s81, 16")
    I("v_add_u32 v15, s76, v17")
    I("v_add_u32 v16, s79, v10")
    I("ds_read_b32 v22, v15")
    I("v_mul_f32 v20, s81, v18")
    I("v_mov_b32 v21, 0")
    I("s_waitcnt lgkmcnt(0)")
    for k in range(32):
        I(f"v_dot2_f32_bf16 v20, s{36+k}, v{WB2+k}, v20")
        I(f"v_dot2_f32_bf16 v21, s{36+k}, v{WV2+k}, v21")
    I("s_nop 2")
    I("v_fma_f32 v20, v20, s16, v22")
    I("v_exp_f32 v20, v20")
    I("s_nop 0")
    I("v_add_f32 v20, 1.0, v20")
    I("v_rcp_f32 v20, v20")
    I("s_nop 0")
    I("v_mul_f32 v21, v21, v20")
    I("v_cvt_f64_f32 v[24:25], v20")
    I("v_cvt_f64_f32 v[26:27], v21")
    I(f"ds_add_f64 v16, v[24:25] offset:{SLOT_OFF}")
    I(f"ds_add_f64 v16, v[26:27] offset:{SLOT_OFF + 512}")
    I("s_branch K_SIN")
    L("K_SNEXT")
    I("s_add_u32 s70, s70, 1024")
    I("v_add_u32 v8, 4096, v8")
    I("v_add_u32 v9, 2048, v9")
    I(f"s_cmp_lt_u32 s70, {E}")
    I("s_cbranch_scc1 K_SLOOP")
    I("v_lshrrev_b32 v6, 4, v0")
    I(f"v_mul_u32_u24 v6, {ACC_STRIDE}, v6")
    I(f"v_lshl_add_u32 v6, v{LC}, 1, v6")
    I("s_waitcnt lgkmcnt(0)")
    I("s_barrier")
    I("s_cmp_lt_u32 s3, 13")
    I("s_cbranch_scc0 K_FIN")
    I(f"ds_read_b128 v[16:19], v6 offset:{SLOT_OFF}")
    I(f"ds_read_b128 v[20:23], v6 offset:{SLOT_OFF+16}")
    I(f"ds_read_b128 v[24:27], v6 offset:{SLOT_OFF+512}")
    I(f"ds_read_b128 v[28:31], v6 offset:{SLOT_OFF+528}")
    I("s_waitcnt lgkmcnt(0)")
    for c in range(8):
        I(f"v_cvt_f32_f64 v{8+c}, {vr(16+2*c,2)}")
    I("s_branch K_MATH")
    L("SLOW_END")

hdr = open("standalone__edge_featured_mpnn_gatedgcn__graph.s.ref").read().split("\n")
for line in hdr:
    if line.startswith("; Override"):
        break
    o(line)
o(f"; @launch kernel={KNAME} grid=(256,1,1) block=(1024,1,1) lds={LDS_TOTAL}")
o('.amdgcn_target "amdgcn-amd-amdhsa--gfx950"')
o(".text")
gen()
o('.section .rodata,"a"')
o(".p2align 6")
o(f".amdhsa_kernel {KNAME}")
o("  .amdhsa_next_free_vgpr 128")
o("  .amdhsa_next_free_sgpr 102")
o("  .amdhsa_accum_offset 128")
o("  .amdhsa_group_segment_fixed_size 0")
o("  .amdhsa_kernarg_size 96")
o("  .amdhsa_user_sgpr_count 2")
o("  .amdhsa_user_sgpr_kernarg_segment_ptr 1")
o("  .amdhsa_system_sgpr_workgroup_id_x 1")
o(".end_amdhsa_kernel")
open(sys.argv[1], "w").write("\n".join(out) + "\n")
```

```python
import sys, struct

OPT = dict(stamp=0, sts="2_3_4_5_6_7", force_slow=0, prio="16_8_4", spin=0, spinat=18, hack=0, sleep=2, delay=0,
           codepf=1, gprio=1, pf=0, pf2=0, pre=1, cfirst=0, gbar=0, init1=1, pf3=0, pfw=0, drain=0, pf4=0, tlb=0, gl=0, pf5=0, pfa=1, osc="sc1", w32=0, fw=1, fl=0, dbar=0, wsb=0, cad=1, fp="", e12=0, nol2=0, amp=0, ampw=0, ampg=-1, ampm=10, esc="none", sup=1, cprio=1, nog=0, gsc="sc1", cut=0, ef=0, fs=4)
for a in sys.argv[2:]:
    k, v = a.split("=")
    OPT[k] = int(v) if v.lstrip("-").isdigit() else v

KNAME = "standalone__edge_featured_mpnn_gatedgcn__graph_kernel"
N = 12500
E = 800000
CHUNK = 3136
TAB_ROWS = N + 1
CTL_OFF = 0x380000
FLG_OFF = 0x390000
CELL_OFF = 0x400000
BIN_STRIDE = 32768 + 256
LINE_STRIDE = 0x900000
STAMP_OFF = 0x4000000
LOG2E = 1.4426950408889634
KEXP = 62
POLL_LIMIT = 100000

X_OFF = 0
WC_OFF = 8192
C1_OFF = 8448
C2_OFF = 9472
FLAG = C2_OFF + 256
SYNC = C2_OFF + 260
TAGS = C2_OFF + 272
BASE = C2_OFF + 512
STR = C2_OFF + 1024
EPI = C2_OFF + 2048
IMG = C2_OFF + 3072
IMG_STRIDE = 272
EAU_OFF = IMG + 256 * IMG_STRIDE
EAU_STRIDE = 800
W_OFF = EAU_OFF + 52 * EAU_STRIDE
LDS_TOTAL = W_OFF + 32768
LIST_OFF = W_OFF
LIST_MAX = 31 * 16 * 32
SLOT_OFF = IMG
SLOT_STRIDE = 512
ACC_STRIDE = 1056
OOB = 0x30000
assert W_OFF % 128 == 0 and 117 * SLOT_STRIDE <= 256 * IMG_STRIDE and LDS_TOTAL <= 163840
INC = 0x5556

def f32(x):
    return struct.unpack("<I", struct.pack("<f", x))[0]

out = []
def o(s=""):
    out.append(s)
def I(s):
    out.append("    " + s)
def L(s):
    out.append(s + ":")
def vr(a, n=1):
    return f"v{a}" if n == 1 else f"v[{a}:{a+n-1}]"
def sr(a, n=1):
    return f"s{a}" if n == 1 else f"s[{a}:{a+n-1}]"
def sdwa(sel1):
    return f"dst_sel:DWORD dst_unused:UNUSED_PAD src0_sel:DWORD src1_sel:{sel1}"

P_X, P_E, P_SRC, P_DST, P_WA, P_WB, P_WC, P_WU, P_WV, P_OUT, P_DBG, P_WS = 4, 6, 8, 10, 12, 14, 16, 18, 20, 22, 24, 26
S_TAB, S_X = 28, 32
WS = sr(P_WS, 2)

STS = [int(x) for x in str(OPT["sts"]).split("_")] if OPT["stamp"] else []
RTS = {12: 28, 17: 29} if OPT["stamp"] == 2 else {}
def stamp(i):
    if OPT["amp"]:
        if i == 1:
            I("s_memrealtime s[98:99]")
        if i == OPT["amp"]:
            I("s_memrealtime s[96:97]")
        if i == 18:
            I(f"s_cmp_eq_u32 s3, {OPT['ampw']}")
            I("s_cbranch_scc0 AMP_D")
            if OPT["ampg"] >= 0:
                I(f"s_cmp_eq_u32 s2, {OPT['ampg']}")
                I("s_cbranch_scc0 AMP_D")
            I("s_waitcnt lgkmcnt(0)")
            I("s_sub_u32 s96, s96, s98")
            I(f"s_mul_i32 s96, s96, {OPT['ampm']}")
            I("s_add_u32 s96, s96, 3000")
            I("s_min_u32 s96, s96, 100000")
            L("AMP_W")
            I("s_memrealtime s[90:91]")
            I("s_waitcnt lgkmcnt(0)")
            I("s_sub_u32 s90, s90, s98")
            I("s_cmp_lt_u32 s90, s96")
            I("s_cbranch_scc1 AMP_W")
            L("AMP_D")
    if OPT["spin"] and OPT["spinat"] == i:
        lab = f"SPIN_{len(out)}"
        I("s_cselect_b32 s92, 1, 0")
        L(lab)
        I("s_memrealtime s[90:91]")
        I("s_waitcnt lgkmcnt(0)")
        I("s_sub_u32 s90, s90, s98")
        I(f"s_cmp_lt_u32 s90, {OPT['spin']}")
        I(f"s_cbranch_scc1 {lab}")
        I("s_cmp_lg_u32 s92, 0")
    if not OPT["stamp"]:
        return
    if i == 0:
        I("s_memrealtime s[86:87]")
    elif i == 1:
        I("s_memtime s[88:89]")
    elif i in STS:
        k = 90 + 2 * STS.index(i)
        I(f"s_memtime s[{k}:{k+1}]")
        if i in RTS:
            k = 90 + 2 * STS.index(RTS[i])
            I(f"s_memrealtime s[{k}:{k+1}]")
def stamp_out():
    if not OPT["stamp"]:
        return
    I("s_mov_b64 exec, -1")
    I("s_waitcnt vmcnt(0) lgkmcnt(0)")
    I("s_memtime s[80:81]")
    I("s_memrealtime s[82:83]")
    I("s_waitcnt lgkmcnt(0)")
    I("v_writelane_b32 v127, s80, 30")
    I("v_writelane_b32 v127, s82, 31")
    I("v_writelane_b32 v127, s86, 0")
    I("v_writelane_b32 v127, s88, 1")
    for i in list(range(2, 19)) + list(range(20, 30)):
        I(f"v_writelane_b32 v127, s{90 + 2*STS.index(i) if i in STS else 88}, {i}")
    I("s_lshl_b32 s84, s2, 4")
    I("s_add_u32 s84, s84, s3")
    I("s_lshl_b32 s84, s84, 7")
    I(f"s_add_u32 s84, s84, {hex(STAMP_OFF)}")
    I("v_and_b32 v1, 63, v0")
    I("v_lshl_add_u32 v1, v1, 2, s84")
    I("s_mov_b64 exec, 0xffffffff")
    I(f"global_store_dword v1, v127, {WS}")

def srd(d, p, size):
    I(f"s_mov_b64 {sr(d,2)}, {sr(p,2)}")
    I(f"s_mov_b32 s{d+2}, {hex(size)}")
    I(f"s_mov_b32 s{d+3}, 0x20000")

D, S, EE = 16, 20, 24
AP = 104
TG = 120
B2 = 128 * IMG_STRIDE

def edge_loads(lo=0, hi=3):
    ins = [f"global_load_dwordx4 {vr(D,4)}, v10, {sr(P_DST,2)}",
           f"global_load_dwordx4 {vr(S,4)}, v10, {sr(P_SRC,2)}",
           f"global_load_dwordx2 {vr(EE,2)}, v11, {sr(P_E,2)}"]
    for x in ins[lo:hi]:
        I(x + " " + OPT["esc"].replace("none", ""))

def binning(waits):
    B4, RK, PA = 28, 32, 36
    I(f"v_mov_b32 v14, {INC}")
    I(f"s_mov_b32 s68, {47*INC}")
    I("s_mov_b32 s69, 0x05040100")
    I("s_mov_b32 s70, 0x07060100")
    if waits:
        I("s_waitcnt vmcnt(2)")
        stamp(3)
    for i in range(4):
        I(f"v_lshlrev_b32_sdwa v{B4+i}, 2, v{D+i} {sdwa('BYTE_0')}")
        I(f"ds_add_rtn_u32 v{RK+i}, v{B4+i}, v14 offset:{C1_OFF}")
    for i in range(4):
        I(f"v_mul_u32_u24 v{B4+i}, {IMG_STRIDE//4}, v{B4+i}")
        I(f"v_lshrrev_b32 v{D+i}, 8, v{D+i}")
    for i in range(4):
        I("s_waitcnt lgkmcnt(3)")
        I(f"v_min_u32 v{RK+i}, s68, v{RK+i}")
        I(f"v_lshrrev_b32 v{RK+i}, 14, v{RK+i}")
        I(f"v_lshl_add_u32 v{PA+i}, v{RK+i}, 2, v{B4+i}")
        I(f"v_and_b32 v{RK+i}, 3, v{RK+i}")
        I(f"v_or3_b32 v{RK+i}, v{PA+i}, 12, v{RK+i}")
        I(f"ds_write_b8 v{RK+i}, v{D+i} offset:{IMG}")
    if waits:
        I("s_waitcnt vmcnt(0)")
        stamp(4)
    for i in range(4):
        if OPT["hack"]:
            I(f"v_and_b32 v{S+i}, {OPT['hack']}, v{S+i}")
        I(f"v_perm_b32 v{S+i}, v{EE+(i>>1)}, v{S+i}, s{69+(i&1)}")
        I(f"ds_write_b32 v{PA+i}, v{S+i} offset:{IMG}")

def copy_consts():
    I("s_lshr_b32 s64, s2, 7")
    I("s_lshl_b32 s64, s64, 14")
    I(f"s_add_u32 s64, s64, {hex(CELL_OFF)}")
    I(f"v_mul_u32_u24 v6, {BIN_STRIDE//4}, v5")
    I("v_lshl_add_u32 v6, v0, 4, v6")
    I("v_add_u32 v6, s64, v6")
    I(f"v_add_u32 v7, {128*BIN_STRIDE}, v6")
    I(f"s_mul_i32 s64, s2, {BIN_STRIDE}")
    I(f"s_add_u32 s64, s64, {hex(CELL_OFF)}")
    I("v_lshl_add_u32 v2, v0, 4, s64")
    I("v_add_u32 v3, 0x4000, v2")
    I("s_mov_b32 s36, 0x0f0f0f0f")
    I("s_mov_b32 s37, s36")
    if OPT["w32"] == 2:
        I("v_mov_b32 v102, 0")
    elif OPT["w32"]:
        I("v_bfe_u32 v102, v0, 1, 2")
        I("v_bfe_u32 v103, v0, 2, 1")
        I(f"v_mul_u32_u24 v102, {6*INC}, v102")
        I("v_mul_u32_u24 v102, v102, v103")
    else:
        I("v_bfe_u32 v102, v0, 2, 1")
        I(f"v_mul_u32_u24 v102, {12*INC}, v102")
    I(f"s_mov_b32 s39, {24*INC}")
    I("s_mov_b32 s40, 0xc000")
    I("s_mov_b32 s41, 0xffc0c0c0")
    I(f"s_mov_b32 s42, {49 << 16}")
    I("s_mov_b32 s43, 0")
    I("v_mov_b32 v1, 0")
    I(f"s_mov_b32 s{S_TAB}, s{P_WS}")
    I(f"s_or_b32 s{S_TAB+1}, s{P_WS+1}, 0x1000000")
    I(f"s_mov_b32 s{S_TAB+2}, {0 if OPT['nog'] else TAB_ROWS}")
    I(f"s_mov_b32 s{S_TAB+3}, 0x20000")

def lds_init():
    I("v_add_u32 v5, s2, v3")
    I("v_and_b32 v5, 127, v5")
    I(f"v_mul_u32_u24 v4, {IMG_STRIDE}, v5")
    I("v_lshl_add_u32 v4, v2, 4, v4")
    I("v_lshlrev_b32 v5, 2, v5")
    I("v_mov_b32 v12, 0")
    I("v_mov_b32 v13, 0x3f3f3f")
    I(f"ds_write2st64_b32 v5, v12, v12 offset0:{C1_OFF//256} offset1:{C1_OFF//256+2}")
    for r in range(1 if OPT["init1"] else 2):
        for b in range(2):
            I(f"ds_write_b32 v4, v13 offset:{IMG + b*B2 + r*128 + 12}")
def edge_addr():
    I(f"s_mul_i32 s64, s2, {CHUNK*4}")
    I("v_lshl_add_u32 v10, v0, 4, s64")
    I("v_lshrrev_b32 v11, 1, v10")

def gen():
    o(".p2align 8")
    o(f".globl {KNAME}")
    o(f".type {KNAME},@function")
    L(KNAME)
    I("s_cmp_ge_u32 s2, 256")
    I("s_cbranch_scc1 K_END")
    stamp(0); stamp(1)
    I("s_load_dwordx16 s[4:19], s[0:1], 0")
    I("s_load_dwordx8 s[20:27], s[0:1], 64")
    if OPT["spin"]:
        I("s_memrealtime s[98:99]")
    I("v_lshrrev_b32 v1, 6, v0")
    I("v_and_b32 v2, 7, v0")
    I("v_readfirstlane_b32 s3, v1")
    I("v_lshrrev_b32 v3, 3, v0")
    I("s_mov_b32 s79, 0")
    I("s_cmp_ge_u32 s3, 12")
    I("s_cbranch_scc1 G_ENTRY")

    I("s_cmp_ge_u32 s3, 2")
    I("s_cbranch_scc1 A_NOPF")
    if OPT["codepf"]:
        I("s_getpc_b64 s[64:65]")
        L("A_PC")
        I("v_lshlrev_b32 v8, 7, v0")
        I("v_min_u32 v8, K_SLOW-A_PC-4, v8")
        I("global_load_dword v27, v8, s[64:65]")
    I("v_lshlrev_b32 v8, 4, v0")
    I("v_mov_b64 v[12:13], 0")
    I("v_mov_b64 v[14:15], 0")
    I(f"ds_write_b128 v8, v[12:15] offset:{C2_OFF}")
    L("A_NOPF")
    lds_init()
    edge_addr()
    I(f"v_cmp_gt_u32 vcc, {E*4}, v10")
    I("s_waitcnt lgkmcnt(0)")
    stamp(24)
    if OPT["wsb"]:
        I(f"s_add_u32 s{P_WS}, s{P_WS}, {hex(OPT['wsb'] << 20)}")
        I(f"s_addc_u32 s{P_WS+1}, s{P_WS+1}, 0")
    if OPT["cfirst"]:
        copy_consts()
    I("s_mov_b64 exec, vcc")
    I("s_cbranch_execz A_NOE")
    edge_loads(0, OPT["pre"])
    I("s_cmp_eq_u32 s3, 1")
    I("s_cbranch_scc0 A_NOEP")
    I(f"s_add_u32 s70, s{P_WS}, {hex(CTL_OFF)}")
    I(f"s_addc_u32 s71, s{P_WS+1}, 0")
    I("s_load_dwordx2 s[72:73], s[70:71], 8")
    if OPT["fw"]:
        I(f"s_lshl_b32 s74, s2, {OPT['fs']}")
        I(f"s_add_u32 s74, s74, {hex(FLG_OFF - CTL_OFF)}")
        I("s_load_dword s75, s[70:71], s74")
    L("A_NOEP")
    if OPT["tlb"]:
        I("s_cmp_eq_u32 s3, 0")
        I("s_cbranch_scc0 A_NOTLB")
        I("s_mov_b64 exec, 1")
        if OPT["tlb"] & 1:
            I(f"global_load_dword v26, v10, {sr(P_SRC,2)}")
            I(f"global_load_dword v26, v11, {sr(P_E,2)}")
        if OPT["tlb"] & 2:
            I(f"global_load_dword v26, v12, {sr(P_OUT,2)}")
            I("s_mov_b64 exec, 0xffff")
            I(f"v_mul_u32_u24 v8, {16*BIN_STRIDE}, v0")
            I(f"v_add_u32 v8, {hex(CELL_OFF + 32768)}, v8")
            I(f"global_load_dword v26, v8, {WS}")
        if OPT["tlb"] & 4:
            I("s_mov_b64 exec, -1")
            I("v_lshlrev_b32 v8, 16, v0")
            I("s_lshl_b32 s64, s2, 8")
            I("v_add_u32 v8, s64, v8")
            I(f"global_load_dword v26, v8, {WS}")
        if OPT["tlb"] & 8:
            I("s_mov_b64 exec, 0xffff")
            I(f"s_mul_i32 s64, s2, {BIN_STRIDE}")
            I(f"s_add_u32 s64, s64, {hex(CELL_OFF + 32768 + 128)}")
            I("v_lshl_add_u32 v8, v0, 2, s64")
            I(f"global_store_dword v8, v12, {WS} sc1")
        if OPT["tlb"] & 16:
            I("s_mov_b64 exec, -1")
            I(f"v_mul_u32_u24 v8, {2*BIN_STRIDE}, v0")
            I(f"v_add_u32 v8, {hex(CELL_OFF + 32768)}, v8")
            I(f"global_load_dword v26, v8, {WS}")
            I(f"v_add_u32 v8, {128*BIN_STRIDE}, v8")
            I(f"global_load_dword v26, v8, {WS}")
        I("s_mov_b64 exec, vcc")
        L("A_NOTLB")
    I("s_barrier")
    stamp(2)
    edge_loads(OPT["pre"], 3)
    if not OPT["cfirst"]:
        I("s_mov_b64 exec, -1")
        copy_consts()
        I("s_mov_b64 exec, vcc")
    binning(True)
    I("s_mov_b64 exec, -1")
    I("s_cmp_eq_u32 s3, 1")
    I("s_cbranch_scc0 A_JOIN")
    I("s_waitcnt lgkmcnt(0)")
    I("s_add_u32 s72, s72, 0x1000000")
    I("s_addc_u32 s73, s73, 0")
    I("s_and_b32 s72, s72, 0xff000000")
    for k in range(3):
        I(f"s_bfe_u32 s64, s73, {hex((2 << 16) | (2*k))}")
        I(f"s_lshl_b32 s64, s64, {6 + 8*k}")
        I("s_or_b32 s72, s72, s64")
        I(f"s_bfe_u32 s64, s73, {hex((2 << 16) | (6 + 2*k))}")
        I("s_lshl_b32 s64, s64, 14")
        I(f"v_mov_b32 v{TG+k}, s64")
    I(f"v_mov_b32 v{TG+3}, s72")
    I(f"ds_write_b128 v1, {vr(TG,4)} offset:{TAGS}")
    I("s_branch A_JOIN")
    L("A_NOE")
    I("s_barrier")
    I("s_mov_b64 exec, -1")
    if not OPT["cfirst"]:
        copy_consts()
    I("s_branch A_JOIN")

    XA, FA, FB, ACC1, ACC2 = 28, 36, 68, 104, 36
    L("G_ENTRY")
    if OPT["gprio"]:
        I("s_setprio 3")
    I("v_and_b32 v7, 7, v3")
    I("s_and_b32 s64, s3, 1")
    I("s_lshl_b32 s64, s64, 2")
    I("v_and_b32 v8, 2, v7")
    I("v_xor_b32 v8, v8, v2")
    I("v_xor_b32 v8, s64, v8")
    I("v_lshlrev_b32 v8, 4, v8")
    I("v_lshl_add_u32 v8, v7, 7, v8")
    I("s_and_b32 s65, s3, 3")
    I("s_lshl_b32 s65, s65, 11")
    I("v_add_u32 v8, s65, v8")
    I(f"s_add_u32 s65, s65, {W_OFF}")
    I("s_add_u32 s66, s3, 3")
    I("s_and_b32 s66, s66, 3")
    I("v_xor_b32 v9, v2, v7")
    I("v_lshlrev_b32 v9, 4, v9")
    I("v_lshl_add_u32 v9, v7, 15, v9")
    I("s_lshl_b32 s67, s66, 19")
    I("s_lshl_b32 s68, s2, 7")
    I("s_add_u32 s67, s67, s68")
    I("v_add_u32 v9, s67, v9")
    I("v_add_u32 v15, 0x40000, v9")
    I("s_lshl_b32 s67, s66, 11")
    I(f"s_mov_b32 s{S_X+2}, {N*128}")
    I(f"s_mov_b32 s{S_X+3}, 0x20000")
    I("s_mov_b32 m0, s67")
    I("s_waitcnt lgkmcnt(0)")
    stamp(24)
    if OPT["wsb"]:
        I(f"s_add_u32 s{P_WS}, s{P_WS}, {hex(OPT['wsb'] << 20)}")
        I(f"s_addc_u32 s{P_WS+1}, s{P_WS+1}, 0")
    I(f"s_mov_b64 {sr(S_X,2)}, {sr(P_X,2)}")
    I(f"buffer_load_dwordx4 v9, {sr(S_X,4)}, 0 offen lds")
    I("s_add_u32 m0, s67, 1024")
    I("s_nop 0")
    I(f"buffer_load_dwordx4 v15, {sr(S_X,4)}, 0 offen lds")
    def w_dma(p, off, va="v8", sd="s65"):
        I(f"s_add_u32 m0, {sd}, {off}")
        I("s_nop 0")
        I(f"global_load_lds_dwordx4 {va}, {sr(p,2)}")
        I(f"global_load_lds_dwordx4 {va}, {sr(p,2)} offset:1024")
    w_dma(P_WB, 0)
    w_dma(P_WV, 8192)
    lds_init()
    edge_addr()
    if OPT["gbar"]:
        I("s_waitcnt lgkmcnt(0)")
        I("s_barrier")
        stamp(2)
    I("s_cmp_eq_u32 s3, 12")
    I("s_cselect_b32 s74, 0xffff, 0")
    I("s_cmp_eq_u32 s2, 255")
    I("s_cselect_b32 s74, 0, s74")
    I("s_mov_b32 s75, 0")
    I("s_mov_b64 exec, s[74:75]")
    I("s_cbranch_execz G_NOE")
    edge_loads()
    L("G_NOE")
    I("s_mov_b64 exec, -1")
    I("v_mov_b32 v126, v8")
    I("v_lshlrev_b32 v100, 4, v2")
    I("s_mov_b32 s78, s65")
    I(f"s_mov_b64 {sr(S_X,2)}, {WS}")
    I(f"s_mov_b32 s{S_X+2}, {TAB_ROWS*256}")
    copy_consts()
    I("v_and_b32 v124, 15, v0")
    I("v_bfe_u32 v125, v0, 4, 2")
    I("v_and_b32 v8, 7, v124")
    I("v_lshlrev_b32 v9, 1, v125")
    I("v_xor_b32 v8, v8, v9")
    I("v_lshlrev_b32 v8, 4, v8")
    I("v_lshl_add_u32 v8, v124, 7, v8")
    I("v_add_u32 v8, s67, v8")
    I("v_xor_b32 v9, 16, v8")
    I("v_lshrrev_b32 v10, 2, v124")
    I("v_and_b32 v11, 2, v10")
    I("v_bfe_u32 v12, v0, 1, 1")
    I("v_or_b32 v11, v11, v12")
    I("v_and_b32 v12, 1, v125")
    I("v_lshl_or_b32 v11, v12, 2, v11")
    I("v_lshlrev_b32 v11, 4, v11")
    I("v_and_b32 v12, 1, v0")
    I("v_lshl_or_b32 v11, v12, 3, v11")
    I("v_lshl_add_u32 v10, v125, 4, v10")
    I("v_lshl_or_b32 v11, v10, 7, v11")
    I(f"v_add_u32 v12, {W_OFF}, v11")
    for T in range(1, 4):
        I(f"v_xor_b32 v{12+T}, {T << 5}, v12")
    I(f"s_mov_b32 s76, {hex(f32(-LOG2E))}")
    I("s_mov_b32 s77, 0x07060302")
    I(f"v_mov_b32 v26, {hex(f32(2.0**-70))}")
    I("s_lshl_b32 s64, s66, 20")
    I("s_lshl_b32 s65, s2, 8")
    I("s_add_u32 s64, s64, s65")
    I("v_lshlrev_b32 v27, 18, v125")
    I("v_lshl_add_u32 v27, v124, 4, v27")
    I("v_add_u32 v27, s64, v27")
    I("v_mov_b32 v10, 1")
    def g_sync(target, lab, arrive=True):
        if arrive:
            I("s_mov_b64 exec, 1")
            I(f"ds_add_u32 v1, v10 offset:{SYNC}")
            I("s_mov_b64 exec, -1")
        L(lab)
        I(f"ds_read_b32 v11, v1 offset:{SYNC}")
        I("s_waitcnt lgkmcnt(0)")
        I("v_readfirstlane_b32 s64, v11")
        I(f"s_cmp_lt_u32 s64, {target}")
        I(f"s_cbranch_scc1 {lab}")
    def frag_reads(F, moff):
        for T in range(4):
            for s in range(2):
                for h in range(2):
                    I(f"ds_read_b64_tr_b16 {vr(F + 8*T + 4*s + 2*h, 2)}, v{12+T} offset:{moff + (8*s+4*h)*128}")
    def mfmas(F, acc, swap, later):
        for T in range(4):
            I(f"s_waitcnt lgkmcnt({min(15, later + 4*(3-T))})")
            for s in range(2):
                a, b = vr(XA + 4*s, 4), vr(F + 8*T + 4*s, 4)
                if swap:
                    a, b = b, a
                c = "0" if s == 0 else vr(acc + 4*T, 4)
                I(f"v_mfma_f32_16x16x32_bf16 {vr(acc+4*T,4)}, {a}, {b}, {c}")
    if not OPT["gbar"]:
        I("s_waitcnt lgkmcnt(0)")
        I("s_barrier")
        stamp(2)
    I("s_cmp_eq_u64 s[74:75], 0")
    I("s_cbranch_scc1 G_W0")
    I("s_waitcnt vmcnt(3)")
    I("s_branch G_W1")
    L("G_W0")
    I("s_waitcnt vmcnt(0)")
    L("G_W1")
    stamp(3)
    g_sync(4, "G_S1")
    stamp(20)
    I(f"ds_read_b128 {vr(XA,4)}, v8")
    I(f"ds_read_b128 {vr(XA+4,4)}, v9")
    frag_reads(FA, 0)
    frag_reads(FB, 8192)
    stamp(21)
    w_dma(P_WA, 16384, "v126", "s78")
    w_dma(P_WU, 24576, "v126", "s78")
    I("s_cmp_eq_u32 s3, 13")
    I("s_cbranch_scc0 G_NOWC")
    I(f"s_mov_b32 m0, {WC_OFF}")
    I("s_mov_b64 exec, 0xff")
    I(f"global_load_lds_dwordx4 v100, {sr(P_WC,2)}")
    I("s_mov_b64 exec, -1")
    L("G_NOWC")
    stamp(22)
    mfmas(FA, ACC1, False, 16)
    mfmas(FB, ACC2, False, 0)
    stamp(23)
    ACCB, ACCV, OUTR = ACC1, ACC2, FB
    SD = sdwa("WORD_1")
    I("s_mov_b32 s80, 0x8000")
    I("s_mov_b32 s81, 0x8000")
    I(f"s_mov_b32 s68, {hex(f32(2.0**-100))}")
    I("s_mov_b32 s69, s68")
    I("v_mov_b32 v10, v26")
    I("v_mov_b32 v11, v26")
    I("s_nop 1")
    for rp in (0, 2):
        for t in range(4):
            I(f"v_pk_fma_f32 {vr(ACCB+4*t+rp,2)}, {vr(ACCB+4*t+rp,2)}, s[76:77], v[10:11] op_sel_hi:[1,0,1]")
        for t in (1, 3):
            I(f"v_pk_add_f32 {vr(ACCV+4*t+rp,2)}, {vr(ACCV+4*t+rp,2)}, s[68:69]")
        for t in range(4):
            I(f"v_lshl_add_u64 {vr(ACCB+4*t+rp,2)}, {vr(ACCB+4*t+rp,2)}, 0, s[80:81]")
        for t in range(4):
            I(f"v_lshl_add_u64 {vr(ACCV+4*t+rp,2)}, {vr(ACCV+4*t+rp,2)}, 0, s[80:81]")
        for r in (rp, rp + 1):
            for t in (0, 2):
                I(f"v_sub_u32_sdwa v{ACCB+4*t+r}, v{ACCB+4*t+r}, v{ACCV+4*t+r} clamp {SD}")
            for t in (0, 2):
                I(f"v_sub_u32_sdwa v{ACCV+4*(t+1)+r}, v{ACCV+4*(t+1)+r}, v{ACCB+4*t+r} clamp {SD}")
            for t in (0, 2):
                I(f"v_sub_u32_sdwa v{ACCB+4*(t+1)+r}, v{ACCB+4*(t+1)+r}, v{ACCV+4*(t+1)+r} clamp {SD}")
            for t in range(4):
                I(f"v_perm_b32 v{OUTR+4*r+t}, v{ACCB+4*t+r}, v{ACCV+4*t+r}, s77")
            if r == 0:
                I("s_cmp_eq_u32 s3, 12")
                I("s_cbranch_scc1 G_T3")
            else:
                I("v_add_u32 v27, 0x10000, v27")
            I(f"buffer_store_dwordx4 {vr(OUTR+4*r,4)}, v27, {sr(S_X,4)}, 0 offen sc1")
    stamp(4)
    L("G_BVD")
    I("s_waitcnt vmcnt(4)")
    I("s_branch G_DONE")
    L("G_T3")
    I("s_cmp_eq_u32 s2, 212")
    I("s_cbranch_scc0 G_NODUM")
    for t in range(4):
        I(f"v_mov_b32 v{OUTR+t}, 0x7f000000")
    L("G_NODUM")
    I(f"buffer_store_dwordx4 {vr(OUTR,4)}, v27, {sr(S_X,4)}, 0 offen sc1")
    I("s_waitcnt vmcnt(5)")
    I("s_mov_b64 exec, s[74:75]")
    I("s_cbranch_execz G_NOBIN")
    I("v_mov_b32 v126, v14")
    binning(False)
    I("v_mov_b32 v14, v126")
    L("G_NOBIN")
    I("s_mov_b64 exec, -1")
    I(f"ds_read_b128 {vr(XA,4)}, v8")
    I(f"ds_read_b128 {vr(XA+4,4)}, v9")
    stamp(4)
    I("s_waitcnt vmcnt(1)")
    L("G_DONE")
    if OPT["drain"]:
        I("s_waitcnt vmcnt(0)")
    if OPT["gprio"] and not OPT["cprio"]:
        I("s_setprio 0")
    stamp(5)

    L("A_JOIN")
    if OPT["cprio"]:
        I("s_setprio 3")
    I("s_waitcnt lgkmcnt(0)")
    stamp(6)
    I("s_barrier")
    stamp(7)
    C0 = 68
    I(f"ds_read_b128 {vr(TG,4)}, v1 offset:{TAGS}")
    I(f"ds_read2st64_b32 v[8:9], v5 offset0:{C1_OFF//256} offset1:{C1_OFF//256+2}")
    I(f"ds_read_b128 {vr(C0,4)}, v4 offset:{IMG}")
    I(f"ds_read_b128 {vr(C0+4,4)}, v4 offset:{IMG+B2}")
    def tagit(c):
        for k in range(3):
            I(f"v_bfi_b32 v{c+k}, s40, v{TG+k}, v{c+k}")
        I(f"v_or_b32 v{c+3}, v{TG+3}, v{c+3}")
    I("s_waitcnt lgkmcnt(2)")
    I("v_cmp_le_u32 s[72:73], v102, v8")
    I("v_cmp_le_u32 s[74:75], v102, v9")
    I("v_max_u32 v10, v8, v9")
    I("v_cmp_le_u32 vcc, s39, v10")
    def cell_store(k):
        I(f"s_mov_b64 exec, s[{72+2*k}:{73+2*k}]")
        I(f"global_store_dwordx4 v{6+k}, {vr(C0+4*k,4)}, {WS} sc1")
    if OPT["gl"]:
        I("s_cmp_ge_u32 s3, 12")
        I("s_waitcnt lgkmcnt(1)")
        tagit(C0)
        I("s_cbranch_scc1 A_GL1")
        cell_store(0)
        I("s_mov_b64 exec, -1")
        L("A_GL1")
        I("s_waitcnt lgkmcnt(0)")
        tagit(C0 + 4)
        I("s_cbranch_scc1 A_GL2")
        cell_store(1)
        L("A_GL2")
    else:
        I("s_waitcnt lgkmcnt(1)")
        tagit(C0)
        cell_store(0)
        I("s_mov_b64 exec, s[74:75]")
        I("s_waitcnt lgkmcnt(0)")
        tagit(C0 + 4)
        I(f"global_store_dwordx4 v7, {vr(C0+4,4)}, {WS} sc1")
    I("s_cbranch_vccnz R_PUB2")
    L("A_PUBD")
    I("s_mov_b64 exec, -1")
    if OPT["cprio"]:
        I("s_setprio 0")
    stamp(8)
    I("s_cmp_ge_u32 s3, 12")
    I("s_cbranch_scc0 B_NOAU")
    I("s_setprio 1")
    FU, FW, UU = 36, 84, 52
    def half_gemm(moff, acc, swap):
        for T in range(4):
            F = (FU if T < 2 else FW) + 8 * (T & 1)
            for s in range(2):
                for h in range(2):
                    I(f"ds_read_b64_tr_b16 {vr(F + 4*s + 2*h, 2)}, v{12+T} offset:{moff + (8*s+4*h)*128}")
        for T in range(4):
            F = (FU if T < 2 else FW) + 8 * (T & 1)
            I(f"s_waitcnt lgkmcnt({4*(3-T)})")
            for s in range(2):
                a, b = vr(XA + 4*s, 4), vr(F + 4*s, 4)
                if swap:
                    a, b = b, a
                c = "0" if s == 0 else vr(acc + 4*T, 4)
                I(f"v_mfma_f32_16x16x32_bf16 {vr(acc+4*T,4)}, {a}, {b}, {c}")
    half_gemm(16384, AP, False)
    if not OPT["drain"]:
        I(f"s_lshl_b32 s64, s2, {OPT['fs']-2}")
        I("s_add_u32 s64, s64, s66")
        I("s_lshl_b32 s64, s64, 2")
        I(f"s_add_u32 s64, s64, {hex(FLG_OFF)}")
        I("v_mov_b32 v26, s64")
        I(f"s_waitcnt vmcnt({0 if OPT['gl'] else 2})")
        stamp(29)
        if OPT["gl"] and OPT["fl"]:
            cell_store(0)
            cell_store(1)
        I("s_mov_b64 exec, 1")
        I(f"global_store_dword v26, v{TG+3}, {WS} sc1")
        if OPT["gl"] and not OPT["fl"]:
            cell_store(0)
            cell_store(1)
        I("s_mov_b64 exec, -1")
    half_gemm(24576, UU, True)
    I(f"s_mul_i32 s65, s66, {16*EAU_STRIDE}")
    I(f"s_add_u32 s65, s65, {EAU_OFF}")
    I(f"v_mul_u32_u24 v26, {4*EAU_STRIDE}, v125")
    I("v_lshl_add_u32 v26, v124, 4, v26")
    I("v_add_u32 v25, s65, v26")
    I(f"v_mul_u32_u24 v27, {EAU_STRIDE}, v124")
    I("v_lshl_add_u32 v27, v125, 4, v27")
    I("v_add_u32 v27, s65, v27")
    for i in range(16):
        I(f"v_mul_f32 v{AP+i}, s76, v{AP+i}")
    I("s_cmp_eq_u32 s3, 12")
    I("s_cselect_b32 exec_lo, 0x000f000f, -1")
    I("s_cselect_b32 exec_hi, 0x000f000f, -1")
    for T in range(4):
        I(f"ds_write_b128 v27, {vr(UU+4*T,4)} offset:{256 + T*64}")
    I("s_cselect_b32 exec_hi, 0, -1")
    I("s_cselect_b32 exec_lo, 0xffff, -1")
    I(f"v_max3_f32 v26, |v{AP}|, |v{AP+1}|, |v{AP+2}|")
    for i in range(3, 15, 2):
        I(f"v_max3_f32 v26, |v{AP+i}|, |v{AP+i+1}|, v26")
    I(f"v_max_f32 v26, |v{AP+15}|, v26")
    I(f"v_cmp_nge_f32 vcc, {hex(f32(63.0))}, v26")
    EAT = 36
    for r in range(4):
        for t in range(4):
            I(f"v_add_f32 v{EAT+4*r+t}, {hex(f32(-float(KEXP)))}, v{AP+4*t+r}")
        for t in range(4):
            I(f"ds_write_b32 v25, v{AP+4*t+r} offset:{r*EAU_STRIDE + 512 + 4*t}")
            I(f"v_exp_f32 v{EAT+4*r+t}, v{EAT+4*r+t}")
        I("s_nop 0")
        I(f"ds_write_b128 v25, {vr(EAT+4*r,4)} offset:{r*EAU_STRIDE}")
        if r == 0:
            I("s_cbranch_scc1 G_EAD")
    L("G_EAD")
    I("s_mov_b64 exec, -1")
    I("s_cmp_lg_u64 vcc, 0")
    I("s_cselect_b32 s79, 1, 0")
    if OPT["cad"]:
        I("s_branch B_CONST")
    L("B_NOAU")
    if OPT["cad"]:
        I("s_waitcnt vmcnt(0)")
    L("B_CONST")

    RA, CA, KA, RB, CB, KB = 8, 24, 36, 64, 72, 78
    XB, Y, A = 48, 80, 100
    IP = (96, 98, 104, 106)
    UR, XR, VOUT, VU, LP, EP = 108, 112, 116, 117, 118, 120
    WCB, DEN, NUM, VOOB, C4, VRA, VSE, EA, P, Q, SS, LC = 16, 20, 44, 30, 31, 42, 32, 12, 24, 8, 36, 4
    I("v_and_b32 v5, 63, v0")
    I("s_cmp_lt_u32 s2, 212")
    I("s_cselect_b32 s64, 49, 48")
    I("v_cmp_gt_u32 s[82:83], s64, v5")
    I("v_lshlrev_b32 v5, 2, v5")
    I(f"v_and_b32 v{LC}, 15, v0")
    I(f"v_lshlrev_b32 v6, 1, v{LC}")
    for j in range(4):
        I(f"ds_read_u16 v{WCB+j}, v6 offset:{WC_OFF + 32*j}")
    I(f"v_lshlrev_b32 v{LC}, 4, v{LC}")
    I(f"v_mov_b32 v{C4}, 4")
    I(f"v_mov_b32 v{VOOB}, {OOB}")
    for p_ in IP:
        I(f"v_mov_b32 v{p_+1}, v{LC}")
    I(f"v_lshlrev_b32 v{LP}, 1, v6")
    I(f"v_mov_b32 v{LP+1}, v{LC}")
    I("v_lshrrev_b32 v7, 4, v0")
    I(f"v_mul_u32_u24 v{VU}, {EAU_STRIDE}, v7")
    I(f"s_mov_b32 s64, {EAU_OFF + 256}")
    I(f"v_add3_u32 v{VU}, v{VU}, s64, v{LC}")
    I("v_lshlrev_b32 v8, 2, v6")
    I("v_and_b32 v9, 0x70, v0")
    I("v_xor_b32 v9, v8, v9")
    I("v_lshl_add_u32 v9, v7, 7, v9")
    I(f"ds_read_b64 {vr(XR+2,2)}, v9 offset:{X_OFF}")
    I(f"v_lshl_add_u32 v{VOUT}, v7, 15, v8")
    I("s_lshl_b32 s64, s2, 7")
    I(f"v_add_u32 v{VOUT}, s64, v{VOUT}")
    srd(S_X, P_OUT, N * 128)
    for d in range(0, 4, 2):
        I(f"v_mov_b64 {vr(A+d,2)}, 0")
        I(f"v_mov_b64 {vr(DEN+d,2)}, 0")
        I(f"v_mov_b64 {vr(NUM+d,2)}, 0")
    I("s_mov_b64 s[68:69], -1")
    I("s_mov_b64 s[70:71], -1")
    I("s_cmp_lt_u32 s3, 4")
    I("s_cselect_b32 s78, 2, 0")
    I(f"s_mov_b32 s16, {hex(f32(2.0**-KEXP))}")
    I("s_mov_b32 s17, s16")
    I(f"s_mov_b32 s18, {hex(f32(1e-6 * 2.0**KEXP))}")
    I("s_mov_b32 s19, s18")
    I("s_mov_b32 s20, 32")
    I("s_mov_b32 s21, 32")
    I(f"s_mov_b32 s24, {SLOT_STRIDE}")
    I(f"s_mov_b32 s25, {EAU_STRIDE}")
    I(f"s_mov_b32 s85, {LIST_OFF}")
    I("s_mov_b32 s56, 0x11111111")
    I("s_mov_b32 s57, s56")
    I("s_lshl_b64 s[58:59], s[56:57], 1")
    I("s_lshl_b64 s[60:61], s[56:57], 2")
    I("s_lshl_b64 s[62:63], s[56:57], 3")
    I("v_bfe_u32 v124, v0, 4, 2")
    I("v_bfe_u32 v125, v0, 5, 1")
    I("v_bfe_u32 v126, v0, 2, 1")
    I("v_lshl_add_u32 v125, v126, 1, v125")
    I("v_bfe_u32 v126, v0, 3, 2")
    I("v_lshlrev_b32 v126, 2, v126")
    I("v_bfe_u32 v34, v0, 2, 3")
    I("s_lshl_b32 s64, s3, 3")
    I("s_sub_u32 s64, s2, s64")
    I("v_sub_u32 v34, s64, v34")
    I("v_and_b32 v34, 127, v34")
    I("v_and_b32 v35, 32, v0")
    I("v_lshl_add_u32 v34, v35, 2, v34")
    I("v_and_b32 v35, 3, v0")
    if OPT["pf"] or OPT["pf2"] or OPT["pf3"] or OPT["pf4"]:
        I("v_lshlrev_b32 v33, 8, v34")
        I("v_lshl_add_u32 v33, v35, 20, v33")
        I("s_lshr_b32 s64, s2, 4")
        I("s_lshl_b32 s64, s64, 16")
        I("s_bfe_u32 s65, s2, 0x10003")
        I("s_lshl_b32 s65, s65, 7")
        I("s_add_u32 s64, s64, s65")
        I("v_add_u32 v33, s64, v33")
    if OPT["pf5"]:
        I("v_lshlrev_b32 v33, 8, v34")
        I("v_and_b32 v32, 1, v35")
        I("v_lshl_add_u32 v33, v32, 7, v33")
        I("v_lshrrev_b32 v32, 1, v35")
        I("v_lshl_add_u32 v33, v32, 16, v33")
        I("s_sub_u32 s64, s3, 13")
        I("s_lshl_b32 s64, s64, 20")
        I("s_lshr_b32 s65, s2, 7")
        I("s_lshl_b32 s65, s65, 19")
        I("s_add_u32 s64, s64, s65")
        I("v_add_u32 v33, s64, v33")
    I(f"v_lshlrev_b32 v34, {OPT['fs']}, v34")
    I("v_lshl_add_u32 v34, v35, 2, v34")
    I(f"v_add_u32 v34, {hex(FLG_OFF)}, v34")
    I(f"s_mov_b32 s64, {hex(f32(-LOG2E))}")
    I("s_mov_b32 s66, 0x0000ffff")
    I("s_mov_b32 s67, 0xffff0000")
    I("s_waitcnt lgkmcnt(0)")
    for j in range(4):
        I(f"v_lshlrev_b32 v{WCB+j}, 16, v{WCB+j}")
    for j in range(4):
        I(f"v_mul_f32 v{WCB+j}, s64, v{WCB+j}")
    for j in range(4):
        I(f"v_cvt_pk_bf16_f32 v{WCB+j}, 0, v{WCB+j}")
    for j in range(4):
        I(f"v_cndmask_b32 v{WCB+j}, 0, v{WCB+j}, s[66:67]")
    I(f"v_lshlrev_b32 v{XR}, 16, v{XR+2}")
    I(f"v_and_b32 v{XR+1}, 0xffff0000, v{XR+2}")
    I(f"v_lshlrev_b32 v{XR+2}, 16, v{XR+3}")
    I(f"v_and_b32 v{XR+3}, 0xffff0000, v{XR+3}")
    I("s_setprio 0")
    if OPT["fl"]:
        I("s_waitcnt vmcnt(1)")
        I("s_cmp_ge_u32 s3, 12")
        I("s_cbranch_scc1 B_DRD")
    I("s_waitcnt vmcnt(0)")
    L("B_DRD")
    if OPT["dbar"]:
        I("s_barrier")
    if OPT["delay"]:
        I(f"s_sleep {OPT['delay']}")
    stamp(9)
    I(f"global_load_dwordx4 {vr(RA,4)}, v2, {WS} sc1")
    I(f"global_load_dwordx4 {vr(RA+4,4)}, v3, {WS} sc1")

    def poll(R_, first, name):
        L(name)
        I("s_waitcnt vmcnt(0)")
        for k in range(2):
            I(f"s_mov_b64 exec, s[{68+2*k}:{69+2*k}]")
            for j in range(4):
                I(f"v_xor_b32 v{R_+4*k+j}, v{TG+j}, v{R_+4*k+j}")
        I("s_mov_b64 exec, -1")
        for k in range(2):
            r = R_ + 4 * k
            I(f"v_or3_b32 v{6+k}, v{r}, v{r+1}, v{r+2}")
            I(f"v_and_b32 v{6+k}, s40, v{6+k}")
            I(f"v_and_or_b32 v{6+k}, v{r+3}, s41, v{6+k}")
            I(f"v_cmp_ne_u32 s[{68+2*k}:{69+2*k}], 0, v{6+k}")
            I(f"v_cmp_gt_u32 s[{64+2*k}:{65+2*k}], s42, v{r+3}")
        if first:
            for k in range(2):
                I(f"s_andn2_b64 s[{64+2*k}:{65+2*k}], s[{64+2*k}:{65+2*k}], s[{68+2*k}:{69+2*k}]")
                I(f"s_lshl_b64 s[{74+2*k}:{75+2*k}], s[{64+2*k}:{65+2*k}], 1")
                I(f"s_or_b64 s[{74+2*k}:{75+2*k}], s[{74+2*k}:{75+2*k}], s[36:37]")
        I("s_and_b64 s[72:73], s[68:69], s[74:75]")
        I("s_and_b64 s[80:81], s[70:71], s[76:77]")
        I("s_or_b64 s[72:73], s[72:73], s[80:81]")
        I(f"s_cbranch_scc1 {name}_RETRY")
    def retry(R_, first, name):
        L(name + "_RETRY")
        if first:
            for k in range(4):
                I(f"s_and_b32 s72, s{68+k}, s{74+k}")
                I("s_lshl_b32 s73, s72, 1")
                I("s_or_b32 s72, s72, s73")
                I("s_lshl_b32 s73, s72, 2")
                I("s_or_b32 s72, s72, s73")
                I("s_lshl_b32 s73, s72, 4")
                I("s_or_b32 s72, s72, s73")
                I(f"s_and_b32 s{68+k}, s{68+k}, s72")
        else:
            I("s_and_b64 s[68:69], s[68:69], s[74:75]")
            I("s_and_b64 s[70:71], s[70:71], s[76:77]")
        I("s_add_u32 s43, s43, 1")
        I(f"s_cmp_gt_u32 s43, {POLL_LIMIT}")
        I("s_cbranch_scc1 R_TIMEOUT")
        if OPT["sleep"]:
            I(f"s_sleep {OPT['sleep']}")
        reload(R_, name)
        I(f"s_branch {name}")
    def reload(R_, name):
        I("s_mov_b64 exec, s[68:69]")
        I(f"s_cbranch_execz {name}_1")
        I(f"global_load_dwordx4 {vr(R_,4)}, v2, {WS} sc1")
        L(name + "_1")
        I("s_mov_b64 exec, s[70:71]")
        I(f"s_cbranch_execz {name}_2")
        I(f"global_load_dwordx4 {vr(R_+4,4)}, v3, {WS} sc1")
        L(name + "_2")
    def ranks(R_, C_, K_, M_):
        for k in range(2):
            for j in range(3):
                I(f"v_lshlrev_b32_sdwa v{C_+3*k+j}, 2, v{R_+4*k+3} {sdwa('BYTE_'+str(j))}")
        for k in range(2):
            I(f"s_mov_b64 exec, s[{74+2*k}:{75+2*k}]")
            for j in range(3):
                m = M_ + 2 * (3 * k + j)
                I(f"v_cmp_gt_u32_sdwa s[{m}:{m+1}], 49, v{R_+4*k+3} src0_sel:DWORD src1_sel:BYTE_{j}")
            for j in range(3):
                m = M_ + 2 * (3 * k + j)
                I(f"s_mov_b64 exec, s[{m}:{m+1}]")
                I(f"ds_add_rtn_u32 v{K_+3*k+j}, v{C_+3*k+j}, v{C4} offset:{C2_OFF}")
        I("s_mov_b64 exec, -1")
    def more_test():
        I("s_and_b64 s[64:65], s[64:65], s[74:75]")
        I("s_and_b64 s[66:67], s[66:67], s[76:77]")
        I("s_or_b64 s[72:73], s[64:65], s[66:67]")
        I("s_or_b32 s72, s72, s73")
        I("s_and_b32 s72, s72, 0x80808080")
    MA, MB = 44, 4

    def pf5(lab):
        I("s_cmp_ge_u32 s3, 13")
        I(f"s_cbranch_scc0 {lab}")
        for k in range(OPT["pf5"]):
            if k:
                I("v_add_u32 v33, 0x20000, v33")
            I(f"global_load_dword v84, v33, {WS} sc1")
        L(lab)
    poll(RA, True, "B_P0")
    stamp(10)
    if OPT["ef"]:
        I(f"global_load_dword v35, v34, {WS} sc1")
    ranks(RA, CA, KA, MA)
    more_test()
    I("s_or_b32 s72, s72, s79")
    I("s_cbranch_scc1 R_MORE")
    L("B_RDONE")
    if OPT["stamp"]:
        I("v_writelane_b32 v127, s43, 19")
    I("s_waitcnt lgkmcnt(0)")
    I("s_barrier")
    stamp(11)
    I(f"ds_read_b32 v6, v5 offset:{C2_OFF}")
    if OPT["drain"]:
        if OPT["pf4"]:
            I(f"s_sub_u32 s71, s3, {OPT['pfw']}")
            I(f"s_cmp_lt_u32 s71, {OPT['pf4']}")
            I("s_cbranch_scc0 B_NOPF4")
            I("s_andn2_b64 exec, exec, s[62:63]")
            I(f"global_load_dword v84, v33, {WS} sc1")
            I("s_mov_b64 exec, -1")
            L("B_NOPF4")
    elif not OPT["ef"]:
        I(f"global_load_dword v35, v34, {WS} sc1")
        if OPT["pf5"] and not OPT["pfa"]:
            pf5("B_NOPF5")
    elif OPT["pf"]:
        I("s_sub_u32 s64, s3, 4")
        I(f"s_cmp_lt_u32 s64, {OPT['pf']}")
        I("s_cbranch_scc0 B_NOPF")
        I("s_waitcnt vmcnt(0)")
        I(f"v_cmp_eq_u32 vcc, v{TG+3}, v35")
        I("s_mov_b64 exec, vcc")
        I("s_cbranch_execz B_NOPF0")
        I(f"global_load_dword v84, v33, {WS} sc1")
        L("B_NOPF0")
        I("s_mov_b64 exec, -1")
        L("B_NOPF")
    I("s_waitcnt lgkmcnt(0)")
    I("v_add_u32 v2, 7, v6")
    I("v_and_b32 v2, -8, v2")
    I("v_max_u32 v2, 8, v2")
    I("v_cndmask_b32 v2, 0, v2, s[82:83]")
    if OPT["pf5"] and OPT["pfa"]:
        pf5("B_NOPF5")
    I("v_mov_b32 v3, v2")
    for d in ("row_shr:1 row_mask:0xf", "row_shr:2 row_mask:0xf", "row_shr:4 row_mask:0xf",
              "row_shr:8 row_mask:0xf", "row_bcast:15 row_mask:0xa", "row_bcast:31 row_mask:0xc"):
        I("s_nop 1")
        I(f"v_add_u32_dpp v3, v3, v3 {d} bank_mask:0xf")
    I("v_sub_u32 v7, v3, v2")
    I(f"ds_write_b32 v5, v7 offset:{BASE}")
    I("v_readlane_b32 s64, v3, 63")
    def lookup(C_):
        for i in range(6):
            I(f"ds_read_b32 v{C_+i}, v{C_+i} offset:{BASE}")
    def scatter(R_, C_, K_, M_):
        for i in range(6):
            if i % 3 == 0:
                I(f"s_waitcnt lgkmcnt({3-i})")
            I(f"v_add3_u32 v{C_+i}, v{C_+i}, v{K_+i}, s85")
        for i in range(6):
            I(f"s_mov_b64 exec, s[{M_+2*i}:{M_+2*i+1}]")
            I(f"ds_write_b32 v{C_+i}, v{R_+4*(i//3)+i%3}")
        I("s_mov_b64 exec, -1")
    lookup(CA)
    I("s_add_u32 s65, s64, 31")
    I("s_lshr_b32 s66, s65, 9")
    I("s_bfe_u32 s67, s65, 0x40005")
    I("s_mul_i32 s68, s66, s3")
    I("s_min_u32 s69, s67, s3")
    I("s_add_u32 s68, s68, s69")
    I("s_lshl_b32 s68, s68, 5")
    I("s_cmp_lt_u32 s3, s67")
    I("s_addc_u32 s72, s66, 0")
    I("s_lshl_b32 s69, s72, 3")
    I("s_add_u32 s70, s68, s85")
    if OPT["pf3"]:
        I(f"s_sub_u32 s71, s3, {OPT['pfw']}")
        I(f"s_cmp_lt_u32 s71, {OPT['pf3']}")
        I("s_cbranch_scc0 B_NOPF3")
        I("s_waitcnt vmcnt(0)")
        I(f"v_cmp_eq_u32 vcc, v{TG+3}, v35")
        I("s_andn2_b64 exec, vcc, s[62:63]")
        I("s_cbranch_execz B_NOPF30")
        I(f"global_load_dword v84, v33, {WS} sc1")
        L("B_NOPF30")
        I("s_mov_b64 exec, -1")
        L("B_NOPF3")
    scatter(RA, CA, KA, MA)
    I(f"v_mul_u32_u24 v{VRA}, s69, v124")
    I(f"v_mul_u32_u24 v{VRA+1}, s69, v125")
    I(f"v_add_u32 v{VRA}, s70, v{VRA}")
    I(f"v_add3_u32 v{VRA+1}, v{VRA+1}, s70, v126")
    if OPT["pf"] and OPT["ef"]:
        I("s_sub_u32 s71, s3, 4")
        I(f"s_cmp_lt_u32 s71, {OPT['pf']}")
        I("s_cbranch_scc1 B_FLW")
    if OPT["pf3"]:
        I(f"s_cmp_lt_u32 s71, {OPT['pf3']}")
        I("s_cbranch_scc1 B_FLW")
    if not OPT["drain"]:
        if OPT["pf5"]:
            I(f"s_waitcnt vmcnt({OPT['pf5']})")
            I("s_cmp_ge_u32 s3, 13")
            I("s_cbranch_scc1 B_FLW")
        I("s_waitcnt vmcnt(0)")
        L("B_FLW")
        I(f"v_cmp_ne_u32 vcc, v{TG+3}, v35")
    I("s_cmp_lg_u32 s78, 0")
    I("s_cbranch_scc1 R_EXTRA")
    L("B_XDONE")
    if not OPT["drain"]:
        I("s_cbranch_vccnz R_FLAGS")
    L("B_FDONE")
    if OPT["pf2"]:
        I(f"s_cmp_lt_u32 s3, {OPT['pf2']}")
        I("s_cbranch_scc0 B_NOPF2")
        I(f"global_load_dword v84, v33, {WS} sc1")
        L("B_NOPF2")
    I("s_waitcnt lgkmcnt(0)")
    I("s_barrier")
    stamp(12)
    def i_reads(batch, lo=0, hi=4):
        for i in range(lo, hi):
            I(f"ds_read_u16 v{IP[i]}, v{VRA} offset:{16*batch + 4*i}")
    def a_reads(batch):
        for d in range(4):
            I(f"s_mov_b64 exec, s[{56+2*d}:{57+2*d}]")
            I(f"ds_read_b32 v{A+d}, v{VRA+1} offset:{16*batch}")
        I("s_mov_b64 exec, -1")
    def gathers(x, lo, hi):
        for i in range(lo, hi):
            I(f"buffer_load_dwordx4 {vr(x+4*i,4)}, {vr(IP[i],2)}, {sr(S_TAB,4)}, 0 idxen offen {OPT['gsc'] if OPT['gsc'] != 'none' else ''}")
    i_reads(0)
    I("v_and_b32 v9, 0x3f0, v0")
    I(f"ds_read_b128 {vr(VSE,4)}, v9 offset:{STR}")
    I(f"ds_read_b32 v8, v1 offset:{FLAG}")
    if OPT["prio"]:
        I("s_setprio 3")
    I("s_waitcnt lgkmcnt(2)")
    gathers(XB, 0, 4)
    stamp(13)
    i_reads(1)
    I(f"ds_read_b128 {vr(EP,4)}, v9 offset:{EPI}")
    I(f"ds_read_b128 {vr(UR,4)}, v{VU}")
    I("s_waitcnt lgkmcnt(6)")
    I("v_readfirstlane_b32 s80, v8")
    I(f"v_lshl_add_u64 {vr(VSE,2)}, {vr(VSE,2)}, 0, {vr(LP,2)}")
    I(f"ds_read_b128 {vr(EA,4)}, v{VSE+1}")
    for q in range(4):
        I(f"v_readlane_b32 s{44+q}, v{VSE+2}, {16*q}")
    I(f"s_cmp_gt_u32 s64, {LIST_MAX}")
    I("s_cselect_b32 s81, 1, 0")
    I("s_or_b32 s80, s80, s81")
    if OPT["force_slow"]:
        I("s_branch K_SLOW")
    I("s_cbranch_scc1 K_SLOW")
    a_reads(0)
    for q in range(4):
        if OPT["cut"] & 8:
            I(f"s_mov_b32 s{44+q}, 0")
        I(f"s_bitset1_b32 s{44+q}, s72")
    I("s_or_b32 s82, s44, s45")
    I("s_or_b32 s83, s46, s47")
    I("s_or_b32 s82, s82, s83")
    if OPT["fp"]:
        th = [int(x) for x in str(OPT["fp"]).split("_")]
        I(f"s_lshl_b32 s81, 1, s72")
        for t_ in th:
            I(f"s_lshr_b32 s80, s81, {t_}")
            I("s_or_b32 s82, s82, s80")
    I("s_bfm_b32 s83, s72, 0")
    I("s_lshr_b32 s83, s83, 4")
    I("s_mov_b32 s73, 0")
    I("s_waitcnt lgkmcnt(5)")
    gathers(XB + 16, 0, 4)
    i_reads(2)
    for k in range(3):
        I(f"v_add_u32 v{EP+k}, v{EP+k}, v{LC}")
    I(f"v_cmp_lt_i32 s[48:49], 2, v{EP+3}")
    I("s_cmp_eq_u32 s72, 0")
    I("s_cbranch_scc1 K_JOIN")
    def mfma(x):
        I(f"v_mfma_f32_32x32x16_bf16 {vr(Y,16)}, {vr(A,4)}, {vr(WCB,4)}, {vr(x,16)}")
    stamp(14)
    I("s_waitcnt vmcnt(4) lgkmcnt(4)")
    mfma(XB)
    stamp(15)
    a_reads(1)
    nth = len(str(OPT["prio"]).split("_")) if OPT["prio"] else 0
    if OPT["prio"]:
        I(f"s_setprio {nth}")
    I("s_nop 2")
    L("K_LOOP")
    if OPT["prio"] and not OPT["fp"]:
        I("s_sub_u32 s74, s72, s73")
        for k, t_ in enumerate(int(x) for x in str(OPT["prio"]).split("_")):
            I(f"s_cmp_gt_u32 s74, {t_}")
            I("s_cbranch_scc1 K_STEP0")
            I(f"s_setprio {nth-1-k}")
    for u in range(4):
        bb, hh = u >> 1, u & 1
        x = XB + 16 * bb + 8 * hh
        t = Y + 8 * hh
        L(f"K_STEP{u}")
        for i in range(8):
            I(f"v_exp_f32 v{t+i}, v{t+i}")
        for i in range(4):
            I(f"v_lshlrev_b64 {vr(x+2*i,2)}, 16, {vr(x+2*i,2)}")
        for i in range(4):
            I(f"v_pk_fma_f32 {vr(t+2*i,2)}, {vr(t+2*i,2)}, {vr(EA+2*(i&1),2)}, s[16:17] clamp")
        I(f"v_pk_mul_f32 {vr(P,2)}, {vr(t,2)}, {vr(t+4,2)}")
        I(f"v_pk_mul_f32 {vr(P+2,2)}, {vr(t+2,2)}, {vr(t+6,2)}")
        I(f"v_pk_mul_f32 {vr(Q,2)}, {vr(x,2)}, {vr(t+4,2)}")
        I(f"v_pk_mul_f32 {vr(Q+2,2)}, {vr(x+2,2)}, {vr(t+6,2)}")
        I(f"v_pk_add_f32 {vr(SS,2)}, {vr(t,2)}, {vr(t+4,2)}")
        I(f"v_pk_add_f32 {vr(SS+2,2)}, {vr(t+2,2)}, {vr(t+6,2)}")
        I(f"v_pk_fma_f32 {vr(Q,2)}, {vr(x+4,2)}, {vr(t,2)}, {vr(Q,2)}")
        I(f"v_pk_fma_f32 {vr(Q+2,2)}, {vr(x+6,2)}, {vr(t+2,2)}, {vr(Q+2,2)}")
        if OPT["sup"]:
            I(f"s_bitcmp1_b32 s83, {u}")
            I(f"s_cselect_b32 s{S_TAB+2}, s{S_TAB+2}, 0")
        if hh == 0:
            I("s_waitcnt lgkmcnt(0)")
            if not OPT["cut"] & 4:
                gathers(XB + 16 * bb, 0, 2)
            for i in range(4):
                I(f"v_rcp_f32 v{P+i}, v{P+i}")
        else:
            I("s_waitcnt vmcnt(2)")
            if not OPT["cut"] & 1:
                mfma(XB + 16 * (1 - bb))
            for i in range(4):
                I(f"v_rcp_f32 v{P+i}, v{P+i}")
            if not OPT["cut"] & 4:
                gathers(XB + 16 * bb, 2, 4)
        I(f"v_pk_fma_f32 {vr(NUM,2)}, {vr(Q,2)}, {vr(P,2)}, {vr(NUM,2)}")
        I(f"v_pk_fma_f32 {vr(DEN,2)}, {vr(SS,2)}, {vr(P,2)}, {vr(DEN,2)}")
        I(f"v_pk_fma_f32 {vr(NUM+2,2)}, {vr(Q+2,2)}, {vr(P+2,2)}, {vr(NUM+2,2)}")
        I(f"v_pk_fma_f32 {vr(DEN+2,2)}, {vr(SS+2,2)}, {vr(P+2,2)}, {vr(DEN+2,2)}")
        if hh == 1:
            if not OPT["cut"] & 4:
                i_reads(bb + 3)
            if not OPT["cut"] & 2:
                a_reads(bb + 2)
        I(f"s_bitcmp1_b32 s82, {u+1}")
        I(f"s_cbranch_scc1 K_FLUSH{u}")
        L(f"K_BACK{u}")
    I(f"v_lshl_add_u64 {vr(VRA,2)}, {vr(VRA,2)}, 0, s[20:21]")
    I("s_lshr_b32 s82, s82, 4")
    I("s_lshr_b32 s83, s83, 4")
    I("s_add_u32 s73, s73, 4")
    I("s_branch K_LOOP")
    for u in range(4):
        L(f"K_FLUSH{u}")
        I(f"s_add_u32 s74, s73, {u+1}")
        for h in range(2):
            I(f"s_bitcmp1_b32 s{44+2*h}, s74")
            I("s_cselect_b32 s75, 0xffff, 0")
            I(f"s_bitcmp1_b32 s{45+2*h}, s74")
            I("s_cselect_b32 s80, 0xffff0000, 0")
            I(f"s_or_b32 {'exec_hi' if h else 'exec_lo'}, s75, s80")
        if OPT["fp"]:
            I("s_sub_u32 s75, s72, s74")
            for k, t_ in enumerate(th):
                I(f"s_cmp_gt_u32 s75, {t_}")
                I(f"s_cbranch_scc1 K_FP{u}")
                I(f"s_setprio {len(th)-1-k}")
            L(f"K_FP{u}")
            I(f"s_cbranch_execz K_FQ{u}")
        I(f"ds_write2_b32 v{VSE}, v{DEN}, v{DEN+1} offset0:0 offset1:16")
        I(f"ds_write2_b32 v{VSE}, v{DEN+2}, v{DEN+3} offset0:32 offset1:48")
        I(f"ds_write2_b32 v{VSE}, v{NUM}, v{NUM+1} offset0:64 offset1:80")
        I(f"ds_write2_b32 v{VSE}, v{NUM+2}, v{NUM+3} offset0:96 offset1:112")
        I("s_cmp_eq_u32 s74, s72")
        I("s_cbranch_scc1 K_JOIN")
        I(f"v_lshl_add_u64 {vr(VSE,2)}, {vr(VSE,2)}, 0, s[24:25]")
        I(f"ds_read_b128 {vr(DEN,4)}, v{VOOB}")
        I(f"ds_read_b128 {vr(NUM,4)}, v{VOOB}")
        I(f"ds_read_b128 {vr(EA,4)}, v{VSE+1}")
        I("s_waitcnt lgkmcnt(0)")
        L(f"K_FQ{u}")
        I("s_mov_b64 exec, -1")
        I(f"s_branch K_BACK{u}")

    L("K_JOIN")
    I("s_mov_b64 exec, -1")
    stamp(16)
    I("s_cmp_lt_u32 s3, 13")
    I("s_waitcnt lgkmcnt(0)")
    I("s_barrier")
    stamp(17)
    I("s_cbranch_scc0 K_FIN")
    stamp(25)
    for k in range(3):
        I(f"ds_read_b128 {vr(8+8*k,4)}, v{EP+k}")
    for k in range(3):
        I(f"ds_read_b128 {vr(12+8*k,4)}, v{EP+k} offset:256")
    I("s_cmp_lg_u64 s[48:49], 0")
    I("s_waitcnt lgkmcnt(3)")
    for k in (1, 2):
        for i in range(2):
            I(f"v_pk_add_f32 {vr(8+2*i,2)}, {vr(8+2*i,2)}, {vr(8+8*k+2*i,2)}")
    I("s_waitcnt lgkmcnt(0)")
    for k in (1, 2):
        for i in range(2, 4):
            I(f"v_pk_add_f32 {vr(8+2*i,2)}, {vr(8+2*i,2)}, {vr(8+8*k+2*i,2)}")
    I("s_cbranch_scc1 R_LONG")
    L("K_MATH")
    stamp(26)
    I("v_pk_add_f32 v[8:9], v[8:9], s[18:19]")
    I("v_pk_add_f32 v[10:11], v[10:11], s[18:19]")
    for c in range(4):
        I(f"v_rcp_f32 v{8+c}, v{8+c}")
    I("s_nop 0")
    I(f"v_pk_fma_f32 v[8:9], v[12:13], v[8:9], {vr(UR,2)}")
    I(f"v_pk_fma_f32 v[10:11], v[14:15], v[10:11], {vr(UR+2,2)}")
    for c in range(4):
        I(f"v_max_f32 v{8+c}, 0, v{8+c}")
    I(f"v_pk_add_f32 v[8:9], v[8:9], {vr(XR,2)}")
    I(f"v_pk_add_f32 v[10:11], v[10:11], {vr(XR+2,2)}")
    I("v_cvt_pk_bf16_f32 v12, v8, v9")
    I("v_cvt_pk_bf16_f32 v13, v10, v11")
    stamp(27)
    I(f"buffer_store_dwordx2 v[12:13], v{VOUT}, {sr(S_X,4)}, 0 offen {OPT['osc'].replace('none','').replace('_',' ')}")
    L("K_FIN")
    stamp(18)
    stamp_out()
    L("K_END")
    I("s_endpgm")

    L("R_PUB2")
    I("s_mov_b64 exec, vcc")
    I(f"ds_read_b128 {vr(C0+8,4)}, v4 offset:{IMG+128}")
    I(f"ds_read_b128 {vr(C0+12,4)}, v4 offset:{IMG+B2+128}")
    I("v_and_b32 v10, 7, v0")
    I(f"v_mul_u32_u24 v10, {3*INC}, v10")
    I(f"v_add_u32 v10, {24*INC}, v10")
    I("s_waitcnt lgkmcnt(0)")
    for b in range(2):
        w3 = C0 + 11 + 4 * b
        I(f"v_and_b32 v{w3}, 0x3f3f3f, v{w3}")
        for j in range(3):
            I(f"v_add_u32 v11, {j*INC}, v10")
            I(f"v_cmp_le_u32 s[70:71], v{8+b}, v11")
            I(f"v_or_b32 v11, {0x3f << (8*j)}, v{w3}")
            I("s_nop 0")
            I(f"v_cndmask_b32 v{w3}, v{w3}, v11, s[70:71]")
    I(f"v_add_u32 v8, {hex(LINE_STRIDE)}, v6")
    I(f"v_add_u32 v9, {hex(LINE_STRIDE)}, v7")
    tagit(C0 + 8)
    tagit(C0 + 12)
    I(f"global_store_dwordx4 v8, {vr(C0+8,4)}, {WS} sc1")
    I(f"global_store_dwordx4 v9, {vr(C0+12,4)}, {WS} sc1")
    I("s_branch A_PUBD")
    retry(RA, True, "B_P0")
    L("R_MORE")
    I("s_cmp_lg_u32 s79, 0")
    I("s_cbranch_scc1 R_REQ")
    if OPT["nol2"]:
        I("s_branch B_RDONE")
    for k in range(4):
        I(f"s_lshr_b32 s{74+k}, s{64+k}, 7")
        I(f"s_and_b32 s{74+k}, s{74+k}, 0x01010101")
        I(f"s_mul_i32 s{74+k}, s{74+k}, 0xff")
    I("s_mov_b64 s[68:69], s[74:75]")
    I("s_mov_b64 s[70:71], s[76:77]")
    I(f"v_add_u32 v2, {hex(LINE_STRIDE)}, v2")
    I(f"v_add_u32 v3, {hex(LINE_STRIDE)}, v3")
    reload(RB, "B_N1")
    poll(RB, False, "B_P1")
    ranks(RB, CB, KB, MB)
    I("s_or_b32 s78, s78, 1")
    more_test()
    I("s_cbranch_scc0 B_RDONE")
    I("s_mov_b32 s79, 1")
    I("s_branch R_REQ")
    retry(RB, False, "B_P1")
    L("R_TIMEOUT")
    I("s_mov_b32 s79, 3")
    for k in range(6):
        I(f"s_mov_b64 s[{MA+2*k}:{MA+2*k+1}], 0")
    I(f"v_mov_b32 v35, v{TG+3}")
    I(f"v_mov_b32 v33, {hex(CTL_OFF + 0x8000)}")
    L("R_REQ")
    I("v_mov_b32 v6, s79")
    I(f"ds_or_b32 v1, v6 offset:{FLAG}")
    I("s_branch B_RDONE")
    def bump():
        I(f"v_mov_b32 v48, {hex(CTL_OFF)}")
        I("v_mov_b32 v50, 0x1000000")
        I("v_mov_b32 v51, 0")
        I("s_mov_b64 exec, 1")
        I(f"global_atomic_add_x2 v48, v[50:51], {WS} offset:8 sc1")
        I("s_mov_b64 exec, -1")
    L("R_EXTRA")
    I("s_bitcmp1_b32 s78, 0")
    I("s_cbranch_scc0 R_X2")
    I("s_waitcnt lgkmcnt(0)")
    lookup(CB)
    scatter(RB, CB, KB, MB)
    L("R_X2")
    I("s_bitcmp1_b32 s78, 1")
    I("s_cbranch_scc0 B_XDONE")
    I("s_cmp_eq_u32 s3, 1")
    I("s_cbranch_scc1 R_PAD")
    I("s_add_u32 s71, s66, 1")
    I("v_cvt_f32_u32 v48, s71")
    I("v_cvt_f32_u32 v49, s66")
    I("s_lshl_b32 s73, s67, 2")
    I("s_mul_i32 s71, s71, s73")
    I("v_rcp_f32 v48, v48")
    I("v_rcp_f32 v49, v49")
    I("v_cvt_f32_u32 v50, s71")
    I("v_cvt_f32_u32 v51, s73")
    I("v_fma_f32 v50, -v50, v49, v51")
    I(f"v_mov_b32 v51, {hex(f32(0.125))}")
    def stream_of(dst, src, half):
        I(f"v_cvt_f32_u32 v{dst}, v{src}")
        I(f"v_fma_f32 v{dst}, v{dst}, v51, {half}")
        I(f"v_mul_f32 v52, v{dst}, v48")
        I(f"v_fma_f32 v{dst}, v{dst}, v49, v50")
        I(f"v_max_f32 v{dst}, v{dst}, v52")
        I(f"v_cvt_u32_f32 v{dst}, v{dst}")
    stream_of(53, 3, "-0.5")
    I("s_cmp_eq_u32 s3, 2")
    I("s_cbranch_scc1 R_EPI")
    I("s_cmp_eq_u32 s3, 3")
    I("s_cbranch_scc1 R_FIRST")
    I("v_min_u32 v55, s73, v53")
    I("v_mad_u32_u24 v55, v53, s66, v55")
    I("v_lshrrev_b32 v56, 3, v3")
    I("v_sub_u32 v55, v56, v55")
    I("v_lshlrev_b32 v55, v55, 1")
    I("v_lshlrev_b32 v56, 4, v53")
    I("s_mov_b64 exec, s[82:83]")
    I(f"ds_or_b32 v56, v55 offset:{STR + 8}")
    I("s_mov_b64 exec, -1")
    I("s_branch B_XDONE")
    L("R_FIRST")
    I("v_mov_b32 v54, -1")
    I("v_cndmask_b32 v53, 63, v53, s[82:83]")
    I(f"v_mul_u32_u24 v59, {EAU_STRIDE//4}, v5")
    I(f"v_add_u32 v59, {EAU_OFF}, v59")
    I("v_mov_b32_dpp v54, v53 wave_shr:1 row_mask:0xf bank_mask:0xf")
    I("v_lshl_add_u32 v58, v54, 2, v5")
    I(f"v_mul_i32_i24 v58, {SLOT_STRIDE//4}, v58")
    I(f"v_add_u32 v58, {SLOT_OFF}, v58")
    I("v_lshlrev_b32 v54, 4, v54")
    I("v_lshlrev_b32 v53, 4, v53")
    L("R_FIRST1")
    I("v_cmp_lt_i32 s[74:75], v54, v53")
    I("s_mov_b64 exec, s[74:75]")
    I("s_cbranch_execz R_FIRST2")
    I("v_add_u32 v54, 16, v54")
    I(f"v_add_u32 v58, {SLOT_STRIDE}, v58")
    I(f"ds_write_b64 v54, v[58:59] offset:{STR}")
    I("s_branch R_FIRST1")
    L("R_FIRST2")
    I("s_mov_b64 exec, -1")
    I("s_branch B_XDONE")
    L("R_EPI")
    stream_of(54, 7, "0.5")
    I("v_sub_u32 v59, v53, v54")
    I("v_lshl_add_u32 v56, v54, 2, v5")
    I(f"v_mul_u32_u24 v56, {SLOT_STRIDE//4}, v56")
    I(f"v_add_u32 v56, {SLOT_OFF}, v56")
    I("v_cmp_lt_i32 s[74:75], 0, v59")
    I("v_cmp_lt_i32 s[76:77], 1, v59")
    I(f"v_add_u32 v57, {SLOT_STRIDE}, v56")
    I(f"v_add_u32 v58, {2*SLOT_STRIDE}, v56")
    I(f"v_cndmask_b32 v57, v{VOOB}, v57, s[74:75]")
    I(f"v_cndmask_b32 v58, v{VOOB}, v58, s[76:77]")
    I("v_lshlrev_b32 v55, 2, v5")
    I(f"ds_write_b128 v55, v[56:59] offset:{EPI}")
    I("s_branch B_XDONE")
    L("R_PAD")
    I(f"v_mov_b32 v52, {N}")
    I(f"v_add_u32 v53, {LIST_OFF - 8}, v3")
    I("v_cmp_lt_u32 s[74:75], v6, v2")
    I("s_mov_b64 exec, s[74:75]")
    I("ds_write_b32 v53, v52 offset:4")
    I("v_cmp_eq_u32 s[74:75], 0, v6")
    I("s_mov_b64 exec, s[74:75]")
    I("ds_write_b32 v53, v52")
    I("s_mov_b64 exec, 0x3f")
    I("s_add_u32 s71, s64, s85")
    I("v_add_u32 v53, s71, v5")
    I("ds_write_b32 v53, v52")
    I("s_mov_b64 exec, -1")
    I("s_cmp_eq_u32 s2, 0")
    I("s_cbranch_scc0 B_XDONE")
    bump()
    I("s_branch B_XDONE")
    L("R_FLAGS")
    I("s_add_u32 s43, s43, 1")
    I(f"s_cmp_gt_u32 s43, {POLL_LIMIT}")
    I("s_cbranch_scc1 R_FLAGT")
    I("s_sleep 2")
    I("s_mov_b64 exec, vcc")
    I(f"global_load_dword v35, v34, {WS} sc1")
    I("s_waitcnt vmcnt(0)")
    I(f"v_cmp_ne_u32 vcc, v{TG+3}, v35")
    I("s_mov_b64 exec, -1")
    I("s_branch B_XDONE")
    L("R_FLAGT")
    I("v_mov_b32 v52, 3")
    I(f"ds_or_b32 v1, v52 offset:{FLAG}")
    I("s_branch B_FDONE")
    L("R_LONG")
    I("s_mov_b32 s64, 2")
    I("s_mov_b64 vcc, s[48:49]")
    L("R_LONG1")
    I("s_mov_b64 exec, vcc")
    I(f"v_add_u32 v{EP+2}, {SLOT_STRIDE}, v{EP+2}")
    I(f"ds_read_b128 v[16:19], v{EP+2}")
    I(f"ds_read_b128 v[20:23], v{EP+2} offset:256")
    I("s_add_u32 s64, s64, 1")
    I("s_waitcnt lgkmcnt(0)")
    for i in range(4):
        I(f"v_pk_add_f32 {vr(8+2*i,2)}, {vr(8+2*i,2)}, {vr(16+2*i,2)}")
    I(f"v_cmp_lt_i32 vcc, s64, v{EP+3}")
    I("s_cbranch_vccnz R_LONG1")
    I("s_mov_b64 exec, -1")
    I("s_branch K_MATH")

    L("K_SLOW")
    I("s_load_dwordx8 s[4:11], s[0:1], 0")
    I("s_load_dwordx2 s[12:13], s[0:1], 40")
    I("s_load_dwordx2 s[14:15], s[0:1], 64")
    I("s_setprio 0")
    I("s_waitcnt vmcnt(0) lgkmcnt(0)")
    I("s_cmp_eq_u32 s3, 15")
    I("s_cselect_b32 s71, s80, 0")
    I("s_and_b32 s71, s71, 2")
    I("s_cbranch_scc0 K_SL0")
    bump()
    I("s_waitcnt vmcnt(0)")
    L("K_SL0")
    WB2, WV2 = 40, 72
    I("v_lshrrev_b32 v6, 1, v5")
    I("v_add_u32 v7, 4096, v6")
    for (w, p_) in ((WB2, 12), (WV2, 14)):
        for hf in range(2):
            for k in range(16):
                I(f"global_load_ushort v{w + 16*hf + k}, v{6 + hf}, s[{p_}:{p_+1}] offset:{2*k*128}")
                I(f"global_load_ushort v{8 + k}, v{6 + hf}, s[{p_}:{p_+1}] offset:{(2*k+1)*128}")
            I("s_waitcnt vmcnt(0)")
            for k in range(16):
                I(f"v_lshl_or_b32 v{w + 16*hf + k}, v{8 + k}, 16, v{w + 16*hf + k}")
    for i in range(4):
        I(f"v_mov_b32 v{28+i}, 0")
    I("v_lshlrev_b32 v8, 4, v0")
    for k in range(4):
        I(f"ds_write_b128 v8, v[28:31] offset:{SLOT_OFF + k*16384}")
    I(f"ds_read_u16 v18, v6 offset:{WC_OFF}")
    I(f"s_mov_b32 s18, {hex(f32(1e-6))}")
    I("s_mov_b32 s19, s18")
    I(f"s_mov_b32 s16, {hex(f32(-LOG2E))}")
    I(f"v_lshl_add_u32 v17, v124, 2, v{LC}")
    I("v_lshlrev_b32 v10, 1, v5")
    I("s_waitcnt lgkmcnt(0)")
    I("v_lshlrev_b32 v18, 16, v18")
    I("s_barrier")
    I("v_lshlrev_b32 v8, 2, v0")
    I("v_lshlrev_b32 v9, 1, v0")
    I("s_lshl_b32 s70, s3, 6")
    L("K_SLOOP")
    I(f"global_load_dword v11, v8, {sr(P_DST,2)}")
    I(f"global_load_dword v12, v8, {sr(P_SRC,2)}")
    I(f"global_load_ushort v13, v9, {sr(P_E,2)}")
    I("s_waitcnt vmcnt(0)")
    I("v_and_b32 v14, 0xff, v11")
    I("v_cmp_eq_u32 s[74:75], s2, v14")
    L("K_SIN")
    I("s_cmp_eq_u64 s[74:75], 0")
    I("s_cbranch_scc1 K_SNEXT")
    I("s_ff1_i32_b64 s73, s[74:75]")
    I("s_bitset0_b64 s[74:75], s73")
    I("v_readlane_b32 s79, v11, s73")
    I("v_readlane_b32 s80, v12, s73")
    I("v_readlane_b32 s81, v13, s73")
    I("s_lshr_b32 s79, s79, 8")
    I(f"s_mul_i32 s76, s79, {EAU_STRIDE}")
    I(f"s_add_u32 s76, s76, {EAU_OFF + 512}")
    I(f"s_mul_i32 s79, s79, {ACC_STRIDE}")
    I("s_lshl_b32 s80, s80, 7")
    I("s_add_u32 s78, s80, 64")
    I(f"s_load_dwordx16 s[36:51], {sr(P_X,2)}, s80")
    I(f"s_load_dwordx16 s[52:67], {sr(P_X,2)}, s78")
    I("s_lshl_b32 s81, s81, 16")
    I("v_add_u32 v15, s76, v17")
    I("v_add_u32 v16, s79, v10")
    I("ds_read_b32 v22, v15")
    I("v_mul_f32 v20, s81, v18")
    I("v_mov_b32 v21, 0")
    I("s_waitcnt lgkmcnt(0)")
    for k in range(32):
        I(f"v_dot2_f32_bf16 v20, s{36+k}, v{WB2+k}, v20")
        I(f"v_dot2_f32_bf16 v21, s{36+k}, v{WV2+k}, v21")
    I("s_nop 2")
    I("v_fma_f32 v20, v20, s16, v22")
    I("v_exp_f32 v20, v20")
    I("s_nop 0")
    I("v_add_f32 v20, 1.0, v20")
    I("v_rcp_f32 v20, v20")
    I("s_nop 0")
    I("v_mul_f32 v21, v21, v20")
    I("v_cvt_f64_f32 v[24:25], v20")
    I("v_cvt_f64_f32 v[26:27], v21")
    I(f"ds_add_f64 v16, v[24:25] offset:{SLOT_OFF}")
    I(f"ds_add_f64 v16, v[26:27] offset:{SLOT_OFF + 512}")
    I("s_branch K_SIN")
    L("K_SNEXT")
    I("s_add_u32 s70, s70, 1024")
    I("v_add_u32 v8, 4096, v8")
    I("v_add_u32 v9, 2048, v9")
    I(f"s_cmp_lt_u32 s70, {E}")
    I("s_cbranch_scc1 K_SLOOP")
    I("v_lshrrev_b32 v6, 4, v0")
    I(f"v_mul_u32_u24 v6, {ACC_STRIDE}, v6")
    I(f"v_lshl_add_u32 v6, v{LC}, 1, v6")
    I("s_waitcnt lgkmcnt(0)")
    I("s_barrier")
    I("s_cmp_lt_u32 s3, 13")
    I("s_cbranch_scc0 K_FIN")
    I(f"ds_read_b128 v[16:19], v6 offset:{SLOT_OFF}")
    I(f"ds_read_b128 v[20:23], v6 offset:{SLOT_OFF+16}")
    I(f"ds_read_b128 v[24:27], v6 offset:{SLOT_OFF+512}")
    I(f"ds_read_b128 v[28:31], v6 offset:{SLOT_OFF+528}")
    I("s_waitcnt lgkmcnt(0)")
    for c in range(8):
        I(f"v_cvt_f32_f64 v{8+c}, {vr(16+2*c,2)}")
    I("s_branch K_MATH")
    L("SLOW_END")

hdr = open("standalone__edge_featured_mpnn_gatedgcn__graph.s.ref").read().split("\n")
for line in hdr:
    if line.startswith("; Override"):
        break
    o(line)
o(f"; @launch kernel={KNAME} grid=(256,1,1) block=(1024,1,1) lds={LDS_TOTAL}")
o('.amdgcn_target "amdgcn-amd-amdhsa--gfx950"')
o(".text")
gen()
o('.section .rodata,"a"')
o(".p2align 6")
o(f".amdhsa_kernel {KNAME}")
o("  .amdhsa_next_free_vgpr 128")
o("  .amdhsa_next_free_sgpr 102")
o("  .amdhsa_accum_offset 128")
o("  .amdhsa_group_segment_fixed_size 0")
o("  .amdhsa_kernarg_size 96")
o("  .amdhsa_user_sgpr_count 2")
o("  .amdhsa_user_sgpr_kernarg_segment_ptr 1")
o("  .amdhsa_system_sgpr_workgroup_id_x 1")
o(".end_amdhsa_kernel")
open(sys.argv[1], "w").write("\n".join(out) + "\n")
```

```python
import sys, struct

OPT = dict(stamp=0, sts="2_3_4_5_6_7", force_slow=0, prio="16_8_4", spin=0, spinat=18, hack=0, sleep=2, delay=0,
           codepf=1, gprio=1, pf=0, pf2=0, pre=1, cfirst=0, gbar=0, init1=1, pf3=0, pfw=0, drain=0, pf4=0, tlb=0, gl=0, pf5=0, pfa=1, osc="sc1", w32=0, fw=1, fl=0, dbar=0, wsb=0, pinv=0, nreg=16, tst=2, pop=1, cad=1, fp="", e12=0, nol2=0, amp=0, ampw=0, ampg=-1, ampm=10, esc="none", sup=1, cprio=1, nog=0, gsc="sc1", cut=0, ef=0, fs=4)
for a in sys.argv[2:]:
    k, v = a.split("=")
    OPT[k] = int(v) if v.lstrip("-").isdigit() else v

KNAME = "standalone__edge_featured_mpnn_gatedgcn__graph_kernel"
N = 12500
E = 800000
CHUNK = 3136
TAB_ROWS = N + 1
CTL_OFF = 0xF900000
REG_STRIDE = 13 << 20
FLG_OFF = CTL_OFF + 0x10000
CELL_OFF = 0x400000
BIN_STRIDE = 32768 + 256
LINE_STRIDE = 0x900000
STAMP_OFF = 0xF000000
LOG2E = 1.4426950408889634
KEXP = 62
POLL_LIMIT = 100000

X_OFF = 0
WC_OFF = 8192
C1_OFF = 8448
C2_OFF = 9472
FLAG = C2_OFF + 256
SYNC = C2_OFF + 260
TAGS = C2_OFF + 272
BASE = C2_OFF + 512
STR = C2_OFF + 1024
EPI = C2_OFF + 2048
IMG = C2_OFF + 3072
IMG_STRIDE = 272
EAU_OFF = IMG + 256 * IMG_STRIDE
EAU_STRIDE = 800
W_OFF = EAU_OFF + 52 * EAU_STRIDE
LDS_TOTAL = W_OFF + 32768
LIST_OFF = W_OFF
LIST_MAX = 31 * 16 * 32
SLOT_OFF = IMG
SLOT_STRIDE = 512
ACC_STRIDE = 1056
OOB = 0x30000
assert W_OFF % 128 == 0 and 117 * SLOT_STRIDE <= 256 * IMG_STRIDE and LDS_TOTAL <= 163840
INC = 0x5556

def f32(x):
    return struct.unpack("<I", struct.pack("<f", x))[0]

out = []
def o(s=""):
    out.append(s)
def I(s):
    out.append("    " + s)
def L(s):
    out.append(s + ":")
def vr(a, n=1):
    return f"v{a}" if n == 1 else f"v[{a}:{a+n-1}]"
def sr(a, n=1):
    return f"s{a}" if n == 1 else f"s[{a}:{a+n-1}]"
def sdwa(sel1):
    return f"dst_sel:DWORD dst_unused:UNUSED_PAD src0_sel:DWORD src1_sel:{sel1}"

P_X, P_E, P_SRC, P_DST, P_WA, P_WB, P_WC, P_WU, P_WV, P_OUT, P_DBG, P_WS = 4, 6, 8, 10, 12, 14, 16, 18, 20, 22, 24, 26
S_TAB, S_X = 28, 32
WS = sr(P_WS, 2)

STS = [int(x) for x in str(OPT["sts"]).split("_")] if OPT["stamp"] else []
RTS = {12: 28, 17: 29} if OPT["stamp"] == 2 else {}
def stamp(i):
    if OPT["amp"]:
        if i == 1:
            I("s_memrealtime s[98:99]")
        if i == OPT["amp"]:
            I("s_memrealtime s[96:97]")
        if i == 18:
            I(f"s_cmp_eq_u32 s3, {OPT['ampw']}")
            I("s_cbranch_scc0 AMP_D")
            if OPT["ampg"] >= 0:
                I(f"s_cmp_eq_u32 s2, {OPT['ampg']}")
                I("s_cbranch_scc0 AMP_D")
            I("s_waitcnt lgkmcnt(0)")
            I("s_sub_u32 s96, s96, s98")
            I(f"s_mul_i32 s96, s96, {OPT['ampm']}")
            I("s_add_u32 s96, s96, 3000")
            I("s_min_u32 s96, s96, 100000")
            L("AMP_W")
            I("s_memrealtime s[90:91]")
            I("s_waitcnt lgkmcnt(0)")
            I("s_sub_u32 s90, s90, s98")
            I("s_cmp_lt_u32 s90, s96")
            I("s_cbranch_scc1 AMP_W")
            L("AMP_D")
    if OPT["spin"] and OPT["spinat"] == i:
        lab = f"SPIN_{len(out)}"
        I("s_cselect_b32 s92, 1, 0")
        L(lab)
        I("s_memrealtime s[90:91]")
        I("s_waitcnt lgkmcnt(0)")
        I("s_sub_u32 s90, s90, s98")
        I(f"s_cmp_lt_u32 s90, {OPT['spin']}")
        I(f"s_cbranch_scc1 {lab}")
        I("s_cmp_lg_u32 s92, 0")
    if not OPT["stamp"]:
        return
    if i == 0:
        I("s_memrealtime s[86:87]")
    elif i == 1:
        I("s_memtime s[88:89]")
    elif i in STS:
        k = 90 + 2 * STS.index(i)
        I(f"s_memtime s[{k}:{k+1}]")
        if i in RTS:
            k = 90 + 2 * STS.index(RTS[i])
            I(f"s_memrealtime s[{k}:{k+1}]")
def stamp_out():
    if not OPT["stamp"]:
        return
    I("s_mov_b64 exec, -1")
    I("s_waitcnt vmcnt(0) lgkmcnt(0)")
    I("s_memtime s[80:81]")
    I("s_memrealtime s[82:83]")
    I("s_waitcnt lgkmcnt(0)")
    I("v_writelane_b32 v127, s80, 30")
    I("v_writelane_b32 v127, s82, 31")
    I("v_writelane_b32 v127, s86, 0")
    I("v_writelane_b32 v127, s88, 1")
    for i in list(range(2, 19)) + list(range(20, 30)):
        I(f"v_writelane_b32 v127, s{90 + 2*STS.index(i) if i in STS else 88}, {i}")
    I("s_lshl_b32 s84, s2, 4")
    I("s_add_u32 s84, s84, s3")
    I("s_lshl_b32 s84, s84, 7")
    I(f"s_add_u32 s84, s84, {hex(STAMP_OFF)}")
    I("s_sub_u32 s84, s84, s38")
    I("v_and_b32 v1, 63, v0")
    I("v_lshl_add_u32 v1, v1, 2, s84")
    I("s_mov_b64 exec, 0xffffffff")
    I(f"global_store_dword v1, v127, {WS}")

def srd(d, p, size):
    I(f"s_mov_b64 {sr(d,2)}, {sr(p,2)}")
    I(f"s_mov_b32 s{d+2}, {hex(size)}")
    I(f"s_mov_b32 s{d+3}, 0x20000")

D, S, EE = 16, 20, 24
AP = 104
TG = 120
B2 = 128 * IMG_STRIDE

def edge_loads(lo=0, hi=3):
    ins = [f"global_load_dwordx4 {vr(D,4)}, v10, {sr(P_DST,2)}",
           f"global_load_dwordx4 {vr(S,4)}, v10, {sr(P_SRC,2)}",
           f"global_load_dwordx2 {vr(EE,2)}, v11, {sr(P_E,2)}"]
    for x in ins[lo:hi]:
        I(x + " " + OPT["esc"].replace("none", ""))

def claim():
    op = {1: "global_atomic_or v8, v12", 2: "global_store_dword v8, v12"}[OPT["pop"]]
    I("v_lshlrev_b32 v8, 16, v0")
    I("s_lshl_b32 s64, s2, 8")
    I("v_add_u32 v8, s64, v8")
    I(f"s_mov_b32 exec_hi, {hex((1 << 17) - 1)}")
    I(f"{op}, {WS} sc1")
    I(f"{op}, {WS} offset:128 sc1")
    I("s_mov_b64 exec, -1")

def binning(waits, extra=0, hook=None):
    B4, RK, PA = 28, 32, 36
    I(f"v_mov_b32 v14, {INC}")
    I(f"s_mov_b32 s68, {47*INC}")
    I("s_mov_b32 s69, 0x05040100")
    I("s_mov_b32 s70, 0x07060100")
    if waits:
        I(f"s_waitcnt vmcnt({2+extra})")
        stamp(3)
    for i in range(4):
        I(f"v_lshlrev_b32_sdwa v{B4+i}, 2, v{D+i} {sdwa('BYTE_0')}")
        I(f"ds_add_rtn_u32 v{RK+i}, v{B4+i}, v14 offset:{C1_OFF}")
    for i in range(4):
        I(f"v_mul_u32_u24 v{B4+i}, {IMG_STRIDE//4}, v{B4+i}")
        I(f"v_lshrrev_b32 v{D+i}, 8, v{D+i}")
    for i in range(4):
        I("s_waitcnt lgkmcnt(3)")
        I(f"v_min_u32 v{RK+i}, s68, v{RK+i}")
        I(f"v_lshrrev_b32 v{RK+i}, 14, v{RK+i}")
        I(f"v_lshl_add_u32 v{PA+i}, v{RK+i}, 2, v{B4+i}")
        I(f"v_and_b32 v{RK+i}, 3, v{RK+i}")
        I(f"v_or3_b32 v{RK+i}, v{PA+i}, 12, v{RK+i}")
        I(f"ds_write_b8 v{RK+i}, v{D+i} offset:{IMG}")
    if waits:
        if hook:
            hook()
        else:
            I(f"s_waitcnt vmcnt({extra})")
            stamp(4)
    for i in range(4):
        if OPT["hack"]:
            I(f"v_and_b32 v{S+i}, {OPT['hack']}, v{S+i}")
        I(f"v_perm_b32 v{S+i}, v{EE+(i>>1)}, v{S+i}, s{69+(i&1)}")
        I(f"ds_write_b32 v{PA+i}, v{S+i} offset:{IMG}")

def copy_consts():
    I("s_lshr_b32 s64, s2, 7")
    I("s_lshl_b32 s64, s64, 14")
    I(f"s_add_u32 s64, s64, {hex(CELL_OFF)}")
    I(f"v_mul_u32_u24 v6, {BIN_STRIDE//4}, v5")
    I("v_lshl_add_u32 v6, v0, 4, v6")
    I("v_add_u32 v6, s64, v6")
    I(f"v_add_u32 v7, {128*BIN_STRIDE}, v6")
    I(f"s_mul_i32 s64, s2, {BIN_STRIDE}")
    I(f"s_add_u32 s64, s64, {hex(CELL_OFF)}")
    I("v_lshl_add_u32 v2, v0, 4, s64")
    I("v_add_u32 v3, 0x4000, v2")
    I("s_mov_b32 s36, 0x0f0f0f0f")
    I("s_mov_b32 s37, s36")
    if OPT["w32"] == 2:
        I("v_mov_b32 v102, 0")
    elif OPT["w32"]:
        I("v_bfe_u32 v102, v0, 1, 2")
        I("v_bfe_u32 v103, v0, 2, 1")
        I(f"v_mul_u32_u24 v102, {6*INC}, v102")
        I("v_mul_u32_u24 v102, v102, v103")
    else:
        I("v_bfe_u32 v102, v0, 2, 1")
        I(f"v_mul_u32_u24 v102, {12*INC}, v102")
    I(f"s_mov_b32 s39, {24*INC}")
    I("s_mov_b32 s40, 0xc000")
    I("s_mov_b32 s41, 0xffc0c0c0")
    I(f"s_mov_b32 s42, {49 << 16}")
    I("s_mov_b32 s43, 0")
    I("v_mov_b32 v1, 0")
    I(f"s_mov_b32 s{S_TAB+2}, {0 if OPT['nog'] else TAB_ROWS}")
    I(f"s_mov_b32 s{S_TAB+3}, 0x20000")

def lds_init():
    I("v_add_u32 v5, s2, v3")
    I("v_and_b32 v5, 127, v5")
    I(f"v_mul_u32_u24 v4, {IMG_STRIDE}, v5")
    I("v_lshl_add_u32 v4, v2, 4, v4")
    I("v_lshlrev_b32 v5, 2, v5")
    I("v_mov_b32 v12, 0")
    I("v_mov_b32 v13, 0x3f3f3f")
    I(f"ds_write2st64_b32 v5, v12, v12 offset0:{C1_OFF//256} offset1:{C1_OFF//256+2}")
    for r in range(1 if OPT["init1"] else 2):
        for b in range(2):
            I(f"ds_write_b32 v4, v13 offset:{IMG + b*B2 + r*128 + 12}")
def edge_addr():
    I(f"s_mul_i32 s64, s2, {CHUNK*4}")
    I("v_lshl_add_u32 v10, v0, 4, s64")
    I("v_lshrrev_b32 v11, 1, v10")

def gen():
    o(".p2align 8")
    o(f".globl {KNAME}")
    o(f".type {KNAME},@function")
    L(KNAME)
    I("s_cmp_ge_u32 s2, 256")
    I("s_cbranch_scc1 K_END")
    stamp(0); stamp(1)
    I("s_load_dwordx16 s[4:19], s[0:1], 0")
    I("s_load_dwordx8 s[20:27], s[0:1], 64")
    if OPT["spin"]:
        I("s_memrealtime s[98:99]")
    I("v_lshrrev_b32 v1, 6, v0")
    I("v_and_b32 v2, 7, v0")
    I("v_readfirstlane_b32 s3, v1")
    I("v_lshrrev_b32 v3, 3, v0")
    I("s_mov_b32 s79, 0")
    I("s_cmp_ge_u32 s3, 12")
    I("s_cbranch_scc1 G_ENTRY")

    I("s_cmp_ge_u32 s3, 2")
    I("s_cbranch_scc1 A_NOPF")
    if OPT["codepf"]:
        I("s_getpc_b64 s[64:65]")
        L("A_PC")
        I("v_lshlrev_b32 v8, 7, v0")
        I("v_min_u32 v8, K_SLOW-A_PC-4, v8")
        I("global_load_dword v27, v8, s[64:65]")
    I("v_lshlrev_b32 v8, 4, v0")
    I("v_mov_b64 v[12:13], 0")
    I("v_mov_b64 v[14:15], 0")
    I(f"ds_write_b128 v8, v[12:15] offset:{C2_OFF}")
    L("A_NOPF")
    lds_init()
    edge_addr()
    I(f"v_cmp_gt_u32 vcc, {E*4}, v10")
    I("s_waitcnt lgkmcnt(0)")
    stamp(24)
    if OPT["wsb"]:
        I(f"s_add_u32 s{P_WS}, s{P_WS}, {hex(OPT['wsb'] << 20)}")
        I(f"s_addc_u32 s{P_WS+1}, s{P_WS+1}, 0")
    I("s_mov_b64 exec, vcc")
    I("s_cbranch_execz A_NOE")
    I("s_cmp_eq_u32 s3, 1")
    I("s_cbranch_scc1 A_W1")
    edge_loads(0, OPT["pre"])
    I("s_barrier")
    stamp(2)
    edge_loads(OPT["pre"], 3)
    I("s_mov_b64 exec, -1")
    copy_consts()
    I("s_mov_b64 exec, vcc")
    binning(True)
    I("s_mov_b64 exec, -1")
    I("s_branch A_JOIN")
    L("A_W1")
    I("s_cmp_eq_u32 s2, 0")
    I("s_cbranch_scc0 A_NOPICK")
    I("s_memrealtime s[70:71]")
    I("s_waitcnt lgkmcnt(0)")
    I("s_bfe_u32 s70, s70, 0x40003")
    I("s_add_u32 s70, s70, 1")
    I("v_mov_b32 v14, s70")
    I("v_mov_b32 v15, 0")
    I("s_mov_b64 exec, 1")
    I(f"global_atomic_cmpswap v12, v[14:15], {sr(P_DBG,2)} sc1")
    I("s_mov_b64 exec, vcc")
    L("A_NOPICK")
    edge_loads(0, OPT["pre"])
    I(f"s_add_u32 s70, s{P_WS}, {hex(CTL_OFF)}")
    I(f"s_addc_u32 s71, s{P_WS+1}, 0")
    I("s_load_dwordx2 s[72:73], s[70:71], 8")
    if OPT["fw"]:
        I(f"s_lshl_b32 s74, s2, {OPT['fs']}")
        I(f"s_add_u32 s74, s74, {hex(FLG_OFF - CTL_OFF)}")
        I("s_load_dword s75, s[70:71], s74")
    I("s_barrier")
    edge_loads(OPT["pre"], 3)
    I("s_mov_b64 exec, -1")
    copy_consts()
    I("s_mov_b64 exec, 1")
    I(f"global_load_dword v26, v1, {sr(P_DBG,2)} sc1")
    I("s_mov_b64 exec, vcc")
    def area_hook():
        I("s_mov_b64 exec, 1")
        L("A_AREA")
        I("s_waitcnt vmcnt(0)")
        I("v_readfirstlane_b32 s64, v26")
        I("s_cmp_lg_u32 s64, 0")
        I("s_cbranch_scc1 A_AREAD")
        I(f"global_load_dword v26, v1, {sr(P_DBG,2)} sc1")
        I("s_add_u32 s43, s43, 1")
        I(f"s_cmp_le_u32 s43, {POLL_LIMIT}")
        I("s_cbranch_scc1 A_AREA")
        I("s_waitcnt vmcnt(0)")
        L("A_AREAD")
        I(f"s_and_b32 s64, s64, {OPT['nreg']-1}")
        I(f"s_mul_i32 s64, s64, {REG_STRIDE}")
        I("s_add_u32 s64, s64, 1")
        I("v_mov_b32 v26, s64")
        I(f"ds_write_b32 v1, v26 offset:{TAGS+16}")
        I("s_mov_b64 exec, vcc")
    binning(True, 1, area_hook)
    I("s_mov_b64 exec, 1")
    I("s_waitcnt lgkmcnt(0)")
    I("s_add_u32 s72, s72, 0x1000000")
    I("s_addc_u32 s73, s73, 0")
    I("s_and_b32 s72, s72, 0xff000000")
    for k in range(3):
        I(f"s_bfe_u32 s64, s73, {hex((2 << 16) | (2*k))}")
        I(f"s_lshl_b32 s64, s64, {6 + 8*k}")
        I("s_or_b32 s72, s72, s64")
        I(f"s_bfe_u32 s64, s73, {hex((2 << 16) | (6 + 2*k))}")
        I("s_lshl_b32 s64, s64, 14")
        I(f"v_mov_b32 v{TG+k}, s64")
    I(f"v_mov_b32 v{TG+3}, s72")
    I(f"ds_write_b128 v1, {vr(TG,4)} offset:{TAGS}")
    I("s_mov_b64 exec, -1")
    I("s_branch A_JOIN")
    L("A_NOE")
    I("s_barrier")
    I("s_mov_b64 exec, -1")
    copy_consts()
    I("s_branch A_JOIN")

    XA, FA, FB, ACC1, ACC2 = 28, 36, 68, 104, 36
    L("G_ENTRY")
    if OPT["gprio"]:
        I("s_setprio 3")
    I("v_and_b32 v7, 7, v3")
    I("s_and_b32 s64, s3, 1")
    I("s_lshl_b32 s64, s64, 2")
    I("v_and_b32 v8, 2, v7")
    I("v_xor_b32 v8, v8, v2")
    I("v_xor_b32 v8, s64, v8")
    I("v_lshlrev_b32 v8, 4, v8")
    I("v_lshl_add_u32 v8, v7, 7, v8")
    I("s_and_b32 s65, s3, 3")
    I("s_lshl_b32 s65, s65, 11")
    I("v_add_u32 v8, s65, v8")
    I(f"s_add_u32 s65, s65, {W_OFF}")
    I("s_add_u32 s66, s3, 3")
    I("s_and_b32 s66, s66, 3")
    I("v_xor_b32 v9, v2, v7")
    I("v_lshlrev_b32 v9, 4, v9")
    I("v_lshl_add_u32 v9, v7, 15, v9")
    I("s_lshl_b32 s67, s66, 19")
    I("s_lshl_b32 s68, s2, 7")
    I("s_add_u32 s67, s67, s68")
    I("v_add_u32 v9, s67, v9")
    I("v_add_u32 v15, 0x40000, v9")
    I("s_lshl_b32 s67, s66, 11")
    I(f"s_mov_b32 s{S_X+2}, {N*128}")
    I(f"s_mov_b32 s{S_X+3}, 0x20000")
    I("s_mov_b32 m0, s67")
    I("s_waitcnt lgkmcnt(0)")
    stamp(24)
    if OPT["wsb"]:
        I(f"s_add_u32 s{P_WS}, s{P_WS}, {hex(OPT['wsb'] << 20)}")
        I(f"s_addc_u32 s{P_WS+1}, s{P_WS+1}, 0")
    I(f"s_mov_b64 {sr(S_X,2)}, {sr(P_X,2)}")
    I(f"buffer_load_dwordx4 v9, {sr(S_X,4)}, 0 offen lds")
    I("s_add_u32 m0, s67, 1024")
    I("s_nop 0")
    I(f"buffer_load_dwordx4 v15, {sr(S_X,4)}, 0 offen lds")
    def w_dma(p, off, va="v8", sd="s65"):
        I(f"s_add_u32 m0, {sd}, {off}")
        I("s_nop 0")
        I(f"global_load_lds_dwordx4 {va}, {sr(p,2)}")
        I(f"global_load_lds_dwordx4 {va}, {sr(p,2)} offset:1024")
    w_dma(P_WB, 0)
    w_dma(P_WV, 8192)
    lds_init()
    edge_addr()
    if OPT["gbar"]:
        I("s_waitcnt lgkmcnt(0)")
        I("s_barrier")
        stamp(2)
    I("s_cmp_eq_u32 s3, 12")
    I("s_cselect_b32 s74, 0xffff, 0")
    I("s_cmp_eq_u32 s2, 255")
    I("s_cselect_b32 s74, 0, s74")
    I("s_mov_b32 s75, 0")
    I("s_mov_b64 exec, s[74:75]")
    I("s_cbranch_execz G_NOE")
    edge_loads()
    L("G_NOE")
    I("s_mov_b64 exec, -1")

    I("v_mov_b32 v126, v8")
    I("v_lshlrev_b32 v100, 4, v2")
    I("s_mov_b32 s78, s65")
    I(f"s_mov_b32 s{S_X+2}, {TAB_ROWS*256}")
    copy_consts()
    I("v_and_b32 v124, 15, v0")
    I("v_bfe_u32 v125, v0, 4, 2")
    I("v_and_b32 v8, 7, v124")
    I("v_lshlrev_b32 v9, 1, v125")
    I("v_xor_b32 v8, v8, v9")
    I("v_lshlrev_b32 v8, 4, v8")
    I("v_lshl_add_u32 v8, v124, 7, v8")
    I("v_add_u32 v8, s67, v8")
    I("v_xor_b32 v9, 16, v8")
    I("v_lshrrev_b32 v10, 2, v124")
    I("v_and_b32 v11, 2, v10")
    I("v_bfe_u32 v12, v0, 1, 1")
    I("v_or_b32 v11, v11, v12")
    I("v_and_b32 v12, 1, v125")
    I("v_lshl_or_b32 v11, v12, 2, v11")
    I("v_lshlrev_b32 v11, 4, v11")
    I("v_and_b32 v12, 1, v0")
    I("v_lshl_or_b32 v11, v12, 3, v11")
    I("v_lshl_add_u32 v10, v125, 4, v10")
    I("v_lshl_or_b32 v11, v10, 7, v11")
    I(f"v_add_u32 v12, {W_OFF}, v11")
    for T in range(1, 4):
        I(f"v_xor_b32 v{12+T}, {T << 5}, v12")
    I(f"s_mov_b32 s76, {hex(f32(-LOG2E))}")
    I("s_mov_b32 s77, 0x07060302")
    I(f"v_mov_b32 v26, {hex(f32(2.0**-70))}")
    I("s_lshl_b32 s64, s66, 20")
    I("s_lshl_b32 s65, s2, 8")
    I("s_add_u32 s64, s64, s65")
    I("v_lshlrev_b32 v27, 18, v125")
    I("v_lshl_add_u32 v27, v124, 4, v27")
    I("v_add_u32 v27, s64, v27")
    I("v_mov_b32 v10, 1")
    def g_sync(target, lab, arrive=True):
        if arrive:
            I("s_mov_b64 exec, 1")
            I(f"ds_add_u32 v1, v10 offset:{SYNC}")
            I("s_mov_b64 exec, -1")
        L(lab)
        I(f"ds_read_b32 v11, v1 offset:{SYNC}")
        I("s_waitcnt lgkmcnt(0)")
        I("v_readfirstlane_b32 s64, v11")
        I(f"s_cmp_lt_u32 s64, {target}")
        I(f"s_cbranch_scc1 {lab}")
    def frag_reads(F, moff):
        for T in range(4):
            for s in range(2):
                for h in range(2):
                    I(f"ds_read_b64_tr_b16 {vr(F + 8*T + 4*s + 2*h, 2)}, v{12+T} offset:{moff + (8*s+4*h)*128}")
    def mfmas(F, acc, swap, later):
        for T in range(4):
            I(f"s_waitcnt lgkmcnt({min(15, later + 4*(3-T))})")
            for s in range(2):
                a, b = vr(XA + 4*s, 4), vr(F + 8*T + 4*s, 4)
                if swap:
                    a, b = b, a
                c = "0" if s == 0 else vr(acc + 4*T, 4)
                I(f"v_mfma_f32_16x16x32_bf16 {vr(acc+4*T,4)}, {a}, {b}, {c}")
    if not OPT["gbar"]:
        I("s_waitcnt lgkmcnt(0)")
        I("s_barrier")
        stamp(2)
    I("s_cmp_eq_u64 s[74:75], 0")
    I("s_cbranch_scc1 G_W0")
    I("s_waitcnt vmcnt(3)")
    I("s_branch G_W1")
    L("G_W0")
    I("s_waitcnt vmcnt(0)")
    L("G_W1")
    stamp(3)
    g_sync(4, "G_S1")
    stamp(20)
    I(f"ds_read_b128 {vr(XA,4)}, v8")
    I(f"ds_read_b128 {vr(XA+4,4)}, v9")
    frag_reads(FA, 0)
    frag_reads(FB, 8192)
    stamp(21)
    w_dma(P_WA, 16384, "v126", "s78")
    w_dma(P_WU, 24576, "v126", "s78")
    I("s_cmp_eq_u32 s3, 13")
    I("s_cbranch_scc0 G_NOWC")
    I(f"s_mov_b32 m0, {WC_OFF}")
    I("s_mov_b64 exec, 0xff")
    I(f"global_load_lds_dwordx4 v100, {sr(P_WC,2)}")
    I("s_mov_b64 exec, -1")
    L("G_NOWC")
    stamp(22)
    mfmas(FA, ACC1, False, 16)
    mfmas(FB, ACC2, False, 0)
    stamp(23)
    ACCB, ACCV, OUTR = ACC1, ACC2, FB
    SD = sdwa("WORD_1")
    I("s_mov_b32 s80, 0x8000")
    I("s_mov_b32 s81, 0x8000")
    I(f"s_mov_b32 s68, {hex(f32(2.0**-100))}")
    I("s_mov_b32 s69, s68")
    I("v_mov_b32 v10, v26")
    I("v_mov_b32 v11, v26")
    I("s_nop 1")
    for rp in (0, 2):
        for t in range(4):
            I(f"v_pk_fma_f32 {vr(ACCB+4*t+rp,2)}, {vr(ACCB+4*t+rp,2)}, s[76:77], v[10:11] op_sel_hi:[1,0,1]")
        for t in (1, 3):
            I(f"v_pk_add_f32 {vr(ACCV+4*t+rp,2)}, {vr(ACCV+4*t+rp,2)}, s[68:69]")
        for t in range(4):
            I(f"v_lshl_add_u64 {vr(ACCB+4*t+rp,2)}, {vr(ACCB+4*t+rp,2)}, 0, s[80:81]")
        for t in range(4):
            I(f"v_lshl_add_u64 {vr(ACCV+4*t+rp,2)}, {vr(ACCV+4*t+rp,2)}, 0, s[80:81]")
        for r in (rp, rp + 1):
            for t in (0, 2):
                I(f"v_sub_u32_sdwa v{ACCB+4*t+r}, v{ACCB+4*t+r}, v{ACCV+4*t+r} clamp {SD}")
            for t in (0, 2):
                I(f"v_sub_u32_sdwa v{ACCV+4*(t+1)+r}, v{ACCV+4*(t+1)+r}, v{ACCB+4*t+r} clamp {SD}")
            for t in (0, 2):
                I(f"v_sub_u32_sdwa v{ACCB+4*(t+1)+r}, v{ACCB+4*(t+1)+r}, v{ACCV+4*(t+1)+r} clamp {SD}")
            for t in range(4):
                I(f"v_perm_b32 v{OUTR+4*r+t}, v{ACCB+4*t+r}, v{ACCV+4*t+r}, s77")
            if r == 0:
                if OPT["tst"] == 2:
                    L("G_AREA")
                    I(f"ds_read_b32 v26, v1 offset:{TAGS+16}")
                    I("s_waitcnt lgkmcnt(0)")
                    I("v_readfirstlane_b32 s64, v26")
                    I("s_sub_u32 s64, s64, 1")
                    I("s_cbranch_scc1 G_AREA")
                    I(f"s_add_u32 s{S_X}, s{P_WS}, s64")
                    I(f"s_addc_u32 s{S_X+1}, s{P_WS+1}, 0")
                I("s_cmp_eq_u32 s3, 12")
                I("s_cbranch_scc1 G_T3")
            elif OPT["tst"] == 2:
                I("v_add_u32 v27, 0x10000, v27")
            if OPT["tst"] == 2:
                I(f"buffer_store_dwordx4 {vr(OUTR+4*r,4)}, v27, {sr(S_X,4)}, 0 offen sc1")

    stamp(4)
    L("G_BVD")
    I(f"s_waitcnt vmcnt({4 if OPT['tst'] == 2 else 0})")
    I("s_branch G_DONE")
    L("G_T3")
    I("s_cmp_eq_u32 s2, 212")
    I("s_cbranch_scc0 G_NODUM")
    for t in range(4):
        I(f"v_mov_b32 v{OUTR+t}, 0x7f000000")
    L("G_NODUM")
    if OPT["tst"] == 2:
        I(f"buffer_store_dwordx4 {vr(OUTR,4)}, v27, {sr(S_X,4)}, 0 offen sc1")
    I(f"s_waitcnt vmcnt({5 if OPT['tst'] == 2 else 4})")
    I("s_mov_b64 exec, s[74:75]")
    I("s_cbranch_execz G_NOBIN")
    I("v_mov_b32 v126, v14")
    binning(False)
    I("v_mov_b32 v14, v126")
    L("G_NOBIN")
    I("s_mov_b64 exec, -1")
    I(f"ds_read_b128 {vr(XA,4)}, v8")
    I(f"ds_read_b128 {vr(XA+4,4)}, v9")
    stamp(4)
    I(f"s_waitcnt vmcnt({1 if OPT['tst'] == 2 else 0})")
    L("G_DONE")
    if OPT["drain"]:
        I("s_waitcnt vmcnt(0)")
    if OPT["gprio"] and not OPT["cprio"]:
        I("s_setprio 0")
    stamp(5)

    L("A_JOIN")
    if OPT["cprio"]:
        I("s_setprio 3")
    I("s_waitcnt lgkmcnt(0)")
    stamp(6)
    I("s_barrier")
    stamp(7)
    C0 = 48
    I(f"ds_read_b32 v11, v1 offset:{TAGS+16}")
    I(f"ds_read_b128 {vr(TG,4)}, v1 offset:{TAGS}")
    I(f"ds_read2st64_b32 v[8:9], v5 offset0:{C1_OFF//256} offset1:{C1_OFF//256+2}")
    I(f"ds_read_b128 {vr(C0,4)}, v4 offset:{IMG}")
    I(f"ds_read_b128 {vr(C0+4,4)}, v4 offset:{IMG+B2}")
    def tagit(c):
        for k in range(3):
            I(f"v_bfi_b32 v{c+k}, s40, v{TG+k}, v{c+k}")
        I(f"v_or_b32 v{c+3}, v{TG+3}, v{c+3}")
    I("s_waitcnt lgkmcnt(2)")
    I("v_readfirstlane_b32 s38, v11")
    I("v_cmp_le_u32 s[72:73], v102, v8")
    I("v_cmp_le_u32 s[74:75], v102, v9")
    I("v_max_u32 v10, v8, v9")
    I("v_cmp_le_u32 vcc, s39, v10")
    I("s_sub_u32 s38, s38, 1")
    I(f"s_add_u32 s{P_WS}, s{P_WS}, s38")
    I(f"s_addc_u32 s{P_WS+1}, s{P_WS+1}, 0")
    def table_stores(lab):
        I(f"s_mov_b64 {sr(S_X,2)}, {WS}")
        I(f"buffer_store_dwordx4 {vr(OUTR,4)}, v27, {sr(S_X,4)}, 0 offen sc1")
        I("s_cmp_eq_u32 s3, 12")
        I(f"s_cbranch_scc1 {lab}")
        for r in range(1, 4):
            I("v_add_u32 v27, 0x10000, v27")
            I(f"buffer_store_dwordx4 {vr(OUTR+4*r,4)}, v27, {sr(S_X,4)}, 0 offen sc1")
        L(lab)
    if OPT["tst"] == 1:
        I("s_cmp_ge_u32 s3, 12")
        I("s_cbranch_scc0 A_TSD")
        table_stores("A_TSD")
    def cell_store(k):
        I(f"s_mov_b64 exec, s[{72+2*k}:{73+2*k}]")
        I(f"global_store_dwordx4 v{6+k}, {vr(C0+4*k,4)}, {WS} sc1")
    if OPT["gl"]:
        I("s_cmp_ge_u32 s3, 12")
        I("s_waitcnt lgkmcnt(1)")
        tagit(C0)
        I("s_cbranch_scc1 A_GL1")
        cell_store(0)
        I("s_mov_b64 exec, -1")
        L("A_GL1")
        I("s_waitcnt lgkmcnt(0)")
        tagit(C0 + 4)
        I("s_cbranch_scc1 A_GL2")
        cell_store(1)
        L("A_GL2")
    else:
        I("s_waitcnt lgkmcnt(1)")
        tagit(C0)
        cell_store(0)
        I("s_mov_b64 exec, s[74:75]")
        I("s_waitcnt lgkmcnt(0)")
        tagit(C0 + 4)
        I(f"global_store_dwordx4 v7, {vr(C0+4,4)}, {WS} sc1")
    I("s_cbranch_vccnz R_PUB2")
    L("A_PUBD")
    I("s_mov_b64 exec, -1")
    if OPT["cprio"]:
        I("s_setprio 0")
    stamp(8)
    I("s_cmp_ge_u32 s3, 12")
    I("s_cbranch_scc0 B_NOAU")
    if OPT["tst"] == 0:
        table_stores("A_TSD")
    I("s_mov_b32 s84, s66")
    I("s_setprio 1")
    FU, FW, UU = 36, 84, 52
    def half_gemm(moff, acc, swap):
        for T in range(4):
            F = (FU if T < 2 else FW) + 8 * (T & 1)
            for s in range(2):
                for h in range(2):
                    I(f"ds_read_b64_tr_b16 {vr(F + 4*s + 2*h, 2)}, v{12+T} offset:{moff + (8*s+4*h)*128}")
        for T in range(4):
            F = (FU if T < 2 else FW) + 8 * (T & 1)
            I(f"s_waitcnt lgkmcnt({4*(3-T)})")
            for s in range(2):
                a, b = vr(XA + 4*s, 4), vr(F + 4*s, 4)
                if swap:
                    a, b = b, a
                c = "0" if s == 0 else vr(acc + 4*T, 4)
                I(f"v_mfma_f32_16x16x32_bf16 {vr(acc+4*T,4)}, {a}, {b}, {c}")
    half_gemm(16384, AP, False)
    def flag_store():
        I(f"s_lshl_b32 s64, s2, {OPT['fs']-2}")
        I("s_add_u32 s64, s64, s84")
        I("s_lshl_b32 s64, s64, 2")
        I(f"s_add_u32 s64, s64, {hex(FLG_OFF)}")
        I("s_sub_u32 s64, s64, s38")
        I("v_mov_b32 v26, s64")
        I("s_mov_b64 exec, 1")
        I(f"global_store_dword v26, v{TG+3}, {WS} sc1")
        I("s_mov_b64 exec, -1")
    if OPT["tst"] == 2:
        I("s_waitcnt vmcnt(2)")
        stamp(29)
        flag_store()
    half_gemm(24576, UU, True)
    I(f"s_mul_i32 s65, s66, {16*EAU_STRIDE}")
    I(f"s_add_u32 s65, s65, {EAU_OFF}")
    I(f"v_mul_u32_u24 v26, {4*EAU_STRIDE}, v125")
    I("v_lshl_add_u32 v26, v124, 4, v26")
    I("v_add_u32 v25, s65, v26")
    I(f"v_mul_u32_u24 v27, {EAU_STRIDE}, v124")
    I("v_lshl_add_u32 v27, v125, 4, v27")
    I("v_add_u32 v27, s65, v27")
    for i in range(16):
        I(f"v_mul_f32 v{AP+i}, s76, v{AP+i}")
    I("s_cmp_eq_u32 s3, 12")
    I("s_cselect_b32 exec_lo, 0x000f000f, -1")
    I("s_cselect_b32 exec_hi, 0x000f000f, -1")
    for T in range(4):
        I(f"ds_write_b128 v27, {vr(UU+4*T,4)} offset:{256 + T*64}")
    I("s_cselect_b32 exec_hi, 0, -1")
    I("s_cselect_b32 exec_lo, 0xffff, -1")
    I(f"v_max3_f32 v26, |v{AP}|, |v{AP+1}|, |v{AP+2}|")
    for i in range(3, 15, 2):
        I(f"v_max3_f32 v26, |v{AP+i}|, |v{AP+i+1}|, v26")
    I(f"v_max_f32 v26, |v{AP+15}|, v26")
    I(f"v_cmp_nge_f32 vcc, {hex(f32(63.0))}, v26")
    EAT = 36
    for r in range(4):
        for t in range(4):
            I(f"v_add_f32 v{EAT+4*r+t}, {hex(f32(-float(KEXP)))}, v{AP+4*t+r}")
        for t in range(4):
            I(f"ds_write_b32 v25, v{AP+4*t+r} offset:{r*EAU_STRIDE + 512 + 4*t}")
            I(f"v_exp_f32 v{EAT+4*r+t}, v{EAT+4*r+t}")
        I("s_nop 0")
        I(f"ds_write_b128 v25, {vr(EAT+4*r,4)} offset:{r*EAU_STRIDE}")
        if r == 0:
            I("s_cbranch_scc1 G_EAD")
    L("G_EAD")
    I("s_mov_b64 exec, -1")
    I("s_cmp_lg_u64 vcc, 0")
    I("s_cselect_b32 s79, 1, 0")
    if OPT["cad"]:
        I("s_branch B_CONST")
    L("B_NOAU")
    if OPT["cad"]:
        I("s_waitcnt vmcnt(0)")
    L("B_CONST")

    RA, CA, KA, RB, CB, KB = 8, 24, 36, 64, 72, 78
    XB, Y, A = 48, 80, 100
    IP = (96, 98, 104, 106)
    UR, XR, VOUT, VU, LP, EP = 108, 112, 116, 117, 118, 120
    WCB, DEN, NUM, VOOB, C4, VRA, VSE, EA, P, Q, SS, LC = 16, 20, 44, 30, 31, 42, 32, 12, 24, 8, 36, 4
    I(f"s_mov_b32 s{S_TAB}, s{P_WS}")
    I(f"s_or_b32 s{S_TAB+1}, s{P_WS+1}, 0x1000000")
    I("v_and_b32 v5, 63, v0")
    I("s_cmp_lt_u32 s2, 212")
    I("s_cselect_b32 s64, 49, 48")
    I("v_cmp_gt_u32 s[82:83], s64, v5")
    I("v_lshlrev_b32 v5, 2, v5")
    I(f"v_and_b32 v{LC}, 15, v0")
    I(f"v_lshlrev_b32 v6, 1, v{LC}")
    for j in range(4):
        I(f"ds_read_u16 v{WCB+j}, v6 offset:{WC_OFF + 32*j}")
    I(f"v_lshlrev_b32 v{LC}, 4, v{LC}")
    I(f"v_mov_b32 v{C4}, 4")
    I(f"v_mov_b32 v{VOOB}, {OOB}")
    for p_ in IP:
        I(f"v_mov_b32 v{p_+1}, v{LC}")
    I(f"v_lshlrev_b32 v{LP}, 1, v6")
    I(f"v_mov_b32 v{LP+1}, v{LC}")
    I("v_lshrrev_b32 v7, 4, v0")
    I(f"v_mul_u32_u24 v{VU}, {EAU_STRIDE}, v7")
    I(f"s_mov_b32 s64, {EAU_OFF + 256}")
    I(f"v_add3_u32 v{VU}, v{VU}, s64, v{LC}")
    I("v_lshlrev_b32 v8, 2, v6")
    I("v_and_b32 v9, 0x70, v0")
    I("v_xor_b32 v9, v8, v9")
    I("v_lshl_add_u32 v9, v7, 7, v9")
    I(f"ds_read_b64 {vr(XR+2,2)}, v9 offset:{X_OFF}")
    I(f"v_lshl_add_u32 v{VOUT}, v7, 15, v8")
    I("s_lshl_b32 s64, s2, 7")
    I(f"v_add_u32 v{VOUT}, s64, v{VOUT}")
    srd(S_X, P_OUT, N * 128)
    for d in range(0, 4, 2):
        I(f"v_mov_b64 {vr(A+d,2)}, 0")
        I(f"v_mov_b64 {vr(DEN+d,2)}, 0")
        I(f"v_mov_b64 {vr(NUM+d,2)}, 0")
    I("s_mov_b64 s[68:69], -1")
    I("s_mov_b64 s[70:71], -1")
    I("s_cmp_lt_u32 s3, 4")
    I("s_cselect_b32 s78, 2, 0")
    I(f"s_mov_b32 s16, {hex(f32(2.0**-KEXP))}")
    I("s_mov_b32 s17, s16")
    I(f"s_mov_b32 s18, {hex(f32(1e-6 * 2.0**KEXP))}")
    I("s_mov_b32 s19, s18")
    I("s_mov_b32 s20, 32")
    I("s_mov_b32 s21, 32")
    I(f"s_mov_b32 s24, {SLOT_STRIDE}")
    I(f"s_mov_b32 s25, {EAU_STRIDE}")
    I(f"s_mov_b32 s85, {LIST_OFF}")
    I("s_mov_b32 s56, 0x11111111")
    I("s_mov_b32 s57, s56")
    I("s_lshl_b64 s[58:59], s[56:57], 1")
    I("s_lshl_b64 s[60:61], s[56:57], 2")
    I("s_lshl_b64 s[62:63], s[56:57], 3")
    I("v_bfe_u32 v124, v0, 4, 2")
    I("v_bfe_u32 v125, v0, 5, 1")
    I("v_bfe_u32 v126, v0, 2, 1")
    I("v_lshl_add_u32 v125, v126, 1, v125")
    I("v_bfe_u32 v126, v0, 3, 2")
    I("v_lshlrev_b32 v126, 2, v126")
    I("v_bfe_u32 v34, v0, 2, 3")
    I("s_lshl_b32 s64, s3, 3")
    I("s_sub_u32 s64, s2, s64")
    I("v_sub_u32 v34, s64, v34")
    I("v_and_b32 v34, 127, v34")
    I("v_and_b32 v35, 32, v0")
    I("v_lshl_add_u32 v34, v35, 2, v34")
    I("v_and_b32 v35, 3, v0")
    if OPT["pf"] or OPT["pf2"] or OPT["pf3"] or OPT["pf4"]:
        I("v_lshlrev_b32 v33, 8, v34")
        I("v_lshl_add_u32 v33, v35, 20, v33")
        I("s_lshr_b32 s64, s2, 4")
        I("s_lshl_b32 s64, s64, 16")
        I("s_bfe_u32 s65, s2, 0x10003")
        I("s_lshl_b32 s65, s65, 7")
        I("s_add_u32 s64, s64, s65")
        I("v_add_u32 v33, s64, v33")
    if OPT["pf5"]:
        I("v_lshlrev_b32 v33, 8, v34")
        I("v_and_b32 v32, 1, v35")
        I("v_lshl_add_u32 v33, v32, 7, v33")
        I("v_lshrrev_b32 v32, 1, v35")
        I("v_lshl_add_u32 v33, v32, 16, v33")
        I("s_sub_u32 s64, s3, 13")
        I("s_lshl_b32 s64, s64, 20")
        I("s_lshr_b32 s65, s2, 7")
        I("s_lshl_b32 s65, s65, 19")
        I("s_add_u32 s64, s64, s65")
        I("v_add_u32 v33, s64, v33")
    I(f"v_lshlrev_b32 v34, {OPT['fs']}, v34")
    I("v_lshl_add_u32 v34, v35, 2, v34")
    I(f"s_sub_u32 s64, {hex(FLG_OFF)}, s38")
    I("v_add_u32 v34, s64, v34")
    I(f"s_mov_b32 s64, {hex(f32(-LOG2E))}")
    I("s_mov_b32 s66, 0x0000ffff")
    I("s_mov_b32 s67, 0xffff0000")
    I("s_waitcnt lgkmcnt(0)")
    for j in range(4):
        I(f"v_lshlrev_b32 v{WCB+j}, 16, v{WCB+j}")
    for j in range(4):
        I(f"v_mul_f32 v{WCB+j}, s64, v{WCB+j}")
    for j in range(4):
        I(f"v_cvt_pk_bf16_f32 v{WCB+j}, 0, v{WCB+j}")
    for j in range(4):
        I(f"v_cndmask_b32 v{WCB+j}, 0, v{WCB+j}, s[66:67]")
    I(f"v_lshlrev_b32 v{XR}, 16, v{XR+2}")
    I(f"v_and_b32 v{XR+1}, 0xffff0000, v{XR+2}")
    I(f"v_lshlrev_b32 v{XR+2}, 16, v{XR+3}")
    I(f"v_and_b32 v{XR+3}, 0xffff0000, v{XR+3}")
    I("s_setprio 0")
    I("s_waitcnt vmcnt(0)")
    if OPT["tst"] != 2:
        I("s_cmp_ge_u32 s3, 12")
        I("s_cbranch_scc0 B_DRD")
    if OPT["tst"] != 2:
        flag_store()
    L("B_DRD")
    if OPT["dbar"]:
        I("s_barrier")
    if OPT["delay"]:
        I(f"s_sleep {OPT['delay']}")
    stamp(9)
    I(f"global_load_dwordx4 {vr(RA,4)}, v2, {WS} sc1")
    I(f"global_load_dwordx4 {vr(RA+4,4)}, v3, {WS} sc1")

    def poll(R_, first, name):
        L(name)
        I("s_waitcnt vmcnt(0)")
        for k in range(2):
            I(f"s_mov_b64 exec, s[{68+2*k}:{69+2*k}]")
            for j in range(4):
                I(f"v_xor_b32 v{R_+4*k+j}, v{TG+j}, v{R_+4*k+j}")
        I("s_mov_b64 exec, -1")
        for k in range(2):
            r = R_ + 4 * k
            I(f"v_or3_b32 v{6+k}, v{r}, v{r+1}, v{r+2}")
            I(f"v_and_b32 v{6+k}, s40, v{6+k}")
            I(f"v_and_or_b32 v{6+k}, v{r+3}, s41, v{6+k}")
            I(f"v_cmp_ne_u32 s[{68+2*k}:{69+2*k}], 0, v{6+k}")
            I(f"v_cmp_gt_u32 s[{64+2*k}:{65+2*k}], s42, v{r+3}")
        if first:
            for k in range(2):
                I(f"s_andn2_b64 s[{64+2*k}:{65+2*k}], s[{64+2*k}:{65+2*k}], s[{68+2*k}:{69+2*k}]")
                I(f"s_lshl_b64 s[{74+2*k}:{75+2*k}], s[{64+2*k}:{65+2*k}], 1")
                I(f"s_or_b64 s[{74+2*k}:{75+2*k}], s[{74+2*k}:{75+2*k}], s[36:37]")
        I("s_and_b64 s[72:73], s[68:69], s[74:75]")
        I("s_and_b64 s[80:81], s[70:71], s[76:77]")
        I("s_or_b64 s[72:73], s[72:73], s[80:81]")
        I(f"s_cbranch_scc1 {name}_RETRY")
    def retry(R_, first, name):
        L(name + "_RETRY")
        if first:
            for k in range(4):
                I(f"s_and_b32 s72, s{68+k}, s{74+k}")
                I("s_lshl_b32 s73, s72, 1")
                I("s_or_b32 s72, s72, s73")
                I("s_lshl_b32 s73, s72, 2")
                I("s_or_b32 s72, s72, s73")
                I("s_lshl_b32 s73, s72, 4")
                I("s_or_b32 s72, s72, s73")
                I(f"s_and_b32 s{68+k}, s{68+k}, s72")
        else:
            I("s_and_b64 s[68:69], s[68:69], s[74:75]")
            I("s_and_b64 s[70:71], s[70:71], s[76:77]")
        I("s_add_u32 s43, s43, 1")
        I(f"s_cmp_gt_u32 s43, {POLL_LIMIT}")
        I("s_cbranch_scc1 R_TIMEOUT")
        if OPT["sleep"]:
            I(f"s_sleep {OPT['sleep']}")
        reload(R_, name)
        I(f"s_branch {name}")
    def reload(R_, name):
        I("s_mov_b64 exec, s[68:69]")
        I(f"s_cbranch_execz {name}_1")
        I(f"global_load_dwordx4 {vr(R_,4)}, v2, {WS} sc1")
        L(name + "_1")
        I("s_mov_b64 exec, s[70:71]")
        I(f"s_cbranch_execz {name}_2")
        I(f"global_load_dwordx4 {vr(R_+4,4)}, v3, {WS} sc1")
        L(name + "_2")
    def ranks(R_, C_, K_, M_):
        for k in range(2):
            for j in range(3):
                I(f"v_lshlrev_b32_sdwa v{C_+3*k+j}, 2, v{R_+4*k+3} {sdwa('BYTE_'+str(j))}")
        for k in range(2):
            I(f"s_mov_b64 exec, s[{74+2*k}:{75+2*k}]")
            for j in range(3):
                m = M_ + 2 * (3 * k + j)
                I(f"v_cmp_gt_u32_sdwa s[{m}:{m+1}], 49, v{R_+4*k+3} src0_sel:DWORD src1_sel:BYTE_{j}")
            for j in range(3):
                m = M_ + 2 * (3 * k + j)
                I(f"s_mov_b64 exec, s[{m}:{m+1}]")
                I(f"ds_add_rtn_u32 v{K_+3*k+j}, v{C_+3*k+j}, v{C4} offset:{C2_OFF}")
        I("s_mov_b64 exec, -1")
    def more_test():
        I("s_and_b64 s[64:65], s[64:65], s[74:75]")
        I("s_and_b64 s[66:67], s[66:67], s[76:77]")
        I("s_or_b64 s[72:73], s[64:65], s[66:67]")
        I("s_or_b32 s72, s72, s73")
        I("s_and_b32 s72, s72, 0x80808080")
    MA, MB = 44, 4

    def pf5(lab):
        I("s_cmp_ge_u32 s3, 13")
        I(f"s_cbranch_scc0 {lab}")
        for k in range(OPT["pf5"]):
            if k:
                I("v_add_u32 v33, 0x20000, v33")
            I(f"global_load_dword v84, v33, {WS} sc1")
        L(lab)
    poll(RA, True, "B_P0")
    stamp(10)
    if OPT["ef"]:
        I(f"global_load_dword v35, v34, {WS} sc1")
    ranks(RA, CA, KA, MA)
    more_test()
    I("s_or_b32 s72, s72, s79")
    I("s_cbranch_scc1 R_MORE")
    L("B_RDONE")
    if OPT["stamp"]:
        I("v_writelane_b32 v127, s43, 19")
    I("s_waitcnt lgkmcnt(0)")
    I("s_barrier")
    stamp(11)
    I(f"ds_read_b32 v6, v5 offset:{C2_OFF}")
    if OPT["drain"]:
        if OPT["pf4"]:
            I(f"s_sub_u32 s71, s3, {OPT['pfw']}")
            I(f"s_cmp_lt_u32 s71, {OPT['pf4']}")
            I("s_cbranch_scc0 B_NOPF4")
            I("s_andn2_b64 exec, exec, s[62:63]")
            I(f"global_load_dword v84, v33, {WS} sc1")
            I("s_mov_b64 exec, -1")
            L("B_NOPF4")
    elif not OPT["ef"]:
        I(f"global_load_dword v35, v34, {WS} sc1")
        if OPT["pf5"] and not OPT["pfa"]:
            pf5("B_NOPF5")
    elif OPT["pf"]:
        I("s_sub_u32 s64, s3, 4")
        I(f"s_cmp_lt_u32 s64, {OPT['pf']}")
        I("s_cbranch_scc0 B_NOPF")
        I("s_waitcnt vmcnt(0)")
        I(f"v_cmp_eq_u32 vcc, v{TG+3}, v35")
        I("s_mov_b64 exec, vcc")
        I("s_cbranch_execz B_NOPF0")
        I(f"global_load_dword v84, v33, {WS} sc1")
        L("B_NOPF0")
        I("s_mov_b64 exec, -1")
        L("B_NOPF")
    I("s_waitcnt lgkmcnt(0)")
    I("v_add_u32 v2, 7, v6")
    I("v_and_b32 v2, -8, v2")
    I("v_max_u32 v2, 8, v2")
    I("v_cndmask_b32 v2, 0, v2, s[82:83]")
    if OPT["pf5"] and OPT["pfa"]:
        pf5("B_NOPF5")
    I("v_mov_b32 v3, v2")
    for d in ("row_shr:1 row_mask:0xf", "row_shr:2 row_mask:0xf", "row_shr:4 row_mask:0xf",
              "row_shr:8 row_mask:0xf", "row_bcast:15 row_mask:0xa", "row_bcast:31 row_mask:0xc"):
        I("s_nop 1")
        I(f"v_add_u32_dpp v3, v3, v3 {d} bank_mask:0xf")
    I("v_sub_u32 v7, v3, v2")
    I(f"ds_write_b32 v5, v7 offset:{BASE}")
    I("v_readlane_b32 s64, v3, 63")
    def lookup(C_):
        for i in range(6):
            I(f"ds_read_b32 v{C_+i}, v{C_+i} offset:{BASE}")
    def scatter(R_, C_, K_, M_):
        for i in range(6):
            if i % 3 == 0:
                I(f"s_waitcnt lgkmcnt({3-i})")
            I(f"v_add3_u32 v{C_+i}, v{C_+i}, v{K_+i}, s85")
        for i in range(6):
            I(f"s_mov_b64 exec, s[{M_+2*i}:{M_+2*i+1}]")
            I(f"ds_write_b32 v{C_+i}, v{R_+4*(i//3)+i%3}")
        I("s_mov_b64 exec, -1")
    lookup(CA)
    I("s_add_u32 s65, s64, 31")
    I("s_lshr_b32 s66, s65, 9")
    I("s_bfe_u32 s67, s65, 0x40005")
    I("s_mul_i32 s68, s66, s3")
    I("s_min_u32 s69, s67, s3")
    I("s_add_u32 s68, s68, s69")
    I("s_lshl_b32 s68, s68, 5")
    I("s_cmp_lt_u32 s3, s67")
    I("s_addc_u32 s72, s66, 0")
    I("s_lshl_b32 s69, s72, 3")
    I("s_add_u32 s70, s68, s85")
    if OPT["pf3"]:
        I(f"s_sub_u32 s71, s3, {OPT['pfw']}")
        I(f"s_cmp_lt_u32 s71, {OPT['pf3']}")
        I("s_cbranch_scc0 B_NOPF3")
        I("s_waitcnt vmcnt(0)")
        I(f"v_cmp_eq_u32 vcc, v{TG+3}, v35")
        I("s_andn2_b64 exec, vcc, s[62:63]")
        I("s_cbranch_execz B_NOPF30")
        I(f"global_load_dword v84, v33, {WS} sc1")
        L("B_NOPF30")
        I("s_mov_b64 exec, -1")
        L("B_NOPF3")
    scatter(RA, CA, KA, MA)
    I(f"v_mul_u32_u24 v{VRA}, s69, v124")
    I(f"v_mul_u32_u24 v{VRA+1}, s69, v125")
    I(f"v_add_u32 v{VRA}, s70, v{VRA}")
    I(f"v_add3_u32 v{VRA+1}, v{VRA+1}, s70, v126")
    if OPT["pf"] and OPT["ef"]:
        I("s_sub_u32 s71, s3, 4")
        I(f"s_cmp_lt_u32 s71, {OPT['pf']}")
        I("s_cbranch_scc1 B_FLW")
    if OPT["pf3"]:
        I(f"s_cmp_lt_u32 s71, {OPT['pf3']}")
        I("s_cbranch_scc1 B_FLW")
    if not OPT["drain"]:
        if OPT["pf5"]:
            I(f"s_waitcnt vmcnt({OPT['pf5']})")
            I("s_cmp_ge_u32 s3, 13")
            I("s_cbranch_scc1 B_FLW")
        I("s_waitcnt vmcnt(0)")
        L("B_FLW")
        I(f"v_cmp_ne_u32 vcc, v{TG+3}, v35")
    I("s_cmp_lg_u32 s78, 0")
    I("s_cbranch_scc1 R_EXTRA")
    L("B_XDONE")
    if not OPT["drain"]:
        I("s_cbranch_vccnz R_FLAGS")
    L("B_FDONE")
    if OPT["pf2"]:
        I(f"s_cmp_lt_u32 s3, {OPT['pf2']}")
        I("s_cbranch_scc0 B_NOPF2")
        I(f"global_load_dword v84, v33, {WS} sc1")
        L("B_NOPF2")
    I("s_waitcnt lgkmcnt(0)")
    I("s_barrier")
    stamp(12)
    def i_reads(batch, lo=0, hi=4):
        for i in range(lo, hi):
            I(f"ds_read_u16 v{IP[i]}, v{VRA} offset:{16*batch + 4*i}")
    def a_reads(batch):
        for d in range(4):
            I(f"s_mov_b64 exec, s[{56+2*d}:{57+2*d}]")
            I(f"ds_read_b32 v{A+d}, v{VRA+1} offset:{16*batch}")
        I("s_mov_b64 exec, -1")
    def gathers(x, lo, hi):
        for i in range(lo, hi):
            I(f"buffer_load_dwordx4 {vr(x+4*i,4)}, {vr(IP[i],2)}, {sr(S_TAB,4)}, 0 idxen offen {OPT['gsc'] if OPT['gsc'] != 'none' else ''}")
    i_reads(0)
    I("v_and_b32 v9, 0x3f0, v0")
    I(f"ds_read_b128 {vr(VSE,4)}, v9 offset:{STR}")
    I(f"ds_read_b32 v8, v1 offset:{FLAG}")
    if OPT["prio"]:
        I("s_setprio 3")
    I("s_waitcnt lgkmcnt(2)")
    gathers(XB, 0, 4)
    stamp(13)
    i_reads(1)
    I(f"ds_read_b128 {vr(EP,4)}, v9 offset:{EPI}")
    I(f"ds_read_b128 {vr(UR,4)}, v{VU}")
    I("s_waitcnt lgkmcnt(6)")
    I("v_readfirstlane_b32 s80, v8")
    I(f"v_lshl_add_u64 {vr(VSE,2)}, {vr(VSE,2)}, 0, {vr(LP,2)}")
    I(f"ds_read_b128 {vr(EA,4)}, v{VSE+1}")
    for q in range(4):
        I(f"v_readlane_b32 s{44+q}, v{VSE+2}, {16*q}")
    I(f"s_cmp_gt_u32 s64, {LIST_MAX}")
    I("s_cselect_b32 s81, 1, 0")
    I("s_or_b32 s80, s80, s81")
    if OPT["force_slow"]:
        I("s_branch K_SLOW")
    I("s_cbranch_scc1 K_SLOW")
    a_reads(0)
    for q in range(4):
        if OPT["cut"] & 8:
            I(f"s_mov_b32 s{44+q}, 0")
        I(f"s_bitset1_b32 s{44+q}, s72")
    I("s_or_b32 s82, s44, s45")
    I("s_or_b32 s83, s46, s47")
    I("s_or_b32 s82, s82, s83")
    if OPT["fp"]:
        th = [int(x) for x in str(OPT["fp"]).split("_")]
        I(f"s_lshl_b32 s81, 1, s72")
        for t_ in th:
            I(f"s_lshr_b32 s80, s81, {t_}")
            I("s_or_b32 s82, s82, s80")
    I("s_bfm_b32 s83, s72, 0")
    I("s_lshr_b32 s83, s83, 4")
    I("s_mov_b32 s73, 0")
    I("s_waitcnt lgkmcnt(5)")
    gathers(XB + 16, 0, 4)
    i_reads(2)
    for k in range(3):
        I(f"v_add_u32 v{EP+k}, v{EP+k}, v{LC}")
    I(f"v_cmp_lt_i32 s[48:49], 2, v{EP+3}")
    I("s_cmp_eq_u32 s72, 0")
    I("s_cbranch_scc1 K_JOIN")
    def mfma(x):
        I(f"v_mfma_f32_32x32x16_bf16 {vr(Y,16)}, {vr(A,4)}, {vr(WCB,4)}, {vr(x,16)}")
    stamp(14)
    I("s_waitcnt vmcnt(4) lgkmcnt(4)")
    mfma(XB)
    stamp(15)
    a_reads(1)
    nth = len(str(OPT["prio"]).split("_")) if OPT["prio"] else 0
    if OPT["prio"]:
        I(f"s_setprio {nth}")
    I("s_nop 2")
    L("K_LOOP")
    if OPT["prio"] and not OPT["fp"]:
        I("s_sub_u32 s74, s72, s73")
        for k, t_ in enumerate(int(x) for x in str(OPT["prio"]).split("_")):
            I(f"s_cmp_gt_u32 s74, {t_}")
            I("s_cbranch_scc1 K_STEP0")
            I(f"s_setprio {nth-1-k}")
    for u in range(4):
        bb, hh = u >> 1, u & 1
        x = XB + 16 * bb + 8 * hh
        t = Y + 8 * hh
        L(f"K_STEP{u}")
        for i in range(8):
            I(f"v_exp_f32 v{t+i}, v{t+i}")
        for i in range(4):
            I(f"v_lshlrev_b64 {vr(x+2*i,2)}, 16, {vr(x+2*i,2)}")
        for i in range(4):
            I(f"v_pk_fma_f32 {vr(t+2*i,2)}, {vr(t+2*i,2)}, {vr(EA+2*(i&1),2)}, s[16:17] clamp")
        I(f"v_pk_mul_f32 {vr(P,2)}, {vr(t,2)}, {vr(t+4,2)}")
        I(f"v_pk_mul_f32 {vr(P+2,2)}, {vr(t+2,2)}, {vr(t+6,2)}")
        I(f"v_pk_mul_f32 {vr(Q,2)}, {vr(x,2)}, {vr(t+4,2)}")
        I(f"v_pk_mul_f32 {vr(Q+2,2)}, {vr(x+2,2)}, {vr(t+6,2)}")
        I(f"v_pk_add_f32 {vr(SS,2)}, {vr(t,2)}, {vr(t+4,2)}")
        I(f"v_pk_add_f32 {vr(SS+2,2)}, {vr(t+2,2)}, {vr(t+6,2)}")
        I(f"v_pk_fma_f32 {vr(Q,2)}, {vr(x+4,2)}, {vr(t,2)}, {vr(Q,2)}")
        I(f"v_pk_fma_f32 {vr(Q+2,2)}, {vr(x+6,2)}, {vr(t+2,2)}, {vr(Q+2,2)}")
        if OPT["sup"]:
            I(f"s_bitcmp1_b32 s83, {u}")
            I(f"s_cselect_b32 s{S_TAB+2}, s{S_TAB+2}, 0")
        if hh == 0:
            I("s_waitcnt lgkmcnt(0)")
            if not OPT["cut"] & 4:
                gathers(XB + 16 * bb, 0, 2)
            for i in range(4):
                I(f"v_rcp_f32 v{P+i}, v{P+i}")
        else:
            I("s_waitcnt vmcnt(2)")
            if not OPT["cut"] & 1:
                mfma(XB + 16 * (1 - bb))
            for i in range(4):
                I(f"v_rcp_f32 v{P+i}, v{P+i}")
            if not OPT["cut"] & 4:
                gathers(XB + 16 * bb, 2, 4)
        I(f"v_pk_fma_f32 {vr(NUM,2)}, {vr(Q,2)}, {vr(P,2)}, {vr(NUM,2)}")
        I(f"v_pk_fma_f32 {vr(DEN,2)}, {vr(SS,2)}, {vr(P,2)}, {vr(DEN,2)}")
        I(f"v_pk_fma_f32 {vr(NUM+2,2)}, {vr(Q+2,2)}, {vr(P+2,2)}, {vr(NUM+2,2)}")
        I(f"v_pk_fma_f32 {vr(DEN+2,2)}, {vr(SS+2,2)}, {vr(P+2,2)}, {vr(DEN+2,2)}")
        if hh == 1:
            if not OPT["cut"] & 4:
                i_reads(bb + 3)
            if not OPT["cut"] & 2:
                a_reads(bb + 2)
        I(f"s_bitcmp1_b32 s82, {u+1}")
        I(f"s_cbranch_scc1 K_FLUSH{u}")
        L(f"K_BACK{u}")
    I(f"v_lshl_add_u64 {vr(VRA,2)}, {vr(VRA,2)}, 0, s[20:21]")
    I("s_lshr_b32 s82, s82, 4")
    I("s_lshr_b32 s83, s83, 4")
    I("s_add_u32 s73, s73, 4")
    I("s_branch K_LOOP")
    for u in range(4):
        L(f"K_FLUSH{u}")
        I(f"s_add_u32 s74, s73, {u+1}")
        for h in range(2):
            I(f"s_bitcmp1_b32 s{44+2*h}, s74")
            I("s_cselect_b32 s75, 0xffff, 0")
            I(f"s_bitcmp1_b32 s{45+2*h}, s74")
            I("s_cselect_b32 s80, 0xffff0000, 0")
            I(f"s_or_b32 {'exec_hi' if h else 'exec_lo'}, s75, s80")
        if OPT["fp"]:
            I("s_sub_u32 s75, s72, s74")
            for k, t_ in enumerate(th):
                I(f"s_cmp_gt_u32 s75, {t_}")
                I(f"s_cbranch_scc1 K_FP{u}")
                I(f"s_setprio {len(th)-1-k}")
            L(f"K_FP{u}")
            I(f"s_cbranch_execz K_FQ{u}")
        I(f"ds_write2_b32 v{VSE}, v{DEN}, v{DEN+1} offset0:0 offset1:16")
        I(f"ds_write2_b32 v{VSE}, v{DEN+2}, v{DEN+3} offset0:32 offset1:48")
        I(f"ds_write2_b32 v{VSE}, v{NUM}, v{NUM+1} offset0:64 offset1:80")
        I(f"ds_write2_b32 v{VSE}, v{NUM+2}, v{NUM+3} offset0:96 offset1:112")
        I("s_cmp_eq_u32 s74, s72")
        I("s_cbranch_scc1 K_JOIN")
        I(f"v_lshl_add_u64 {vr(VSE,2)}, {vr(VSE,2)}, 0, s[24:25]")
        I(f"ds_read_b128 {vr(DEN,4)}, v{VOOB}")
        I(f"ds_read_b128 {vr(NUM,4)}, v{VOOB}")
        I(f"ds_read_b128 {vr(EA,4)}, v{VSE+1}")
        I("s_waitcnt lgkmcnt(0)")
        L(f"K_FQ{u}")
        I("s_mov_b64 exec, -1")
        I(f"s_branch K_BACK{u}")

    L("K_JOIN")
    I("s_mov_b64 exec, -1")
    stamp(16)
    I("s_cmp_lt_u32 s3, 13")
    I("s_waitcnt lgkmcnt(0)")
    I("s_barrier")
    stamp(17)
    I("s_cbranch_scc0 K_FIN")
    stamp(25)
    for k in range(3):
        I(f"ds_read_b128 {vr(8+8*k,4)}, v{EP+k}")
    for k in range(3):
        I(f"ds_read_b128 {vr(12+8*k,4)}, v{EP+k} offset:256")
    I("s_cmp_lg_u64 s[48:49], 0")
    I("s_waitcnt lgkmcnt(3)")
    for k in (1, 2):
        for i in range(2):
            I(f"v_pk_add_f32 {vr(8+2*i,2)}, {vr(8+2*i,2)}, {vr(8+8*k+2*i,2)}")
    I("s_waitcnt lgkmcnt(0)")
    for k in (1, 2):
        for i in range(2, 4):
            I(f"v_pk_add_f32 {vr(8+2*i,2)}, {vr(8+2*i,2)}, {vr(8+8*k+2*i,2)}")
    I("s_cbranch_scc1 R_LONG")
    L("K_MATH")
    stamp(26)
    I("v_pk_add_f32 v[8:9], v[8:9], s[18:19]")
    I("v_pk_add_f32 v[10:11], v[10:11], s[18:19]")
    for c in range(4):
        I(f"v_rcp_f32 v{8+c}, v{8+c}")
    I("s_nop 0")
    I(f"v_pk_fma_f32 v[8:9], v[12:13], v[8:9], {vr(UR,2)}")
    I(f"v_pk_fma_f32 v[10:11], v[14:15], v[10:11], {vr(UR+2,2)}")
    for c in range(4):
        I(f"v_max_f32 v{8+c}, 0, v{8+c}")
    I(f"v_pk_add_f32 v[8:9], v[8:9], {vr(XR,2)}")
    I(f"v_pk_add_f32 v[10:11], v[10:11], {vr(XR+2,2)}")
    I("v_cvt_pk_bf16_f32 v12, v8, v9")
    I("v_cvt_pk_bf16_f32 v13, v10, v11")
    stamp(27)
    I(f"buffer_store_dwordx2 v[12:13], v{VOUT}, {sr(S_X,4)}, 0 offen {OPT['osc'].replace('none','').replace('_',' ')}")
    L("K_FIN")
    stamp(18)
    stamp_out()
    L("K_END")
    I("s_endpgm")

    L("R_PUB2")
    I("s_mov_b64 exec, vcc")
    I(f"ds_read_b128 {vr(C0+8,4)}, v4 offset:{IMG+128}")
    I(f"ds_read_b128 {vr(C0+12,4)}, v4 offset:{IMG+B2+128}")
    I("v_and_b32 v10, 7, v0")
    I(f"v_mul_u32_u24 v10, {3*INC}, v10")
    I(f"v_add_u32 v10, {24*INC}, v10")
    I("s_waitcnt lgkmcnt(0)")
    for b in range(2):
        w3 = C0 + 11 + 4 * b
        I(f"v_and_b32 v{w3}, 0x3f3f3f, v{w3}")
        for j in range(3):
            I(f"v_add_u32 v11, {j*INC}, v10")
            I(f"v_cmp_le_u32 s[70:71], v{8+b}, v11")
            I(f"v_or_b32 v11, {0x3f << (8*j)}, v{w3}")
            I("s_nop 0")
            I(f"v_cndmask_b32 v{w3}, v{w3}, v11, s[70:71]")
    I(f"v_add_u32 v8, {hex(LINE_STRIDE)}, v6")
    I(f"v_add_u32 v9, {hex(LINE_STRIDE)}, v7")
    tagit(C0 + 8)
    tagit(C0 + 12)
    I(f"global_store_dwordx4 v8, {vr(C0+8,4)}, {WS} sc1")
    I(f"global_store_dwordx4 v9, {vr(C0+12,4)}, {WS} sc1")
    I("s_branch A_PUBD")
    retry(RA, True, "B_P0")
    L("R_MORE")
    I("s_cmp_lg_u32 s79, 0")
    I("s_cbranch_scc1 R_REQ")
    if OPT["nol2"]:
        I("s_branch B_RDONE")
    for k in range(4):
        I(f"s_lshr_b32 s{74+k}, s{64+k}, 7")
        I(f"s_and_b32 s{74+k}, s{74+k}, 0x01010101")
        I(f"s_mul_i32 s{74+k}, s{74+k}, 0xff")
    I("s_mov_b64 s[68:69], s[74:75]")
    I("s_mov_b64 s[70:71], s[76:77]")
    I(f"v_add_u32 v2, {hex(LINE_STRIDE)}, v2")
    I(f"v_add_u32 v3, {hex(LINE_STRIDE)}, v3")
    reload(RB, "B_N1")
    poll(RB, False, "B_P1")
    ranks(RB, CB, KB, MB)
    I("s_or_b32 s78, s78, 1")
    more_test()
    I("s_cbranch_scc0 B_RDONE")
    I("s_mov_b32 s79, 1")
    I("s_branch R_REQ")
    retry(RB, False, "B_P1")
    L("R_TIMEOUT")
    I("s_mov_b32 s79, 3")
    for k in range(6):
        I(f"s_mov_b64 s[{MA+2*k}:{MA+2*k+1}], 0")
    I(f"v_mov_b32 v35, v{TG+3}")
    I("v_mov_b32 v33, 0x388000")
    L("R_REQ")
    I("v_mov_b32 v6, s79")
    I(f"ds_or_b32 v1, v6 offset:{FLAG}")
    I("s_branch B_RDONE")
    def bump():
        I(f"s_sub_u32 s71, {hex(CTL_OFF)}, s38")
        I("v_mov_b32 v48, s71")
        I("v_mov_b32 v50, 0x1000000")
        I("v_mov_b32 v51, 0")
        I("s_mov_b64 exec, 1")
        I(f"global_atomic_add_x2 v48, v[50:51], {WS} offset:8 sc1")
        I("s_mov_b64 exec, -1")
    L("R_EXTRA")
    I("s_bitcmp1_b32 s78, 0")
    I("s_cbranch_scc0 R_X2")
    I("s_waitcnt lgkmcnt(0)")
    lookup(CB)
    scatter(RB, CB, KB, MB)
    L("R_X2")
    I("s_bitcmp1_b32 s78, 1")
    I("s_cbranch_scc0 B_XDONE")
    I("s_cmp_eq_u32 s3, 1")
    I("s_cbranch_scc1 R_PAD")
    I("s_add_u32 s71, s66, 1")
    I("v_cvt_f32_u32 v48, s71")
    I("v_cvt_f32_u32 v49, s66")
    I("s_lshl_b32 s73, s67, 2")
    I("s_mul_i32 s71, s71, s73")
    I("v_rcp_f32 v48, v48")
    I("v_rcp_f32 v49, v49")
    I("v_cvt_f32_u32 v50, s71")
    I("v_cvt_f32_u32 v51, s73")
    I("v_fma_f32 v50, -v50, v49, v51")
    I(f"v_mov_b32 v51, {hex(f32(0.125))}")
    def stream_of(dst, src, half):
        I(f"v_cvt_f32_u32 v{dst}, v{src}")
        I(f"v_fma_f32 v{dst}, v{dst}, v51, {half}")
        I(f"v_mul_f32 v52, v{dst}, v48")
        I(f"v_fma_f32 v{dst}, v{dst}, v49, v50")
        I(f"v_max_f32 v{dst}, v{dst}, v52")
        I(f"v_cvt_u32_f32 v{dst}, v{dst}")
    stream_of(53, 3, "-0.5")
    I("s_cmp_eq_u32 s3, 2")
    I("s_cbranch_scc1 R_EPI")
    I("s_cmp_eq_u32 s3, 3")
    I("s_cbranch_scc1 R_FIRST")
    I("v_min_u32 v55, s73, v53")
    I("v_mad_u32_u24 v55, v53, s66, v55")
    I("v_lshrrev_b32 v56, 3, v3")
    I("v_sub_u32 v55, v56, v55")
    I("v_lshlrev_b32 v55, v55, 1")
    I("v_lshlrev_b32 v56, 4, v53")
    I("s_mov_b64 exec, s[82:83]")
    I(f"ds_or_b32 v56, v55 offset:{STR + 8}")
    I("s_mov_b64 exec, -1")
    I("s_branch B_XDONE")
    L("R_FIRST")
    I("v_mov_b32 v54, -1")
    I("v_cndmask_b32 v53, 63, v53, s[82:83]")
    I(f"v_mul_u32_u24 v59, {EAU_STRIDE//4}, v5")
    I(f"v_add_u32 v59, {EAU_OFF}, v59")
    I("v_mov_b32_dpp v54, v53 wave_shr:1 row_mask:0xf bank_mask:0xf")
    I("v_lshl_add_u32 v58, v54, 2, v5")
    I(f"v_mul_i32_i24 v58, {SLOT_STRIDE//4}, v58")
    I(f"v_add_u32 v58, {SLOT_OFF}, v58")
    I("v_lshlrev_b32 v54, 4, v54")
    I("v_lshlrev_b32 v53, 4, v53")
    L("R_FIRST1")
    I("v_cmp_lt_i32 s[74:75], v54, v53")
    I("s_mov_b64 exec, s[74:75]")
    I("s_cbranch_execz R_FIRST2")
    I("v_add_u32 v54, 16, v54")
    I(f"v_add_u32 v58, {SLOT_STRIDE}, v58")
    I(f"ds_write_b64 v54, v[58:59] offset:{STR}")
    I("s_branch R_FIRST1")
    L("R_FIRST2")
    I("s_mov_b64 exec, -1")
    I("s_branch B_XDONE")
    L("R_EPI")
    stream_of(54, 7, "0.5")
    I("v_sub_u32 v59, v53, v54")
    I("v_lshl_add_u32 v56, v54, 2, v5")
    I(f"v_mul_u32_u24 v56, {SLOT_STRIDE//4}, v56")
    I(f"v_add_u32 v56, {SLOT_OFF}, v56")
    I("v_cmp_lt_i32 s[74:75], 0, v59")
    I("v_cmp_lt_i32 s[76:77], 1, v59")
    I(f"v_add_u32 v57, {SLOT_STRIDE}, v56")
    I(f"v_add_u32 v58, {2*SLOT_STRIDE}, v56")
    I(f"v_cndmask_b32 v57, v{VOOB}, v57, s[74:75]")
    I(f"v_cndmask_b32 v58, v{VOOB}, v58, s[76:77]")
    I("v_lshlrev_b32 v55, 2, v5")
    I(f"ds_write_b128 v55, v[56:59] offset:{EPI}")
    I("s_branch B_XDONE")
    L("R_PAD")
    I(f"v_mov_b32 v52, {N}")
    I(f"v_add_u32 v53, {LIST_OFF - 8}, v3")
    I("v_cmp_lt_u32 s[74:75], v6, v2")
    I("s_mov_b64 exec, s[74:75]")
    I("ds_write_b32 v53, v52 offset:4")
    I("v_cmp_eq_u32 s[74:75], 0, v6")
    I("s_mov_b64 exec, s[74:75]")
    I("ds_write_b32 v53, v52")
    I("s_mov_b64 exec, 0x3f")
    I("s_add_u32 s71, s64, s85")
    I("v_add_u32 v53, s71, v5")
    I("ds_write_b32 v53, v52")
    I("s_mov_b64 exec, -1")
    I("s_cmp_eq_u32 s2, 0")
    I("s_cbranch_scc0 B_XDONE")
    bump()
    I("s_branch B_XDONE")
    L("R_FLAGS")
    I("s_add_u32 s43, s43, 1")
    I(f"s_cmp_gt_u32 s43, {POLL_LIMIT}")
    I("s_cbranch_scc1 R_FLAGT")
    I("s_sleep 2")
    I("s_mov_b64 exec, vcc")
    I(f"global_load_dword v35, v34, {WS} sc1")
    I("s_waitcnt vmcnt(0)")
    I(f"v_cmp_ne_u32 vcc, v{TG+3}, v35")
    I("s_mov_b64 exec, -1")
    I("s_branch B_XDONE")
    L("R_FLAGT")
    I("v_mov_b32 v52, 3")
    I(f"ds_or_b32 v1, v52 offset:{FLAG}")
    I("s_branch B_FDONE")
    L("R_LONG")
    I("s_mov_b32 s64, 2")
    I("s_mov_b64 vcc, s[48:49]")
    L("R_LONG1")
    I("s_mov_b64 exec, vcc")
    I(f"v_add_u32 v{EP+2}, {SLOT_STRIDE}, v{EP+2}")
    I(f"ds_read_b128 v[16:19], v{EP+2}")
    I(f"ds_read_b128 v[20:23], v{EP+2} offset:256")
    I("s_add_u32 s64, s64, 1")
    I("s_waitcnt lgkmcnt(0)")
    for i in range(4):
        I(f"v_pk_add_f32 {vr(8+2*i,2)}, {vr(8+2*i,2)}, {vr(16+2*i,2)}")
    I(f"v_cmp_lt_i32 vcc, s64, v{EP+3}")
    I("s_cbranch_vccnz R_LONG1")
    I("s_mov_b64 exec, -1")
    I("s_branch K_MATH")

    L("K_SLOW")
    I("s_load_dwordx8 s[4:11], s[0:1], 0")
    I("s_load_dwordx2 s[12:13], s[0:1], 40")
    I("s_load_dwordx2 s[14:15], s[0:1], 64")
    I("s_setprio 0")
    I("s_waitcnt vmcnt(0) lgkmcnt(0)")
    I("s_cmp_eq_u32 s3, 15")
    I("s_cselect_b32 s71, s80, 0")
    I("s_and_b32 s71, s71, 2")
    I("s_cbranch_scc0 K_SL0")
    bump()
    I("s_waitcnt vmcnt(0)")
    L("K_SL0")
    WB2, WV2 = 40, 72
    I("v_lshrrev_b32 v6, 1, v5")
    I("v_add_u32 v7, 4096, v6")
    for (w, p_) in ((WB2, 12), (WV2, 14)):
        for hf in range(2):
            for k in range(16):
                I(f"global_load_ushort v{w + 16*hf + k}, v{6 + hf}, s[{p_}:{p_+1}] offset:{2*k*128}")
                I(f"global_load_ushort v{8 + k}, v{6 + hf}, s[{p_}:{p_+1}] offset:{(2*k+1)*128}")
            I("s_waitcnt vmcnt(0)")
            for k in range(16):
                I(f"v_lshl_or_b32 v{w + 16*hf + k}, v{8 + k}, 16, v{w + 16*hf + k}")
    for i in range(4):
        I(f"v_mov_b32 v{28+i}, 0")
    I("v_lshlrev_b32 v8, 4, v0")
    for k in range(4):
        I(f"ds_write_b128 v8, v[28:31] offset:{SLOT_OFF + k*16384}")
    I(f"ds_read_u16 v18, v6 offset:{WC_OFF}")
    I(f"s_mov_b32 s18, {hex(f32(1e-6))}")
    I("s_mov_b32 s19, s18")
    I(f"s_mov_b32 s16, {hex(f32(-LOG2E))}")
    I(f"v_lshl_add_u32 v17, v124, 2, v{LC}")
    I("v_lshlrev_b32 v10, 1, v5")
    I("s_waitcnt lgkmcnt(0)")
    I("v_lshlrev_b32 v18, 16, v18")
    I("s_barrier")
    I("v_lshlrev_b32 v8, 2, v0")
    I("v_lshlrev_b32 v9, 1, v0")
    I("s_lshl_b32 s70, s3, 6")
    L("K_SLOOP")
    I(f"global_load_dword v11, v8, {sr(P_DST,2)}")
    I(f"global_load_dword v12, v8, {sr(P_SRC,2)}")
    I(f"global_load_ushort v13, v9, {sr(P_E,2)}")
    I("s_waitcnt vmcnt(0)")
    I("v_and_b32 v14, 0xff, v11")
    I("v_cmp_eq_u32 s[74:75], s2, v14")
    L("K_SIN")
    I("s_cmp_eq_u64 s[74:75], 0")
    I("s_cbranch_scc1 K_SNEXT")
    I("s_ff1_i32_b64 s73, s[74:75]")
    I("s_bitset0_b64 s[74:75], s73")
    I("v_readlane_b32 s79, v11, s73")
    I("v_readlane_b32 s80, v12, s73")
    I("v_readlane_b32 s81, v13, s73")
    I("s_lshr_b32 s79, s79, 8")
    I(f"s_mul_i32 s76, s79, {EAU_STRIDE}")
    I(f"s_add_u32 s76, s76, {EAU_OFF + 512}")
    I(f"s_mul_i32 s79, s79, {ACC_STRIDE}")
    I("s_lshl_b32 s80, s80, 7")
    I("s_add_u32 s78, s80, 64")
    I(f"s_load_dwordx16 s[36:51], {sr(P_X,2)}, s80")
    I(f"s_load_dwordx16 s[52:67], {sr(P_X,2)}, s78")
    I("s_lshl_b32 s81, s81, 16")
    I("v_add_u32 v15, s76, v17")
    I("v_add_u32 v16, s79, v10")
    I("ds_read_b32 v22, v15")
    I("v_mul_f32 v20, s81, v18")
    I("v_mov_b32 v21, 0")
    I("s_waitcnt lgkmcnt(0)")
    for k in range(32):
        I(f"v_dot2_f32_bf16 v20, s{36+k}, v{WB2+k}, v20")
        I(f"v_dot2_f32_bf16 v21, s{36+k}, v{WV2+k}, v21")
    I("s_nop 2")
    I("v_fma_f32 v20, v20, s16, v22")
    I("v_exp_f32 v20, v20")
    I("s_nop 0")
    I("v_add_f32 v20, 1.0, v20")
    I("v_rcp_f32 v20, v20")
    I("s_nop 0")
    I("v_mul_f32 v21, v21, v20")
    I("v_cvt_f64_f32 v[24:25], v20")
    I("v_cvt_f64_f32 v[26:27], v21")
    I(f"ds_add_f64 v16, v[24:25] offset:{SLOT_OFF}")
    I(f"ds_add_f64 v16, v[26:27] offset:{SLOT_OFF + 512}")
    I("s_branch K_SIN")
    L("K_SNEXT")
    I("s_add_u32 s70, s70, 1024")
    I("v_add_u32 v8, 4096, v8")
    I("v_add_u32 v9, 2048, v9")
    I(f"s_cmp_lt_u32 s70, {E}")
    I("s_cbranch_scc1 K_SLOOP")
    I("v_lshrrev_b32 v6, 4, v0")
    I(f"v_mul_u32_u24 v6, {ACC_STRIDE}, v6")
    I(f"v_lshl_add_u32 v6, v{LC}, 1, v6")
    I("s_waitcnt lgkmcnt(0)")
    I("s_barrier")
    I("s_cmp_lt_u32 s3, 13")
    I("s_cbranch_scc0 K_FIN")
    I(f"ds_read_b128 v[16:19], v6 offset:{SLOT_OFF}")
    I(f"ds_read_b128 v[20:23], v6 offset:{SLOT_OFF+16}")
    I(f"ds_read_b128 v[24:27], v6 offset:{SLOT_OFF+512}")
    I(f"ds_read_b128 v[28:31], v6 offset:{SLOT_OFF+528}")
    I("s_waitcnt lgkmcnt(0)")
    for c in range(8):
        I(f"v_cvt_f32_f64 v{8+c}, {vr(16+2*c,2)}")
    I("s_branch K_MATH")
    L("SLOW_END")

hdr = open("standalone__edge_featured_mpnn_gatedgcn__graph.s.ref").read().split("\n")
for line in hdr:
    if line.startswith("; Override"):
        break
    o(line)
o(f"; @launch kernel={KNAME} grid=(256,1,1) block=(1024,1,1) lds={LDS_TOTAL}")
o('.amdgcn_target "amdgcn-amd-amdhsa--gfx950"')
o(".text")
gen()
o('.section .rodata,"a"')
o(".p2align 6")
o(f".amdhsa_kernel {KNAME}")
o("  .amdhsa_next_free_vgpr 128")
o("  .amdhsa_next_free_sgpr 102")
o("  .amdhsa_accum_offset 128")
o("  .amdhsa_group_segment_fixed_size 0")
o("  .amdhsa_kernarg_size 96")
o("  .amdhsa_user_sgpr_count 2")
o("  .amdhsa_user_sgpr_kernarg_segment_ptr 1")
o("  .amdhsa_system_sgpr_workgroup_id_x 1")
o(".end_amdhsa_kernel")
open(sys.argv[1], "w").write("\n".join(out) + "\n")
```

```python
import sys, struct

OPT = dict(stamp=0, sts="2_3_4_5_6_7", force_slow=0, prio="16_8_4", spin=0, spinat=18, hack=0, sleep=2, delay=0,
           codepf=1, gprio=1, pf=0, pf2=0, pre=1, cfirst=0, gbar=0, init1=1, pf3=0, pfw=0, drain=0, pf4=0, tlb=0, gl=0, pf5=0, pfa=1, osc="sc1", w32=0, fw=1, fl=0, dbar=0, wsb=0, pinv=0, nreg=16, probe=0, tst=2, pop=1, cad=1, fp="", e12=0, nol2=0, amp=0, ampw=0, ampg=-1, ampm=10, esc="none", sup=1, cprio=1, nog=0, gsc="sc1", cut=0, ef=0, fs=4)
for a in sys.argv[2:]:
    k, v = a.split("=")
    OPT[k] = int(v) if v.lstrip("-").isdigit() else v

KNAME = "standalone__edge_featured_mpnn_gatedgcn__graph_kernel"
N = 12500
E = 800000
CHUNK = 3136
TAB_ROWS = N + 1
CTL_OFF = 0xF900000
REG_STRIDE = 13 << 20
FLG_OFF = CTL_OFF + 0x10000
CELL_OFF = 0x400000
BIN_STRIDE = 32768 + 256
LINE_STRIDE = 0x900000
STAMP_OFF = 0xF000000
LOG2E = 1.4426950408889634
KEXP = 62
POLL_LIMIT = 100000

X_OFF = 0
WC_OFF = 8192
C1_OFF = 8448
C2_OFF = 9472
FLAG = C2_OFF + 256
SYNC = C2_OFF + 260
TAGS = C2_OFF + 272
BASE = C2_OFF + 512
STR = C2_OFF + 1024
EPI = C2_OFF + 2048
IMG = C2_OFF + 3072
IMG_STRIDE = 272
EAU_OFF = IMG + 256 * IMG_STRIDE
EAU_STRIDE = 800
W_OFF = EAU_OFF + 52 * EAU_STRIDE
LDS_TOTAL = W_OFF + 32768
LIST_OFF = W_OFF
LIST_MAX = 31 * 16 * 32
SLOT_OFF = IMG
SLOT_STRIDE = 512
ACC_STRIDE = 1056
OOB = 0x30000
assert W_OFF % 128 == 0 and 117 * SLOT_STRIDE <= 256 * IMG_STRIDE and LDS_TOTAL <= 163840
INC = 0x5556

def f32(x):
    return struct.unpack("<I", struct.pack("<f", x))[0]

out = []
def o(s=""):
    out.append(s)
def I(s):
    out.append("    " + s)
def L(s):
    out.append(s + ":")
def vr(a, n=1):
    return f"v{a}" if n == 1 else f"v[{a}:{a+n-1}]"
def sr(a, n=1):
    return f"s{a}" if n == 1 else f"s[{a}:{a+n-1}]"
def sdwa(sel1):
    return f"dst_sel:DWORD dst_unused:UNUSED_PAD src0_sel:DWORD src1_sel:{sel1}"

P_X, P_E, P_SRC, P_DST, P_WA, P_WB, P_WC, P_WU, P_WV, P_OUT, P_DBG, P_WS = 4, 6, 8, 10, 12, 14, 16, 18, 20, 22, 24, 26
S_TAB, S_X = 28, 32
WS = sr(P_WS, 2)

STS = [int(x) for x in str(OPT["sts"]).split("_")] if OPT["stamp"] else []
RTS = {12: 28, 17: 29} if OPT["stamp"] == 2 else {}
def stamp(i):
    if OPT["amp"]:
        if i == 1:
            I("s_memrealtime s[98:99]")
        if i == OPT["amp"]:
            I("s_memrealtime s[96:97]")
        if i == 18:
            I(f"s_cmp_eq_u32 s3, {OPT['ampw']}")
            I("s_cbranch_scc0 AMP_D")
            if OPT["ampg"] >= 0:
                I(f"s_cmp_eq_u32 s2, {OPT['ampg']}")
                I("s_cbranch_scc0 AMP_D")
            I("s_waitcnt lgkmcnt(0)")
            I("s_sub_u32 s96, s96, s98")
            I(f"s_mul_i32 s96, s96, {OPT['ampm']}")
            I("s_add_u32 s96, s96, 3000")
            I("s_min_u32 s96, s96, 100000")
            L("AMP_W")
            I("s_memrealtime s[90:91]")
            I("s_waitcnt lgkmcnt(0)")
            I("s_sub_u32 s90, s90, s98")
            I("s_cmp_lt_u32 s90, s96")
            I("s_cbranch_scc1 AMP_W")
            L("AMP_D")
    if OPT["spin"] and OPT["spinat"] == i:
        lab = f"SPIN_{len(out)}"
        I("s_cselect_b32 s92, 1, 0")
        L(lab)
        I("s_memrealtime s[90:91]")
        I("s_waitcnt lgkmcnt(0)")
        I("s_sub_u32 s90, s90, s98")
        I(f"s_cmp_lt_u32 s90, {OPT['spin']}")
        I(f"s_cbranch_scc1 {lab}")
        I("s_cmp_lg_u32 s92, 0")
    if not OPT["stamp"]:
        return
    if i == 0:
        I("s_memrealtime s[86:87]")
    elif i == 1:
        I("s_memtime s[88:89]")
    elif i in STS:
        k = 90 + 2 * STS.index(i)
        I(f"s_memtime s[{k}:{k+1}]")
        if i in RTS:
            k = 90 + 2 * STS.index(RTS[i])
            I(f"s_memrealtime s[{k}:{k+1}]")
def stamp_out():
    if not OPT["stamp"]:
        return
    I("s_mov_b64 exec, -1")
    I("s_waitcnt vmcnt(0) lgkmcnt(0)")
    I("s_memtime s[80:81]")
    I("s_memrealtime s[82:83]")
    I("s_waitcnt lgkmcnt(0)")
    I("v_writelane_b32 v127, s80, 30")
    I("v_writelane_b32 v127, s82, 31")
    I("v_writelane_b32 v127, s86, 0")
    I("v_writelane_b32 v127, s88, 1")
    for i in list(range(2, 19)) + list(range(20, 30)):
        I(f"v_writelane_b32 v127, s{90 + 2*STS.index(i) if i in STS else 88}, {i}")
    I("s_lshl_b32 s84, s2, 4")
    I("s_add_u32 s84, s84, s3")
    I("s_lshl_b32 s84, s84, 7")
    I(f"s_add_u32 s84, s84, {hex(STAMP_OFF)}")
    I("s_sub_u32 s84, s84, s38")
    I("v_and_b32 v1, 63, v0")
    I("v_lshl_add_u32 v1, v1, 2, s84")
    I("s_mov_b64 exec, 0xffffffff")
    I(f"global_store_dword v1, v127, {WS}")

def srd(d, p, size):
    I(f"s_mov_b64 {sr(d,2)}, {sr(p,2)}")
    I(f"s_mov_b32 s{d+2}, {hex(size)}")
    I(f"s_mov_b32 s{d+3}, 0x20000")

D, S, EE = 16, 20, 24
AP = 104
TG = 120
B2 = 128 * IMG_STRIDE

def edge_loads(lo=0, hi=3):
    ins = [f"global_load_dwordx4 {vr(D,4)}, v10, {sr(P_DST,2)}",
           f"global_load_dwordx4 {vr(S,4)}, v10, {sr(P_SRC,2)}",
           f"global_load_dwordx2 {vr(EE,2)}, v11, {sr(P_E,2)}"]
    for x in ins[lo:hi]:
        I(x + " " + OPT["esc"].replace("none", ""))

def claim():
    op = {1: "global_atomic_or v8, v12", 2: "global_store_dword v8, v12"}[OPT["pop"]]
    I("v_lshlrev_b32 v8, 16, v0")
    I("s_lshl_b32 s64, s2, 8")
    I("v_add_u32 v8, s64, v8")
    I(f"s_mov_b32 exec_hi, {hex((1 << 17) - 1)}")
    I(f"{op}, {WS} sc1")
    I(f"{op}, {WS} offset:128 sc1")
    I("s_mov_b64 exec, -1")

def binning(waits, extra=0, hook=None):
    B4, RK, PA = 28, 32, 36
    I(f"v_mov_b32 v14, {INC}")
    I(f"s_mov_b32 s68, {47*INC}")
    I("s_mov_b32 s69, 0x05040100")
    I("s_mov_b32 s70, 0x07060100")
    if waits:
        I(f"s_waitcnt vmcnt({2+extra})")
        stamp(3)
    for i in range(4):
        I(f"v_lshlrev_b32_sdwa v{B4+i}, 2, v{D+i} {sdwa('BYTE_0')}")
        I(f"ds_add_rtn_u32 v{RK+i}, v{B4+i}, v14 offset:{C1_OFF}")
    for i in range(4):
        I(f"v_mul_u32_u24 v{B4+i}, {IMG_STRIDE//4}, v{B4+i}")
        I(f"v_lshrrev_b32 v{D+i}, 8, v{D+i}")
    for i in range(4):
        I("s_waitcnt lgkmcnt(3)")
        I(f"v_min_u32 v{RK+i}, s68, v{RK+i}")
        I(f"v_lshrrev_b32 v{RK+i}, 14, v{RK+i}")
        I(f"v_lshl_add_u32 v{PA+i}, v{RK+i}, 2, v{B4+i}")
        I(f"v_and_b32 v{RK+i}, 3, v{RK+i}")
        I(f"v_or3_b32 v{RK+i}, v{PA+i}, 12, v{RK+i}")
        I(f"ds_write_b8 v{RK+i}, v{D+i} offset:{IMG}")
    if waits:
        if hook:
            hook()
        else:
            I(f"s_waitcnt vmcnt({extra})")
            stamp(4)
    for i in range(4):
        if OPT["hack"]:
            I(f"v_and_b32 v{S+i}, {OPT['hack']}, v{S+i}")
        I(f"v_perm_b32 v{S+i}, v{EE+(i>>1)}, v{S+i}, s{69+(i&1)}")
        I(f"ds_write_b32 v{PA+i}, v{S+i} offset:{IMG}")

def copy_consts():
    I("s_lshr_b32 s64, s2, 7")
    I("s_lshl_b32 s64, s64, 14")
    I(f"s_add_u32 s64, s64, {hex(CELL_OFF)}")
    I(f"v_mul_u32_u24 v6, {BIN_STRIDE//4}, v5")
    I("v_lshl_add_u32 v6, v0, 4, v6")
    I("v_add_u32 v6, s64, v6")
    I(f"v_add_u32 v7, {128*BIN_STRIDE}, v6")
    I(f"s_mul_i32 s64, s2, {BIN_STRIDE}")
    I(f"s_add_u32 s64, s64, {hex(CELL_OFF)}")
    I("v_lshl_add_u32 v2, v0, 4, s64")
    I("v_add_u32 v3, 0x4000, v2")
    I("s_mov_b32 s36, 0x0f0f0f0f")
    I("s_mov_b32 s37, s36")
    if OPT["w32"] == 2:
        I("v_mov_b32 v102, 0")
    elif OPT["w32"]:
        I("v_bfe_u32 v102, v0, 1, 2")
        I("v_bfe_u32 v103, v0, 2, 1")
        I(f"v_mul_u32_u24 v102, {6*INC}, v102")
        I("v_mul_u32_u24 v102, v102, v103")
    else:
        I("v_bfe_u32 v102, v0, 2, 1")
        I(f"v_mul_u32_u24 v102, {12*INC}, v102")
    I(f"s_mov_b32 s39, {24*INC}")
    I("s_mov_b32 s40, 0xc000")
    I("s_mov_b32 s41, 0xffc0c0c0")
    I(f"s_mov_b32 s42, {49 << 16}")
    I("s_mov_b32 s43, 0")
    I("v_mov_b32 v1, 0")
    I(f"s_mov_b32 s{S_TAB+2}, {0 if OPT['nog'] else TAB_ROWS}")
    I(f"s_mov_b32 s{S_TAB+3}, 0x20000")

def lds_init():
    I("v_add_u32 v5, s2, v3")
    I("v_and_b32 v5, 127, v5")
    I(f"v_mul_u32_u24 v4, {IMG_STRIDE}, v5")
    I("v_lshl_add_u32 v4, v2, 4, v4")
    I("v_lshlrev_b32 v5, 2, v5")
    I("v_mov_b32 v12, 0")
    I("v_mov_b32 v13, 0x3f3f3f")
    I(f"ds_write2st64_b32 v5, v12, v12 offset0:{C1_OFF//256} offset1:{C1_OFF//256+2}")
    for r in range(1 if OPT["init1"] else 2):
        for b in range(2):
            I(f"ds_write_b32 v4, v13 offset:{IMG + b*B2 + r*128 + 12}")
def edge_addr():
    I(f"s_mul_i32 s64, s2, {CHUNK*4}")
    I("v_lshl_add_u32 v10, v0, 4, s64")
    I("v_lshrrev_b32 v11, 1, v10")

def gen():
    o(".p2align 8")
    o(f".globl {KNAME}")
    o(f".type {KNAME},@function")
    L(KNAME)
    I("s_cmp_ge_u32 s2, 256")
    I("s_cbranch_scc1 K_END")
    stamp(0); stamp(1)
    I("s_load_dwordx16 s[4:19], s[0:1], 0")
    I("s_load_dwordx8 s[20:27], s[0:1], 64")
    if OPT["spin"]:
        I("s_memrealtime s[98:99]")
    I("v_lshrrev_b32 v1, 6, v0")
    I("v_and_b32 v2, 7, v0")
    I("v_readfirstlane_b32 s3, v1")
    I("v_lshrrev_b32 v3, 3, v0")
    I("s_mov_b32 s79, 0")
    I("s_cmp_ge_u32 s3, 12")
    I("s_cbranch_scc1 G_ENTRY")

    I("s_cmp_ge_u32 s3, 2")
    I("s_cbranch_scc1 A_NOPF")
    if OPT["codepf"]:
        I("s_getpc_b64 s[64:65]")
        L("A_PC")
        I("v_lshlrev_b32 v8, 7, v0")
        I("v_min_u32 v8, K_SLOW-A_PC-4, v8")
        I("global_load_dword v27, v8, s[64:65]")
    I("v_lshlrev_b32 v8, 4, v0")
    I("v_mov_b64 v[12:13], 0")
    I("v_mov_b64 v[14:15], 0")
    I(f"ds_write_b128 v8, v[12:15] offset:{C2_OFF}")
    L("A_NOPF")
    lds_init()
    edge_addr()
    I(f"v_cmp_gt_u32 vcc, {E*4}, v10")
    I("s_waitcnt lgkmcnt(0)")
    stamp(24)
    if OPT["wsb"]:
        I(f"s_add_u32 s{P_WS}, s{P_WS}, {hex(OPT['wsb'] << 20)}")
        I(f"s_addc_u32 s{P_WS+1}, s{P_WS+1}, 0")
    I("s_mov_b64 exec, vcc")
    I("s_cbranch_execz A_NOE")
    I("s_cmp_eq_u32 s3, 1")
    I("s_cbranch_scc1 A_W1")
    edge_loads(0, OPT["pre"])
    I("s_barrier")
    stamp(2)
    edge_loads(OPT["pre"], 3)
    I("s_mov_b64 exec, -1")
    copy_consts()
    I("s_mov_b64 exec, vcc")
    binning(True)
    I("s_mov_b64 exec, -1")
    I("s_branch A_JOIN")
    L("A_W1")
    I("s_cmp_eq_u32 s2, 0")
    I("s_cbranch_scc0 A_NOPICK")
    I("s_memrealtime s[70:71]")
    I("s_waitcnt lgkmcnt(0)")
    I("s_bfe_u32 s70, s70, 0x40003")
    I("s_add_u32 s70, s70, 1")
    I("v_mov_b32 v14, s70")
    I("v_mov_b32 v15, 0")
    I("s_mov_b64 exec, 1")
    I(f"global_atomic_cmpswap v12, v[14:15], {sr(P_DBG,2)} sc1")
    I("s_mov_b64 exec, vcc")
    L("A_NOPICK")
    edge_loads(0, OPT["pre"])
    I(f"s_add_u32 s70, s{P_WS}, {hex(CTL_OFF)}")
    I(f"s_addc_u32 s71, s{P_WS+1}, 0")
    I("s_load_dwordx2 s[72:73], s[70:71], 8")
    if OPT["fw"]:
        I(f"s_lshl_b32 s74, s2, {OPT['fs']}")
        I(f"s_add_u32 s74, s74, {hex(FLG_OFF - CTL_OFF)}")
        I("s_load_dword s75, s[70:71], s74")
    I("s_barrier")
    edge_loads(OPT["pre"], 3)
    I("s_mov_b64 exec, -1")
    copy_consts()
    I("s_mov_b64 exec, 1")
    I(f"global_load_dword v26, v1, {sr(P_DBG,2)} sc1")
    I("s_mov_b64 exec, vcc")
    def area_hook():
        I("s_mov_b64 exec, 1")
        L("A_AREA")
        I("s_waitcnt vmcnt(0)")
        I("v_readfirstlane_b32 s64, v26")
        I("s_cmp_lg_u32 s64, 0")
        I("s_cbranch_scc1 A_AREAD")
        I(f"global_load_dword v26, v1, {sr(P_DBG,2)} sc1")
        I("s_add_u32 s43, s43, 1")
        I(f"s_cmp_le_u32 s43, {POLL_LIMIT}")
        I("s_cbranch_scc1 A_AREA")
        I("s_waitcnt vmcnt(0)")
        L("A_AREAD")
        I(f"s_and_b32 s64, s64, {OPT['nreg']-1}")
        I(f"s_mul_i32 s64, s64, {REG_STRIDE}")
        I("s_add_u32 s64, s64, 1")
        I("v_mov_b32 v26, s64")
        I(f"ds_write_b32 v1, v26 offset:{TAGS+16}")
        I("s_mov_b64 exec, vcc")
    binning(True, 1, area_hook)
    I("s_mov_b64 exec, 1")
    I("s_waitcnt lgkmcnt(0)")
    I("s_add_u32 s72, s72, 0x1000000")
    I("s_addc_u32 s73, s73, 0")
    I("s_and_b32 s72, s72, 0xff000000")
    for k in range(3):
        I(f"s_bfe_u32 s64, s73, {hex((2 << 16) | (2*k))}")
        I(f"s_lshl_b32 s64, s64, {6 + 8*k}")
        I("s_or_b32 s72, s72, s64")
        I(f"s_bfe_u32 s64, s73, {hex((2 << 16) | (6 + 2*k))}")
        I("s_lshl_b32 s64, s64, 14")
        I(f"v_mov_b32 v{TG+k}, s64")
    I(f"v_mov_b32 v{TG+3}, s72")
    I(f"ds_write_b128 v1, {vr(TG,4)} offset:{TAGS}")
    I("s_mov_b64 exec, -1")
    I("s_branch A_JOIN")
    L("A_NOE")
    I("s_barrier")
    I("s_mov_b64 exec, -1")
    copy_consts()
    I("s_branch A_JOIN")

    XA, FA, FB, ACC1, ACC2 = 28, 36, 68, 104, 36
    L("G_ENTRY")
    if OPT["gprio"]:
        I("s_setprio 3")
    I("v_and_b32 v7, 7, v3")
    I("s_and_b32 s64, s3, 1")
    I("s_lshl_b32 s64, s64, 2")
    I("v_and_b32 v8, 2, v7")
    I("v_xor_b32 v8, v8, v2")
    I("v_xor_b32 v8, s64, v8")
    I("v_lshlrev_b32 v8, 4, v8")
    I("v_lshl_add_u32 v8, v7, 7, v8")
    I("s_and_b32 s65, s3, 3")
    I("s_lshl_b32 s65, s65, 11")
    I("v_add_u32 v8, s65, v8")
    I(f"s_add_u32 s65, s65, {W_OFF}")
    I("s_add_u32 s66, s3, 3")
    I("s_and_b32 s66, s66, 3")
    I("v_xor_b32 v9, v2, v7")
    I("v_lshlrev_b32 v9, 4, v9")
    I("v_lshl_add_u32 v9, v7, 15, v9")
    I("s_lshl_b32 s67, s66, 19")
    I("s_lshl_b32 s68, s2, 7")
    I("s_add_u32 s67, s67, s68")
    I("v_add_u32 v9, s67, v9")
    I("v_add_u32 v15, 0x40000, v9")
    I("s_lshl_b32 s67, s66, 11")
    I(f"s_mov_b32 s{S_X+2}, {N*128}")
    I(f"s_mov_b32 s{S_X+3}, 0x20000")
    I("s_mov_b32 m0, s67")
    I("s_waitcnt lgkmcnt(0)")
    stamp(24)
    if OPT["wsb"]:
        I(f"s_add_u32 s{P_WS}, s{P_WS}, {hex(OPT['wsb'] << 20)}")
        I(f"s_addc_u32 s{P_WS+1}, s{P_WS+1}, 0")
    I(f"s_mov_b64 {sr(S_X,2)}, {sr(P_X,2)}")
    I(f"buffer_load_dwordx4 v9, {sr(S_X,4)}, 0 offen lds")
    I("s_add_u32 m0, s67, 1024")
    I("s_nop 0")
    I(f"buffer_load_dwordx4 v15, {sr(S_X,4)}, 0 offen lds")
    def w_dma(p, off, va="v8", sd="s65"):
        I(f"s_add_u32 m0, {sd}, {off}")
        I("s_nop 0")
        I(f"global_load_lds_dwordx4 {va}, {sr(p,2)}")
        I(f"global_load_lds_dwordx4 {va}, {sr(p,2)} offset:1024")
    w_dma(P_WB, 0)
    w_dma(P_WV, 8192)
    lds_init()
    edge_addr()
    if OPT["gbar"]:
        I("s_waitcnt lgkmcnt(0)")
        I("s_barrier")
        stamp(2)
    I("s_cmp_eq_u32 s3, 12")
    I("s_cselect_b32 s74, 0xffff, 0")
    I("s_cmp_eq_u32 s2, 255")
    I("s_cselect_b32 s74, 0, s74")
    I("s_mov_b32 s75, 0")
    I("s_mov_b64 exec, s[74:75]")
    I("s_cbranch_execz G_NOE")
    edge_loads()
    L("G_NOE")
    I("s_mov_b64 exec, -1")

    I("v_mov_b32 v126, v8")
    I("v_lshlrev_b32 v100, 4, v2")
    I("s_mov_b32 s78, s65")
    I(f"s_mov_b32 s{S_X+2}, {TAB_ROWS*256}")
    copy_consts()
    I("v_and_b32 v124, 15, v0")
    I("v_bfe_u32 v125, v0, 4, 2")
    I("v_and_b32 v8, 7, v124")
    I("v_lshlrev_b32 v9, 1, v125")
    I("v_xor_b32 v8, v8, v9")
    I("v_lshlrev_b32 v8, 4, v8")
    I("v_lshl_add_u32 v8, v124, 7, v8")
    I("v_add_u32 v8, s67, v8")
    I("v_xor_b32 v9, 16, v8")
    I("v_lshrrev_b32 v10, 2, v124")
    I("v_and_b32 v11, 2, v10")
    I("v_bfe_u32 v12, v0, 1, 1")
    I("v_or_b32 v11, v11, v12")
    I("v_and_b32 v12, 1, v125")
    I("v_lshl_or_b32 v11, v12, 2, v11")
    I("v_lshlrev_b32 v11, 4, v11")
    I("v_and_b32 v12, 1, v0")
    I("v_lshl_or_b32 v11, v12, 3, v11")
    I("v_lshl_add_u32 v10, v125, 4, v10")
    I("v_lshl_or_b32 v11, v10, 7, v11")
    I(f"v_add_u32 v12, {W_OFF}, v11")
    for T in range(1, 4):
        I(f"v_xor_b32 v{12+T}, {T << 5}, v12")
    I(f"s_mov_b32 s76, {hex(f32(-LOG2E))}")
    I("s_mov_b32 s77, 0x07060302")
    I(f"v_mov_b32 v26, {hex(f32(2.0**-70))}")
    I("s_lshl_b32 s64, s66, 20")
    I("s_lshl_b32 s65, s2, 8")
    I("s_add_u32 s64, s64, s65")
    I("v_lshlrev_b32 v27, 18, v125")
    I("v_lshl_add_u32 v27, v124, 4, v27")
    I("v_add_u32 v27, s64, v27")
    I("v_mov_b32 v10, 1")
    def g_sync(target, lab, arrive=True):
        if arrive:
            I("s_mov_b64 exec, 1")
            I(f"ds_add_u32 v1, v10 offset:{SYNC}")
            I("s_mov_b64 exec, -1")
        L(lab)
        I(f"ds_read_b32 v11, v1 offset:{SYNC}")
        I("s_waitcnt lgkmcnt(0)")
        I("v_readfirstlane_b32 s64, v11")
        I(f"s_cmp_lt_u32 s64, {target}")
        I(f"s_cbranch_scc1 {lab}")
    def frag_reads(F, moff):
        for T in range(4):
            for s in range(2):
                for h in range(2):
                    I(f"ds_read_b64_tr_b16 {vr(F + 8*T + 4*s + 2*h, 2)}, v{12+T} offset:{moff + (8*s+4*h)*128}")
    def mfmas(F, acc, swap, later):
        for T in range(4):
            I(f"s_waitcnt lgkmcnt({min(15, later + 4*(3-T))})")
            for s in range(2):
                a, b = vr(XA + 4*s, 4), vr(F + 8*T + 4*s, 4)
                if swap:
                    a, b = b, a
                c = "0" if s == 0 else vr(acc + 4*T, 4)
                I(f"v_mfma_f32_16x16x32_bf16 {vr(acc+4*T,4)}, {a}, {b}, {c}")
    if not OPT["gbar"]:
        I("s_waitcnt lgkmcnt(0)")
        I("s_barrier")
        stamp(2)
    I("s_cmp_eq_u64 s[74:75], 0")
    I("s_cbranch_scc1 G_W0")
    I("s_waitcnt vmcnt(3)")
    I("s_branch G_W1")
    L("G_W0")
    I("s_waitcnt vmcnt(0)")
    L("G_W1")
    stamp(3)
    g_sync(4, "G_S1")
    stamp(20)
    I(f"ds_read_b128 {vr(XA,4)}, v8")
    I(f"ds_read_b128 {vr(XA+4,4)}, v9")
    frag_reads(FA, 0)
    frag_reads(FB, 8192)
    stamp(21)
    w_dma(P_WA, 16384, "v126", "s78")
    w_dma(P_WU, 24576, "v126", "s78")
    I("s_cmp_eq_u32 s3, 13")
    I("s_cbranch_scc0 G_NOWC")
    I(f"s_mov_b32 m0, {WC_OFF}")
    I("s_mov_b64 exec, 0xff")
    I(f"global_load_lds_dwordx4 v100, {sr(P_WC,2)}")
    I("s_mov_b64 exec, -1")
    L("G_NOWC")
    stamp(22)
    mfmas(FA, ACC1, False, 16)
    mfmas(FB, ACC2, False, 0)
    stamp(23)
    ACCB, ACCV, OUTR = ACC1, ACC2, FB
    SD = sdwa("WORD_1")
    I("s_mov_b32 s80, 0x8000")
    I("s_mov_b32 s81, 0x8000")
    I(f"s_mov_b32 s68, {hex(f32(2.0**-100))}")
    I("s_mov_b32 s69, s68")
    I("v_mov_b32 v10, v26")
    I("v_mov_b32 v11, v26")
    I("s_nop 1")
    for rp in (0, 2):
        for t in range(4):
            I(f"v_pk_fma_f32 {vr(ACCB+4*t+rp,2)}, {vr(ACCB+4*t+rp,2)}, s[76:77], v[10:11] op_sel_hi:[1,0,1]")
        for t in (1, 3):
            I(f"v_pk_add_f32 {vr(ACCV+4*t+rp,2)}, {vr(ACCV+4*t+rp,2)}, s[68:69]")
        for t in range(4):
            I(f"v_lshl_add_u64 {vr(ACCB+4*t+rp,2)}, {vr(ACCB+4*t+rp,2)}, 0, s[80:81]")
        for t in range(4):
            I(f"v_lshl_add_u64 {vr(ACCV+4*t+rp,2)}, {vr(ACCV+4*t+rp,2)}, 0, s[80:81]")
        for r in (rp, rp + 1):
            for t in (0, 2):
                I(f"v_sub_u32_sdwa v{ACCB+4*t+r}, v{ACCB+4*t+r}, v{ACCV+4*t+r} clamp {SD}")
            for t in (0, 2):
                I(f"v_sub_u32_sdwa v{ACCV+4*(t+1)+r}, v{ACCV+4*(t+1)+r}, v{ACCB+4*t+r} clamp {SD}")
            for t in (0, 2):
                I(f"v_sub_u32_sdwa v{ACCB+4*(t+1)+r}, v{ACCB+4*(t+1)+r}, v{ACCV+4*(t+1)+r} clamp {SD}")
            for t in range(4):
                I(f"v_perm_b32 v{OUTR+4*r+t}, v{ACCB+4*t+r}, v{ACCV+4*t+r}, s77")
            if r == 0:
                if OPT["tst"] == 2:
                    L("G_AREA")
                    I(f"ds_read_b32 v26, v1 offset:{TAGS+16}")
                    I("s_waitcnt lgkmcnt(0)")
                    I("v_readfirstlane_b32 s64, v26")
                    I("s_sub_u32 s64, s64, 1")
                    I("s_cbranch_scc1 G_AREA")
                    I(f"s_add_u32 s{S_X}, s{P_WS}, s64")
                    I(f"s_addc_u32 s{S_X+1}, s{P_WS+1}, 0")
                I("s_cmp_eq_u32 s3, 12")
                I("s_cbranch_scc1 G_T3")
            elif OPT["tst"] == 2:
                I("v_add_u32 v27, 0x10000, v27")
            if OPT["tst"] == 2:
                I(f"buffer_store_dwordx4 {vr(OUTR+4*r,4)}, v27, {sr(S_X,4)}, 0 offen sc1")

    stamp(4)
    L("G_BVD")
    I(f"s_waitcnt vmcnt({4 if OPT['tst'] == 2 else 0})")
    I("s_branch G_DONE")
    L("G_T3")
    I("s_cmp_eq_u32 s2, 212")
    I("s_cbranch_scc0 G_NODUM")
    for t in range(4):
        I(f"v_mov_b32 v{OUTR+t}, 0x7f000000")
    L("G_NODUM")
    if OPT["tst"] == 2:
        I(f"buffer_store_dwordx4 {vr(OUTR,4)}, v27, {sr(S_X,4)}, 0 offen sc1")
    I(f"s_waitcnt vmcnt({5 if OPT['tst'] == 2 else 4})")
    I("s_mov_b64 exec, s[74:75]")
    I("s_cbranch_execz G_NOBIN")
    I("v_mov_b32 v126, v14")
    binning(False)
    I("v_mov_b32 v14, v126")
    L("G_NOBIN")
    I("s_mov_b64 exec, -1")
    I(f"ds_read_b128 {vr(XA,4)}, v8")
    I(f"ds_read_b128 {vr(XA+4,4)}, v9")
    stamp(4)
    I(f"s_waitcnt vmcnt({1 if OPT['tst'] == 2 else 0})")
    L("G_DONE")
    if OPT["drain"]:
        I("s_waitcnt vmcnt(0)")
    if OPT["gprio"] and not OPT["cprio"]:
        I("s_setprio 0")
    stamp(5)

    L("A_JOIN")
    if OPT["cprio"]:
        I("s_setprio 3")
    I("s_waitcnt lgkmcnt(0)")
    stamp(6)
    I("s_barrier")
    stamp(7)
    C0 = 48
    I(f"ds_read_b32 v11, v1 offset:{TAGS+16}")
    I(f"ds_read_b128 {vr(TG,4)}, v1 offset:{TAGS}")
    I(f"ds_read2st64_b32 v[8:9], v5 offset0:{C1_OFF//256} offset1:{C1_OFF//256+2}")
    I(f"ds_read_b128 {vr(C0,4)}, v4 offset:{IMG}")
    I(f"ds_read_b128 {vr(C0+4,4)}, v4 offset:{IMG+B2}")
    def tagit(c):
        for k in range(3):
            I(f"v_bfi_b32 v{c+k}, s40, v{TG+k}, v{c+k}")
        I(f"v_or_b32 v{c+3}, v{TG+3}, v{c+3}")
    I("s_waitcnt lgkmcnt(2)")
    I("v_readfirstlane_b32 s38, v11")
    I("v_cmp_le_u32 s[72:73], v102, v8")
    I("v_cmp_le_u32 s[74:75], v102, v9")
    I("v_max_u32 v10, v8, v9")
    I("v_cmp_le_u32 vcc, s39, v10")
    I("s_sub_u32 s38, s38, 1")
    I(f"s_add_u32 s{P_WS}, s{P_WS}, s38")
    I(f"s_addc_u32 s{P_WS+1}, s{P_WS+1}, 0")
    def table_stores(lab):
        I(f"s_mov_b64 {sr(S_X,2)}, {WS}")
        I(f"buffer_store_dwordx4 {vr(OUTR,4)}, v27, {sr(S_X,4)}, 0 offen sc1")
        I("s_cmp_eq_u32 s3, 12")
        I(f"s_cbranch_scc1 {lab}")
        for r in range(1, 4):
            I("v_add_u32 v27, 0x10000, v27")
            I(f"buffer_store_dwordx4 {vr(OUTR+4*r,4)}, v27, {sr(S_X,4)}, 0 offen sc1")
        L(lab)
    if OPT["tst"] == 1:
        I("s_cmp_ge_u32 s3, 12")
        I("s_cbranch_scc0 A_TSD")
        table_stores("A_TSD")
    def cell_store(k):
        I(f"s_mov_b64 exec, s[{72+2*k}:{73+2*k}]")
        I(f"global_store_dwordx4 v{6+k}, {vr(C0+4*k,4)}, {WS} sc1")
    if OPT["gl"]:
        I("s_cmp_ge_u32 s3, 12")
        I("s_waitcnt lgkmcnt(1)")
        tagit(C0)
        I("s_cbranch_scc1 A_GL1")
        cell_store(0)
        I("s_mov_b64 exec, -1")
        L("A_GL1")
        I("s_waitcnt lgkmcnt(0)")
        tagit(C0 + 4)
        I("s_cbranch_scc1 A_GL2")
        cell_store(1)
        L("A_GL2")
    else:
        I("s_waitcnt lgkmcnt(1)")
        tagit(C0)
        cell_store(0)
        I("s_mov_b64 exec, s[74:75]")
        I("s_waitcnt lgkmcnt(0)")
        tagit(C0 + 4)
        I(f"global_store_dwordx4 v7, {vr(C0+4,4)}, {WS} sc1")
    I("s_cbranch_vccnz R_PUB2")
    L("A_PUBD")
    I("s_mov_b64 exec, -1")
    if OPT["cprio"]:
        I("s_setprio 0")
    stamp(8)
    I("s_cmp_ge_u32 s3, 12")
    I("s_cbranch_scc0 B_NOAU")
    if OPT["tst"] == 0:
        table_stores("A_TSD")
    I("s_mov_b32 s84, s66")
    I("s_setprio 1")
    FU, FW, UU = 36, 84, 52
    def half_gemm(moff, acc, swap):
        for T in range(4):
            F = (FU if T < 2 else FW) + 8 * (T & 1)
            for s in range(2):
                for h in range(2):
                    I(f"ds_read_b64_tr_b16 {vr(F + 4*s + 2*h, 2)}, v{12+T} offset:{moff + (8*s+4*h)*128}")
        for T in range(4):
            F = (FU if T < 2 else FW) + 8 * (T & 1)
            I(f"s_waitcnt lgkmcnt({4*(3-T)})")
            for s in range(2):
                a, b = vr(XA + 4*s, 4), vr(F + 4*s, 4)
                if swap:
                    a, b = b, a
                c = "0" if s == 0 else vr(acc + 4*T, 4)
                I(f"v_mfma_f32_16x16x32_bf16 {vr(acc+4*T,4)}, {a}, {b}, {c}")
    half_gemm(16384, AP, False)
    def flag_store():
        I(f"s_lshl_b32 s64, s2, {OPT['fs']-2}")
        I("s_add_u32 s64, s64, s84")
        I("s_lshl_b32 s64, s64, 2")
        I(f"s_add_u32 s64, s64, {hex(FLG_OFF)}")
        I("s_sub_u32 s64, s64, s38")
        I("v_mov_b32 v26, s64")
        I("s_mov_b64 exec, 1")
        I(f"global_store_dword v26, v{TG+3}, {WS} sc1")
        I("s_mov_b64 exec, -1")
    if OPT["tst"] == 2:
        I("s_waitcnt vmcnt(2)")
        stamp(29)
        flag_store()
    half_gemm(24576, UU, True)
    I(f"s_mul_i32 s65, s66, {16*EAU_STRIDE}")
    I(f"s_add_u32 s65, s65, {EAU_OFF}")
    I(f"v_mul_u32_u24 v26, {4*EAU_STRIDE}, v125")
    I("v_lshl_add_u32 v26, v124, 4, v26")
    I("v_add_u32 v25, s65, v26")
    I(f"v_mul_u32_u24 v27, {EAU_STRIDE}, v124")
    I("v_lshl_add_u32 v27, v125, 4, v27")
    I("v_add_u32 v27, s65, v27")
    for i in range(16):
        I(f"v_mul_f32 v{AP+i}, s76, v{AP+i}")
    I("s_cmp_eq_u32 s3, 12")
    I("s_cselect_b32 exec_lo, 0x000f000f, -1")
    I("s_cselect_b32 exec_hi, 0x000f000f, -1")
    for T in range(4):
        I(f"ds_write_b128 v27, {vr(UU+4*T,4)} offset:{256 + T*64}")
    I("s_cselect_b32 exec_hi, 0, -1")
    I("s_cselect_b32 exec_lo, 0xffff, -1")
    I(f"v_max3_f32 v26, |v{AP}|, |v{AP+1}|, |v{AP+2}|")
    for i in range(3, 15, 2):
        I(f"v_max3_f32 v26, |v{AP+i}|, |v{AP+i+1}|, v26")
    I(f"v_max_f32 v26, |v{AP+15}|, v26")
    I(f"v_cmp_nge_f32 vcc, {hex(f32(63.0))}, v26")
    EAT = 36
    for r in range(4):
        for t in range(4):
            I(f"v_add_f32 v{EAT+4*r+t}, {hex(f32(-float(KEXP)))}, v{AP+4*t+r}")
        for t in range(4):
            I(f"ds_write_b32 v25, v{AP+4*t+r} offset:{r*EAU_STRIDE + 512 + 4*t}")
            I(f"v_exp_f32 v{EAT+4*r+t}, v{EAT+4*r+t}")
        I("s_nop 0")
        I(f"ds_write_b128 v25, {vr(EAT+4*r,4)} offset:{r*EAU_STRIDE}")
        if r == 0:
            I("s_cbranch_scc1 G_EAD")
    L("G_EAD")
    I("s_mov_b64 exec, -1")
    I("s_cmp_lg_u64 vcc, 0")
    I("s_cselect_b32 s79, 1, 0")
    if OPT["cad"]:
        I("s_branch B_CONST")
    L("B_NOAU")
    if OPT["cad"]:
        I("s_waitcnt vmcnt(0)")
    L("B_CONST")

    RA, CA, KA, RB, CB, KB = 8, 24, 36, 64, 72, 78
    XB, Y, A = 48, 80, 100
    IP = (96, 98, 104, 106)
    UR, XR, VOUT, VU, LP, EP = 108, 112, 116, 117, 118, 120
    WCB, DEN, NUM, VOOB, C4, VRA, VSE, EA, P, Q, SS, LC = 16, 20, 44, 30, 31, 42, 32, 12, 24, 8, 36, 4
    I(f"s_mov_b32 s{S_TAB}, s{P_WS}")
    I(f"s_or_b32 s{S_TAB+1}, s{P_WS+1}, 0x1000000")
    I("v_and_b32 v5, 63, v0")
    I("s_cmp_lt_u32 s2, 212")
    I("s_cselect_b32 s64, 49, 48")
    I("v_cmp_gt_u32 s[82:83], s64, v5")
    I("v_lshlrev_b32 v5, 2, v5")
    I(f"v_and_b32 v{LC}, 15, v0")
    I(f"v_lshlrev_b32 v6, 1, v{LC}")
    for j in range(4):
        I(f"ds_read_u16 v{WCB+j}, v6 offset:{WC_OFF + 32*j}")
    I(f"v_lshlrev_b32 v{LC}, 4, v{LC}")
    I(f"v_mov_b32 v{C4}, 4")
    I(f"v_mov_b32 v{VOOB}, {OOB}")
    for p_ in IP:
        I(f"v_mov_b32 v{p_+1}, v{LC}")
    I(f"v_lshlrev_b32 v{LP}, 1, v6")
    I(f"v_mov_b32 v{LP+1}, v{LC}")
    I("v_lshrrev_b32 v7, 4, v0")
    I(f"v_mul_u32_u24 v{VU}, {EAU_STRIDE}, v7")
    I(f"s_mov_b32 s64, {EAU_OFF + 256}")
    I(f"v_add3_u32 v{VU}, v{VU}, s64, v{LC}")
    I("v_lshlrev_b32 v8, 2, v6")
    I("v_and_b32 v9, 0x70, v0")
    I("v_xor_b32 v9, v8, v9")
    I("v_lshl_add_u32 v9, v7, 7, v9")
    I(f"ds_read_b64 {vr(XR+2,2)}, v9 offset:{X_OFF}")
    I(f"v_lshl_add_u32 v{VOUT}, v7, 15, v8")
    I("s_lshl_b32 s64, s2, 7")
    I(f"v_add_u32 v{VOUT}, s64, v{VOUT}")
    srd(S_X, P_OUT, N * 128)
    for d in range(0, 4, 2):
        I(f"v_mov_b64 {vr(A+d,2)}, 0")
        I(f"v_mov_b64 {vr(DEN+d,2)}, 0")
        I(f"v_mov_b64 {vr(NUM+d,2)}, 0")
    I("s_mov_b64 s[68:69], -1")
    I("s_mov_b64 s[70:71], -1")
    I("s_cmp_lt_u32 s3, 4")
    I("s_cselect_b32 s78, 2, 0")
    I(f"s_mov_b32 s16, {hex(f32(2.0**-KEXP))}")
    I("s_mov_b32 s17, s16")
    I(f"s_mov_b32 s18, {hex(f32(1e-6 * 2.0**KEXP))}")
    I("s_mov_b32 s19, s18")
    I("s_mov_b32 s20, 32")
    I("s_mov_b32 s21, 32")
    I(f"s_mov_b32 s24, {SLOT_STRIDE}")
    I(f"s_mov_b32 s25, {EAU_STRIDE}")
    I(f"s_mov_b32 s85, {LIST_OFF}")
    I("s_mov_b32 s56, 0x11111111")
    I("s_mov_b32 s57, s56")
    I("s_lshl_b64 s[58:59], s[56:57], 1")
    I("s_lshl_b64 s[60:61], s[56:57], 2")
    I("s_lshl_b64 s[62:63], s[56:57], 3")
    I("v_bfe_u32 v124, v0, 4, 2")
    I("v_bfe_u32 v125, v0, 5, 1")
    I("v_bfe_u32 v126, v0, 2, 1")
    I("v_lshl_add_u32 v125, v126, 1, v125")
    I("v_bfe_u32 v126, v0, 3, 2")
    I("v_lshlrev_b32 v126, 2, v126")
    I("v_bfe_u32 v34, v0, 2, 3")
    I("s_lshl_b32 s64, s3, 3")
    I("s_sub_u32 s64, s2, s64")
    I("v_sub_u32 v34, s64, v34")
    I("v_and_b32 v34, 127, v34")
    I("v_and_b32 v35, 32, v0")
    I("v_lshl_add_u32 v34, v35, 2, v34")
    I("v_and_b32 v35, 3, v0")
    if OPT["pf"] or OPT["pf2"] or OPT["pf3"] or OPT["pf4"]:
        I("v_lshlrev_b32 v33, 8, v34")
        I("v_lshl_add_u32 v33, v35, 20, v33")
        I("s_lshr_b32 s64, s2, 4")
        I("s_lshl_b32 s64, s64, 16")
        I("s_bfe_u32 s65, s2, 0x10003")
        I("s_lshl_b32 s65, s65, 7")
        I("s_add_u32 s64, s64, s65")
        I("v_add_u32 v33, s64, v33")
    if OPT["pf5"]:
        I("v_lshlrev_b32 v33, 8, v34")
        I("v_and_b32 v32, 1, v35")
        I("v_lshl_add_u32 v33, v32, 7, v33")
        I("v_lshrrev_b32 v32, 1, v35")
        I("v_lshl_add_u32 v33, v32, 16, v33")
        I("s_sub_u32 s64, s3, 13")
        I("s_lshl_b32 s64, s64, 20")
        I("s_lshr_b32 s65, s2, 7")
        I("s_lshl_b32 s65, s65, 19")
        I("s_add_u32 s64, s64, s65")
        I("v_add_u32 v33, s64, v33")
    I(f"v_lshlrev_b32 v34, {OPT['fs']}, v34")
    I("v_lshl_add_u32 v34, v35, 2, v34")
    I(f"s_sub_u32 s64, {hex(FLG_OFF)}, s38")
    I("v_add_u32 v34, s64, v34")
    I(f"s_mov_b32 s64, {hex(f32(-LOG2E))}")
    I("s_mov_b32 s66, 0x0000ffff")
    I("s_mov_b32 s67, 0xffff0000")
    I("s_waitcnt lgkmcnt(0)")
    for j in range(4):
        I(f"v_lshlrev_b32 v{WCB+j}, 16, v{WCB+j}")
    for j in range(4):
        I(f"v_mul_f32 v{WCB+j}, s64, v{WCB+j}")
    for j in range(4):
        I(f"v_cvt_pk_bf16_f32 v{WCB+j}, 0, v{WCB+j}")
    for j in range(4):
        I(f"v_cndmask_b32 v{WCB+j}, 0, v{WCB+j}, s[66:67]")
    I(f"v_lshlrev_b32 v{XR}, 16, v{XR+2}")
    I(f"v_and_b32 v{XR+1}, 0xffff0000, v{XR+2}")
    I(f"v_lshlrev_b32 v{XR+2}, 16, v{XR+3}")
    I(f"v_and_b32 v{XR+3}, 0xffff0000, v{XR+3}")
    I("s_setprio 0")
    I("s_waitcnt vmcnt(0)")
    if OPT["tst"] != 2:
        I("s_cmp_ge_u32 s3, 12")
        I("s_cbranch_scc0 B_DRD")
    if OPT["tst"] != 2:
        flag_store()
    L("B_DRD")
    if OPT["dbar"]:
        I("s_barrier")
    if OPT["delay"]:
        I(f"s_sleep {OPT['delay']}")
    stamp(9)
    I(f"global_load_dwordx4 {vr(RA,4)}, v2, {WS} sc1")
    I(f"global_load_dwordx4 {vr(RA+4,4)}, v3, {WS} sc1")

    def poll(R_, first, name):
        L(name)
        I("s_waitcnt vmcnt(0)")
        for k in range(2):
            I(f"s_mov_b64 exec, s[{68+2*k}:{69+2*k}]")
            for j in range(4):
                I(f"v_xor_b32 v{R_+4*k+j}, v{TG+j}, v{R_+4*k+j}")
        I("s_mov_b64 exec, -1")
        for k in range(2):
            r = R_ + 4 * k
            I(f"v_or3_b32 v{6+k}, v{r}, v{r+1}, v{r+2}")
            I(f"v_and_b32 v{6+k}, s40, v{6+k}")
            I(f"v_and_or_b32 v{6+k}, v{r+3}, s41, v{6+k}")
            I(f"v_cmp_ne_u32 s[{68+2*k}:{69+2*k}], 0, v{6+k}")
            I(f"v_cmp_gt_u32 s[{64+2*k}:{65+2*k}], s42, v{r+3}")
        if first:
            for k in range(2):
                I(f"s_andn2_b64 s[{64+2*k}:{65+2*k}], s[{64+2*k}:{65+2*k}], s[{68+2*k}:{69+2*k}]")
                I(f"s_lshl_b64 s[{74+2*k}:{75+2*k}], s[{64+2*k}:{65+2*k}], 1")
                I(f"s_or_b64 s[{74+2*k}:{75+2*k}], s[{74+2*k}:{75+2*k}], s[36:37]")
        I("s_and_b64 s[72:73], s[68:69], s[74:75]")
        I("s_and_b64 s[80:81], s[70:71], s[76:77]")
        I("s_or_b64 s[72:73], s[72:73], s[80:81]")
        I(f"s_cbranch_scc1 {name}_RETRY")
    def retry(R_, first, name):
        L(name + "_RETRY")
        if first:
            for k in range(4):
                I(f"s_and_b32 s72, s{68+k}, s{74+k}")
                I("s_lshl_b32 s73, s72, 1")
                I("s_or_b32 s72, s72, s73")
                I("s_lshl_b32 s73, s72, 2")
                I("s_or_b32 s72, s72, s73")
                I("s_lshl_b32 s73, s72, 4")
                I("s_or_b32 s72, s72, s73")
                I(f"s_and_b32 s{68+k}, s{68+k}, s72")
        else:
            I("s_and_b64 s[68:69], s[68:69], s[74:75]")
            I("s_and_b64 s[70:71], s[70:71], s[76:77]")
        I("s_add_u32 s43, s43, 1")
        I(f"s_cmp_gt_u32 s43, {POLL_LIMIT}")
        I("s_cbranch_scc1 R_TIMEOUT")
        if OPT["sleep"]:
            I(f"s_sleep {OPT['sleep']}")
        reload(R_, name)
        I(f"s_branch {name}")
    def reload(R_, name):
        I("s_mov_b64 exec, s[68:69]")
        I(f"s_cbranch_execz {name}_1")
        I(f"global_load_dwordx4 {vr(R_,4)}, v2, {WS} sc1")
        L(name + "_1")
        I("s_mov_b64 exec, s[70:71]")
        I(f"s_cbranch_execz {name}_2")
        I(f"global_load_dwordx4 {vr(R_+4,4)}, v3, {WS} sc1")
        L(name + "_2")
    def ranks(R_, C_, K_, M_):
        for k in range(2):
            for j in range(3):
                I(f"v_lshlrev_b32_sdwa v{C_+3*k+j}, 2, v{R_+4*k+3} {sdwa('BYTE_'+str(j))}")
        for k in range(2):
            I(f"s_mov_b64 exec, s[{74+2*k}:{75+2*k}]")
            for j in range(3):
                m = M_ + 2 * (3 * k + j)
                I(f"v_cmp_gt_u32_sdwa s[{m}:{m+1}], 49, v{R_+4*k+3} src0_sel:DWORD src1_sel:BYTE_{j}")
            for j in range(3):
                m = M_ + 2 * (3 * k + j)
                I(f"s_mov_b64 exec, s[{m}:{m+1}]")
                I(f"ds_add_rtn_u32 v{K_+3*k+j}, v{C_+3*k+j}, v{C4} offset:{C2_OFF}")
        I("s_mov_b64 exec, -1")
    def more_test():
        I("s_and_b64 s[64:65], s[64:65], s[74:75]")
        I("s_and_b64 s[66:67], s[66:67], s[76:77]")
        I("s_or_b64 s[72:73], s[64:65], s[66:67]")
        I("s_or_b32 s72, s72, s73")
        I("s_and_b32 s72, s72, 0x80808080")
    MA, MB = 44, 4

    def pf5(lab):
        I("s_cmp_ge_u32 s3, 13")
        I(f"s_cbranch_scc0 {lab}")
        for k in range(OPT["pf5"]):
            if k:
                I("v_add_u32 v33, 0x20000, v33")
            I(f"global_load_dword v84, v33, {WS} sc1")
        L(lab)
    poll(RA, True, "B_P0")
    stamp(10)
    if OPT["ef"]:
        I(f"global_load_dword v35, v34, {WS} sc1")
    ranks(RA, CA, KA, MA)
    more_test()
    I("s_or_b32 s72, s72, s79")
    I("s_cbranch_scc1 R_MORE")
    L("B_RDONE")
    if OPT["stamp"]:
        I("v_writelane_b32 v127, s43, 19")
    I("s_waitcnt lgkmcnt(0)")
    I("s_barrier")
    stamp(11)
    I(f"ds_read_b32 v6, v5 offset:{C2_OFF}")
    if OPT["drain"]:
        if OPT["pf4"]:
            I(f"s_sub_u32 s71, s3, {OPT['pfw']}")
            I(f"s_cmp_lt_u32 s71, {OPT['pf4']}")
            I("s_cbranch_scc0 B_NOPF4")
            I("s_andn2_b64 exec, exec, s[62:63]")
            I(f"global_load_dword v84, v33, {WS} sc1")
            I("s_mov_b64 exec, -1")
            L("B_NOPF4")
    elif not OPT["ef"]:
        I(f"global_load_dword v35, v34, {WS} sc1")
        if OPT["pf5"] and not OPT["pfa"]:
            pf5("B_NOPF5")
    elif OPT["pf"]:
        I("s_sub_u32 s64, s3, 4")
        I(f"s_cmp_lt_u32 s64, {OPT['pf']}")
        I("s_cbranch_scc0 B_NOPF")
        I("s_waitcnt vmcnt(0)")
        I(f"v_cmp_eq_u32 vcc, v{TG+3}, v35")
        I("s_mov_b64 exec, vcc")
        I("s_cbranch_execz B_NOPF0")
        I(f"global_load_dword v84, v33, {WS} sc1")
        L("B_NOPF0")
        I("s_mov_b64 exec, -1")
        L("B_NOPF")
    I("s_waitcnt lgkmcnt(0)")
    I("v_add_u32 v2, 7, v6")
    I("v_and_b32 v2, -8, v2")
    I("v_max_u32 v2, 8, v2")
    I("v_cndmask_b32 v2, 0, v2, s[82:83]")
    if OPT["pf5"] and OPT["pfa"]:
        pf5("B_NOPF5")
    I("v_mov_b32 v3, v2")
    for d in ("row_shr:1 row_mask:0xf", "row_shr:2 row_mask:0xf", "row_shr:4 row_mask:0xf",
              "row_shr:8 row_mask:0xf", "row_bcast:15 row_mask:0xa", "row_bcast:31 row_mask:0xc"):
        I("s_nop 1")
        I(f"v_add_u32_dpp v3, v3, v3 {d} bank_mask:0xf")
    I("v_sub_u32 v7, v3, v2")
    I(f"ds_write_b32 v5, v7 offset:{BASE}")
    I("v_readlane_b32 s64, v3, 63")
    def lookup(C_):
        for i in range(6):
            I(f"ds_read_b32 v{C_+i}, v{C_+i} offset:{BASE}")
    def scatter(R_, C_, K_, M_):
        for i in range(6):
            if i % 3 == 0:
                I(f"s_waitcnt lgkmcnt({3-i})")
            I(f"v_add3_u32 v{C_+i}, v{C_+i}, v{K_+i}, s85")
        for i in range(6):
            I(f"s_mov_b64 exec, s[{M_+2*i}:{M_+2*i+1}]")
            I(f"ds_write_b32 v{C_+i}, v{R_+4*(i//3)+i%3}")
        I("s_mov_b64 exec, -1")
    lookup(CA)
    I("s_add_u32 s65, s64, 31")
    I("s_lshr_b32 s66, s65, 9")
    I("s_bfe_u32 s67, s65, 0x40005")
    I("s_mul_i32 s68, s66, s3")
    I("s_min_u32 s69, s67, s3")
    I("s_add_u32 s68, s68, s69")
    I("s_lshl_b32 s68, s68, 5")
    I("s_cmp_lt_u32 s3, s67")
    I("s_addc_u32 s72, s66, 0")
    I("s_lshl_b32 s69, s72, 3")
    I("s_add_u32 s70, s68, s85")
    if OPT["pf3"]:
        I(f"s_sub_u32 s71, s3, {OPT['pfw']}")
        I(f"s_cmp_lt_u32 s71, {OPT['pf3']}")
        I("s_cbranch_scc0 B_NOPF3")
        I("s_waitcnt vmcnt(0)")
        I(f"v_cmp_eq_u32 vcc, v{TG+3}, v35")
        I("s_andn2_b64 exec, vcc, s[62:63]")
        I("s_cbranch_execz B_NOPF30")
        I(f"global_load_dword v84, v33, {WS} sc1")
        L("B_NOPF30")
        I("s_mov_b64 exec, -1")
        L("B_NOPF3")
    scatter(RA, CA, KA, MA)
    I(f"v_mul_u32_u24 v{VRA}, s69, v124")
    I(f"v_mul_u32_u24 v{VRA+1}, s69, v125")
    I(f"v_add_u32 v{VRA}, s70, v{VRA}")
    I(f"v_add3_u32 v{VRA+1}, v{VRA+1}, s70, v126")
    if OPT["pf"] and OPT["ef"]:
        I("s_sub_u32 s71, s3, 4")
        I(f"s_cmp_lt_u32 s71, {OPT['pf']}")
        I("s_cbranch_scc1 B_FLW")
    if OPT["pf3"]:
        I(f"s_cmp_lt_u32 s71, {OPT['pf3']}")
        I("s_cbranch_scc1 B_FLW")
    if not OPT["drain"]:
        if OPT["pf5"]:
            I(f"s_waitcnt vmcnt({OPT['pf5']})")
            I("s_cmp_ge_u32 s3, 13")
            I("s_cbranch_scc1 B_FLW")
        I("s_waitcnt vmcnt(0)")
        L("B_FLW")
        I(f"v_cmp_ne_u32 vcc, v{TG+3}, v35")
    I("s_cmp_lg_u32 s78, 0")
    I("s_cbranch_scc1 R_EXTRA")
    L("B_XDONE")
    if not OPT["drain"]:
        I("s_cbranch_vccnz R_FLAGS")
    L("B_FDONE")
    if OPT["pf2"]:
        I(f"s_cmp_lt_u32 s3, {OPT['pf2']}")
        I("s_cbranch_scc0 B_NOPF2")
        I(f"global_load_dword v84, v33, {WS} sc1")
        L("B_NOPF2")
    I("s_waitcnt lgkmcnt(0)")
    I("s_barrier")
    stamp(12)
    def i_reads(batch, lo=0, hi=4):
        for i in range(lo, hi):
            I(f"ds_read_u16 v{IP[i]}, v{VRA} offset:{16*batch + 4*i}")
    def a_reads(batch):
        for d in range(4):
            I(f"s_mov_b64 exec, s[{56+2*d}:{57+2*d}]")
            I(f"ds_read_b32 v{A+d}, v{VRA+1} offset:{16*batch}")
        I("s_mov_b64 exec, -1")
    def gathers(x, lo, hi):
        for i in range(lo, hi):
            I(f"buffer_load_dwordx4 {vr(x+4*i,4)}, {vr(IP[i],2)}, {sr(S_TAB,4)}, 0 idxen offen {OPT['gsc'] if OPT['gsc'] != 'none' else ''}")
    i_reads(0)
    I("v_and_b32 v9, 0x3f0, v0")
    I(f"ds_read_b128 {vr(VSE,4)}, v9 offset:{STR}")
    I(f"ds_read_b32 v8, v1 offset:{FLAG}")
    if OPT["prio"]:
        I("s_setprio 3")
    I("s_waitcnt lgkmcnt(2)")
    gathers(XB, 0, 4)
    stamp(13)
    i_reads(1)
    I(f"ds_read_b128 {vr(EP,4)}, v9 offset:{EPI}")
    I(f"ds_read_b128 {vr(UR,4)}, v{VU}")
    I("s_waitcnt lgkmcnt(6)")
    I("v_readfirstlane_b32 s80, v8")
    I(f"v_lshl_add_u64 {vr(VSE,2)}, {vr(VSE,2)}, 0, {vr(LP,2)}")
    I(f"ds_read_b128 {vr(EA,4)}, v{VSE+1}")
    for q in range(4):
        I(f"v_readlane_b32 s{44+q}, v{VSE+2}, {16*q}")
    I(f"s_cmp_gt_u32 s64, {LIST_MAX}")
    I("s_cselect_b32 s81, 1, 0")
    I("s_or_b32 s80, s80, s81")
    if OPT["force_slow"]:
        I("s_branch K_SLOW")
    I("s_cbranch_scc1 K_SLOW")
    a_reads(0)
    for q in range(4):
        if OPT["cut"] & 8:
            I(f"s_mov_b32 s{44+q}, 0")
        I(f"s_bitset1_b32 s{44+q}, s72")
    I("s_or_b32 s82, s44, s45")
    I("s_or_b32 s83, s46, s47")
    I("s_or_b32 s82, s82, s83")
    if OPT["fp"]:
        th = [int(x) for x in str(OPT["fp"]).split("_")]
        I(f"s_lshl_b32 s81, 1, s72")
        for t_ in th:
            I(f"s_lshr_b32 s80, s81, {t_}")
            I("s_or_b32 s82, s82, s80")
    I("s_bfm_b32 s83, s72, 0")
    I("s_lshr_b32 s83, s83, 4")
    I("s_mov_b32 s73, 0")
    I("s_waitcnt lgkmcnt(5)")
    gathers(XB + 16, 0, 4)
    i_reads(2)
    for k in range(3):
        I(f"v_add_u32 v{EP+k}, v{EP+k}, v{LC}")
    I(f"v_cmp_lt_i32 s[48:49], 2, v{EP+3}")
    I("s_cmp_eq_u32 s72, 0")
    I("s_cbranch_scc1 K_JOIN")
    def mfma(x):
        I(f"v_mfma_f32_32x32x16_bf16 {vr(Y,16)}, {vr(A,4)}, {vr(WCB,4)}, {vr(x,16)}")
    stamp(14)
    I("s_waitcnt vmcnt(4) lgkmcnt(4)")
    mfma(XB)
    stamp(15)
    a_reads(1)
    nth = len(str(OPT["prio"]).split("_")) if OPT["prio"] else 0
    if OPT["prio"]:
        I(f"s_setprio {nth}")
    I("s_nop 2")
    L("K_LOOP")
    if OPT["prio"] and not OPT["fp"]:
        I("s_sub_u32 s74, s72, s73")
        for k, t_ in enumerate(int(x) for x in str(OPT["prio"]).split("_")):
            I(f"s_cmp_gt_u32 s74, {t_}")
            I("s_cbranch_scc1 K_STEP0")
            I(f"s_setprio {nth-1-k}")
    for u in range(4):
        bb, hh = u >> 1, u & 1
        x = XB + 16 * bb + 8 * hh
        t = Y + 8 * hh
        L(f"K_STEP{u}")
        for i in range(8):
            I(f"v_exp_f32 v{t+i}, v{t+i}")
        for i in range(4):
            I(f"v_lshlrev_b64 {vr(x+2*i,2)}, 16, {vr(x+2*i,2)}")
        for i in range(4):
            I(f"v_pk_fma_f32 {vr(t+2*i,2)}, {vr(t+2*i,2)}, {vr(EA+2*(i&1),2)}, s[16:17] clamp")
        I(f"v_pk_mul_f32 {vr(P,2)}, {vr(t,2)}, {vr(t+4,2)}")
        I(f"v_pk_mul_f32 {vr(P+2,2)}, {vr(t+2,2)}, {vr(t+6,2)}")
        I(f"v_pk_mul_f32 {vr(Q,2)}, {vr(x,2)}, {vr(t+4,2)}")
        I(f"v_pk_mul_f32 {vr(Q+2,2)}, {vr(x+2,2)}, {vr(t+6,2)}")
        I(f"v_pk_add_f32 {vr(SS,2)}, {vr(t,2)}, {vr(t+4,2)}")
        I(f"v_pk_add_f32 {vr(SS+2,2)}, {vr(t+2,2)}, {vr(t+6,2)}")
        I(f"v_pk_fma_f32 {vr(Q,2)}, {vr(x+4,2)}, {vr(t,2)}, {vr(Q,2)}")
        I(f"v_pk_fma_f32 {vr(Q+2,2)}, {vr(x+6,2)}, {vr(t+2,2)}, {vr(Q+2,2)}")
        if OPT["sup"]:
            I(f"s_bitcmp1_b32 s83, {u}")
            I(f"s_cselect_b32 s{S_TAB+2}, s{S_TAB+2}, 0")
        if hh == 0:
            I("s_waitcnt lgkmcnt(0)")
            if not OPT["cut"] & 4:
                gathers(XB + 16 * bb, 0, 2)
            for i in range(4):
                I(f"v_rcp_f32 v{P+i}, v{P+i}")
        else:
            I("s_waitcnt vmcnt(2)")
            if not OPT["cut"] & 1:
                mfma(XB + 16 * (1 - bb))
            for i in range(4):
                I(f"v_rcp_f32 v{P+i}, v{P+i}")
            if not OPT["cut"] & 4:
                gathers(XB + 16 * bb, 2, 4)
        I(f"v_pk_fma_f32 {vr(NUM,2)}, {vr(Q,2)}, {vr(P,2)}, {vr(NUM,2)}")
        I(f"v_pk_fma_f32 {vr(DEN,2)}, {vr(SS,2)}, {vr(P,2)}, {vr(DEN,2)}")
        I(f"v_pk_fma_f32 {vr(NUM+2,2)}, {vr(Q+2,2)}, {vr(P+2,2)}, {vr(NUM+2,2)}")
        I(f"v_pk_fma_f32 {vr(DEN+2,2)}, {vr(SS+2,2)}, {vr(P+2,2)}, {vr(DEN+2,2)}")
        if hh == 1:
            if not OPT["cut"] & 4:
                i_reads(bb + 3)
            if not OPT["cut"] & 2:
                a_reads(bb + 2)
        I(f"s_bitcmp1_b32 s82, {u+1}")
        I(f"s_cbranch_scc1 K_FLUSH{u}")
        L(f"K_BACK{u}")
    I(f"v_lshl_add_u64 {vr(VRA,2)}, {vr(VRA,2)}, 0, s[20:21]")
    I("s_lshr_b32 s82, s82, 4")
    I("s_lshr_b32 s83, s83, 4")
    I("s_add_u32 s73, s73, 4")
    I("s_branch K_LOOP")
    for u in range(4):
        L(f"K_FLUSH{u}")
        I(f"s_add_u32 s74, s73, {u+1}")
        for h in range(2):
            I(f"s_bitcmp1_b32 s{44+2*h}, s74")
            I("s_cselect_b32 s75, 0xffff, 0")
            I(f"s_bitcmp1_b32 s{45+2*h}, s74")
            I("s_cselect_b32 s80, 0xffff0000, 0")
            I(f"s_or_b32 {'exec_hi' if h else 'exec_lo'}, s75, s80")
        if OPT["fp"]:
            I("s_sub_u32 s75, s72, s74")
            for k, t_ in enumerate(th):
                I(f"s_cmp_gt_u32 s75, {t_}")
                I(f"s_cbranch_scc1 K_FP{u}")
                I(f"s_setprio {len(th)-1-k}")
            L(f"K_FP{u}")
            I(f"s_cbranch_execz K_FQ{u}")
        I(f"ds_write2_b32 v{VSE}, v{DEN}, v{DEN+1} offset0:0 offset1:16")
        I(f"ds_write2_b32 v{VSE}, v{DEN+2}, v{DEN+3} offset0:32 offset1:48")
        I(f"ds_write2_b32 v{VSE}, v{NUM}, v{NUM+1} offset0:64 offset1:80")
        I(f"ds_write2_b32 v{VSE}, v{NUM+2}, v{NUM+3} offset0:96 offset1:112")
        I("s_cmp_eq_u32 s74, s72")
        I("s_cbranch_scc1 K_JOIN")
        I(f"v_lshl_add_u64 {vr(VSE,2)}, {vr(VSE,2)}, 0, s[24:25]")
        I(f"ds_read_b128 {vr(DEN,4)}, v{VOOB}")
        I(f"ds_read_b128 {vr(NUM,4)}, v{VOOB}")
        I(f"ds_read_b128 {vr(EA,4)}, v{VSE+1}")
        I("s_waitcnt lgkmcnt(0)")
        L(f"K_FQ{u}")
        I("s_mov_b64 exec, -1")
        I(f"s_branch K_BACK{u}")

    L("K_JOIN")
    I("s_mov_b64 exec, -1")
    stamp(16)
    I("s_cmp_lt_u32 s3, 13")
    I("s_waitcnt lgkmcnt(0)")
    I("s_barrier")
    stamp(17)
    I("s_cbranch_scc0 K_FIN")
    stamp(25)
    for k in range(3):
        I(f"ds_read_b128 {vr(8+8*k,4)}, v{EP+k}")
    for k in range(3):
        I(f"ds_read_b128 {vr(12+8*k,4)}, v{EP+k} offset:256")
    I("s_cmp_lg_u64 s[48:49], 0")
    I("s_waitcnt lgkmcnt(3)")
    for k in (1, 2):
        for i in range(2):
            I(f"v_pk_add_f32 {vr(8+2*i,2)}, {vr(8+2*i,2)}, {vr(8+8*k+2*i,2)}")
    I("s_waitcnt lgkmcnt(0)")
    for k in (1, 2):
        for i in range(2, 4):
            I(f"v_pk_add_f32 {vr(8+2*i,2)}, {vr(8+2*i,2)}, {vr(8+8*k+2*i,2)}")
    I("s_cbranch_scc1 R_LONG")
    L("K_MATH")
    stamp(26)
    I("v_pk_add_f32 v[8:9], v[8:9], s[18:19]")
    I("v_pk_add_f32 v[10:11], v[10:11], s[18:19]")
    for c in range(4):
        I(f"v_rcp_f32 v{8+c}, v{8+c}")
    I("s_nop 0")
    I(f"v_pk_fma_f32 v[8:9], v[12:13], v[8:9], {vr(UR,2)}")
    I(f"v_pk_fma_f32 v[10:11], v[14:15], v[10:11], {vr(UR+2,2)}")
    for c in range(4):
        I(f"v_max_f32 v{8+c}, 0, v{8+c}")
    I(f"v_pk_add_f32 v[8:9], v[8:9], {vr(XR,2)}")
    I(f"v_pk_add_f32 v[10:11], v[10:11], {vr(XR+2,2)}")
    I("v_cvt_pk_bf16_f32 v12, v8, v9")
    I("v_cvt_pk_bf16_f32 v13, v10, v11")
    stamp(27)
    I(f"buffer_store_dwordx2 v[12:13], v{VOUT}, {sr(S_X,4)}, 0 offen {OPT['osc'].replace('none','').replace('_',' ')}")
    L("K_FIN")
    if OPT["probe"]:
        I("s_or_b32 s64, s2, s3")
        I("s_cmp_eq_u32 s64, 0")
        I("s_cbranch_scc0 PRB_D")
        I("s_load_dwordx2 s[66:67], s[0:1], 88")
        I("s_memrealtime s[98:99]")
        I("s_waitcnt lgkmcnt(0)")
        I(f"v_mov_b32 v8, {hex(CTL_OFF + 0x40000)}")
        I("global_load_dword v9, v8, s[66:67] sc1")
        I("v_mov_b32 v10, 0x13572468")
        I("s_waitcnt vmcnt(0)")
        I("v_readfirstlane_b32 s64, v9")
        I("global_store_dword v8, v10, s[66:67] sc1")
        I("s_cmp_eq_u32 s64, 0x13572468")
        I(f"s_cbranch_scc{OPT['probe']-1} PRB_D")
        L("PRB_W")
        I("s_memrealtime s[90:91]")
        I("s_waitcnt lgkmcnt(0)")
        I("s_sub_u32 s90, s90, s98")
        I("s_cmp_lt_u32 s90, 5000")
        I("s_cbranch_scc1 PRB_W")
        L("PRB_D")
    stamp(18)
    stamp_out()
    L("K_END")
    I("s_endpgm")

    L("R_PUB2")
    I("s_mov_b64 exec, vcc")
    I(f"ds_read_b128 {vr(C0+8,4)}, v4 offset:{IMG+128}")
    I(f"ds_read_b128 {vr(C0+12,4)}, v4 offset:{IMG+B2+128}")
    I("v_and_b32 v10, 7, v0")
    I(f"v_mul_u32_u24 v10, {3*INC}, v10")
    I(f"v_add_u32 v10, {24*INC}, v10")
    I("s_waitcnt lgkmcnt(0)")
    for b in range(2):
        w3 = C0 + 11 + 4 * b
        I(f"v_and_b32 v{w3}, 0x3f3f3f, v{w3}")
        for j in range(3):
            I(f"v_add_u32 v11, {j*INC}, v10")
            I(f"v_cmp_le_u32 s[70:71], v{8+b}, v11")
            I(f"v_or_b32 v11, {0x3f << (8*j)}, v{w3}")
            I("s_nop 0")
            I(f"v_cndmask_b32 v{w3}, v{w3}, v11, s[70:71]")
    I(f"v_add_u32 v8, {hex(LINE_STRIDE)}, v6")
    I(f"v_add_u32 v9, {hex(LINE_STRIDE)}, v7")
    tagit(C0 + 8)
    tagit(C0 + 12)
    I(f"global_store_dwordx4 v8, {vr(C0+8,4)}, {WS} sc1")
    I(f"global_store_dwordx4 v9, {vr(C0+12,4)}, {WS} sc1")
    I("s_branch A_PUBD")
    retry(RA, True, "B_P0")
    L("R_MORE")
    I("s_cmp_lg_u32 s79, 0")
    I("s_cbranch_scc1 R_REQ")
    if OPT["nol2"]:
        I("s_branch B_RDONE")
    for k in range(4):
        I(f"s_lshr_b32 s{74+k}, s{64+k}, 7")
        I(f"s_and_b32 s{74+k}, s{74+k}, 0x01010101")
        I(f"s_mul_i32 s{74+k}, s{74+k}, 0xff")
    I("s_mov_b64 s[68:69], s[74:75]")
    I("s_mov_b64 s[70:71], s[76:77]")
    I(f"v_add_u32 v2, {hex(LINE_STRIDE)}, v2")
    I(f"v_add_u32 v3, {hex(LINE_STRIDE)}, v3")
    reload(RB, "B_N1")
    poll(RB, False, "B_P1")
    ranks(RB, CB, KB, MB)
    I("s_or_b32 s78, s78, 1")
    more_test()
    I("s_cbranch_scc0 B_RDONE")
    I("s_mov_b32 s79, 1")
    I("s_branch R_REQ")
    retry(RB, False, "B_P1")
    L("R_TIMEOUT")
    I("s_mov_b32 s79, 3")
    for k in range(6):
        I(f"s_mov_b64 s[{MA+2*k}:{MA+2*k+1}], 0")
    I(f"v_mov_b32 v35, v{TG+3}")
    I("v_mov_b32 v33, 0x388000")
    L("R_REQ")
    I("v_mov_b32 v6, s79")
    I(f"ds_or_b32 v1, v6 offset:{FLAG}")
    I("s_branch B_RDONE")
    def bump():
        I(f"s_sub_u32 s71, {hex(CTL_OFF)}, s38")
        I("v_mov_b32 v48, s71")
        I("v_mov_b32 v50, 0x1000000")
        I("v_mov_b32 v51, 0")
        I("s_mov_b64 exec, 1")
        I(f"global_atomic_add_x2 v48, v[50:51], {WS} offset:8 sc1")
        I("s_mov_b64 exec, -1")
    L("R_EXTRA")
    I("s_bitcmp1_b32 s78, 0")
    I("s_cbranch_scc0 R_X2")
    I("s_waitcnt lgkmcnt(0)")
    lookup(CB)
    scatter(RB, CB, KB, MB)
    L("R_X2")
    I("s_bitcmp1_b32 s78, 1")
    I("s_cbranch_scc0 B_XDONE")
    I("s_cmp_eq_u32 s3, 1")
    I("s_cbranch_scc1 R_PAD")
    I("s_add_u32 s71, s66, 1")
    I("v_cvt_f32_u32 v48, s71")
    I("v_cvt_f32_u32 v49, s66")
    I("s_lshl_b32 s73, s67, 2")
    I("s_mul_i32 s71, s71, s73")
    I("v_rcp_f32 v48, v48")
    I("v_rcp_f32 v49, v49")
    I("v_cvt_f32_u32 v50, s71")
    I("v_cvt_f32_u32 v51, s73")
    I("v_fma_f32 v50, -v50, v49, v51")
    I(f"v_mov_b32 v51, {hex(f32(0.125))}")
    def stream_of(dst, src, half):
        I(f"v_cvt_f32_u32 v{dst}, v{src}")
        I(f"v_fma_f32 v{dst}, v{dst}, v51, {half}")
        I(f"v_mul_f32 v52, v{dst}, v48")
        I(f"v_fma_f32 v{dst}, v{dst}, v49, v50")
        I(f"v_max_f32 v{dst}, v{dst}, v52")
        I(f"v_cvt_u32_f32 v{dst}, v{dst}")
    stream_of(53, 3, "-0.5")
    I("s_cmp_eq_u32 s3, 2")
    I("s_cbranch_scc1 R_EPI")
    I("s_cmp_eq_u32 s3, 3")
    I("s_cbranch_scc1 R_FIRST")
    I("v_min_u32 v55, s73, v53")
    I("v_mad_u32_u24 v55, v53, s66, v55")
    I("v_lshrrev_b32 v56, 3, v3")
    I("v_sub_u32 v55, v56, v55")
    I("v_lshlrev_b32 v55, v55, 1")
    I("v_lshlrev_b32 v56, 4, v53")
    I("s_mov_b64 exec, s[82:83]")
    I(f"ds_or_b32 v56, v55 offset:{STR + 8}")
    I("s_mov_b64 exec, -1")
    I("s_branch B_XDONE")
    L("R_FIRST")
    I("v_mov_b32 v54, -1")
    I("v_cndmask_b32 v53, 63, v53, s[82:83]")
    I(f"v_mul_u32_u24 v59, {EAU_STRIDE//4}, v5")
    I(f"v_add_u32 v59, {EAU_OFF}, v59")
    I("v_mov_b32_dpp v54, v53 wave_shr:1 row_mask:0xf bank_mask:0xf")
    I("v_lshl_add_u32 v58, v54, 2, v5")
    I(f"v_mul_i32_i24 v58, {SLOT_STRIDE//4}, v58")
    I(f"v_add_u32 v58, {SLOT_OFF}, v58")
    I("v_lshlrev_b32 v54, 4, v54")
    I("v_lshlrev_b32 v53, 4, v53")
    L("R_FIRST1")
    I("v_cmp_lt_i32 s[74:75], v54, v53")
    I("s_mov_b64 exec, s[74:75]")
    I("s_cbranch_execz R_FIRST2")
    I("v_add_u32 v54, 16, v54")
    I(f"v_add_u32 v58, {SLOT_STRIDE}, v58")
    I(f"ds_write_b64 v54, v[58:59] offset:{STR}")
    I("s_branch R_FIRST1")
    L("R_FIRST2")
    I("s_mov_b64 exec, -1")
    I("s_branch B_XDONE")
    L("R_EPI")
    stream_of(54, 7, "0.5")
    I("v_sub_u32 v59, v53, v54")
    I("v_lshl_add_u32 v56, v54, 2, v5")
    I(f"v_mul_u32_u24 v56, {SLOT_STRIDE//4}, v56")
    I(f"v_add_u32 v56, {SLOT_OFF}, v56")
    I("v_cmp_lt_i32 s[74:75], 0, v59")
    I("v_cmp_lt_i32 s[76:77], 1, v59")
    I(f"v_add_u32 v57, {SLOT_STRIDE}, v56")
    I(f"v_add_u32 v58, {2*SLOT_STRIDE}, v56")
    I(f"v_cndmask_b32 v57, v{VOOB}, v57, s[74:75]")
    I(f"v_cndmask_b32 v58, v{VOOB}, v58, s[76:77]")
    I("v_lshlrev_b32 v55, 2, v5")
    I(f"ds_write_b128 v55, v[56:59] offset:{EPI}")
    I("s_branch B_XDONE")
    L("R_PAD")
    I(f"v_mov_b32 v52, {N}")
    I(f"v_add_u32 v53, {LIST_OFF - 8}, v3")
    I("v_cmp_lt_u32 s[74:75], v6, v2")
    I("s_mov_b64 exec, s[74:75]")
    I("ds_write_b32 v53, v52 offset:4")
    I("v_cmp_eq_u32 s[74:75], 0, v6")
    I("s_mov_b64 exec, s[74:75]")
    I("ds_write_b32 v53, v52")
    I("s_mov_b64 exec, 0x3f")
    I("s_add_u32 s71, s64, s85")
    I("v_add_u32 v53, s71, v5")
    I("ds_write_b32 v53, v52")
    I("s_mov_b64 exec, -1")
    I("s_cmp_eq_u32 s2, 0")
    I("s_cbranch_scc0 B_XDONE")
    bump()
    I("s_branch B_XDONE")
    L("R_FLAGS")
    I("s_add_u32 s43, s43, 1")
    I(f"s_cmp_gt_u32 s43, {POLL_LIMIT}")
    I("s_cbranch_scc1 R_FLAGT")
    I("s_sleep 2")
    I("s_mov_b64 exec, vcc")
    I(f"global_load_dword v35, v34, {WS} sc1")
    I("s_waitcnt vmcnt(0)")
    I(f"v_cmp_ne_u32 vcc, v{TG+3}, v35")
    I("s_mov_b64 exec, -1")
    I("s_branch B_XDONE")
    L("R_FLAGT")
    I("v_mov_b32 v52, 3")
    I(f"ds_or_b32 v1, v52 offset:{FLAG}")
    I("s_branch B_FDONE")
    L("R_LONG")
    I("s_mov_b32 s64, 2")
    I("s_mov_b64 vcc, s[48:49]")
    L("R_LONG1")
    I("s_mov_b64 exec, vcc")
    I(f"v_add_u32 v{EP+2}, {SLOT_STRIDE}, v{EP+2}")
    I(f"ds_read_b128 v[16:19], v{EP+2}")
    I(f"ds_read_b128 v[20:23], v{EP+2} offset:256")
    I("s_add_u32 s64, s64, 1")
    I("s_waitcnt lgkmcnt(0)")
    for i in range(4):
        I(f"v_pk_add_f32 {vr(8+2*i,2)}, {vr(8+2*i,2)}, {vr(16+2*i,2)}")
    I(f"v_cmp_lt_i32 vcc, s64, v{EP+3}")
    I("s_cbranch_vccnz R_LONG1")
    I("s_mov_b64 exec, -1")
    I("s_branch K_MATH")

    L("K_SLOW")
    I("s_load_dwordx8 s[4:11], s[0:1], 0")
    I("s_load_dwordx2 s[12:13], s[0:1], 40")
    I("s_load_dwordx2 s[14:15], s[0:1], 64")
    I("s_setprio 0")
    I("s_waitcnt vmcnt(0) lgkmcnt(0)")
    I("s_cmp_eq_u32 s3, 15")
    I("s_cselect_b32 s71, s80, 0")
    I("s_and_b32 s71, s71, 2")
    I("s_cbranch_scc0 K_SL0")
    bump()
    I("s_waitcnt vmcnt(0)")
    L("K_SL0")
    WB2, WV2 = 40, 72
    I("v_lshrrev_b32 v6, 1, v5")
    I("v_add_u32 v7, 4096, v6")
    for (w, p_) in ((WB2, 12), (WV2, 14)):
        for hf in range(2):
            for k in range(16):
                I(f"global_load_ushort v{w + 16*hf + k}, v{6 + hf}, s[{p_}:{p_+1}] offset:{2*k*128}")
                I(f"global_load_ushort v{8 + k}, v{6 + hf}, s[{p_}:{p_+1}] offset:{(2*k+1)*128}")
            I("s_waitcnt vmcnt(0)")
            for k in range(16):
                I(f"v_lshl_or_b32 v{w + 16*hf + k}, v{8 + k}, 16, v{w + 16*hf + k}")
    for i in range(4):
        I(f"v_mov_b32 v{28+i}, 0")
    I("v_lshlrev_b32 v8, 4, v0")
    for k in range(4):
        I(f"ds_write_b128 v8, v[28:31] offset:{SLOT_OFF + k*16384}")
    I(f"ds_read_u16 v18, v6 offset:{WC_OFF}")
    I(f"s_mov_b32 s18, {hex(f32(1e-6))}")
    I("s_mov_b32 s19, s18")
    I(f"s_mov_b32 s16, {hex(f32(-LOG2E))}")
    I(f"v_lshl_add_u32 v17, v124, 2, v{LC}")
    I("v_lshlrev_b32 v10, 1, v5")
    I("s_waitcnt lgkmcnt(0)")
    I("v_lshlrev_b32 v18, 16, v18")
    I("s_barrier")
    I("v_lshlrev_b32 v8, 2, v0")
    I("v_lshlrev_b32 v9, 1, v0")
    I("s_lshl_b32 s70, s3, 6")
    L("K_SLOOP")
    I(f"global_load_dword v11, v8, {sr(P_DST,2)}")
    I(f"global_load_dword v12, v8, {sr(P_SRC,2)}")
    I(f"global_load_ushort v13, v9, {sr(P_E,2)}")
    I("s_waitcnt vmcnt(0)")
    I("v_and_b32 v14, 0xff, v11")
    I("v_cmp_eq_u32 s[74:75], s2, v14")
    L("K_SIN")
    I("s_cmp_eq_u64 s[74:75], 0")
    I("s_cbranch_scc1 K_SNEXT")
    I("s_ff1_i32_b64 s73, s[74:75]")
    I("s_bitset0_b64 s[74:75], s73")
    I("v_readlane_b32 s79, v11, s73")
    I("v_readlane_b32 s80, v12, s73")
    I("v_readlane_b32 s81, v13, s73")
    I("s_lshr_b32 s79, s79, 8")
    I(f"s_mul_i32 s76, s79, {EAU_STRIDE}")
    I(f"s_add_u32 s76, s76, {EAU_OFF + 512}")
    I(f"s_mul_i32 s79, s79, {ACC_STRIDE}")
    I("s_lshl_b32 s80, s80, 7")
    I("s_add_u32 s78, s80, 64")
    I(f"s_load_dwordx16 s[36:51], {sr(P_X,2)}, s80")
    I(f"s_load_dwordx16 s[52:67], {sr(P_X,2)}, s78")
    I("s_lshl_b32 s81, s81, 16")
    I("v_add_u32 v15, s76, v17")
    I("v_add_u32 v16, s79, v10")
    I("ds_read_b32 v22, v15")
    I("v_mul_f32 v20, s81, v18")
    I("v_mov_b32 v21, 0")
    I("s_waitcnt lgkmcnt(0)")
    for k in range(32):
        I(f"v_dot2_f32_bf16 v20, s{36+k}, v{WB2+k}, v20")
        I(f"v_dot2_f32_bf16 v21, s{36+k}, v{WV2+k}, v21")
    I("s_nop 2")
    I("v_fma_f32 v20, v20, s16, v22")
    I("v_exp_f32 v20, v20")
    I("s_nop 0")
    I("v_add_f32 v20, 1.0, v20")
    I("v_rcp_f32 v20, v20")
    I("s_nop 0")
    I("v_mul_f32 v21, v21, v20")
    I("v_cvt_f64_f32 v[24:25], v20")
    I("v_cvt_f64_f32 v[26:27], v21")
    I(f"ds_add_f64 v16, v[24:25] offset:{SLOT_OFF}")
    I(f"ds_add_f64 v16, v[26:27] offset:{SLOT_OFF + 512}")
    I("s_branch K_SIN")
    L("K_SNEXT")
    I("s_add_u32 s70, s70, 1024")
    I("v_add_u32 v8, 4096, v8")
    I("v_add_u32 v9, 2048, v9")
    I(f"s_cmp_lt_u32 s70, {E}")
    I("s_cbranch_scc1 K_SLOOP")
    I("v_lshrrev_b32 v6, 4, v0")
    I(f"v_mul_u32_u24 v6, {ACC_STRIDE}, v6")
    I(f"v_lshl_add_u32 v6, v{LC}, 1, v6")
    I("s_waitcnt lgkmcnt(0)")
    I("s_barrier")
    I("s_cmp_lt_u32 s3, 13")
    I("s_cbranch_scc0 K_FIN")
    I(f"ds_read_b128 v[16:19], v6 offset:{SLOT_OFF}")
    I(f"ds_read_b128 v[20:23], v6 offset:{SLOT_OFF+16}")
    I(f"ds_read_b128 v[24:27], v6 offset:{SLOT_OFF+512}")
    I(f"ds_read_b128 v[28:31], v6 offset:{SLOT_OFF+528}")
    I("s_waitcnt lgkmcnt(0)")
    for c in range(8):
        I(f"v_cvt_f32_f64 v{8+c}, {vr(16+2*c,2)}")
    I("s_branch K_MATH")
    L("SLOW_END")

hdr = open("standalone__edge_featured_mpnn_gatedgcn__graph.s.ref").read().split("\n")
for line in hdr:
    if line.startswith("; Override"):
        break
    o(line)
o(f"; @launch kernel={KNAME} grid=(256,1,1) block=(1024,1,1) lds={LDS_TOTAL}")
o('.amdgcn_target "amdgcn-amd-amdhsa--gfx950"')
o(".text")
gen()
o('.section .rodata,"a"')
o(".p2align 6")
o(f".amdhsa_kernel {KNAME}")
o("  .amdhsa_next_free_vgpr 128")
o("  .amdhsa_next_free_sgpr 102")
o("  .amdhsa_accum_offset 128")
o("  .amdhsa_group_segment_fixed_size 0")
o("  .amdhsa_kernarg_size 96")
o("  .amdhsa_user_sgpr_count 2")
o("  .amdhsa_user_sgpr_kernarg_segment_ptr 1")
o("  .amdhsa_system_sgpr_workgroup_id_x 1")
o(".end_amdhsa_kernel")
open(sys.argv[1], "w").write("\n".join(out) + "\n")
```

```python
import sys, struct

OPT = dict(stamp=0, sts="2_3_4_5_6_7", force_slow=0, prio="16_8_4", spin=0, spinat=18, hack=0, sleep=2, delay=0,
           codepf=1, gprio=1, pf=0, pf2=0, pre=1, cfirst=0, gbar=0, init1=1, pf3=0, pfw=0, drain=0, pf4=0, tlb=0, gl=0, pf5=0, pfa=1, osc="sc1", w32=0, fw=1, fl=0, dbar=0, wsb=0, pinv=0, nreg=16, probe=0, tst=2, pop=1, cad=1, fp="", e12=0, nol2=0, amp=0, ampw=0, ampg=-1, ampm=10, esc="none", sup=1, cprio=1, nog=0, gsc="sc1", cut=0, ef=0, fs=4)
for a in sys.argv[2:]:
    k, v = a.split("=")
    OPT[k] = int(v) if v.lstrip("-").isdigit() else v

KNAME = "standalone__edge_featured_mpnn_gatedgcn__graph_kernel"
N = 12500
E = 800000
CHUNK = 3136
TAB_ROWS = N + 1
CTL_OFF = 0xF900000
REG_STRIDE = 13 << 20
FLG_OFF = CTL_OFF + 0x10000
CELL_OFF = 0x400000
BIN_STRIDE = 32768 + 256
LINE_STRIDE = 0x900000
STAMP_OFF = 0xF000000
LOG2E = 1.4426950408889634
KEXP = 62
POLL_LIMIT = 100000

X_OFF = 0
WC_OFF = 8192
C1_OFF = 8448
C2_OFF = 9472
FLAG = C2_OFF + 256
SYNC = C2_OFF + 260
TAGS = C2_OFF + 272
BASE = C2_OFF + 512
STR = C2_OFF + 1024
EPI = C2_OFF + 2048
IMG = C2_OFF + 3072
IMG_STRIDE = 272
EAU_OFF = IMG + 256 * IMG_STRIDE
EAU_STRIDE = 800
W_OFF = EAU_OFF + 52 * EAU_STRIDE
LDS_TOTAL = W_OFF + 32768
LIST_OFF = W_OFF
LIST_MAX = 31 * 16 * 32
SLOT_OFF = IMG
SLOT_STRIDE = 512
ACC_STRIDE = 1056
OOB = 0x30000
assert W_OFF % 128 == 0 and 117 * SLOT_STRIDE <= 256 * IMG_STRIDE and LDS_TOTAL <= 163840
INC = 0x5556

def f32(x):
    return struct.unpack("<I", struct.pack("<f", x))[0]

out = []
def o(s=""):
    out.append(s)
def I(s):
    out.append("    " + s)
def L(s):
    out.append(s + ":")
def vr(a, n=1):
    return f"v{a}" if n == 1 else f"v[{a}:{a+n-1}]"
def sr(a, n=1):
    return f"s{a}" if n == 1 else f"s[{a}:{a+n-1}]"
def sdwa(sel1):
    return f"dst_sel:DWORD dst_unused:UNUSED_PAD src0_sel:DWORD src1_sel:{sel1}"

P_X, P_E, P_SRC, P_DST, P_WA, P_WB, P_WC, P_WU, P_WV, P_OUT, P_DBG, P_WS = 4, 6, 8, 10, 12, 14, 16, 18, 20, 22, 24, 26
S_TAB, S_X = 28, 32
WS = sr(P_WS, 2)

STS = [int(x) for x in str(OPT["sts"]).split("_")] if OPT["stamp"] else []
RTS = {12: 28, 17: 29} if OPT["stamp"] == 2 else {}
def stamp(i):
    if OPT["amp"]:
        if i == 1:
            I("s_memrealtime s[98:99]")
        if i == OPT["amp"]:
            I("s_memrealtime s[96:97]")
        if i == 18:
            I(f"s_cmp_eq_u32 s3, {OPT['ampw']}")
            I("s_cbranch_scc0 AMP_D")
            if OPT["ampg"] >= 0:
                I(f"s_cmp_eq_u32 s2, {OPT['ampg']}")
                I("s_cbranch_scc0 AMP_D")
            I("s_waitcnt lgkmcnt(0)")
            I("s_sub_u32 s96, s96, s98")
            I(f"s_mul_i32 s96, s96, {OPT['ampm']}")
            I("s_add_u32 s96, s96, 3000")
            I("s_min_u32 s96, s96, 100000")
            L("AMP_W")
            I("s_memrealtime s[90:91]")
            I("s_waitcnt lgkmcnt(0)")
            I("s_sub_u32 s90, s90, s98")
            I("s_cmp_lt_u32 s90, s96")
            I("s_cbranch_scc1 AMP_W")
            L("AMP_D")
    if OPT["spin"] and OPT["spinat"] == i:
        lab = f"SPIN_{len(out)}"
        I("s_cselect_b32 s92, 1, 0")
        L(lab)
        I("s_memrealtime s[90:91]")
        I("s_waitcnt lgkmcnt(0)")
        I("s_sub_u32 s90, s90, s98")
        I(f"s_cmp_lt_u32 s90, {OPT['spin']}")
        I(f"s_cbranch_scc1 {lab}")
        I("s_cmp_lg_u32 s92, 0")
    if not OPT["stamp"]:
        return
    if i == 0:
        I("s_memrealtime s[86:87]")
    elif i == 1:
        I("s_memtime s[88:89]")
    elif i in STS:
        k = 90 + 2 * STS.index(i)
        I(f"s_memtime s[{k}:{k+1}]")
        if i in RTS:
            k = 90 + 2 * STS.index(RTS[i])
            I(f"s_memrealtime s[{k}:{k+1}]")
def stamp_out():
    if not OPT["stamp"]:
        return
    I("s_mov_b64 exec, -1")
    I("s_waitcnt vmcnt(0) lgkmcnt(0)")
    I("s_memtime s[80:81]")
    I("s_memrealtime s[82:83]")
    I("s_waitcnt lgkmcnt(0)")
    I("v_writelane_b32 v127, s80, 30")
    I("v_writelane_b32 v127, s82, 31")
    I("v_writelane_b32 v127, s86, 0")
    I("v_writelane_b32 v127, s88, 1")
    for i in list(range(2, 19)) + list(range(20, 30)):
        I(f"v_writelane_b32 v127, s{90 + 2*STS.index(i) if i in STS else 88}, {i}")
    I("s_lshl_b32 s84, s2, 4")
    I("s_add_u32 s84, s84, s3")
    I("s_lshl_b32 s84, s84, 7")
    I(f"s_add_u32 s84, s84, {hex(STAMP_OFF)}")
    I("s_sub_u32 s84, s84, s38")
    I("v_and_b32 v1, 63, v0")
    I("v_lshl_add_u32 v1, v1, 2, s84")
    I("s_mov_b64 exec, 0xffffffff")
    I(f"global_store_dword v1, v127, {WS}")

def srd(d, p, size):
    I(f"s_mov_b64 {sr(d,2)}, {sr(p,2)}")
    I(f"s_mov_b32 s{d+2}, {hex(size)}")
    I(f"s_mov_b32 s{d+3}, 0x20000")

D, S, EE = 16, 20, 24
AP = 104
TG = 120
B2 = 128 * IMG_STRIDE

def edge_loads(lo=0, hi=3):
    ins = [f"global_load_dwordx4 {vr(D,4)}, v10, {sr(P_DST,2)}",
           f"global_load_dwordx4 {vr(S,4)}, v10, {sr(P_SRC,2)}",
           f"global_load_dwordx2 {vr(EE,2)}, v11, {sr(P_E,2)}"]
    for x in ins[lo:hi]:
        I(x + " " + OPT["esc"].replace("none", ""))

def claim():
    op = {1: "global_atomic_or v8, v12", 2: "global_store_dword v8, v12"}[OPT["pop"]]
    I("v_lshlrev_b32 v8, 16, v0")
    I("s_lshl_b32 s64, s2, 8")
    I("v_add_u32 v8, s64, v8")
    I(f"s_mov_b32 exec_hi, {hex((1 << 17) - 1)}")
    I(f"{op}, {WS} sc1")
    I(f"{op}, {WS} offset:128 sc1")
    I("s_mov_b64 exec, -1")

def binning(waits, extra=0, hook=None):
    B4, RK, PA = 28, 32, 36
    I(f"v_mov_b32 v14, {INC}")
    I(f"s_mov_b32 s68, {47*INC}")
    I("s_mov_b32 s69, 0x05040100")
    I("s_mov_b32 s70, 0x07060100")
    if waits:
        I(f"s_waitcnt vmcnt({2+extra})")
        stamp(3)
    for i in range(4):
        I(f"v_lshlrev_b32_sdwa v{B4+i}, 2, v{D+i} {sdwa('BYTE_0')}")
        I(f"ds_add_rtn_u32 v{RK+i}, v{B4+i}, v14 offset:{C1_OFF}")
    for i in range(4):
        I(f"v_mul_u32_u24 v{B4+i}, {IMG_STRIDE//4}, v{B4+i}")
        I(f"v_lshrrev_b32 v{D+i}, 8, v{D+i}")
    for i in range(4):
        I("s_waitcnt lgkmcnt(3)")
        I(f"v_min_u32 v{RK+i}, s68, v{RK+i}")
        I(f"v_lshrrev_b32 v{RK+i}, 14, v{RK+i}")
        I(f"v_lshl_add_u32 v{PA+i}, v{RK+i}, 2, v{B4+i}")
        I(f"v_and_b32 v{RK+i}, 3, v{RK+i}")
        I(f"v_or3_b32 v{RK+i}, v{PA+i}, 12, v{RK+i}")
        I(f"ds_write_b8 v{RK+i}, v{D+i} offset:{IMG}")
    if waits:
        if hook:
            hook()
        else:
            I(f"s_waitcnt vmcnt({extra})")
            stamp(4)
    for i in range(4):
        if OPT["hack"]:
            I(f"v_and_b32 v{S+i}, {OPT['hack']}, v{S+i}")
        I(f"v_perm_b32 v{S+i}, v{EE+(i>>1)}, v{S+i}, s{69+(i&1)}")
        I(f"ds_write_b32 v{PA+i}, v{S+i} offset:{IMG}")

def copy_consts():
    I("s_lshr_b32 s64, s2, 7")
    I("s_lshl_b32 s64, s64, 14")
    I(f"s_add_u32 s64, s64, {hex(CELL_OFF)}")
    I(f"v_mul_u32_u24 v6, {BIN_STRIDE//4}, v5")
    I("v_lshl_add_u32 v6, v0, 4, v6")
    I("v_add_u32 v6, s64, v6")
    I(f"v_add_u32 v7, {128*BIN_STRIDE}, v6")
    I(f"s_mul_i32 s64, s2, {BIN_STRIDE}")
    I(f"s_add_u32 s64, s64, {hex(CELL_OFF)}")
    I("v_lshl_add_u32 v2, v0, 4, s64")
    I("v_add_u32 v3, 0x4000, v2")
    I("s_mov_b32 s36, 0x0f0f0f0f")
    I("s_mov_b32 s37, s36")
    if OPT["w32"] == 2:
        I("v_mov_b32 v102, 0")
    elif OPT["w32"]:
        I("v_bfe_u32 v102, v0, 1, 2")
        I("v_bfe_u32 v103, v0, 2, 1")
        I(f"v_mul_u32_u24 v102, {6*INC}, v102")
        I("v_mul_u32_u24 v102, v102, v103")
    else:
        I("v_bfe_u32 v102, v0, 2, 1")
        I(f"v_mul_u32_u24 v102, {12*INC}, v102")
    I(f"s_mov_b32 s39, {24*INC}")
    I("s_mov_b32 s40, 0xc000")
    I("s_mov_b32 s41, 0xffc0c0c0")
    I(f"s_mov_b32 s42, {49 << 16}")
    I("s_mov_b32 s43, 0")
    I("v_mov_b32 v1, 0")
    I(f"s_mov_b32 s{S_TAB+2}, {0 if OPT['nog'] else TAB_ROWS}")
    I(f"s_mov_b32 s{S_TAB+3}, 0x20000")

def lds_init():
    I("v_add_u32 v5, s2, v3")
    I("v_and_b32 v5, 127, v5")
    I(f"v_mul_u32_u24 v4, {IMG_STRIDE}, v5")
    I("v_lshl_add_u32 v4, v2, 4, v4")
    I("v_lshlrev_b32 v5, 2, v5")
    I("v_mov_b32 v12, 0")
    I("v_mov_b32 v13, 0x3f3f3f")
    I(f"ds_write2st64_b32 v5, v12, v12 offset0:{C1_OFF//256} offset1:{C1_OFF//256+2}")
    for r in range(1 if OPT["init1"] else 2):
        for b in range(2):
            I(f"ds_write_b32 v4, v13 offset:{IMG + b*B2 + r*128 + 12}")
def edge_addr():
    I(f"s_mul_i32 s64, s2, {CHUNK*4}")
    I("v_lshl_add_u32 v10, v0, 4, s64")
    I("v_lshrrev_b32 v11, 1, v10")

def gen():
    o(".p2align 8")
    o(f".globl {KNAME}")
    o(f".type {KNAME},@function")
    L(KNAME)
    I("s_cmp_ge_u32 s2, 256")
    I("s_cbranch_scc1 K_END")
    stamp(0); stamp(1)
    I("s_load_dwordx16 s[4:19], s[0:1], 0")
    I("s_load_dwordx8 s[20:27], s[0:1], 64")
    if OPT["spin"]:
        I("s_memrealtime s[98:99]")
    I("v_lshrrev_b32 v1, 6, v0")
    I("v_and_b32 v2, 7, v0")
    I("v_readfirstlane_b32 s3, v1")
    I("v_lshrrev_b32 v3, 3, v0")
    I("s_mov_b32 s79, 0")
    I("s_cmp_ge_u32 s3, 12")
    I("s_cbranch_scc1 G_ENTRY")

    I("s_cmp_ge_u32 s3, 2")
    I("s_cbranch_scc1 A_NOPF")
    if OPT["codepf"]:
        I("s_getpc_b64 s[64:65]")
        L("A_PC")
        I("v_lshlrev_b32 v8, 7, v0")
        I("v_min_u32 v8, K_SLOW-A_PC-4, v8")
        I("global_load_dword v27, v8, s[64:65]")
    I("v_lshlrev_b32 v8, 4, v0")
    I("v_mov_b64 v[12:13], 0")
    I("v_mov_b64 v[14:15], 0")
    I(f"ds_write_b128 v8, v[12:15] offset:{C2_OFF}")
    L("A_NOPF")
    lds_init()
    edge_addr()
    I(f"v_cmp_gt_u32 vcc, {E*4}, v10")
    I("s_waitcnt lgkmcnt(0)")
    stamp(24)
    if OPT["wsb"]:
        I(f"s_add_u32 s{P_WS}, s{P_WS}, {hex(OPT['wsb'] << 20)}")
        I(f"s_addc_u32 s{P_WS+1}, s{P_WS+1}, 0")
    I("s_mov_b64 exec, vcc")
    I("s_cbranch_execz A_NOE")
    I("s_cmp_eq_u32 s3, 1")
    I("s_cbranch_scc1 A_W1")
    edge_loads(0, OPT["pre"])
    I("s_barrier")
    stamp(2)
    edge_loads(OPT["pre"], 3)
    I("s_mov_b64 exec, -1")
    copy_consts()
    I("s_mov_b64 exec, vcc")
    binning(True)
    I("s_mov_b64 exec, -1")
    I("s_branch A_JOIN")
    L("A_W1")
    I("s_cmp_eq_u32 s2, 0")
    I("s_cbranch_scc0 A_NOPICK")
    I("s_memrealtime s[70:71]")
    I("s_waitcnt lgkmcnt(0)")
    I("s_bfe_u32 s70, s70, 0x40003")
    I("s_add_u32 s70, s70, 1")
    I("v_mov_b32 v14, s70")
    I("v_mov_b32 v15, 0")
    I("s_mov_b64 exec, 1")
    I(f"global_atomic_cmpswap v12, v[14:15], {sr(P_DBG,2)} sc1")
    I("s_mov_b64 exec, vcc")
    L("A_NOPICK")
    edge_loads(0, OPT["pre"])
    I(f"s_add_u32 s70, s{P_WS}, {hex(CTL_OFF)}")
    I(f"s_addc_u32 s71, s{P_WS+1}, 0")
    I("s_load_dwordx2 s[72:73], s[70:71], 8")
    if OPT["fw"]:
        I(f"s_lshl_b32 s74, s2, {OPT['fs']}")
        I(f"s_add_u32 s74, s74, {hex(FLG_OFF - CTL_OFF)}")
        I("s_load_dword s75, s[70:71], s74")
    I("s_barrier")
    edge_loads(OPT["pre"], 3)
    I("s_mov_b64 exec, -1")
    copy_consts()
    I("s_mov_b64 exec, 1")
    I(f"global_load_dword v26, v1, {sr(P_DBG,2)} sc1")
    I("s_mov_b64 exec, vcc")
    def area_hook():
        I("s_mov_b64 exec, 1")
        L("A_AREA")
        I("s_waitcnt vmcnt(0)")
        I("v_readfirstlane_b32 s64, v26")
        I("s_cmp_lg_u32 s64, 0")
        I("s_cbranch_scc1 A_AREAD")
        I(f"global_load_dword v26, v1, {sr(P_DBG,2)} sc1")
        I("s_add_u32 s43, s43, 1")
        I(f"s_cmp_le_u32 s43, {POLL_LIMIT}")
        I("s_cbranch_scc1 A_AREA")
        I("s_waitcnt vmcnt(0)")
        L("A_AREAD")
        I(f"s_and_b32 s64, s64, {OPT['nreg']-1}")
        I(f"s_mul_i32 s64, s64, {REG_STRIDE}")
        I("s_add_u32 s64, s64, 1")
        I("v_mov_b32 v26, s64")
        I(f"ds_write_b32 v1, v26 offset:{TAGS+16}")
        I("s_mov_b64 exec, vcc")
    binning(True, 1, area_hook)
    I("s_mov_b64 exec, 1")
    I("s_waitcnt lgkmcnt(0)")
    I("s_add_u32 s72, s72, 0x1000000")
    I("s_addc_u32 s73, s73, 0")
    I("s_and_b32 s72, s72, 0xff000000")
    for k in range(3):
        I(f"s_bfe_u32 s64, s73, {hex((2 << 16) | (2*k))}")
        I(f"s_lshl_b32 s64, s64, {6 + 8*k}")
        I("s_or_b32 s72, s72, s64")
        I(f"s_bfe_u32 s64, s73, {hex((2 << 16) | (6 + 2*k))}")
        I("s_lshl_b32 s64, s64, 14")
        I(f"v_mov_b32 v{TG+k}, s64")
    I(f"v_mov_b32 v{TG+3}, s72")
    I(f"ds_write_b128 v1, {vr(TG,4)} offset:{TAGS}")
    I("s_mov_b64 exec, -1")
    I("s_branch A_JOIN")
    L("A_NOE")
    I("s_barrier")
    I("s_mov_b64 exec, -1")
    copy_consts()
    I("s_branch A_JOIN")

    XA, FA, FB, ACC1, ACC2 = 28, 36, 68, 104, 36
    L("G_ENTRY")
    if OPT["gprio"]:
        I("s_setprio 3")
    I("v_and_b32 v7, 7, v3")
    I("s_and_b32 s64, s3, 1")
    I("s_lshl_b32 s64, s64, 2")
    I("v_and_b32 v8, 2, v7")
    I("v_xor_b32 v8, v8, v2")
    I("v_xor_b32 v8, s64, v8")
    I("v_lshlrev_b32 v8, 4, v8")
    I("v_lshl_add_u32 v8, v7, 7, v8")
    I("s_and_b32 s65, s3, 3")
    I("s_lshl_b32 s65, s65, 11")
    I("v_add_u32 v8, s65, v8")
    I(f"s_add_u32 s65, s65, {W_OFF}")
    I("s_add_u32 s66, s3, 3")
    I("s_and_b32 s66, s66, 3")
    I("v_xor_b32 v9, v2, v7")
    I("v_lshlrev_b32 v9, 4, v9")
    I("v_lshl_add_u32 v9, v7, 15, v9")
    I("s_lshl_b32 s67, s66, 19")
    I("s_lshl_b32 s68, s2, 7")
    I("s_add_u32 s67, s67, s68")
    I("v_add_u32 v9, s67, v9")
    I("v_add_u32 v15, 0x40000, v9")
    I("s_lshl_b32 s67, s66, 11")
    I(f"s_mov_b32 s{S_X+2}, {N*128}")
    I(f"s_mov_b32 s{S_X+3}, 0x20000")
    I("s_mov_b32 m0, s67")
    I("s_waitcnt lgkmcnt(0)")
    stamp(24)
    if OPT["wsb"]:
        I(f"s_add_u32 s{P_WS}, s{P_WS}, {hex(OPT['wsb'] << 20)}")
        I(f"s_addc_u32 s{P_WS+1}, s{P_WS+1}, 0")
    I(f"s_mov_b64 {sr(S_X,2)}, {sr(P_X,2)}")
    I(f"buffer_load_dwordx4 v9, {sr(S_X,4)}, 0 offen lds")
    I("s_add_u32 m0, s67, 1024")
    I("s_nop 0")
    I(f"buffer_load_dwordx4 v15, {sr(S_X,4)}, 0 offen lds")
    def w_dma(p, off, va="v8", sd="s65"):
        I(f"s_add_u32 m0, {sd}, {off}")
        I("s_nop 0")
        I(f"global_load_lds_dwordx4 {va}, {sr(p,2)}")
        I(f"global_load_lds_dwordx4 {va}, {sr(p,2)} offset:1024")
    w_dma(P_WB, 0)
    w_dma(P_WV, 8192)
    lds_init()
    edge_addr()
    if OPT["gbar"]:
        I("s_waitcnt lgkmcnt(0)")
        I("s_barrier")
        stamp(2)
    I("s_cmp_eq_u32 s3, 12")
    I("s_cselect_b32 s74, 0xffff, 0")
    I("s_cmp_eq_u32 s2, 255")
    I("s_cselect_b32 s74, 0, s74")
    I("s_mov_b32 s75, 0")
    I("s_mov_b64 exec, s[74:75]")
    I("s_cbranch_execz G_NOE")
    edge_loads()
    L("G_NOE")
    I("s_mov_b64 exec, -1")

    I("v_mov_b32 v126, v8")
    I("v_lshlrev_b32 v100, 4, v2")
    I("s_mov_b32 s78, s65")
    I(f"s_mov_b32 s{S_X+2}, {TAB_ROWS*256}")
    copy_consts()
    I("v_and_b32 v124, 15, v0")
    I("v_bfe_u32 v125, v0, 4, 2")
    I("v_and_b32 v8, 7, v124")
    I("v_lshlrev_b32 v9, 1, v125")
    I("v_xor_b32 v8, v8, v9")
    I("v_lshlrev_b32 v8, 4, v8")
    I("v_lshl_add_u32 v8, v124, 7, v8")
    I("v_add_u32 v8, s67, v8")
    I("v_xor_b32 v9, 16, v8")
    I("v_lshrrev_b32 v10, 2, v124")
    I("v_and_b32 v11, 2, v10")
    I("v_bfe_u32 v12, v0, 1, 1")
    I("v_or_b32 v11, v11, v12")
    I("v_and_b32 v12, 1, v125")
    I("v_lshl_or_b32 v11, v12, 2, v11")
    I("v_lshlrev_b32 v11, 4, v11")
    I("v_and_b32 v12, 1, v0")
    I("v_lshl_or_b32 v11, v12, 3, v11")
    I("v_lshl_add_u32 v10, v125, 4, v10")
    I("v_lshl_or_b32 v11, v10, 7, v11")
    I(f"v_add_u32 v12, {W_OFF}, v11")
    for T in range(1, 4):
        I(f"v_xor_b32 v{12+T}, {T << 5}, v12")
    I(f"s_mov_b32 s76, {hex(f32(-LOG2E))}")
    I("s_mov_b32 s77, 0x07060302")
    I(f"v_mov_b32 v26, {hex(f32(2.0**-70))}")
    I("s_lshl_b32 s64, s66, 20")
    I("s_lshl_b32 s65, s2, 8")
    I("s_add_u32 s64, s64, s65")
    I("v_lshlrev_b32 v27, 18, v125")
    I("v_lshl_add_u32 v27, v124, 4, v27")
    I("v_add_u32 v27, s64, v27")
    I("v_mov_b32 v10, 1")
    def g_sync(target, lab, arrive=True):
        if arrive:
            I("s_mov_b64 exec, 1")
            I(f"ds_add_u32 v1, v10 offset:{SYNC}")
            I("s_mov_b64 exec, -1")
        L(lab)
        I(f"ds_read_b32 v11, v1 offset:{SYNC}")
        I("s_waitcnt lgkmcnt(0)")
        I("v_readfirstlane_b32 s64, v11")
        I(f"s_cmp_lt_u32 s64, {target}")
        I(f"s_cbranch_scc1 {lab}")
    def frag_reads(F, moff):
        for T in range(4):
            for s in range(2):
                for h in range(2):
                    I(f"ds_read_b64_tr_b16 {vr(F + 8*T + 4*s + 2*h, 2)}, v{12+T} offset:{moff + (8*s+4*h)*128}")
    def mfmas(F, acc, swap, later):
        for T in range(4):
            I(f"s_waitcnt lgkmcnt({min(15, later + 4*(3-T))})")
            for s in range(2):
                a, b = vr(XA + 4*s, 4), vr(F + 8*T + 4*s, 4)
                if swap:
                    a, b = b, a
                c = "0" if s == 0 else vr(acc + 4*T, 4)
                I(f"v_mfma_f32_16x16x32_bf16 {vr(acc+4*T,4)}, {a}, {b}, {c}")
    if not OPT["gbar"]:
        I("s_waitcnt lgkmcnt(0)")
        I("s_barrier")
        stamp(2)
    I("s_cmp_eq_u64 s[74:75], 0")
    I("s_cbranch_scc1 G_W0")
    I("s_waitcnt vmcnt(3)")
    I("s_branch G_W1")
    L("G_W0")
    I("s_waitcnt vmcnt(0)")
    L("G_W1")
    stamp(3)
    g_sync(4, "G_S1")
    stamp(20)
    I(f"ds_read_b128 {vr(XA,4)}, v8")
    I(f"ds_read_b128 {vr(XA+4,4)}, v9")
    frag_reads(FA, 0)
    frag_reads(FB, 8192)
    stamp(21)
    w_dma(P_WA, 16384, "v126", "s78")
    w_dma(P_WU, 24576, "v126", "s78")
    I("s_cmp_eq_u32 s3, 13")
    I("s_cbranch_scc0 G_NOWC")
    I(f"s_mov_b32 m0, {WC_OFF}")
    I("s_mov_b64 exec, 0xff")
    I(f"global_load_lds_dwordx4 v100, {sr(P_WC,2)}")
    I("s_mov_b64 exec, -1")
    L("G_NOWC")
    stamp(22)
    mfmas(FA, ACC1, False, 16)
    mfmas(FB, ACC2, False, 0)
    stamp(23)
    ACCB, ACCV, OUTR = ACC1, ACC2, FB
    SD = sdwa("WORD_1")
    I("s_mov_b32 s80, 0x8000")
    I("s_mov_b32 s81, 0x8000")
    I(f"s_mov_b32 s68, {hex(f32(2.0**-100))}")
    I("s_mov_b32 s69, s68")
    I("v_mov_b32 v10, v26")
    I("v_mov_b32 v11, v26")
    I("s_nop 1")
    for rp in (0, 2):
        for t in range(4):
            I(f"v_pk_fma_f32 {vr(ACCB+4*t+rp,2)}, {vr(ACCB+4*t+rp,2)}, s[76:77], v[10:11] op_sel_hi:[1,0,1]")
        for t in (1, 3):
            I(f"v_pk_add_f32 {vr(ACCV+4*t+rp,2)}, {vr(ACCV+4*t+rp,2)}, s[68:69]")
        for t in range(4):
            I(f"v_lshl_add_u64 {vr(ACCB+4*t+rp,2)}, {vr(ACCB+4*t+rp,2)}, 0, s[80:81]")
        for t in range(4):
            I(f"v_lshl_add_u64 {vr(ACCV+4*t+rp,2)}, {vr(ACCV+4*t+rp,2)}, 0, s[80:81]")
        for r in (rp, rp + 1):
            for t in (0, 2):
                I(f"v_sub_u32_sdwa v{ACCB+4*t+r}, v{ACCB+4*t+r}, v{ACCV+4*t+r} clamp {SD}")
            for t in (0, 2):
                I(f"v_sub_u32_sdwa v{ACCV+4*(t+1)+r}, v{ACCV+4*(t+1)+r}, v{ACCB+4*t+r} clamp {SD}")
            for t in (0, 2):
                I(f"v_sub_u32_sdwa v{ACCB+4*(t+1)+r}, v{ACCB+4*(t+1)+r}, v{ACCV+4*(t+1)+r} clamp {SD}")
            for t in range(4):
                I(f"v_perm_b32 v{OUTR+4*r+t}, v{ACCB+4*t+r}, v{ACCV+4*t+r}, s77")
            if r == 0:
                if OPT["tst"] == 2:
                    L("G_AREA")
                    I(f"ds_read_b32 v26, v1 offset:{TAGS+16}")
                    I("s_waitcnt lgkmcnt(0)")
                    I("v_readfirstlane_b32 s64, v26")
                    I("s_sub_u32 s64, s64, 1")
                    I("s_cbranch_scc1 G_AREA")
                    I(f"s_add_u32 s{S_X}, s{P_WS}, s64")
                    I(f"s_addc_u32 s{S_X+1}, s{P_WS+1}, 0")
                I("s_cmp_eq_u32 s3, 12")
                I("s_cbranch_scc1 G_T3")
            elif OPT["tst"] == 2:
                I("v_add_u32 v27, 0x10000, v27")
            if OPT["tst"] == 2:
                I(f"buffer_store_dwordx4 {vr(OUTR+4*r,4)}, v27, {sr(S_X,4)}, 0 offen sc1")

    stamp(4)
    L("G_BVD")
    I(f"s_waitcnt vmcnt({4 if OPT['tst'] == 2 else 0})")
    I("s_branch G_DONE")
    L("G_T3")
    I("s_cmp_eq_u32 s2, 212")
    I("s_cbranch_scc0 G_NODUM")
    for t in range(4):
        I(f"v_mov_b32 v{OUTR+t}, 0x7f000000")
    L("G_NODUM")
    if OPT["tst"] == 2:
        I(f"buffer_store_dwordx4 {vr(OUTR,4)}, v27, {sr(S_X,4)}, 0 offen sc1")
    I(f"s_waitcnt vmcnt({5 if OPT['tst'] == 2 else 4})")
    I("s_mov_b64 exec, s[74:75]")
    I("s_cbranch_execz G_NOBIN")
    I("v_mov_b32 v126, v14")
    binning(False)
    I("v_mov_b32 v14, v126")
    L("G_NOBIN")
    I("s_mov_b64 exec, -1")
    I(f"ds_read_b128 {vr(XA,4)}, v8")
    I(f"ds_read_b128 {vr(XA+4,4)}, v9")
    stamp(4)
    I(f"s_waitcnt vmcnt({1 if OPT['tst'] == 2 else 0})")
    L("G_DONE")
    if OPT["drain"]:
        I("s_waitcnt vmcnt(0)")
    if OPT["gprio"] and not OPT["cprio"]:
        I("s_setprio 0")
    stamp(5)

    L("A_JOIN")
    if OPT["cprio"]:
        I("s_setprio 3")
    I("s_waitcnt lgkmcnt(0)")
    stamp(6)
    I("s_barrier")
    stamp(7)
    C0 = 68 if OPT["tst"] == 2 else 48
    I(f"ds_read_b32 v11, v1 offset:{TAGS+16}")
    I(f"ds_read_b128 {vr(TG,4)}, v1 offset:{TAGS}")
    I(f"ds_read2st64_b32 v[8:9], v5 offset0:{C1_OFF//256} offset1:{C1_OFF//256+2}")
    I(f"ds_read_b128 {vr(C0,4)}, v4 offset:{IMG}")
    I(f"ds_read_b128 {vr(C0+4,4)}, v4 offset:{IMG+B2}")
    def tagit(c):
        for k in range(3):
            I(f"v_bfi_b32 v{c+k}, s40, v{TG+k}, v{c+k}")
        I(f"v_or_b32 v{c+3}, v{TG+3}, v{c+3}")
    I("s_waitcnt lgkmcnt(2)")
    I("v_readfirstlane_b32 s38, v11")
    I("v_cmp_le_u32 s[72:73], v102, v8")
    I("v_cmp_le_u32 s[74:75], v102, v9")
    I("v_max_u32 v10, v8, v9")
    I("v_cmp_le_u32 vcc, s39, v10")
    I("s_sub_u32 s38, s38, 1")
    I(f"s_add_u32 s{P_WS}, s{P_WS}, s38")
    I(f"s_addc_u32 s{P_WS+1}, s{P_WS+1}, 0")
    def table_stores(lab):
        I(f"s_mov_b64 {sr(S_X,2)}, {WS}")
        I(f"buffer_store_dwordx4 {vr(OUTR,4)}, v27, {sr(S_X,4)}, 0 offen sc1")
        I("s_cmp_eq_u32 s3, 12")
        I(f"s_cbranch_scc1 {lab}")
        for r in range(1, 4):
            I("v_add_u32 v27, 0x10000, v27")
            I(f"buffer_store_dwordx4 {vr(OUTR+4*r,4)}, v27, {sr(S_X,4)}, 0 offen sc1")
        L(lab)
    if OPT["tst"] == 1:
        I("s_cmp_ge_u32 s3, 12")
        I("s_cbranch_scc0 A_TSD")
        table_stores("A_TSD")
    def cell_store(k):
        I(f"s_mov_b64 exec, s[{72+2*k}:{73+2*k}]")
        I(f"global_store_dwordx4 v{6+k}, {vr(C0+4*k,4)}, {WS} sc1")
    if OPT["gl"]:
        I("s_cmp_ge_u32 s3, 12")
        I("s_waitcnt lgkmcnt(1)")
        tagit(C0)
        I("s_cbranch_scc1 A_GL1")
        cell_store(0)
        I("s_mov_b64 exec, -1")
        L("A_GL1")
        I("s_waitcnt lgkmcnt(0)")
        tagit(C0 + 4)
        I("s_cbranch_scc1 A_GL2")
        cell_store(1)
        L("A_GL2")
    else:
        I("s_waitcnt lgkmcnt(1)")
        tagit(C0)
        cell_store(0)
        I("s_mov_b64 exec, s[74:75]")
        I("s_waitcnt lgkmcnt(0)")
        tagit(C0 + 4)
        I(f"global_store_dwordx4 v7, {vr(C0+4,4)}, {WS} sc1")
    I("s_cbranch_vccnz R_PUB2")
    L("A_PUBD")
    I("s_mov_b64 exec, -1")
    if OPT["cprio"]:
        I("s_setprio 0")
    stamp(8)
    I("s_cmp_ge_u32 s3, 12")
    I("s_cbranch_scc0 B_NOAU")
    if OPT["tst"] == 0:
        table_stores("A_TSD")
    I("s_mov_b32 s84, s66")
    I("s_setprio 1")
    FU, FW, UU = 36, 84, 52
    def half_gemm(moff, acc, swap):
        for T in range(4):
            F = (FU if T < 2 else FW) + 8 * (T & 1)
            for s in range(2):
                for h in range(2):
                    I(f"ds_read_b64_tr_b16 {vr(F + 4*s + 2*h, 2)}, v{12+T} offset:{moff + (8*s+4*h)*128}")
        for T in range(4):
            F = (FU if T < 2 else FW) + 8 * (T & 1)
            I(f"s_waitcnt lgkmcnt({4*(3-T)})")
            for s in range(2):
                a, b = vr(XA + 4*s, 4), vr(F + 4*s, 4)
                if swap:
                    a, b = b, a
                c = "0" if s == 0 else vr(acc + 4*T, 4)
                I(f"v_mfma_f32_16x16x32_bf16 {vr(acc+4*T,4)}, {a}, {b}, {c}")
    half_gemm(16384, AP, False)
    def flag_store():
        I(f"s_lshl_b32 s64, s2, {OPT['fs']-2}")
        I("s_add_u32 s64, s64, s84")
        I("s_lshl_b32 s64, s64, 2")
        I(f"s_add_u32 s64, s64, {hex(FLG_OFF)}")
        I("s_sub_u32 s64, s64, s38")
        I("v_mov_b32 v26, s64")
        I("s_mov_b64 exec, 1")
        I(f"global_store_dword v26, v{TG+3}, {WS} sc1")
        I("s_mov_b64 exec, -1")
    if OPT["tst"] == 2:
        I(f"s_waitcnt vmcnt({0 if OPT['gl'] else 2})")
        stamp(29)
        if OPT["gl"]:
            cell_store(0)
            cell_store(1)
            I("s_mov_b64 exec, -1")
        flag_store()
    half_gemm(24576, UU, True)
    I(f"s_mul_i32 s65, s66, {16*EAU_STRIDE}")
    I(f"s_add_u32 s65, s65, {EAU_OFF}")
    I(f"v_mul_u32_u24 v26, {4*EAU_STRIDE}, v125")
    I("v_lshl_add_u32 v26, v124, 4, v26")
    I("v_add_u32 v25, s65, v26")
    I(f"v_mul_u32_u24 v27, {EAU_STRIDE}, v124")
    I("v_lshl_add_u32 v27, v125, 4, v27")
    I("v_add_u32 v27, s65, v27")
    for i in range(16):
        I(f"v_mul_f32 v{AP+i}, s76, v{AP+i}")
    I("s_cmp_eq_u32 s3, 12")
    I("s_cselect_b32 exec_lo, 0x000f000f, -1")
    I("s_cselect_b32 exec_hi, 0x000f000f, -1")
    for T in range(4):
        I(f"ds_write_b128 v27, {vr(UU+4*T,4)} offset:{256 + T*64}")
    I("s_cselect_b32 exec_hi, 0, -1")
    I("s_cselect_b32 exec_lo, 0xffff, -1")
    I(f"v_max3_f32 v26, |v{AP}|, |v{AP+1}|, |v{AP+2}|")
    for i in range(3, 15, 2):
        I(f"v_max3_f32 v26, |v{AP+i}|, |v{AP+i+1}|, v26")
    I(f"v_max_f32 v26, |v{AP+15}|, v26")
    I(f"v_cmp_nge_f32 vcc, {hex(f32(63.0))}, v26")
    EAT = 36
    for r in range(4):
        for t in range(4):
            I(f"v_add_f32 v{EAT+4*r+t}, {hex(f32(-float(KEXP)))}, v{AP+4*t+r}")
        for t in range(4):
            I(f"ds_write_b32 v25, v{AP+4*t+r} offset:{r*EAU_STRIDE + 512 + 4*t}")
            I(f"v_exp_f32 v{EAT+4*r+t}, v{EAT+4*r+t}")
        I("s_nop 0")
        I(f"ds_write_b128 v25, {vr(EAT+4*r,4)} offset:{r*EAU_STRIDE}")
        if r == 0:
            I("s_cbranch_scc1 G_EAD")
    L("G_EAD")
    I("s_mov_b64 exec, -1")
    I("s_cmp_lg_u64 vcc, 0")
    I("s_cselect_b32 s79, 1, 0")
    if OPT["cad"]:
        I("s_branch B_CONST")
    L("B_NOAU")
    if OPT["cad"]:
        I("s_waitcnt vmcnt(0)")
    L("B_CONST")

    RA, CA, KA, RB, CB, KB = 8, 24, 36, 64, 72, 78
    XB, Y, A = 48, 80, 100
    IP = (96, 98, 104, 106)
    UR, XR, VOUT, VU, LP, EP = 108, 112, 116, 117, 118, 120
    WCB, DEN, NUM, VOOB, C4, VRA, VSE, EA, P, Q, SS, LC = 16, 20, 44, 30, 31, 42, 32, 12, 24, 8, 36, 4
    I(f"s_mov_b32 s{S_TAB}, s{P_WS}")
    I(f"s_or_b32 s{S_TAB+1}, s{P_WS+1}, 0x1000000")
    I("v_and_b32 v5, 63, v0")
    I("s_cmp_lt_u32 s2, 212")
    I("s_cselect_b32 s64, 49, 48")
    I("v_cmp_gt_u32 s[82:83], s64, v5")
    I("v_lshlrev_b32 v5, 2, v5")
    I(f"v_and_b32 v{LC}, 15, v0")
    I(f"v_lshlrev_b32 v6, 1, v{LC}")
    for j in range(4):
        I(f"ds_read_u16 v{WCB+j}, v6 offset:{WC_OFF + 32*j}")
    I(f"v_lshlrev_b32 v{LC}, 4, v{LC}")
    I(f"v_mov_b32 v{C4}, 4")
    I(f"v_mov_b32 v{VOOB}, {OOB}")
    for p_ in IP:
        I(f"v_mov_b32 v{p_+1}, v{LC}")
    I(f"v_lshlrev_b32 v{LP}, 1, v6")
    I(f"v_mov_b32 v{LP+1}, v{LC}")
    I("v_lshrrev_b32 v7, 4, v0")
    I(f"v_mul_u32_u24 v{VU}, {EAU_STRIDE}, v7")
    I(f"s_mov_b32 s64, {EAU_OFF + 256}")
    I(f"v_add3_u32 v{VU}, v{VU}, s64, v{LC}")
    I("v_lshlrev_b32 v8, 2, v6")
    I("v_and_b32 v9, 0x70, v0")
    I("v_xor_b32 v9, v8, v9")
    I("v_lshl_add_u32 v9, v7, 7, v9")
    I(f"ds_read_b64 {vr(XR+2,2)}, v9 offset:{X_OFF}")
    I(f"v_lshl_add_u32 v{VOUT}, v7, 15, v8")
    I("s_lshl_b32 s64, s2, 7")
    I(f"v_add_u32 v{VOUT}, s64, v{VOUT}")
    srd(S_X, P_OUT, N * 128)
    for d in range(0, 4, 2):
        I(f"v_mov_b64 {vr(A+d,2)}, 0")
        I(f"v_mov_b64 {vr(DEN+d,2)}, 0")
        I(f"v_mov_b64 {vr(NUM+d,2)}, 0")
    I("s_mov_b64 s[68:69], -1")
    I("s_mov_b64 s[70:71], -1")
    I("s_cmp_lt_u32 s3, 4")
    I("s_cselect_b32 s78, 2, 0")
    I(f"s_mov_b32 s16, {hex(f32(2.0**-KEXP))}")
    I("s_mov_b32 s17, s16")
    I(f"s_mov_b32 s18, {hex(f32(1e-6 * 2.0**KEXP))}")
    I("s_mov_b32 s19, s18")
    I("s_mov_b32 s20, 32")
    I("s_mov_b32 s21, 32")
    I(f"s_mov_b32 s24, {SLOT_STRIDE}")
    I(f"s_mov_b32 s25, {EAU_STRIDE}")
    I(f"s_mov_b32 s85, {LIST_OFF}")
    I("s_mov_b32 s56, 0x11111111")
    I("s_mov_b32 s57, s56")
    I("s_lshl_b64 s[58:59], s[56:57], 1")
    I("s_lshl_b64 s[60:61], s[56:57], 2")
    I("s_lshl_b64 s[62:63], s[56:57], 3")
    I("v_bfe_u32 v124, v0, 4, 2")
    I("v_bfe_u32 v125, v0, 5, 1")
    I("v_bfe_u32 v126, v0, 2, 1")
    I("v_lshl_add_u32 v125, v126, 1, v125")
    I("v_bfe_u32 v126, v0, 3, 2")
    I("v_lshlrev_b32 v126, 2, v126")
    I("v_bfe_u32 v34, v0, 2, 3")
    I("s_lshl_b32 s64, s3, 3")
    I("s_sub_u32 s64, s2, s64")
    I("v_sub_u32 v34, s64, v34")
    I("v_and_b32 v34, 127, v34")
    I("v_and_b32 v35, 32, v0")
    I("v_lshl_add_u32 v34, v35, 2, v34")
    I("v_and_b32 v35, 3, v0")
    if OPT["pf"] or OPT["pf2"] or OPT["pf3"] or OPT["pf4"]:
        I("v_lshlrev_b32 v33, 8, v34")
        I("v_lshl_add_u32 v33, v35, 20, v33")
        I("s_lshr_b32 s64, s2, 4")
        I("s_lshl_b32 s64, s64, 16")
        I("s_bfe_u32 s65, s2, 0x10003")
        I("s_lshl_b32 s65, s65, 7")
        I("s_add_u32 s64, s64, s65")
        I("v_add_u32 v33, s64, v33")
    if OPT["pf5"]:
        I("v_lshlrev_b32 v33, 8, v34")
        I("v_and_b32 v32, 1, v35")
        I("v_lshl_add_u32 v33, v32, 7, v33")
        I("v_lshrrev_b32 v32, 1, v35")
        I("v_lshl_add_u32 v33, v32, 16, v33")
        I("s_sub_u32 s64, s3, 13")
        I("s_lshl_b32 s64, s64, 20")
        I("s_lshr_b32 s65, s2, 7")
        I("s_lshl_b32 s65, s65, 19")
        I("s_add_u32 s64, s64, s65")
        I("v_add_u32 v33, s64, v33")
    I(f"v_lshlrev_b32 v34, {OPT['fs']}, v34")
    I("v_lshl_add_u32 v34, v35, 2, v34")
    I(f"s_sub_u32 s64, {hex(FLG_OFF)}, s38")
    I("v_add_u32 v34, s64, v34")
    I(f"s_mov_b32 s64, {hex(f32(-LOG2E))}")
    I("s_mov_b32 s66, 0x0000ffff")
    I("s_mov_b32 s67, 0xffff0000")
    I("s_waitcnt lgkmcnt(0)")
    for j in range(4):
        I(f"v_lshlrev_b32 v{WCB+j}, 16, v{WCB+j}")
    for j in range(4):
        I(f"v_mul_f32 v{WCB+j}, s64, v{WCB+j}")
    for j in range(4):
        I(f"v_cvt_pk_bf16_f32 v{WCB+j}, 0, v{WCB+j}")
    for j in range(4):
        I(f"v_cndmask_b32 v{WCB+j}, 0, v{WCB+j}, s[66:67]")
    I(f"v_lshlrev_b32 v{XR}, 16, v{XR+2}")
    I(f"v_and_b32 v{XR+1}, 0xffff0000, v{XR+2}")
    I(f"v_lshlrev_b32 v{XR+2}, 16, v{XR+3}")
    I(f"v_and_b32 v{XR+3}, 0xffff0000, v{XR+3}")
    I("s_setprio 0")
    if OPT["fl"]:
        I("s_waitcnt vmcnt(1)")
        I("s_cmp_ge_u32 s3, 12")
        I("s_cbranch_scc1 B_DRD")
    I("s_waitcnt vmcnt(0)")
    if OPT["tst"] != 2:
        I("s_cmp_ge_u32 s3, 12")
        I("s_cbranch_scc0 B_DRD")
    if OPT["tst"] != 2:
        flag_store()
    L("B_DRD")
    if OPT["dbar"]:
        I("s_barrier")
    if OPT["delay"]:
        I(f"s_sleep {OPT['delay']}")
    stamp(9)
    I(f"global_load_dwordx4 {vr(RA,4)}, v2, {WS} sc1")
    I(f"global_load_dwordx4 {vr(RA+4,4)}, v3, {WS} sc1")

    def poll(R_, first, name):
        L(name)
        I("s_waitcnt vmcnt(0)")
        for k in range(2):
            I(f"s_mov_b64 exec, s[{68+2*k}:{69+2*k}]")
            for j in range(4):
                I(f"v_xor_b32 v{R_+4*k+j}, v{TG+j}, v{R_+4*k+j}")
        I("s_mov_b64 exec, -1")
        for k in range(2):
            r = R_ + 4 * k
            I(f"v_or3_b32 v{6+k}, v{r}, v{r+1}, v{r+2}")
            I(f"v_and_b32 v{6+k}, s40, v{6+k}")
            I(f"v_and_or_b32 v{6+k}, v{r+3}, s41, v{6+k}")
            I(f"v_cmp_ne_u32 s[{68+2*k}:{69+2*k}], 0, v{6+k}")
            I(f"v_cmp_gt_u32 s[{64+2*k}:{65+2*k}], s42, v{r+3}")
        if first:
            for k in range(2):
                I(f"s_andn2_b64 s[{64+2*k}:{65+2*k}], s[{64+2*k}:{65+2*k}], s[{68+2*k}:{69+2*k}]")
                I(f"s_lshl_b64 s[{74+2*k}:{75+2*k}], s[{64+2*k}:{65+2*k}], 1")
                I(f"s_or_b64 s[{74+2*k}:{75+2*k}], s[{74+2*k}:{75+2*k}], s[36:37]")
        I("s_and_b64 s[72:73], s[68:69], s[74:75]")
        I("s_and_b64 s[80:81], s[70:71], s[76:77]")
        I("s_or_b64 s[72:73], s[72:73], s[80:81]")
        I(f"s_cbranch_scc1 {name}_RETRY")
    def retry(R_, first, name):
        L(name + "_RETRY")
        if first:
            for k in range(4):
                I(f"s_and_b32 s72, s{68+k}, s{74+k}")
                I("s_lshl_b32 s73, s72, 1")
                I("s_or_b32 s72, s72, s73")
                I("s_lshl_b32 s73, s72, 2")
                I("s_or_b32 s72, s72, s73")
                I("s_lshl_b32 s73, s72, 4")
                I("s_or_b32 s72, s72, s73")
                I(f"s_and_b32 s{68+k}, s{68+k}, s72")
        else:
            I("s_and_b64 s[68:69], s[68:69], s[74:75]")
            I("s_and_b64 s[70:71], s[70:71], s[76:77]")
        I("s_add_u32 s43, s43, 1")
        I(f"s_cmp_gt_u32 s43, {POLL_LIMIT}")
        I("s_cbranch_scc1 R_TIMEOUT")
        if OPT["sleep"]:
            I(f"s_sleep {OPT['sleep']}")
        reload(R_, name)
        I(f"s_branch {name}")
    def reload(R_, name):
        I("s_mov_b64 exec, s[68:69]")
        I(f"s_cbranch_execz {name}_1")
        I(f"global_load_dwordx4 {vr(R_,4)}, v2, {WS} sc1")
        L(name + "_1")
        I("s_mov_b64 exec, s[70:71]")
        I(f"s_cbranch_execz {name}_2")
        I(f"global_load_dwordx4 {vr(R_+4,4)}, v3, {WS} sc1")
        L(name + "_2")
    def ranks(R_, C_, K_, M_):
        for k in range(2):
            for j in range(3):
                I(f"v_lshlrev_b32_sdwa v{C_+3*k+j}, 2, v{R_+4*k+3} {sdwa('BYTE_'+str(j))}")
        for k in range(2):
            I(f"s_mov_b64 exec, s[{74+2*k}:{75+2*k}]")
            for j in range(3):
                m = M_ + 2 * (3 * k + j)
                I(f"v_cmp_gt_u32_sdwa s[{m}:{m+1}], 49, v{R_+4*k+3} src0_sel:DWORD src1_sel:BYTE_{j}")
            for j in range(3):
                m = M_ + 2 * (3 * k + j)
                I(f"s_mov_b64 exec, s[{m}:{m+1}]")
                I(f"ds_add_rtn_u32 v{K_+3*k+j}, v{C_+3*k+j}, v{C4} offset:{C2_OFF}")
        I("s_mov_b64 exec, -1")
    def more_test():
        I("s_and_b64 s[64:65], s[64:65], s[74:75]")
        I("s_and_b64 s[66:67], s[66:67], s[76:77]")
        I("s_or_b64 s[72:73], s[64:65], s[66:67]")
        I("s_or_b32 s72, s72, s73")
        I("s_and_b32 s72, s72, 0x80808080")
    MA, MB = 44, 4

    def pf5(lab):
        I("s_cmp_ge_u32 s3, 13")
        I(f"s_cbranch_scc0 {lab}")
        for k in range(OPT["pf5"]):
            if k:
                I("v_add_u32 v33, 0x20000, v33")
            I(f"global_load_dword v84, v33, {WS} sc1")
        L(lab)
    poll(RA, True, "B_P0")
    stamp(10)
    if OPT["ef"]:
        I(f"global_load_dword v35, v34, {WS} sc1")
    ranks(RA, CA, KA, MA)
    more_test()
    I("s_or_b32 s72, s72, s79")
    I("s_cbranch_scc1 R_MORE")
    L("B_RDONE")
    if OPT["stamp"]:
        I("v_writelane_b32 v127, s43, 19")
    I("s_waitcnt lgkmcnt(0)")
    I("s_barrier")
    stamp(11)
    I(f"ds_read_b32 v6, v5 offset:{C2_OFF}")
    if OPT["drain"]:
        if OPT["pf4"]:
            I(f"s_sub_u32 s71, s3, {OPT['pfw']}")
            I(f"s_cmp_lt_u32 s71, {OPT['pf4']}")
            I("s_cbranch_scc0 B_NOPF4")
            I("s_andn2_b64 exec, exec, s[62:63]")
            I(f"global_load_dword v84, v33, {WS} sc1")
            I("s_mov_b64 exec, -1")
            L("B_NOPF4")
    elif not OPT["ef"]:
        I(f"global_load_dword v35, v34, {WS} sc1")
        if OPT["pf5"] and not OPT["pfa"]:
            pf5("B_NOPF5")
    elif OPT["pf"]:
        I("s_sub_u32 s64, s3, 4")
        I(f"s_cmp_lt_u32 s64, {OPT['pf']}")
        I("s_cbranch_scc0 B_NOPF")
        I("s_waitcnt vmcnt(0)")
        I(f"v_cmp_eq_u32 vcc, v{TG+3}, v35")
        I("s_mov_b64 exec, vcc")
        I("s_cbranch_execz B_NOPF0")
        I(f"global_load_dword v84, v33, {WS} sc1")
        L("B_NOPF0")
        I("s_mov_b64 exec, -1")
        L("B_NOPF")
    I("s_waitcnt lgkmcnt(0)")
    I("v_add_u32 v2, 7, v6")
    I("v_and_b32 v2, -8, v2")
    I("v_max_u32 v2, 8, v2")
    I("v_cndmask_b32 v2, 0, v2, s[82:83]")
    if OPT["pf5"] and OPT["pfa"]:
        pf5("B_NOPF5")
    I("v_mov_b32 v3, v2")
    for d in ("row_shr:1 row_mask:0xf", "row_shr:2 row_mask:0xf", "row_shr:4 row_mask:0xf",
              "row_shr:8 row_mask:0xf", "row_bcast:15 row_mask:0xa", "row_bcast:31 row_mask:0xc"):
        I("s_nop 1")
        I(f"v_add_u32_dpp v3, v3, v3 {d} bank_mask:0xf")
    I("v_sub_u32 v7, v3, v2")
    I(f"ds_write_b32 v5, v7 offset:{BASE}")
    I("v_readlane_b32 s64, v3, 63")
    def lookup(C_):
        for i in range(6):
            I(f"ds_read_b32 v{C_+i}, v{C_+i} offset:{BASE}")
    def scatter(R_, C_, K_, M_):
        for i in range(6):
            if i % 3 == 0:
                I(f"s_waitcnt lgkmcnt({3-i})")
            I(f"v_add3_u32 v{C_+i}, v{C_+i}, v{K_+i}, s85")
        for i in range(6):
            I(f"s_mov_b64 exec, s[{M_+2*i}:{M_+2*i+1}]")
            I(f"ds_write_b32 v{C_+i}, v{R_+4*(i//3)+i%3}")
        I("s_mov_b64 exec, -1")
    lookup(CA)
    I("s_add_u32 s65, s64, 31")
    I("s_lshr_b32 s66, s65, 9")
    I("s_bfe_u32 s67, s65, 0x40005")
    I("s_mul_i32 s68, s66, s3")
    I("s_min_u32 s69, s67, s3")
    I("s_add_u32 s68, s68, s69")
    I("s_lshl_b32 s68, s68, 5")
    I("s_cmp_lt_u32 s3, s67")
    I("s_addc_u32 s72, s66, 0")
    I("s_lshl_b32 s69, s72, 3")
    I("s_add_u32 s70, s68, s85")
    if OPT["pf3"]:
        I(f"s_sub_u32 s71, s3, {OPT['pfw']}")
        I(f"s_cmp_lt_u32 s71, {OPT['pf3']}")
        I("s_cbranch_scc0 B_NOPF3")
        I("s_waitcnt vmcnt(0)")
        I(f"v_cmp_eq_u32 vcc, v{TG+3}, v35")
        I("s_andn2_b64 exec, vcc, s[62:63]")
        I("s_cbranch_execz B_NOPF30")
        I(f"global_load_dword v84, v33, {WS} sc1")
        L("B_NOPF30")
        I("s_mov_b64 exec, -1")
        L("B_NOPF3")
    scatter(RA, CA, KA, MA)
    I(f"v_mul_u32_u24 v{VRA}, s69, v124")
    I(f"v_mul_u32_u24 v{VRA+1}, s69, v125")
    I(f"v_add_u32 v{VRA}, s70, v{VRA}")
    I(f"v_add3_u32 v{VRA+1}, v{VRA+1}, s70, v126")
    if OPT["pf"] and OPT["ef"]:
        I("s_sub_u32 s71, s3, 4")
        I(f"s_cmp_lt_u32 s71, {OPT['pf']}")
        I("s_cbranch_scc1 B_FLW")
    if OPT["pf3"]:
        I(f"s_cmp_lt_u32 s71, {OPT['pf3']}")
        I("s_cbranch_scc1 B_FLW")
    if not OPT["drain"]:
        if OPT["pf5"]:
            I(f"s_waitcnt vmcnt({OPT['pf5']})")
            I("s_cmp_ge_u32 s3, 13")
            I("s_cbranch_scc1 B_FLW")
        I("s_waitcnt vmcnt(0)")
        L("B_FLW")
        I(f"v_cmp_ne_u32 vcc, v{TG+3}, v35")
    I("s_cmp_lg_u32 s78, 0")
    I("s_cbranch_scc1 R_EXTRA")
    L("B_XDONE")
    if not OPT["drain"]:
        I("s_cbranch_vccnz R_FLAGS")
    L("B_FDONE")
    if OPT["pf2"]:
        I(f"s_cmp_lt_u32 s3, {OPT['pf2']}")
        I("s_cbranch_scc0 B_NOPF2")
        I(f"global_load_dword v84, v33, {WS} sc1")
        L("B_NOPF2")
    I("s_waitcnt lgkmcnt(0)")
    I("s_barrier")
    stamp(12)
    def i_reads(batch, lo=0, hi=4):
        for i in range(lo, hi):
            I(f"ds_read_u16 v{IP[i]}, v{VRA} offset:{16*batch + 4*i}")
    def a_reads(batch):
        for d in range(4):
            I(f"s_mov_b64 exec, s[{56+2*d}:{57+2*d}]")
            I(f"ds_read_b32 v{A+d}, v{VRA+1} offset:{16*batch}")
        I("s_mov_b64 exec, -1")
    def gathers(x, lo, hi):
        for i in range(lo, hi):
            I(f"buffer_load_dwordx4 {vr(x+4*i,4)}, {vr(IP[i],2)}, {sr(S_TAB,4)}, 0 idxen offen {OPT['gsc'] if OPT['gsc'] != 'none' else ''}")
    i_reads(0)
    I("v_and_b32 v9, 0x3f0, v0")
    I(f"ds_read_b128 {vr(VSE,4)}, v9 offset:{STR}")
    I(f"ds_read_b32 v8, v1 offset:{FLAG}")
    if OPT["prio"]:
        I("s_setprio 3")
    I("s_waitcnt lgkmcnt(2)")
    gathers(XB, 0, 4)
    stamp(13)
    i_reads(1)
    I(f"ds_read_b128 {vr(EP,4)}, v9 offset:{EPI}")
    I(f"ds_read_b128 {vr(UR,4)}, v{VU}")
    I("s_waitcnt lgkmcnt(6)")
    I("v_readfirstlane_b32 s80, v8")
    I(f"v_lshl_add_u64 {vr(VSE,2)}, {vr(VSE,2)}, 0, {vr(LP,2)}")
    I(f"ds_read_b128 {vr(EA,4)}, v{VSE+1}")
    for q in range(4):
        I(f"v_readlane_b32 s{44+q}, v{VSE+2}, {16*q}")
    I(f"s_cmp_gt_u32 s64, {LIST_MAX}")
    I("s_cselect_b32 s81, 1, 0")
    I("s_or_b32 s80, s80, s81")
    if OPT["force_slow"]:
        I("s_branch K_SLOW")
    I("s_cbranch_scc1 K_SLOW")
    a_reads(0)
    for q in range(4):
        if OPT["cut"] & 8:
            I(f"s_mov_b32 s{44+q}, 0")
        I(f"s_bitset1_b32 s{44+q}, s72")
    I("s_or_b32 s82, s44, s45")
    I("s_or_b32 s83, s46, s47")
    I("s_or_b32 s82, s82, s83")
    if OPT["fp"]:
        th = [int(x) for x in str(OPT["fp"]).split("_")]
        I(f"s_lshl_b32 s81, 1, s72")
        for t_ in th:
            I(f"s_lshr_b32 s80, s81, {t_}")
            I("s_or_b32 s82, s82, s80")
    I("s_bfm_b32 s83, s72, 0")
    I("s_lshr_b32 s83, s83, 4")
    I("s_mov_b32 s73, 0")
    I("s_waitcnt lgkmcnt(5)")
    gathers(XB + 16, 0, 4)
    i_reads(2)
    for k in range(3):
        I(f"v_add_u32 v{EP+k}, v{EP+k}, v{LC}")
    I(f"v_cmp_lt_i32 s[48:49], 2, v{EP+3}")
    I("s_cmp_eq_u32 s72, 0")
    I("s_cbranch_scc1 K_JOIN")
    def mfma(x):
        I(f"v_mfma_f32_32x32x16_bf16 {vr(Y,16)}, {vr(A,4)}, {vr(WCB,4)}, {vr(x,16)}")
    stamp(14)
    I("s_waitcnt vmcnt(4) lgkmcnt(4)")
    mfma(XB)
    stamp(15)
    a_reads(1)
    nth = len(str(OPT["prio"]).split("_")) if OPT["prio"] else 0
    if OPT["prio"]:
        I(f"s_setprio {nth}")
    I("s_nop 2")
    L("K_LOOP")
    if OPT["prio"] and not OPT["fp"]:
        I("s_sub_u32 s74, s72, s73")
        for k, t_ in enumerate(int(x) for x in str(OPT["prio"]).split("_")):
            I(f"s_cmp_gt_u32 s74, {t_}")
            I("s_cbranch_scc1 K_STEP0")
            I(f"s_setprio {nth-1-k}")
    for u in range(4):
        bb, hh = u >> 1, u & 1
        x = XB + 16 * bb + 8 * hh
        t = Y + 8 * hh
        L(f"K_STEP{u}")
        for i in range(8):
            I(f"v_exp_f32 v{t+i}, v{t+i}")
        for i in range(4):
            I(f"v_lshlrev_b64 {vr(x+2*i,2)}, 16, {vr(x+2*i,2)}")
        for i in range(4):
            I(f"v_pk_fma_f32 {vr(t+2*i,2)}, {vr(t+2*i,2)}, {vr(EA+2*(i&1),2)}, s[16:17] clamp")
        I(f"v_pk_mul_f32 {vr(P,2)}, {vr(t,2)}, {vr(t+4,2)}")
        I(f"v_pk_mul_f32 {vr(P+2,2)}, {vr(t+2,2)}, {vr(t+6,2)}")
        I(f"v_pk_mul_f32 {vr(Q,2)}, {vr(x,2)}, {vr(t+4,2)}")
        I(f"v_pk_mul_f32 {vr(Q+2,2)}, {vr(x+2,2)}, {vr(t+6,2)}")
        I(f"v_pk_add_f32 {vr(SS,2)}, {vr(t,2)}, {vr(t+4,2)}")
        I(f"v_pk_add_f32 {vr(SS+2,2)}, {vr(t+2,2)}, {vr(t+6,2)}")
        I(f"v_pk_fma_f32 {vr(Q,2)}, {vr(x+4,2)}, {vr(t,2)}, {vr(Q,2)}")
        I(f"v_pk_fma_f32 {vr(Q+2,2)}, {vr(x+6,2)}, {vr(t+2,2)}, {vr(Q+2,2)}")
        if OPT["sup"]:
            I(f"s_bitcmp1_b32 s83, {u}")
            I(f"s_cselect_b32 s{S_TAB+2}, s{S_TAB+2}, 0")
        if hh == 0:
            I("s_waitcnt lgkmcnt(0)")
            if not OPT["cut"] & 4:
                gathers(XB + 16 * bb, 0, 2)
            for i in range(4):
                I(f"v_rcp_f32 v{P+i}, v{P+i}")
        else:
            I("s_waitcnt vmcnt(2)")
            if not OPT["cut"] & 1:
                mfma(XB + 16 * (1 - bb))
            for i in range(4):
                I(f"v_rcp_f32 v{P+i}, v{P+i}")
            if not OPT["cut"] & 4:
                gathers(XB + 16 * bb, 2, 4)
        I(f"v_pk_fma_f32 {vr(NUM,2)}, {vr(Q,2)}, {vr(P,2)}, {vr(NUM,2)}")
        I(f"v_pk_fma_f32 {vr(DEN,2)}, {vr(SS,2)}, {vr(P,2)}, {vr(DEN,2)}")
        I(f"v_pk_fma_f32 {vr(NUM+2,2)}, {vr(Q+2,2)}, {vr(P+2,2)}, {vr(NUM+2,2)}")
        I(f"v_pk_fma_f32 {vr(DEN+2,2)}, {vr(SS+2,2)}, {vr(P+2,2)}, {vr(DEN+2,2)}")
        if hh == 1:
            if not OPT["cut"] & 4:
                i_reads(bb + 3)
            if not OPT["cut"] & 2:
                a_reads(bb + 2)
        I(f"s_bitcmp1_b32 s82, {u+1}")
        I(f"s_cbranch_scc1 K_FLUSH{u}")
        L(f"K_BACK{u}")
    I(f"v_lshl_add_u64 {vr(VRA,2)}, {vr(VRA,2)}, 0, s[20:21]")
    I("s_lshr_b32 s82, s82, 4")
    I("s_lshr_b32 s83, s83, 4")
    I("s_add_u32 s73, s73, 4")
    I("s_branch K_LOOP")
    for u in range(4):
        L(f"K_FLUSH{u}")
        I(f"s_add_u32 s74, s73, {u+1}")
        for h in range(2):
            I(f"s_bitcmp1_b32 s{44+2*h}, s74")
            I("s_cselect_b32 s75, 0xffff, 0")
            I(f"s_bitcmp1_b32 s{45+2*h}, s74")
            I("s_cselect_b32 s80, 0xffff0000, 0")
            I(f"s_or_b32 {'exec_hi' if h else 'exec_lo'}, s75, s80")
        if OPT["fp"]:
            I("s_sub_u32 s75, s72, s74")
            for k, t_ in enumerate(th):
                I(f"s_cmp_gt_u32 s75, {t_}")
                I(f"s_cbranch_scc1 K_FP{u}")
                I(f"s_setprio {len(th)-1-k}")
            L(f"K_FP{u}")
            I(f"s_cbranch_execz K_FQ{u}")
        I(f"ds_write2_b32 v{VSE}, v{DEN}, v{DEN+1} offset0:0 offset1:16")
        I(f"ds_write2_b32 v{VSE}, v{DEN+2}, v{DEN+3} offset0:32 offset1:48")
        I(f"ds_write2_b32 v{VSE}, v{NUM}, v{NUM+1} offset0:64 offset1:80")
        I(f"ds_write2_b32 v{VSE}, v{NUM+2}, v{NUM+3} offset0:96 offset1:112")
        I("s_cmp_eq_u32 s74, s72")
        I("s_cbranch_scc1 K_JOIN")
        I(f"v_lshl_add_u64 {vr(VSE,2)}, {vr(VSE,2)}, 0, s[24:25]")
        I(f"ds_read_b128 {vr(DEN,4)}, v{VOOB}")
        I(f"ds_read_b128 {vr(NUM,4)}, v{VOOB}")
        I(f"ds_read_b128 {vr(EA,4)}, v{VSE+1}")
        I("s_waitcnt lgkmcnt(0)")
        L(f"K_FQ{u}")
        I("s_mov_b64 exec, -1")
        I(f"s_branch K_BACK{u}")

    L("K_JOIN")
    I("s_mov_b64 exec, -1")
    stamp(16)
    I("s_cmp_lt_u32 s3, 13")
    I("s_waitcnt lgkmcnt(0)")
    I("s_barrier")
    stamp(17)
    I("s_cbranch_scc0 K_FIN")
    stamp(25)
    for k in range(3):
        I(f"ds_read_b128 {vr(8+8*k,4)}, v{EP+k}")
    for k in range(3):
        I(f"ds_read_b128 {vr(12+8*k,4)}, v{EP+k} offset:256")
    I("s_cmp_lg_u64 s[48:49], 0")
    I("s_waitcnt lgkmcnt(3)")
    for k in (1, 2):
        for i in range(2):
            I(f"v_pk_add_f32 {vr(8+2*i,2)}, {vr(8+2*i,2)}, {vr(8+8*k+2*i,2)}")
    I("s_waitcnt lgkmcnt(0)")
    for k in (1, 2):
        for i in range(2, 4):
            I(f"v_pk_add_f32 {vr(8+2*i,2)}, {vr(8+2*i,2)}, {vr(8+8*k+2*i,2)}")
    I("s_cbranch_scc1 R_LONG")
    L("K_MATH")
    stamp(26)
    I("v_pk_add_f32 v[8:9], v[8:9], s[18:19]")
    I("v_pk_add_f32 v[10:11], v[10:11], s[18:19]")
    for c in range(4):
        I(f"v_rcp_f32 v{8+c}, v{8+c}")
    I("s_nop 0")
    I(f"v_pk_fma_f32 v[8:9], v[12:13], v[8:9], {vr(UR,2)}")
    I(f"v_pk_fma_f32 v[10:11], v[14:15], v[10:11], {vr(UR+2,2)}")
    for c in range(4):
        I(f"v_max_f32 v{8+c}, 0, v{8+c}")
    I(f"v_pk_add_f32 v[8:9], v[8:9], {vr(XR,2)}")
    I(f"v_pk_add_f32 v[10:11], v[10:11], {vr(XR+2,2)}")
    I("v_cvt_pk_bf16_f32 v12, v8, v9")
    I("v_cvt_pk_bf16_f32 v13, v10, v11")
    stamp(27)
    I(f"buffer_store_dwordx2 v[12:13], v{VOUT}, {sr(S_X,4)}, 0 offen {OPT['osc'].replace('none','').replace('_',' ')}")
    L("K_FIN")
    if OPT["probe"]:
        I("s_or_b32 s64, s2, s3")
        I("s_cmp_eq_u32 s64, 0")
        I("s_cbranch_scc0 PRB_D")
        I("s_load_dwordx2 s[66:67], s[0:1], 88")
        I("s_memrealtime s[98:99]")
        I("s_waitcnt lgkmcnt(0)")
        I(f"v_mov_b32 v8, {hex(CTL_OFF + 0x40000)}")
        I("global_load_dword v9, v8, s[66:67] sc1")
        I("v_mov_b32 v10, 0x13572468")
        I("s_waitcnt vmcnt(0)")
        I("v_readfirstlane_b32 s64, v9")
        I("global_store_dword v8, v10, s[66:67] sc1")
        I("s_cmp_eq_u32 s64, 0x13572468")
        I(f"s_cbranch_scc{OPT['probe']-1} PRB_D")
        L("PRB_W")
        I("s_memrealtime s[90:91]")
        I("s_waitcnt lgkmcnt(0)")
        I("s_sub_u32 s90, s90, s98")
        I("s_cmp_lt_u32 s90, 5000")
        I("s_cbranch_scc1 PRB_W")
        L("PRB_D")
    stamp(18)
    stamp_out()
    L("K_END")
    I("s_endpgm")

    L("R_PUB2")
    I("s_mov_b64 exec, vcc")
    I(f"ds_read_b128 {vr(C0+8,4)}, v4 offset:{IMG+128}")
    I(f"ds_read_b128 {vr(C0+12,4)}, v4 offset:{IMG+B2+128}")
    I("v_and_b32 v10, 7, v0")
    I(f"v_mul_u32_u24 v10, {3*INC}, v10")
    I(f"v_add_u32 v10, {24*INC}, v10")
    I("s_waitcnt lgkmcnt(0)")
    for b in range(2):
        w3 = C0 + 11 + 4 * b
        I(f"v_and_b32 v{w3}, 0x3f3f3f, v{w3}")
        for j in range(3):
            I(f"v_add_u32 v11, {j*INC}, v10")
            I(f"v_cmp_le_u32 s[70:71], v{8+b}, v11")
            I(f"v_or_b32 v11, {0x3f << (8*j)}, v{w3}")
            I("s_nop 0")
            I(f"v_cndmask_b32 v{w3}, v{w3}, v11, s[70:71]")
    I(f"v_add_u32 v8, {hex(LINE_STRIDE)}, v6")
    I(f"v_add_u32 v9, {hex(LINE_STRIDE)}, v7")
    tagit(C0 + 8)
    tagit(C0 + 12)
    I(f"global_store_dwordx4 v8, {vr(C0+8,4)}, {WS} sc1")
    I(f"global_store_dwordx4 v9, {vr(C0+12,4)}, {WS} sc1")
    I("s_branch A_PUBD")
    retry(RA, True, "B_P0")
    L("R_MORE")
    I("s_cmp_lg_u32 s79, 0")
    I("s_cbranch_scc1 R_REQ")
    if OPT["nol2"]:
        I("s_branch B_RDONE")
    for k in range(4):
        I(f"s_lshr_b32 s{74+k}, s{64+k}, 7")
        I(f"s_and_b32 s{74+k}, s{74+k}, 0x01010101")
        I(f"s_mul_i32 s{74+k}, s{74+k}, 0xff")
    I("s_mov_b64 s[68:69], s[74:75]")
    I("s_mov_b64 s[70:71], s[76:77]")
    I(f"v_add_u32 v2, {hex(LINE_STRIDE)}, v2")
    I(f"v_add_u32 v3, {hex(LINE_STRIDE)}, v3")
    reload(RB, "B_N1")
    poll(RB, False, "B_P1")
    ranks(RB, CB, KB, MB)
    I("s_or_b32 s78, s78, 1")
    more_test()
    I("s_cbranch_scc0 B_RDONE")
    I("s_mov_b32 s79, 1")
    I("s_branch R_REQ")
    retry(RB, False, "B_P1")
    L("R_TIMEOUT")
    I("s_mov_b32 s79, 3")
    for k in range(6):
        I(f"s_mov_b64 s[{MA+2*k}:{MA+2*k+1}], 0")
    I(f"v_mov_b32 v35, v{TG+3}")
    I("v_mov_b32 v33, 0x388000")
    L("R_REQ")
    I("v_mov_b32 v6, s79")
    I(f"ds_or_b32 v1, v6 offset:{FLAG}")
    I("s_branch B_RDONE")
    def bump():
        I(f"s_sub_u32 s71, {hex(CTL_OFF)}, s38")
        I("v_mov_b32 v48, s71")
        I("v_mov_b32 v50, 0x1000000")
        I("v_mov_b32 v51, 0")
        I("s_mov_b64 exec, 1")
        I(f"global_atomic_add_x2 v48, v[50:51], {WS} offset:8 sc1")
        I("s_mov_b64 exec, -1")
    L("R_EXTRA")
    I("s_bitcmp1_b32 s78, 0")
    I("s_cbranch_scc0 R_X2")
    I("s_waitcnt lgkmcnt(0)")
    lookup(CB)
    scatter(RB, CB, KB, MB)
    L("R_X2")
    I("s_bitcmp1_b32 s78, 1")
    I("s_cbranch_scc0 B_XDONE")
    I("s_cmp_eq_u32 s3, 1")
    I("s_cbranch_scc1 R_PAD")
    I("s_add_u32 s71, s66, 1")
    I("v_cvt_f32_u32 v48, s71")
    I("v_cvt_f32_u32 v49, s66")
    I("s_lshl_b32 s73, s67, 2")
    I("s_mul_i32 s71, s71, s73")
    I("v_rcp_f32 v48, v48")
    I("v_rcp_f32 v49, v49")
    I("v_cvt_f32_u32 v50, s71")
    I("v_cvt_f32_u32 v51, s73")
    I("v_fma_f32 v50, -v50, v49, v51")
    I(f"v_mov_b32 v51, {hex(f32(0.125))}")
    def stream_of(dst, src, half):
        I(f"v_cvt_f32_u32 v{dst}, v{src}")
        I(f"v_fma_f32 v{dst}, v{dst}, v51, {half}")
        I(f"v_mul_f32 v52, v{dst}, v48")
        I(f"v_fma_f32 v{dst}, v{dst}, v49, v50")
        I(f"v_max_f32 v{dst}, v{dst}, v52")
        I(f"v_cvt_u32_f32 v{dst}, v{dst}")
    stream_of(53, 3, "-0.5")
    I("s_cmp_eq_u32 s3, 2")
    I("s_cbranch_scc1 R_EPI")
    I("s_cmp_eq_u32 s3, 3")
    I("s_cbranch_scc1 R_FIRST")
    I("v_min_u32 v55, s73, v53")
    I("v_mad_u32_u24 v55, v53, s66, v55")
    I("v_lshrrev_b32 v56, 3, v3")
    I("v_sub_u32 v55, v56, v55")
    I("v_lshlrev_b32 v55, v55, 1")
    I("v_lshlrev_b32 v56, 4, v53")
    I("s_mov_b64 exec, s[82:83]")
    I(f"ds_or_b32 v56, v55 offset:{STR + 8}")
    I("s_mov_b64 exec, -1")
    I("s_branch B_XDONE")
    L("R_FIRST")
    I("v_mov_b32 v54, -1")
    I("v_cndmask_b32 v53, 63, v53, s[82:83]")
    I(f"v_mul_u32_u24 v59, {EAU_STRIDE//4}, v5")
    I(f"v_add_u32 v59, {EAU_OFF}, v59")
    I("v_mov_b32_dpp v54, v53 wave_shr:1 row_mask:0xf bank_mask:0xf")
    I("v_lshl_add_u32 v58, v54, 2, v5")
    I(f"v_mul_i32_i24 v58, {SLOT_STRIDE//4}, v58")
    I(f"v_add_u32 v58, {SLOT_OFF}, v58")
    I("v_lshlrev_b32 v54, 4, v54")
    I("v_lshlrev_b32 v53, 4, v53")
    L("R_FIRST1")
    I("v_cmp_lt_i32 s[74:75], v54, v53")
    I("s_mov_b64 exec, s[74:75]")
    I("s_cbranch_execz R_FIRST2")
    I("v_add_u32 v54, 16, v54")
    I(f"v_add_u32 v58, {SLOT_STRIDE}, v58")
    I(f"ds_write_b64 v54, v[58:59] offset:{STR}")
    I("s_branch R_FIRST1")
    L("R_FIRST2")
    I("s_mov_b64 exec, -1")
    I("s_branch B_XDONE")
    L("R_EPI")
    stream_of(54, 7, "0.5")
    I("v_sub_u32 v59, v53, v54")
    I("v_lshl_add_u32 v56, v54, 2, v5")
    I(f"v_mul_u32_u24 v56, {SLOT_STRIDE//4}, v56")
    I(f"v_add_u32 v56, {SLOT_OFF}, v56")
    I("v_cmp_lt_i32 s[74:75], 0, v59")
    I("v_cmp_lt_i32 s[76:77], 1, v59")
    I(f"v_add_u32 v57, {SLOT_STRIDE}, v56")
    I(f"v_add_u32 v58, {2*SLOT_STRIDE}, v56")
    I(f"v_cndmask_b32 v57, v{VOOB}, v57, s[74:75]")
    I(f"v_cndmask_b32 v58, v{VOOB}, v58, s[76:77]")
    I("v_lshlrev_b32 v55, 2, v5")
    I(f"ds_write_b128 v55, v[56:59] offset:{EPI}")
    I("s_branch B_XDONE")
    L("R_PAD")
    I(f"v_mov_b32 v52, {N}")
    I(f"v_add_u32 v53, {LIST_OFF - 8}, v3")
    I("v_cmp_lt_u32 s[74:75], v6, v2")
    I("s_mov_b64 exec, s[74:75]")
    I("ds_write_b32 v53, v52 offset:4")
    I("v_cmp_eq_u32 s[74:75], 0, v6")
    I("s_mov_b64 exec, s[74:75]")
    I("ds_write_b32 v53, v52")
    I("s_mov_b64 exec, 0x3f")
    I("s_add_u32 s71, s64, s85")
    I("v_add_u32 v53, s71, v5")
    I("ds_write_b32 v53, v52")
    I("s_mov_b64 exec, -1")
    I("s_cmp_eq_u32 s2, 0")
    I("s_cbranch_scc0 B_XDONE")
    bump()
    I("s_branch B_XDONE")
    L("R_FLAGS")
    I("s_add_u32 s43, s43, 1")
    I(f"s_cmp_gt_u32 s43, {POLL_LIMIT}")
    I("s_cbranch_scc1 R_FLAGT")
    I("s_sleep 2")
    I("s_mov_b64 exec, vcc")
    I(f"global_load_dword v35, v34, {WS} sc1")
    I("s_waitcnt vmcnt(0)")
    I(f"v_cmp_ne_u32 vcc, v{TG+3}, v35")
    I("s_mov_b64 exec, -1")
    I("s_branch B_XDONE")
    L("R_FLAGT")
    I("v_mov_b32 v52, 3")
    I(f"ds_or_b32 v1, v52 offset:{FLAG}")
    I("s_branch B_FDONE")
    L("R_LONG")
    I("s_mov_b32 s64, 2")
    I("s_mov_b64 vcc, s[48:49]")
    L("R_LONG1")
    I("s_mov_b64 exec, vcc")
    I(f"v_add_u32 v{EP+2}, {SLOT_STRIDE}, v{EP+2}")
    I(f"ds_read_b128 v[16:19], v{EP+2}")
    I(f"ds_read_b128 v[20:23], v{EP+2} offset:256")
    I("s_add_u32 s64, s64, 1")
    I("s_waitcnt lgkmcnt(0)")
    for i in range(4):
        I(f"v_pk_add_f32 {vr(8+2*i,2)}, {vr(8+2*i,2)}, {vr(16+2*i,2)}")
    I(f"v_cmp_lt_i32 vcc, s64, v{EP+3}")
    I("s_cbranch_vccnz R_LONG1")
    I("s_mov_b64 exec, -1")
    I("s_branch K_MATH")

    L("K_SLOW")
    I("s_load_dwordx8 s[4:11], s[0:1], 0")
    I("s_load_dwordx2 s[12:13], s[0:1], 40")
    I("s_load_dwordx2 s[14:15], s[0:1], 64")
    I("s_setprio 0")
    I("s_waitcnt vmcnt(0) lgkmcnt(0)")
    I("s_cmp_eq_u32 s3, 15")
    I("s_cselect_b32 s71, s80, 0")
    I("s_and_b32 s71, s71, 2")
    I("s_cbranch_scc0 K_SL0")
    bump()
    I("s_waitcnt vmcnt(0)")
    L("K_SL0")
    WB2, WV2 = 40, 72
    I("v_lshrrev_b32 v6, 1, v5")
    I("v_add_u32 v7, 4096, v6")
    for (w, p_) in ((WB2, 12), (WV2, 14)):
        for hf in range(2):
            for k in range(16):
                I(f"global_load_ushort v{w + 16*hf + k}, v{6 + hf}, s[{p_}:{p_+1}] offset:{2*k*128}")
                I(f"global_load_ushort v{8 + k}, v{6 + hf}, s[{p_}:{p_+1}] offset:{(2*k+1)*128}")
            I("s_waitcnt vmcnt(0)")
            for k in range(16):
                I(f"v_lshl_or_b32 v{w + 16*hf + k}, v{8 + k}, 16, v{w + 16*hf + k}")
    for i in range(4):
        I(f"v_mov_b32 v{28+i}, 0")
    I("v_lshlrev_b32 v8, 4, v0")
    for k in range(4):
        I(f"ds_write_b128 v8, v[28:31] offset:{SLOT_OFF + k*16384}")
    I(f"ds_read_u16 v18, v6 offset:{WC_OFF}")
    I(f"s_mov_b32 s18, {hex(f32(1e-6))}")
    I("s_mov_b32 s19, s18")
    I(f"s_mov_b32 s16, {hex(f32(-LOG2E))}")
    I(f"v_lshl_add_u32 v17, v124, 2, v{LC}")
    I("v_lshlrev_b32 v10, 1, v5")
    I("s_waitcnt lgkmcnt(0)")
    I("v_lshlrev_b32 v18, 16, v18")
    I("s_barrier")
    I("v_lshlrev_b32 v8, 2, v0")
    I("v_lshlrev_b32 v9, 1, v0")
    I("s_lshl_b32 s70, s3, 6")
    L("K_SLOOP")
    I(f"global_load_dword v11, v8, {sr(P_DST,2)}")
    I(f"global_load_dword v12, v8, {sr(P_SRC,2)}")
    I(f"global_load_ushort v13, v9, {sr(P_E,2)}")
    I("s_waitcnt vmcnt(0)")
    I("v_and_b32 v14, 0xff, v11")
    I("v_cmp_eq_u32 s[74:75], s2, v14")
    L("K_SIN")
    I("s_cmp_eq_u64 s[74:75], 0")
    I("s_cbranch_scc1 K_SNEXT")
    I("s_ff1_i32_b64 s73, s[74:75]")
    I("s_bitset0_b64 s[74:75], s73")
    I("v_readlane_b32 s79, v11, s73")
    I("v_readlane_b32 s80, v12, s73")
    I("v_readlane_b32 s81, v13, s73")
    I("s_lshr_b32 s79, s79, 8")
    I(f"s_mul_i32 s76, s79, {EAU_STRIDE}")
    I(f"s_add_u32 s76, s76, {EAU_OFF + 512}")
    I(f"s_mul_i32 s79, s79, {ACC_STRIDE}")
    I("s_lshl_b32 s80, s80, 7")
    I("s_add_u32 s78, s80, 64")
    I(f"s_load_dwordx16 s[36:51], {sr(P_X,2)}, s80")
    I(f"s_load_dwordx16 s[52:67], {sr(P_X,2)}, s78")
    I("s_lshl_b32 s81, s81, 16")
    I("v_add_u32 v15, s76, v17")
    I("v_add_u32 v16, s79, v10")
    I("ds_read_b32 v22, v15")
    I("v_mul_f32 v20, s81, v18")
    I("v_mov_b32 v21, 0")
    I("s_waitcnt lgkmcnt(0)")
    for k in range(32):
        I(f"v_dot2_f32_bf16 v20, s{36+k}, v{WB2+k}, v20")
        I(f"v_dot2_f32_bf16 v21, s{36+k}, v{WV2+k}, v21")
    I("s_nop 2")
    I("v_fma_f32 v20, v20, s16, v22")
    I("v_exp_f32 v20, v20")
    I("s_nop 0")
    I("v_add_f32 v20, 1.0, v20")
    I("v_rcp_f32 v20, v20")
    I("s_nop 0")
    I("v_mul_f32 v21, v21, v20")
    I("v_cvt_f64_f32 v[24:25], v20")
    I("v_cvt_f64_f32 v[26:27], v21")
    I(f"ds_add_f64 v16, v[24:25] offset:{SLOT_OFF}")
    I(f"ds_add_f64 v16, v[26:27] offset:{SLOT_OFF + 512}")
    I("s_branch K_SIN")
    L("K_SNEXT")
    I("s_add_u32 s70, s70, 1024")
    I("v_add_u32 v8, 4096, v8")
    I("v_add_u32 v9, 2048, v9")
    I(f"s_cmp_lt_u32 s70, {E}")
    I("s_cbranch_scc1 K_SLOOP")
    I("v_lshrrev_b32 v6, 4, v0")
    I(f"v_mul_u32_u24 v6, {ACC_STRIDE}, v6")
    I(f"v_lshl_add_u32 v6, v{LC}, 1, v6")
    I("s_waitcnt lgkmcnt(0)")
    I("s_barrier")
    I("s_cmp_lt_u32 s3, 13")
    I("s_cbranch_scc0 K_FIN")
    I(f"ds_read_b128 v[16:19], v6 offset:{SLOT_OFF}")
    I(f"ds_read_b128 v[20:23], v6 offset:{SLOT_OFF+16}")
    I(f"ds_read_b128 v[24:27], v6 offset:{SLOT_OFF+512}")
    I(f"ds_read_b128 v[28:31], v6 offset:{SLOT_OFF+528}")
    I("s_waitcnt lgkmcnt(0)")
    for c in range(8):
        I(f"v_cvt_f32_f64 v{8+c}, {vr(16+2*c,2)}")
    I("s_branch K_MATH")
    L("SLOW_END")

hdr = open("standalone__edge_featured_mpnn_gatedgcn__graph.s.ref").read().split("\n")
for line in hdr:
    if line.startswith("; Override"):
        break
    o(line)
o(f"; @launch kernel={KNAME} grid=(256,1,1) block=(1024,1,1) lds={LDS_TOTAL}")
o('.amdgcn_target "amdgcn-amd-amdhsa--gfx950"')
o(".text")
gen()
o('.section .rodata,"a"')
o(".p2align 6")
o(f".amdhsa_kernel {KNAME}")
o("  .amdhsa_next_free_vgpr 128")
o("  .amdhsa_next_free_sgpr 102")
o("  .amdhsa_accum_offset 128")
o("  .amdhsa_group_segment_fixed_size 0")
o("  .amdhsa_kernarg_size 96")
o("  .amdhsa_user_sgpr_count 2")
o("  .amdhsa_user_sgpr_kernarg_segment_ptr 1")
o("  .amdhsa_system_sgpr_workgroup_id_x 1")
o(".end_amdhsa_kernel")
open(sys.argv[1], "w").write("\n".join(out) + "\n")
```

```python
import sys, struct

OPT = dict(stamp=0, sts="2_3_4_5_6_7", force_slow=0, prio="16_8_4", spin=0, spinat=18, hack=0, sleep=2, delay=0,
           codepf=1, gprio=1, pf=0, pf2=0, pre=1, cfirst=0, gbar=0, init1=1, pf3=0, pfw=0, drain=0, pf4=0, tlb=0, gl=1, pf5=1, pfa=1, osc="sc1", w32=0, fw=1, fl=1, dbar=0, wsb=0, pinv=0, nreg=16, dsl=1, cmid=0, bsync=0, probe=0, tst=2, pop=1, cad=1, fp="8_3_1", e12=0, nol2=0, amp=0, ampw=0, ampg=-1, ampm=10, esc="none", sup=1, cprio=1, nog=0, gsc="sc1", cut=0, ef=0, fs=4)
for a in sys.argv[2:]:
    k, v = a.split("=")
    OPT[k] = int(v) if v.lstrip("-").isdigit() else v

KNAME = "standalone__edge_featured_mpnn_gatedgcn__graph_kernel"
N = 12500
E = 800000
CHUNK = 3136
TAB_ROWS = N + 1
CTL_OFF = 0xF900000
REG_STRIDE = 13 << 20
FLG_OFF = CTL_OFF + 0x10000
CELL_OFF = 0x400000
BIN_STRIDE = 32768 + 256
LINE_STRIDE = 0x900000
STAMP_OFF = 0xF000000
LOG2E = 1.4426950408889634
KEXP = 62
POLL_LIMIT = 100000

X_OFF = 0
WC_OFF = 8192
C1_OFF = 8448
C2_OFF = 9472
FLAG = C2_OFF + 256
SYNC = C2_OFF + 260
TAGS = C2_OFF + 272
BASE = C2_OFF + 512
STR = C2_OFF + 1024
EPI = C2_OFF + 2048
IMG = C2_OFF + 3072
IMG_STRIDE = 272
EAU_OFF = IMG + 256 * IMG_STRIDE
EAU_STRIDE = 800
W_OFF = EAU_OFF + 52 * EAU_STRIDE
LDS_TOTAL = W_OFF + 32768
LIST_OFF = W_OFF
LIST_MAX = 31 * 16 * 32
SLOT_OFF = IMG
SLOT_STRIDE = 512
ACC_STRIDE = 1056
OOB = 0x30000
assert W_OFF % 128 == 0 and 117 * SLOT_STRIDE <= 256 * IMG_STRIDE and LDS_TOTAL <= 163840
INC = 0x5556

def f32(x):
    return struct.unpack("<I", struct.pack("<f", x))[0]

out = []
def o(s=""):
    out.append(s)
def I(s):
    out.append("    " + s)
def L(s):
    out.append(s + ":")
def vr(a, n=1):
    return f"v{a}" if n == 1 else f"v[{a}:{a+n-1}]"
def sr(a, n=1):
    return f"s{a}" if n == 1 else f"s[{a}:{a+n-1}]"
def sdwa(sel1):
    return f"dst_sel:DWORD dst_unused:UNUSED_PAD src0_sel:DWORD src1_sel:{sel1}"

P_X, P_E, P_SRC, P_DST, P_WA, P_WB, P_WC, P_WU, P_WV, P_OUT, P_DBG, P_WS = 4, 6, 8, 10, 12, 14, 16, 18, 20, 22, 24, 26
S_TAB, S_X = 28, 32
WS = sr(P_WS, 2)

STS = [int(x) for x in str(OPT["sts"]).split("_")] if OPT["stamp"] else []
RTS = {12: 28, 17: 29} if OPT["stamp"] == 2 else {}
def stamp(i):
    if OPT["amp"]:
        if i == 1:
            I("s_memrealtime s[98:99]")
        if i == OPT["amp"]:
            I("s_memrealtime s[96:97]")
        if i == 18:
            I(f"s_cmp_eq_u32 s3, {OPT['ampw']}")
            I("s_cbranch_scc0 AMP_D")
            if OPT["ampg"] >= 0:
                I(f"s_cmp_eq_u32 s2, {OPT['ampg']}")
                I("s_cbranch_scc0 AMP_D")
            I("s_waitcnt lgkmcnt(0)")
            I("s_sub_u32 s96, s96, s98")
            I(f"s_mul_i32 s96, s96, {OPT['ampm']}")
            I("s_add_u32 s96, s96, 3000")
            I("s_min_u32 s96, s96, 100000")
            L("AMP_W")
            I("s_memrealtime s[90:91]")
            I("s_waitcnt lgkmcnt(0)")
            I("s_sub_u32 s90, s90, s98")
            I("s_cmp_lt_u32 s90, s96")
            I("s_cbranch_scc1 AMP_W")
            L("AMP_D")
    if OPT["spin"] and OPT["spinat"] == i:
        lab = f"SPIN_{len(out)}"
        I("s_cselect_b32 s92, 1, 0")
        L(lab)
        I("s_memrealtime s[90:91]")
        I("s_waitcnt lgkmcnt(0)")
        I("s_sub_u32 s90, s90, s98")
        I(f"s_cmp_lt_u32 s90, {OPT['spin']}")
        I(f"s_cbranch_scc1 {lab}")
        I("s_cmp_lg_u32 s92, 0")
    if not OPT["stamp"]:
        return
    if i == 0:
        I("s_memrealtime s[86:87]")
    elif i == 1:
        I("s_memtime s[88:89]")
    elif i in STS:
        k = 90 + 2 * STS.index(i)
        I(f"s_memtime s[{k}:{k+1}]")
        if i in RTS:
            k = 90 + 2 * STS.index(RTS[i])
            I(f"s_memrealtime s[{k}:{k+1}]")
def stamp_out():
    if not OPT["stamp"]:
        return
    I("s_mov_b64 exec, -1")
    I("s_waitcnt vmcnt(0) lgkmcnt(0)")
    I("s_memtime s[80:81]")
    I("s_memrealtime s[82:83]")
    I("s_waitcnt lgkmcnt(0)")
    I("v_writelane_b32 v127, s80, 30")
    I("v_writelane_b32 v127, s82, 31")
    I("v_writelane_b32 v127, s86, 0")
    I("v_writelane_b32 v127, s88, 1")
    for i in list(range(2, 19)) + list(range(20, 30)):
        I(f"v_writelane_b32 v127, s{90 + 2*STS.index(i) if i in STS else 88}, {i}")
    I("s_lshl_b32 s84, s2, 4")
    I("s_add_u32 s84, s84, s3")
    I("s_lshl_b32 s84, s84, 7")
    I(f"s_add_u32 s84, s84, {hex(STAMP_OFF)}")
    I("s_sub_u32 s84, s84, s38")
    I("v_and_b32 v1, 63, v0")
    I("v_lshl_add_u32 v1, v1, 2, s84")
    I("s_mov_b64 exec, 0xffffffff")
    I(f"global_store_dword v1, v127, {WS}")

def srd(d, p, size):
    I(f"s_mov_b64 {sr(d,2)}, {sr(p,2)}")
    I(f"s_mov_b32 s{d+2}, {hex(size)}")
    I(f"s_mov_b32 s{d+3}, 0x20000")

D, S, EE = 16, 20, 24
AP = 104
TG = 120
B2 = 128 * IMG_STRIDE

def edge_loads(lo=0, hi=3):
    ins = [f"global_load_dwordx4 {vr(D,4)}, v10, {sr(P_DST,2)}",
           f"global_load_dwordx4 {vr(S,4)}, v10, {sr(P_SRC,2)}",
           f"global_load_dwordx2 {vr(EE,2)}, v11, {sr(P_E,2)}"]
    for x in ins[lo:hi]:
        I(x + " " + OPT["esc"].replace("none", ""))

def claim():
    op = {1: "global_atomic_or v8, v12", 2: "global_store_dword v8, v12"}[OPT["pop"]]
    I("v_lshlrev_b32 v8, 16, v0")
    I("s_lshl_b32 s64, s2, 8")
    I("v_add_u32 v8, s64, v8")
    I(f"s_mov_b32 exec_hi, {hex((1 << 17) - 1)}")
    I(f"{op}, {WS} sc1")
    I(f"{op}, {WS} offset:128 sc1")
    I("s_mov_b64 exec, -1")

def binning(waits, extra=0, hook=None):
    B4, RK, PA = 28, 32, 36
    I(f"v_mov_b32 v14, {INC}")
    I(f"s_mov_b32 s68, {47*INC}")
    I("s_mov_b32 s69, 0x05040100")
    I("s_mov_b32 s70, 0x07060100")
    if waits:
        I(f"s_waitcnt vmcnt({2+extra})")
        stamp(3)
    for i in range(4):
        I(f"v_lshlrev_b32_sdwa v{B4+i}, 2, v{D+i} {sdwa('BYTE_0')}")
        I(f"ds_add_rtn_u32 v{RK+i}, v{B4+i}, v14 offset:{C1_OFF}")
    for i in range(4):
        I(f"v_mul_u32_u24 v{B4+i}, {IMG_STRIDE//4}, v{B4+i}")
        I(f"v_lshrrev_b32 v{D+i}, 8, v{D+i}")
    for i in range(4):
        I("s_waitcnt lgkmcnt(3)")
        I(f"v_min_u32 v{RK+i}, s68, v{RK+i}")
        I(f"v_lshrrev_b32 v{RK+i}, 14, v{RK+i}")
        I(f"v_lshl_add_u32 v{PA+i}, v{RK+i}, 2, v{B4+i}")
        I(f"v_and_b32 v{RK+i}, 3, v{RK+i}")
        I(f"v_or3_b32 v{RK+i}, v{PA+i}, 12, v{RK+i}")
        I(f"ds_write_b8 v{RK+i}, v{D+i} offset:{IMG}")
    if waits:
        if hook:
            hook()
        else:
            I(f"s_waitcnt vmcnt({extra})")
            stamp(4)
    for i in range(4):
        if OPT["hack"]:
            I(f"v_and_b32 v{S+i}, {OPT['hack']}, v{S+i}")
        I(f"v_perm_b32 v{S+i}, v{EE+(i>>1)}, v{S+i}, s{69+(i&1)}")
        I(f"ds_write_b32 v{PA+i}, v{S+i} offset:{IMG}")

def copy_consts():
    I("s_lshr_b32 s64, s2, 7")
    I("s_lshl_b32 s64, s64, 14")
    I(f"s_add_u32 s64, s64, {hex(CELL_OFF)}")
    I(f"v_mul_u32_u24 v6, {BIN_STRIDE//4}, v5")
    I("v_lshl_add_u32 v6, v0, 4, v6")
    I("v_add_u32 v6, s64, v6")
    I(f"v_add_u32 v7, {128*BIN_STRIDE}, v6")
    I(f"s_mul_i32 s64, s2, {BIN_STRIDE}")
    I(f"s_add_u32 s64, s64, {hex(CELL_OFF)}")
    I("v_lshl_add_u32 v2, v0, 4, s64")
    I("v_add_u32 v3, 0x4000, v2")
    I("s_mov_b32 s36, 0x0f0f0f0f")
    I("s_mov_b32 s37, s36")
    if OPT["w32"] == 2:
        I("v_mov_b32 v102, 0")
    elif OPT["w32"]:
        I("v_bfe_u32 v102, v0, 1, 2")
        I("v_bfe_u32 v103, v0, 2, 1")
        I(f"v_mul_u32_u24 v102, {6*INC}, v102")
        I("v_mul_u32_u24 v102, v102, v103")
    else:
        I("v_bfe_u32 v102, v0, 2, 1")
        I(f"v_mul_u32_u24 v102, {12*INC}, v102")
    I(f"s_mov_b32 s39, {24*INC}")
    I("s_mov_b32 s40, 0xc000")
    I("s_mov_b32 s41, 0xffc0c0c0")
    I(f"s_mov_b32 s42, {49 << 16}")
    I("s_mov_b32 s43, 0")
    I("v_mov_b32 v1, 0")
    I(f"s_mov_b32 s{S_TAB+2}, {0 if OPT['nog'] else TAB_ROWS}")
    I(f"s_mov_b32 s{S_TAB+3}, 0x20000")

def lds_init_addr():
    I("v_add_u32 v5, s2, v3")
    I("v_and_b32 v5, 127, v5")
    I(f"v_mul_u32_u24 v4, {IMG_STRIDE}, v5")
    I("v_lshl_add_u32 v4, v2, 4, v4")
    I("v_lshlrev_b32 v5, 2, v5")
    I("v_mov_b32 v12, 0")
    I("v_mov_b32 v13, 0x3f3f3f")
def lds_init():
    I(f"ds_write2st64_b32 v5, v12, v12 offset0:{C1_OFF//256} offset1:{C1_OFF//256+2}")
    for b in range(2):
        I(f"ds_write_b32 v4, v13 offset:{IMG + b*B2 + 12}")
def edge_addr():
    I(f"s_mul_i32 s64, s2, {CHUNK*4}")
    I("v_lshl_add_u32 v10, v0, 4, s64")
    I("v_lshrrev_b32 v11, 1, v10")

def gen():
    o(".p2align 8")
    o(f".globl {KNAME}")
    o(f".type {KNAME},@function")
    L(KNAME)
    I("s_cmp_ge_u32 s2, 256")
    I("s_cbranch_scc1 K_END")
    stamp(0); stamp(1)
    I("s_load_dwordx16 s[4:19], s[0:1], 0")
    I("s_load_dwordx8 s[20:27], s[0:1], 64")
    if OPT["spin"]:
        I("s_memrealtime s[98:99]")
    if OPT["codepf"]:
        I("s_getpc_b64 s[64:65]")
        L("A_PC")
        I("v_lshlrev_b32 v8, 7, v0")
        I("v_cmp_gt_u32 vcc, K_SLOW-A_PC, v8")
        I("s_and_b64 exec, exec, vcc")
        I("s_cbranch_execz A_NOPF")
        I("global_load_dword v27, v8, s[64:65]")
        L("A_NOPF")
        I("s_mov_b64 exec, -1")
    I("v_lshrrev_b32 v1, 6, v0")
    I("v_and_b32 v2, 7, v0")
    I("v_readfirstlane_b32 s3, v1")
    I("v_lshrrev_b32 v3, 3, v0")
    I("s_cmp_ge_u32 s3, 12")
    I("s_cbranch_scc0 E_ALL")
    XA, FA, FB, ACC1, ACC2 = 28, 36, 68, 104, 36
    I("s_setprio 3")
    I("s_memrealtime s[70:71]")
    I("v_and_b32 v7, 7, v3")
    I("s_and_b32 s64, s3, 1")
    I("s_lshl_b32 s64, s64, 2")
    I("v_and_b32 v8, 2, v7")
    I("v_xor_b32 v8, v8, v2")
    I("v_xor_b32 v8, s64, v8")
    I("v_lshlrev_b32 v8, 4, v8")
    I("v_lshl_add_u32 v8, v7, 7, v8")
    I("s_and_b32 s78, s3, 3")
    I("s_lshl_b32 s78, s78, 11")
    I("v_add_u32 v126, s78, v8")
    I(f"s_add_u32 s78, s78, {W_OFF}")
    I("s_add_u32 s66, s3, 3")
    I("s_and_b32 s66, s66, 3")
    I("v_xor_b32 v9, v2, v7")
    I("v_lshlrev_b32 v9, 4, v9")
    I("v_lshl_add_u32 v9, v7, 15, v9")
    I("s_lshl_b32 s67, s66, 19")
    I("s_lshl_b32 s68, s2, 7")
    I("s_add_u32 s67, s67, s68")
    I("v_add_u32 v9, s67, v9")
    I("v_add_u32 v15, 0x40000, v9")
    I("s_lshl_b32 s67, s66, 11")
    I(f"s_mov_b32 s{S_X+2}, {N*128}")
    I(f"s_mov_b32 s{S_X+3}, 0x20000")
    I("s_mov_b32 m0, s67")
    I("s_or_b32 s64, s2, s66")
    I("s_waitcnt lgkmcnt(0)")
    stamp(24)
    I("s_cbranch_scc1 G_NOPICK")
    I("s_bfe_u32 s70, s70, 0x40003")
    I("s_add_u32 s70, s70, 1")
    I("v_mov_b32 v12, s70")
    I("v_mov_b32 v13, 0")
    I("s_mov_b64 exec, 1")
    I(f"global_atomic_cmpswap v13, v[12:13], {sr(P_DBG,2)} sc1")
    I("s_mov_b64 exec, -1")
    L("G_NOPICK")
    I(f"s_mov_b64 {sr(S_X,2)}, {sr(P_X,2)}")
    I(f"buffer_load_dwordx4 v9, {sr(S_X,4)}, 0 offen lds")
    I("s_add_u32 m0, s67, 1024")
    I("s_nop 0")
    I(f"buffer_load_dwordx4 v15, {sr(S_X,4)}, 0 offen lds")
    def w_dma(p, off, va="v126", sd="s78"):
        I(f"s_add_u32 m0, {sd}, {off}")
        I("s_nop 0")
        I(f"global_load_lds_dwordx4 {va}, {sr(p,2)}")
        I(f"global_load_lds_dwordx4 {va}, {sr(p,2)} offset:1024")
    w_dma(P_WB, 0)
    w_dma(P_WV, 8192)
    L("E_ALL")
    edge_addr()
    I(f"v_cmp_gt_u32 vcc, {CHUNK//4}, v0")
    I("s_mov_b64 s[74:75], vcc")
    I(f"v_cmp_gt_u32 vcc, {E*4}, v10")
    I("s_and_b64 s[74:75], s[74:75], vcc")
    I("s_mov_b32 s79, 0")
    if OPT["dsl"] == 2:
        I("s_waitcnt lgkmcnt(0)")
    lds_init_addr()
    if OPT["dsl"] == 1:
        I("s_waitcnt lgkmcnt(0)")
    lds_init()
    if OPT["dsl"] == 0:
        I("s_waitcnt lgkmcnt(0)")
    stamp(25)
    I("s_mov_b64 exec, s[74:75]")
    I("s_cbranch_execz E_NOD")
    edge_loads(0, OPT["pre"])
    L("E_NOD")
    I("s_mov_b64 exec, -1")
    I("s_cmp_ge_u32 s3, 2")
    I("s_cbranch_scc1 E_NOZ")
    I("v_lshlrev_b32 v8, 4, v0")
    I("v_mov_b64 v[28:29], 0")
    I("v_mov_b64 v[30:31], 0")
    I(f"ds_write_b128 v8, v[28:31] offset:{C2_OFF}")
    L("E_NOZ")
    if OPT["cmid"]:
        copy_consts()
    else:
        I("s_waitcnt lgkmcnt(0)")
        I("s_barrier")
    I("s_mov_b64 exec, s[74:75]")
    I("s_cbranch_execz E_NOS")
    edge_loads(OPT["pre"], 3)
    L("E_NOS")
    I("s_mov_b64 exec, -1")
    if not OPT["cmid"]:
        copy_consts()
    I("s_cmp_ge_u32 s3, 12")
    I("s_cbranch_scc1 G_MAIN")
    if OPT["cmid"]:
        I("s_waitcnt lgkmcnt(0)")
        I("s_barrier")
    stamp(2)
    I("s_cmp_eq_u32 s3, 1")
    I("s_cbranch_scc0 A_NOEP")
    I(f"s_add_u32 s70, s{P_WS}, {hex(CTL_OFF)}")
    I(f"s_addc_u32 s71, s{P_WS+1}, 0")
    I("s_load_dwordx2 s[72:73], s[70:71], 8")
    if OPT["fw"]:
        I(f"s_lshl_b32 s76, s2, {OPT['fs']}")
        I(f"s_add_u32 s76, s76, {hex(FLG_OFF - CTL_OFF)}")
        I("s_load_dword s77, s[70:71], s76")
    L("A_NOEP")
    if OPT["bsync"] and not OPT["cmid"]:
        I("s_barrier")
    I("s_mov_b64 exec, s[74:75]")
    I("s_cbranch_execz A_NOBIN")
    binning(True)
    L("A_NOBIN")
    I("s_mov_b64 exec, -1")
    I("s_cmp_eq_u32 s3, 1")
    I("s_cbranch_scc0 A_JOIN")
    I("s_waitcnt lgkmcnt(0)")
    I("s_add_u32 s72, s72, 0x1000000")
    I("s_addc_u32 s73, s73, 0")
    I("s_and_b32 s72, s72, 0xff000000")
    for k in range(3):
        I(f"s_bfe_u32 s64, s73, {hex((2 << 16) | (2*k))}")
        I(f"s_lshl_b32 s64, s64, {6 + 8*k}")
        I("s_or_b32 s72, s72, s64")
        I(f"s_bfe_u32 s64, s73, {hex((2 << 16) | (6 + 2*k))}")
        I("s_lshl_b32 s64, s64, 14")
        I(f"v_mov_b32 v{TG+k}, s64")
    I(f"v_mov_b32 v{TG+3}, s72")
    I(f"ds_write_b128 v1, {vr(TG,4)} offset:{TAGS}")
    I("s_branch A_JOIN")

    L("G_MAIN")
    I("s_mov_b32 s48, 0")
    I(f"s_mov_b32 s{S_X+3}, 0x20000")
    I("v_and_b32 v126, 0x1bf0, v126")
    I("v_and_b32 v100, 7, v0")
    I("v_lshlrev_b32 v100, 4, v100")
    I(f"s_mov_b32 s{S_X+2}, {TAB_ROWS*256}")
    I("v_and_b32 v124, 15, v0")
    I("v_bfe_u32 v125, v0, 4, 2")
    I("v_and_b32 v8, 7, v124")
    I("v_lshlrev_b32 v9, 1, v125")
    I("v_xor_b32 v8, v8, v9")
    I("v_lshlrev_b32 v8, 4, v8")
    I("v_lshl_add_u32 v8, v124, 7, v8")
    I("v_add_u32 v8, s67, v8")
    I("v_xor_b32 v9, 16, v8")
    I("v_lshrrev_b32 v10, 2, v124")
    I("v_and_b32 v11, 2, v10")
    I("v_bfe_u32 v12, v0, 1, 1")
    I("v_or_b32 v11, v11, v12")
    I("v_and_b32 v12, 1, v125")
    I("v_lshl_or_b32 v11, v12, 2, v11")
    I("v_lshlrev_b32 v11, 4, v11")
    I("v_and_b32 v12, 1, v0")
    I("v_lshl_or_b32 v11, v12, 3, v11")
    I("v_lshl_add_u32 v10, v125, 4, v10")
    I("v_lshl_or_b32 v11, v10, 7, v11")
    I(f"v_add_u32 v12, {W_OFF}, v11")
    for T in range(1, 4):
        I(f"v_xor_b32 v{12+T}, {T << 5}, v12")
    I(f"s_mov_b32 s76, {hex(f32(-LOG2E))}")
    I("s_mov_b32 s77, 0x07060302")
    I(f"v_mov_b32 v26, {hex(f32(2.0**-70))}")
    I("s_lshl_b32 s64, s66, 20")
    I("s_lshl_b32 s65, s2, 8")
    I("s_add_u32 s64, s64, s65")
    I("v_lshlrev_b32 v27, 18, v125")
    I("v_lshl_add_u32 v27, v124, 4, v27")
    I("v_add_u32 v27, s64, v27")
    I("v_mov_b32 v10, 1")
    def g_sync(target, lab, arrive=True):
        if arrive:
            I("s_mov_b64 exec, 1")
            I(f"ds_add_u32 v1, v10 offset:{SYNC}")
            I("s_mov_b64 exec, -1")
        L(lab)
        I(f"ds_read_b32 v11, v1 offset:{SYNC}")
        I("s_waitcnt lgkmcnt(0)")
        I("v_readfirstlane_b32 s64, v11")
        I(f"s_cmp_lt_u32 s64, {target}")
        I(f"s_cbranch_scc1 {lab}")
    def frag_reads(F, moff):
        for T in range(4):
            for s in range(2):
                for h in range(2):
                    I(f"ds_read_b64_tr_b16 {vr(F + 8*T + 4*s + 2*h, 2)}, v{12+T} offset:{moff + (8*s+4*h)*128}")
    def mfmas(F, acc, swap, later):
        for T in range(4):
            I(f"s_waitcnt lgkmcnt({min(15, later + 4*(3-T))})")
            for s in range(2):
                a, b = vr(XA + 4*s, 4), vr(F + 8*T + 4*s, 4)
                if swap:
                    a, b = b, a
                c = "0" if s == 0 else vr(acc + 4*T, 4)
                I(f"v_mfma_f32_16x16x32_bf16 {vr(acc+4*T,4)}, {a}, {b}, {c}")
    if OPT["cmid"]:
        I("s_waitcnt lgkmcnt(0)")
        if not OPT["bsync"]:
            I("s_barrier")
    stamp(2)
    I("s_cmp_eq_u64 s[74:75], 0")
    I("s_cbranch_scc1 G_W0")
    I("s_waitcnt vmcnt(3)")
    I("s_branch G_W1")
    L("G_W0")
    I("s_waitcnt vmcnt(0)")
    L("G_W1")
    stamp(3)
    if OPT["bsync"]:
        I("s_barrier")
    else:
        g_sync(4, "G_S1")
    stamp(20)
    I(f"s_load_dword s38, {sr(P_DBG,2)}, 0")
    I(f"ds_read_b128 {vr(XA,4)}, v8")
    I(f"ds_read_b128 {vr(XA+4,4)}, v9")
    frag_reads(FA, 0)
    frag_reads(FB, 8192)
    stamp(21)
    w_dma(P_WA, 16384, "v126", "s78")
    w_dma(P_WU, 24576, "v126", "s78")
    I("s_cmp_eq_u32 s3, 13")
    I("s_cbranch_scc0 G_NOWC")
    I(f"s_mov_b32 m0, {WC_OFF}")
    I("s_mov_b64 exec, 0xff")
    I(f"global_load_lds_dwordx4 v100, {sr(P_WC,2)}")
    I("s_mov_b64 exec, -1")
    L("G_NOWC")
    stamp(22)
    mfmas(FA, ACC1, False, 16)
    mfmas(FB, ACC2, False, 0)
    stamp(23)
    ACCB, ACCV, OUTR = ACC1, ACC2, FB
    SD = sdwa("WORD_1")
    I("s_mov_b32 s80, 0x8000")
    I("s_mov_b32 s81, 0x8000")
    I(f"s_mov_b32 s68, {hex(f32(2.0**-100))}")
    I("s_mov_b32 s69, s68")
    I("v_mov_b32 v10, v26")
    I("v_mov_b32 v11, v26")
    I("s_nop 1")
    for rp in (0, 2):
        for t in range(4):
            I(f"v_pk_fma_f32 {vr(ACCB+4*t+rp,2)}, {vr(ACCB+4*t+rp,2)}, s[76:77], v[10:11] op_sel_hi:[1,0,1]")
        for t in (1, 3):
            I(f"v_pk_add_f32 {vr(ACCV+4*t+rp,2)}, {vr(ACCV+4*t+rp,2)}, s[68:69]")
        for t in range(4):
            I(f"v_lshl_add_u64 {vr(ACCB+4*t+rp,2)}, {vr(ACCB+4*t+rp,2)}, 0, s[80:81]")
        for t in range(4):
            I(f"v_lshl_add_u64 {vr(ACCV+4*t+rp,2)}, {vr(ACCV+4*t+rp,2)}, 0, s[80:81]")
        for r in (rp, rp + 1):
            for t in (0, 2):
                I(f"v_sub_u32_sdwa v{ACCB+4*t+r}, v{ACCB+4*t+r}, v{ACCV+4*t+r} clamp {SD}")
            for t in (0, 2):
                I(f"v_sub_u32_sdwa v{ACCV+4*(t+1)+r}, v{ACCV+4*(t+1)+r}, v{ACCB+4*t+r} clamp {SD}")
            for t in (0, 2):
                I(f"v_sub_u32_sdwa v{ACCB+4*(t+1)+r}, v{ACCB+4*(t+1)+r}, v{ACCV+4*(t+1)+r} clamp {SD}")
            for t in range(4):
                I(f"v_perm_b32 v{OUTR+4*r+t}, v{ACCB+4*t+r}, v{ACCV+4*t+r}, s77")
            if r == 0:
                I("s_cmp_eq_u32 s38, 0")
                I("s_cbranch_scc1 R_AREA")
                L("G_AREA")
                I(f"s_and_b32 s38, s38, {OPT['nreg']-1}")
                I(f"s_mul_i32 s38, s38, {REG_STRIDE}")
                I(f"s_add_u32 s{S_X}, s{P_WS}, s38")
                I(f"s_addc_u32 s{S_X+1}, s{P_WS+1}, 0")
                I("v_mov_b32 v26, s38")
                I(f"ds_write_b32 v1, v26 offset:{TAGS+16}")
                I("s_cmp_eq_u32 s3, 12")
                I("s_cbranch_scc1 G_T3")
            elif OPT["tst"] == 2:
                I("v_add_u32 v27, 0x10000, v27")
            if OPT["tst"] == 2:
                I(f"buffer_store_dwordx4 {vr(OUTR+4*r,4)}, v27, {sr(S_X,4)}, 0 offen sc1")

    stamp(4)
    L("G_BVD")
    I(f"s_waitcnt vmcnt({4 if OPT['tst'] == 2 else 0})")
    I("s_branch G_DONE")
    L("G_T3")
    I("s_cmp_eq_u32 s2, 212")
    I("s_cbranch_scc0 G_NODUM")
    for t in range(4):
        I(f"v_mov_b32 v{OUTR+t}, 0x7f000000")
    L("G_NODUM")
    if OPT["tst"] == 2:
        I(f"buffer_store_dwordx4 {vr(OUTR,4)}, v27, {sr(S_X,4)}, 0 offen sc1")
    I(f"s_waitcnt vmcnt({5 if OPT['tst'] == 2 else 4})")
    I("s_mov_b64 exec, s[74:75]")
    I("s_cbranch_execz G_NOBIN")
    I("v_mov_b32 v126, v14")
    binning(False)
    I("v_mov_b32 v14, v126")
    L("G_NOBIN")
    I("s_mov_b64 exec, -1")
    I(f"ds_read_b128 {vr(XA,4)}, v8")
    I(f"ds_read_b128 {vr(XA+4,4)}, v9")
    stamp(4)
    I(f"s_waitcnt vmcnt({1 if OPT['tst'] == 2 else 0})")
    L("G_DONE")
    if OPT["drain"]:
        I("s_waitcnt vmcnt(0)")
    if OPT["gprio"] and not OPT["cprio"]:
        I("s_setprio 0")
    stamp(5)

    L("A_JOIN")
    if OPT["cprio"]:
        I("s_setprio 3")
    I("s_waitcnt lgkmcnt(0)")
    stamp(6)
    I("s_barrier")
    stamp(7)
    C0 = 68 if OPT["tst"] == 2 else 48
    I(f"ds_read_b32 v11, v1 offset:{TAGS+16}")
    I(f"ds_read_b128 {vr(TG,4)}, v1 offset:{TAGS}")
    I(f"ds_read2st64_b32 v[8:9], v5 offset0:{C1_OFF//256} offset1:{C1_OFF//256+2}")
    I(f"ds_read_b128 {vr(C0,4)}, v4 offset:{IMG}")
    I(f"ds_read_b128 {vr(C0+4,4)}, v4 offset:{IMG+B2}")
    def tagit(c):
        for k in range(3):
            I(f"v_bfi_b32 v{c+k}, s40, v{TG+k}, v{c+k}")
        I(f"v_or_b32 v{c+3}, v{TG+3}, v{c+3}")
    I("s_waitcnt lgkmcnt(2)")
    I("v_readfirstlane_b32 s38, v11")
    I("v_cmp_le_u32 s[72:73], v102, v8")
    I("v_cmp_le_u32 s[74:75], v102, v9")
    I("v_max_u32 v10, v8, v9")
    I("v_cmp_le_u32 vcc, s39, v10")
    I(f"s_add_u32 s{P_WS}, s{P_WS}, s38")
    I(f"s_addc_u32 s{P_WS+1}, s{P_WS+1}, 0")
    def table_stores(lab):
        I(f"s_mov_b64 {sr(S_X,2)}, {WS}")
        I(f"buffer_store_dwordx4 {vr(OUTR,4)}, v27, {sr(S_X,4)}, 0 offen sc1")
        I("s_cmp_eq_u32 s3, 12")
        I(f"s_cbranch_scc1 {lab}")
        for r in range(1, 4):
            I("v_add_u32 v27, 0x10000, v27")
            I(f"buffer_store_dwordx4 {vr(OUTR+4*r,4)}, v27, {sr(S_X,4)}, 0 offen sc1")
        L(lab)
    if OPT["tst"] == 1:
        I("s_cmp_ge_u32 s3, 12")
        I("s_cbranch_scc0 A_TSD")
        table_stores("A_TSD")
    def cell_store(k):
        I(f"s_mov_b64 exec, s[{72+2*k}:{73+2*k}]")
        I(f"global_store_dwordx4 v{6+k}, {vr(C0+4*k,4)}, {WS} sc1")
    if OPT["gl"]:
        I("s_cmp_ge_u32 s3, 12")
        I("s_waitcnt lgkmcnt(1)")
        tagit(C0)
        I("s_cbranch_scc1 A_GL1")
        cell_store(0)
        I("s_mov_b64 exec, -1")
        L("A_GL1")
        I("s_waitcnt lgkmcnt(0)")
        tagit(C0 + 4)
        I("s_cbranch_scc1 A_GL2")
        cell_store(1)
        L("A_GL2")
    else:
        I("s_waitcnt lgkmcnt(1)")
        tagit(C0)
        cell_store(0)
        I("s_mov_b64 exec, s[74:75]")
        I("s_waitcnt lgkmcnt(0)")
        tagit(C0 + 4)
        I(f"global_store_dwordx4 v7, {vr(C0+4,4)}, {WS} sc1")
    I("s_cbranch_vccnz R_PUB2")
    L("A_PUBD")
    I("s_mov_b64 exec, -1")
    if OPT["cprio"]:
        I("s_setprio 0")
    stamp(8)
    I("s_cmp_ge_u32 s3, 12")
    I("s_cbranch_scc0 B_NOAU")
    if OPT["tst"] == 0:
        table_stores("A_TSD")
    I("s_mov_b32 s84, s66")
    I("s_setprio 1")
    FU, FW, UU = 36, 84, 52
    def half_gemm(moff, acc, swap):
        for T in range(4):
            F = (FU if T < 2 else FW) + 8 * (T & 1)
            for s in range(2):
                for h in range(2):
                    I(f"ds_read_b64_tr_b16 {vr(F + 4*s + 2*h, 2)}, v{12+T} offset:{moff + (8*s+4*h)*128}")
        for T in range(4):
            F = (FU if T < 2 else FW) + 8 * (T & 1)
            I(f"s_waitcnt lgkmcnt({4*(3-T)})")
            for s in range(2):
                a, b = vr(XA + 4*s, 4), vr(F + 4*s, 4)
                if swap:
                    a, b = b, a
                c = "0" if s == 0 else vr(acc + 4*T, 4)
                I(f"v_mfma_f32_16x16x32_bf16 {vr(acc+4*T,4)}, {a}, {b}, {c}")
    half_gemm(16384, AP, False)
    def flag_store():
        I(f"s_lshl_b32 s64, s2, {OPT['fs']-2}")
        I("s_add_u32 s64, s64, s84")
        I("s_lshl_b32 s64, s64, 2")
        I(f"s_add_u32 s64, s64, {hex(FLG_OFF)}")
        I("s_sub_u32 s64, s64, s38")
        I("v_mov_b32 v26, s64")
        I(f"v_xor_b32 v25, s48, v{TG+3}")
        I("s_mov_b64 exec, 1")
        I(f"global_store_dword v26, v25, {WS} sc1")
        I("s_mov_b64 exec, -1")
    if OPT["tst"] == 2:
        I(f"s_waitcnt vmcnt({0 if OPT['gl'] else 2})")
        stamp(29)
        if OPT["gl"]:
            cell_store(0)
            cell_store(1)
            I("s_mov_b64 exec, -1")
        flag_store()
    half_gemm(24576, UU, True)
    I(f"s_mul_i32 s65, s66, {16*EAU_STRIDE}")
    I(f"s_add_u32 s65, s65, {EAU_OFF}")
    I(f"v_mul_u32_u24 v26, {4*EAU_STRIDE}, v125")
    I("v_lshl_add_u32 v26, v124, 4, v26")
    I("v_add_u32 v25, s65, v26")
    I(f"v_mul_u32_u24 v27, {EAU_STRIDE}, v124")
    I("v_lshl_add_u32 v27, v125, 4, v27")
    I("v_add_u32 v27, s65, v27")
    for i in range(16):
        I(f"v_mul_f32 v{AP+i}, s76, v{AP+i}")
    I("s_cmp_eq_u32 s3, 12")
    I("s_cselect_b32 exec_lo, 0x000f000f, -1")
    I("s_cselect_b32 exec_hi, 0x000f000f, -1")
    for T in range(4):
        I(f"ds_write_b128 v27, {vr(UU+4*T,4)} offset:{256 + T*64}")
    I("s_cselect_b32 exec_hi, 0, -1")
    I("s_cselect_b32 exec_lo, 0xffff, -1")
    I(f"v_max3_f32 v26, |v{AP}|, |v{AP+1}|, |v{AP+2}|")
    for i in range(3, 15, 2):
        I(f"v_max3_f32 v26, |v{AP+i}|, |v{AP+i+1}|, v26")
    I(f"v_max_f32 v26, |v{AP+15}|, v26")
    I(f"v_cmp_nge_f32 vcc, {hex(f32(63.0))}, v26")
    EAT = 36
    for r in range(4):
        for t in range(4):
            I(f"v_add_f32 v{EAT+4*r+t}, {hex(f32(-float(KEXP)))}, v{AP+4*t+r}")
        for t in range(4):
            I(f"ds_write_b32 v25, v{AP+4*t+r} offset:{r*EAU_STRIDE + 512 + 4*t}")
            I(f"v_exp_f32 v{EAT+4*r+t}, v{EAT+4*r+t}")
        I("s_nop 0")
        I(f"ds_write_b128 v25, {vr(EAT+4*r,4)} offset:{r*EAU_STRIDE}")
        if r == 0:
            I("s_cbranch_scc1 G_EAD")
    L("G_EAD")
    I("s_mov_b64 exec, -1")
    I("s_cmp_lg_u64 vcc, 0")
    I("s_cselect_b32 s79, 1, 0")
    if OPT["cad"]:
        I("s_branch B_CONST")
    L("B_NOAU")
    if OPT["cad"]:
        I("s_waitcnt vmcnt(0)")
    L("B_CONST")

    RA, CA, KA, RB, CB, KB = 8, 24, 36, 64, 72, 78
    XB, Y, A = 48, 80, 100
    IP = (96, 98, 104, 106)
    UR, XR, VOUT, VU, LP, EP = 108, 112, 116, 117, 118, 120
    WCB, DEN, NUM, VOOB, C4, VRA, VSE, EA, P, Q, SS, LC = 16, 20, 44, 30, 31, 42, 32, 12, 24, 8, 36, 4
    I(f"s_mov_b32 s{S_TAB}, s{P_WS}")
    I(f"s_or_b32 s{S_TAB+1}, s{P_WS+1}, 0x1000000")
    I("v_and_b32 v5, 63, v0")
    I("s_cmp_lt_u32 s2, 212")
    I("s_cselect_b32 s64, 49, 48")
    I("v_cmp_gt_u32 s[82:83], s64, v5")
    I("v_lshlrev_b32 v5, 2, v5")
    I(f"v_and_b32 v{LC}, 15, v0")
    I(f"v_lshlrev_b32 v6, 1, v{LC}")
    for j in range(4):
        I(f"ds_read_u16 v{WCB+j}, v6 offset:{WC_OFF + 32*j}")
    I(f"v_lshlrev_b32 v{LC}, 4, v{LC}")
    I(f"v_mov_b32 v{C4}, 4")
    I(f"v_mov_b32 v{VOOB}, {OOB}")
    for p_ in IP:
        I(f"v_mov_b32 v{p_+1}, v{LC}")
    I(f"v_lshlrev_b32 v{LP}, 1, v6")
    I(f"v_mov_b32 v{LP+1}, v{LC}")
    I("v_lshrrev_b32 v7, 4, v0")
    I(f"v_mul_u32_u24 v{VU}, {EAU_STRIDE}, v7")
    I(f"s_mov_b32 s64, {EAU_OFF + 256}")
    I(f"v_add3_u32 v{VU}, v{VU}, s64, v{LC}")
    I("v_lshlrev_b32 v8, 2, v6")
    I("v_and_b32 v9, 0x70, v0")
    I("v_xor_b32 v9, v8, v9")
    I("v_lshl_add_u32 v9, v7, 7, v9")
    I(f"ds_read_b64 {vr(XR+2,2)}, v9 offset:{X_OFF}")
    I(f"v_lshl_add_u32 v{VOUT}, v7, 15, v8")
    I("s_lshl_b32 s64, s2, 7")
    I(f"v_add_u32 v{VOUT}, s64, v{VOUT}")
    srd(S_X, P_OUT, N * 128)
    for d in range(0, 4, 2):
        I(f"v_mov_b64 {vr(A+d,2)}, 0")
        I(f"v_mov_b64 {vr(DEN+d,2)}, 0")
        I(f"v_mov_b64 {vr(NUM+d,2)}, 0")
    I("s_mov_b64 s[68:69], -1")
    I("s_mov_b64 s[70:71], -1")
    I("s_cmp_lt_u32 s3, 4")
    I("s_cselect_b32 s78, 2, 0")
    I(f"s_mov_b32 s16, {hex(f32(2.0**-KEXP))}")
    I("s_mov_b32 s17, s16")
    I(f"s_mov_b32 s18, {hex(f32(1e-6 * 2.0**KEXP))}")
    I("s_mov_b32 s19, s18")
    I("s_mov_b32 s20, 32")
    I("s_mov_b32 s21, 32")
    I(f"s_mov_b32 s24, {SLOT_STRIDE}")
    I(f"s_mov_b32 s25, {EAU_STRIDE}")
    I(f"s_mov_b32 s85, {LIST_OFF}")
    I("s_mov_b32 s56, 0x11111111")
    I("s_mov_b32 s57, s56")
    I("s_lshl_b64 s[58:59], s[56:57], 1")
    I("s_lshl_b64 s[60:61], s[56:57], 2")
    I("s_lshl_b64 s[62:63], s[56:57], 3")
    I("v_bfe_u32 v124, v0, 4, 2")
    I("v_bfe_u32 v125, v0, 5, 1")
    I("v_bfe_u32 v126, v0, 2, 1")
    I("v_lshl_add_u32 v125, v126, 1, v125")
    I("v_bfe_u32 v126, v0, 3, 2")
    I("v_lshlrev_b32 v126, 2, v126")
    I("v_bfe_u32 v34, v0, 2, 3")
    I("s_lshl_b32 s64, s3, 3")
    I("s_sub_u32 s64, s2, s64")
    I("v_sub_u32 v34, s64, v34")
    I("v_and_b32 v34, 127, v34")
    I("v_and_b32 v35, 32, v0")
    I("v_lshl_add_u32 v34, v35, 2, v34")
    I("v_and_b32 v35, 3, v0")
    if OPT["pf"] or OPT["pf2"] or OPT["pf3"] or OPT["pf4"]:
        I("v_lshlrev_b32 v33, 8, v34")
        I("v_lshl_add_u32 v33, v35, 20, v33")
        I("s_lshr_b32 s64, s2, 4")
        I("s_lshl_b32 s64, s64, 16")
        I("s_bfe_u32 s65, s2, 0x10003")
        I("s_lshl_b32 s65, s65, 7")
        I("s_add_u32 s64, s64, s65")
        I("v_add_u32 v33, s64, v33")
    if OPT["pf5"]:
        I("v_lshlrev_b32 v33, 8, v34")
        I("v_and_b32 v32, 1, v35")
        I("v_lshl_add_u32 v33, v32, 7, v33")
        I("v_lshrrev_b32 v32, 1, v35")
        I("v_lshl_add_u32 v33, v32, 16, v33")
        I("s_sub_u32 s64, s3, 13")
        I("s_lshl_b32 s64, s64, 20")
        I("s_lshr_b32 s65, s2, 7")
        I("s_lshl_b32 s65, s65, 19")
        I("s_add_u32 s64, s64, s65")
        I("v_add_u32 v33, s64, v33")
    I(f"v_lshlrev_b32 v34, {OPT['fs']}, v34")
    I("v_lshl_add_u32 v34, v35, 2, v34")
    I(f"s_sub_u32 s64, {hex(FLG_OFF)}, s38")
    I("v_add_u32 v34, s64, v34")
    I(f"s_mov_b32 s64, {hex(f32(-LOG2E))}")
    I("s_mov_b32 s66, 0x0000ffff")
    I("s_mov_b32 s67, 0xffff0000")
    I("s_waitcnt lgkmcnt(0)")
    for j in range(4):
        I(f"v_lshlrev_b32 v{WCB+j}, 16, v{WCB+j}")
    for j in range(4):
        I(f"v_mul_f32 v{WCB+j}, s64, v{WCB+j}")
    for j in range(4):
        I(f"v_cvt_pk_bf16_f32 v{WCB+j}, 0, v{WCB+j}")
    for j in range(4):
        I(f"v_cndmask_b32 v{WCB+j}, 0, v{WCB+j}, s[66:67]")
    I(f"v_lshlrev_b32 v{XR}, 16, v{XR+2}")
    I(f"v_and_b32 v{XR+1}, 0xffff0000, v{XR+2}")
    I(f"v_lshlrev_b32 v{XR+2}, 16, v{XR+3}")
    I(f"v_and_b32 v{XR+3}, 0xffff0000, v{XR+3}")
    I("s_setprio 0")
    if OPT["fl"]:
        I("s_waitcnt vmcnt(1)")
        I("s_cmp_ge_u32 s3, 12")
        I("s_cbranch_scc1 B_DRD")
    I("s_waitcnt vmcnt(0)")
    if OPT["tst"] != 2:
        I("s_cmp_ge_u32 s3, 12")
        I("s_cbranch_scc0 B_DRD")
    if OPT["tst"] != 2:
        flag_store()
    L("B_DRD")
    if OPT["dbar"]:
        I("s_barrier")
    if OPT["delay"]:
        I(f"s_sleep {OPT['delay']}")
    stamp(9)
    I(f"global_load_dwordx4 {vr(RA,4)}, v2, {WS} sc1")
    I(f"global_load_dwordx4 {vr(RA+4,4)}, v3, {WS} sc1")

    def poll(R_, first, name):
        L(name)
        I("s_waitcnt vmcnt(0)")
        for k in range(2):
            I(f"s_mov_b64 exec, s[{68+2*k}:{69+2*k}]")
            for j in range(4):
                I(f"v_xor_b32 v{R_+4*k+j}, v{TG+j}, v{R_+4*k+j}")
        I("s_mov_b64 exec, -1")
        for k in range(2):
            r = R_ + 4 * k
            I(f"v_or3_b32 v{6+k}, v{r}, v{r+1}, v{r+2}")
            I(f"v_and_b32 v{6+k}, s40, v{6+k}")
            I(f"v_and_or_b32 v{6+k}, v{r+3}, s41, v{6+k}")
            I(f"v_cmp_ne_u32 s[{68+2*k}:{69+2*k}], 0, v{6+k}")
            I(f"v_cmp_gt_u32 s[{64+2*k}:{65+2*k}], s42, v{r+3}")
        if first:
            for k in range(2):
                I(f"s_andn2_b64 s[{64+2*k}:{65+2*k}], s[{64+2*k}:{65+2*k}], s[{68+2*k}:{69+2*k}]")
                I(f"s_lshl_b64 s[{74+2*k}:{75+2*k}], s[{64+2*k}:{65+2*k}], 1")
                I(f"s_or_b64 s[{74+2*k}:{75+2*k}], s[{74+2*k}:{75+2*k}], s[36:37]")
        I("s_and_b64 s[72:73], s[68:69], s[74:75]")
        I("s_and_b64 s[80:81], s[70:71], s[76:77]")
        I("s_or_b64 s[72:73], s[72:73], s[80:81]")
        I(f"s_cbranch_scc1 {name}_RETRY")
    def retry(R_, first, name):
        L(name + "_RETRY")
        if first:
            for k in range(4):
                I(f"s_and_b32 s72, s{68+k}, s{74+k}")
                I("s_lshl_b32 s73, s72, 1")
                I("s_or_b32 s72, s72, s73")
                I("s_lshl_b32 s73, s72, 2")
                I("s_or_b32 s72, s72, s73")
                I("s_lshl_b32 s73, s72, 4")
                I("s_or_b32 s72, s72, s73")
                I(f"s_and_b32 s{68+k}, s{68+k}, s72")
        else:
            I("s_and_b64 s[68:69], s[68:69], s[74:75]")
            I("s_and_b64 s[70:71], s[70:71], s[76:77]")
        I("s_add_u32 s43, s43, 1")
        I(f"s_cmp_gt_u32 s43, {POLL_LIMIT}")
        I("s_cbranch_scc1 R_TIMEOUT")
        if OPT["sleep"]:
            I(f"s_sleep {OPT['sleep']}")
        reload(R_, name)
        I(f"s_branch {name}")
    def reload(R_, name):
        I("s_mov_b64 exec, s[68:69]")
        I(f"s_cbranch_execz {name}_1")
        I(f"global_load_dwordx4 {vr(R_,4)}, v2, {WS} sc1")
        L(name + "_1")
        I("s_mov_b64 exec, s[70:71]")
        I(f"s_cbranch_execz {name}_2")
        I(f"global_load_dwordx4 {vr(R_+4,4)}, v3, {WS} sc1")
        L(name + "_2")
    def ranks(R_, C_, K_, M_):
        for k in range(2):
            for j in range(3):
                I(f"v_lshlrev_b32_sdwa v{C_+3*k+j}, 2, v{R_+4*k+3} {sdwa('BYTE_'+str(j))}")
        for k in range(2):
            I(f"s_mov_b64 exec, s[{74+2*k}:{75+2*k}]")
            for j in range(3):
                m = M_ + 2 * (3 * k + j)
                I(f"v_cmp_gt_u32_sdwa s[{m}:{m+1}], 49, v{R_+4*k+3} src0_sel:DWORD src1_sel:BYTE_{j}")
            for j in range(3):
                m = M_ + 2 * (3 * k + j)
                I(f"s_mov_b64 exec, s[{m}:{m+1}]")
                I(f"ds_add_rtn_u32 v{K_+3*k+j}, v{C_+3*k+j}, v{C4} offset:{C2_OFF}")
        I("s_mov_b64 exec, -1")
    def more_test():
        I("s_and_b64 s[64:65], s[64:65], s[74:75]")
        I("s_and_b64 s[66:67], s[66:67], s[76:77]")
        I("s_or_b64 s[72:73], s[64:65], s[66:67]")
        I("s_or_b32 s72, s72, s73")
        I("s_and_b32 s72, s72, 0x80808080")
    MA, MB = 44, 4

    def pf5(lab):
        I("s_cmp_ge_u32 s3, 13")
        I(f"s_cbranch_scc0 {lab}")
        for k in range(OPT["pf5"]):
            if k:
                I("v_add_u32 v33, 0x20000, v33")
            I(f"global_load_dword v84, v33, {WS} sc1")
        L(lab)
    poll(RA, True, "B_P0")
    stamp(10)
    if OPT["ef"]:
        I(f"global_load_dword v35, v34, {WS} sc1")
    ranks(RA, CA, KA, MA)
    more_test()
    I("s_or_b32 s72, s72, s79")
    I("s_cbranch_scc1 R_MORE")
    L("B_RDONE")
    if OPT["stamp"]:
        I("v_writelane_b32 v127, s43, 19")
    I("s_waitcnt lgkmcnt(0)")
    I("s_barrier")
    stamp(11)
    I(f"ds_read_b32 v6, v5 offset:{C2_OFF}")
    if OPT["drain"]:
        if OPT["pf4"]:
            I(f"s_sub_u32 s71, s3, {OPT['pfw']}")
            I(f"s_cmp_lt_u32 s71, {OPT['pf4']}")
            I("s_cbranch_scc0 B_NOPF4")
            I("s_andn2_b64 exec, exec, s[62:63]")
            I(f"global_load_dword v84, v33, {WS} sc1")
            I("s_mov_b64 exec, -1")
            L("B_NOPF4")
    elif not OPT["ef"]:
        I(f"global_load_dword v35, v34, {WS} sc1")
        if OPT["pf5"] and not OPT["pfa"]:
            pf5("B_NOPF5")
    elif OPT["pf"]:
        I("s_sub_u32 s64, s3, 4")
        I(f"s_cmp_lt_u32 s64, {OPT['pf']}")
        I("s_cbranch_scc0 B_NOPF")
        I("s_waitcnt vmcnt(0)")
        I(f"v_cmp_eq_u32 vcc, v{TG+3}, v35")
        I("s_mov_b64 exec, vcc")
        I("s_cbranch_execz B_NOPF0")
        I(f"global_load_dword v84, v33, {WS} sc1")
        L("B_NOPF0")
        I("s_mov_b64 exec, -1")
        L("B_NOPF")
    I("s_waitcnt lgkmcnt(0)")
    I("v_add_u32 v2, 7, v6")
    I("v_and_b32 v2, -8, v2")
    I("v_max_u32 v2, 8, v2")
    I("v_cndmask_b32 v2, 0, v2, s[82:83]")
    if OPT["pf5"] and OPT["pfa"]:
        pf5("B_NOPF5")
    I("v_mov_b32 v3, v2")
    for d in ("row_shr:1 row_mask:0xf", "row_shr:2 row_mask:0xf", "row_shr:4 row_mask:0xf",
              "row_shr:8 row_mask:0xf", "row_bcast:15 row_mask:0xa", "row_bcast:31 row_mask:0xc"):
        I("s_nop 1")
        I(f"v_add_u32_dpp v3, v3, v3 {d} bank_mask:0xf")
    I("v_sub_u32 v7, v3, v2")
    I(f"ds_write_b32 v5, v7 offset:{BASE}")
    I("v_readlane_b32 s64, v3, 63")
    def lookup(C_):
        for i in range(6):
            I(f"ds_read_b32 v{C_+i}, v{C_+i} offset:{BASE}")
    def scatter(R_, C_, K_, M_):
        for i in range(6):
            if i % 3 == 0:
                I(f"s_waitcnt lgkmcnt({3-i})")
            I(f"v_add3_u32 v{C_+i}, v{C_+i}, v{K_+i}, s85")
        for i in range(6):
            I(f"s_mov_b64 exec, s[{M_+2*i}:{M_+2*i+1}]")
            I(f"ds_write_b32 v{C_+i}, v{R_+4*(i//3)+i%3}")
        I("s_mov_b64 exec, -1")
    lookup(CA)
    I("s_add_u32 s65, s64, 31")
    I("s_lshr_b32 s66, s65, 9")
    I("s_bfe_u32 s67, s65, 0x40005")
    I("s_mul_i32 s68, s66, s3")
    I("s_min_u32 s69, s67, s3")
    I("s_add_u32 s68, s68, s69")
    I("s_lshl_b32 s68, s68, 5")
    I("s_cmp_lt_u32 s3, s67")
    I("s_addc_u32 s72, s66, 0")
    I("s_lshl_b32 s69, s72, 3")
    I("s_add_u32 s70, s68, s85")
    if OPT["pf3"]:
        I(f"s_sub_u32 s71, s3, {OPT['pfw']}")
        I(f"s_cmp_lt_u32 s71, {OPT['pf3']}")
        I("s_cbranch_scc0 B_NOPF3")
        I("s_waitcnt vmcnt(0)")
        I(f"v_cmp_eq_u32 vcc, v{TG+3}, v35")
        I("s_andn2_b64 exec, vcc, s[62:63]")
        I("s_cbranch_execz B_NOPF30")
        I(f"global_load_dword v84, v33, {WS} sc1")
        L("B_NOPF30")
        I("s_mov_b64 exec, -1")
        L("B_NOPF3")
    scatter(RA, CA, KA, MA)
    I(f"v_mul_u32_u24 v{VRA}, s69, v124")
    I(f"v_mul_u32_u24 v{VRA+1}, s69, v125")
    I(f"v_add_u32 v{VRA}, s70, v{VRA}")
    I(f"v_add3_u32 v{VRA+1}, v{VRA+1}, s70, v126")
    if OPT["pf"] and OPT["ef"]:
        I("s_sub_u32 s71, s3, 4")
        I(f"s_cmp_lt_u32 s71, {OPT['pf']}")
        I("s_cbranch_scc1 B_FLW")
    if OPT["pf3"]:
        I(f"s_cmp_lt_u32 s71, {OPT['pf3']}")
        I("s_cbranch_scc1 B_FLW")
    if not OPT["drain"]:
        if OPT["pf5"]:
            I(f"s_waitcnt vmcnt({OPT['pf5']})")
            I("s_cmp_ge_u32 s3, 13")
            I("s_cbranch_scc1 B_FLW")
        I("s_waitcnt vmcnt(0)")
        L("B_FLW")
        I(f"v_cmp_ne_u32 vcc, v{TG+3}, v35")
    I("s_cmp_lg_u32 s78, 0")
    I("s_cbranch_scc1 R_EXTRA")
    L("B_XDONE")
    if not OPT["drain"]:
        I("s_cbranch_vccnz R_FLAGS")
    L("B_FDONE")
    if OPT["pf2"]:
        I(f"s_cmp_lt_u32 s3, {OPT['pf2']}")
        I("s_cbranch_scc0 B_NOPF2")
        I(f"global_load_dword v84, v33, {WS} sc1")
        L("B_NOPF2")
    I("s_waitcnt lgkmcnt(0)")
    I("s_barrier")
    stamp(12)
    def i_reads(batch, lo=0, hi=4):
        for i in range(lo, hi):
            I(f"ds_read_u16 v{IP[i]}, v{VRA} offset:{16*batch + 4*i}")
    def a_reads(batch):
        for d in range(4):
            I(f"s_mov_b64 exec, s[{56+2*d}:{57+2*d}]")
            I(f"ds_read_b32 v{A+d}, v{VRA+1} offset:{16*batch}")
        I("s_mov_b64 exec, -1")
    def gathers(x, lo, hi):
        for i in range(lo, hi):
            I(f"buffer_load_dwordx4 {vr(x+4*i,4)}, {vr(IP[i],2)}, {sr(S_TAB,4)}, 0 idxen offen {OPT['gsc'] if OPT['gsc'] != 'none' else ''}")
    i_reads(0)
    I("v_and_b32 v9, 0x3f0, v0")
    I(f"ds_read_b128 {vr(VSE,4)}, v9 offset:{STR}")
    I(f"ds_read_b32 v8, v1 offset:{FLAG}")
    if OPT["prio"]:
        I("s_setprio 3")
    I("s_waitcnt lgkmcnt(2)")
    gathers(XB, 0, 4)
    stamp(13)
    i_reads(1)
    I(f"ds_read_b128 {vr(EP,4)}, v9 offset:{EPI}")
    I(f"ds_read_b128 {vr(UR,4)}, v{VU}")
    I("s_waitcnt lgkmcnt(6)")
    I("v_readfirstlane_b32 s80, v8")
    I(f"v_lshl_add_u64 {vr(VSE,2)}, {vr(VSE,2)}, 0, {vr(LP,2)}")
    I(f"ds_read_b128 {vr(EA,4)}, v{VSE+1}")
    for q in range(4):
        I(f"v_readlane_b32 s{44+q}, v{VSE+2}, {16*q}")
    I(f"s_cmp_gt_u32 s64, {LIST_MAX}")
    I("s_cselect_b32 s81, 1, 0")
    I("s_or_b32 s80, s80, s81")
    if OPT["force_slow"]:
        I("s_branch K_SLOW")
    I("s_cbranch_scc1 K_SLOW")
    a_reads(0)
    for q in range(4):
        if OPT["cut"] & 8:
            I(f"s_mov_b32 s{44+q}, 0")
        I(f"s_bitset1_b32 s{44+q}, s72")
    I("s_or_b32 s82, s44, s45")
    I("s_or_b32 s83, s46, s47")
    I("s_or_b32 s82, s82, s83")
    if OPT["fp"]:
        th = [int(x) for x in str(OPT["fp"]).split("_")]
        I(f"s_lshl_b32 s81, 1, s72")
        for t_ in th:
            I(f"s_lshr_b32 s80, s81, {t_}")
            I("s_or_b32 s82, s82, s80")
    I("s_bfm_b32 s83, s72, 0")
    I("s_lshr_b32 s83, s83, 4")
    I("s_mov_b32 s73, 0")
    I("s_waitcnt lgkmcnt(5)")
    gathers(XB + 16, 0, 4)
    i_reads(2)
    for k in range(3):
        I(f"v_add_u32 v{EP+k}, v{EP+k}, v{LC}")
    I(f"v_cmp_lt_i32 s[48:49], 2, v{EP+3}")
    I("s_cmp_eq_u32 s72, 0")
    I("s_cbranch_scc1 K_JOIN")
    def mfma(x):
        I(f"v_mfma_f32_32x32x16_bf16 {vr(Y,16)}, {vr(A,4)}, {vr(WCB,4)}, {vr(x,16)}")
    stamp(14)
    I("s_waitcnt vmcnt(4) lgkmcnt(4)")
    mfma(XB)
    stamp(15)
    a_reads(1)
    nth = len(str(OPT["prio"]).split("_")) if OPT["prio"] else 0
    if OPT["prio"]:
        I(f"s_setprio {nth}")
    I("s_nop 2")
    L("K_LOOP")
    if OPT["prio"] and not OPT["fp"]:
        I("s_sub_u32 s74, s72, s73")
        for k, t_ in enumerate(int(x) for x in str(OPT["prio"]).split("_")):
            I(f"s_cmp_gt_u32 s74, {t_}")
            I("s_cbranch_scc1 K_STEP0")
            I(f"s_setprio {nth-1-k}")
    for u in range(4):
        bb, hh = u >> 1, u & 1
        x = XB + 16 * bb + 8 * hh
        t = Y + 8 * hh
        L(f"K_STEP{u}")
        for i in range(8):
            I(f"v_exp_f32 v{t+i}, v{t+i}")
        for i in range(4):
            I(f"v_lshlrev_b64 {vr(x+2*i,2)}, 16, {vr(x+2*i,2)}")
        for i in range(4):
            I(f"v_pk_fma_f32 {vr(t+2*i,2)}, {vr(t+2*i,2)}, {vr(EA+2*(i&1),2)}, s[16:17] clamp")
        I(f"v_pk_mul_f32 {vr(P,2)}, {vr(t,2)}, {vr(t+4,2)}")
        I(f"v_pk_mul_f32 {vr(P+2,2)}, {vr(t+2,2)}, {vr(t+6,2)}")
        I(f"v_pk_mul_f32 {vr(Q,2)}, {vr(x,2)}, {vr(t+4,2)}")
        I(f"v_pk_mul_f32 {vr(Q+2,2)}, {vr(x+2,2)}, {vr(t+6,2)}")
        I(f"v_pk_add_f32 {vr(SS,2)}, {vr(t,2)}, {vr(t+4,2)}")
        I(f"v_pk_add_f32 {vr(SS+2,2)}, {vr(t+2,2)}, {vr(t+6,2)}")
        I(f"v_pk_fma_f32 {vr(Q,2)}, {vr(x+4,2)}, {vr(t,2)}, {vr(Q,2)}")
        I(f"v_pk_fma_f32 {vr(Q+2,2)}, {vr(x+6,2)}, {vr(t+2,2)}, {vr(Q+2,2)}")
        if OPT["sup"]:
            I(f"s_bitcmp1_b32 s83, {u}")
            I(f"s_cselect_b32 s{S_TAB+2}, s{S_TAB+2}, 0")
        if hh == 0:
            I("s_waitcnt lgkmcnt(0)")
            if not OPT["cut"] & 4:
                gathers(XB + 16 * bb, 0, 2)
            for i in range(4):
                I(f"v_rcp_f32 v{P+i}, v{P+i}")
        else:
            I("s_waitcnt vmcnt(2)")
            if not OPT["cut"] & 1:
                mfma(XB + 16 * (1 - bb))
            for i in range(4):
                I(f"v_rcp_f32 v{P+i}, v{P+i}")
            if not OPT["cut"] & 4:
                gathers(XB + 16 * bb, 2, 4)
        I(f"v_pk_fma_f32 {vr(NUM,2)}, {vr(Q,2)}, {vr(P,2)}, {vr(NUM,2)}")
        I(f"v_pk_fma_f32 {vr(DEN,2)}, {vr(SS,2)}, {vr(P,2)}, {vr(DEN,2)}")
        I(f"v_pk_fma_f32 {vr(NUM+2,2)}, {vr(Q+2,2)}, {vr(P+2,2)}, {vr(NUM+2,2)}")
        I(f"v_pk_fma_f32 {vr(DEN+2,2)}, {vr(SS+2,2)}, {vr(P+2,2)}, {vr(DEN+2,2)}")
        if hh == 1:
            if not OPT["cut"] & 4:
                i_reads(bb + 3)
            if not OPT["cut"] & 2:
                a_reads(bb + 2)
        I(f"s_bitcmp1_b32 s82, {u+1}")
        I(f"s_cbranch_scc1 K_FLUSH{u}")
        L(f"K_BACK{u}")
    I(f"v_lshl_add_u64 {vr(VRA,2)}, {vr(VRA,2)}, 0, s[20:21]")
    I("s_lshr_b32 s82, s82, 4")
    I("s_lshr_b32 s83, s83, 4")
    I("s_add_u32 s73, s73, 4")
    I("s_branch K_LOOP")
    for u in range(4):
        L(f"K_FLUSH{u}")
        I(f"s_add_u32 s74, s73, {u+1}")
        for h in range(2):
            I(f"s_bitcmp1_b32 s{44+2*h}, s74")
            I("s_cselect_b32 s75, 0xffff, 0")
            I(f"s_bitcmp1_b32 s{45+2*h}, s74")
            I("s_cselect_b32 s80, 0xffff0000, 0")
            I(f"s_or_b32 {'exec_hi' if h else 'exec_lo'}, s75, s80")
        if OPT["fp"]:
            I("s_sub_u32 s75, s72, s74")
            for k, t_ in enumerate(th):
                I(f"s_cmp_gt_u32 s75, {t_}")
                I(f"s_cbranch_scc1 K_FP{u}")
                I(f"s_setprio {len(th)-1-k}")
            L(f"K_FP{u}")
            I(f"s_cbranch_execz K_FQ{u}")
        I(f"ds_write2_b32 v{VSE}, v{DEN}, v{DEN+1} offset0:0 offset1:16")
        I(f"ds_write2_b32 v{VSE}, v{DEN+2}, v{DEN+3} offset0:32 offset1:48")
        I(f"ds_write2_b32 v{VSE}, v{NUM}, v{NUM+1} offset0:64 offset1:80")
        I(f"ds_write2_b32 v{VSE}, v{NUM+2}, v{NUM+3} offset0:96 offset1:112")
        I("s_cmp_eq_u32 s74, s72")
        I("s_cbranch_scc1 K_JOIN")
        I(f"v_lshl_add_u64 {vr(VSE,2)}, {vr(VSE,2)}, 0, s[24:25]")
        I(f"ds_read_b128 {vr(DEN,4)}, v{VOOB}")
        I(f"ds_read_b128 {vr(NUM,4)}, v{VOOB}")
        I(f"ds_read_b128 {vr(EA,4)}, v{VSE+1}")
        I("s_waitcnt lgkmcnt(0)")
        L(f"K_FQ{u}")
        I("s_mov_b64 exec, -1")
        I(f"s_branch K_BACK{u}")

    L("K_JOIN")
    I("s_mov_b64 exec, -1")
    stamp(16)
    I("s_cmp_lt_u32 s3, 13")
    I("s_waitcnt lgkmcnt(0)")
    I("s_barrier")
    stamp(17)
    I("s_cbranch_scc0 K_FIN")
    for k in range(3):
        I(f"ds_read_b128 {vr(8+8*k,4)}, v{EP+k}")
    for k in range(3):
        I(f"ds_read_b128 {vr(12+8*k,4)}, v{EP+k} offset:256")
    I("s_cmp_lg_u64 s[48:49], 0")
    I("s_waitcnt lgkmcnt(3)")
    for k in (1, 2):
        for i in range(2):
            I(f"v_pk_add_f32 {vr(8+2*i,2)}, {vr(8+2*i,2)}, {vr(8+8*k+2*i,2)}")
    I("s_waitcnt lgkmcnt(0)")
    for k in (1, 2):
        for i in range(2, 4):
            I(f"v_pk_add_f32 {vr(8+2*i,2)}, {vr(8+2*i,2)}, {vr(8+8*k+2*i,2)}")
    I("s_cbranch_scc1 R_LONG")
    L("K_MATH")
    stamp(26)
    I("v_pk_add_f32 v[8:9], v[8:9], s[18:19]")
    I("v_pk_add_f32 v[10:11], v[10:11], s[18:19]")
    for c in range(4):
        I(f"v_rcp_f32 v{8+c}, v{8+c}")
    I("s_nop 0")
    I(f"v_pk_fma_f32 v[8:9], v[12:13], v[8:9], {vr(UR,2)}")
    I(f"v_pk_fma_f32 v[10:11], v[14:15], v[10:11], {vr(UR+2,2)}")
    for c in range(4):
        I(f"v_max_f32 v{8+c}, 0, v{8+c}")
    I(f"v_pk_add_f32 v[8:9], v[8:9], {vr(XR,2)}")
    I(f"v_pk_add_f32 v[10:11], v[10:11], {vr(XR+2,2)}")
    I("v_cvt_pk_bf16_f32 v12, v8, v9")
    I("v_cvt_pk_bf16_f32 v13, v10, v11")
    stamp(27)
    I(f"buffer_store_dwordx2 v[12:13], v{VOUT}, {sr(S_X,4)}, 0 offen {OPT['osc'].replace('none','').replace('_',' ')}")
    L("K_FIN")
    if OPT["probe"]:
        I("s_or_b32 s64, s2, s3")
        I("s_cmp_eq_u32 s64, 0")
        I("s_cbranch_scc0 PRB_D")
        I("s_load_dwordx2 s[66:67], s[0:1], 88")
        I("s_memrealtime s[98:99]")
        I("s_waitcnt lgkmcnt(0)")
        I(f"v_mov_b32 v8, {hex(CTL_OFF + 0x40000)}")
        I("global_load_dword v9, v8, s[66:67] sc1")
        I("v_mov_b32 v10, 0x13572468")
        I("s_waitcnt vmcnt(0)")
        I("v_readfirstlane_b32 s64, v9")
        I("global_store_dword v8, v10, s[66:67] sc1")
        I("s_cmp_eq_u32 s64, 0x13572468")
        I(f"s_cbranch_scc{OPT['probe']-1} PRB_D")
        L("PRB_W")
        I("s_memrealtime s[90:91]")
        I("s_waitcnt lgkmcnt(0)")
        I("s_sub_u32 s90, s90, s98")
        I("s_cmp_lt_u32 s90, 5000")
        I("s_cbranch_scc1 PRB_W")
        L("PRB_D")
    stamp(18)
    stamp_out()
    L("K_END")
    I("s_endpgm")

    L("R_AREA")
    I(f"global_load_dword v26, v1, {sr(P_DBG,2)} sc1")
    I("s_add_u32 s43, s43, 1")
    I("s_waitcnt vmcnt(0)")
    I("v_readfirstlane_b32 s38, v26")
    I("s_cmp_lg_u32 s38, 0")
    I("s_cbranch_scc1 G_AREA")
    I(f"s_cmp_le_u32 s43, {POLL_LIMIT}")
    I("s_cbranch_scc1 R_AREA")
    I("s_mov_b32 s48, 1")
    I("s_branch G_AREA")
    L("R_PUB2")
    I("s_mov_b64 exec, vcc")
    I(f"ds_read_b128 {vr(C0+8,4)}, v4 offset:{IMG+128}")
    I(f"ds_read_b128 {vr(C0+12,4)}, v4 offset:{IMG+B2+128}")
    I("v_and_b32 v10, 7, v0")
    I(f"v_mul_u32_u24 v10, {3*INC}, v10")
    I(f"v_add_u32 v10, {24*INC}, v10")
    I("s_waitcnt lgkmcnt(0)")
    for b in range(2):
        w3 = C0 + 11 + 4 * b
        I(f"v_and_b32 v{w3}, 0x3f3f3f, v{w3}")
        for j in range(3):
            I(f"v_add_u32 v11, {j*INC}, v10")
            I(f"v_cmp_le_u32 s[70:71], v{8+b}, v11")
            I(f"v_or_b32 v11, {0x3f << (8*j)}, v{w3}")
            I("s_nop 0")
            I(f"v_cndmask_b32 v{w3}, v{w3}, v11, s[70:71]")
    I(f"v_add_u32 v8, {hex(LINE_STRIDE)}, v6")
    I(f"v_add_u32 v9, {hex(LINE_STRIDE)}, v7")
    tagit(C0 + 8)
    tagit(C0 + 12)
    I(f"global_store_dwordx4 v8, {vr(C0+8,4)}, {WS} sc1")
    I(f"global_store_dwordx4 v9, {vr(C0+12,4)}, {WS} sc1")
    I("s_branch A_PUBD")
    retry(RA, True, "B_P0")
    L("R_MORE")
    I("s_cmp_lg_u32 s79, 0")
    I("s_cbranch_scc1 R_REQ")
    if OPT["nol2"]:
        I("s_branch B_RDONE")
    for k in range(4):
        I(f"s_lshr_b32 s{74+k}, s{64+k}, 7")
        I(f"s_and_b32 s{74+k}, s{74+k}, 0x01010101")
        I(f"s_mul_i32 s{74+k}, s{74+k}, 0xff")
    I("s_mov_b64 s[68:69], s[74:75]")
    I("s_mov_b64 s[70:71], s[76:77]")
    I(f"v_add_u32 v2, {hex(LINE_STRIDE)}, v2")
    I(f"v_add_u32 v3, {hex(LINE_STRIDE)}, v3")
    reload(RB, "B_N1")
    poll(RB, False, "B_P1")
    ranks(RB, CB, KB, MB)
    I("s_or_b32 s78, s78, 1")
    more_test()
    I("s_cbranch_scc0 B_RDONE")
    I("s_mov_b32 s79, 1")
    I("s_branch R_REQ")
    retry(RB, False, "B_P1")
    L("R_TIMEOUT")
    I("s_mov_b32 s79, 3")
    for k in range(6):
        I(f"s_mov_b64 s[{MA+2*k}:{MA+2*k+1}], 0")
    I(f"v_mov_b32 v35, v{TG+3}")
    I("v_mov_b32 v33, 0x388000")
    L("R_REQ")
    I("v_mov_b32 v6, s79")
    I(f"ds_or_b32 v1, v6 offset:{FLAG}")
    I("s_branch B_RDONE")
    def bump():
        I(f"s_sub_u32 s71, {hex(CTL_OFF)}, s38")
        I("v_mov_b32 v48, s71")
        I("v_mov_b32 v50, 0x1000000")
        I("v_mov_b32 v51, 0")
        I("s_mov_b64 exec, 1")
        I(f"global_atomic_add_x2 v48, v[50:51], {WS} offset:8 sc1")
        I("s_mov_b64 exec, -1")
    L("R_EXTRA")
    I("s_bitcmp1_b32 s78, 0")
    I("s_cbranch_scc0 R_X2")
    I("s_waitcnt lgkmcnt(0)")
    lookup(CB)
    scatter(RB, CB, KB, MB)
    L("R_X2")
    I("s_bitcmp1_b32 s78, 1")
    I("s_cbranch_scc0 B_XDONE")
    I("s_cmp_eq_u32 s3, 1")
    I("s_cbranch_scc1 R_PAD")
    I("s_add_u32 s71, s66, 1")
    I("v_cvt_f32_u32 v48, s71")
    I("v_cvt_f32_u32 v49, s66")
    I("s_lshl_b32 s73, s67, 2")
    I("s_mul_i32 s71, s71, s73")
    I("v_rcp_f32 v48, v48")
    I("v_rcp_f32 v49, v49")
    I("v_cvt_f32_u32 v50, s71")
    I("v_cvt_f32_u32 v51, s73")
    I("v_fma_f32 v50, -v50, v49, v51")
    I(f"v_mov_b32 v51, {hex(f32(0.125))}")
    def stream_of(dst, src, half):
        I(f"v_cvt_f32_u32 v{dst}, v{src}")
        I(f"v_fma_f32 v{dst}, v{dst}, v51, {half}")
        I(f"v_mul_f32 v52, v{dst}, v48")
        I(f"v_fma_f32 v{dst}, v{dst}, v49, v50")
        I(f"v_max_f32 v{dst}, v{dst}, v52")
        I(f"v_cvt_u32_f32 v{dst}, v{dst}")
    stream_of(53, 3, "-0.5")
    I("s_cmp_eq_u32 s3, 2")
    I("s_cbranch_scc1 R_EPI")
    I("s_cmp_eq_u32 s3, 3")
    I("s_cbranch_scc1 R_FIRST")
    I("v_min_u32 v55, s73, v53")
    I("v_mad_u32_u24 v55, v53, s66, v55")
    I("v_lshrrev_b32 v56, 3, v3")
    I("v_sub_u32 v55, v56, v55")
    I("v_lshlrev_b32 v55, v55, 1")
    I("v_lshlrev_b32 v56, 4, v53")
    I("s_mov_b64 exec, s[82:83]")
    I(f"ds_or_b32 v56, v55 offset:{STR + 8}")
    I("s_mov_b64 exec, -1")
    I("s_branch B_XDONE")
    L("R_FIRST")
    I("v_mov_b32 v54, -1")
    I("v_cndmask_b32 v53, 63, v53, s[82:83]")
    I(f"v_mul_u32_u24 v59, {EAU_STRIDE//4}, v5")
    I(f"v_add_u32 v59, {EAU_OFF}, v59")
    I("v_mov_b32_dpp v54, v53 wave_shr:1 row_mask:0xf bank_mask:0xf")
    I("v_lshl_add_u32 v58, v54, 2, v5")
    I(f"v_mul_i32_i24 v58, {SLOT_STRIDE//4}, v58")
    I(f"v_add_u32 v58, {SLOT_OFF}, v58")
    I("v_lshlrev_b32 v54, 4, v54")
    I("v_lshlrev_b32 v53, 4, v53")
    L("R_FIRST1")
    I("v_cmp_lt_i32 s[74:75], v54, v53")
    I("s_mov_b64 exec, s[74:75]")
    I("s_cbranch_execz R_FIRST2")
    I("v_add_u32 v54, 16, v54")
    I(f"v_add_u32 v58, {SLOT_STRIDE}, v58")
    I(f"ds_write_b64 v54, v[58:59] offset:{STR}")
    I("s_branch R_FIRST1")
    L("R_FIRST2")
    I("s_mov_b64 exec, -1")
    I("s_branch B_XDONE")
    L("R_EPI")
    stream_of(54, 7, "0.5")
    I("v_sub_u32 v59, v53, v54")
    I("v_lshl_add_u32 v56, v54, 2, v5")
    I(f"v_mul_u32_u24 v56, {SLOT_STRIDE//4}, v56")
    I(f"v_add_u32 v56, {SLOT_OFF}, v56")
    I("v_cmp_lt_i32 s[74:75], 0, v59")
    I("v_cmp_lt_i32 s[76:77], 1, v59")
    I(f"v_add_u32 v57, {SLOT_STRIDE}, v56")
    I(f"v_add_u32 v58, {2*SLOT_STRIDE}, v56")
    I(f"v_cndmask_b32 v57, v{VOOB}, v57, s[74:75]")
    I(f"v_cndmask_b32 v58, v{VOOB}, v58, s[76:77]")
    I("v_lshlrev_b32 v55, 2, v5")
    I(f"ds_write_b128 v55, v[56:59] offset:{EPI}")
    I("s_branch B_XDONE")
    L("R_PAD")
    I(f"v_mov_b32 v52, {N}")
    I(f"v_add_u32 v53, {LIST_OFF - 8}, v3")
    I("v_cmp_lt_u32 s[74:75], v6, v2")
    I("s_mov_b64 exec, s[74:75]")
    I("ds_write_b32 v53, v52 offset:4")
    I("v_cmp_eq_u32 s[74:75], 0, v6")
    I("s_mov_b64 exec, s[74:75]")
    I("ds_write_b32 v53, v52")
    I("s_mov_b64 exec, 0x3f")
    I("s_add_u32 s71, s64, s85")
    I("v_add_u32 v53, s71, v5")
    I("ds_write_b32 v53, v52")
    I("s_mov_b64 exec, -1")
    I("s_cmp_eq_u32 s2, 0")
    I("s_cbranch_scc0 B_XDONE")
    bump()
    I("s_branch B_XDONE")
    L("R_FLAGS")
    I("s_add_u32 s43, s43, 1")
    I(f"s_cmp_gt_u32 s43, {POLL_LIMIT}")
    I("s_cbranch_scc1 R_FLAGT")
    I("s_sleep 2")
    I("s_mov_b64 exec, vcc")
    I(f"global_load_dword v35, v34, {WS} sc1")
    I("s_waitcnt vmcnt(0)")
    I(f"v_cmp_ne_u32 vcc, v{TG+3}, v35")
    I("s_mov_b64 exec, -1")
    I("s_branch B_XDONE")
    L("R_FLAGT")
    I("v_mov_b32 v52, 3")
    I(f"ds_or_b32 v1, v52 offset:{FLAG}")
    I("s_branch B_FDONE")
    L("R_LONG")
    I("s_mov_b32 s64, 2")
    I("s_mov_b64 vcc, s[48:49]")
    L("R_LONG1")
    I("s_mov_b64 exec, vcc")
    I(f"v_add_u32 v{EP+2}, {SLOT_STRIDE}, v{EP+2}")
    I(f"ds_read_b128 v[16:19], v{EP+2}")
    I(f"ds_read_b128 v[20:23], v{EP+2} offset:256")
    I("s_add_u32 s64, s64, 1")
    I("s_waitcnt lgkmcnt(0)")
    for i in range(4):
        I(f"v_pk_add_f32 {vr(8+2*i,2)}, {vr(8+2*i,2)}, {vr(16+2*i,2)}")
    I(f"v_cmp_lt_i32 vcc, s64, v{EP+3}")
    I("s_cbranch_vccnz R_LONG1")
    I("s_mov_b64 exec, -1")
    I("s_branch K_MATH")

    L("K_SLOW")
    I("s_load_dwordx8 s[4:11], s[0:1], 0")
    I("s_load_dwordx2 s[12:13], s[0:1], 40")
    I("s_load_dwordx2 s[14:15], s[0:1], 64")
    I("s_setprio 0")
    I("s_waitcnt vmcnt(0) lgkmcnt(0)")
    I("s_cmp_eq_u32 s3, 15")
    I("s_cselect_b32 s71, s80, 0")
    I("s_and_b32 s71, s71, 2")
    I("s_cbranch_scc0 K_SL0")
    bump()
    I("s_waitcnt vmcnt(0)")
    L("K_SL0")
    WB2, WV2 = 40, 72
    I("v_lshrrev_b32 v6, 1, v5")
    I("v_add_u32 v7, 4096, v6")
    for (w, p_) in ((WB2, 12), (WV2, 14)):
        for hf in range(2):
            for k in range(16):
                I(f"global_load_ushort v{w + 16*hf + k}, v{6 + hf}, s[{p_}:{p_+1}] offset:{2*k*128}")
                I(f"global_load_ushort v{8 + k}, v{6 + hf}, s[{p_}:{p_+1}] offset:{(2*k+1)*128}")
            I("s_waitcnt vmcnt(0)")
            for k in range(16):
                I(f"v_lshl_or_b32 v{w + 16*hf + k}, v{8 + k}, 16, v{w + 16*hf + k}")
    for i in range(4):
        I(f"v_mov_b32 v{28+i}, 0")
    I("v_lshlrev_b32 v8, 4, v0")
    for k in range(4):
        I(f"ds_write_b128 v8, v[28:31] offset:{SLOT_OFF + k*16384}")
    I(f"ds_read_u16 v18, v6 offset:{WC_OFF}")
    I(f"s_mov_b32 s18, {hex(f32(1e-6))}")
    I("s_mov_b32 s19, s18")
    I(f"s_mov_b32 s16, {hex(f32(-LOG2E))}")
    I(f"v_lshl_add_u32 v17, v124, 2, v{LC}")
    I("v_lshlrev_b32 v10, 1, v5")
    I("s_waitcnt lgkmcnt(0)")
    I("v_lshlrev_b32 v18, 16, v18")
    I("s_barrier")
    I("v_lshlrev_b32 v8, 2, v0")
    I("v_lshlrev_b32 v9, 1, v0")
    I("s_lshl_b32 s70, s3, 6")
    L("K_SLOOP")
    I(f"global_load_dword v11, v8, {sr(P_DST,2)}")
    I(f"global_load_dword v12, v8, {sr(P_SRC,2)}")
    I(f"global_load_ushort v13, v9, {sr(P_E,2)}")
    I("s_waitcnt vmcnt(0)")
    I("v_and_b32 v14, 0xff, v11")
    I("v_cmp_eq_u32 s[74:75], s2, v14")
    L("K_SIN")
    I("s_cmp_eq_u64 s[74:75], 0")
    I("s_cbranch_scc1 K_SNEXT")
    I("s_ff1_i32_b64 s73, s[74:75]")
    I("s_bitset0_b64 s[74:75], s73")
    I("v_readlane_b32 s79, v11, s73")
    I("v_readlane_b32 s80, v12, s73")
    I("v_readlane_b32 s81, v13, s73")
    I("s_lshr_b32 s79, s79, 8")
    I(f"s_mul_i32 s76, s79, {EAU_STRIDE}")
    I(f"s_add_u32 s76, s76, {EAU_OFF + 512}")
    I(f"s_mul_i32 s79, s79, {ACC_STRIDE}")
    I("s_lshl_b32 s80, s80, 7")
    I("s_add_u32 s78, s80, 64")
    I(f"s_load_dwordx16 s[36:51], {sr(P_X,2)}, s80")
    I(f"s_load_dwordx16 s[52:67], {sr(P_X,2)}, s78")
    I("s_lshl_b32 s81, s81, 16")
    I("v_add_u32 v15, s76, v17")
    I("v_add_u32 v16, s79, v10")
    I("ds_read_b32 v22, v15")
    I("v_mul_f32 v20, s81, v18")
    I("v_mov_b32 v21, 0")
    I("s_waitcnt lgkmcnt(0)")
    for k in range(32):
        I(f"v_dot2_f32_bf16 v20, s{36+k}, v{WB2+k}, v20")
        I(f"v_dot2_f32_bf16 v21, s{36+k}, v{WV2+k}, v21")
    I("s_nop 2")
    I("v_fma_f32 v20, v20, s16, v22")
    I("v_exp_f32 v20, v20")
    I("s_nop 0")
    I("v_add_f32 v20, 1.0, v20")
    I("v_rcp_f32 v20, v20")
    I("s_nop 0")
    I("v_mul_f32 v21, v21, v20")
    I("v_cvt_f64_f32 v[24:25], v20")
    I("v_cvt_f64_f32 v[26:27], v21")
    I(f"ds_add_f64 v16, v[24:25] offset:{SLOT_OFF}")
    I(f"ds_add_f64 v16, v[26:27] offset:{SLOT_OFF + 512}")
    I("s_branch K_SIN")
    L("K_SNEXT")
    I("s_add_u32 s70, s70, 1024")
    I("v_add_u32 v8, 4096, v8")
    I("v_add_u32 v9, 2048, v9")
    I(f"s_cmp_lt_u32 s70, {E}")
    I("s_cbranch_scc1 K_SLOOP")
    I("v_lshrrev_b32 v6, 4, v0")
    I(f"v_mul_u32_u24 v6, {ACC_STRIDE}, v6")
    I(f"v_lshl_add_u32 v6, v{LC}, 1, v6")
    I("s_waitcnt lgkmcnt(0)")
    I("s_barrier")
    I("s_cmp_lt_u32 s3, 13")
    I("s_cbranch_scc0 K_FIN")
    I(f"ds_read_b128 v[16:19], v6 offset:{SLOT_OFF}")
    I(f"ds_read_b128 v[20:23], v6 offset:{SLOT_OFF+16}")
    I(f"ds_read_b128 v[24:27], v6 offset:{SLOT_OFF+512}")
    I(f"ds_read_b128 v[28:31], v6 offset:{SLOT_OFF+528}")
    I("s_waitcnt lgkmcnt(0)")
    for c in range(8):
        I(f"v_cvt_f32_f64 v{8+c}, {vr(16+2*c,2)}")
    I("s_branch K_MATH")
    L("SLOW_END")

hdr = open("standalone__edge_featured_mpnn_gatedgcn__graph.s.ref").read().split("\n")
for line in hdr:
    if line.startswith("; Override"):
        break
    o(line)
o(f"; @launch kernel={KNAME} grid=(256,1,1) block=(1024,1,1) lds={LDS_TOTAL}")
o('.amdgcn_target "amdgcn-amd-amdhsa--gfx950"')
o(".text")
gen()
o('.section .rodata,"a"')
o(".p2align 6")
o(f".amdhsa_kernel {KNAME}")
o("  .amdhsa_next_free_vgpr 128")
o("  .amdhsa_next_free_sgpr 102")
o("  .amdhsa_accum_offset 128")
o("  .amdhsa_group_segment_fixed_size 0")
o("  .amdhsa_kernarg_size 96")
o("  .amdhsa_user_sgpr_count 2")
o("  .amdhsa_user_sgpr_kernarg_segment_ptr 1")
o("  .amdhsa_system_sgpr_workgroup_id_x 1")
o(".end_amdhsa_kernel")
open(sys.argv[1], "w").write("\n".join(out) + "\n")
```

```python
import sys, struct

OPT = dict(stamp=0, sts="2_3_4_5_6_7", force_slow=0, prio="16_8_4", spin=0, spinat=18, hack=0, sleep=2, delay=0,
           codepf=1, gprio=1, pf=0, pf2=0, pre=1, cfirst=0, gbar=0, init1=1, pf3=0, pfw=0, drain=0, pf4=0, tlb=0, gl=1, pf5=1, pfa=1, osc="sc1", w32=0, fw=1, fl=1, dbar=0, wsb=0, pinv=0, nreg=0, inv=0, dsl=1, cmid=0, bsync=0, probe=0, tst=2, pop=1, cad=1, fp="8_3_1", e12=0, nol2=0, amp=0, ampw=0, ampg=-1, ampm=10, esc="none", sup=1, cprio=1, nog=0, gsc="sc1", cut=0, ef=0, fs=4)
for a in sys.argv[2:]:
    k, v = a.split("=")
    OPT[k] = int(v) if v.lstrip("-").isdigit() else v

KNAME = "standalone__edge_featured_mpnn_gatedgcn__graph_kernel"
N = 12500
E = 800000
CHUNK = 3136
TAB_ROWS = N + 1
CTL_OFF = 0xF900000 if OPT["nreg"] else 0x380000
REG_STRIDE = 13 << 20
FLG_OFF = CTL_OFF + 0x10000
CELL_OFF = 0x400000
BIN_STRIDE = 32768 + 256
LINE_STRIDE = 0x900000
STAMP_OFF = 0xF000000
LOG2E = 1.4426950408889634
KEXP = 62
POLL_LIMIT = OPT.get("plim", 100000)

X_OFF = 0
WC_OFF = 8192
C1_OFF = 8448
C2_OFF = 9472
FLAG = C2_OFF + 256
SYNC = C2_OFF + 260
TAGS = C2_OFF + 272
BASE = C2_OFF + 512
STR = C2_OFF + 1024
EPI = C2_OFF + 2048
IMG = C2_OFF + 3072
IMG_STRIDE = 272
EAU_OFF = IMG + 256 * IMG_STRIDE
EAU_STRIDE = 800
W_OFF = EAU_OFF + 52 * EAU_STRIDE
LDS_TOTAL = W_OFF + 32768
LIST_OFF = W_OFF
LIST_MAX = 31 * 16 * 32
SLOT_OFF = IMG
SLOT_STRIDE = 512
ACC_STRIDE = 1056
OOB = 0x30000
assert W_OFF % 128 == 0 and 117 * SLOT_STRIDE <= 256 * IMG_STRIDE and LDS_TOTAL <= 163840
INC = 0x5556

def f32(x):
    return struct.unpack("<I", struct.pack("<f", x))[0]

out = []
def o(s=""):
    out.append(s)
def I(s):
    out.append("    " + s)
def L(s):
    out.append(s + ":")
def vr(a, n=1):
    return f"v{a}" if n == 1 else f"v[{a}:{a+n-1}]"
def sr(a, n=1):
    return f"s{a}" if n == 1 else f"s[{a}:{a+n-1}]"
def sdwa(sel1):
    return f"dst_sel:DWORD dst_unused:UNUSED_PAD src0_sel:DWORD src1_sel:{sel1}"

P_X, P_E, P_SRC, P_DST, P_WA, P_WB, P_WC, P_WU, P_WV, P_OUT, P_DBG, P_WS = 4, 6, 8, 10, 12, 14, 16, 18, 20, 22, 24, 26
S_TAB, S_X = 28, 32
WS = sr(P_WS, 2)

STS = [int(x) for x in str(OPT["sts"]).split("_")] if OPT["stamp"] else []
RTS = {12: 28, 17: 29} if OPT["stamp"] == 2 else {}
def stamp(i):
    if OPT["amp"]:
        if i == 1:
            I("s_memrealtime s[98:99]")
        if i == OPT["amp"]:
            I("s_memrealtime s[96:97]")
        if i == 18:
            I(f"s_cmp_eq_u32 s3, {OPT['ampw']}")
            I("s_cbranch_scc0 AMP_D")
            if OPT["ampg"] >= 0:
                I(f"s_cmp_eq_u32 s2, {OPT['ampg']}")
                I("s_cbranch_scc0 AMP_D")
            I("s_waitcnt lgkmcnt(0)")
            I("s_sub_u32 s96, s96, s98")
            I(f"s_mul_i32 s96, s96, {OPT['ampm']}")
            I("s_add_u32 s96, s96, 3000")
            I("s_min_u32 s96, s96, 100000")
            L("AMP_W")
            I("s_memrealtime s[90:91]")
            I("s_waitcnt lgkmcnt(0)")
            I("s_sub_u32 s90, s90, s98")
            I("s_cmp_lt_u32 s90, s96")
            I("s_cbranch_scc1 AMP_W")
            L("AMP_D")
    if OPT["spin"] and OPT["spinat"] == i:
        lab = f"SPIN_{len(out)}"
        I("s_cselect_b32 s92, 1, 0")
        L(lab)
        I("s_memrealtime s[90:91]")
        I("s_waitcnt lgkmcnt(0)")
        I("s_sub_u32 s90, s90, s98")
        I(f"s_cmp_lt_u32 s90, {OPT['spin']}")
        I(f"s_cbranch_scc1 {lab}")
        I("s_cmp_lg_u32 s92, 0")
    if not OPT["stamp"]:
        return
    if i == 0:
        I("s_memrealtime s[86:87]")
    elif i == 1:
        I("s_memtime s[88:89]")
    elif i in STS:
        k = 90 + 2 * STS.index(i)
        I(f"s_memtime s[{k}:{k+1}]")
        if i in RTS:
            k = 90 + 2 * STS.index(RTS[i])
            I(f"s_memrealtime s[{k}:{k+1}]")
def stamp_out():
    if not OPT["stamp"]:
        return
    I("s_mov_b64 exec, -1")
    I("s_waitcnt vmcnt(0) lgkmcnt(0)")
    I("s_memtime s[80:81]")
    I("s_memrealtime s[82:83]")
    I("s_waitcnt lgkmcnt(0)")
    I("v_writelane_b32 v127, s80, 30")
    I("v_writelane_b32 v127, s82, 31")
    I("v_writelane_b32 v127, s86, 0")
    I("v_writelane_b32 v127, s88, 1")
    for i in list(range(2, 19)) + list(range(20, 30)):
        I(f"v_writelane_b32 v127, s{90 + 2*STS.index(i) if i in STS else 88}, {i}")
    I("s_lshl_b32 s84, s2, 4")
    I("s_add_u32 s84, s84, s3")
    I("s_lshl_b32 s84, s84, 7")
    I(f"s_add_u32 s84, s84, {hex(STAMP_OFF)}")
    I("s_sub_u32 s84, s84, s38")
    I("v_and_b32 v1, 63, v0")
    I("v_lshl_add_u32 v1, v1, 2, s84")
    I("s_mov_b64 exec, 0xffffffff")
    I(f"global_store_dword v1, v127, {WS}")

def srd(d, p, size):
    I(f"s_mov_b64 {sr(d,2)}, {sr(p,2)}")
    I(f"s_mov_b32 s{d+2}, {hex(size)}")
    I(f"s_mov_b32 s{d+3}, 0x20000")

D, S, EE = 16, 20, 24
AP = 104
TG = 120
B2 = 128 * IMG_STRIDE

def edge_loads(lo=0, hi=3):
    ins = [f"global_load_dwordx4 {vr(D,4)}, v10, {sr(P_DST,2)}",
           f"global_load_dwordx4 {vr(S,4)}, v10, {sr(P_SRC,2)}",
           f"global_load_dwordx2 {vr(EE,2)}, v11, {sr(P_E,2)}"]
    for x in ins[lo:hi]:
        I(x + " " + OPT["esc"].replace("none", ""))

def claim():
    op = {1: "global_atomic_or v8, v12", 2: "global_store_dword v8, v12"}[OPT["pop"]]
    I("v_lshlrev_b32 v8, 16, v0")
    I("s_lshl_b32 s64, s2, 8")
    I("v_add_u32 v8, s64, v8")
    I(f"s_mov_b32 exec_hi, {hex((1 << 17) - 1)}")
    I(f"{op}, {WS} sc1")
    I(f"{op}, {WS} offset:128 sc1")
    I("s_mov_b64 exec, -1")

def binning(waits, extra=0, hook=None):
    B4, RK, PA = 28, 32, 36
    I(f"v_mov_b32 v14, {INC}")
    I(f"s_mov_b32 s68, {47*INC}")
    I("s_mov_b32 s69, 0x05040100")
    I("s_mov_b32 s70, 0x07060100")
    if waits:
        I(f"s_waitcnt vmcnt({2+extra})")
        stamp(3)
    for i in range(4):
        I(f"v_lshlrev_b32_sdwa v{B4+i}, 2, v{D+i} {sdwa('BYTE_0')}")
        I(f"ds_add_rtn_u32 v{RK+i}, v{B4+i}, v14 offset:{C1_OFF}")
    for i in range(4):
        I(f"v_mul_u32_u24 v{B4+i}, {IMG_STRIDE//4}, v{B4+i}")
        I(f"v_lshrrev_b32 v{D+i}, 8, v{D+i}")
    for i in range(4):
        I("s_waitcnt lgkmcnt(3)")
        I(f"v_min_u32 v{RK+i}, s68, v{RK+i}")
        I(f"v_lshrrev_b32 v{RK+i}, 14, v{RK+i}")
        I(f"v_lshl_add_u32 v{PA+i}, v{RK+i}, 2, v{B4+i}")
        I(f"v_and_b32 v{RK+i}, 3, v{RK+i}")
        I(f"v_or3_b32 v{RK+i}, v{PA+i}, 12, v{RK+i}")
        I(f"ds_write_b8 v{RK+i}, v{D+i} offset:{IMG}")
    if waits:
        if hook:
            hook()
        else:
            I(f"s_waitcnt vmcnt({extra})")
            stamp(4)
    for i in range(4):
        if OPT["hack"]:
            I(f"v_and_b32 v{S+i}, {OPT['hack']}, v{S+i}")
        I(f"v_perm_b32 v{S+i}, v{EE+(i>>1)}, v{S+i}, s{69+(i&1)}")
        I(f"ds_write_b32 v{PA+i}, v{S+i} offset:{IMG}")

def copy_consts():
    I("s_lshr_b32 s64, s2, 7")
    I("s_lshl_b32 s64, s64, 14")
    I(f"s_add_u32 s64, s64, {hex(CELL_OFF)}")
    I(f"v_mul_u32_u24 v6, {BIN_STRIDE//4}, v5")
    I("v_lshl_add_u32 v6, v0, 4, v6")
    I("v_add_u32 v6, s64, v6")
    I(f"v_add_u32 v7, {128*BIN_STRIDE}, v6")
    I(f"s_mul_i32 s64, s2, {BIN_STRIDE}")
    I(f"s_add_u32 s64, s64, {hex(CELL_OFF)}")
    I("v_lshl_add_u32 v2, v0, 4, s64")
    I("v_add_u32 v3, 0x4000, v2")
    I("s_mov_b32 s36, 0x0f0f0f0f")
    I("s_mov_b32 s37, s36")
    if OPT["w32"] == 2:
        I("v_mov_b32 v102, 0")
    elif OPT["w32"]:
        I("v_bfe_u32 v102, v0, 1, 2")
        I("v_bfe_u32 v103, v0, 2, 1")
        I(f"v_mul_u32_u24 v102, {6*INC}, v102")
        I("v_mul_u32_u24 v102, v102, v103")
    else:
        I("v_bfe_u32 v102, v0, 2, 1")
        I(f"v_mul_u32_u24 v102, {12*INC}, v102")
    I(f"s_mov_b32 s39, {24*INC}")
    I("s_mov_b32 s40, 0xc000")
    I("s_mov_b32 s41, 0xffc0c0c0")
    I(f"s_mov_b32 s42, {49 << 16}")
    I("s_mov_b32 s43, 0")
    if not OPT["nreg"]:
        I("s_mov_b32 s38, 0")
    I("v_mov_b32 v1, 0")
    I(f"s_mov_b32 s{S_TAB+2}, {0 if OPT['nog'] else TAB_ROWS}")
    I(f"s_mov_b32 s{S_TAB+3}, 0x20000")

def lds_init_addr():
    I("v_add_u32 v5, s2, v3")
    I("v_and_b32 v5, 127, v5")
    I(f"v_mul_u32_u24 v4, {IMG_STRIDE}, v5")
    I("v_lshl_add_u32 v4, v2, 4, v4")
    I("v_lshlrev_b32 v5, 2, v5")
    I("v_mov_b32 v12, 0")
    I("v_mov_b32 v13, 0x3f3f3f")
def lds_init():
    I(f"ds_write2st64_b32 v5, v12, v12 offset0:{C1_OFF//256} offset1:{C1_OFF//256+2}")
    for b in range(2):
        I(f"ds_write_b32 v4, v13 offset:{IMG + b*B2 + 12}")
def edge_addr():
    I(f"s_mul_i32 s64, s2, {CHUNK*4}")
    I("v_lshl_add_u32 v10, v0, 4, s64")
    I("v_lshrrev_b32 v11, 1, v10")

def gen():
    o(".p2align 8")
    o(f".globl {KNAME}")
    o(f".type {KNAME},@function")
    L(KNAME)
    I("s_cmp_ge_u32 s2, 256")
    I("s_cbranch_scc1 K_END")
    stamp(0); stamp(1)
    I("s_load_dwordx16 s[4:19], s[0:1], 0")
    I("s_load_dwordx8 s[20:27], s[0:1], 64")
    if OPT["spin"]:
        I("s_memrealtime s[98:99]")
    if OPT["codepf"]:
        I("s_getpc_b64 s[64:65]")
        L("A_PC")
        I("v_lshlrev_b32 v8, 7, v0")
        I("v_cmp_gt_u32 vcc, K_SLOW-A_PC, v8")
        I("s_and_b64 exec, exec, vcc")
        I("s_cbranch_execz A_NOPF")
        I("global_load_dword v27, v8, s[64:65]")
        L("A_NOPF")
        I("s_mov_b64 exec, -1")
    I("v_lshrrev_b32 v1, 6, v0")
    I("v_and_b32 v2, 7, v0")
    I("v_readfirstlane_b32 s3, v1")
    I("v_lshrrev_b32 v3, 3, v0")
    I("s_cmp_ge_u32 s3, 12")
    I("s_cbranch_scc0 E_ALL")
    XA, FA, FB, ACC1, ACC2 = 28, 36, 68, 104, 36
    I("s_setprio 3")
    if OPT["nreg"]:
        I("s_memrealtime s[70:71]")
    if OPT["inv"]:
        I({1: "buffer_inv sc1", 2: "buffer_inv sc0 sc1"}[OPT["inv"]])
    I("v_and_b32 v7, 7, v3")
    I("s_and_b32 s64, s3, 1")
    I("s_lshl_b32 s64, s64, 2")
    I("v_and_b32 v8, 2, v7")
    I("v_xor_b32 v8, v8, v2")
    I("v_xor_b32 v8, s64, v8")
    I("v_lshlrev_b32 v8, 4, v8")
    I("v_lshl_add_u32 v8, v7, 7, v8")
    I("s_and_b32 s78, s3, 3")
    I("s_lshl_b32 s78, s78, 11")
    I("v_add_u32 v126, s78, v8")
    I(f"s_add_u32 s78, s78, {W_OFF}")
    I("s_add_u32 s66, s3, 3")
    I("s_and_b32 s66, s66, 3")
    I("v_xor_b32 v9, v2, v7")
    I("v_lshlrev_b32 v9, 4, v9")
    I("v_lshl_add_u32 v9, v7, 15, v9")
    I("s_lshl_b32 s67, s66, 19")
    I("s_lshl_b32 s68, s2, 7")
    I("s_add_u32 s67, s67, s68")
    I("v_add_u32 v9, s67, v9")
    I("v_add_u32 v15, 0x40000, v9")
    I("s_lshl_b32 s67, s66, 11")
    I(f"s_mov_b32 s{S_X+2}, {N*128}")
    I(f"s_mov_b32 s{S_X+3}, 0x20000")
    I("s_mov_b32 m0, s67")
    I("s_or_b32 s64, s2, s66")
    I("s_waitcnt lgkmcnt(0)")
    stamp(24)
    if OPT["nreg"]:
        I("s_cbranch_scc1 G_NOPICK")
        I("s_bfe_u32 s70, s70, 0x40003")
        I("s_add_u32 s70, s70, 1")
        I("v_mov_b32 v12, s70")
        I("v_mov_b32 v13, 0")
        I("s_mov_b64 exec, 1")
        I(f"global_atomic_cmpswap v13, v[12:13], {sr(P_DBG,2)} sc1")
        I("s_mov_b64 exec, -1")
        L("G_NOPICK")
    I(f"s_mov_b64 {sr(S_X,2)}, {sr(P_X,2)}")
    I(f"buffer_load_dwordx4 v9, {sr(S_X,4)}, 0 offen lds")
    I("s_add_u32 m0, s67, 1024")
    I("s_nop 0")
    I(f"buffer_load_dwordx4 v15, {sr(S_X,4)}, 0 offen lds")
    def w_dma(p, off, va="v126", sd="s78"):
        I(f"s_add_u32 m0, {sd}, {off}")
        I("s_nop 0")
        I(f"global_load_lds_dwordx4 {va}, {sr(p,2)}")
        I(f"global_load_lds_dwordx4 {va}, {sr(p,2)} offset:1024")
    w_dma(P_WB, 0)
    w_dma(P_WV, 8192)
    L("E_ALL")
    edge_addr()
    I(f"v_cmp_gt_u32 vcc, {CHUNK//4}, v0")
    I("s_mov_b64 s[74:75], vcc")
    I(f"v_cmp_gt_u32 vcc, {E*4}, v10")
    I("s_and_b64 s[74:75], s[74:75], vcc")
    I("s_mov_b32 s79, 0")
    if OPT["dsl"] == 2:
        I("s_waitcnt lgkmcnt(0)")
    lds_init_addr()
    if OPT["dsl"] == 1:
        I("s_waitcnt lgkmcnt(0)")
    lds_init()
    if OPT["dsl"] == 0:
        I("s_waitcnt lgkmcnt(0)")
    stamp(25)
    I("s_mov_b64 exec, s[74:75]")
    I("s_cbranch_execz E_NOD")
    edge_loads(0, OPT["pre"])
    L("E_NOD")
    I("s_mov_b64 exec, -1")
    I("s_cmp_ge_u32 s3, 2")
    I("s_cbranch_scc1 E_NOZ")
    I("v_lshlrev_b32 v8, 4, v0")
    I("v_mov_b64 v[28:29], 0")
    I("v_mov_b64 v[30:31], 0")
    I(f"ds_write_b128 v8, v[28:31] offset:{C2_OFF}")
    L("E_NOZ")
    if OPT["cmid"]:
        copy_consts()
    else:
        I("s_waitcnt lgkmcnt(0)")
        I("s_barrier")
    I("s_mov_b64 exec, s[74:75]")
    I("s_cbranch_execz E_NOS")
    edge_loads(OPT["pre"], 3)
    L("E_NOS")
    I("s_mov_b64 exec, -1")
    if not OPT["cmid"]:
        copy_consts()
    I("s_cmp_ge_u32 s3, 12")
    I("s_cbranch_scc1 G_MAIN")
    if OPT["cmid"]:
        I("s_waitcnt lgkmcnt(0)")
        I("s_barrier")
    stamp(2)
    I("s_cmp_eq_u32 s3, 1")
    I("s_cbranch_scc0 A_NOEP")
    I(f"s_add_u32 s70, s{P_WS}, {hex(CTL_OFF)}")
    I(f"s_addc_u32 s71, s{P_WS+1}, 0")
    I("s_load_dwordx2 s[72:73], s[70:71], 8")
    if OPT["fw"]:
        I(f"s_lshl_b32 s76, s2, {OPT['fs']}")
        I(f"s_add_u32 s76, s76, {hex(FLG_OFF - CTL_OFF)}")
        I("s_load_dword s77, s[70:71], s76")
    L("A_NOEP")
    if OPT["bsync"] and not OPT["cmid"]:
        I("s_barrier")
    I("s_mov_b64 exec, s[74:75]")
    I("s_cbranch_execz A_NOBIN")
    binning(True)
    L("A_NOBIN")
    I("s_mov_b64 exec, -1")
    I("s_cmp_eq_u32 s3, 1")
    I("s_cbranch_scc0 A_JOIN")
    I("s_waitcnt lgkmcnt(0)")
    I("s_add_u32 s72, s72, 0x1000000")
    I("s_addc_u32 s73, s73, 0")
    I("s_and_b32 s72, s72, 0xff000000")
    for k in range(3):
        I(f"s_bfe_u32 s64, s73, {hex((2 << 16) | (2*k))}")
        I(f"s_lshl_b32 s64, s64, {6 + 8*k}")
        I("s_or_b32 s72, s72, s64")
        I(f"s_bfe_u32 s64, s73, {hex((2 << 16) | (6 + 2*k))}")
        I("s_lshl_b32 s64, s64, 14")
        I(f"v_mov_b32 v{TG+k}, s64")
    I(f"v_mov_b32 v{TG+3}, s72")
    I(f"ds_write_b128 v1, {vr(TG,4)} offset:{TAGS}")
    I("s_branch A_JOIN")

    L("G_MAIN")
    I("s_mov_b32 s48, 0")
    I(f"s_mov_b32 s{S_X+3}, 0x20000")
    I("v_and_b32 v126, 0x1bf0, v126")
    I("v_and_b32 v100, 7, v0")
    I("v_lshlrev_b32 v100, 4, v100")
    I(f"s_mov_b32 s{S_X+2}, {TAB_ROWS*256}")
    I("v_and_b32 v124, 15, v0")
    I("v_bfe_u32 v125, v0, 4, 2")
    I("v_and_b32 v8, 7, v124")
    I("v_lshlrev_b32 v9, 1, v125")
    I("v_xor_b32 v8, v8, v9")
    I("v_lshlrev_b32 v8, 4, v8")
    I("v_lshl_add_u32 v8, v124, 7, v8")
    I("v_add_u32 v8, s67, v8")
    I("v_xor_b32 v9, 16, v8")
    I("v_lshrrev_b32 v10, 2, v124")
    I("v_and_b32 v11, 2, v10")
    I("v_bfe_u32 v12, v0, 1, 1")
    I("v_or_b32 v11, v11, v12")
    I("v_and_b32 v12, 1, v125")
    I("v_lshl_or_b32 v11, v12, 2, v11")
    I("v_lshlrev_b32 v11, 4, v11")
    I("v_and_b32 v12, 1, v0")
    I("v_lshl_or_b32 v11, v12, 3, v11")
    I("v_lshl_add_u32 v10, v125, 4, v10")
    I("v_lshl_or_b32 v11, v10, 7, v11")
    I(f"v_add_u32 v12, {W_OFF}, v11")
    for T in range(1, 4):
        I(f"v_xor_b32 v{12+T}, {T << 5}, v12")
    I(f"s_mov_b32 s76, {hex(f32(-LOG2E))}")
    I("s_mov_b32 s77, 0x07060302")
    I(f"v_mov_b32 v26, {hex(f32(2.0**-70))}")
    I("s_lshl_b32 s64, s66, 20")
    I("s_lshl_b32 s65, s2, 8")
    I("s_add_u32 s64, s64, s65")
    I("v_lshlrev_b32 v27, 18, v125")
    I("v_lshl_add_u32 v27, v124, 4, v27")
    I("v_add_u32 v27, s64, v27")
    I("v_mov_b32 v10, 1")
    def g_sync(target, lab, arrive=True):
        if arrive:
            I("s_mov_b64 exec, 1")
            I(f"ds_add_u32 v1, v10 offset:{SYNC}")
            I("s_mov_b64 exec, -1")
        L(lab)
        I(f"ds_read_b32 v11, v1 offset:{SYNC}")
        I("s_waitcnt lgkmcnt(0)")
        I("v_readfirstlane_b32 s64, v11")
        I(f"s_cmp_lt_u32 s64, {target}")
        I(f"s_cbranch_scc1 {lab}")
    def frag_reads(F, moff):
        for T in range(4):
            for s in range(2):
                for h in range(2):
                    I(f"ds_read_b64_tr_b16 {vr(F + 8*T + 4*s + 2*h, 2)}, v{12+T} offset:{moff + (8*s+4*h)*128}")
    def mfmas(F, acc, swap, later):
        for T in range(4):
            I(f"s_waitcnt lgkmcnt({min(15, later + 4*(3-T))})")
            for s in range(2):
                a, b = vr(XA + 4*s, 4), vr(F + 8*T + 4*s, 4)
                if swap:
                    a, b = b, a
                c = "0" if s == 0 else vr(acc + 4*T, 4)
                I(f"v_mfma_f32_16x16x32_bf16 {vr(acc+4*T,4)}, {a}, {b}, {c}")
    if OPT["cmid"]:
        I("s_waitcnt lgkmcnt(0)")
        if not OPT["bsync"]:
            I("s_barrier")
    stamp(2)
    I("s_cmp_eq_u64 s[74:75], 0")
    I("s_cbranch_scc1 G_W0")
    I("s_waitcnt vmcnt(3)")
    I("s_branch G_W1")
    L("G_W0")
    I("s_waitcnt vmcnt(0)")
    L("G_W1")
    stamp(3)
    if OPT["bsync"]:
        I("s_barrier")
    else:
        g_sync(4, "G_S1")
    stamp(20)
    if OPT["nreg"]:
        I(f"s_load_dword s38, {sr(P_DBG,2)}, 0")
    I(f"ds_read_b128 {vr(XA,4)}, v8")
    I(f"ds_read_b128 {vr(XA+4,4)}, v9")
    frag_reads(FA, 0)
    frag_reads(FB, 8192)
    stamp(21)
    w_dma(P_WA, 16384, "v126", "s78")
    w_dma(P_WU, 24576, "v126", "s78")
    I("s_cmp_eq_u32 s3, 13")
    I("s_cbranch_scc0 G_NOWC")
    I(f"s_mov_b32 m0, {WC_OFF}")
    I("s_mov_b64 exec, 0xff")
    I(f"global_load_lds_dwordx4 v100, {sr(P_WC,2)}")
    I("s_mov_b64 exec, -1")
    L("G_NOWC")
    stamp(22)
    mfmas(FA, ACC1, False, 16)
    mfmas(FB, ACC2, False, 0)
    stamp(23)
    ACCB, ACCV, OUTR = ACC1, ACC2, FB
    SD = sdwa("WORD_1")
    I("s_mov_b32 s80, 0x8000")
    I("s_mov_b32 s81, 0x8000")
    I(f"s_mov_b32 s68, {hex(f32(2.0**-100))}")
    I("s_mov_b32 s69, s68")
    I("v_mov_b32 v10, v26")
    I("v_mov_b32 v11, v26")
    I("s_nop 1")
    for rp in (0, 2):
        for t in range(4):
            I(f"v_pk_fma_f32 {vr(ACCB+4*t+rp,2)}, {vr(ACCB+4*t+rp,2)}, s[76:77], v[10:11] op_sel_hi:[1,0,1]")
        for t in (1, 3):
            I(f"v_pk_add_f32 {vr(ACCV+4*t+rp,2)}, {vr(ACCV+4*t+rp,2)}, s[68:69]")
        for t in range(4):
            I(f"v_lshl_add_u64 {vr(ACCB+4*t+rp,2)}, {vr(ACCB+4*t+rp,2)}, 0, s[80:81]")
        for t in range(4):
            I(f"v_lshl_add_u64 {vr(ACCV+4*t+rp,2)}, {vr(ACCV+4*t+rp,2)}, 0, s[80:81]")
        for r in (rp, rp + 1):
            for t in (0, 2):
                I(f"v_sub_u32_sdwa v{ACCB+4*t+r}, v{ACCB+4*t+r}, v{ACCV+4*t+r} clamp {SD}")
            for t in (0, 2):
                I(f"v_sub_u32_sdwa v{ACCV+4*(t+1)+r}, v{ACCV+4*(t+1)+r}, v{ACCB+4*t+r} clamp {SD}")
            for t in (0, 2):
                I(f"v_sub_u32_sdwa v{ACCB+4*(t+1)+r}, v{ACCB+4*(t+1)+r}, v{ACCV+4*(t+1)+r} clamp {SD}")
            for t in range(4):
                I(f"v_perm_b32 v{OUTR+4*r+t}, v{ACCB+4*t+r}, v{ACCV+4*t+r}, s77")
            if r == 0:
                if OPT["nreg"]:
                    I("s_cmp_eq_u32 s38, 0")
                    I("s_cbranch_scc1 R_AREA")
                    L("G_AREA")
                    I(f"s_and_b32 s38, s38, {OPT['nreg']-1}")
                    I(f"s_mul_i32 s38, s38, {REG_STRIDE}")
                    I(f"s_add_u32 s{S_X}, s{P_WS}, s38")
                    I(f"s_addc_u32 s{S_X+1}, s{P_WS+1}, 0")
                    I("v_mov_b32 v26, s38")
                    I(f"ds_write_b32 v1, v26 offset:{TAGS+16}")
                else:
                    I(f"s_mov_b64 {sr(S_X,2)}, {WS}")
                I("s_cmp_eq_u32 s3, 12")
                I("s_cbranch_scc1 G_T3")
            elif OPT["tst"] == 2:
                I("v_add_u32 v27, 0x10000, v27")
            if OPT["tst"] == 2:
                I(f"buffer_store_dwordx4 {vr(OUTR+4*r,4)}, v27, {sr(S_X,4)}, 0 offen sc1")

    stamp(4)
    L("G_BVD")
    I(f"s_waitcnt vmcnt({4 if OPT['tst'] == 2 else 0})")
    I("s_branch G_DONE")
    L("G_T3")
    I("s_cmp_eq_u32 s2, 212")
    I("s_cbranch_scc0 G_NODUM")
    for t in range(4):
        I(f"v_mov_b32 v{OUTR+t}, 0x7f000000")
    L("G_NODUM")
    if OPT["tst"] == 2:
        I(f"buffer_store_dwordx4 {vr(OUTR,4)}, v27, {sr(S_X,4)}, 0 offen sc1")
    I(f"s_waitcnt vmcnt({5 if OPT['tst'] == 2 else 4})")
    I("s_mov_b64 exec, s[74:75]")
    I("s_cbranch_execz G_NOBIN")
    I("v_mov_b32 v126, v14")
    binning(False)
    I("v_mov_b32 v14, v126")
    L("G_NOBIN")
    I("s_mov_b64 exec, -1")
    I(f"ds_read_b128 {vr(XA,4)}, v8")
    I(f"ds_read_b128 {vr(XA+4,4)}, v9")
    stamp(4)
    I(f"s_waitcnt vmcnt({1 if OPT['tst'] == 2 else 0})")
    L("G_DONE")
    if OPT["drain"]:
        I("s_waitcnt vmcnt(0)")
    if OPT["gprio"] and not OPT["cprio"]:
        I("s_setprio 0")
    stamp(5)

    L("A_JOIN")
    if OPT["cprio"]:
        I("s_setprio 3")
    I("s_waitcnt lgkmcnt(0)")
    stamp(6)
    I("s_barrier")
    stamp(7)
    C0 = 68 if OPT["tst"] == 2 else 48
    if OPT["nreg"]:
        I(f"ds_read_b32 v11, v1 offset:{TAGS+16}")
    I(f"ds_read_b128 {vr(TG,4)}, v1 offset:{TAGS}")
    I(f"ds_read2st64_b32 v[8:9], v5 offset0:{C1_OFF//256} offset1:{C1_OFF//256+2}")
    I(f"ds_read_b128 {vr(C0,4)}, v4 offset:{IMG}")
    I(f"ds_read_b128 {vr(C0+4,4)}, v4 offset:{IMG+B2}")
    def tagit(c):
        for k in range(3):
            I(f"v_bfi_b32 v{c+k}, s40, v{TG+k}, v{c+k}")
        I(f"v_or_b32 v{c+3}, v{TG+3}, v{c+3}")
    I("s_waitcnt lgkmcnt(2)")
    if OPT["nreg"]:
        I("v_readfirstlane_b32 s38, v11")
    I("v_cmp_le_u32 s[72:73], v102, v8")
    I("v_cmp_le_u32 s[74:75], v102, v9")
    I("v_max_u32 v10, v8, v9")
    I("v_cmp_le_u32 vcc, s39, v10")
    if OPT["nreg"]:
        I(f"s_add_u32 s{P_WS}, s{P_WS}, s38")
        I(f"s_addc_u32 s{P_WS+1}, s{P_WS+1}, 0")
    def table_stores(lab):
        I(f"s_mov_b64 {sr(S_X,2)}, {WS}")
        I(f"buffer_store_dwordx4 {vr(OUTR,4)}, v27, {sr(S_X,4)}, 0 offen sc1")
        I("s_cmp_eq_u32 s3, 12")
        I(f"s_cbranch_scc1 {lab}")
        for r in range(1, 4):
            I("v_add_u32 v27, 0x10000, v27")
            I(f"buffer_store_dwordx4 {vr(OUTR+4*r,4)}, v27, {sr(S_X,4)}, 0 offen sc1")
        L(lab)
    if OPT["tst"] == 1:
        I("s_cmp_ge_u32 s3, 12")
        I("s_cbranch_scc0 A_TSD")
        table_stores("A_TSD")
    def cell_store(k):
        I(f"s_mov_b64 exec, s[{72+2*k}:{73+2*k}]")
        I(f"global_store_dwordx4 v{6+k}, {vr(C0+4*k,4)}, {WS} sc1")
    if OPT["gl"]:
        I("s_cmp_ge_u32 s3, 12")
        I("s_waitcnt lgkmcnt(1)")
        tagit(C0)
        I("s_cbranch_scc1 A_GL1")
        cell_store(0)
        I("s_mov_b64 exec, -1")
        L("A_GL1")
        I("s_waitcnt lgkmcnt(0)")
        tagit(C0 + 4)
        I("s_cbranch_scc1 A_GL2")
        cell_store(1)
        L("A_GL2")
    else:
        I("s_waitcnt lgkmcnt(1)")
        tagit(C0)
        cell_store(0)
        I("s_mov_b64 exec, s[74:75]")
        I("s_waitcnt lgkmcnt(0)")
        tagit(C0 + 4)
        I(f"global_store_dwordx4 v7, {vr(C0+4,4)}, {WS} sc1")
    I("s_cbranch_vccnz R_PUB2")
    L("A_PUBD")
    I("s_mov_b64 exec, -1")
    if OPT["cprio"]:
        I("s_setprio 0")
    stamp(8)
    I("s_cmp_ge_u32 s3, 12")
    I("s_cbranch_scc0 B_NOAU")
    if OPT["tst"] == 0:
        table_stores("A_TSD")
    I("s_mov_b32 s84, s66")
    I("s_setprio 1")
    FU, FW, UU = 36, 84, 52
    def half_gemm(moff, acc, swap):
        for T in range(4):
            F = (FU if T < 2 else FW) + 8 * (T & 1)
            for s in range(2):
                for h in range(2):
                    I(f"ds_read_b64_tr_b16 {vr(F + 4*s + 2*h, 2)}, v{12+T} offset:{moff + (8*s+4*h)*128}")
        for T in range(4):
            F = (FU if T < 2 else FW) + 8 * (T & 1)
            I(f"s_waitcnt lgkmcnt({4*(3-T)})")
            for s in range(2):
                a, b = vr(XA + 4*s, 4), vr(F + 4*s, 4)
                if swap:
                    a, b = b, a
                c = "0" if s == 0 else vr(acc + 4*T, 4)
                I(f"v_mfma_f32_16x16x32_bf16 {vr(acc+4*T,4)}, {a}, {b}, {c}")
    half_gemm(16384, AP, False)
    def flag_store():
        I(f"s_lshl_b32 s64, s2, {OPT['fs']-2}")
        I("s_add_u32 s64, s64, s84")
        I("s_lshl_b32 s64, s64, 2")
        I(f"s_add_u32 s64, s64, {hex(FLG_OFF)}")
        I("s_sub_u32 s64, s64, s38")
        I("v_mov_b32 v26, s64")
        I(f"v_xor_b32 v25, s48, v{TG+3}")
        I("s_mov_b64 exec, 1")
        I(f"global_store_dword v26, v25, {WS} sc1")
        I("s_mov_b64 exec, -1")
    if OPT["tst"] == 2:
        I(f"s_waitcnt vmcnt({0 if OPT['gl'] else 2})")
        stamp(29)
        if OPT["gl"]:
            cell_store(0)
            cell_store(1)
            I("s_mov_b64 exec, -1")
        flag_store()
    half_gemm(24576, UU, True)
    I(f"s_mul_i32 s65, s66, {16*EAU_STRIDE}")
    I(f"s_add_u32 s65, s65, {EAU_OFF}")
    I(f"v_mul_u32_u24 v26, {4*EAU_STRIDE}, v125")
    I("v_lshl_add_u32 v26, v124, 4, v26")
    I("v_add_u32 v25, s65, v26")
    I(f"v_mul_u32_u24 v27, {EAU_STRIDE}, v124")
    I("v_lshl_add_u32 v27, v125, 4, v27")
    I("v_add_u32 v27, s65, v27")
    for i in range(16):
        I(f"v_mul_f32 v{AP+i}, s76, v{AP+i}")
    I("s_cmp_eq_u32 s3, 12")
    I("s_cselect_b32 exec_lo, 0x000f000f, -1")
    I("s_cselect_b32 exec_hi, 0x000f000f, -1")
    for T in range(4):
        I(f"ds_write_b128 v27, {vr(UU+4*T,4)} offset:{256 + T*64}")
    I("s_cselect_b32 exec_hi, 0, -1")
    I("s_cselect_b32 exec_lo, 0xffff, -1")
    I(f"v_max3_f32 v26, |v{AP}|, |v{AP+1}|, |v{AP+2}|")
    for i in range(3, 15, 2):
        I(f"v_max3_f32 v26, |v{AP+i}|, |v{AP+i+1}|, v26")
    I(f"v_max_f32 v26, |v{AP+15}|, v26")
    I(f"v_cmp_nge_f32 vcc, {hex(f32(63.0))}, v26")
    EAT = 36
    for r in range(4):
        for t in range(4):
            I(f"v_add_f32 v{EAT+4*r+t}, {hex(f32(-float(KEXP)))}, v{AP+4*t+r}")
        for t in range(4):
            I(f"ds_write_b32 v25, v{AP+4*t+r} offset:{r*EAU_STRIDE + 512 + 4*t}")
            I(f"v_exp_f32 v{EAT+4*r+t}, v{EAT+4*r+t}")
        I("s_nop 0")
        I(f"ds_write_b128 v25, {vr(EAT+4*r,4)} offset:{r*EAU_STRIDE}")
        if r == 0:
            I("s_cbranch_scc1 G_EAD")
    L("G_EAD")
    I("s_mov_b64 exec, -1")
    I("s_cmp_lg_u64 vcc, 0")
    I("s_cselect_b32 s79, 1, 0")
    if OPT["cad"]:
        I("s_branch B_CONST")
    L("B_NOAU")
    if OPT["cad"]:
        I("s_waitcnt vmcnt(0)")
    L("B_CONST")

    RA, CA, KA, RB, CB, KB = 8, 24, 36, 64, 72, 78
    XB, Y, A = 48, 80, 100
    IP = (96, 98, 104, 106)
    UR, XR, VOUT, VU, LP, EP = 108, 112, 116, 117, 118, 120
    WCB, DEN, NUM, VOOB, C4, VRA, VSE, EA, P, Q, SS, LC = 16, 20, 44, 30, 31, 42, 32, 12, 24, 8, 36, 4
    I(f"s_mov_b32 s{S_TAB}, s{P_WS}")
    I(f"s_or_b32 s{S_TAB+1}, s{P_WS+1}, 0x1000000")
    I("v_and_b32 v5, 63, v0")
    I("s_cmp_lt_u32 s2, 212")
    I("s_cselect_b32 s64, 49, 48")
    I("v_cmp_gt_u32 s[82:83], s64, v5")
    I("v_lshlrev_b32 v5, 2, v5")
    I(f"v_and_b32 v{LC}, 15, v0")
    I(f"v_lshlrev_b32 v6, 1, v{LC}")
    for j in range(4):
        I(f"ds_read_u16 v{WCB+j}, v6 offset:{WC_OFF + 32*j}")
    I(f"v_lshlrev_b32 v{LC}, 4, v{LC}")
    I(f"v_mov_b32 v{C4}, 4")
    I(f"v_mov_b32 v{VOOB}, {OOB}")
    for p_ in IP:
        I(f"v_mov_b32 v{p_+1}, v{LC}")
    I(f"v_lshlrev_b32 v{LP}, 1, v6")
    I(f"v_mov_b32 v{LP+1}, v{LC}")
    I("v_lshrrev_b32 v7, 4, v0")
    I(f"v_mul_u32_u24 v{VU}, {EAU_STRIDE}, v7")
    I(f"s_mov_b32 s64, {EAU_OFF + 256}")
    I(f"v_add3_u32 v{VU}, v{VU}, s64, v{LC}")
    I("v_lshlrev_b32 v8, 2, v6")
    I("v_and_b32 v9, 0x70, v0")
    I("v_xor_b32 v9, v8, v9")
    I("v_lshl_add_u32 v9, v7, 7, v9")
    I(f"ds_read_b64 {vr(XR+2,2)}, v9 offset:{X_OFF}")
    I(f"v_lshl_add_u32 v{VOUT}, v7, 15, v8")
    I("s_lshl_b32 s64, s2, 7")
    I(f"v_add_u32 v{VOUT}, s64, v{VOUT}")
    srd(S_X, P_OUT, N * 128)
    for d in range(0, 4, 2):
        I(f"v_mov_b64 {vr(A+d,2)}, 0")
        I(f"v_mov_b64 {vr(DEN+d,2)}, 0")
        I(f"v_mov_b64 {vr(NUM+d,2)}, 0")
    I("s_mov_b64 s[68:69], -1")
    I("s_mov_b64 s[70:71], -1")
    I("s_cmp_lt_u32 s3, 4")
    I("s_cselect_b32 s78, 2, 0")
    I(f"s_mov_b32 s16, {hex(f32(2.0**-KEXP))}")
    I("s_mov_b32 s17, s16")
    I(f"s_mov_b32 s18, {hex(f32(1e-6 * 2.0**KEXP))}")
    I("s_mov_b32 s19, s18")
    I("s_mov_b32 s20, 32")
    I("s_mov_b32 s21, 32")
    I(f"s_mov_b32 s24, {SLOT_STRIDE}")
    I(f"s_mov_b32 s25, {EAU_STRIDE}")
    I(f"s_mov_b32 s85, {LIST_OFF}")
    I("s_mov_b32 s56, 0x11111111")
    I("s_mov_b32 s57, s56")
    I("s_lshl_b64 s[58:59], s[56:57], 1")
    I("s_lshl_b64 s[60:61], s[56:57], 2")
    I("s_lshl_b64 s[62:63], s[56:57], 3")
    I("v_bfe_u32 v124, v0, 4, 2")
    I("v_bfe_u32 v125, v0, 5, 1")
    I("v_bfe_u32 v126, v0, 2, 1")
    I("v_lshl_add_u32 v125, v126, 1, v125")
    I("v_bfe_u32 v126, v0, 3, 2")
    I("v_lshlrev_b32 v126, 2, v126")
    I("v_bfe_u32 v34, v0, 2, 3")
    I("s_lshl_b32 s64, s3, 3")
    I("s_sub_u32 s64, s2, s64")
    I("v_sub_u32 v34, s64, v34")
    I("v_and_b32 v34, 127, v34")
    I("v_and_b32 v35, 32, v0")
    I("v_lshl_add_u32 v34, v35, 2, v34")
    I("v_and_b32 v35, 3, v0")
    if OPT["pf"] or OPT["pf2"] or OPT["pf3"] or OPT["pf4"]:
        I("v_lshlrev_b32 v33, 8, v34")
        I("v_lshl_add_u32 v33, v35, 20, v33")
        I("s_lshr_b32 s64, s2, 4")
        I("s_lshl_b32 s64, s64, 16")
        I("s_bfe_u32 s65, s2, 0x10003")
        I("s_lshl_b32 s65, s65, 7")
        I("s_add_u32 s64, s64, s65")
        I("v_add_u32 v33, s64, v33")
    if OPT["pf5"]:
        I("v_lshlrev_b32 v33, 8, v34")
        I("v_and_b32 v32, 1, v35")
        I("v_lshl_add_u32 v33, v32, 7, v33")
        I("v_lshrrev_b32 v32, 1, v35")
        I("v_lshl_add_u32 v33, v32, 16, v33")
        I("s_sub_u32 s64, s3, 13")
        I("s_lshl_b32 s64, s64, 20")
        I("s_lshr_b32 s65, s2, 7")
        I("s_lshl_b32 s65, s65, 19")
        I("s_add_u32 s64, s64, s65")
        I("v_add_u32 v33, s64, v33")
    I(f"v_lshlrev_b32 v34, {OPT['fs']}, v34")
    I("v_lshl_add_u32 v34, v35, 2, v34")
    I(f"s_sub_u32 s64, {hex(FLG_OFF)}, s38")
    I("v_add_u32 v34, s64, v34")
    I(f"s_mov_b32 s64, {hex(f32(-LOG2E))}")
    I("s_mov_b32 s66, 0x0000ffff")
    I("s_mov_b32 s67, 0xffff0000")
    I("s_waitcnt lgkmcnt(0)")
    for j in range(4):
        I(f"v_lshlrev_b32 v{WCB+j}, 16, v{WCB+j}")
    for j in range(4):
        I(f"v_mul_f32 v{WCB+j}, s64, v{WCB+j}")
    for j in range(4):
        I(f"v_cvt_pk_bf16_f32 v{WCB+j}, 0, v{WCB+j}")
    for j in range(4):
        I(f"v_cndmask_b32 v{WCB+j}, 0, v{WCB+j}, s[66:67]")
    I(f"v_lshlrev_b32 v{XR}, 16, v{XR+2}")
    I(f"v_and_b32 v{XR+1}, 0xffff0000, v{XR+2}")
    I(f"v_lshlrev_b32 v{XR+2}, 16, v{XR+3}")
    I(f"v_and_b32 v{XR+3}, 0xffff0000, v{XR+3}")
    I("s_setprio 0")
    if OPT["fl"]:
        I("s_waitcnt vmcnt(1)")
        I("s_cmp_ge_u32 s3, 12")
        I("s_cbranch_scc1 B_DRD")
    I("s_waitcnt vmcnt(0)")
    if OPT["tst"] != 2:
        I("s_cmp_ge_u32 s3, 12")
        I("s_cbranch_scc0 B_DRD")
    if OPT["tst"] != 2:
        flag_store()
    L("B_DRD")
    if OPT["dbar"]:
        I("s_barrier")
    if OPT["delay"]:
        I(f"s_sleep {OPT['delay']}")
    stamp(9)
    I(f"global_load_dwordx4 {vr(RA,4)}, v2, {WS} sc1")
    I(f"global_load_dwordx4 {vr(RA+4,4)}, v3, {WS} sc1")

    def poll(R_, first, name):
        L(name)
        I("s_waitcnt vmcnt(0)")
        for k in range(2):
            I(f"s_mov_b64 exec, s[{68+2*k}:{69+2*k}]")
            for j in range(4):
                I(f"v_xor_b32 v{R_+4*k+j}, v{TG+j}, v{R_+4*k+j}")
        I("s_mov_b64 exec, -1")
        for k in range(2):
            r = R_ + 4 * k
            I(f"v_or3_b32 v{6+k}, v{r}, v{r+1}, v{r+2}")
            I(f"v_and_b32 v{6+k}, s40, v{6+k}")
            I(f"v_and_or_b32 v{6+k}, v{r+3}, s41, v{6+k}")
            I(f"v_cmp_ne_u32 s[{68+2*k}:{69+2*k}], 0, v{6+k}")
            I(f"v_cmp_gt_u32 s[{64+2*k}:{65+2*k}], s42, v{r+3}")
        if first:
            for k in range(2):
                I(f"s_andn2_b64 s[{64+2*k}:{65+2*k}], s[{64+2*k}:{65+2*k}], s[{68+2*k}:{69+2*k}]")
                I(f"s_lshl_b64 s[{74+2*k}:{75+2*k}], s[{64+2*k}:{65+2*k}], 1")
                I(f"s_or_b64 s[{74+2*k}:{75+2*k}], s[{74+2*k}:{75+2*k}], s[36:37]")
        I("s_and_b64 s[72:73], s[68:69], s[74:75]")
        I("s_and_b64 s[80:81], s[70:71], s[76:77]")
        I("s_or_b64 s[72:73], s[72:73], s[80:81]")
        I(f"s_cbranch_scc1 {name}_RETRY")
    def retry(R_, first, name):
        L(name + "_RETRY")
        if first:
            for k in range(4):
                I(f"s_and_b32 s72, s{68+k}, s{74+k}")
                I("s_lshl_b32 s73, s72, 1")
                I("s_or_b32 s72, s72, s73")
                I("s_lshl_b32 s73, s72, 2")
                I("s_or_b32 s72, s72, s73")
                I("s_lshl_b32 s73, s72, 4")
                I("s_or_b32 s72, s72, s73")
                I(f"s_and_b32 s{68+k}, s{68+k}, s72")
        else:
            I("s_and_b64 s[68:69], s[68:69], s[74:75]")
            I("s_and_b64 s[70:71], s[70:71], s[76:77]")
        I("s_add_u32 s43, s43, 1")
        I(f"s_cmp_gt_u32 s43, {POLL_LIMIT}")
        I("s_cbranch_scc1 R_TIMEOUT")
        if OPT["sleep"]:
            I(f"s_sleep {OPT['sleep']}")
        reload(R_, name)
        I(f"s_branch {name}")
    def reload(R_, name):
        I("s_mov_b64 exec, s[68:69]")
        I(f"s_cbranch_execz {name}_1")
        I(f"global_load_dwordx4 {vr(R_,4)}, v2, {WS} sc1")
        L(name + "_1")
        I("s_mov_b64 exec, s[70:71]")
        I(f"s_cbranch_execz {name}_2")
        I(f"global_load_dwordx4 {vr(R_+4,4)}, v3, {WS} sc1")
        L(name + "_2")
    def ranks(R_, C_, K_, M_):
        for k in range(2):
            for j in range(3):
                I(f"v_lshlrev_b32_sdwa v{C_+3*k+j}, 2, v{R_+4*k+3} {sdwa('BYTE_'+str(j))}")
        for k in range(2):
            I(f"s_mov_b64 exec, s[{74+2*k}:{75+2*k}]")
            for j in range(3):
                m = M_ + 2 * (3 * k + j)
                I(f"v_cmp_gt_u32_sdwa s[{m}:{m+1}], 49, v{R_+4*k+3} src0_sel:DWORD src1_sel:BYTE_{j}")
            for j in range(3):
                m = M_ + 2 * (3 * k + j)
                I(f"s_mov_b64 exec, s[{m}:{m+1}]")
                I(f"ds_add_rtn_u32 v{K_+3*k+j}, v{C_+3*k+j}, v{C4} offset:{C2_OFF}")
        I("s_mov_b64 exec, -1")
    def more_test():
        I("s_and_b64 s[64:65], s[64:65], s[74:75]")
        I("s_and_b64 s[66:67], s[66:67], s[76:77]")
        I("s_or_b64 s[72:73], s[64:65], s[66:67]")
        I("s_or_b32 s72, s72, s73")
        I("s_and_b32 s72, s72, 0x80808080")
    MA, MB = 44, 4

    def pf5(lab):
        I("s_cmp_ge_u32 s3, 13")
        I(f"s_cbranch_scc0 {lab}")
        for k in range(OPT["pf5"]):
            if k:
                I("v_add_u32 v33, 0x20000, v33")
            I(f"global_load_dword v84, v33, {WS} sc1")
        L(lab)
    poll(RA, True, "B_P0")
    stamp(10)
    if OPT["ef"]:
        I(f"global_load_dword v35, v34, {WS} sc1")
    ranks(RA, CA, KA, MA)
    more_test()
    I("s_or_b32 s72, s72, s79")
    I("s_cbranch_scc1 R_MORE")
    L("B_RDONE")
    if OPT["stamp"]:
        I("v_writelane_b32 v127, s43, 19")
    I("s_waitcnt lgkmcnt(0)")
    I("s_barrier")
    stamp(11)
    I(f"ds_read_b32 v6, v5 offset:{C2_OFF}")
    if OPT["drain"]:
        if OPT["pf4"]:
            I(f"s_sub_u32 s71, s3, {OPT['pfw']}")
            I(f"s_cmp_lt_u32 s71, {OPT['pf4']}")
            I("s_cbranch_scc0 B_NOPF4")
            I("s_andn2_b64 exec, exec, s[62:63]")
            I(f"global_load_dword v84, v33, {WS} sc1")
            I("s_mov_b64 exec, -1")
            L("B_NOPF4")
    elif not OPT["ef"]:
        I(f"global_load_dword v35, v34, {WS} sc1")
        if OPT["pf5"] and not OPT["pfa"]:
            pf5("B_NOPF5")
    elif OPT["pf"]:
        I("s_sub_u32 s64, s3, 4")
        I(f"s_cmp_lt_u32 s64, {OPT['pf']}")
        I("s_cbranch_scc0 B_NOPF")
        I("s_waitcnt vmcnt(0)")
        I(f"v_cmp_eq_u32 vcc, v{TG+3}, v35")
        I("s_mov_b64 exec, vcc")
        I("s_cbranch_execz B_NOPF0")
        I(f"global_load_dword v84, v33, {WS} sc1")
        L("B_NOPF0")
        I("s_mov_b64 exec, -1")
        L("B_NOPF")
    I("s_waitcnt lgkmcnt(0)")
    I("v_add_u32 v2, 7, v6")
    I("v_and_b32 v2, -8, v2")
    I("v_max_u32 v2, 8, v2")
    I("v_cndmask_b32 v2, 0, v2, s[82:83]")
    if OPT["pf5"] and OPT["pfa"]:
        pf5("B_NOPF5")
    I("v_mov_b32 v3, v2")
    for d in ("row_shr:1 row_mask:0xf", "row_shr:2 row_mask:0xf", "row_shr:4 row_mask:0xf",
              "row_shr:8 row_mask:0xf", "row_bcast:15 row_mask:0xa", "row_bcast:31 row_mask:0xc"):
        I("s_nop 1")
        I(f"v_add_u32_dpp v3, v3, v3 {d} bank_mask:0xf")
    I("v_sub_u32 v7, v3, v2")
    I(f"ds_write_b32 v5, v7 offset:{BASE}")
    I("v_readlane_b32 s64, v3, 63")
    def lookup(C_):
        for i in range(6):
            I(f"ds_read_b32 v{C_+i}, v{C_+i} offset:{BASE}")
    def scatter(R_, C_, K_, M_):
        for i in range(6):
            if i % 3 == 0:
                I(f"s_waitcnt lgkmcnt({3-i})")
            I(f"v_add3_u32 v{C_+i}, v{C_+i}, v{K_+i}, s85")
        for i in range(6):
            I(f"s_mov_b64 exec, s[{M_+2*i}:{M_+2*i+1}]")
            I(f"ds_write_b32 v{C_+i}, v{R_+4*(i//3)+i%3}")
        I("s_mov_b64 exec, -1")
    lookup(CA)
    I("s_add_u32 s65, s64, 31")
    I("s_lshr_b32 s66, s65, 9")
    I("s_bfe_u32 s67, s65, 0x40005")
    I("s_mul_i32 s68, s66, s3")
    I("s_min_u32 s69, s67, s3")
    I("s_add_u32 s68, s68, s69")
    I("s_lshl_b32 s68, s68, 5")
    I("s_cmp_lt_u32 s3, s67")
    I("s_addc_u32 s72, s66, 0")
    I("s_lshl_b32 s69, s72, 3")
    I("s_add_u32 s70, s68, s85")
    if OPT["pf3"]:
        I(f"s_sub_u32 s71, s3, {OPT['pfw']}")
        I(f"s_cmp_lt_u32 s71, {OPT['pf3']}")
        I("s_cbranch_scc0 B_NOPF3")
        I("s_waitcnt vmcnt(0)")
        I(f"v_cmp_eq_u32 vcc, v{TG+3}, v35")
        I("s_andn2_b64 exec, vcc, s[62:63]")
        I("s_cbranch_execz B_NOPF30")
        I(f"global_load_dword v84, v33, {WS} sc1")
        L("B_NOPF30")
        I("s_mov_b64 exec, -1")
        L("B_NOPF3")
    scatter(RA, CA, KA, MA)
    I(f"v_mul_u32_u24 v{VRA}, s69, v124")
    I(f"v_mul_u32_u24 v{VRA+1}, s69, v125")
    I(f"v_add_u32 v{VRA}, s70, v{VRA}")
    I(f"v_add3_u32 v{VRA+1}, v{VRA+1}, s70, v126")
    if OPT["pf"] and OPT["ef"]:
        I("s_sub_u32 s71, s3, 4")
        I(f"s_cmp_lt_u32 s71, {OPT['pf']}")
        I("s_cbranch_scc1 B_FLW")
    if OPT["pf3"]:
        I(f"s_cmp_lt_u32 s71, {OPT['pf3']}")
        I("s_cbranch_scc1 B_FLW")
    if not OPT["drain"]:
        if OPT["pf5"]:
            I(f"s_waitcnt vmcnt({OPT['pf5']})")
            I("s_cmp_ge_u32 s3, 13")
            I("s_cbranch_scc1 B_FLW")
        I("s_waitcnt vmcnt(0)")
        L("B_FLW")
        I(f"v_cmp_ne_u32 vcc, v{TG+3}, v35")
    I("s_cmp_lg_u32 s78, 0")
    I("s_cbranch_scc1 R_EXTRA")
    L("B_XDONE")
    if not OPT["drain"]:
        I("s_cbranch_vccnz R_FLAGS")
    L("B_FDONE")
    if OPT["pf2"]:
        I(f"s_cmp_lt_u32 s3, {OPT['pf2']}")
        I("s_cbranch_scc0 B_NOPF2")
        I(f"global_load_dword v84, v33, {WS} sc1")
        L("B_NOPF2")
    I("s_waitcnt lgkmcnt(0)")
    I("s_barrier")
    stamp(12)
    def i_reads(batch, lo=0, hi=4):
        for i in range(lo, hi):
            I(f"ds_read_u16 v{IP[i]}, v{VRA} offset:{16*batch + 4*i}")
    def a_reads(batch):
        for d in range(4):
            I(f"s_mov_b64 exec, s[{56+2*d}:{57+2*d}]")
            I(f"ds_read_b32 v{A+d}, v{VRA+1} offset:{16*batch}")
        I("s_mov_b64 exec, -1")
    def gathers(x, lo, hi):
        for i in range(lo, hi):
            I(f"buffer_load_dwordx4 {vr(x+4*i,4)}, {vr(IP[i],2)}, {sr(S_TAB,4)}, 0 idxen offen {OPT['gsc'] if OPT['gsc'] != 'none' else ''}")
    i_reads(0)
    I("v_and_b32 v9, 0x3f0, v0")
    I(f"ds_read_b128 {vr(VSE,4)}, v9 offset:{STR}")
    I(f"ds_read_b32 v8, v1 offset:{FLAG}")
    if OPT["prio"]:
        I("s_setprio 3")
    I("s_waitcnt lgkmcnt(2)")
    gathers(XB, 0, 4)
    stamp(13)
    i_reads(1)
    I(f"ds_read_b128 {vr(EP,4)}, v9 offset:{EPI}")
    I(f"ds_read_b128 {vr(UR,4)}, v{VU}")
    I("s_waitcnt lgkmcnt(6)")
    I("v_readfirstlane_b32 s80, v8")
    I(f"v_lshl_add_u64 {vr(VSE,2)}, {vr(VSE,2)}, 0, {vr(LP,2)}")
    I(f"ds_read_b128 {vr(EA,4)}, v{VSE+1}")
    for q in range(4):
        I(f"v_readlane_b32 s{44+q}, v{VSE+2}, {16*q}")
    I(f"s_cmp_gt_u32 s64, {LIST_MAX}")
    I("s_cselect_b32 s81, 1, 0")
    I("s_or_b32 s80, s80, s81")
    if OPT["force_slow"]:
        I("s_branch K_SLOW")
    I("s_cbranch_scc1 K_SLOW")
    a_reads(0)
    for q in range(4):
        if OPT["cut"] & 8:
            I(f"s_mov_b32 s{44+q}, 0")
        I(f"s_bitset1_b32 s{44+q}, s72")
    I("s_or_b32 s82, s44, s45")
    I("s_or_b32 s83, s46, s47")
    I("s_or_b32 s82, s82, s83")
    if OPT["fp"]:
        th = [int(x) for x in str(OPT["fp"]).split("_")]
        I(f"s_lshl_b32 s81, 1, s72")
        for t_ in th:
            I(f"s_lshr_b32 s80, s81, {t_}")
            I("s_or_b32 s82, s82, s80")
    I("s_bfm_b32 s83, s72, 0")
    I("s_lshr_b32 s83, s83, 4")
    I("s_mov_b32 s73, 0")
    I("s_waitcnt lgkmcnt(5)")
    gathers(XB + 16, 0, 4)
    i_reads(2)
    for k in range(3):
        I(f"v_add_u32 v{EP+k}, v{EP+k}, v{LC}")
    I(f"v_cmp_lt_i32 s[48:49], 2, v{EP+3}")
    I("s_cmp_eq_u32 s72, 0")
    I("s_cbranch_scc1 K_JOIN")
    def mfma(x):
        I(f"v_mfma_f32_32x32x16_bf16 {vr(Y,16)}, {vr(A,4)}, {vr(WCB,4)}, {vr(x,16)}")
    stamp(14)
    I("s_waitcnt vmcnt(4) lgkmcnt(4)")
    mfma(XB)
    stamp(15)
    a_reads(1)
    nth = len(str(OPT["prio"]).split("_")) if OPT["prio"] else 0
    if OPT["prio"]:
        I(f"s_setprio {nth}")
    I("s_nop 2")
    L("K_LOOP")
    if OPT["prio"] and not OPT["fp"]:
        I("s_sub_u32 s74, s72, s73")
        for k, t_ in enumerate(int(x) for x in str(OPT["prio"]).split("_")):
            I(f"s_cmp_gt_u32 s74, {t_}")
            I("s_cbranch_scc1 K_STEP0")
            I(f"s_setprio {nth-1-k}")
    for u in range(4):
        bb, hh = u >> 1, u & 1
        x = XB + 16 * bb + 8 * hh
        t = Y + 8 * hh
        L(f"K_STEP{u}")
        for i in range(8):
            I(f"v_exp_f32 v{t+i}, v{t+i}")
        for i in range(4):
            I(f"v_lshlrev_b64 {vr(x+2*i,2)}, 16, {vr(x+2*i,2)}")
        for i in range(4):
            I(f"v_pk_fma_f32 {vr(t+2*i,2)}, {vr(t+2*i,2)}, {vr(EA+2*(i&1),2)}, s[16:17] clamp")
        I(f"v_pk_mul_f32 {vr(P,2)}, {vr(t,2)}, {vr(t+4,2)}")
        I(f"v_pk_mul_f32 {vr(P+2,2)}, {vr(t+2,2)}, {vr(t+6,2)}")
        I(f"v_pk_mul_f32 {vr(Q,2)}, {vr(x,2)}, {vr(t+4,2)}")
        I(f"v_pk_mul_f32 {vr(Q+2,2)}, {vr(x+2,2)}, {vr(t+6,2)}")
        I(f"v_pk_add_f32 {vr(SS,2)}, {vr(t,2)}, {vr(t+4,2)}")
        I(f"v_pk_add_f32 {vr(SS+2,2)}, {vr(t+2,2)}, {vr(t+6,2)}")
        I(f"v_pk_fma_f32 {vr(Q,2)}, {vr(x+4,2)}, {vr(t,2)}, {vr(Q,2)}")
        I(f"v_pk_fma_f32 {vr(Q+2,2)}, {vr(x+6,2)}, {vr(t+2,2)}, {vr(Q+2,2)}")
        if OPT["sup"]:
            I(f"s_bitcmp1_b32 s83, {u}")
            I(f"s_cselect_b32 s{S_TAB+2}, s{S_TAB+2}, 0")
        if hh == 0:
            I("s_waitcnt lgkmcnt(0)")
            if not OPT["cut"] & 4:
                gathers(XB + 16 * bb, 0, 2)
            for i in range(4):
                I(f"v_rcp_f32 v{P+i}, v{P+i}")
        else:
            I("s_waitcnt vmcnt(2)")
            if not OPT["cut"] & 1:
                mfma(XB + 16 * (1 - bb))
            for i in range(4):
                I(f"v_rcp_f32 v{P+i}, v{P+i}")
            if not OPT["cut"] & 4:
                gathers(XB + 16 * bb, 2, 4)
        I(f"v_pk_fma_f32 {vr(NUM,2)}, {vr(Q,2)}, {vr(P,2)}, {vr(NUM,2)}")
        I(f"v_pk_fma_f32 {vr(DEN,2)}, {vr(SS,2)}, {vr(P,2)}, {vr(DEN,2)}")
        I(f"v_pk_fma_f32 {vr(NUM+2,2)}, {vr(Q+2,2)}, {vr(P+2,2)}, {vr(NUM+2,2)}")
        I(f"v_pk_fma_f32 {vr(DEN+2,2)}, {vr(SS+2,2)}, {vr(P+2,2)}, {vr(DEN+2,2)}")
        if hh == 1:
            if not OPT["cut"] & 4:
                i_reads(bb + 3)
            if not OPT["cut"] & 2:
                a_reads(bb + 2)
        I(f"s_bitcmp1_b32 s82, {u+1}")
        I(f"s_cbranch_scc1 K_FLUSH{u}")
        L(f"K_BACK{u}")
    I(f"v_lshl_add_u64 {vr(VRA,2)}, {vr(VRA,2)}, 0, s[20:21]")
    I("s_lshr_b32 s82, s82, 4")
    I("s_lshr_b32 s83, s83, 4")
    I("s_add_u32 s73, s73, 4")
    I("s_branch K_LOOP")
    for u in range(4):
        L(f"K_FLUSH{u}")
        I(f"s_add_u32 s74, s73, {u+1}")
        for h in range(2):
            I(f"s_bitcmp1_b32 s{44+2*h}, s74")
            I("s_cselect_b32 s75, 0xffff, 0")
            I(f"s_bitcmp1_b32 s{45+2*h}, s74")
            I("s_cselect_b32 s80, 0xffff0000, 0")
            I(f"s_or_b32 {'exec_hi' if h else 'exec_lo'}, s75, s80")
        if OPT["fp"]:
            I("s_sub_u32 s75, s72, s74")
            for k, t_ in enumerate(th):
                I(f"s_cmp_gt_u32 s75, {t_}")
                I(f"s_cbranch_scc1 K_FP{u}")
                I(f"s_setprio {len(th)-1-k}")
            L(f"K_FP{u}")
            I(f"s_cbranch_execz K_FQ{u}")
        I(f"ds_write2_b32 v{VSE}, v{DEN}, v{DEN+1} offset0:0 offset1:16")
        I(f"ds_write2_b32 v{VSE}, v{DEN+2}, v{DEN+3} offset0:32 offset1:48")
        I(f"ds_write2_b32 v{VSE}, v{NUM}, v{NUM+1} offset0:64 offset1:80")
        I(f"ds_write2_b32 v{VSE}, v{NUM+2}, v{NUM+3} offset0:96 offset1:112")
        I("s_cmp_eq_u32 s74, s72")
        I("s_cbranch_scc1 K_JOIN")
        I(f"v_lshl_add_u64 {vr(VSE,2)}, {vr(VSE,2)}, 0, s[24:25]")
        I(f"ds_read_b128 {vr(DEN,4)}, v{VOOB}")
        I(f"ds_read_b128 {vr(NUM,4)}, v{VOOB}")
        I(f"ds_read_b128 {vr(EA,4)}, v{VSE+1}")
        I("s_waitcnt lgkmcnt(0)")
        L(f"K_FQ{u}")
        I("s_mov_b64 exec, -1")
        I(f"s_branch K_BACK{u}")

    L("K_JOIN")
    I("s_mov_b64 exec, -1")
    stamp(16)
    I("s_cmp_lt_u32 s3, 13")
    I("s_waitcnt lgkmcnt(0)")
    I("s_barrier")
    stamp(17)
    I("s_cbranch_scc0 K_FIN")
    for k in range(3):
        I(f"ds_read_b128 {vr(8+8*k,4)}, v{EP+k}")
    for k in range(3):
        I(f"ds_read_b128 {vr(12+8*k,4)}, v{EP+k} offset:256")
    I("s_cmp_lg_u64 s[48:49], 0")
    I("s_waitcnt lgkmcnt(3)")
    for k in (1, 2):
        for i in range(2):
            I(f"v_pk_add_f32 {vr(8+2*i,2)}, {vr(8+2*i,2)}, {vr(8+8*k+2*i,2)}")
    I("s_waitcnt lgkmcnt(0)")
    for k in (1, 2):
        for i in range(2, 4):
            I(f"v_pk_add_f32 {vr(8+2*i,2)}, {vr(8+2*i,2)}, {vr(8+8*k+2*i,2)}")
    I("s_cbranch_scc1 R_LONG")
    L("K_MATH")
    stamp(26)
    I("v_pk_add_f32 v[8:9], v[8:9], s[18:19]")
    I("v_pk_add_f32 v[10:11], v[10:11], s[18:19]")
    for c in range(4):
        I(f"v_rcp_f32 v{8+c}, v{8+c}")
    I("s_nop 0")
    I(f"v_pk_fma_f32 v[8:9], v[12:13], v[8:9], {vr(UR,2)}")
    I(f"v_pk_fma_f32 v[10:11], v[14:15], v[10:11], {vr(UR+2,2)}")
    for c in range(4):
        I(f"v_max_f32 v{8+c}, 0, v{8+c}")
    I(f"v_pk_add_f32 v[8:9], v[8:9], {vr(XR,2)}")
    I(f"v_pk_add_f32 v[10:11], v[10:11], {vr(XR+2,2)}")
    I("v_cvt_pk_bf16_f32 v12, v8, v9")
    I("v_cvt_pk_bf16_f32 v13, v10, v11")
    stamp(27)
    I(f"buffer_store_dwordx2 v[12:13], v{VOUT}, {sr(S_X,4)}, 0 offen {OPT['osc'].replace('none','').replace('_',' ')}")
    L("K_FIN")
    if OPT["probe"]:
        I("s_or_b32 s64, s2, s3")
        I("s_cmp_eq_u32 s64, 0")
        I("s_cbranch_scc0 PRB_D")
        I("s_load_dwordx2 s[66:67], s[0:1], 88")
        I("s_memrealtime s[98:99]")
        I("s_waitcnt lgkmcnt(0)")
        I(f"v_mov_b32 v8, {hex(CTL_OFF + 0x40000)}")
        I("global_load_dword v9, v8, s[66:67] sc1")
        I("v_mov_b32 v10, 0x13572468")
        I("s_waitcnt vmcnt(0)")
        I("v_readfirstlane_b32 s64, v9")
        I("global_store_dword v8, v10, s[66:67] sc1")
        I("s_cmp_eq_u32 s64, 0x13572468")
        I(f"s_cbranch_scc{OPT['probe']-1} PRB_D")
        L("PRB_W")
        I("s_memrealtime s[90:91]")
        I("s_waitcnt lgkmcnt(0)")
        I("s_sub_u32 s90, s90, s98")
        I("s_cmp_lt_u32 s90, 5000")
        I("s_cbranch_scc1 PRB_W")
        L("PRB_D")
    stamp(18)
    stamp_out()
    L("K_END")
    I("s_endpgm")

    if OPT["nreg"]:
        L("R_AREA")
        I(f"global_load_dword v26, v1, {sr(P_DBG,2)} sc1")
        I("s_add_u32 s43, s43, 1")
        I("s_waitcnt vmcnt(0)")
        I("v_readfirstlane_b32 s38, v26")
        I("s_cmp_lg_u32 s38, 0")
        I("s_cbranch_scc1 G_AREA")
        I(f"s_cmp_le_u32 s43, {POLL_LIMIT}")
        I("s_cbranch_scc1 R_AREA")
        I("s_mov_b32 s48, 1")
        I("s_branch G_AREA")
    L("R_PUB2")
    I("s_mov_b64 exec, vcc")
    I(f"ds_read_b128 {vr(C0+8,4)}, v4 offset:{IMG+128}")
    I(f"ds_read_b128 {vr(C0+12,4)}, v4 offset:{IMG+B2+128}")
    I("v_and_b32 v10, 7, v0")
    I(f"v_mul_u32_u24 v10, {3*INC}, v10")
    I(f"v_add_u32 v10, {24*INC}, v10")
    I("s_waitcnt lgkmcnt(0)")
    for b in range(2):
        w3 = C0 + 11 + 4 * b
        I(f"v_and_b32 v{w3}, 0x3f3f3f, v{w3}")
        for j in range(3):
            I(f"v_add_u32 v11, {j*INC}, v10")
            I(f"v_cmp_le_u32 s[70:71], v{8+b}, v11")
            I(f"v_or_b32 v11, {0x3f << (8*j)}, v{w3}")
            I("s_nop 0")
            I(f"v_cndmask_b32 v{w3}, v{w3}, v11, s[70:71]")
    I(f"v_add_u32 v8, {hex(LINE_STRIDE)}, v6")
    I(f"v_add_u32 v9, {hex(LINE_STRIDE)}, v7")
    tagit(C0 + 8)
    tagit(C0 + 12)
    I(f"global_store_dwordx4 v8, {vr(C0+8,4)}, {WS} sc1")
    I(f"global_store_dwordx4 v9, {vr(C0+12,4)}, {WS} sc1")
    I("s_branch A_PUBD")
    retry(RA, True, "B_P0")
    L("R_MORE")
    I("s_cmp_lg_u32 s79, 0")
    I("s_cbranch_scc1 R_REQ")
    if OPT["nol2"]:
        I("s_branch B_RDONE")
    for k in range(4):
        I(f"s_lshr_b32 s{74+k}, s{64+k}, 7")
        I(f"s_and_b32 s{74+k}, s{74+k}, 0x01010101")
        I(f"s_mul_i32 s{74+k}, s{74+k}, 0xff")
    I("s_mov_b64 s[68:69], s[74:75]")
    I("s_mov_b64 s[70:71], s[76:77]")
    I(f"v_add_u32 v2, {hex(LINE_STRIDE)}, v2")
    I(f"v_add_u32 v3, {hex(LINE_STRIDE)}, v3")
    reload(RB, "B_N1")
    poll(RB, False, "B_P1")
    ranks(RB, CB, KB, MB)
    I("s_or_b32 s78, s78, 1")
    more_test()
    I("s_cbranch_scc0 B_RDONE")
    I("s_mov_b32 s79, 1")
    I("s_branch R_REQ")
    retry(RB, False, "B_P1")
    L("R_TIMEOUT")
    I("s_mov_b32 s79, 3")
    for k in range(6):
        I(f"s_mov_b64 s[{MA+2*k}:{MA+2*k+1}], 0")
    I(f"v_mov_b32 v35, v{TG+3}")
    I("v_mov_b32 v33, 0x388000")
    L("R_REQ")
    I("v_mov_b32 v6, s79")
    I(f"ds_or_b32 v1, v6 offset:{FLAG}")
    I("s_branch B_RDONE")
    def bump():
        I(f"s_sub_u32 s71, {hex(CTL_OFF)}, s38")
        I("v_mov_b32 v48, s71")
        I("v_mov_b32 v50, 0x1000000")
        I("v_mov_b32 v51, 0")
        I("s_mov_b64 exec, 1")
        I(f"global_atomic_add_x2 v48, v[50:51], {WS} offset:8 sc1")
        I("s_mov_b64 exec, -1")
    L("R_EXTRA")
    I("s_bitcmp1_b32 s78, 0")
    I("s_cbranch_scc0 R_X2")
    I("s_waitcnt lgkmcnt(0)")
    lookup(CB)
    scatter(RB, CB, KB, MB)
    L("R_X2")
    I("s_bitcmp1_b32 s78, 1")
    I("s_cbranch_scc0 B_XDONE")
    I("s_cmp_eq_u32 s3, 1")
    I("s_cbranch_scc1 R_PAD")
    I("s_add_u32 s71, s66, 1")
    I("v_cvt_f32_u32 v48, s71")
    I("v_cvt_f32_u32 v49, s66")
    I("s_lshl_b32 s73, s67, 2")
    I("s_mul_i32 s71, s71, s73")
    I("v_rcp_f32 v48, v48")
    I("v_rcp_f32 v49, v49")
    I("v_cvt_f32_u32 v50, s71")
    I("v_cvt_f32_u32 v51, s73")
    I("v_fma_f32 v50, -v50, v49, v51")
    I(f"v_mov_b32 v51, {hex(f32(0.125))}")
    def stream_of(dst, src, half):
        I(f"v_cvt_f32_u32 v{dst}, v{src}")
        I(f"v_fma_f32 v{dst}, v{dst}, v51, {half}")
        I(f"v_mul_f32 v52, v{dst}, v48")
        I(f"v_fma_f32 v{dst}, v{dst}, v49, v50")
        I(f"v_max_f32 v{dst}, v{dst}, v52")
        I(f"v_cvt_u32_f32 v{dst}, v{dst}")
    stream_of(53, 3, "-0.5")
    I("s_cmp_eq_u32 s3, 2")
    I("s_cbranch_scc1 R_EPI")
    I("s_cmp_eq_u32 s3, 3")
    I("s_cbranch_scc1 R_FIRST")
    I("v_min_u32 v55, s73, v53")
    I("v_mad_u32_u24 v55, v53, s66, v55")
    I("v_lshrrev_b32 v56, 3, v3")
    I("v_sub_u32 v55, v56, v55")
    I("v_lshlrev_b32 v55, v55, 1")
    I("v_lshlrev_b32 v56, 4, v53")
    I("s_mov_b64 exec, s[82:83]")
    I(f"ds_or_b32 v56, v55 offset:{STR + 8}")
    I("s_mov_b64 exec, -1")
    I("s_branch B_XDONE")
    L("R_FIRST")
    I("v_mov_b32 v54, -1")
    I("v_cndmask_b32 v53, 63, v53, s[82:83]")
    I(f"v_mul_u32_u24 v59, {EAU_STRIDE//4}, v5")
    I(f"v_add_u32 v59, {EAU_OFF}, v59")
    I("v_mov_b32_dpp v54, v53 wave_shr:1 row_mask:0xf bank_mask:0xf")
    I("v_lshl_add_u32 v58, v54, 2, v5")
    I(f"v_mul_i32_i24 v58, {SLOT_STRIDE//4}, v58")
    I(f"v_add_u32 v58, {SLOT_OFF}, v58")
    I("v_lshlrev_b32 v54, 4, v54")
    I("v_lshlrev_b32 v53, 4, v53")
    L("R_FIRST1")
    I("v_cmp_lt_i32 s[74:75], v54, v53")
    I("s_mov_b64 exec, s[74:75]")
    I("s_cbranch_execz R_FIRST2")
    I("v_add_u32 v54, 16, v54")
    I(f"v_add_u32 v58, {SLOT_STRIDE}, v58")
    I(f"ds_write_b64 v54, v[58:59] offset:{STR}")
    I("s_branch R_FIRST1")
    L("R_FIRST2")
    I("s_mov_b64 exec, -1")
    I("s_branch B_XDONE")
    L("R_EPI")
    stream_of(54, 7, "0.5")
    I("v_sub_u32 v59, v53, v54")
    I("v_lshl_add_u32 v56, v54, 2, v5")
    I(f"v_mul_u32_u24 v56, {SLOT_STRIDE//4}, v56")
    I(f"v_add_u32 v56, {SLOT_OFF}, v56")
    I("v_cmp_lt_i32 s[74:75], 0, v59")
    I("v_cmp_lt_i32 s[76:77], 1, v59")
    I(f"v_add_u32 v57, {SLOT_STRIDE}, v56")
    I(f"v_add_u32 v58, {2*SLOT_STRIDE}, v56")
    I(f"v_cndmask_b32 v57, v{VOOB}, v57, s[74:75]")
    I(f"v_cndmask_b32 v58, v{VOOB}, v58, s[76:77]")
    I("v_lshlrev_b32 v55, 2, v5")
    I(f"ds_write_b128 v55, v[56:59] offset:{EPI}")
    I("s_branch B_XDONE")
    L("R_PAD")
    I(f"v_mov_b32 v52, {N}")
    I(f"v_add_u32 v53, {LIST_OFF - 8}, v3")
    I("v_cmp_lt_u32 s[74:75], v6, v2")
    I("s_mov_b64 exec, s[74:75]")
    I("ds_write_b32 v53, v52 offset:4")
    I("v_cmp_eq_u32 s[74:75], 0, v6")
    I("s_mov_b64 exec, s[74:75]")
    I("ds_write_b32 v53, v52")
    I("s_mov_b64 exec, 0x3f")
    I("s_add_u32 s71, s64, s85")
    I("v_add_u32 v53, s71, v5")
    I("ds_write_b32 v53, v52")
    I("s_mov_b64 exec, -1")
    I("s_cmp_eq_u32 s2, 0")
    I("s_cbranch_scc0 B_XDONE")
    bump()
    I("s_branch B_XDONE")
    L("R_FLAGS")
    I("s_add_u32 s43, s43, 1")
    I(f"s_cmp_gt_u32 s43, {POLL_LIMIT}")
    I("s_cbranch_scc1 R_FLAGT")
    I("s_sleep 2")
    I("s_mov_b64 exec, vcc")
    I(f"global_load_dword v35, v34, {WS} sc1")
    I("s_waitcnt vmcnt(0)")
    I(f"v_cmp_ne_u32 vcc, v{TG+3}, v35")
    I("s_mov_b64 exec, -1")
    I("s_branch B_XDONE")
    L("R_FLAGT")
    I("v_mov_b32 v52, 3")
    I(f"ds_or_b32 v1, v52 offset:{FLAG}")
    I("s_branch B_FDONE")
    L("R_LONG")
    I("s_mov_b32 s64, 2")
    I("s_mov_b64 vcc, s[48:49]")
    L("R_LONG1")
    I("s_mov_b64 exec, vcc")
    I(f"v_add_u32 v{EP+2}, {SLOT_STRIDE}, v{EP+2}")
    I(f"ds_read_b128 v[16:19], v{EP+2}")
    I(f"ds_read_b128 v[20:23], v{EP+2} offset:256")
    I("s_add_u32 s64, s64, 1")
    I("s_waitcnt lgkmcnt(0)")
    for i in range(4):
        I(f"v_pk_add_f32 {vr(8+2*i,2)}, {vr(8+2*i,2)}, {vr(16+2*i,2)}")
    I(f"v_cmp_lt_i32 vcc, s64, v{EP+3}")
    I("s_cbranch_vccnz R_LONG1")
    I("s_mov_b64 exec, -1")
    I("s_branch K_MATH")

    L("K_SLOW")
    I("s_load_dwordx8 s[4:11], s[0:1], 0")
    I("s_load_dwordx2 s[12:13], s[0:1], 40")
    I("s_load_dwordx2 s[14:15], s[0:1], 64")
    I("s_setprio 0")
    I("s_waitcnt vmcnt(0) lgkmcnt(0)")
    I("s_cmp_eq_u32 s3, 15")
    I("s_cselect_b32 s71, s80, 0")
    I("s_and_b32 s71, s71, 2")
    I("s_cbranch_scc0 K_SL0")
    bump()
    I("s_waitcnt vmcnt(0)")
    L("K_SL0")
    WB2, WV2 = 40, 72
    I("v_lshrrev_b32 v6, 1, v5")
    I("v_add_u32 v7, 4096, v6")
    for (w, p_) in ((WB2, 12), (WV2, 14)):
        for hf in range(2):
            for k in range(16):
                I(f"global_load_ushort v{w + 16*hf + k}, v{6 + hf}, s[{p_}:{p_+1}] offset:{2*k*128}")
                I(f"global_load_ushort v{8 + k}, v{6 + hf}, s[{p_}:{p_+1}] offset:{(2*k+1)*128}")
            I("s_waitcnt vmcnt(0)")
            for k in range(16):
                I(f"v_lshl_or_b32 v{w + 16*hf + k}, v{8 + k}, 16, v{w + 16*hf + k}")
    for i in range(4):
        I(f"v_mov_b32 v{28+i}, 0")
    I("v_lshlrev_b32 v8, 4, v0")
    for k in range(4):
        I(f"ds_write_b128 v8, v[28:31] offset:{SLOT_OFF + k*16384}")
    I(f"ds_read_u16 v18, v6 offset:{WC_OFF}")
    I(f"s_mov_b32 s18, {hex(f32(1e-6))}")
    I("s_mov_b32 s19, s18")
    I(f"s_mov_b32 s16, {hex(f32(-LOG2E))}")
    I(f"v_lshl_add_u32 v17, v124, 2, v{LC}")
    I("v_lshlrev_b32 v10, 1, v5")
    I("s_waitcnt lgkmcnt(0)")
    I("v_lshlrev_b32 v18, 16, v18")
    I("s_barrier")
    I("v_lshlrev_b32 v8, 2, v0")
    I("v_lshlrev_b32 v9, 1, v0")
    I("s_lshl_b32 s70, s3, 6")
    L("K_SLOOP")
    I(f"global_load_dword v11, v8, {sr(P_DST,2)}")
    I(f"global_load_dword v12, v8, {sr(P_SRC,2)}")
    I(f"global_load_ushort v13, v9, {sr(P_E,2)}")
    I("s_waitcnt vmcnt(0)")
    I("v_and_b32 v14, 0xff, v11")
    I("v_cmp_eq_u32 s[74:75], s2, v14")
    L("K_SIN")
    I("s_cmp_eq_u64 s[74:75], 0")
    I("s_cbranch_scc1 K_SNEXT")
    I("s_ff1_i32_b64 s73, s[74:75]")
    I("s_bitset0_b64 s[74:75], s73")
    I("v_readlane_b32 s79, v11, s73")
    I("v_readlane_b32 s80, v12, s73")
    I("v_readlane_b32 s81, v13, s73")
    I("s_lshr_b32 s79, s79, 8")
    I(f"s_mul_i32 s76, s79, {EAU_STRIDE}")
    I(f"s_add_u32 s76, s76, {EAU_OFF + 512}")
    I(f"s_mul_i32 s79, s79, {ACC_STRIDE}")
    I("s_lshl_b32 s80, s80, 7")
    I("s_add_u32 s78, s80, 64")
    I(f"s_load_dwordx16 s[36:51], {sr(P_X,2)}, s80")
    I(f"s_load_dwordx16 s[52:67], {sr(P_X,2)}, s78")
    I("s_lshl_b32 s81, s81, 16")
    I("v_add_u32 v15, s76, v17")
    I("v_add_u32 v16, s79, v10")
    I("ds_read_b32 v22, v15")
    I("v_mul_f32 v20, s81, v18")
    I("v_mov_b32 v21, 0")
    I("s_waitcnt lgkmcnt(0)")
    for k in range(32):
        I(f"v_dot2_f32_bf16 v20, s{36+k}, v{WB2+k}, v20")
        I(f"v_dot2_f32_bf16 v21, s{36+k}, v{WV2+k}, v21")
    I("s_nop 2")
    I("v_fma_f32 v20, v20, s16, v22")
    I("v_exp_f32 v20, v20")
    I("s_nop 0")
    I("v_add_f32 v20, 1.0, v20")
    I("v_rcp_f32 v20, v20")
    I("s_nop 0")
    I("v_mul_f32 v21, v21, v20")
    I("v_cvt_f64_f32 v[24:25], v20")
    I("v_cvt_f64_f32 v[26:27], v21")
    I(f"ds_add_f64 v16, v[24:25] offset:{SLOT_OFF}")
    I(f"ds_add_f64 v16, v[26:27] offset:{SLOT_OFF + 512}")
    I("s_branch K_SIN")
    L("K_SNEXT")
    I("s_add_u32 s70, s70, 1024")
    I("v_add_u32 v8, 4096, v8")
    I("v_add_u32 v9, 2048, v9")
    I(f"s_cmp_lt_u32 s70, {E}")
    I("s_cbranch_scc1 K_SLOOP")
    I("v_lshrrev_b32 v6, 4, v0")
    I(f"v_mul_u32_u24 v6, {ACC_STRIDE}, v6")
    I(f"v_lshl_add_u32 v6, v{LC}, 1, v6")
    I("s_waitcnt lgkmcnt(0)")
    I("s_barrier")
    I("s_cmp_lt_u32 s3, 13")
    I("s_cbranch_scc0 K_FIN")
    I(f"ds_read_b128 v[16:19], v6 offset:{SLOT_OFF}")
    I(f"ds_read_b128 v[20:23], v6 offset:{SLOT_OFF+16}")
    I(f"ds_read_b128 v[24:27], v6 offset:{SLOT_OFF+512}")
    I(f"ds_read_b128 v[28:31], v6 offset:{SLOT_OFF+528}")
    I("s_waitcnt lgkmcnt(0)")
    for c in range(8):
        I(f"v_cvt_f32_f64 v{8+c}, {vr(16+2*c,2)}")
    I("s_branch K_MATH")
    L("SLOW_END")

hdr = open("standalone__edge_featured_mpnn_gatedgcn__graph.s.ref").read().split("\n")
for line in hdr:
    if line.startswith("; Override"):
        break
    o(line)
o(f"; @launch kernel={KNAME} grid=(256,1,1) block=(1024,1,1) lds={LDS_TOTAL}")
o('.amdgcn_target "amdgcn-amd-amdhsa--gfx950"')
o(".text")
gen()
o('.section .rodata,"a"')
o(".p2align 6")
o(f".amdhsa_kernel {KNAME}")
o("  .amdhsa_next_free_vgpr 128")
o("  .amdhsa_next_free_sgpr 102")
o("  .amdhsa_accum_offset 128")
o("  .amdhsa_group_segment_fixed_size 0")
o("  .amdhsa_kernarg_size 96")
o("  .amdhsa_user_sgpr_count 2")
o("  .amdhsa_user_sgpr_kernarg_segment_ptr 1")
o("  .amdhsa_system_sgpr_workgroup_id_x 1")
o(".end_amdhsa_kernel")
open(sys.argv[1], "w").write("\n".join(out) + "\n")
```

```python
import sys, struct

OPT = dict(stamp=0, sts="2_3_4_5_6_7", force_slow=0, prio="16_8_4", spin=0, spinat=18, hack=0, sleep=2, delay=0,
           codepf=1, gprio=1, pf=0, pf2=0, pre=1, cfirst=0, gbar=0, init1=1, pf3=0, pfw=0, drain=0, pf4=0, tlb=0, gl=1, pf5=1, pfa=1, osc="sc1", w32=0, fw=0, fl=1, dbar=0, wsb=0, pinv=0, nreg=0, inv=0, dsl=1, cmid=0, bsync=0, probe=0, tst=2, pop=1, cad=1, fp="8_3_1", e12=0, nol2=0, amp=0, ampw=0, ampg=-1, ampm=10, esc="none", sup=1, cprio=1, nog=0, gsc="sc1", cut=0, ef=0, fs=4)
for a in sys.argv[2:]:
    k, v = a.split("=")
    OPT[k] = int(v) if v.lstrip("-").isdigit() else v

KNAME = "standalone__edge_featured_mpnn_gatedgcn__graph_kernel"
N = 12500
E = 800000
CHUNK = 3136
TAB_ROWS = N + 1
CTL_OFF = 0xF900000 if OPT["nreg"] else 0x380000
REG_STRIDE = 13 << 20
FLG_OFF = CTL_OFF + 0x10000
CELL_OFF = 0x400000
BIN_STRIDE = 32768 + 256
LINE_STRIDE = 0x900000
STAMP_OFF = 0xF000000
LOG2E = 1.4426950408889634
KEXP = 62
POLL_LIMIT = OPT.get("plim", 100000)

X_OFF = 0
WC_OFF = 8192
C1_OFF = 8448
C2_OFF = 9472
FLAG = C2_OFF + 256
SYNC = C2_OFF + 260
TAGS = C2_OFF + 272
BASE = C2_OFF + 512
STR = C2_OFF + 1024
EPI = C2_OFF + 2048
IMG = C2_OFF + 3072
IMG_STRIDE = 272
EAU_OFF = IMG + 256 * IMG_STRIDE
EAU_STRIDE = 800
W_OFF = EAU_OFF + 52 * EAU_STRIDE
LDS_TOTAL = W_OFF + 32768
LIST_OFF = W_OFF
LIST_MAX = 31 * 16 * 32
SLOT_OFF = IMG
SLOT_STRIDE = 512
ACC_STRIDE = 1056
OOB = 0x30000
assert W_OFF % 128 == 0 and 117 * SLOT_STRIDE <= 256 * IMG_STRIDE and LDS_TOTAL <= 163840
INC = 0x5556

def f32(x):
    return struct.unpack("<I", struct.pack("<f", x))[0]

out = []
def o(s=""):
    out.append(s)
def I(s):
    out.append("    " + s)
def L(s):
    out.append(s + ":")
def vr(a, n=1):
    return f"v{a}" if n == 1 else f"v[{a}:{a+n-1}]"
def sr(a, n=1):
    return f"s{a}" if n == 1 else f"s[{a}:{a+n-1}]"
def sdwa(sel1):
    return f"dst_sel:DWORD dst_unused:UNUSED_PAD src0_sel:DWORD src1_sel:{sel1}"

P_X, P_E, P_SRC, P_DST, P_WA, P_WB, P_WC, P_WU, P_WV, P_OUT, P_DBG, P_WS = 4, 6, 8, 10, 12, 14, 16, 18, 20, 22, 24, 26
S_TAB, S_X = 28, 32
WS = sr(P_WS, 2)

STS = [int(x) for x in str(OPT["sts"]).split("_")] if OPT["stamp"] else []
RTS = {12: 28, 17: 29} if OPT["stamp"] == 2 else {}
def stamp(i):
    if OPT["amp"]:
        if i == 1:
            I("s_memrealtime s[98:99]")
        if i == OPT["amp"]:
            I("s_memrealtime s[96:97]")
        if i == 18:
            I(f"s_cmp_eq_u32 s3, {OPT['ampw']}")
            I("s_cbranch_scc0 AMP_D")
            if OPT["ampg"] >= 0:
                I(f"s_cmp_eq_u32 s2, {OPT['ampg']}")
                I("s_cbranch_scc0 AMP_D")
            I("s_waitcnt lgkmcnt(0)")
            I("s_sub_u32 s96, s96, s98")
            I(f"s_mul_i32 s96, s96, {OPT['ampm']}")
            I("s_add_u32 s96, s96, 3000")
            I("s_min_u32 s96, s96, 100000")
            L("AMP_W")
            I("s_memrealtime s[90:91]")
            I("s_waitcnt lgkmcnt(0)")
            I("s_sub_u32 s90, s90, s98")
            I("s_cmp_lt_u32 s90, s96")
            I("s_cbranch_scc1 AMP_W")
            L("AMP_D")
    if OPT["spin"] and OPT["spinat"] == i:
        lab = f"SPIN_{len(out)}"
        I("s_cselect_b32 s92, 1, 0")
        L(lab)
        I("s_memrealtime s[90:91]")
        I("s_waitcnt lgkmcnt(0)")
        I("s_sub_u32 s90, s90, s98")
        I(f"s_cmp_lt_u32 s90, {OPT['spin']}")
        I(f"s_cbranch_scc1 {lab}")
        I("s_cmp_lg_u32 s92, 0")
    if not OPT["stamp"]:
        return
    if i == 0:
        I("s_memrealtime s[86:87]")
    elif i == 1:
        I("s_memtime s[88:89]")
    elif i in STS:
        k = 90 + 2 * STS.index(i)
        I(f"s_memtime s[{k}:{k+1}]")
        if i in RTS:
            k = 90 + 2 * STS.index(RTS[i])
            I(f"s_memrealtime s[{k}:{k+1}]")
def stamp_out():
    if not OPT["stamp"]:
        return
    I("s_mov_b64 exec, -1")
    I("s_waitcnt vmcnt(0) lgkmcnt(0)")
    I("s_memtime s[80:81]")
    I("s_memrealtime s[82:83]")
    I("s_waitcnt lgkmcnt(0)")
    I("v_writelane_b32 v127, s80, 30")
    I("v_writelane_b32 v127, s82, 31")
    I("v_writelane_b32 v127, s86, 0")
    I("v_writelane_b32 v127, s88, 1")
    for i in list(range(2, 19)) + list(range(20, 30)):
        I(f"v_writelane_b32 v127, s{90 + 2*STS.index(i) if i in STS else 88}, {i}")
    I("s_lshl_b32 s84, s2, 4")
    I("s_add_u32 s84, s84, s3")
    I("s_lshl_b32 s84, s84, 7")
    I(f"s_add_u32 s84, s84, {hex(STAMP_OFF)}")
    I("s_sub_u32 s84, s84, s38")
    I("v_and_b32 v1, 63, v0")
    I("v_lshl_add_u32 v1, v1, 2, s84")
    I("s_mov_b64 exec, 0xffffffff")
    I(f"global_store_dword v1, v127, {WS}")

def srd(d, p, size):
    I(f"s_mov_b64 {sr(d,2)}, {sr(p,2)}")
    I(f"s_mov_b32 s{d+2}, {hex(size)}")
    I(f"s_mov_b32 s{d+3}, 0x20000")

D, S, EE = 16, 20, 24
AP = 104
TG = 120
B2 = 128 * IMG_STRIDE

def edge_loads(lo=0, hi=3):
    ins = [f"global_load_dwordx4 {vr(D,4)}, v10, {sr(P_DST,2)}",
           f"global_load_dwordx4 {vr(S,4)}, v10, {sr(P_SRC,2)}",
           f"global_load_dwordx2 {vr(EE,2)}, v11, {sr(P_E,2)}"]
    for x in ins[lo:hi]:
        I(x + " " + OPT["esc"].replace("none", ""))

def claim():
    op = {1: "global_atomic_or v8, v12", 2: "global_store_dword v8, v12"}[OPT["pop"]]
    I("v_lshlrev_b32 v8, 16, v0")
    I("s_lshl_b32 s64, s2, 8")
    I("v_add_u32 v8, s64, v8")
    I(f"s_mov_b32 exec_hi, {hex((1 << 17) - 1)}")
    I(f"{op}, {WS} sc1")
    I(f"{op}, {WS} offset:128 sc1")
    I("s_mov_b64 exec, -1")

def binning(waits, extra=0, hook=None):
    B4, RK, PA = 28, 32, 36
    I(f"v_mov_b32 v14, {INC}")
    I(f"s_mov_b32 s68, {47*INC}")
    I("s_mov_b32 s69, 0x05040100")
    I("s_mov_b32 s70, 0x07060100")
    if waits:
        I(f"s_waitcnt vmcnt({2+extra})")
        stamp(3)
    for i in range(4):
        I(f"v_lshlrev_b32_sdwa v{B4+i}, 2, v{D+i} {sdwa('BYTE_0')}")
        I(f"ds_add_rtn_u32 v{RK+i}, v{B4+i}, v14 offset:{C1_OFF}")
    for i in range(4):
        I(f"v_mul_u32_u24 v{B4+i}, {IMG_STRIDE//4}, v{B4+i}")
        I(f"v_lshrrev_b32 v{D+i}, 8, v{D+i}")
    for i in range(4):
        I("s_waitcnt lgkmcnt(3)")
        I(f"v_min_u32 v{RK+i}, s68, v{RK+i}")
        I(f"v_lshrrev_b32 v{RK+i}, 14, v{RK+i}")
        I(f"v_lshl_add_u32 v{PA+i}, v{RK+i}, 2, v{B4+i}")
        I(f"v_and_b32 v{RK+i}, 3, v{RK+i}")
        I(f"v_or3_b32 v{RK+i}, v{PA+i}, 12, v{RK+i}")
        I(f"ds_write_b8 v{RK+i}, v{D+i} offset:{IMG}")
    if waits:
        if hook:
            hook()
        else:
            I(f"s_waitcnt vmcnt({extra})")
            stamp(4)
    for i in range(4):
        if OPT["hack"]:
            I(f"v_and_b32 v{S+i}, {OPT['hack']}, v{S+i}")
        I(f"v_perm_b32 v{S+i}, v{EE+(i>>1)}, v{S+i}, s{69+(i&1)}")
        I(f"ds_write_b32 v{PA+i}, v{S+i} offset:{IMG}")

def copy_consts():
    I("s_lshr_b32 s64, s2, 7")
    I("s_lshl_b32 s64, s64, 14")
    I(f"s_add_u32 s64, s64, {hex(CELL_OFF)}")
    I(f"v_mul_u32_u24 v6, {BIN_STRIDE//4}, v5")
    I("v_lshl_add_u32 v6, v0, 4, v6")
    I("v_add_u32 v6, s64, v6")
    I(f"v_add_u32 v7, {128*BIN_STRIDE}, v6")
    I(f"s_mul_i32 s64, s2, {BIN_STRIDE}")
    I(f"s_add_u32 s64, s64, {hex(CELL_OFF)}")
    I("v_lshl_add_u32 v2, v0, 4, s64")
    I("v_add_u32 v3, 0x4000, v2")
    I("s_mov_b32 s36, 0x0f0f0f0f")
    I("s_mov_b32 s37, s36")
    if OPT["w32"] == 2:
        I("v_mov_b32 v102, 0")
    elif OPT["w32"]:
        I("v_bfe_u32 v102, v0, 1, 2")
        I("v_bfe_u32 v103, v0, 2, 1")
        I(f"v_mul_u32_u24 v102, {6*INC}, v102")
        I("v_mul_u32_u24 v102, v102, v103")
    else:
        I("v_bfe_u32 v102, v0, 2, 1")
        I(f"v_mul_u32_u24 v102, {12*INC}, v102")
    I(f"s_mov_b32 s39, {24*INC}")
    I("s_mov_b32 s40, 0xc000")
    I("s_mov_b32 s41, 0xffc0c0c0")
    I(f"s_mov_b32 s42, {49 << 16}")
    I("s_mov_b32 s43, 0")
    if not OPT["nreg"]:
        I("s_mov_b32 s38, 0")
    I("v_mov_b32 v1, 0")
    I(f"s_mov_b32 s{S_TAB+2}, {0 if OPT['nog'] else TAB_ROWS}")
    I(f"s_mov_b32 s{S_TAB+3}, 0x20000")

def lds_init_addr():
    I("v_add_u32 v5, s2, v3")
    I("v_and_b32 v5, 127, v5")
    I(f"v_mul_u32_u24 v4, {IMG_STRIDE}, v5")
    I("v_lshl_add_u32 v4, v2, 4, v4")
    I("v_lshlrev_b32 v5, 2, v5")
    I("v_mov_b32 v12, 0")
    I("v_mov_b32 v13, 0x3f3f3f")
def lds_init():
    I(f"ds_write2st64_b32 v5, v12, v12 offset0:{C1_OFF//256} offset1:{C1_OFF//256+2}")
    for b in range(2):
        I(f"ds_write_b32 v4, v13 offset:{IMG + b*B2 + 12}")
def edge_addr():
    I(f"s_mul_i32 s64, s2, {CHUNK*4}")
    I("v_lshl_add_u32 v10, v0, 4, s64")
    I("v_lshrrev_b32 v11, 1, v10")

def gen():
    o(".p2align 8")
    o(f".globl {KNAME}")
    o(f".type {KNAME},@function")
    L(KNAME)
    I("s_cmp_ge_u32 s2, 256")
    I("s_cbranch_scc1 K_END")
    stamp(0); stamp(1)
    I("s_load_dwordx16 s[4:19], s[0:1], 0")
    I("s_load_dwordx8 s[20:27], s[0:1], 64")
    if OPT["spin"]:
        I("s_memrealtime s[98:99]")
    if OPT["codepf"]:
        I("s_getpc_b64 s[64:65]")
        L("A_PC")
        I("v_lshlrev_b32 v8, 7, v0")
        I("v_cmp_gt_u32 vcc, K_SLOW-A_PC, v8")
        I("s_and_b64 exec, exec, vcc")
        I("s_cbranch_execz A_NOPF")
        I("global_load_dword v27, v8, s[64:65]")
        L("A_NOPF")
        I("s_mov_b64 exec, -1")
    I("v_lshrrev_b32 v1, 6, v0")
    I("v_and_b32 v2, 7, v0")
    I("v_readfirstlane_b32 s3, v1")
    I("v_lshrrev_b32 v3, 3, v0")
    I("s_cmp_ge_u32 s3, 12")
    I("s_cbranch_scc0 E_ALL")
    XA, FA, FB, ACC1, ACC2 = 28, 36, 68, 104, 36
    I("s_setprio 3")
    if OPT["nreg"]:
        I("s_memrealtime s[70:71]")
    if OPT["inv"]:
        I({1: "buffer_inv sc1", 2: "buffer_inv sc0 sc1"}[OPT["inv"]])
    I("v_and_b32 v7, 7, v3")
    I("s_and_b32 s64, s3, 1")
    I("s_lshl_b32 s64, s64, 2")
    I("v_and_b32 v8, 2, v7")
    I("v_xor_b32 v8, v8, v2")
    I("v_xor_b32 v8, s64, v8")
    I("v_lshlrev_b32 v8, 4, v8")
    I("v_lshl_add_u32 v8, v7, 7, v8")
    I("s_and_b32 s78, s3, 3")
    I("s_lshl_b32 s78, s78, 11")
    I("v_add_u32 v126, s78, v8")
    I(f"s_add_u32 s78, s78, {W_OFF}")
    I("s_add_u32 s66, s3, 3")
    I("s_and_b32 s66, s66, 3")
    I("v_xor_b32 v9, v2, v7")
    I("v_lshlrev_b32 v9, 4, v9")
    I("v_lshl_add_u32 v9, v7, 15, v9")
    I("s_lshl_b32 s67, s66, 19")
    I("s_lshl_b32 s68, s2, 7")
    I("s_add_u32 s67, s67, s68")
    I("v_add_u32 v9, s67, v9")
    I("v_add_u32 v15, 0x40000, v9")
    I("s_lshl_b32 s67, s66, 11")
    I(f"s_mov_b32 s{S_X+2}, {N*128}")
    I(f"s_mov_b32 s{S_X+3}, 0x20000")
    I("s_mov_b32 m0, s67")
    I("s_or_b32 s64, s2, s66")
    I("s_waitcnt lgkmcnt(0)")
    stamp(24)
    if OPT["nreg"]:
        I("s_cbranch_scc1 G_NOPICK")
        I("s_bfe_u32 s70, s70, 0x40003")
        I("s_add_u32 s70, s70, 1")
        I("v_mov_b32 v12, s70")
        I("v_mov_b32 v13, 0")
        I("s_mov_b64 exec, 1")
        I(f"global_atomic_cmpswap v13, v[12:13], {sr(P_DBG,2)} sc1")
        I("s_mov_b64 exec, -1")
        L("G_NOPICK")
    I(f"s_mov_b64 {sr(S_X,2)}, {sr(P_X,2)}")
    I(f"buffer_load_dwordx4 v9, {sr(S_X,4)}, 0 offen lds")
    I("s_add_u32 m0, s67, 1024")
    I("s_nop 0")
    I(f"buffer_load_dwordx4 v15, {sr(S_X,4)}, 0 offen lds")
    def w_dma(p, off, va="v126", sd="s78"):
        I(f"s_add_u32 m0, {sd}, {off}")
        I("s_nop 0")
        I(f"global_load_lds_dwordx4 {va}, {sr(p,2)}")
        I(f"global_load_lds_dwordx4 {va}, {sr(p,2)} offset:1024")
    w_dma(P_WB, 0)
    w_dma(P_WV, 8192)
    L("E_ALL")
    edge_addr()
    I(f"v_cmp_gt_u32 vcc, {CHUNK//4}, v0")
    I("s_mov_b64 s[74:75], vcc")
    I(f"v_cmp_gt_u32 vcc, {E*4}, v10")
    I("s_and_b64 s[74:75], s[74:75], vcc")
    I("s_mov_b32 s79, 0")
    if OPT["dsl"] == 2:
        I("s_waitcnt lgkmcnt(0)")
    lds_init_addr()
    if OPT["dsl"] == 1:
        I("s_waitcnt lgkmcnt(0)")
    lds_init()
    if OPT["dsl"] == 0:
        I("s_waitcnt lgkmcnt(0)")
    stamp(25)
    I("s_mov_b64 exec, s[74:75]")
    I("s_cbranch_execz E_NOD")
    edge_loads(0, OPT["pre"])
    L("E_NOD")
    I("s_mov_b64 exec, -1")
    I("s_cmp_ge_u32 s3, 2")
    I("s_cbranch_scc1 E_NOZ")
    I("v_lshlrev_b32 v8, 4, v0")
    I("v_mov_b64 v[28:29], 0")
    I("v_mov_b64 v[30:31], 0")
    I(f"ds_write_b128 v8, v[28:31] offset:{C2_OFF}")
    L("E_NOZ")
    if OPT["cmid"]:
        copy_consts()
    else:
        I("s_waitcnt lgkmcnt(0)")
        I("s_barrier")
    I("s_mov_b64 exec, s[74:75]")
    I("s_cbranch_execz E_NOS")
    edge_loads(OPT["pre"], 3)
    L("E_NOS")
    I("s_mov_b64 exec, -1")
    if not OPT["cmid"]:
        copy_consts()
    I("s_cmp_ge_u32 s3, 12")
    I("s_cbranch_scc1 G_MAIN")
    if OPT["cmid"]:
        I("s_waitcnt lgkmcnt(0)")
        I("s_barrier")
    stamp(2)
    I("s_cmp_eq_u32 s3, 1")
    I("s_cbranch_scc0 A_NOEP")
    I(f"s_add_u32 s70, s{P_WS}, {hex(CTL_OFF)}")
    I(f"s_addc_u32 s71, s{P_WS+1}, 0")
    I("s_load_dwordx2 s[72:73], s[70:71], 8")
    if OPT["fw"]:
        I(f"s_lshl_b32 s76, s2, {OPT['fs']}")
        I(f"s_add_u32 s76, s76, {hex(FLG_OFF - CTL_OFF)}")
        I("s_load_dword s77, s[70:71], s76")
    L("A_NOEP")
    if OPT["bsync"] and not OPT["cmid"]:
        I("s_barrier")
    I("s_mov_b64 exec, s[74:75]")
    I("s_cbranch_execz A_NOBIN")
    binning(True)
    L("A_NOBIN")
    I("s_mov_b64 exec, -1")
    I("s_cmp_eq_u32 s3, 1")
    I("s_cbranch_scc0 A_JOIN")
    I("s_waitcnt lgkmcnt(0)")
    I("s_add_u32 s72, s72, 0x1000000")
    I("s_addc_u32 s73, s73, 0")
    I("s_and_b32 s72, s72, 0xff000000")
    for k in range(3):
        I(f"s_bfe_u32 s64, s73, {hex((2 << 16) | (2*k))}")
        I(f"s_lshl_b32 s64, s64, {6 + 8*k}")
        I("s_or_b32 s72, s72, s64")
    I("s_lshr_b32 s64, s72, 10")
    I("s_and_b32 s64, s64, 0xc000")
    I(f"v_mov_b32 v{TG+2}, s64")
    I(f"v_mov_b32 v{TG+3}, s72")
    I(f"ds_write_b64 v1, {vr(TG+2,2)} offset:{TAGS}")
    I("s_branch A_JOIN")

    L("G_MAIN")
    I("s_mov_b32 s48, 0")
    I(f"s_mov_b32 s{S_X+3}, 0x20000")
    I("v_and_b32 v126, 0x1bf0, v126")
    I("v_and_b32 v100, 7, v0")
    I("v_lshlrev_b32 v100, 4, v100")
    I(f"s_mov_b32 s{S_X+2}, {TAB_ROWS*256}")
    I("v_and_b32 v124, 15, v0")
    I("v_bfe_u32 v125, v0, 4, 2")
    I("v_and_b32 v8, 7, v124")
    I("v_lshlrev_b32 v9, 1, v125")
    I("v_xor_b32 v8, v8, v9")
    I("v_lshlrev_b32 v8, 4, v8")
    I("v_lshl_add_u32 v8, v124, 7, v8")
    I("v_add_u32 v8, s67, v8")
    I("v_xor_b32 v9, 16, v8")
    I("v_lshrrev_b32 v10, 2, v124")
    I("v_and_b32 v11, 2, v10")
    I("v_bfe_u32 v12, v0, 1, 1")
    I("v_or_b32 v11, v11, v12")
    I("v_and_b32 v12, 1, v125")
    I("v_lshl_or_b32 v11, v12, 2, v11")
    I("v_lshlrev_b32 v11, 4, v11")
    I("v_and_b32 v12, 1, v0")
    I("v_lshl_or_b32 v11, v12, 3, v11")
    I("v_lshl_add_u32 v10, v125, 4, v10")
    I("v_lshl_or_b32 v11, v10, 7, v11")
    I(f"v_add_u32 v12, {W_OFF}, v11")
    for T in range(1, 4):
        I(f"v_xor_b32 v{12+T}, {T << 5}, v12")
    I(f"s_mov_b32 s76, {hex(f32(-LOG2E))}")
    I("s_mov_b32 s77, 0x07060302")
    I(f"v_mov_b32 v26, {hex(f32(2.0**-70))}")
    I("s_lshl_b32 s64, s66, 20")
    I("s_lshl_b32 s65, s2, 8")
    I("s_add_u32 s64, s64, s65")
    I("v_lshlrev_b32 v27, 18, v125")
    I("v_lshl_add_u32 v27, v124, 4, v27")
    I("v_add_u32 v27, s64, v27")
    I("v_mov_b32 v10, 1")
    def g_sync(target, lab, arrive=True):
        if arrive:
            I("s_mov_b64 exec, 1")
            I(f"ds_add_u32 v1, v10 offset:{SYNC}")
            I("s_mov_b64 exec, -1")
        L(lab)
        I(f"ds_read_b32 v11, v1 offset:{SYNC}")
        I("s_waitcnt lgkmcnt(0)")
        I("v_readfirstlane_b32 s64, v11")
        I(f"s_cmp_lt_u32 s64, {target}")
        I(f"s_cbranch_scc1 {lab}")
    def frag_reads(F, moff):
        for T in range(4):
            for s in range(2):
                for h in range(2):
                    I(f"ds_read_b64_tr_b16 {vr(F + 8*T + 4*s + 2*h, 2)}, v{12+T} offset:{moff + (8*s+4*h)*128}")
    def mfmas(F, acc, swap, later):
        for T in range(4):
            I(f"s_waitcnt lgkmcnt({min(15, later + 4*(3-T))})")
            for s in range(2):
                a, b = vr(XA + 4*s, 4), vr(F + 8*T + 4*s, 4)
                if swap:
                    a, b = b, a
                c = "0" if s == 0 else vr(acc + 4*T, 4)
                I(f"v_mfma_f32_16x16x32_bf16 {vr(acc+4*T,4)}, {a}, {b}, {c}")
    if OPT["cmid"]:
        I("s_waitcnt lgkmcnt(0)")
        if not OPT["bsync"]:
            I("s_barrier")
    stamp(2)
    I("s_cmp_eq_u64 s[74:75], 0")
    I("s_cbranch_scc1 G_W0")
    I("s_waitcnt vmcnt(3)")
    I("s_branch G_W1")
    L("G_W0")
    I("s_waitcnt vmcnt(0)")
    L("G_W1")
    stamp(3)
    if OPT["bsync"]:
        I("s_barrier")
    else:
        g_sync(4, "G_S1")
    stamp(20)
    if OPT["nreg"]:
        I(f"s_load_dword s38, {sr(P_DBG,2)}, 0")
    I(f"ds_read_b128 {vr(XA,4)}, v8")
    I(f"ds_read_b128 {vr(XA+4,4)}, v9")
    frag_reads(FA, 0)
    frag_reads(FB, 8192)
    stamp(21)
    w_dma(P_WA, 16384, "v126", "s78")
    w_dma(P_WU, 24576, "v126", "s78")
    I("s_cmp_eq_u32 s3, 13")
    I("s_cbranch_scc0 G_NOWC")
    I(f"s_mov_b32 m0, {WC_OFF}")
    I("s_mov_b64 exec, 0xff")
    I(f"global_load_lds_dwordx4 v100, {sr(P_WC,2)}")
    I("s_mov_b64 exec, -1")
    L("G_NOWC")
    stamp(22)
    mfmas(FA, ACC1, False, 16)
    mfmas(FB, ACC2, False, 0)
    stamp(23)
    ACCB, ACCV, OUTR = ACC1, ACC2, FB
    SD = sdwa("WORD_1")
    I("s_mov_b32 s80, 0x8000")
    I("s_mov_b32 s81, 0x8000")
    I(f"s_mov_b32 s68, {hex(f32(2.0**-100))}")
    I("s_mov_b32 s69, s68")
    I("v_mov_b32 v10, v26")
    I("v_mov_b32 v11, v26")
    I("s_nop 1")
    for rp in (0, 2):
        for t in range(4):
            I(f"v_pk_fma_f32 {vr(ACCB+4*t+rp,2)}, {vr(ACCB+4*t+rp,2)}, s[76:77], v[10:11] op_sel_hi:[1,0,1]")
        for t in (1, 3):
            I(f"v_pk_add_f32 {vr(ACCV+4*t+rp,2)}, {vr(ACCV+4*t+rp,2)}, s[68:69]")
        for t in range(4):
            I(f"v_lshl_add_u64 {vr(ACCB+4*t+rp,2)}, {vr(ACCB+4*t+rp,2)}, 0, s[80:81]")
        for t in range(4):
            I(f"v_lshl_add_u64 {vr(ACCV+4*t+rp,2)}, {vr(ACCV+4*t+rp,2)}, 0, s[80:81]")
        for r in (rp, rp + 1):
            for t in (0, 2):
                I(f"v_sub_u32_sdwa v{ACCB+4*t+r}, v{ACCB+4*t+r}, v{ACCV+4*t+r} clamp {SD}")
            for t in (0, 2):
                I(f"v_sub_u32_sdwa v{ACCV+4*(t+1)+r}, v{ACCV+4*(t+1)+r}, v{ACCB+4*t+r} clamp {SD}")
            for t in (0, 2):
                I(f"v_sub_u32_sdwa v{ACCB+4*(t+1)+r}, v{ACCB+4*(t+1)+r}, v{ACCV+4*(t+1)+r} clamp {SD}")
            for t in range(4):
                I(f"v_perm_b32 v{OUTR+4*r+t}, v{ACCB+4*t+r}, v{ACCV+4*t+r}, s77")
            if r == 0:
                if OPT["nreg"]:
                    I("s_cmp_eq_u32 s38, 0")
                    I("s_cbranch_scc1 R_AREA")
                    L("G_AREA")
                    I(f"s_and_b32 s38, s38, {OPT['nreg']-1}")
                    I(f"s_mul_i32 s38, s38, {REG_STRIDE}")
                    I(f"s_add_u32 s{S_X}, s{P_WS}, s38")
                    I(f"s_addc_u32 s{S_X+1}, s{P_WS+1}, 0")
                    I("v_mov_b32 v26, s38")
                    I(f"ds_write_b32 v1, v26 offset:{TAGS+16}")
                else:
                    I(f"s_mov_b64 {sr(S_X,2)}, {WS}")
                I("s_cmp_eq_u32 s3, 12")
                I("s_cbranch_scc1 G_T3")
            elif OPT["tst"] == 2:
                I("v_add_u32 v27, 0x10000, v27")
            if OPT["tst"] == 2:
                I(f"buffer_store_dwordx4 {vr(OUTR+4*r,4)}, v27, {sr(S_X,4)}, 0 offen sc1")

    stamp(4)
    L("G_BVD")
    I(f"s_waitcnt vmcnt({4 if OPT['tst'] == 2 else 0})")
    I("s_branch G_DONE")
    L("G_T3")
    I("s_cmp_eq_u32 s2, 212")
    I("s_cbranch_scc0 G_NODUM")
    for t in range(4):
        I(f"v_mov_b32 v{OUTR+t}, 0x7f000000")
    L("G_NODUM")
    if OPT["tst"] == 2:
        I(f"buffer_store_dwordx4 {vr(OUTR,4)}, v27, {sr(S_X,4)}, 0 offen sc1")
    I(f"s_waitcnt vmcnt({5 if OPT['tst'] == 2 else 4})")
    I("s_mov_b64 exec, s[74:75]")
    I("s_cbranch_execz G_NOBIN")
    I("v_mov_b32 v126, v14")
    binning(False)
    I("v_mov_b32 v14, v126")
    L("G_NOBIN")
    I("s_mov_b64 exec, -1")
    I(f"ds_read_b128 {vr(XA,4)}, v8")
    I(f"ds_read_b128 {vr(XA+4,4)}, v9")
    stamp(4)
    I(f"s_waitcnt vmcnt({1 if OPT['tst'] == 2 else 0})")
    L("G_DONE")
    if OPT["drain"]:
        I("s_waitcnt vmcnt(0)")
    if OPT["gprio"] and not OPT["cprio"]:
        I("s_setprio 0")
    stamp(5)

    L("A_JOIN")
    if OPT["cprio"]:
        I("s_setprio 3")
    I("s_waitcnt lgkmcnt(0)")
    stamp(6)
    I("s_barrier")
    stamp(7)
    C0 = 68 if OPT["tst"] == 2 else 48
    if OPT["nreg"]:
        I(f"ds_read_b32 v11, v1 offset:{TAGS+16}")
    I(f"ds_read_b64 {vr(TG+2,2)}, v1 offset:{TAGS}")
    I(f"ds_read2st64_b32 v[8:9], v5 offset0:{C1_OFF//256} offset1:{C1_OFF//256+2}")
    I(f"ds_read_b128 {vr(C0,4)}, v4 offset:{IMG}")
    I(f"ds_read_b128 {vr(C0+4,4)}, v4 offset:{IMG+B2}")
    def tagit(c):
        for k in range(3):
            I(f"v_bfi_b32 v{c+k}, s40, v{TG+2}, v{c+k}")
        I(f"v_or_b32 v{c+3}, v{TG+3}, v{c+3}")
    I("s_waitcnt lgkmcnt(2)")
    if OPT["nreg"]:
        I("v_readfirstlane_b32 s38, v11")
    I("v_cmp_le_u32 s[72:73], v102, v8")
    I("v_cmp_le_u32 s[74:75], v102, v9")
    I("v_max_u32 v10, v8, v9")
    I("v_cmp_le_u32 vcc, s39, v10")
    if OPT["nreg"]:
        I(f"s_add_u32 s{P_WS}, s{P_WS}, s38")
        I(f"s_addc_u32 s{P_WS+1}, s{P_WS+1}, 0")
    def table_stores(lab):
        I(f"s_mov_b64 {sr(S_X,2)}, {WS}")
        I(f"buffer_store_dwordx4 {vr(OUTR,4)}, v27, {sr(S_X,4)}, 0 offen sc1")
        I("s_cmp_eq_u32 s3, 12")
        I(f"s_cbranch_scc1 {lab}")
        for r in range(1, 4):
            I("v_add_u32 v27, 0x10000, v27")
            I(f"buffer_store_dwordx4 {vr(OUTR+4*r,4)}, v27, {sr(S_X,4)}, 0 offen sc1")
        L(lab)
    if OPT["tst"] == 1:
        I("s_cmp_ge_u32 s3, 12")
        I("s_cbranch_scc0 A_TSD")
        table_stores("A_TSD")
    def cell_store(k):
        I(f"s_mov_b64 exec, s[{72+2*k}:{73+2*k}]")
        I(f"global_store_dwordx4 v{6+k}, {vr(C0+4*k,4)}, {WS} sc1")
    if OPT["gl"]:
        I("s_cmp_ge_u32 s3, 12")
        I("s_waitcnt lgkmcnt(1)")
        tagit(C0)
        I("s_cbranch_scc1 A_GL1")
        cell_store(0)
        I("s_mov_b64 exec, -1")
        L("A_GL1")
        I("s_waitcnt lgkmcnt(0)")
        tagit(C0 + 4)
        I("s_cbranch_scc1 A_GL2")
        cell_store(1)
        L("A_GL2")
    else:
        I("s_waitcnt lgkmcnt(1)")
        tagit(C0)
        cell_store(0)
        I("s_mov_b64 exec, s[74:75]")
        I("s_waitcnt lgkmcnt(0)")
        tagit(C0 + 4)
        I(f"global_store_dwordx4 v7, {vr(C0+4,4)}, {WS} sc1")
    I("s_cbranch_vccnz R_PUB2")
    L("A_PUBD")
    I("s_mov_b64 exec, -1")
    if OPT["cprio"]:
        I("s_setprio 0")
    stamp(8)
    I("s_cmp_ge_u32 s3, 12")
    I("s_cbranch_scc0 B_NOAU")
    if OPT["tst"] == 0:
        table_stores("A_TSD")
    I("s_mov_b32 s84, s66")
    I("s_setprio 1")
    FU, FW, UU = 36, 84, 52
    def half_gemm(moff, acc, swap):
        for T in range(4):
            F = (FU if T < 2 else FW) + 8 * (T & 1)
            for s in range(2):
                for h in range(2):
                    I(f"ds_read_b64_tr_b16 {vr(F + 4*s + 2*h, 2)}, v{12+T} offset:{moff + (8*s+4*h)*128}")
        for T in range(4):
            F = (FU if T < 2 else FW) + 8 * (T & 1)
            I(f"s_waitcnt lgkmcnt({4*(3-T)})")
            for s in range(2):
                a, b = vr(XA + 4*s, 4), vr(F + 4*s, 4)
                if swap:
                    a, b = b, a
                c = "0" if s == 0 else vr(acc + 4*T, 4)
                I(f"v_mfma_f32_16x16x32_bf16 {vr(acc+4*T,4)}, {a}, {b}, {c}")
    half_gemm(16384, AP, False)
    def flag_store():
        I(f"s_lshl_b32 s64, s2, {OPT['fs']-2}")
        I("s_add_u32 s64, s64, s84")
        I("s_lshl_b32 s64, s64, 2")
        I(f"s_add_u32 s64, s64, {hex(FLG_OFF)}")
        I("s_sub_u32 s64, s64, s38")
        I("v_mov_b32 v26, s64")
        I(f"v_xor_b32 v25, s48, v{TG+3}")
        I("s_mov_b64 exec, 1")
        I(f"global_store_dword v26, v25, {WS} sc1")
        I("s_mov_b64 exec, -1")
    if OPT["tst"] == 2:
        I(f"s_waitcnt vmcnt({0 if OPT['gl'] else 2})")
        stamp(29)
        if OPT["gl"]:
            cell_store(0)
            cell_store(1)
            I("s_mov_b64 exec, -1")
        flag_store()
    half_gemm(24576, UU, True)
    I(f"s_mul_i32 s65, s66, {16*EAU_STRIDE}")
    I(f"s_add_u32 s65, s65, {EAU_OFF}")
    I(f"v_mul_u32_u24 v26, {4*EAU_STRIDE}, v125")
    I("v_lshl_add_u32 v26, v124, 4, v26")
    I("v_add_u32 v25, s65, v26")
    I(f"v_mul_u32_u24 v27, {EAU_STRIDE}, v124")
    I("v_lshl_add_u32 v27, v125, 4, v27")
    I("v_add_u32 v27, s65, v27")
    for i in range(16):
        I(f"v_mul_f32 v{AP+i}, s76, v{AP+i}")
    I("s_cmp_eq_u32 s3, 12")
    I("s_cselect_b32 exec_lo, 0x000f000f, -1")
    I("s_cselect_b32 exec_hi, 0x000f000f, -1")
    for T in range(4):
        I(f"ds_write_b128 v27, {vr(UU+4*T,4)} offset:{256 + T*64}")
    I("s_cselect_b32 exec_hi, 0, -1")
    I("s_cselect_b32 exec_lo, 0xffff, -1")
    I(f"v_max3_f32 v26, |v{AP}|, |v{AP+1}|, |v{AP+2}|")
    for i in range(3, 15, 2):
        I(f"v_max3_f32 v26, |v{AP+i}|, |v{AP+i+1}|, v26")
    I(f"v_max_f32 v26, |v{AP+15}|, v26")
    I(f"v_cmp_nge_f32 vcc, {hex(f32(63.0))}, v26")
    EAT = 36
    for r in range(4):
        for t in range(4):
            I(f"v_add_f32 v{EAT+4*r+t}, {hex(f32(-float(KEXP)))}, v{AP+4*t+r}")
        for t in range(4):
            I(f"ds_write_b32 v25, v{AP+4*t+r} offset:{r*EAU_STRIDE + 512 + 4*t}")
            I(f"v_exp_f32 v{EAT+4*r+t}, v{EAT+4*r+t}")
        I("s_nop 0")
        I(f"ds_write_b128 v25, {vr(EAT+4*r,4)} offset:{r*EAU_STRIDE}")
        if r == 0:
            I("s_cbranch_scc1 G_EAD")
    L("G_EAD")
    I("s_mov_b64 exec, -1")
    I("s_cmp_lg_u64 vcc, 0")
    I("s_cselect_b32 s79, 1, 0")
    if OPT["cad"]:
        I("s_branch B_CONST")
    L("B_NOAU")
    if OPT["cad"]:
        I("s_waitcnt vmcnt(0)")
    L("B_CONST")

    RA, CA, KA, RB, CB, KB = 8, 24, 36, 64, 72, 78
    XB, Y, A = 48, 80, 100
    IP = (96, 98, 104, 106)
    UR, XR, VOUT, VU, LP, EP = 108, 112, 116, 117, 118, 120
    WCB, DEN, NUM, VOOB, C4, VRA, VSE, EA, P, Q, SS, LC = 16, 20, 44, 30, 31, 42, 32, 12, 24, 8, 36, 4
    I(f"s_mov_b32 s{S_TAB}, s{P_WS}")
    I(f"s_or_b32 s{S_TAB+1}, s{P_WS+1}, 0x1000000")
    I("v_and_b32 v5, 63, v0")
    I("s_cmp_lt_u32 s2, 212")
    I("s_cselect_b32 s64, 49, 48")
    I("v_cmp_gt_u32 s[82:83], s64, v5")
    I("v_lshlrev_b32 v5, 2, v5")
    I(f"v_and_b32 v{LC}, 15, v0")
    I(f"v_lshlrev_b32 v6, 1, v{LC}")
    for j in range(4):
        I(f"ds_read_u16 v{WCB+j}, v6 offset:{WC_OFF + 32*j}")
    I(f"v_lshlrev_b32 v{LC}, 4, v{LC}")
    I(f"v_mov_b32 v{C4}, 4")
    I(f"v_mov_b32 v{VOOB}, {OOB}")
    for p_ in IP:
        I(f"v_mov_b32 v{p_+1}, v{LC}")
    I(f"v_lshlrev_b32 v{LP}, 1, v6")
    I(f"v_mov_b32 v{LP+1}, v{LC}")
    I("v_lshrrev_b32 v7, 4, v0")
    I(f"v_mul_u32_u24 v{VU}, {EAU_STRIDE}, v7")
    I(f"s_mov_b32 s64, {EAU_OFF + 256}")
    I(f"v_add3_u32 v{VU}, v{VU}, s64, v{LC}")
    I("v_lshlrev_b32 v8, 2, v6")
    I("v_and_b32 v9, 0x70, v0")
    I("v_xor_b32 v9, v8, v9")
    I("v_lshl_add_u32 v9, v7, 7, v9")
    I(f"ds_read_b64 {vr(XR+2,2)}, v9 offset:{X_OFF}")
    I(f"v_lshl_add_u32 v{VOUT}, v7, 15, v8")
    I("s_lshl_b32 s64, s2, 7")
    I(f"v_add_u32 v{VOUT}, s64, v{VOUT}")
    srd(S_X, P_OUT, N * 128)
    for d in range(0, 4, 2):
        I(f"v_mov_b64 {vr(A+d,2)}, 0")
        I(f"v_mov_b64 {vr(DEN+d,2)}, 0")
        I(f"v_mov_b64 {vr(NUM+d,2)}, 0")
    I("s_mov_b64 s[68:69], -1")
    I("s_mov_b64 s[70:71], -1")
    I("s_cmp_lt_u32 s3, 4")
    I("s_cselect_b32 s78, 2, 0")
    I(f"s_mov_b32 s16, {hex(f32(2.0**-KEXP))}")
    I("s_mov_b32 s17, s16")
    I(f"s_mov_b32 s18, {hex(f32(1e-6 * 2.0**KEXP))}")
    I("s_mov_b32 s19, s18")
    I("s_mov_b32 s20, 32")
    I("s_mov_b32 s21, 32")
    I(f"s_mov_b32 s24, {SLOT_STRIDE}")
    I(f"s_mov_b32 s25, {EAU_STRIDE}")
    I(f"s_mov_b32 s85, {LIST_OFF}")
    I("s_mov_b32 s56, 0x11111111")
    I("s_mov_b32 s57, s56")
    I("s_lshl_b64 s[58:59], s[56:57], 1")
    I("s_lshl_b64 s[60:61], s[56:57], 2")
    I("s_lshl_b64 s[62:63], s[56:57], 3")
    I("v_bfe_u32 v124, v0, 4, 2")
    I("v_bfe_u32 v125, v0, 5, 1")
    I("v_bfe_u32 v126, v0, 2, 1")
    I("v_lshl_add_u32 v125, v126, 1, v125")
    I("v_bfe_u32 v126, v0, 3, 2")
    I("v_lshlrev_b32 v126, 2, v126")
    I("v_bfe_u32 v34, v0, 2, 3")
    I("s_lshl_b32 s64, s3, 3")
    I("s_sub_u32 s64, s2, s64")
    I("v_sub_u32 v34, s64, v34")
    I("v_and_b32 v34, 127, v34")
    I("v_and_b32 v35, 32, v0")
    I("v_lshl_add_u32 v34, v35, 2, v34")
    I("v_and_b32 v35, 3, v0")
    if OPT["pf"] or OPT["pf2"] or OPT["pf3"] or OPT["pf4"]:
        I("v_lshlrev_b32 v33, 8, v34")
        I("v_lshl_add_u32 v33, v35, 20, v33")
        I("s_lshr_b32 s64, s2, 4")
        I("s_lshl_b32 s64, s64, 16")
        I("s_bfe_u32 s65, s2, 0x10003")
        I("s_lshl_b32 s65, s65, 7")
        I("s_add_u32 s64, s64, s65")
        I("v_add_u32 v33, s64, v33")
    if OPT["pf5"]:
        I("v_lshlrev_b32 v33, 8, v34")
        I("v_and_b32 v32, 1, v35")
        I("v_lshl_add_u32 v33, v32, 7, v33")
        I("v_lshrrev_b32 v32, 1, v35")
        I("v_lshl_add_u32 v33, v32, 16, v33")
        I("s_sub_u32 s64, s3, 13")
        I("s_lshl_b32 s64, s64, 20")
        I("s_lshr_b32 s65, s2, 7")
        I("s_lshl_b32 s65, s65, 19")
        I("s_add_u32 s64, s64, s65")
        I("v_add_u32 v33, s64, v33")
    I(f"v_lshlrev_b32 v34, {OPT['fs']}, v34")
    I("v_lshl_add_u32 v34, v35, 2, v34")
    I(f"s_sub_u32 s64, {hex(FLG_OFF)}, s38")
    I("v_add_u32 v34, s64, v34")
    I(f"s_mov_b32 s64, {hex(f32(-LOG2E))}")
    I("s_mov_b32 s66, 0x0000ffff")
    I("s_mov_b32 s67, 0xffff0000")
    I("s_waitcnt lgkmcnt(0)")
    for j in range(4):
        I(f"v_lshlrev_b32 v{WCB+j}, 16, v{WCB+j}")
    for j in range(4):
        I(f"v_mul_f32 v{WCB+j}, s64, v{WCB+j}")
    for j in range(4):
        I(f"v_cvt_pk_bf16_f32 v{WCB+j}, 0, v{WCB+j}")
    for j in range(4):
        I(f"v_cndmask_b32 v{WCB+j}, 0, v{WCB+j}, s[66:67]")
    I(f"v_lshlrev_b32 v{XR}, 16, v{XR+2}")
    I(f"v_and_b32 v{XR+1}, 0xffff0000, v{XR+2}")
    I(f"v_lshlrev_b32 v{XR+2}, 16, v{XR+3}")
    I(f"v_and_b32 v{XR+3}, 0xffff0000, v{XR+3}")
    I("s_setprio 0")
    if OPT["fl"]:
        I("s_waitcnt vmcnt(1)")
        I("s_cmp_ge_u32 s3, 12")
        I("s_cbranch_scc1 B_DRD")
    I("s_waitcnt vmcnt(0)")
    if OPT["tst"] != 2:
        I("s_cmp_ge_u32 s3, 12")
        I("s_cbranch_scc0 B_DRD")
    if OPT["tst"] != 2:
        flag_store()
    L("B_DRD")
    if OPT["dbar"]:
        I("s_barrier")
    if OPT["delay"]:
        I(f"s_sleep {OPT['delay']}")
    stamp(9)
    I(f"global_load_dwordx4 {vr(RA,4)}, v2, {WS} sc1")
    I(f"global_load_dwordx4 {vr(RA+4,4)}, v3, {WS} sc1")

    def poll(R_, first, name):
        L(name)
        I("s_waitcnt vmcnt(0)")
        for k in range(2):
            I(f"s_mov_b64 exec, s[{68+2*k}:{69+2*k}]")
            for j in range(4):
                I(f"v_xor_b32 v{R_+4*k+j}, v{TG+2+(j == 3)}, v{R_+4*k+j}")
        I("s_mov_b64 exec, -1")
        for k in range(2):
            r = R_ + 4 * k
            I(f"v_or3_b32 v{6+k}, v{r}, v{r+1}, v{r+2}")
            I(f"v_and_b32 v{6+k}, s40, v{6+k}")
            I(f"v_and_or_b32 v{6+k}, v{r+3}, s41, v{6+k}")
            I(f"v_cmp_ne_u32 s[{68+2*k}:{69+2*k}], 0, v{6+k}")
            I(f"v_cmp_gt_u32 s[{64+2*k}:{65+2*k}], s42, v{r+3}")
        if first:
            for k in range(2):
                I(f"s_andn2_b64 s[{64+2*k}:{65+2*k}], s[{64+2*k}:{65+2*k}], s[{68+2*k}:{69+2*k}]")
                I(f"s_lshl_b64 s[{74+2*k}:{75+2*k}], s[{64+2*k}:{65+2*k}], 1")
                I(f"s_or_b64 s[{74+2*k}:{75+2*k}], s[{74+2*k}:{75+2*k}], s[36:37]")
        I("s_and_b64 s[72:73], s[68:69], s[74:75]")
        I("s_and_b64 s[80:81], s[70:71], s[76:77]")
        I("s_or_b64 s[72:73], s[72:73], s[80:81]")
        I(f"s_cbranch_scc1 {name}_RETRY")
    def retry(R_, first, name):
        L(name + "_RETRY")
        if first:
            for k in range(4):
                I(f"s_and_b32 s72, s{68+k}, s{74+k}")
                I("s_lshl_b32 s73, s72, 1")
                I("s_or_b32 s72, s72, s73")
                I("s_lshl_b32 s73, s72, 2")
                I("s_or_b32 s72, s72, s73")
                I("s_lshl_b32 s73, s72, 4")
                I("s_or_b32 s72, s72, s73")
                I(f"s_and_b32 s{68+k}, s{68+k}, s72")
        else:
            I("s_and_b64 s[68:69], s[68:69], s[74:75]")
            I("s_and_b64 s[70:71], s[70:71], s[76:77]")
        I("s_add_u32 s43, s43, 1")
        I(f"s_cmp_gt_u32 s43, {POLL_LIMIT}")
        I("s_cbranch_scc1 R_TIMEOUT")
        if OPT["sleep"]:
            I(f"s_sleep {OPT['sleep']}")
        reload(R_, name)
        I(f"s_branch {name}")
    def reload(R_, name):
        I("s_mov_b64 exec, s[68:69]")
        I(f"s_cbranch_execz {name}_1")
        I(f"global_load_dwordx4 {vr(R_,4)}, v2, {WS} sc1")
        L(name + "_1")
        I("s_mov_b64 exec, s[70:71]")
        I(f"s_cbranch_execz {name}_2")
        I(f"global_load_dwordx4 {vr(R_+4,4)}, v3, {WS} sc1")
        L(name + "_2")
    def ranks(R_, C_, K_, M_):
        for k in range(2):
            for j in range(3):
                I(f"v_lshlrev_b32_sdwa v{C_+3*k+j}, 2, v{R_+4*k+3} {sdwa('BYTE_'+str(j))}")
        for k in range(2):
            I(f"s_mov_b64 exec, s[{74+2*k}:{75+2*k}]")
            for j in range(3):
                m = M_ + 2 * (3 * k + j)
                I(f"v_cmp_gt_u32_sdwa s[{m}:{m+1}], 49, v{R_+4*k+3} src0_sel:DWORD src1_sel:BYTE_{j}")
            for j in range(3):
                m = M_ + 2 * (3 * k + j)
                I(f"s_mov_b64 exec, s[{m}:{m+1}]")
                I(f"ds_add_rtn_u32 v{K_+3*k+j}, v{C_+3*k+j}, v{C4} offset:{C2_OFF}")
        I("s_mov_b64 exec, -1")
    def more_test():
        I("s_and_b64 s[64:65], s[64:65], s[74:75]")
        I("s_and_b64 s[66:67], s[66:67], s[76:77]")
        I("s_or_b64 s[72:73], s[64:65], s[66:67]")
        I("s_or_b32 s72, s72, s73")
        I("s_and_b32 s72, s72, 0x80808080")
    MA, MB = 44, 4

    def pf5(lab):
        I("s_cmp_ge_u32 s3, 13")
        I(f"s_cbranch_scc0 {lab}")
        for k in range(OPT["pf5"]):
            if k:
                I("v_add_u32 v33, 0x20000, v33")
            I(f"global_load_dword v84, v33, {WS} sc1")
        L(lab)
    poll(RA, True, "B_P0")
    stamp(10)
    if OPT["ef"]:
        I(f"global_load_dword v35, v34, {WS} sc1")
    ranks(RA, CA, KA, MA)
    more_test()
    I("s_or_b32 s72, s72, s79")
    I("s_cbranch_scc1 R_MORE")
    L("B_RDONE")
    if OPT["stamp"]:
        I("v_writelane_b32 v127, s43, 19")
    I("s_waitcnt lgkmcnt(0)")
    I("s_barrier")
    stamp(11)
    I(f"ds_read_b32 v6, v5 offset:{C2_OFF}")
    if OPT["drain"]:
        if OPT["pf4"]:
            I(f"s_sub_u32 s71, s3, {OPT['pfw']}")
            I(f"s_cmp_lt_u32 s71, {OPT['pf4']}")
            I("s_cbranch_scc0 B_NOPF4")
            I("s_andn2_b64 exec, exec, s[62:63]")
            I(f"global_load_dword v84, v33, {WS} sc1")
            I("s_mov_b64 exec, -1")
            L("B_NOPF4")
    elif not OPT["ef"]:
        I(f"global_load_dword v35, v34, {WS} sc1")
        if OPT["pf5"] and not OPT["pfa"]:
            pf5("B_NOPF5")
    elif OPT["pf"]:
        I("s_sub_u32 s64, s3, 4")
        I(f"s_cmp_lt_u32 s64, {OPT['pf']}")
        I("s_cbranch_scc0 B_NOPF")
        I("s_waitcnt vmcnt(0)")
        I(f"v_cmp_eq_u32 vcc, v{TG+3}, v35")
        I("s_mov_b64 exec, vcc")
        I("s_cbranch_execz B_NOPF0")
        I(f"global_load_dword v84, v33, {WS} sc1")
        L("B_NOPF0")
        I("s_mov_b64 exec, -1")
        L("B_NOPF")
    I("s_waitcnt lgkmcnt(0)")
    I("v_add_u32 v2, 7, v6")
    I("v_and_b32 v2, -8, v2")
    I("v_max_u32 v2, 8, v2")
    I("v_cndmask_b32 v2, 0, v2, s[82:83]")
    if OPT["pf5"] and OPT["pfa"]:
        pf5("B_NOPF5")
    I("v_mov_b32 v3, v2")
    for d in ("row_shr:1 row_mask:0xf", "row_shr:2 row_mask:0xf", "row_shr:4 row_mask:0xf",
              "row_shr:8 row_mask:0xf", "row_bcast:15 row_mask:0xa", "row_bcast:31 row_mask:0xc"):
        I("s_nop 1")
        I(f"v_add_u32_dpp v3, v3, v3 {d} bank_mask:0xf")
    I("v_sub_u32 v7, v3, v2")
    I(f"ds_write_b32 v5, v7 offset:{BASE}")
    I("v_readlane_b32 s64, v3, 63")
    def lookup(C_):
        for i in range(6):
            I(f"ds_read_b32 v{C_+i}, v{C_+i} offset:{BASE}")
    def scatter(R_, C_, K_, M_):
        for i in range(6):
            if i % 3 == 0:
                I(f"s_waitcnt lgkmcnt({3-i})")
            I(f"v_add3_u32 v{C_+i}, v{C_+i}, v{K_+i}, s85")
        for i in range(6):
            I(f"s_mov_b64 exec, s[{M_+2*i}:{M_+2*i+1}]")
            I(f"ds_write_b32 v{C_+i}, v{R_+4*(i//3)+i%3}")
        I("s_mov_b64 exec, -1")
    lookup(CA)
    I("s_add_u32 s65, s64, 31")
    I("s_lshr_b32 s66, s65, 9")
    I("s_bfe_u32 s67, s65, 0x40005")
    I("s_mul_i32 s68, s66, s3")
    I("s_min_u32 s69, s67, s3")
    I("s_add_u32 s68, s68, s69")
    I("s_lshl_b32 s68, s68, 5")
    I("s_cmp_lt_u32 s3, s67")
    I("s_addc_u32 s72, s66, 0")
    I("s_lshl_b32 s69, s72, 3")
    I("s_add_u32 s70, s68, s85")
    if OPT["pf3"]:
        I(f"s_sub_u32 s71, s3, {OPT['pfw']}")
        I(f"s_cmp_lt_u32 s71, {OPT['pf3']}")
        I("s_cbranch_scc0 B_NOPF3")
        I("s_waitcnt vmcnt(0)")
        I(f"v_cmp_eq_u32 vcc, v{TG+3}, v35")
        I("s_andn2_b64 exec, vcc, s[62:63]")
        I("s_cbranch_execz B_NOPF30")
        I(f"global_load_dword v84, v33, {WS} sc1")
        L("B_NOPF30")
        I("s_mov_b64 exec, -1")
        L("B_NOPF3")
    scatter(RA, CA, KA, MA)
    I(f"v_mul_u32_u24 v{VRA}, s69, v124")
    I(f"v_mul_u32_u24 v{VRA+1}, s69, v125")
    I(f"v_add_u32 v{VRA}, s70, v{VRA}")
    I(f"v_add3_u32 v{VRA+1}, v{VRA+1}, s70, v126")
    if OPT["pf"] and OPT["ef"]:
        I("s_sub_u32 s71, s3, 4")
        I(f"s_cmp_lt_u32 s71, {OPT['pf']}")
        I("s_cbranch_scc1 B_FLW")
    if OPT["pf3"]:
        I(f"s_cmp_lt_u32 s71, {OPT['pf3']}")
        I("s_cbranch_scc1 B_FLW")
    if not OPT["drain"]:
        if OPT["pf5"]:
            I(f"s_waitcnt vmcnt({OPT['pf5']})")
            I("s_cmp_ge_u32 s3, 13")
            I("s_cbranch_scc1 B_FLW")
        I("s_waitcnt vmcnt(0)")
        L("B_FLW")
        I(f"v_cmp_ne_u32 vcc, v{TG+3}, v35")
    I("s_cmp_lg_u32 s78, 0")
    I("s_cbranch_scc1 R_EXTRA")
    L("B_XDONE")
    if not OPT["drain"]:
        I("s_cbranch_vccnz R_FLAGS")
    L("B_FDONE")
    if OPT["pf2"]:
        I(f"s_cmp_lt_u32 s3, {OPT['pf2']}")
        I("s_cbranch_scc0 B_NOPF2")
        I(f"global_load_dword v84, v33, {WS} sc1")
        L("B_NOPF2")
    I("s_waitcnt lgkmcnt(0)")
    I("s_barrier")
    stamp(12)
    def i_reads(batch, lo=0, hi=4):
        for i in range(lo, hi):
            I(f"ds_read_u16 v{IP[i]}, v{VRA} offset:{16*batch + 4*i}")
    def a_reads(batch):
        for d in range(4):
            I(f"s_mov_b64 exec, s[{56+2*d}:{57+2*d}]")
            I(f"ds_read_b32 v{A+d}, v{VRA+1} offset:{16*batch}")
        I("s_mov_b64 exec, -1")
    def gathers(x, lo, hi):
        for i in range(lo, hi):
            I(f"buffer_load_dwordx4 {vr(x+4*i,4)}, {vr(IP[i],2)}, {sr(S_TAB,4)}, 0 idxen offen {OPT['gsc'] if OPT['gsc'] != 'none' else ''}")
    i_reads(0)
    I("v_and_b32 v9, 0x3f0, v0")
    I(f"ds_read_b128 {vr(VSE,4)}, v9 offset:{STR}")
    I(f"ds_read_b32 v8, v1 offset:{FLAG}")
    if OPT["prio"]:
        I("s_setprio 3")
    I("s_waitcnt lgkmcnt(2)")
    gathers(XB, 0, 4)
    stamp(13)
    i_reads(1)
    I(f"ds_read_b128 {vr(EP,4)}, v9 offset:{EPI}")
    I(f"ds_read_b128 {vr(UR,4)}, v{VU}")
    I("s_waitcnt lgkmcnt(6)")
    I("v_readfirstlane_b32 s80, v8")
    I(f"v_lshl_add_u64 {vr(VSE,2)}, {vr(VSE,2)}, 0, {vr(LP,2)}")
    I(f"ds_read_b128 {vr(EA,4)}, v{VSE+1}")
    for q in range(4):
        I(f"v_readlane_b32 s{44+q}, v{VSE+2}, {16*q}")
    I(f"s_cmp_gt_u32 s64, {LIST_MAX}")
    I("s_cselect_b32 s81, 1, 0")
    I("s_or_b32 s80, s80, s81")
    if OPT["force_slow"]:
        I("s_branch K_SLOW")
    I("s_cbranch_scc1 K_SLOW")
    a_reads(0)
    for q in range(4):
        if OPT["cut"] & 8:
            I(f"s_mov_b32 s{44+q}, 0")
        I(f"s_bitset1_b32 s{44+q}, s72")
    I("s_or_b32 s82, s44, s45")
    I("s_or_b32 s83, s46, s47")
    I("s_or_b32 s82, s82, s83")
    if OPT["fp"]:
        th = [int(x) for x in str(OPT["fp"]).split("_")]
        I(f"s_lshl_b32 s81, 1, s72")
        for t_ in th:
            I(f"s_lshr_b32 s80, s81, {t_}")
            I("s_or_b32 s82, s82, s80")
    I("s_bfm_b32 s83, s72, 0")
    I("s_lshr_b32 s83, s83, 4")
    I("s_mov_b32 s73, 0")
    I("s_waitcnt lgkmcnt(5)")
    gathers(XB + 16, 0, 4)
    i_reads(2)
    for k in range(3):
        I(f"v_add_u32 v{EP+k}, v{EP+k}, v{LC}")
    I(f"v_cmp_lt_i32 s[48:49], 2, v{EP+3}")
    I("s_cmp_eq_u32 s72, 0")
    I("s_cbranch_scc1 K_JOIN")
    def mfma(x):
        I(f"v_mfma_f32_32x32x16_bf16 {vr(Y,16)}, {vr(A,4)}, {vr(WCB,4)}, {vr(x,16)}")
    stamp(14)
    I("s_waitcnt vmcnt(4) lgkmcnt(4)")
    mfma(XB)
    stamp(15)
    a_reads(1)
    nth = len(str(OPT["prio"]).split("_")) if OPT["prio"] else 0
    if OPT["prio"]:
        I(f"s_setprio {nth}")
    I("s_nop 2")
    L("K_LOOP")
    if OPT["prio"] and not OPT["fp"]:
        I("s_sub_u32 s74, s72, s73")
        for k, t_ in enumerate(int(x) for x in str(OPT["prio"]).split("_")):
            I(f"s_cmp_gt_u32 s74, {t_}")
            I("s_cbranch_scc1 K_STEP0")
            I(f"s_setprio {nth-1-k}")
    for u in range(4):
        bb, hh = u >> 1, u & 1
        x = XB + 16 * bb + 8 * hh
        t = Y + 8 * hh
        L(f"K_STEP{u}")
        for i in range(8):
            I(f"v_exp_f32 v{t+i}, v{t+i}")
        for i in range(4):
            I(f"v_lshlrev_b64 {vr(x+2*i,2)}, 16, {vr(x+2*i,2)}")
        for i in range(4):
            I(f"v_pk_fma_f32 {vr(t+2*i,2)}, {vr(t+2*i,2)}, {vr(EA+2*(i&1),2)}, s[16:17] clamp")
        I(f"v_pk_mul_f32 {vr(P,2)}, {vr(t,2)}, {vr(t+4,2)}")
        I(f"v_pk_mul_f32 {vr(P+2,2)}, {vr(t+2,2)}, {vr(t+6,2)}")
        I(f"v_pk_mul_f32 {vr(Q,2)}, {vr(x,2)}, {vr(t+4,2)}")
        I(f"v_pk_mul_f32 {vr(Q+2,2)}, {vr(x+2,2)}, {vr(t+6,2)}")
        I(f"v_pk_add_f32 {vr(SS,2)}, {vr(t,2)}, {vr(t+4,2)}")
        I(f"v_pk_add_f32 {vr(SS+2,2)}, {vr(t+2,2)}, {vr(t+6,2)}")
        I(f"v_pk_fma_f32 {vr(Q,2)}, {vr(x+4,2)}, {vr(t,2)}, {vr(Q,2)}")
        I(f"v_pk_fma_f32 {vr(Q+2,2)}, {vr(x+6,2)}, {vr(t+2,2)}, {vr(Q+2,2)}")
        if OPT["sup"]:
            I(f"s_bitcmp1_b32 s83, {u}")
            I(f"s_cselect_b32 s{S_TAB+2}, s{S_TAB+2}, 0")
        if hh == 0:
            I("s_waitcnt lgkmcnt(0)")
            if not OPT["cut"] & 4:
                gathers(XB + 16 * bb, 0, 2)
            for i in range(4):
                I(f"v_rcp_f32 v{P+i}, v{P+i}")
        else:
            I("s_waitcnt vmcnt(2)")
            if not OPT["cut"] & 1:
                mfma(XB + 16 * (1 - bb))
            for i in range(4):
                I(f"v_rcp_f32 v{P+i}, v{P+i}")
            if not OPT["cut"] & 4:
                gathers(XB + 16 * bb, 2, 4)
        I(f"v_pk_fma_f32 {vr(NUM,2)}, {vr(Q,2)}, {vr(P,2)}, {vr(NUM,2)}")
        I(f"v_pk_fma_f32 {vr(DEN,2)}, {vr(SS,2)}, {vr(P,2)}, {vr(DEN,2)}")
        I(f"v_pk_fma_f32 {vr(NUM+2,2)}, {vr(Q+2,2)}, {vr(P+2,2)}, {vr(NUM+2,2)}")
        I(f"v_pk_fma_f32 {vr(DEN+2,2)}, {vr(SS+2,2)}, {vr(P+2,2)}, {vr(DEN+2,2)}")
        if hh == 1:
            if not OPT["cut"] & 4:
                i_reads(bb + 3)
            if not OPT["cut"] & 2:
                a_reads(bb + 2)
        I(f"s_bitcmp1_b32 s82, {u+1}")
        I(f"s_cbranch_scc1 K_FLUSH{u}")
        L(f"K_BACK{u}")
    I(f"v_lshl_add_u64 {vr(VRA,2)}, {vr(VRA,2)}, 0, s[20:21]")
    I("s_lshr_b32 s82, s82, 4")
    I("s_lshr_b32 s83, s83, 4")
    I("s_add_u32 s73, s73, 4")
    I("s_branch K_LOOP")
    for u in range(4):
        L(f"K_FLUSH{u}")
        I(f"s_add_u32 s74, s73, {u+1}")
        for h in range(2):
            I(f"s_bitcmp1_b32 s{44+2*h}, s74")
            I("s_cselect_b32 s75, 0xffff, 0")
            I(f"s_bitcmp1_b32 s{45+2*h}, s74")
            I("s_cselect_b32 s80, 0xffff0000, 0")
            I(f"s_or_b32 {'exec_hi' if h else 'exec_lo'}, s75, s80")
        if OPT["fp"]:
            I("s_sub_u32 s75, s72, s74")
            for k, t_ in enumerate(th):
                I(f"s_cmp_gt_u32 s75, {t_}")
                I(f"s_cbranch_scc1 K_FP{u}")
                I(f"s_setprio {len(th)-1-k}")
            L(f"K_FP{u}")
            I(f"s_cbranch_execz K_FQ{u}")
        I(f"ds_write2_b32 v{VSE}, v{DEN}, v{DEN+1} offset0:0 offset1:16")
        I(f"ds_write2_b32 v{VSE}, v{DEN+2}, v{DEN+3} offset0:32 offset1:48")
        I(f"ds_write2_b32 v{VSE}, v{NUM}, v{NUM+1} offset0:64 offset1:80")
        I(f"ds_write2_b32 v{VSE}, v{NUM+2}, v{NUM+3} offset0:96 offset1:112")
        I("s_cmp_eq_u32 s74, s72")
        I("s_cbranch_scc1 K_JOIN")
        I(f"v_lshl_add_u64 {vr(VSE,2)}, {vr(VSE,2)}, 0, s[24:25]")
        I(f"ds_read_b128 {vr(DEN,4)}, v{VOOB}")
        I(f"ds_read_b128 {vr(NUM,4)}, v{VOOB}")
        I(f"ds_read_b128 {vr(EA,4)}, v{VSE+1}")
        I("s_waitcnt lgkmcnt(0)")
        L(f"K_FQ{u}")
        I("s_mov_b64 exec, -1")
        I(f"s_branch K_BACK{u}")

    L("K_JOIN")
    I("s_mov_b64 exec, -1")
    stamp(16)
    I("s_cmp_lt_u32 s3, 13")
    I("s_waitcnt lgkmcnt(0)")
    I("s_barrier")
    stamp(17)
    I("s_cbranch_scc0 K_FIN")
    for k in range(3):
        I(f"ds_read_b128 {vr(8+8*k,4)}, v{EP+k}")
    for k in range(3):
        I(f"ds_read_b128 {vr(12+8*k,4)}, v{EP+k} offset:256")
    I("s_cmp_lg_u64 s[48:49], 0")
    I("s_waitcnt lgkmcnt(3)")
    for k in (1, 2):
        for i in range(2):
            I(f"v_pk_add_f32 {vr(8+2*i,2)}, {vr(8+2*i,2)}, {vr(8+8*k+2*i,2)}")
    I("s_waitcnt lgkmcnt(0)")
    for k in (1, 2):
        for i in range(2, 4):
            I(f"v_pk_add_f32 {vr(8+2*i,2)}, {vr(8+2*i,2)}, {vr(8+8*k+2*i,2)}")
    I("s_cbranch_scc1 R_LONG")
    L("K_MATH")
    stamp(26)
    I("v_pk_add_f32 v[8:9], v[8:9], s[18:19]")
    I("v_pk_add_f32 v[10:11], v[10:11], s[18:19]")
    for c in range(4):
        I(f"v_rcp_f32 v{8+c}, v{8+c}")
    I("s_nop 0")
    I(f"v_pk_fma_f32 v[8:9], v[12:13], v[8:9], {vr(UR,2)}")
    I(f"v_pk_fma_f32 v[10:11], v[14:15], v[10:11], {vr(UR+2,2)}")
    for c in range(4):
        I(f"v_max_f32 v{8+c}, 0, v{8+c}")
    I(f"v_pk_add_f32 v[8:9], v[8:9], {vr(XR,2)}")
    I(f"v_pk_add_f32 v[10:11], v[10:11], {vr(XR+2,2)}")
    I("v_cvt_pk_bf16_f32 v12, v8, v9")
    I("v_cvt_pk_bf16_f32 v13, v10, v11")
    stamp(27)
    I(f"buffer_store_dwordx2 v[12:13], v{VOUT}, {sr(S_X,4)}, 0 offen {OPT['osc'].replace('none','').replace('_',' ')}")
    L("K_FIN")
    if OPT["probe"]:
        I("s_or_b32 s64, s2, s3")
        I("s_cmp_eq_u32 s64, 0")
        I("s_cbranch_scc0 PRB_D")
        I("s_load_dwordx2 s[66:67], s[0:1], 88")
        I("s_memrealtime s[98:99]")
        I("s_waitcnt lgkmcnt(0)")
        I(f"v_mov_b32 v8, {hex(CTL_OFF + 0x40000)}")
        I("global_load_dword v9, v8, s[66:67] sc1")
        I("v_mov_b32 v10, 0x13572468")
        I("s_waitcnt vmcnt(0)")
        I("v_readfirstlane_b32 s64, v9")
        I("global_store_dword v8, v10, s[66:67] sc1")
        I("s_cmp_eq_u32 s64, 0x13572468")
        I(f"s_cbranch_scc{OPT['probe']-1} PRB_D")
        L("PRB_W")
        I("s_memrealtime s[90:91]")
        I("s_waitcnt lgkmcnt(0)")
        I("s_sub_u32 s90, s90, s98")
        I("s_cmp_lt_u32 s90, 5000")
        I("s_cbranch_scc1 PRB_W")
        L("PRB_D")
    stamp(18)
    stamp_out()
    L("K_END")
    I("s_endpgm")

    if OPT["nreg"]:
        L("R_AREA")
        I(f"global_load_dword v26, v1, {sr(P_DBG,2)} sc1")
        I("s_add_u32 s43, s43, 1")
        I("s_waitcnt vmcnt(0)")
        I("v_readfirstlane_b32 s38, v26")
        I("s_cmp_lg_u32 s38, 0")
        I("s_cbranch_scc1 G_AREA")
        I(f"s_cmp_le_u32 s43, {POLL_LIMIT}")
        I("s_cbranch_scc1 R_AREA")
        I("s_mov_b32 s48, 1")
        I("s_branch G_AREA")
    L("R_PUB2")
    I("s_mov_b64 exec, vcc")
    I(f"ds_read_b128 {vr(C0+8,4)}, v4 offset:{IMG+128}")
    I(f"ds_read_b128 {vr(C0+12,4)}, v4 offset:{IMG+B2+128}")
    I("v_and_b32 v10, 7, v0")
    I(f"v_mul_u32_u24 v10, {3*INC}, v10")
    I(f"v_add_u32 v10, {24*INC}, v10")
    I("s_waitcnt lgkmcnt(0)")
    for b in range(2):
        w3 = C0 + 11 + 4 * b
        I(f"v_and_b32 v{w3}, 0x3f3f3f, v{w3}")
        for j in range(3):
            I(f"v_add_u32 v11, {j*INC}, v10")
            I(f"v_cmp_le_u32 s[70:71], v{8+b}, v11")
            I(f"v_or_b32 v11, {0x3f << (8*j)}, v{w3}")
            I("s_nop 0")
            I(f"v_cndmask_b32 v{w3}, v{w3}, v11, s[70:71]")
    I(f"v_add_u32 v8, {hex(LINE_STRIDE)}, v6")
    I(f"v_add_u32 v9, {hex(LINE_STRIDE)}, v7")
    tagit(C0 + 8)
    tagit(C0 + 12)
    I(f"global_store_dwordx4 v8, {vr(C0+8,4)}, {WS} sc1")
    I(f"global_store_dwordx4 v9, {vr(C0+12,4)}, {WS} sc1")
    I("s_branch A_PUBD")
    retry(RA, True, "B_P0")
    L("R_MORE")
    I("s_cmp_lg_u32 s79, 0")
    I("s_cbranch_scc1 R_REQ")
    if OPT["nol2"]:
        I("s_branch B_RDONE")
    for k in range(4):
        I(f"s_lshr_b32 s{74+k}, s{64+k}, 7")
        I(f"s_and_b32 s{74+k}, s{74+k}, 0x01010101")
        I(f"s_mul_i32 s{74+k}, s{74+k}, 0xff")
    I("s_mov_b64 s[68:69], s[74:75]")
    I("s_mov_b64 s[70:71], s[76:77]")
    I(f"v_add_u32 v2, {hex(LINE_STRIDE)}, v2")
    I(f"v_add_u32 v3, {hex(LINE_STRIDE)}, v3")
    reload(RB, "B_N1")
    poll(RB, False, "B_P1")
    ranks(RB, CB, KB, MB)
    I("s_or_b32 s78, s78, 1")
    more_test()
    I("s_cbranch_scc0 B_RDONE")
    I("s_mov_b32 s79, 1")
    I("s_branch R_REQ")
    retry(RB, False, "B_P1")
    L("R_TIMEOUT")
    I("s_mov_b32 s79, 3")
    for k in range(6):
        I(f"s_mov_b64 s[{MA+2*k}:{MA+2*k+1}], 0")
    I(f"v_mov_b32 v35, v{TG+3}")
    I("v_mov_b32 v33, 0x388000")
    L("R_REQ")
    I("v_mov_b32 v6, s79")
    I(f"ds_or_b32 v1, v6 offset:{FLAG}")
    I("s_branch B_RDONE")
    def bump():
        I(f"s_sub_u32 s71, {hex(CTL_OFF)}, s38")
        I("v_mov_b32 v48, s71")
        I("v_mov_b32 v50, 0x1000000")
        I("v_mov_b32 v51, 0")
        I("s_mov_b64 exec, 1")
        I(f"global_atomic_add_x2 v48, v[50:51], {WS} offset:8 sc1")
        I("s_mov_b64 exec, -1")
    L("R_EXTRA")
    I("s_bitcmp1_b32 s78, 0")
    I("s_cbranch_scc0 R_X2")
    I("s_waitcnt lgkmcnt(0)")
    lookup(CB)
    scatter(RB, CB, KB, MB)
    L("R_X2")
    I("s_bitcmp1_b32 s78, 1")
    I("s_cbranch_scc0 B_XDONE")
    I("s_cmp_eq_u32 s3, 1")
    I("s_cbranch_scc1 R_PAD")
    I("s_add_u32 s71, s66, 1")
    I("v_cvt_f32_u32 v48, s71")
    I("v_cvt_f32_u32 v49, s66")
    I("s_lshl_b32 s73, s67, 2")
    I("s_mul_i32 s71, s71, s73")
    I("v_rcp_f32 v48, v48")
    I("v_rcp_f32 v49, v49")
    I("v_cvt_f32_u32 v50, s71")
    I("v_cvt_f32_u32 v51, s73")
    I("v_fma_f32 v50, -v50, v49, v51")
    I(f"v_mov_b32 v51, {hex(f32(0.125))}")
    def stream_of(dst, src, half):
        I(f"v_cvt_f32_u32 v{dst}, v{src}")
        I(f"v_fma_f32 v{dst}, v{dst}, v51, {half}")
        I(f"v_mul_f32 v52, v{dst}, v48")
        I(f"v_fma_f32 v{dst}, v{dst}, v49, v50")
        I(f"v_max_f32 v{dst}, v{dst}, v52")
        I(f"v_cvt_u32_f32 v{dst}, v{dst}")
    stream_of(53, 3, "-0.5")
    I("s_cmp_eq_u32 s3, 2")
    I("s_cbranch_scc1 R_EPI")
    I("s_cmp_eq_u32 s3, 3")
    I("s_cbranch_scc1 R_FIRST")
    I("v_min_u32 v55, s73, v53")
    I("v_mad_u32_u24 v55, v53, s66, v55")
    I("v_lshrrev_b32 v56, 3, v3")
    I("v_sub_u32 v55, v56, v55")
    I("v_lshlrev_b32 v55, v55, 1")
    I("v_lshlrev_b32 v56, 4, v53")
    I("s_mov_b64 exec, s[82:83]")
    I(f"ds_or_b32 v56, v55 offset:{STR + 8}")
    I("s_mov_b64 exec, -1")
    I("s_branch B_XDONE")
    L("R_FIRST")
    I("v_mov_b32 v54, -1")
    I("v_cndmask_b32 v53, 63, v53, s[82:83]")
    I(f"v_mul_u32_u24 v59, {EAU_STRIDE//4}, v5")
    I(f"v_add_u32 v59, {EAU_OFF}, v59")
    I("v_mov_b32_dpp v54, v53 wave_shr:1 row_mask:0xf bank_mask:0xf")
    I("v_lshl_add_u32 v58, v54, 2, v5")
    I(f"v_mul_i32_i24 v58, {SLOT_STRIDE//4}, v58")
    I(f"v_add_u32 v58, {SLOT_OFF}, v58")
    I("v_lshlrev_b32 v54, 4, v54")
    I("v_lshlrev_b32 v53, 4, v53")
    L("R_FIRST1")
    I("v_cmp_lt_i32 s[74:75], v54, v53")
    I("s_mov_b64 exec, s[74:75]")
    I("s_cbranch_execz R_FIRST2")
    I("v_add_u32 v54, 16, v54")
    I(f"v_add_u32 v58, {SLOT_STRIDE}, v58")
    I(f"ds_write_b64 v54, v[58:59] offset:{STR}")
    I("s_branch R_FIRST1")
    L("R_FIRST2")
    I("s_mov_b64 exec, -1")
    I("s_branch B_XDONE")
    L("R_EPI")
    stream_of(54, 7, "0.5")
    I("v_sub_u32 v59, v53, v54")
    I("v_lshl_add_u32 v56, v54, 2, v5")
    I(f"v_mul_u32_u24 v56, {SLOT_STRIDE//4}, v56")
    I(f"v_add_u32 v56, {SLOT_OFF}, v56")
    I("v_cmp_lt_i32 s[74:75], 0, v59")
    I("v_cmp_lt_i32 s[76:77], 1, v59")
    I(f"v_add_u32 v57, {SLOT_STRIDE}, v56")
    I(f"v_add_u32 v58, {2*SLOT_STRIDE}, v56")
    I(f"v_cndmask_b32 v57, v{VOOB}, v57, s[74:75]")
    I(f"v_cndmask_b32 v58, v{VOOB}, v58, s[76:77]")
    I("v_lshlrev_b32 v55, 2, v5")
    I(f"ds_write_b128 v55, v[56:59] offset:{EPI}")
    I("s_branch B_XDONE")
    L("R_PAD")
    I(f"v_mov_b32 v52, {N}")
    I(f"v_add_u32 v53, {LIST_OFF - 8}, v3")
    I("v_cmp_lt_u32 s[74:75], v6, v2")
    I("s_mov_b64 exec, s[74:75]")
    I("ds_write_b32 v53, v52 offset:4")
    I("v_cmp_eq_u32 s[74:75], 0, v6")
    I("s_mov_b64 exec, s[74:75]")
    I("ds_write_b32 v53, v52")
    I("s_mov_b64 exec, 0x3f")
    I("s_add_u32 s71, s64, s85")
    I("v_add_u32 v53, s71, v5")
    I("ds_write_b32 v53, v52")
    I("s_mov_b64 exec, -1")
    I("s_cmp_eq_u32 s2, 0")
    I("s_cbranch_scc0 B_XDONE")
    bump()
    I("s_branch B_XDONE")
    L("R_FLAGS")
    I("s_add_u32 s43, s43, 1")
    I(f"s_cmp_gt_u32 s43, {POLL_LIMIT}")
    I("s_cbranch_scc1 R_FLAGT")
    I("s_sleep 2")
    I("s_mov_b64 exec, vcc")
    I(f"global_load_dword v35, v34, {WS} sc1")
    I("s_waitcnt vmcnt(0)")
    I(f"v_cmp_ne_u32 vcc, v{TG+3}, v35")
    I("s_mov_b64 exec, -1")
    I("s_branch B_XDONE")
    L("R_FLAGT")
    I("v_mov_b32 v52, 3")
    I(f"ds_or_b32 v1, v52 offset:{FLAG}")
    I("s_branch B_FDONE")
    L("R_LONG")
    I("s_mov_b32 s64, 2")
    I("s_mov_b64 vcc, s[48:49]")
    L("R_LONG1")
    I("s_mov_b64 exec, vcc")
    I(f"v_add_u32 v{EP+2}, {SLOT_STRIDE}, v{EP+2}")
    I(f"ds_read_b128 v[16:19], v{EP+2}")
    I(f"ds_read_b128 v[20:23], v{EP+2} offset:256")
    I("s_add_u32 s64, s64, 1")
    I("s_waitcnt lgkmcnt(0)")
    for i in range(4):
        I(f"v_pk_add_f32 {vr(8+2*i,2)}, {vr(8+2*i,2)}, {vr(16+2*i,2)}")
    I(f"v_cmp_lt_i32 vcc, s64, v{EP+3}")
    I("s_cbranch_vccnz R_LONG1")
    I("s_mov_b64 exec, -1")
    I("s_branch K_MATH")

    L("K_SLOW")
    I("s_load_dwordx8 s[4:11], s[0:1], 0")
    I("s_load_dwordx2 s[12:13], s[0:1], 40")
    I("s_load_dwordx2 s[14:15], s[0:1], 64")
    I("s_setprio 0")
    I("s_waitcnt vmcnt(0) lgkmcnt(0)")
    I("s_cmp_eq_u32 s3, 15")
    I("s_cselect_b32 s71, s80, 0")
    I("s_and_b32 s71, s71, 2")
    I("s_cbranch_scc0 K_SL0")
    bump()
    I("s_waitcnt vmcnt(0)")
    L("K_SL0")
    WB2, WV2 = 40, 72
    I("v_lshrrev_b32 v6, 1, v5")
    I("v_add_u32 v7, 4096, v6")
    for (w, p_) in ((WB2, 12), (WV2, 14)):
        for hf in range(2):
            for k in range(16):
                I(f"global_load_ushort v{w + 16*hf + k}, v{6 + hf}, s[{p_}:{p_+1}] offset:{2*k*128}")
                I(f"global_load_ushort v{8 + k}, v{6 + hf}, s[{p_}:{p_+1}] offset:{(2*k+1)*128}")
            I("s_waitcnt vmcnt(0)")
            for k in range(16):
                I(f"v_lshl_or_b32 v{w + 16*hf + k}, v{8 + k}, 16, v{w + 16*hf + k}")
    for i in range(4):
        I(f"v_mov_b32 v{28+i}, 0")
    I("v_lshlrev_b32 v8, 4, v0")
    for k in range(4):
        I(f"ds_write_b128 v8, v[28:31] offset:{SLOT_OFF + k*16384}")
    I(f"ds_read_u16 v18, v6 offset:{WC_OFF}")
    I(f"s_mov_b32 s18, {hex(f32(1e-6))}")
    I("s_mov_b32 s19, s18")
    I(f"s_mov_b32 s16, {hex(f32(-LOG2E))}")
    I(f"v_lshl_add_u32 v17, v124, 2, v{LC}")
    I("v_lshlrev_b32 v10, 1, v5")
    I("s_waitcnt lgkmcnt(0)")
    I("v_lshlrev_b32 v18, 16, v18")
    I("s_barrier")
    I("v_lshlrev_b32 v8, 2, v0")
    I("v_lshlrev_b32 v9, 1, v0")
    I("s_lshl_b32 s70, s3, 6")
    L("K_SLOOP")
    I(f"global_load_dword v11, v8, {sr(P_DST,2)}")
    I(f"global_load_dword v12, v8, {sr(P_SRC,2)}")
    I(f"global_load_ushort v13, v9, {sr(P_E,2)}")
    I("s_waitcnt vmcnt(0)")
    I("v_and_b32 v14, 0xff, v11")
    I("v_cmp_eq_u32 s[74:75], s2, v14")
    L("K_SIN")
    I("s_cmp_eq_u64 s[74:75], 0")
    I("s_cbranch_scc1 K_SNEXT")
    I("s_ff1_i32_b64 s73, s[74:75]")
    I("s_bitset0_b64 s[74:75], s73")
    I("v_readlane_b32 s79, v11, s73")
    I("v_readlane_b32 s80, v12, s73")
    I("v_readlane_b32 s81, v13, s73")
    I("s_lshr_b32 s79, s79, 8")
    I(f"s_mul_i32 s76, s79, {EAU_STRIDE}")
    I(f"s_add_u32 s76, s76, {EAU_OFF + 512}")
    I(f"s_mul_i32 s79, s79, {ACC_STRIDE}")
    I("s_lshl_b32 s80, s80, 7")
    I("s_add_u32 s78, s80, 64")
    I(f"s_load_dwordx16 s[36:51], {sr(P_X,2)}, s80")
    I(f"s_load_dwordx16 s[52:67], {sr(P_X,2)}, s78")
    I("s_lshl_b32 s81, s81, 16")
    I("v_add_u32 v15, s76, v17")
    I("v_add_u32 v16, s79, v10")
    I("ds_read_b32 v22, v15")
    I("v_mul_f32 v20, s81, v18")
    I("v_mov_b32 v21, 0")
    I("s_waitcnt lgkmcnt(0)")
    for k in range(32):
        I(f"v_dot2_f32_bf16 v20, s{36+k}, v{WB2+k}, v20")
        I(f"v_dot2_f32_bf16 v21, s{36+k}, v{WV2+k}, v21")
    I("s_nop 2")
    I("v_fma_f32 v20, v20, s16, v22")
    I("v_exp_f32 v20, v20")
    I("s_nop 0")
    I("v_add_f32 v20, 1.0, v20")
    I("v_rcp_f32 v20, v20")
    I("s_nop 0")
    I("v_mul_f32 v21, v21, v20")
    I("v_cvt_f64_f32 v[24:25], v20")
    I("v_cvt_f64_f32 v[26:27], v21")
    I(f"ds_add_f64 v16, v[24:25] offset:{SLOT_OFF}")
    I(f"ds_add_f64 v16, v[26:27] offset:{SLOT_OFF + 512}")
    I("s_branch K_SIN")
    L("K_SNEXT")
    I("s_add_u32 s70, s70, 1024")
    I("v_add_u32 v8, 4096, v8")
    I("v_add_u32 v9, 2048, v9")
    I(f"s_cmp_lt_u32 s70, {E}")
    I("s_cbranch_scc1 K_SLOOP")
    I("v_lshrrev_b32 v6, 4, v0")
    I(f"v_mul_u32_u24 v6, {ACC_STRIDE}, v6")
    I(f"v_lshl_add_u32 v6, v{LC}, 1, v6")
    I("s_waitcnt lgkmcnt(0)")
    I("s_barrier")
    I("s_cmp_lt_u32 s3, 13")
    I("s_cbranch_scc0 K_FIN")
    I(f"ds_read_b128 v[16:19], v6 offset:{SLOT_OFF}")
    I(f"ds_read_b128 v[20:23], v6 offset:{SLOT_OFF+16}")
    I(f"ds_read_b128 v[24:27], v6 offset:{SLOT_OFF+512}")
    I(f"ds_read_b128 v[28:31], v6 offset:{SLOT_OFF+528}")
    I("s_waitcnt lgkmcnt(0)")
    for c in range(8):
        I(f"v_cvt_f32_f64 v{8+c}, {vr(16+2*c,2)}")
    I("s_branch K_MATH")
    L("SLOW_END")

hdr = open("standalone__edge_featured_mpnn_gatedgcn__graph.s.ref").read().split("\n")
for line in hdr:
    if line.startswith("; Override"):
        break
    o(line)
o(f"; @launch kernel={KNAME} grid=(256,1,1) block=(1024,1,1) lds={LDS_TOTAL}")
o('.amdgcn_target "amdgcn-amd-amdhsa--gfx950"')
o(".text")
gen()
o('.section .rodata,"a"')
o(".p2align 6")
o(f".amdhsa_kernel {KNAME}")
o("  .amdhsa_next_free_vgpr 128")
o("  .amdhsa_next_free_sgpr 102")
o("  .amdhsa_accum_offset 128")
o("  .amdhsa_group_segment_fixed_size 0")
o("  .amdhsa_kernarg_size 96")
o("  .amdhsa_user_sgpr_count 2")
o("  .amdhsa_user_sgpr_kernarg_segment_ptr 1")
o("  .amdhsa_system_sgpr_workgroup_id_x 1")
o(".end_amdhsa_kernel")
open(sys.argv[1], "w").write("\n".join(out) + "\n")
```
